```python
import torch

def _softmax(x, axis=-1):
    return torch.softmax(x, dim=axis)
def _gelu(x):
    return torch.nn.functional.gelu(x, approximate="tanh")
def _silu(x):
    return torch.nn.functional.silu(x)
def _sigmoid(x):
    return torch.sigmoid(x)
def _layernorm(x, axis=-1, eps=1e-5):
    m = x.mean(dim=axis, keepdim=True)
    v = x.var(dim=axis, keepdim=True, unbiased=False)
    return (x - m) / torch.sqrt(v + eps)
def _scatter_add(tgt, idx, src, axis=0):
    return tgt.clone().index_add_(axis, idx, src)
def _segment_sum(src, seg, n):
    out = torch.zeros((n,) + src.shape[1:], dtype=src.dtype)
    return out.index_add_(0, seg, src)
def _pad(x, pw):
    flat = tuple(v for pair in reversed(pw) for v in pair)
    return torch.nn.functional.pad(x, flat)

kernel_name = 'standalone__mha_block_cached__near_ridge'

def setup_inputs():

    _w = (lambda a: (lambda t: t.to(torch.bfloat16) if t.is_floating_point() else t)(torch.as_tensor(a)))
    B, Sq, D = 8, 288, 576
    H, Sk, Dh = 32, 2048, 128
    return {
        "x": _w((lambda *s: torch.randn(*s, dtype=torch.bfloat16) * 0.8)(B, Sq, D)),
        "k_cache": _w((lambda *s: torch.randn(*s, dtype=torch.bfloat16) * 0.8)(B, H, Sk, Dh)),
        "v_cache": _w((lambda *s: torch.randn(*s, dtype=torch.bfloat16) * 0.05)(B, H, Sk, Dh)),
        "wq": _w((lambda *s: torch.randn(*s, dtype=torch.bfloat16) * 0.8)(D, H * Dh) * (D ** -0.5)),
        "wo": _w((lambda *s: torch.randn(*s, dtype=torch.bfloat16) * 0.05)(H * Dh, D) * ((H * Dh) ** -0.5)),
    }

def reference(x, k_cache, v_cache, wq, wo):
    B, Sq, D = x.shape
    H, Dh = 32, 128
    q = (lambda x, *d: x.permute(*d))((x @ wq).reshape(B, Sq, H, Dh), 0, 2, 1, 3)
    scores = torch.einsum("bhqd,bhkd->bhqk", q, k_cache) * (Dh ** -0.5)
    p = _softmax(scores, axis=-1)
    o = torch.einsum("bhqk,bhkd->bhqd", p, v_cache)
    return (lambda x, *d: x.permute(*d))(o, 0, 2, 1, 3).reshape(B, Sq, H * Dh) @ wo
```

```python
import re

REG = re.compile(r"\b([vas])(\d+)\b|\b([vas])\[(\d+):(\d+)\]")
TRANS = ("v_exp_f32", "v_log_f32", "v_rcp_f32", "v_rsq_f32", "v_sqrt_f32", "v_sin_f32", "v_cos_f32")


def regs_of(op):
    out = set()
    op = op.strip()
    for m in REG.finditer(op):
        if m.group(1):
            out.add((m.group(1), int(m.group(2))))
        else:
            for i in range(int(m.group(4)), int(m.group(5)) + 1):
                out.add((m.group(3), i))
    if re.search(r"\bvcc\b", op):
        out.add(("s", "vcc"))
    if re.search(r"\bm0\b", op):
        out.add(("s", "m0"))
    if re.search(r"\bexec\b", op):
        out.add(("s", "exec"))
    return out


def split_ops(rest):
    ops, depth, cur = [], 0, ""
    for ch in rest:
        if ch == "[":
            depth += 1
        if ch == "]":
            depth -= 1
        if ch == "," and depth == 0:
            ops.append(cur.strip())
            cur = ""
        else:
            cur += ch
    if cur.strip():
        ops.append(cur.strip())
    return ops


class I:
    def __init__(self, text):
        self.text = text
        t = text.split(";")[0].strip()
        parts = t.split(None, 1)
        self.op = parts[0]
        ops = split_ops(parts[1]) if len(parts) > 1 else []
        self.ops = ops
        self.w, self.r = set(), set()
        self.kind = "other"
        self.states = 1
        op = self.op
        if op == "s_nop":
            self.states = int(ops[0], 0) + 1
            self.kind = "salu"
        elif op.startswith("v_mfma"):
            self.kind = "mfma"
            self.D, self.A, self.B, self.C = (regs_of(o) for o in ops[:4])
            self.w = self.D
            self.r = self.A | self.B | self.C
            self.passes = 8 if "32x32x16" in op else 4
        elif op.startswith("v_"):
            self.kind = "valu"
            if op.startswith("v_cmp"):
                self.w = regs_of(ops[0])
                for o in ops[1:]:
                    self.r |= regs_of(o)
            elif op.startswith("v_permlane") and "swap" in op:
                self.w = regs_of(ops[0]) | regs_of(ops[1])
                self.r = set(self.w)
            else:
                self.w = regs_of(ops[0])
                k = 1
                if op.startswith(("v_add_co", "v_addc_co", "v_sub_co", "v_mad_u64")):
                    self.w |= regs_of(ops[1])
                    k = 2
                for o in ops[k:]:
                    self.r |= regs_of(o)
                if op.startswith(("v_fmac", "v_dot2c")):
                    self.r |= regs_of(ops[0])
            self.trans = op.startswith(TRANS)
        elif op.startswith("ds_read"):
            self.kind = "ds"
            self.w = regs_of(ops[0])
            self.r = regs_of(ops[1])
        elif op.startswith("ds_"):
            self.kind = "ds"
            if op.startswith(("ds_bpermute", "ds_swizzle", "ds_permute")):
                self.w = regs_of(ops[0])
                for o in ops[1:]:
                    self.r |= regs_of(o)
            else:
                for o in ops:
                    self.r |= regs_of(o)
        elif op.startswith(("buffer_", "global_")):
            self.kind = "vmem"
            self.lds = bool(re.search(r"\blds\b", t))
            if "load" in op and not self.lds:
                self.w = regs_of(ops[0])
                for o in ops[1:]:
                    self.r |= regs_of(o)
            else:
                for o in ops:
                    self.r |= regs_of(o)
                if self.lds:
                    self.r.add(("s", "m0"))
            self.widestore = ("store" in op) and (op.endswith("x4") or op.endswith("x3"))
            if self.widestore:
                self.sdata = regs_of(ops[0]) if op.startswith("buffer_") else regs_of(ops[1])
        elif op.startswith("s_"):
            self.kind = "salu"
            if op.startswith(("s_cmp", "s_waitcnt", "s_barrier", "s_branch", "s_cbranch", "s_endpgm",
                              "s_setprio", "s_sleep", "s_bitcmp")):
                for o in ops:
                    self.r |= regs_of(o)
            else:
                self.w = regs_of(ops[0]) if ops else set()
                for o in ops[1:]:
                    self.r |= regs_of(o)


def vec(s):
    return {x for x in s if x[0] in "va"}


def sc(s):
    return {x for x in s if x[0] == "s"}


def check(lines, name=""):
    ins = []
    for l in lines:
        t = l.split(";")[0].strip()
        if not t or t.endswith(":") or t.startswith("."):
            continue
        ins.append(I(t))
    errs = []
    n = len(ins)
    for i, p in enumerate(ins):
        dist = 0
        for j in range(i + 1, min(n, i + 24)):
            c = ins[j]
            need = 0
            why = ""
            if p.kind == "valu":
                if c.kind == "mfma" and vec(p.w) & c.r:
                    need, why = 2, "valu->mfma"
                if c.kind == "valu":
                    if p.trans and not c.trans and vec(p.w) & c.r:
                        need, why = max(need, 1), "trans->valu"
                    if c.op.startswith(("v_readfirstlane", "v_readlane")) and vec(p.w) & c.r:
                        need, why = max(need, 1), "valu->readlane"
                    if c.op.startswith("v_permlane") and vec(p.w) & c.r:
                        need, why = max(need, 2), "valu->permlane"
                    if ("dpp" in c.text or "row_" in c.text or "quad_perm" in c.text) and vec(p.w) & c.r:
                        need, why = max(need, 2), "valu->dpp"
                    if sc(p.w) & c.r:
                        need, why = max(need, 2), "valu sgpr->valu"
                if c.kind == "vmem" and sc(p.w) & c.r:
                    need, why = max(need, 5), "valu sgpr->vmem"
            if p.kind == "mfma":
                big = {8: 12, 4: 8}[p.passes]
                if c.kind == "mfma":
                    if p.D & (c.A | c.B):
                        need, why = big, "mfma D->A/B"
                    elif p.D & c.C and p.D != c.C:
                        need, why = big - 2, "mfma D->C overlap"
                    elif p.D & c.D and p.D != c.C:
                        need, why = big - 2, "mfma D->D waw"
                elif c.kind == "valu":
                    if p.D & (c.r | c.w):
                        need, why = big, "mfma D->valu"
                    elif p.C & c.w:
                        need, why = {8: 7, 4: 3}[p.passes], "mfma C war"
                elif c.kind in ("ds", "vmem"):
                    if p.D & (c.r | c.w):
                        need, why = big, "mfma D->mem"
            if p.kind == "salu" and ("s", "m0") in p.w and c.kind == "vmem" and c.lds:
                need, why = 1, "m0->ldsdma"
            if p.kind == "vmem" and p.widestore and (p.sdata & c.w):
                need, why = (2 if c.kind in ("valu", "mfma") else 1), "store war"
            if need > dist:
                errs.append(f"{name}: HAZARD {why}: need {need} have {dist}: [{p.text}] -> [{c.text}]")
            dist += c.states
            if c.op in ("s_branch", "s_endpgm", "s_setpc_b64"):
                break
    return errs
```

```python
import math
import struct
import sys

import hazard

NAME = "standalone__mha_block_cached__near_ridge"

OPT = dict(diag=0, L=5, dma_gap=3, xmap=1)
for a in sys.argv[2:]:
    k, v = a.split("=")
    OPT[k] = int(v)

KBLK, VBLK = 1040, 1088
K0, V0, SLOT = 0, 33280, 68096
STB, STA, STSZ = 50688, 107264, 56576
LDS1 = 163840
WS_O_BYTES = 72 * 32 * 8192
DIAG_OFF = 64 << 20


def f32bits(x):
    return struct.unpack("<I", struct.pack("<f", x))[0]


QSCALE = f32bits(128 ** -0.5 * math.log2(math.e))


class Asm:
    def __init__(self):
        self.l = []

    def __call__(self, s):
        self.l.append("    " + s)

    def label(self, s):
        self.l.append(s + ":")

    def raw(self, s):
        self.l.append(s)

    def ext(self, lst):
        for s in lst:
            self(s)


def vr(a, n):
    return f"v[{a}:{a + n - 1}]"


def ar(a, n):
    return f"a[{a}:{a + n - 1}]"


MF = "v_mfma_f32_32x32x16_bf16"

SRD_X, SRD_W, SRD_K, SRD_V, SRD_O = 4, 8, 12, 16, 20
sW, sB, sH = 24, 27, 28
sXD, sXS, sWD, sWS, sT0, sT1 = 42, 43, 44, 45, 46, 47
sSTG = 48
sCNT = 49
sKD, sVD, sKS, sVS, sTOG = 50, 51, 52, 53, 54
sSC = 56
sOO = 58
sST = 60

vXD, vWD, vXA, vXC, vWR, vWC = 2, 3, 4, 6, 8, 9
S_A = [16, 48]
S_B = [32, 64]
S_C = 80
NEG = {"a": 96, "b": 112, "c": 128}
QV = {"a": 160, "b": 192}
vK, vV, vDM = 224, 228, 232
vL = {"a": 234, "b": 235, "c": 236}
vL0 = {"a": 237, "b": 238, "c": 239}
vT = 240
O_ACC = {"a": 0, "b": 64, "c": 128}
RING = 192
QC = 224


def srd(n):
    return f"s[{n}:{n + 3}]"


def sreg(x):
    return S_A, S_B


def Sbuf(t, par):
    return {"a": S_A[par], "b": S_B[par], "c": S_C}[t]


def qfrag(t, kk):
    if t == "c":
        return ar(QC + 4 * kk, 4)
    return vr(QV[t] + 4 * kk, 4)


stamp_n = [0]


def stamp(A):
    if OPT["diag"]:
        n = stamp_n[0]
        stamp_n[0] += 1
        A(f"s_memtime s[{sST + 2 * n}:{sST + 2 * n + 1}]")


def dma(m0base, m0off, voff, srdn, sbase, soff, imm=0):
    out = [f"s_add_u32 m0, s{m0base}, {m0off}"]
    if soff:
        out.append(f"s_add_u32 s{sT0}, s{sbase}, {soff}")
        so = sT0
    else:
        out.append("s_nop 0")
        so = sbase
    o = f" offset:{imm}" if imm else ""
    out.append(f"buffer_load_dwordx4 v{voff}, {srd(srdn)}, s{so} offen{o} lds")
    return out


def chunk_dma():
    p = []
    for i in range(4):
        p.append(dma(sWD, i * VBLK, vWD, SRD_W, sWS, i * 8192))
    for i in range(9):
        p.append(dma(sXD, i * VBLK, vXD, SRD_X, sXS, i * 9216))
    return p


def chunk_adv():
    return [f"s_add_u32 s{sXS}, s{sXS}, 128", f"s_add_u32 s{sWS}, s{sWS}, {64 * 8192}",
            f"s_add_u32 s{sXD}, s{sXD}, s{sSTG}", f"s_add_u32 s{sWD}, s{sWD}, s{sSTG}"]


def kv_dma(dst, src, srdn, blk, first=0, n=8):
    p = []
    for i in range(first, first + n):
        o = f" offset:{(i % 4) * 1024}" if i % 4 else ""
        p.append([f"s_add_u32 m0, s{dst}, {i * blk - (i % 4) * 1024}",
                  f"buffer_load_dwordx4 v{vDM + i // 4}, {srd(srdn)}, s{src} offen{o} lds"])
    return p


def qp_set(par):
    b = RING + 32 * par
    return dict(W=[b + 4 * i for i in range(4)], Wc=b + 16, Xa=b + 20, Xb=b + 24, Xc=b + 28)


def qp_reads(ks):
    s = qp_set(ks % 2)
    r = []
    xo = (ks >> 1) * 64
    r.append(f"ds_read_b128 {ar(s['Xa'], 4)}, v{vXA + (ks & 1)} offset:{xo}")
    for e in range(2):
        r.append(f"ds_read_b64_tr_b16 {ar(s['W'][0] + 2 * e, 2)}, v{vWR} offset:{e * 4 * VBLK + ks * 256}")
    r.append(f"ds_read_b128 {ar(s['Xb'], 4)}, v{vXA + (ks & 1)} offset:{xo + 4 * VBLK}")
    for dt in range(1, 4):
        for e in range(2):
            r.append(f"ds_read_b64_tr_b16 {ar(s['W'][dt] + 2 * e, 2)}, v{vWR} offset:{e * 4 * VBLK + ks * 256 + dt * 64}")
    for e in range(2):
        r.append(f"ds_read_b64_tr_b16 {ar(s['Wc'] + 2 * e, 2)}, v{vWC} offset:{e * 4 * VBLK + ks * 256}")
    r.append(f"ds_read_b128 {ar(s['Xc'], 4)}, v{vXC + (ks & 1)} offset:{xo}")
    return r


def qp_mfmas(ks):
    s = qp_set(ks % 2)
    m = []
    for dt in range(4):
        m.append(f"{MF} {vr(16 + 16 * dt, 16)}, {ar(s['W'][dt], 4)}, {ar(s['Xa'], 4)}, {vr(16 + 16 * dt, 16)}")
        m.append(f"{MF} {vr(80 + 16 * dt, 16)}, {ar(s['W'][dt], 4)}, {ar(s['Xb'], 4)}, {vr(80 + 16 * dt, 16)}")
    m.append(f"{MF} {vr(144, 16)}, {ar(s['Wc'], 4)}, {ar(s['Xc'], 4)}, {vr(144, 16)}")
    return m


def interleave(A, mf, groups, per_gap):
    g = list(groups)
    for m in mf:
        A(m)
        for _ in range(per_gap):
            if g:
                A.ext(g.pop(0))
    for x in g:
        A.ext(x)


def qp_toggle():
    return [[f"v_add_u32 v{r}, s{sSTG}, v{r}"] for r in (vXA, vXA + 1, vXC, vXC + 1, vWR, vWC)]


def qp_body(A, first, dmas, post, vm):
    A(f"s_waitcnt vmcnt({vm}) lgkmcnt(0)")
    A("s_barrier")
    d = list(dmas)
    rd = [[x] for x in qp_reads(0)]
    if first:
        for x in rd:
            A.ext(x)
        for x in d[:9]:
            A.ext(x)
    else:
        mixed = []
        for i in range(9):
            grp = []
            for x in rd[2 * i:2 * i + 2]:
                grp += x
            grp += d[i]
            mixed.append(grp)
        interleave(A, qp_mfmas(3), mixed, 1)
    d = d[9:]
    for ks in range(3):
        A("s_waitcnt lgkmcnt(0)")
        rd = [[x] for x in qp_reads(ks + 1)]
        mixed = []
        for i in range(9):
            grp = []
            for x in rd[2 * i:2 * i + 2]:
                grp += x
            if d:
                grp += d.pop(0)
            mixed.append(grp)
        if ks == 2:
            assert not d
            t = qp_toggle()
            mixed[7] += t[0] + t[1] + t[2]
            mixed[8] += t[3] + t[4] + t[5] + post
        interleave(A, qp_mfmas(ks), mixed, 1)


def build_loop():
    L = OPT["L"]
    mf = []
    step_info = []
    for j in range(4):
        jn = (j + 1) % 4
        tiles = "abc" if jn == 0 else "ab"
        q0 = len(mf)
        for kk in range(8):
            f = 16 * j + kk
            for t in tiles:
                S = Sbuf(t, jn % 2)
                C = vr(NEG[t], 16) if kk == 0 else vr(S, 16)
                mf.append((f"{MF} {vr(S, 16)}, {ar(RING + 4 * (f % 8), 4)}, {qfrag(t, kk)}, {C}", f))
        tiles = "abc" if j == 0 else "ab"
        p0 = len(mf)
        for ks in range(2):
            for dt in range(4):
                f = 16 * j + 8 + ks * 4 + dt
                for t in tiles:
                    S = Sbuf(t, j % 2)
                    O = ar(O_ACC[t] + 16 * dt, 16)
                    mf.append((f"{MF} {O}, {ar(RING + 4 * (f % 8), 4)}, {vr(S + 8 * ks, 4)}, {O}", f))
        step_info.append((q0, p0))
    N = len(mf)
    assert N == 144
    first_use, last_use = {}, {}
    for i, (_, f) in enumerate(mf):
        first_use.setdefault(f, i)
        last_use[f] = i
    gaps = [[] for _ in range(N)]

    def frag_reads(f):
        j, r = divmod(f, 16)
        dst = RING + 4 * (f % 8)
        if r < 8:
            return [f"ds_read_b128 {ar(dst, 4)}, v{vK + (j + 1) % 4} offset:{r * 32}"]
        ks, dt = divmod(r - 8, 4)
        return [f"ds_read_b64_tr_b16 {ar(dst + 2 * e, 2)}, v{vV + j} offset:{(16 * ks + 8 * e) * VBLK + dt * 64}"
                for e in range(2)]

    last_read_gap = {}
    for f in range(64):
        src = (f - L) % 64
        g = last_use[src]
        tag = "n" if f - L < 0 else ""
        rd = frag_reads(f)
        if len(rd) == 2:
            gaps[(g - 1) % N].append((rd[0], tag, ("rd", f)))
            gaps[g].append((rd[1], tag, ("rd", f)))
        else:
            gaps[g].append((rd[0], tag, ("rd", f)))
        last_read_gap[f] = g
    assert L <= 7
    for j in range(4):
        g = last_read_gap[16 * j + 7]
        jn = (j + 1) % 4
        op = "v_subrev_u32" if jn == 0 else "v_add_u32"
        gaps[(g + 1) % N].append((f"{op} v{vK + jn}, s{sTOG}, v{vK + jn}", "", None))
        g = last_read_gap[16 * j + 15]
        assert g + 1 < N
        gaps[g + 1].append((f"v_add_u32 v{vV + j}, s{sTOG}, v{vV + j}", "", None))
    gBV = 0
    gBK = step_info[2][1]
    assert last_read_gap[8] - 1 > gBV and last_read_gap[48] > gBK
    for gb, dst, src, srdn, blk, upd in (
            (gBV, sVD, sVS, SRD_V, VBLK, f"s_sub_u32 s{sVD}, s{sVD}, s{sTOG}"),
            (gBK, sKD, sKS, SRD_K, KBLK, f"s_add_u32 s{sKD}, s{sKD}, s{sTOG}")):
        gaps[gb].insert(0, ("s_waitcnt vmcnt(8)", "", None))
        gaps[gb].insert(1, ("s_barrier", "", None))
        g = gb + 1
        for pc in kv_dma(dst, src, srdn, blk):
            gaps[g].insert(0, (pc[0], "", None))
            gaps[g].append((pc[1], "", "dma"))
            g += OPT["dma_gap"]
        gaps[g].append((upd, "", None))
        gaps[g].append((f"s_add_u32 s{src}, s{src}, 32768", "", None))
    spans = {0: (129, 172), 1: (28, 62), 2: (62, 95), 3: (95, 129)}
    sm = [[] for _ in range(N + 40)]
    for j in range(4):
        tiles = "abc" if j == 0 else "ab"
        order = [(t, h) for h in range(2) for t in tiles]
        n = 8 * len(order)
        s0, e0 = spans[j]
        k = 0
        for (t, h) in order:
            S = Sbuf(t, j % 2) + 8 * h
            acc = vL0[t] if j == 0 else vL[t]
            for e in range(8):
                g = s0 + (k * (e0 - s0)) // n
                gn = s0 + ((k + 1) * (e0 - s0)) // n
                sm[g].append((0, k, f"v_exp_f32 v{S + e}, v{S + e}"))
                if j == 0 and h == 0 and e == 0:
                    pass
                elif j == 0 and h == 0 and e == 1:
                    sm[gn].append((0, k + 1.3, f"v_add_f32 v{acc}, v{S}, v{S + 1}"))
                else:
                    sm[gn].append((0, k + 1.3, f"v_add_f32 v{acc}, v{acc}, v{S + e}"))
                if e % 2 == 1:
                    sm[gn].append((0, k + 1.6, f"v_cvt_pk_bf16_f32 v{S + e // 2}, v{S + e - 1}, v{S + e}"))
                k += 1
        if j == 0:
            for i, t in enumerate(tiles):
                sm[e0 + 4 + i].append((1, 999, f"v_add_f32 v{vL[t]}, v{vL[t]}, v{vL0[t]}"))
        for g in range(len(sm)):
            if sm[g]:
                items = sorted(sm[g], key=lambda x: (x[0], x[1]))
                for it in items:
                    tag = "n" if (j == 0 and g < N) else ""
                    gaps[g % N].append((it[2], tag, ("sm", j)))
                sm[g] = []
    for g in range(N):
        items = gaps[g]
        head = [x for x in items if x[0].startswith(("s_waitcnt", "s_barrier", "s_add_u32 m0"))]
        dm = [x for x in items if x[2] == "dma"]
        smi = [x for x in items if isinstance(x[2], tuple) and x[2][0] == "sm"]
        if smi:
            js = []
            for x in smi:
                if x[2][1] not in js:
                    js.append(x[2][1])
            if len(js) == 2:
                a, b = js
                old = a if (a + 1) % 4 == b else b
                smi = [x for x in smi if x[2][1] != old] [:1] + [x for x in smi if x[2][1] == old] + \
                      [x for x in smi if x[2][1] != old][1:]
        rest = [x for x in items if x not in head and x not in dm and x not in smi]
        gaps[g] = head + rest + smi + dm
        if dm and len(gaps[g]) == 2:
            gaps[g] = head + [("s_nop 0", "", None)] + dm
    gaps[N - 1] += [(f"s_sub_u32 s{sTOG}, 0, s{sTOG}", "", None)]
    seq = []
    for it in range(2):
        for i in range(N):
            seq.append(("m", i, it))
            for x in gaps[i]:
                seq.append(("x", x, it))
    waits = {}
    for pos, e in enumerate(seq):
        if e[0] == "m" and e[2] == 1 and first_use[mf[e[1]][1]] == e[1]:
            f = mf[e[1]][1]
            cnt = 0
            p = pos - 1
            while True:
                q = seq[p]
                if q[0] == "x" and isinstance(q[1][2], tuple) and q[1][2][0] == "rd":
                    if q[1][2][1] == f:
                        break
                    cnt += 1
                p -= 1
            assert cnt <= 15
            waits[e[1]] = cnt
    body, pro = [], []
    for i in range(N):
        if i in waits:
            body.append(f"s_waitcnt lgkmcnt({waits[i]})")
        body.append(mf[i][0])
        for x in gaps[i]:
            body.append(x[0])
            if x[1] == "n":
                pro.append(x[0])
    return body, pro


def cross_half(A, op, r, t):
    A(f"v_mov_b32 v{t}, v{r}")
    A("s_nop 1")
    A(f"v_permlane32_swap_b32 v{r}, v{t}")
    A(f"{op} v{r}, v{r}, v{t}")


def k1(A):
    A.raw(".p2align 8")
    A.raw(".type attn_kernel,@function")
    A.label("attn_kernel")
    A("s_cmp_ge_u32 s2, 256")
    A("s_cbranch_scc1 L1_end")
    A("s_load_dwordx8 s[32:39], s[0:1], 0")
    A("s_load_dwordx2 s[40:41], s[0:1], 56")
    stamp(A)
    A("v_lshrrev_b32 v1, 6, v0")
    A("v_and_b32 v0, 63, v0")
    A(f"v_readfirstlane_b32 s{sW}, v1")
    A("s_and_b32 s25, s2, 7")
    A("s_lshr_b32 s26, s2, 3")
    if OPT["xmap"] == 0:
        A(f"s_mov_b32 s{sB}, s25")
        A(f"s_mov_b32 s{sH}, s26")
    else:
        A(f"s_and_b32 s{sB}, s25, 1")
        A(f"s_lshl_b32 s{sB}, s{sB}, 2")
        A("s_and_b32 s29, s26, 3")
        A(f"s_add_u32 s{sB}, s{sB}, s29")
        A(f"s_lshr_b32 s{sH}, s25, 1")
        A(f"s_lshl_b32 s{sH}, s{sH}, 3")
        A("s_lshr_b32 s29, s26, 2")
        A(f"s_add_u32 s{sH}, s{sH}, s29")
    hh, i32, r4, g2, cq, t0, t1 = 240, 241, 242, 243, 244, 245, 246
    A(f"v_lshrrev_b32 v{hh}, 5, v0")
    A(f"v_and_b32 v{i32}, 31, v0")
    A(f"v_bfe_u32 v{r4}, v0, 2, 2")
    A(f"v_bfe_u32 v{g2}, v0, 4, 1")
    A(f"v_and_b32 v{cq}, 3, v0")
    A(f"v_lshrrev_b32 v{t0}, 3, v0")
    A(f"v_mul_u32_u24 v{vXD}, 1152, v{t0}")
    A(f"v_and_b32 v{t0}, 7, v0")
    A(f"v_bfe_u32 v{t1}, v0, 4, 2")
    A(f"v_xor_b32 v{t0}, v{t0}, v{t1}")
    A(f"v_lshl_add_u32 v{vXD}, v{t0}, 4, v{vXD}")
    A(f"v_lshlrev_b32 v{vWD}, 17, v{t1}")
    A(f"v_and_b32 v{t0}, 15, v0")
    A(f"v_lshl_add_u32 v{vWD}, v{t0}, 4, v{vWD}")
    A(f"s_lshl_b32 s{sT0}, s{sW}, 13")
    A(f"v_lshl_add_u32 v{vDM}, v0, 4, s{sT0}")
    A(f"v_add_u32 v{vDM + 1}, 4096, v{vDM}")
    A("s_waitcnt lgkmcnt(0)")
    A(f"s_mul_i32 s{sT0}, s{sB}, 331776")
    A(f"s_add_u32 s{SRD_X}, s32, s{sT0}")
    A(f"s_addc_u32 s{SRD_X + 1}, s33, 0")
    A(f"s_mov_b32 s{SRD_X + 2}, 331776")
    A(f"s_mov_b32 s{SRD_X + 3}, 0x20000")
    A(f"s_lshl_b32 s{sT0}, s{sH}, 8")
    A(f"s_add_u32 s{SRD_W}, s38, s{sT0}")
    A(f"s_addc_u32 s{SRD_W + 1}, s39, 0")
    A(f"s_sub_u32 s{SRD_W + 2}, {576 * 8192}, s{sT0}")
    A(f"s_mov_b32 s{SRD_W + 3}, 0x20000")
    A(f"s_lshl_b32 s{sT0}, s{sB}, 5")
    A(f"s_add_u32 s{sT0}, s{sT0}, s{sH}")
    A(f"s_lshl_b32 s{sT0}, s{sT0}, 19")
    A(f"s_add_u32 s{SRD_K}, s34, s{sT0}")
    A(f"s_addc_u32 s{SRD_K + 1}, s35, 0")
    A(f"s_mov_b32 s{SRD_K + 2}, 524288")
    A(f"s_mov_b32 s{SRD_K + 3}, 0x20000")
    A(f"s_add_u32 s{SRD_V}, s36, s{sT0}")
    A(f"s_addc_u32 s{SRD_V + 1}, s37, 0")
    A(f"s_mov_b32 s{SRD_V + 2}, 524288")
    A(f"s_mov_b32 s{SRD_V + 3}, 0x20000")
    A(f"s_mov_b32 s{SRD_O}, s40")
    A(f"s_mov_b32 s{SRD_O + 1}, s41")
    A(f"s_mov_b32 s{SRD_O + 2}, {(DIAG_OFF + (1 << 20)) if OPT['diag'] else WS_O_BYTES}")
    A(f"s_mov_b32 s{SRD_O + 3}, 0x20000")
    A(f"s_mul_i32 s{sXD}, s{sW}, {9 * VBLK}")
    A(f"s_add_u32 s{sXD}, s{sXD}, {STA}")
    A(f"s_mul_i32 s{sXS}, s{sW}, {9 * 9216}")
    A(f"s_mul_i32 s{sWD}, s{sW}, {4 * VBLK}")
    A(f"s_add_u32 s{sWD}, s{sWD}, {STA + 36 * VBLK}")
    A(f"s_lshl_b32 s{sWS}, s{sW}, 15")
    A(f"s_mov_b32 s{sSTG}, {-STSZ & 0xffffffff}")
    for p in chunk_dma():
        A.ext(p)
    A.ext(chunk_adv())
    for p in chunk_dma():
        A.ext(p)
    A(f"s_sub_u32 s{sSTG}, 0, s{sSTG}")
    A.ext(chunk_adv())
    A(f"s_sub_u32 s{sSTG}, 0, s{sSTG}")
    A(f"s_mul_i32 s{sKD}, s{sW}, {8 * KBLK}")
    A(f"s_mul_i32 s{sVD}, s{sW}, {8 * VBLK}")
    A(f"s_add_u32 s{sVD}, s{sVD}, {V0}")
    A(f"s_mov_b32 s{sKS}, 0")
    A(f"v_lshrrev_b32 v{t0}, 3, v{i32}")
    A(f"v_mul_u32_u24 v{vXC}, {VBLK}, v{t0}")
    A(f"v_and_b32 v{t0}, 7, v{i32}")
    A(f"v_lshl_add_u32 v{vXC}, v{t0}, 7, v{vXC}")
    A(f"v_bfe_u32 v{t0}, v{i32}, 1, 2")
    A(f"v_xor_b32 v{t0}, v{t0}, v{hh}")
    A(f"v_xor_b32 v{t1}, 2, v{t0}")
    A(f"v_lshl_add_u32 v{vXC + 1}, v{t1}, 4, v{vXC}")
    A(f"v_lshl_add_u32 v{vXC}, v{t0}, 4, v{vXC}")
    A(f"s_mul_i32 s{sT0}, s{sW}, {8 * VBLK}")
    A(f"s_add_u32 s{sT0}, s{sT0}, {STA}")
    A(f"v_add_u32 v{vXA}, s{sT0}, v{vXC}")
    A(f"v_add_u32 v{vXA + 1}, s{sT0}, v{vXC + 1}")
    A(f"v_add_u32 v{vXC}, {STA + 32 * VBLK}, v{vXC}")
    A(f"v_add_u32 v{vXC + 1}, {STA + 32 * VBLK}, v{vXC + 1}")
    A(f"v_lshl_add_u32 v{t0}, v{hh}, 3, v{r4}")
    A(f"v_mul_u32_u24 v{vWR}, {VBLK}, v{t0}")
    A(f"v_lshl_add_u32 v{vWR}, v{g2}, 5, v{vWR}")
    A(f"v_and_b32 v{t0}, 1, v{cq}")
    A(f"v_lshl_add_u32 v{vWR}, v{t0}, 4, v{vWR}")
    A(f"v_lshrrev_b32 v{t0}, 1, v{cq}")
    A(f"v_lshl_add_u32 v{vWR}, v{t0}, 3, v{vWR}")
    A(f"v_add_u32 v{vWR}, {STA + 36 * VBLK}, v{vWR}")
    A(f"s_lshl_b32 s{sT0}, s{sW}, 6")
    A(f"v_add_u32 v{vWC}, s{sT0}, v{vWR}")
    A(f"v_mul_u32_u24 v{t0}, {KBLK}, v{i32}")
    A(f"v_lshl_add_u32 v{t0}, v{hh}, 4, v{t0}")
    A(f"v_lshl_add_u32 v{t1}, v{hh}, 2, v{r4}")
    A(f"v_mul_u32_u24 v{t1}, {VBLK}, v{t1}")
    A(f"v_lshl_add_u32 v{t1}, v{g2}, 5, v{t1}")
    A(f"v_lshl_add_u32 v{t1}, v{cq}, 3, v{t1}")
    A(f"v_add_u32 v{t1}, {V0}, v{t1}")
    for j in range(4):
        A(f"s_xor_b32 s{sT0}, s{sW}, {j}")
        A(f"s_lshl_b32 s{sT0}, s{sT0}, 8")
        A(f"v_add_u32 v{vK + j}, s{sT0}, v{t0}")
        A(f"v_add_u32 v{vV + j}, s{sT0}, v{t1}")
    for i in range(16, 160):
        A(f"v_mov_b32 v{i}, 0")
    for i in range(192):
        A(f"v_accvgpr_write_b32 a{i}, 0")
    for t in "abc":
        A(f"v_mov_b32 v{vL[t]}, 0")
    A(f"s_mov_b32 s{sSC}, {QSCALE:#x}")
    A(f"s_mov_b32 s{sSC + 1}, {QSCALE:#x}")
    stamp(A)

    def v0_pieces(base_blk):
        p = []
        for i in range(4):
            o = f" offset:{i * 1024}" if i else ""
            p.append([f"s_add_u32 m0, s{sT1}, {V0 + (base_blk + i) * VBLK - i * 1024}",
                      "s_nop 0",
                      f"buffer_load_dwordx4 v{vT}, {srd(SRD_V)}, s{sVS} offen{o} lds"])
        return p

    def with_nop(ps):
        return [[p[0], "s_nop 0", p[1]] for p in ps]

    A(f"s_mul_i32 s{sT1}, s{sW}, {4 * VBLK}")
    A(f"s_lshl_b32 s{sT0}, s{sW}, 12")
    A(f"v_lshl_add_u32 v{vT}, v0, 4, s{sT0}")
    A(f"s_mov_b32 s{sVS}, 0")
    flip = [f"s_sub_u32 s{sSTG}, 0, s{sSTG}"]
    qp_body(A, True, with_nop(kv_dma(sKD, sKS, SRD_K, KBLK)) + v0_pieces(0), flip, 13)
    A(f"s_mov_b32 s{sCNT}, 7")
    A("s_waitcnt vmcnt(12)")
    A.label("L1_qp")
    adv = [f"s_add_u32 s{sXS}, s{sXS}, 128", f"s_add_u32 s{sWS}, s{sWS}, {64 * 8192}",
           f"s_sub_u32 s{sXD}, s{sXD}, s{sSTG}", f"s_sub_u32 s{sWD}, s{sWD}, s{sSTG}"]
    qp_body(A, False, chunk_dma(), adv + flip, 63)
    A(f"s_sub_u32 s{sCNT}, s{sCNT}, 1")
    A(f"s_cmp_lg_u32 s{sCNT}, 0")
    A("s_waitcnt vmcnt(0)")
    A("s_cbranch_scc1 L1_qp")
    A(f"s_mov_b32 s{sVS}, 16384")
    A(f"s_mov_b32 s{sKS}, 32768")
    A(f"s_add_u32 s{sKD}, s{sKD}, {SLOT}")
    qp_body(A, False, v0_pieces(16) + with_nop(kv_dma(sKD, sKS, SRD_K, KBLK)), [], 63)
    A("s_waitcnt lgkmcnt(0)")
    A.ext(qp_mfmas(3))
    stamp(A)
    A(f"s_sub_u32 s{sKD}, s{sKD}, {SLOT}")
    A(f"s_mov_b32 s{sKS}, 65536")
    A(f"s_add_u32 s{sVD}, s{sVD}, {SLOT}")
    A(f"s_mov_b32 s{sVS}, 32768")
    A(f"s_mov_b32 s{sTOG}, {SLOT}")
    A(f"s_mov_b32 s{sCNT}, 16")
    A(f"s_mul_i32 s{sT0}, s{sW}, {8 * VBLK}")
    A(f"s_add_u32 s{sT0}, s{sT0}, {STA}")
    A(f"v_lshl_add_u32 v{vT}, v0, 4, s{sT0}")
    A(f"v_lshlrev_b32 v{vT + 1}, 4, v0")
    A(f"v_add_u32 v{vT + 1}, {STA}, v{vT + 1}")
    A("s_nop 1")

    def conv(src, dst):
        for i in range(8):
            A(f"v_pk_mul_f32 {vr(src + 2 * i, 2)}, {vr(src + 2 * i, 2)}, s[{sSC}:{sSC + 1}]")
        for i in range(8):
            A(f"v_cvt_pk_bf16_f32 v{dst + i}, v{src + 2 * i}, v{src + 2 * i + 1}")

    for dt in range(4):
        conv(16 + 16 * dt, QV["a"] + 8 * dt)
    conv(144, 144)
    A(f"ds_write_b128 v{vT}, {vr(144, 4)}")
    A(f"ds_write_b128 v{vT}, {vr(148, 4)} offset:1024")
    for dt in range(4):
        conv(80 + 16 * dt, QV["b"] + 8 * dt)
    A("s_waitcnt lgkmcnt(0)")
    A("s_barrier")
    for kk in range(8):
        A(f"ds_read_b128 {ar(RING + 4 * kk, 4)}, v{vK} offset:{kk * 32}")
        A(f"ds_read_b128 {ar(QC + 4 * kk, 4)}, v{vT + 1} offset:{(kk // 2) * 8 * VBLK + (kk % 2) * 1024}")
        if kk == 6:
            A("s_waitcnt lgkmcnt(10)")
    A(f"v_add_u32 v{vK}, s{sTOG}, v{vK}")
    for kk in range(8):
        A(f"s_waitcnt lgkmcnt({min(14 - 2 * kk, 15)})")
        for t in "abc":
            S = Sbuf(t, 0)
            C = "0" if kk == 0 else vr(S, 16)
            A(f"{MF} {vr(S, 16)}, {ar(RING + 4 * kk, 4)}, {qfrag(t, kk)}, {C}")
    body, pro = build_loop()
    pro_rd = [x for x in pro if x.startswith("ds_read")]
    pro_sm = [x for x in pro if not x.startswith("ds_read")]
    A.ext(pro_rd)
    A("s_nop 7")
    for t in "abc":
        S = Sbuf(t, 0)
        m = vT + 2
        A(f"v_max3_f32 v{m}, v{S}, v{S + 1}, v{S + 2}")
        for i in range(3, 15, 2):
            A(f"v_max3_f32 v{m}, v{m}, v{S + i}, v{S + i + 1}")
        A(f"v_max_f32 v{m}, v{m}, v{S + 15}")
        cross_half(A, "v_max_f32", m, vT + 3)
        for i in range(16):
            A(f"v_sub_f32 v{NEG[t] + i}, 0, v{m}")
        for i in range(16):
            A(f"v_sub_f32 v{S + i}, v{S + i}, v{m}")
    for x in pro_sm:
        A(x)
        if x.startswith("v_exp"):
            A("s_nop 0")
    stamp(A)
    A.raw(".p2align 6")
    A.label("L1_loop")
    if OPT["diag"]:
        A(f"v_writelane_b32 v250, s90, s{sCNT}")
        A("s_memtime s[90:91]")
    A.ext(body)
    A(f"s_sub_u32 s{sCNT}, s{sCNT}, 1")
    A(f"s_cmp_lg_u32 s{sCNT}, 0")
    A("s_cbranch_scc1 L1_loop")
    errs = hazard.check(body + body, "loop")
    stamp(A)
    A("s_waitcnt vmcnt(0) lgkmcnt(0)")
    A("s_barrier")
    A(f"s_lshl_b32 s{sT0}, s{sW}, 14")
    A(f"v_lshl_add_u32 v{vT}, v0, 4, s{sT0}")
    for i in range(16):
        A(f"ds_write_b128 v{vT}, {ar(O_ACC['c'] + 4 * i, 4)} offset:{i * 1024}")
    for t in "abc":
        cross_half(A, "v_add_f32", vL[t], vT + 3)
    A(f"s_lshl_b32 s{sT0}, s{sW}, 9")
    A(f"v_lshl_add_u32 v{vT + 1}, v0, 3, s{sT0}")
    A(f"v_add_u32 v{vT + 1}, 65536, v{vT + 1}")
    A(f"v_mov_b32 v{vT + 4}, v{vL['c']}")
    A(f"v_mov_b32 v{vT + 5}, v{NEG['c']}")
    A(f"ds_write_b64 v{vT + 1}, {vr(vT + 4, 2)}")
    A(f"v_rcp_f32 v{vL['a']}, v{vL['a']}")
    A(f"v_rcp_f32 v{vL['b']}, v{vL['b']}")
    A(f"v_lshlrev_b32 v{vT + 6}, 4, v0")
    A(f"v_add_u32 v{vT + 7}, 4096, v{vT + 6}")
    A(f"s_mul_i32 s{sOO}, s{sB}, 9")
    A(f"s_lshl_b32 s{sT0}, s{sW}, 1")
    A(f"s_add_u32 s{sT0}, s{sT0}, s{sOO}")
    A(f"s_lshl_b32 s{sT0}, s{sT0}, 5")
    A(f"s_add_u32 s{sT0}, s{sT0}, s{sH}")
    A(f"s_lshl_b32 s{sT0}, s{sT0}, 13")
    A(f"s_add_u32 s{sT1}, s{sT0}, {32 * 8192}")

    def norm_store(t, so):
        for i in range(8):
            b = 16 + 8 * i if t == "a" else 160 + 8 * i
            for e in range(8):
                A(f"v_accvgpr_read_b32 v{b + e}, a{O_ACC[t] + 8 * i + e}")
            for e in range(8):
                A(f"v_mul_f32 v{b + e}, v{vL[t]}, v{b + e}")
            for e in range(4):
                A(f"v_cvt_pk_bf16_f32 v{b + e}, v{b + 2 * e}, v{b + 2 * e + 1}")
            o = f" offset:{(i % 4) * 1024}" if i % 4 else ""
            A(f"buffer_store_dwordx4 {vr(b, 4)}, v{vT + 6 + i // 4}, {srd(SRD_O)}, s{so} offen{o}")

    norm_store("a", sT0)
    A("s_waitcnt lgkmcnt(0)")
    A("s_barrier")
    A(f"s_lshl_b32 s{sT0}, s{sW}, 12")
    A(f"v_lshl_add_u32 v{vT}, v0, 4, s{sT0}")
    A(f"v_lshlrev_b32 v{vT + 1}, 3, v0")
    A(f"v_add_u32 v{vT + 1}, 65536, v{vT + 1}")
    for w in range(4):
        A(f"ds_read_b64 {vr(144 + 2 * w, 2)}, v{vT + 1} offset:{w * 512}")
    for w in range(4):
        for q in range(4):
            A(f"ds_read_b128 {vr(80 + 16 * w + 4 * q, 4)}, v{vT} offset:{w * 16384 + q * 1024}")
        if w == 1:
            A("s_waitcnt lgkmcnt(4)")
    norm_store("b", sT1)
    A("s_waitcnt lgkmcnt(0)")
    A(f"v_min3_f32 v152, v145, v147, v149")
    A(f"v_min_f32 v152, v152, v151")
    for w in range(4):
        A(f"v_sub_f32 v{145 + 2 * w}, v152, v{145 + 2 * w}")
    for w in range(4):
        A(f"v_exp_f32 v{145 + 2 * w}, v{145 + 2 * w}")
    A("s_nop 0")
    A("v_mul_f32 v153, v144, v145")
    for w in range(1, 4):
        A(f"v_fmac_f32 v153, v{144 + 2 * w}, v{145 + 2 * w}")
    A("v_rcp_f32 v153, v153")
    A("s_nop 0")
    for w in range(4):
        A(f"v_mul_f32 v{145 + 2 * w}, v153, v{145 + 2 * w}")
    for e in range(16):
        A(f"v_mul_f32 v{80 + e}, v145, v{80 + e}")
    for w in range(1, 4):
        for e in range(16):
            A(f"v_fmac_f32 v{80 + e}, v{145 + 2 * w}, v{80 + 16 * w + e}")
    for e in range(8):
        A(f"v_cvt_pk_bf16_f32 v{96 + e}, v{80 + 2 * e}, v{80 + 2 * e + 1}")
    A(f"s_add_u32 s{sT0}, s{sOO}, 8")
    A(f"s_lshl_b32 s{sT0}, s{sT0}, 5")
    A(f"s_add_u32 s{sT0}, s{sT0}, s{sH}")
    A(f"s_lshl_b32 s{sT0}, s{sT0}, 13")
    A(f"s_lshl_b32 s{sT1}, s{sW}, 11")
    A(f"s_add_u32 s{sT0}, s{sT0}, s{sT1}")
    A(f"buffer_store_dwordx4 {vr(96, 4)}, v{vT + 6}, {srd(SRD_O)}, s{sT0} offen")
    A(f"buffer_store_dwordx4 {vr(100, 4)}, v{vT + 6}, {srd(SRD_O)}, s{sT0} offen offset:1024")
    if OPT["diag"]:
        A("s_waitcnt vmcnt(0)")
        stamp(A)
        A("s_waitcnt lgkmcnt(0)")
        n = stamp_n[0]
        for i in range(n):
            A(f"v_writelane_b32 v250, s{sST + 2 * i}, {32 + i}")
        A("v_writelane_b32 v250, s90, 0")
        A(f"s_lshl_b32 s{sT0}, s2, 2")
        A(f"s_add_u32 s{sT0}, s{sT0}, s{sW}")
        A(f"s_lshl_b32 s{sT0}, s{sT0}, 8")
        A(f"s_add_u32 s{sT0}, s{sT0}, {DIAG_OFF}")
        A(f"v_lshlrev_b32 v{vT}, 2, v0")
        A(f"buffer_store_dword v250, v{vT}, {srd(SRD_O)}, s{sT0} offen")
    A.label("L1_end")
    A("s_endpgm")
    return errs


def k2(A):
    DEP = 8
    SRD_A, SRD_WO, SRD_OUT = 4, 8, 12
    sW, sMT, sNT, sT0, sT1, sAS, sBS, sLD, sCNT = 16, 17, 18, 19, 20, 21, 22, 23, 24
    vA, vBD, vBR, t0, t1 = 2, 5, 6, 8, 9
    ACC, ORING, WF = 16, 112, 208
    A.raw(".p2align 8")
    A.raw(".type oproj_kernel,@function")
    A.label("oproj_kernel")
    A("s_cmp_ge_u32 s2, 216")
    A("s_cbranch_scc1 L2_end")
    A("s_load_dwordx4 s[32:35], s[0:1], 32")
    A("s_load_dwordx2 s[36:37], s[0:1], 56")
    A("v_lshrrev_b32 v1, 6, v0")
    A("v_and_b32 v0, 63, v0")
    A(f"v_readfirstlane_b32 s{sW}, v1")
    A("s_and_b32 s25, s2, 7")
    A("s_lshr_b32 s26, s2, 3")
    A(f"s_mul_i32 s{sNT}, s26, 43")
    A(f"s_lshr_b32 s{sNT}, s{sNT}, 7")
    A(f"s_mul_i32 s{sT0}, s{sNT}, 3")
    A(f"s_sub_u32 s{sT0}, s26, s{sT0}")
    A(f"s_mul_i32 s{sMT}, s25, 3")
    A(f"s_add_u32 s{sMT}, s{sMT}, s{sT0}")
    A(f"v_lshlrev_b32 v{vA}, 4, v0")
    A(f"v_add_u32 v{vA + 1}, 262144, v{vA}")
    A(f"v_add_u32 v{vA + 2}, 524288, v{vA}")
    A(f"v_lshrrev_b32 v{t0}, 3, v0")
    A(f"v_mul_u32_u24 v{vBD}, 1152, v{t0}")
    A(f"v_bfe_u32 v{t0}, v0, 4, 1")
    A(f"v_lshlrev_b32 v{t0}, 2, v{t0}")
    A(f"v_and_b32 v{t1}, 7, v0")
    A(f"v_xor_b32 v{t0}, v{t0}, v{t1}")
    A(f"v_lshl_add_u32 v{vBD}, v{t0}, 4, v{vBD}")
    A(f"v_lshrrev_b32 v{t0}, 5, v0")
    A(f"v_bfe_u32 v{t1}, v0, 2, 2")
    A(f"v_lshl_add_u32 v{t0}, v{t0}, 2, v{t1}")
    A(f"v_lshlrev_b32 v{vBR}, 7, v{t0}")
    A(f"v_bfe_u32 v{t0}, v0, 4, 1")
    A(f"v_lshl_add_u32 v{vBR}, v{t0}, 5, v{vBR}")
    A(f"v_and_b32 v{t0}, 1, v0")
    A(f"v_lshl_add_u32 v{vBR}, v{t0}, 4, v{vBR}")
    A(f"v_bfe_u32 v{t0}, v0, 1, 1")
    A(f"v_lshl_add_u32 v{vBR}, v{t0}, 3, v{vBR}")
    A(f"v_bfe_u32 v{t0}, v0, 3, 1")
    A(f"v_lshl_add_u32 v{vBR}, v{t0}, 6, v{vBR}")
    A(f"s_mul_i32 s{sLD}, s{sW}, {DEP * 2048}")
    A(f"v_add_u32 v{vBR}, s{sLD}, v{vBR}")
    A(f"v_xor_b32 v{vBR + 1}, 64, v{vBR}")
    A("s_waitcnt lgkmcnt(0)")
    A(f"s_mov_b32 s{SRD_A}, s36")
    A(f"s_mov_b32 s{SRD_A + 1}, s37")
    A(f"s_mov_b32 s{SRD_A + 2}, {WS_O_BYTES}")
    A(f"s_mov_b32 s{SRD_A + 3}, 0x20000")
    A(f"s_mov_b32 s{SRD_WO}, s32")
    A(f"s_mov_b32 s{SRD_WO + 1}, s33")
    A(f"s_mov_b32 s{SRD_WO + 2}, {4096 * 1152}")
    A(f"s_mov_b32 s{SRD_WO + 3}, 0x20000")
    A(f"s_mov_b32 s{SRD_OUT}, s34")
    A(f"s_mov_b32 s{SRD_OUT + 1}, s35")
    A(f"s_mov_b32 s{SRD_OUT + 2}, {2304 * 1152}")
    A(f"s_mov_b32 s{SRD_OUT + 3}, 0x20000")
    A(f"s_mul_i32 s{sAS}, s{sMT}, 786432")
    A(f"s_lshl_b32 s{sT0}, s{sW}, 16")
    A(f"s_add_u32 s{sAS}, s{sAS}, s{sT0}")
    A(f"s_mul_i32 s{sBS}, s{sW}, {64 * 16 * 1152}")
    A(f"s_lshl_b32 s{sT0}, s{sNT}, 7")
    A(f"s_add_u32 s{sBS}, s{sBS}, s{sT0}")

    def loads(d):
        o = []
        for i in range(2):
            o.append(f"s_add_u32 m0, s{sLD}, {d * 2048 + i * 1024}")
            o.append(f"s_add_u32 s{sT0}, s{sBS}, {(16 * d + 8 * i) * 1152}")
            o.append(f"buffer_load_dwordx4 v{vBD}, {srd(SRD_WO)}, s{sT0} offen lds")
        so = sAS
        if d >= 4:
            o.append(f"s_add_u32 s{sT1}, s{sAS}, {(d // 4) * 4096}")
            so = sT1
        off = f" offset:{(d % 4) * 1024}" if d % 4 else ""
        for i in range(3):
            o.append(f"buffer_load_dwordx4 {vr(ORING + 12 * d + 4 * i, 4)}, v{vA + i}, {srd(SRD_A)}, s{so} offen{off}")
        return o

    def wreads(d):
        b = WF + 8 * (d % 2)
        return [f"ds_read_b64_tr_b16 {vr(b + 4 * t + 2 * e, 2)}, v{vBR + t} offset:{d * 2048 + e * 1024}"
                for t in range(2) for e in range(2)]

    for d in range(DEP):
        A.ext(loads(d))
    for i in range(96):
        A(f"v_mov_b32 v{ACC + i}, 0")
    A(f"s_mov_b32 s{sCNT}, {64 // DEP}")
    A(f"s_waitcnt vmcnt({5 * (DEP - 1)})")
    A.ext(wreads(0))
    A.label("L2_loop")
    body = []
    Bd = body.append
    Bd(f"s_add_u32 s{sAS}, s{sAS}, {DEP * 1024}")
    Bd(f"s_add_u32 s{sBS}, s{sBS}, {DEP * 16 * 1152}")
    Bd(f"s_cmp_eq_u32 s{sCNT}, 1")
    Bd(f"s_cselect_b32 s{sAS}, 0x40000000, s{sAS}")
    Bd(f"s_cselect_b32 s{sBS}, 0x40000000, s{sBS}")
    for d in range(DEP):
        Bd(f"s_waitcnt vmcnt({5 * (DEP - 2)})")
        body += wreads((d + 1) % DEP)
        Bd("s_waitcnt lgkmcnt(4)")
        b = WF + 8 * (d % 2)
        for t in range(2):
            for i in range(3):
                acc = vr(ACC + 16 * (3 * t + i), 16)
                Bd(f"{MF} {acc}, {vr(b + 4 * t, 4)}, {vr(ORING + 12 * d + 4 * i, 4)}, {acc}")
        body += loads(d)
    Bd(f"s_sub_u32 s{sCNT}, s{sCNT}, 1")
    Bd(f"s_cmp_lg_u32 s{sCNT}, 0")
    A.ext(body)
    A("s_cbranch_scc1 L2_loop")
    errs = hazard.check(body + body, "k2loop")
    A("s_waitcnt vmcnt(0) lgkmcnt(0)")
    A("s_barrier")
    A(f"s_mul_i32 s{sT0}, s{sW}, 24576")
    A(f"v_lshl_add_u32 v{t0}, v0, 4, s{sT0}")
    A("s_nop 7")
    for q in range(24):
        A(f"ds_write_b128 v{t0}, {vr(ACC + 4 * q, 4)} offset:{q * 1024}")
    A(f"s_mul_i32 s{sT0}, s{sW}, {6 * 1024}")
    A(f"v_lshl_add_u32 v{t0}, v0, 4, s{sT0}")
    A(f"v_add_u32 v{t1}, 49152, v{t0}")
    A("s_waitcnt lgkmcnt(0)")
    A("s_barrier")
    for w in range(4):
        for q in range(6):
            A(f"ds_read_b128 {vr(ORING + 24 * w + 4 * q, 4)}, v{t0 if w < 2 else t1} offset:{(w % 2) * 24576 + q * 1024}")
        if w % 2 == 1:
            A("s_waitcnt lgkmcnt(0)")
    for w in range(1, 4):
        for e in range(24):
            A(f"v_add_f32 v{ORING + e}, v{ORING + e}, v{ORING + 24 * w + e}")
    for e in range(12):
        A(f"v_cvt_pk_bf16_f32 v{ACC + e}, v{ORING + 2 * e}, v{ORING + 2 * e + 1}")
    A(f"v_and_b32 v{t0}, 31, v0")
    A(f"v_mul_u32_u24 v{t0}, 1152, v{t0}")
    A(f"v_lshrrev_b32 v{t1}, 5, v0")
    A(f"v_lshl_add_u32 v{t0}, v{t1}, 4, v{t0}")
    A(f"s_mul_i32 s{sAS}, s{sMT}, {96 * 1152}")
    A(f"s_lshl_b32 s{sT0}, s{sNT}, 7")
    A(f"s_add_u32 s{sAS}, s{sAS}, s{sT0}")
    for x in range(3):
        A(f"s_mul_i32 s{sT0}, s{sW}, 3")
        A(f"s_add_u32 s{sT0}, s{sT0}, {x}")
        A(f"s_and_b32 s{sT1}, s{sT0}, 1")
        A(f"s_lshr_b32 s{sT0}, s{sT0}, 1")
        A(f"s_lshl_b32 s{sT1}, s{sT1}, 5")
        A(f"s_add_u32 s{sT1}, s{sT1}, s{sAS}")
        A(f"s_cmp_ge_u32 s{sT0}, 3")
        A(f"s_cselect_b32 s{sBS}, 64, 0")
        A(f"s_cselect_b32 s{sCNT}, 3, 0")
        A(f"s_add_u32 s{sT1}, s{sT1}, s{sBS}")
        A(f"s_sub_u32 s{sT0}, s{sT0}, s{sCNT}")
        A(f"s_mul_i32 s{sT0}, s{sT0}, {32 * 1152}")
        A(f"s_add_u32 s{sT1}, s{sT1}, s{sT0}")
        A(f"buffer_store_dwordx4 {vr(ACC + 4 * x, 4)}, v{t0}, {srd(SRD_OUT)}, s{sT1} offen")
    A.label("L2_end")
    A("s_endpgm")
    return errs


def desc(name, vg, acc, sg=102):
    return f""".p2align 6
.amdhsa_kernel {name}
  .amdhsa_next_free_vgpr {vg}
  .amdhsa_next_free_sgpr {sg}
  .amdhsa_accum_offset {acc}
  .amdhsa_group_segment_fixed_size 0
  .amdhsa_kernarg_size 64
  .amdhsa_user_sgpr_count 2
  .amdhsa_user_sgpr_kernarg_segment_ptr 1
  .amdhsa_system_sgpr_workgroup_id_x 1
.end_amdhsa_kernel
"""


def main():
    A = Asm()
    e = k1(A)
    n1 = len(A.l)
    e += k2(A)
    e += hazard.check(A.l, "linear")
    for x in e:
        print(x, file=sys.stderr)
    hdr = f"""; Fused MHA block (q-proj + attention) and output projection, gfx950. Generated by a script.
; @launch kernel=attn_kernel grid=(256,1,1) block=(256,1,1) lds={LDS1}
; @launch kernel=oproj_kernel grid=(216,1,1) block=(256,1,1) lds=98304
.amdgcn_target "amdgcn-amd-amdhsa--gfx950"
.text
.globl attn_kernel
.globl oproj_kernel
"""
    txt = hdr + "\n".join(A.l) + "\n.section .rodata,\"a\"\n" + desc("attn_kernel", 512, 256) + desc("oproj_kernel", 256, 256)
    open(sys.argv[1], "w").write(txt)
    if e:
        sys.exit(1)


main()
```

```python
import math
import struct
import sys

import hazard

NAME = "standalone__mha_block_cached__near_ridge"

OPT = dict(diag=0, L=5, dma_gap=3, xmap=1, nodma=0, nobar=0, nolds=0, nosm=0, noexp=0, kvflag=1, qpflag=0, k2flag=0, k2aflag=0, k2twice=0, ostflag=2, k2noA=0, k2noB=0, k2grid=216, k2same=0, k2nomf=0, pf=1, wopf=1, pfflag=0)
FLAGS = ['', ' nt', ' sc1', ' sc0 sc1', ' sc1 nt', ' sc0 sc1 nt', ' sc0']
for a in sys.argv[2:]:
    k, v = a.split("=")
    OPT[k] = int(v)

KBLK, VBLK = 1040, 1088
K0, V0, SLOT = 0, 33280, 68096
STB, STA, STSZ = 50688, 107264, 56576
LDS1 = 163840
WS_O_BYTES = 72 * 32 * 8192
DIAG_OFF = 64 << 20


def f32bits(x):
    return struct.unpack("<I", struct.pack("<f", x))[0]


QSCALE = f32bits(128 ** -0.5 * math.log2(math.e))


class Asm:
    def __init__(self):
        self.l = []

    def __call__(self, s):
        self.l.append("    " + s)

    def label(self, s):
        self.l.append(s + ":")

    def raw(self, s):
        self.l.append(s)

    def ext(self, lst):
        for s in lst:
            self(s)


def vr(a, n):
    return f"v[{a}:{a + n - 1}]"


def ar(a, n):
    return f"a[{a}:{a + n - 1}]"


MF = "v_mfma_f32_32x32x16_bf16"

SRD_X, SRD_W, SRD_K, SRD_V, SRD_O, SRD_P = 4, 8, 12, 16, 20, 84
sW, sB, sH = 24, 27, 28
sXD, sXS, sWD, sWS, sT0, sT1 = 42, 43, 44, 45, 46, 47
sSTG = 48
sCNT = 49
sKD, sVD, sKS, sVS, sTOG = 50, 51, 52, 53, 54
sSC = 56
sOO = 58
sST = 60

vXD, vWD, vXA, vXC, vWR, vWC = 2, 3, 4, 6, 8, 9
S_A = [16, 48]
S_B = [32, 64]
S_C = 80
NEG = {"a": 96, "b": 112, "c": 128}
QV = {"a": 160, "b": 192}
vK, vV, vDM = 224, 228, 232
vL = {"a": 234, "b": 235, "c": 236}
vL0 = {"a": 237, "b": 238, "c": 239}
vT = 240
O_ACC = {"a": 0, "b": 64, "c": 128}
RING = 192
QC = 224


def srd(n):
    return f"s[{n}:{n + 3}]"


def sreg(x):
    return S_A, S_B


def Sbuf(t, par):
    return {"a": S_A[par], "b": S_B[par], "c": S_C}[t]


def qfrag(t, kk):
    if t == "c":
        return ar(QC + 4 * kk, 4)
    return vr(QV[t] + 4 * kk, 4)


stamp_n = [0]


def stamp(A):
    if OPT["diag"]:
        n = stamp_n[0]
        stamp_n[0] += 1
        A(f"s_memtime s[{sST + 2 * n}:{sST + 2 * n + 1}]")


def dma(m0base, m0off, voff, srdn, sbase, soff, imm=0):
    out = [f"s_add_u32 m0, s{m0base}, {m0off}"]
    if soff:
        out.append(f"s_add_u32 s{sT0}, s{sbase}, {soff}")
        so = sT0
    else:
        out.append("s_nop 0")
        so = sbase
    o = f" offset:{imm}" if imm else ""
    out.append(f"buffer_load_dwordx4 v{voff}, {srd(srdn)}, s{so} offen{o}{FLAGS[OPT['qpflag']]} lds")
    return out


def chunk_dma():
    p = []
    for i in range(4):
        p.append(dma(sWD, i * VBLK, vWD, SRD_W, sWS, i * 8192))
    for i in range(9):
        p.append(dma(sXD, i * VBLK, vXD, SRD_X, sXS, i * 9216))
    return p


def chunk_adv():
    return [f"s_add_u32 s{sXS}, s{sXS}, 128", f"s_add_u32 s{sWS}, s{sWS}, {64 * 8192}",
            f"s_add_u32 s{sXD}, s{sXD}, s{sSTG}", f"s_add_u32 s{sWD}, s{sWD}, s{sSTG}"]


def kv_dma(dst, src, srdn, blk, first=0, n=8):
    p = []
    for i in range(first, first + n):
        o = f" offset:{(i % 4) * 1024}" if i % 4 else ""
        p.append([f"s_add_u32 m0, s{dst}, {i * blk - (i % 4) * 1024}",
                  f"buffer_load_dwordx4 v{vDM + i // 4}, {srd(srdn)}, s{src} offen{o}{FLAGS[OPT['kvflag']]} lds"])
    return p


def qp_set(par):
    b = RING + 32 * par
    return dict(W=[b + 4 * i for i in range(4)], Wc=b + 16, Xa=b + 20, Xb=b + 24, Xc=b + 28)


def qp_reads(ks):
    s = qp_set(ks % 2)
    r = []
    xo = (ks >> 1) * 64
    r.append(f"ds_read_b128 {ar(s['Xa'], 4)}, v{vXA + (ks & 1)} offset:{xo}")
    for e in range(2):
        r.append(f"ds_read_b64_tr_b16 {ar(s['W'][0] + 2 * e, 2)}, v{vWR} offset:{e * 4 * VBLK + ks * 256}")
    r.append(f"ds_read_b128 {ar(s['Xb'], 4)}, v{vXA + (ks & 1)} offset:{xo + 4 * VBLK}")
    for dt in range(1, 4):
        for e in range(2):
            r.append(f"ds_read_b64_tr_b16 {ar(s['W'][dt] + 2 * e, 2)}, v{vWR} offset:{e * 4 * VBLK + ks * 256 + dt * 64}")
    for e in range(2):
        r.append(f"ds_read_b64_tr_b16 {ar(s['Wc'] + 2 * e, 2)}, v{vWC} offset:{e * 4 * VBLK + ks * 256}")
    r.append(f"ds_read_b128 {ar(s['Xc'], 4)}, v{vXC + (ks & 1)} offset:{xo}")
    return r


def qp_mfmas(ks):
    s = qp_set(ks % 2)
    m = []
    for dt in range(4):
        m.append(f"{MF} {vr(16 + 16 * dt, 16)}, {ar(s['W'][dt], 4)}, {ar(s['Xa'], 4)}, {vr(16 + 16 * dt, 16)}")
        m.append(f"{MF} {vr(80 + 16 * dt, 16)}, {ar(s['W'][dt], 4)}, {ar(s['Xb'], 4)}, {vr(80 + 16 * dt, 16)}")
    m.append(f"{MF} {vr(144, 16)}, {ar(s['Wc'], 4)}, {ar(s['Xc'], 4)}, {vr(144, 16)}")
    return m


def interleave(A, mf, groups, per_gap):
    g = list(groups)
    for m in mf:
        A(m)
        for _ in range(per_gap):
            if g:
                A.ext(g.pop(0))
    for x in g:
        A.ext(x)


def qp_toggle():
    return [[f"v_add_u32 v{r}, s{sSTG}, v{r}"] for r in (vXA, vXA + 1, vXC, vXC + 1, vWR, vWC)]


def qp_body(A, first, dmas, post, vm):
    A(f"s_waitcnt vmcnt({vm}) lgkmcnt(0)")
    A("s_barrier")
    if first:
        stamp(A)
    d = list(dmas)
    rd = [[x] for x in qp_reads(0)]
    if first:
        for x in rd:
            A.ext(x)
        for x in d[:9]:
            A.ext(x)
    else:
        mixed = []
        for i in range(9):
            grp = []
            for x in rd[2 * i:2 * i + 2]:
                grp += x
            grp += d[i]
            mixed.append(grp)
        interleave(A, qp_mfmas(3), mixed, 1)
    d = d[9:]
    for ks in range(3):
        A("s_waitcnt lgkmcnt(0)")
        rd = [[x] for x in qp_reads(ks + 1)]
        mixed = []
        for i in range(9):
            grp = []
            for x in rd[2 * i:2 * i + 2]:
                grp += x
            if d:
                grp += d.pop(0)
            mixed.append(grp)
        if ks == 2:
            assert not d
            t = qp_toggle()
            mixed[7] += t[0] + t[1] + t[2]
            mixed[8] += t[3] + t[4] + t[5] + post
        interleave(A, qp_mfmas(ks), mixed, 1)


def build_loop():
    L = OPT["L"]
    mf = []
    step_info = []
    for j in range(4):
        jn = (j + 1) % 4
        tiles = "abc" if jn == 0 else "ab"
        q0 = len(mf)
        for kk in range(8):
            f = 16 * j + kk
            for t in tiles:
                S = Sbuf(t, jn % 2)
                C = vr(NEG[t], 16) if kk == 0 else vr(S, 16)
                mf.append((f"{MF} {vr(S, 16)}, {ar(RING + 4 * (f % 8), 4)}, {qfrag(t, kk)}, {C}", f))
        tiles = "abc" if j == 0 else "ab"
        p0 = len(mf)
        for ks in range(2):
            for dt in range(4):
                f = 16 * j + 8 + ks * 4 + dt
                for t in tiles:
                    S = Sbuf(t, j % 2)
                    O = ar(O_ACC[t] + 16 * dt, 16)
                    mf.append((f"{MF} {O}, {ar(RING + 4 * (f % 8), 4)}, {vr(S + 8 * ks, 4)}, {O}", f))
        step_info.append((q0, p0))
    N = len(mf)
    assert N == 144
    first_use, last_use = {}, {}
    for i, (_, f) in enumerate(mf):
        first_use.setdefault(f, i)
        last_use[f] = i
    gaps = [[] for _ in range(N)]

    def frag_reads(f):
        j, r = divmod(f, 16)
        dst = RING + 4 * (f % 8)
        if r < 8:
            return [f"ds_read_b128 {ar(dst, 4)}, v{vK + (j + 1) % 4} offset:{r * 32}"]
        ks, dt = divmod(r - 8, 4)
        return [f"ds_read_b64_tr_b16 {ar(dst + 2 * e, 2)}, v{vV + j} offset:{(16 * ks + 8 * e) * VBLK + dt * 64}"
                for e in range(2)]

    last_read_gap = {}
    for f in range(64):
        src = (f - L) % 64
        g = last_use[src]
        tag = "n" if f - L < 0 else ""
        rd = frag_reads(f)
        if len(rd) == 2:
            gaps[(g - 1) % N].append((rd[0], tag, ("rd", f)))
            gaps[g].append((rd[1], tag, ("rd", f)))
        else:
            gaps[g].append((rd[0], tag, ("rd", f)))
        last_read_gap[f] = g
    assert L <= 7
    for j in range(4):
        g = last_read_gap[16 * j + 7]
        jn = (j + 1) % 4
        op = "v_subrev_u32" if jn == 0 else "v_add_u32"
        gaps[(g + 1) % N].append((f"{op} v{vK + jn}, s{sTOG}, v{vK + jn}", "", None))
        g = last_read_gap[16 * j + 15]
        assert g + 1 < N
        gaps[g + 1].append((f"v_add_u32 v{vV + j}, s{sTOG}, v{vV + j}", "", None))
    gBV = 0
    gBK = step_info[2][1]
    assert last_read_gap[8] - 1 > gBV and last_read_gap[48] > gBK
    for gb, dst, src, srdn, blk, upd in (
            (gBV, sVD, sVS, SRD_V, VBLK, f"s_sub_u32 s{sVD}, s{sVD}, s{sTOG}"),
            (gBK, sKD, sKS, SRD_K, KBLK, f"s_add_u32 s{sKD}, s{sKD}, s{sTOG}")):
        gaps[gb].insert(0, ("s_waitcnt vmcnt(8)", "", None))
        gaps[gb].insert(1, ("s_barrier", "", None))
        g = gb + 1
        for pc in kv_dma(dst, src, srdn, blk):
            gaps[g].insert(0, (pc[0], "", None))
            gaps[g].append((pc[1], "", "dma"))
            g += OPT["dma_gap"]
        gaps[g].append((upd, "", None))
        gaps[g].append((f"s_add_u32 s{src}, s{src}, 32768", "", None))
    spans = {0: (129, 172), 1: (28, 62), 2: (62, 95), 3: (95, 129)}
    sm = [[] for _ in range(N + 40)]
    for j in range(4):
        tiles = "abc" if j == 0 else "ab"
        order = [(t, h) for h in range(2) for t in tiles]
        n = 8 * len(order)
        s0, e0 = spans[j]
        k = 0
        for (t, h) in order:
            S = Sbuf(t, j % 2) + 8 * h
            acc = vL0[t] if j == 0 else vL[t]
            for e in range(8):
                g = s0 + (k * (e0 - s0)) // n
                gn = s0 + ((k + 1) * (e0 - s0)) // n
                sm[g].append((0, k, f"v_exp_f32 v{S + e}, v{S + e}"))
                if j == 0 and h == 0 and e == 0:
                    pass
                elif j == 0 and h == 0 and e == 1:
                    sm[gn].append((0, k + 1.3, f"v_add_f32 v{acc}, v{S}, v{S + 1}"))
                else:
                    sm[gn].append((0, k + 1.3, f"v_add_f32 v{acc}, v{acc}, v{S + e}"))
                if e % 2 == 1:
                    sm[gn].append((0, k + 1.6, f"v_cvt_pk_bf16_f32 v{S + e // 2}, v{S + e - 1}, v{S + e}"))
                k += 1
        if j == 0:
            for i, t in enumerate(tiles):
                sm[e0 + 4 + i].append((1, 999, f"v_add_f32 v{vL[t]}, v{vL[t]}, v{vL0[t]}"))
        for g in range(len(sm)):
            if sm[g]:
                items = sorted(sm[g], key=lambda x: (x[0], x[1]))
                for it in items:
                    tag = "n" if (j == 0 and g < N) else ""
                    gaps[g % N].append((it[2], tag, ("sm", j)))
                sm[g] = []
    for g in range(N):
        items = gaps[g]
        head = [x for x in items if x[0].startswith(("s_waitcnt", "s_barrier", "s_add_u32 m0"))]
        dm = [x for x in items if x[2] == "dma"]
        smi = [x for x in items if isinstance(x[2], tuple) and x[2][0] == "sm"]
        if smi:
            js = []
            for x in smi:
                if x[2][1] not in js:
                    js.append(x[2][1])
            if len(js) == 2:
                a, b = js
                old = a if (a + 1) % 4 == b else b
                smi = [x for x in smi if x[2][1] != old] [:1] + [x for x in smi if x[2][1] == old] + \
                      [x for x in smi if x[2][1] != old][1:]
        rest = [x for x in items if x not in head and x not in dm and x not in smi]
        gaps[g] = head + rest + smi + dm
        if dm and len(gaps[g]) == 2:
            gaps[g] = head + [("s_nop 0", "", None)] + dm
    gaps[N - 1] += [(f"s_sub_u32 s{sTOG}, 0, s{sTOG}", "", None)]
    seq = []
    for it in range(2):
        for i in range(N):
            seq.append(("m", i, it))
            for x in gaps[i]:
                seq.append(("x", x, it))
    waits = {}
    for pos, e in enumerate(seq):
        if e[0] == "m" and e[2] == 1 and first_use[mf[e[1]][1]] == e[1]:
            f = mf[e[1]][1]
            cnt = 0
            p = pos - 1
            while True:
                q = seq[p]
                if q[0] == "x" and isinstance(q[1][2], tuple) and q[1][2][0] == "rd":
                    if q[1][2][1] == f:
                        break
                    cnt += 1
                p -= 1
            assert cnt <= 15
            waits[e[1]] = cnt
    body, pro = [], []
    for i in range(N):
        if i in waits:
            body.append(f"s_waitcnt lgkmcnt({waits[i]})")
        body.append(mf[i][0])
        for x in gaps[i]:
            body.append(x[0])
            if x[1] == "n":
                pro.append(x[0])
    def keep(x):
        if OPT["nodma"] and (x.startswith("buffer_load") or x.startswith("s_add_u32 m0") or "vmcnt" in x):
            return False
        if OPT["nobar"] and x.startswith("s_barrier"):
            return False
        if OPT["nolds"] and (x.startswith("ds_read") or "lgkmcnt" in x):
            return False
        if OPT["nosm"] and x.startswith(("v_exp", "v_add_f32", "v_cvt")):
            return False
        if OPT["noexp"] and x.startswith(("v_exp")):
            return False
        return True
    body = [x for x in body if keep(x)]
    return body, pro


def cross_half(A, op, r, t):
    A(f"v_mov_b32 v{t}, v{r}")
    A("s_nop 1")
    A(f"v_permlane32_swap_b32 v{r}, v{t}")
    A(f"{op} v{r}, v{r}, v{t}")


def k1(A):
    A.raw(".p2align 8")
    A.raw(".type attn_kernel,@function")
    A.label("attn_kernel")
    A("s_cmp_ge_u32 s2, 256")
    A("s_cbranch_scc1 L1_end")
    A("s_load_dwordx8 s[32:39], s[0:1], 0")
    A("s_load_dwordx2 s[40:41], s[0:1], 56")
    A("s_load_dwordx2 s[30:31], s[0:1], 32")
    stamp(A)
    if OPT["diag"]:
        A("s_memrealtime s[92:93]")
    A("v_lshrrev_b32 v1, 6, v0")
    A("v_and_b32 v0, 63, v0")
    A(f"v_readfirstlane_b32 s{sW}, v1")
    A("s_and_b32 s25, s2, 7")
    A("s_lshr_b32 s26, s2, 3")
    if OPT["xmap"] == 0:
        A(f"s_mov_b32 s{sB}, s25")
        A(f"s_mov_b32 s{sH}, s26")
    else:
        A(f"s_and_b32 s{sB}, s25, 1")
        A(f"s_lshl_b32 s{sB}, s{sB}, 2")
        A("s_and_b32 s29, s26, 3")
        A(f"s_add_u32 s{sB}, s{sB}, s29")
        A(f"s_lshr_b32 s{sH}, s25, 1")
        A(f"s_lshl_b32 s{sH}, s{sH}, 3")
        A("s_lshr_b32 s29, s26, 2")
        A(f"s_add_u32 s{sH}, s{sH}, s29")
    hh, i32, r4, g2, cq, t0, t1 = 240, 241, 242, 243, 244, 245, 246
    A(f"v_lshrrev_b32 v{hh}, 5, v0")
    A(f"v_and_b32 v{i32}, 31, v0")
    A(f"v_bfe_u32 v{r4}, v0, 2, 2")
    A(f"v_bfe_u32 v{g2}, v0, 4, 1")
    A(f"v_and_b32 v{cq}, 3, v0")
    A(f"v_lshrrev_b32 v{t0}, 3, v0")
    A(f"v_mul_u32_u24 v{vXD}, 1152, v{t0}")
    A(f"v_and_b32 v{t0}, 7, v0")
    A(f"v_bfe_u32 v{t1}, v0, 4, 2")
    A(f"v_xor_b32 v{t0}, v{t0}, v{t1}")
    A(f"v_lshl_add_u32 v{vXD}, v{t0}, 4, v{vXD}")
    A(f"v_lshlrev_b32 v{vWD}, 17, v{t1}")
    A(f"v_and_b32 v{t0}, 15, v0")
    A(f"v_lshl_add_u32 v{vWD}, v{t0}, 4, v{vWD}")
    A(f"s_lshl_b32 s{sT0}, s{sW}, 13")
    A(f"v_lshl_add_u32 v{vDM}, v0, 4, s{sT0}")
    A(f"v_add_u32 v{vDM + 1}, 4096, v{vDM}")
    A("s_waitcnt lgkmcnt(0)")
    stamp(A)
    A(f"s_mul_i32 s{sT0}, s{sB}, 331776")
    A(f"s_add_u32 s{SRD_X}, s32, s{sT0}")
    A(f"s_addc_u32 s{SRD_X + 1}, s33, 0")
    A(f"s_mov_b32 s{SRD_X + 2}, 331776")
    A(f"s_mov_b32 s{SRD_X + 3}, 0x20000")
    A(f"s_lshl_b32 s{sT0}, s{sH}, 8")
    A(f"s_add_u32 s{SRD_W}, s38, s{sT0}")
    A(f"s_addc_u32 s{SRD_W + 1}, s39, 0")
    A(f"s_sub_u32 s{SRD_W + 2}, {576 * 8192}, s{sT0}")
    A(f"s_mov_b32 s{SRD_W + 3}, 0x20000")
    A(f"s_lshl_b32 s{sT0}, s{sB}, 5")
    A(f"s_add_u32 s{sT0}, s{sT0}, s{sH}")
    A(f"s_lshl_b32 s{sT0}, s{sT0}, 19")
    A(f"s_add_u32 s{SRD_K}, s34, s{sT0}")
    A(f"s_addc_u32 s{SRD_K + 1}, s35, 0")
    A(f"s_mov_b32 s{SRD_K + 2}, 524288")
    A(f"s_mov_b32 s{SRD_K + 3}, 0x20000")
    A(f"s_add_u32 s{SRD_V}, s36, s{sT0}")
    A(f"s_addc_u32 s{SRD_V + 1}, s37, 0")
    A(f"s_mov_b32 s{SRD_V + 2}, 524288")
    A(f"s_mov_b32 s{SRD_V + 3}, 0x20000")
    A(f"s_mov_b32 s{SRD_O}, s40")
    A(f"s_mov_b32 s{SRD_O + 1}, s41")
    A(f"s_mov_b32 s{SRD_O + 2}, {(DIAG_OFF + (1 << 20)) if OPT['diag'] else WS_O_BYTES}")
    A(f"s_mov_b32 s{SRD_O + 3}, 0x20000")
    A(f"s_mov_b32 s{SRD_P}, s30")
    A(f"s_mov_b32 s{SRD_P + 1}, s31")
    A(f"s_mov_b32 s{SRD_P + 2}, {4096 * 1152}")
    A(f"s_mov_b32 s{SRD_P + 3}, 0x20000")
    if OPT["pf"]:
        fl = FLAGS[OPT["pfflag"]]
        A(f"s_mul_i32 s{sT0}, s{sW}, 56")
        A(f"v_min_u32 v{t0}, 55, v0")
        A(f"v_add_u32 v{t0}, s{sT0}, v{t0}")
        A(f"v_lshrrev_b32 v{t1}, 1, v{t0}")
        A(f"v_lshlrev_b32 v{t1}, 15, v{t1}")
        A(f"v_and_b32 v{t0}, 1, v{t0}")
        A(f"v_lshl_add_u32 v{t1}, v{t0}, 7, v{t1}")
        A(f"s_and_b32 s{sT0}, s{sB}, 3")
        A(f"s_add_u32 s{sT0}, s{sT0}, 128")
        A(f"s_lshl_b32 s{sT0}, s{sT0}, 13")
        A(f"buffer_load_dword v252, v{t1}, {srd(SRD_W)}, s{sT0} offen{fl}")
        if OPT["pf"] == 2:
            A(f"buffer_load_dword v252, v{t1}, {srd(SRD_W)}, s{sT0} offen offset:64{fl}")
        A(f"v_min_u32 v{t0}, 62, v0")
        A(f"v_mul_u32_u24 v{t1}, 37, v{t0}")
        A(f"v_lshrrev_b32 v{t1}, 8, v{t1}")
        A(f"v_mul_u32_u24 v247, 7, v{t1}")
        A(f"v_sub_u32 v{t0}, v{t0}, v247")
        A(f"v_mul_u32_u24 v{t1}, 1152, v{t1}")
        A(f"v_lshl_add_u32 v{t1}, v{t0}, 7, v{t1}")
        A(f"s_and_b32 s{sT0}, s{sH}, 7")
        A(f"s_mul_i32 s{sT0}, s{sT0}, 36")
        A(f"s_mul_i32 s{sT1}, s{sW}, 9")
        A(f"s_add_u32 s{sT0}, s{sT0}, s{sT1}")
        A(f"s_mul_i32 s{sT0}, s{sT0}, 1152")
        A(f"buffer_load_dword v252, v{t1}, {srd(SRD_X)}, s{sT0} offen offset:256{fl}")
        if OPT["pf"] == 2:
            A(f"buffer_load_dword v252, v{t1}, {srd(SRD_X)}, s{sT0} offen offset:320{fl}")
    A(f"s_mul_i32 s{sXD}, s{sW}, {9 * VBLK}")
    A(f"s_add_u32 s{sXD}, s{sXD}, {STA}")
    A(f"s_mul_i32 s{sXS}, s{sW}, {9 * 9216}")
    A(f"s_mul_i32 s{sWD}, s{sW}, {4 * VBLK}")
    A(f"s_add_u32 s{sWD}, s{sWD}, {STA + 36 * VBLK}")
    A(f"s_lshl_b32 s{sWS}, s{sW}, 15")
    A(f"s_mov_b32 s{sSTG}, {-STSZ & 0xffffffff}")
    for p in chunk_dma():
        A.ext(p)
    A.ext(chunk_adv())
    for p in chunk_dma():
        A.ext(p)
    A(f"s_sub_u32 s{sSTG}, 0, s{sSTG}")
    A.ext(chunk_adv())
    A(f"s_sub_u32 s{sSTG}, 0, s{sSTG}")
    stamp(A)
    A(f"s_mul_i32 s{sKD}, s{sW}, {8 * KBLK}")
    A(f"s_mul_i32 s{sVD}, s{sW}, {8 * VBLK}")
    A(f"s_add_u32 s{sVD}, s{sVD}, {V0}")
    A(f"s_mov_b32 s{sKS}, 0")
    A(f"v_lshrrev_b32 v{t0}, 3, v{i32}")
    A(f"v_mul_u32_u24 v{vXC}, {VBLK}, v{t0}")
    A(f"v_and_b32 v{t0}, 7, v{i32}")
    A(f"v_lshl_add_u32 v{vXC}, v{t0}, 7, v{vXC}")
    A(f"v_bfe_u32 v{t0}, v{i32}, 1, 2")
    A(f"v_xor_b32 v{t0}, v{t0}, v{hh}")
    A(f"v_xor_b32 v{t1}, 2, v{t0}")
    A(f"v_lshl_add_u32 v{vXC + 1}, v{t1}, 4, v{vXC}")
    A(f"v_lshl_add_u32 v{vXC}, v{t0}, 4, v{vXC}")
    A(f"s_mul_i32 s{sT0}, s{sW}, {8 * VBLK}")
    A(f"s_add_u32 s{sT0}, s{sT0}, {STA}")
    A(f"v_add_u32 v{vXA}, s{sT0}, v{vXC}")
    A(f"v_add_u32 v{vXA + 1}, s{sT0}, v{vXC + 1}")
    A(f"v_add_u32 v{vXC}, {STA + 32 * VBLK}, v{vXC}")
    A(f"v_add_u32 v{vXC + 1}, {STA + 32 * VBLK}, v{vXC + 1}")
    A(f"v_lshl_add_u32 v{t0}, v{hh}, 3, v{r4}")
    A(f"v_mul_u32_u24 v{vWR}, {VBLK}, v{t0}")
    A(f"v_lshl_add_u32 v{vWR}, v{g2}, 5, v{vWR}")
    A(f"v_and_b32 v{t0}, 1, v{cq}")
    A(f"v_lshl_add_u32 v{vWR}, v{t0}, 4, v{vWR}")
    A(f"v_lshrrev_b32 v{t0}, 1, v{cq}")
    A(f"v_lshl_add_u32 v{vWR}, v{t0}, 3, v{vWR}")
    A(f"v_add_u32 v{vWR}, {STA + 36 * VBLK}, v{vWR}")
    A(f"s_lshl_b32 s{sT0}, s{sW}, 6")
    A(f"v_add_u32 v{vWC}, s{sT0}, v{vWR}")
    A(f"v_mul_u32_u24 v{t0}, {KBLK}, v{i32}")
    A(f"v_lshl_add_u32 v{t0}, v{hh}, 4, v{t0}")
    A(f"v_lshl_add_u32 v{t1}, v{hh}, 2, v{r4}")
    A(f"v_mul_u32_u24 v{t1}, {VBLK}, v{t1}")
    A(f"v_lshl_add_u32 v{t1}, v{g2}, 5, v{t1}")
    A(f"v_lshl_add_u32 v{t1}, v{cq}, 3, v{t1}")
    A(f"v_add_u32 v{t1}, {V0}, v{t1}")
    for j in range(4):
        A(f"s_xor_b32 s{sT0}, s{sW}, {j}")
        A(f"s_lshl_b32 s{sT0}, s{sT0}, 8")
        A(f"v_add_u32 v{vK + j}, s{sT0}, v{t0}")
        A(f"v_add_u32 v{vV + j}, s{sT0}, v{t1}")
    for i in range(16, 160):
        A(f"v_mov_b32 v{i}, 0")
    for i in range(192):
        A(f"v_accvgpr_write_b32 a{i}, 0")
    for t in "abc":
        A(f"v_mov_b32 v{vL[t]}, 0")
    A(f"s_mov_b32 s{sSC}, {QSCALE:#x}")
    A(f"s_mov_b32 s{sSC + 1}, {QSCALE:#x}")
    stamp(A)

    def v0_pieces(base_blk):
        p = []
        for i in range(4):
            o = f" offset:{i * 1024}" if i else ""
            p.append([f"s_add_u32 m0, s{sT1}, {V0 + (base_blk + i) * VBLK - i * 1024}",
                      "s_nop 0",
                      f"buffer_load_dwordx4 v{vT}, {srd(SRD_V)}, s{sVS} offen{o}{FLAGS[OPT['kvflag']]} lds"])
        return p

    def with_nop(ps):
        return [[p[0], "s_nop 0", p[1]] for p in ps]

    A(f"s_mul_i32 s{sT1}, s{sW}, {4 * VBLK}")
    A(f"s_lshl_b32 s{sT0}, s{sW}, 12")
    A(f"v_lshl_add_u32 v{vT}, v0, 4, s{sT0}")
    A(f"s_mov_b32 s{sVS}, 0")
    flip = [f"s_sub_u32 s{sSTG}, 0, s{sSTG}"]
    qp_body(A, True, with_nop(kv_dma(sKD, sKS, SRD_K, KBLK)) + v0_pieces(0), flip, 13)
    stamp(A)
    A(f"s_mov_b32 s{sCNT}, 7")
    A("s_waitcnt vmcnt(12)")
    A.label("L1_qp")
    if OPT["diag"]:
        A(f"s_add_u32 m0, s{sCNT}, 16")
        A("s_nop 0")
        A(f"v_writelane_b32 v250, s90, m0")
        A("s_memtime s[90:91]")
    adv = [f"s_add_u32 s{sXS}, s{sXS}, 128", f"s_add_u32 s{sWS}, s{sWS}, {64 * 8192}",
           f"s_sub_u32 s{sXD}, s{sXD}, s{sSTG}", f"s_sub_u32 s{sWD}, s{sWD}, s{sSTG}"]
    qp_body(A, False, chunk_dma(), adv + flip, 63)
    A(f"s_sub_u32 s{sCNT}, s{sCNT}, 1")
    A(f"s_cmp_lg_u32 s{sCNT}, 0")
    A("s_waitcnt vmcnt(0)")
    A("s_cbranch_scc1 L1_qp")
    stamp(A)
    if OPT["wopf"]:
        A(f"s_lshl_b32 s{sT0}, s2, 2")
        A(f"s_add_u32 s{sT0}, s{sT0}, s{sW}")
        A(f"s_mul_i32 s{sT0}, s{sT0}, 4608")
        A(f"v_lshlrev_b32 v{vT + 1}, 6, v0")
        A(f"buffer_load_dword v252, v{vT + 1}, {srd(SRD_P)}, s{sT0} offen")
        A(f"buffer_load_dword v252, v{vT + 1}, {srd(SRD_P)}, s{sT0} offen offset:512")
        A(f"s_mul_i32 s{sT0}, s{sB}, {9 * 32 * 8192}")
        A(f"v_lshlrev_b32 v{vT + 1}, 18, v0")
        A(f"v_min_u32 v{vT + 1}, {8 << 18}, v{vT + 1}")
        A(f"buffer_load_dword v252, v{vT + 1}, {srd(SRD_O)}, s{sT0} offen nt")
    A(f"s_mov_b32 s{sVS}, 16384")
    A(f"s_mov_b32 s{sKS}, 32768")
    A(f"s_add_u32 s{sKD}, s{sKD}, {SLOT}")
    qp_body(A, False, v0_pieces(16) + with_nop(kv_dma(sKD, sKS, SRD_K, KBLK)), [], 63)
    A("s_waitcnt lgkmcnt(0)")
    A.ext(qp_mfmas(3))
    stamp(A)
    A(f"s_sub_u32 s{sKD}, s{sKD}, {SLOT}")
    A(f"s_mov_b32 s{sKS}, 65536")
    A(f"s_add_u32 s{sVD}, s{sVD}, {SLOT}")
    A(f"s_mov_b32 s{sVS}, 32768")
    A(f"s_mov_b32 s{sTOG}, {SLOT}")
    A(f"s_mov_b32 s{sCNT}, 16")
    A(f"s_mul_i32 s{sT0}, s{sW}, {8 * VBLK}")
    A(f"s_add_u32 s{sT0}, s{sT0}, {STA}")
    A(f"v_lshl_add_u32 v{vT}, v0, 4, s{sT0}")
    A(f"v_lshlrev_b32 v{vT + 1}, 4, v0")
    A(f"v_add_u32 v{vT + 1}, {STA}, v{vT + 1}")
    A("s_nop 1")

    def conv(src, dst):
        for i in range(8):
            A(f"v_pk_mul_f32 {vr(src + 2 * i, 2)}, {vr(src + 2 * i, 2)}, s[{sSC}:{sSC + 1}]")
        for i in range(8):
            A(f"v_cvt_pk_bf16_f32 v{dst + i}, v{src + 2 * i}, v{src + 2 * i + 1}")

    for dt in range(4):
        conv(16 + 16 * dt, QV["a"] + 8 * dt)
    conv(144, 144)
    A(f"ds_write_b128 v{vT}, {vr(144, 4)}")
    A(f"ds_write_b128 v{vT}, {vr(148, 4)} offset:1024")
    for dt in range(4):
        conv(80 + 16 * dt, QV["b"] + 8 * dt)
    A("s_waitcnt lgkmcnt(0)")
    A("s_barrier")
    for kk in range(8):
        A(f"ds_read_b128 {ar(RING + 4 * kk, 4)}, v{vK} offset:{kk * 32}")
        A(f"ds_read_b128 {ar(QC + 4 * kk, 4)}, v{vT + 1} offset:{(kk // 2) * 8 * VBLK + (kk % 2) * 1024}")
        if kk == 6:
            A("s_waitcnt lgkmcnt(10)")
    A(f"v_add_u32 v{vK}, s{sTOG}, v{vK}")
    for kk in range(8):
        A(f"s_waitcnt lgkmcnt({min(14 - 2 * kk, 15)})")
        for t in "abc":
            S = Sbuf(t, 0)
            C = "0" if kk == 0 else vr(S, 16)
            A(f"{MF} {vr(S, 16)}, {ar(RING + 4 * kk, 4)}, {qfrag(t, kk)}, {C}")
    body, pro = build_loop()
    pro_rd = [x for x in pro if x.startswith("ds_read")]
    pro_sm = [x for x in pro if not x.startswith("ds_read")]
    A.ext(pro_rd)
    A("s_nop 7")
    for t in "abc":
        S = Sbuf(t, 0)
        m = vT + 2
        A(f"v_max3_f32 v{m}, v{S}, v{S + 1}, v{S + 2}")
        for i in range(3, 15, 2):
            A(f"v_max3_f32 v{m}, v{m}, v{S + i}, v{S + i + 1}")
        A(f"v_max_f32 v{m}, v{m}, v{S + 15}")
        cross_half(A, "v_max_f32", m, vT + 3)
        for i in range(16):
            A(f"v_sub_f32 v{NEG[t] + i}, 0, v{m}")
        for i in range(16):
            A(f"v_sub_f32 v{S + i}, v{S + i}, v{m}")
    for x in pro_sm:
        A(x)
        if x.startswith("v_exp"):
            A("s_nop 0")
    stamp(A)
    A.raw(".p2align 6")
    A.label("L1_loop")
    if OPT["diag"]:
        A(f"s_mov_b32 m0, s{sCNT}")
        A("s_nop 0")
        A(f"v_writelane_b32 v250, s90, m0")
        A(f"v_writelane_b32 v251, s96, m0")
        A("s_memtime s[90:91]")
        A("s_memrealtime s[96:97]")
    A.ext(body)
    A(f"s_sub_u32 s{sCNT}, s{sCNT}, 1")
    A(f"s_cmp_lg_u32 s{sCNT}, 0")
    A("s_cbranch_scc1 L1_loop")
    errs = hazard.check(body + body, "loop")
    stamp(A)
    A("s_waitcnt vmcnt(0) lgkmcnt(0)")
    A("s_barrier")
    A(f"s_lshl_b32 s{sT0}, s{sW}, 14")
    A(f"v_lshl_add_u32 v{vT}, v0, 4, s{sT0}")
    for i in range(16):
        A(f"ds_write_b128 v{vT}, {ar(O_ACC['c'] + 4 * i, 4)} offset:{i * 1024}")
    for t in "abc":
        cross_half(A, "v_add_f32", vL[t], vT + 3)
    A(f"s_lshl_b32 s{sT0}, s{sW}, 9")
    A(f"v_lshl_add_u32 v{vT + 1}, v0, 3, s{sT0}")
    A(f"v_add_u32 v{vT + 1}, 65536, v{vT + 1}")
    A(f"v_mov_b32 v{vT + 4}, v{vL['c']}")
    A(f"v_mov_b32 v{vT + 5}, v{NEG['c']}")
    A(f"ds_write_b64 v{vT + 1}, {vr(vT + 4, 2)}")
    A(f"v_rcp_f32 v{vL['a']}, v{vL['a']}")
    A(f"v_rcp_f32 v{vL['b']}, v{vL['b']}")
    A(f"v_lshlrev_b32 v{vT + 6}, 4, v0")
    A(f"v_add_u32 v{vT + 7}, 4096, v{vT + 6}")
    A(f"s_mul_i32 s{sOO}, s{sB}, 9")
    A(f"s_lshl_b32 s{sT0}, s{sW}, 1")
    A(f"s_add_u32 s{sT0}, s{sT0}, s{sOO}")
    A(f"s_lshl_b32 s{sT0}, s{sT0}, 5")
    A(f"s_add_u32 s{sT0}, s{sT0}, s{sH}")
    A(f"s_lshl_b32 s{sT0}, s{sT0}, 13")
    A(f"s_add_u32 s{sT1}, s{sT0}, {32 * 8192}")

    def norm_store(t, so):
        for i in range(8):
            b = 16 + 8 * i if t == "a" else 160 + 8 * i
            for e in range(8):
                A(f"v_accvgpr_read_b32 v{b + e}, a{O_ACC[t] + 8 * i + e}")
            for e in range(8):
                A(f"v_mul_f32 v{b + e}, v{vL[t]}, v{b + e}")
            for e in range(4):
                A(f"v_cvt_pk_bf16_f32 v{b + e}, v{b + 2 * e}, v{b + 2 * e + 1}")
            o = f" offset:{(i % 4) * 1024}" if i % 4 else ""
            A(f"buffer_store_dwordx4 {vr(b, 4)}, v{vT + 6 + i // 4}, {srd(SRD_O)}, s{so} offen{o}{FLAGS[OPT['ostflag']]}")

    norm_store("a", sT0)
    A("s_waitcnt lgkmcnt(0)")
    A("s_barrier")
    A(f"s_lshl_b32 s{sT0}, s{sW}, 12")
    A(f"v_lshl_add_u32 v{vT}, v0, 4, s{sT0}")
    A(f"v_lshlrev_b32 v{vT + 1}, 3, v0")
    A(f"v_add_u32 v{vT + 1}, 65536, v{vT + 1}")
    for w in range(4):
        A(f"ds_read_b64 {vr(144 + 2 * w, 2)}, v{vT + 1} offset:{w * 512}")
    for w in range(4):
        for q in range(4):
            A(f"ds_read_b128 {vr(80 + 16 * w + 4 * q, 4)}, v{vT} offset:{w * 16384 + q * 1024}")
        if w == 1:
            A("s_waitcnt lgkmcnt(4)")
    norm_store("b", sT1)
    A("s_waitcnt lgkmcnt(0)")
    A(f"v_min3_f32 v152, v145, v147, v149")
    A(f"v_min_f32 v152, v152, v151")
    for w in range(4):
        A(f"v_sub_f32 v{145 + 2 * w}, v152, v{145 + 2 * w}")
    for w in range(4):
        A(f"v_exp_f32 v{145 + 2 * w}, v{145 + 2 * w}")
    A("s_nop 0")
    A("v_mul_f32 v153, v144, v145")
    for w in range(1, 4):
        A(f"v_fmac_f32 v153, v{144 + 2 * w}, v{145 + 2 * w}")
    A("v_rcp_f32 v153, v153")
    A("s_nop 0")
    for w in range(4):
        A(f"v_mul_f32 v{145 + 2 * w}, v153, v{145 + 2 * w}")
    for e in range(16):
        A(f"v_mul_f32 v{80 + e}, v145, v{80 + e}")
    for w in range(1, 4):
        for e in range(16):
            A(f"v_fmac_f32 v{80 + e}, v{145 + 2 * w}, v{80 + 16 * w + e}")
    for e in range(8):
        A(f"v_cvt_pk_bf16_f32 v{96 + e}, v{80 + 2 * e}, v{80 + 2 * e + 1}")
    A(f"s_add_u32 s{sT0}, s{sOO}, 8")
    A(f"s_lshl_b32 s{sT0}, s{sT0}, 5")
    A(f"s_add_u32 s{sT0}, s{sT0}, s{sH}")
    A(f"s_lshl_b32 s{sT0}, s{sT0}, 13")
    A(f"s_lshl_b32 s{sT1}, s{sW}, 11")
    A(f"s_add_u32 s{sT0}, s{sT0}, s{sT1}")
    A(f"buffer_store_dwordx4 {vr(96, 4)}, v{vT + 6}, {srd(SRD_O)}, s{sT0} offen{FLAGS[OPT['ostflag']]}")
    A(f"buffer_store_dwordx4 {vr(100, 4)}, v{vT + 6}, {srd(SRD_O)}, s{sT0} offen offset:1024{FLAGS[OPT['ostflag']]}")
    if OPT["diag"]:
        A("s_waitcnt vmcnt(0)")
        stamp(A)
        A("s_memrealtime s[94:95]")
        A("s_waitcnt lgkmcnt(0)")
        A("v_writelane_b32 v250, s92, 30")
        A("v_writelane_b32 v250, s94, 31")
        n = stamp_n[0]
        for i in range(n):
            A(f"v_writelane_b32 v250, s{sST + 2 * i}, {32 + i}")
        A("v_writelane_b32 v250, s90, 0")
        A("v_writelane_b32 v251, s96, 0")
        A(f"s_lshl_b32 s{sT0}, s2, 2")
        A(f"s_add_u32 s{sT0}, s{sT0}, s{sW}")
        A(f"s_lshl_b32 s{sT0}, s{sT0}, 8")
        A(f"s_add_u32 s{sT0}, s{sT0}, {DIAG_OFF}")
        A(f"v_lshlrev_b32 v{vT}, 2, v0")
        A(f"buffer_store_dword v250, v{vT}, {srd(SRD_O)}, s{sT0} offen")
        A(f"s_add_u32 s{sT0}, s{sT0}, {1 << 19}")
        A(f"buffer_store_dword v251, v{vT}, {srd(SRD_O)}, s{sT0} offen")
    A.label("L1_end")
    A("s_endpgm")
    return errs


def k2(A):
    DEP = 8
    SRD_A, SRD_WO, SRD_OUT = 4, 8, 12
    sW, sMT, sNT, sT0, sT1, sAS, sBS, sLD, sCNT = 16, 17, 18, 19, 20, 21, 22, 23, 24
    vA, vBD, vBR, t0, t1 = 2, 5, 6, 8, 9
    ACC, ORING, WF = 16, 112, 208
    A.raw(".p2align 8")
    A.raw(".type oproj_kernel,@function")
    A.label("oproj_kernel")
    A(f"s_cmp_ge_u32 s2, {OPT['k2grid']}")
    A("s_cbranch_scc1 L2_end")
    A("s_load_dwordx4 s[32:35], s[0:1], 32")
    A("s_load_dwordx2 s[36:37], s[0:1], 56")
    if OPT["diag"]:
        A("s_memrealtime s[60:61]")
    A("v_lshrrev_b32 v1, 6, v0")
    A("v_and_b32 v0, 63, v0")
    A(f"v_readfirstlane_b32 s{sW}, v1")
    A("s_and_b32 s25, s2, 7")
    A("s_lshr_b32 s26, s2, 3")
    A(f"s_mul_i32 s{sNT}, s26, 43")
    A(f"s_lshr_b32 s{sNT}, s{sNT}, 7")
    A(f"s_mul_i32 s{sT0}, s{sNT}, 3")
    A(f"s_sub_u32 s{sT0}, s26, s{sT0}")
    A(f"s_mul_i32 s{sMT}, s25, 3")
    A(f"s_add_u32 s{sMT}, s{sMT}, s{sT0}")
    if OPT["k2same"]:
        A(f"s_mov_b32 s{sMT}, 0")
        A(f"s_mov_b32 s{sNT}, 0")
    A(f"v_lshlrev_b32 v{vA}, 4, v0")
    A(f"v_add_u32 v{vA + 1}, 262144, v{vA}")
    A(f"v_add_u32 v{vA + 2}, 524288, v{vA}")
    A(f"v_lshrrev_b32 v{t0}, 3, v0")
    A(f"v_mul_u32_u24 v{vBD}, 1152, v{t0}")
    A(f"v_bfe_u32 v{t0}, v0, 4, 1")
    A(f"v_lshlrev_b32 v{t0}, 2, v{t0}")
    A(f"v_and_b32 v{t1}, 7, v0")
    A(f"v_xor_b32 v{t0}, v{t0}, v{t1}")
    A(f"v_lshl_add_u32 v{vBD}, v{t0}, 4, v{vBD}")
    A(f"v_lshrrev_b32 v{t0}, 5, v0")
    A(f"v_bfe_u32 v{t1}, v0, 2, 2")
    A(f"v_lshl_add_u32 v{t0}, v{t0}, 2, v{t1}")
    A(f"v_lshlrev_b32 v{vBR}, 7, v{t0}")
    A(f"v_bfe_u32 v{t0}, v0, 4, 1")
    A(f"v_lshl_add_u32 v{vBR}, v{t0}, 5, v{vBR}")
    A(f"v_and_b32 v{t0}, 1, v0")
    A(f"v_lshl_add_u32 v{vBR}, v{t0}, 4, v{vBR}")
    A(f"v_bfe_u32 v{t0}, v0, 1, 1")
    A(f"v_lshl_add_u32 v{vBR}, v{t0}, 3, v{vBR}")
    A(f"v_bfe_u32 v{t0}, v0, 3, 1")
    A(f"v_lshl_add_u32 v{vBR}, v{t0}, 6, v{vBR}")
    A(f"s_mul_i32 s{sLD}, s{sW}, {DEP * 2048}")
    A(f"v_add_u32 v{vBR}, s{sLD}, v{vBR}")
    A(f"v_xor_b32 v{vBR + 1}, 64, v{vBR}")
    A("s_waitcnt lgkmcnt(0)")
    A(f"s_mov_b32 s{SRD_A}, s36")
    A(f"s_mov_b32 s{SRD_A + 1}, s37")
    A(f"s_mov_b32 s{SRD_A + 2}, {(DIAG_OFF + (2 << 20)) if OPT['diag'] else WS_O_BYTES}")
    A(f"s_mov_b32 s{SRD_A + 3}, 0x20000")
    A(f"s_mov_b32 s{SRD_WO}, s32")
    A(f"s_mov_b32 s{SRD_WO + 1}, s33")
    A(f"s_mov_b32 s{SRD_WO + 2}, {4096 * 1152}")
    A(f"s_mov_b32 s{SRD_WO + 3}, 0x20000")
    A(f"s_mov_b32 s{SRD_OUT}, s34")
    A(f"s_mov_b32 s{SRD_OUT + 1}, s35")
    A(f"s_mov_b32 s{SRD_OUT + 2}, {2304 * 1152}")
    A(f"s_mov_b32 s{SRD_OUT + 3}, 0x20000")
    A(f"s_mul_i32 s{sAS}, s{sMT}, 786432")
    A(f"s_lshl_b32 s{sT0}, s{sW}, 16")
    A(f"s_add_u32 s{sAS}, s{sAS}, s{sT0}")
    A(f"s_mul_i32 s{sBS}, s{sW}, {64 * 16 * 1152}")
    A(f"s_lshl_b32 s{sT0}, s{sNT}, 7")
    A(f"s_add_u32 s{sBS}, s{sBS}, s{sT0}")
    if OPT["k2noA"]:
        A(f"s_mov_b32 s{sAS}, 0x40000000")
    if OPT["k2noB"]:
        A(f"s_mov_b32 s{sBS}, 0x40000000")

    def loads(d):
        o = []
        for i in range(2):
            o.append([f"s_add_u32 m0, s{sLD}, {d * 2048 + i * 1024}",
                      f"s_add_u32 s{sT0}, s{sBS}, {(16 * d + 8 * i) * 1152}",
                      f"buffer_load_dwordx4 v{vBD}, {srd(SRD_WO)}, s{sT0} offen{FLAGS[OPT['k2flag']]} lds"])
        so = sAS
        pre = []
        if d >= 4:
            pre = [f"s_add_u32 s{sT1}, s{sAS}, {(d // 4) * 4096}"]
            so = sT1
        off = f" offset:{(d % 4) * 1024}" if d % 4 else ""
        for i in range(3):
            o.append(pre + [f"buffer_load_dwordx4 {vr(ORING + 12 * d + 4 * i, 4)}, v{vA + i}, {srd(SRD_A)}, s{so} offen{off}{FLAGS[OPT['k2aflag']]}"])
            pre = []
        return o

    def wreads(d):
        b = WF + 8 * (d % 2)
        return [f"ds_read_b64_tr_b16 {vr(b + 4 * t + 2 * e, 2)}, v{vBR + t} offset:{d * 2048 + e * 1024}"
                for t in range(2) for e in range(2)]

    zi = 0
    for d in range(DEP - 1):
        for g in loads(d):
            A.ext(g)
            for _ in range(3):
                if zi < 96:
                    A(f"v_mov_b32 v{ACC + zi}, 0")
                    zi += 1
    assert zi == 96
    A(f"s_mov_b32 s{sCNT}, {64 // DEP}")
    A(f"s_waitcnt vmcnt({5 * (DEP - 2)})")
    if OPT["diag"]:
        A("s_memrealtime s[62:63]")
    A.ext(wreads(0))
    A.label("L2_loop")
    body = []
    Bd = body.append
    for d in range(DEP):
        Bd(f"s_waitcnt vmcnt({5 * (DEP - 3)})")
        body += wreads((d + 1) % DEP)
        Bd("s_waitcnt lgkmcnt(4)")
        b = WF + 8 * (d % 2)
        ld = loads((d - 1) % DEP)
        for t in range(2):
            for i in range(3):
                acc = vr(ACC + 16 * (3 * t + i), 16)
                if not OPT["k2nomf"]:
                    Bd(f"{MF} {acc}, {vr(b + 4 * t, 4)}, {vr(ORING + 12 * d + 4 * i, 4)}, {acc}")
                if ld:
                    body += ld.pop(0)
        if d == 0:
            Bd(f"s_add_u32 s{sAS}, s{sAS}, {DEP * 1024}")
            Bd(f"s_add_u32 s{sBS}, s{sBS}, {DEP * 16 * 1152}")
            Bd(f"s_cmp_eq_u32 s{sCNT}, 1")
            Bd(f"s_cselect_b32 s{sAS}, 0x40000000, s{sAS}")
            Bd(f"s_cselect_b32 s{sBS}, 0x40000000, s{sBS}")
    Bd(f"s_sub_u32 s{sCNT}, s{sCNT}, 1")
    Bd(f"s_cmp_lg_u32 s{sCNT}, 0")
    A.ext(body)
    A("s_cbranch_scc1 L2_loop")
    errs = hazard.check(body + body, "k2loop")
    if OPT["diag"]:
        A("s_memrealtime s[64:65]")
    A("s_waitcnt vmcnt(0) lgkmcnt(0)")
    A("s_barrier")
    A(f"s_mul_i32 s{sT0}, s{sW}, 24576")
    A(f"v_lshl_add_u32 v{t0}, v0, 4, s{sT0}")
    A("s_nop 7")
    for q in range(24):
        A(f"ds_write_b128 v{t0}, {vr(ACC + 4 * q, 4)} offset:{q * 1024}")
    A(f"s_mul_i32 s{sT0}, s{sW}, {6 * 1024}")
    A(f"v_lshl_add_u32 v{t0}, v0, 4, s{sT0}")
    A(f"v_add_u32 v{t1}, 49152, v{t0}")
    A("s_waitcnt lgkmcnt(0)")
    A("s_barrier")
    for w in range(4):
        for q in range(6):
            A(f"ds_read_b128 {vr(ORING + 24 * w + 4 * q, 4)}, v{t0 if w < 2 else t1} offset:{(w % 2) * 24576 + q * 1024}")
        if w % 2 == 1:
            A("s_waitcnt lgkmcnt(0)")
    for w in range(1, 4):
        for e in range(24):
            A(f"v_add_f32 v{ORING + e}, v{ORING + e}, v{ORING + 24 * w + e}")
    for e in range(12):
        A(f"v_cvt_pk_bf16_f32 v{ACC + e}, v{ORING + 2 * e}, v{ORING + 2 * e + 1}")
    A(f"v_and_b32 v{t0}, 31, v0")
    A(f"v_mul_u32_u24 v{t0}, 1152, v{t0}")
    A(f"v_lshrrev_b32 v{t1}, 5, v0")
    A(f"v_lshl_add_u32 v{t0}, v{t1}, 4, v{t0}")
    A(f"s_mul_i32 s{sAS}, s{sMT}, {96 * 1152}")
    A(f"s_lshl_b32 s{sT0}, s{sNT}, 7")
    A(f"s_add_u32 s{sAS}, s{sAS}, s{sT0}")
    for x in range(3):
        A(f"s_mul_i32 s{sT0}, s{sW}, 3")
        A(f"s_add_u32 s{sT0}, s{sT0}, {x}")
        A(f"s_and_b32 s{sT1}, s{sT0}, 1")
        A(f"s_lshr_b32 s{sT0}, s{sT0}, 1")
        A(f"s_lshl_b32 s{sT1}, s{sT1}, 5")
        A(f"s_add_u32 s{sT1}, s{sT1}, s{sAS}")
        A(f"s_cmp_ge_u32 s{sT0}, 3")
        A(f"s_cselect_b32 s{sBS}, 64, 0")
        A(f"s_cselect_b32 s{sCNT}, 3, 0")
        A(f"s_add_u32 s{sT1}, s{sT1}, s{sBS}")
        A(f"s_sub_u32 s{sT0}, s{sT0}, s{sCNT}")
        A(f"s_mul_i32 s{sT0}, s{sT0}, {32 * 1152}")
        A(f"s_add_u32 s{sT1}, s{sT1}, s{sT0}")
        A(f"buffer_store_dwordx4 {vr(ACC + 4 * x, 4)}, v{t0}, {srd(SRD_OUT)}, s{sT1} offen")
    if OPT["diag"]:
        A("s_waitcnt vmcnt(0)")
        A("s_memrealtime s[66:67]")
        A("s_waitcnt lgkmcnt(0)")
        for i in range(4):
            A(f"v_writelane_b32 v250, s{60 + 2 * i}, {i}")
        A(f"s_lshl_b32 s{sT0}, s2, 2")
        A(f"s_add_u32 s{sT0}, s{sT0}, s{sW}")
        A(f"s_lshl_b32 s{sT0}, s{sT0}, 8")
        A(f"s_add_u32 s{sT0}, s{sT0}, {DIAG_OFF + (1 << 20)}")
        A(f"v_lshlrev_b32 v{t0}, 2, v0")
        A(f"buffer_store_dword v250, v{t0}, {srd(SRD_A)}, s{sT0} offen")
    A.label("L2_end")
    A("s_endpgm")
    return errs


def desc(name, vg, acc, sg=102):
    return f""".p2align 6
.amdhsa_kernel {name}
  .amdhsa_next_free_vgpr {vg}
  .amdhsa_next_free_sgpr {sg}
  .amdhsa_accum_offset {acc}
  .amdhsa_group_segment_fixed_size 0
  .amdhsa_kernarg_size 64
  .amdhsa_user_sgpr_count 2
  .amdhsa_user_sgpr_kernarg_segment_ptr 1
  .amdhsa_system_sgpr_workgroup_id_x 1
.end_amdhsa_kernel
"""


def main():
    A = Asm()
    e = k1(A)
    n1 = len(A.l)
    e += k2(A)
    e += hazard.check(A.l, "linear")
    for x in e:
        print(x, file=sys.stderr)
    hdr = f"""; Fused MHA block (q-proj + attention) and output projection, gfx950. Generated by a script.
; @launch kernel=attn_kernel grid=(256,1,1) block=(256,1,1) lds={LDS1}
; @launch kernel=oproj_kernel grid=(216,1,1) block=(256,1,1) lds=98304
{"; @launch kernel=oproj_kernel grid=(216,1,1) block=(256,1,1) lds=98304" if OPT["k2twice"] else ";"}
.amdgcn_target "amdgcn-amd-amdhsa--gfx950"
.text
.globl attn_kernel
.globl oproj_kernel
"""
    txt = hdr + "\n".join(A.l) + "\n.section .rodata,\"a\"\n" + desc("attn_kernel", 512, 256) + desc("oproj_kernel", 256, 256)
    open(sys.argv[1], "w").write(txt)
    if e and not (OPT["nosm"] or OPT["nolds"] or OPT["nodma"] or OPT["noexp"]):
        sys.exit(1)


main()
```

```python
import math
import struct
import sys

import hazard

OPT = dict(diag=0, L=6, W=2, xmap=1, nodma=0, nobar=0, kvflag=1, ostflag=2, pf=1, wopf=1, wsh=8,
           k2grid=216, LQ=6, dmastep=5, thr=40, show=0, qstep=5, up=2, qpflag=0, rot=1, k1late=1, pf2=0)
for a in sys.argv[2:]:
    k, v = a.split("=")
    OPT[k] = int(v)
FLAGS = ['', ' nt', ' sc1', ' sc0 sc1', ' sc1 nt', ' sc0 sc1 nt', ' sc0']

BLK = 1056
K0, V0, SLOT = 0, 33792, 67584
XB = 1088
WOFF = 36864
WG0 = 4 * XB + OPT["wsh"]
WG1 = 8720
STSZ = 54272
LDS1 = 163840
WS_O_BYTES = 144 * 32 * 4096
DIAG_OFF = 64 << 20


def f32bits(x):
    return struct.unpack("<I", struct.pack("<f", x))[0]


QSCALE = f32bits(128 ** -0.5 * math.log2(math.e))


class Asm:
    def __init__(self):
        self.l = []

    def __call__(self, s):
        self.l.append("    " + s)

    def label(self, s):
        self.l.append(s + ":")

    def raw(self, s):
        self.l.append(s)

    def ext(self, lst):
        for s in lst:
            self(s)


def vr(a, n):
    return f"v[{a}:{a + n - 1}]"


def ar(a, n):
    return f"a[{a}:{a + n - 1}]"


def srd(n):
    return f"s[{n}:{n + 3}]"


MF = "v_mfma_f32_16x16x32_bf16"

SRD_X, SRD_W, SRD_K, SRD_V, SRD_O, SRD_P = 4, 8, 12, 16, 20, 84
sW, sP, sB, sH = 24, 25, 27, 28
sXD, sXS, sWD, sWS, sT0, sT1 = 42, 43, 44, 45, 46, 47
sXED, sXES = 48, 55
sCNT = 49
sKD, sVD, sKS, sVS, sTOG = 50, 51, 52, 53, 54
sSC = 56
sOO = 58
sREDO = 59
sST = 60
sV4D = 88
sBAD = 98
sG0, sG1 = 89, 100

vXD, vXDE, vWD, vV4 = 2, 4, 5, 8
vQA = 160
ACC = 16
SB = [16, 48]
SE = 80
NEG = 88
QV = 160
vK, vV, vDM = 240, 244, 248
vT = 9
vDUM = 252
OA, LA, ONES, RING = 0, 160, 180, 192
XF = [184, 204]
WRING = 224


def Sreg(t, par):
    return SE if t == 4 else SB[par] + 8 * t


stamp_n = [0]


def stamp_txt():
    if OPT["diag"]:
        n = stamp_n[0]
        stamp_n[0] += 1
        assert n < 12
        return [f"s_memtime s[{sST + 2 * n}:{sST + 2 * n + 1}]"]
    return []


def stamp(A):
    A.ext(stamp_txt())


def is_ds(x):
    return x.startswith("ds_")


def add_waits(seq, cyclic, W=1, nfr=None):
    rep = 2 if cyclic else 1
    out = []
    issued = 0
    done = 0
    last = {}
    for it in range(rep):
        out = []
        for e in seq:
            if e[0] == "x":
                if is_ds(e[1]):
                    issued += 1
                    if e[2] is not None:
                        last[e[2]] = issued
                if "lgkmcnt(0)" in e[1]:
                    done = issued
                out.append(e[1])
            else:
                need = 0
                for f in e[2]:
                    if f in last:
                        need = max(need, last[f])
                if need > done:
                    tgt = need
                    for f in e[3] if len(e) > 3 else []:
                        if f in last and last[f] > need - 40:
                            tgt = max(tgt, last[f])
                    n = issued - tgt
                    assert n <= 15, n
                    out.append(f"s_waitcnt lgkmcnt({n})")
                    done = tgt
                out.append(e[1])
    return out


def kv_piece(dst, src, srdn, i):
    o = f" offset:{(i % 4) * 1024}" if i % 4 else ""
    return [f"s_add_u32 m0, s{dst}, {i * BLK - (i % 4) * 1024}",
            f"buffer_load_dwordx4 v{vDM + i // 4}, {srd(srdn)}, s{src} offen{o}{FLAGS[OPT['kvflag']]} lds"]


def build_loop():
    L, W = OPT["L"], OPT["W"]
    mf = []
    qk_end = {}
    pv_first = {}
    phase2 = {}
    for j in range(4):
        jn = (j + 1) % 4
        tiles = range(5) if jn % 2 == 0 else range(4)
        for kb in range(2):
            for kk in range(4):
                f = 16 * j + kb * 4 + kk
                for t in tiles:
                    S = Sreg(t, jn % 2) + 4 * kb
                    C = vr(NEG + 4 * t, 4) if kk == 0 else vr(S, 4)
                    mf.append(dict(t=f"{MF} {vr(S, 4)}, {ar(RING + 4 * (f % 16), 4)}, {vr(QV + 16 * t + 4 * kk, 4)}, {C}", f=f, k="qk", j=j))
                    qk_end[(jn, t, kb)] = len(mf) - 1
        tiles = list(range(5) if j % 2 == 0 else range(4))
        phase2[j] = len(mf)
        for dt in range(8):
            f = 16 * j + 8 + dt
            for t in tiles:
                O = ar(OA + 32 * t + 4 * dt, 4)
                mf.append(dict(t=f"{MF} {O}, {ar(RING + 4 * (f % 16), 4)}, {vr(Sreg(t, j % 2), 4)}, {O}", f=f, k="pv", j=j))
                pv_first.setdefault((j, t), len(mf) - 1)
            x = dt - 2
            if 0 <= x < len(tiles):
                Lr = ar(LA + 4 * x, 4)
                mf.append(dict(t=f"{MF} {Lr}, {ar(ONES, 4)}, {vr(Sreg(x, j % 2), 4)}, {Lr}", f=f, k="pv", j=j))
    N = len(mf)
    assert N == 306
    first_use, last_use = {}, {}
    for i, m in enumerate(mf):
        first_use.setdefault(m["f"], i)
        last_use[m["f"]] = i
    cap = [2] * N
    for f in range(64):
        if f % W == 0:
            cap[(first_use[f] - 1) % N] -= 1
    ecap = [False] * N
    for f in range(64):
        a, b = first_use[f], last_use[f]
        n = b - a + 1
        pos = {4: [0, 2], 5: [0, 2, 3], 6: [0, 2, 4]}[n]
        for p in pos:
            ecap[a + p] = True
    gaps = [[] for _ in range(N)]

    def frag_reads(f):
        j, r = divmod(f, 16)
        dst = RING + 4 * (f % 16)
        if r < 8:
            kb, kk = divmod(r, 4)
            return [f"ds_read_b128 {ar(dst, 4)}, v{vK + (j + 1) % 4} offset:{kb * 16 * BLK + kk * 64}"]
        dt = r - 8
        return [f"ds_read_b64_tr_b16 {ar(dst + 2 * e, 2)}, v{vV + j} offset:{e * 16 * BLK + dt * 32}" for e in range(2)]

    used = [0] * N
    exps = []
    order = []
    for j in (0, 1, 2, 3):
        tiles = range(5) if j % 2 == 0 else range(4)
        for kb in range(2):
            for t in tiles:
                for r in range(4):
                    order.append((j, t, kb, r))
    def avail(j, t, kb):
        e = qk_end[(j, t, kb)] + 4
        return e - N if j == 0 else e
    cur = -10 ** 9
    for rnd in range(3):
        place = {}
        for (j, t, kb, r) in order:
            g = max(cur + 1, avail(j, t, kb))
            while not (ecap[g % N] and cap[g % N] == 2):
                g += 1
            place[(j, t, kb, r)] = g
            cur = g
        cur -= N
    for key, g in place.items():
        j, t, kb, r = key
        S = Sreg(t, j % 2) + 4 * kb + r
        gaps[g % N].append((f"v_exp_f32 v{S}, v{S}", "n" if g < 0 else "", ("sm", j)))
        assert used[g % N] == 0
        used[g % N] = 2
    singles = []
    seqn = [0]

    def add(tg, prio, text, tag="", kind=None, chain=None):
        singles.append(dict(g=tg, p=prio, s=seqn[0], t=text, tag=tag, k=kind, chain=chain))
        seqn[0] += 1

    for (j, t, kb, r), g in place.items():
        if r % 2 == 1:
            S = Sreg(t, j % 2)
            add(g + 1, 1, f"v_cvt_pk_bf16_f32 v{S + 2 * kb + r // 2}, v{S + 4 * kb + r - 1}, v{S + 4 * kb + r}",
                kind=("cvt", j, t), chain="cvt")
    for f in range(64):
        tg = first_use[(f - L) % 64] + (0 if f - L >= 0 else -N)
        for x in frag_reads(f):
            add(tg, 0, x, kind=("rd", f), chain="rd")
    gBV = 0
    gBK = phase2[2]
    fixed = {gBV: ["s_waitcnt vmcnt(8)", "s_barrier"], gBK: ["s_waitcnt vmcnt(8)", "s_barrier"]}
    for g in fixed:
        pass
    bar_at = {}
    for name, g in (("V", gBV), ("K", gBK)):
        while used[g] or cap[g] < 2:
            g += 1
        gaps[g] += [("s_waitcnt vmcnt(8)", "", None), ("s_barrier", "", None)]
        used[g] = 2
        bar_at[name] = g
    for name, dst, src, srdn, upd in (
            ("V", sVD, sVS, SRD_V, f"s_sub_u32 s{sVD}, s{sVD}, s{sTOG}"),
            ("K", sKD, sKS, SRD_K, f"s_add_u32 s{sKD}, s{sKD}, s{sTOG}")):
        g = bar_at[name] + 1
        for i in range(8):
            pc = kv_piece(dst, src, srdn, i)
            add(g, 2, pc[0], kind="m0", chain="dma" + name)
            add(g + 1, 2, pc[1], kind="dma", chain="dma" + name)
            g += OPT["dmastep"]
        add(g, 3, upd, chain="dma" + name)
        add(g, 3, f"s_add_u32 s{src}, s{src}, 32768", chain="dma" + name)
        add(g, 3, f"s_and_b32 s{src}, s{src}, 0x7ffff", chain="dma" + name)
        add(g, 3, f"s_cmp_le_u32 s{sCNT}, {2 if name == 'V' else 3} | s_cselect_b32 s{src}, 0x100000, s{src}", chain="dma" + name, kind="pair")
    singles.sort(key=lambda x: (x["g"], x["s"]))
    lo = min(x["g"] for x in singles)
    chains = {}
    for x in sorted(singles, key=lambda x: (x["g"], x["s"])):
        chains.setdefault(x["chain"], []).append(x)
    placed = []
    lastg = {}
    g = lo
    while any(chains.values()):
        while used[g % N] < cap[g % N]:
            cands = []
            for c, q in chains.items():
                if q and q[0]["g"] <= g:
                    if q[0]["k"] == "dma" and lastg.get(c) == g:
                        continue
                    cands.append(q[0])
            if not cands:
                break
            x = min(cands, key=lambda x: (x["p"] - (g - x["g"]) / 6.0, x["g"], x["s"]))
            chains[x["chain"]].pop(0)
            lastg[x["chain"]] = g
            x["at"] = g
            placed.append(x)
            used[g % N] += 1
            gaps[g % N].append((x["t"], "n" if g < 0 else "", x["k"]))
        g += 1
        assert g < 2 * N
    rd_at = {}
    for x in placed:
        if isinstance(x["k"], tuple) and x["k"][0] == "rd":
            rd_at[x["k"][1]] = x["at"]
        if isinstance(x["k"], tuple) and x["k"][0] == "cvt":
            _, j, t = x["k"]
            assert x["at"] <= pv_first[(j, t)] - 2, ("cvt late", x, pv_first[(j, t)])
        assert x["at"] < N, x
    for f in range(64):
        fw = f - (f % W)
        lead = first_use[fw] - rd_at[f]
        assert lead >= 8, ("short lead", f, lead)
    first_rd = {}
    for x in placed:
        if isinstance(x["k"], tuple) and x["k"][0] == "rd":
            first_rd.setdefault(x["k"][1], x["at"])
    assert first_rd[8] > bar_at["V"] and first_rd[48] > bar_at["K"], (first_rd[8], first_rd[48], bar_at)
    extra = []
    for j in range(4):
        jn = (j + 1) % 4
        op = "v_subrev_u32" if jn == 0 else "v_add_u32"
        extra.append((rd_at[16 * j + 7] + 1, f"{op} v{vK + jn}, s{sTOG}, v{vK + jn}"))
        extra.append((rd_at[16 * j + 15] + 1, f"v_add_u32 v{vV + j}, s{sTOG}, v{vV + j}"))
    last_tog = 0
    for g, t in sorted(extra):
        while used[g] >= cap[g]:
            g += 1
        assert g < N
        used[g] += 1
        gaps[g].append((t, "", None))
        last_tog = max(last_tog, g)
    last_salu = max(x["at"] for x in placed if x["t"].startswith("s_"))
    g = max(last_tog, last_salu) + 1
    for t in (f"s_sub_u32 s{sTOG}, 0, s{sTOG}", f"s_sub_u32 s{sCNT}, s{sCNT}, 1", f"s_cmp_lg_u32 s{sCNT}, 0"):
        while g < N - 1 and used[g] >= cap[g]:
            g += 1
        used[g] += 1
        gaps[g].append((t, "", None))
    seq = []
    pro = []
    for i, m in enumerate(mf):
        f = m["f"]
        grp = [(f - f % W + k) % 64 for k in range(W)]
        seq.append(("m", m["t"], [f], grp))
        for x in gaps[i]:
            fr = x[2][1] if isinstance(x[2], tuple) and x[2][0] == "rd" else None
            seq.append(("x", x[0], fr))
            if x[1] == "n":
                pro.append(x[0])
    body = add_waits(seq, True)
    body = [y for x in body for y in x.split(" | ")]
    if OPT["show"]:
        print("gap use:", "".join(str(u) for u in used), file=sys.stderr)
        print("instr count", len(body), "waits", sum("lgkmcnt" in x for x in body), "bar", bar_at, file=sys.stderr)

    def keep(x):
        if OPT["nodma"] and (x.startswith("buffer_load") or x.startswith("s_add_u32 m0") or "vmcnt" in x):
            return False
        if OPT["nobar"] and x.startswith("s_barrier"):
            return False
        return True
    return [x for x in body if keep(x)], pro


def x_piece(c, i):
    st = (c % 3) * STSZ
    return [f"s_add_u32 m0, s{sXD}, {st + i * 1024}",
            f"s_add_u32 s{sT0}, s{sXS}, {i * 9216 + c * 128}",
            f"buffer_load_dwordx4 v{vXD + (i & 1)}, {srd(SRD_X)}, s{sT0} offen{FLAGS[OPT['qpflag']]} lds"]


def wg_pieces(c):
    st = (c % 3) * STSZ
    p = []
    for r in range(4):
        p.append([f"s_add_u32 m0, s{sWD}, {st + WOFF + r * XB}",
                  f"s_add_u32 s{sT0}, s{sWS}, {(64 * c + r) * 8192}",
                  f"buffer_load_dwordx4 v{vWD}, {srd(SRD_W)}, s{sT0} offen{FLAGS[OPT['qpflag']]} lds"])
    p.append([f"s_add_u32 m0, s{sXED}, {st}",
              f"s_add_u32 s{sT0}, s{sXES}, {c * 128}",
              f"buffer_load_dwordx4 v{vXDE}, {srd(SRD_X)}, s{sT0} offen{FLAGS[OPT['qpflag']]} lds"])
    return p


def v0_piece(base_blk, i):
    o = f" offset:{i * 1024}" if i else ""
    return [f"s_add_u32 m0, s{sV4D}, {V0 + (base_blk + i) * BLK - i * 1024}",
            f"s_add_u32 s{sT0}, s{sG0}, {base_blk * 1024}",
            f"buffer_load_dwordx4 v{vV4}, {srd(SRD_V)}, s{sT0} offen{o}{FLAGS[OPT['kvflag']]} lds"]


def k_piece_pro(slot, i):
    o = f" offset:{(i % 4) * 1024}" if i % 4 else ""
    return [f"s_add_u32 m0, s{sKD}, {slot * SLOT + i * BLK - (i % 4) * 1024}",
            "s_nop 0",
            f"buffer_load_dwordx4 v{vDM + i // 4}, {srd(SRD_K)}, s{(sG0, sG1)[slot]} offen{o}{FLAGS[OPT['kvflag']]} lds"]


def build_qproj(extras, issued0):
    LQ = OPT["LQ"]
    mf = []
    first_use, last_use = {}, {}
    for s in range(18):
        for sl in range(8):
            f = ("w", 8 * s + sl)
            tiles = range(5) if sl < 4 else range(4)
            for t in tiles:
                a = ACC + 32 * t + 4 * sl
                C = "0" if s == 0 else vr(a, 4)
                txt = f"{MF} {vr(a, 4)}, {ar(WRING + 4 * sl, 4)}, {ar(XF[s % 2] + 4 * t, 4)}, {C}"
                mf.append((txt, [f, ("x", s, t)]))
                for q in (f, ("x", s, t)):
                    first_use.setdefault(q, len(mf) - 1)
                    last_use[q] = len(mf) - 1
    N = len(mf)
    gaps = [[] for _ in range(N + 1)]

    def st_of(c):
        return (6, 0) if c % 3 == 2 else (0, (c % 3) * STSZ)

    def wread(n):
        s, sl = divmod(n, 8)
        c, ks = divmod(s, 2)
        rb, st = st_of(c)
        kk, u = divmod(sl, 2)
        base = vQA + rb + (4 if kk < 2 else 5)
        return [(f"ds_read_b64_tr_b16 {ar(WRING + 4 * sl + 2 * e, 2)}, v{base} offset:{st + kk * 64 + 8 * u + e * 256 + ks * 512}",
                 ("w", n)) for e in range(2)]

    def xread(s, t):
        c, ks = divmod(s, 2)
        rb, st = st_of(c)
        if t < 4:
            return (f"ds_read_b128 {ar(XF[s % 2] + 4 * t, 4)}, v{vQA + rb + ks} offset:{st + t * 2048}", ("x", s, t))
        return (f"ds_read_b128 {ar(XF[s % 2] + 16, 4)}, v{vQA + rb + 2 + ks} offset:{st}", ("x", s, t))

    bar = {0: -1, 9: N}
    for c in range(1, 9):
        bar[c] = last_use[("w", 16 * c - LQ + 1)]
    items = []
    for n in range(144):
        c = n // 16
        e = last_use[("w", n - 8)] if n >= 8 else -1
        tg = first_use[("w", n - LQ)] if n >= LQ else -1
        tg = max(tg, e, bar[c])
        for x in wread(n):
            items.append((tg, x))
    rd = sorted(items, key=lambda z: z[0])
    xi = []
    for s in range(18):
        c, ks = divmod(s, 2)
        for t in range(5):
            e = last_use[("x", s - 2, t)] if s >= 2 else -1
            tg = max(e, bar[c])
            if s == 1:
                tg = 0
            xi.append((tg, xread(s, t)))
    allrd = sorted([(tg, 0, i, x) for i, (tg, x) in enumerate(xi)] + [(tg, 1, i, x) for i, (tg, x) in enumerate(rd)],
                   key=lambda z: (z[0], z[1], z[2]))
    used = [0] * (N + 2)
    xdone = {}
    g = -1
    for tg, _, _, x in allrd:
        g = max(g, tg)
        if g < 0 and used[0] >= 9:
            g = 0
        while g >= 0 and used[g + 1] >= 2:
            g += 1
        gaps[g + 1].append(("x", x[0], x[1]))
        used[g + 1] += 1
        if x[1][0] == "x":
            xdone[x[1][1]] = g
        cc = x[1][1] // 16 if x[1][0] == "w" else x[1][1] // 2
        assert g < bar[cc + 1] - 2, (x, g, bar[cc + 1])
    vm_at = {}
    grp = []
    have = set(issued0)
    for c in range(9):
        if ("W", c + 2) not in have and c + 2 < 9:
            grp += [(bar[c], p, ("W", c + 2)) for p in wg_pieces(c + 2)]
        if ("X", c + 2) not in have and c + 2 < 9:
            grp += [(bar[c], x_piece(c + 2, i), ("X", c + 2)) for i in range(8)]
        if c + 3 < 9:
            tg = xdone[2 * c + 1] + 10
            grp += [(tg, x_piece(c + 3, i), ("X", c + 3, i, c)) for i in range(8)]
            have.add(("X", c + 3))
        grp += [(bar[c], p, ("E", c)) for p in extras.get(c, [])]
    issued = [(t, -1) for t in issued0]
    g = 0
    for tg, p, tag in grp:
        late = g - tg
        g = max(g, tg)
        while used[g + 1] >= 1:
            g += 1
        if len(tag) == 4 and tag[2] == 0:
            gaps[g + 1].append(("xw", ("x", 2 * tag[3] + 1)))
        for ins in p[:-1]:
            gaps[g + 1].append(("x", ins, None))
        used[g + 1] += 2
        g0 = g
        g += 1
        while used[g + 1] >= 2:
            g += 1
        assert g < N
        gaps[g + 1].append(("x", p[-1], None))
        used[g + 1] = 2
        issued.append((tag[:2], g))
        g = max(g + 1, g0 + (OPT["qstep"] if late < 40 else 2))
    for c in range(1, 9):
        before = [t for t, gg in issued if gg < bar[c]]
        for t, gg in issued:
            if t in (("W", c), ("X", c)):
                assert gg < bar[c] - 30, (t, gg, bar[c])
        lastneed = max(i for i, t in enumerate(before) if t in (("W", c), ("X", c)))
        vm_at[c] = len(before) - 1 - lastneed
    if OPT["show"]:
        print("bar", bar, "vm", vm_at, "issue", [(t, g) for t, g in issued if g >= 0], file=sys.stderr)
    seq = []
    for i in range(N + 1):
        if i > 0:
            seq.append(("m", mf[i - 1][0], mf[i - 1][1]))
        for c in range(1, 9):
            if bar[c] == i - 1:
                seq.append(("x", f"s_waitcnt vmcnt({vm_at[c]}) lgkmcnt(0)", None))
                seq.append(("x", "s_barrier", None))
                if OPT["diag"]:
                    seq.append(("x", f"v_writelane_b32 v250, s90, {16 + c}", None))
                    seq.append(("x", "s_memtime s[90:91]", None))
        for x in gaps[i]:
            if x[0] == "xw":
                seq.append(("m", "s_nop 0", [("x", x[1][1], t) for t in range(5)]))
            else:
                seq.append(x)
    return add_waits(seq, False), issued


def xlane(A, op, r, t):
    for sw in ("v_permlane32_swap_b32", "v_permlane16_swap_b32"):
        A(f"v_mov_b32 v{t}, v{r}")
        A("s_nop 1")
        A(f"{sw} v{r}, v{t}")
        A(f"{op} v{r}, v{r}, v{t}")


def k1(A):
    A.raw(".p2align 8")
    A.raw(".type attn_kernel,@function")
    A.label("attn_kernel")
    A("s_cmp_ge_u32 s2, 256")
    A("s_cbranch_scc1 L1_end")
    A("s_load_dwordx8 s[32:39], s[0:1], 0")
    A("s_load_dwordx2 s[40:41], s[0:1], 56")
    A("s_load_dwordx2 s[30:31], s[0:1], 32")
    stamp(A)
    if OPT["diag"]:
        A("s_memrealtime s[92:93]")
    A("v_lshrrev_b32 v1, 6, v0")
    A("v_and_b32 v0, 63, v0")
    A(f"v_readfirstlane_b32 s{sW}, v1")
    A("s_and_b32 s29, s2, 7")
    A("s_lshr_b32 s26, s2, 3")
    if OPT["xmap"] == 0:
        A(f"s_mov_b32 s{sB}, s29")
        A(f"s_mov_b32 s{sH}, s26")
    else:
        A(f"s_and_b32 s{sB}, s29, 1")
        A(f"s_lshl_b32 s{sB}, s{sB}, 2")
        A(f"s_and_b32 s{sT0}, s26, 3")
        A(f"s_add_u32 s{sB}, s{sB}, s{sT0}")
        A(f"s_lshr_b32 s{sH}, s29, 1")
        A(f"s_lshl_b32 s{sH}, s{sH}, 3")
        A(f"s_lshr_b32 s{sT0}, s26, 2")
        A(f"s_add_u32 s{sH}, s{sH}, s{sT0}")
    A(f"s_and_b32 s{sP}, s{sW}, 1")
    t0, t1, t2, g4, i16, r4, cq = 9, 10, 11, 12, 13, 14, 15
    A(f"v_lshrrev_b32 v{g4}, 4, v0")
    A(f"v_and_b32 v{i16}, 15, v0")
    A(f"v_lshrrev_b32 v{t0}, 3, v0")
    A(f"v_mul_u32_u24 v{vXD}, 1152, v{t0}")
    A(f"v_and_b32 v{t0}, 7, v0")
    A(f"v_xor_b32 v{t0}, v{t0}, v{g4}")
    A(f"v_lshl_add_u32 v{vXD}, v{t0}, 4, v{vXD}")
    A(f"v_xor_b32 v{vXD + 1}, 64, v{vXD}")
    A(f"s_lshl_b32 s{sT0}, s{sP}, 6")
    A(f"v_xor_b32 v{vXDE}, s{sT0}, v{vXD}")
    A(f"v_lshrrev_b32 v{t0}, 5, v0")
    A(f"v_lshlrev_b32 v{vWD}, 18, v{t0}")
    A(f"v_and_b32 v{t0}, 1, v{g4}")
    A(f"v_lshl_add_u32 v{vWD}, v{t0}, 15, v{vWD}")
    A(f"v_lshl_add_u32 v{vWD}, v{i16}, 4, v{vWD}")
    A(f"s_lshl_b32 s{sXD}, s{sW}, 13")
    A(f"s_mul_i32 s{sXS}, s{sW}, {8 * 9216}")
    A(f"s_lshl_b32 s{sXED}, s{sW}, 10")
    A(f"s_add_u32 s{sXED}, s{sXED}, {32 * 1024}")
    A(f"s_mul_i32 s{sXES}, s{sW}, 9216")
    A(f"s_add_u32 s{sXES}, s{sXES}, {32 * 9216}")
    A(f"s_lshr_b32 s{sT0}, s{sW}, 1")
    A(f"s_mul_i32 s{sWD}, s{sT0}, {WG1}")
    A(f"s_mul_i32 s{sT0}, s{sP}, {WG0}")
    A(f"s_add_u32 s{sWD}, s{sWD}, s{sT0}")
    A(f"s_lshl_b32 s{sWS}, s{sW}, 16")
    A("s_waitcnt lgkmcnt(0)")
    A(f"s_mul_i32 s{sT0}, s{sB}, 331776")
    A(f"s_add_u32 s{SRD_X}, s32, s{sT0}")
    A(f"s_addc_u32 s{SRD_X + 1}, s33, 0")
    A(f"s_mov_b32 s{SRD_X + 2}, 331776")
    A(f"s_mov_b32 s{SRD_X + 3}, 0x20000")
    A(f"s_lshl_b32 s{sT0}, s{sH}, 8")
    A(f"s_add_u32 s{SRD_W}, s38, s{sT0}")
    A(f"s_addc_u32 s{SRD_W + 1}, s39, 0")
    A(f"s_sub_u32 s{SRD_W + 2}, {576 * 8192}, s{sT0}")
    A(f"s_mov_b32 s{SRD_W + 3}, 0x20000")
    S = Asm()
    S(f"s_lshl_b32 s{sT1}, s{sB}, 5")
    S(f"s_add_u32 s{sT1}, s{sT1}, s{sH}")
    S(f"s_lshl_b32 s{sT1}, s{sT1}, 19")
    S(f"s_add_u32 s{SRD_K}, s34, s{sT1} | s_addc_u32 s{SRD_K + 1}, s35, 0")
    S(f"s_mov_b32 s{SRD_K + 2}, 524288")
    S(f"s_mov_b32 s{SRD_K + 3}, 0x20000")
    S(f"s_add_u32 s{SRD_V}, s36, s{sT1} | s_addc_u32 s{SRD_V + 1}, s37, 0")
    S(f"s_mov_b32 s{SRD_V + 2}, 524288")
    S(f"s_mov_b32 s{SRD_V + 3}, 0x20000")
    S(f"s_mov_b32 s{SRD_O}, s40")
    S(f"s_mov_b32 s{SRD_O + 1}, s41")
    S(f"s_mov_b32 s{SRD_O + 2}, {(DIAG_OFF + (1 << 20)) if OPT['diag'] else WS_O_BYTES}")
    S(f"s_mov_b32 s{SRD_O + 3}, 0x20000")
    S(f"s_mov_b32 s{SRD_P}, s30")
    S(f"s_mov_b32 s{SRD_P + 1}, s31")
    S(f"s_mov_b32 s{SRD_P + 2}, {4096 * 1152}")
    S(f"s_mov_b32 s{SRD_P + 3}, 0x20000")
    S(f"v_bfe_u32 v{r4}, v0, 2, 2")
    S(f"v_and_b32 v{cq}, 3, v0")
    XA, XE, WL, WH = vQA, vQA + 2, vQA + 4, vQA + 5
    S(f"v_lshlrev_b32 v{XE}, 7, v{i16}")
    S(f"v_lshrrev_b32 v{t0}, 1, v{i16}")
    S(f"v_xor_b32 v{t0}, v{t0}, v{g4}")
    S(f"v_lshl_add_u32 v{XE}, v{t0}, 4, v{XE}")
    S(f"v_add_u32 v{XA}, s{sXD}, v{XE}")
    S(f"s_lshr_b32 s{sT1}, s{sW}, 1")
    S(f"s_lshl_b32 s{sT1}, s{sT1}, 11")
    S(f"s_add_u32 s{sT1}, s{sT1}, {32 * 1024}")
    S(f"v_add_u32 v{XE}, s{sT1}, v{XE}")
    S(f"v_xor_b32 v{XA + 1}, 64, v{XA}")
    S(f"v_xor_b32 v{XE + 1}, 64, v{XE}")
    S(f"v_lshrrev_b32 v{t0}, 1, v{g4}")
    S(f"v_mul_u32_u24 v{WL}, {WG1}, v{t0}")
    S(f"v_and_b32 v{t0}, 1, v{g4}")
    S(f"v_mul_u32_u24 v{t0}, {WG0}, v{t0}")
    S(f"v_add_u32 v{WL}, v{WL}, v{t0}")
    S(f"v_mul_u32_u24 v{t0}, {XB}, v{r4}")
    S(f"v_add_u32 v{WL}, v{WL}, v{t0}")
    S(f"v_lshl_add_u32 v{WL}, v{cq}, 4, v{WL}")
    S(f"v_add_u32 v{WL}, {WOFF}, v{WL}")
    S(f"s_lshl_b32 s{sT1}, s{sP}, 7")
    S(f"v_subrev_u32 v{WH}, s{sT1}, v{WL}")
    S(f"v_add_u32 v{WL}, s{sT1}, v{WL}")
    for i in range(6):
        S(f"v_add_u32 v{vQA + 6 + i}, {2 * STSZ}, v{vQA + i}")
    S(f"s_lshl_b32 s{sT1}, s{sW}, 13")
    S(f"v_lshl_add_u32 v{vDM}, v0, 4, s{sT1}")
    S(f"v_add_u32 v{vDM + 1}, 4096, v{vDM}")
    S(f"s_lshl_b32 s{sT1}, s{sW}, 12")
    S(f"v_lshl_add_u32 v{vV4}, v0, 4, s{sT1}")
    S(f"s_mul_i32 s{sKD}, s{sW}, {8 * BLK}")
    S(f"s_mul_i32 s{sV4D}, s{sW}, {4 * BLK}")
    if OPT["rot"]:
        S(f"s_mul_i32 s{sG0}, s2, {OPT['rot']}")
        S(f"s_lshr_b32 s{sG1}, s2, 4")
        S(f"s_add_u32 s{sG0}, s{sG0}, s{sG1}")
        S(f"s_and_b32 s{sG0}, s{sG0}, 15")
        S(f"s_lshl_b32 s{sG0}, s{sG0}, 15")
    else:
        S(f"s_mov_b32 s{sG0}, 0")
    S(f"s_add_u32 s{sG1}, s{sG0}, 32768")
    S(f"s_and_b32 s{sG1}, s{sG1}, 0x7ffff")

    def loop_addr(Z):
        Z(f"v_mul_u32_u24 v{t0}, {BLK}, v{i16}")
        Z(f"v_lshl_add_u32 v{t0}, v{g4}, 4, v{t0}")
        Z(f"v_lshl_add_u32 v{t1}, v{g4}, 2, v{r4}")
        Z(f"v_mul_u32_u24 v{t1}, {BLK}, v{t1}")
        Z(f"v_lshl_add_u32 v{t1}, v{cq}, 3, v{t1}")
        Z(f"v_add_u32 v{t1}, {V0}, v{t1}")
        for j in range(4):
            Z(f"s_xor_b32 s{sT1}, s{sP}, {j}")
            Z(f"s_lshl_b32 s{sT1}, s{sT1}, 8")
            Z(f"v_add_u32 v{vK + j}, s{sT1}, v{t0}")
            Z(f"v_add_u32 v{vV + j}, s{sT1}, v{t1}")

    loop_addr(S)
    S(f"v_mov_b32 v{t0}, 0x3f803f80")
    S(f"v_cmp_eq_u32 vcc, 0, v{cq}")
    S(f"s_mov_b32 s{sSC}, {QSCALE:#x}")
    S(f"s_mov_b32 s{sSC + 1}, {QSCALE:#x}")
    S(f"v_cndmask_b32 v{t0}, 0, v{t0}, vcc")
    for i in range(4):
        S(f"v_accvgpr_write_b32 a{ONES + i}, v{t0}")
    S(f"s_mov_b32 s{sREDO}, 0")
    for i in range(180):
        S(f"v_accvgpr_write_b32 a{i}, 0")
    setup = [x.strip() for x in S.l]
    issued0 = []
    for p in wg_pieces(0) + [x_piece(0, i) for i in range(8)]:
        A.ext(p)
    issued0 += [("W", 0)] * 5 + [("X", 0)] * 8
    first = []
    for c in range(1, OPT["up"]):
        first += wg_pieces(c) + [x_piece(c, i) for i in range(8)]
        issued0 += [("W", c)] * 5 + [("X", c)] * 8
    per = len(setup) // (len(first) + 1) + 1
    stamp(A)
    for p in [[]] + first:
        A.ext(p)
        for _ in range(per):
            if setup:
                for y in setup.pop(0).split(" | "):
                    A(y)
    assert not setup
    stamp(A)
    A(f"s_waitcnt vmcnt({len(first)})")
    A("s_barrier")
    stamp(A)
    extras = {7: [k_piece_pro(0, i) for i in range(8)] + [v0_piece(0, i) for i in range(4)],
              8: [v0_piece(16, i) for i in range(4)]}
    late = [k_piece_pro(1, i) for i in range(8)]
    if not OPT["k1late"]:
        extras[8] += late
        late = []
    tgt = late if OPT["k1late"] else extras[8]
    if OPT["wopf"]:
        tgt.append([f"s_lshl_b32 s{sT0}, s2, 2", f"s_add_u32 s{sT0}, s{sT0}, s{sW}", f"s_mul_i32 s{sT0}, s{sT0}, 4608",
                          f"v_lshlrev_b32 v253, 7, v0", f"v_min_u32 v253, {35 * 128}, v253",
                          f"buffer_load_dword v{vDUM}, v253, {srd(SRD_P)}, s{sT0} offen"])
        tgt.append([f"s_mul_i32 s{sT0}, s{sB}, {18 * 32 * 4096}", f"v_lshlrev_b32 v253, 18, v0",
                          f"v_min_u32 v253, {8 << 18}, v253",
                          f"buffer_load_dword v{vDUM}, v253, {srd(SRD_O)}, s{sT0} offen nt"])
    qp, issued = build_qproj(extras, issued0)
    nyoung = 4 + len(extras[8])
    A.ext(qp)
    stamp(A)
    body, pro = build_loop()

    def loop_scalars(Z):
        Z(f"s_add_u32 s{sKS}, s{sG1}, 32768")
        Z(f"s_and_b32 s{sKS}, s{sKS}, 0x7ffff")
        Z(f"s_add_u32 s{sVD}, s{sKD}, {V0 + SLOT}")
        Z(f"s_mov_b32 s{sVS}, s{sG1}")
        Z(f"s_mov_b32 s{sTOG}, {SLOT}")
        Z(f"s_mov_b32 s{sCNT}, 16")

    loop_scalars(A)
    A(f"s_add_u32 s{sT0}, s{sXD}, {2 * STSZ}")
    A(f"v_lshl_add_u32 v{t0}, v0, 4, s{sT0}")
    A(f"s_xor_b32 s{sT0}, s{sXD}, 8192")
    A(f"s_add_u32 s{sT0}, s{sT0}, {2 * STSZ}")
    A(f"v_lshl_add_u32 v{t1}, v0, 4, s{sT0}")

    def conv(t, kkp, kk):
        src = ACC + 32 * t + 8 * kkp
        dst = QV + 16 * t + 4 * kk
        for i in range(4):
            A(f"v_pk_mul_f32 {vr(src + 2 * i, 2)}, {vr(src + 2 * i, 2)}, s[{sSC}:{sSC + 1}]")
        for i in range(4):
            A(f"v_cvt_pk_bf16_f32 v{dst + i}, v{src + 2 * i}, v{src + 2 * i + 1}")

    A(f"s_cmp_eq_u32 s{sP}, 1")
    A("s_cbranch_scc1 L1_conv1")
    for p in range(2):
        if p == 1:
            A.label("L1_conv1")
        for kkp in range(2):
            conv(4, kkp, kkp ^ (2 * p))
        for kkp in range(2):
            A(f"ds_write_b128 v{t0}, {vr(QV + 64 + 4 * (kkp ^ (2 * p)), 4)} offset:{kkp * 1024}")
        for t in range(2):
            for kkp in range(4):
                conv(t, kkp, kkp ^ (2 * p))
        A(f"s_waitcnt vmcnt({nyoung}) lgkmcnt(0)")
        A("s_barrier")
        for kkp in range(2):
            A(f"ds_read_b128 {vr(QV + 64 + 4 * (kkp ^ (2 * (1 - p))), 4)}, v{t1} offset:{kkp * 1024}")
        for f in range(8):
            kb, kk = divmod(f, 4)
            A(f"ds_read_b128 {ar(RING + 32 + 4 * f, 4)}, v{vK} offset:{kb * 16 * BLK + kk * 64}")
        A(f"v_add_u32 v{vK}, s{sTOG}, v{vK}")
        lt = list(late)
        for t in range(2, 4):
            for kkp in range(4):
                conv(t, kkp, kkp ^ (2 * p))
                if lt:
                    A.ext(lt.pop(0))
        for x in lt:
            A.ext(x)
        if p == 0:
            A("s_branch L1_convd")
    A.label("L1_convd")
    A("s_waitcnt lgkmcnt(0)")

    def qk0(Z, useneg):
        for kb in range(2):
            for kk in range(4):
                for t in range(5):
                    Sx = Sreg(t, 0) + 4 * kb
                    C = (vr(NEG + 4 * t, 4) if useneg else "0") if kk == 0 else vr(Sx, 4)
                    Z(f"{MF} {vr(Sx, 4)}, {ar(RING + 32 + 4 * (kb * 4 + kk), 4)}, {vr(QV + 16 * t + 4 * kk, 4)}, {C}")

    pro_rd = [x for x in pro if is_ds(x)]
    pro_sm = [x for x in pro if not is_ds(x)]
    qk0(A, False)
    A.ext(pro_rd)
    A("s_nop 3")
    for t in range(5):
        Sx = Sreg(t, 0)
        m = 108 + t
        A(f"v_max3_f32 v{m}, v{Sx}, v{Sx + 1}, v{Sx + 2}")
        A(f"v_max3_f32 v{m}, v{m}, v{Sx + 3}, v{Sx + 4}")
        A(f"v_max3_f32 v{m}, v{m}, v{Sx + 5}, v{Sx + 6}")
        A(f"v_max_f32 v{m}, v{m}, v{Sx + 7}")

    def xlane5(Z, op, base, tmp):
        for sw in ("v_permlane32_swap_b32", "v_permlane16_swap_b32"):
            for t in range(5):
                Z(f"v_mov_b32 v{tmp + t}, v{base + t}")
            for t in range(5):
                if t == 0:
                    Z("s_nop 0")
                Z(f"{sw} v{base + t}, v{tmp + t}")
            for t in range(5):
                Z(f"{op} v{base + t}, v{base + t}, v{tmp + t}")

    xlane5(A, "v_max_f32", 108, 116)
    for t in range(5):
        for i in range(4):
            A(f"v_sub_f32 v{NEG + 4 * t + i}, 0, v{108 + t}")
        for i in range(8):
            A(f"v_sub_f32 v{Sreg(t, 0) + i}, v{Sreg(t, 0) + i}, v{108 + t}")
    A.label("L1_presm")
    prev = ""
    for x in pro_sm:
        if prev.startswith("v_exp") and x.startswith("v_cvt"):
            A("s_nop 0")
        A(x)
        prev = x
    A("s_waitcnt lgkmcnt(0)")
    stamp(A)
    A.raw(".p2align 6")
    A.label("L1_loop")
    if OPT["diag"]:
        A(f"s_mov_b32 m0, s{sCNT}")
        A("s_nop 0")
        A("v_writelane_b32 v250, s90, m0")
        A("v_writelane_b32 v251, s96, m0")
        A("s_memtime s[90:91]")
        A("s_memrealtime s[96:97]")
    A.ext(body)
    A("s_cbranch_scc1 L1_loop")
    errs = hazard.check(body + body, "loop")
    stamp(A)
    A("s_waitcnt vmcnt(0) lgkmcnt(0)")
    A("s_barrier")
    A(f"s_lshl_b32 s{sT0}, s{sW}, 13")
    A(f"v_lshl_add_u32 v{t0}, v0, 4, s{sT0}")
    for i in range(8):
        A(f"ds_write_b128 v{t0}, {ar(OA + 128 + 4 * i, 4)} offset:{i * 1024}")
    for t in range(5):
        A(f"v_accvgpr_read_b32 v{108 + t}, a{LA + 4 * t}")
    A(f"v_add_f32 v114, v108, v109")
    A(f"v_add_f32 v115, v110, v111")
    A(f"v_add_f32 v114, v114, v112")
    A(f"v_add_f32 v114, v114, v115")
    A(f"v_mov_b32 v115, {f32bits(2.0 ** OPT['thr']):#x}")
    A(f"v_cmp_nlt_f32 vcc, v114, v115")
    A(f"s_lshl_b32 s{sT0}, s{sW}, 10")
    A(f"s_add_u32 s{sT0}, s{sT0}, 32768")
    A(f"v_lshl_add_u32 v{t1}, v0, 4, s{sT0}")
    A(f"v_mov_b32 v116, v112")
    A(f"v_mov_b32 v117, v{NEG + 16}")
    A(f"v_cndmask_b32 v118, 0, 1, vcc")
    A(f"v_mov_b32 v119, 0")
    A(f"ds_write_b128 v{t1}, {vr(116, 4)}")
    for t in range(4):
        A(f"v_rcp_f32 v{120 + 2 * t}, v{108 + t}")
    A(f"v_lshlrev_b32 v{t2}, 4, v0")
    A(f"s_mul_i32 s{sOO}, s{sB}, 18")
    A(f"s_lshl_b32 s{sT0}, s{sW}, 2")
    A(f"s_add_u32 s{sT0}, s{sT0}, s{sOO}")
    A(f"s_lshl_b32 s{sT0}, s{sT0}, 5")
    A(f"s_add_u32 s{sT0}, s{sT0}, s{sH}")
    A(f"s_lshl_b32 s{sT0}, s{sT0}, 12")
    ofl = FLAGS[OPT["ostflag"]]

    def norm_store(t, tmp):
        if t:
            A(f"s_add_u32 s{sT0}, s{sT0}, {32 * 4096}")
        for s in range(4):
            b = tmp + 8 * s
            for e in range(8):
                A(f"v_accvgpr_read_b32 v{b + e}, a{OA + 32 * t + 8 * s + e}")
            for e in range(4):
                A(f"v_pk_mul_f32 {vr(b + 2 * e, 2)}, {vr(b + 2 * e, 2)}, {vr(120 + 2 * t, 2)} op_sel_hi:[1,0]")
            for e in range(4):
                A(f"v_cvt_pk_bf16_f32 v{b + e}, v{b + 2 * e}, v{b + 2 * e + 1}")
            o = f" offset:{s * 1024}" if s else ""
            A(f"buffer_store_dwordx4 {vr(b, 4)}, v{t2}, {srd(SRD_O)}, s{sT0} offen{o}{ofl}")

    norm_store(0, 16)
    norm_store(1, 48)
    A("s_waitcnt lgkmcnt(0)")
    A("s_barrier")
    A(f"s_and_b32 s{sT1}, s{sW}, 2")
    A(f"s_lshl_b32 s{sT1}, s{sT1}, 13")
    A(f"s_lshl_b32 s{sBAD}, s{sP}, 12")
    A(f"s_add_u32 s{sT1}, s{sT1}, s{sBAD}")
    A(f"v_lshl_add_u32 v{t0}, v0, 4, s{sT1}")
    A(f"s_and_b32 s{sT1}, s{sW}, 2")
    A(f"s_lshl_b32 s{sT1}, s{sT1}, 10")
    A(f"s_add_u32 s{sT1}, s{sT1}, 32768")
    A(f"v_lshl_add_u32 v{t1}, v0, 4, s{sT1}")
    A(f"v_xor_b32 v1, 2048, v{t1}")
    A(f"ds_read_b128 {vr(88, 4)}, v{t1}")
    A(f"ds_read_b128 {vr(92, 4)}, v{t1} offset:1024")
    A(f"ds_read_b128 {vr(96, 4)}, v1")
    A(f"ds_read_b128 {vr(100, 4)}, v1 offset:1024")
    for w in range(2):
        for q in range(4):
            A(f"ds_read_b128 {vr(128 + 16 * w + 4 * q, 4)}, v{t0} offset:{w * 8192 + q * 1024}")
    norm_store(2, 16)
    norm_store(3, 48)
    A("s_waitcnt lgkmcnt(0)")
    A("v_or3_b32 v104, v90, v94, v98")
    A("v_or_b32 v104, v104, v102")
    A("v_cmp_ne_u32 vcc, 0, v104")
    A("v_min_f32 v105, v89, v93")
    A("v_sub_f32 v89, v105, v89")
    A("v_sub_f32 v93, v105, v93")
    A("v_exp_f32 v89, v89")
    A("v_exp_f32 v93, v93")
    A(f"s_cmp_lg_u64 vcc, 0")
    A(f"s_cselect_b32 s{sT1}, 1, 0")
    A(f"s_cmp_gt_u32 s{sT1}, s{sREDO}")
    A("s_cbranch_scc1 L1_redo")
    A("v_mul_f32 v105, v88, v89")
    A("v_fmac_f32 v105, v92, v93")
    A("v_rcp_f32 v105, v105")
    A("s_nop 0")
    A("v_mul_f32 v89, v105, v89")
    A("v_mul_f32 v93, v105, v93")
    for e in range(16):
        A(f"v_mul_f32 v{128 + e}, v89, v{128 + e}")
    for e in range(16):
        A(f"v_fmac_f32 v{128 + e}, v93, v{144 + e}")
    for e in range(8):
        A(f"v_cvt_pk_bf16_f32 v{144 + e}, v{128 + 2 * e}, v{128 + 2 * e + 1}")
    A(f"s_lshr_b32 s{sT0}, s{sW}, 1")
    A(f"s_add_u32 s{sT0}, s{sT0}, s{sOO}")
    A(f"s_add_u32 s{sT0}, s{sT0}, 16")
    A(f"s_lshl_b32 s{sT0}, s{sT0}, 5")
    A(f"s_add_u32 s{sT0}, s{sT0}, s{sH}")
    A(f"s_lshl_b32 s{sT0}, s{sT0}, 12")
    A(f"s_lshl_b32 s{sT1}, s{sP}, 11")
    A(f"s_add_u32 s{sT0}, s{sT0}, s{sT1}")
    A(f"buffer_store_dwordx4 {vr(144, 4)}, v{t2}, {srd(SRD_O)}, s{sT0} offen{ofl}")
    A(f"buffer_store_dwordx4 {vr(148, 4)}, v{t2}, {srd(SRD_O)}, s{sT0} offen offset:1024{ofl}")
    if OPT["diag"]:
        A("s_waitcnt vmcnt(0)")
        stamp(A)
        A("s_memrealtime s[94:95]")
        A("s_waitcnt lgkmcnt(0)")
        A("v_writelane_b32 v250, s92, 30")
        A("v_writelane_b32 v250, s94, 31")
        for i in range(stamp_n[0]):
            A(f"v_writelane_b32 v250, s{sST + 2 * i}, {32 + i}")
        A("v_writelane_b32 v250, s90, 0")
        A("v_writelane_b32 v251, s96, 0")
        A(f"s_lshl_b32 s{sT0}, s2, 2")
        A(f"s_add_u32 s{sT0}, s{sT0}, s{sW}")
        A(f"s_lshl_b32 s{sT0}, s{sT0}, 8")
        A(f"s_add_u32 s{sT0}, s{sT0}, {DIAG_OFF}")
        A(f"v_lshlrev_b32 v{t0}, 2, v0")
        A(f"buffer_store_dword v250, v{t0}, {srd(SRD_O)}, s{sT0} offen")
        A(f"s_add_u32 s{sT0}, s{sT0}, {1 << 19}")
        A(f"buffer_store_dword v251, v{t0}, {srd(SRD_O)}, s{sT0} offen")
    A.label("L1_end")
    A("s_endpgm")
    A.label("L1_redo")
    A(f"s_mov_b32 s{sREDO}, 1")
    A("s_waitcnt vmcnt(0) lgkmcnt(0)")
    A("s_barrier")
    A(f"s_mul_i32 s{sKD}, s{sW}, {8 * BLK}")
    for i in range(8):
        A.ext(k_piece_pro(0, i))
    for bb in (0, 16):
        for i in range(4):
            A.ext(v0_piece(bb, i))
    for i in range(8):
        A.ext(k_piece_pro(1, i))
    for t in range(5):
        A(f"v_mov_b32 v{108 + t}, 0xff800000")
    A(f"v_lshlrev_b32 v{t0}, 8, v{i16}")
    A(f"v_lshl_add_u32 v{t0}, v{g4}, 4, v{t0}")
    A(f"s_mov_b32 s{sT1}, 0")
    A.label("L1_mx")
    for kk in range(4):
        o = f" offset:{kk * 64}" if kk else ""
        A(f"buffer_load_dwordx4 {vr(128 + 4 * kk, 4)}, v{t0}, {srd(SRD_K)}, s{sT1} offen{o}")
    A("s_waitcnt vmcnt(0)")
    for kk in range(4):
        for t in range(5):
            C = "0" if kk == 0 else vr(16 + 4 * t, 4)
            A(f"{MF} {vr(16 + 4 * t, 4)}, {vr(128 + 4 * kk, 4)}, {vr(QV + 16 * t + 4 * kk, 4)}, {C}")
    A("s_nop 7")
    for t in range(5):
        A(f"v_max3_f32 v{108 + t}, v{108 + t}, v{16 + 4 * t}, v{17 + 4 * t}")
        A(f"v_max3_f32 v{108 + t}, v{108 + t}, v{18 + 4 * t}, v{19 + 4 * t}")
    A(f"s_add_u32 s{sT1}, s{sT1}, 4096")
    A(f"s_cmp_lt_u32 s{sT1}, 524288")
    A("s_cbranch_scc1 L1_mx")
    xlane5(A, "v_max_f32", 108, 116)
    for t in range(5):
        for i in range(4):
            A(f"v_sub_f32 v{NEG + 4 * t + i}, 0, v{108 + t}")
    for i in range(180):
        A(f"v_accvgpr_write_b32 a{i}, 0")
    loop_addr(A)
    loop_scalars(A)
    A("s_barrier")
    for f in range(8):
        kb, kk = divmod(f, 4)
        A(f"ds_read_b128 {ar(RING + 32 + 4 * f, 4)}, v{vK} offset:{kb * 16 * BLK + kk * 64}")
    A(f"v_add_u32 v{vK}, s{sTOG}, v{vK}")
    A("s_waitcnt lgkmcnt(0)")
    qk0(A, True)
    A.ext(pro_rd)
    A("s_nop 7")
    A("s_branch L1_presm")
    return errs


def k2(A):
    DEP = 4
    SRD_A, SRD_WO, SRD_OUT = 4, 8, 12
    sW, sMT, sNT, sT0, sT1, sAS, sBS, sLD, sCNT = 16, 17, 18, 19, 20, 21, 22, 23, 24
    vA, vBD, vBR, t0, t1 = 2, 8, 9, 13, 14
    ACC2, ORING, WF = 16, 112, 208
    A.raw(".p2align 8")
    A.raw(".type oproj_kernel,@function")
    A.label("oproj_kernel")
    A(f"s_cmp_ge_u32 s2, {OPT['k2grid']}")
    A("s_cbranch_scc1 L2_end")
    A("s_load_dwordx4 s[32:35], s[0:1], 32")
    A("s_load_dwordx2 s[36:37], s[0:1], 56")
    if OPT["diag"]:
        A("s_memrealtime s[60:61]")
    A("v_lshrrev_b32 v1, 6, v0")
    A("v_and_b32 v0, 63, v0")
    A(f"v_readfirstlane_b32 s{sW}, v1")
    A("s_and_b32 s25, s2, 7")
    A("s_lshr_b32 s26, s2, 3")
    A(f"s_mul_i32 s{sNT}, s26, 43")
    A(f"s_lshr_b32 s{sNT}, s{sNT}, 7")
    A(f"s_mul_i32 s{sT0}, s{sNT}, 3")
    A(f"s_sub_u32 s{sT0}, s26, s{sT0}")
    A(f"s_mul_i32 s{sMT}, s25, 3")
    A(f"s_add_u32 s{sMT}, s{sMT}, s{sT0}")
    A(f"v_lshlrev_b32 v{vA}, 4, v0")
    for i in range(1, 6):
        A(f"v_add_u32 v{vA + i}, {i * 131072}, v{vA}")
    A(f"v_lshrrev_b32 v{t0}, 3, v0")
    A(f"v_mul_u32_u24 v{vBD}, 1152, v{t0}")
    A(f"v_lshrrev_b32 v{t0}, 4, v0")
    A(f"v_lshlrev_b32 v{t0}, 1, v{t0}")
    A(f"v_and_b32 v{t1}, 7, v0")
    A(f"v_xor_b32 v{t0}, v{t0}, v{t1}")
    A(f"v_lshl_add_u32 v{vBD}, v{t0}, 4, v{vBD}")
    A(f"v_lshrrev_b32 v{t0}, 2, v0")
    A(f"v_lshlrev_b32 v{vBR}, 7, v{t0}")
    A(f"v_bfe_u32 v{t0}, v0, 3, 2")
    A(f"v_lshl_add_u32 v{vBR}, v{t0}, 5, v{vBR}")
    A(f"v_and_b32 v{t0}, 3, v0")
    A(f"v_lshl_add_u32 v{vBR}, v{t0}, 3, v{vBR}")
    A(f"s_mul_i32 s{sLD}, s{sW}, {DEP * 4096}")
    A(f"v_add_u32 v{vBR}, s{sLD}, v{vBR}")
    for n in range(1, 4):
        A(f"v_xor_b32 v{vBR + n}, {32 * n}, v{vBR}")
    A("s_waitcnt lgkmcnt(0)")
    A(f"s_mov_b32 s{SRD_A}, s36")
    A(f"s_mov_b32 s{SRD_A + 1}, s37")
    A(f"s_mov_b32 s{SRD_A + 2}, {(DIAG_OFF + (2 << 20)) if OPT['diag'] else WS_O_BYTES}")
    A(f"s_mov_b32 s{SRD_A + 3}, 0x20000")
    A(f"s_mov_b32 s{SRD_WO}, s32")
    A(f"s_mov_b32 s{SRD_WO + 1}, s33")
    A(f"s_mov_b32 s{SRD_WO + 2}, {4096 * 1152}")
    A(f"s_mov_b32 s{SRD_WO + 3}, 0x20000")
    A(f"s_mov_b32 s{SRD_OUT}, s34")
    A(f"s_mov_b32 s{SRD_OUT + 1}, s35")
    A(f"s_mov_b32 s{SRD_OUT + 2}, {2304 * 1152}")
    A(f"s_mov_b32 s{SRD_OUT + 3}, 0x20000")
    A(f"s_mul_i32 s{sAS}, s{sMT}, 786432")
    A(f"s_lshl_b32 s{sT0}, s{sW}, 15")
    A(f"s_add_u32 s{sAS}, s{sAS}, s{sT0}")
    A(f"s_mul_i32 s{sBS}, s{sW}, {1024 * 1152}")
    A(f"s_lshl_b32 s{sT0}, s{sNT}, 7")
    A(f"s_add_u32 s{sBS}, s{sBS}, s{sT0}")

    def loads(d):
        o = []
        for i in range(4):
            o.append([f"s_add_u32 m0, s{sLD}, {d * 4096 + i * 1024}",
                      f"s_add_u32 s{sT0}, s{sBS}, {(32 * d + 8 * i) * 1152}",
                      f"buffer_load_dwordx4 v{vBD}, {srd(SRD_WO)}, s{sT0} offen lds"])
        off = f" offset:{d * 1024}" if d else ""
        for i in range(6):
            o.append([f"buffer_load_dwordx4 {vr(ORING + 24 * d + 4 * i, 4)}, v{vA + i}, {srd(SRD_A)}, s{sAS} offen{off}"])
        return o

    def wreads(d):
        b = WF + 16 * (d % 2)
        return [f"ds_read_b64_tr_b16 {vr(b + 4 * n + 2 * e, 2)}, v{vBR + n} offset:{d * 4096 + e * 2048}"
                for n in range(4) for e in range(2)]

    zi = 0
    for d in range(DEP - 1):
        for g in loads(d):
            A.ext(g)
            for _ in range(4):
                if zi < 96:
                    A(f"v_mov_b32 v{ACC2 + zi}, 0")
                    zi += 1
    assert zi == 96
    A(f"s_mov_b32 s{sCNT}, {32 // DEP}")
    A(f"s_waitcnt vmcnt({10 * (DEP - 2) + 6})")
    if OPT["diag"]:
        A("s_memrealtime s[62:63]")
    A.ext(wreads(0))
    A.label("L2_loop")
    body = []
    Bd = body.append
    for d in range(DEP):
        Bd(f"s_waitcnt vmcnt({10 * (DEP - 3) + 6})")
        body += wreads((d + 1) % DEP)
        Bd("s_waitcnt lgkmcnt(8)")
        b = WF + 16 * (d % 2)
        ld = loads((d - 1) % DEP)
        k = 0
        for n in range(4):
            for i in range(6):
                acc = vr(ACC2 + 4 * (6 * n + i), 4)
                Bd(f"{MF} {acc}, {vr(b + 4 * n, 4)}, {vr(ORING + 24 * d + 4 * i, 4)}, {acc}")
                k += 1
                if ld and k % 2 == 0:
                    body += ld.pop(0)
        if d == 0:
            Bd(f"s_add_u32 s{sAS}, s{sAS}, {DEP * 1024}")
            Bd(f"s_add_u32 s{sBS}, s{sBS}, {DEP * 32 * 1152}")
            Bd(f"s_cmp_eq_u32 s{sCNT}, 1")
            Bd(f"s_cselect_b32 s{sAS}, 0x40000000, s{sAS}")
            Bd(f"s_cselect_b32 s{sBS}, 0x40000000, s{sBS}")
    Bd(f"s_sub_u32 s{sCNT}, s{sCNT}, 1")
    Bd(f"s_cmp_lg_u32 s{sCNT}, 0")
    A.ext(body)
    A("s_cbranch_scc1 L2_loop")
    errs = hazard.check(body + body, "k2loop")
    if OPT["diag"]:
        A("s_memrealtime s[64:65]")
    A("s_waitcnt vmcnt(0) lgkmcnt(0)")
    A("s_barrier")
    A(f"s_mul_i32 s{sT0}, s{sW}, 24576")
    A(f"v_lshl_add_u32 v{t0}, v0, 4, s{sT0}")
    A("s_nop 7")
    for q in range(24):
        A(f"ds_write_b128 v{t0}, {vr(ACC2 + 4 * q, 4)} offset:{q * 1024}")
    A(f"v_and_b32 v{t0}, 15, v0")
    A(f"v_lshlrev_b32 v{t0}, 4, v{t0}")
    A(f"v_bfe_u32 v{t1}, v0, 4, 1")
    A(f"v_lshl_add_u32 v{t0}, v{t1}, 9, v{t0}")
    A(f"v_lshrrev_b32 v{t1}, 5, v0")
    A(f"v_lshl_add_u32 v{t0}, v{t1}, 10, v{t0}")
    A(f"s_mul_i32 s{sT0}, s{sW}, {6 * 1024}")
    A(f"v_add_u32 v{t0}, s{sT0}, v{t0}")
    A(f"v_add_u32 v{t1}, 49152, v{t0}")
    A("s_waitcnt lgkmcnt(0)")
    A("s_barrier")
    for w in range(4):
        for x in range(3):
            for q in range(2):
                A(f"ds_read_b128 {vr(ORING + 24 * w + 8 * x + 4 * q, 4)}, v{t0 if w < 2 else t1} offset:{(w % 2) * 24576 + x * 2048 + q * 256}")
        if w % 2 == 1:
            A("s_waitcnt lgkmcnt(0)")
    for w in range(1, 4):
        for e in range(24):
            A(f"v_add_f32 v{ORING + e}, v{ORING + e}, v{ORING + 24 * w + e}")
    for e in range(12):
        A(f"v_cvt_pk_bf16_f32 v{ACC2 + e}, v{ORING + 2 * e}, v{ORING + 2 * e + 1}")
    A(f"v_and_b32 v{t0}, 15, v0")
    A(f"v_lshrrev_b32 v{t1}, 5, v0")
    A(f"v_lshl_add_u32 v{t0}, v{t1}, 4, v{t0}")
    A(f"v_mul_u32_u24 v{t0}, 1152, v{t0}")
    A(f"v_bfe_u32 v{t1}, v0, 4, 1")
    A(f"v_lshl_add_u32 v{t0}, v{t1}, 4, v{t0}")
    A(f"s_mul_i32 s{sAS}, s{sMT}, {96 * 1152}")
    A(f"s_lshl_b32 s{sT0}, s{sNT}, 7")
    A(f"s_add_u32 s{sAS}, s{sAS}, s{sT0}")
    A(f"s_lshl_b32 s{sT0}, s{sW}, 5")
    A(f"s_add_u32 s{sAS}, s{sAS}, s{sT0}")
    for x in range(3):
        A(f"buffer_store_dwordx4 {vr(ACC2 + 4 * x, 4)}, v{t0}, {srd(SRD_OUT)}, s{sAS} offen")
        A(f"s_add_u32 s{sAS}, s{sAS}, {32 * 1152}")
    if OPT["diag"]:
        A("s_waitcnt vmcnt(0)")
        A("s_memrealtime s[66:67]")
        A("s_waitcnt lgkmcnt(0)")
        for i in range(4):
            A(f"v_writelane_b32 v250, s{60 + 2 * i}, {i}")
        A(f"s_lshl_b32 s{sT0}, s2, 2")
        A(f"s_add_u32 s{sT0}, s{sT0}, s{sW}")
        A(f"s_lshl_b32 s{sT0}, s{sT0}, 8")
        A(f"s_add_u32 s{sT0}, s{sT0}, {DIAG_OFF + (1 << 20)}")
        A(f"v_lshlrev_b32 v{t0}, 2, v0")
        A(f"buffer_store_dword v250, v{t0}, {srd(SRD_A)}, s{sT0} offen")
    A.label("L2_end")
    A("s_endpgm")
    return errs


def desc(name, vg, acc, sg=102):
    return f""".p2align 6
.amdhsa_kernel {name}
  .amdhsa_next_free_vgpr {vg}
  .amdhsa_next_free_sgpr {sg}
  .amdhsa_accum_offset {acc}
  .amdhsa_group_segment_fixed_size 0
  .amdhsa_kernarg_size 64
  .amdhsa_user_sgpr_count 2
  .amdhsa_user_sgpr_kernarg_segment_ptr 1
  .amdhsa_system_sgpr_workgroup_id_x 1
.end_amdhsa_kernel
"""


def main():
    A = Asm()
    e = k1(A)
    e += k2(A)
    e += hazard.check(A.l, "linear")
    for x in e:
        print(x, file=sys.stderr)
    hdr = f"""; Fused MHA block (q-proj + attention) and output projection, gfx950. Generated by a script.
; @launch kernel=attn_kernel grid=(256,1,1) block=(256,1,1) lds={LDS1}
; @launch kernel=oproj_kernel grid=(216,1,1) block=(256,1,1) lds=98304
.amdgcn_target "amdgcn-amd-amdhsa--gfx950"
.text
.globl attn_kernel
.globl oproj_kernel
"""
    txt = hdr + "\n".join(A.l) + "\n.section .rodata,\"a\"\n" + desc("attn_kernel", 512, 256) + desc("oproj_kernel", 256, 256)
    open(sys.argv[1], "w").write(txt)
    if e and not OPT["nodma"]:
        sys.exit(1)


main()
```

```python
import math
import struct
import sys

import hazard

OPT = dict(diag=0, L=6, W=2, xmap=1, nodma=0, nobar=0, kvflag=1, ostflag=2, wopf=1, wsh=8,
           k2grid=216, LQ=6, dmastep=9, thr=40, show=0, qstep=5, up=2, qpflag=0, dbg=0, cpf=1, nph=2, k2rot=1, D=4)
for a in sys.argv[2:]:
    k, v = a.split("=")
    OPT[k] = int(v)
FLAGS = ['', ' nt', ' sc1', ' sc0 sc1', ' sc1 nt', ' sc0 sc1 nt', ' sc0']

BLK = 1056
HS = 16 * BLK
DD = OPT['D']
NS = 2 * DD + 1
TS = 61 % NS
XB = 1088
WOFF, XEOFF, XOFF = 0, 17408, 21504
WG0 = 4 * XB + OPT["wsh"]
WG1 = 8720
STSZ = 54272
LDS1 = 163840
WS_O_BYTES = 144 * 32 * 4096
DIAG_OFF = 64 << 20


def f32bits(x):
    return struct.unpack("<I", struct.pack("<f", x))[0]


QSCALE = f32bits(128 ** -0.5 * math.log2(math.e))


class Asm:
    def __init__(self):
        self.l = []

    def __call__(self, s):
        self.l.append("    " + s)

    def label(self, s):
        self.l.append(s + ":")

    def raw(self, s):
        self.l.append(s)

    def ext(self, lst):
        for s in lst:
            self(s)


def vr(a, n):
    return f"v[{a}:{a + n - 1}]"


def ar(a, n):
    return f"a[{a}:{a + n - 1}]"


def srd(n):
    return f"s[{n}:{n + 3}]"


MF = "v_mfma_f32_16x16x32_bf16"

SRD_X, SRD_W, SRD_K, SRD_V, SRD_O, SRD_P = 4, 8, 12, 16, 20, 84
sW, sP, sB, sH = 24, 25, 27, 28
sXD, sXS, sWD, sWS, sT0, sT1 = 42, 43, 44, 45, 46, 47
sXED, sXES = 48, 55
sCNT = 49
sKD, sVD, sKVS, sKN, sVN = 50, 51, 52, 53, 54
sSC = 56
sT2 = 57
sDV = 3
sOO = 58
sREDO = 59
sST = 60
sWOF = 88
sCX, sCW = 89, 100
sPC = 98
sXSc, sWSc, sXEc = 29, 26, 101

vXD, vXDE, vWD, vCW, vV4 = 2, 4, 5, 6, 8
vQA = 160
ACC = 16
SB = [16, 48]
SE = 80
NEG = 88
QV = 160
vKB, vVB = 240, 244
vK, vV = 108, 112
vM = 120
vDUM = 252
OA, LA, ONES, RING = 0, 160, 180, 192
XF = [184, 204]
WRING = 224


def Sreg(t, par):
    return SE if t == 4 else SB[par] + 8 * t


stamp_n = [0]


def stamp_txt():
    if OPT["diag"]:
        n = stamp_n[0]
        stamp_n[0] += 1
        assert n < 12
        return [f"s_memtime s[{sST + 2 * n}:{sST + 2 * n + 1}]"]
    return []


def stamp(A):
    A.ext(stamp_txt())


def is_ds(x):
    return x.startswith("ds_")


def add_waits(seq, cyclic, W=1, nfr=None):
    rep = 2 if cyclic else 1
    out = []
    issued = 0
    done = 0
    last = {}
    for it in range(rep):
        out = []
        for e in seq:
            if e[0] == "x":
                if is_ds(e[1]):
                    issued += 1
                    if e[2] is not None:
                        last[e[2]] = issued
                if "lgkmcnt(0)" in e[1]:
                    done = issued
                out.append(e[1])
            else:
                need = 0
                for f in e[2]:
                    if f in last:
                        need = max(need, last[f])
                if need > done:
                    tgt = need
                    for f in e[3] if len(e) > 3 else []:
                        if f in last and last[f] > need - 40:
                            tgt = max(tgt, last[f])
                    n = issued - tgt
                    assert n <= 15, n
                    out.append(f"s_waitcnt lgkmcnt({n})")
                    done = tgt
                out.append(e[1])
    return out


def kv_piece(dst, srdn, i):
    o = f" offset:{i * 1024}" if i else ""
    return [f"s_add_u32 m0, s{dst}, {i * (BLK - 1024)}",
            f"buffer_load_dwordx4 v{vV4}, {srd(srdn)}, s{sKVS} offen{o}{FLAGS[OPT['kvflag']]} lds"]


def item_piece(n, i):
    o = f" offset:{i * 1024}" if i else ""
    return [f"s_add_u32 m0, s{sWOF}, {(n % NS) * HS + i * (BLK - 1024)}",
            f"s_mov_b32 s{sT0}, {(n // 2) * 16384}",
            f"buffer_load_dwordx4 v{vV4}, {srd(SRD_V if n % 2 else SRD_K)}, s{sT0} offen{o}{FLAGS[OPT['kvflag']]} lds"]


def adv(r):
    return [f"s_add_u32 s{r}, s{r}, {2 * HS}", f"s_sub_u32 s{sT2}, s{r}, {NS * HS}", f"s_min_u32 s{r}, s{r}, s{sT2}"]


def kread(dst, base, kb, kk):
    return f"ds_read_b128 {dst}, v{base + (kk >> 1)} offset:{kb * 256 + (kk & 1) * 64}"


def build_loop():
    err = None
    for lo in list(range(78, 153)) + list(range(0, 78)):
        try:
            return build_loop_at(lo)
        except AssertionError as e:
            err = e
    raise err


def build_loop_at(lo):
    L, W = OPT["L"], OPT["W"]
    NF = 32
    mf = []
    qk_end = {}
    pv_first = {}
    phase2 = {}
    step_start = {}
    for j in range(2):
        jn = 1 - j
        step_start[j] = len(mf)
        tiles = range(5) if jn == 0 else range(4)
        for kb in range(2):
            for kk in range(4):
                f = 16 * j + kb * 4 + kk
                for t in tiles:
                    S = Sreg(t, jn) + 4 * kb
                    C = vr(NEG + 4 * t, 4) if kk == 0 else vr(S, 4)
                    mf.append(dict(t=f"{MF} {vr(S, 4)}, {ar(RING + 4 * (f % 16), 4)}, {vr(QV + 16 * t + 4 * kk, 4)}, {C}", f=f))
                    qk_end[(jn, t, kb)] = len(mf) - 1
        tiles = list(range(5) if j == 0 else range(4))
        phase2[j] = len(mf)
        for dt in range(8):
            f = 16 * j + 8 + dt
            for t in tiles:
                O = ar(OA + 32 * t + 4 * dt, 4)
                mf.append(dict(t=f"{MF} {O}, {ar(RING + 4 * (f % 16), 4)}, {vr(Sreg(t, j), 4)}, {O}", f=f))
                pv_first.setdefault((j, t), len(mf) - 1)
            x = dt - 2
            if 0 <= x < len(tiles):
                Lr = ar(LA + 4 * x, 4)
                mf.append(dict(t=f"{MF} {Lr}, {ar(ONES, 4)}, {vr(Sreg(x, j), 4)}, {Lr}", f=f))
    N = len(mf)
    assert N == 153
    first_use, last_use = {}, {}
    for i, m in enumerate(mf):
        first_use.setdefault(m["f"], i)
        last_use[m["f"]] = i
    cap = [2] * N
    for f in range(NF):
        if f % W == 0:
            cap[(first_use[f] - 1) % N] -= 1
    gX = step_start[1] - 1
    cap[gX] -= 1
    cap[N - 1] -= 1
    ecap = [False] * N
    for f in range(NF):
        a, b = first_use[f], last_use[f]
        n = b - a + 1
        pos = {4: [0, 2], 5: [0, 2, 3], 6: [0, 2, 4]}[n]
        for p in pos:
            ecap[a + p] = True
    gaps = [[] for _ in range(N)]

    def frag_reads(f):
        j, r = divmod(f, 16)
        dst = RING + 4 * (f % 16)
        if r < 8:
            kb, kk = divmod(r, 4)
            return [kread(ar(dst, 4), vK + 2 * (1 - j), kb, kk)]
        dt = r - 8
        return [f"ds_read_b64_tr_b16 {ar(dst + 2 * e, 2)}, v{vV + j} offset:{e * 256 + dt * 32}" for e in range(2)]

    used = [0] * N
    nvm = 9 if OPT["cpf"] else 8
    gB = phase2[0] + 1
    gaps[gB] += [(f"s_waitcnt vmcnt({(DD - 2) * nvm})", "", None), ("s_barrier", "", None)]
    used[gB] = 2
    assert not ecap[gB] and cap[gB] == 2
    order = []
    for j in (0, 1):
        tiles = range(5) if j == 0 else range(4)
        for kb in range(2):
            for t in tiles:
                for r in range(4):
                    order.append((j, t, kb, r))

    def avail(j, t, kb):
        e = qk_end[(j, t, kb)] + 4
        return e - N if j == 0 else e
    cur = -10 ** 9
    for rnd in range(3):
        place = {}
        for (j, t, kb, r) in order:
            g = max(cur + 1, avail(j, t, kb))
            while not (ecap[g % N] and cap[g % N] == 2):
                g += 1
            place[(j, t, kb, r)] = g
            cur = g
        cur -= N
    for key, g in place.items():
        j, t, kb, r = key
        S = Sreg(t, j) + 4 * kb + r
        gaps[g % N].append((f"v_exp_f32 v{S}, v{S}", "n" if g < 0 else "", ("sm", j)))
        assert used[g % N] == 0
        used[g % N] = 2
    singles = []
    seqn = [0]

    def add(tg, prio, text, kind=None, chain=None):
        singles.append(dict(g=tg, p=prio, s=seqn[0], t=text, k=kind, chain=chain))
        seqn[0] += 1

    for (j, t, kb, r), g in place.items():
        if r % 2 == 1:
            S = Sreg(t, j)
            add(g + 1, 1, f"v_cvt_pk_bf16_f32 v{S + 2 * kb + r // 2}, v{S + 4 * kb + r - 1}, v{S + 4 * kb + r}",
                kind=("cvt", j, t), chain="cvt")
    tgt_rd = {}
    for f in range(NF):
        tg = first_use[(f - L) % NF] + (0 if f - L >= 0 else -N)
        tgt_rd[f] = tg
        for x in frag_reads(f):
            add(tg, 0, x, kind=("rd", f), chain="rd")
    add(tgt_rd[7], 0, f"v_add_u32 v{vK + 2}, s{sKN}, v{vKB + 2}", chain="rd", kind="k1")
    add(tgt_rd[7], 0, f"v_add_u32 v{vK + 3}, s{sKN}, v{vKB + 3}", chain="rd", kind="k1")
    add(tgt_rd[15], 0, f"v_add_u32 v{vV}, s{sVN}, v{vVB}", chain="rd", kind="v0")
    add(tgt_rd[23], 0, f"v_add_u32 v{vK}, s{sKN}, v{vKB}", chain="rd", kind="k0")
    add(tgt_rd[23], 0, f"v_add_u32 v{vK + 1}, s{sKN}, v{vKB + 1}", chain="rd", kind="k0")
    add(tgt_rd[31], 0, f"v_add_u32 v{vV + 1}, s{sDV}, v{vV}", chain="rd", kind="v1")
    g = gB + 1
    st = OPT["dmastep"]
    for i in range(4):
        pc = kv_piece(sVD, SRD_V, i)
        add(g, 2, pc[0], kind="m0", chain="dma")
        add(g + 1, 2, pc[1], kind="dma", chain="dma")
        g += st
    g -= st - 2
    add(g, 3, f"s_add_u32 s{sVD}, s{sKN}, s{sWOF}", chain="dma")
    for x in adv(sKN):
        add(g, 3, x, chain="dma", kind="advk")
    g += st - 2
    for i in range(4):
        pc = kv_piece(sKD, SRD_K, i)
        add(g, 2, pc[0], kind="m0", chain="dma")
        add(g + 1, 2, pc[1], kind="dma", chain="dma")
        g += st
    g -= st - 2
    if OPT["cpf"]:
        add(g, 3, f"global_load_dword v{vDUM}, v{vCW}, s[{sPC}:{sPC + 1}]", chain="dma")
    for x in adv(sKD):
        add(g, 3, x, chain="dma")
    add(g, 3, f"s_add_u32 s{sKVS}, s{sKVS}, 16384", chain="dma")
    for x in adv(sVN):
        add(g, 3, x, chain="dma", kind="advv")
    for x in singles:
        t2_ = (x["g"] - lo) % N + lo
        x["sh"] = x["g"] - t2_
        x["g"] = t2_
    chains = {}
    for x in sorted(singles, key=lambda x: (x["g"], x["s"])):
        chains.setdefault(x["chain"], []).append(x)
    placed = []
    lastg = {}
    gS = gX - 1
    while used[gS] or cap[gS] < 1:
        gS -= 1
    gaps[gS] += [(f"s_sub_u32 s{sCNT}, s{sCNT}, 1", "", None)]
    used[gS] = 1
    g = lo
    while any(chains.values()):
        while used[g % N] < cap[g % N]:
            cands = []
            for c, q in chains.items():
                if q and q[0]["g"] <= g:
                    if q[0]["k"] == "dma" and lastg.get(c) == g:
                        continue
                    if gS <= g % N <= gX and q[0]["t"].startswith("s_"):
                        continue
                    cands.append(q[0])
            if not cands:
                break
            x = min(cands, key=lambda x: (x["p"] - (g - x["g"]) / 6.0, x["g"], x["s"]))
            chains[x["chain"]].pop(0)
            lastg[x["chain"]] = g
            x["at"] = g + x["sh"]
            placed.append(x)
            used[g % N] += 1
            gaps[g % N].append((x["t"], "n" if x["at"] < 0 else "", x["k"]))
        g += 1
        assert g <= lo + N, [q[0] for q in chains.values() if q]
    gaps[gX].append(("s_cbranch_scc1 L1_tail", "", None))
    rd_at, first_rd, at = {}, {}, {}
    for x in placed:
        if isinstance(x["k"], tuple) and x["k"][0] == "rd":
            rd_at[x["k"][1]] = x["at"]
            first_rd.setdefault(x["k"][1], x["at"])
        elif isinstance(x["k"], tuple) and x["k"][0] == "cvt":
            _, j, t = x["k"]
            assert x["at"] <= pv_first[(j, t)] - 2, ("cvt late", x, pv_first[(j, t)])
        else:
            at.setdefault(x["k"], []).append(x["at"])
        assert x["at"] < N, x
    for f in range(NF):
        lead = first_use[f - (f % W)] - rd_at[f]
        assert lead >= 8, ("short lead", f, lead)
    assert first_rd[16] > gB
    assert max(at["k1"]) < min(at["advk"]) and max(at["advk"]) < min(at["k0"]), at
    assert max(at["v0"]) < min(at["advv"]), at
    seq, pro, tail = [], [], []
    for i, m in enumerate(mf):
        f = m["f"]
        grp = [(f - f % W + k) % NF for k in range(W)]
        seq.append(("m", m["t"], [f], grp))
        for x in gaps[i]:
            isrd = isinstance(x[2], tuple) and x[2][0] == "rd"
            seq.append(("x", x[0], x[2][1] if isrd else None))
            if x[1] == "n":
                pro.append(x[0])
            if i > gX and x[1] != "n" and isinstance(x[2], tuple):
                if (x[2][0] in ("sm", "cvt") and x[2][1] == 1) or (isrd and x[2][1] >= 24):
                    tail.append(x[0])
    body = add_waits(seq, True)
    if OPT["show"]:
        print("gap use:", "".join(str(u) for u in used), file=sys.stderr)
        print("instr count", len(body), "waits", sum("lgkmcnt" in x for x in body), "bar", gB, "dma", at["dma"], file=sys.stderr)
        print("pro", len(pro), "tail", len(tail), "lo", lo, file=sys.stderr)

    def keep(x):
        if OPT["nodma"] and (x.startswith("buffer_load") or x.startswith("s_add_u32 m0") or "vmcnt" in x):
            return False
        if OPT["nobar"] and x.startswith("s_barrier"):
            return False
        return True
    return [x for x in body if keep(x)], pro, tail


def cursor(r):
    return [f"s_add_u32 s{r}, s{r}, 128", f"s_sub_u32 s{sT2}, s{r}, 1152", f"s_min_u32 s{r}, s{r}, s{sT2}"]


def x_pieces(c):
    st = STG[c] * STSZ
    p = []
    for i in range(8):
        pre = [f"s_add_u32 s{sXSc}, s{sXS}, s{sCX}"] + cursor(sCX) if i == 0 else []
        p.append(pre + [f"s_add_u32 m0, s{sXD}, {st + i * 1024}",
                        (f"s_add_u32 s{sT0}, s{sXSc}, {i * 9216}" if i else "s_nop 0"),
                        f"buffer_load_dwordx4 v{vXD + (i & 1)}, {srd(SRD_X)}, s{sT0 if i else sXSc} offen{FLAGS[OPT['qpflag']]} lds"])
    return p


def wg_pieces(c):
    st = STG[c] * STSZ
    p = []
    for r in range(4):
        pre = [f"s_lshl_b32 s{sWSc}, s{sCW}, 12", f"s_add_u32 s{sWSc}, s{sWSc}, s{sWS}",
               f"s_add_u32 s{sXEc}, s{sXES}, s{sCW}"] + cursor(sCW) if r == 0 else []
        p.append(pre + [f"s_add_u32 m0, s{sWD}, {st + WOFF + r * XB}",
                        (f"s_add_u32 s{sT0}, s{sWSc}, {r * 8192}" if r else "s_nop 0"),
                        f"buffer_load_dwordx4 v{vWD}, {srd(SRD_W)}, s{sT0 if r else sWSc} offen{FLAGS[OPT['qpflag']]} lds"])
    p.append([f"s_add_u32 m0, s{sXED}, {st}", "s_nop 0",
              f"buffer_load_dwordx4 v{vXDE}, {srd(SRD_X)}, s{sXEc} offen{FLAGS[OPT['qpflag']]} lds"])
    return p


STG = [0, 2, 1, 0, 2, 1, 2, 1, 2]


def build_qproj(extras, nup, tail_items):
    LQ = OPT["LQ"]
    mf = []
    first_use, last_use = {}, {}
    for s in range(18):
        for sl in range(8):
            f = ("w", 8 * s + sl)
            tiles = range(5) if sl < 4 else range(4)
            for t in tiles:
                a = ACC + 32 * t + 4 * sl
                C = "0" if s == 0 else vr(a, 4)
                txt = f"{MF} {vr(a, 4)}, {ar(WRING + 4 * sl, 4)}, {ar(XF[s % 2] + 4 * t, 4)}, {C}"
                mf.append((txt, [f, ("x", s, t)]))
                for q in (f, ("x", s, t)):
                    first_use.setdefault(q, len(mf) - 1)
                    last_use[q] = len(mf) - 1
    N = len(mf)
    gaps = [[] for _ in range(N + 1)]

    def st_of(c):
        return (6, 0) if STG[c] == 2 else (0, STG[c] * STSZ)

    def wread(n):
        s, sl = divmod(n, 8)
        c, ks = divmod(s, 2)
        rb, st = st_of(c)
        kk, u = divmod(sl, 2)
        base = vQA + rb + (4 if kk < 2 else 5)
        return [(f"ds_read_b64_tr_b16 {ar(WRING + 4 * sl + 2 * e, 2)}, v{base} offset:{st + (kk & 1) * 64 + 8 * u + e * 256 + ks * 512}",
                 ("w", n)) for e in range(2)]

    def xread(s, t):
        c, ks = divmod(s, 2)
        rb, st = st_of(c)
        if t < 4:
            return (f"ds_read_b128 {ar(XF[s % 2] + 4 * t, 4)}, v{vQA + rb + ks} offset:{st + t * 2048}", ("x", s, t))
        return (f"ds_read_b128 {ar(XF[s % 2] + 16, 4)}, v{vQA + rb + 2 + ks} offset:{st}", ("x", s, t))

    bar = {0: -1, 9: N}
    for c in range(1, 9):
        bar[c] = last_use[("w", 16 * c - LQ + 1)]
    items = []
    for n in range(144):
        c = n // 16
        e = last_use[("w", n - 8)] if n >= 8 else -1
        tg = first_use[("w", n - LQ)] if n >= LQ else -1
        tg = max(tg, e, bar[c])
        for x in wread(n):
            items.append((tg, x))
    rd = sorted(items, key=lambda z: z[0])
    xi = []
    for s in range(18):
        c, ks = divmod(s, 2)
        for t in range(5):
            e = last_use[("x", s - 2, t)] if s >= 2 else -1
            tg = max(e, bar[c])
            if s == 1:
                tg = 0
            xi.append((tg, xread(s, t)))
    allrd = sorted([(tg, 0, i, x) for i, (tg, x) in enumerate(xi)] + [(tg, 1, i, x) for i, (tg, x) in enumerate(rd)],
                   key=lambda z: (z[0], z[1], z[2]))
    used = [0] * (N + 2)
    xdone = {}
    g = -1
    for tg, _, _, x in allrd:
        g = max(g, tg)
        if g < 0 and used[0] >= 9:
            g = 0
        while g >= 0 and used[g + 1] >= 2:
            g += 1
        gaps[g + 1].append(("x", x[0], x[1]))
        used[g + 1] += 1
        if x[1][0] == "x":
            xdone[x[1][1]] = g
        cc = x[1][1] // 16 if x[1][0] == "w" else x[1][1] // 2
        assert g < bar[cc + 1] - 2, (x, g, bar[cc + 1])
    last_rd = g
    groups = []
    for c in range(nup, 9):
        prev = [p for p in range(c) if STG[p] == STG[c]]
        ew = bar[prev[-1] + 1] if prev else -1
        ex = xdone[2 * prev[-1] + 1] + 10 if prev else -1
        groups.append((ew, 0, c, wg_pieces(c), ("W", c), None))
        groups.append((ex, 2, c, x_pieces(c), ("X", c), prev[-1] if prev else None))
    for c, ps in extras.items():
        groups.append((bar[c], 1, c, ps, ("E", c), None))
    groups.sort(key=lambda z: (z[0], z[2] if z[0] < 0 else 0, z[1]))
    for kind in "WX":
        cs = [z[4][1] for z in groups if z[4][0] == kind]
        assert cs == sorted(cs), cs
    issued = []
    for c in range(nup):
        issued += [(("W", c), -1)] * 5 + [(("X", c), -1)] * 8
    g = 0
    for tg, _, _, ps, tag, prev in groups:
        for i, p in enumerate(ps):
            late = g - tg
            g = max(g, tg)
            g0 = g
            if i == 0 and prev is not None:
                while used[g + 1] >= 1:
                    g += 1
                gaps[g + 1].append(("xw", ("x", 2 * prev + 1)))
                used[g + 1] += 2
            for ins in p[:-1]:
                if ins == "s_nop 0":
                    continue
                while used[g + 1] >= 2:
                    g += 1
                gaps[g + 1].append(("x", ins, None))
                used[g + 1] += 1
            g += 1
            while used[g + 1] >= 2:
                g += 1
            assert g < N - 30, (tag, g)
            gaps[g + 1].append(("x", p[-1], None))
            used[g + 1] = 2
            issued.append((tag, g))
            g = max(g + 1, g0 + (OPT["qstep"] if late < 30 else 2))
    vm_at = {}
    for c in range(1, 9):
        before = [t for t, gg in issued if gg < bar[c]]
        for t, gg in issued:
            if t in (("W", c), ("X", c)):
                assert gg < bar[c] - 30, (t, gg, bar[c])
        lastneed = max(i for i, t in enumerate(before) if t in (("W", c), ("X", c)))
        vm_at[c] = len(before) - 1 - lastneed
    if OPT["show"]:
        print("bar", bar, "vm", vm_at, "issue", [(t[0] + str(t[1]), g) for t, g in issued if g >= 0], "lastrd", last_rd - (N - 36), file=sys.stderr)
    seq = []
    tf = list(tail_items)
    for i in range(N + 1):
        if i > 0:
            seq.append(("m", mf[i - 1][0], mf[i - 1][1]))
        for c in range(1, 9):
            if bar[c] == i - 1:
                seq.append(("x", f"s_waitcnt vmcnt({vm_at[c]}) lgkmcnt(0)", None))
                seq.append(("x", "s_barrier", None))
                if OPT["diag"]:
                    seq.append(("x", f"v_writelane_b32 v250, s90, {40 + c}", None))
                    seq.append(("x", "s_memtime s[90:91]", None))
        for x in gaps[i]:
            if x[0] == "xw":
                seq.append(("m", "s_nop 0", [("x", x[1][1], t) for t in range(5)]))
            else:
                seq.append(x)
        while tf and tf[0][0] <= i - 1 - (N - 36):
            seq.append(("x", tf.pop(0)[1], None))
    assert not tf
    return add_waits(seq, False), [t for t, _ in issued]


def k1(A):
    A.raw(".p2align 8")
    A.raw(".type attn_kernel,@function")
    A.label("attn_kernel")
    A("s_cmp_ge_u32 s2, 256")
    A("s_cbranch_scc1 L1_end")
    A("s_load_dwordx8 s[32:39], s[0:1], 0")
    A("s_load_dwordx2 s[40:41], s[0:1], 56")
    A("s_load_dwordx2 s[30:31], s[0:1], 32")
    A(f"s_getpc_b64 s[{sPC}:{sPC + 1}]")
    A.label("L1_pc")
    stamp(A)
    if OPT["diag"]:
        A("s_memrealtime s[92:93]")
    A("s_lshr_b32 s3, s2, 3")
    if OPT["cpf"]:
        A(f"s_lshl_b32 s{sT0}, s3, 11")
        A(f"v_lshl_add_u32 v1, v0, 7, s{sT0}")
        A("v_min_u32 v1, L_code_end-L1_pc-4, v1")
        A("v_cmp_gt_u32 vcc, 16, v0")
        A("s_and_saveexec_b64 s[46:47], vcc")
        A("s_cbranch_execz L1_nocpf")
        A(f"global_load_dword v{vDUM}, v1, s[{sPC}:{sPC + 1}]")
        A.label("L1_nocpf")
        A("s_mov_b64 exec, s[46:47]")
    A("v_lshrrev_b32 v1, 6, v0")
    A("v_and_b32 v0, 63, v0")
    A(f"v_readfirstlane_b32 s{sW}, v1")
    if OPT["xmap"] == 0:
        A(f"s_and_b32 s{sB}, s2, 7")
        A(f"s_mov_b32 s{sH}, s3")
    else:
        A(f"s_and_b32 s{sB}, s2, 1")
        A(f"s_lshl_b32 s{sB}, s{sB}, 2")
        A(f"s_and_b32 s{sT0}, s3, 3")
        A(f"s_add_u32 s{sB}, s{sB}, s{sT0}")
        A(f"s_and_b32 s{sH}, s2, 6")
        A(f"s_lshl_b32 s{sH}, s{sH}, 2")
        A(f"s_lshr_b32 s{sT0}, s3, 2")
        A(f"s_add_u32 s{sH}, s{sH}, s{sT0}")
    A(f"s_and_b32 s{sP}, s{sW}, 1")
    nph = OPT["nph"]
    if nph == 1:
        A(f"s_mov_b32 s{sCW}, 0")
    elif nph == 2:
        A(f"s_add_u32 s{sCW}, s{sB}, s{sH}")
        A(f"s_and_b32 s{sCW}, s{sCW}, 1")
        A(f"s_mul_i32 s{sCW}, s{sCW}, {4 * 128}")
    elif nph == 4:
        A(f"s_add_u32 s{sCW}, s{sB}, s{sH}")
        A(f"s_and_b32 s{sCW}, s{sCW}, 3")
        A(f"s_mul_i32 s{sCW}, s{sCW}, {2 * 128}")
    elif nph == 3:
        A(f"s_add_u32 s{sCW}, s{sB}, s{sH}")
        A(f"s_mul_i32 s{sT0}, s{sCW}, 43")
        A(f"s_lshr_b32 s{sT0}, s{sT0}, 7")
        A(f"s_mul_i32 s{sT0}, s{sT0}, 3")
        A(f"s_sub_u32 s{sCW}, s{sCW}, s{sT0}")
        A(f"s_mul_i32 s{sCW}, s{sCW}, {3 * 128}")
    A(f"s_mov_b32 s{sCX}, s{sCW}")
    t0, t1, t2, g4, i16, r4, cq = 9, 10, 11, 12, 13, 14, 15
    A(f"v_lshrrev_b32 v{g4}, 4, v0")
    A(f"v_and_b32 v{i16}, 15, v0")
    A(f"v_lshrrev_b32 v{t0}, 5, v0")
    A(f"v_lshlrev_b32 v{vWD}, 18, v{t0}")
    A(f"v_and_b32 v{t0}, 1, v{g4}")
    A(f"v_lshl_add_u32 v{vWD}, v{t0}, 15, v{vWD}")
    A(f"v_lshl_add_u32 v{vWD}, v{i16}, 4, v{vWD}")
    A(f"v_lshrrev_b32 v{t0}, 3, v0")
    A(f"v_mul_u32_u24 v{vXD}, 1152, v{t0}")
    A(f"v_and_b32 v{t0}, 7, v0")
    A(f"v_xor_b32 v{t0}, v{t0}, v{g4}")
    A(f"v_lshl_add_u32 v{vXD}, v{t0}, 4, v{vXD}")
    A(f"v_xor_b32 v{vXD + 1}, 64, v{vXD}")
    A(f"s_lshl_b32 s{sT0}, s{sP}, 6")
    A(f"v_xor_b32 v{vXDE}, s{sT0}, v{vXD}")
    A(f"s_lshl_b32 s{sXD}, s{sW}, 13")
    A(f"s_add_u32 s{sXD}, s{sXD}, {XOFF}")
    A(f"s_mul_i32 s{sXS}, s{sW}, {8 * 9216}")
    A(f"s_lshl_b32 s{sXED}, s{sW}, 10")
    A(f"s_add_u32 s{sXED}, s{sXED}, {XEOFF}")
    A(f"s_mul_i32 s{sXES}, s{sW}, 9216")
    A(f"s_add_u32 s{sXES}, s{sXES}, {32 * 9216}")
    A(f"s_lshr_b32 s{sT0}, s{sW}, 1")
    A(f"s_mul_i32 s{sWD}, s{sT0}, {WG1}")
    A(f"s_mul_i32 s{sT0}, s{sP}, {WG0}")
    A(f"s_add_u32 s{sWD}, s{sWD}, s{sT0}")
    A(f"s_lshl_b32 s{sWS}, s{sW}, 16")
    A(f"s_mul_i32 s{sT1}, s{sB}, 331776")
    A(f"s_lshl_b32 s{sT0}, s{sH}, 8")
    A(f"s_mov_b32 s{SRD_X + 2}, 331776")
    A(f"s_mov_b32 s{SRD_X + 3}, 0x20000")
    A(f"s_sub_u32 s{SRD_W + 2}, {576 * 8192}, s{sT0}")
    A(f"s_mov_b32 s{SRD_W + 3}, 0x20000")
    A("s_waitcnt lgkmcnt(0)")
    A(f"s_add_u32 s{SRD_W}, s38, s{sT0}")
    A(f"s_addc_u32 s{SRD_W + 1}, s39, 0")
    A(f"s_add_u32 s{SRD_X}, s32, s{sT1}")
    A(f"s_addc_u32 s{SRD_X + 1}, s33, 0")
    S = Asm()
    S(f"s_lshl_b32 s{sT1}, s{sB}, 5")
    S(f"s_add_u32 s{sT1}, s{sT1}, s{sH}")
    S(f"s_lshl_b32 s{sT1}, s{sT1}, 19")
    S(f"s_add_u32 s{SRD_K}, s34, s{sT1} | s_addc_u32 s{SRD_K + 1}, s35, 0")
    S(f"s_mov_b32 s{SRD_K + 2}, 524288")
    S(f"s_mov_b32 s{SRD_K + 3}, 0x20000")
    S(f"s_add_u32 s{SRD_V}, s36, s{sT1} | s_addc_u32 s{SRD_V + 1}, s37, 0")
    S(f"s_mov_b32 s{SRD_V + 2}, 524288")
    S(f"s_mov_b32 s{SRD_V + 3}, 0x20000")
    S(f"s_mov_b32 s{SRD_O}, s40")
    S(f"s_mov_b32 s{SRD_O + 1}, s41")
    S(f"s_mov_b32 s{SRD_O + 2}, {(DIAG_OFF + (1 << 20)) if OPT['diag'] else WS_O_BYTES}")
    S(f"s_mov_b32 s{SRD_O + 3}, 0x20000")
    S(f"s_mov_b32 s{SRD_P}, s30")
    S(f"s_mov_b32 s{SRD_P + 1}, s31")
    S(f"s_mov_b32 s{SRD_P + 2}, {4096 * 1152}")
    S(f"s_mov_b32 s{SRD_P + 3}, 0x20000")
    S(f"v_bfe_u32 v{r4}, v0, 2, 2")
    S(f"v_and_b32 v{cq}, 3, v0")
    XA, XE, WL, WH = vQA, vQA + 2, vQA + 4, vQA + 5
    S(f"v_lshlrev_b32 v{XE}, 7, v{i16}")
    S(f"v_lshrrev_b32 v{t0}, 1, v{i16}")
    S(f"v_xor_b32 v{t0}, v{t0}, v{g4}")
    S(f"v_lshl_add_u32 v{XE}, v{t0}, 4, v{XE}")
    S(f"v_add_u32 v{XA}, s{sXD}, v{XE}")
    S(f"s_lshr_b32 s{sT1}, s{sW}, 1")
    S(f"s_lshl_b32 s{sT1}, s{sT1}, 11")
    S(f"s_add_u32 s{sT1}, s{sT1}, {XEOFF}")
    S(f"v_add_u32 v{XE}, s{sT1}, v{XE}")
    S(f"v_xor_b32 v{XA + 1}, 64, v{XA}")
    S(f"v_xor_b32 v{XE + 1}, 64, v{XE}")
    S(f"v_lshrrev_b32 v{t0}, 1, v{g4}")
    S(f"v_mul_u32_u24 v{WL}, {WG1}, v{t0}")
    S(f"v_and_b32 v{t0}, 1, v{g4}")
    S(f"v_mul_u32_u24 v{t0}, {WG0}, v{t0}")
    S(f"v_add_u32 v{WL}, v{WL}, v{t0}")
    S(f"v_mul_u32_u24 v{t0}, {XB}, v{r4}")
    S(f"v_add_u32 v{WL}, v{WL}, v{t0}")
    S(f"v_lshl_add_u32 v{WL}, v{cq}, 4, v{WL}")
    S(f"s_lshl_b32 s{sT1}, s{sP}, 7")
    S(f"s_xor_b32 s{sOO}, s{sT1}, 128")
    S(f"v_add_u32 v{WH}, s{sOO}, v{WL}")
    S(f"v_add_u32 v{WL}, s{sT1}, v{WL}")
    for i in range(6):
        S(f"v_add_u32 v{vQA + 6 + i}, {2 * STSZ}, v{vQA + i}")
    S(f"s_lshl_b32 s{sT1}, s{sW}, 12")
    S(f"v_lshl_add_u32 v{vV4}, v0, 4, s{sT1}")
    S(f"s_mul_i32 s{sWOF}, s{sW}, {4 * BLK}")
    S(f"v_mul_u32_u24 v{t0}, {BLK}, v{i16}")
    S(f"v_lshl_add_u32 v{t0}, v{g4}, 4, v{t0}")
    S(f"v_lshl_add_u32 v{t1}, v{g4}, 2, v{r4}")
    S(f"v_mul_u32_u24 v{t1}, {BLK}, v{t1}")
    S(f"v_lshl_add_u32 v{t1}, v{cq}, 3, v{t1}")
    for j in range(2):
        S(f"s_xor_b32 s{sT1}, s{sP}, {j}")
        S(f"s_lshl_b32 s{sT1}, s{sT1}, 9")
        S(f"v_add_u32 v{vVB + j}, s{sT1}, v{t1}")
        S(f"s_lshl_b32 s{sOO}, s{sP}, 7")
        S(f"s_add_u32 s{sT1}, s{sT1}, s{sOO}")
        S(f"v_add_u32 v{vKB + 2 * j}, s{sT1}, v{t0}")
        S(f"s_xor_b32 s{sT1}, s{sT1}, 128")
        S(f"v_add_u32 v{vKB + 2 * j + 1}, s{sT1}, v{t0}")
    S(f"s_lshl_b32 s{sDV}, s{sP}, 10")
    S(f"s_sub_u32 s{sDV}, 512, s{sDV}")
    S(f"v_lshlrev_b32 v{vCW}, 7, v0")
    S(f"v_min_u32 v{vCW}, L1_redo-L1_tail, v{vCW}")
    S(f"v_add_u32 v{vCW}, L1_tail-L1_pc, v{vCW}")
    S(f"v_mov_b32 v{t0}, 0x3f803f80")
    S(f"v_cmp_eq_u32 vcc, 0, v{cq}")
    S(f"s_mov_b32 s{sSC}, {QSCALE:#x}")
    S(f"s_mov_b32 s{sREDO}, 0")
    S(f"v_cndmask_b32 v{t0}, 0, v{t0}, vcc")
    for i in range(4):
        S(f"v_accvgpr_write_b32 a{ONES + i}, v{t0}")
    S(f"s_add_u32 s{sT1}, s{sXD}, {2 * STSZ + 6144}")
    S(f"v_lshl_add_u32 v{t0}, v0, 4, s{sT1}")
    S(f"s_xor_b32 s{sT1}, s{sW}, 1")
    S(f"s_lshl_b32 s{sT1}, s{sT1}, 13")
    S(f"s_add_u32 s{sT1}, s{sT1}, {XOFF + 2 * STSZ + 6144}")
    S(f"v_lshl_add_u32 v{t1}, v0, 4, s{sT1}")

    def loop_scalars(Z):
        Z(f"s_mov_b32 s{sKVS}, {DD * 16384}")
        Z(f"s_add_u32 s{sKD}, s{sWOF}, {(NS - 1) * HS}")
        Z(f"s_mov_b32 s{sVD}, s{sWOF}")
        Z(f"s_mov_b32 s{sKN}, {2 * HS}")
        Z(f"s_mov_b32 s{sVN}, {3 * HS}")
        Z(f"s_mov_b32 s{sCNT}, 31")

    def loop_addr():
        return [f"v_add_u32 v{vK}, {2 * HS}, v{vKB}", f"v_add_u32 v{vK + 1}, {2 * HS}, v{vKB + 1}",
                f"v_mov_b32 v{vK + 2}, v{vKB + 2}", f"v_mov_b32 v{vK + 3}, v{vKB + 3}",
                f"v_add_u32 v{vV}, {HS}, v{vVB}", f"v_add_u32 v{vV + 1}, {HS}, v{vVB + 1}"]

    loop_scalars(S)
    for i in range(180):
        S(f"v_accvgpr_write_b32 a{i}, 0")
    setup = [x.strip() for x in S.l]
    for p in wg_pieces(0) + x_pieces(0):
        A.ext(p)
    first = []
    for c in range(1, OPT["up"]):
        first += wg_pieces(c) + x_pieces(c)
    per = len(setup) // (len(first) + 1) + 1
    stamp(A)
    for p in [[]] + first:
        A.ext(p)
        for _ in range(per):
            if setup:
                for y in setup.pop(0).split(" | "):
                    A(y)
    assert not setup
    stamp(A)
    A(f"s_waitcnt vmcnt({len(first)})")
    A("s_barrier")
    stamp(A)
    P = lambda n: [item_piece(n, i) for i in range(4)]
    kw = [f"global_load_dword v{vDUM}, v{vCW}, s[{sPC}:{sPC + 1}]"] if OPT["cpf"] else []
    if DD == 4:
        extras = {4: P(0), 5: P(1), 6: P(2), 8: P(3) + P(4) + P(5)}
        late = P(6) + P(7)
        late[0] = kw + late[0]
        late[7] = late[7] + kw
    elif DD == 3:
        extras = {4: P(0), 5: P(1), 6: P(2), 8: P(3)}
        late = P(4) + P(5)
        late[7] = late[7] + kw
    else:
        extras = {4: P(0), 5: P(1), 6: P(2), 8: P(3)}
        late = [[]] * 8
    if OPT["wopf"]:
        extras[7] = [[f"s_lshl_b32 s{sT0}, s2, 2", f"s_add_u32 s{sT0}, s{sT0}, s{sW}", f"s_mul_i32 s{sT0}, s{sT0}, 4608",
                      f"v_lshlrev_b32 v253, 7, v0", f"v_min_u32 v253, {35 * 128}, v253",
                      f"buffer_load_dword v{vDUM}, v253, {srd(SRD_P)}, s{sT0} offen"],
                     [f"s_mul_i32 s{sT0}, s{sB}, {18 * 32 * 4096}", f"v_lshlrev_b32 v253, 18, v0",
                      f"v_min_u32 v253, {8 << 18}, v253",
                      f"buffer_load_dword v{vDUM}, v253, {srd(SRD_O)}, s{sT0} offen nt"]]

    def conv(t, kk):
        src = ACC + 32 * t + 8 * kk
        dst = QV + 16 * t + 4 * kk
        o = []
        for i in range(4):
            o += [f"v_mul_f32 v{src + 2 * i}, s{sSC}, v{src + 2 * i}", f"v_mul_f32 v{src + 2 * i + 1}, s{sSC}, v{src + 2 * i + 1}"]
        for i in range(4):
            o.append(f"v_cvt_pk_bf16_f32 v{dst + i}, v{src + 2 * i}, v{src + 2 * i + 1}")
        return o

    KF = [184, 224]
    k0reads = [kread(ar(KF[kb] + 4 * kk, 4), vKB, kb, kk) for kb in range(2) for kk in range(4)]
    ti = []

    def spread(lst, g0, g1):
        for i, x in enumerate(lst):
            ti.append((g0 + (i * (g1 - g0)) // len(lst), x))

    spread(conv(4, 0) + conv(0, 0) + conv(1, 0) + conv(2, 0), 13, 22)
    spread(conv(4, 1) + [f"ds_write_b128 v{t0}, {vr(QV + 64, 4)}", f"ds_write_b128 v{t0}, {vr(QV + 68, 4)} offset:1024"]
           + conv(3, 0) + conv(0, 1), 22, 29)
    ti.append((29, "BAR"))
    spread([f"ds_read_b128 {vr(QV + 72, 4)}, v{t1}", f"ds_read_b128 {vr(QV + 76, 4)}, v{t1} offset:1024"] + k0reads[:4]
           + conv(1, 1) + k0reads[4:] + conv(2, 1) + conv(3, 1), 29, 36)
    nb = [i for i, x in enumerate(ti) if x[1] == "BAR"][0]
    ti[nb:nb + 1] = [(29, "s_waitcnt lgkmcnt(0)"), (29, "s_barrier")]
    qp, issued = build_qproj(extras, OPT["up"], ti)
    assert issued.index(("W", 8)) > max(i for i, t in enumerate(issued) if t == ("E", 5))
    A.ext(qp)
    stamp(A)
    body, pro, tail = build_loop()

    def qk0(kb, kk, useneg):
        o = []
        for t in range(5):
            Sx = Sreg(t, 0) + 4 * kb
            C = (vr(NEG + 4 * t, 4) if useneg else "0") if kk == 0 else vr(Sx, 4)
            o.append(f"{MF} {vr(Sx, 4)}, {ar(KF[kb] + 4 * kk, 4)}, {vr(QV + 16 * t + 4 * kk, 4)}, {C}")
        return o

    def mix(mf, fill):
        n = len(mf)
        for i, m in enumerate(mf):
            A(m)
            A.ext(fill[(i * len(fill)) // n:((i + 1) * len(fill)) // n])

    flat = lambda ps: [x for p in ps for x in p]
    pro_rd = [x for x in pro if is_ds(x)]
    pro_sm = [x for x in pro if not is_ds(x)]
    A.ext(conv(0, 2) + flat(late[0:2]) + conv(0, 3))
    A("s_waitcnt lgkmcnt(0)")
    mix(qk0(0, 0, False) + qk0(0, 1, False), conv(1, 2) + conv(2, 2) + conv(3, 2) + flat(late[2:4]))
    mix(qk0(0, 2, False), conv(1, 3) + conv(2, 3) + conv(3, 3))
    A("s_nop 0")
    A.ext(qk0(0, 3, False))
    A.ext(loop_addr())
    A.ext(pro_rd)
    A.ext(flat(late[4:6]))
    for t in range(5):
        Sx = Sreg(t, 0)
        A(f"v_max3_f32 v{vM + t}, v{Sx}, v{Sx + 1}, v{Sx + 2}")
    for t in range(5):
        A(f"v_max_f32 v{vM + t}, v{vM + t}, v{Sreg(t, 0) + 3}")

    def xlane5(Z, op, base, tmp):
        for sw in ("v_permlane32_swap_b32", "v_permlane16_swap_b32"):
            for t in range(5):
                Z(f"v_mov_b32 v{tmp + t}, v{base + t}")
            for t in range(5):
                Z(f"{sw} v{base + t}, v{tmp + t}")
            for t in range(5):
                Z(f"{op} v{base + t}, v{base + t}, v{tmp + t}")

    xlane5(A, "v_max_f32", vM, vM + 8)
    for t in range(5):
        for i in range(4):
            A(f"v_sub_f32 v{NEG + 4 * t + i}, 0, v{vM + t}")
    subs = [f"v_sub_f32 v{Sreg(t, 0) + i}, v{Sreg(t, 0) + i}, v{vM + t}" for t in range(5) for i in range(4)]
    kb0regs = {Sreg(t, 0) + i for t in range(5) for i in range(4)}

    def srcs(x):
        return [int(z.strip()[1:]) for z in x.split(None, 1)[1].split(",")[1:]]
    sm0 = [x for x in pro_sm if all(r in kb0regs for r in srcs(x))]
    sm1 = [x for x in pro_sm if x not in sm0]

    def safe(lst):
        o, prev = [], ""
        for x in lst:
            if prev.startswith("v_exp") and x.startswith("v_cvt"):
                o.append("s_nop 0")
            o.append(x)
            prev = x
        return o
    A.ext(flat(late[6:8]))
    mix(flat([qk0(1, kk, True) for kk in range(4)]), subs + safe(sm0))
    A("s_nop 3")
    A.label("L1_presm")
    A.ext(safe(sm1))
    A("s_waitcnt lgkmcnt(0)")
    stamp(A)
    A.raw(".p2align 6")
    A.label("L1_loop")
    if OPT["diag"]:
        A(f"s_mov_b32 m0, s{sCNT}")
        A("s_nop 0")
        A("v_writelane_b32 v250, s90, m0")
        A("v_writelane_b32 v251, s96, m0")
        A("s_memtime s[90:91]")
        A("s_memrealtime s[96:97]")
    A.ext(body)
    A("s_branch L1_loop")
    errs = hazard.check(body + body, "loop")
    A.label("L1_tail")
    T0 = len(A.l)
    stamp(A)
    tail_rd = [x for x in tail if is_ds(x)]
    tail_sm = [x for x in tail if not is_ds(x)]
    A.ext(tail_rd)
    A.ext(safe(tail_sm))
    A(f"s_add_u32 s{sT0}, s{sWOF}, {TS * HS}")
    A(f"v_lshl_add_u32 v{t0}, v0, 4, s{sT0}")
    A("s_waitcnt vmcnt(0) lgkmcnt(0)")
    ones = [f"{MF} {ar(LA + 4 * t, 4)}, {ar(ONES, 4)}, {vr(Sreg(t, 1), 4)}, {ar(LA + 4 * t, 4)}" for t in range(4)]

    def pv(t):
        return [f"{MF} {ar(OA + 32 * t + 4 * dt, 4)}, {ar(RING + 32 + 4 * dt, 4)}, {vr(Sreg(t, 1), 4)}, {ar(OA + 32 * t + 4 * dt, 4)}"
                for dt in range(8)]
    wr = [f"ds_write_b128 v{t0}, {ar(OA + 128 + 4 * i, 4)} offset:{(i // 4) * HS + (i % 4) * 1024}" for i in range(8)]
    misc = [f"v_lshlrev_b32 v{t2}, 4, v0",
            f"s_mul_i32 s{sOO}, s{sB}, 18", f"s_lshl_b32 s{sT0}, s{sW}, 2", f"s_add_u32 s{sT0}, s{sT0}, s{sOO}",
            f"s_lshl_b32 s{sT0}, s{sT0}, 5", f"s_add_u32 s{sT0}, s{sT0}, s{sH}", f"s_lshl_b32 s{sT0}, s{sT0}, 12",
            f"s_lshl_b32 s{sT1}, s{sW}, 10", f"s_add_u32 s{sT1}, s{sT1}, {NS * HS}", f"v_lshl_add_u32 v{t1}, v0, 4, s{sT1}"]
    mix(ones + pv(0), wr + misc)
    Lr = 114
    st = [f"v_accvgpr_read_b32 v{Lr + t}, a{LA + 4 * t}" for t in range(5)]
    st += [f"v_add_f32 v128, v{Lr}, v{Lr + 1}", f"v_add_f32 v129, v{Lr + 2}, v{Lr + 3}", f"v_add_f32 v128, v128, v{Lr + 4}",
           f"v_add_f32 v128, v128, v129", f"v_mov_b32 v129, {f32bits(2.0 ** OPT['thr']):#x}", f"v_cmp_nlt_f32 vcc, v128, v129",
           f"v_mov_b32 v132, v{Lr + 4}", f"v_mov_b32 v133, v{NEG + 16}", f"v_mov_b32 v135, 0", f"v_cndmask_b32 v134, 0, 1, vcc",
           f"ds_write_b128 v{t1}, {vr(132, 4)}"]
    st += [f"v_rcp_f32 v{120 + 2 * t}, v{Lr + t}" for t in range(4)]
    mix(pv(1), st)
    ofl = FLAGS[OPT["ostflag"]]

    def norm_store(t, tmp, pk):
        o = []
        if t:
            o.append(f"s_add_u32 s{sT0}, s{sT0}, {32 * 4096}")
        for s in range(4):
            b = tmp + 8 * s
            for e in range(8):
                o.append(f"v_accvgpr_read_b32 v{b + e}, a{OA + 32 * t + 8 * s + e}")
            if pk:
                for e in range(4):
                    o.append(f"v_pk_mul_f32 {vr(b + 2 * e, 2)}, {vr(b + 2 * e, 2)}, {vr(120 + 2 * t, 2)} op_sel_hi:[1,0]")
            else:
                for e in range(8):
                    o.append(f"v_mul_f32 v{b + e}, v{120 + 2 * t}, v{b + e}")
            for e in range(4):
                o.append(f"v_cvt_pk_bf16_f32 v{b + e}, v{b + 2 * e}, v{b + 2 * e + 1}")
            of = f" offset:{s * 1024}" if s else ""
            o.append(f"buffer_store_dwordx4 {vr(b, 4)}, v{t2}, {srd(SRD_O)}, s{sT0} offen{of}{ofl}")
        return o

    n0 = norm_store(0, 16, False)
    mix(pv(2) + pv(3), n0[:42])
    A.ext(norm_store(0, 16, True)[34:])
    A("s_waitcnt lgkmcnt(0)")
    A("s_barrier")
    A(f"s_and_b32 s{sT1}, s{sW}, 2")
    A(f"s_mul_i32 s{sT1}, s{sT1}, {4 * BLK}")
    A(f"s_mul_i32 s{sT2}, s{sP}, {HS}")
    A(f"s_add_u32 s{sT1}, s{sT1}, s{sT2}")
    A(f"s_add_u32 s{sT1}, s{sT1}, {TS * HS}")
    A(f"v_lshl_add_u32 v{t0}, v0, 4, s{sT1}")
    A(f"s_and_b32 s{sT1}, s{sW}, 2")
    A(f"s_lshl_b32 s{sT1}, s{sT1}, 10")
    A(f"v_lshl_add_u32 v{t1}, v0, 4, s{sT1}")
    A(f"v_xor_b32 v1, 2048, v{t1}")
    A(f"v_add_u32 v{t1}, {NS * HS}, v{t1}")
    A(f"v_add_u32 v1, {NS * HS}, v1")
    A(f"ds_read_b128 {vr(88, 4)}, v{t1}")
    A(f"ds_read_b128 {vr(92, 4)}, v{t1} offset:1024")
    A(f"ds_read_b128 {vr(96, 4)}, v1")
    A(f"ds_read_b128 {vr(100, 4)}, v1 offset:1024")
    for w in range(2):
        for q in range(4):
            A(f"ds_read_b128 {vr(128 + 16 * w + 4 * q, 4)}, v{t0} offset:{w * 4 * BLK + q * 1024}")
    A.ext(norm_store(1, 48, True))
    A("s_waitcnt lgkmcnt(0)")
    A("v_or3_b32 v104, v90, v94, v98")
    A("v_or_b32 v104, v104, v102")
    A("v_cmp_ne_u32 vcc, 0, v104")
    A("v_min_f32 v105, v89, v93")
    A("v_sub_f32 v89, v105, v89")
    A("v_sub_f32 v93, v105, v93")
    A("v_exp_f32 v89, v89")
    A("v_exp_f32 v93, v93")
    A(f"s_cmp_lg_u64 vcc, 0")
    A(f"s_cselect_b32 s{sT1}, 1, 0")
    A(f"s_cmp_gt_u32 s{sT1}, s{sREDO}")
    A("s_cbranch_scc1 L1_redo")
    A("v_mul_f32 v105, v88, v89")
    A("v_fmac_f32 v105, v92, v93")
    A("v_rcp_f32 v105, v105")
    A(f"s_lshr_b32 s{sT1}, s{sW}, 1")
    A(f"s_add_u32 s{sT1}, s{sT1}, s{sOO}")
    A(f"s_add_u32 s{sT1}, s{sT1}, 16")
    A(f"s_lshl_b32 s{sT1}, s{sT1}, 5")
    A(f"s_add_u32 s{sT1}, s{sT1}, s{sH}")
    A(f"s_lshl_b32 s{sT1}, s{sT1}, 12")
    A(f"s_lshl_b32 s{sT2}, s{sP}, 11")
    A(f"s_add_u32 s{sT1}, s{sT1}, s{sT2}")
    A("v_mul_f32 v89, v105, v89")
    A("v_mul_f32 v93, v105, v93")
    for e in range(16):
        A(f"v_mul_f32 v{128 + e}, v89, v{128 + e}")
    for e in range(16):
        A(f"v_fmac_f32 v{128 + e}, v93, v{144 + e}")
    for e in range(8):
        A(f"v_cvt_pk_bf16_f32 v{144 + e}, v{128 + 2 * e}, v{128 + 2 * e + 1}")
    A(f"buffer_store_dwordx4 {vr(144, 4)}, v{t2}, {srd(SRD_O)}, s{sT1} offen{ofl}")
    A(f"buffer_store_dwordx4 {vr(148, 4)}, v{t2}, {srd(SRD_O)}, s{sT1} offen offset:1024{ofl}")
    A.ext(norm_store(2, 16, True))
    A.ext(norm_store(3, 48, True))
    gx = [i for i, x in enumerate(body) if "L1_tail" in x][0]
    errs += hazard.check(body[:gx + 1] + A.l[T0:T0 + 60], "exit")
    if OPT["diag"]:
        stamp(A)
        A("s_waitcnt vmcnt(0)")
        stamp(A)
        A("s_memrealtime s[94:95]")
        A("s_waitcnt lgkmcnt(0)")
        A("v_writelane_b32 v250, s92, 62")
        A("v_writelane_b32 v250, s94, 63")
        for i in range(stamp_n[0]):
            A(f"v_writelane_b32 v250, s{sST + 2 * i}, {50 + i}")
        A("v_writelane_b32 v250, s90, 32")
        A("v_writelane_b32 v251, s96, 32")
        A(f"s_lshl_b32 s{sT0}, s2, 2")
        A(f"s_add_u32 s{sT0}, s{sT0}, s{sW}")
        A(f"s_lshl_b32 s{sT0}, s{sT0}, 8")
        A(f"s_add_u32 s{sT0}, s{sT0}, {DIAG_OFF}")
        A(f"v_lshlrev_b32 v{t0}, 2, v0")
        A(f"buffer_store_dword v250, v{t0}, {srd(SRD_O)}, s{sT0} offen")
        A(f"s_add_u32 s{sT0}, s{sT0}, {1 << 19}")
        A(f"buffer_store_dword v251, v{t0}, {srd(SRD_O)}, s{sT0} offen")
    A.label("L1_end")
    A("s_endpgm")
    A.label("L1_redo")
    A(f"s_mov_b32 s{sREDO}, 1")
    A("s_waitcnt vmcnt(0) lgkmcnt(0)")
    A("s_barrier")
    for n in range(2 * DD):
        for p in P(n):
            A.ext(p)
    for t in range(5):
        A(f"v_mov_b32 v{vM + t}, 0xff800000")
    A(f"v_lshlrev_b32 v{t0}, 8, v{i16}")
    A(f"v_lshl_add_u32 v{t0}, v{g4}, 4, v{t0}")
    A(f"s_lshl_b32 s{sT1}, s{sP}, 7")
    A(f"v_add_u32 v{t0}, s{sT1}, v{t0}")
    A(f"v_xor_b32 v{t1}, 128, v{t0}")
    A(f"s_mov_b32 s{sT1}, 0")
    A.label("L1_mx")
    for kk in range(4):
        o = f" offset:64" if kk & 1 else ""
        A(f"buffer_load_dwordx4 {vr(136 + 4 * kk, 4)}, v{t0 + (kk >> 1)}, {srd(SRD_K)}, s{sT1} offen{o}")
    A("s_waitcnt vmcnt(0)")
    for kk in range(4):
        for t in range(5):
            C = "0" if kk == 0 else vr(16 + 4 * t, 4)
            A(f"{MF} {vr(16 + 4 * t, 4)}, {vr(136 + 4 * kk, 4)}, {vr(QV + 16 * t + 4 * kk, 4)}, {C}")
    A("s_nop 7")
    for t in range(5):
        A(f"v_max3_f32 v{vM + t}, v{vM + t}, v{16 + 4 * t}, v{17 + 4 * t}")
        A(f"v_max3_f32 v{vM + t}, v{vM + t}, v{18 + 4 * t}, v{19 + 4 * t}")
    A(f"s_add_u32 s{sT1}, s{sT1}, 4096")
    A(f"s_cmp_lt_u32 s{sT1}, 524288")
    A("s_cbranch_scc1 L1_mx")
    xlane5(A, "v_max_f32", vM, vM + 8)
    for t in range(5):
        for i in range(4):
            A(f"v_sub_f32 v{NEG + 4 * t + i}, 0, v{vM + t}")
    for i in range(180):
        A(f"v_accvgpr_write_b32 a{i}, 0")
    A.ext(loop_addr())
    loop_scalars(A)
    A("s_barrier")
    A.ext(k0reads)
    A("s_waitcnt lgkmcnt(0)")
    for kb in range(2):
        for kk in range(4):
            A.ext(qk0(kb, kk, True))
    A.ext(pro_rd)
    A("s_nop 7")
    A.ext(safe(sm0))
    A("s_branch L1_presm")
    return errs


def k2(A):
    DEP = 4
    SRD_A, SRD_WO, SRD_OUT = 4, 8, 12
    sW, sMT, sNT, sT0, sT1, sAS, sBS, sLD, sCNT = 16, 17, 18, 19, 20, 21, 22, 23, 24
    vA, vBD, vBR, t0, t1 = 2, 8, 9, 13, 14
    ACC2, ORING, WF = 16, 112, 208
    A.raw(".p2align 8")
    A.raw(".type oproj_kernel,@function")
    A.label("oproj_kernel")
    A(f"s_cmp_ge_u32 s2, {OPT['k2grid']}")
    A("s_cbranch_scc1 L2_end")
    A("s_load_dwordx4 s[32:35], s[0:1], 32")
    A("s_load_dwordx2 s[36:37], s[0:1], 56")
    if OPT["diag"]:
        A("s_memrealtime s[60:61]")
    A("v_lshrrev_b32 v1, 6, v0")
    A("v_and_b32 v0, 63, v0")
    A(f"v_readfirstlane_b32 s{sW}, v1")
    A("s_and_b32 s25, s2, 7")
    A("s_lshr_b32 s26, s2, 3")
    A(f"s_mul_i32 s{sNT}, s26, 43")
    A(f"s_lshr_b32 s{sNT}, s{sNT}, 7")
    A(f"s_mul_i32 s{sT0}, s{sNT}, 3")
    A(f"s_sub_u32 s{sT0}, s26, s{sT0}")
    A(f"s_mul_i32 s{sMT}, s25, 3")
    A(f"s_add_u32 s{sMT}, s{sMT}, s{sT0}")
    A(f"v_lshlrev_b32 v{vA}, 4, v0")
    for i in range(1, 6):
        A(f"v_add_u32 v{vA + i}, {i * 131072}, v{vA}")
    A(f"v_lshrrev_b32 v{t0}, 3, v0")
    A(f"v_mul_u32_u24 v{vBD}, 1152, v{t0}")
    A(f"v_lshrrev_b32 v{t0}, 4, v0")
    A(f"v_lshlrev_b32 v{t0}, 1, v{t0}")
    A(f"v_and_b32 v{t1}, 7, v0")
    A(f"v_xor_b32 v{t0}, v{t0}, v{t1}")
    A(f"v_lshl_add_u32 v{vBD}, v{t0}, 4, v{vBD}")
    A(f"v_lshrrev_b32 v{t0}, 2, v0")
    A(f"v_lshlrev_b32 v{vBR}, 7, v{t0}")
    A(f"v_bfe_u32 v{t0}, v0, 3, 2")
    A(f"v_lshl_add_u32 v{vBR}, v{t0}, 5, v{vBR}")
    A(f"v_and_b32 v{t0}, 3, v0")
    A(f"v_lshl_add_u32 v{vBR}, v{t0}, 3, v{vBR}")
    A(f"s_mul_i32 s{sLD}, s{sW}, {DEP * 4096}")
    A(f"v_add_u32 v{vBR}, s{sLD}, v{vBR}")
    for n in range(1, 4):
        A(f"v_xor_b32 v{vBR + n}, {32 * n}, v{vBR}")
    A("s_waitcnt lgkmcnt(0)")
    A(f"s_mov_b32 s{SRD_A}, s36")
    A(f"s_mov_b32 s{SRD_A + 1}, s37")
    A(f"s_mov_b32 s{SRD_A + 2}, {(DIAG_OFF + (2 << 20)) if OPT['diag'] else WS_O_BYTES}")
    A(f"s_mov_b32 s{SRD_A + 3}, 0x20000")
    A(f"s_mov_b32 s{SRD_WO}, s32")
    A(f"s_mov_b32 s{SRD_WO + 1}, s33")
    A(f"s_mov_b32 s{SRD_WO + 2}, {4096 * 1152}")
    A(f"s_mov_b32 s{SRD_WO + 3}, 0x20000")
    A(f"s_mov_b32 s{SRD_OUT}, s34")
    A(f"s_mov_b32 s{SRD_OUT + 1}, s35")
    A(f"s_mov_b32 s{SRD_OUT + 2}, {2304 * 1152}")
    A(f"s_mov_b32 s{SRD_OUT + 3}, 0x20000")
    A(f"s_mul_i32 s{sAS}, s{sMT}, 786432")
    A(f"s_lshl_b32 s{sT0}, s{sW}, 15")
    A(f"s_add_u32 s{sAS}, s{sAS}, s{sT0}")
    A(f"s_mul_i32 s{sBS}, s{sW}, {1024 * 1152}")
    A(f"s_lshl_b32 s{sT0}, s{sNT}, 7")
    A(f"s_add_u32 s{sBS}, s{sBS}, s{sT0}")

    def loads(d):
        o = []
        for i in range(4):
            o.append([f"s_add_u32 m0, s{sLD}, {d * 4096 + i * 1024}",
                      f"s_add_u32 s{sT0}, s{sBS}, {(32 * d + 8 * i) * 1152}",
                      f"buffer_load_dwordx4 v{vBD}, {srd(SRD_WO)}, s{sT0} offen lds"])
        off = f" offset:{d * 1024}" if d else ""
        for i in range(6):
            o.append([f"buffer_load_dwordx4 {vr(ORING + 24 * d + 4 * i, 4)}, v{vA + i}, {srd(SRD_A)}, s{sAS} offen{off}"])
        return o

    def wreads(d):
        b = WF + 16 * (d % 2)
        return [f"ds_read_b64_tr_b16 {vr(b + 4 * n + 2 * e, 2)}, v{vBR + n} offset:{d * 4096 + e * 2048}"
                for n in range(4) for e in range(2)]

    zi = 0
    for d in range(DEP - 1):
        for g in loads(d):
            A.ext(g)
            for _ in range(4):
                if zi < 96:
                    A(f"v_mov_b32 v{ACC2 + zi}, 0")
                    zi += 1
    assert zi == 96
    A(f"s_mov_b32 s{sCNT}, {32 // DEP}")
    A(f"s_waitcnt vmcnt({10 * (DEP - 2) + 6})")
    if OPT["diag"]:
        A("s_memrealtime s[62:63]")
    A.ext(wreads(0))
    A.label("L2_loop")
    body = []
    Bd = body.append
    for d in range(DEP):
        Bd(f"s_waitcnt vmcnt({10 * (DEP - 3) + 6})")
        body += wreads((d + 1) % DEP)
        Bd("s_waitcnt lgkmcnt(8)")
        b = WF + 16 * (d % 2)
        ld = loads((d - 1) % DEP)
        k = 0
        for n in range(4):
            for i in range(6):
                acc = vr(ACC2 + 4 * (6 * n + i), 4)
                Bd(f"{MF} {acc}, {vr(b + 4 * n, 4)}, {vr(ORING + 24 * d + 4 * i, 4)}, {acc}")
                k += 1
                if ld and k % 2 == 0:
                    body += ld.pop(0)
        if d == 0:
            Bd(f"s_add_u32 s{sAS}, s{sAS}, {DEP * 1024}")
            Bd(f"s_add_u32 s{sBS}, s{sBS}, {DEP * 32 * 1152}")
            Bd(f"s_cmp_eq_u32 s{sCNT}, 1")
            Bd(f"s_cselect_b32 s{sAS}, 0x40000000, s{sAS}")
            Bd(f"s_cselect_b32 s{sBS}, 0x40000000, s{sBS}")
    Bd(f"s_sub_u32 s{sCNT}, s{sCNT}, 1")
    Bd(f"s_cmp_lg_u32 s{sCNT}, 0")
    A.ext(body)
    A("s_cbranch_scc1 L2_loop")
    errs = hazard.check(body + body, "k2loop")
    if OPT["diag"]:
        A("s_memrealtime s[64:65]")
    A("s_waitcnt vmcnt(0) lgkmcnt(0)")
    A("s_barrier")
    A(f"s_mul_i32 s{sT0}, s{sW}, 24576")
    A(f"v_lshl_add_u32 v{t0}, v0, 4, s{sT0}")
    A("s_nop 7")
    for q in range(24):
        A(f"ds_write_b128 v{t0}, {vr(ACC2 + 4 * q, 4)} offset:{q * 1024}")
    A(f"v_and_b32 v{t0}, 15, v0")
    A(f"v_lshlrev_b32 v{t0}, 4, v{t0}")
    A(f"v_bfe_u32 v{t1}, v0, 4, 1")
    A(f"v_lshl_add_u32 v{t0}, v{t1}, 9, v{t0}")
    A(f"v_lshrrev_b32 v{t1}, 5, v0")
    A(f"v_lshl_add_u32 v{t0}, v{t1}, 10, v{t0}")
    A(f"s_mul_i32 s{sT0}, s{sW}, {6 * 1024}")
    A(f"v_add_u32 v{t0}, s{sT0}, v{t0}")
    A(f"v_add_u32 v{t1}, 49152, v{t0}")
    A("s_waitcnt lgkmcnt(0)")
    A("s_barrier")
    for w in range(4):
        for x in range(3):
            for q in range(2):
                A(f"ds_read_b128 {vr(ORING + 24 * w + 8 * x + 4 * q, 4)}, v{t0 if w < 2 else t1} offset:{(w % 2) * 24576 + x * 2048 + q * 256}")
        if w % 2 == 1:
            A("s_waitcnt lgkmcnt(0)")
    for w in range(1, 4):
        for e in range(24):
            A(f"v_add_f32 v{ORING + e}, v{ORING + e}, v{ORING + 24 * w + e}")
    for e in range(12):
        A(f"v_cvt_pk_bf16_f32 v{ACC2 + e}, v{ORING + 2 * e}, v{ORING + 2 * e + 1}")
    A(f"v_and_b32 v{t0}, 15, v0")
    A(f"v_lshrrev_b32 v{t1}, 5, v0")
    A(f"v_lshl_add_u32 v{t0}, v{t1}, 4, v{t0}")
    A(f"v_mul_u32_u24 v{t0}, 1152, v{t0}")
    A(f"v_bfe_u32 v{t1}, v0, 4, 1")
    A(f"v_lshl_add_u32 v{t0}, v{t1}, 4, v{t0}")
    A(f"s_mul_i32 s{sAS}, s{sMT}, {96 * 1152}")
    A(f"s_lshl_b32 s{sT0}, s{sNT}, 7")
    A(f"s_add_u32 s{sAS}, s{sAS}, s{sT0}")
    A(f"s_lshl_b32 s{sT0}, s{sW}, 5")
    A(f"s_add_u32 s{sAS}, s{sAS}, s{sT0}")
    for x in range(3):
        A(f"buffer_store_dwordx4 {vr(ACC2 + 4 * x, 4)}, v{t0}, {srd(SRD_OUT)}, s{sAS} offen")
        A(f"s_add_u32 s{sAS}, s{sAS}, {32 * 1152}")
    if OPT["diag"]:
        A("s_waitcnt vmcnt(0)")
        A("s_memrealtime s[66:67]")
        A("s_waitcnt lgkmcnt(0)")
        for i in range(4):
            A(f"v_writelane_b32 v250, s{60 + 2 * i}, {i}")
        A(f"s_lshl_b32 s{sT0}, s2, 2")
        A(f"s_add_u32 s{sT0}, s{sT0}, s{sW}")
        A(f"s_lshl_b32 s{sT0}, s{sT0}, 8")
        A(f"s_add_u32 s{sT0}, s{sT0}, {DIAG_OFF + (1 << 20)}")
        A(f"v_lshlrev_b32 v{t0}, 2, v0")
        A(f"buffer_store_dword v250, v{t0}, {srd(SRD_A)}, s{sT0} offen")
    A.label("L2_end")
    A("s_endpgm")
    return errs


def desc(name, vg, acc, sg=102):
    return f""".p2align 6
.amdhsa_kernel {name}
  .amdhsa_next_free_vgpr {vg}
  .amdhsa_next_free_sgpr {sg}
  .amdhsa_accum_offset {acc}
  .amdhsa_group_segment_fixed_size 0
  .amdhsa_kernarg_size 64
  .amdhsa_user_sgpr_count 2
  .amdhsa_user_sgpr_kernarg_segment_ptr 1
  .amdhsa_system_sgpr_workgroup_id_x 1
.end_amdhsa_kernel
"""


def main():
    A = Asm()
    e = k1(A)
    e += k2(A)
    A.label("L_code_end")
    e += hazard.check(A.l, "linear")
    for x in e:
        print(x, file=sys.stderr)
    hdr = f"""; Fused MHA block (q-proj + attention) and output projection, gfx950. Generated by a script.
; @launch kernel=attn_kernel grid=(256,1,1) block=(256,1,1) lds={LDS1}
; @launch kernel=oproj_kernel grid=(216,1,1) block=(256,1,1) lds=98304
.amdgcn_target "amdgcn-amd-amdhsa--gfx950"
.text
.globl attn_kernel
.globl oproj_kernel
"""
    txt = hdr + "\n".join(A.l) + "\n.section .rodata,\"a\"\n" + desc("attn_kernel", 512, 256) + desc("oproj_kernel", 256, 256)
    open(sys.argv[1], "w").write(txt)
    if e and not OPT["nodma"]:
        sys.exit(1)


main()
```

```python
import math
import struct
import sys

import hazard

OPT = dict(diag=0, L=6, W=2, xmap=0, nodma=0, nobar=0, kvflag=1, ostflag=2, wopf=2, wsh=8,
           k2grid=216, LQ=6, dmastep=9, thr=40, show=0, qstep=5, up=2, qpflag=0, dbg=0, cpf=1, nph=3, k2rot=1, D=3, pf=0, stg=0, pfa=4, kvs=0, rot=0, k2mul=1, fuse=1, dst=1, DO=4, oflag=2, early=5)
for a in sys.argv[2:]:
    k, v = a.split("=")
    OPT[k] = int(v)
FLAGS = ['', ' nt', ' sc1', ' sc0 sc1', ' sc1 nt', ' sc0 sc1 nt', ' sc0']

BLK = 1056
HS = 16 * BLK
DD = OPT['D']
NS = 2 * DD + 1
TS = 61 % NS
XB = 1088
WOFF, XEOFF, XOFF = 0, 17408, 21504
WG0 = 4 * XB + OPT["wsh"]
WG1 = 8720
STSZ = 54272
LDS1 = 163840
WS_O_BYTES = 144 * 32 * 4096
DIAG_OFF = 64 << 20


def f32bits(x):
    return struct.unpack("<I", struct.pack("<f", x))[0]


QSCALE = f32bits(128 ** -0.5 * math.log2(math.e))


class Asm:
    def __init__(self):
        self.l = []

    def __call__(self, s):
        if " | buffer_store" in s:
            for x in s.split(" | "):
                self.l.append("    " + x)
        else:
            self.l.append("    " + s)

    def label(self, s):
        self.l.append(s + ":")

    def raw(self, s):
        self.l.append(s)

    def ext(self, lst):
        for s in lst:
            self(s)


def vr(a, n):
    return f"v[{a}:{a + n - 1}]"


def ar(a, n):
    return f"a[{a}:{a + n - 1}]"


def srd(n):
    return f"s[{n}:{n + 3}]"


MF = "v_mfma_f32_16x16x32_bf16"

SRD_X, SRD_W, SRD_K, SRD_V, SRD_O, SRD_P = 4, 8, 12, 16, 20, 84
sW, sP, sB, sH = 24, 25, 27, 28
sXD, sXS, sWD, sWS, sT0, sT1 = 42, 43, 44, 45, 46, 47
sXED, sXES = 48, 55
sCNT = 49
sKD, sVD, sKVS, sKN, sVN = 50, 51, 52, 53, 54
sSC = 56
sT2 = 57
sWP = 30
sG0 = 31
sDV = 3
sOO = 58
sREDO = 59
sST = 60
sWOF = 88
sCX, sCW = 89, 100
sPC = 98
sXSc, sWSc, sXEc = 29, 26, 101

vXD, vXDE, vWD, vCW, vV4 = 2, 4, 5, 6, 8
vQA = 160
ACC = 16
SB = [16, 48]
SE = 80
NEG = 88
QV = 160
vKB, vVB = 240, 244
vK, vV = 108, 112
vM = 120
vDUM = 252
OA, LA, ONES, RING = 0, 160, 180, 192
XF = [184, 204]
WRING = 224


def Sreg(t, par):
    return SE if t == 4 else SB[par] + 8 * t


stamp_n = [0]


def stamp_txt():
    if OPT["diag"]:
        n = stamp_n[0]
        stamp_n[0] += 1
        assert n < 12
        return [f"s_memtime s[{sST + 2 * n}:{sST + 2 * n + 1}]"]
    return []


def stamp(A):
    A.ext(stamp_txt())


def is_ds(x):
    return x.startswith("ds_")


def add_waits(seq, cyclic, W=1, nfr=None):
    rep = 2 if cyclic else 1
    out = []
    issued = 0
    done = 0
    last = {}
    for it in range(rep):
        out = []
        for e in seq:
            if e[0] == "x":
                if is_ds(e[1]):
                    issued += 1
                    if e[2] is not None:
                        last[e[2]] = issued
                if "lgkmcnt(0)" in e[1] or e[1] == "VMW":
                    done = issued
                out.append(e[1])
            else:
                need = 0
                for f in e[2]:
                    if f in last:
                        need = max(need, last[f])
                if need > done:
                    tgt = need
                    for f in e[3] if len(e) > 3 else []:
                        if f in last and last[f] > need - 40:
                            tgt = max(tgt, last[f])
                    n = issued - tgt
                    assert n <= 15, n
                    out.append(f"s_waitcnt lgkmcnt({n})")
                    done = tgt
                out.append(e[1])
    return out


def kv_piece(dst, srdn, i):
    o = f" offset:{i * 1024}" if i else ""
    return [f"s_add_u32 m0, s{dst}, {i * (BLK - 1024)}",
            f"buffer_load_dwordx4 v{vV4}, {srd(srdn)}, s{sKVS} offen{o}{FLAGS[OPT['kvflag']]} lds"]


def item_piece(n, i):
    o = f" offset:{i * 1024}" if i else ""
    return [f"s_add_u32 m0, s{sWOF}, {(n % NS) * HS + i * (BLK - 1024)}",
            (f"s_add_u32 s{sT0}, s{sG0}, {(n // 2) * 16384}" if OPT["rot"] else f"s_mov_b32 s{sT0}, {(n // 2) * 16384}"),
            f"buffer_load_dwordx4 v{vV4}, {srd(SRD_V if n % 2 else SRD_K)}, s{sT0} offen{o}{FLAGS[OPT['kvflag']]} lds"]


def adv(r, tmp=None):
    tmp = sT2 if tmp is None else tmp
    return [f"s_add_u32 s{r}, s{r}, {2 * HS}", f"s_sub_u32 s{tmp}, s{r}, {NS * HS}", f"s_min_u32 s{r}, s{r}, s{tmp}"]


def kread(dst, base, kb, kk):
    return f"ds_read_b128 {dst}, v{base + (kk >> 1)} offset:{kb * 256 + (kk & 1) * 64}"


def build_loop():
    err = None
    for lo in list(range(78, 153)) + list(range(0, 78)):
        try:
            return build_loop_at(lo)
        except AssertionError as e:
            err = e
    raise err


def build_loop_at(lo):
    L, W = OPT["L"], OPT["W"]
    NF = 32
    mf = []
    qk_end = {}
    pv_first = {}
    phase2 = {}
    step_start = {}
    for j in range(2):
        jn = 1 - j
        step_start[j] = len(mf)
        tiles = range(5) if jn == 0 else range(4)
        for kb in range(2):
            for kk in range(4):
                f = 16 * j + kb * 4 + kk
                for t in tiles:
                    S = Sreg(t, jn) + 4 * kb
                    C = vr(NEG + 4 * t, 4) if kk == 0 else vr(S, 4)
                    mf.append(dict(t=f"{MF} {vr(S, 4)}, {ar(RING + 4 * (f % 16), 4)}, {vr(QV + 16 * t + 4 * kk, 4)}, {C}", f=f))
                    qk_end[(jn, t, kb)] = len(mf) - 1
        tiles = list(range(5) if j == 0 else range(4))
        phase2[j] = len(mf)
        for dt in range(8):
            f = 16 * j + 8 + dt
            for t in tiles:
                O = ar(OA + 32 * t + 4 * dt, 4)
                mf.append(dict(t=f"{MF} {O}, {ar(RING + 4 * (f % 16), 4)}, {vr(Sreg(t, j), 4)}, {O}", f=f))
                pv_first.setdefault((j, t), len(mf) - 1)
            x = dt - 2
            if 0 <= x < len(tiles):
                Lr = ar(LA + 4 * x, 4)
                mf.append(dict(t=f"{MF} {Lr}, {ar(ONES, 4)}, {vr(Sreg(x, j), 4)}, {Lr}", f=f))
    N = len(mf)
    assert N == 153
    first_use, last_use = {}, {}
    for i, m in enumerate(mf):
        first_use.setdefault(m["f"], i)
        last_use[m["f"]] = i
    cap = [2] * N
    for f in range(NF):
        if f % W == 0:
            cap[(first_use[f] - 1) % N] -= 1
    gX = step_start[1] - 1
    cap[gX] -= 1
    cap[N - 1] -= 1
    ecap = [False] * N
    for f in range(NF):
        a, b = first_use[f], last_use[f]
        n = b - a + 1
        pos = {4: [0, 2], 5: [0, 2, 3], 6: [0, 2, 4]}[n]
        for p in pos:
            ecap[a + p] = True
    gaps = [[] for _ in range(N)]

    def frag_reads(f):
        j, r = divmod(f, 16)
        dst = RING + 4 * (f % 16)
        if r < 8:
            kb, kk = divmod(r, 4)
            return [kread(ar(dst, 4), vK + 2 * (1 - j), kb, kk)]
        dt = r - 8
        return [f"ds_read_b64_tr_b16 {ar(dst + 2 * e, 2)}, v{vV + j} offset:{e * 256 + dt * 32}" for e in range(2)]

    used = [0] * N
    nvm = 8 + (1 if OPT["cpf"] else 0) + (1 if OPT["wopf"] == 2 else 0)
    gB = phase2[0] + 1
    gaps[gB] += [(f"s_waitcnt vmcnt({(DD - 2) * nvm})", "", None), ("s_barrier", "", None)]
    used[gB] = 2
    assert not ecap[gB] and cap[gB] == 2
    order = []
    for j in (0, 1):
        tiles = range(5) if j == 0 else range(4)
        for kb in range(2):
            for t in tiles:
                for r in range(4):
                    order.append((j, t, kb, r))

    def avail(j, t, kb):
        e = qk_end[(j, t, kb)] + 4
        return e - N if j == 0 else e
    cur = -10 ** 9
    for rnd in range(3):
        place = {}
        for (j, t, kb, r) in order:
            g = max(cur + 1, avail(j, t, kb))
            while not (ecap[g % N] and cap[g % N] == 2):
                g += 1
            place[(j, t, kb, r)] = g
            cur = g
        cur -= N
    for key, g in place.items():
        j, t, kb, r = key
        S = Sreg(t, j) + 4 * kb + r
        gaps[g % N].append((f"v_exp_f32 v{S}, v{S}", "n" if g < 0 else "", ("sm", j)))
        assert used[g % N] == 0
        used[g % N] = 2
    singles = []
    seqn = [0]

    def add(tg, prio, text, kind=None, chain=None):
        singles.append(dict(g=tg, p=prio, s=seqn[0], t=text, k=kind, chain=chain))
        seqn[0] += 1

    for (j, t, kb, r), g in place.items():
        if r % 2 == 1:
            S = Sreg(t, j)
            add(g + 1, 1, f"v_cvt_pk_bf16_f32 v{S + 2 * kb + r // 2}, v{S + 4 * kb + r - 1}, v{S + 4 * kb + r}",
                kind=("cvt", j, t), chain="cvt")
    tgt_rd = {}
    for f in range(NF):
        tg = first_use[(f - L) % NF] + (0 if f - L >= 0 else -N)
        tgt_rd[f] = tg
        for x in frag_reads(f):
            add(tg, 0, x, kind=("rd", f), chain="rd")
    add(tgt_rd[7], 0, f"v_add_u32 v{vK + 2}, s{sKN}, v{vKB + 2}", chain="rd", kind="k1")
    add(tgt_rd[7], 0, f"v_add_u32 v{vK + 3}, s{sKN}, v{vKB + 3}", chain="rd", kind="k1")
    add(tgt_rd[15], 0, f"v_add_u32 v{vV}, s{sVN}, v{vVB}", chain="rd", kind="v0")
    add(tgt_rd[23], 0, f"v_add_u32 v{vK}, s{sKN}, v{vKB}", chain="rd", kind="k0")
    add(tgt_rd[23], 0, f"v_add_u32 v{vK + 1}, s{sKN}, v{vKB + 1}", chain="rd", kind="k0")
    add(tgt_rd[31], 0, f"v_add_u32 v{vV + 1}, s{sDV}, v{vV}", chain="rd", kind="v1")
    g = gB + 1
    st = OPT["dmastep"]
    for i in range(4):
        pc = kv_piece(sVD, SRD_V, i)
        add(g, 2, pc[0], kind="m0", chain="dma")
        add(g + 1, 2, pc[1], kind="dma", chain="dma")
        g += st
    g -= st - 2
    add(g, 3, f"s_add_u32 s{sVD}, s{sKN}, s{sWOF}", chain="dma")
    for x in adv(sKN):
        add(g, 3, x, chain="dma", kind="advk")
    g += st - 2
    for i in range(4):
        pc = kv_piece(sKD, SRD_K, i)
        add(g, 2, pc[0], kind="m0", chain="dma")
        add(g + 1, 2, pc[1], kind="dma", chain="dma")
        g += st
    g -= st - 2
    if OPT["cpf"]:
        add(80, 3, f"global_load_dword v{vDUM}, v{vCW}, s[{sPC}:{sPC + 1}]", chain="misc")
    if OPT["wopf"] == 2:
        add(84, 3, f"buffer_load_dword v{vDUM}, v7, {srd(SRD_P)}, s{sWP} offen", chain="misc")
        add(84, 3, f"s_add_u32 s{sWP}, s{sWP}, 160", chain="misc")
    for x in adv(sKD):
        add(g, 3, x, chain="dma")
    add(g, 3, f"s_add_u32 s{sKVS}, s{sKVS}, 16384", chain="dma")
    if OPT["rot"]:
        add(g, 3, f"s_and_b32 s{sKVS}, s{sKVS}, 0x7ffff", chain="dma")
        add(g, 3, f"s_cmp_lt_u32 s{sCNT}, {DD} | s_cselect_b32 s{sKVS}, 0x100000, s{sKVS}", chain="dma")
    for x in adv(sVN, sT1):
        add(78, 3, x, chain="misc", kind="advv")
    for x in singles:
        t2_ = (x["g"] - lo) % N + lo
        x["sh"] = x["g"] - t2_
        x["g"] = t2_
    chains = {}
    for x in sorted(singles, key=lambda x: (x["g"], x["s"])):
        chains.setdefault(x["chain"], []).append(x)
    placed = []
    lastg = {}
    gS = gX - 1
    while used[gS] or cap[gS] < 1:
        gS -= 1
    gaps[gS] += [(f"s_sub_u32 s{sCNT}, s{sCNT}, 1", "", None)]
    used[gS] = 1
    g = lo
    while any(chains.values()):
        while used[g % N] < cap[g % N]:
            cands = []
            for c, q in chains.items():
                if q and q[0]["g"] <= g:
                    if q[0]["k"] == "dma" and lastg.get(c) == g:
                        continue
                    if gS <= g % N <= gX and q[0]["t"].startswith("s_"):
                        continue
                    cands.append(q[0])
            if not cands:
                break
            x = min(cands, key=lambda x: (x["p"] - (g - x["g"]) / 6.0, x["g"], x["s"]))
            chains[x["chain"]].pop(0)
            lastg[x["chain"]] = g
            x["at"] = g + x["sh"]
            placed.append(x)
            used[g % N] += 1
            gaps[g % N].append((x["t"], "n" if x["at"] < 0 else "", x["k"]))
        g += 1
        assert g <= lo + N, [q[0] for q in chains.values() if q]
    gaps[gX].append(("s_cbranch_scc1 L1_tail", "", None))
    rd_at, first_rd, at = {}, {}, {}
    for x in placed:
        if isinstance(x["k"], tuple) and x["k"][0] == "rd":
            rd_at[x["k"][1]] = x["at"]
            first_rd.setdefault(x["k"][1], x["at"])
        elif isinstance(x["k"], tuple) and x["k"][0] == "cvt":
            _, j, t = x["k"]
            assert x["at"] <= pv_first[(j, t)] - 2, ("cvt late", x, pv_first[(j, t)])
        else:
            at.setdefault(x["k"], []).append(x["at"])
        assert x["at"] < N, x
    for f in range(NF):
        lead = first_use[f - (f % W)] - rd_at[f]
        assert lead >= 8, ("short lead", f, lead)
    assert first_rd[16] > gB
    assert max(at["k1"]) < min(at["advk"]) and max(at["advk"]) < min(at["k0"]), at
    assert max(at["v0"]) < min(at["advv"]), at
    seq, pro, tail = [], [], []
    for i, m in enumerate(mf):
        f = m["f"]
        grp = [(f - f % W + k) % NF for k in range(W)]
        seq.append(("m", m["t"], [f], grp))
        for x in gaps[i]:
            isrd = isinstance(x[2], tuple) and x[2][0] == "rd"
            seq.append(("x", x[0], x[2][1] if isrd else None))
            if x[1] == "n":
                pro.append(x[0])
            if i > gX and x[1] != "n" and isinstance(x[2], tuple):
                if (x[2][0] in ("sm", "cvt") and x[2][1] == 1) or (isrd and x[2][1] >= 24):
                    tail.append(x[0])
    body = add_waits(seq, True)
    body = [y for x in body for y in x.split(" | ")]
    if OPT["show"]:
        print("gap use:", "".join(str(u) for u in used), file=sys.stderr)
        print("instr count", len(body), "waits", sum("lgkmcnt" in x for x in body), "bar", gB, "dma", at["dma"], file=sys.stderr)
        print("pro", len(pro), "tail", len(tail), "lo", lo, file=sys.stderr)

    def keep(x):
        if OPT["nodma"] and (x.startswith("buffer_load") or x.startswith("s_add_u32 m0") or "vmcnt" in x):
            return False
        if OPT["nobar"] and x.startswith("s_barrier"):
            return False
        return True
    return [x for x in body if keep(x)], pro, tail


def cursor(r):
    return [f"s_add_u32 s{r}, s{r}, 128", f"s_sub_u32 s{sT2}, s{r}, 1152", f"s_min_u32 s{r}, s{r}, s{sT2}"]


def x_pieces(c):
    st = STG[c] * STSZ
    p = []
    for i in range(8):
        pre = [f"s_add_u32 s{sXSc}, s{sXS}, s{sCX}"] + cursor(sCX) if i == 0 else []
        p.append(pre + [f"s_add_u32 m0, s{sXD}, {st + i * 1024}",
                        (f"s_add_u32 s{sT0}, s{sXSc}, {i * 9216}" if i else "s_nop 0"),
                        f"buffer_load_dwordx4 v{vXD + (i & 1)}, {srd(SRD_X)}, s{sT0 if i else sXSc} offen{FLAGS[OPT['qpflag']]} lds"])
    return p


def wg_pieces(c):
    st = STG[c] * STSZ
    p = []
    for r in range(4):
        pre = [f"s_lshl_b32 s{sWSc}, s{sCW}, 12", f"s_add_u32 s{sWSc}, s{sWSc}, s{sWS}",
               f"s_add_u32 s{sXEc}, s{sXES}, s{sCW}"] + cursor(sCW) if r == 0 else []
        p.append(pre + [f"s_add_u32 m0, s{sWD}, {st + WOFF + r * XB}",
                        (f"s_add_u32 s{sT0}, s{sWSc}, {r * 8192}" if r else "s_nop 0"),
                        f"buffer_load_dwordx4 v{vWD}, {srd(SRD_W)}, s{sT0 if r else sWSc} offen{FLAGS[OPT['qpflag']]} lds"])
    p.append([f"s_add_u32 m0, s{sXED}, {st}", "s_nop 0",
              f"buffer_load_dwordx4 v{vXDE}, {srd(SRD_X)}, s{sXEc} offen{FLAGS[OPT['qpflag']]} lds"])
    return p


STG = [[0, 2, 1, 0, 2, 1, 2, 1, 2], [0, 1, 2, 0, 1, 2, 0, 1, 2]][OPT['stg']]


def build_qproj(extras, nup, tail_items):
    LQ = OPT["LQ"]
    mf = []
    first_use, last_use = {}, {}
    for s in range(18):
        for sl in range(8):
            f = ("w", 8 * s + sl)
            tiles = range(5) if sl < 4 else range(4)
            for t in tiles:
                a = ACC + 32 * t + 4 * sl
                C = "0" if s == 0 else vr(a, 4)
                txt = f"{MF} {vr(a, 4)}, {ar(WRING + 4 * sl, 4)}, {ar(XF[s % 2] + 4 * t, 4)}, {C}"
                mf.append((txt, [f, ("x", s, t)]))
                for q in (f, ("x", s, t)):
                    first_use.setdefault(q, len(mf) - 1)
                    last_use[q] = len(mf) - 1
    N = len(mf)
    gaps = [[] for _ in range(N + 1)]

    def st_of(c):
        return (6, 0) if STG[c] == 2 else (0, STG[c] * STSZ)

    def wread(n):
        s, sl = divmod(n, 8)
        c, ks = divmod(s, 2)
        rb, st = st_of(c)
        kk, u = divmod(sl, 2)
        base = vQA + rb + (4 if kk < 2 else 5)
        return [(f"ds_read_b64_tr_b16 {ar(WRING + 4 * sl + 2 * e, 2)}, v{base} offset:{st + (kk & 1) * 64 + 8 * u + e * 256 + ks * 512}",
                 ("w", n)) for e in range(2)]

    def xread(s, t):
        c, ks = divmod(s, 2)
        rb, st = st_of(c)
        if t < 4:
            return (f"ds_read_b128 {ar(XF[s % 2] + 4 * t, 4)}, v{vQA + rb + ks} offset:{st + t * 2048}", ("x", s, t))
        return (f"ds_read_b128 {ar(XF[s % 2] + 16, 4)}, v{vQA + rb + 2 + ks} offset:{st}", ("x", s, t))

    bar = {0: -1, 9: N}
    for c in range(1, 9):
        bar[c] = last_use[("w", 16 * c - LQ + 1)]
    items = []
    for n in range(144):
        c = n // 16
        e = last_use[("w", n - 8)] if n >= 8 else -1
        tg = first_use[("w", n - LQ)] if n >= LQ else -1
        tg = max(tg, e, bar[c])
        for x in wread(n):
            items.append((tg, x))
    rd = sorted(items, key=lambda z: z[0])
    xi = []
    for s in range(18):
        c, ks = divmod(s, 2)
        for t in range(5):
            e = last_use[("x", s - 2, t)] if s >= 2 else -1
            tg = max(e, bar[c])
            if s == 1:
                tg = 0
            xi.append((tg, xread(s, t)))
    allrd = sorted([(tg, 0, i, x) for i, (tg, x) in enumerate(xi)] + [(tg, 1, i, x) for i, (tg, x) in enumerate(rd)],
                   key=lambda z: (z[0], z[1], z[2]))
    used = [0] * (N + 2)
    xdone = {}
    g = -1
    for tg, _, _, x in allrd:
        g = max(g, tg)
        if g < 0 and used[0] >= 9:
            g = 0
        while g >= 0 and used[g + 1] >= 2:
            g += 1
        gaps[g + 1].append(("x", x[0], x[1]))
        used[g + 1] += 1
        if x[1][0] == "x":
            xdone[x[1][1]] = g
        cc = x[1][1] // 16 if x[1][0] == "w" else x[1][1] // 2
        assert g < bar[cc + 1] - 2, (x, g, bar[cc + 1])
    last_rd = g
    groups = []
    for c in range(nup, 9):
        prev = [p for p in range(c) if STG[p] == STG[c]]
        ew = bar[prev[-1] + 1] if prev else -1
        ex = xdone[2 * prev[-1] + 1] + 10 if prev else -1
        groups.append((ew, 0, c, wg_pieces(c), ("W", c), None))
        groups.append((ex, 2, c, x_pieces(c), ("X", c), prev[-1] if prev else None))
    for c, ps in extras.items():
        groups.append((bar[c], 1, c, ps, ("E", c), None))
    groups.sort(key=lambda z: (z[0], z[2] if z[0] < 0 else 0, z[1]))
    for kind in "WX":
        cs = [z[4][1] for z in groups if z[4][0] == kind]
        assert cs == sorted(cs), cs
    issued = []
    for c in range(nup):
        issued += [(("W", c), -1)] * 5 + [(("X", c), -1)] * 8
        if c == 0 and OPT["pf"]:
            issued += [(("P", 0), -1)] * 2
    g = 0
    for tg, _, _, ps, tag, prev in groups:
        for i, p in enumerate(ps):
            late = g - tg
            g = max(g, tg)
            g0 = g
            if i == 0 and prev is not None:
                while used[g + 1] >= 1:
                    g += 1
                gaps[g + 1].append(("xw", ("x", 2 * prev + 1)))
                used[g + 1] += 2
            for ins in p[:-1]:
                if ins == "s_nop 0":
                    continue
                while used[g + 1] >= 2:
                    g += 1
                gaps[g + 1].append(("x", ins, None))
                used[g + 1] += 1
            g += 1
            while used[g + 1] >= 2:
                g += 1
            assert g < N - 30, (tag, g)
            gaps[g + 1].append(("x", p[-1], None))
            used[g + 1] = 2
            issued.append((tag, g))
            g = max(g + 1, g0 + (OPT["qstep"] if late < 30 else 2))
    vm_at = {}
    for c in range(1, 9):
        before = [t for t, gg in issued if gg < bar[c]]
        for t, gg in issued:
            if t in (("W", c), ("X", c)):
                assert gg < bar[c] - 30, (t, gg, bar[c])
        lastneed = max(i for i, t in enumerate(before) if t in (("W", c), ("X", c)))
        vm_at[c] = len(before) - 1 - lastneed
    if OPT["show"]:
        print("bar", bar, "vm", vm_at, "issue", [(t[0] + str(t[1]), g) for t, g in issued if g >= 0], "lastrd", last_rd - (N - 36), file=sys.stderr)
    seq = []
    tf = list(tail_items)
    for i in range(N + 1):
        if i > 0:
            seq.append(("m", mf[i - 1][0], mf[i - 1][1]))
        for c in range(1, 9):
            if bar[c] == i - 1:
                seq.append(("x", f"s_waitcnt vmcnt({vm_at[c]}) lgkmcnt(0)", None))
                seq.append(("x", "s_barrier", None))
                if OPT["diag"]:
                    seq.append(("x", f"v_writelane_b32 v250, s90, {40 + c}", None))
                    seq.append(("x", "s_memtime s[90:91]", None))
        for x in gaps[i]:
            if x[0] == "xw":
                seq.append(("m", "s_nop 0", [("x", x[1][1], t) for t in range(5)]))
            else:
                seq.append(x)
        while tf and tf[0][0] <= i - 1 - (N - 36):
            seq.append(("x", tf.pop(0)[1], None))
    assert not tf
    return add_waits(seq, False), [t for t, _ in issued]


def p3(A, rest):
    DW, DO = 8, OPT["DO"]
    SRD_OUT, SRD_D = SRD_X, SRD_W
    sMT, sNT, sAS, sBS, sLD, sU, sSP = sXD, sXS, sWD, sWS, sXED, sXES, sCNT
    vA, vBD, vBR, u0, u1 = 240, 246, 104, 247, 248
    ACC2, WF = 160, 112
    ORING = 0
    Z = Asm()
    Z("s_load_dwordx4 s[32:35], s[0:1], 40")
    Z(f"s_lshr_b32 s{sU}, s2, 3")
    Z(f"s_mul_i32 s{sNT}, s{sU}, 43")
    Z(f"s_lshr_b32 s{sNT}, s{sNT}, 7")
    Z(f"s_mul_i32 s{sMT}, s{sNT}, 3")
    Z(f"s_sub_u32 s{sMT}, s{sU}, s{sMT}")
    Z(f"s_and_b32 s{sU}, s2, 7")
    Z(f"s_mul_i32 s{sU}, s{sU}, 3")
    Z(f"s_add_u32 s{sMT}, s{sMT}, s{sU}")
    Z(f"v_lshrrev_b32 v{u0}, 3, v0")
    Z(f"v_mul_u32_u24 v{vBD}, 1152, v{u0}")
    Z(f"v_lshrrev_b32 v{u0}, 4, v0")
    Z(f"v_lshlrev_b32 v{u0}, 1, v{u0}")
    Z(f"v_and_b32 v{u1}, 7, v0")
    Z(f"v_xor_b32 v{u0}, v{u0}, v{u1}")
    Z(f"v_lshl_add_u32 v{vBD}, v{u0}, 4, v{vBD}")
    Z(f"s_lshl_b32 s{sLD}, s{sW}, 12")
    Z(f"s_mul_i32 s{sBS}, s{sW}, {1024 * 1152}")
    Z(f"s_lshl_b32 s{sU}, s{sNT}, 7")
    Z(f"s_add_u32 s{sBS}, s{sBS}, s{sU}")
    Z("s_cmp_ge_u32 s2, 216")
    Z(f"s_cselect_b32 s{sBS}, 0x40000000, s{sBS}")
    A.ext([x.strip() for x in Z.l])

    def wload(s):
        d = s % DW
        return [[f"s_add_u32 m0, s{sLD}, {d * 16384 + i * 1024}",
                 f"s_add_u32 s{sU}, s{sBS}, {(32 * s + 8 * i) * 1152}",
                 f"buffer_load_dwordx4 v{vBD}, {srd(SRD_P)}, s{sU} offen lds"] for i in range(4)]

    def oload(s):
        d = s % DO
        off = f" offset:{(s % 4) * 1024}" if s % 4 else ""
        o = []
        for i in range(6):
            pre = [f"s_add_u32 s{sAS}, s{sAS}, 4096"] if (i == 0 and s % 4 == 0 and s) else []
            o.append(pre + [f"buffer_load_dwordx4 {ar(ORING + 24 * d + 4 * i, 4)}, v{vA + i}, {srd(SRD_O)}, s{sAS} offen{off}{FLAGS[OPT['oflag']]}"])
        return o

    def wreads(s):
        d = s % DW
        b = WF + 16 * (s % 2)
        return [f"ds_read_b64_tr_b16 {vr(b + 4 * n + 2 * e, 2)}, v{vBR + 4 * (d // 4) + n} offset:{(d % 4) * 16384 + e * 2048}"
                for n in range(4) for e in range(2)]

    early = [p for s in range(OPT["early"]) for p in wload(s)]
    n = len(early)
    for i, p in enumerate(early):
        A.ext(p)
        A.ext(rest[(i * len(rest)) // n:((i + 1) * len(rest)) // n])
    if not early:
        A.ext(rest)
    stamp(A)
    Z = Asm()
    Z(f"v_lshlrev_b32 v{vA}, 4, v0")
    for i in range(1, 6):
        Z(f"v_add_u32 v{vA + i}, {i * 131072}, v{vA}")
    Z(f"v_lshrrev_b32 v{u0}, 2, v0")
    Z(f"v_lshlrev_b32 v{vBR}, 7, v{u0}")
    Z(f"v_bfe_u32 v{u0}, v0, 3, 2")
    Z(f"v_lshl_add_u32 v{vBR}, v{u0}, 5, v{vBR}")
    Z(f"v_and_b32 v{u0}, 3, v0")
    Z(f"v_lshl_add_u32 v{vBR}, v{u0}, 3, v{vBR}")
    Z(f"v_add_u32 v{vBR}, s{sLD}, v{vBR}")
    for n_ in range(1, 4):
        Z(f"v_xor_b32 v{vBR + n_}, {32 * n_}, v{vBR}")
    for n_ in range(4):
        Z(f"v_add_u32 v{vBR + 4 + n_}, 65536, v{vBR + n_}")
    Z(f"s_mul_i32 s{sAS}, s{sMT}, 786432")
    Z(f"s_lshl_b32 s{sU}, s{sW}, 15")
    Z(f"s_add_u32 s{sAS}, s{sAS}, s{sU}")
    Z("s_waitcnt lgkmcnt(0)")
    Z(f"s_mov_b32 s{SRD_OUT}, s32")
    Z(f"s_mov_b32 s{SRD_OUT + 1}, s33")
    Z(f"s_mov_b32 s{SRD_OUT + 2}, {2304 * 1152}")
    Z(f"s_mov_b32 s{SRD_OUT + 3}, 0x20000")
    Z(f"s_mov_b32 s{SRD_D}, s34")
    Z(f"s_mov_b32 s{SRD_D + 1}, s35")
    Z(f"s_mov_b32 s{SRD_D + 2}, 256")
    Z(f"s_mov_b32 s{SRD_D + 3}, 0x20000")
    Z(f"s_lshl_b32 s{sT0}, s{sB}, 2")
    Z(f"s_lshr_b32 s{sT1}, s{sH}, 3")
    Z(f"s_add_u32 s{sT0}, s{sT0}, s{sT1}")
    Z(f"s_lshl_b32 s{sT0}, s{sT0}, 3")
    Z(f"s_and_b32 s{sT1}, s2, 7")
    Z(f"s_lshl_b32 s{sT1}, s{sT1}, 2")
    Z(f"s_add_u32 s{sT1}, s{sT1}, s{sW}")
    Z(f"s_lshl_b32 s{sT1}, s{sT1}, 3")
    Z(f"v_mov_b32 v{u0}, 1")
    Z(f"v_mov_b32 v{u1}, 0")
    A.ext([x.strip() for x in Z.l])
    A("s_waitcnt vmcnt(0)")
    A("s_barrier")
    if OPT["diag"]:
        A("s_memrealtime s[78:79]")
    A(f"s_cmp_lg_u32 s{sW}, 0")
    A("s_cbranch_scc1 L3_noadd")
    A("s_mov_b64 exec, 1")
    A(f"buffer_atomic_add v{u0}, v{u1}, {srd(SRD_D)}, s{sT0} offen sc1")
    A("s_mov_b64 exec, -1")
    A.label("L3_noadd")
    A("s_cmp_ge_u32 s2, 216")
    A("s_cbranch_scc1 L3_done")
    for s in range(OPT["early"], DW):
        for p in wload(s):
            A.ext(p)
    A(f"s_mov_b32 s{sSP}, {1 << 22}")
    A.label("L3_poll")
    A(f"buffer_load_dword v{u0}, v{u1}, {srd(SRD_D)}, s{sT1} offen sc1")
    A("s_waitcnt vmcnt(0)")
    A(f"v_readfirstlane_b32 s{sU}, v{u0}")
    A(f"s_sub_u32 s{sSP}, s{sSP}, 1")
    A("s_cbranch_scc1 L3_go")
    A(f"s_cmp_ge_u32 s{sU}, 8")
    A("s_cbranch_scc1 L3_go")
    A("s_sleep 2")
    A("s_branch L3_poll")
    A.label("L3_go")
    if OPT["diag"]:
        A("s_memrealtime s[80:81]")
    vmq = []
    for s in range(DO):
        for p in oload(s):
            A.ext(p)
            vmq.append(("o", s))
    A.ext(wreads(0))
    AC = 160
    for s in range(32):
        need = [i for i, t in enumerate(vmq) if t in (("o", s), ("w", s + 1))]
        A(f"s_waitcnt vmcnt({len(vmq) - 1 - max(need)})")
        if s + 1 < 32:
            A.ext(wreads(s + 1))
            A("s_waitcnt lgkmcnt(8)")
        else:
            A("s_waitcnt lgkmcnt(0)")
        b = WF + 16 * (s % 2)
        ld = []
        if s + DW < 32:
            ld += [(p, ("w", s + DW)) for p in wload(s + DW)]
        if s >= 1 and s - 1 + DO < 32:
            ld += [(p, ("o", s - 1 + DO)) for p in oload(s - 1 + DO)]
        k = 0
        for n_ in range(4):
            for i in range(6):
                acc = ar(AC + 4 * (6 * n_ + i), 4)
                A(f"{MF} {acc}, {vr(b + 4 * n_, 4)}, {ar(ORING + 24 * (s % DO) + 4 * i, 4)}, {'0' if s == 0 else acc}")
                k += 1
                if ld and k % 2 == 0:
                    p, tag = ld.pop(0)
                    A.ext(p)
                    vmq.append(tag)
        assert not ld
    if OPT["diag"]:
        A("s_memrealtime s[82:83]")
    A("s_barrier")
    A(f"s_mul_i32 s{sT0}, s{sW}, 24576")
    A(f"v_lshl_add_u32 v{u0}, v0, 4, s{sT0}")
    A("s_nop 4")
    for q in range(24):
        A(f"ds_write_b128 v{u0}, {ar(AC + 4 * q, 4)} offset:{q * 1024}")
    A(f"v_and_b32 v{u0}, 15, v0")
    A(f"v_lshlrev_b32 v{u0}, 4, v{u0}")
    A(f"v_bfe_u32 v{u1}, v0, 4, 1")
    A(f"v_lshl_add_u32 v{u0}, v{u1}, 9, v{u0}")
    A(f"v_lshrrev_b32 v{u1}, 5, v0")
    A(f"v_lshl_add_u32 v{u0}, v{u1}, 10, v{u0}")
    A(f"s_mul_i32 s{sT0}, s{sW}, {6 * 1024}")
    A(f"v_add_u32 v{u0}, s{sT0}, v{u0}")
    A(f"v_add_u32 v{u1}, 49152, v{u0}")
    A(f"v_and_b32 v9, 15, v0")
    A(f"v_lshrrev_b32 v10, 5, v0")
    A(f"v_lshl_add_u32 v9, v10, 4, v9")
    A(f"v_mul_u32_u24 v9, 1152, v9")
    A(f"v_bfe_u32 v10, v0, 4, 1")
    A(f"v_lshl_add_u32 v9, v10, 4, v9")
    A(f"s_mul_i32 s{sAS}, s{sMT}, {96 * 1152}")
    A(f"s_lshl_b32 s{sT0}, s{sNT}, 7")
    A(f"s_add_u32 s{sAS}, s{sAS}, s{sT0}")
    A(f"s_lshl_b32 s{sT0}, s{sW}, 5")
    A(f"s_add_u32 s{sAS}, s{sAS}, s{sT0}")
    A("s_waitcnt lgkmcnt(0)")
    A("s_barrier")
    R = 16
    for x in range(3):
        for w in range(4):
            for q in range(2):
                A(f"ds_read_b128 {vr(R + 32 * x + 8 * w + 4 * q, 4)}, v{u0 if w < 2 else u1} offset:{(w % 2) * 24576 + x * 2048 + q * 256}")
        if x == 0:
            continue
    for x in range(3):
        A(f"s_waitcnt lgkmcnt({min(15, 8 * (2 - x))})")
        bb = R + 32 * x
        for e in range(8):
            A(f"v_add_f32 v{bb + e}, v{bb + e}, v{bb + 8 + e}")
            A(f"v_add_f32 v{bb + 16 + e}, v{bb + 16 + e}, v{bb + 24 + e}")
        for e in range(8):
            A(f"v_add_f32 v{bb + e}, v{bb + e}, v{bb + 16 + e}")
        for e in range(4):
            A(f"v_cvt_pk_bf16_f32 v{bb + 8 + e}, v{bb + 2 * e}, v{bb + 2 * e + 1}")
        A(f"buffer_store_dwordx4 {vr(bb + 8, 4)}, v9, {srd(SRD_OUT)}, s{sAS} offen")
        A(f"s_add_u32 s{sAS}, s{sAS}, {32 * 1152}")
    A.label("L3_done")


def k1(A):
    A.raw(".p2align 8")
    A.raw(".type attn_kernel,@function")
    A.label("attn_kernel")
    A("s_cmp_ge_u32 s2, 256")
    A("s_cbranch_scc1 L1_end")
    A("s_load_dwordx8 s[32:39], s[0:1], 0")
    A("s_load_dwordx2 s[40:41], s[0:1], 56")
    A("s_load_dwordx2 s[30:31], s[0:1], 32")
    A(f"s_getpc_b64 s[{sPC}:{sPC + 1}]")
    A.label("L1_pc")
    stamp(A)
    if OPT["diag"]:
        A("s_memrealtime s[92:93]")
    A("s_lshr_b32 s3, s2, 3")
    if OPT["cpf"]:
        A(f"s_lshl_b32 s{sT0}, s3, 11")
        A(f"v_lshl_add_u32 v1, v0, 7, s{sT0}")
        A("v_min_u32 v1, L_code_end-L1_pc-4, v1")
        A("v_cmp_gt_u32 vcc, 16, v0")
        A("s_and_saveexec_b64 s[46:47], vcc")
        A("s_cbranch_execz L1_nocpf")
        A(f"global_load_dword v{vDUM}, v1, s[{sPC}:{sPC + 1}]")
        A.label("L1_nocpf")
        A("s_mov_b64 exec, s[46:47]")
    A("v_lshrrev_b32 v1, 6, v0")
    A("v_and_b32 v0, 63, v0")
    A(f"v_readfirstlane_b32 s{sW}, v1")
    if OPT["xmap"] == 0:
        A(f"s_and_b32 s{sB}, s2, 7")
        A(f"s_mov_b32 s{sH}, s3")
    else:
        A(f"s_and_b32 s{sB}, s2, 1")
        A(f"s_lshl_b32 s{sB}, s{sB}, 2")
        A(f"s_and_b32 s{sT0}, s3, 3")
        A(f"s_add_u32 s{sB}, s{sB}, s{sT0}")
        A(f"s_and_b32 s{sH}, s2, 6")
        A(f"s_lshl_b32 s{sH}, s{sH}, 2")
        A(f"s_lshr_b32 s{sT0}, s3, 2")
        A(f"s_add_u32 s{sH}, s{sH}, s{sT0}")
    A(f"s_and_b32 s{sP}, s{sW}, 1")
    nph = OPT["nph"]
    if nph == 1:
        A(f"s_mov_b32 s{sCW}, 0")
    elif nph == 2:
        A(f"s_add_u32 s{sCW}, s{sB}, s{sH}")
        A(f"s_and_b32 s{sCW}, s{sCW}, 1")
        A(f"s_mul_i32 s{sCW}, s{sCW}, {4 * 128}")
    elif nph == 4:
        A(f"s_add_u32 s{sCW}, s{sB}, s{sH}")
        A(f"s_and_b32 s{sCW}, s{sCW}, 3")
        A(f"s_mul_i32 s{sCW}, s{sCW}, {2 * 128}")
    elif nph == 3:
        A(f"s_add_u32 s{sCW}, s{sB}, s{sH}")
        A(f"s_mul_i32 s{sT0}, s{sCW}, 43")
        A(f"s_lshr_b32 s{sT0}, s{sT0}, 7")
        A(f"s_mul_i32 s{sT0}, s{sT0}, 3")
        A(f"s_sub_u32 s{sCW}, s{sCW}, s{sT0}")
        A(f"s_mul_i32 s{sCW}, s{sCW}, {3 * 128}")
    A(f"s_mov_b32 s{sCX}, s{sCW}")
    t0, t1, t2, g4, i16, r4, cq = 9, 10, 11, 12, 13, 14, 15
    A(f"v_lshrrev_b32 v{g4}, 4, v0")
    A(f"v_and_b32 v{i16}, 15, v0")
    A(f"v_lshrrev_b32 v{t0}, 5, v0")
    A(f"v_lshlrev_b32 v{vWD}, 18, v{t0}")
    A(f"v_and_b32 v{t0}, 1, v{g4}")
    A(f"v_lshl_add_u32 v{vWD}, v{t0}, 15, v{vWD}")
    A(f"v_lshl_add_u32 v{vWD}, v{i16}, 4, v{vWD}")
    A(f"v_lshrrev_b32 v{t0}, 3, v0")
    A(f"v_mul_u32_u24 v{vXD}, 1152, v{t0}")
    A(f"v_and_b32 v{t0}, 7, v0")
    A(f"v_xor_b32 v{t0}, v{t0}, v{g4}")
    A(f"v_lshl_add_u32 v{vXD}, v{t0}, 4, v{vXD}")
    A(f"v_xor_b32 v{vXD + 1}, 64, v{vXD}")
    A(f"s_lshl_b32 s{sT0}, s{sP}, 6")
    A(f"v_xor_b32 v{vXDE}, s{sT0}, v{vXD}")
    A(f"s_lshl_b32 s{sXD}, s{sW}, 13")
    A(f"s_add_u32 s{sXD}, s{sXD}, {XOFF}")
    A(f"s_mul_i32 s{sXS}, s{sW}, {8 * 9216}")
    A(f"s_lshl_b32 s{sXED}, s{sW}, 10")
    A(f"s_add_u32 s{sXED}, s{sXED}, {XEOFF}")
    A(f"s_mul_i32 s{sXES}, s{sW}, 9216")
    A(f"s_add_u32 s{sXES}, s{sXES}, {32 * 9216}")
    A(f"s_lshr_b32 s{sT0}, s{sW}, 1")
    A(f"s_mul_i32 s{sWD}, s{sT0}, {WG1}")
    A(f"s_mul_i32 s{sT0}, s{sP}, {WG0}")
    A(f"s_add_u32 s{sWD}, s{sWD}, s{sT0}")
    A(f"s_lshl_b32 s{sWS}, s{sW}, 16")
    A(f"s_mul_i32 s{sT1}, s{sB}, 331776")
    A(f"s_lshl_b32 s{sT0}, s{sH}, 8")
    A(f"s_mov_b32 s{SRD_X + 2}, 331776")
    A(f"s_mov_b32 s{SRD_X + 3}, 0x20000")
    A(f"s_sub_u32 s{SRD_W + 2}, {576 * 8192}, s{sT0}")
    A(f"s_mov_b32 s{SRD_W + 3}, 0x20000")
    A("s_waitcnt lgkmcnt(0)")
    A(f"s_add_u32 s{SRD_W}, s38, s{sT0}")
    A(f"s_addc_u32 s{SRD_W + 1}, s39, 0")
    A(f"s_add_u32 s{SRD_X}, s32, s{sT1}")
    A(f"s_addc_u32 s{SRD_X + 1}, s33, 0")
    S = Asm()
    S(f"s_lshl_b32 s{sT1}, s{sB}, 5")
    S(f"s_add_u32 s{sT1}, s{sT1}, s{sH}")
    S(f"s_lshl_b32 s{sT1}, s{sT1}, 19")
    S(f"s_add_u32 s{SRD_K}, s34, s{sT1} | s_addc_u32 s{SRD_K + 1}, s35, 0")
    S(f"s_mov_b32 s{SRD_K + 2}, 524288")
    S(f"s_mov_b32 s{SRD_K + 3}, 0x20000")
    S(f"s_add_u32 s{SRD_V}, s36, s{sT1} | s_addc_u32 s{SRD_V + 1}, s37, 0")
    S(f"s_mov_b32 s{SRD_V + 2}, 524288")
    S(f"s_mov_b32 s{SRD_V + 3}, 0x20000")
    S(f"s_mov_b32 s{SRD_O}, s40")
    S(f"s_mov_b32 s{SRD_O + 1}, s41")
    S(f"s_mov_b32 s{SRD_O + 2}, {(DIAG_OFF + (2 << 20)) if OPT['diag'] else WS_O_BYTES}")
    S(f"s_mov_b32 s{SRD_O + 3}, 0x20000")
    S(f"s_mov_b32 s{SRD_P}, s30")
    S(f"s_mov_b32 s{SRD_P + 1}, s31")
    S(f"s_mov_b32 s{SRD_P + 2}, {4096 * 1152}")
    S(f"s_mov_b32 s{SRD_P + 3}, 0x20000")
    S(f"v_bfe_u32 v{r4}, v0, 2, 2")
    S(f"v_and_b32 v{cq}, 3, v0")
    XA, XE, WL, WH = vQA, vQA + 2, vQA + 4, vQA + 5
    S(f"v_lshlrev_b32 v{XE}, 7, v{i16}")
    S(f"v_lshrrev_b32 v{t0}, 1, v{i16}")
    S(f"v_xor_b32 v{t0}, v{t0}, v{g4}")
    S(f"v_lshl_add_u32 v{XE}, v{t0}, 4, v{XE}")
    S(f"v_add_u32 v{XA}, s{sXD}, v{XE}")
    S(f"s_lshr_b32 s{sT1}, s{sW}, 1")
    S(f"s_lshl_b32 s{sT1}, s{sT1}, 11")
    S(f"s_add_u32 s{sT1}, s{sT1}, {XEOFF}")
    S(f"v_add_u32 v{XE}, s{sT1}, v{XE}")
    S(f"v_xor_b32 v{XA + 1}, 64, v{XA}")
    S(f"v_xor_b32 v{XE + 1}, 64, v{XE}")
    S(f"v_lshrrev_b32 v{t0}, 1, v{g4}")
    S(f"v_mul_u32_u24 v{WL}, {WG1}, v{t0}")
    S(f"v_and_b32 v{t0}, 1, v{g4}")
    S(f"v_mul_u32_u24 v{t0}, {WG0}, v{t0}")
    S(f"v_add_u32 v{WL}, v{WL}, v{t0}")
    S(f"v_mul_u32_u24 v{t0}, {XB}, v{r4}")
    S(f"v_add_u32 v{WL}, v{WL}, v{t0}")
    S(f"v_lshl_add_u32 v{WL}, v{cq}, 4, v{WL}")
    S(f"s_lshl_b32 s{sT1}, s{sP}, 7")
    S(f"s_xor_b32 s{sOO}, s{sT1}, 128")
    S(f"v_add_u32 v{WH}, s{sOO}, v{WL}")
    S(f"v_add_u32 v{WL}, s{sT1}, v{WL}")
    for i in range(6):
        S(f"v_add_u32 v{vQA + 6 + i}, {2 * STSZ}, v{vQA + i}")
    S(f"s_lshl_b32 s{sT1}, s{sW}, 12")
    S(f"v_lshl_add_u32 v{vV4}, v0, 4, s{sT1}")
    S(f"s_mul_i32 s{sWOF}, s{sW}, {4 * BLK}")
    S(f"v_mul_u32_u24 v{t0}, {BLK}, v{i16}")
    S(f"v_lshl_add_u32 v{t0}, v{g4}, 4, v{t0}")
    S(f"v_lshl_add_u32 v{t1}, v{g4}, 2, v{r4}")
    S(f"v_mul_u32_u24 v{t1}, {BLK}, v{t1}")
    S(f"v_lshl_add_u32 v{t1}, v{cq}, 3, v{t1}")
    for j in range(2):
        S(f"s_xor_b32 s{sT1}, s{sP}, {j}")
        S(f"s_lshl_b32 s{sT1}, s{sT1}, 9")
        S(f"v_add_u32 v{vVB + j}, s{sT1}, v{t1}")
        S(f"s_lshl_b32 s{sOO}, s{sP}, 7")
        S(f"s_add_u32 s{sT1}, s{sT1}, s{sOO}")
        S(f"v_add_u32 v{vKB + 2 * j}, s{sT1}, v{t0}")
        S(f"s_xor_b32 s{sT1}, s{sT1}, 128")
        S(f"v_add_u32 v{vKB + 2 * j + 1}, s{sT1}, v{t0}")
    if OPT["rot"]:
        S(f"s_mul_i32 s{sG0}, s2, {OPT['rot']}")
        S(f"s_lshr_b32 s{sT1}, s2, 4")
        S(f"s_add_u32 s{sG0}, s{sG0}, s{sT1}")
        S(f"s_and_b32 s{sG0}, s{sG0}, 15")
        S(f"s_mul_i32 s{sG0}, s{sG0}, {16384 * 7 // 4 // 16384 * 16384}")
    S(f"s_lshl_b32 s{sWP}, s2, 2")
    S(f"s_add_u32 s{sWP}, s{sWP}, s{sW}")
    S(f"s_mul_i32 s{sWP}, s{sWP}, 4608")
    S(f"v_min_u32 v7, 1, v0")
    S(f"v_lshlrev_b32 v7, 7, v7")
    S(f"s_lshl_b32 s{sDV}, s{sP}, 10")
    S(f"s_sub_u32 s{sDV}, 512, s{sDV}")
    S(f"v_min_u32 v{vCW}, 39, v0")
    S(f"s_mul_i32 s{sT1}, s{sW}, 5120")
    S(f"v_lshl_add_u32 v{vCW}, v{vCW}, 7, s{sT1}")
    S(f"v_min_u32 v{vCW}, L1_redo-L1_tail, v{vCW}")
    S(f"v_add_u32 v{vCW}, L1_tail-L1_pc, v{vCW}")
    S(f"v_mov_b32 v{t0}, 0x3f803f80")
    S(f"v_cmp_eq_u32 vcc, 0, v{cq}")
    S(f"s_mov_b32 s{sSC}, {QSCALE:#x}")
    S(f"s_mov_b32 s{sREDO}, 0")
    S(f"v_cndmask_b32 v{t0}, 0, v{t0}, vcc")
    for i in range(4):
        S(f"v_accvgpr_write_b32 a{ONES + i}, v{t0}")
    S(f"s_add_u32 s{sT1}, s{sXD}, {2 * STSZ + 6144}")
    S(f"v_lshl_add_u32 v{t0}, v0, 4, s{sT1}")
    S(f"s_xor_b32 s{sT1}, s{sW}, 1")
    S(f"s_lshl_b32 s{sT1}, s{sT1}, 13")
    S(f"s_add_u32 s{sT1}, s{sT1}, {XOFF + 2 * STSZ + 6144}")
    S(f"v_lshl_add_u32 v{t1}, v0, 4, s{sT1}")

    def loop_scalars(Z):
        if OPT["rot"]:
            Z(f"s_add_u32 s{sKVS}, s{sG0}, {DD * 16384}")
        else:
            Z(f"s_mov_b32 s{sKVS}, {DD * 16384}")
        Z(f"s_add_u32 s{sKD}, s{sWOF}, {(NS - 1) * HS}")
        Z(f"s_mov_b32 s{sVD}, s{sWOF}")
        Z(f"s_mov_b32 s{sKN}, {2 * HS}")
        Z(f"s_mov_b32 s{sVN}, {3 * HS}")
        Z(f"s_mov_b32 s{sCNT}, 31")

    def loop_addr():
        return [f"v_add_u32 v{vK}, {2 * HS}, v{vKB}", f"v_add_u32 v{vK + 1}, {2 * HS}, v{vKB + 1}",
                f"v_mov_b32 v{vK + 2}, v{vKB + 2}", f"v_mov_b32 v{vK + 3}, v{vKB + 3}",
                f"v_add_u32 v{vV}, {HS}, v{vVB}", f"v_add_u32 v{vV + 1}, {HS}, v{vVB + 1}"]

    loop_scalars(S)
    for i in range(180):
        S(f"v_accvgpr_write_b32 a{i}, 0")
    setup = [x.strip() for x in S.l]
    for p in wg_pieces(0) + x_pieces(0):
        A.ext(p)
    npf = 0
    if OPT["pf"]:
        na = OPT["pfa"]
        A(f"v_min_u32 v{t0}, {9 * na - 1}, v0")
        A(f"v_mul_u32_u24 v{t1}, 57, v{t0}")
        A(f"v_lshrrev_b32 v{t1}, 9, v{t1}")
        A(f"v_mul_u32_u24 v{t2}, 9, v{t1}")
        A(f"v_sub_u32 v{t0}, v{t0}, v{t2}")
        A(f"v_mul_u32_u24 v248, 1152, v{t0}")
        A(f"s_and_b32 s{sT1}, s{sH}, 7")
        A(f"s_lshl_b32 s{sT1}, s{sT1}, 2")
        A(f"s_add_u32 s{sT1}, s{sT1}, s{sW}")
        A(f"s_mul_i32 s{sT1}, s{sT1}, {9 * 1152}")
        A(f"v_add_u32 v248, s{sT1}, v248")
        A(f"v_lshl_add_u32 v246, v{t1}, 7, v248")
        A(f"buffer_load_dword v{vDUM}, v246, {srd(SRD_X)}, 0 offen offset:128")
        A(f"v_bfe_u32 v{t0}, v0, 1, 2")
        A(f"v_lshlrev_b32 v249, 13, v{t0}")
        A(f"v_and_b32 v{t0}, 1, v0")
        A(f"v_lshl_add_u32 v249, v{t0}, 7, v249")
        A(f"s_and_b32 s{sT1}, s{sB}, 3")
        A(f"s_lshl_b32 s{sT1}, s{sT1}, 2")
        A(f"s_add_u32 s{sT1}, s{sT1}, s{sW}")
        A(f"s_lshl_b32 s{sT1}, s{sT1}, 15")
        A(f"v_add_u32 v249, s{sT1}, v249")
        A(f"v_lshrrev_b32 v{t0}, 3, v0")
        A(f"v_min_u32 v{t0}, {na - 1}, v{t0}")
        A(f"v_lshl_add_u32 v247, v{t0}, 19, v249")
        A(f"s_mov_b32 s{sT1}, {1 << 19}")
        A(f"buffer_load_dword v{vDUM}, v247, {srd(SRD_W)}, s{sT1} offen")
        npf = 2
    first = []
    for c in range(1, OPT["up"]):
        first += wg_pieces(c) + x_pieces(c)
    per = len(setup) // (len(first) + 1) + 1
    stamp(A)
    for p in [[]] + first:
        A.ext(p)
        for _ in range(per):
            if setup:
                for y in setup.pop(0).split(" | "):
                    A(y)
    assert not setup
    stamp(A)
    A(f"s_waitcnt vmcnt({len(first) + npf})")
    A("s_barrier")
    stamp(A)
    P = lambda n: [item_piece(n, i) for i in range(4)]
    kw = [f"global_load_dword v{vDUM}, v{vCW}, s[{sPC}:{sPC + 1}]"] if OPT["cpf"] else []
    if OPT["wopf"] == 2:
        kw = kw + kw
    if OPT["stg"] == 0:
        extras = {4: P(0), 5: P(1), 6: P(2)}
        if OPT["kvs"]:
            al = P(0) + P(1) + P(2)
            extras = {4: al[0:3], 5: al[3:6], 6: al[6:8], 7: al[8:12]}
    else:
        extras = {7: P(0) + P(1) + P(2)}
    if DD == 4:
        extras[8] = P(3) + P(4) + P(5)
        late = P(6) + P(7)
        late[0] = kw + late[0]
        late[7] = late[7] + kw
    elif DD == 3:
        extras[8] = P(3)
        late = P(4) + P(5)
        late[7] = late[7] + kw
    else:
        extras[8] = P(3)
        late = [[]] * 8
    if OPT["pf"]:
        for c in range(OPT["pfa"] + 1, 9):
            at = max(0, c - OPT["pf"])
            extras[at] = extras.get(at, []) + [
                [f"buffer_load_dword v{vDUM}, v248, {srd(SRD_X)}, 0 offen offset:{c * 128}"],
                [f"s_mov_b32 s{sT0}, {c << 19}", f"buffer_load_dword v{vDUM}, v249, {srd(SRD_W)}, s{sT0} offen"]]
    if OPT["wopf"] == 1:
        extras[7] = extras.get(7, []) + [[f"v_lshlrev_b32 v253, 7, v0", f"v_min_u32 v253, {35 * 128}, v253",
                      f"buffer_load_dword v{vDUM}, v253, {srd(SRD_P)}, s{sWP} offen"]]
    if OPT["wopf"]:
        extras[7] = extras.get(7, []) + [
                     [f"s_mul_i32 s{sT0}, s{sB}, {18 * 32}", f"s_add_u32 s{sT0}, s{sT0}, s{sH}", f"s_lshl_b32 s{sT0}, s{sT0}, 12",
                      f"v_lshlrev_b32 v253, 18, v0",
                      f"v_min_u32 v253, {8 << 18}, v253",
                      f"buffer_load_dword v{vDUM}, v253, {srd(SRD_O)}, s{sT0} offen nt"]]

    def conv(t, kk):
        src = ACC + 32 * t + 8 * kk
        dst = QV + 16 * t + 4 * kk
        o = []
        for i in range(4):
            o += [f"v_mul_f32 v{src + 2 * i}, s{sSC}, v{src + 2 * i}", f"v_mul_f32 v{src + 2 * i + 1}, s{sSC}, v{src + 2 * i + 1}"]
        for i in range(4):
            o.append(f"v_cvt_pk_bf16_f32 v{dst + i}, v{src + 2 * i}, v{src + 2 * i + 1}")
        return o

    KF = [184, 224]
    k0reads = [kread(ar(KF[kb] + 4 * kk, 4), vKB, kb, kk) for kb in range(2) for kk in range(4)]
    ti = []

    def spread(lst, g0, g1):
        for i, x in enumerate(lst):
            ti.append((g0 + (i * (g1 - g0)) // len(lst), x))

    spread(conv(4, 0) + conv(0, 0) + conv(1, 0) + conv(2, 0), 13, 22)
    spread(conv(4, 1) + [f"ds_write_b128 v{t0}, {vr(QV + 64, 4)}", f"ds_write_b128 v{t0}, {vr(QV + 68, 4)} offset:1024"]
           + conv(3, 0) + conv(0, 1), 22, 29)
    ti.append((29, "BAR"))
    spread([f"ds_read_b128 {vr(QV + 72, 4)}, v{t1}", f"ds_read_b128 {vr(QV + 76, 4)}, v{t1} offset:1024"] + k0reads[:4]
           + conv(1, 1) + k0reads[4:] + conv(2, 1) + conv(3, 1), 29, 36)
    nb = [i for i, x in enumerate(ti) if x[1] == "BAR"][0]
    ti[nb:nb + 1] = [(29, "VMW"), (29, "s_barrier")]
    qp, issued = build_qproj(extras, OPT["up"], ti)
    vms = [x for x in qp if x.startswith(("buffer_load", "global_load"))]
    lastv0 = max(i for i, x in enumerate(vms) if x == P(1)[3][-1] and i == min(k for k, y in enumerate(vms) if y == x))
    ny = len(vms) - 1 - lastv0
    qp = [(f"s_waitcnt vmcnt({ny}) lgkmcnt(0)" if x == "VMW" else x) for x in qp]
    A.ext(qp)
    stamp(A)
    body, pro, tail = build_loop()

    def qk0(kb, kk, useneg):
        o = []
        for t in range(5):
            Sx = Sreg(t, 0) + 4 * kb
            C = (vr(NEG + 4 * t, 4) if useneg else "0") if kk == 0 else vr(Sx, 4)
            o.append(f"{MF} {vr(Sx, 4)}, {ar(KF[kb] + 4 * kk, 4)}, {vr(QV + 16 * t + 4 * kk, 4)}, {C}")
        return o

    def mix(mf, fill):
        n = len(mf)
        for i, m in enumerate(mf):
            A(m)
            A.ext(fill[(i * len(fill)) // n:((i + 1) * len(fill)) // n])

    flat = lambda ps: [x for p in ps for x in p]
    pro_rd = [x for x in pro if is_ds(x)]
    pro_sm = [x for x in pro if not is_ds(x)]
    A.ext(conv(0, 2) + flat(late[0:2]) + conv(0, 3))
    A("s_waitcnt lgkmcnt(0)")
    mix(qk0(0, 0, False) + qk0(0, 1, False), conv(1, 2) + conv(2, 2) + conv(3, 2) + flat(late[2:4]))
    mix(qk0(0, 2, False), conv(1, 3) + conv(2, 3) + conv(3, 3))
    A("s_nop 0")
    A.ext(qk0(0, 3, False))
    A.ext(loop_addr())
    A.ext(pro_rd)
    A.ext(flat(late[4:6]))
    for t in range(5):
        Sx = Sreg(t, 0)
        A(f"v_max3_f32 v{vM + t}, v{Sx}, v{Sx + 1}, v{Sx + 2}")
    for t in range(5):
        A(f"v_max_f32 v{vM + t}, v{vM + t}, v{Sreg(t, 0) + 3}")

    def xlane5(Z, op, base, tmp):
        for sw in ("v_permlane32_swap_b32", "v_permlane16_swap_b32"):
            for t in range(5):
                Z(f"v_mov_b32 v{tmp + t}, v{base + t}")
            for t in range(5):
                Z(f"{sw} v{base + t}, v{tmp + t}")
            for t in range(5):
                Z(f"{op} v{base + t}, v{base + t}, v{tmp + t}")

    xlane5(A, "v_max_f32", vM, vM + 8)
    for t in range(5):
        for i in range(4):
            A(f"v_sub_f32 v{NEG + 4 * t + i}, 0, v{vM + t}")
    subs = [f"v_sub_f32 v{Sreg(t, 0) + i}, v{Sreg(t, 0) + i}, v{vM + t}" for t in range(5) for i in range(4)]
    kb0regs = {Sreg(t, 0) + i for t in range(5) for i in range(4)}

    def srcs(x):
        return [int(z.strip()[1:]) for z in x.split(None, 1)[1].split(",")[1:]]
    sm0 = [x for x in pro_sm if all(r in kb0regs for r in srcs(x))]
    sm1 = [x for x in pro_sm if x not in sm0]

    def safe(lst):
        o, prev = [], ""
        for x in lst:
            if prev.startswith("v_exp") and x.startswith("v_cvt"):
                o.append("s_nop 0")
            o.append(x)
            prev = x
        return o
    A.ext(flat(late[6:8]))
    mix(flat([qk0(1, kk, True) for kk in range(4)]), subs + safe(sm0))
    A("s_nop 3")
    A.label("L1_presm")
    A.ext(safe(sm1))
    A("s_waitcnt lgkmcnt(0)")
    stamp(A)
    A.raw(".p2align 6")
    A.label("L1_loop")
    if OPT["diag"]:
        A(f"s_mov_b32 m0, s{sCNT}")
        A("s_nop 0")
        A("v_writelane_b32 v250, s90, m0")
        A("v_writelane_b32 v251, s96, m0")
        A("s_memtime s[90:91]")
        A("s_memrealtime s[96:97]")
    A.ext(body)
    A("s_branch L1_loop")
    errs = hazard.check(body + body, "loop")
    A.label("L1_tail")
    T0 = len(A.l)
    stamp(A)
    tail_rd = [x for x in tail if is_ds(x)]
    tail_sm = [x for x in tail if not is_ds(x)]
    A.ext(tail_rd)
    A.ext(safe(tail_sm))
    A(f"s_add_u32 s{sT0}, s{sWOF}, {TS * HS}")
    A(f"v_lshl_add_u32 v{t0}, v0, 4, s{sT0}")
    A("s_waitcnt vmcnt(0) lgkmcnt(0)")
    ones = [f"{MF} {ar(LA + 4 * t, 4)}, {ar(ONES, 4)}, {vr(Sreg(t, 1), 4)}, {ar(LA + 4 * t, 4)}" for t in range(4)]

    def pv(t):
        return [f"{MF} {ar(OA + 32 * t + 4 * dt, 4)}, {ar(RING + 32 + 4 * dt, 4)}, {vr(Sreg(t, 1), 4)}, {ar(OA + 32 * t + 4 * dt, 4)}"
                for dt in range(8)]
    wr = [f"ds_write_b128 v{t0}, {ar(OA + 128 + 4 * i, 4)} offset:{(i // 4) * HS + (i % 4) * 1024}" for i in range(8)]
    misc = [f"v_lshlrev_b32 v{t2}, 4, v0",
            f"s_mul_i32 s{sOO}, s{sB}, 18", f"s_lshl_b32 s{sT0}, s{sW}, 2", f"s_add_u32 s{sT0}, s{sT0}, s{sOO}",
            f"s_lshl_b32 s{sT0}, s{sT0}, 5", f"s_add_u32 s{sT0}, s{sT0}, s{sH}", f"s_lshl_b32 s{sT0}, s{sT0}, 12",
            f"s_lshl_b32 s{sT1}, s{sW}, 10", f"s_add_u32 s{sT1}, s{sT1}, {NS * HS}", f"v_lshl_add_u32 v{t1}, v0, 4, s{sT1}"]
    mix(ones + pv(0), wr + misc)
    Lr = 114
    st = [f"v_accvgpr_read_b32 v{Lr + t}, a{LA + 4 * t}" for t in range(5)]
    st += [f"v_add_f32 v128, v{Lr}, v{Lr + 1}", f"v_add_f32 v129, v{Lr + 2}, v{Lr + 3}", f"v_add_f32 v128, v128, v{Lr + 4}",
           f"v_add_f32 v128, v128, v129", f"v_mov_b32 v129, {f32bits(2.0 ** OPT['thr']):#x}", f"v_cmp_nlt_f32 vcc, v128, v129",
           f"v_mov_b32 v132, v{Lr + 4}", f"v_mov_b32 v133, v{NEG + 16}", f"v_mov_b32 v135, 0", f"v_cndmask_b32 v134, 0, 1, vcc",
           f"ds_write_b128 v{t1}, {vr(132, 4)}"]
    st += [f"v_rcp_f32 v{120 + 2 * t}, v{Lr + t}" for t in range(4)]
    mix(pv(1), st)
    ofl = FLAGS[OPT["ostflag"]]

    def norm_store(t, tmp, pk):
        o = []
        if t:
            o.append(f"s_add_u32 s{sT0}, s{sT0}, {32 * 4096}")
        for s in range(4):
            b = tmp + 8 * s
            for e in range(8):
                o.append(f"v_accvgpr_read_b32 v{b + e}, a{OA + 32 * t + 8 * s + e}")
            if pk:
                for e in range(4):
                    o.append(f"v_pk_mul_f32 {vr(b + 2 * e, 2)}, {vr(b + 2 * e, 2)}, {vr(120 + 2 * t, 2)} op_sel_hi:[1,0]")
            else:
                for e in range(8):
                    o.append(f"v_mul_f32 v{b + e}, v{120 + 2 * t}, v{b + e}")
            for e in range(4):
                o.append(f"v_cvt_pk_bf16_f32 v{b + e}, v{b + 2 * e}, v{b + 2 * e + 1}")
            of = f" offset:{s * 1024}" if s else ""
            o.append(f"buffer_store_dwordx4 {vr(b, 4)}, v{t2}, {srd(SRD_O)}, s{sT0} offen{of}{ofl}"
                     + (f" | buffer_store_dwordx4 {vr(b, 4)}, v{t2}, {srd(SRD_O)}, s{sT0} offen{of}" if OPT["dst"] else ""))
        return o

    n0 = norm_store(0, 16, False)
    mix(pv(2) + pv(3), n0[:42])
    A.ext(norm_store(0, 16, True)[34:])
    A("s_waitcnt lgkmcnt(0)")
    A("s_barrier")
    A(f"s_and_b32 s{sT1}, s{sW}, 2")
    A(f"s_mul_i32 s{sT1}, s{sT1}, {4 * BLK}")
    A(f"s_mul_i32 s{sT2}, s{sP}, {HS}")
    A(f"s_add_u32 s{sT1}, s{sT1}, s{sT2}")
    A(f"s_add_u32 s{sT1}, s{sT1}, {TS * HS}")
    A(f"v_lshl_add_u32 v{t0}, v0, 4, s{sT1}")
    A(f"s_and_b32 s{sT1}, s{sW}, 2")
    A(f"s_lshl_b32 s{sT1}, s{sT1}, 10")
    A(f"v_lshl_add_u32 v{t1}, v0, 4, s{sT1}")
    A(f"v_xor_b32 v1, 2048, v{t1}")
    A(f"v_add_u32 v{t1}, {NS * HS}, v{t1}")
    A(f"v_add_u32 v1, {NS * HS}, v1")
    A(f"ds_read_b128 {vr(88, 4)}, v{t1}")
    A(f"ds_read_b128 {vr(92, 4)}, v{t1} offset:1024")
    A(f"ds_read_b128 {vr(96, 4)}, v1")
    A(f"ds_read_b128 {vr(100, 4)}, v1 offset:1024")
    for w in range(2):
        for q in range(4):
            A(f"ds_read_b128 {vr(128 + 16 * w + 4 * q, 4)}, v{t0} offset:{w * 4 * BLK + q * 1024}")
    A.ext(norm_store(1, 48, True))
    A("s_waitcnt lgkmcnt(0)")
    A("v_or3_b32 v104, v90, v94, v98")
    A("v_or_b32 v104, v104, v102")
    A("v_cmp_ne_u32 vcc, 0, v104")
    A("v_min_f32 v105, v89, v93")
    A("v_sub_f32 v89, v105, v89")
    A("v_sub_f32 v93, v105, v93")
    A("v_exp_f32 v89, v89")
    A("v_exp_f32 v93, v93")
    A(f"s_cmp_lg_u64 vcc, 0")
    A(f"s_cselect_b32 s{sT1}, 1, 0")
    A(f"s_cmp_gt_u32 s{sT1}, s{sREDO}")
    A("s_cbranch_scc1 L1_redo")
    A("v_mul_f32 v105, v88, v89")
    A("v_fmac_f32 v105, v92, v93")
    A("v_rcp_f32 v105, v105")
    A(f"s_lshr_b32 s{sT1}, s{sW}, 1")
    A(f"s_add_u32 s{sT1}, s{sT1}, s{sOO}")
    A(f"s_add_u32 s{sT1}, s{sT1}, 16")
    A(f"s_lshl_b32 s{sT1}, s{sT1}, 5")
    A(f"s_add_u32 s{sT1}, s{sT1}, s{sH}")
    A(f"s_lshl_b32 s{sT1}, s{sT1}, 12")
    A(f"s_lshl_b32 s{sT2}, s{sP}, 11")
    A(f"s_add_u32 s{sT1}, s{sT1}, s{sT2}")
    A("v_mul_f32 v89, v105, v89")
    A("v_mul_f32 v93, v105, v93")
    for e in range(16):
        A(f"v_mul_f32 v{128 + e}, v89, v{128 + e}")
    for e in range(16):
        A(f"v_fmac_f32 v{128 + e}, v93, v{144 + e}")
    for e in range(8):
        A(f"v_cvt_pk_bf16_f32 v{144 + e}, v{128 + 2 * e}, v{128 + 2 * e + 1}")
    for q in range(2):
        of = " offset:1024" if q else ""
        A(f"buffer_store_dwordx4 {vr(144 + 4 * q, 4)}, v{t2}, {srd(SRD_O)}, s{sT1} offen{of}{ofl}")
        if OPT["dst"]:
            A(f"buffer_store_dwordx4 {vr(144 + 4 * q, 4)}, v{t2}, {srd(SRD_O)}, s{sT1} offen{of}")
    rest = norm_store(2, 16, True) + norm_store(3, 48, True)
    if OPT["fuse"]:
        p3(A, rest)
    else:
        A.ext(rest)
    gx = [i for i, x in enumerate(body) if "L1_tail" in x][0]
    errs += hazard.check(body[:gx + 1] + A.l[T0:T0 + 60], "exit")
    if OPT["diag"]:
        if not OPT["fuse"]:
            stamp(A)
        A("s_waitcnt vmcnt(0)")
        stamp(A)
        A("s_memrealtime s[94:95]")
        A("s_waitcnt lgkmcnt(0)")
        A("v_writelane_b32 v250, s92, 62")
        A("v_writelane_b32 v250, s94, 63")
        for i in range(stamp_n[0]):
            A(f"v_writelane_b32 v250, s{sST + 2 * i}, {50 + i}")
        A("v_writelane_b32 v250, s90, 32")
        A("v_writelane_b32 v251, s96, 32")
        A(f"s_lshl_b32 s{sT0}, s2, 2")
        A(f"s_add_u32 s{sT0}, s{sT0}, s{sW}")
        A(f"s_lshl_b32 s{sT0}, s{sT0}, 8")
        A(f"s_add_u32 s{sT0}, s{sT0}, {DIAG_OFF}")
        A(f"v_lshlrev_b32 v{t0}, 2, v0")
        A(f"buffer_store_dword v250, v{t0}, {srd(SRD_O)}, s{sT0} offen")
        A(f"s_add_u32 s{sT0}, s{sT0}, {1 << 19}")
        A(f"buffer_store_dword v251, v{t0}, {srd(SRD_O)}, s{sT0} offen")
        if OPT["fuse"]:
            for i in range(3):
                A(f"v_writelane_b32 v251, s{78 + 2 * i}, {i}")
            A("v_writelane_b32 v251, s94, 3")
            A(f"s_add_u32 s{sT0}, s{sT0}, {1 << 19}")
            A(f"buffer_store_dword v251, v{t0}, {srd(SRD_O)}, s{sT0} offen")
    A.label("L1_end")
    A("s_endpgm")
    A.label("L1_redo")
    A(f"s_mov_b32 s{sREDO}, 1")
    A("s_waitcnt vmcnt(0) lgkmcnt(0)")
    A("s_barrier")
    for n in range(2 * DD):
        for p in P(n):
            A.ext(p)
    for t in range(5):
        A(f"v_mov_b32 v{vM + t}, 0xff800000")
    A(f"v_lshlrev_b32 v{t0}, 8, v{i16}")
    A(f"v_lshl_add_u32 v{t0}, v{g4}, 4, v{t0}")
    A(f"s_lshl_b32 s{sT1}, s{sP}, 7")
    A(f"v_add_u32 v{t0}, s{sT1}, v{t0}")
    A(f"v_xor_b32 v{t1}, 128, v{t0}")
    A(f"s_mov_b32 s{sT1}, 0")
    A.label("L1_mx")
    for kk in range(4):
        o = f" offset:64" if kk & 1 else ""
        A(f"buffer_load_dwordx4 {vr(136 + 4 * kk, 4)}, v{t0 + (kk >> 1)}, {srd(SRD_K)}, s{sT1} offen{o}")
    A("s_waitcnt vmcnt(0)")
    for kk in range(4):
        for t in range(5):
            C = "0" if kk == 0 else vr(16 + 4 * t, 4)
            A(f"{MF} {vr(16 + 4 * t, 4)}, {vr(136 + 4 * kk, 4)}, {vr(QV + 16 * t + 4 * kk, 4)}, {C}")
    A("s_nop 7")
    for t in range(5):
        A(f"v_max3_f32 v{vM + t}, v{vM + t}, v{16 + 4 * t}, v{17 + 4 * t}")
        A(f"v_max3_f32 v{vM + t}, v{vM + t}, v{18 + 4 * t}, v{19 + 4 * t}")
    A(f"s_add_u32 s{sT1}, s{sT1}, 4096")
    A(f"s_cmp_lt_u32 s{sT1}, 524288")
    A("s_cbranch_scc1 L1_mx")
    xlane5(A, "v_max_f32", vM, vM + 8)
    for t in range(5):
        for i in range(4):
            A(f"v_sub_f32 v{NEG + 4 * t + i}, 0, v{vM + t}")
    for i in range(180):
        A(f"v_accvgpr_write_b32 a{i}, 0")
    A.ext(loop_addr())
    loop_scalars(A)
    A("s_barrier")
    A.ext(k0reads)
    A("s_waitcnt lgkmcnt(0)")
    for kb in range(2):
        for kk in range(4):
            A.ext(qk0(kb, kk, True))
    A.ext(pro_rd)
    A("s_nop 7")
    A.ext(safe(sm0))
    A("s_branch L1_presm")
    return errs


def k2(A):
    DEP = 4
    SRD_A, SRD_WO, SRD_OUT = 4, 8, 12
    sW, sMT, sNT, sT0, sT1, sAS, sBS, sLD, sCNT = 16, 17, 18, 19, 20, 21, 22, 23, 24
    vA, vBD, vBR, t0, t1 = 2, 8, 9, 13, 14
    ACC2, ORING, WF = 16, 112, 208
    A.raw(".p2align 8")
    A.raw(".globl oproj_kernel")
    A.raw(".type oproj_kernel,@function")
    A.label("oproj_kernel")
    A(f"s_cmp_ge_u32 s2, {OPT['k2grid']}")
    A("s_cbranch_scc1 L2_end")
    A("s_load_dwordx4 s[32:35], s[0:1], 32")
    A("s_load_dwordx2 s[36:37], s[0:1], 56")
    if OPT["diag"]:
        A("s_memrealtime s[60:61]")
    A("v_lshrrev_b32 v1, 6, v0")
    A("v_and_b32 v0, 63, v0")
    A(f"v_readfirstlane_b32 s{sW}, v1")
    A("s_and_b32 s25, s2, 7")
    A("s_lshr_b32 s26, s2, 3")
    A(f"s_mul_i32 s{sNT}, s26, 43")
    A(f"s_lshr_b32 s{sNT}, s{sNT}, 7")
    A(f"s_mul_i32 s{sT0}, s{sNT}, 3")
    A(f"s_sub_u32 s{sT0}, s26, s{sT0}")
    A(f"s_mul_i32 s{sMT}, s25, 3")
    A(f"s_add_u32 s{sMT}, s{sMT}, s{sT0}")
    A(f"v_lshlrev_b32 v{vA}, 4, v0")
    for i in range(1, 6):
        A(f"v_add_u32 v{vA + i}, {i * 131072}, v{vA}")
    A(f"v_lshrrev_b32 v{t0}, 3, v0")
    A(f"v_mul_u32_u24 v{vBD}, 1152, v{t0}")
    A(f"v_lshrrev_b32 v{t0}, 4, v0")
    A(f"v_lshlrev_b32 v{t0}, 1, v{t0}")
    A(f"v_and_b32 v{t1}, 7, v0")
    A(f"v_xor_b32 v{t0}, v{t0}, v{t1}")
    A(f"v_lshl_add_u32 v{vBD}, v{t0}, 4, v{vBD}")
    A(f"v_lshrrev_b32 v{t0}, 2, v0")
    A(f"v_lshlrev_b32 v{vBR}, 7, v{t0}")
    A(f"v_bfe_u32 v{t0}, v0, 3, 2")
    A(f"v_lshl_add_u32 v{vBR}, v{t0}, 5, v{vBR}")
    A(f"v_and_b32 v{t0}, 3, v0")
    A(f"v_lshl_add_u32 v{vBR}, v{t0}, 3, v{vBR}")
    A(f"s_mul_i32 s{sLD}, s{sW}, {DEP * 4096}")
    A(f"v_add_u32 v{vBR}, s{sLD}, v{vBR}")
    for n in range(1, 4):
        A(f"v_xor_b32 v{vBR + n}, {32 * n}, v{vBR}")
    A("s_waitcnt lgkmcnt(0)")
    A(f"s_mov_b32 s{SRD_A}, s36")
    A(f"s_mov_b32 s{SRD_A + 1}, s37")
    A(f"s_mov_b32 s{SRD_A + 2}, {(DIAG_OFF + (2 << 20)) if OPT['diag'] else WS_O_BYTES}")
    A(f"s_mov_b32 s{SRD_A + 3}, 0x20000")
    A(f"s_mov_b32 s{SRD_WO}, s32")
    A(f"s_mov_b32 s{SRD_WO + 1}, s33")
    A(f"s_mov_b32 s{SRD_WO + 2}, {4096 * 1152}")
    A(f"s_mov_b32 s{SRD_WO + 3}, 0x20000")
    A(f"s_mov_b32 s{SRD_OUT}, s34")
    A(f"s_mov_b32 s{SRD_OUT + 1}, s35")
    A(f"s_mov_b32 s{SRD_OUT + 2}, {2304 * 1152}")
    A(f"s_mov_b32 s{SRD_OUT + 3}, 0x20000")
    A(f"s_mul_i32 s{sAS}, s{sMT}, 786432")
    A(f"s_lshl_b32 s{sT0}, s{sW}, 15")
    A(f"s_add_u32 s{sAS}, s{sAS}, s{sT0}")
    A(f"s_mul_i32 s{sBS}, s{sW}, {1024 * 1152}")
    A(f"s_lshl_b32 s{sT0}, s{sNT}, 7")
    A(f"s_add_u32 s{sBS}, s{sBS}, s{sT0}")
    WN = OPT["k2rot"]
    sA0, sB0, sPH, sI = 27, 28, 29, 30

    def blk_addr():
        return [f"s_add_u32 s{sT1}, s{sI}, s{sPH}", f"s_and_b32 s{sT1}, s{sT1}, {WN - 1}",
                f"s_and_b32 s31, s{sI}, {(~(WN - 1)) & 0xff}", f"s_or_b32 s{sT1}, s{sT1}, s31",
                f"s_mul_i32 s{sBS}, s{sT1}, {DEP * 32 * 1152}", f"s_add_u32 s{sBS}, s{sBS}, s{sB0}",
                f"s_lshl_b32 s{sAS}, s{sT1}, 12", f"s_add_u32 s{sAS}, s{sAS}, s{sA0}", f"s_add_u32 s{sI}, s{sI}, 1"]
    A(f"s_mov_b32 s{sA0}, s{sAS}")
    A(f"s_mov_b32 s{sB0}, s{sBS}")
    A(f"s_mul_i32 s{sPH}, s{sMT}, {OPT['k2mul']}")
    A(f"s_add_u32 s{sPH}, s{sPH}, s{sNT}")
    A(f"s_mov_b32 s{sI}, 0")
    A.ext(blk_addr())

    def loads(d):
        o = []
        for i in range(4):
            o.append([f"s_add_u32 m0, s{sLD}, {d * 4096 + i * 1024}",
                      f"s_add_u32 s{sT0}, s{sBS}, {(32 * d + 8 * i) * 1152}",
                      f"buffer_load_dwordx4 v{vBD}, {srd(SRD_WO)}, s{sT0} offen lds"])
        off = f" offset:{d * 1024}" if d else ""
        for i in range(6):
            o.append([f"buffer_load_dwordx4 {vr(ORING + 24 * d + 4 * i, 4)}, v{vA + i}, {srd(SRD_A)}, s{sAS} offen{off}"])
        return o

    def wreads(d):
        b = WF + 16 * (d % 2)
        return [f"ds_read_b64_tr_b16 {vr(b + 4 * n + 2 * e, 2)}, v{vBR + n} offset:{d * 4096 + e * 2048}"
                for n in range(4) for e in range(2)]

    zi = 0
    for d in range(DEP - 1):
        for g in loads(d):
            A.ext(g)
            for _ in range(4):
                if zi < 96:
                    A(f"v_mov_b32 v{ACC2 + zi}, 0")
                    zi += 1
    assert zi == 96
    A(f"s_mov_b32 s{sCNT}, {32 // DEP}")
    A(f"s_waitcnt vmcnt({10 * (DEP - 2) + 6})")
    if OPT["diag"]:
        A("s_memrealtime s[62:63]")
    A.ext(wreads(0))
    A.label("L2_loop")
    body = []
    Bd = body.append
    for d in range(DEP):
        Bd(f"s_waitcnt vmcnt({10 * (DEP - 3) + 6})")
        body += wreads((d + 1) % DEP)
        Bd("s_waitcnt lgkmcnt(8)")
        b = WF + 16 * (d % 2)
        ld = loads((d - 1) % DEP)
        k = 0
        for n in range(4):
            for i in range(6):
                acc = vr(ACC2 + 4 * (6 * n + i), 4)
                Bd(f"{MF} {acc}, {vr(b + 4 * n, 4)}, {vr(ORING + 24 * d + 4 * i, 4)}, {acc}")
                k += 1
                if ld and k % 2 == 0:
                    body += ld.pop(0)
        if d == 0:
            body += blk_addr()
            Bd(f"s_cmp_eq_u32 s{sCNT}, 1")
            Bd(f"s_cselect_b32 s{sAS}, 0x40000000, s{sAS}")
            Bd(f"s_cselect_b32 s{sBS}, 0x40000000, s{sBS}")
    Bd(f"s_sub_u32 s{sCNT}, s{sCNT}, 1")
    Bd(f"s_cmp_lg_u32 s{sCNT}, 0")
    A.ext(body)
    A("s_cbranch_scc1 L2_loop")
    errs = hazard.check(body + body, "k2loop")
    if OPT["diag"]:
        A("s_memrealtime s[64:65]")
    A("s_waitcnt vmcnt(0) lgkmcnt(0)")
    A("s_barrier")
    A(f"s_mul_i32 s{sT0}, s{sW}, 24576")
    A(f"v_lshl_add_u32 v{t0}, v0, 4, s{sT0}")
    A("s_nop 7")
    for q in range(24):
        A(f"ds_write_b128 v{t0}, {vr(ACC2 + 4 * q, 4)} offset:{q * 1024}")
    A(f"v_and_b32 v{t0}, 15, v0")
    A(f"v_lshlrev_b32 v{t0}, 4, v{t0}")
    A(f"v_bfe_u32 v{t1}, v0, 4, 1")
    A(f"v_lshl_add_u32 v{t0}, v{t1}, 9, v{t0}")
    A(f"v_lshrrev_b32 v{t1}, 5, v0")
    A(f"v_lshl_add_u32 v{t0}, v{t1}, 10, v{t0}")
    A(f"s_mul_i32 s{sT0}, s{sW}, {6 * 1024}")
    A(f"v_add_u32 v{t0}, s{sT0}, v{t0}")
    A(f"v_add_u32 v{t1}, 49152, v{t0}")
    A("s_waitcnt lgkmcnt(0)")
    A("s_barrier")
    for w in range(4):
        for x in range(3):
            for q in range(2):
                A(f"ds_read_b128 {vr(ORING + 24 * w + 8 * x + 4 * q, 4)}, v{t0 if w < 2 else t1} offset:{(w % 2) * 24576 + x * 2048 + q * 256}")
        if w % 2 == 1:
            A("s_waitcnt lgkmcnt(0)")
    for w in range(1, 4):
        for e in range(24):
            A(f"v_add_f32 v{ORING + e}, v{ORING + e}, v{ORING + 24 * w + e}")
    for e in range(12):
        A(f"v_cvt_pk_bf16_f32 v{ACC2 + e}, v{ORING + 2 * e}, v{ORING + 2 * e + 1}")
    A(f"v_and_b32 v{t0}, 15, v0")
    A(f"v_lshrrev_b32 v{t1}, 5, v0")
    A(f"v_lshl_add_u32 v{t0}, v{t1}, 4, v{t0}")
    A(f"v_mul_u32_u24 v{t0}, 1152, v{t0}")
    A(f"v_bfe_u32 v{t1}, v0, 4, 1")
    A(f"v_lshl_add_u32 v{t0}, v{t1}, 4, v{t0}")
    A(f"s_mul_i32 s{sAS}, s{sMT}, {96 * 1152}")
    A(f"s_lshl_b32 s{sT0}, s{sNT}, 7")
    A(f"s_add_u32 s{sAS}, s{sAS}, s{sT0}")
    A(f"s_lshl_b32 s{sT0}, s{sW}, 5")
    A(f"s_add_u32 s{sAS}, s{sAS}, s{sT0}")
    for x in range(3):
        A(f"buffer_store_dwordx4 {vr(ACC2 + 4 * x, 4)}, v{t0}, {srd(SRD_OUT)}, s{sAS} offen")
        A(f"s_add_u32 s{sAS}, s{sAS}, {32 * 1152}")
    if OPT["diag"]:
        A("s_waitcnt vmcnt(0)")
        A("s_memrealtime s[66:67]")
        A("s_waitcnt lgkmcnt(0)")
        for i in range(4):
            A(f"v_writelane_b32 v250, s{60 + 2 * i}, {i}")
        A(f"s_lshl_b32 s{sT0}, s2, 2")
        A(f"s_add_u32 s{sT0}, s{sT0}, s{sW}")
        A(f"s_lshl_b32 s{sT0}, s{sT0}, 8")
        A(f"s_add_u32 s{sT0}, s{sT0}, {DIAG_OFF + (1 << 20)}")
        A(f"v_lshlrev_b32 v{t0}, 2, v0")
        A(f"buffer_store_dword v250, v{t0}, {srd(SRD_A)}, s{sT0} offen")
    A.label("L2_end")
    A("s_endpgm")
    return errs


def desc(name, vg, acc, sg=102):
    return f""".p2align 6
.amdhsa_kernel {name}
  .amdhsa_next_free_vgpr {vg}
  .amdhsa_next_free_sgpr {sg}
  .amdhsa_accum_offset {acc}
  .amdhsa_group_segment_fixed_size 0
  .amdhsa_kernarg_size 64
  .amdhsa_user_sgpr_count 2
  .amdhsa_user_sgpr_kernarg_segment_ptr 1
  .amdhsa_system_sgpr_workgroup_id_x 1
.end_amdhsa_kernel
"""


def main():
    A = Asm()
    e = k1(A)
    if not OPT["fuse"]:
        e += k2(A)
    A.label("L_code_end")
    e += hazard.check(A.l, "linear")
    for x in e:
        print(x, file=sys.stderr)
    hdr = f"""; Fused MHA block (q-proj + attention) and output projection, gfx950. Generated by a script.
; @launch kernel=attn_kernel grid=(256,1,1) block=(256,1,1) lds={LDS1}
{";" if OPT["fuse"] else "; @launch kernel=oproj_kernel grid=(216,1,1) block=(256,1,1) lds=98304"}
.amdgcn_target "amdgcn-amd-amdhsa--gfx950"
.text
.globl attn_kernel
"""
    txt = hdr + "\n".join(A.l) + "\n.section .rodata,\"a\"\n" + desc("attn_kernel", 512, 256) + ("" if OPT["fuse"] else desc("oproj_kernel", 256, 256))
    open(sys.argv[1], "w").write(txt)
    if e and not OPT["nodma"]:
        sys.exit(1)


main()
```

```python
import math
import struct
import sys

import hazard

OPT = dict(diag=0, L=6, W=2, xmap=0, nodma=0, nobar=0, kvflag=1, ostflag=2, wopf=2, wsh=8,
           k2grid=216, LQ=6, dmastep=9, thr=40, show=0, qstep=5, up=2, qpflag=0, dbg=0, cpf=1, nph=3, k2rot=1, D=3, pf=0, stg=0, pfa=4, kvs=0, rot=0, k2mul=1, fuse=1, dst=1, DO=4, oflag=2, early=5)
for a in sys.argv[2:]:
    k, v = a.split("=")
    OPT[k] = int(v)
FLAGS = ['', ' nt', ' sc1', ' sc0 sc1', ' sc1 nt', ' sc0 sc1 nt', ' sc0']

BLK = 1056
HS = 16 * BLK
DD = OPT['D']
NS = 2 * DD + 1
TS = 61 % NS
XB = 1088
WOFF, XEOFF, XOFF = 0, 17408, 21504
WG0 = 4 * XB + OPT["wsh"]
WG1 = 8720
STSZ = 54272
LDS1 = 163840
WS_O_BYTES = 144 * 32 * 4096
DIAG_OFF = 64 << 20


def f32bits(x):
    return struct.unpack("<I", struct.pack("<f", x))[0]


QSCALE = f32bits(128 ** -0.5 * math.log2(math.e))


class Asm:
    def __init__(self):
        self.l = []

    def __call__(self, s):
        if " | buffer_store" in s:
            for x in s.split(" | "):
                self.l.append("    " + x)
        else:
            self.l.append("    " + s)

    def label(self, s):
        self.l.append(s + ":")

    def raw(self, s):
        self.l.append(s)

    def ext(self, lst):
        for s in lst:
            self(s)


def vr(a, n):
    return f"v[{a}:{a + n - 1}]"


def ar(a, n):
    return f"a[{a}:{a + n - 1}]"


def srd(n):
    return f"s[{n}:{n + 3}]"


MF = "v_mfma_f32_16x16x32_bf16"

SRD_X, SRD_W, SRD_K, SRD_V, SRD_O, SRD_P = 4, 8, 12, 16, 20, 84
sW, sP, sB, sH = 24, 25, 27, 28
sXD, sXS, sWD, sWS, sT0, sT1 = 42, 43, 44, 45, 46, 47
sXED, sXES = 48, 55
sCNT = 49
sKD, sVD, sKVS, sKN, sVN = 50, 51, 52, 53, 54
sSC = 56
sT2 = 57
sWP = 30
sG0 = 31
sDV = 3
sOO = 58
sREDO = 59
sST = 60
sWOF = 88
sCX, sCW = 89, 100
sPC = 98
sXSc, sWSc, sXEc = 29, 26, 101

vXD, vXDE, vWD, vCW, vV4 = 2, 4, 5, 6, 8
vQA = 160
ACC = 16
SB = [16, 48]
SE = 80
NEG = 88
QV = 160
vKB, vVB = 240, 244
vK, vV = 108, 112
vM = 120
vDUM = 252
OA, LA, ONES, RING = 0, 160, 180, 192
XF = [184, 204]
WRING = 224


def Sreg(t, par):
    return SE if t == 4 else SB[par] + 8 * t


stamp_n = [0]


def stamp_txt():
    if OPT["diag"]:
        n = stamp_n[0]
        stamp_n[0] += 1
        assert n < 12
        return [f"s_memtime s[{sST + 2 * n}:{sST + 2 * n + 1}]"]
    return []


def stamp(A):
    A.ext(stamp_txt())


def is_ds(x):
    return x.startswith("ds_")


def add_waits(seq, cyclic, W=1, nfr=None):
    rep = 2 if cyclic else 1
    out = []
    issued = 0
    done = 0
    last = {}
    for it in range(rep):
        out = []
        for e in seq:
            if e[0] == "x":
                if is_ds(e[1]):
                    issued += 1
                    if e[2] is not None:
                        last[e[2]] = issued
                if "lgkmcnt(0)" in e[1] or e[1] == "VMW":
                    done = issued
                out.append(e[1])
            else:
                need = 0
                for f in e[2]:
                    if f in last:
                        need = max(need, last[f])
                if need > done:
                    tgt = need
                    for f in e[3] if len(e) > 3 else []:
                        if f in last and last[f] > need - 40:
                            tgt = max(tgt, last[f])
                    n = issued - tgt
                    assert n <= 15, n
                    out.append(f"s_waitcnt lgkmcnt({n})")
                    done = tgt
                out.append(e[1])
    return out


def kv_piece(dst, srdn, i):
    o = f" offset:{i * 1024}" if i else ""
    return [f"s_add_u32 m0, s{dst}, {i * (BLK - 1024)}",
            f"buffer_load_dwordx4 v{vV4}, {srd(srdn)}, s{sKVS} offen{o}{FLAGS[OPT['kvflag']]} lds"]


def item_piece(n, i):
    o = f" offset:{i * 1024}" if i else ""
    return [f"s_add_u32 m0, s{sWOF}, {(n % NS) * HS + i * (BLK - 1024)}",
            (f"s_add_u32 s{sT0}, s{sG0}, {(n // 2) * 16384}" if OPT["rot"] else f"s_mov_b32 s{sT0}, {(n // 2) * 16384}"),
            f"buffer_load_dwordx4 v{vV4}, {srd(SRD_V if n % 2 else SRD_K)}, s{sT0} offen{o}{FLAGS[OPT['kvflag']]} lds"]


def adv(r, tmp=None):
    tmp = sT2 if tmp is None else tmp
    return [f"s_add_u32 s{r}, s{r}, {2 * HS}", f"s_sub_u32 s{tmp}, s{r}, {NS * HS}", f"s_min_u32 s{r}, s{r}, s{tmp}"]


def kread(dst, base, kb, kk):
    return f"ds_read_b128 {dst}, v{base + (kk >> 1)} offset:{kb * 256 + (kk & 1) * 64}"


def build_loop():
    err = None
    for lo in list(range(78, 153)) + list(range(0, 78)):
        try:
            return build_loop_at(lo)
        except AssertionError as e:
            err = e
    raise err


def build_loop_at(lo):
    L, W = OPT["L"], OPT["W"]
    NF = 32
    mf = []
    qk_end = {}
    pv_first = {}
    phase2 = {}
    step_start = {}
    for j in range(2):
        jn = 1 - j
        step_start[j] = len(mf)
        tiles = range(5) if jn == 0 else range(4)
        for kb in range(2):
            for kk in range(4):
                f = 16 * j + kb * 4 + kk
                for t in tiles:
                    S = Sreg(t, jn) + 4 * kb
                    C = vr(NEG + 4 * t, 4) if kk == 0 else vr(S, 4)
                    mf.append(dict(t=f"{MF} {vr(S, 4)}, {ar(RING + 4 * (f % 16), 4)}, {vr(QV + 16 * t + 4 * kk, 4)}, {C}", f=f))
                    qk_end[(jn, t, kb)] = len(mf) - 1
        tiles = list(range(5) if j == 0 else range(4))
        phase2[j] = len(mf)
        for dt in range(8):
            f = 16 * j + 8 + dt
            for t in tiles:
                O = ar(OA + 32 * t + 4 * dt, 4)
                mf.append(dict(t=f"{MF} {O}, {ar(RING + 4 * (f % 16), 4)}, {vr(Sreg(t, j), 4)}, {O}", f=f))
                pv_first.setdefault((j, t), len(mf) - 1)
            x = dt - 2
            if 0 <= x < len(tiles):
                Lr = ar(LA + 4 * x, 4)
                mf.append(dict(t=f"{MF} {Lr}, {ar(ONES, 4)}, {vr(Sreg(x, j), 4)}, {Lr}", f=f))
    N = len(mf)
    assert N == 153
    first_use, last_use = {}, {}
    for i, m in enumerate(mf):
        first_use.setdefault(m["f"], i)
        last_use[m["f"]] = i
    cap = [2] * N
    for f in range(NF):
        if f % W == 0:
            cap[(first_use[f] - 1) % N] -= 1
    gX = step_start[1] - 1
    cap[gX] -= 1
    cap[N - 1] -= 1
    ecap = [False] * N
    for f in range(NF):
        a, b = first_use[f], last_use[f]
        n = b - a + 1
        pos = {4: [0, 2], 5: [0, 2, 3], 6: [0, 2, 4]}[n]
        for p in pos:
            ecap[a + p] = True
    gaps = [[] for _ in range(N)]

    def frag_reads(f):
        j, r = divmod(f, 16)
        dst = RING + 4 * (f % 16)
        if r < 8:
            kb, kk = divmod(r, 4)
            return [kread(ar(dst, 4), vK + 2 * (1 - j), kb, kk)]
        dt = r - 8
        return [f"ds_read_b64_tr_b16 {ar(dst + 2 * e, 2)}, v{vV + j} offset:{e * 256 + dt * 32}" for e in range(2)]

    used = [0] * N
    nvm = 8 + (1 if OPT["cpf"] else 0) + (1 if OPT["wopf"] == 2 else 0)
    gB = phase2[0] + 1
    gaps[gB] += [(f"s_waitcnt vmcnt({(DD - 2) * nvm})", "", None), ("s_barrier", "", None)]
    used[gB] = 2
    assert not ecap[gB] and cap[gB] == 2
    order = []
    for j in (0, 1):
        tiles = range(5) if j == 0 else range(4)
        for kb in range(2):
            for t in tiles:
                for r in range(4):
                    order.append((j, t, kb, r))

    def avail(j, t, kb):
        e = qk_end[(j, t, kb)] + 4
        return e - N if j == 0 else e
    cur = -10 ** 9
    for rnd in range(3):
        place = {}
        for (j, t, kb, r) in order:
            g = max(cur + 1, avail(j, t, kb))
            while not (ecap[g % N] and cap[g % N] == 2):
                g += 1
            place[(j, t, kb, r)] = g
            cur = g
        cur -= N
    for key, g in place.items():
        j, t, kb, r = key
        S = Sreg(t, j) + 4 * kb + r
        gaps[g % N].append((f"v_exp_f32 v{S}, v{S}", "n" if g < 0 else "", ("sm", j)))
        assert used[g % N] == 0
        used[g % N] = 2
    singles = []
    seqn = [0]

    def add(tg, prio, text, kind=None, chain=None):
        singles.append(dict(g=tg, p=prio, s=seqn[0], t=text, k=kind, chain=chain))
        seqn[0] += 1

    for (j, t, kb, r), g in place.items():
        if r % 2 == 1:
            S = Sreg(t, j)
            add(g + 1, 1, f"v_cvt_pk_bf16_f32 v{S + 2 * kb + r // 2}, v{S + 4 * kb + r - 1}, v{S + 4 * kb + r}",
                kind=("cvt", j, t), chain="cvt")
    tgt_rd = {}
    for f in range(NF):
        tg = first_use[(f - L) % NF] + (0 if f - L >= 0 else -N)
        tgt_rd[f] = tg
        for x in frag_reads(f):
            add(tg, 0, x, kind=("rd", f), chain="rd")
    add(tgt_rd[7], 0, f"v_add_u32 v{vK + 2}, s{sKN}, v{vKB + 2}", chain="rd", kind="k1")
    add(tgt_rd[7], 0, f"v_add_u32 v{vK + 3}, s{sKN}, v{vKB + 3}", chain="rd", kind="k1")
    add(tgt_rd[15], 0, f"v_add_u32 v{vV}, s{sVN}, v{vVB}", chain="rd", kind="v0")
    add(tgt_rd[23], 0, f"v_add_u32 v{vK}, s{sKN}, v{vKB}", chain="rd", kind="k0")
    add(tgt_rd[23], 0, f"v_add_u32 v{vK + 1}, s{sKN}, v{vKB + 1}", chain="rd", kind="k0")
    add(tgt_rd[31], 0, f"v_add_u32 v{vV + 1}, s{sDV}, v{vV}", chain="rd", kind="v1")
    g = gB + 1
    st = OPT["dmastep"]
    for i in range(4):
        pc = kv_piece(sVD, SRD_V, i)
        add(g, 2, pc[0], kind="m0", chain="dma")
        add(g + 1, 2, pc[1], kind="dma", chain="dma")
        g += st
    g -= st - 2
    add(g, 3, f"s_add_u32 s{sVD}, s{sKN}, s{sWOF}", chain="dma")
    for x in adv(sKN):
        add(g, 3, x, chain="dma", kind="advk")
    g += st - 2
    for i in range(4):
        pc = kv_piece(sKD, SRD_K, i)
        add(g, 2, pc[0], kind="m0", chain="dma")
        add(g + 1, 2, pc[1], kind="dma", chain="dma")
        g += st
    g -= st - 2
    if OPT["cpf"]:
        add(80, 3, f"global_load_dword v{vDUM}, v{vCW}, s[{sPC}:{sPC + 1}]", chain="misc")
    if OPT["wopf"] == 2:
        add(84, 3, f"buffer_load_dword v{vDUM}, v7, {srd(SRD_P)}, s{sWP} offen", chain="misc")
        add(84, 3, f"s_add_u32 s{sWP}, s{sWP}, 160", chain="misc")
    for x in adv(sKD):
        add(g, 3, x, chain="dma")
    add(g, 3, f"s_add_u32 s{sKVS}, s{sKVS}, 16384", chain="dma")
    if OPT["rot"]:
        add(g, 3, f"s_and_b32 s{sKVS}, s{sKVS}, 0x7ffff", chain="dma")
        add(g, 3, f"s_cmp_lt_u32 s{sCNT}, {DD} | s_cselect_b32 s{sKVS}, 0x100000, s{sKVS}", chain="dma")
    for x in adv(sVN, sT1):
        add(78, 3, x, chain="misc", kind="advv")
    for x in singles:
        t2_ = (x["g"] - lo) % N + lo
        x["sh"] = x["g"] - t2_
        x["g"] = t2_
    chains = {}
    for x in sorted(singles, key=lambda x: (x["g"], x["s"])):
        chains.setdefault(x["chain"], []).append(x)
    placed = []
    lastg = {}
    gS = gX - 1
    while used[gS] or cap[gS] < 1:
        gS -= 1
    gaps[gS] += [(f"s_sub_u32 s{sCNT}, s{sCNT}, 1", "", None)]
    used[gS] = 1
    g = lo
    while any(chains.values()):
        while used[g % N] < cap[g % N]:
            cands = []
            for c, q in chains.items():
                if q and q[0]["g"] <= g:
                    if q[0]["k"] == "dma" and lastg.get(c) == g:
                        continue
                    if gS <= g % N <= gX and q[0]["t"].startswith("s_"):
                        continue
                    cands.append(q[0])
            if not cands:
                break
            x = min(cands, key=lambda x: (x["p"] - (g - x["g"]) / 6.0, x["g"], x["s"]))
            chains[x["chain"]].pop(0)
            lastg[x["chain"]] = g
            x["at"] = g + x["sh"]
            placed.append(x)
            used[g % N] += 1
            gaps[g % N].append((x["t"], "n" if x["at"] < 0 else "", x["k"]))
        g += 1
        assert g <= lo + N, [q[0] for q in chains.values() if q]
    gaps[gX].append(("s_cbranch_scc1 L1_tail", "", None))
    rd_at, first_rd, at = {}, {}, {}
    for x in placed:
        if isinstance(x["k"], tuple) and x["k"][0] == "rd":
            rd_at[x["k"][1]] = x["at"]
            first_rd.setdefault(x["k"][1], x["at"])
        elif isinstance(x["k"], tuple) and x["k"][0] == "cvt":
            _, j, t = x["k"]
            assert x["at"] <= pv_first[(j, t)] - 2, ("cvt late", x, pv_first[(j, t)])
        else:
            at.setdefault(x["k"], []).append(x["at"])
        assert x["at"] < N, x
    for f in range(NF):
        lead = first_use[f - (f % W)] - rd_at[f]
        assert lead >= 8, ("short lead", f, lead)
    assert first_rd[16] > gB
    assert max(at["k1"]) < min(at["advk"]) and max(at["advk"]) < min(at["k0"]), at
    assert max(at["v0"]) < min(at["advv"]), at
    seq, pro, tail = [], [], []
    for i, m in enumerate(mf):
        f = m["f"]
        grp = [(f - f % W + k) % NF for k in range(W)]
        seq.append(("m", m["t"], [f], grp))
        for x in gaps[i]:
            isrd = isinstance(x[2], tuple) and x[2][0] == "rd"
            seq.append(("x", x[0], x[2][1] if isrd else None))
            if x[1] == "n":
                pro.append(x[0])
            if i > gX and x[1] != "n" and isinstance(x[2], tuple):
                if (x[2][0] in ("sm", "cvt") and x[2][1] == 1) or (isrd and x[2][1] >= 24):
                    tail.append(x[0])
    body = add_waits(seq, True)
    body = [y for x in body for y in x.split(" | ")]
    if OPT["show"]:
        print("gap use:", "".join(str(u) for u in used), file=sys.stderr)
        print("instr count", len(body), "waits", sum("lgkmcnt" in x for x in body), "bar", gB, "dma", at["dma"], file=sys.stderr)
        print("pro", len(pro), "tail", len(tail), "lo", lo, file=sys.stderr)

    def keep(x):
        if OPT["nodma"] and (x.startswith("buffer_load") or x.startswith("s_add_u32 m0") or "vmcnt" in x):
            return False
        if OPT["nobar"] and x.startswith("s_barrier"):
            return False
        return True
    return [x for x in body if keep(x)], pro, tail


def cursor(r):
    return [f"s_add_u32 s{r}, s{r}, 128", f"s_sub_u32 s{sT2}, s{r}, 1152", f"s_min_u32 s{r}, s{r}, s{sT2}"]


def x_pieces(c):
    st = STG[c] * STSZ
    p = []
    for i in range(8):
        pre = [f"s_add_u32 s{sXSc}, s{sXS}, s{sCX}"] + cursor(sCX) if i == 0 else []
        p.append(pre + [f"s_add_u32 m0, s{sXD}, {st + i * 1024}",
                        (f"s_add_u32 s{sT0}, s{sXSc}, {i * 9216}" if i else "s_nop 0"),
                        f"buffer_load_dwordx4 v{vXD + (i & 1)}, {srd(SRD_X)}, s{sT0 if i else sXSc} offen{FLAGS[OPT['qpflag']]} lds"])
    return p


def wg_pieces(c):
    st = STG[c] * STSZ
    p = []
    for r in range(4):
        pre = [f"s_lshl_b32 s{sWSc}, s{sCW}, 12", f"s_add_u32 s{sWSc}, s{sWSc}, s{sWS}",
               f"s_add_u32 s{sXEc}, s{sXES}, s{sCW}"] + cursor(sCW) if r == 0 else []
        p.append(pre + [f"s_add_u32 m0, s{sWD}, {st + WOFF + r * XB}",
                        (f"s_add_u32 s{sT0}, s{sWSc}, {r * 8192}" if r else "s_nop 0"),
                        f"buffer_load_dwordx4 v{vWD}, {srd(SRD_W)}, s{sT0 if r else sWSc} offen{FLAGS[OPT['qpflag']]} lds"])
    p.append([f"s_add_u32 m0, s{sXED}, {st}", "s_nop 0",
              f"buffer_load_dwordx4 v{vXDE}, {srd(SRD_X)}, s{sXEc} offen{FLAGS[OPT['qpflag']]} lds"])
    return p


STG = [[0, 2, 1, 0, 2, 1, 2, 1, 2], [0, 1, 2, 0, 1, 2, 0, 1, 2]][OPT['stg']]


def build_qproj(extras, nup, tail_items):
    LQ = OPT["LQ"]
    mf = []
    first_use, last_use = {}, {}
    for s in range(18):
        for sl in range(8):
            f = ("w", 8 * s + sl)
            tiles = range(5) if sl < 4 else range(4)
            for t in tiles:
                a = ACC + 32 * t + 4 * sl
                C = "0" if s == 0 else vr(a, 4)
                txt = f"{MF} {vr(a, 4)}, {ar(WRING + 4 * sl, 4)}, {ar(XF[s % 2] + 4 * t, 4)}, {C}"
                mf.append((txt, [f, ("x", s, t)]))
                for q in (f, ("x", s, t)):
                    first_use.setdefault(q, len(mf) - 1)
                    last_use[q] = len(mf) - 1
    N = len(mf)
    gaps = [[] for _ in range(N + 1)]

    def st_of(c):
        return (6, 0) if STG[c] == 2 else (0, STG[c] * STSZ)

    def wread(n):
        s, sl = divmod(n, 8)
        c, ks = divmod(s, 2)
        rb, st = st_of(c)
        kk, u = divmod(sl, 2)
        base = vQA + rb + (4 if kk < 2 else 5)
        return [(f"ds_read_b64_tr_b16 {ar(WRING + 4 * sl + 2 * e, 2)}, v{base} offset:{st + (kk & 1) * 64 + 8 * u + e * 256 + ks * 512}",
                 ("w", n)) for e in range(2)]

    def xread(s, t):
        c, ks = divmod(s, 2)
        rb, st = st_of(c)
        if t < 4:
            return (f"ds_read_b128 {ar(XF[s % 2] + 4 * t, 4)}, v{vQA + rb + ks} offset:{st + t * 2048}", ("x", s, t))
        return (f"ds_read_b128 {ar(XF[s % 2] + 16, 4)}, v{vQA + rb + 2 + ks} offset:{st}", ("x", s, t))

    bar = {0: -1, 9: N}
    for c in range(1, 9):
        bar[c] = last_use[("w", 16 * c - LQ + 1)]
    items = []
    for n in range(144):
        c = n // 16
        e = last_use[("w", n - 8)] if n >= 8 else -1
        tg = first_use[("w", n - LQ)] if n >= LQ else -1
        tg = max(tg, e, bar[c])
        for x in wread(n):
            items.append((tg, x))
    rd = sorted(items, key=lambda z: z[0])
    xi = []
    for s in range(18):
        c, ks = divmod(s, 2)
        for t in range(5):
            e = last_use[("x", s - 2, t)] if s >= 2 else -1
            tg = max(e, bar[c])
            if s == 1:
                tg = 0
            xi.append((tg, xread(s, t)))
    allrd = sorted([(tg, 0, i, x) for i, (tg, x) in enumerate(xi)] + [(tg, 1, i, x) for i, (tg, x) in enumerate(rd)],
                   key=lambda z: (z[0], z[1], z[2]))
    used = [0] * (N + 2)
    xdone = {}
    g = -1
    for tg, _, _, x in allrd:
        g = max(g, tg)
        if g < 0 and used[0] >= 9:
            g = 0
        while g >= 0 and used[g + 1] >= 2:
            g += 1
        gaps[g + 1].append(("x", x[0], x[1]))
        used[g + 1] += 1
        if x[1][0] == "x":
            xdone[x[1][1]] = g
        cc = x[1][1] // 16 if x[1][0] == "w" else x[1][1] // 2
        assert g < bar[cc + 1] - 2, (x, g, bar[cc + 1])
    last_rd = g
    groups = []
    for c in range(nup, 9):
        prev = [p for p in range(c) if STG[p] == STG[c]]
        ew = bar[prev[-1] + 1] if prev else -1
        ex = xdone[2 * prev[-1] + 1] + 10 if prev else -1
        groups.append((ew, 0, c, wg_pieces(c), ("W", c), None))
        groups.append((ex, 2, c, x_pieces(c), ("X", c), prev[-1] if prev else None))
    for c, ps in extras.items():
        groups.append((bar[c], 1, c, ps, ("E", c), None))
    groups.sort(key=lambda z: (z[0], z[2] if z[0] < 0 else 0, z[1]))
    for kind in "WX":
        cs = [z[4][1] for z in groups if z[4][0] == kind]
        assert cs == sorted(cs), cs
    issued = []
    for c in range(nup):
        issued += [(("W", c), -1)] * 5 + [(("X", c), -1)] * 8
        if c == 0 and OPT["pf"]:
            issued += [(("P", 0), -1)] * 2
    g = 0
    for tg, _, _, ps, tag, prev in groups:
        for i, p in enumerate(ps):
            late = g - tg
            g = max(g, tg)
            g0 = g
            if i == 0 and prev is not None:
                while used[g + 1] >= 1:
                    g += 1
                gaps[g + 1].append(("xw", ("x", 2 * prev + 1)))
                used[g + 1] += 2
            for ins in p[:-1]:
                if ins == "s_nop 0":
                    continue
                while used[g + 1] >= 2:
                    g += 1
                gaps[g + 1].append(("x", ins, None))
                used[g + 1] += 1
            g += 1
            while used[g + 1] >= 2:
                g += 1
            assert g < N - 30, (tag, g)
            gaps[g + 1].append(("x", p[-1], None))
            used[g + 1] = 2
            issued.append((tag, g))
            g = max(g + 1, g0 + (OPT["qstep"] if late < 30 else 2))
    vm_at = {}
    for c in range(1, 9):
        before = [t for t, gg in issued if gg < bar[c]]
        for t, gg in issued:
            if t in (("W", c), ("X", c)):
                assert gg < bar[c] - 30, (t, gg, bar[c])
        lastneed = max(i for i, t in enumerate(before) if t in (("W", c), ("X", c)))
        vm_at[c] = len(before) - 1 - lastneed
    if OPT["show"]:
        print("bar", bar, "vm", vm_at, "issue", [(t[0] + str(t[1]), g) for t, g in issued if g >= 0], "lastrd", last_rd - (N - 36), file=sys.stderr)
    seq = []
    tf = list(tail_items)
    for i in range(N + 1):
        if i > 0:
            seq.append(("m", mf[i - 1][0], mf[i - 1][1]))
        for c in range(1, 9):
            if bar[c] == i - 1:
                seq.append(("x", f"s_waitcnt vmcnt({vm_at[c]}) lgkmcnt(0)", None))
                seq.append(("x", "s_barrier", None))
                if OPT["diag"]:
                    seq.append(("x", f"v_writelane_b32 v250, s90, {40 + c}", None))
                    seq.append(("x", "s_memtime s[90:91]", None))
        for x in gaps[i]:
            if x[0] == "xw":
                seq.append(("m", "s_nop 0", [("x", x[1][1], t) for t in range(5)]))
            else:
                seq.append(x)
        while tf and tf[0][0] <= i - 1 - (N - 36):
            seq.append(("x", tf.pop(0)[1], None))
    assert not tf
    return add_waits(seq, False), [t for t, _ in issued]


def p3(A, rest):
    DW, DO = 8, OPT["DO"]
    SRD_OUT, SRD_D = SRD_X, SRD_W
    sMT, sNT, sAS, sBS, sLD, sU, sSP = sXD, sXS, sWD, sWS, sXED, sXES, sCNT
    vA, vBD, vBR, u0, u1 = 240, 246, 104, 247, 248
    ACC2, WF = 160, 112
    ORING = 0
    Z = Asm()
    Z("s_load_dwordx4 s[32:35], s[0:1], 40")
    Z(f"s_lshr_b32 s{sU}, s2, 3")
    Z(f"s_mul_i32 s{sNT}, s{sU}, 43")
    Z(f"s_lshr_b32 s{sNT}, s{sNT}, 7")
    Z(f"s_mul_i32 s{sMT}, s{sNT}, 3")
    Z(f"s_sub_u32 s{sMT}, s{sU}, s{sMT}")
    Z(f"s_and_b32 s{sU}, s2, 7")
    Z(f"s_mul_i32 s{sU}, s{sU}, 3")
    Z(f"s_add_u32 s{sMT}, s{sMT}, s{sU}")
    Z(f"v_lshrrev_b32 v{u0}, 3, v0")
    Z(f"v_mul_u32_u24 v{vBD}, 1152, v{u0}")
    Z(f"v_lshrrev_b32 v{u0}, 4, v0")
    Z(f"v_lshlrev_b32 v{u0}, 1, v{u0}")
    Z(f"v_and_b32 v{u1}, 7, v0")
    Z(f"v_xor_b32 v{u0}, v{u0}, v{u1}")
    Z(f"v_lshl_add_u32 v{vBD}, v{u0}, 4, v{vBD}")
    Z(f"s_lshl_b32 s{sLD}, s{sW}, 12")
    Z(f"s_mul_i32 s{sBS}, s{sW}, {1024 * 1152}")
    Z(f"s_lshl_b32 s{sU}, s{sNT}, 7")
    Z(f"s_add_u32 s{sBS}, s{sBS}, s{sU}")
    Z("s_cmp_ge_u32 s2, 216")
    Z(f"s_cselect_b32 s{sBS}, 0x40000000, s{sBS}")
    A.ext([x.strip() for x in Z.l])

    def wload(s):
        d = s % DW
        return [[f"s_add_u32 m0, s{sLD}, {d * 16384 + i * 1024}",
                 f"s_add_u32 s{sU}, s{sBS}, {(32 * s + 8 * i) * 1152}",
                 f"buffer_load_dwordx4 v{vBD}, {srd(SRD_P)}, s{sU} offen lds"] for i in range(4)]

    def oload(s):
        d = s % DO
        off = f" offset:{(s % 4) * 1024}" if s % 4 else ""
        o = []
        for i in range(6):
            pre = [f"s_add_u32 s{sAS}, s{sAS}, 4096"] if (i == 0 and s % 4 == 0 and s) else []
            o.append(pre + [f"buffer_load_dwordx4 {ar(ORING + 24 * d + 4 * i, 4)}, v{vA + i}, {srd(SRD_O)}, s{sAS} offen{off}{FLAGS[OPT['oflag']]}"])
        return o

    def wreads(s):
        d = s % DW
        b = WF + 16 * (s % 2)
        return [f"ds_read_b64_tr_b16 {vr(b + 4 * n + 2 * e, 2)}, v{vBR + 4 * (d // 4) + n} offset:{(d % 4) * 16384 + e * 2048}"
                for n in range(4) for e in range(2)]

    early = [p for s in range(OPT["early"]) for p in wload(s)]
    n = len(early)
    for i, p in enumerate(early):
        A.ext(p)
        A.ext(rest[(i * len(rest)) // n:((i + 1) * len(rest)) // n])
    if not early:
        A.ext(rest)
    stamp(A)
    Z = Asm()
    Z(f"v_lshlrev_b32 v{vA}, 4, v0")
    for i in range(1, 6):
        Z(f"v_add_u32 v{vA + i}, {i * 131072}, v{vA}")
    Z(f"v_lshrrev_b32 v{u0}, 2, v0")
    Z(f"v_lshlrev_b32 v{vBR}, 7, v{u0}")
    Z(f"v_bfe_u32 v{u0}, v0, 3, 2")
    Z(f"v_lshl_add_u32 v{vBR}, v{u0}, 5, v{vBR}")
    Z(f"v_and_b32 v{u0}, 3, v0")
    Z(f"v_lshl_add_u32 v{vBR}, v{u0}, 3, v{vBR}")
    Z(f"v_add_u32 v{vBR}, s{sLD}, v{vBR}")
    for n_ in range(1, 4):
        Z(f"v_xor_b32 v{vBR + n_}, {32 * n_}, v{vBR}")
    for n_ in range(4):
        Z(f"v_add_u32 v{vBR + 4 + n_}, 65536, v{vBR + n_}")
    Z(f"s_mul_i32 s{sAS}, s{sMT}, 786432")
    Z(f"s_lshl_b32 s{sU}, s{sW}, 15")
    Z(f"s_add_u32 s{sAS}, s{sAS}, s{sU}")
    Z("s_waitcnt lgkmcnt(0)")
    Z(f"s_mov_b32 s{SRD_OUT}, s32")
    Z(f"s_mov_b32 s{SRD_OUT + 1}, s33")
    Z(f"s_mov_b32 s{SRD_OUT + 2}, {2304 * 1152}")
    Z(f"s_mov_b32 s{SRD_OUT + 3}, 0x20000")
    Z(f"s_mov_b32 s{SRD_D}, s34")
    Z(f"s_mov_b32 s{SRD_D + 1}, s35")
    Z(f"s_mov_b32 s{SRD_D + 2}, 256")
    Z(f"s_mov_b32 s{SRD_D + 3}, 0x20000")
    Z(f"s_lshl_b32 s{sT0}, s{sB}, 2")
    Z(f"s_lshr_b32 s{sT1}, s{sH}, 3")
    Z(f"s_add_u32 s{sT0}, s{sT0}, s{sT1}")
    Z(f"s_lshl_b32 s{sT0}, s{sT0}, 3")
    Z(f"s_and_b32 s{sT1}, s2, 7")
    Z(f"s_lshl_b32 s{sT1}, s{sT1}, 2")
    Z(f"s_add_u32 s{sT1}, s{sT1}, s{sW}")
    Z(f"s_lshl_b32 s{sT1}, s{sT1}, 3")
    Z(f"v_mov_b32 v{u0}, 1")
    Z(f"v_mov_b32 v{u1}, 0")
    A.ext([x.strip() for x in Z.l])
    A("s_waitcnt vmcnt(0)")
    A("s_barrier")
    if OPT["diag"]:
        A("s_memrealtime s[78:79]")
    A(f"s_cmp_lg_u32 s{sW}, 0")
    A("s_cbranch_scc1 L3_noadd")
    A("s_mov_b64 exec, 1")
    A(f"buffer_atomic_add v{u0}, v{u1}, {srd(SRD_D)}, s{sT0} offen sc1")
    A("s_mov_b64 exec, -1")
    A.label("L3_noadd")
    A("s_cmp_ge_u32 s2, 216")
    A("s_cbranch_scc1 L3_done")
    for s in range(OPT["early"], DW):
        for p in wload(s):
            A.ext(p)
    A(f"s_mov_b32 s{sSP}, {1 << 22}")
    A.label("L3_poll")
    A(f"buffer_load_dword v{u0}, v{u1}, {srd(SRD_D)}, s{sT1} offen sc1")
    A("s_waitcnt vmcnt(0)")
    A(f"v_readfirstlane_b32 s{sU}, v{u0}")
    A(f"s_sub_u32 s{sSP}, s{sSP}, 1")
    A("s_cbranch_scc1 L3_go")
    A(f"s_cmp_ge_u32 s{sU}, 8")
    A("s_cbranch_scc1 L3_go")
    A("s_sleep 2")
    A("s_branch L3_poll")
    A.label("L3_go")
    if OPT["diag"]:
        A("s_memrealtime s[80:81]")
    vmq = []
    for s in range(DO):
        for p in oload(s):
            A.ext(p)
            vmq.append(("o", s))
    A.ext(wreads(0))
    AC = 160
    for s in range(32):
        need = [i for i, t in enumerate(vmq) if t in (("o", s), ("w", s + 1))]
        A(f"s_waitcnt vmcnt({len(vmq) - 1 - max(need)})")
        if s + 1 < 32:
            A.ext(wreads(s + 1))
            A("s_waitcnt lgkmcnt(8)")
        else:
            A("s_waitcnt lgkmcnt(0)")
        b = WF + 16 * (s % 2)
        ld = []
        if s + DW < 32:
            ld += [(p, ("w", s + DW)) for p in wload(s + DW)]
        if s >= 1 and s - 1 + DO < 32:
            ld += [(p, ("o", s - 1 + DO)) for p in oload(s - 1 + DO)]
        k = 0
        for n_ in range(4):
            for i in range(6):
                acc = ar(AC + 4 * (6 * n_ + i), 4)
                A(f"{MF} {acc}, {vr(b + 4 * n_, 4)}, {ar(ORING + 24 * (s % DO) + 4 * i, 4)}, {'0' if s == 0 else acc}")
                k += 1
                if ld and k % 2 == 0:
                    p, tag = ld.pop(0)
                    A.ext(p)
                    vmq.append(tag)
        assert not ld
    if OPT["diag"]:
        A("s_memrealtime s[82:83]")
    A("s_barrier")
    A(f"s_mul_i32 s{sT0}, s{sW}, 24576")
    A(f"v_lshl_add_u32 v{u0}, v0, 4, s{sT0}")
    A("s_nop 4")
    for q in range(24):
        A(f"ds_write_b128 v{u0}, {ar(AC + 4 * q, 4)} offset:{q * 1024}")
    A(f"v_and_b32 v{u0}, 15, v0")
    A(f"v_lshlrev_b32 v{u0}, 4, v{u0}")
    A(f"v_bfe_u32 v{u1}, v0, 4, 1")
    A(f"v_lshl_add_u32 v{u0}, v{u1}, 9, v{u0}")
    A(f"v_lshrrev_b32 v{u1}, 5, v0")
    A(f"v_lshl_add_u32 v{u0}, v{u1}, 10, v{u0}")
    A(f"s_mul_i32 s{sT0}, s{sW}, {6 * 1024}")
    A(f"v_add_u32 v{u0}, s{sT0}, v{u0}")
    A(f"v_add_u32 v{u1}, 49152, v{u0}")
    A(f"v_and_b32 v9, 15, v0")
    A(f"v_lshrrev_b32 v10, 5, v0")
    A(f"v_lshl_add_u32 v9, v10, 4, v9")
    A(f"v_mul_u32_u24 v9, 1152, v9")
    A(f"v_bfe_u32 v10, v0, 4, 1")
    A(f"v_lshl_add_u32 v9, v10, 4, v9")
    A(f"s_mul_i32 s{sAS}, s{sMT}, {96 * 1152}")
    A(f"s_lshl_b32 s{sT0}, s{sNT}, 7")
    A(f"s_add_u32 s{sAS}, s{sAS}, s{sT0}")
    A(f"s_lshl_b32 s{sT0}, s{sW}, 5")
    A(f"s_add_u32 s{sAS}, s{sAS}, s{sT0}")
    A("s_waitcnt lgkmcnt(0)")
    A("s_barrier")
    R = 16
    for x in range(3):
        for w in range(4):
            for q in range(2):
                A(f"ds_read_b128 {vr(R + 32 * x + 8 * w + 4 * q, 4)}, v{u0 if w < 2 else u1} offset:{(w % 2) * 24576 + x * 2048 + q * 256}")
        if x == 0:
            continue
    for x in range(3):
        A(f"s_waitcnt lgkmcnt({min(15, 8 * (2 - x))})")
        bb = R + 32 * x
        for e in range(8):
            A(f"v_add_f32 v{bb + e}, v{bb + e}, v{bb + 8 + e}")
            A(f"v_add_f32 v{bb + 16 + e}, v{bb + 16 + e}, v{bb + 24 + e}")
        for e in range(8):
            A(f"v_add_f32 v{bb + e}, v{bb + e}, v{bb + 16 + e}")
        for e in range(4):
            A(f"v_cvt_pk_bf16_f32 v{bb + 8 + e}, v{bb + 2 * e}, v{bb + 2 * e + 1}")
        A(f"buffer_store_dwordx4 {vr(bb + 8, 4)}, v9, {srd(SRD_OUT)}, s{sAS} offen")
        A(f"s_add_u32 s{sAS}, s{sAS}, {32 * 1152}")
    A.label("L3_done")


def k1(A):
    A.raw(".p2align 8")
    A.raw(".type attn_kernel,@function")
    A.label("attn_kernel")
    A("s_cmp_ge_u32 s2, 256")
    A("s_cbranch_scc1 L1_end")
    A("s_load_dwordx8 s[32:39], s[0:1], 0")
    A("s_load_dwordx2 s[40:41], s[0:1], 56")
    A("s_load_dwordx2 s[30:31], s[0:1], 32")
    A(f"s_getpc_b64 s[{sPC}:{sPC + 1}]")
    A.label("L1_pc")
    stamp(A)
    if OPT["diag"]:
        A("s_memrealtime s[92:93]")
    A("s_lshr_b32 s3, s2, 3")
    if OPT["cpf"]:
        A(f"s_lshl_b32 s{sT0}, s3, 11")
        A(f"v_lshl_add_u32 v1, v0, 7, s{sT0}")
        A("v_min_u32 v1, L_code_end-L1_pc-4, v1")
        A("v_cmp_gt_u32 vcc, 16, v0")
        A("s_and_saveexec_b64 s[46:47], vcc")
        A("s_cbranch_execz L1_nocpf")
        A(f"global_load_dword v{vDUM}, v1, s[{sPC}:{sPC + 1}]")
        A.label("L1_nocpf")
        A("s_mov_b64 exec, s[46:47]")
    A("v_lshrrev_b32 v1, 6, v0")
    A("v_and_b32 v0, 63, v0")
    A(f"v_readfirstlane_b32 s{sW}, v1")
    if OPT["xmap"] == 0:
        A(f"s_and_b32 s{sB}, s2, 7")
        A(f"s_mov_b32 s{sH}, s3")
    else:
        A(f"s_and_b32 s{sB}, s2, 1")
        A(f"s_lshl_b32 s{sB}, s{sB}, 2")
        A(f"s_and_b32 s{sT0}, s3, 3")
        A(f"s_add_u32 s{sB}, s{sB}, s{sT0}")
        A(f"s_and_b32 s{sH}, s2, 6")
        A(f"s_lshl_b32 s{sH}, s{sH}, 2")
        A(f"s_lshr_b32 s{sT0}, s3, 2")
        A(f"s_add_u32 s{sH}, s{sH}, s{sT0}")
    A(f"s_and_b32 s{sP}, s{sW}, 1")
    nph = OPT["nph"]
    if nph == 1:
        A(f"s_mov_b32 s{sCW}, 0")
    elif nph == 2:
        A(f"s_add_u32 s{sCW}, s{sB}, s{sH}")
        A(f"s_and_b32 s{sCW}, s{sCW}, 1")
        A(f"s_mul_i32 s{sCW}, s{sCW}, {4 * 128}")
    elif nph == 4:
        A(f"s_add_u32 s{sCW}, s{sB}, s{sH}")
        A(f"s_and_b32 s{sCW}, s{sCW}, 3")
        A(f"s_mul_i32 s{sCW}, s{sCW}, {2 * 128}")
    elif nph == 3:
        A(f"s_add_u32 s{sCW}, s{sB}, s{sH}")
        A(f"s_mul_i32 s{sT0}, s{sCW}, 43")
        A(f"s_lshr_b32 s{sT0}, s{sT0}, 7")
        A(f"s_mul_i32 s{sT0}, s{sT0}, 3")
        A(f"s_sub_u32 s{sCW}, s{sCW}, s{sT0}")
        A(f"s_mul_i32 s{sCW}, s{sCW}, {3 * 128}")
    A(f"s_mov_b32 s{sCX}, s{sCW}")
    t0, t1, t2, g4, i16, r4, cq = 9, 10, 11, 12, 13, 14, 15
    A(f"v_lshrrev_b32 v{g4}, 4, v0")
    A(f"v_and_b32 v{i16}, 15, v0")
    A(f"v_lshrrev_b32 v{t0}, 5, v0")
    A(f"v_lshlrev_b32 v{vWD}, 18, v{t0}")
    A(f"v_and_b32 v{t0}, 1, v{g4}")
    A(f"v_lshl_add_u32 v{vWD}, v{t0}, 15, v{vWD}")
    A(f"v_lshl_add_u32 v{vWD}, v{i16}, 4, v{vWD}")
    A(f"v_lshrrev_b32 v{t0}, 3, v0")
    A(f"v_mul_u32_u24 v{vXD}, 1152, v{t0}")
    A(f"v_and_b32 v{t0}, 7, v0")
    A(f"v_xor_b32 v{t0}, v{t0}, v{g4}")
    A(f"v_lshl_add_u32 v{vXD}, v{t0}, 4, v{vXD}")
    A(f"v_xor_b32 v{vXD + 1}, 64, v{vXD}")
    A(f"s_lshl_b32 s{sT0}, s{sP}, 6")
    A(f"v_xor_b32 v{vXDE}, s{sT0}, v{vXD}")
    A(f"s_lshl_b32 s{sXD}, s{sW}, 13")
    A(f"s_add_u32 s{sXD}, s{sXD}, {XOFF}")
    A(f"s_mul_i32 s{sXS}, s{sW}, {8 * 9216}")
    A(f"s_lshl_b32 s{sXED}, s{sW}, 10")
    A(f"s_add_u32 s{sXED}, s{sXED}, {XEOFF}")
    A(f"s_mul_i32 s{sXES}, s{sW}, 9216")
    A(f"s_add_u32 s{sXES}, s{sXES}, {32 * 9216}")
    A(f"s_lshr_b32 s{sT0}, s{sW}, 1")
    A(f"s_mul_i32 s{sWD}, s{sT0}, {WG1}")
    A(f"s_mul_i32 s{sT0}, s{sP}, {WG0}")
    A(f"s_add_u32 s{sWD}, s{sWD}, s{sT0}")
    A(f"s_lshl_b32 s{sWS}, s{sW}, 16")
    A(f"s_mul_i32 s{sT1}, s{sB}, 331776")
    A(f"s_lshl_b32 s{sT0}, s{sH}, 8")
    A(f"s_mov_b32 s{SRD_X + 2}, 331776")
    A(f"s_mov_b32 s{SRD_X + 3}, 0x20000")
    A(f"s_sub_u32 s{SRD_W + 2}, {576 * 8192}, s{sT0}")
    A(f"s_mov_b32 s{SRD_W + 3}, 0x20000")
    A("s_waitcnt lgkmcnt(0)")
    A(f"s_add_u32 s{SRD_W}, s38, s{sT0}")
    A(f"s_addc_u32 s{SRD_W + 1}, s39, 0")
    A(f"s_add_u32 s{SRD_X}, s32, s{sT1}")
    A(f"s_addc_u32 s{SRD_X + 1}, s33, 0")
    S = Asm()
    S(f"s_lshl_b32 s{sT1}, s{sB}, 5")
    S(f"s_add_u32 s{sT1}, s{sT1}, s{sH}")
    S(f"s_lshl_b32 s{sT1}, s{sT1}, 19")
    S(f"s_add_u32 s{SRD_K}, s34, s{sT1} | s_addc_u32 s{SRD_K + 1}, s35, 0")
    S(f"s_mov_b32 s{SRD_K + 2}, 524288")
    S(f"s_mov_b32 s{SRD_K + 3}, 0x20000")
    S(f"s_add_u32 s{SRD_V}, s36, s{sT1} | s_addc_u32 s{SRD_V + 1}, s37, 0")
    S(f"s_mov_b32 s{SRD_V + 2}, 524288")
    S(f"s_mov_b32 s{SRD_V + 3}, 0x20000")
    S(f"s_mov_b32 s{SRD_O}, s40")
    S(f"s_mov_b32 s{SRD_O + 1}, s41")
    S(f"s_mov_b32 s{SRD_O + 2}, {(DIAG_OFF + (2 << 20)) if OPT['diag'] else WS_O_BYTES}")
    S(f"s_mov_b32 s{SRD_O + 3}, 0x20000")
    S(f"s_mov_b32 s{SRD_P}, s30")
    S(f"s_mov_b32 s{SRD_P + 1}, s31")
    S(f"s_mov_b32 s{SRD_P + 2}, {4096 * 1152}")
    S(f"s_mov_b32 s{SRD_P + 3}, 0x20000")
    S(f"v_bfe_u32 v{r4}, v0, 2, 2")
    S(f"v_and_b32 v{cq}, 3, v0")
    XA, XE, WL, WH = vQA, vQA + 2, vQA + 4, vQA + 5
    S(f"v_lshlrev_b32 v{XE}, 7, v{i16}")
    S(f"v_lshrrev_b32 v{t0}, 1, v{i16}")
    S(f"v_xor_b32 v{t0}, v{t0}, v{g4}")
    S(f"v_lshl_add_u32 v{XE}, v{t0}, 4, v{XE}")
    S(f"v_add_u32 v{XA}, s{sXD}, v{XE}")
    S(f"s_lshr_b32 s{sT1}, s{sW}, 1")
    S(f"s_lshl_b32 s{sT1}, s{sT1}, 11")
    S(f"s_add_u32 s{sT1}, s{sT1}, {XEOFF}")
    S(f"v_add_u32 v{XE}, s{sT1}, v{XE}")
    S(f"v_xor_b32 v{XA + 1}, 64, v{XA}")
    S(f"v_xor_b32 v{XE + 1}, 64, v{XE}")
    S(f"v_lshrrev_b32 v{t0}, 1, v{g4}")
    S(f"v_mul_u32_u24 v{WL}, {WG1}, v{t0}")
    S(f"v_and_b32 v{t0}, 1, v{g4}")
    S(f"v_mul_u32_u24 v{t0}, {WG0}, v{t0}")
    S(f"v_add_u32 v{WL}, v{WL}, v{t0}")
    S(f"v_mul_u32_u24 v{t0}, {XB}, v{r4}")
    S(f"v_add_u32 v{WL}, v{WL}, v{t0}")
    S(f"v_lshl_add_u32 v{WL}, v{cq}, 4, v{WL}")
    S(f"s_lshl_b32 s{sT1}, s{sP}, 7")
    S(f"s_xor_b32 s{sOO}, s{sT1}, 128")
    S(f"v_add_u32 v{WH}, s{sOO}, v{WL}")
    S(f"v_add_u32 v{WL}, s{sT1}, v{WL}")
    for i in range(6):
        S(f"v_add_u32 v{vQA + 6 + i}, {2 * STSZ}, v{vQA + i}")
    S(f"s_lshl_b32 s{sT1}, s{sW}, 12")
    S(f"v_lshl_add_u32 v{vV4}, v0, 4, s{sT1}")
    S(f"s_mul_i32 s{sWOF}, s{sW}, {4 * BLK}")
    S(f"v_mul_u32_u24 v{t0}, {BLK}, v{i16}")
    S(f"v_lshl_add_u32 v{t0}, v{g4}, 4, v{t0}")
    S(f"v_lshl_add_u32 v{t1}, v{g4}, 2, v{r4}")
    S(f"v_mul_u32_u24 v{t1}, {BLK}, v{t1}")
    S(f"v_lshl_add_u32 v{t1}, v{cq}, 3, v{t1}")
    for j in range(2):
        S(f"s_xor_b32 s{sT1}, s{sP}, {j}")
        S(f"s_lshl_b32 s{sT1}, s{sT1}, 9")
        S(f"v_add_u32 v{vVB + j}, s{sT1}, v{t1}")
        S(f"s_lshl_b32 s{sOO}, s{sP}, 7")
        S(f"s_add_u32 s{sT1}, s{sT1}, s{sOO}")
        S(f"v_add_u32 v{vKB + 2 * j}, s{sT1}, v{t0}")
        S(f"s_xor_b32 s{sT1}, s{sT1}, 128")
        S(f"v_add_u32 v{vKB + 2 * j + 1}, s{sT1}, v{t0}")
    if OPT["rot"]:
        S(f"s_mul_i32 s{sG0}, s2, {OPT['rot']}")
        S(f"s_lshr_b32 s{sT1}, s2, 4")
        S(f"s_add_u32 s{sG0}, s{sG0}, s{sT1}")
        S(f"s_and_b32 s{sG0}, s{sG0}, 15")
        S(f"s_mul_i32 s{sG0}, s{sG0}, {16384 * 7 // 4 // 16384 * 16384}")
    S(f"s_lshl_b32 s{sWP}, s2, 2")
    S(f"s_add_u32 s{sWP}, s{sWP}, s{sW}")
    S(f"s_mul_i32 s{sWP}, s{sWP}, 4608")
    S(f"v_min_u32 v7, 1, v0")
    S(f"v_lshlrev_b32 v7, 7, v7")
    S(f"s_lshl_b32 s{sDV}, s{sP}, 10")
    S(f"s_sub_u32 s{sDV}, 512, s{sDV}")
    S(f"v_min_u32 v{vCW}, 39, v0")
    S(f"s_mul_i32 s{sT1}, s{sW}, 5120")
    S(f"v_lshl_add_u32 v{vCW}, v{vCW}, 7, s{sT1}")
    S(f"v_min_u32 v{vCW}, L1_redo-L1_tail, v{vCW}")
    S(f"v_add_u32 v{vCW}, L1_tail-L1_pc, v{vCW}")
    S(f"v_mov_b32 v{t0}, 0x3f803f80")
    S(f"v_cmp_eq_u32 vcc, 0, v{cq}")
    S(f"s_mov_b32 s{sSC}, {QSCALE:#x}")
    S(f"s_mov_b32 s{sREDO}, 0")
    S(f"v_cndmask_b32 v{t0}, 0, v{t0}, vcc")
    for i in range(4):
        S(f"v_accvgpr_write_b32 a{ONES + i}, v{t0}")
    S(f"s_add_u32 s{sT1}, s{sXD}, {2 * STSZ + 6144}")
    S(f"v_lshl_add_u32 v{t0}, v0, 4, s{sT1}")
    S(f"s_xor_b32 s{sT1}, s{sW}, 1")
    S(f"s_lshl_b32 s{sT1}, s{sT1}, 13")
    S(f"s_add_u32 s{sT1}, s{sT1}, {XOFF + 2 * STSZ + 6144}")
    S(f"v_lshl_add_u32 v{t1}, v0, 4, s{sT1}")

    def loop_scalars(Z):
        if OPT["rot"]:
            Z(f"s_add_u32 s{sKVS}, s{sG0}, {DD * 16384}")
        else:
            Z(f"s_mov_b32 s{sKVS}, {DD * 16384}")
        Z(f"s_add_u32 s{sKD}, s{sWOF}, {(NS - 1) * HS}")
        Z(f"s_mov_b32 s{sVD}, s{sWOF}")
        Z(f"s_mov_b32 s{sKN}, {2 * HS}")
        Z(f"s_mov_b32 s{sVN}, {3 * HS}")
        Z(f"s_mov_b32 s{sCNT}, 31")

    def loop_addr():
        return [f"v_add_u32 v{vK}, {2 * HS}, v{vKB}", f"v_add_u32 v{vK + 1}, {2 * HS}, v{vKB + 1}",
                f"v_mov_b32 v{vK + 2}, v{vKB + 2}", f"v_mov_b32 v{vK + 3}, v{vKB + 3}",
                f"v_add_u32 v{vV}, {HS}, v{vVB}", f"v_add_u32 v{vV + 1}, {HS}, v{vVB + 1}"]

    loop_scalars(S)
    for i in range(180):
        S(f"v_accvgpr_write_b32 a{i}, 0")
    setup = [x.strip() for x in S.l]
    for p in wg_pieces(0) + x_pieces(0):
        A.ext(p)
    npf = 0
    if OPT["pf"]:
        na = OPT["pfa"]
        A(f"v_min_u32 v{t0}, {9 * na - 1}, v0")
        A(f"v_mul_u32_u24 v{t1}, 57, v{t0}")
        A(f"v_lshrrev_b32 v{t1}, 9, v{t1}")
        A(f"v_mul_u32_u24 v{t2}, 9, v{t1}")
        A(f"v_sub_u32 v{t0}, v{t0}, v{t2}")
        A(f"v_mul_u32_u24 v248, 1152, v{t0}")
        A(f"s_and_b32 s{sT1}, s{sH}, 7")
        A(f"s_lshl_b32 s{sT1}, s{sT1}, 2")
        A(f"s_add_u32 s{sT1}, s{sT1}, s{sW}")
        A(f"s_mul_i32 s{sT1}, s{sT1}, {9 * 1152}")
        A(f"v_add_u32 v248, s{sT1}, v248")
        A(f"v_lshl_add_u32 v246, v{t1}, 7, v248")
        A(f"buffer_load_dword v{vDUM}, v246, {srd(SRD_X)}, 0 offen offset:128")
        A(f"v_bfe_u32 v{t0}, v0, 1, 2")
        A(f"v_lshlrev_b32 v249, 13, v{t0}")
        A(f"v_and_b32 v{t0}, 1, v0")
        A(f"v_lshl_add_u32 v249, v{t0}, 7, v249")
        A(f"s_and_b32 s{sT1}, s{sB}, 3")
        A(f"s_lshl_b32 s{sT1}, s{sT1}, 2")
        A(f"s_add_u32 s{sT1}, s{sT1}, s{sW}")
        A(f"s_lshl_b32 s{sT1}, s{sT1}, 15")
        A(f"v_add_u32 v249, s{sT1}, v249")
        A(f"v_lshrrev_b32 v{t0}, 3, v0")
        A(f"v_min_u32 v{t0}, {na - 1}, v{t0}")
        A(f"v_lshl_add_u32 v247, v{t0}, 19, v249")
        A(f"s_mov_b32 s{sT1}, {1 << 19}")
        A(f"buffer_load_dword v{vDUM}, v247, {srd(SRD_W)}, s{sT1} offen")
        npf = 2
    first = []
    for c in range(1, OPT["up"]):
        first += wg_pieces(c) + x_pieces(c)
    per = len(setup) // (len(first) + 1) + 1
    stamp(A)
    for p in [[]] + first:
        A.ext(p)
        for _ in range(per):
            if setup:
                for y in setup.pop(0).split(" | "):
                    A(y)
    assert not setup
    stamp(A)
    A(f"s_waitcnt vmcnt({len(first) + npf})")
    A("s_barrier")
    stamp(A)
    P = lambda n: [item_piece(n, i) for i in range(4)]
    kw = [f"global_load_dword v{vDUM}, v{vCW}, s[{sPC}:{sPC + 1}]"] if OPT["cpf"] else []
    if OPT["wopf"] == 2:
        kw = kw + kw
    if OPT["stg"] == 0:
        extras = {4: P(0), 5: P(1), 6: P(2)}
        if OPT["kvs"]:
            al = P(0) + P(1) + P(2)
            extras = {4: al[0:3], 5: al[3:6], 6: al[6:8], 7: al[8:12]}
    else:
        extras = {7: P(0) + P(1) + P(2)}
    if DD == 4:
        extras[8] = P(3) + P(4) + P(5)
        late = P(6) + P(7)
        late[0] = kw + late[0]
        late[7] = late[7] + kw
    elif DD == 3:
        extras[8] = P(3)
        late = P(4) + P(5)
        late[7] = late[7] + kw
    else:
        extras[8] = P(3)
        late = [[]] * 8
    if OPT["pf"]:
        for c in range(OPT["pfa"] + 1, 9):
            at = max(0, c - OPT["pf"])
            extras[at] = extras.get(at, []) + [
                [f"buffer_load_dword v{vDUM}, v248, {srd(SRD_X)}, 0 offen offset:{c * 128}"],
                [f"s_mov_b32 s{sT0}, {c << 19}", f"buffer_load_dword v{vDUM}, v249, {srd(SRD_W)}, s{sT0} offen"]]
    if OPT["wopf"] == 1:
        extras[7] = extras.get(7, []) + [[f"v_lshlrev_b32 v253, 7, v0", f"v_min_u32 v253, {35 * 128}, v253",
                      f"buffer_load_dword v{vDUM}, v253, {srd(SRD_P)}, s{sWP} offen"]]
    if OPT["wopf"]:
        extras[7] = extras.get(7, []) + [
                     [f"s_mul_i32 s{sT0}, s{sB}, {18 * 32}", f"s_add_u32 s{sT0}, s{sT0}, s{sH}", f"s_lshl_b32 s{sT0}, s{sT0}, 12",
                      f"v_lshlrev_b32 v253, 18, v0",
                      f"v_min_u32 v253, {8 << 18}, v253",
                      f"buffer_load_dword v{vDUM}, v253, {srd(SRD_O)}, s{sT0} offen nt"]]

    def conv(t, kk):
        src = ACC + 32 * t + 8 * kk
        dst = QV + 16 * t + 4 * kk
        o = []
        for i in range(4):
            o += [f"v_mul_f32 v{src + 2 * i}, s{sSC}, v{src + 2 * i}", f"v_mul_f32 v{src + 2 * i + 1}, s{sSC}, v{src + 2 * i + 1}"]
        for i in range(4):
            o.append(f"v_cvt_pk_bf16_f32 v{dst + i}, v{src + 2 * i}, v{src + 2 * i + 1}")
        return o

    KF = [184, 224]
    k0reads = [kread(ar(KF[kb] + 4 * kk, 4), vKB, kb, kk) for kb in range(2) for kk in range(4)]
    ti = []

    def spread(lst, g0, g1):
        for i, x in enumerate(lst):
            ti.append((g0 + (i * (g1 - g0)) // len(lst), x))

    spread(conv(4, 0) + conv(0, 0) + conv(1, 0) + conv(2, 0), 13, 22)
    spread(conv(4, 1) + [f"ds_write_b128 v{t0}, {vr(QV + 64, 4)}", f"ds_write_b128 v{t0}, {vr(QV + 68, 4)} offset:1024"]
           + conv(3, 0) + conv(0, 1), 22, 29)
    ti.append((29, "BAR"))
    spread([f"ds_read_b128 {vr(QV + 72, 4)}, v{t1}", f"ds_read_b128 {vr(QV + 76, 4)}, v{t1} offset:1024"] + k0reads[:4]
           + conv(1, 1) + k0reads[4:] + conv(2, 1) + conv(3, 1), 29, 36)
    nb = [i for i, x in enumerate(ti) if x[1] == "BAR"][0]
    ti[nb:nb + 1] = [(29, "VMW"), (29, "s_barrier")]
    qp, issued = build_qproj(extras, OPT["up"], ti)
    vms = [x for x in qp if x.startswith(("buffer_load", "global_load"))]
    lastv0 = max(i for i, x in enumerate(vms) if x == P(1)[3][-1] and i == min(k for k, y in enumerate(vms) if y == x))
    ny = len(vms) - 1 - lastv0
    qp = [(f"s_waitcnt vmcnt({ny}) lgkmcnt(0)" if x == "VMW" else x) for x in qp]
    A.ext(qp)
    stamp(A)
    body, pro, tail = build_loop()

    def qk0(kb, kk, useneg):
        o = []
        for t in range(5):
            Sx = Sreg(t, 0) + 4 * kb
            C = (vr(NEG + 4 * t, 4) if useneg else "0") if kk == 0 else vr(Sx, 4)
            o.append(f"{MF} {vr(Sx, 4)}, {ar(KF[kb] + 4 * kk, 4)}, {vr(QV + 16 * t + 4 * kk, 4)}, {C}")
        return o

    def mix(mf, fill):
        n = len(mf)
        for i, m in enumerate(mf):
            A(m)
            A.ext(fill[(i * len(fill)) // n:((i + 1) * len(fill)) // n])

    flat = lambda ps: [x for p in ps for x in p]
    pro_rd = [x for x in pro if is_ds(x)]
    pro_sm = [x for x in pro if not is_ds(x)]
    A.ext(conv(0, 2) + flat(late[0:2]) + conv(0, 3))
    A("s_waitcnt lgkmcnt(0)")
    mix(qk0(0, 0, False) + qk0(0, 1, False), conv(1, 2) + conv(2, 2) + conv(3, 2) + flat(late[2:4]))
    mix(qk0(0, 2, False), conv(1, 3) + conv(2, 3) + conv(3, 3))
    A("s_nop 0")
    A.ext(qk0(0, 3, False))
    A.ext(loop_addr())
    A.ext(pro_rd)
    A.ext(flat(late[4:6]))
    for t in range(5):
        Sx = Sreg(t, 0)
        A(f"v_max3_f32 v{vM + t}, v{Sx}, v{Sx + 1}, v{Sx + 2}")
    for t in range(5):
        A(f"v_max_f32 v{vM + t}, v{vM + t}, v{Sreg(t, 0) + 3}")

    def xlane5(Z, op, base, tmp):
        for sw in ("v_permlane32_swap_b32", "v_permlane16_swap_b32"):
            for t in range(5):
                Z(f"v_mov_b32 v{tmp + t}, v{base + t}")
            for t in range(5):
                Z(f"{sw} v{base + t}, v{tmp + t}")
            for t in range(5):
                Z(f"{op} v{base + t}, v{base + t}, v{tmp + t}")

    xlane5(A, "v_max_f32", vM, vM + 8)
    for t in range(5):
        for i in range(4):
            A(f"v_sub_f32 v{NEG + 4 * t + i}, 0, v{vM + t}")
    subs = [f"v_sub_f32 v{Sreg(t, 0) + i}, v{Sreg(t, 0) + i}, v{vM + t}" for t in range(5) for i in range(4)]
    kb0regs = {Sreg(t, 0) + i for t in range(5) for i in range(4)}

    def srcs(x):
        return [int(z.strip()[1:]) for z in x.split(None, 1)[1].split(",")[1:]]
    sm0 = [x for x in pro_sm if all(r in kb0regs for r in srcs(x))]
    sm1 = [x for x in pro_sm if x not in sm0]

    def safe(lst):
        o, prev = [], ""
        for x in lst:
            if prev.startswith("v_exp") and x.startswith("v_cvt"):
                o.append("s_nop 0")
            o.append(x)
            prev = x
        return o
    A.ext(flat(late[6:8]))
    mix(flat([qk0(1, kk, True) for kk in range(4)]), subs + safe(sm0))
    A("s_nop 3")
    A.label("L1_presm")
    A.ext(safe(sm1))
    A("s_waitcnt lgkmcnt(0)")
    stamp(A)
    A.raw(".p2align 6")
    A.label("L1_loop")
    if OPT["diag"]:
        A(f"s_mov_b32 m0, s{sCNT}")
        A("s_nop 0")
        A("v_writelane_b32 v250, s90, m0")
        A("v_writelane_b32 v251, s96, m0")
        A("s_memtime s[90:91]")
        A("s_memrealtime s[96:97]")
    A.ext(body)
    A("s_branch L1_loop")
    errs = hazard.check(body + body, "loop")
    A.label("L1_tail")
    T0 = len(A.l)
    stamp(A)
    tail_rd = [x for x in tail if is_ds(x)]
    tail_sm = [x for x in tail if not is_ds(x)]
    A.ext(tail_rd)
    A.ext(safe(tail_sm))
    A(f"s_add_u32 s{sT0}, s{sWOF}, {TS * HS}")
    A(f"v_lshl_add_u32 v{t0}, v0, 4, s{sT0}")
    A("s_waitcnt vmcnt(0) lgkmcnt(0)")
    ones = [f"{MF} {ar(LA + 4 * t, 4)}, {ar(ONES, 4)}, {vr(Sreg(t, 1), 4)}, {ar(LA + 4 * t, 4)}" for t in range(4)]

    def pv(t):
        return [f"{MF} {ar(OA + 32 * t + 4 * dt, 4)}, {ar(RING + 32 + 4 * dt, 4)}, {vr(Sreg(t, 1), 4)}, {ar(OA + 32 * t + 4 * dt, 4)}"
                for dt in range(8)]
    wr = [f"ds_write_b128 v{t0}, {ar(OA + 128 + 4 * i, 4)} offset:{(i // 4) * HS + (i % 4) * 1024}" for i in range(8)]
    misc = [f"v_lshlrev_b32 v{t2}, 4, v0",
            f"s_mul_i32 s{sOO}, s{sB}, 18", f"s_lshl_b32 s{sT0}, s{sW}, 2", f"s_add_u32 s{sT0}, s{sT0}, s{sOO}",
            f"s_lshl_b32 s{sT0}, s{sT0}, 5", f"s_add_u32 s{sT0}, s{sT0}, s{sH}", f"s_lshl_b32 s{sT0}, s{sT0}, 12",
            f"s_lshl_b32 s{sT1}, s{sW}, 10", f"s_add_u32 s{sT1}, s{sT1}, {NS * HS}", f"v_lshl_add_u32 v{t1}, v0, 4, s{sT1}"]
    mix(ones + pv(0), wr + misc)
    Lr = 114
    st = [f"v_accvgpr_read_b32 v{Lr + t}, a{LA + 4 * t}" for t in range(5)]
    st += [f"v_add_f32 v128, v{Lr}, v{Lr + 1}", f"v_add_f32 v129, v{Lr + 2}, v{Lr + 3}", f"v_add_f32 v128, v128, v{Lr + 4}",
           f"v_add_f32 v128, v128, v129", f"v_mov_b32 v129, {f32bits(2.0 ** OPT['thr']):#x}", f"v_cmp_nlt_f32 vcc, v128, v129",
           f"v_mov_b32 v132, v{Lr + 4}", f"v_mov_b32 v133, v{NEG + 16}", f"v_mov_b32 v135, 0", f"v_cndmask_b32 v134, 0, 1, vcc",
           f"ds_write_b128 v{t1}, {vr(132, 4)}"]
    st += [f"v_rcp_f32 v{120 + 2 * t}, v{Lr + t}" for t in range(4)]
    mix(pv(1), st)
    ofl = FLAGS[OPT["ostflag"]]

    def norm_store(t, tmp, pk):
        o = []
        if t:
            o.append(f"s_add_u32 s{sT0}, s{sT0}, {32 * 4096}")
        for s in range(4):
            b = tmp + 8 * s
            for e in range(8):
                o.append(f"v_accvgpr_read_b32 v{b + e}, a{OA + 32 * t + 8 * s + e}")
            if pk:
                for e in range(4):
                    o.append(f"v_pk_mul_f32 {vr(b + 2 * e, 2)}, {vr(b + 2 * e, 2)}, {vr(120 + 2 * t, 2)} op_sel_hi:[1,0]")
            else:
                for e in range(8):
                    o.append(f"v_mul_f32 v{b + e}, v{120 + 2 * t}, v{b + e}")
            for e in range(4):
                o.append(f"v_cvt_pk_bf16_f32 v{b + e}, v{b + 2 * e}, v{b + 2 * e + 1}")
            of = f" offset:{s * 1024}" if s else ""
            o.append(f"buffer_store_dwordx4 {vr(b, 4)}, v{t2}, {srd(SRD_O)}, s{sT0} offen{of}{ofl}"
                     + (f" | buffer_store_dwordx4 {vr(b, 4)}, v{t2}, {srd(SRD_O)}, s{sT0} offen{of}" if OPT["dst"] else ""))
        return o

    n0 = norm_store(0, 16, False)
    mix(pv(2) + pv(3), n0[:42])
    A.ext(norm_store(0, 16, True)[34:])
    A("s_waitcnt lgkmcnt(0)")
    A("s_barrier")
    A(f"s_and_b32 s{sT1}, s{sW}, 2")
    A(f"s_mul_i32 s{sT1}, s{sT1}, {4 * BLK}")
    A(f"s_mul_i32 s{sT2}, s{sP}, {HS}")
    A(f"s_add_u32 s{sT1}, s{sT1}, s{sT2}")
    A(f"s_add_u32 s{sT1}, s{sT1}, {TS * HS}")
    A(f"v_lshl_add_u32 v{t0}, v0, 4, s{sT1}")
    A(f"s_and_b32 s{sT1}, s{sW}, 2")
    A(f"s_lshl_b32 s{sT1}, s{sT1}, 10")
    A(f"v_lshl_add_u32 v{t1}, v0, 4, s{sT1}")
    A(f"v_xor_b32 v1, 2048, v{t1}")
    A(f"v_add_u32 v{t1}, {NS * HS}, v{t1}")
    A(f"v_add_u32 v1, {NS * HS}, v1")
    A(f"ds_read_b128 {vr(88, 4)}, v{t1}")
    A(f"ds_read_b128 {vr(92, 4)}, v{t1} offset:1024")
    A(f"ds_read_b128 {vr(96, 4)}, v1")
    A(f"ds_read_b128 {vr(100, 4)}, v1 offset:1024")
    for w in range(2):
        for q in range(4):
            A(f"ds_read_b128 {vr(128 + 16 * w + 4 * q, 4)}, v{t0} offset:{w * 4 * BLK + q * 1024}")
    A.ext(norm_store(1, 48, True))
    A("s_waitcnt lgkmcnt(0)")
    A("v_or3_b32 v104, v90, v94, v98")
    A("v_or_b32 v104, v104, v102")
    A("v_cmp_ne_u32 vcc, 0, v104")
    A("v_min_f32 v105, v89, v93")
    A("v_sub_f32 v89, v105, v89")
    A("v_sub_f32 v93, v105, v93")
    A("v_exp_f32 v89, v89")
    A("v_exp_f32 v93, v93")
    A(f"s_cmp_lg_u64 vcc, 0")
    A(f"s_cselect_b32 s{sT1}, 1, 0")
    A(f"s_cmp_gt_u32 s{sT1}, s{sREDO}")
    A("s_cbranch_scc1 L1_redo")
    A("v_mul_f32 v105, v88, v89")
    A("v_fmac_f32 v105, v92, v93")
    A("v_rcp_f32 v105, v105")
    A(f"s_lshr_b32 s{sT1}, s{sW}, 1")
    A(f"s_add_u32 s{sT1}, s{sT1}, s{sOO}")
    A(f"s_add_u32 s{sT1}, s{sT1}, 16")
    A(f"s_lshl_b32 s{sT1}, s{sT1}, 5")
    A(f"s_add_u32 s{sT1}, s{sT1}, s{sH}")
    A(f"s_lshl_b32 s{sT1}, s{sT1}, 12")
    A(f"s_lshl_b32 s{sT2}, s{sP}, 11")
    A(f"s_add_u32 s{sT1}, s{sT1}, s{sT2}")
    A("v_mul_f32 v89, v105, v89")
    A("v_mul_f32 v93, v105, v93")
    for e in range(16):
        A(f"v_mul_f32 v{128 + e}, v89, v{128 + e}")
    for e in range(16):
        A(f"v_fmac_f32 v{128 + e}, v93, v{144 + e}")
    for e in range(8):
        A(f"v_cvt_pk_bf16_f32 v{144 + e}, v{128 + 2 * e}, v{128 + 2 * e + 1}")
    for q in range(2):
        of = " offset:1024" if q else ""
        A(f"buffer_store_dwordx4 {vr(144 + 4 * q, 4)}, v{t2}, {srd(SRD_O)}, s{sT1} offen{of}{ofl}")
        if OPT["dst"]:
            A(f"buffer_store_dwordx4 {vr(144 + 4 * q, 4)}, v{t2}, {srd(SRD_O)}, s{sT1} offen{of}")
    rest = norm_store(2, 16, True) + norm_store(3, 48, True)
    if OPT["fuse"]:
        p3(A, rest)
    else:
        A.ext(rest)
    gx = [i for i, x in enumerate(body) if "L1_tail" in x][0]
    errs += hazard.check(body[:gx + 1] + A.l[T0:T0 + 60], "exit")
    if OPT["diag"]:
        if not OPT["fuse"]:
            stamp(A)
        A("s_waitcnt vmcnt(0)")
        stamp(A)
        A("s_memrealtime s[94:95]")
        A("s_waitcnt lgkmcnt(0)")
        A("v_writelane_b32 v250, s92, 62")
        A("v_writelane_b32 v250, s94, 63")
        for i in range(stamp_n[0]):
            A(f"v_writelane_b32 v250, s{sST + 2 * i}, {50 + i}")
        A("v_writelane_b32 v250, s90, 32")
        A("v_writelane_b32 v251, s96, 32")
        A(f"s_lshl_b32 s{sT0}, s2, 2")
        A(f"s_add_u32 s{sT0}, s{sT0}, s{sW}")
        A(f"s_lshl_b32 s{sT0}, s{sT0}, 8")
        A(f"s_add_u32 s{sT0}, s{sT0}, {DIAG_OFF}")
        A(f"v_lshlrev_b32 v{t0}, 2, v0")
        A(f"buffer_store_dword v250, v{t0}, {srd(SRD_O)}, s{sT0} offen")
        A(f"s_add_u32 s{sT0}, s{sT0}, {1 << 19}")
        A(f"buffer_store_dword v251, v{t0}, {srd(SRD_O)}, s{sT0} offen")
        if OPT["fuse"]:
            for i in range(3):
                A(f"v_writelane_b32 v251, s{78 + 2 * i}, {i}")
            A("v_writelane_b32 v251, s94, 3")
            A(f"s_add_u32 s{sT0}, s{sT0}, {1 << 19}")
            A(f"buffer_store_dword v251, v{t0}, {srd(SRD_O)}, s{sT0} offen")
            if OPT["dbg"]:
                for ln, src in ((4, 30), (5, 22), (6, 14), (7, 32)):
                    A(f"v_readlane_b32 s{sT1}, v251, {src}")
                    A("s_nop 3")
                    A(f"v_writelane_b32 v251, s{sT1}, {ln}")
                A("v_subrev_u32 v251, s92, v251")
                A(f"v_lshlrev_b32 v{t0}, 3, v0")
                A("s_cmp_ge_u32 s2, 216")
                A("s_cbranch_scc1 L1_end")
                A("s_mov_b64 exec, 0xff")
                A(f"buffer_atomic_umax v251, v{t0}, {srd(SRD_W)}, 0 offen offset:4")
    A.label("L1_end")
    A("s_endpgm")
    A.label("L1_redo")
    A(f"s_mov_b32 s{sREDO}, 1")
    A("s_waitcnt vmcnt(0) lgkmcnt(0)")
    A("s_barrier")
    for n in range(2 * DD):
        for p in P(n):
            A.ext(p)
    for t in range(5):
        A(f"v_mov_b32 v{vM + t}, 0xff800000")
    A(f"v_lshlrev_b32 v{t0}, 8, v{i16}")
    A(f"v_lshl_add_u32 v{t0}, v{g4}, 4, v{t0}")
    A(f"s_lshl_b32 s{sT1}, s{sP}, 7")
    A(f"v_add_u32 v{t0}, s{sT1}, v{t0}")
    A(f"v_xor_b32 v{t1}, 128, v{t0}")
    A(f"s_mov_b32 s{sT1}, 0")
    A.label("L1_mx")
    for kk in range(4):
        o = f" offset:64" if kk & 1 else ""
        A(f"buffer_load_dwordx4 {vr(136 + 4 * kk, 4)}, v{t0 + (kk >> 1)}, {srd(SRD_K)}, s{sT1} offen{o}")
    A("s_waitcnt vmcnt(0)")
    for kk in range(4):
        for t in range(5):
            C = "0" if kk == 0 else vr(16 + 4 * t, 4)
            A(f"{MF} {vr(16 + 4 * t, 4)}, {vr(136 + 4 * kk, 4)}, {vr(QV + 16 * t + 4 * kk, 4)}, {C}")
    A("s_nop 7")
    for t in range(5):
        A(f"v_max3_f32 v{vM + t}, v{vM + t}, v{16 + 4 * t}, v{17 + 4 * t}")
        A(f"v_max3_f32 v{vM + t}, v{vM + t}, v{18 + 4 * t}, v{19 + 4 * t}")
    A(f"s_add_u32 s{sT1}, s{sT1}, 4096")
    A(f"s_cmp_lt_u32 s{sT1}, 524288")
    A("s_cbranch_scc1 L1_mx")
    xlane5(A, "v_max_f32", vM, vM + 8)
    for t in range(5):
        for i in range(4):
            A(f"v_sub_f32 v{NEG + 4 * t + i}, 0, v{vM + t}")
    for i in range(180):
        A(f"v_accvgpr_write_b32 a{i}, 0")
    A.ext(loop_addr())
    loop_scalars(A)
    A("s_barrier")
    A.ext(k0reads)
    A("s_waitcnt lgkmcnt(0)")
    for kb in range(2):
        for kk in range(4):
            A.ext(qk0(kb, kk, True))
    A.ext(pro_rd)
    A("s_nop 7")
    A.ext(safe(sm0))
    A("s_branch L1_presm")
    return errs


def k2(A):
    DEP = 4
    SRD_A, SRD_WO, SRD_OUT = 4, 8, 12
    sW, sMT, sNT, sT0, sT1, sAS, sBS, sLD, sCNT = 16, 17, 18, 19, 20, 21, 22, 23, 24
    vA, vBD, vBR, t0, t1 = 2, 8, 9, 13, 14
    ACC2, ORING, WF = 16, 112, 208
    A.raw(".p2align 8")
    A.raw(".globl oproj_kernel")
    A.raw(".type oproj_kernel,@function")
    A.label("oproj_kernel")
    A(f"s_cmp_ge_u32 s2, {OPT['k2grid']}")
    A("s_cbranch_scc1 L2_end")
    A("s_load_dwordx4 s[32:35], s[0:1], 32")
    A("s_load_dwordx2 s[36:37], s[0:1], 56")
    if OPT["diag"]:
        A("s_memrealtime s[60:61]")
    A("v_lshrrev_b32 v1, 6, v0")
    A("v_and_b32 v0, 63, v0")
    A(f"v_readfirstlane_b32 s{sW}, v1")
    A("s_and_b32 s25, s2, 7")
    A("s_lshr_b32 s26, s2, 3")
    A(f"s_mul_i32 s{sNT}, s26, 43")
    A(f"s_lshr_b32 s{sNT}, s{sNT}, 7")
    A(f"s_mul_i32 s{sT0}, s{sNT}, 3")
    A(f"s_sub_u32 s{sT0}, s26, s{sT0}")
    A(f"s_mul_i32 s{sMT}, s25, 3")
    A(f"s_add_u32 s{sMT}, s{sMT}, s{sT0}")
    A(f"v_lshlrev_b32 v{vA}, 4, v0")
    for i in range(1, 6):
        A(f"v_add_u32 v{vA + i}, {i * 131072}, v{vA}")
    A(f"v_lshrrev_b32 v{t0}, 3, v0")
    A(f"v_mul_u32_u24 v{vBD}, 1152, v{t0}")
    A(f"v_lshrrev_b32 v{t0}, 4, v0")
    A(f"v_lshlrev_b32 v{t0}, 1, v{t0}")
    A(f"v_and_b32 v{t1}, 7, v0")
    A(f"v_xor_b32 v{t0}, v{t0}, v{t1}")
    A(f"v_lshl_add_u32 v{vBD}, v{t0}, 4, v{vBD}")
    A(f"v_lshrrev_b32 v{t0}, 2, v0")
    A(f"v_lshlrev_b32 v{vBR}, 7, v{t0}")
    A(f"v_bfe_u32 v{t0}, v0, 3, 2")
    A(f"v_lshl_add_u32 v{vBR}, v{t0}, 5, v{vBR}")
    A(f"v_and_b32 v{t0}, 3, v0")
    A(f"v_lshl_add_u32 v{vBR}, v{t0}, 3, v{vBR}")
    A(f"s_mul_i32 s{sLD}, s{sW}, {DEP * 4096}")
    A(f"v_add_u32 v{vBR}, s{sLD}, v{vBR}")
    for n in range(1, 4):
        A(f"v_xor_b32 v{vBR + n}, {32 * n}, v{vBR}")
    A("s_waitcnt lgkmcnt(0)")
    A(f"s_mov_b32 s{SRD_A}, s36")
    A(f"s_mov_b32 s{SRD_A + 1}, s37")
    A(f"s_mov_b32 s{SRD_A + 2}, {(DIAG_OFF + (2 << 20)) if OPT['diag'] else WS_O_BYTES}")
    A(f"s_mov_b32 s{SRD_A + 3}, 0x20000")
    A(f"s_mov_b32 s{SRD_WO}, s32")
    A(f"s_mov_b32 s{SRD_WO + 1}, s33")
    A(f"s_mov_b32 s{SRD_WO + 2}, {4096 * 1152}")
    A(f"s_mov_b32 s{SRD_WO + 3}, 0x20000")
    A(f"s_mov_b32 s{SRD_OUT}, s34")
    A(f"s_mov_b32 s{SRD_OUT + 1}, s35")
    A(f"s_mov_b32 s{SRD_OUT + 2}, {2304 * 1152}")
    A(f"s_mov_b32 s{SRD_OUT + 3}, 0x20000")
    A(f"s_mul_i32 s{sAS}, s{sMT}, 786432")
    A(f"s_lshl_b32 s{sT0}, s{sW}, 15")
    A(f"s_add_u32 s{sAS}, s{sAS}, s{sT0}")
    A(f"s_mul_i32 s{sBS}, s{sW}, {1024 * 1152}")
    A(f"s_lshl_b32 s{sT0}, s{sNT}, 7")
    A(f"s_add_u32 s{sBS}, s{sBS}, s{sT0}")
    WN = OPT["k2rot"]
    sA0, sB0, sPH, sI = 27, 28, 29, 30

    def blk_addr():
        return [f"s_add_u32 s{sT1}, s{sI}, s{sPH}", f"s_and_b32 s{sT1}, s{sT1}, {WN - 1}",
                f"s_and_b32 s31, s{sI}, {(~(WN - 1)) & 0xff}", f"s_or_b32 s{sT1}, s{sT1}, s31",
                f"s_mul_i32 s{sBS}, s{sT1}, {DEP * 32 * 1152}", f"s_add_u32 s{sBS}, s{sBS}, s{sB0}",
                f"s_lshl_b32 s{sAS}, s{sT1}, 12", f"s_add_u32 s{sAS}, s{sAS}, s{sA0}", f"s_add_u32 s{sI}, s{sI}, 1"]
    A(f"s_mov_b32 s{sA0}, s{sAS}")
    A(f"s_mov_b32 s{sB0}, s{sBS}")
    A(f"s_mul_i32 s{sPH}, s{sMT}, {OPT['k2mul']}")
    A(f"s_add_u32 s{sPH}, s{sPH}, s{sNT}")
    A(f"s_mov_b32 s{sI}, 0")
    A.ext(blk_addr())

    def loads(d):
        o = []
        for i in range(4):
            o.append([f"s_add_u32 m0, s{sLD}, {d * 4096 + i * 1024}",
                      f"s_add_u32 s{sT0}, s{sBS}, {(32 * d + 8 * i) * 1152}",
                      f"buffer_load_dwordx4 v{vBD}, {srd(SRD_WO)}, s{sT0} offen lds"])
        off = f" offset:{d * 1024}" if d else ""
        for i in range(6):
            o.append([f"buffer_load_dwordx4 {vr(ORING + 24 * d + 4 * i, 4)}, v{vA + i}, {srd(SRD_A)}, s{sAS} offen{off}"])
        return o

    def wreads(d):
        b = WF + 16 * (d % 2)
        return [f"ds_read_b64_tr_b16 {vr(b + 4 * n + 2 * e, 2)}, v{vBR + n} offset:{d * 4096 + e * 2048}"
                for n in range(4) for e in range(2)]

    zi = 0
    for d in range(DEP - 1):
        for g in loads(d):
            A.ext(g)
            for _ in range(4):
                if zi < 96:
                    A(f"v_mov_b32 v{ACC2 + zi}, 0")
                    zi += 1
    assert zi == 96
    A(f"s_mov_b32 s{sCNT}, {32 // DEP}")
    A(f"s_waitcnt vmcnt({10 * (DEP - 2) + 6})")
    if OPT["diag"]:
        A("s_memrealtime s[62:63]")
    A.ext(wreads(0))
    A.label("L2_loop")
    body = []
    Bd = body.append
    for d in range(DEP):
        Bd(f"s_waitcnt vmcnt({10 * (DEP - 3) + 6})")
        body += wreads((d + 1) % DEP)
        Bd("s_waitcnt lgkmcnt(8)")
        b = WF + 16 * (d % 2)
        ld = loads((d - 1) % DEP)
        k = 0
        for n in range(4):
            for i in range(6):
                acc = vr(ACC2 + 4 * (6 * n + i), 4)
                Bd(f"{MF} {acc}, {vr(b + 4 * n, 4)}, {vr(ORING + 24 * d + 4 * i, 4)}, {acc}")
                k += 1
                if ld and k % 2 == 0:
                    body += ld.pop(0)
        if d == 0:
            body += blk_addr()
            Bd(f"s_cmp_eq_u32 s{sCNT}, 1")
            Bd(f"s_cselect_b32 s{sAS}, 0x40000000, s{sAS}")
            Bd(f"s_cselect_b32 s{sBS}, 0x40000000, s{sBS}")
    Bd(f"s_sub_u32 s{sCNT}, s{sCNT}, 1")
    Bd(f"s_cmp_lg_u32 s{sCNT}, 0")
    A.ext(body)
    A("s_cbranch_scc1 L2_loop")
    errs = hazard.check(body + body, "k2loop")
    if OPT["diag"]:
        A("s_memrealtime s[64:65]")
    A("s_waitcnt vmcnt(0) lgkmcnt(0)")
    A("s_barrier")
    A(f"s_mul_i32 s{sT0}, s{sW}, 24576")
    A(f"v_lshl_add_u32 v{t0}, v0, 4, s{sT0}")
    A("s_nop 7")
    for q in range(24):
        A(f"ds_write_b128 v{t0}, {vr(ACC2 + 4 * q, 4)} offset:{q * 1024}")
    A(f"v_and_b32 v{t0}, 15, v0")
    A(f"v_lshlrev_b32 v{t0}, 4, v{t0}")
    A(f"v_bfe_u32 v{t1}, v0, 4, 1")
    A(f"v_lshl_add_u32 v{t0}, v{t1}, 9, v{t0}")
    A(f"v_lshrrev_b32 v{t1}, 5, v0")
    A(f"v_lshl_add_u32 v{t0}, v{t1}, 10, v{t0}")
    A(f"s_mul_i32 s{sT0}, s{sW}, {6 * 1024}")
    A(f"v_add_u32 v{t0}, s{sT0}, v{t0}")
    A(f"v_add_u32 v{t1}, 49152, v{t0}")
    A("s_waitcnt lgkmcnt(0)")
    A("s_barrier")
    for w in range(4):
        for x in range(3):
            for q in range(2):
                A(f"ds_read_b128 {vr(ORING + 24 * w + 8 * x + 4 * q, 4)}, v{t0 if w < 2 else t1} offset:{(w % 2) * 24576 + x * 2048 + q * 256}")
        if w % 2 == 1:
            A("s_waitcnt lgkmcnt(0)")
    for w in range(1, 4):
        for e in range(24):
            A(f"v_add_f32 v{ORING + e}, v{ORING + e}, v{ORING + 24 * w + e}")
    for e in range(12):
        A(f"v_cvt_pk_bf16_f32 v{ACC2 + e}, v{ORING + 2 * e}, v{ORING + 2 * e + 1}")
    A(f"v_and_b32 v{t0}, 15, v0")
    A(f"v_lshrrev_b32 v{t1}, 5, v0")
    A(f"v_lshl_add_u32 v{t0}, v{t1}, 4, v{t0}")
    A(f"v_mul_u32_u24 v{t0}, 1152, v{t0}")
    A(f"v_bfe_u32 v{t1}, v0, 4, 1")
    A(f"v_lshl_add_u32 v{t0}, v{t1}, 4, v{t0}")
    A(f"s_mul_i32 s{sAS}, s{sMT}, {96 * 1152}")
    A(f"s_lshl_b32 s{sT0}, s{sNT}, 7")
    A(f"s_add_u32 s{sAS}, s{sAS}, s{sT0}")
    A(f"s_lshl_b32 s{sT0}, s{sW}, 5")
    A(f"s_add_u32 s{sAS}, s{sAS}, s{sT0}")
    for x in range(3):
        A(f"buffer_store_dwordx4 {vr(ACC2 + 4 * x, 4)}, v{t0}, {srd(SRD_OUT)}, s{sAS} offen")
        A(f"s_add_u32 s{sAS}, s{sAS}, {32 * 1152}")
    if OPT["diag"]:
        A("s_waitcnt vmcnt(0)")
        A("s_memrealtime s[66:67]")
        A("s_waitcnt lgkmcnt(0)")
        for i in range(4):
            A(f"v_writelane_b32 v250, s{60 + 2 * i}, {i}")
        A(f"s_lshl_b32 s{sT0}, s2, 2")
        A(f"s_add_u32 s{sT0}, s{sT0}, s{sW}")
        A(f"s_lshl_b32 s{sT0}, s{sT0}, 8")
        A(f"s_add_u32 s{sT0}, s{sT0}, {DIAG_OFF + (1 << 20)}")
        A(f"v_lshlrev_b32 v{t0}, 2, v0")
        A(f"buffer_store_dword v250, v{t0}, {srd(SRD_A)}, s{sT0} offen")
    A.label("L2_end")
    A("s_endpgm")
    return errs


def desc(name, vg, acc, sg=102):
    return f""".p2align 6
.amdhsa_kernel {name}
  .amdhsa_next_free_vgpr {vg}
  .amdhsa_next_free_sgpr {sg}
  .amdhsa_accum_offset {acc}
  .amdhsa_group_segment_fixed_size 0
  .amdhsa_kernarg_size 64
  .amdhsa_user_sgpr_count 2
  .amdhsa_user_sgpr_kernarg_segment_ptr 1
  .amdhsa_system_sgpr_workgroup_id_x 1
.end_amdhsa_kernel
"""


def main():
    A = Asm()
    e = k1(A)
    if not OPT["fuse"]:
        e += k2(A)
    A.label("L_code_end")
    e += hazard.check(A.l, "linear")
    for x in e:
        print(x, file=sys.stderr)
    hdr = f"""; Fused MHA block (q-proj + attention) and output projection, gfx950. Generated by a script.
; @launch kernel=attn_kernel grid=(256,1,1) block=(256,1,1) lds={LDS1}
{";" if OPT["fuse"] else "; @launch kernel=oproj_kernel grid=(216,1,1) block=(256,1,1) lds=98304"}
.amdgcn_target "amdgcn-amd-amdhsa--gfx950"
.text
.globl attn_kernel
"""
    txt = hdr + "\n".join(A.l) + "\n.section .rodata,\"a\"\n" + desc("attn_kernel", 512, 256) + ("" if OPT["fuse"] else desc("oproj_kernel", 256, 256))
    open(sys.argv[1], "w").write(txt)
    if e and not OPT["nodma"]:
        sys.exit(1)


main()
```

```python
import math
import struct
import sys

import hazard

OPT = dict(diag=0, L=6, W=2, xmap=1, nodma=0, nobar=0, kvflag=1, ostflag=2, wopf=2, wsh=8,
           k2grid=216, LQ=6, dmastep=9, thr=40, show=0, qstep=5, up=2, qpflag=0, dbg=0, cpf=1, nph=3, k2rot=1, D=3, pf=0, stg=0, pfa=4, kvs=0, rot=0, k2mul=1, fuse=1, dst=0, DO=4, oflag=2, early=5, l2pf=0, fast=1, wsoff=0, twice=0)
for a in sys.argv[2:]:
    k, v = a.split("=")
    OPT[k] = int(v)
FLAGS = ['', ' nt', ' sc1', ' sc0 sc1', ' sc1 nt', ' sc0 sc1 nt', ' sc0']

BLK = 1056
HS = 16 * BLK
DD = OPT['D']
NS = 2 * DD + 1
TS = 61 % NS
XB = 1088
WOFF, XEOFF, XOFF = 0, 17408, 21504
WG0 = 4 * XB + OPT["wsh"]
WG1 = 8720
STSZ = 54272
LDS1 = 163840
WS_O_BYTES = 144 * 32 * 4096
DIAG_OFF = 64 << 20


def f32bits(x):
    return struct.unpack("<I", struct.pack("<f", x))[0]


QSCALE = f32bits(128 ** -0.5 * math.log2(math.e))


class Asm:
    def __init__(self):
        self.l = []

    def __call__(self, s):
        if " | buffer_store" in s:
            for x in s.split(" | "):
                self.l.append("    " + x)
        else:
            self.l.append("    " + s)

    def label(self, s):
        self.l.append(s + ":")

    def raw(self, s):
        self.l.append(s)

    def ext(self, lst):
        for s in lst:
            self(s)


def vr(a, n):
    return f"v[{a}:{a + n - 1}]"


def ar(a, n):
    return f"a[{a}:{a + n - 1}]"


def srd(n):
    return f"s[{n}:{n + 3}]"


MF = "v_mfma_f32_16x16x32_bf16"

SRD_X, SRD_W, SRD_K, SRD_V, SRD_O, SRD_P = 4, 8, 12, 16, 20, 84
sW, sP, sB, sH = 24, 25, 27, 28
sXD, sXS, sWD, sWS, sT0, sT1 = 42, 43, 44, 45, 46, 47
sXED, sXES = 48, 55
sCNT = 49
sKD, sVD, sKVS, sKN, sVN = 50, 51, 52, 53, 54
sSC = 56
sT2 = 57
sOUTP = 32
sWP = 30
sG0 = 31
sDV = 3
sOO = 58
sREDO = 59
sST = 60
sWOF = 88
sCX, sCW = 89, 100
sPC = 98
sXSc, sWSc, sXEc = 29, 26, 101

vXD, vXDE, vWD, vCW, vV4 = 2, 4, 5, 6, 8
vQA = 160
ACC = 16
SB = [16, 48]
SE = 80
NEG = 88
QV = 160
vKB, vVB = 240, 244
vK, vV = 108, 112
vM = 120
vDUM = 252
OA, LA, ONES, RING = 0, 160, 180, 192
XF = [184, 204]
WRING = 224


def Sreg(t, par):
    return SE if t == 4 else SB[par] + 8 * t


stamp_n = [0]


def stamp_txt():
    if OPT["diag"]:
        n = stamp_n[0]
        stamp_n[0] += 1
        assert n < 12
        return [f"s_memtime s[{sST + 2 * n}:{sST + 2 * n + 1}]"]
    return []


def stamp(A):
    A.ext(stamp_txt())


def is_ds(x):
    return x.startswith("ds_")


def add_waits(seq, cyclic, W=1, nfr=None):
    rep = 2 if cyclic else 1
    out = []
    issued = 0
    done = 0
    last = {}
    for it in range(rep):
        out = []
        for e in seq:
            if e[0] == "x":
                if is_ds(e[1]):
                    issued += 1
                    if e[2] is not None:
                        last[e[2]] = issued
                if "lgkmcnt(0)" in e[1] or e[1] == "VMW":
                    done = issued
                out.append(e[1])
            else:
                need = 0
                for f in e[2]:
                    if f in last:
                        need = max(need, last[f])
                if need > done:
                    tgt = need
                    for f in e[3] if len(e) > 3 else []:
                        if f in last and last[f] > need - 40:
                            tgt = max(tgt, last[f])
                    n = issued - tgt
                    assert n <= 15, n
                    out.append(f"s_waitcnt lgkmcnt({n})")
                    done = tgt
                out.append(e[1])
    return out


def kv_piece(dst, srdn, i):
    o = f" offset:{i * 1024}" if i else ""
    return [f"s_add_u32 m0, s{dst}, {i * (BLK - 1024)}",
            f"buffer_load_dwordx4 v{vV4}, {srd(srdn)}, s{sKVS} offen{o}{FLAGS[OPT['kvflag']]} lds"]


def item_piece(n, i):
    o = f" offset:{i * 1024}" if i else ""
    return [f"s_add_u32 m0, s{sWOF}, {(n % NS) * HS + i * (BLK - 1024)}",
            (f"s_add_u32 s{sT0}, s{sG0}, {(n // 2) * 16384}" if OPT["rot"] else f"s_mov_b32 s{sT0}, {(n // 2) * 16384}"),
            f"buffer_load_dwordx4 v{vV4}, {srd(SRD_V if n % 2 else SRD_K)}, s{sT0} offen{o}{FLAGS[OPT['kvflag']]} lds"]


def adv(r, tmp=None):
    tmp = sT2 if tmp is None else tmp
    return [f"s_add_u32 s{r}, s{r}, {2 * HS}", f"s_sub_u32 s{tmp}, s{r}, {NS * HS}", f"s_min_u32 s{r}, s{r}, s{tmp}"]


def kread(dst, base, kb, kk):
    return f"ds_read_b128 {dst}, v{base + (kk >> 1)} offset:{kb * 256 + (kk & 1) * 64}"


def build_loop():
    err = None
    for lo in list(range(78, 153)) + list(range(0, 78)):
        try:
            return build_loop_at(lo)
        except AssertionError as e:
            err = e
    raise err


def build_loop_at(lo):
    L, W = OPT["L"], OPT["W"]
    NF = 32
    mf = []
    qk_end = {}
    pv_first = {}
    phase2 = {}
    step_start = {}
    for j in range(2):
        jn = 1 - j
        step_start[j] = len(mf)
        tiles = range(5) if jn == 0 else range(4)
        for kb in range(2):
            for kk in range(4):
                f = 16 * j + kb * 4 + kk
                for t in tiles:
                    S = Sreg(t, jn) + 4 * kb
                    C = vr(NEG + 4 * t, 4) if kk == 0 else vr(S, 4)
                    mf.append(dict(t=f"{MF} {vr(S, 4)}, {ar(RING + 4 * (f % 16), 4)}, {vr(QV + 16 * t + 4 * kk, 4)}, {C}", f=f))
                    qk_end[(jn, t, kb)] = len(mf) - 1
        tiles = list(range(5) if j == 0 else range(4))
        phase2[j] = len(mf)
        for dt in range(8):
            f = 16 * j + 8 + dt
            for t in tiles:
                O = ar(OA + 32 * t + 4 * dt, 4)
                mf.append(dict(t=f"{MF} {O}, {ar(RING + 4 * (f % 16), 4)}, {vr(Sreg(t, j), 4)}, {O}", f=f))
                pv_first.setdefault((j, t), len(mf) - 1)
            x = dt - 2
            if 0 <= x < len(tiles):
                Lr = ar(LA + 4 * x, 4)
                mf.append(dict(t=f"{MF} {Lr}, {ar(ONES, 4)}, {vr(Sreg(x, j), 4)}, {Lr}", f=f))
    N = len(mf)
    assert N == 153
    first_use, last_use = {}, {}
    for i, m in enumerate(mf):
        first_use.setdefault(m["f"], i)
        last_use[m["f"]] = i
    cap = [2] * N
    for f in range(NF):
        if f % W == 0:
            cap[(first_use[f] - 1) % N] -= 1
    gX = step_start[1] - 1
    cap[gX] -= 1
    cap[N - 1] -= 1
    ecap = [False] * N
    for f in range(NF):
        a, b = first_use[f], last_use[f]
        n = b - a + 1
        pos = {4: [0, 2], 5: [0, 2, 3], 6: [0, 2, 4]}[n]
        for p in pos:
            ecap[a + p] = True
    gaps = [[] for _ in range(N)]

    def frag_reads(f):
        j, r = divmod(f, 16)
        dst = RING + 4 * (f % 16)
        if r < 8:
            kb, kk = divmod(r, 4)
            return [kread(ar(dst, 4), vK + 2 * (1 - j), kb, kk)]
        dt = r - 8
        return [f"ds_read_b64_tr_b16 {ar(dst + 2 * e, 2)}, v{vV + j} offset:{e * 256 + dt * 32}" for e in range(2)]

    used = [0] * N
    nvm = 8 + (1 if OPT["wopf"] == 2 else 0)
    gB = phase2[0] + 1
    gaps[gB] += [(f"s_waitcnt vmcnt({(DD - 2) * nvm})", "", None), ("s_barrier", "", None)]
    used[gB] = 2
    assert not ecap[gB] and cap[gB] == 2
    order = []
    for j in (0, 1):
        tiles = range(5) if j == 0 else range(4)
        for kb in range(2):
            for t in tiles:
                for r in range(4):
                    order.append((j, t, kb, r))

    def avail(j, t, kb):
        e = qk_end[(j, t, kb)] + 4
        return e - N if j == 0 else e
    cur = -10 ** 9
    for rnd in range(3):
        place = {}
        for (j, t, kb, r) in order:
            g = max(cur + 1, avail(j, t, kb))
            while not (ecap[g % N] and cap[g % N] == 2):
                g += 1
            place[(j, t, kb, r)] = g
            cur = g
        cur -= N
    for key, g in place.items():
        j, t, kb, r = key
        S = Sreg(t, j) + 4 * kb + r
        gaps[g % N].append((f"v_exp_f32 v{S}, v{S}", "n" if g < 0 else "", ("sm", j)))
        assert used[g % N] == 0
        used[g % N] = 2
    singles = []
    seqn = [0]

    def add(tg, prio, text, kind=None, chain=None):
        singles.append(dict(g=tg, p=prio, s=seqn[0], t=text, k=kind, chain=chain))
        seqn[0] += 1

    for (j, t, kb, r), g in place.items():
        if r % 2 == 1:
            S = Sreg(t, j)
            add(g + 1, 1, f"v_cvt_pk_bf16_f32 v{S + 2 * kb + r // 2}, v{S + 4 * kb + r - 1}, v{S + 4 * kb + r}",
                kind=("cvt", j, t), chain="cvt")
    tgt_rd = {}
    for f in range(NF):
        tg = first_use[(f - L) % NF] + (0 if f - L >= 0 else -N)
        tgt_rd[f] = tg
        for x in frag_reads(f):
            add(tg, 0, x, kind=("rd", f), chain="rd")
    add(tgt_rd[7], 0, f"v_add_u32 v{vK + 2}, s{sKN}, v{vKB + 2}", chain="rd", kind="k1")
    add(tgt_rd[7], 0, f"v_add_u32 v{vK + 3}, s{sKN}, v{vKB + 3}", chain="rd", kind="k1")
    add(tgt_rd[15], 0, f"v_add_u32 v{vV}, s{sVN}, v{vVB}", chain="rd", kind="v0")
    add(tgt_rd[23], 0, f"v_add_u32 v{vK}, s{sKN}, v{vKB}", chain="rd", kind="k0")
    add(tgt_rd[23], 0, f"v_add_u32 v{vK + 1}, s{sKN}, v{vKB + 1}", chain="rd", kind="k0")
    add(tgt_rd[31], 0, f"v_add_u32 v{vV + 1}, s{sDV}, v{vV}", chain="rd", kind="v1")
    g = gB + 1
    st = OPT["dmastep"]
    for i in range(4):
        pc = kv_piece(sVD, SRD_V, i)
        add(g, 2, pc[0], kind="m0", chain="dma")
        add(g + 1, 2, pc[1], kind="dma", chain="dma")
        g += st
    g -= st - 2
    add(g, 3, f"s_add_u32 s{sVD}, s{sKN}, s{sWOF}", chain="dma")
    for x in adv(sKN):
        add(g, 3, x, chain="dma", kind="advk")
    g += st - 2
    for i in range(4):
        pc = kv_piece(sKD, SRD_K, i)
        add(g, 2, pc[0], kind="m0", chain="dma")
        add(g + 1, 2, pc[1], kind="dma", chain="dma")
        g += st
    g -= st - 2
    if OPT["wopf"] == 2:
        add(84, 3, f"buffer_load_dword v{vDUM}, v7, {srd(SRD_P)}, s{sWP} offen", chain="misc")
        add(84, 3, f"s_add_u32 s{sWP}, s{sWP}, 160", chain="misc")
    for x in adv(sKD):
        add(g, 3, x, chain="dma")
    add(g, 3, f"s_add_u32 s{sKVS}, s{sKVS}, 16384", chain="dma")
    if OPT["rot"]:
        add(g, 3, f"s_and_b32 s{sKVS}, s{sKVS}, 0x7ffff", chain="dma")
        add(g, 3, f"s_cmp_lt_u32 s{sCNT}, {DD} | s_cselect_b32 s{sKVS}, 0x100000, s{sKVS}", chain="dma")
    for x in adv(sVN, sT1):
        add(78, 3, x, chain="misc", kind="advv")
    for x in singles:
        t2_ = (x["g"] - lo) % N + lo
        x["sh"] = x["g"] - t2_
        x["g"] = t2_
    chains = {}
    for x in sorted(singles, key=lambda x: (x["g"], x["s"])):
        chains.setdefault(x["chain"], []).append(x)
    placed = []
    lastg = {}
    gS = gX - 1
    while used[gS] or cap[gS] < 1:
        gS -= 1
    gaps[gS] += [(f"s_sub_u32 s{sCNT}, s{sCNT}, 1", "", None)]
    used[gS] = 1
    g = lo
    while any(chains.values()):
        while used[g % N] < cap[g % N]:
            cands = []
            for c, q in chains.items():
                if q and q[0]["g"] <= g:
                    if q[0]["k"] == "dma" and lastg.get(c) == g:
                        continue
                    if gS <= g % N <= gX and q[0]["t"].startswith("s_"):
                        continue
                    cands.append(q[0])
            if not cands:
                break
            x = min(cands, key=lambda x: (x["p"] - (g - x["g"]) / 6.0, x["g"], x["s"]))
            chains[x["chain"]].pop(0)
            lastg[x["chain"]] = g
            x["at"] = g + x["sh"]
            placed.append(x)
            used[g % N] += 1
            gaps[g % N].append((x["t"], "n" if x["at"] < 0 else "", x["k"]))
        g += 1
        assert g <= lo + N, [q[0] for q in chains.values() if q]
    gaps[gX].append(("s_cbranch_scc1 L1_side | L1_back:", "", None))
    rd_at, first_rd, at = {}, {}, {}
    for x in placed:
        if isinstance(x["k"], tuple) and x["k"][0] == "rd":
            rd_at[x["k"][1]] = x["at"]
            first_rd.setdefault(x["k"][1], x["at"])
        elif isinstance(x["k"], tuple) and x["k"][0] == "cvt":
            _, j, t = x["k"]
            assert x["at"] <= pv_first[(j, t)] - 2, ("cvt late", x, pv_first[(j, t)])
        else:
            at.setdefault(x["k"], []).append(x["at"])
        assert x["at"] < N, x
    for f in range(NF):
        lead = first_use[f - (f % W)] - rd_at[f]
        assert lead >= 8, ("short lead", f, lead)
    assert first_rd[16] > gB
    for a_, b_ in zip(sorted(at["m0"]), sorted(at["dma"])):
        assert not (a_ <= gX < b_), "m0 live across the side exit"
        assert a_ < b_
    assert max(at["k1"]) < min(at["advk"]) and max(at["advk"]) < min(at["k0"]), at
    assert max(at["v0"]) < min(at["advv"]), at
    seq, pro, tail = [], [], []
    for i, m in enumerate(mf):
        f = m["f"]
        grp = [(f - f % W + k) % NF for k in range(W)]
        seq.append(("m", m["t"], [f], grp))
        for x in gaps[i]:
            isrd = isinstance(x[2], tuple) and x[2][0] == "rd"
            seq.append(("x", x[0], x[2][1] if isrd else None))
            if x[1] == "n":
                pro.append(x[0])
            if i > gX and x[1] != "n" and isinstance(x[2], tuple):
                if (x[2][0] in ("sm", "cvt") and x[2][1] == 1) or (isrd and x[2][1] >= 24):
                    tail.append(x[0])
    body = add_waits(seq, True)
    body = [y for x in body for y in x.split(" | ")]
    if OPT["show"]:
        print("gap use:", "".join(str(u) for u in used), file=sys.stderr)
        print("instr count", len(body), "waits", sum("lgkmcnt" in x for x in body), "bar", gB, "dma", at["dma"], file=sys.stderr)
        print("pro", len(pro), "tail", len(tail), "lo", lo, file=sys.stderr)

    def keep(x):
        if OPT["nodma"] and (x.startswith("buffer_load") or x.startswith("s_add_u32 m0") or "vmcnt" in x):
            return False
        if OPT["nobar"] and x.startswith("s_barrier"):
            return False
        return True
    return [x for x in body if keep(x)], pro, tail


def cursor(r):
    return [f"s_add_u32 s{r}, s{r}, 128", f"s_sub_u32 s{sT2}, s{r}, 1152", f"s_min_u32 s{r}, s{r}, s{sT2}"]


def x_pieces(c):
    st = STG[c] * STSZ
    p = []
    for i in range(8):
        pre = [f"s_add_u32 s{sXSc}, s{sXS}, s{sCX}"] + cursor(sCX) if i == 0 else []
        p.append(pre + [f"s_add_u32 m0, s{sXD}, {st + i * 1024}",
                        (f"s_add_u32 s{sT0}, s{sXSc}, {i * 9216}" if i else "s_nop 0"),
                        f"buffer_load_dwordx4 v{vXD + (i & 1)}, {srd(SRD_X)}, s{sT0 if i else sXSc} offen{FLAGS[OPT['qpflag']]} lds"])
    return p


def wg_pieces(c):
    st = STG[c] * STSZ
    p = []
    for r in range(4):
        pre = [f"s_lshl_b32 s{sWSc}, s{sCW}, 12", f"s_add_u32 s{sWSc}, s{sWSc}, s{sWS}",
               f"s_add_u32 s{sXEc}, s{sXES}, s{sCW}"] + cursor(sCW) if r == 0 else []
        p.append(pre + [f"s_add_u32 m0, s{sWD}, {st + WOFF + r * XB}",
                        (f"s_add_u32 s{sT0}, s{sWSc}, {r * 8192}" if r else "s_nop 0"),
                        f"buffer_load_dwordx4 v{vWD}, {srd(SRD_W)}, s{sT0 if r else sWSc} offen{FLAGS[OPT['qpflag']]} lds"])
    p.append([f"s_add_u32 m0, s{sXED}, {st}", "s_nop 0",
              f"buffer_load_dwordx4 v{vXDE}, {srd(SRD_X)}, s{sXEc} offen{FLAGS[OPT['qpflag']]} lds"])
    return p


STG = [[0, 2, 1, 0, 2, 1, 2, 1, 2], [0, 1, 2, 0, 1, 2, 0, 1, 2]][OPT['stg']]


def build_qproj(extras, nup, tail_items, fill):
    LQ = OPT["LQ"]
    mf = []
    first_use, last_use = {}, {}
    for s in range(18):
        for sl in range(8):
            f = ("w", 8 * s + sl)
            tiles = range(5) if sl < 4 else range(4)
            for t in tiles:
                a = ACC + 32 * t + 4 * sl
                C = "0" if s == 0 else vr(a, 4)
                txt = f"{MF} {vr(a, 4)}, {ar(WRING + 4 * sl, 4)}, {ar(XF[s % 2] + 4 * t, 4)}, {C}"
                mf.append((txt, [f, ("x", s, t)]))
                for q in (f, ("x", s, t)):
                    first_use.setdefault(q, len(mf) - 1)
                    last_use[q] = len(mf) - 1
    N = len(mf)
    gaps = [[] for _ in range(N + 1)]

    def st_of(c):
        return (6, 0) if STG[c] == 2 else (0, STG[c] * STSZ)

    def wread(n):
        s, sl = divmod(n, 8)
        c, ks = divmod(s, 2)
        rb, st = st_of(c)
        kk, u = divmod(sl, 2)
        base = vQA + rb + (4 if kk < 2 else 5)
        return [(f"ds_read_b64_tr_b16 {ar(WRING + 4 * sl + 2 * e, 2)}, v{base} offset:{st + (kk & 1) * 64 + 8 * u + e * 256 + ks * 512}",
                 ("w", n)) for e in range(2)]

    def xread(s, t):
        c, ks = divmod(s, 2)
        rb, st = st_of(c)
        if t < 4:
            return (f"ds_read_b128 {ar(XF[s % 2] + 4 * t, 4)}, v{vQA + rb + ks} offset:{st + t * 2048}", ("x", s, t))
        return (f"ds_read_b128 {ar(XF[s % 2] + 16, 4)}, v{vQA + rb + 2 + ks} offset:{st}", ("x", s, t))

    bar = {0: -1, 9: N}
    for c in range(1, 9):
        bar[c] = last_use[("w", 16 * c - LQ + 1)]
    items = []
    for n in range(144):
        c = n // 16
        e = last_use[("w", n - 8)] if n >= 8 else -1
        tg = first_use[("w", n - LQ)] if n >= LQ else -1
        tg = max(tg, e, bar[c])
        for x in wread(n):
            items.append((tg, x))
    rd = sorted(items, key=lambda z: z[0])
    xi = []
    for s in range(18):
        c, ks = divmod(s, 2)
        for t in range(5):
            e = last_use[("x", s - 2, t)] if s >= 2 else -1
            tg = max(e, bar[c])
            if s == 1:
                tg = 0
            xi.append((tg, xread(s, t)))
    allrd = sorted([(tg, 0, i, x) for i, (tg, x) in enumerate(xi)] + [(tg, 1, i, x) for i, (tg, x) in enumerate(rd)],
                   key=lambda z: (z[0], z[1], z[2]))
    used = [0] * (N + 2)
    xdone = {}
    g = -1
    for tg, _, _, x in allrd:
        g = max(g, tg)
        if g < 0 and used[0] >= 9:
            g = 0
        while g >= 0 and used[g + 1] >= 2:
            g += 1
        gaps[g + 1].append(("x", x[0], x[1]))
        used[g + 1] += 1
        if x[1][0] == "x":
            xdone[x[1][1]] = g
        cc = x[1][1] // 16 if x[1][0] == "w" else x[1][1] // 2
        assert g < bar[cc + 1] - 2, (x, g, bar[cc + 1])
    last_rd = g
    groups = []
    for c in range(nup, 9):
        prev = [p for p in range(c) if STG[p] == STG[c]]
        ew = bar[prev[-1] + 1] if prev else -1
        ex = xdone[2 * prev[-1] + 1] + 10 if prev else -1
        groups.append((ew, 0, c, wg_pieces(c), ("W", c), None))
        groups.append((ex, 2, c, x_pieces(c), ("X", c), prev[-1] if prev else None))
    for c, ps in extras.items():
        groups.append((bar[c], 1, c, ps, ("E", c), None))
    groups.sort(key=lambda z: (z[0], z[2] if z[0] < 0 else 0, z[1]))
    for kind in "WX":
        cs = [z[4][1] for z in groups if z[4][0] == kind]
        assert cs == sorted(cs), cs
    issued = []
    for c in range(nup):
        issued += [(("W", c), -1)] * 5 + [(("X", c), -1)] * 8
        if c == 0 and OPT["pf"]:
            issued += [(("P", 0), -1)] * 2
    g = 0
    for tg, _, _, ps, tag, prev in groups:
        for i, p in enumerate(ps):
            late = g - tg
            g = max(g, tg)
            g0 = g
            if i == 0 and prev is not None:
                while used[g + 1] >= 1:
                    g += 1
                gaps[g + 1].append(("xw", ("x", 2 * prev + 1)))
                used[g + 1] += 2
            for ins in p[:-1]:
                if ins == "s_nop 0":
                    continue
                while used[g + 1] >= 2:
                    g += 1
                gaps[g + 1].append(("x", ins, None))
                used[g + 1] += 1
            g += 1
            while used[g + 1] >= 2:
                g += 1
            assert g < N - 30, (tag, g)
            gaps[g + 1].append(("x", p[-1], None))
            used[g + 1] = 2
            issued.append((tag, g))
            g = max(g + 1, g0 + (OPT["qstep"] if late < 30 else 2))
    for c, lst in fill.items():
        g = bar[c]
        for ins in lst:
            k = ins.count(" | ") + 1
            while used[g + 1] + k > 2 or (k > 1 and used[g + 1]):
                g += 1
            for y in ins.split(" | "):
                gaps[g + 1].append(("x", y, None))
            used[g + 1] += k
            assert g < min(bar[c + 1], N - 26), (c, g)
    vm_at = {}
    for c in range(1, 9):
        before = [t for t, gg in issued if gg < bar[c]]
        for t, gg in issued:
            if t in (("W", c), ("X", c)):
                assert gg < bar[c] - 30, (t, gg, bar[c])
        lastneed = max(i for i, t in enumerate(before) if t in (("W", c), ("X", c)))
        vm_at[c] = len(before) - 1 - lastneed
    if OPT["show"]:
        print("bar", bar, "vm", vm_at, "issue", [(t[0] + str(t[1]), g) for t, g in issued if g >= 0], "lastrd", last_rd - (N - 36), file=sys.stderr)
    seq = []
    tf = list(tail_items)
    for i in range(N + 1):
        if i > 0:
            seq.append(("m", mf[i - 1][0], mf[i - 1][1]))
        for c in range(1, 9):
            if bar[c] == i - 1:
                seq.append(("x", f"s_waitcnt vmcnt({vm_at[c]}) lgkmcnt(0)", None))
                seq.append(("x", "s_barrier", None))
                if OPT["diag"]:
                    seq.append(("x", f"v_writelane_b32 v250, s90, {40 + c}", None))
                    seq.append(("x", "s_memtime s[90:91]", None))
        for x in gaps[i]:
            if x[0] == "xw":
                seq.append(("m", "s_nop 0", [("x", x[1][1], t) for t in range(5)]))
            else:
                seq.append(x)
        while tf and tf[0][0] <= i - 1 - (N - 36):
            seq.append(("x", tf.pop(0)[1], None))
    assert not tf
    return add_waits(seq, False), [t for t, _ in issued]


DW = 10
SRD_OUT, SRD_D = SRD_X, SRD_W
sMT, sNT, sBS, sLD, sU, sPA, sCA = sXD, sXS, sWS, sXED, sXES, sCX, sCW
sAI = 32
sSIDE, sRDY, sPF = 38, 39, 40
vBD, vPF, vZ, vPL = 2, 3, 4, 5
vBR, WF, AC = 144, 112, 160


def wslot(d):
    return (131072 + d * 16384) if d < 2 else (d - 2) * 16384


def wload(s):
    return [[f"s_add_u32 m0, s{sLD}, {wslot(s % DW) + i * 1024}",
             f"s_add_u32 s{sU}, s{sBS}, {(32 * s + 8 * i) * 1152}",
             f"buffer_load_dwordx4 v{vBD}, {srd(SRD_P)}, s{sU} offen lds"] for i in range(4)]


def oreg(s, i):
    n = (s % OPT["DO"]) * 6 + i
    return 4 * n if n < 16 else 128 + 4 * (n - 16) if n < 24 else 64 + 4 * (n - 24)


def oload(s):
    off = f" offset:{(s % 4) * 1024}" if s % 4 else ""
    o = []
    for i in range(6):
        pre = [f"s_add_u32 s{sAI + i}, s{sAI + i}, 4096"] if (s % 4 == 0 and s) else []
        o.append(pre + [f"buffer_load_dwordx4 {ar(oreg(s, i), 4)}, v11, {srd(SRD_O)}, s{sAI + i} offen{off}{FLAGS[OPT['oflag']]}"])
    return o


def p3_setup():
    Z = Asm()
    Z(f"s_lshr_b32 s{sU}, s2, 3")
    Z(f"s_mul_i32 s{sPF}, s{sU}, 6912")
    Z(f"s_mul_i32 s{sNT}, s{sU}, 43")
    Z(f"s_lshr_b32 s{sNT}, s{sNT}, 7")
    Z(f"s_mul_i32 s{sMT}, s{sNT}, 3")
    Z(f"s_sub_u32 s{sMT}, s{sU}, s{sMT}")
    if OPT["xmap"] == 1:
        Z(f"s_and_b32 s{sCA}, s2, 1")
        Z(f"s_xor_b32 s{sCA}, s{sCA}, 1")
        Z(f"s_lshl_b32 s{sCA}, s{sCA}, 2")
        Z(f"s_bfe_u32 s{sU}, s2, 0x20001")
        Z(f"s_add_u32 s{sCA}, s{sCA}, s{sU}")
    else:
        Z(f"s_and_b32 s{sCA}, s2, 7")
    Z(f"s_mul_i32 s{sU}, s{sCA}, 3")
    Z(f"s_add_u32 s{sMT}, s{sMT}, s{sU}")
    Z(f"s_lshl_b32 s{sCA}, s{sCA}, 2")
    Z(f"s_add_u32 s{sCA}, s{sCA}, s{sW}")
    Z(f"s_lshl_b32 s{sCA}, s{sCA}, 3")
    Z(f"s_lshl_b32 s{sPA}, s{sB}, 2")
    Z(f"s_lshr_b32 s{sU}, s{sH}, 3")
    Z(f"s_add_u32 s{sPA}, s{sPA}, s{sU}")
    Z(f"s_lshl_b32 s{sPA}, s{sPA}, 3")
    Z(f"v_lshrrev_b32 v{vPF}, 3, v0")
    Z(f"v_mul_u32_u24 v{vBD}, 1152, v{vPF}")
    Z(f"v_lshlrev_b32 v{vPF}, 1, v12")
    Z(f"v_and_b32 v{vZ}, 7, v0")
    Z(f"v_xor_b32 v{vPF}, v{vPF}, v{vZ}")
    Z(f"v_lshl_add_u32 v{vBD}, v{vPF}, 4, v{vBD}")
    Z(f"v_min_u32 v{vPF}, 53, v0")
    Z(f"v_lshlrev_b32 v{vPF}, 7, v{vPF}")
    Z(f"v_mov_b32 v{vZ}, 0")
    Z(f"s_lshl_b32 s{sLD}, s{sW}, 12")
    Z(f"s_mul_i32 s{sBS}, s{sW}, {1024 * 1152}")
    Z(f"s_add_u32 s{sPF}, s{sPF}, s{sBS}")
    Z(f"s_lshl_b32 s{sU}, s{sNT}, 7")
    Z(f"s_add_u32 s{sBS}, s{sBS}, s{sU}")
    Z(f"s_cmp_ge_u32 s2, 216 | s_cselect_b32 s{sBS}, 0x40000000, s{sBS}")
    Z(f"s_mov_b32 s{SRD_OUT}, s{sOUTP}")
    Z(f"s_mov_b32 s{SRD_OUT + 1}, s{sOUTP + 1}")
    Z(f"s_mov_b32 s{SRD_OUT + 2}, {2304 * 1152}")
    Z(f"s_mov_b32 s{SRD_D}, s{sOUTP + 2}")
    Z(f"s_mov_b32 s{SRD_D + 1}, s{sOUTP + 3}")
    Z(f"s_mov_b32 s{SRD_D + 2}, 256")
    return [x.strip() for x in Z.l]


def o_bases(oob):
    o = [f"s_mul_i32 s{sAI}, s{sMT}, 786432", f"s_lshl_b32 s{sU}, s{sW}, 15", f"s_add_u32 s{sAI}, s{sAI}, s{sU}"]
    if oob:
        o += [f"s_cmp_ge_u32 s{sRDY}, 8", f"s_cselect_b32 s{sAI}, s{sAI}, 0x40000000"]
    o += [f"s_add_u32 s{sAI + i}, s{sAI}, {i * 131072}" for i in range(1, 6)]
    return o


def side_block(A):
    A.label("L1_side")
    A(f"s_mov_b32 s{sCNT}, 0")
    A(f"s_add_u32 s{sSIDE}, s{sSIDE}, 1")
    A(f"s_cmp_eq_u32 s{sSIDE}, 4")
    A("s_cbranch_scc1 L1_tail")
    if OPT["l2pf"]:
        A(f"s_mul_i32 s{sU}, s{sSIDE}, {6 * 36864}")
        A(f"s_add_u32 s{sU}, s{sU}, s{sPF}")
        A(f"s_sub_u32 s{sU}, s{sU}, {4 * 36864}")
        A(f"buffer_load_dword v{vDUM}, v{vPF}, {srd(SRD_P)}, s{sU} offen")
    A(f"s_cmp_eq_u32 s{sSIDE}, 2")
    A("s_cbranch_scc1 L1_side2")
    A(f"s_cmp_eq_u32 s{sSIDE}, 3")
    A("s_cbranch_scc1 L1_side3")
    ps = wload(0) + wload(1)
    A(f"global_load_dword v{vDUM}, v{vCW}, s[{sPC}:{sPC + 1}]")
    for p in ps[0:2]:
        A.ext(p)
    A("s_branch L1_back")
    A.label("L1_side2")
    for p in ps[2:5]:
        A.ext(p)
    A("s_branch L1_back")
    A.label("L1_side3")
    for p in ps[5:8]:
        A.ext(p)
    A("s_branch L1_back")


def p3(A, rest):
    DO = OPT["DO"]
    u0, u1 = 247, 248

    def wreads(s):
        o = wslot(s % DW)
        b = WF + 16 * (s % 2)
        return [f"ds_read_b64_tr_b16 {vr(b + 4 * n + 2 * e, 2)}, v{vBR + 4 * (o >> 16) + n} offset:{(o & 0xffff) + e * 2048}"
                for n in range(4) for e in range(2)]

    A.ext(rest)
    A(f"buffer_load_dword v{vPL}, v{vZ}, {srd(SRD_D)}, s{sCA} offen sc1")
    A.ext(o_bases(False))
    stamp(A)
    A(f"v_lshrrev_b32 v{u0}, 2, v0")
    A(f"v_lshlrev_b32 v{vBR}, 7, v{u0}")
    A(f"v_bfe_u32 v{u0}, v0, 3, 2")
    A(f"v_lshl_add_u32 v{vBR}, v{u0}, 5, v{vBR}")
    A(f"v_lshl_add_u32 v{vBR}, v15, 3, v{vBR}")
    A(f"v_add_u32 v{vBR}, s{sLD}, v{vBR}")
    for n_ in range(1, 4):
        A(f"v_xor_b32 v{vBR + n_}, {32 * n_}, v{vBR}")
    for k in range(1, 3):
        for n_ in range(4):
            A(f"v_add_u32 v{vBR + 4 * k + n_}, {65536 * k}, v{vBR + n_}")
    A(f"v_mov_b32 v{u0}, 1")
    A.ext(wreads(0))
    A("s_waitcnt vmcnt(0)")
    A("s_barrier")
    if OPT["diag"]:
        A("s_memrealtime s[78:79]")
    A(f"s_cmp_lg_u32 s{sW}, 0")
    A("s_cbranch_scc1 L3_noadd")
    A("s_mov_b64 exec, 1")
    A(f"buffer_atomic_add v{u0}, v{vZ}, {srd(SRD_D)}, s{sPA} offen sc1")
    A("s_mov_b64 exec, -1")
    A.label("L3_noadd")
    A("s_cmp_ge_u32 s2, 216")
    A("s_cbranch_scc1 L3_done")
    A(f"v_readfirstlane_b32 s{sRDY}, v{vPL}")
    A(f"s_mov_b32 s{sCNT}, {1 << 22}")
    A(f"s_cmp_ge_u32 s{sRDY}, {8 if OPT['fast'] else 999}")
    A("s_cbranch_scc1 L3_fast")
    vmq, nfast = [], []
    for s in range(2, DW):
        for p in wload(s):
            A.ext(p)
    A.label("L3_poll")
    A(f"buffer_load_dword v{u0}, v{vZ}, {srd(SRD_D)}, s{sCA} offen sc1")
    A("s_waitcnt vmcnt(0)")
    A(f"v_readfirstlane_b32 s{sU}, v{u0}")
    A(f"s_sub_u32 s{sCNT}, s{sCNT}, 1")
    A("s_cbranch_scc1 L3_rdy")
    A(f"s_cmp_ge_u32 s{sU}, 8")
    A("s_cbranch_scc1 L3_rdy")
    A("s_sleep 4")
    A("s_branch L3_poll")
    A.label("L3_rdy")
    for s in range(DO):
        for p in oload(s):
            A.ext(p)
            vmq.append(("o", s))
    A("s_branch L3_go")
    A.label("L3_fast")
    seq = [("o", 0), ("o", 1), ("w", 2), ("o", 2), ("w", 3), ("o", 3)] + [("o", s) for s in range(4, DO)] + [("w", s) for s in range(4, DW)]
    for k_, s in seq:
        for p in (oload(s) if k_ == "o" else wload(s)):
            A.ext(p)
            nfast.append((k_, s))
    A.label("L3_go")
    if OPT["diag"]:
        A("s_memrealtime s[80:81]")
    for s in range(32):
        cnt = []
        for q in (vmq, nfast):
            need = [i for i, t in enumerate(q) if t in (("o", s), ("w", s + 1))]
            cnt.append(len(q) - 1 - max(need) if need else 63)
        A(f"s_waitcnt vmcnt({min(min(cnt), 63)}) lgkmcnt(0)")
        b = WF + 16 * (s % 2)
        rdq = wreads(s + 1) if s + 1 < 32 else []
        ld = []
        if s + DW < 32:
            ld += [(p, ("w", s + DW)) for p in wload(s + DW)]
        if s >= 1 and s - 1 + DO < 32:
            ld += [(p, ("o", s - 1 + DO)) for p in oload(s - 1 + DO)]
        k = 0
        for n_ in range(4):
            for i in range(6):
                acc = ar(AC + 4 * (6 * n_ + i), 4)
                A(f"{MF} {acc}, {vr(b + 4 * n_, 4)}, {ar(oreg(s, i), 4)}, {'0' if s == 0 else acc}")
                k += 1
                if rdq and k % 2 == 1:
                    A(rdq.pop(0))
                if ld and k % 2 == 0:
                    p, tag = ld.pop(0)
                    A.ext(p)
                    vmq.append(tag)
                    nfast.append(tag)
        assert not ld and not rdq
    if OPT["diag"]:
        A("s_memrealtime s[82:83]")
    sAS = sAI
    A("s_barrier")
    A(f"s_mul_i32 s{sT0}, s{sW}, 24576")
    A(f"v_lshl_add_u32 v{u0}, v0, 4, s{sT0}")
    A("s_nop 4")
    for q in range(24):
        A(f"ds_write_b128 v{u0}, {ar(AC + 4 * q, 4)} offset:{q * 1024}")
    A(f"v_lshlrev_b32 v{u0}, 4, v13")
    A(f"v_bfe_u32 v{u1}, v0, 4, 1")
    A(f"v_lshl_add_u32 v{u0}, v{u1}, 9, v{u0}")
    A(f"v_lshrrev_b32 v10, 5, v0")
    A(f"v_lshl_add_u32 v{u0}, v10, 10, v{u0}")
    A(f"s_mul_i32 s{sT0}, s{sW}, {6 * 1024}")
    A(f"v_add_u32 v{u0}, s{sT0}, v{u0}")
    A(f"v_lshl_add_u32 v9, v10, 4, v13")
    A(f"v_mul_u32_u24 v9, 1152, v9")
    A(f"v_lshl_add_u32 v9, v{u1}, 4, v9")
    A(f"v_add_u32 v{u1}, 49152, v{u0}")
    A(f"s_mul_i32 s{sAS}, s{sMT}, {96 * 1152}")
    A(f"s_lshl_b32 s{sT0}, s{sNT}, 7")
    A(f"s_add_u32 s{sAS}, s{sAS}, s{sT0}")
    A(f"s_lshl_b32 s{sT0}, s{sW}, 5")
    A(f"s_add_u32 s{sAS}, s{sAS}, s{sT0}")
    A("s_waitcnt lgkmcnt(0)")
    A("s_barrier")
    R = 16
    for x in range(3):
        for w in range(4):
            for q in range(2):
                A(f"ds_read_b128 {vr(R + 32 * x + 8 * w + 4 * q, 4)}, v{u0 if w < 2 else u1} offset:{(w % 2) * 24576 + x * 2048 + q * 256}")
    for x in range(3):
        A(f"s_waitcnt lgkmcnt({min(15, 8 * (2 - x))})")
        bb = R + 32 * x
        for e in range(8):
            A(f"v_add_f32 v{bb + e}, v{bb + e}, v{bb + 8 + e}")
            A(f"v_add_f32 v{bb + 16 + e}, v{bb + 16 + e}, v{bb + 24 + e}")
        for e in range(8):
            A(f"v_add_f32 v{bb + e}, v{bb + e}, v{bb + 16 + e}")
        for e in range(4):
            A(f"v_cvt_pk_bf16_f32 v{bb + 8 + e}, v{bb + 2 * e}, v{bb + 2 * e + 1}")
        A(f"buffer_store_dwordx4 {vr(bb + 8, 4)}, v9, {srd(SRD_OUT)}, s{sAS} offen")
        A(f"s_add_u32 s{sAS}, s{sAS}, {32 * 1152}")
    A.label("L3_done")


def k1(A):
    A.raw(".p2align 8")
    A.raw(".type attn_kernel,@function")
    A.label("attn_kernel")
    A("s_cmp_ge_u32 s2, 256")
    A("s_cbranch_scc1 L1_end")
    A("s_load_dwordx8 s[32:39], s[0:1], 0")
    A("s_load_dwordx2 s[40:41], s[0:1], 56")
    A("s_load_dwordx2 s[30:31], s[0:1], 32")
    A(f"s_getpc_b64 s[{sPC}:{sPC + 1}]")
    A.label("L1_pc")
    stamp(A)
    if OPT["diag"]:
        A("s_memrealtime s[92:93]")
    A("s_lshr_b32 s3, s2, 3")
    if OPT["cpf"]:
        A(f"s_lshl_b32 s{sT0}, s3, 11")
        A(f"v_lshl_add_u32 v1, v0, 7, s{sT0}")
        A("v_min_u32 v1, L_code_end-L1_pc-4, v1")
        A("v_cmp_gt_u32 vcc, 16, v0")
        A("s_and_saveexec_b64 s[46:47], vcc")
        A("s_cbranch_execz L1_nocpf")
        A(f"global_load_dword v{vDUM}, v1, s[{sPC}:{sPC + 1}]")
        A.label("L1_nocpf")
        A("s_mov_b64 exec, s[46:47]")
    A("v_lshrrev_b32 v1, 6, v0")
    A("v_and_b32 v0, 63, v0")
    A(f"v_readfirstlane_b32 s{sW}, v1")
    if OPT["xmap"] == 0:
        A(f"s_and_b32 s{sB}, s2, 7")
        A(f"s_mov_b32 s{sH}, s3")
    else:
        A(f"s_and_b32 s{sB}, s2, 1")
        A(f"s_lshl_b32 s{sB}, s{sB}, 2")
        A(f"s_and_b32 s{sT0}, s3, 3")
        A(f"s_add_u32 s{sB}, s{sB}, s{sT0}")
        A(f"s_and_b32 s{sH}, s2, 6")
        A(f"s_lshl_b32 s{sH}, s{sH}, 2")
        A(f"s_lshr_b32 s{sT0}, s3, 2")
        A(f"s_add_u32 s{sH}, s{sH}, s{sT0}")
    A(f"s_and_b32 s{sP}, s{sW}, 1")
    nph = OPT["nph"]
    if nph == 1:
        A(f"s_mov_b32 s{sCW}, 0")
    elif nph == 2:
        A(f"s_add_u32 s{sCW}, s{sB}, s{sH}")
        A(f"s_and_b32 s{sCW}, s{sCW}, 1")
        A(f"s_mul_i32 s{sCW}, s{sCW}, {4 * 128}")
    elif nph == 4:
        A(f"s_add_u32 s{sCW}, s{sB}, s{sH}")
        A(f"s_and_b32 s{sCW}, s{sCW}, 3")
        A(f"s_mul_i32 s{sCW}, s{sCW}, {2 * 128}")
    elif nph == 3:
        A(f"s_add_u32 s{sCW}, s{sB}, s{sH}")
        A(f"s_mul_i32 s{sT0}, s{sCW}, 43")
        A(f"s_lshr_b32 s{sT0}, s{sT0}, 7")
        A(f"s_mul_i32 s{sT0}, s{sT0}, 3")
        A(f"s_sub_u32 s{sCW}, s{sCW}, s{sT0}")
        A(f"s_mul_i32 s{sCW}, s{sCW}, {3 * 128}")
    A(f"s_mov_b32 s{sCX}, s{sCW}")
    t0, t1, t2, g4, i16, r4, cq = 9, 10, 11, 12, 13, 14, 15
    A(f"v_lshrrev_b32 v{g4}, 4, v0")
    A(f"v_and_b32 v{i16}, 15, v0")
    A(f"v_lshrrev_b32 v{t0}, 5, v0")
    A(f"v_lshlrev_b32 v{vWD}, 18, v{t0}")
    A(f"v_and_b32 v{t0}, 1, v{g4}")
    A(f"v_lshl_add_u32 v{vWD}, v{t0}, 15, v{vWD}")
    A(f"v_lshl_add_u32 v{vWD}, v{i16}, 4, v{vWD}")
    A(f"v_lshrrev_b32 v{t0}, 3, v0")
    A(f"v_mul_u32_u24 v{vXD}, 1152, v{t0}")
    A(f"v_and_b32 v{t0}, 7, v0")
    A(f"v_xor_b32 v{t0}, v{t0}, v{g4}")
    A(f"v_lshl_add_u32 v{vXD}, v{t0}, 4, v{vXD}")
    A(f"v_xor_b32 v{vXD + 1}, 64, v{vXD}")
    A(f"s_lshl_b32 s{sT0}, s{sP}, 6")
    A(f"v_xor_b32 v{vXDE}, s{sT0}, v{vXD}")
    A(f"s_lshl_b32 s{sXD}, s{sW}, 13")
    A(f"s_add_u32 s{sXD}, s{sXD}, {XOFF}")
    A(f"s_mul_i32 s{sXS}, s{sW}, {8 * 9216}")
    A(f"s_lshl_b32 s{sXED}, s{sW}, 10")
    A(f"s_add_u32 s{sXED}, s{sXED}, {XEOFF}")
    A(f"s_mul_i32 s{sXES}, s{sW}, 9216")
    A(f"s_add_u32 s{sXES}, s{sXES}, {32 * 9216}")
    A(f"s_lshr_b32 s{sT0}, s{sW}, 1")
    A(f"s_mul_i32 s{sWD}, s{sT0}, {WG1}")
    A(f"s_mul_i32 s{sT0}, s{sP}, {WG0}")
    A(f"s_add_u32 s{sWD}, s{sWD}, s{sT0}")
    A(f"s_lshl_b32 s{sWS}, s{sW}, 16")
    A(f"s_mul_i32 s{sT1}, s{sB}, 331776")
    A(f"s_lshl_b32 s{sT0}, s{sH}, 8")
    A(f"s_mov_b32 s{SRD_X + 2}, 331776")
    A(f"s_mov_b32 s{SRD_X + 3}, 0x20000")
    A(f"s_sub_u32 s{SRD_W + 2}, {576 * 8192}, s{sT0}")
    A(f"s_mov_b32 s{SRD_W + 3}, 0x20000")
    A("s_waitcnt lgkmcnt(0)")
    A(f"s_add_u32 s{SRD_W}, s38, s{sT0}")
    A(f"s_addc_u32 s{SRD_W + 1}, s39, 0")
    A(f"s_add_u32 s{SRD_X}, s32, s{sT1}")
    A(f"s_addc_u32 s{SRD_X + 1}, s33, 0")
    S = Asm()
    S(f"s_lshl_b32 s{sT1}, s{sB}, 5")
    S(f"s_add_u32 s{sT1}, s{sT1}, s{sH}")
    S(f"s_lshl_b32 s{sT1}, s{sT1}, 19")
    S(f"s_add_u32 s{SRD_K}, s34, s{sT1} | s_addc_u32 s{SRD_K + 1}, s35, 0")
    S(f"s_mov_b32 s{SRD_K + 2}, 524288")
    S(f"s_mov_b32 s{SRD_K + 3}, 0x20000")
    S(f"s_add_u32 s{SRD_V}, s36, s{sT1} | s_addc_u32 s{SRD_V + 1}, s37, 0")
    S(f"s_mov_b32 s{SRD_V + 2}, 524288")
    S(f"s_mov_b32 s{SRD_V + 3}, 0x20000")
    S(f"s_add_u32 s{SRD_O}, s40, {OPT['wsoff'] << 20} | s_addc_u32 s{SRD_O + 1}, s41, 0")
    S(f"s_mov_b32 s{SRD_O + 2}, {(DIAG_OFF + (2 << 20)) if OPT['diag'] else WS_O_BYTES}")
    S(f"s_mov_b32 s{SRD_O + 3}, 0x20000")
    S(f"s_mov_b32 s{SRD_P}, s30")
    S(f"s_mov_b32 s{SRD_P + 1}, s31")
    S(f"s_mov_b32 s{SRD_P + 2}, {4096 * 1152}")
    S(f"s_mov_b32 s{SRD_P + 3}, 0x20000")
    S(f"v_bfe_u32 v{r4}, v0, 2, 2")
    S(f"v_and_b32 v{cq}, 3, v0")
    XA, XE, WL, WH = vQA, vQA + 2, vQA + 4, vQA + 5
    S(f"v_lshlrev_b32 v{XE}, 7, v{i16}")
    S(f"v_lshrrev_b32 v{t0}, 1, v{i16}")
    S(f"v_xor_b32 v{t0}, v{t0}, v{g4}")
    S(f"v_lshl_add_u32 v{XE}, v{t0}, 4, v{XE}")
    S(f"v_add_u32 v{XA}, s{sXD}, v{XE}")
    S(f"s_lshr_b32 s{sT1}, s{sW}, 1")
    S(f"s_lshl_b32 s{sT1}, s{sT1}, 11")
    S(f"s_add_u32 s{sT1}, s{sT1}, {XEOFF}")
    S(f"v_add_u32 v{XE}, s{sT1}, v{XE}")
    S(f"v_xor_b32 v{XA + 1}, 64, v{XA}")
    S(f"v_xor_b32 v{XE + 1}, 64, v{XE}")
    S(f"v_lshrrev_b32 v{t0}, 1, v{g4}")
    S(f"v_mul_u32_u24 v{WL}, {WG1}, v{t0}")
    S(f"v_and_b32 v{t0}, 1, v{g4}")
    S(f"v_mul_u32_u24 v{t0}, {WG0}, v{t0}")
    S(f"v_add_u32 v{WL}, v{WL}, v{t0}")
    S(f"v_mul_u32_u24 v{t0}, {XB}, v{r4}")
    S(f"v_add_u32 v{WL}, v{WL}, v{t0}")
    S(f"v_lshl_add_u32 v{WL}, v{cq}, 4, v{WL}")
    S(f"s_lshl_b32 s{sT1}, s{sP}, 7")
    S(f"s_xor_b32 s{sOO}, s{sT1}, 128")
    S(f"v_add_u32 v{WH}, s{sOO}, v{WL}")
    S(f"v_add_u32 v{WL}, s{sT1}, v{WL}")
    for i in range(6):
        S(f"v_add_u32 v{vQA + 6 + i}, {2 * STSZ}, v{vQA + i}")
    S(f"s_lshl_b32 s{sT1}, s{sW}, 12")
    S(f"v_lshl_add_u32 v{vV4}, v0, 4, s{sT1}")
    S(f"s_mul_i32 s{sWOF}, s{sW}, {4 * BLK}")
    S(f"v_mul_u32_u24 v{t0}, {BLK}, v{i16}")
    S(f"v_lshl_add_u32 v{t0}, v{g4}, 4, v{t0}")
    S(f"v_lshl_add_u32 v{t1}, v{g4}, 2, v{r4}")
    S(f"v_mul_u32_u24 v{t1}, {BLK}, v{t1}")
    S(f"v_lshl_add_u32 v{t1}, v{cq}, 3, v{t1}")
    for j in range(2):
        S(f"s_xor_b32 s{sT1}, s{sP}, {j}")
        S(f"s_lshl_b32 s{sT1}, s{sT1}, 9")
        S(f"v_add_u32 v{vVB + j}, s{sT1}, v{t1}")
        S(f"s_lshl_b32 s{sOO}, s{sP}, 7")
        S(f"s_add_u32 s{sT1}, s{sT1}, s{sOO}")
        S(f"v_add_u32 v{vKB + 2 * j}, s{sT1}, v{t0}")
        S(f"s_xor_b32 s{sT1}, s{sT1}, 128")
        S(f"v_add_u32 v{vKB + 2 * j + 1}, s{sT1}, v{t0}")
    if OPT["rot"]:
        S(f"s_mul_i32 s{sG0}, s2, {OPT['rot']}")
        S(f"s_lshr_b32 s{sT1}, s2, 4")
        S(f"s_add_u32 s{sG0}, s{sG0}, s{sT1}")
        S(f"s_and_b32 s{sG0}, s{sG0}, 15")
        S(f"s_mul_i32 s{sG0}, s{sG0}, {16384 * 7 // 4 // 16384 * 16384}")
    S(f"s_lshl_b32 s{sWP}, s2, 2")
    S(f"s_add_u32 s{sWP}, s{sWP}, s{sW}")
    S(f"s_mul_i32 s{sWP}, s{sWP}, 4608")
    S(f"v_min_u32 v7, 1, v0")
    S(f"v_lshlrev_b32 v7, 7, v7")
    S(f"s_lshl_b32 s{sDV}, s{sP}, 10")
    S(f"s_sub_u32 s{sDV}, 512, s{sDV}")
    S(f"v_min_u32 v{vCW}, 1, v0")
    S(f"s_lshr_b32 s{sT1}, s2, 3")
    S(f"s_lshl_b32 s{sT1}, s{sT1}, 2")
    S(f"s_add_u32 s{sT1}, s{sT1}, s{sW}")
    S(f"s_lshl_b32 s{sT1}, s{sT1}, 8")
    S(f"v_lshl_add_u32 v{vCW}, v{vCW}, 7, s{sT1}")
    S(f"v_min_u32 v{vCW}, L1_redo-L1_tail, v{vCW}")
    S(f"v_add_u32 v{vCW}, L1_tail-L1_pc, v{vCW}")
    S(f"v_mov_b32 v{t0}, 0x3f803f80")
    S(f"v_cmp_eq_u32 vcc, 0, v{cq}")
    S(f"s_mov_b32 s{sSC}, {QSCALE:#x}")
    S(f"s_mov_b32 s{sREDO}, 0")
    S(f"v_cndmask_b32 v{t0}, 0, v{t0}, vcc")
    for i in range(4):
        S(f"v_accvgpr_write_b32 a{ONES + i}, v{t0}")
    S(f"s_add_u32 s{sT1}, s{sXD}, {2 * STSZ + 6144}")
    S(f"v_lshl_add_u32 v{t0}, v0, 4, s{sT1}")
    S(f"s_xor_b32 s{sT1}, s{sW}, 1")
    S(f"s_lshl_b32 s{sT1}, s{sT1}, 13")
    S(f"s_add_u32 s{sT1}, s{sT1}, {XOFF + 2 * STSZ + 6144}")
    S(f"v_lshl_add_u32 v{t1}, v0, 4, s{sT1}")

    def loop_scalars(Z):
        if OPT["rot"]:
            Z(f"s_add_u32 s{sKVS}, s{sG0}, {DD * 16384}")
        else:
            Z(f"s_mov_b32 s{sKVS}, {DD * 16384}")
        Z(f"s_add_u32 s{sKD}, s{sWOF}, {(NS - 1) * HS}")
        Z(f"s_mov_b32 s{sVD}, s{sWOF}")
        Z(f"s_mov_b32 s{sKN}, {2 * HS}")
        Z(f"s_mov_b32 s{sVN}, {3 * HS}")
        Z(f"s_mov_b32 s{sCNT}, 28")
        Z(f"s_mov_b32 s{sSIDE}, 0")
        if OPT["diag"]:
            Z("s_mov_b32 s41, 31")

    def loop_addr():
        return [f"v_add_u32 v{vK}, {2 * HS}, v{vKB}", f"v_add_u32 v{vK + 1}, {2 * HS}, v{vKB + 1}",
                f"v_mov_b32 v{vK + 2}, v{vKB + 2}", f"v_mov_b32 v{vK + 3}, v{vKB + 3}",
                f"v_add_u32 v{vV}, {HS}, v{vVB}", f"v_add_u32 v{vV + 1}, {HS}, v{vVB + 1}"]

    loop_scalars(S)
    for i in range(180):
        S(f"v_accvgpr_write_b32 a{i}, 0")
    setup = [x.strip() for x in S.l]
    for p in wg_pieces(0) + x_pieces(0):
        A.ext(p)
    npf = 0
    if OPT["pf"]:
        na = OPT["pfa"]
        A(f"v_min_u32 v{t0}, {9 * na - 1}, v0")
        A(f"v_mul_u32_u24 v{t1}, 57, v{t0}")
        A(f"v_lshrrev_b32 v{t1}, 9, v{t1}")
        A(f"v_mul_u32_u24 v{t2}, 9, v{t1}")
        A(f"v_sub_u32 v{t0}, v{t0}, v{t2}")
        A(f"v_mul_u32_u24 v248, 1152, v{t0}")
        A(f"s_and_b32 s{sT1}, s{sH}, 7")
        A(f"s_lshl_b32 s{sT1}, s{sT1}, 2")
        A(f"s_add_u32 s{sT1}, s{sT1}, s{sW}")
        A(f"s_mul_i32 s{sT1}, s{sT1}, {9 * 1152}")
        A(f"v_add_u32 v248, s{sT1}, v248")
        A(f"v_lshl_add_u32 v246, v{t1}, 7, v248")
        A(f"buffer_load_dword v{vDUM}, v246, {srd(SRD_X)}, 0 offen offset:128")
        A(f"v_bfe_u32 v{t0}, v0, 1, 2")
        A(f"v_lshlrev_b32 v249, 13, v{t0}")
        A(f"v_and_b32 v{t0}, 1, v0")
        A(f"v_lshl_add_u32 v249, v{t0}, 7, v249")
        A(f"s_and_b32 s{sT1}, s{sB}, 3")
        A(f"s_lshl_b32 s{sT1}, s{sT1}, 2")
        A(f"s_add_u32 s{sT1}, s{sT1}, s{sW}")
        A(f"s_lshl_b32 s{sT1}, s{sT1}, 15")
        A(f"v_add_u32 v249, s{sT1}, v249")
        A(f"v_lshrrev_b32 v{t0}, 3, v0")
        A(f"v_min_u32 v{t0}, {na - 1}, v{t0}")
        A(f"v_lshl_add_u32 v247, v{t0}, 19, v249")
        A(f"s_mov_b32 s{sT1}, {1 << 19}")
        A(f"buffer_load_dword v{vDUM}, v247, {srd(SRD_W)}, s{sT1} offen")
        npf = 2
    first = []
    for c in range(1, OPT["up"]):
        first += wg_pieces(c) + x_pieces(c)
    per = len(setup) // (len(first) + 1) + 1
    stamp(A)
    for p in [[]] + first:
        A.ext(p)
        for _ in range(per):
            if setup:
                for y in setup.pop(0).split(" | "):
                    A(y)
    assert not setup
    stamp(A)
    A(f"s_waitcnt vmcnt({len(first) + npf})")
    A("s_barrier")
    stamp(A)
    P = lambda n: [item_piece(n, i) for i in range(4)]
    kw = [f"global_load_dword v{vDUM}, v{vCW}, s[{sPC}:{sPC + 1}]"] if OPT["cpf"] else []
    kw = [f"buffer_load_dword v{vDUM}, v7, {srd(SRD_P)}, s{sWP} offen"] if OPT["wopf"] == 2 else []
    if OPT["stg"] == 0:
        extras = {4: P(0), 5: P(1), 6: P(2)}
        if OPT["kvs"]:
            al = P(0) + P(1) + P(2)
            extras = {4: al[0:3], 5: al[3:6], 6: al[6:8], 7: al[8:12]}
    else:
        extras = {7: P(0) + P(1) + P(2)}
    if DD == 4:
        extras[8] = P(3) + P(4) + P(5)
        late = P(6) + P(7)
        late[0] = kw + late[0]
        late[7] = late[7] + kw
    elif DD == 3:
        extras[8] = P(3)
        late = P(4) + P(5)
        late[7] = late[7] + kw
    else:
        extras[8] = P(3)
        late = [[]] * 8
    if OPT["pf"]:
        for c in range(OPT["pfa"] + 1, 9):
            at = max(0, c - OPT["pf"])
            extras[at] = extras.get(at, []) + [
                [f"buffer_load_dword v{vDUM}, v248, {srd(SRD_X)}, 0 offen offset:{c * 128}"],
                [f"s_mov_b32 s{sT0}, {c << 19}", f"buffer_load_dword v{vDUM}, v249, {srd(SRD_W)}, s{sT0} offen"]]
    if OPT["wopf"] == 1:
        extras[7] = extras.get(7, []) + [[f"v_lshlrev_b32 v253, 7, v0", f"v_min_u32 v253, {35 * 128}, v253",
                      f"buffer_load_dword v{vDUM}, v253, {srd(SRD_P)}, s{sWP} offen"]]
    if OPT["wopf"]:
        extras[7] = extras.get(7, []) + [
                     [f"s_mul_i32 s{sT0}, s{sB}, {18 * 32}", f"s_add_u32 s{sT0}, s{sT0}, s{sH}", f"s_lshl_b32 s{sT0}, s{sT0}, 12",
                      f"v_lshlrev_b32 v253, 18, v0",
                      f"v_min_u32 v253, {8 << 18}, v253",
                      f"buffer_load_dword v{vDUM}, v253, {srd(SRD_O)}, s{sT0} offen nt"]]

    def conv(t, kk):
        src = ACC + 32 * t + 8 * kk
        dst = QV + 16 * t + 4 * kk
        o = []
        for i in range(4):
            o += [f"v_mul_f32 v{src + 2 * i}, s{sSC}, v{src + 2 * i}", f"v_mul_f32 v{src + 2 * i + 1}, s{sSC}, v{src + 2 * i + 1}"]
        for i in range(4):
            o.append(f"v_cvt_pk_bf16_f32 v{dst + i}, v{src + 2 * i}, v{src + 2 * i + 1}")
        return o

    KF = [184, 224]
    k0reads = [kread(ar(KF[kb] + 4 * kk, 4), vKB, kb, kk) for kb in range(2) for kk in range(4)]
    ti = []

    def spread(lst, g0, g1):
        for i, x in enumerate(lst):
            ti.append((g0 + (i * (g1 - g0)) // len(lst), x))

    spread(conv(4, 0) + conv(0, 0) + conv(1, 0) + conv(2, 0), 13, 22)
    spread(conv(4, 1) + [f"ds_write_b128 v{t0}, {vr(QV + 64, 4)}", f"ds_write_b128 v{t0}, {vr(QV + 68, 4)} offset:1024"]
           + conv(3, 0) + conv(0, 1), 22, 29)
    ti.append((29, "BAR"))
    spread([f"ds_read_b128 {vr(QV + 72, 4)}, v{t1}", f"ds_read_b128 {vr(QV + 76, 4)}, v{t1} offset:1024"] + k0reads[:4]
           + conv(1, 1) + k0reads[4:] + conv(2, 1) + conv(3, 1), 29, 36)
    nb = [i for i, x in enumerate(ti) if x[1] == "BAR"][0]
    ti[nb:nb + 1] = [(29, "VMW"), (29, "s_barrier")]
    qp, issued = build_qproj(extras, OPT["up"], ti, {6: [f"s_load_dwordx4 s[{sOUTP}:{sOUTP + 3}], s[0:1], 40"], 8: p3_setup()})
    vms = [x for x in qp if x.startswith(("buffer_load", "global_load"))]
    lastv0 = max(i for i, x in enumerate(vms) if x == P(1)[3][-1] and i == min(k for k, y in enumerate(vms) if y == x))
    ny = len(vms) - 1 - lastv0
    qp = [(f"s_waitcnt vmcnt({ny}) lgkmcnt(0)" if x == "VMW" else x) for x in qp]
    A.ext(qp)
    stamp(A)
    body, pro, tail = build_loop()

    def qk0(kb, kk, useneg):
        o = []
        for t in range(5):
            Sx = Sreg(t, 0) + 4 * kb
            C = (vr(NEG + 4 * t, 4) if useneg else "0") if kk == 0 else vr(Sx, 4)
            o.append(f"{MF} {vr(Sx, 4)}, {ar(KF[kb] + 4 * kk, 4)}, {vr(QV + 16 * t + 4 * kk, 4)}, {C}")
        return o

    def mix(mf, fill):
        n = len(mf)
        for i, m in enumerate(mf):
            A(m)
            A.ext(fill[(i * len(fill)) // n:((i + 1) * len(fill)) // n])

    flat = lambda ps: [x for p in ps for x in p]
    pro_rd = [x for x in pro if is_ds(x)]
    pro_sm = [x for x in pro if not is_ds(x)]
    A.ext(conv(0, 2) + flat(late[0:2]) + conv(0, 3))
    A("s_waitcnt lgkmcnt(0)")
    mix(qk0(0, 0, False) + qk0(0, 1, False), conv(1, 2) + conv(2, 2) + conv(3, 2) + flat(late[2:4]))
    mix(qk0(0, 2, False), conv(1, 3) + conv(2, 3) + conv(3, 3))
    A("s_nop 0")
    A.ext(qk0(0, 3, False))
    A.ext(loop_addr())
    A.ext(pro_rd)
    A.ext(flat(late[4:6]))
    for t in range(5):
        Sx = Sreg(t, 0)
        A(f"v_max3_f32 v{vM + t}, v{Sx}, v{Sx + 1}, v{Sx + 2}")
    for t in range(5):
        A(f"v_max_f32 v{vM + t}, v{vM + t}, v{Sreg(t, 0) + 3}")

    def xlane5(Z, op, base, tmp):
        for sw in ("v_permlane32_swap_b32", "v_permlane16_swap_b32"):
            for t in range(5):
                Z(f"v_mov_b32 v{tmp + t}, v{base + t}")
            for t in range(5):
                Z(f"{sw} v{base + t}, v{tmp + t}")
            for t in range(5):
                Z(f"{op} v{base + t}, v{base + t}, v{tmp + t}")

    xlane5(A, "v_max_f32", vM, vM + 8)
    for t in range(5):
        for i in range(4):
            A(f"v_sub_f32 v{NEG + 4 * t + i}, 0, v{vM + t}")
    subs = [f"v_sub_f32 v{Sreg(t, 0) + i}, v{Sreg(t, 0) + i}, v{vM + t}" for t in range(5) for i in range(4)]
    kb0regs = {Sreg(t, 0) + i for t in range(5) for i in range(4)}

    def srcs(x):
        return [int(z.strip()[1:]) for z in x.split(None, 1)[1].split(",")[1:]]
    sm0 = [x for x in pro_sm if all(r in kb0regs for r in srcs(x))]
    sm1 = [x for x in pro_sm if x not in sm0]

    def safe(lst):
        o, prev = [], ""
        for x in lst:
            if prev.startswith("v_exp") and x.startswith("v_cvt"):
                o.append("s_nop 0")
            o.append(x)
            prev = x
        return o
    A.ext(flat(late[6:8]))
    mix(flat([qk0(1, kk, True) for kk in range(4)]), subs + safe(sm0))
    A("s_nop 3")
    A.label("L1_presm")
    A.ext(safe(sm1))
    A("s_waitcnt lgkmcnt(0)")
    stamp(A)
    A.raw(".p2align 6")
    A.label("L1_loop")
    if OPT["diag"]:
        A(f"s_mov_b32 m0, s41")
        A("s_sub_u32 s41, s41, 1")
        A("v_writelane_b32 v250, s90, m0")
        A("v_writelane_b32 v251, s96, m0")
        A("s_memtime s[90:91]")
        A("s_memrealtime s[96:97]")
    A.ext(body)
    A("s_branch L1_loop")
    errs = hazard.check(body + body, "loop")
    side_block(A)
    A.label("L1_tail")
    T0 = len(A.l)
    stamp(A)
    tail_rd = [x for x in tail if is_ds(x)]
    tail_sm = [x for x in tail if not is_ds(x)]
    A.ext(tail_rd)
    A.ext(safe(tail_sm))
    A(f"s_add_u32 s{sT0}, s{sWOF}, {TS * HS}")
    A(f"v_lshl_add_u32 v{t0}, v0, 4, s{sT0}")
    A("s_waitcnt vmcnt(0) lgkmcnt(0)")
    ones = [f"{MF} {ar(LA + 4 * t, 4)}, {ar(ONES, 4)}, {vr(Sreg(t, 1), 4)}, {ar(LA + 4 * t, 4)}" for t in range(4)]

    def pv(t):
        return [f"{MF} {ar(OA + 32 * t + 4 * dt, 4)}, {ar(RING + 32 + 4 * dt, 4)}, {vr(Sreg(t, 1), 4)}, {ar(OA + 32 * t + 4 * dt, 4)}"
                for dt in range(8)]
    wr = [f"ds_write_b128 v{t0}, {ar(OA + 128 + 4 * i, 4)} offset:{(i // 4) * HS + (i % 4) * 1024}" for i in range(8)]
    misc = [f"v_lshlrev_b32 v{t2}, 4, v0",
            f"s_mul_i32 s{sOO}, s{sB}, 18", f"s_lshl_b32 s{sT0}, s{sW}, 2", f"s_add_u32 s{sT0}, s{sT0}, s{sOO}",
            f"s_lshl_b32 s{sT0}, s{sT0}, 5", f"s_add_u32 s{sT0}, s{sT0}, s{sH}", f"s_lshl_b32 s{sT0}, s{sT0}, 12",
            f"s_lshl_b32 s{sT1}, s{sW}, 10", f"s_add_u32 s{sT1}, s{sT1}, {NS * HS}", f"v_lshl_add_u32 v{t1}, v0, 4, s{sT1}"]
    mix(ones + pv(0), wr + misc)
    Lr = 114
    st = [f"v_accvgpr_read_b32 v{Lr + t}, a{LA + 4 * t}" for t in range(5)]
    st += [f"v_add_f32 v128, v{Lr}, v{Lr + 1}", f"v_add_f32 v129, v{Lr + 2}, v{Lr + 3}", f"v_add_f32 v128, v128, v{Lr + 4}",
           f"v_add_f32 v128, v128, v129", f"v_mov_b32 v129, {f32bits(2.0 ** OPT['thr']):#x}", f"v_cmp_nlt_f32 vcc, v128, v129",
           f"v_mov_b32 v132, v{Lr + 4}", f"v_mov_b32 v133, v{NEG + 16}", f"v_mov_b32 v135, 0", f"v_cndmask_b32 v134, 0, 1, vcc",
           f"ds_write_b128 v{t1}, {vr(132, 4)}"]
    st += [f"v_rcp_f32 v{120 + 2 * t}, v{Lr + t}" for t in range(4)]
    mix(pv(1), st)
    ofl = FLAGS[OPT["ostflag"]]

    def norm_store(t, tmp, pk):
        o = []
        if t:
            o.append(f"s_add_u32 s{sT0}, s{sT0}, {32 * 4096}")
        for s in range(4):
            b = tmp + 8 * s
            for e in range(8):
                o.append(f"v_accvgpr_read_b32 v{b + e}, a{OA + 32 * t + 8 * s + e}")
            if pk:
                for e in range(4):
                    o.append(f"v_pk_mul_f32 {vr(b + 2 * e, 2)}, {vr(b + 2 * e, 2)}, {vr(120 + 2 * t, 2)} op_sel_hi:[1,0]")
            else:
                for e in range(8):
                    o.append(f"v_mul_f32 v{b + e}, v{120 + 2 * t}, v{b + e}")
            for e in range(4):
                o.append(f"v_cvt_pk_bf16_f32 v{b + e}, v{b + 2 * e}, v{b + 2 * e + 1}")
            of = f" offset:{s * 1024}" if s else ""
            o.append(f"buffer_store_dwordx4 {vr(b, 4)}, v{t2}, {srd(SRD_O)}, s{sT0} offen{of}{ofl}"
                     + (f" | buffer_store_dwordx4 {vr(b, 4)}, v{t2}, {srd(SRD_O)}, s{sT0} offen{of}" if OPT["dst"] else ""))
        return o

    n0 = norm_store(0, 16, False)
    mix(pv(2) + pv(3), n0[:42])
    A.ext(norm_store(0, 16, True)[34:])
    A("s_waitcnt lgkmcnt(0)")
    A("s_barrier")
    A(f"s_and_b32 s{sT1}, s{sW}, 2")
    A(f"s_mul_i32 s{sT1}, s{sT1}, {4 * BLK}")
    A(f"s_mul_i32 s{sT2}, s{sP}, {HS}")
    A(f"s_add_u32 s{sT1}, s{sT1}, s{sT2}")
    A(f"s_add_u32 s{sT1}, s{sT1}, {TS * HS}")
    A(f"v_lshl_add_u32 v{t0}, v0, 4, s{sT1}")
    A(f"s_and_b32 s{sT1}, s{sW}, 2")
    A(f"s_lshl_b32 s{sT1}, s{sT1}, 10")
    A(f"v_lshl_add_u32 v{t1}, v0, 4, s{sT1}")
    A(f"v_xor_b32 v1, 2048, v{t1}")
    A(f"v_add_u32 v{t1}, {NS * HS}, v{t1}")
    A(f"v_add_u32 v1, {NS * HS}, v1")
    A(f"ds_read_b128 {vr(88, 4)}, v{t1}")
    A(f"ds_read_b128 {vr(92, 4)}, v{t1} offset:1024")
    A(f"ds_read_b128 {vr(96, 4)}, v1")
    A(f"ds_read_b128 {vr(100, 4)}, v1 offset:1024")
    for w in range(2):
        for q in range(4):
            A(f"ds_read_b128 {vr(128 + 16 * w + 4 * q, 4)}, v{t0} offset:{w * 4 * BLK + q * 1024}")
    A.ext(norm_store(1, 48, True))
    A("s_waitcnt lgkmcnt(0)")
    A("v_or3_b32 v104, v90, v94, v98")
    A("v_or_b32 v104, v104, v102")
    A("v_cmp_ne_u32 vcc, 0, v104")
    A("v_min_f32 v105, v89, v93")
    A("v_sub_f32 v89, v105, v89")
    A("v_sub_f32 v93, v105, v93")
    A("v_exp_f32 v89, v89")
    A("v_exp_f32 v93, v93")
    A(f"s_cmp_lg_u64 vcc, 0")
    A(f"s_cselect_b32 s{sT1}, 1, 0")
    A(f"s_cmp_gt_u32 s{sT1}, s{sREDO}")
    A("s_cbranch_scc1 L1_redo")
    A("v_mul_f32 v105, v88, v89")
    A("v_fmac_f32 v105, v92, v93")
    A("v_rcp_f32 v105, v105")
    A(f"s_lshr_b32 s{sT1}, s{sW}, 1")
    A(f"s_add_u32 s{sT1}, s{sT1}, s{sOO}")
    A(f"s_add_u32 s{sT1}, s{sT1}, 16")
    A(f"s_lshl_b32 s{sT1}, s{sT1}, 5")
    A(f"s_add_u32 s{sT1}, s{sT1}, s{sH}")
    A(f"s_lshl_b32 s{sT1}, s{sT1}, 12")
    A(f"s_lshl_b32 s{sT2}, s{sP}, 11")
    A(f"s_add_u32 s{sT1}, s{sT1}, s{sT2}")
    A("v_mul_f32 v89, v105, v89")
    A("v_mul_f32 v93, v105, v93")
    for e in range(16):
        A(f"v_mul_f32 v{128 + e}, v89, v{128 + e}")
    for e in range(16):
        A(f"v_fmac_f32 v{128 + e}, v93, v{144 + e}")
    for e in range(8):
        A(f"v_cvt_pk_bf16_f32 v{144 + e}, v{128 + 2 * e}, v{128 + 2 * e + 1}")
    for q in range(2):
        of = " offset:1024" if q else ""
        A(f"buffer_store_dwordx4 {vr(144 + 4 * q, 4)}, v{t2}, {srd(SRD_O)}, s{sT1} offen{of}{ofl}")
        if OPT["dst"]:
            A(f"buffer_store_dwordx4 {vr(144 + 4 * q, 4)}, v{t2}, {srd(SRD_O)}, s{sT1} offen{of}")
    rest = norm_store(2, 16, True) + norm_store(3, 48, True)
    if OPT["fuse"]:
        p3(A, rest)
    else:
        A.ext(rest)
    gx = [i for i, x in enumerate(body) if "L1_side" in x][0]
    errs += hazard.check(body[:gx + 1] + A.l[T0:T0 + 60], "exit")
    if OPT["diag"]:
        if not OPT["fuse"]:
            stamp(A)
        A("s_waitcnt vmcnt(0)")
        stamp(A)
        A("s_memrealtime s[94:95]")
        A("s_waitcnt lgkmcnt(0)")
        A("v_writelane_b32 v250, s92, 62")
        A("v_writelane_b32 v250, s94, 63")
        for i in range(stamp_n[0]):
            A(f"v_writelane_b32 v250, s{sST + 2 * i}, {50 + i}")
        A("v_writelane_b32 v250, s90, 32")
        A("v_writelane_b32 v251, s96, 32")
        A(f"s_lshl_b32 s{sT0}, s2, 2")
        A(f"s_add_u32 s{sT0}, s{sT0}, s{sW}")
        A(f"s_lshl_b32 s{sT0}, s{sT0}, 8")
        A(f"s_add_u32 s{sT0}, s{sT0}, {DIAG_OFF}")
        A(f"v_lshlrev_b32 v{t0}, 2, v0")
        A(f"buffer_store_dword v250, v{t0}, {srd(SRD_O)}, s{sT0} offen")
        A(f"s_add_u32 s{sT0}, s{sT0}, {1 << 19}")
        A(f"buffer_store_dword v251, v{t0}, {srd(SRD_O)}, s{sT0} offen")
        if OPT["fuse"]:
            for i in range(3):
                A(f"v_writelane_b32 v251, s{78 + 2 * i}, {i}")
            A("v_writelane_b32 v251, s94, 3")
            A(f"s_add_u32 s{sT0}, s{sT0}, {1 << 19}")
            A(f"buffer_store_dword v251, v{t0}, {srd(SRD_O)}, s{sT0} offen")
            if OPT["dbg"]:
                for ln, src in ((4, 30), (5, 22), (6, 14), (7, 32)):
                    A(f"v_readlane_b32 s{sT1}, v251, {src}")
                    A("s_nop 3")
                    A(f"v_writelane_b32 v251, s{sT1}, {ln}")
                A("v_subrev_u32 v251, s92, v251")
                A(f"v_lshlrev_b32 v{t0}, 3, v0")
                A("s_cmp_ge_u32 s2, 216")
                A("s_cbranch_scc1 L1_end")
                A("s_mov_b64 exec, 0xff")
                A(f"buffer_atomic_umax v251, v{t0}, {srd(SRD_W)}, 0 offen offset:4")
    A.label("L1_end")
    A("s_endpgm")
    A.label("L1_redo")
    A(f"s_mov_b32 s{sREDO}, 1")
    A("s_waitcnt vmcnt(0) lgkmcnt(0)")
    A("s_barrier")
    for n in range(2 * DD):
        for p in P(n):
            A.ext(p)
    for t in range(5):
        A(f"v_mov_b32 v{vM + t}, 0xff800000")
    A(f"v_lshlrev_b32 v{t0}, 8, v{i16}")
    A(f"v_lshl_add_u32 v{t0}, v{g4}, 4, v{t0}")
    A(f"s_lshl_b32 s{sT1}, s{sP}, 7")
    A(f"v_add_u32 v{t0}, s{sT1}, v{t0}")
    A(f"v_xor_b32 v{t1}, 128, v{t0}")
    A(f"s_mov_b32 s{sT1}, 0")
    A.label("L1_mx")
    for kk in range(4):
        o = f" offset:64" if kk & 1 else ""
        A(f"buffer_load_dwordx4 {vr(136 + 4 * kk, 4)}, v{t0 + (kk >> 1)}, {srd(SRD_K)}, s{sT1} offen{o}")
    A("s_waitcnt vmcnt(0)")
    for kk in range(4):
        for t in range(5):
            C = "0" if kk == 0 else vr(16 + 4 * t, 4)
            A(f"{MF} {vr(16 + 4 * t, 4)}, {vr(136 + 4 * kk, 4)}, {vr(QV + 16 * t + 4 * kk, 4)}, {C}")
    A("s_nop 7")
    for t in range(5):
        A(f"v_max3_f32 v{vM + t}, v{vM + t}, v{16 + 4 * t}, v{17 + 4 * t}")
        A(f"v_max3_f32 v{vM + t}, v{vM + t}, v{18 + 4 * t}, v{19 + 4 * t}")
    A(f"s_add_u32 s{sT1}, s{sT1}, 4096")
    A(f"s_cmp_lt_u32 s{sT1}, {4096 if OPT['twice'] else 524288}")
    A("s_cbranch_scc1 L1_mx")
    xlane5(A, "v_max_f32", vM, vM + 8)
    for t in range(5):
        for i in range(4):
            A(f"v_sub_f32 v{NEG + 4 * t + i}, 0, v{vM + t}")
    for i in range(180):
        A(f"v_accvgpr_write_b32 a{i}, 0")
    A.ext(loop_addr())
    loop_scalars(A)
    A("s_barrier")
    A.ext(k0reads)
    A("s_waitcnt lgkmcnt(0)")
    for kb in range(2):
        for kk in range(4):
            A.ext(qk0(kb, kk, True))
    A.ext(pro_rd)
    A("s_nop 7")
    A.ext(safe(sm0))
    A("s_branch L1_presm")
    return errs


def k2(A):
    DEP = 4
    SRD_A, SRD_WO, SRD_OUT = 4, 8, 12
    sW, sMT, sNT, sT0, sT1, sAS, sBS, sLD, sCNT = 16, 17, 18, 19, 20, 21, 22, 23, 24
    vA, vBD, vBR, t0, t1 = 2, 8, 9, 13, 14
    ACC2, ORING, WF = 16, 112, 208
    A.raw(".p2align 8")
    A.raw(".globl oproj_kernel")
    A.raw(".type oproj_kernel,@function")
    A.label("oproj_kernel")
    A(f"s_cmp_ge_u32 s2, {OPT['k2grid']}")
    A("s_cbranch_scc1 L2_end")
    A("s_load_dwordx4 s[32:35], s[0:1], 32")
    A("s_load_dwordx2 s[36:37], s[0:1], 56")
    if OPT["diag"]:
        A("s_memrealtime s[60:61]")
    A("v_lshrrev_b32 v1, 6, v0")
    A("v_and_b32 v0, 63, v0")
    A(f"v_readfirstlane_b32 s{sW}, v1")
    A("s_and_b32 s25, s2, 7")
    A("s_lshr_b32 s26, s2, 3")
    A(f"s_mul_i32 s{sNT}, s26, 43")
    A(f"s_lshr_b32 s{sNT}, s{sNT}, 7")
    A(f"s_mul_i32 s{sT0}, s{sNT}, 3")
    A(f"s_sub_u32 s{sT0}, s26, s{sT0}")
    A(f"s_mul_i32 s{sMT}, s25, 3")
    A(f"s_add_u32 s{sMT}, s{sMT}, s{sT0}")
    A(f"v_lshlrev_b32 v{vA}, 4, v0")
    for i in range(1, 6):
        A(f"v_add_u32 v{vA + i}, {i * 131072}, v{vA}")
    A(f"v_lshrrev_b32 v{t0}, 3, v0")
    A(f"v_mul_u32_u24 v{vBD}, 1152, v{t0}")
    A(f"v_lshrrev_b32 v{t0}, 4, v0")
    A(f"v_lshlrev_b32 v{t0}, 1, v{t0}")
    A(f"v_and_b32 v{t1}, 7, v0")
    A(f"v_xor_b32 v{t0}, v{t0}, v{t1}")
    A(f"v_lshl_add_u32 v{vBD}, v{t0}, 4, v{vBD}")
    A(f"v_lshrrev_b32 v{t0}, 2, v0")
    A(f"v_lshlrev_b32 v{vBR}, 7, v{t0}")
    A(f"v_bfe_u32 v{t0}, v0, 3, 2")
    A(f"v_lshl_add_u32 v{vBR}, v{t0}, 5, v{vBR}")
    A(f"v_and_b32 v{t0}, 3, v0")
    A(f"v_lshl_add_u32 v{vBR}, v{t0}, 3, v{vBR}")
    A(f"s_mul_i32 s{sLD}, s{sW}, {DEP * 4096}")
    A(f"v_add_u32 v{vBR}, s{sLD}, v{vBR}")
    for n in range(1, 4):
        A(f"v_xor_b32 v{vBR + n}, {32 * n}, v{vBR}")
    A("s_waitcnt lgkmcnt(0)")
    A(f"s_mov_b32 s{SRD_A}, s36")
    A(f"s_mov_b32 s{SRD_A + 1}, s37")
    A(f"s_mov_b32 s{SRD_A + 2}, {(DIAG_OFF + (2 << 20)) if OPT['diag'] else WS_O_BYTES}")
    A(f"s_mov_b32 s{SRD_A + 3}, 0x20000")
    A(f"s_mov_b32 s{SRD_WO}, s32")
    A(f"s_mov_b32 s{SRD_WO + 1}, s33")
    A(f"s_mov_b32 s{SRD_WO + 2}, {4096 * 1152}")
    A(f"s_mov_b32 s{SRD_WO + 3}, 0x20000")
    A(f"s_mov_b32 s{SRD_OUT}, s34")
    A(f"s_mov_b32 s{SRD_OUT + 1}, s35")
    A(f"s_mov_b32 s{SRD_OUT + 2}, {2304 * 1152}")
    A(f"s_mov_b32 s{SRD_OUT + 3}, 0x20000")
    A(f"s_mul_i32 s{sAS}, s{sMT}, 786432")
    A(f"s_lshl_b32 s{sT0}, s{sW}, 15")
    A(f"s_add_u32 s{sAS}, s{sAS}, s{sT0}")
    A(f"s_mul_i32 s{sBS}, s{sW}, {1024 * 1152}")
    A(f"s_lshl_b32 s{sT0}, s{sNT}, 7")
    A(f"s_add_u32 s{sBS}, s{sBS}, s{sT0}")
    WN = OPT["k2rot"]
    sA0, sB0, sPH, sI = 27, 28, 29, 30

    def blk_addr():
        return [f"s_add_u32 s{sT1}, s{sI}, s{sPH}", f"s_and_b32 s{sT1}, s{sT1}, {WN - 1}",
                f"s_and_b32 s31, s{sI}, {(~(WN - 1)) & 0xff}", f"s_or_b32 s{sT1}, s{sT1}, s31",
                f"s_mul_i32 s{sBS}, s{sT1}, {DEP * 32 * 1152}", f"s_add_u32 s{sBS}, s{sBS}, s{sB0}",
                f"s_lshl_b32 s{sAS}, s{sT1}, 12", f"s_add_u32 s{sAS}, s{sAS}, s{sA0}", f"s_add_u32 s{sI}, s{sI}, 1"]
    A(f"s_mov_b32 s{sA0}, s{sAS}")
    A(f"s_mov_b32 s{sB0}, s{sBS}")
    A(f"s_mul_i32 s{sPH}, s{sMT}, {OPT['k2mul']}")
    A(f"s_add_u32 s{sPH}, s{sPH}, s{sNT}")
    A(f"s_mov_b32 s{sI}, 0")
    A.ext(blk_addr())

    def loads(d):
        o = []
        for i in range(4):
            o.append([f"s_add_u32 m0, s{sLD}, {d * 4096 + i * 1024}",
                      f"s_add_u32 s{sT0}, s{sBS}, {(32 * d + 8 * i) * 1152}",
                      f"buffer_load_dwordx4 v{vBD}, {srd(SRD_WO)}, s{sT0} offen lds"])
        off = f" offset:{d * 1024}" if d else ""
        for i in range(6):
            o.append([f"buffer_load_dwordx4 {vr(ORING + 24 * d + 4 * i, 4)}, v{vA + i}, {srd(SRD_A)}, s{sAS} offen{off}"])
        return o

    def wreads(d):
        b = WF + 16 * (d % 2)
        return [f"ds_read_b64_tr_b16 {vr(b + 4 * n + 2 * e, 2)}, v{vBR + n} offset:{d * 4096 + e * 2048}"
                for n in range(4) for e in range(2)]

    zi = 0
    for d in range(DEP - 1):
        for g in loads(d):
            A.ext(g)
            for _ in range(4):
                if zi < 96:
                    A(f"v_mov_b32 v{ACC2 + zi}, 0")
                    zi += 1
    assert zi == 96
    A(f"s_mov_b32 s{sCNT}, {32 // DEP}")
    A(f"s_waitcnt vmcnt({10 * (DEP - 2) + 6})")
    if OPT["diag"]:
        A("s_memrealtime s[62:63]")
    A.ext(wreads(0))
    A.label("L2_loop")
    body = []
    Bd = body.append
    for d in range(DEP):
        Bd(f"s_waitcnt vmcnt({10 * (DEP - 3) + 6})")
        body += wreads((d + 1) % DEP)
        Bd("s_waitcnt lgkmcnt(8)")
        b = WF + 16 * (d % 2)
        ld = loads((d - 1) % DEP)
        k = 0
        for n in range(4):
            for i in range(6):
                acc = vr(ACC2 + 4 * (6 * n + i), 4)
                Bd(f"{MF} {acc}, {vr(b + 4 * n, 4)}, {vr(ORING + 24 * d + 4 * i, 4)}, {acc}")
                k += 1
                if ld and k % 2 == 0:
                    body += ld.pop(0)
        if d == 0:
            body += blk_addr()
            Bd(f"s_cmp_eq_u32 s{sCNT}, 1")
            Bd(f"s_cselect_b32 s{sAS}, 0x40000000, s{sAS}")
            Bd(f"s_cselect_b32 s{sBS}, 0x40000000, s{sBS}")
    Bd(f"s_sub_u32 s{sCNT}, s{sCNT}, 1")
    Bd(f"s_cmp_lg_u32 s{sCNT}, 0")
    A.ext(body)
    A("s_cbranch_scc1 L2_loop")
    errs = hazard.check(body + body, "k2loop")
    if OPT["diag"]:
        A("s_memrealtime s[64:65]")
    A("s_waitcnt vmcnt(0) lgkmcnt(0)")
    A("s_barrier")
    A(f"s_mul_i32 s{sT0}, s{sW}, 24576")
    A(f"v_lshl_add_u32 v{t0}, v0, 4, s{sT0}")
    A("s_nop 7")
    for q in range(24):
        A(f"ds_write_b128 v{t0}, {vr(ACC2 + 4 * q, 4)} offset:{q * 1024}")
    A(f"v_and_b32 v{t0}, 15, v0")
    A(f"v_lshlrev_b32 v{t0}, 4, v{t0}")
    A(f"v_bfe_u32 v{t1}, v0, 4, 1")
    A(f"v_lshl_add_u32 v{t0}, v{t1}, 9, v{t0}")
    A(f"v_lshrrev_b32 v{t1}, 5, v0")
    A(f"v_lshl_add_u32 v{t0}, v{t1}, 10, v{t0}")
    A(f"s_mul_i32 s{sT0}, s{sW}, {6 * 1024}")
    A(f"v_add_u32 v{t0}, s{sT0}, v{t0}")
    A(f"v_add_u32 v{t1}, 49152, v{t0}")
    A("s_waitcnt lgkmcnt(0)")
    A("s_barrier")
    for w in range(4):
        for x in range(3):
            for q in range(2):
                A(f"ds_read_b128 {vr(ORING + 24 * w + 8 * x + 4 * q, 4)}, v{t0 if w < 2 else t1} offset:{(w % 2) * 24576 + x * 2048 + q * 256}")
        if w % 2 == 1:
            A("s_waitcnt lgkmcnt(0)")
    for w in range(1, 4):
        for e in range(24):
            A(f"v_add_f32 v{ORING + e}, v{ORING + e}, v{ORING + 24 * w + e}")
    for e in range(12):
        A(f"v_cvt_pk_bf16_f32 v{ACC2 + e}, v{ORING + 2 * e}, v{ORING + 2 * e + 1}")
    A(f"v_and_b32 v{t0}, 15, v0")
    A(f"v_lshrrev_b32 v{t1}, 5, v0")
    A(f"v_lshl_add_u32 v{t0}, v{t1}, 4, v{t0}")
    A(f"v_mul_u32_u24 v{t0}, 1152, v{t0}")
    A(f"v_bfe_u32 v{t1}, v0, 4, 1")
    A(f"v_lshl_add_u32 v{t0}, v{t1}, 4, v{t0}")
    A(f"s_mul_i32 s{sAS}, s{sMT}, {96 * 1152}")
    A(f"s_lshl_b32 s{sT0}, s{sNT}, 7")
    A(f"s_add_u32 s{sAS}, s{sAS}, s{sT0}")
    A(f"s_lshl_b32 s{sT0}, s{sW}, 5")
    A(f"s_add_u32 s{sAS}, s{sAS}, s{sT0}")
    for x in range(3):
        A(f"buffer_store_dwordx4 {vr(ACC2 + 4 * x, 4)}, v{t0}, {srd(SRD_OUT)}, s{sAS} offen")
        A(f"s_add_u32 s{sAS}, s{sAS}, {32 * 1152}")
    if OPT["diag"]:
        A("s_waitcnt vmcnt(0)")
        A("s_memrealtime s[66:67]")
        A("s_waitcnt lgkmcnt(0)")
        for i in range(4):
            A(f"v_writelane_b32 v250, s{60 + 2 * i}, {i}")
        A(f"s_lshl_b32 s{sT0}, s2, 2")
        A(f"s_add_u32 s{sT0}, s{sT0}, s{sW}")
        A(f"s_lshl_b32 s{sT0}, s{sT0}, 8")
        A(f"s_add_u32 s{sT0}, s{sT0}, {DIAG_OFF + (1 << 20)}")
        A(f"v_lshlrev_b32 v{t0}, 2, v0")
        A(f"buffer_store_dword v250, v{t0}, {srd(SRD_A)}, s{sT0} offen")
    A.label("L2_end")
    A("s_endpgm")
    return errs


def desc(name, vg, acc, sg=102):
    return f""".p2align 6
.amdhsa_kernel {name}
  .amdhsa_next_free_vgpr {vg}
  .amdhsa_next_free_sgpr {sg}
  .amdhsa_accum_offset {acc}
  .amdhsa_group_segment_fixed_size 0
  .amdhsa_kernarg_size 64
  .amdhsa_user_sgpr_count 2
  .amdhsa_user_sgpr_kernarg_segment_ptr 1
  .amdhsa_system_sgpr_workgroup_id_x 1
.end_amdhsa_kernel
"""


def main():
    A = Asm()
    e = k1(A)
    if not OPT["fuse"]:
        e += k2(A)
    A.label("L_code_end")
    e += hazard.check(A.l, "linear")
    for x in e:
        print(x, file=sys.stderr)
    hdr = f"""; Fused MHA block (q-proj + attention) and output projection, gfx950. Generated by a script.
; @launch kernel=attn_kernel grid=(256,1,1) block=(256,1,1) lds={LDS1}
{";" if OPT["fuse"] else "; @launch kernel=oproj_kernel grid=(216,1,1) block=(256,1,1) lds=98304"}
.amdgcn_target "amdgcn-amd-amdhsa--gfx950"
.text
.globl attn_kernel
"""
    txt = hdr + "\n".join(A.l) + "\n.section .rodata,\"a\"\n" + desc("attn_kernel", 512, 256) + ("" if OPT["fuse"] else desc("oproj_kernel", 256, 256))
    open(sys.argv[1], "w").write(txt)
    if e and not OPT["nodma"]:
        sys.exit(1)


main()
```

```python
import math
import struct
import sys

import hazard

OPT = dict(diag=0, L=6, W=2, xmap=1, nodma=0, nobar=0, kvflag=1, ostflag=2, wopf=2, wsh=8,
           k2grid=216, LQ=6, dmastep=9, thr=40, show=0, qstep=5, up=2, qpflag=0, dbg=0, cpf=1, nph=3, k2rot=1, D=3, pf=0, stg=0, pfa=4, kvs=0, rot=0, k2mul=1, fuse=1, dst=0, DO=4, oflag=2, early=5, l2pf=0, fast=1, wsoff=0, twice=0, nomf=0, pad=0)
for a in sys.argv[2:]:
    k, v = a.split("=")
    OPT[k] = int(v)
FLAGS = ['', ' nt', ' sc1', ' sc0 sc1', ' sc1 nt', ' sc0 sc1 nt', ' sc0']

BLK = 1056
HS = 16 * BLK
DD = OPT['D']
NS = 2 * DD + 1
TS = 61 % NS
XB = 1088
WOFF, XEOFF, XOFF = 0, 17408, 21504
WG0 = 4 * XB + OPT["wsh"]
WG1 = 8720
STSZ = 54272
LDS1 = 163840
WS_O_BYTES = 144 * 32 * 4096
DIAG_OFF = 64 << 20


def f32bits(x):
    return struct.unpack("<I", struct.pack("<f", x))[0]


QSCALE = f32bits(128 ** -0.5 * math.log2(math.e))


class Asm:
    def __init__(self):
        self.l = []

    def __call__(self, s):
        if " | buffer_store" in s:
            for x in s.split(" | "):
                self.l.append("    " + x)
        else:
            self.l.append("    " + s)

    def label(self, s):
        self.l.append(s + ":")

    def raw(self, s):
        self.l.append(s)

    def ext(self, lst):
        for s in lst:
            self(s)


def vr(a, n):
    return f"v[{a}:{a + n - 1}]"


def ar(a, n):
    return f"a[{a}:{a + n - 1}]"


def srd(n):
    return f"s[{n}:{n + 3}]"


MF = "v_mfma_f32_16x16x32_bf16"

SRD_X, SRD_W, SRD_K, SRD_V, SRD_O, SRD_P = 4, 8, 12, 16, 20, 84
sW, sP, sB, sH = 24, 25, 27, 28
sXD, sXS, sWD, sWS, sT0, sT1 = 42, 43, 44, 45, 46, 47
sXED, sXES = 48, 55
sCNT = 49
sKD, sVD, sKVS, sKN, sVN = 50, 51, 52, 53, 54
sSC = 56
sT2 = 57
sOUTP = 32
sWP = 30
sG0 = 31
sDV = 3
sOO = 58
sREDO = 59
sST = 60
sWOF = 88
sCX, sCW = 89, 100
sPC = 98
sXSc, sWSc, sXEc = 29, 26, 101

vXD, vXDE, vWD, vCW, vV4 = 2, 4, 5, 6, 8
vQA = 160
ACC = 16
SB = [16, 48]
SE = 80
NEG = 88
QV = 160
vKB, vVB = 240, 244
vK, vV = 108, 112
vM = 120
vDUM = 252
OA, LA, ONES, RING = 0, 160, 180, 192
XF = [184, 204]
WRING = 224


def Sreg(t, par):
    return SE if t == 4 else SB[par] + 8 * t


stamp_n = [0]


def stamp_txt():
    if OPT["diag"]:
        n = stamp_n[0]
        stamp_n[0] += 1
        assert n < 12
        return [f"s_memtime s[{sST + 2 * n}:{sST + 2 * n + 1}]"]
    return []


def stamp(A):
    A.ext(stamp_txt())


def is_ds(x):
    return x.startswith("ds_")


def add_waits(seq, cyclic, W=1, nfr=None):
    rep = 2 if cyclic else 1
    out = []
    issued = 0
    done = 0
    last = {}
    for it in range(rep):
        out = []
        for e in seq:
            if e[0] == "x":
                if is_ds(e[1]):
                    issued += 1
                    if e[2] is not None:
                        last[e[2]] = issued
                if "lgkmcnt(0)" in e[1] or e[1] == "VMW":
                    done = issued
                out.append(e[1])
            else:
                need = 0
                for f in e[2]:
                    if f in last:
                        need = max(need, last[f])
                if need > done:
                    tgt = need
                    for f in e[3] if len(e) > 3 else []:
                        if f in last and last[f] > need - 40:
                            tgt = max(tgt, last[f])
                    n = issued - tgt
                    assert n <= 15, n
                    out.append(f"s_waitcnt lgkmcnt({n})")
                    done = tgt
                out.append(e[1])
    return out


def kv_piece(dst, srdn, i):
    o = f" offset:{i * 1024}" if i else ""
    return [f"s_add_u32 m0, s{dst}, {i * (BLK - 1024)}",
            f"buffer_load_dwordx4 v{vV4}, {srd(srdn)}, s{sKVS} offen{o}{FLAGS[OPT['kvflag']]} lds"]


def item_piece(n, i):
    o = f" offset:{i * 1024}" if i else ""
    return [f"s_add_u32 m0, s{sWOF}, {(n % NS) * HS + i * (BLK - 1024)}",
            (f"s_add_u32 s{sT0}, s{sG0}, {(n // 2) * 16384}" if OPT["rot"] else f"s_mov_b32 s{sT0}, {(n // 2) * 16384}"),
            f"buffer_load_dwordx4 v{vV4}, {srd(SRD_V if n % 2 else SRD_K)}, s{sT0} offen{o}{FLAGS[OPT['kvflag']]} lds"]


def adv(r, tmp=None):
    tmp = sT2 if tmp is None else tmp
    return [f"s_add_u32 s{r}, s{r}, {2 * HS}", f"s_sub_u32 s{tmp}, s{r}, {NS * HS}", f"s_min_u32 s{r}, s{r}, s{tmp}"]


def kread(dst, base, kb, kk):
    return f"ds_read_b128 {dst}, v{base + (kk >> 1)} offset:{kb * 256 + (kk & 1) * 64}"


def build_loop():
    err = None
    for lo in list(range(78, 153)) + list(range(0, 78)):
        try:
            return build_loop_at(lo)
        except AssertionError as e:
            err = e
    raise err


def build_loop_at(lo):
    L, W = OPT["L"], OPT["W"]
    NF = 32
    mf = []
    qk_end = {}
    pv_first = {}
    phase2 = {}
    step_start = {}
    for j in range(2):
        jn = 1 - j
        step_start[j] = len(mf)
        tiles = range(5) if jn == 0 else range(4)
        for kb in range(2):
            for kk in range(4):
                f = 16 * j + kb * 4 + kk
                for t in tiles:
                    S = Sreg(t, jn) + 4 * kb
                    C = vr(NEG + 4 * t, 4) if kk == 0 else vr(S, 4)
                    mf.append(dict(t=f"{MF} {vr(S, 4)}, {ar(RING + 4 * (f % 16), 4)}, {vr(QV + 16 * t + 4 * kk, 4)}, {C}", f=f))
                    qk_end[(jn, t, kb)] = len(mf) - 1
        tiles = list(range(5) if j == 0 else range(4))
        phase2[j] = len(mf)
        for dt in range(8):
            f = 16 * j + 8 + dt
            for t in tiles:
                O = ar(OA + 32 * t + 4 * dt, 4)
                mf.append(dict(t=f"{MF} {O}, {ar(RING + 4 * (f % 16), 4)}, {vr(Sreg(t, j), 4)}, {O}", f=f))
                pv_first.setdefault((j, t), len(mf) - 1)
            x = dt - 2
            if 0 <= x < len(tiles):
                Lr = ar(LA + 4 * x, 4)
                mf.append(dict(t=f"{MF} {Lr}, {ar(ONES, 4)}, {vr(Sreg(x, j), 4)}, {Lr}", f=f))
    N = len(mf)
    assert N == 153
    first_use, last_use = {}, {}
    for i, m in enumerate(mf):
        first_use.setdefault(m["f"], i)
        last_use[m["f"]] = i
    cap = [2] * N
    for f in range(NF):
        if f % W == 0:
            cap[(first_use[f] - 1) % N] -= 1
    gX = step_start[1] - 1
    cap[gX] -= 1
    cap[N - 1] -= 1
    ecap = [False] * N
    for f in range(NF):
        a, b = first_use[f], last_use[f]
        n = b - a + 1
        pos = {4: [0, 2], 5: [0, 2, 3], 6: [0, 2, 4]}[n]
        for p in pos:
            ecap[a + p] = True
    gaps = [[] for _ in range(N)]

    def frag_reads(f):
        j, r = divmod(f, 16)
        dst = RING + 4 * (f % 16)
        if r < 8:
            kb, kk = divmod(r, 4)
            return [kread(ar(dst, 4), vK + 2 * (1 - j), kb, kk)]
        dt = r - 8
        return [f"ds_read_b64_tr_b16 {ar(dst + 2 * e, 2)}, v{vV + j} offset:{e * 256 + dt * 32}" for e in range(2)]

    used = [0] * N
    nvm = 8 + (1 if OPT["wopf"] == 2 else 0)
    gB = phase2[0] + 1
    gaps[gB] += [(f"s_waitcnt vmcnt({(DD - 2) * nvm})", "", None), ("s_barrier", "", None)]
    used[gB] = 2
    assert not ecap[gB] and cap[gB] == 2
    order = []
    for j in (0, 1):
        tiles = range(5) if j == 0 else range(4)
        for kb in range(2):
            for t in tiles:
                for r in range(4):
                    order.append((j, t, kb, r))

    def avail(j, t, kb):
        e = qk_end[(j, t, kb)] + 4
        return e - N if j == 0 else e
    cur = -10 ** 9
    for rnd in range(3):
        place = {}
        for (j, t, kb, r) in order:
            g = max(cur + 1, avail(j, t, kb))
            while not (ecap[g % N] and cap[g % N] == 2):
                g += 1
            place[(j, t, kb, r)] = g
            cur = g
        cur -= N
    for key, g in place.items():
        j, t, kb, r = key
        S = Sreg(t, j) + 4 * kb + r
        gaps[g % N].append((f"v_exp_f32 v{S}, v{S}", "n" if g < 0 else "", ("sm", j)))
        assert used[g % N] == 0
        used[g % N] = 2
    singles = []
    seqn = [0]

    def add(tg, prio, text, kind=None, chain=None):
        singles.append(dict(g=tg, p=prio, s=seqn[0], t=text, k=kind, chain=chain))
        seqn[0] += 1

    for (j, t, kb, r), g in place.items():
        if r % 2 == 1:
            S = Sreg(t, j)
            add(g + 1, 1, f"v_cvt_pk_bf16_f32 v{S + 2 * kb + r // 2}, v{S + 4 * kb + r - 1}, v{S + 4 * kb + r}",
                kind=("cvt", j, t), chain="cvt")
    tgt_rd = {}
    for f in range(NF):
        tg = first_use[(f - L) % NF] + (0 if f - L >= 0 else -N)
        tgt_rd[f] = tg
        for x in frag_reads(f):
            add(tg, 0, x, kind=("rd", f), chain="rd")
    add(tgt_rd[7], 0, f"v_add_u32 v{vK + 2}, s{sKN}, v{vKB + 2}", chain="rd", kind="k1")
    add(tgt_rd[7], 0, f"v_add_u32 v{vK + 3}, s{sKN}, v{vKB + 3}", chain="rd", kind="k1")
    add(tgt_rd[15], 0, f"v_add_u32 v{vV}, s{sVN}, v{vVB}", chain="rd", kind="v0")
    add(tgt_rd[23], 0, f"v_add_u32 v{vK}, s{sKN}, v{vKB}", chain="rd", kind="k0")
    add(tgt_rd[23], 0, f"v_add_u32 v{vK + 1}, s{sKN}, v{vKB + 1}", chain="rd", kind="k0")
    add(tgt_rd[31], 0, f"v_add_u32 v{vV + 1}, s{sDV}, v{vV}", chain="rd", kind="v1")
    g = gB + 1
    st = OPT["dmastep"]
    for i in range(4):
        pc = kv_piece(sVD, SRD_V, i)
        add(g, 2, pc[0], kind="m0", chain="dma")
        add(g + 1, 2, pc[1], kind="dma", chain="dma")
        g += st
    g -= st - 2
    add(g, 3, f"s_add_u32 s{sVD}, s{sKN}, s{sWOF}", chain="dma")
    for x in adv(sKN):
        add(g, 3, x, chain="dma", kind="advk")
    g += st - 2
    for i in range(4):
        pc = kv_piece(sKD, SRD_K, i)
        add(g, 2, pc[0], kind="m0", chain="dma")
        add(g + 1, 2, pc[1], kind="dma", chain="dma")
        g += st
    g -= st - 2
    if OPT["wopf"] == 2:
        add(84, 3, f"buffer_load_dword v{vDUM}, v7, {srd(SRD_P)}, s{sWP} offen", chain="misc")
        add(84, 3, f"s_add_u32 s{sWP}, s{sWP}, 160", chain="misc")
    for x in adv(sKD):
        add(g, 3, x, chain="dma")
    add(g, 3, f"s_add_u32 s{sKVS}, s{sKVS}, 16384", chain="dma")
    if OPT["rot"]:
        add(g, 3, f"s_and_b32 s{sKVS}, s{sKVS}, 0x7ffff", chain="dma")
        add(g, 3, f"s_cmp_lt_u32 s{sCNT}, {DD} | s_cselect_b32 s{sKVS}, 0x100000, s{sKVS}", chain="dma")
    for x in adv(sVN, sT1):
        add(78, 3, x, chain="misc", kind="advv")
    for x in singles:
        t2_ = (x["g"] - lo) % N + lo
        x["sh"] = x["g"] - t2_
        x["g"] = t2_
    chains = {}
    for x in sorted(singles, key=lambda x: (x["g"], x["s"])):
        chains.setdefault(x["chain"], []).append(x)
    placed = []
    lastg = {}
    gS = gX - 1
    while used[gS] or cap[gS] < 1:
        gS -= 1
    gaps[gS] += [(f"s_sub_u32 s{sCNT}, s{sCNT}, 1", "", None)]
    used[gS] = 1
    g = lo
    while any(chains.values()):
        while used[g % N] < cap[g % N]:
            cands = []
            for c, q in chains.items():
                if q and q[0]["g"] <= g:
                    if q[0]["k"] == "dma" and lastg.get(c) == g:
                        continue
                    if gS <= g % N <= gX and q[0]["t"].startswith("s_"):
                        continue
                    cands.append(q[0])
            if not cands:
                break
            x = min(cands, key=lambda x: (x["p"] - (g - x["g"]) / 6.0, x["g"], x["s"]))
            chains[x["chain"]].pop(0)
            lastg[x["chain"]] = g
            x["at"] = g + x["sh"]
            placed.append(x)
            used[g % N] += 1
            gaps[g % N].append((x["t"], "n" if x["at"] < 0 else "", x["k"]))
        g += 1
        assert g <= lo + N, [q[0] for q in chains.values() if q]
    gaps[gX].append(("s_cbranch_scc1 L1_side | L1_back:", "", None))
    rd_at, first_rd, at = {}, {}, {}
    for x in placed:
        if isinstance(x["k"], tuple) and x["k"][0] == "rd":
            rd_at[x["k"][1]] = x["at"]
            first_rd.setdefault(x["k"][1], x["at"])
        elif isinstance(x["k"], tuple) and x["k"][0] == "cvt":
            _, j, t = x["k"]
            assert x["at"] <= pv_first[(j, t)] - 2, ("cvt late", x, pv_first[(j, t)])
        else:
            at.setdefault(x["k"], []).append(x["at"])
        assert x["at"] < N, x
    for f in range(NF):
        lead = first_use[f - (f % W)] - rd_at[f]
        assert lead >= 8, ("short lead", f, lead)
    assert first_rd[16] > gB
    for a_, b_ in zip(sorted(at["m0"]), sorted(at["dma"])):
        assert not (a_ <= gX < b_), "m0 live across the side exit"
        assert a_ < b_
    assert max(at["k1"]) < min(at["advk"]) and max(at["advk"]) < min(at["k0"]), at
    assert max(at["v0"]) < min(at["advv"]), at
    seq, pro, tail = [], [], []
    for i, m in enumerate(mf):
        f = m["f"]
        grp = [(f - f % W + k) % NF for k in range(W)]
        seq.append(("m", m["t"], [f], grp))
        for x in gaps[i]:
            isrd = isinstance(x[2], tuple) and x[2][0] == "rd"
            seq.append(("x", x[0], x[2][1] if isrd else None))
            if x[1] == "n":
                pro.append(x[0])
            if i > gX and x[1] != "n" and isinstance(x[2], tuple):
                if (x[2][0] in ("sm", "cvt") and x[2][1] == 1) or (isrd and x[2][1] >= 24):
                    tail.append(x[0])
    body = add_waits(seq, True)
    body = [y for x in body for y in x.split(" | ")]
    if OPT["show"]:
        print("gap use:", "".join(str(u) for u in used), file=sys.stderr)
        print("instr count", len(body), "waits", sum("lgkmcnt" in x for x in body), "bar", gB, "dma", at["dma"], file=sys.stderr)
        print("pro", len(pro), "tail", len(tail), "lo", lo, file=sys.stderr)

    def keep(x):
        if OPT["nodma"] and (x.startswith("buffer_load") or x.startswith("s_add_u32 m0") or "vmcnt" in x):
            return False
        if OPT["nobar"] and x.startswith("s_barrier"):
            return False
        if OPT["nomf"] == 1 and x.startswith(("v_mfma", "v_exp", "v_cvt", "ds_read")):
            return False
        return True
    body = [x for x in body if keep(x)]
    if OPT["pad"]:
        nb, k = [], 0
        for x in body:
            nb.append(x)
            if x.startswith("v_exp"):
                k += 1
                if k % OPT["pad"] == 0:
                    nb.append("s_nop 0")
        body = nb
    if OPT["nomf"] == 2:
        body = [("s_nop 1" if x.startswith("v_mfma") else x) for x in body]
    return body, pro, tail


def cursor(r):
    return [f"s_add_u32 s{r}, s{r}, 128", f"s_sub_u32 s{sT2}, s{r}, 1152", f"s_min_u32 s{r}, s{r}, s{sT2}"]


def x_pieces(c):
    st = STG[c] * STSZ
    p = []
    for i in range(8):
        pre = [f"s_add_u32 s{sXSc}, s{sXS}, s{sCX}"] + cursor(sCX) if i == 0 else []
        p.append(pre + [f"s_add_u32 m0, s{sXD}, {st + i * 1024}",
                        (f"s_add_u32 s{sT0}, s{sXSc}, {i * 9216}" if i else "s_nop 0"),
                        f"buffer_load_dwordx4 v{vXD + (i & 1)}, {srd(SRD_X)}, s{sT0 if i else sXSc} offen{FLAGS[OPT['qpflag']]} lds"])
    return p


def wg_pieces(c):
    st = STG[c] * STSZ
    p = []
    for r in range(4):
        pre = [f"s_lshl_b32 s{sWSc}, s{sCW}, 12", f"s_add_u32 s{sWSc}, s{sWSc}, s{sWS}",
               f"s_add_u32 s{sXEc}, s{sXES}, s{sCW}"] + cursor(sCW) if r == 0 else []
        p.append(pre + [f"s_add_u32 m0, s{sWD}, {st + WOFF + r * XB}",
                        (f"s_add_u32 s{sT0}, s{sWSc}, {r * 8192}" if r else "s_nop 0"),
                        f"buffer_load_dwordx4 v{vWD}, {srd(SRD_W)}, s{sT0 if r else sWSc} offen{FLAGS[OPT['qpflag']]} lds"])
    p.append([f"s_add_u32 m0, s{sXED}, {st}", "s_nop 0",
              f"buffer_load_dwordx4 v{vXDE}, {srd(SRD_X)}, s{sXEc} offen{FLAGS[OPT['qpflag']]} lds"])
    return p


STG = [[0, 2, 1, 0, 2, 1, 2, 1, 2], [0, 1, 2, 0, 1, 2, 0, 1, 2]][OPT['stg']]


def build_qproj(extras, nup, tail_items, fill):
    LQ = OPT["LQ"]
    mf = []
    first_use, last_use = {}, {}
    for s in range(18):
        for sl in range(8):
            f = ("w", 8 * s + sl)
            tiles = range(5) if sl < 4 else range(4)
            for t in tiles:
                a = ACC + 32 * t + 4 * sl
                C = "0" if s == 0 else vr(a, 4)
                txt = f"{MF} {vr(a, 4)}, {ar(WRING + 4 * sl, 4)}, {ar(XF[s % 2] + 4 * t, 4)}, {C}"
                mf.append((txt, [f, ("x", s, t)]))
                for q in (f, ("x", s, t)):
                    first_use.setdefault(q, len(mf) - 1)
                    last_use[q] = len(mf) - 1
    N = len(mf)
    gaps = [[] for _ in range(N + 1)]

    def st_of(c):
        return (6, 0) if STG[c] == 2 else (0, STG[c] * STSZ)

    def wread(n):
        s, sl = divmod(n, 8)
        c, ks = divmod(s, 2)
        rb, st = st_of(c)
        kk, u = divmod(sl, 2)
        base = vQA + rb + (4 if kk < 2 else 5)
        return [(f"ds_read_b64_tr_b16 {ar(WRING + 4 * sl + 2 * e, 2)}, v{base} offset:{st + (kk & 1) * 64 + 8 * u + e * 256 + ks * 512}",
                 ("w", n)) for e in range(2)]

    def xread(s, t):
        c, ks = divmod(s, 2)
        rb, st = st_of(c)
        if t < 4:
            return (f"ds_read_b128 {ar(XF[s % 2] + 4 * t, 4)}, v{vQA + rb + ks} offset:{st + t * 2048}", ("x", s, t))
        return (f"ds_read_b128 {ar(XF[s % 2] + 16, 4)}, v{vQA + rb + 2 + ks} offset:{st}", ("x", s, t))

    bar = {0: -1, 9: N}
    for c in range(1, 9):
        bar[c] = last_use[("w", 16 * c - LQ + 1)]
    items = []
    for n in range(144):
        c = n // 16
        e = last_use[("w", n - 8)] if n >= 8 else -1
        tg = first_use[("w", n - LQ)] if n >= LQ else -1
        tg = max(tg, e, bar[c])
        for x in wread(n):
            items.append((tg, x))
    rd = sorted(items, key=lambda z: z[0])
    xi = []
    for s in range(18):
        c, ks = divmod(s, 2)
        for t in range(5):
            e = last_use[("x", s - 2, t)] if s >= 2 else -1
            tg = max(e, bar[c])
            if s == 1:
                tg = 0
            xi.append((tg, xread(s, t)))
    allrd = sorted([(tg, 0, i, x) for i, (tg, x) in enumerate(xi)] + [(tg, 1, i, x) for i, (tg, x) in enumerate(rd)],
                   key=lambda z: (z[0], z[1], z[2]))
    used = [0] * (N + 2)
    xdone = {}
    g = -1
    for tg, _, _, x in allrd:
        g = max(g, tg)
        if g < 0 and used[0] >= 9:
            g = 0
        while g >= 0 and used[g + 1] >= 2:
            g += 1
        gaps[g + 1].append(("x", x[0], x[1]))
        used[g + 1] += 1
        if x[1][0] == "x":
            xdone[x[1][1]] = g
        cc = x[1][1] // 16 if x[1][0] == "w" else x[1][1] // 2
        assert g < bar[cc + 1] - 2, (x, g, bar[cc + 1])
    last_rd = g
    groups = []
    for c in range(nup, 9):
        prev = [p for p in range(c) if STG[p] == STG[c]]
        ew = bar[prev[-1] + 1] if prev else -1
        ex = xdone[2 * prev[-1] + 1] + 10 if prev else -1
        groups.append((ew, 0, c, wg_pieces(c), ("W", c), None))
        groups.append((ex, 2, c, x_pieces(c), ("X", c), prev[-1] if prev else None))
    for c, ps in extras.items():
        groups.append((bar[c], 1, c, ps, ("E", c), None))
    groups.sort(key=lambda z: (z[0], z[2] if z[0] < 0 else 0, z[1]))
    for kind in "WX":
        cs = [z[4][1] for z in groups if z[4][0] == kind]
        assert cs == sorted(cs), cs
    issued = []
    for c in range(nup):
        issued += [(("W", c), -1)] * 5 + [(("X", c), -1)] * 8
        if c == 0 and OPT["pf"]:
            issued += [(("P", 0), -1)] * 2
    g = 0
    for tg, _, _, ps, tag, prev in groups:
        for i, p in enumerate(ps):
            late = g - tg
            g = max(g, tg)
            g0 = g
            if i == 0 and prev is not None:
                while used[g + 1] >= 1:
                    g += 1
                gaps[g + 1].append(("xw", ("x", 2 * prev + 1)))
                used[g + 1] += 2
            for ins in p[:-1]:
                if ins == "s_nop 0":
                    continue
                while used[g + 1] >= 2:
                    g += 1
                gaps[g + 1].append(("x", ins, None))
                used[g + 1] += 1
            g += 1
            while used[g + 1] >= 2:
                g += 1
            assert g < N - 30, (tag, g)
            gaps[g + 1].append(("x", p[-1], None))
            used[g + 1] = 2
            issued.append((tag, g))
            g = max(g + 1, g0 + (OPT["qstep"] if late < 30 else 2))
    for c, lst in fill.items():
        g = bar[c]
        for ins in lst:
            k = ins.count(" | ") + 1
            while used[g + 1] + k > 2 or (k > 1 and used[g + 1]):
                g += 1
            for y in ins.split(" | "):
                gaps[g + 1].append(("x", y, None))
            used[g + 1] += k
            assert g < min(bar[c + 1], N - 26), (c, g)
    vm_at = {}
    for c in range(1, 9):
        before = [t for t, gg in issued if gg < bar[c]]
        for t, gg in issued:
            if t in (("W", c), ("X", c)):
                assert gg < bar[c] - 30, (t, gg, bar[c])
        lastneed = max(i for i, t in enumerate(before) if t in (("W", c), ("X", c)))
        vm_at[c] = len(before) - 1 - lastneed
    if OPT["show"]:
        print("bar", bar, "vm", vm_at, "issue", [(t[0] + str(t[1]), g) for t, g in issued if g >= 0], "lastrd", last_rd - (N - 36), file=sys.stderr)
    seq = []
    tf = list(tail_items)
    for i in range(N + 1):
        if i > 0:
            seq.append(("m", mf[i - 1][0], mf[i - 1][1]))
        for c in range(1, 9):
            if bar[c] == i - 1:
                seq.append(("x", f"s_waitcnt vmcnt({vm_at[c]}) lgkmcnt(0)", None))
                seq.append(("x", "s_barrier", None))
                if OPT["diag"]:
                    seq.append(("x", f"v_writelane_b32 v250, s90, {40 + c}", None))
                    seq.append(("x", "s_memtime s[90:91]", None))
        for x in gaps[i]:
            if x[0] == "xw":
                seq.append(("m", "s_nop 0", [("x", x[1][1], t) for t in range(5)]))
            else:
                seq.append(x)
        while tf and tf[0][0] <= i - 1 - (N - 36):
            seq.append(("x", tf.pop(0)[1], None))
    assert not tf
    return add_waits(seq, False), [t for t, _ in issued]


DW = 10
SRD_OUT, SRD_D = SRD_X, SRD_W
sMT, sNT, sBS, sLD, sU, sPA, sCA = sXD, sXS, sWS, sXED, sXES, sCX, sCW
sAI = 32
sSIDE, sRDY, sPF = 38, 39, 40
vBD, vPF, vZ, vPL = 2, 3, 4, 5
vBR, WF, AC = 144, 112, 160


def wslot(d):
    return (131072 + d * 16384) if d < 2 else (d - 2) * 16384


def wload(s):
    return [[f"s_add_u32 m0, s{sLD}, {wslot(s % DW) + i * 1024}",
             f"s_add_u32 s{sU}, s{sBS}, {(32 * s + 8 * i) * 1152}",
             f"buffer_load_dwordx4 v{vBD}, {srd(SRD_P)}, s{sU} offen lds"] for i in range(4)]


def oreg(s, i):
    n = (s % OPT["DO"]) * 6 + i
    return 4 * n if n < 16 else 128 + 4 * (n - 16) if n < 24 else 64 + 4 * (n - 24)


def oload(s):
    off = f" offset:{(s % 4) * 1024}" if s % 4 else ""
    o = []
    for i in range(6):
        pre = [f"s_add_u32 s{sAI + i}, s{sAI + i}, 4096"] if (s % 4 == 0 and s) else []
        o.append(pre + [f"buffer_load_dwordx4 {ar(oreg(s, i), 4)}, v11, {srd(SRD_O)}, s{sAI + i} offen{off}{FLAGS[OPT['oflag']]}"])
    return o


def p3_setup():
    Z = Asm()
    Z(f"s_lshr_b32 s{sU}, s2, 3")
    Z(f"s_mul_i32 s{sPF}, s{sU}, 6912")
    Z(f"s_mul_i32 s{sNT}, s{sU}, 43")
    Z(f"s_lshr_b32 s{sNT}, s{sNT}, 7")
    Z(f"s_mul_i32 s{sMT}, s{sNT}, 3")
    Z(f"s_sub_u32 s{sMT}, s{sU}, s{sMT}")
    if OPT["xmap"] == 1:
        Z(f"s_and_b32 s{sCA}, s2, 1")
        Z(f"s_xor_b32 s{sCA}, s{sCA}, 1")
        Z(f"s_lshl_b32 s{sCA}, s{sCA}, 2")
        Z(f"s_bfe_u32 s{sU}, s2, 0x20001")
        Z(f"s_add_u32 s{sCA}, s{sCA}, s{sU}")
    else:
        Z(f"s_and_b32 s{sCA}, s2, 7")
    Z(f"s_mul_i32 s{sU}, s{sCA}, 3")
    Z(f"s_add_u32 s{sMT}, s{sMT}, s{sU}")
    Z(f"s_lshl_b32 s{sCA}, s{sCA}, 2")
    Z(f"s_add_u32 s{sCA}, s{sCA}, s{sW}")
    Z(f"s_lshl_b32 s{sCA}, s{sCA}, 3")
    Z(f"s_lshl_b32 s{sPA}, s{sB}, 2")
    Z(f"s_lshr_b32 s{sU}, s{sH}, 3")
    Z(f"s_add_u32 s{sPA}, s{sPA}, s{sU}")
    Z(f"s_lshl_b32 s{sPA}, s{sPA}, 3")
    Z(f"v_lshrrev_b32 v{vPF}, 3, v0")
    Z(f"v_mul_u32_u24 v{vBD}, 1152, v{vPF}")
    Z(f"v_lshlrev_b32 v{vPF}, 1, v12")
    Z(f"v_and_b32 v{vZ}, 7, v0")
    Z(f"v_xor_b32 v{vPF}, v{vPF}, v{vZ}")
    Z(f"v_lshl_add_u32 v{vBD}, v{vPF}, 4, v{vBD}")
    Z(f"v_min_u32 v{vPF}, 53, v0")
    Z(f"v_lshlrev_b32 v{vPF}, 7, v{vPF}")
    Z(f"v_mov_b32 v{vZ}, 0")
    Z(f"s_lshl_b32 s{sLD}, s{sW}, 12")
    Z(f"s_mul_i32 s{sBS}, s{sW}, {1024 * 1152}")
    Z(f"s_add_u32 s{sPF}, s{sPF}, s{sBS}")
    Z(f"s_lshl_b32 s{sU}, s{sNT}, 7")
    Z(f"s_add_u32 s{sBS}, s{sBS}, s{sU}")
    Z(f"s_cmp_ge_u32 s2, 216 | s_cselect_b32 s{sBS}, 0x40000000, s{sBS}")
    Z(f"s_mov_b32 s{SRD_OUT}, s{sOUTP}")
    Z(f"s_mov_b32 s{SRD_OUT + 1}, s{sOUTP + 1}")
    Z(f"s_mov_b32 s{SRD_OUT + 2}, {2304 * 1152}")
    Z(f"s_mov_b32 s{SRD_D}, s{sOUTP + 2}")
    Z(f"s_mov_b32 s{SRD_D + 1}, s{sOUTP + 3}")
    Z(f"s_mov_b32 s{SRD_D + 2}, 256")
    return [x.strip() for x in Z.l]


def o_bases(oob):
    o = [f"s_mul_i32 s{sAI}, s{sMT}, 786432", f"s_lshl_b32 s{sU}, s{sW}, 15", f"s_add_u32 s{sAI}, s{sAI}, s{sU}"]
    if oob:
        o += [f"s_cmp_ge_u32 s{sRDY}, 8", f"s_cselect_b32 s{sAI}, s{sAI}, 0x40000000"]
    o += [f"s_add_u32 s{sAI + i}, s{sAI}, {i * 131072}" for i in range(1, 6)]
    return o


def side_block(A):
    A.label("L1_side")
    A(f"s_mov_b32 s{sCNT}, 0")
    A(f"s_add_u32 s{sSIDE}, s{sSIDE}, 1")
    A(f"s_cmp_eq_u32 s{sSIDE}, 4")
    A("s_cbranch_scc1 L1_tail")
    if OPT["l2pf"]:
        A(f"s_mul_i32 s{sU}, s{sSIDE}, {6 * 36864}")
        A(f"s_add_u32 s{sU}, s{sU}, s{sPF}")
        A(f"s_sub_u32 s{sU}, s{sU}, {4 * 36864}")
        A(f"buffer_load_dword v{vDUM}, v{vPF}, {srd(SRD_P)}, s{sU} offen")
    A(f"s_cmp_eq_u32 s{sSIDE}, 2")
    A("s_cbranch_scc1 L1_side2")
    A(f"s_cmp_eq_u32 s{sSIDE}, 3")
    A("s_cbranch_scc1 L1_side3")
    ps = wload(0) + wload(1)
    A(f"global_load_dword v{vDUM}, v{vCW}, s[{sPC}:{sPC + 1}]")
    for p in ps[0:2]:
        A.ext(p)
    A("s_branch L1_back")
    A.label("L1_side2")
    for p in ps[2:5]:
        A.ext(p)
    A("s_branch L1_back")
    A.label("L1_side3")
    for p in ps[5:8]:
        A.ext(p)
    A("s_branch L1_back")


def p3(A, rest):
    DO = OPT["DO"]
    u0, u1 = 247, 248

    def wreads(s):
        o = wslot(s % DW)
        b = WF + 16 * (s % 2)
        return [f"ds_read_b64_tr_b16 {vr(b + 4 * n + 2 * e, 2)}, v{vBR + 4 * (o >> 16) + n} offset:{(o & 0xffff) + e * 2048}"
                for n in range(4) for e in range(2)]

    A.ext(rest)
    A(f"buffer_load_dword v{vPL}, v{vZ}, {srd(SRD_D)}, s{sCA} offen sc1")
    A.ext(o_bases(False))
    stamp(A)
    A(f"v_lshrrev_b32 v{u0}, 2, v0")
    A(f"v_lshlrev_b32 v{vBR}, 7, v{u0}")
    A(f"v_bfe_u32 v{u0}, v0, 3, 2")
    A(f"v_lshl_add_u32 v{vBR}, v{u0}, 5, v{vBR}")
    A(f"v_lshl_add_u32 v{vBR}, v15, 3, v{vBR}")
    A(f"v_add_u32 v{vBR}, s{sLD}, v{vBR}")
    for n_ in range(1, 4):
        A(f"v_xor_b32 v{vBR + n_}, {32 * n_}, v{vBR}")
    for k in range(1, 3):
        for n_ in range(4):
            A(f"v_add_u32 v{vBR + 4 * k + n_}, {65536 * k}, v{vBR + n_}")
    A(f"v_mov_b32 v{u0}, 1")
    A.ext(wreads(0))
    A("s_waitcnt vmcnt(0)")
    A("s_barrier")
    if OPT["diag"]:
        A("s_memrealtime s[78:79]")
    A(f"s_cmp_lg_u32 s{sW}, 0")
    A("s_cbranch_scc1 L3_noadd")
    A("s_mov_b64 exec, 1")
    A(f"buffer_atomic_add v{u0}, v{vZ}, {srd(SRD_D)}, s{sPA} offen sc1")
    A("s_mov_b64 exec, -1")
    A.label("L3_noadd")
    A("s_cmp_ge_u32 s2, 216")
    A("s_cbranch_scc1 L3_done")
    A(f"v_readfirstlane_b32 s{sRDY}, v{vPL}")
    A(f"s_mov_b32 s{sCNT}, {1 << 22}")
    A(f"s_cmp_ge_u32 s{sRDY}, {8 if OPT['fast'] else 999}")
    A("s_cbranch_scc1 L3_fast")
    vmq, nfast = [], []
    for s in range(2, DW):
        for p in wload(s):
            A.ext(p)
    A.label("L3_poll")
    A(f"buffer_load_dword v{u0}, v{vZ}, {srd(SRD_D)}, s{sCA} offen sc1")
    A("s_waitcnt vmcnt(0)")
    A(f"v_readfirstlane_b32 s{sU}, v{u0}")
    A(f"s_sub_u32 s{sCNT}, s{sCNT}, 1")
    A("s_cbranch_scc1 L3_rdy")
    A(f"s_cmp_ge_u32 s{sU}, 8")
    A("s_cbranch_scc1 L3_rdy")
    A("s_sleep 4")
    A("s_branch L3_poll")
    A.label("L3_rdy")
    for s in range(DO):
        for p in oload(s):
            A.ext(p)
            vmq.append(("o", s))
    A("s_branch L3_go")
    A.label("L3_fast")
    seq = [("o", 0), ("o", 1), ("w", 2), ("o", 2), ("w", 3), ("o", 3)] + [("o", s) for s in range(4, DO)] + [("w", s) for s in range(4, DW)]
    for k_, s in seq:
        for p in (oload(s) if k_ == "o" else wload(s)):
            A.ext(p)
            nfast.append((k_, s))
    A.label("L3_go")
    if OPT["diag"]:
        A("s_memrealtime s[80:81]")
    for s in range(32):
        cnt = []
        for q in (vmq, nfast):
            need = [i for i, t in enumerate(q) if t in (("o", s), ("w", s + 1))]
            cnt.append(len(q) - 1 - max(need) if need else 63)
        A(f"s_waitcnt vmcnt({min(min(cnt), 63)}) lgkmcnt(0)")
        b = WF + 16 * (s % 2)
        rdq = wreads(s + 1) if s + 1 < 32 else []
        ld = []
        if s + DW < 32:
            ld += [(p, ("w", s + DW)) for p in wload(s + DW)]
        if s >= 1 and s - 1 + DO < 32:
            ld += [(p, ("o", s - 1 + DO)) for p in oload(s - 1 + DO)]
        k = 0
        for n_ in range(4):
            for i in range(6):
                acc = ar(AC + 4 * (6 * n_ + i), 4)
                A(f"{MF} {acc}, {vr(b + 4 * n_, 4)}, {ar(oreg(s, i), 4)}, {'0' if s == 0 else acc}")
                k += 1
                if rdq and k % 2 == 1:
                    A(rdq.pop(0))
                if ld and k % 2 == 0:
                    p, tag = ld.pop(0)
                    A.ext(p)
                    vmq.append(tag)
                    nfast.append(tag)
        assert not ld and not rdq
    if OPT["diag"]:
        A("s_memrealtime s[82:83]")
    sAS = sAI
    A("s_barrier")
    A(f"s_mul_i32 s{sT0}, s{sW}, 24576")
    A(f"v_lshl_add_u32 v{u0}, v0, 4, s{sT0}")
    A("s_nop 4")
    for q in range(24):
        A(f"ds_write_b128 v{u0}, {ar(AC + 4 * q, 4)} offset:{q * 1024}")
    A(f"v_lshlrev_b32 v{u0}, 4, v13")
    A(f"v_bfe_u32 v{u1}, v0, 4, 1")
    A(f"v_lshl_add_u32 v{u0}, v{u1}, 9, v{u0}")
    A(f"v_lshrrev_b32 v10, 5, v0")
    A(f"v_lshl_add_u32 v{u0}, v10, 10, v{u0}")
    A(f"s_mul_i32 s{sT0}, s{sW}, {6 * 1024}")
    A(f"v_add_u32 v{u0}, s{sT0}, v{u0}")
    A(f"v_lshl_add_u32 v9, v10, 4, v13")
    A(f"v_mul_u32_u24 v9, 1152, v9")
    A(f"v_lshl_add_u32 v9, v{u1}, 4, v9")
    A(f"v_add_u32 v{u1}, 49152, v{u0}")
    A(f"s_mul_i32 s{sAS}, s{sMT}, {96 * 1152}")
    A(f"s_lshl_b32 s{sT0}, s{sNT}, 7")
    A(f"s_add_u32 s{sAS}, s{sAS}, s{sT0}")
    A(f"s_lshl_b32 s{sT0}, s{sW}, 5")
    A(f"s_add_u32 s{sAS}, s{sAS}, s{sT0}")
    A("s_waitcnt lgkmcnt(0)")
    A("s_barrier")
    R = 16
    for x in range(3):
        for w in range(4):
            for q in range(2):
                A(f"ds_read_b128 {vr(R + 32 * x + 8 * w + 4 * q, 4)}, v{u0 if w < 2 else u1} offset:{(w % 2) * 24576 + x * 2048 + q * 256}")
    for x in range(3):
        A(f"s_waitcnt lgkmcnt({min(15, 8 * (2 - x))})")
        bb = R + 32 * x
        for e in range(8):
            A(f"v_add_f32 v{bb + e}, v{bb + e}, v{bb + 8 + e}")
            A(f"v_add_f32 v{bb + 16 + e}, v{bb + 16 + e}, v{bb + 24 + e}")
        for e in range(8):
            A(f"v_add_f32 v{bb + e}, v{bb + e}, v{bb + 16 + e}")
        for e in range(4):
            A(f"v_cvt_pk_bf16_f32 v{bb + 8 + e}, v{bb + 2 * e}, v{bb + 2 * e + 1}")
        A(f"buffer_store_dwordx4 {vr(bb + 8, 4)}, v9, {srd(SRD_OUT)}, s{sAS} offen")
        A(f"s_add_u32 s{sAS}, s{sAS}, {32 * 1152}")
    A.label("L3_done")


def k1(A):
    A.raw(".p2align 8")
    A.raw(".type attn_kernel,@function")
    A.label("attn_kernel")
    A("s_cmp_ge_u32 s2, 256")
    A("s_cbranch_scc1 L1_end")
    A("s_load_dwordx8 s[32:39], s[0:1], 0")
    A("s_load_dwordx2 s[40:41], s[0:1], 56")
    A("s_load_dwordx2 s[30:31], s[0:1], 32")
    A(f"s_getpc_b64 s[{sPC}:{sPC + 1}]")
    A.label("L1_pc")
    stamp(A)
    if OPT["diag"]:
        A("s_memrealtime s[92:93]")
    A("s_lshr_b32 s3, s2, 3")
    if OPT["cpf"]:
        A(f"s_lshl_b32 s{sT0}, s3, 11")
        A(f"v_lshl_add_u32 v1, v0, 7, s{sT0}")
        A("v_min_u32 v1, L_code_end-L1_pc-4, v1")
        A("v_cmp_gt_u32 vcc, 16, v0")
        A("s_and_saveexec_b64 s[46:47], vcc")
        A("s_cbranch_execz L1_nocpf")
        A(f"global_load_dword v{vDUM}, v1, s[{sPC}:{sPC + 1}]")
        A.label("L1_nocpf")
        A("s_mov_b64 exec, s[46:47]")
    A("v_lshrrev_b32 v1, 6, v0")
    A("v_and_b32 v0, 63, v0")
    A(f"v_readfirstlane_b32 s{sW}, v1")
    if OPT["xmap"] == 0:
        A(f"s_and_b32 s{sB}, s2, 7")
        A(f"s_mov_b32 s{sH}, s3")
    else:
        A(f"s_and_b32 s{sB}, s2, 1")
        A(f"s_lshl_b32 s{sB}, s{sB}, 2")
        A(f"s_and_b32 s{sT0}, s3, 3")
        A(f"s_add_u32 s{sB}, s{sB}, s{sT0}")
        A(f"s_and_b32 s{sH}, s2, 6")
        A(f"s_lshl_b32 s{sH}, s{sH}, 2")
        A(f"s_lshr_b32 s{sT0}, s3, 2")
        A(f"s_add_u32 s{sH}, s{sH}, s{sT0}")
    A(f"s_and_b32 s{sP}, s{sW}, 1")
    nph = OPT["nph"]
    if nph == 1:
        A(f"s_mov_b32 s{sCW}, 0")
    elif nph == 2:
        A(f"s_add_u32 s{sCW}, s{sB}, s{sH}")
        A(f"s_and_b32 s{sCW}, s{sCW}, 1")
        A(f"s_mul_i32 s{sCW}, s{sCW}, {4 * 128}")
    elif nph == 4:
        A(f"s_add_u32 s{sCW}, s{sB}, s{sH}")
        A(f"s_and_b32 s{sCW}, s{sCW}, 3")
        A(f"s_mul_i32 s{sCW}, s{sCW}, {2 * 128}")
    elif nph == 3:
        A(f"s_add_u32 s{sCW}, s{sB}, s{sH}")
        A(f"s_mul_i32 s{sT0}, s{sCW}, 43")
        A(f"s_lshr_b32 s{sT0}, s{sT0}, 7")
        A(f"s_mul_i32 s{sT0}, s{sT0}, 3")
        A(f"s_sub_u32 s{sCW}, s{sCW}, s{sT0}")
        A(f"s_mul_i32 s{sCW}, s{sCW}, {3 * 128}")
    A(f"s_mov_b32 s{sCX}, s{sCW}")
    t0, t1, t2, g4, i16, r4, cq = 9, 10, 11, 12, 13, 14, 15
    A(f"v_lshrrev_b32 v{g4}, 4, v0")
    A(f"v_and_b32 v{i16}, 15, v0")
    A(f"v_lshrrev_b32 v{t0}, 5, v0")
    A(f"v_lshlrev_b32 v{vWD}, 18, v{t0}")
    A(f"v_and_b32 v{t0}, 1, v{g4}")
    A(f"v_lshl_add_u32 v{vWD}, v{t0}, 15, v{vWD}")
    A(f"v_lshl_add_u32 v{vWD}, v{i16}, 4, v{vWD}")
    A(f"v_lshrrev_b32 v{t0}, 3, v0")
    A(f"v_mul_u32_u24 v{vXD}, 1152, v{t0}")
    A(f"v_and_b32 v{t0}, 7, v0")
    A(f"v_xor_b32 v{t0}, v{t0}, v{g4}")
    A(f"v_lshl_add_u32 v{vXD}, v{t0}, 4, v{vXD}")
    A(f"v_xor_b32 v{vXD + 1}, 64, v{vXD}")
    A(f"s_lshl_b32 s{sT0}, s{sP}, 6")
    A(f"v_xor_b32 v{vXDE}, s{sT0}, v{vXD}")
    A(f"s_lshl_b32 s{sXD}, s{sW}, 13")
    A(f"s_add_u32 s{sXD}, s{sXD}, {XOFF}")
    A(f"s_mul_i32 s{sXS}, s{sW}, {8 * 9216}")
    A(f"s_lshl_b32 s{sXED}, s{sW}, 10")
    A(f"s_add_u32 s{sXED}, s{sXED}, {XEOFF}")
    A(f"s_mul_i32 s{sXES}, s{sW}, 9216")
    A(f"s_add_u32 s{sXES}, s{sXES}, {32 * 9216}")
    A(f"s_lshr_b32 s{sT0}, s{sW}, 1")
    A(f"s_mul_i32 s{sWD}, s{sT0}, {WG1}")
    A(f"s_mul_i32 s{sT0}, s{sP}, {WG0}")
    A(f"s_add_u32 s{sWD}, s{sWD}, s{sT0}")
    A(f"s_lshl_b32 s{sWS}, s{sW}, 16")
    A(f"s_mul_i32 s{sT1}, s{sB}, 331776")
    A(f"s_lshl_b32 s{sT0}, s{sH}, 8")
    A(f"s_mov_b32 s{SRD_X + 2}, 331776")
    A(f"s_mov_b32 s{SRD_X + 3}, 0x20000")
    A(f"s_sub_u32 s{SRD_W + 2}, {576 * 8192}, s{sT0}")
    A(f"s_mov_b32 s{SRD_W + 3}, 0x20000")
    A("s_waitcnt lgkmcnt(0)")
    A(f"s_add_u32 s{SRD_W}, s38, s{sT0}")
    A(f"s_addc_u32 s{SRD_W + 1}, s39, 0")
    A(f"s_add_u32 s{SRD_X}, s32, s{sT1}")
    A(f"s_addc_u32 s{SRD_X + 1}, s33, 0")
    S = Asm()
    S(f"s_lshl_b32 s{sT1}, s{sB}, 5")
    S(f"s_add_u32 s{sT1}, s{sT1}, s{sH}")
    S(f"s_lshl_b32 s{sT1}, s{sT1}, 19")
    S(f"s_add_u32 s{SRD_K}, s34, s{sT1} | s_addc_u32 s{SRD_K + 1}, s35, 0")
    S(f"s_mov_b32 s{SRD_K + 2}, 524288")
    S(f"s_mov_b32 s{SRD_K + 3}, 0x20000")
    S(f"s_add_u32 s{SRD_V}, s36, s{sT1} | s_addc_u32 s{SRD_V + 1}, s37, 0")
    S(f"s_mov_b32 s{SRD_V + 2}, 524288")
    S(f"s_mov_b32 s{SRD_V + 3}, 0x20000")
    S(f"s_add_u32 s{SRD_O}, s40, {OPT['wsoff'] << 20} | s_addc_u32 s{SRD_O + 1}, s41, 0")
    S(f"s_mov_b32 s{SRD_O + 2}, {(DIAG_OFF + (2 << 20)) if OPT['diag'] else WS_O_BYTES}")
    S(f"s_mov_b32 s{SRD_O + 3}, 0x20000")
    S(f"s_mov_b32 s{SRD_P}, s30")
    S(f"s_mov_b32 s{SRD_P + 1}, s31")
    S(f"s_mov_b32 s{SRD_P + 2}, {4096 * 1152}")
    S(f"s_mov_b32 s{SRD_P + 3}, 0x20000")
    S(f"v_bfe_u32 v{r4}, v0, 2, 2")
    S(f"v_and_b32 v{cq}, 3, v0")
    XA, XE, WL, WH = vQA, vQA + 2, vQA + 4, vQA + 5
    S(f"v_lshlrev_b32 v{XE}, 7, v{i16}")
    S(f"v_lshrrev_b32 v{t0}, 1, v{i16}")
    S(f"v_xor_b32 v{t0}, v{t0}, v{g4}")
    S(f"v_lshl_add_u32 v{XE}, v{t0}, 4, v{XE}")
    S(f"v_add_u32 v{XA}, s{sXD}, v{XE}")
    S(f"s_lshr_b32 s{sT1}, s{sW}, 1")
    S(f"s_lshl_b32 s{sT1}, s{sT1}, 11")
    S(f"s_add_u32 s{sT1}, s{sT1}, {XEOFF}")
    S(f"v_add_u32 v{XE}, s{sT1}, v{XE}")
    S(f"v_xor_b32 v{XA + 1}, 64, v{XA}")
    S(f"v_xor_b32 v{XE + 1}, 64, v{XE}")
    S(f"v_lshrrev_b32 v{t0}, 1, v{g4}")
    S(f"v_mul_u32_u24 v{WL}, {WG1}, v{t0}")
    S(f"v_and_b32 v{t0}, 1, v{g4}")
    S(f"v_mul_u32_u24 v{t0}, {WG0}, v{t0}")
    S(f"v_add_u32 v{WL}, v{WL}, v{t0}")
    S(f"v_mul_u32_u24 v{t0}, {XB}, v{r4}")
    S(f"v_add_u32 v{WL}, v{WL}, v{t0}")
    S(f"v_lshl_add_u32 v{WL}, v{cq}, 4, v{WL}")
    S(f"s_lshl_b32 s{sT1}, s{sP}, 7")
    S(f"s_xor_b32 s{sOO}, s{sT1}, 128")
    S(f"v_add_u32 v{WH}, s{sOO}, v{WL}")
    S(f"v_add_u32 v{WL}, s{sT1}, v{WL}")
    for i in range(6):
        S(f"v_add_u32 v{vQA + 6 + i}, {2 * STSZ}, v{vQA + i}")
    S(f"s_lshl_b32 s{sT1}, s{sW}, 12")
    S(f"v_lshl_add_u32 v{vV4}, v0, 4, s{sT1}")
    S(f"s_mul_i32 s{sWOF}, s{sW}, {4 * BLK}")
    S(f"v_mul_u32_u24 v{t0}, {BLK}, v{i16}")
    S(f"v_lshl_add_u32 v{t0}, v{g4}, 4, v{t0}")
    S(f"v_lshl_add_u32 v{t1}, v{g4}, 2, v{r4}")
    S(f"v_mul_u32_u24 v{t1}, {BLK}, v{t1}")
    S(f"v_lshl_add_u32 v{t1}, v{cq}, 3, v{t1}")
    for j in range(2):
        S(f"s_xor_b32 s{sT1}, s{sP}, {j}")
        S(f"s_lshl_b32 s{sT1}, s{sT1}, 9")
        S(f"v_add_u32 v{vVB + j}, s{sT1}, v{t1}")
        S(f"s_lshl_b32 s{sOO}, s{sP}, 7")
        S(f"s_add_u32 s{sT1}, s{sT1}, s{sOO}")
        S(f"v_add_u32 v{vKB + 2 * j}, s{sT1}, v{t0}")
        S(f"s_xor_b32 s{sT1}, s{sT1}, 128")
        S(f"v_add_u32 v{vKB + 2 * j + 1}, s{sT1}, v{t0}")
    if OPT["rot"]:
        S(f"s_mul_i32 s{sG0}, s2, {OPT['rot']}")
        S(f"s_lshr_b32 s{sT1}, s2, 4")
        S(f"s_add_u32 s{sG0}, s{sG0}, s{sT1}")
        S(f"s_and_b32 s{sG0}, s{sG0}, 15")
        S(f"s_mul_i32 s{sG0}, s{sG0}, {16384 * 7 // 4 // 16384 * 16384}")
    S(f"s_lshl_b32 s{sWP}, s2, 2")
    S(f"s_add_u32 s{sWP}, s{sWP}, s{sW}")
    S(f"s_mul_i32 s{sWP}, s{sWP}, 4608")
    S(f"v_min_u32 v7, 1, v0")
    S(f"v_lshlrev_b32 v7, 7, v7")
    S(f"s_lshl_b32 s{sDV}, s{sP}, 10")
    S(f"s_sub_u32 s{sDV}, 512, s{sDV}")
    S(f"v_min_u32 v{vCW}, 1, v0")
    S(f"s_lshr_b32 s{sT1}, s2, 3")
    S(f"s_lshl_b32 s{sT1}, s{sT1}, 2")
    S(f"s_add_u32 s{sT1}, s{sT1}, s{sW}")
    S(f"s_lshl_b32 s{sT1}, s{sT1}, 8")
    S(f"v_lshl_add_u32 v{vCW}, v{vCW}, 7, s{sT1}")
    S(f"v_min_u32 v{vCW}, L1_redo-L1_tail, v{vCW}")
    S(f"v_add_u32 v{vCW}, L1_tail-L1_pc, v{vCW}")
    S(f"v_mov_b32 v{t0}, 0x3f803f80")
    S(f"v_cmp_eq_u32 vcc, 0, v{cq}")
    S(f"s_mov_b32 s{sSC}, {QSCALE:#x}")
    S(f"s_mov_b32 s{sREDO}, 0")
    S(f"v_cndmask_b32 v{t0}, 0, v{t0}, vcc")
    for i in range(4):
        S(f"v_accvgpr_write_b32 a{ONES + i}, v{t0}")
    S(f"s_add_u32 s{sT1}, s{sXD}, {2 * STSZ + 6144}")
    S(f"v_lshl_add_u32 v{t0}, v0, 4, s{sT1}")
    S(f"s_xor_b32 s{sT1}, s{sW}, 1")
    S(f"s_lshl_b32 s{sT1}, s{sT1}, 13")
    S(f"s_add_u32 s{sT1}, s{sT1}, {XOFF + 2 * STSZ + 6144}")
    S(f"v_lshl_add_u32 v{t1}, v0, 4, s{sT1}")

    def loop_scalars(Z):
        if OPT["rot"]:
            Z(f"s_add_u32 s{sKVS}, s{sG0}, {DD * 16384}")
        else:
            Z(f"s_mov_b32 s{sKVS}, {DD * 16384}")
        Z(f"s_add_u32 s{sKD}, s{sWOF}, {(NS - 1) * HS}")
        Z(f"s_mov_b32 s{sVD}, s{sWOF}")
        Z(f"s_mov_b32 s{sKN}, {2 * HS}")
        Z(f"s_mov_b32 s{sVN}, {3 * HS}")
        Z(f"s_mov_b32 s{sCNT}, 28")
        Z(f"s_mov_b32 s{sSIDE}, 0")
        if OPT["diag"]:
            Z("s_mov_b32 s41, 31")

    def loop_addr():
        return [f"v_add_u32 v{vK}, {2 * HS}, v{vKB}", f"v_add_u32 v{vK + 1}, {2 * HS}, v{vKB + 1}",
                f"v_mov_b32 v{vK + 2}, v{vKB + 2}", f"v_mov_b32 v{vK + 3}, v{vKB + 3}",
                f"v_add_u32 v{vV}, {HS}, v{vVB}", f"v_add_u32 v{vV + 1}, {HS}, v{vVB + 1}"]

    loop_scalars(S)
    for i in range(180):
        S(f"v_accvgpr_write_b32 a{i}, 0")
    setup = [x.strip() for x in S.l]
    for p in wg_pieces(0) + x_pieces(0):
        A.ext(p)
    npf = 0
    if OPT["pf"]:
        na = OPT["pfa"]
        A(f"v_min_u32 v{t0}, {9 * na - 1}, v0")
        A(f"v_mul_u32_u24 v{t1}, 57, v{t0}")
        A(f"v_lshrrev_b32 v{t1}, 9, v{t1}")
        A(f"v_mul_u32_u24 v{t2}, 9, v{t1}")
        A(f"v_sub_u32 v{t0}, v{t0}, v{t2}")
        A(f"v_mul_u32_u24 v248, 1152, v{t0}")
        A(f"s_and_b32 s{sT1}, s{sH}, 7")
        A(f"s_lshl_b32 s{sT1}, s{sT1}, 2")
        A(f"s_add_u32 s{sT1}, s{sT1}, s{sW}")
        A(f"s_mul_i32 s{sT1}, s{sT1}, {9 * 1152}")
        A(f"v_add_u32 v248, s{sT1}, v248")
        A(f"v_lshl_add_u32 v246, v{t1}, 7, v248")
        A(f"buffer_load_dword v{vDUM}, v246, {srd(SRD_X)}, 0 offen offset:128")
        A(f"v_bfe_u32 v{t0}, v0, 1, 2")
        A(f"v_lshlrev_b32 v249, 13, v{t0}")
        A(f"v_and_b32 v{t0}, 1, v0")
        A(f"v_lshl_add_u32 v249, v{t0}, 7, v249")
        A(f"s_and_b32 s{sT1}, s{sB}, 3")
        A(f"s_lshl_b32 s{sT1}, s{sT1}, 2")
        A(f"s_add_u32 s{sT1}, s{sT1}, s{sW}")
        A(f"s_lshl_b32 s{sT1}, s{sT1}, 15")
        A(f"v_add_u32 v249, s{sT1}, v249")
        A(f"v_lshrrev_b32 v{t0}, 3, v0")
        A(f"v_min_u32 v{t0}, {na - 1}, v{t0}")
        A(f"v_lshl_add_u32 v247, v{t0}, 19, v249")
        A(f"s_mov_b32 s{sT1}, {1 << 19}")
        A(f"buffer_load_dword v{vDUM}, v247, {srd(SRD_W)}, s{sT1} offen")
        npf = 2
    first = []
    for c in range(1, OPT["up"]):
        first += wg_pieces(c) + x_pieces(c)
    per = len(setup) // (len(first) + 1) + 1
    stamp(A)
    for p in [[]] + first:
        A.ext(p)
        for _ in range(per):
            if setup:
                for y in setup.pop(0).split(" | "):
                    A(y)
    assert not setup
    stamp(A)
    A(f"s_waitcnt vmcnt({len(first) + npf})")
    A("s_barrier")
    stamp(A)
    P = lambda n: [item_piece(n, i) for i in range(4)]
    kw = [f"global_load_dword v{vDUM}, v{vCW}, s[{sPC}:{sPC + 1}]"] if OPT["cpf"] else []
    kw = [f"buffer_load_dword v{vDUM}, v7, {srd(SRD_P)}, s{sWP} offen"] if OPT["wopf"] == 2 else []
    if OPT["stg"] == 0:
        extras = {4: P(0), 5: P(1), 6: P(2)}
        if OPT["kvs"]:
            al = P(0) + P(1) + P(2)
            extras = {4: al[0:3], 5: al[3:6], 6: al[6:8], 7: al[8:12]}
    else:
        extras = {7: P(0) + P(1) + P(2)}
    if DD == 4:
        extras[8] = P(3) + P(4) + P(5)
        late = P(6) + P(7)
        late[0] = kw + late[0]
        late[7] = late[7] + kw
    elif DD == 3:
        extras[8] = P(3)
        late = P(4) + P(5)
        late[7] = late[7] + kw
    else:
        extras[8] = P(3)
        late = [[]] * 8
    if OPT["pf"]:
        for c in range(OPT["pfa"] + 1, 9):
            at = max(0, c - OPT["pf"])
            extras[at] = extras.get(at, []) + [
                [f"buffer_load_dword v{vDUM}, v248, {srd(SRD_X)}, 0 offen offset:{c * 128}"],
                [f"s_mov_b32 s{sT0}, {c << 19}", f"buffer_load_dword v{vDUM}, v249, {srd(SRD_W)}, s{sT0} offen"]]
    if OPT["wopf"] == 1:
        extras[7] = extras.get(7, []) + [[f"v_lshlrev_b32 v253, 7, v0", f"v_min_u32 v253, {35 * 128}, v253",
                      f"buffer_load_dword v{vDUM}, v253, {srd(SRD_P)}, s{sWP} offen"]]
    if OPT["wopf"]:
        extras[7] = extras.get(7, []) + [
                     [f"s_mul_i32 s{sT0}, s{sB}, {18 * 32}", f"s_add_u32 s{sT0}, s{sT0}, s{sH}", f"s_lshl_b32 s{sT0}, s{sT0}, 12",
                      f"v_lshlrev_b32 v253, 18, v0",
                      f"v_min_u32 v253, {8 << 18}, v253",
                      f"buffer_load_dword v{vDUM}, v253, {srd(SRD_O)}, s{sT0} offen nt"]]

    def conv(t, kk):
        src = ACC + 32 * t + 8 * kk
        dst = QV + 16 * t + 4 * kk
        o = []
        for i in range(4):
            o += [f"v_mul_f32 v{src + 2 * i}, s{sSC}, v{src + 2 * i}", f"v_mul_f32 v{src + 2 * i + 1}, s{sSC}, v{src + 2 * i + 1}"]
        for i in range(4):
            o.append(f"v_cvt_pk_bf16_f32 v{dst + i}, v{src + 2 * i}, v{src + 2 * i + 1}")
        return o

    KF = [184, 224]
    k0reads = [kread(ar(KF[kb] + 4 * kk, 4), vKB, kb, kk) for kb in range(2) for kk in range(4)]
    ti = []

    def spread(lst, g0, g1):
        for i, x in enumerate(lst):
            ti.append((g0 + (i * (g1 - g0)) // len(lst), x))

    spread(conv(4, 0) + conv(0, 0) + conv(1, 0) + conv(2, 0), 13, 22)
    spread(conv(4, 1) + [f"ds_write_b128 v{t0}, {vr(QV + 64, 4)}", f"ds_write_b128 v{t0}, {vr(QV + 68, 4)} offset:1024"]
           + conv(3, 0) + conv(0, 1), 22, 29)
    ti.append((29, "BAR"))
    spread([f"ds_read_b128 {vr(QV + 72, 4)}, v{t1}", f"ds_read_b128 {vr(QV + 76, 4)}, v{t1} offset:1024"] + k0reads[:4]
           + conv(1, 1) + k0reads[4:] + conv(2, 1) + conv(3, 1), 29, 36)
    nb = [i for i, x in enumerate(ti) if x[1] == "BAR"][0]
    ti[nb:nb + 1] = [(29, "VMW"), (29, "s_barrier")]
    qp, issued = build_qproj(extras, OPT["up"], ti, {6: [f"s_load_dwordx4 s[{sOUTP}:{sOUTP + 3}], s[0:1], 40"], 8: p3_setup()})
    vms = [x for x in qp if x.startswith(("buffer_load", "global_load"))]
    lastv0 = max(i for i, x in enumerate(vms) if x == P(1)[3][-1] and i == min(k for k, y in enumerate(vms) if y == x))
    ny = len(vms) - 1 - lastv0
    qp = [(f"s_waitcnt vmcnt({ny}) lgkmcnt(0)" if x == "VMW" else x) for x in qp]
    A.ext(qp)
    stamp(A)
    body, pro, tail = build_loop()

    def qk0(kb, kk, useneg):
        o = []
        for t in range(5):
            Sx = Sreg(t, 0) + 4 * kb
            C = (vr(NEG + 4 * t, 4) if useneg else "0") if kk == 0 else vr(Sx, 4)
            o.append(f"{MF} {vr(Sx, 4)}, {ar(KF[kb] + 4 * kk, 4)}, {vr(QV + 16 * t + 4 * kk, 4)}, {C}")
        return o

    def mix(mf, fill):
        n = len(mf)
        for i, m in enumerate(mf):
            A(m)
            A.ext(fill[(i * len(fill)) // n:((i + 1) * len(fill)) // n])

    flat = lambda ps: [x for p in ps for x in p]
    pro_rd = [x for x in pro if is_ds(x)]
    pro_sm = [x for x in pro if not is_ds(x)]
    A.ext(conv(0, 2) + flat(late[0:2]) + conv(0, 3))
    A("s_waitcnt lgkmcnt(0)")
    mix(qk0(0, 0, False) + qk0(0, 1, False), conv(1, 2) + conv(2, 2) + conv(3, 2) + flat(late[2:4]))
    mix(qk0(0, 2, False), conv(1, 3) + conv(2, 3) + conv(3, 3))
    A("s_nop 0")
    A.ext(qk0(0, 3, False))
    A.ext(loop_addr())
    A.ext(pro_rd)
    A.ext(flat(late[4:6]))
    for t in range(5):
        Sx = Sreg(t, 0)
        A(f"v_max3_f32 v{vM + t}, v{Sx}, v{Sx + 1}, v{Sx + 2}")
    for t in range(5):
        A(f"v_max_f32 v{vM + t}, v{vM + t}, v{Sreg(t, 0) + 3}")

    def xlane5(Z, op, base, tmp):
        for sw in ("v_permlane32_swap_b32", "v_permlane16_swap_b32"):
            for t in range(5):
                Z(f"v_mov_b32 v{tmp + t}, v{base + t}")
            for t in range(5):
                Z(f"{sw} v{base + t}, v{tmp + t}")
            for t in range(5):
                Z(f"{op} v{base + t}, v{base + t}, v{tmp + t}")

    xlane5(A, "v_max_f32", vM, vM + 8)
    for t in range(5):
        for i in range(4):
            A(f"v_sub_f32 v{NEG + 4 * t + i}, 0, v{vM + t}")
    subs = [f"v_sub_f32 v{Sreg(t, 0) + i}, v{Sreg(t, 0) + i}, v{vM + t}" for t in range(5) for i in range(4)]
    kb0regs = {Sreg(t, 0) + i for t in range(5) for i in range(4)}

    def srcs(x):
        return [int(z.strip()[1:]) for z in x.split(None, 1)[1].split(",")[1:]]
    sm0 = [x for x in pro_sm if all(r in kb0regs for r in srcs(x))]
    sm1 = [x for x in pro_sm if x not in sm0]

    def safe(lst):
        o, prev = [], ""
        for x in lst:
            if prev.startswith("v_exp") and x.startswith("v_cvt"):
                o.append("s_nop 0")
            o.append(x)
            prev = x
        return o
    A.ext(flat(late[6:8]))
    mix(flat([qk0(1, kk, True) for kk in range(4)]), subs + safe(sm0))
    A("s_nop 3")
    A.label("L1_presm")
    A.ext(safe(sm1))
    A("s_waitcnt lgkmcnt(0)")
    stamp(A)
    A.raw(".p2align 6")
    A.label("L1_loop")
    if OPT["diag"]:
        A(f"s_mov_b32 m0, s41")
        A("s_sub_u32 s41, s41, 1")
        A("v_writelane_b32 v250, s90, m0")
        A("v_writelane_b32 v251, s96, m0")
        A("s_memtime s[90:91]")
        A("s_memrealtime s[96:97]")
    A.ext(body)
    A("s_branch L1_loop")
    errs = hazard.check(body + body, "loop")
    side_block(A)
    A.label("L1_tail")
    T0 = len(A.l)
    stamp(A)
    tail_rd = [x for x in tail if is_ds(x)]
    tail_sm = [x for x in tail if not is_ds(x)]
    A.ext(tail_rd)
    A.ext(safe(tail_sm))
    A(f"s_add_u32 s{sT0}, s{sWOF}, {TS * HS}")
    A(f"v_lshl_add_u32 v{t0}, v0, 4, s{sT0}")
    A("s_waitcnt vmcnt(0) lgkmcnt(0)")
    ones = [f"{MF} {ar(LA + 4 * t, 4)}, {ar(ONES, 4)}, {vr(Sreg(t, 1), 4)}, {ar(LA + 4 * t, 4)}" for t in range(4)]

    def pv(t):
        return [f"{MF} {ar(OA + 32 * t + 4 * dt, 4)}, {ar(RING + 32 + 4 * dt, 4)}, {vr(Sreg(t, 1), 4)}, {ar(OA + 32 * t + 4 * dt, 4)}"
                for dt in range(8)]
    wr = [f"ds_write_b128 v{t0}, {ar(OA + 128 + 4 * i, 4)} offset:{(i // 4) * HS + (i % 4) * 1024}" for i in range(8)]
    misc = [f"v_lshlrev_b32 v{t2}, 4, v0",
            f"s_mul_i32 s{sOO}, s{sB}, 18", f"s_lshl_b32 s{sT0}, s{sW}, 2", f"s_add_u32 s{sT0}, s{sT0}, s{sOO}",
            f"s_lshl_b32 s{sT0}, s{sT0}, 5", f"s_add_u32 s{sT0}, s{sT0}, s{sH}", f"s_lshl_b32 s{sT0}, s{sT0}, 12",
            f"s_lshl_b32 s{sT1}, s{sW}, 10", f"s_add_u32 s{sT1}, s{sT1}, {NS * HS}", f"v_lshl_add_u32 v{t1}, v0, 4, s{sT1}"]
    mix(ones + pv(0), wr + misc)
    Lr = 114
    st = [f"v_accvgpr_read_b32 v{Lr + t}, a{LA + 4 * t}" for t in range(5)]
    st += [f"v_add_f32 v128, v{Lr}, v{Lr + 1}", f"v_add_f32 v129, v{Lr + 2}, v{Lr + 3}", f"v_add_f32 v128, v128, v{Lr + 4}",
           f"v_add_f32 v128, v128, v129", f"v_mov_b32 v129, {f32bits(2.0 ** OPT['thr']):#x}", f"v_cmp_nlt_f32 vcc, v128, v129",
           f"v_mov_b32 v132, v{Lr + 4}", f"v_mov_b32 v133, v{NEG + 16}", f"v_mov_b32 v135, 0", f"v_cndmask_b32 v134, 0, 1, vcc",
           f"ds_write_b128 v{t1}, {vr(132, 4)}"]
    st += [f"v_rcp_f32 v{120 + 2 * t}, v{Lr + t}" for t in range(4)]
    mix(pv(1), st)
    ofl = FLAGS[OPT["ostflag"]]

    def norm_store(t, tmp, pk):
        o = []
        if t:
            o.append(f"s_add_u32 s{sT0}, s{sT0}, {32 * 4096}")
        for s in range(4):
            b = tmp + 8 * s
            for e in range(8):
                o.append(f"v_accvgpr_read_b32 v{b + e}, a{OA + 32 * t + 8 * s + e}")
            if pk:
                for e in range(4):
                    o.append(f"v_pk_mul_f32 {vr(b + 2 * e, 2)}, {vr(b + 2 * e, 2)}, {vr(120 + 2 * t, 2)} op_sel_hi:[1,0]")
            else:
                for e in range(8):
                    o.append(f"v_mul_f32 v{b + e}, v{120 + 2 * t}, v{b + e}")
            for e in range(4):
                o.append(f"v_cvt_pk_bf16_f32 v{b + e}, v{b + 2 * e}, v{b + 2 * e + 1}")
            of = f" offset:{s * 1024}" if s else ""
            o.append(f"buffer_store_dwordx4 {vr(b, 4)}, v{t2}, {srd(SRD_O)}, s{sT0} offen{of}{ofl}"
                     + (f" | buffer_store_dwordx4 {vr(b, 4)}, v{t2}, {srd(SRD_O)}, s{sT0} offen{of}" if OPT["dst"] else ""))
        return o

    n0 = norm_store(0, 16, False)
    mix(pv(2) + pv(3), n0[:42])
    A.ext(norm_store(0, 16, True)[34:])
    A("s_waitcnt lgkmcnt(0)")
    A("s_barrier")
    A(f"s_and_b32 s{sT1}, s{sW}, 2")
    A(f"s_mul_i32 s{sT1}, s{sT1}, {4 * BLK}")
    A(f"s_mul_i32 s{sT2}, s{sP}, {HS}")
    A(f"s_add_u32 s{sT1}, s{sT1}, s{sT2}")
    A(f"s_add_u32 s{sT1}, s{sT1}, {TS * HS}")
    A(f"v_lshl_add_u32 v{t0}, v0, 4, s{sT1}")
    A(f"s_and_b32 s{sT1}, s{sW}, 2")
    A(f"s_lshl_b32 s{sT1}, s{sT1}, 10")
    A(f"v_lshl_add_u32 v{t1}, v0, 4, s{sT1}")
    A(f"v_xor_b32 v1, 2048, v{t1}")
    A(f"v_add_u32 v{t1}, {NS * HS}, v{t1}")
    A(f"v_add_u32 v1, {NS * HS}, v1")
    A(f"ds_read_b128 {vr(88, 4)}, v{t1}")
    A(f"ds_read_b128 {vr(92, 4)}, v{t1} offset:1024")
    A(f"ds_read_b128 {vr(96, 4)}, v1")
    A(f"ds_read_b128 {vr(100, 4)}, v1 offset:1024")
    for w in range(2):
        for q in range(4):
            A(f"ds_read_b128 {vr(128 + 16 * w + 4 * q, 4)}, v{t0} offset:{w * 4 * BLK + q * 1024}")
    A.ext(norm_store(1, 48, True))
    A("s_waitcnt lgkmcnt(0)")
    A("v_or3_b32 v104, v90, v94, v98")
    A("v_or_b32 v104, v104, v102")
    A("v_cmp_ne_u32 vcc, 0, v104")
    A("v_min_f32 v105, v89, v93")
    A("v_sub_f32 v89, v105, v89")
    A("v_sub_f32 v93, v105, v93")
    A("v_exp_f32 v89, v89")
    A("v_exp_f32 v93, v93")
    A(f"s_cmp_lg_u64 vcc, 0")
    A(f"s_cselect_b32 s{sT1}, 1, 0")
    A(f"s_cmp_gt_u32 s{sT1}, s{sREDO}")
    A("s_cbranch_scc1 L1_redo")
    A("v_mul_f32 v105, v88, v89")
    A("v_fmac_f32 v105, v92, v93")
    A("v_rcp_f32 v105, v105")
    A(f"s_lshr_b32 s{sT1}, s{sW}, 1")
    A(f"s_add_u32 s{sT1}, s{sT1}, s{sOO}")
    A(f"s_add_u32 s{sT1}, s{sT1}, 16")
    A(f"s_lshl_b32 s{sT1}, s{sT1}, 5")
    A(f"s_add_u32 s{sT1}, s{sT1}, s{sH}")
    A(f"s_lshl_b32 s{sT1}, s{sT1}, 12")
    A(f"s_lshl_b32 s{sT2}, s{sP}, 11")
    A(f"s_add_u32 s{sT1}, s{sT1}, s{sT2}")
    A("v_mul_f32 v89, v105, v89")
    A("v_mul_f32 v93, v105, v93")
    for e in range(16):
        A(f"v_mul_f32 v{128 + e}, v89, v{128 + e}")
    for e in range(16):
        A(f"v_fmac_f32 v{128 + e}, v93, v{144 + e}")
    for e in range(8):
        A(f"v_cvt_pk_bf16_f32 v{144 + e}, v{128 + 2 * e}, v{128 + 2 * e + 1}")
    for q in range(2):
        of = " offset:1024" if q else ""
        A(f"buffer_store_dwordx4 {vr(144 + 4 * q, 4)}, v{t2}, {srd(SRD_O)}, s{sT1} offen{of}{ofl}")
        if OPT["dst"]:
            A(f"buffer_store_dwordx4 {vr(144 + 4 * q, 4)}, v{t2}, {srd(SRD_O)}, s{sT1} offen{of}")
    rest = norm_store(2, 16, True) + norm_store(3, 48, True)
    if OPT["fuse"]:
        p3(A, rest)
    else:
        A.ext(rest)
    gx = [i for i, x in enumerate(body) if "L1_side" in x][0]
    errs += hazard.check(body[:gx + 1] + A.l[T0:T0 + 60], "exit")
    if OPT["diag"]:
        if not OPT["fuse"]:
            stamp(A)
        A("s_waitcnt vmcnt(0)")
        stamp(A)
        A("s_memrealtime s[94:95]")
        A("s_waitcnt lgkmcnt(0)")
        A("v_writelane_b32 v250, s92, 62")
        A("v_writelane_b32 v250, s94, 63")
        for i in range(stamp_n[0]):
            A(f"v_writelane_b32 v250, s{sST + 2 * i}, {50 + i}")
        A("v_writelane_b32 v250, s90, 32")
        A("v_writelane_b32 v251, s96, 32")
        A(f"s_lshl_b32 s{sT0}, s2, 2")
        A(f"s_add_u32 s{sT0}, s{sT0}, s{sW}")
        A(f"s_lshl_b32 s{sT0}, s{sT0}, 8")
        A(f"s_add_u32 s{sT0}, s{sT0}, {DIAG_OFF}")
        A(f"v_lshlrev_b32 v{t0}, 2, v0")
        A(f"buffer_store_dword v250, v{t0}, {srd(SRD_O)}, s{sT0} offen")
        A(f"s_add_u32 s{sT0}, s{sT0}, {1 << 19}")
        A(f"buffer_store_dword v251, v{t0}, {srd(SRD_O)}, s{sT0} offen")
        if OPT["fuse"]:
            for i in range(3):
                A(f"v_writelane_b32 v251, s{78 + 2 * i}, {i}")
            A("v_writelane_b32 v251, s94, 3")
            A(f"s_add_u32 s{sT0}, s{sT0}, {1 << 19}")
            A(f"buffer_store_dword v251, v{t0}, {srd(SRD_O)}, s{sT0} offen")
            if OPT["dbg"]:
                for ln, src in ((4, 30), (5, 22), (6, 14), (7, 32)):
                    A(f"v_readlane_b32 s{sT1}, v251, {src}")
                    A("s_nop 3")
                    A(f"v_writelane_b32 v251, s{sT1}, {ln}")
                A("v_subrev_u32 v251, s92, v251")
                A(f"v_lshlrev_b32 v{t0}, 3, v0")
                A("s_cmp_ge_u32 s2, 216")
                A("s_cbranch_scc1 L1_end")
                A("s_mov_b64 exec, 0xff")
                A(f"buffer_atomic_umax v251, v{t0}, {srd(SRD_W)}, 0 offen offset:4")
    A.label("L1_end")
    A("s_endpgm")
    A.label("L1_redo")
    A(f"s_mov_b32 s{sREDO}, 1")
    A("s_waitcnt vmcnt(0) lgkmcnt(0)")
    A("s_barrier")
    for n in range(2 * DD):
        for p in P(n):
            A.ext(p)
    for t in range(5):
        A(f"v_mov_b32 v{vM + t}, 0xff800000")
    A(f"v_lshlrev_b32 v{t0}, 8, v{i16}")
    A(f"v_lshl_add_u32 v{t0}, v{g4}, 4, v{t0}")
    A(f"s_lshl_b32 s{sT1}, s{sP}, 7")
    A(f"v_add_u32 v{t0}, s{sT1}, v{t0}")
    A(f"v_xor_b32 v{t1}, 128, v{t0}")
    A(f"s_mov_b32 s{sT1}, 0")
    A.label("L1_mx")
    for kk in range(4):
        o = f" offset:64" if kk & 1 else ""
        A(f"buffer_load_dwordx4 {vr(136 + 4 * kk, 4)}, v{t0 + (kk >> 1)}, {srd(SRD_K)}, s{sT1} offen{o}")
    A("s_waitcnt vmcnt(0)")
    for kk in range(4):
        for t in range(5):
            C = "0" if kk == 0 else vr(16 + 4 * t, 4)
            A(f"{MF} {vr(16 + 4 * t, 4)}, {vr(136 + 4 * kk, 4)}, {vr(QV + 16 * t + 4 * kk, 4)}, {C}")
    A("s_nop 7")
    for t in range(5):
        A(f"v_max3_f32 v{vM + t}, v{vM + t}, v{16 + 4 * t}, v{17 + 4 * t}")
        A(f"v_max3_f32 v{vM + t}, v{vM + t}, v{18 + 4 * t}, v{19 + 4 * t}")
    A(f"s_add_u32 s{sT1}, s{sT1}, 4096")
    A(f"s_cmp_lt_u32 s{sT1}, {4096 if OPT['twice'] else 524288}")
    A("s_cbranch_scc1 L1_mx")
    xlane5(A, "v_max_f32", vM, vM + 8)
    for t in range(5):
        for i in range(4):
            A(f"v_sub_f32 v{NEG + 4 * t + i}, 0, v{vM + t}")
    for i in range(180):
        A(f"v_accvgpr_write_b32 a{i}, 0")
    A.ext(loop_addr())
    loop_scalars(A)
    A("s_barrier")
    A.ext(k0reads)
    A("s_waitcnt lgkmcnt(0)")
    for kb in range(2):
        for kk in range(4):
            A.ext(qk0(kb, kk, True))
    A.ext(pro_rd)
    A("s_nop 7")
    A.ext(safe(sm0))
    A("s_branch L1_presm")
    return errs


def k2(A):
    DEP = 4
    SRD_A, SRD_WO, SRD_OUT = 4, 8, 12
    sW, sMT, sNT, sT0, sT1, sAS, sBS, sLD, sCNT = 16, 17, 18, 19, 20, 21, 22, 23, 24
    vA, vBD, vBR, t0, t1 = 2, 8, 9, 13, 14
    ACC2, ORING, WF = 16, 112, 208
    A.raw(".p2align 8")
    A.raw(".globl oproj_kernel")
    A.raw(".type oproj_kernel,@function")
    A.label("oproj_kernel")
    A(f"s_cmp_ge_u32 s2, {OPT['k2grid']}")
    A("s_cbranch_scc1 L2_end")
    A("s_load_dwordx4 s[32:35], s[0:1], 32")
    A("s_load_dwordx2 s[36:37], s[0:1], 56")
    if OPT["diag"]:
        A("s_memrealtime s[60:61]")
    A("v_lshrrev_b32 v1, 6, v0")
    A("v_and_b32 v0, 63, v0")
    A(f"v_readfirstlane_b32 s{sW}, v1")
    A("s_and_b32 s25, s2, 7")
    A("s_lshr_b32 s26, s2, 3")
    A(f"s_mul_i32 s{sNT}, s26, 43")
    A(f"s_lshr_b32 s{sNT}, s{sNT}, 7")
    A(f"s_mul_i32 s{sT0}, s{sNT}, 3")
    A(f"s_sub_u32 s{sT0}, s26, s{sT0}")
    A(f"s_mul_i32 s{sMT}, s25, 3")
    A(f"s_add_u32 s{sMT}, s{sMT}, s{sT0}")
    A(f"v_lshlrev_b32 v{vA}, 4, v0")
    for i in range(1, 6):
        A(f"v_add_u32 v{vA + i}, {i * 131072}, v{vA}")
    A(f"v_lshrrev_b32 v{t0}, 3, v0")
    A(f"v_mul_u32_u24 v{vBD}, 1152, v{t0}")
    A(f"v_lshrrev_b32 v{t0}, 4, v0")
    A(f"v_lshlrev_b32 v{t0}, 1, v{t0}")
    A(f"v_and_b32 v{t1}, 7, v0")
    A(f"v_xor_b32 v{t0}, v{t0}, v{t1}")
    A(f"v_lshl_add_u32 v{vBD}, v{t0}, 4, v{vBD}")
    A(f"v_lshrrev_b32 v{t0}, 2, v0")
    A(f"v_lshlrev_b32 v{vBR}, 7, v{t0}")
    A(f"v_bfe_u32 v{t0}, v0, 3, 2")
    A(f"v_lshl_add_u32 v{vBR}, v{t0}, 5, v{vBR}")
    A(f"v_and_b32 v{t0}, 3, v0")
    A(f"v_lshl_add_u32 v{vBR}, v{t0}, 3, v{vBR}")
    A(f"s_mul_i32 s{sLD}, s{sW}, {DEP * 4096}")
    A(f"v_add_u32 v{vBR}, s{sLD}, v{vBR}")
    for n in range(1, 4):
        A(f"v_xor_b32 v{vBR + n}, {32 * n}, v{vBR}")
    A("s_waitcnt lgkmcnt(0)")
    A(f"s_mov_b32 s{SRD_A}, s36")
    A(f"s_mov_b32 s{SRD_A + 1}, s37")
    A(f"s_mov_b32 s{SRD_A + 2}, {(DIAG_OFF + (2 << 20)) if OPT['diag'] else WS_O_BYTES}")
    A(f"s_mov_b32 s{SRD_A + 3}, 0x20000")
    A(f"s_mov_b32 s{SRD_WO}, s32")
    A(f"s_mov_b32 s{SRD_WO + 1}, s33")
    A(f"s_mov_b32 s{SRD_WO + 2}, {4096 * 1152}")
    A(f"s_mov_b32 s{SRD_WO + 3}, 0x20000")
    A(f"s_mov_b32 s{SRD_OUT}, s34")
    A(f"s_mov_b32 s{SRD_OUT + 1}, s35")
    A(f"s_mov_b32 s{SRD_OUT + 2}, {2304 * 1152}")
    A(f"s_mov_b32 s{SRD_OUT + 3}, 0x20000")
    A(f"s_mul_i32 s{sAS}, s{sMT}, 786432")
    A(f"s_lshl_b32 s{sT0}, s{sW}, 15")
    A(f"s_add_u32 s{sAS}, s{sAS}, s{sT0}")
    A(f"s_mul_i32 s{sBS}, s{sW}, {1024 * 1152}")
    A(f"s_lshl_b32 s{sT0}, s{sNT}, 7")
    A(f"s_add_u32 s{sBS}, s{sBS}, s{sT0}")
    WN = OPT["k2rot"]
    sA0, sB0, sPH, sI = 27, 28, 29, 30

    def blk_addr():
        return [f"s_add_u32 s{sT1}, s{sI}, s{sPH}", f"s_and_b32 s{sT1}, s{sT1}, {WN - 1}",
                f"s_and_b32 s31, s{sI}, {(~(WN - 1)) & 0xff}", f"s_or_b32 s{sT1}, s{sT1}, s31",
                f"s_mul_i32 s{sBS}, s{sT1}, {DEP * 32 * 1152}", f"s_add_u32 s{sBS}, s{sBS}, s{sB0}",
                f"s_lshl_b32 s{sAS}, s{sT1}, 12", f"s_add_u32 s{sAS}, s{sAS}, s{sA0}", f"s_add_u32 s{sI}, s{sI}, 1"]
    A(f"s_mov_b32 s{sA0}, s{sAS}")
    A(f"s_mov_b32 s{sB0}, s{sBS}")
    A(f"s_mul_i32 s{sPH}, s{sMT}, {OPT['k2mul']}")
    A(f"s_add_u32 s{sPH}, s{sPH}, s{sNT}")
    A(f"s_mov_b32 s{sI}, 0")
    A.ext(blk_addr())

    def loads(d):
        o = []
        for i in range(4):
            o.append([f"s_add_u32 m0, s{sLD}, {d * 4096 + i * 1024}",
                      f"s_add_u32 s{sT0}, s{sBS}, {(32 * d + 8 * i) * 1152}",
                      f"buffer_load_dwordx4 v{vBD}, {srd(SRD_WO)}, s{sT0} offen lds"])
        off = f" offset:{d * 1024}" if d else ""
        for i in range(6):
            o.append([f"buffer_load_dwordx4 {vr(ORING + 24 * d + 4 * i, 4)}, v{vA + i}, {srd(SRD_A)}, s{sAS} offen{off}"])
        return o

    def wreads(d):
        b = WF + 16 * (d % 2)
        return [f"ds_read_b64_tr_b16 {vr(b + 4 * n + 2 * e, 2)}, v{vBR + n} offset:{d * 4096 + e * 2048}"
                for n in range(4) for e in range(2)]

    zi = 0
    for d in range(DEP - 1):
        for g in loads(d):
            A.ext(g)
            for _ in range(4):
                if zi < 96:
                    A(f"v_mov_b32 v{ACC2 + zi}, 0")
                    zi += 1
    assert zi == 96
    A(f"s_mov_b32 s{sCNT}, {32 // DEP}")
    A(f"s_waitcnt vmcnt({10 * (DEP - 2) + 6})")
    if OPT["diag"]:
        A("s_memrealtime s[62:63]")
    A.ext(wreads(0))
    A.label("L2_loop")
    body = []
    Bd = body.append
    for d in range(DEP):
        Bd(f"s_waitcnt vmcnt({10 * (DEP - 3) + 6})")
        body += wreads((d + 1) % DEP)
        Bd("s_waitcnt lgkmcnt(8)")
        b = WF + 16 * (d % 2)
        ld = loads((d - 1) % DEP)
        k = 0
        for n in range(4):
            for i in range(6):
                acc = vr(ACC2 + 4 * (6 * n + i), 4)
                Bd(f"{MF} {acc}, {vr(b + 4 * n, 4)}, {vr(ORING + 24 * d + 4 * i, 4)}, {acc}")
                k += 1
                if ld and k % 2 == 0:
                    body += ld.pop(0)
        if d == 0:
            body += blk_addr()
            Bd(f"s_cmp_eq_u32 s{sCNT}, 1")
            Bd(f"s_cselect_b32 s{sAS}, 0x40000000, s{sAS}")
            Bd(f"s_cselect_b32 s{sBS}, 0x40000000, s{sBS}")
    Bd(f"s_sub_u32 s{sCNT}, s{sCNT}, 1")
    Bd(f"s_cmp_lg_u32 s{sCNT}, 0")
    A.ext(body)
    A("s_cbranch_scc1 L2_loop")
    errs = hazard.check(body + body, "k2loop")
    if OPT["diag"]:
        A("s_memrealtime s[64:65]")
    A("s_waitcnt vmcnt(0) lgkmcnt(0)")
    A("s_barrier")
    A(f"s_mul_i32 s{sT0}, s{sW}, 24576")
    A(f"v_lshl_add_u32 v{t0}, v0, 4, s{sT0}")
    A("s_nop 7")
    for q in range(24):
        A(f"ds_write_b128 v{t0}, {vr(ACC2 + 4 * q, 4)} offset:{q * 1024}")
    A(f"v_and_b32 v{t0}, 15, v0")
    A(f"v_lshlrev_b32 v{t0}, 4, v{t0}")
    A(f"v_bfe_u32 v{t1}, v0, 4, 1")
    A(f"v_lshl_add_u32 v{t0}, v{t1}, 9, v{t0}")
    A(f"v_lshrrev_b32 v{t1}, 5, v0")
    A(f"v_lshl_add_u32 v{t0}, v{t1}, 10, v{t0}")
    A(f"s_mul_i32 s{sT0}, s{sW}, {6 * 1024}")
    A(f"v_add_u32 v{t0}, s{sT0}, v{t0}")
    A(f"v_add_u32 v{t1}, 49152, v{t0}")
    A("s_waitcnt lgkmcnt(0)")
    A("s_barrier")
    for w in range(4):
        for x in range(3):
            for q in range(2):
                A(f"ds_read_b128 {vr(ORING + 24 * w + 8 * x + 4 * q, 4)}, v{t0 if w < 2 else t1} offset:{(w % 2) * 24576 + x * 2048 + q * 256}")
        if w % 2 == 1:
            A("s_waitcnt lgkmcnt(0)")
    for w in range(1, 4):
        for e in range(24):
            A(f"v_add_f32 v{ORING + e}, v{ORING + e}, v{ORING + 24 * w + e}")
    for e in range(12):
        A(f"v_cvt_pk_bf16_f32 v{ACC2 + e}, v{ORING + 2 * e}, v{ORING + 2 * e + 1}")
    A(f"v_and_b32 v{t0}, 15, v0")
    A(f"v_lshrrev_b32 v{t1}, 5, v0")
    A(f"v_lshl_add_u32 v{t0}, v{t1}, 4, v{t0}")
    A(f"v_mul_u32_u24 v{t0}, 1152, v{t0}")
    A(f"v_bfe_u32 v{t1}, v0, 4, 1")
    A(f"v_lshl_add_u32 v{t0}, v{t1}, 4, v{t0}")
    A(f"s_mul_i32 s{sAS}, s{sMT}, {96 * 1152}")
    A(f"s_lshl_b32 s{sT0}, s{sNT}, 7")
    A(f"s_add_u32 s{sAS}, s{sAS}, s{sT0}")
    A(f"s_lshl_b32 s{sT0}, s{sW}, 5")
    A(f"s_add_u32 s{sAS}, s{sAS}, s{sT0}")
    for x in range(3):
        A(f"buffer_store_dwordx4 {vr(ACC2 + 4 * x, 4)}, v{t0}, {srd(SRD_OUT)}, s{sAS} offen")
        A(f"s_add_u32 s{sAS}, s{sAS}, {32 * 1152}")
    if OPT["diag"]:
        A("s_waitcnt vmcnt(0)")
        A("s_memrealtime s[66:67]")
        A("s_waitcnt lgkmcnt(0)")
        for i in range(4):
            A(f"v_writelane_b32 v250, s{60 + 2 * i}, {i}")
        A(f"s_lshl_b32 s{sT0}, s2, 2")
        A(f"s_add_u32 s{sT0}, s{sT0}, s{sW}")
        A(f"s_lshl_b32 s{sT0}, s{sT0}, 8")
        A(f"s_add_u32 s{sT0}, s{sT0}, {DIAG_OFF + (1 << 20)}")
        A(f"v_lshlrev_b32 v{t0}, 2, v0")
        A(f"buffer_store_dword v250, v{t0}, {srd(SRD_A)}, s{sT0} offen")
    A.label("L2_end")
    A("s_endpgm")
    return errs


def desc(name, vg, acc, sg=102):
    return f""".p2align 6
.amdhsa_kernel {name}
  .amdhsa_next_free_vgpr {vg}
  .amdhsa_next_free_sgpr {sg}
  .amdhsa_accum_offset {acc}
  .amdhsa_group_segment_fixed_size 0
  .amdhsa_kernarg_size 64
  .amdhsa_user_sgpr_count 2
  .amdhsa_user_sgpr_kernarg_segment_ptr 1
  .amdhsa_system_sgpr_workgroup_id_x 1
.end_amdhsa_kernel
"""


def main():
    A = Asm()
    e = k1(A)
    if not OPT["fuse"]:
        e += k2(A)
    A.label("L_code_end")
    e += hazard.check(A.l, "linear")
    for x in e:
        print(x, file=sys.stderr)
    hdr = f"""; Fused MHA block (q-proj + attention) and output projection, gfx950. Generated by a script.
; @launch kernel=attn_kernel grid=(256,1,1) block=(256,1,1) lds={LDS1}
{";" if OPT["fuse"] else "; @launch kernel=oproj_kernel grid=(216,1,1) block=(256,1,1) lds=98304"}
.amdgcn_target "amdgcn-amd-amdhsa--gfx950"
.text
.globl attn_kernel
"""
    txt = hdr + "\n".join(A.l) + "\n.section .rodata,\"a\"\n" + desc("attn_kernel", 512, 256) + ("" if OPT["fuse"] else desc("oproj_kernel", 256, 256))
    open(sys.argv[1], "w").write(txt)
    if e and not (OPT["nodma"] or OPT["nomf"]):
        sys.exit(1)


main()
```

```python
import math
import struct
import sys

import hazard

OPT = dict(diag=0, L=6, W=2, xmap=1, nodma=0, nobar=0, kvflag=1, ostflag=2, wopf=2, wsh=8,
           k2grid=216, LQ=6, dmastep=14, thr=40, show=0, qstep=5, up=2, qpflag=0, dbg=0, cpf=1, nph=3, k2rot=1, D=3, pf=0, stg=0, pfa=4, kvs=0, rot=0, k2mul=1, fuse=1, dst=0, DO=4, oflag=2, early=5, l2pf=0, fast=1, wsoff=0, twice=0, nomf=0, pad=0, tlb=2, eord=0, fine=0, wflag=0, p3same=0, chain=1, LG=30, LM=12, SO=4, gB=21, vm2=1, bcap=0)
for a in sys.argv[2:]:
    k, v = a.split("=")
    OPT[k] = int(v)
FLAGS = ['', ' nt', ' sc1', ' sc0 sc1', ' sc1 nt', ' sc0 sc1 nt', ' sc0']

BLK = 1056
HS = 16 * BLK
DD = OPT['D']
NS = 2 * DD + 1
TS = 61 % NS
XB = 1088
WOFF, XEOFF, XOFF = 0, 17408, 21504
WG0 = 4 * XB + OPT["wsh"]
WG1 = 8720
STSZ = 54272
LDS1 = 163840
WS_O_BYTES = 144 * 32 * 4096
DIAG_OFF = 64 << 20


def f32bits(x):
    return struct.unpack("<I", struct.pack("<f", x))[0]


QSCALE = f32bits(128 ** -0.5 * math.log2(math.e))


class Asm:
    def __init__(self):
        self.l = []

    def __call__(self, s):
        if " | buffer_store" in s:
            for x in s.split(" | "):
                self.l.append("    " + x)
        else:
            self.l.append("    " + s)

    def label(self, s):
        self.l.append(s + ":")

    def raw(self, s):
        self.l.append(s)

    def ext(self, lst):
        for s in lst:
            self(s)


def vr(a, n):
    return f"v[{a}:{a + n - 1}]"


def ar(a, n):
    return f"a[{a}:{a + n - 1}]"


def srd(n):
    return f"s[{n}:{n + 3}]"


MF = "v_mfma_f32_16x16x32_bf16"

SRD_X, SRD_W, SRD_K, SRD_V, SRD_O, SRD_P = 4, 8, 12, 16, 20, 84
sW, sP, sB, sH = 24, 25, 27, 28
sXD, sXS, sWD, sWS, sT0, sT1 = 42, 43, 44, 45, 46, 47
sXED, sXES = 48, 55
sCNT = 49
sKD, sVD, sKVS, sKN, sVN = 50, 51, 52, 53, 54
sSC = 56
sT2 = 57
sOUTP = 32
sWP = 30
sG0 = 31
sDV = 3
sOO = 58
sREDO = 59
sST = 60
sWOF = 88
sCX, sCW = 89, 100
sPC = 98
sXSc, sWSc, sXEc = 29, 26, 101

vXD, vXDE, vWD, vCW, vV4 = 2, 4, 5, 6, 8
vQA = 160
ACC = 16
SB = [16, 48]
SE = 80
NEG = 88
QV = 160
vKB, vVB = 240, 244
vK, vV = 108, 112
vM = 120
vDUM = 252
OA, LA, ONES, RING = 0, 160, 180, 192
XF = [184, 204]
WRING = 224


def Sreg(t, par):
    return SE if t == 4 else SB[par] + 8 * t


stamp_n = [0]


def stamp_txt():
    if OPT["diag"] == 1:
        n = stamp_n[0]
        stamp_n[0] += 1
        assert n < 12
        return [f"s_memtime s[{sST + 2 * n}:{sST + 2 * n + 1}]"]
    return []


def stamp(A):
    A.ext(stamp_txt())


def is_ds(x):
    return x.startswith("ds_")


def add_waits(seq, cyclic, W=1, nfr=None):
    rep = 2 if cyclic else 1
    out = []
    issued = 0
    done = 0
    last = {}
    for it in range(rep):
        out = []
        for e in seq:
            if e[0] == "x":
                if is_ds(e[1]):
                    issued += 1
                    if e[2] is not None:
                        last[e[2]] = issued
                if "lgkmcnt(0)" in e[1] or e[1] == "VMW":
                    done = issued
                out.append(e[1])
            else:
                need = 0
                for f in e[2]:
                    if f in last:
                        need = max(need, last[f])
                if need > done:
                    tgt = need
                    for f in e[3] if len(e) > 3 else []:
                        if f in last and last[f] > need - 40:
                            tgt = max(tgt, last[f])
                    n = issued - tgt
                    assert n <= 15, n
                    out.append(f"s_waitcnt lgkmcnt({n})")
                    done = tgt
                if e[1] is not None:
                    out.append(e[1])
    return out


def kv_piece(dst, srdn, i):
    o = f" offset:{i * 1024}" if i else ""
    return [f"s_add_u32 m0, s{dst}, {i * (BLK - 1024)}",
            f"buffer_load_dwordx4 v{vV4}, {srd(srdn)}, s{sKVS} offen{o}{FLAGS[OPT['kvflag']]} lds"]


def item_piece(n, i):
    o = f" offset:{i * 1024}" if i else ""
    return [f"s_add_u32 m0, s{sWOF}, {(n % NS) * HS + i * (BLK - 1024)}",
            (f"s_add_u32 s{sT0}, s{sG0}, {(n // 2) * 16384}" if OPT["rot"] else f"s_mov_b32 s{sT0}, {(n // 2) * 16384}"),
            f"buffer_load_dwordx4 v{vV4}, {srd(SRD_V if n % 2 else SRD_K)}, s{sT0} offen{o}{FLAGS[OPT['kvflag']]} lds"]


def adv(r, tmp=None):
    tmp = sT2 if tmp is None else tmp
    return [f"s_add_u32 s{r}, s{r}, {2 * HS}", f"s_sub_u32 s{tmp}, s{r}, {NS * HS}", f"s_min_u32 s{r}, s{r}, s{tmp}"]


def kread(dst, base, kb, kk):
    return f"ds_read_b128 {dst}, v{base + (kk >> 1)} offset:{kb * 256 + (kk & 1) * 64}"


def build_loop():
    W = OPT["W"]
    NF = 32
    mf = []
    qk_end, pv_first, phase2, step_start = {}, {}, {}, {}
    for j in range(2):
        jn = 1 - j
        step_start[j] = len(mf)
        tiles = range(5) if jn == 0 else range(4)
        for kb in range(2):
            for t in tiles:
                for kk in range(4):
                    f = 16 * j + kb * 4 + kk
                    S = Sreg(t, jn) + 4 * kb
                    C = vr(NEG + 4 * t, 4) if kk == 0 else vr(S, 4)
                    mf.append(dict(t=f"{MF} {vr(S, 4)}, {ar(RING + 4 * (f % 16), 4)}, {vr(QV + 16 * t + 4 * kk, 4)}, {C}", f=f))
                    qk_end[(jn, t, kb)] = len(mf) - 1
        tiles = list(range(5) if j == 0 else range(4))
        phase2[j] = len(mf)
        for dt in range(8):
            f = 16 * j + 8 + dt
            for t in tiles:
                O = ar(OA + 32 * t + 4 * dt, 4)
                mf.append(dict(t=f"{MF} {O}, {ar(RING + 4 * (f % 16), 4)}, {vr(Sreg(t, j), 4)}, {O}", f=f))
                pv_first.setdefault((j, t), len(mf) - 1)
            x = dt - 2
            if 0 <= x < len(tiles):
                Lr = ar(LA + 4 * x, 4)
                mf.append(dict(t=f"{MF} {Lr}, {ar(ONES, 4)}, {vr(Sreg(x, j), 4)}, {Lr}", f=f))
    N = len(mf)
    assert N == 153
    first_use, last_use = {}, {}
    for i, m in enumerate(mf):
        first_use.setdefault(m["f"], i)
        last_use[m["f"]] = i

    def wsz(f):
        return 4 if f % 16 < 8 else W
    cap = [2] * N
    scal = [None] * N
    for f in range(NF):
        if f % wsz(f) == 0:
            scal[(first_use[f] - 1) % N] = ("W", [(f + k) % NF for k in range(wsz(f))])
    scal[N - 2], scal[N - 1] = scal[N - 1], ("B",)
    cap[N - 1] = 0
    gX = step_start[1] - 1
    assert scal[gX - 1] is None and scal[gX - 2] is None
    scal[gX - 1], scal[gX] = scal[gX], ("T", "s_cbranch_scc1 L1_side | L1_back:")
    gS = gX - 2
    gB = OPT["gB"]
    nvm = 8 + (1 if OPT["wopf"] == 2 else 0)
    assert scal[gB - 1] is None and scal[gB] is None
    scal[gB - 1] = ("T", f"s_waitcnt vmcnt({(DD - 2) * nvm})")
    scal[gB] = ("T", "s_barrier")
    scal[gS] = ("T", f"s_sub_u32 s{sCNT}, s{sCNT}, 1")
    cap[gB] = OPT["bcap"]
    ok = [g for g in range(N) if cap[g] == 2]
    eg = []
    for k in range(72):
        want = (k * N) / 72.0
        g = min((x for x in ok if x not in eg), key=lambda x: abs(x - want))
        eg.append(g)
    eg.sort()
    order = [(j, t, kb, r) for j in (0, 1) for kb in range(2) for t in (range(5) if j == 0 else range(4)) for r in range(4)]
    best = None
    for off in range(-72, 72):
        place = {key: eg[(k + off) % 72] + N * ((k + off) // 72) for k, key in enumerate(order)}
        good = True
        for (j, t, kb, r), g in place.items():
            av = qk_end[(j, t, kb)] + 6 - (N if j == 0 else 0)
            if g < av or g > pv_first[(j, t)] - 6:
                good = False
        if good:
            best = (best or []) + [off]
    off = best[min(OPT["SO"], len(best) - 1)]
    place = {key: eg[(k + off) % 72] + N * ((k + off) // 72) for k, key in enumerate(order)}
    for g in eg:
        cap[g] = 0

    def frag_reads(f):
        j, r = divmod(f, 16)
        dst = RING + 4 * (f % 16)
        if r < 8:
            kb, kk = divmod(r, 4)
            return [kread(ar(dst, 4), vK + 2 * (1 - j), kb, kk)]
        dt = r - 8
        return [f"ds_read_b64_tr_b16 {ar(dst + 2 * e, 2)}, v{vV + j} offset:{e * 256 + dt * 32}" for e in range(2)]

    items = []

    def add(name, lo, hi, text, kind=None, chain=None, after=()):
        items.append(dict(n=name, lo=lo, hi=hi, t=text, k=kind, c=chain, a=list(after)))

    for (j, t, kb, r), g in sorted(place.items(), key=lambda z: z[1]):
        if r % 2 == 1:
            S = Sreg(t, j)
            add(f"c{j}{t}{kb}{r}", g + 1, min(g + 14, pv_first[(j, t)] - 3),
                f"v_cvt_pk_bf16_f32 v{S + 2 * kb + r // 2}, v{S + 4 * kb + r - 1}, v{S + 4 * kb + r}", ("cvt", j, t), "cvt")
    LG, LM = OPT["LG"], OPT["LM"]
    for f in range(NF):
        fu = first_use[f - f % wsz(f)]
        lo = max(fu - LG, last_use[(f + 16) % NF] - (N if f < 16 else 0))
        if 16 <= f < 24:
            lo = max(lo, gB + 1)
        if 8 <= f < 16:
            lo = max(lo, 0)
        for e, x in enumerate(frag_reads(f)):
            add(f"r{f}_{e}", lo, fu - LM, x, ("rd", f), "rd")
    add("k1a", 0, 100, f"v_add_u32 v{vK + 2}, s{sDV}, v{vK}", "k1", None, ["r5_0"])
    add("k1b", 0, 100, f"v_add_u32 v{vK + 3}, s{sDV}, v{vK + 1}", "k1", None, ["r7_0"])
    add("v0", 0, 120, f"v_add_u32 v{vV}, s{sVN}, v{vVB}", "v0", None, ["r15_1"])
    add("v1", 0, N + 40, f"v_add_u32 v{vV + 1}, s{sDV}, v{vV}", "v1", None, ["r31_1", "v0"])
    st = OPT["dmastep"]
    g = gB + 1
    prevd = None
    for nm, dst, srdn in (("V", sVD, SRD_V), ("K", sKD, SRD_K)):
        for i in range(4):
            pc = kv_piece(dst, srdn, i)
            add(f"m{nm}{i}", g, g + 10, pc[0], "m0", "dma", [prevd] if prevd else [])
            prevd = f"d{nm}{i}"
            add(f"d{nm}{i}", g + 1, g + 12, pc[1], "dma", "dma")
            g += st
    add("svd", 0, 140, f"s_add_u32 s{sVD}, s{sKN}, s{sWOF}", None, "ak", ["dV3"])
    for i, x in enumerate(adv(sKN)):
        add(f"ak{i}", 0, 142 + i, x, None, "ak")
    add("k0a", 0, 148, f"v_add_u32 v{vK}, s{sKN}, v{vKB}", None, None, ["ak2", "r21_0", "k1a"])
    add("k0b", 0, 148, f"v_add_u32 v{vK + 1}, s{sKN}, v{vKB + 1}", None, None, ["ak2", "r23_0", "k1b"])
    for i, x in enumerate(adv(sVN, sT1)):
        add(f"av{i}", 0, 144 + i, x, None, "av", ["v0"])
    for i, x in enumerate(adv(sKD, sT0)):
        add(f"ad{i}", 0, 148 + i, x, None, "ad", ["dK3"])
    add("kvs", 0, 151, f"s_add_u32 s{sKVS}, s{sKVS}, 16384", None, None, ["dK3"])
    if OPT["wopf"] == 2:
        add("wp", gB + 6, 140, f"buffer_load_dword v{vDUM}, v7, {srd(SRD_P)}, s{sWP} offen", None, "wp")
        add("wpa", 0, 150, f"s_add_u32 s{sWP}, s{sWP}, 160", None, "wp", ["wp"])
    NP = 5
    pend = []
    for p in range(NP):
        for i, x in enumerate(items):
            pend.append(dict(x, p=p, i=i, lo=x["lo"] + p * N, hi=x["hi"] + p * N))
    chains = {}
    for x in pend:
        chains.setdefault(x["c"] or ("solo", x["n"]), []).append(x)
    at = {}
    out = {}
    for g in range(-N, (NP + 1) * N):
        free = cap[g % N]
        sfree = scal[g % N] is None
        while free or sfree:
            cands = []
            for c, q in chains.items():
                if not q:
                    continue
                x = q[0]
                if x["lo"] > g:
                    continue
                if any((a_, x["p"]) not in at for a_ in x["a"]):
                    continue
                if x["k"] == "dma" and at[("m" + x["n"][1:], x["p"])] == g:
                    continue
                if x["t"].startswith("s_") and (gS <= g % N <= gX or not sfree):
                    continue
                if not x["t"].startswith("s_") and not free:
                    continue
                if any(at[(a_, x["p"])] == g for a_ in x["a"]):
                    continue
                if x["t"].startswith("buffer") and (g % N == gB - 1 or free < 2):
                    continue
                if x["k"] == "m0" and gS - 3 <= g % N <= gX:
                    continue
                cands.append(x)
            if not cands:
                break
            x = min(cands, key=lambda x: (0 if x["t"].startswith("buffer") else 1, x["hi"], x["i"]))
            chains[x["c"] or ("solo", x["n"])].pop(0)
            at[(x["n"], x["p"])] = g
            out.setdefault(g, []).append(x)
            if x["t"].startswith("s_"):
                sfree = False
            else:
                free -= (2 if (x["t"].startswith("buffer") and OPT["vm2"] and free == 2) else 1)
    for x in items:
        assert at[(x["n"], 2)] - 2 * N == at[(x["n"], 3)] - 3 * N, ("not periodic", x)
        assert at[(x["n"], 2)] - 2 * N <= x["hi"], ("late", x, at[(x["n"], 2)] - 2 * N)
    rel = {x["n"]: at[(x["n"], 2)] - 2 * N for x in items}
    for i in range(4):
        for nm in "VK":
            assert not (rel[f"m{nm}{i}"] < gX <= rel[f"d{nm}{i}"])
    assert rel["k1a"] < rel["r0_0"] + N and rel["k1b"] < rel["r2_0"] + N
    assert rel["k0a"] < rel["r16_0"] + N and rel["k0b"] < rel["r18_0"] + N
    assert rel["v0"] < rel["r8_0"] + N and rel["v1"] < rel["r24_0"] + N and rel["v1"] < rel["v0"] + N
    assert last_use[7] < gB + 16 and first_use[4] <= gB
    assert rel["v1"] < N, "v1 must stay inside the period (prologue sets it)"
    gaps = [[] for _ in range(N)]
    cls = lambda t: 0 if t.startswith("s_") else 1 if t.startswith(("ds_", "buffer")) else 2
    for g in range(N):
        for x in sorted(out.get(2 * N + g, []), key=lambda x: cls(x["t"])):
            gaps[g].append((x["t"], "n" if x["p"] == 3 else "", x["k"]))
            assert x["p"] in (2, 3), x
    for (j, t, kb, r), g in place.items():
        S = Sreg(t, j) + 4 * kb + r
        gaps[g % N].append((f"v_exp_f32 v{S}, v{S}", "n" if g < 0 else "", ("sm", j)))
    seq, pro, tail = [], [], []
    for i, m in enumerate(mf):
        seq.append(("m", m["t"], [m["f"]]))
        if scal[i] and scal[i][0] == "W":
            seq.append(("m", None, scal[i][1]))
        elif scal[i] and scal[i][0] == "T":
            seq.append(("x", scal[i][1], None))
        for x in gaps[i]:
            isrd = isinstance(x[2], tuple) and x[2][0] == "rd"
            seq.append(("x", x[0], x[2][1] if isrd else None))
            if x[1] == "n":
                assert isinstance(x[2], tuple), x
                pro.append(x[0])
            if i >= gX and x[1] != "n" and isinstance(x[2], tuple):
                if (x[2][0] in ("sm", "cvt") and x[2][1] == 1) or (isrd and x[2][1] >= 24):
                    tail.append(x[0])
    body = add_waits(seq, True)
    body = [y for x in body for y in x.split(" | ")]
    if OPT["show"]:
        print("gaps:", "".join("E" if any(y[0].startswith("v_exp") for y in g_) else str(len(g_)) for g_ in gaps), file=sys.stderr)
        print("instr", len(body), "waits", sum("lgkmcnt" in x for x in body), "offs", best, "dma", [rel[f"d{n}{i}"] for n in "VK" for i in range(4)],
              "minlead", min(first_use[f - f % wsz(f)] - rel[f"r{f}_{1 if f % 16 >= 8 else 0}"] for f in range(NF)),
              "pro", len(pro), "tail", len(tail), file=sys.stderr)

    def keep(x):
        if OPT["nodma"] and (x.startswith("buffer_load") or x.startswith("s_add_u32 m0") or "vmcnt" in x):
            return False
        if OPT["nobar"] and x.startswith("s_barrier"):
            return False
        return True
    return [x for x in body if keep(x)], pro, tail


def cursor(r):
    return [f"s_add_u32 s{r}, s{r}, 128", f"s_sub_u32 s{sT2}, s{r}, 1152", f"s_min_u32 s{r}, s{r}, s{sT2}"]


def x_pieces(c):
    st = STG[c] * STSZ
    p = []
    for i in range(8):
        pre = [f"s_add_u32 s{sXSc}, s{sXS}, s{sCX}"] + cursor(sCX) if i == 0 else []
        p.append(pre + [f"s_add_u32 m0, s{sXD}, {st + i * 1024}",
                        (f"s_add_u32 s{sT0}, s{sXSc}, {i * 9216}" if i else "s_nop 0"),
                        f"buffer_load_dwordx4 v{vXD + (i & 1)}, {srd(SRD_X)}, s{sT0 if i else sXSc} offen{FLAGS[OPT['qpflag']]} lds"])
    return p


def wg_pieces(c):
    st = STG[c] * STSZ
    p = []
    for r in range(4):
        pre = [f"s_lshl_b32 s{sWSc}, s{sCW}, 12", f"s_add_u32 s{sWSc}, s{sWSc}, s{sWS}",
               f"s_add_u32 s{sXEc}, s{sXES}, s{sCW}"] + cursor(sCW) if r == 0 else []
        p.append(pre + [f"s_add_u32 m0, s{sWD}, {st + WOFF + r * XB}",
                        (f"s_add_u32 s{sT0}, s{sWSc}, {r * 8192}" if r else "s_nop 0"),
                        f"buffer_load_dwordx4 v{vWD}, {srd(SRD_W)}, s{sT0 if r else sWSc} offen{FLAGS[OPT['qpflag']]} lds"])
    p.append([f"s_add_u32 m0, s{sXED}, {st}", "s_nop 0",
              f"buffer_load_dwordx4 v{vXDE}, {srd(SRD_X)}, s{sXEc} offen{FLAGS[OPT['qpflag']]} lds"])
    return p


STG = [[0, 2, 1, 0, 2, 1, 2, 1, 2], [0, 1, 2, 0, 1, 2, 0, 1, 2]][OPT['stg']]


def build_qproj(extras, nup, tail_items, fill):
    LQ = OPT["LQ"]
    mf = []
    first_use, last_use = {}, {}
    for s in range(18):
        for sl in range(8):
            f = ("w", 8 * s + sl)
            tiles = range(5) if sl < 4 else range(4)
            for t in tiles:
                a = ACC + 32 * t + 4 * sl
                C = "0" if s == 0 else vr(a, 4)
                txt = f"{MF} {vr(a, 4)}, {ar(WRING + 4 * sl, 4)}, {ar(XF[s % 2] + 4 * t, 4)}, {C}"
                mf.append((txt, [f, ("x", s, t)]))
                for q in (f, ("x", s, t)):
                    first_use.setdefault(q, len(mf) - 1)
                    last_use[q] = len(mf) - 1
    N = len(mf)
    gaps = [[] for _ in range(N + 1)]

    def st_of(c):
        return (6, 0) if STG[c] == 2 else (0, STG[c] * STSZ)

    def wread(n):
        s, sl = divmod(n, 8)
        c, ks = divmod(s, 2)
        rb, st = st_of(c)
        kk, u = divmod(sl, 2)
        base = vQA + rb + (4 if kk < 2 else 5)
        return [(f"ds_read_b64_tr_b16 {ar(WRING + 4 * sl + 2 * e, 2)}, v{base} offset:{st + (kk & 1) * 64 + 8 * u + e * 256 + ks * 512}",
                 ("w", n)) for e in range(2)]

    def xread(s, t):
        c, ks = divmod(s, 2)
        rb, st = st_of(c)
        if t < 4:
            return (f"ds_read_b128 {ar(XF[s % 2] + 4 * t, 4)}, v{vQA + rb + ks} offset:{st + t * 2048}", ("x", s, t))
        return (f"ds_read_b128 {ar(XF[s % 2] + 16, 4)}, v{vQA + rb + 2 + ks} offset:{st}", ("x", s, t))

    bar = {0: -1, 9: N}
    for c in range(1, 9):
        bar[c] = last_use[("w", 16 * c - LQ + 1)]
    items = []
    for n in range(144):
        c = n // 16
        e = last_use[("w", n - 8)] if n >= 8 else -1
        tg = first_use[("w", n - LQ)] if n >= LQ else -1
        tg = max(tg, e, bar[c])
        for x in wread(n):
            items.append((tg, x))
    rd = sorted(items, key=lambda z: z[0])
    xi = []
    for s in range(18):
        c, ks = divmod(s, 2)
        for t in range(5):
            e = last_use[("x", s - 2, t)] if s >= 2 else -1
            tg = max(e, bar[c])
            if s == 1:
                tg = 0
            xi.append((tg, xread(s, t)))
    allrd = sorted([(tg, 0, i, x) for i, (tg, x) in enumerate(xi)] + [(tg, 1, i, x) for i, (tg, x) in enumerate(rd)],
                   key=lambda z: (z[0], z[1], z[2]))
    used = [0] * (N + 2)
    xdone = {}
    g = -1
    for tg, _, _, x in allrd:
        g = max(g, tg)
        if g < 0 and used[0] >= 9:
            g = 0
        while g >= 0 and used[g + 1] >= 2:
            g += 1
        gaps[g + 1].append(("x", x[0], x[1]))
        used[g + 1] += 1
        if x[1][0] == "x":
            xdone[x[1][1]] = g
        cc = x[1][1] // 16 if x[1][0] == "w" else x[1][1] // 2
        assert g < bar[cc + 1] - 2, (x, g, bar[cc + 1])
    last_rd = g
    groups = []
    for c in range(nup, 9):
        prev = [p for p in range(c) if STG[p] == STG[c]]
        ew = bar[prev[-1] + 1] if prev else -1
        ex = xdone[2 * prev[-1] + 1] + 10 if prev else -1
        groups.append((ew, 0, c, wg_pieces(c), ("W", c), None))
        groups.append((ex, 2, c, x_pieces(c), ("X", c), prev[-1] if prev else None))
    for c, ps in extras.items():
        groups.append((bar[c] + (45 if (OPT["eord"] and c < 8) else 0), 1, c, ps, ("E", c), None))
    groups.sort(key=lambda z: (z[0], z[2] if z[0] < 0 else 0, z[1]))
    for kind in "WX":
        cs = [z[4][1] for z in groups if z[4][0] == kind]
        assert cs == sorted(cs), cs
    issued = []
    for c in range(nup):
        issued += [(("W", c), -1)] * 5 + [(("X", c), -1)] * 8
        if c == 0 and (OPT["pf"] or OPT["tlb"] == 1):
            issued += [(("P", 0), -1)] * 2
    g = 0
    for tg, _, _, ps, tag, prev in groups:
        for i, p in enumerate(ps):
            late = g - tg
            g = max(g, tg)
            g0 = g
            if i == 0 and prev is not None:
                while used[g + 1] >= 1:
                    g += 1
                gaps[g + 1].append(("xw", ("x", 2 * prev + 1)))
                used[g + 1] += 2
            for ins in p[:-1]:
                if ins == "s_nop 0":
                    continue
                while used[g + 1] >= 2:
                    g += 1
                gaps[g + 1].append(("x", ins, None))
                used[g + 1] += 1
            g += 1
            while used[g + 1] >= 2:
                g += 1
            assert g < N - 30, (tag, g)
            gaps[g + 1].append(("x", p[-1], None))
            used[g + 1] = 2
            issued.append((tag, g))
            g = max(g + 1, g0 + (OPT["qstep"] if late < 30 else 2))
    for c, lst in fill.items():
        g = bar[c]
        for ins in lst:
            k = ins.count(" | ") + 1
            while used[g + 1] + k > 2 or (k > 1 and used[g + 1]):
                g += 1
            for y in ins.split(" | "):
                gaps[g + 1].append(("x", y, None))
            used[g + 1] += k
            assert g < min(bar[c + 1], N - 26), (c, g)
    vm_at = {}
    for c in range(1, 9):
        before = [t for t, gg in issued if gg < bar[c]]
        for t, gg in issued:
            if t in (("W", c), ("X", c)):
                assert gg < bar[c] - 30, (t, gg, bar[c])
        lastneed = max(i for i, t in enumerate(before) if t in (("W", c), ("X", c)))
        vm_at[c] = len(before) - 1 - lastneed
    if OPT["show"]:
        print("bar", bar, "vm", vm_at, "issue", [(t[0] + str(t[1]), g) for t, g in issued if g >= 0], "lastrd", last_rd - (N - 36), file=sys.stderr)
    seq = []
    tf = list(tail_items)
    for i in range(N + 1):
        if i > 0:
            seq.append(("m", mf[i - 1][0], mf[i - 1][1]))
        for c in range(1, 9):
            if bar[c] == i - 1:
                seq.append(("x", f"s_waitcnt vmcnt({vm_at[c]}) lgkmcnt(0)", None))
                seq.append(("x", "s_barrier", None))
                if OPT["diag"]:
                    seq.append(("x", f"v_writelane_b32 v250, s90, {40 + c}", None))
                    seq.append(("x", "s_memtime s[90:91]", None))
        for x in gaps[i]:
            if x[0] == "xw":
                seq.append(("m", "s_nop 0", [("x", x[1][1], t) for t in range(5)]))
            else:
                seq.append(x)
        while tf and tf[0][0] <= i - 1 - (N - 36):
            seq.append(("x", tf.pop(0)[1], None))
    assert not tf
    return add_waits(seq, False), [t for t, _ in issued]


DW = 10
SRD_OUT, SRD_D = SRD_X, SRD_W
sMT, sNT, sBS, sLD, sU, sPA, sCA = sXD, sXS, sWS, sXED, sXES, sCX, sCW
sAI = 32
sSIDE, sRDY, sPF = 38, 39, 40
vBD, vPF, vZ, vPL = 2, 3, 4, 5
vBR, WF, AC = 144, 112, 160


def wslot(d):
    return (131072 + d * 16384) if d < 2 else (d - 2) * 16384


def wload(s):
    return [[f"s_add_u32 m0, s{sLD}, {wslot(s % DW) + i * 1024}",
             f"s_add_u32 s{sU}, s{sBS}, {(32 * (s % 4 if OPT['p3same'] & 1 else s) + 8 * i) * 1152}",
             f"buffer_load_dwordx4 v{vBD}, {srd(SRD_P)}, s{sU} offen{FLAGS[OPT['wflag']]} lds"] for i in range(4)]


def oreg(s, i):
    n = (s % OPT["DO"]) * 6 + i
    return 4 * n if n < 16 else 128 + 4 * (n - 16) if n < 24 else 64 + 4 * (n - 24)


def oload(s):
    off = f" offset:{(s % 4) * 1024}" if s % 4 else ""
    o = []
    for i in range(6):
        pre = [f"s_add_u32 s{sAI + i}, s{sAI + i}, 4096"] if (s % 4 == 0 and s and not OPT['p3same'] & 2) else []
        o.append(pre + [f"buffer_load_dwordx4 {ar(oreg(s, i), 4)}, v11, {srd(SRD_O)}, s{sAI + i} offen{off}{FLAGS[OPT['oflag']]}"])
    return o


def p3_setup():
    Z = Asm()
    Z(f"s_lshr_b32 s{sU}, s2, 3")
    Z(f"s_mul_i32 s{sPF}, s{sU}, 6912")
    Z(f"s_mul_i32 s{sNT}, s{sU}, 43")
    Z(f"s_lshr_b32 s{sNT}, s{sNT}, 7")
    Z(f"s_mul_i32 s{sMT}, s{sNT}, 3")
    Z(f"s_sub_u32 s{sMT}, s{sU}, s{sMT}")
    if OPT["xmap"] == 1:
        Z(f"s_and_b32 s{sCA}, s2, 1")
        Z(f"s_xor_b32 s{sCA}, s{sCA}, 1")
        Z(f"s_lshl_b32 s{sCA}, s{sCA}, 2")
        Z(f"s_bfe_u32 s{sU}, s2, 0x20001")
        Z(f"s_add_u32 s{sCA}, s{sCA}, s{sU}")
    else:
        Z(f"s_and_b32 s{sCA}, s2, 7")
    Z(f"s_mul_i32 s{sU}, s{sCA}, 3")
    Z(f"s_add_u32 s{sMT}, s{sMT}, s{sU}")
    Z(f"s_lshl_b32 s{sCA}, s{sCA}, 2")
    Z(f"s_add_u32 s{sCA}, s{sCA}, s{sW}")
    Z(f"s_lshl_b32 s{sCA}, s{sCA}, 3")
    Z(f"s_lshl_b32 s{sPA}, s{sB}, 2")
    Z(f"s_lshr_b32 s{sU}, s{sH}, 3")
    Z(f"s_add_u32 s{sPA}, s{sPA}, s{sU}")
    Z(f"s_lshl_b32 s{sPA}, s{sPA}, 3")
    Z(f"v_lshrrev_b32 v{vPF}, 3, v0")
    Z(f"v_mul_u32_u24 v{vBD}, 1152, v{vPF}")
    Z(f"v_lshlrev_b32 v{vPF}, 1, v12")
    Z(f"v_and_b32 v{vZ}, 7, v0")
    Z(f"v_xor_b32 v{vPF}, v{vPF}, v{vZ}")
    Z(f"v_lshl_add_u32 v{vBD}, v{vPF}, 4, v{vBD}")
    Z(f"v_min_u32 v{vPF}, 53, v0")
    Z(f"v_lshlrev_b32 v{vPF}, 7, v{vPF}")
    Z(f"v_mov_b32 v{vZ}, 0")
    Z(f"s_lshl_b32 s{sLD}, s{sW}, 12")
    Z(f"s_mul_i32 s{sBS}, s{sW}, {1024 * 1152}")
    Z(f"s_add_u32 s{sPF}, s{sPF}, s{sBS}")
    Z(f"s_lshl_b32 s{sU}, s{sNT}, 7")
    Z(f"s_add_u32 s{sBS}, s{sBS}, s{sU}")
    Z(f"s_cmp_ge_u32 s2, 216 | s_cselect_b32 s{sBS}, 0x40000000, s{sBS}")
    Z(f"s_mov_b32 s{SRD_OUT}, s{sOUTP}")
    Z(f"s_mov_b32 s{SRD_OUT + 1}, s{sOUTP + 1}")
    Z(f"s_mov_b32 s{SRD_OUT + 2}, {2304 * 1152}")
    Z(f"s_mov_b32 s{SRD_D}, s{sOUTP + 2}")
    Z(f"s_mov_b32 s{SRD_D + 1}, s{sOUTP + 3}")
    Z(f"s_mov_b32 s{SRD_D + 2}, 256")
    return [x.strip() for x in Z.l]


def o_bases(oob):
    o = [f"s_mul_i32 s{sAI}, s{sMT}, 786432", f"s_lshl_b32 s{sU}, s{sW}, 15", f"s_add_u32 s{sAI}, s{sAI}, s{sU}"]
    if oob:
        o += [f"s_cmp_ge_u32 s{sRDY}, 8", f"s_cselect_b32 s{sAI}, s{sAI}, 0x40000000"]
    o += [f"s_add_u32 s{sAI + i}, s{sAI}, {i * 131072}" for i in range(1, 6)]
    return o


def side_block(A):
    A.label("L1_side")
    A(f"s_mov_b32 s{sCNT}, 0")
    A(f"s_add_u32 s{sSIDE}, s{sSIDE}, 1")
    A(f"s_cmp_eq_u32 s{sSIDE}, 4")
    A("s_cbranch_scc1 L1_tail")
    if OPT["l2pf"]:
        A(f"s_mul_i32 s{sU}, s{sSIDE}, {6 * 36864}")
        A(f"s_add_u32 s{sU}, s{sU}, s{sPF}")
        A(f"s_sub_u32 s{sU}, s{sU}, {4 * 36864}")
        A(f"buffer_load_dword v{vDUM}, v{vPF}, {srd(SRD_P)}, s{sU} offen")
    A(f"s_cmp_eq_u32 s{sSIDE}, 2")
    A("s_cbranch_scc1 L1_side2")
    A(f"s_cmp_eq_u32 s{sSIDE}, 3")
    A("s_cbranch_scc1 L1_side3")
    ps = wload(0) + wload(1)
    A(f"global_load_dword v{vDUM}, v{vCW}, s[{sPC}:{sPC + 1}]")
    for p in ps[0:2]:
        A.ext(p)
    A("s_branch L1_back")
    A.label("L1_side2")
    for p in ps[2:5]:
        A.ext(p)
    A("s_branch L1_back")
    A.label("L1_side3")
    for p in ps[5:8]:
        A.ext(p)
    A("s_branch L1_back")


def p3(A, rest):
    DO = OPT["DO"]
    u0, u1 = 247, 248

    def wreads(s):
        o = wslot(s % DW)
        b = WF + 16 * (s % 2)
        return [f"ds_read_b64_tr_b16 {vr(b + 4 * n + 2 * e, 2)}, v{vBR + 4 * (o >> 16) + n} offset:{(o & 0xffff) + e * 2048}"
                for n in range(4) for e in range(2)]

    A.ext(rest)
    A(f"buffer_load_dword v{vPL}, v{vZ}, {srd(SRD_D)}, s{sCA} offen sc1")
    A.ext(o_bases(False))
    stamp(A)
    A(f"v_lshrrev_b32 v{u0}, 2, v0")
    A(f"v_lshlrev_b32 v{vBR}, 7, v{u0}")
    A(f"v_bfe_u32 v{u0}, v0, 3, 2")
    A(f"v_lshl_add_u32 v{vBR}, v{u0}, 5, v{vBR}")
    A(f"v_lshl_add_u32 v{vBR}, v15, 3, v{vBR}")
    A(f"v_add_u32 v{vBR}, s{sLD}, v{vBR}")
    for n_ in range(1, 4):
        A(f"v_xor_b32 v{vBR + n_}, {32 * n_}, v{vBR}")
    for k in range(1, 3):
        for n_ in range(4):
            A(f"v_add_u32 v{vBR + 4 * k + n_}, {65536 * k}, v{vBR + n_}")
    A(f"v_mov_b32 v{u0}, 1")
    A.ext(wreads(0))
    A("s_waitcnt vmcnt(0)")
    A("s_barrier")
    if OPT["diag"]:
        A("s_memrealtime s[78:79]")
    A(f"s_cmp_lg_u32 s{sW}, 0")
    A("s_cbranch_scc1 L3_noadd")
    A("s_mov_b64 exec, 1")
    A(f"buffer_atomic_add v{u0}, v{vZ}, {srd(SRD_D)}, s{sPA} offen sc1")
    A("s_mov_b64 exec, -1")
    A.label("L3_noadd")
    A("s_cmp_ge_u32 s2, 216")
    A("s_cbranch_scc1 L3_done")
    A(f"v_readfirstlane_b32 s{sRDY}, v{vPL}")
    A(f"s_mov_b32 s{sCNT}, {1 << 22}")
    A(f"s_cmp_ge_u32 s{sRDY}, {8 if OPT['fast'] else 999}")
    A("s_cbranch_scc1 L3_fast")
    vmq, nfast = [], []
    for s in range(2, DW):
        for p in wload(s):
            A.ext(p)
    A.label("L3_poll")
    A(f"buffer_load_dword v{u0}, v{vZ}, {srd(SRD_D)}, s{sCA} offen sc1")
    A("s_waitcnt vmcnt(0)")
    A(f"v_readfirstlane_b32 s{sU}, v{u0}")
    A(f"s_sub_u32 s{sCNT}, s{sCNT}, 1")
    A("s_cbranch_scc1 L3_rdy")
    A(f"s_cmp_ge_u32 s{sU}, 8")
    A("s_cbranch_scc1 L3_rdy")
    A("s_sleep 4")
    A("s_branch L3_poll")
    A.label("L3_rdy")
    for s in range(DO):
        for p in oload(s):
            A.ext(p)
            vmq.append(("o", s))
    A("s_branch L3_go")
    A.label("L3_fast")
    seq = [("o", 0), ("o", 1), ("w", 2), ("o", 2), ("w", 3), ("o", 3)] + [("o", s) for s in range(4, DO)] + [("w", s) for s in range(4, DW)]
    for k_, s in seq:
        for p in (oload(s) if k_ == "o" else wload(s)):
            A.ext(p)
            nfast.append((k_, s))
    A.label("L3_go")
    if OPT["diag"]:
        A("s_memrealtime s[80:81]")
    for s in range(32):
        cnt = []
        for q in (vmq, nfast):
            need = [i for i, t in enumerate(q) if t in (("o", s), ("w", s + 1))]
            cnt.append(len(q) - 1 - max(need) if need else 63)
        A(f"s_waitcnt vmcnt({min(min(cnt), 63)}) lgkmcnt(0)")
        b = WF + 16 * (s % 2)
        rdq = wreads(s + 1) if s + 1 < 32 else []
        ld = []
        if s + DW < 32:
            ld += [(p, ("w", s + DW)) for p in wload(s + DW)]
        if s >= 1 and s - 1 + DO < 32:
            ld += [(p, ("o", s - 1 + DO)) for p in oload(s - 1 + DO)]
        k = 0
        for n_ in range(4):
            for i in range(6):
                acc = ar(AC + 4 * (6 * n_ + i), 4)
                A(f"{MF} {acc}, {vr(b + 4 * n_, 4)}, {ar(oreg(s, i), 4)}, {'0' if s == 0 else acc}")
                k += 1
                if rdq and k % 2 == 1:
                    A(rdq.pop(0))
                if ld and k % 2 == 0:
                    p, tag = ld.pop(0)
                    A.ext(p)
                    vmq.append(tag)
                    nfast.append(tag)
        assert not ld and not rdq
    if OPT["diag"]:
        A("s_memrealtime s[82:83]")
    sAS = sAI
    A("s_barrier")
    A(f"s_mul_i32 s{sT0}, s{sW}, 24576")
    A(f"v_lshl_add_u32 v{u0}, v0, 4, s{sT0}")
    A("s_nop 4")
    for q in range(24):
        A(f"ds_write_b128 v{u0}, {ar(AC + 4 * q, 4)} offset:{q * 1024}")
    A(f"v_lshlrev_b32 v{u0}, 4, v13")
    A(f"v_bfe_u32 v{u1}, v0, 4, 1")
    A(f"v_lshl_add_u32 v{u0}, v{u1}, 9, v{u0}")
    A(f"v_lshrrev_b32 v10, 5, v0")
    A(f"v_lshl_add_u32 v{u0}, v10, 10, v{u0}")
    A(f"s_mul_i32 s{sT0}, s{sW}, {6 * 1024}")
    A(f"v_add_u32 v{u0}, s{sT0}, v{u0}")
    A(f"v_lshl_add_u32 v9, v10, 4, v13")
    A(f"v_mul_u32_u24 v9, 1152, v9")
    A(f"v_lshl_add_u32 v9, v{u1}, 4, v9")
    A(f"v_add_u32 v{u1}, 49152, v{u0}")
    A(f"s_mul_i32 s{sAS}, s{sMT}, {96 * 1152}")
    A(f"s_lshl_b32 s{sT0}, s{sNT}, 7")
    A(f"s_add_u32 s{sAS}, s{sAS}, s{sT0}")
    A(f"s_lshl_b32 s{sT0}, s{sW}, 5")
    A(f"s_add_u32 s{sAS}, s{sAS}, s{sT0}")
    A("s_waitcnt lgkmcnt(0)")
    A("s_barrier")
    R = 16
    for x in range(3):
        for w in range(4):
            for q in range(2):
                A(f"ds_read_b128 {vr(R + 32 * x + 8 * w + 4 * q, 4)}, v{u0 if w < 2 else u1} offset:{(w % 2) * 24576 + x * 2048 + q * 256}")
    for x in range(3):
        A(f"s_waitcnt lgkmcnt({min(15, 8 * (2 - x))})")
        bb = R + 32 * x
        for e in range(8):
            A(f"v_add_f32 v{bb + e}, v{bb + e}, v{bb + 8 + e}")
            A(f"v_add_f32 v{bb + 16 + e}, v{bb + 16 + e}, v{bb + 24 + e}")
        for e in range(8):
            A(f"v_add_f32 v{bb + e}, v{bb + e}, v{bb + 16 + e}")
        for e in range(4):
            A(f"v_cvt_pk_bf16_f32 v{bb + 8 + e}, v{bb + 2 * e}, v{bb + 2 * e + 1}")
        A(f"buffer_store_dwordx4 {vr(bb + 8, 4)}, v9, {srd(SRD_OUT)}, s{sAS} offen")
        A(f"s_add_u32 s{sAS}, s{sAS}, {32 * 1152}")
    A.label("L3_done")


def k1(A):
    A.raw(".p2align 8")
    A.raw(".type attn_kernel,@function")
    A.label("attn_kernel")
    A("s_cmp_ge_u32 s2, 256")
    A("s_cbranch_scc1 L1_end")
    A("s_load_dwordx8 s[32:39], s[0:1], 0")
    A("s_load_dwordx2 s[40:41], s[0:1], 56")
    A("s_load_dwordx2 s[30:31], s[0:1], 32")
    if OPT["tlb"] == 1:
        A("s_load_dwordx4 s[20:23], s[0:1], 40")
    A(f"s_getpc_b64 s[{sPC}:{sPC + 1}]")
    A.label("L1_pc")
    stamp(A)
    if OPT["diag"]:
        A("s_memrealtime s[92:93]")
    A("s_lshr_b32 s3, s2, 3")
    if OPT["cpf"]:
        A(f"s_lshl_b32 s{sT0}, s3, 11")
        A(f"v_lshl_add_u32 v1, v0, 7, s{sT0}")
        A("v_min_u32 v1, L_code_end-L1_pc-4, v1")
        A("v_cmp_gt_u32 vcc, 16, v0")
        A("s_and_saveexec_b64 s[46:47], vcc")
        A("s_cbranch_execz L1_nocpf")
        A(f"global_load_dword v{vDUM}, v1, s[{sPC}:{sPC + 1}]")
        A.label("L1_nocpf")
        A("s_mov_b64 exec, s[46:47]")
    A("v_lshrrev_b32 v1, 6, v0")
    A("v_and_b32 v0, 63, v0")
    A(f"v_readfirstlane_b32 s{sW}, v1")
    if OPT["xmap"] == 0:
        A(f"s_and_b32 s{sB}, s2, 7")
        A(f"s_mov_b32 s{sH}, s3")
    else:
        A(f"s_and_b32 s{sB}, s2, 1")
        A(f"s_lshl_b32 s{sB}, s{sB}, 2")
        A(f"s_and_b32 s{sT0}, s3, 3")
        A(f"s_add_u32 s{sB}, s{sB}, s{sT0}")
        A(f"s_and_b32 s{sH}, s2, 6")
        A(f"s_lshl_b32 s{sH}, s{sH}, 2")
        A(f"s_lshr_b32 s{sT0}, s3, 2")
        A(f"s_add_u32 s{sH}, s{sH}, s{sT0}")
    A(f"s_and_b32 s{sP}, s{sW}, 1")
    nph = OPT["nph"]
    if nph == 1:
        A(f"s_mov_b32 s{sCW}, 0")
    elif nph == 2:
        A(f"s_add_u32 s{sCW}, s{sB}, s{sH}")
        A(f"s_and_b32 s{sCW}, s{sCW}, 1")
        A(f"s_mul_i32 s{sCW}, s{sCW}, {4 * 128}")
    elif nph == 4:
        A(f"s_add_u32 s{sCW}, s{sB}, s{sH}")
        A(f"s_and_b32 s{sCW}, s{sCW}, 3")
        A(f"s_mul_i32 s{sCW}, s{sCW}, {2 * 128}")
    elif nph == 3:
        A(f"s_add_u32 s{sCW}, s{sB}, s{sH}")
        A(f"s_mul_i32 s{sT0}, s{sCW}, 43")
        A(f"s_lshr_b32 s{sT0}, s{sT0}, 7")
        A(f"s_mul_i32 s{sT0}, s{sT0}, 3")
        A(f"s_sub_u32 s{sCW}, s{sCW}, s{sT0}")
        A(f"s_mul_i32 s{sCW}, s{sCW}, {3 * 128}")
    A(f"s_mov_b32 s{sCX}, s{sCW}")
    t0, t1, t2, g4, i16, r4, cq = 9, 10, 11, 12, 13, 14, 15
    A(f"v_lshrrev_b32 v{g4}, 4, v0")
    A(f"v_and_b32 v{i16}, 15, v0")
    A(f"v_lshrrev_b32 v{t0}, 5, v0")
    A(f"v_lshlrev_b32 v{vWD}, 18, v{t0}")
    A(f"v_and_b32 v{t0}, 1, v{g4}")
    A(f"v_lshl_add_u32 v{vWD}, v{t0}, 15, v{vWD}")
    A(f"v_lshl_add_u32 v{vWD}, v{i16}, 4, v{vWD}")
    A(f"v_lshrrev_b32 v{t0}, 3, v0")
    A(f"v_mul_u32_u24 v{vXD}, 1152, v{t0}")
    A(f"v_and_b32 v{t0}, 7, v0")
    A(f"v_xor_b32 v{t0}, v{t0}, v{g4}")
    A(f"v_lshl_add_u32 v{vXD}, v{t0}, 4, v{vXD}")
    A(f"v_xor_b32 v{vXD + 1}, 64, v{vXD}")
    A(f"s_lshl_b32 s{sT0}, s{sP}, 6")
    A(f"v_xor_b32 v{vXDE}, s{sT0}, v{vXD}")
    A(f"s_lshl_b32 s{sXD}, s{sW}, 13")
    A(f"s_add_u32 s{sXD}, s{sXD}, {XOFF}")
    A(f"s_mul_i32 s{sXS}, s{sW}, {8 * 9216}")
    A(f"s_lshl_b32 s{sXED}, s{sW}, 10")
    A(f"s_add_u32 s{sXED}, s{sXED}, {XEOFF}")
    A(f"s_mul_i32 s{sXES}, s{sW}, 9216")
    A(f"s_add_u32 s{sXES}, s{sXES}, {32 * 9216}")
    A(f"s_lshr_b32 s{sT0}, s{sW}, 1")
    A(f"s_mul_i32 s{sWD}, s{sT0}, {WG1}")
    A(f"s_mul_i32 s{sT0}, s{sP}, {WG0}")
    A(f"s_add_u32 s{sWD}, s{sWD}, s{sT0}")
    A(f"s_lshl_b32 s{sWS}, s{sW}, 16")
    A(f"s_mul_i32 s{sT1}, s{sB}, 331776")
    A(f"s_lshl_b32 s{sT0}, s{sH}, 8")
    A(f"s_mov_b32 s{SRD_X + 2}, 331776")
    A(f"s_mov_b32 s{SRD_X + 3}, 0x20000")
    A(f"s_sub_u32 s{SRD_W + 2}, {576 * 8192}, s{sT0}")
    A(f"s_mov_b32 s{SRD_W + 3}, 0x20000")
    if OPT["fine"]:
        stamp(A)
    A("s_waitcnt lgkmcnt(0)")
    if OPT["fine"]:
        stamp(A)
    A(f"s_add_u32 s{SRD_W}, s38, s{sT0}")
    A(f"s_addc_u32 s{SRD_W + 1}, s39, 0")
    A(f"s_add_u32 s{SRD_X}, s32, s{sT1}")
    A(f"s_addc_u32 s{SRD_X + 1}, s33, 0")
    S = Asm()
    E = A if OPT["tlb"] == 3 else S
    E(f"s_lshl_b32 s{sT1}, s{sB}, 5")
    E(f"s_add_u32 s{sT1}, s{sT1}, s{sH}")
    E(f"s_lshl_b32 s{sT1}, s{sT1}, 19")
    if OPT["tlb"] == 3:
        for r_, p_ in ((SRD_K, 34), (SRD_V, 36)):
            A(f"s_add_u32 s{r_}, s{p_}, s{sT1}")
            A(f"s_addc_u32 s{r_ + 1}, s{p_ + 1}, 0")
            A(f"s_load_dword s{sRDY}, s[{r_}:{r_ + 1}], 0")
    S(f"s_add_u32 s{SRD_K}, s34, s{sT1} | s_addc_u32 s{SRD_K + 1}, s35, 0")
    S(f"s_mov_b32 s{SRD_K + 2}, 524288")
    S(f"s_mov_b32 s{SRD_K + 3}, 0x20000")
    S(f"s_add_u32 s{SRD_V}, s36, s{sT1} | s_addc_u32 s{SRD_V + 1}, s37, 0")
    if OPT["tlb"] == 2:
        S(f"s_load_dword s{sRDY}, s[{SRD_K}:{SRD_K + 1}], 0")
        S(f"s_load_dword s{sRDY}, s[{SRD_V}:{SRD_V + 1}], 0")
    S(f"s_mov_b32 s{SRD_V + 2}, 524288")
    S(f"s_mov_b32 s{SRD_V + 3}, 0x20000")
    S(f"s_add_u32 s{SRD_O}, s40, {OPT['wsoff'] << 20} | s_addc_u32 s{SRD_O + 1}, s41, 0")
    S(f"s_mov_b32 s{SRD_O + 2}, {(DIAG_OFF + (2 << 20)) if OPT['diag'] else WS_O_BYTES}")
    S(f"s_mov_b32 s{SRD_O + 3}, 0x20000")
    S(f"s_mov_b32 s{SRD_P}, s30")
    S(f"s_mov_b32 s{SRD_P + 1}, s31")
    S(f"s_mov_b32 s{SRD_P + 2}, {4096 * 1152}")
    S(f"s_mov_b32 s{SRD_P + 3}, 0x20000")
    S(f"v_bfe_u32 v{r4}, v0, 2, 2")
    S(f"v_and_b32 v{cq}, 3, v0")
    XA, XE, WL, WH = vQA, vQA + 2, vQA + 4, vQA + 5
    S(f"v_lshlrev_b32 v{XE}, 7, v{i16}")
    S(f"v_lshrrev_b32 v{t0}, 1, v{i16}")
    S(f"v_xor_b32 v{t0}, v{t0}, v{g4}")
    S(f"v_lshl_add_u32 v{XE}, v{t0}, 4, v{XE}")
    S(f"v_add_u32 v{XA}, s{sXD}, v{XE}")
    S(f"s_lshr_b32 s{sT1}, s{sW}, 1")
    S(f"s_lshl_b32 s{sT1}, s{sT1}, 11")
    S(f"s_add_u32 s{sT1}, s{sT1}, {XEOFF}")
    S(f"v_add_u32 v{XE}, s{sT1}, v{XE}")
    S(f"v_xor_b32 v{XA + 1}, 64, v{XA}")
    S(f"v_xor_b32 v{XE + 1}, 64, v{XE}")
    S(f"v_lshrrev_b32 v{t0}, 1, v{g4}")
    S(f"v_mul_u32_u24 v{WL}, {WG1}, v{t0}")
    S(f"v_and_b32 v{t0}, 1, v{g4}")
    S(f"v_mul_u32_u24 v{t0}, {WG0}, v{t0}")
    S(f"v_add_u32 v{WL}, v{WL}, v{t0}")
    S(f"v_mul_u32_u24 v{t0}, {XB}, v{r4}")
    S(f"v_add_u32 v{WL}, v{WL}, v{t0}")
    S(f"v_lshl_add_u32 v{WL}, v{cq}, 4, v{WL}")
    S(f"s_lshl_b32 s{sT1}, s{sP}, 7")
    S(f"s_xor_b32 s{sOO}, s{sT1}, 128")
    S(f"v_add_u32 v{WH}, s{sOO}, v{WL}")
    S(f"v_add_u32 v{WL}, s{sT1}, v{WL}")
    for i in range(6):
        S(f"v_add_u32 v{vQA + 6 + i}, {2 * STSZ}, v{vQA + i}")
    S(f"s_lshl_b32 s{sT1}, s{sW}, 12")
    S(f"v_lshl_add_u32 v{vV4}, v0, 4, s{sT1}")
    S(f"s_mul_i32 s{sWOF}, s{sW}, {4 * BLK}")
    S(f"v_mul_u32_u24 v{t0}, {BLK}, v{i16}")
    S(f"v_lshl_add_u32 v{t0}, v{g4}, 4, v{t0}")
    S(f"v_lshl_add_u32 v{t1}, v{g4}, 2, v{r4}")
    S(f"v_mul_u32_u24 v{t1}, {BLK}, v{t1}")
    S(f"v_lshl_add_u32 v{t1}, v{cq}, 3, v{t1}")
    for j in range(2):
        S(f"s_xor_b32 s{sT1}, s{sP}, {j}")
        S(f"s_lshl_b32 s{sT1}, s{sT1}, 9")
        S(f"v_add_u32 v{vVB + j}, s{sT1}, v{t1}")
        S(f"s_lshl_b32 s{sOO}, s{sP}, 7")
        S(f"s_add_u32 s{sT1}, s{sT1}, s{sOO}")
        S(f"v_add_u32 v{vKB + 2 * j}, s{sT1}, v{t0}")
        S(f"s_xor_b32 s{sT1}, s{sT1}, 128")
        S(f"v_add_u32 v{vKB + 2 * j + 1}, s{sT1}, v{t0}")
    if OPT["rot"]:
        S(f"s_mul_i32 s{sG0}, s2, {OPT['rot']}")
        S(f"s_lshr_b32 s{sT1}, s2, 4")
        S(f"s_add_u32 s{sG0}, s{sG0}, s{sT1}")
        S(f"s_and_b32 s{sG0}, s{sG0}, 15")
        S(f"s_mul_i32 s{sG0}, s{sG0}, {16384 * 7 // 4 // 16384 * 16384}")
    S(f"s_lshl_b32 s{sWP}, s2, 2")
    S(f"s_add_u32 s{sWP}, s{sWP}, s{sW}")
    S(f"s_mul_i32 s{sWP}, s{sWP}, 4608")
    S(f"v_min_u32 v7, 1, v0")
    S(f"v_lshlrev_b32 v7, 7, v7")
    S(f"s_lshl_b32 s{sDV}, s{sP}, 10")
    S(f"s_sub_u32 s{sDV}, 512, s{sDV}")
    S(f"v_min_u32 v{vCW}, 1, v0")
    S(f"s_lshr_b32 s{sT1}, s2, 3")
    S(f"s_lshl_b32 s{sT1}, s{sT1}, 2")
    S(f"s_add_u32 s{sT1}, s{sT1}, s{sW}")
    S(f"s_lshl_b32 s{sT1}, s{sT1}, 8")
    S(f"v_lshl_add_u32 v{vCW}, v{vCW}, 7, s{sT1}")
    S(f"v_min_u32 v{vCW}, L1_redo-L1_tail, v{vCW}")
    S(f"v_add_u32 v{vCW}, L1_tail-L1_pc, v{vCW}")
    S(f"v_mov_b32 v{t0}, 0x3f803f80")
    S(f"v_cmp_eq_u32 vcc, 0, v{cq}")
    S(f"s_mov_b32 s{sSC}, {QSCALE:#x}")
    S(f"s_mov_b32 s{sREDO}, 0")
    S(f"v_cndmask_b32 v{t0}, 0, v{t0}, vcc")
    for i in range(4):
        S(f"v_accvgpr_write_b32 a{ONES + i}, v{t0}")
    S(f"s_add_u32 s{sT1}, s{sXD}, {2 * STSZ + 6144}")
    S(f"v_lshl_add_u32 v{t0}, v0, 4, s{sT1}")
    S(f"s_xor_b32 s{sT1}, s{sW}, 1")
    S(f"s_lshl_b32 s{sT1}, s{sT1}, 13")
    S(f"s_add_u32 s{sT1}, s{sT1}, {XOFF + 2 * STSZ + 6144}")
    S(f"v_lshl_add_u32 v{t1}, v0, 4, s{sT1}")

    def loop_scalars(Z):
        if OPT["rot"]:
            Z(f"s_add_u32 s{sKVS}, s{sG0}, {DD * 16384}")
        else:
            Z(f"s_mov_b32 s{sKVS}, {DD * 16384}")
        Z(f"s_add_u32 s{sKD}, s{sWOF}, {(NS - 1) * HS}")
        Z(f"s_mov_b32 s{sVD}, s{sWOF}")
        Z(f"s_mov_b32 s{sKN}, {2 * HS}")
        Z(f"s_mov_b32 s{sVN}, {3 * HS}")
        Z(f"s_mov_b32 s{sCNT}, 28")
        Z(f"s_mov_b32 s{sSIDE}, 0")
        if OPT["diag"]:
            Z("s_mov_b32 s41, 31")

    def loop_addr():
        return [f"v_add_u32 v{vK}, {2 * HS}, v{vKB}", f"v_add_u32 v{vK + 1}, {2 * HS}, v{vKB + 1}",
                f"v_mov_b32 v{vK + 2}, v{vKB + 2}", f"v_mov_b32 v{vK + 3}, v{vKB + 3}",
                f"v_add_u32 v{vV}, {HS}, v{vVB}", f"v_add_u32 v{vV + 1}, {HS}, v{vVB + 1}"]

    loop_scalars(S)
    for i in range(180):
        S(f"v_accvgpr_write_b32 a{i}, 0")
    setup = [x.strip() for x in S.l]
    for i_, p in enumerate(wg_pieces(0) + x_pieces(0)):
        A.ext(p)
        if OPT["fine"] and i_ in (0, 8):
            stamp(A)
    if OPT["fine"]:
        stamp(A)
        A("s_waitcnt vmcnt(12)")
        stamp(A)
        A("s_waitcnt vmcnt(0)")
        stamp(A)
        OPT["diag"] = 2
    npf = 0

    def tlb_touch():
        A(f"v_lshlrev_b32 v{t0}, 18, v0")
        A(f"s_cmp_eq_u32 s{sW}, 1")
        A("s_cbranch_scc1 L1_t1")
        A(f"s_cmp_eq_u32 s{sW}, 2")
        A("s_cbranch_scc1 L1_t2")
        A(f"s_cmp_eq_u32 s{sW}, 3")
        A("s_cbranch_scc1 L1_t3")
        A(f"s_lshl_b32 s{sT1}, s{sB}, 5")
        A(f"s_add_u32 s{sT1}, s{sT1}, s{sH}")
        A(f"s_lshl_b32 s{sT1}, s{sT1}, 19")
        A(f"v_min_u32 v{t0}, {1 << 18}, v{t0}")
        A(f"v_add_u32 v{t0}, s{sT1}, v{t0}")
        A(f"global_load_dword v{vDUM}, v{t0}, s[34:35] nt")
        A(f"global_load_dword v{vDUM}, v{t0}, s[36:37] nt")
        A("s_branch L1_td")
        A.label("L1_t1")
        A(f"v_min_u32 v{t0}, {17 << 18}, v{t0}")
        A(f"global_load_dword v{vDUM}, v{t0}, s[38:39]")
        A(f"global_load_dword v{vDUM}, v{t0}, s[30:31]")
        A("s_branch L1_td")
        A.label("L1_t2")
        A(f"v_lshlrev_b32 v{t1}, 20, v0")
        A(f"v_min_u32 v{t1}, {17 << 20}, v{t1}")
        A(f"v_add_u32 v{t1}, {OPT['wsoff'] << 20}, v{t1}")
        A(f"global_load_dword v{vDUM}, v{t1}, s[40:41] sc1 nt")
        A(f"v_min_u32 v{t0}, {10 << 18}, v{t0}")
        A(f"global_load_dword v{vDUM}, v{t0}, s[20:21] nt")
        A("s_branch L1_td")
        A.label("L1_t3")
        A(f"v_mov_b32 v{t1}, 0")
        A(f"global_load_dword v{vDUM}, v{t1}, s[22:23] sc1")
        A(f"v_min_u32 v{t0}, {10 << 18}, v{t0}")
        A(f"global_load_dword v{vDUM}, v{t0}, s[32:33]")
        A.label("L1_td")

    if OPT["tlb"] == 1:
        tlb_touch()
        npf = 2
    if OPT["pf"]:
        na = OPT["pfa"]
        A(f"v_min_u32 v{t0}, {9 * na - 1}, v0")
        A(f"v_mul_u32_u24 v{t1}, 57, v{t0}")
        A(f"v_lshrrev_b32 v{t1}, 9, v{t1}")
        A(f"v_mul_u32_u24 v{t2}, 9, v{t1}")
        A(f"v_sub_u32 v{t0}, v{t0}, v{t2}")
        A(f"v_mul_u32_u24 v248, 1152, v{t0}")
        A(f"s_and_b32 s{sT1}, s{sH}, 7")
        A(f"s_lshl_b32 s{sT1}, s{sT1}, 2")
        A(f"s_add_u32 s{sT1}, s{sT1}, s{sW}")
        A(f"s_mul_i32 s{sT1}, s{sT1}, {9 * 1152}")
        A(f"v_add_u32 v248, s{sT1}, v248")
        A(f"v_lshl_add_u32 v246, v{t1}, 7, v248")
        A(f"buffer_load_dword v{vDUM}, v246, {srd(SRD_X)}, 0 offen offset:128")
        A(f"v_bfe_u32 v{t0}, v0, 1, 2")
        A(f"v_lshlrev_b32 v249, 13, v{t0}")
        A(f"v_and_b32 v{t0}, 1, v0")
        A(f"v_lshl_add_u32 v249, v{t0}, 7, v249")
        A(f"s_and_b32 s{sT1}, s{sB}, 3")
        A(f"s_lshl_b32 s{sT1}, s{sT1}, 2")
        A(f"s_add_u32 s{sT1}, s{sT1}, s{sW}")
        A(f"s_lshl_b32 s{sT1}, s{sT1}, 15")
        A(f"v_add_u32 v249, s{sT1}, v249")
        A(f"v_lshrrev_b32 v{t0}, 3, v0")
        A(f"v_min_u32 v{t0}, {na - 1}, v{t0}")
        A(f"v_lshl_add_u32 v247, v{t0}, 19, v249")
        A(f"s_mov_b32 s{sT1}, {1 << 19}")
        A(f"buffer_load_dword v{vDUM}, v247, {srd(SRD_W)}, s{sT1} offen")
        npf = 2
    first = []
    for c in range(1, OPT["up"]):
        first += wg_pieces(c) + x_pieces(c)
    per = len(setup) // (len(first) + 1) + 1
    stamp(A)
    for p in [[]] + first:
        A.ext(p)
        for _ in range(per):
            if setup:
                for y in setup.pop(0).split(" | "):
                    A(y)
    assert not setup
    stamp(A)
    A(f"s_waitcnt vmcnt({len(first) + npf})")
    A("s_barrier")
    stamp(A)
    P = lambda n: [item_piece(n, i) for i in range(4)]
    kw = [f"global_load_dword v{vDUM}, v{vCW}, s[{sPC}:{sPC + 1}]"] if OPT["cpf"] else []
    kw = [f"buffer_load_dword v{vDUM}, v7, {srd(SRD_P)}, s{sWP} offen"] if OPT["wopf"] == 2 else []
    if OPT["stg"] == 0:
        extras = {4: P(0), 5: P(1), 6: P(2)}
        if OPT["kvs"]:
            al = P(0) + P(1) + P(2)
            extras = {4: al[0:3], 5: al[3:6], 6: al[6:8], 7: al[8:12]}
    else:
        extras = {7: P(0) + P(1) + P(2)}
    if DD == 4:
        extras[8] = P(3) + P(4) + P(5)
        late = P(6) + P(7)
        late[0] = kw + late[0]
        late[7] = late[7] + kw
    elif DD == 3:
        extras[8] = P(3)
        late = P(4) + P(5)
        late[7] = late[7] + kw
    else:
        extras[8] = P(3)
        late = [[]] * 8
    if OPT["pf"]:
        for c in range(OPT["pfa"] + 1, 9):
            at = max(0, c - OPT["pf"])
            extras[at] = extras.get(at, []) + [
                [f"buffer_load_dword v{vDUM}, v248, {srd(SRD_X)}, 0 offen offset:{c * 128}"],
                [f"s_mov_b32 s{sT0}, {c << 19}", f"buffer_load_dword v{vDUM}, v249, {srd(SRD_W)}, s{sT0} offen"]]
    if OPT["wopf"] == 1:
        extras[7] = extras.get(7, []) + [[f"v_lshlrev_b32 v253, 7, v0", f"v_min_u32 v253, {35 * 128}, v253",
                      f"buffer_load_dword v{vDUM}, v253, {srd(SRD_P)}, s{sWP} offen"]]

    def conv(t, kk):
        src = ACC + 32 * t + 8 * kk
        dst = QV + 16 * t + 4 * kk
        o = []
        for i in range(4):
            o += [f"v_mul_f32 v{src + 2 * i}, s{sSC}, v{src + 2 * i}", f"v_mul_f32 v{src + 2 * i + 1}, s{sSC}, v{src + 2 * i + 1}"]
        for i in range(4):
            o.append(f"v_cvt_pk_bf16_f32 v{dst + i}, v{src + 2 * i}, v{src + 2 * i + 1}")
        return o

    KF = [184, 224]
    k0reads = [kread(ar(KF[kb] + 4 * kk, 4), vKB, kb, kk) for kb in range(2) for kk in range(4)]
    ti = []

    def spread(lst, g0, g1):
        for i, x in enumerate(lst):
            ti.append((g0 + (i * (g1 - g0)) // len(lst), x))

    spread(conv(4, 0) + conv(0, 0) + conv(1, 0) + conv(2, 0), 13, 22)
    spread(conv(4, 1) + [f"ds_write_b128 v{t0}, {vr(QV + 64, 4)}", f"ds_write_b128 v{t0}, {vr(QV + 68, 4)} offset:1024"]
           + conv(3, 0) + conv(0, 1), 22, 29)
    ti.append((29, "BAR"))
    spread([f"ds_read_b128 {vr(QV + 72, 4)}, v{t1}", f"ds_read_b128 {vr(QV + 76, 4)}, v{t1} offset:1024"] + k0reads[:4]
           + conv(1, 1) + k0reads[4:] + conv(2, 1) + conv(3, 1), 29, 36)
    nb = [i for i, x in enumerate(ti) if x[1] == "BAR"][0]
    ti[nb:nb + 1] = [(29, "VMW"), (29, "s_barrier")]
    qp, issued = build_qproj(extras, OPT["up"], ti, {6: [f"s_load_dwordx4 s[{sOUTP}:{sOUTP + 3}], s[0:1], 40"], 8: p3_setup()})
    vms = [x for x in qp if x.startswith(("buffer_load", "global_load"))]
    lastv0 = max(i for i, x in enumerate(vms) if x == P(1)[3][-1] and i == min(k for k, y in enumerate(vms) if y == x))
    ny = len(vms) - 1 - lastv0
    qp = [(f"s_waitcnt vmcnt({ny}) lgkmcnt(0)" if x == "VMW" else x) for x in qp]
    A.ext(qp)
    stamp(A)
    body, pro, tail = build_loop()

    def qk0(kb, kk, useneg):
        o = []
        for t in range(5):
            Sx = Sreg(t, 0) + 4 * kb
            C = (vr(NEG + 4 * t, 4) if useneg else "0") if kk == 0 else vr(Sx, 4)
            o.append(f"{MF} {vr(Sx, 4)}, {ar(KF[kb] + 4 * kk, 4)}, {vr(QV + 16 * t + 4 * kk, 4)}, {C}")
        return o

    def mix(mf, fill):
        n = len(mf)
        for i, m in enumerate(mf):
            A(m)
            A.ext(fill[(i * len(fill)) // n:((i + 1) * len(fill)) // n])

    flat = lambda ps: [x for p in ps for x in p]
    pro_rd = [x for x in pro if is_ds(x)]
    pro_sm = [x for x in pro if not is_ds(x)]
    A.ext(conv(0, 2) + flat(late[0:2]) + conv(0, 3))
    A("s_waitcnt lgkmcnt(0)")
    mix(qk0(0, 0, False) + qk0(0, 1, False), conv(1, 2) + conv(2, 2) + conv(3, 2) + flat(late[2:4]))
    mix(qk0(0, 2, False), conv(1, 3) + conv(2, 3) + conv(3, 3))
    A("s_nop 0")
    A.ext(qk0(0, 3, False))
    A.ext(loop_addr())
    A.ext(pro_rd)
    A.ext(flat(late[4:6]))
    for t in range(5):
        Sx = Sreg(t, 0)
        A(f"v_max3_f32 v{vM + t}, v{Sx}, v{Sx + 1}, v{Sx + 2}")
    for t in range(5):
        A(f"v_max_f32 v{vM + t}, v{vM + t}, v{Sreg(t, 0) + 3}")

    def xlane5(Z, op, base, tmp):
        for sw in ("v_permlane32_swap_b32", "v_permlane16_swap_b32"):
            for t in range(5):
                Z(f"v_mov_b32 v{tmp + t}, v{base + t}")
            for t in range(5):
                Z(f"{sw} v{base + t}, v{tmp + t}")
            for t in range(5):
                Z(f"{op} v{base + t}, v{base + t}, v{tmp + t}")

    xlane5(A, "v_max_f32", vM, vM + 8)
    for t in range(5):
        for i in range(4):
            A(f"v_sub_f32 v{NEG + 4 * t + i}, 0, v{vM + t}")
    subs = [f"v_sub_f32 v{Sreg(t, 0) + i}, v{Sreg(t, 0) + i}, v{vM + t}" for t in range(5) for i in range(4)]
    kb0regs = {Sreg(t, 0) + i for t in range(5) for i in range(4)}

    def srcs(x):
        return [int(z.strip()[1:]) for z in x.split(None, 1)[1].split(",")[1:]]
    sm0 = [x for x in pro_sm if all(r in kb0regs for r in srcs(x))]
    sm1 = [x for x in pro_sm if x not in sm0]

    def safe(lst):
        o, prev = [], ""
        for x in lst:
            if prev.startswith("v_exp") and x.startswith("v_cvt"):
                o.append("s_nop 0")
            o.append(x)
            prev = x
        return o
    A.ext(flat(late[6:8]))
    mix(flat([qk0(1, kk, True) for kk in range(4)]), subs + safe(sm0))
    A("s_nop 3")
    A.label("L1_presm")
    A.ext(safe(sm1))
    A("s_waitcnt lgkmcnt(0)")
    stamp(A)
    A.raw(".p2align 6")
    A.label("L1_loop")
    if OPT["diag"]:
        A(f"s_mov_b32 m0, s41")
        A("s_sub_u32 s41, s41, 1")
        A("v_writelane_b32 v250, s90, m0")
        A("v_writelane_b32 v251, s96, m0")
        A("s_memtime s[90:91]")
        A("s_memrealtime s[96:97]")
    A.ext(body)
    A("s_branch L1_loop")
    errs = hazard.check(body + body, "loop")
    side_block(A)
    A.label("L1_tail")
    T0 = len(A.l)
    stamp(A)
    tail_rd = [x for x in tail if is_ds(x)]
    tail_sm = [x for x in tail if not is_ds(x)]
    A.ext(tail_rd)
    A.ext(safe(tail_sm))
    A(f"s_add_u32 s{sT0}, s{sWOF}, {TS * HS}")
    A(f"v_lshl_add_u32 v{t0}, v0, 4, s{sT0}")
    A("s_waitcnt vmcnt(0) lgkmcnt(0)")
    ones = [f"{MF} {ar(LA + 4 * t, 4)}, {ar(ONES, 4)}, {vr(Sreg(t, 1), 4)}, {ar(LA + 4 * t, 4)}" for t in range(4)]

    def pv(t):
        return [f"{MF} {ar(OA + 32 * t + 4 * dt, 4)}, {ar(RING + 32 + 4 * dt, 4)}, {vr(Sreg(t, 1), 4)}, {ar(OA + 32 * t + 4 * dt, 4)}"
                for dt in range(8)]
    wr = [f"ds_write_b128 v{t0}, {ar(OA + 128 + 4 * i, 4)} offset:{(i // 4) * HS + (i % 4) * 1024}" for i in range(8)]
    misc = [f"v_lshlrev_b32 v{t2}, 4, v0",
            f"s_mul_i32 s{sOO}, s{sB}, 18", f"s_lshl_b32 s{sT0}, s{sW}, 2", f"s_add_u32 s{sT0}, s{sT0}, s{sOO}",
            f"s_lshl_b32 s{sT0}, s{sT0}, 5", f"s_add_u32 s{sT0}, s{sT0}, s{sH}", f"s_lshl_b32 s{sT0}, s{sT0}, 12",
            f"s_lshl_b32 s{sT1}, s{sW}, 10", f"s_add_u32 s{sT1}, s{sT1}, {NS * HS}", f"v_lshl_add_u32 v{t1}, v0, 4, s{sT1}"]
    mix(ones + pv(0), wr + misc)
    Lr = 114
    st = [f"v_accvgpr_read_b32 v{Lr + t}, a{LA + 4 * t}" for t in range(5)]
    st += [f"v_add_f32 v128, v{Lr}, v{Lr + 1}", f"v_add_f32 v129, v{Lr + 2}, v{Lr + 3}", f"v_add_f32 v128, v128, v{Lr + 4}",
           f"v_add_f32 v128, v128, v129", f"v_mov_b32 v129, {f32bits(2.0 ** OPT['thr']):#x}", f"v_cmp_nlt_f32 vcc, v128, v129",
           f"v_mov_b32 v132, v{Lr + 4}", f"v_mov_b32 v133, v{NEG + 16}", f"v_mov_b32 v135, 0", f"v_cndmask_b32 v134, 0, 1, vcc",
           f"ds_write_b128 v{t1}, {vr(132, 4)}"]
    st += [f"v_rcp_f32 v{120 + 2 * t}, v{Lr + t}" for t in range(4)]
    mix(pv(1), st)
    ofl = FLAGS[OPT["ostflag"]]

    def norm_store(t, tmp, pk):
        o = []
        if t:
            o.append(f"s_add_u32 s{sT0}, s{sT0}, {32 * 4096}")
        for s in range(4):
            b = tmp + 8 * s
            for e in range(8):
                o.append(f"v_accvgpr_read_b32 v{b + e}, a{OA + 32 * t + 8 * s + e}")
            if pk:
                for e in range(4):
                    o.append(f"v_pk_mul_f32 {vr(b + 2 * e, 2)}, {vr(b + 2 * e, 2)}, {vr(120 + 2 * t, 2)} op_sel_hi:[1,0]")
            else:
                for e in range(8):
                    o.append(f"v_mul_f32 v{b + e}, v{120 + 2 * t}, v{b + e}")
            for e in range(4):
                o.append(f"v_cvt_pk_bf16_f32 v{b + e}, v{b + 2 * e}, v{b + 2 * e + 1}")
            of = f" offset:{s * 1024}" if s else ""
            o.append(f"buffer_store_dwordx4 {vr(b, 4)}, v{t2}, {srd(SRD_O)}, s{sT0} offen{of}{ofl}"
                     + (f" | buffer_store_dwordx4 {vr(b, 4)}, v{t2}, {srd(SRD_O)}, s{sT0} offen{of}" if OPT["dst"] else ""))
        return o

    n0 = norm_store(0, 16, False)
    mix(pv(2) + pv(3), n0[:42])
    A.ext(norm_store(0, 16, True)[34:])
    A("s_waitcnt lgkmcnt(0)")
    A("s_barrier")
    A(f"s_and_b32 s{sT1}, s{sW}, 2")
    A(f"s_mul_i32 s{sT1}, s{sT1}, {4 * BLK}")
    A(f"s_mul_i32 s{sT2}, s{sP}, {HS}")
    A(f"s_add_u32 s{sT1}, s{sT1}, s{sT2}")
    A(f"s_add_u32 s{sT1}, s{sT1}, {TS * HS}")
    A(f"v_lshl_add_u32 v{t0}, v0, 4, s{sT1}")
    A(f"s_and_b32 s{sT1}, s{sW}, 2")
    A(f"s_lshl_b32 s{sT1}, s{sT1}, 10")
    A(f"v_lshl_add_u32 v{t1}, v0, 4, s{sT1}")
    A(f"v_xor_b32 v1, 2048, v{t1}")
    A(f"v_add_u32 v{t1}, {NS * HS}, v{t1}")
    A(f"v_add_u32 v1, {NS * HS}, v1")
    A(f"ds_read_b128 {vr(88, 4)}, v{t1}")
    A(f"ds_read_b128 {vr(92, 4)}, v{t1} offset:1024")
    A(f"ds_read_b128 {vr(96, 4)}, v1")
    A(f"ds_read_b128 {vr(100, 4)}, v1 offset:1024")
    for w in range(2):
        for q in range(4):
            A(f"ds_read_b128 {vr(128 + 16 * w + 4 * q, 4)}, v{t0} offset:{w * 4 * BLK + q * 1024}")
    A.ext(norm_store(1, 48, True))
    A("s_waitcnt lgkmcnt(0)")
    A("v_or3_b32 v104, v90, v94, v98")
    A("v_or_b32 v104, v104, v102")
    A("v_cmp_ne_u32 vcc, 0, v104")
    A("v_min_f32 v105, v89, v93")
    A("v_sub_f32 v89, v105, v89")
    A("v_sub_f32 v93, v105, v93")
    A("v_exp_f32 v89, v89")
    A("v_exp_f32 v93, v93")
    A(f"s_cmp_lg_u64 vcc, 0")
    A(f"s_cselect_b32 s{sT1}, 1, 0")
    A(f"s_cmp_gt_u32 s{sT1}, s{sREDO}")
    A("s_cbranch_scc1 L1_redo")
    A("v_mul_f32 v105, v88, v89")
    A("v_fmac_f32 v105, v92, v93")
    A("v_rcp_f32 v105, v105")
    A(f"s_lshr_b32 s{sT1}, s{sW}, 1")
    A(f"s_add_u32 s{sT1}, s{sT1}, s{sOO}")
    A(f"s_add_u32 s{sT1}, s{sT1}, 16")
    A(f"s_lshl_b32 s{sT1}, s{sT1}, 5")
    A(f"s_add_u32 s{sT1}, s{sT1}, s{sH}")
    A(f"s_lshl_b32 s{sT1}, s{sT1}, 12")
    A(f"s_lshl_b32 s{sT2}, s{sP}, 11")
    A(f"s_add_u32 s{sT1}, s{sT1}, s{sT2}")
    A("v_mul_f32 v89, v105, v89")
    A("v_mul_f32 v93, v105, v93")
    for e in range(16):
        A(f"v_mul_f32 v{128 + e}, v89, v{128 + e}")
    for e in range(16):
        A(f"v_fmac_f32 v{128 + e}, v93, v{144 + e}")
    for e in range(8):
        A(f"v_cvt_pk_bf16_f32 v{144 + e}, v{128 + 2 * e}, v{128 + 2 * e + 1}")
    for q in range(2):
        of = " offset:1024" if q else ""
        A(f"buffer_store_dwordx4 {vr(144 + 4 * q, 4)}, v{t2}, {srd(SRD_O)}, s{sT1} offen{of}{ofl}")
        if OPT["dst"]:
            A(f"buffer_store_dwordx4 {vr(144 + 4 * q, 4)}, v{t2}, {srd(SRD_O)}, s{sT1} offen{of}")
    rest = norm_store(2, 16, True) + norm_store(3, 48, True)
    if OPT["fuse"]:
        p3(A, rest)
    else:
        A.ext(rest)
    gx = [i for i, x in enumerate(body) if "L1_side" in x][0]
    errs += hazard.check(body[:gx + 1] + A.l[T0:T0 + 60], "exit")
    if OPT["diag"]:
        if not OPT["fuse"]:
            stamp(A)
        A("s_waitcnt vmcnt(0)")
        stamp(A)
        A("s_memrealtime s[94:95]")
        A("s_waitcnt lgkmcnt(0)")
        A("v_writelane_b32 v250, s92, 62")
        A("v_writelane_b32 v250, s94, 63")
        for i in range(stamp_n[0]):
            A(f"v_writelane_b32 v250, s{sST + 2 * i}, {50 + i}")
        A("v_writelane_b32 v250, s90, 32")
        A("v_writelane_b32 v251, s96, 32")
        A(f"s_lshl_b32 s{sT0}, s2, 2")
        A(f"s_add_u32 s{sT0}, s{sT0}, s{sW}")
        A(f"s_lshl_b32 s{sT0}, s{sT0}, 8")
        A(f"s_add_u32 s{sT0}, s{sT0}, {DIAG_OFF}")
        A(f"v_lshlrev_b32 v{t0}, 2, v0")
        A(f"buffer_store_dword v250, v{t0}, {srd(SRD_O)}, s{sT0} offen")
        A(f"s_add_u32 s{sT0}, s{sT0}, {1 << 19}")
        A(f"buffer_store_dword v251, v{t0}, {srd(SRD_O)}, s{sT0} offen")
        if OPT["fuse"]:
            for i in range(3):
                A(f"v_writelane_b32 v251, s{78 + 2 * i}, {i}")
            A("v_writelane_b32 v251, s94, 3")
            A(f"s_add_u32 s{sT0}, s{sT0}, {1 << 19}")
            A(f"buffer_store_dword v251, v{t0}, {srd(SRD_O)}, s{sT0} offen")
            if OPT["dbg"]:
                for ln, src in ((4, 30), (5, 22), (6, 14), (7, 32)):
                    A(f"v_readlane_b32 s{sT1}, v251, {src}")
                    A("s_nop 3")
                    A(f"v_writelane_b32 v251, s{sT1}, {ln}")
                A("v_subrev_u32 v251, s92, v251")
                A(f"v_lshlrev_b32 v{t0}, 3, v0")
                A("s_cmp_ge_u32 s2, 216")
                A("s_cbranch_scc1 L1_end")
                A("s_mov_b64 exec, 0xff")
                A(f"buffer_atomic_umax v251, v{t0}, {srd(SRD_W)}, 0 offen offset:4")
    A.label("L1_end")
    A("s_endpgm")
    A.label("L1_redo")
    A(f"s_mov_b32 s{sREDO}, 1")
    A("s_waitcnt vmcnt(0) lgkmcnt(0)")
    A("s_barrier")
    for n in range(2 * DD):
        for p in P(n):
            A.ext(p)
    for t in range(5):
        A(f"v_mov_b32 v{vM + t}, 0xff800000")
    A(f"v_lshlrev_b32 v{t0}, 8, v{i16}")
    A(f"v_lshl_add_u32 v{t0}, v{g4}, 4, v{t0}")
    A(f"s_lshl_b32 s{sT1}, s{sP}, 7")
    A(f"v_add_u32 v{t0}, s{sT1}, v{t0}")
    A(f"v_xor_b32 v{t1}, 128, v{t0}")
    A(f"s_mov_b32 s{sT1}, 0")
    A.label("L1_mx")
    for kk in range(4):
        o = f" offset:64" if kk & 1 else ""
        A(f"buffer_load_dwordx4 {vr(136 + 4 * kk, 4)}, v{t0 + (kk >> 1)}, {srd(SRD_K)}, s{sT1} offen{o}")
    A("s_waitcnt vmcnt(0)")
    for kk in range(4):
        for t in range(5):
            C = "0" if kk == 0 else vr(16 + 4 * t, 4)
            A(f"{MF} {vr(16 + 4 * t, 4)}, {vr(136 + 4 * kk, 4)}, {vr(QV + 16 * t + 4 * kk, 4)}, {C}")
    A("s_nop 7")
    for t in range(5):
        A(f"v_max3_f32 v{vM + t}, v{vM + t}, v{16 + 4 * t}, v{17 + 4 * t}")
        A(f"v_max3_f32 v{vM + t}, v{vM + t}, v{18 + 4 * t}, v{19 + 4 * t}")
    A(f"s_add_u32 s{sT1}, s{sT1}, 4096")
    A(f"s_cmp_lt_u32 s{sT1}, {4096 if OPT['twice'] else 524288}")
    A("s_cbranch_scc1 L1_mx")
    xlane5(A, "v_max_f32", vM, vM + 8)
    for t in range(5):
        for i in range(4):
            A(f"v_sub_f32 v{NEG + 4 * t + i}, 0, v{vM + t}")
    for i in range(180):
        A(f"v_accvgpr_write_b32 a{i}, 0")
    A.ext(loop_addr())
    loop_scalars(A)
    A("s_barrier")
    A.ext(k0reads)
    A("s_waitcnt lgkmcnt(0)")
    for kb in range(2):
        for kk in range(4):
            A.ext(qk0(kb, kk, True))
    A.ext(pro_rd)
    A("s_nop 7")
    A.ext(safe(sm0))
    A("s_branch L1_presm")
    return errs


def k2(A):
    DEP = 4
    SRD_A, SRD_WO, SRD_OUT = 4, 8, 12
    sW, sMT, sNT, sT0, sT1, sAS, sBS, sLD, sCNT = 16, 17, 18, 19, 20, 21, 22, 23, 24
    vA, vBD, vBR, t0, t1 = 2, 8, 9, 13, 14
    ACC2, ORING, WF = 16, 112, 208
    A.raw(".p2align 8")
    A.raw(".globl oproj_kernel")
    A.raw(".type oproj_kernel,@function")
    A.label("oproj_kernel")
    A(f"s_cmp_ge_u32 s2, {OPT['k2grid']}")
    A("s_cbranch_scc1 L2_end")
    A("s_load_dwordx4 s[32:35], s[0:1], 32")
    A("s_load_dwordx2 s[36:37], s[0:1], 56")
    if OPT["diag"]:
        A("s_memrealtime s[60:61]")
    A("v_lshrrev_b32 v1, 6, v0")
    A("v_and_b32 v0, 63, v0")
    A(f"v_readfirstlane_b32 s{sW}, v1")
    A("s_and_b32 s25, s2, 7")
    A("s_lshr_b32 s26, s2, 3")
    A(f"s_mul_i32 s{sNT}, s26, 43")
    A(f"s_lshr_b32 s{sNT}, s{sNT}, 7")
    A(f"s_mul_i32 s{sT0}, s{sNT}, 3")
    A(f"s_sub_u32 s{sT0}, s26, s{sT0}")
    A(f"s_mul_i32 s{sMT}, s25, 3")
    A(f"s_add_u32 s{sMT}, s{sMT}, s{sT0}")
    A(f"v_lshlrev_b32 v{vA}, 4, v0")
    for i in range(1, 6):
        A(f"v_add_u32 v{vA + i}, {i * 131072}, v{vA}")
    A(f"v_lshrrev_b32 v{t0}, 3, v0")
    A(f"v_mul_u32_u24 v{vBD}, 1152, v{t0}")
    A(f"v_lshrrev_b32 v{t0}, 4, v0")
    A(f"v_lshlrev_b32 v{t0}, 1, v{t0}")
    A(f"v_and_b32 v{t1}, 7, v0")
    A(f"v_xor_b32 v{t0}, v{t0}, v{t1}")
    A(f"v_lshl_add_u32 v{vBD}, v{t0}, 4, v{vBD}")
    A(f"v_lshrrev_b32 v{t0}, 2, v0")
    A(f"v_lshlrev_b32 v{vBR}, 7, v{t0}")
    A(f"v_bfe_u32 v{t0}, v0, 3, 2")
    A(f"v_lshl_add_u32 v{vBR}, v{t0}, 5, v{vBR}")
    A(f"v_and_b32 v{t0}, 3, v0")
    A(f"v_lshl_add_u32 v{vBR}, v{t0}, 3, v{vBR}")
    A(f"s_mul_i32 s{sLD}, s{sW}, {DEP * 4096}")
    A(f"v_add_u32 v{vBR}, s{sLD}, v{vBR}")
    for n in range(1, 4):
        A(f"v_xor_b32 v{vBR + n}, {32 * n}, v{vBR}")
    A("s_waitcnt lgkmcnt(0)")
    A(f"s_mov_b32 s{SRD_A}, s36")
    A(f"s_mov_b32 s{SRD_A + 1}, s37")
    A(f"s_mov_b32 s{SRD_A + 2}, {(DIAG_OFF + (2 << 20)) if OPT['diag'] else WS_O_BYTES}")
    A(f"s_mov_b32 s{SRD_A + 3}, 0x20000")
    A(f"s_mov_b32 s{SRD_WO}, s32")
    A(f"s_mov_b32 s{SRD_WO + 1}, s33")
    A(f"s_mov_b32 s{SRD_WO + 2}, {4096 * 1152}")
    A(f"s_mov_b32 s{SRD_WO + 3}, 0x20000")
    A(f"s_mov_b32 s{SRD_OUT}, s34")
    A(f"s_mov_b32 s{SRD_OUT + 1}, s35")
    A(f"s_mov_b32 s{SRD_OUT + 2}, {2304 * 1152}")
    A(f"s_mov_b32 s{SRD_OUT + 3}, 0x20000")
    A(f"s_mul_i32 s{sAS}, s{sMT}, 786432")
    A(f"s_lshl_b32 s{sT0}, s{sW}, 15")
    A(f"s_add_u32 s{sAS}, s{sAS}, s{sT0}")
    A(f"s_mul_i32 s{sBS}, s{sW}, {1024 * 1152}")
    A(f"s_lshl_b32 s{sT0}, s{sNT}, 7")
    A(f"s_add_u32 s{sBS}, s{sBS}, s{sT0}")
    WN = OPT["k2rot"]
    sA0, sB0, sPH, sI = 27, 28, 29, 30

    def blk_addr():
        return [f"s_add_u32 s{sT1}, s{sI}, s{sPH}", f"s_and_b32 s{sT1}, s{sT1}, {WN - 1}",
                f"s_and_b32 s31, s{sI}, {(~(WN - 1)) & 0xff}", f"s_or_b32 s{sT1}, s{sT1}, s31",
                f"s_mul_i32 s{sBS}, s{sT1}, {DEP * 32 * 1152}", f"s_add_u32 s{sBS}, s{sBS}, s{sB0}",
                f"s_lshl_b32 s{sAS}, s{sT1}, 12", f"s_add_u32 s{sAS}, s{sAS}, s{sA0}", f"s_add_u32 s{sI}, s{sI}, 1"]
    A(f"s_mov_b32 s{sA0}, s{sAS}")
    A(f"s_mov_b32 s{sB0}, s{sBS}")
    A(f"s_mul_i32 s{sPH}, s{sMT}, {OPT['k2mul']}")
    A(f"s_add_u32 s{sPH}, s{sPH}, s{sNT}")
    A(f"s_mov_b32 s{sI}, 0")
    A.ext(blk_addr())

    def loads(d):
        o = []
        for i in range(4):
            o.append([f"s_add_u32 m0, s{sLD}, {d * 4096 + i * 1024}",
                      f"s_add_u32 s{sT0}, s{sBS}, {(32 * d + 8 * i) * 1152}",
                      f"buffer_load_dwordx4 v{vBD}, {srd(SRD_WO)}, s{sT0} offen lds"])
        off = f" offset:{d * 1024}" if d else ""
        for i in range(6):
            o.append([f"buffer_load_dwordx4 {vr(ORING + 24 * d + 4 * i, 4)}, v{vA + i}, {srd(SRD_A)}, s{sAS} offen{off}"])
        return o

    def wreads(d):
        b = WF + 16 * (d % 2)
        return [f"ds_read_b64_tr_b16 {vr(b + 4 * n + 2 * e, 2)}, v{vBR + n} offset:{d * 4096 + e * 2048}"
                for n in range(4) for e in range(2)]

    zi = 0
    for d in range(DEP - 1):
        for g in loads(d):
            A.ext(g)
            for _ in range(4):
                if zi < 96:
                    A(f"v_mov_b32 v{ACC2 + zi}, 0")
                    zi += 1
    assert zi == 96
    A(f"s_mov_b32 s{sCNT}, {32 // DEP}")
    A(f"s_waitcnt vmcnt({10 * (DEP - 2) + 6})")
    if OPT["diag"]:
        A("s_memrealtime s[62:63]")
    A.ext(wreads(0))
    A.label("L2_loop")
    body = []
    Bd = body.append
    for d in range(DEP):
        Bd(f"s_waitcnt vmcnt({10 * (DEP - 3) + 6})")
        body += wreads((d + 1) % DEP)
        Bd("s_waitcnt lgkmcnt(8)")
        b = WF + 16 * (d % 2)
        ld = loads((d - 1) % DEP)
        k = 0
        for n in range(4):
            for i in range(6):
                acc = vr(ACC2 + 4 * (6 * n + i), 4)
                Bd(f"{MF} {acc}, {vr(b + 4 * n, 4)}, {vr(ORING + 24 * d + 4 * i, 4)}, {acc}")
                k += 1
                if ld and k % 2 == 0:
                    body += ld.pop(0)
        if d == 0:
            body += blk_addr()
            Bd(f"s_cmp_eq_u32 s{sCNT}, 1")
            Bd(f"s_cselect_b32 s{sAS}, 0x40000000, s{sAS}")
            Bd(f"s_cselect_b32 s{sBS}, 0x40000000, s{sBS}")
    Bd(f"s_sub_u32 s{sCNT}, s{sCNT}, 1")
    Bd(f"s_cmp_lg_u32 s{sCNT}, 0")
    A.ext(body)
    A("s_cbranch_scc1 L2_loop")
    errs = hazard.check(body + body, "k2loop")
    if OPT["diag"]:
        A("s_memrealtime s[64:65]")
    A("s_waitcnt vmcnt(0) lgkmcnt(0)")
    A("s_barrier")
    A(f"s_mul_i32 s{sT0}, s{sW}, 24576")
    A(f"v_lshl_add_u32 v{t0}, v0, 4, s{sT0}")
    A("s_nop 7")
    for q in range(24):
        A(f"ds_write_b128 v{t0}, {vr(ACC2 + 4 * q, 4)} offset:{q * 1024}")
    A(f"v_and_b32 v{t0}, 15, v0")
    A(f"v_lshlrev_b32 v{t0}, 4, v{t0}")
    A(f"v_bfe_u32 v{t1}, v0, 4, 1")
    A(f"v_lshl_add_u32 v{t0}, v{t1}, 9, v{t0}")
    A(f"v_lshrrev_b32 v{t1}, 5, v0")
    A(f"v_lshl_add_u32 v{t0}, v{t1}, 10, v{t0}")
    A(f"s_mul_i32 s{sT0}, s{sW}, {6 * 1024}")
    A(f"v_add_u32 v{t0}, s{sT0}, v{t0}")
    A(f"v_add_u32 v{t1}, 49152, v{t0}")
    A("s_waitcnt lgkmcnt(0)")
    A("s_barrier")
    for w in range(4):
        for x in range(3):
            for q in range(2):
                A(f"ds_read_b128 {vr(ORING + 24 * w + 8 * x + 4 * q, 4)}, v{t0 if w < 2 else t1} offset:{(w % 2) * 24576 + x * 2048 + q * 256}")
        if w % 2 == 1:
            A("s_waitcnt lgkmcnt(0)")
    for w in range(1, 4):
        for e in range(24):
            A(f"v_add_f32 v{ORING + e}, v{ORING + e}, v{ORING + 24 * w + e}")
    for e in range(12):
        A(f"v_cvt_pk_bf16_f32 v{ACC2 + e}, v{ORING + 2 * e}, v{ORING + 2 * e + 1}")
    A(f"v_and_b32 v{t0}, 15, v0")
    A(f"v_lshrrev_b32 v{t1}, 5, v0")
    A(f"v_lshl_add_u32 v{t0}, v{t1}, 4, v{t0}")
    A(f"v_mul_u32_u24 v{t0}, 1152, v{t0}")
    A(f"v_bfe_u32 v{t1}, v0, 4, 1")
    A(f"v_lshl_add_u32 v{t0}, v{t1}, 4, v{t0}")
    A(f"s_mul_i32 s{sAS}, s{sMT}, {96 * 1152}")
    A(f"s_lshl_b32 s{sT0}, s{sNT}, 7")
    A(f"s_add_u32 s{sAS}, s{sAS}, s{sT0}")
    A(f"s_lshl_b32 s{sT0}, s{sW}, 5")
    A(f"s_add_u32 s{sAS}, s{sAS}, s{sT0}")
    for x in range(3):
        A(f"buffer_store_dwordx4 {vr(ACC2 + 4 * x, 4)}, v{t0}, {srd(SRD_OUT)}, s{sAS} offen")
        A(f"s_add_u32 s{sAS}, s{sAS}, {32 * 1152}")
    if OPT["diag"]:
        A("s_waitcnt vmcnt(0)")
        A("s_memrealtime s[66:67]")
        A("s_waitcnt lgkmcnt(0)")
        for i in range(4):
            A(f"v_writelane_b32 v250, s{60 + 2 * i}, {i}")
        A(f"s_lshl_b32 s{sT0}, s2, 2")
        A(f"s_add_u32 s{sT0}, s{sT0}, s{sW}")
        A(f"s_lshl_b32 s{sT0}, s{sT0}, 8")
        A(f"s_add_u32 s{sT0}, s{sT0}, {DIAG_OFF + (1 << 20)}")
        A(f"v_lshlrev_b32 v{t0}, 2, v0")
        A(f"buffer_store_dword v250, v{t0}, {srd(SRD_A)}, s{sT0} offen")
    A.label("L2_end")
    A("s_endpgm")
    return errs


def desc(name, vg, acc, sg=102):
    return f""".p2align 6
.amdhsa_kernel {name}
  .amdhsa_next_free_vgpr {vg}
  .amdhsa_next_free_sgpr {sg}
  .amdhsa_accum_offset {acc}
  .amdhsa_group_segment_fixed_size 0
  .amdhsa_kernarg_size 64
  .amdhsa_user_sgpr_count 2
  .amdhsa_user_sgpr_kernarg_segment_ptr 1
  .amdhsa_system_sgpr_workgroup_id_x 1
.end_amdhsa_kernel
"""


def main():
    A = Asm()
    e = k1(A)
    if not OPT["fuse"]:
        e += k2(A)
    A.label("L_code_end")
    e += hazard.check(A.l, "linear")
    for x in e:
        print(x, file=sys.stderr)
    hdr = f"""; Fused MHA block (q-proj + attention) and output projection, gfx950. Generated by a script.
; @launch kernel=attn_kernel grid=(256,1,1) block=(256,1,1) lds={LDS1}
{";" if OPT["fuse"] else "; @launch kernel=oproj_kernel grid=(216,1,1) block=(256,1,1) lds=98304"}
.amdgcn_target "amdgcn-amd-amdhsa--gfx950"
.text
.globl attn_kernel
"""
    txt = hdr + "\n".join(A.l) + "\n.section .rodata,\"a\"\n" + desc("attn_kernel", 512, 256) + ("" if OPT["fuse"] else desc("oproj_kernel", 256, 256))
    open(sys.argv[1], "w").write(txt)
    if e and not (OPT["nodma"] or OPT["nomf"]):
        sys.exit(1)


main()
```

```python
import math
import struct
import sys

import hazard

OPT = dict(diag=0, L=6, W=2, xmap=1, nodma=0, nobar=0, kvflag=1, ostflag=2, wopf=2, wsh=8,
           k2grid=216, LQ=6, dmastep=6, thr=40, show=0, qstep=5, up=2, qpflag=0, dbg=0, cpf=1, nph=3, k2rot=1, D=3, pf=0, stg=0, pfa=4, kvs=0, rot=0, k2mul=1, fuse=1, dst=0, DO=4, oflag=2, early=5, l2pf=0, fast=1, wsoff=0, twice=0, nomf=0, pad=0, tlb=2, eord=0, fine=0, wflag=0, p3same=0, chain=1, LG=30, LM=12, SO=4, gB=21, vm2=1, bcap=0, tidy=1, x6d=0, outflag=0, pre=4, slp=4, ppos=4, wpre=9, qpad=0, gpad=0)
for a in sys.argv[2:]:
    k, v = a.split("=")
    OPT[k] = int(v)
FLAGS = ['', ' nt', ' sc1', ' sc0 sc1', ' sc1 nt', ' sc0 sc1 nt', ' sc0']

BLK = 1056
HS = 16 * BLK
DD = OPT['D']
NS = 2 * DD + 1
TS = 7
STATS = 9 * HS
assert DD == 3
XB = 1088
WOFF, XEOFF, XOFF = 0, 17408, 21504
WG0 = 4 * XB + OPT["wsh"]
WG1 = 8720
STSZ = 54272
LDS1 = 163840
GP = 32768 + OPT['gpad']
QP = 4 * GP + OPT['qpad']
WS_O_BYTES = 144 * QP
DIAG_OFF = 64 << 20


def f32bits(x):
    return struct.unpack("<I", struct.pack("<f", x))[0]


QSCALE = f32bits(128 ** -0.5 * math.log2(math.e))


class Asm:
    def __init__(self):
        self.l = []

    def __call__(self, s):
        if " | buffer_store" in s:
            for x in s.split(" | "):
                self.l.append("    " + x)
        else:
            self.l.append("    " + s)

    def label(self, s):
        self.l.append(s + ":")

    def raw(self, s):
        self.l.append(s)

    def ext(self, lst):
        for s in lst:
            self(s)


def vr(a, n):
    return f"v[{a}:{a + n - 1}]"


def ar(a, n):
    return f"a[{a}:{a + n - 1}]"


def srd(n):
    return f"s[{n}:{n + 3}]"


MF = "v_mfma_f32_16x16x32_bf16"

SRD_X, SRD_W, SRD_K, SRD_V, SRD_O, SRD_P = 4, 8, 12, 16, 20, 84
sW, sP, sB, sH = 24, 25, 27, 28
sXD, sXS, sWD, sWS, sT0, sT1 = 42, 43, 44, 45, 46, 47
sXED, sXES = 48, 55
sCNT = 49
sKD, sVD, sKVS, sKN, sVN = 50, 51, 52, 53, 54
sSC = 56
sT2 = 57
sOUTP = 32
sWP = 30
sG0 = 31
sDV = 3
sOO = 58
sREDO = 59
sST = 60
sWOF = 88
sCX, sCW = 89, 100
sPC = 98
sXSc, sWSc, sXEc = 29, 26, 101

vXD, vXDE, vWD, vCW, vV4 = 2, 4, 5, 6, 8
vQA = 160
ACC = 16
SB = [16, 48]
SE = 80
NEG = 88
QV = 160
vKB, vVB = 240, 244
vK, vV = 108, 112
vM = 120
vDUM = 252
OA, LA, ONES, RING = 0, 160, 180, 192
XF = [184, 204]
WRING = 224


def Sreg(t, par):
    return SE if t == 4 else SB[par] + 8 * t


stamp_n = [0]


def stamp_txt():
    if OPT["diag"] == 1:
        n = stamp_n[0]
        stamp_n[0] += 1
        assert n < 12
        return [f"s_memtime s[{sST + 2 * n}:{sST + 2 * n + 1}]"]
    return []


def stamp(A):
    A.ext(stamp_txt())


def is_ds(x):
    return x.startswith("ds_")


def add_waits(seq, cyclic, W=1, nfr=None):
    rep = 2 if cyclic else 1
    out = []
    issued = 0
    done = 0
    last = {}
    for it in range(rep):
        out = []
        for e in seq:
            if e[0] == "x":
                if is_ds(e[1]):
                    issued += 1
                    if e[2] is not None:
                        last[e[2]] = issued
                if "lgkmcnt(0)" in e[1] or e[1] == "VMW":
                    done = issued
                out.append(e[1])
            else:
                need = 0
                for f in e[2]:
                    if f in last:
                        need = max(need, last[f])
                if need > done:
                    tgt = need
                    for f in e[3] if len(e) > 3 else []:
                        if f in last and last[f] > need - 40:
                            tgt = max(tgt, last[f])
                    n = issued - tgt
                    assert n <= 15, n
                    out.append(f"s_waitcnt lgkmcnt({n})")
                    done = tgt
                if e[1] is not None:
                    out.append(e[1])
    return out


vD = 246
sINC = 60 if not OPT["diag"] else 26
sKP = 64 if not OPT["diag"] else 34


def tidy(lst):
    import re
    out, gap = [], []

    def flush(seen_mfma):
        g = list(gap)
        gap.clear()
        if not seen_mfma or any(x.startswith(("s_barrier", "s_cbranch", "s_branch")) or x.endswith(":") for x in g):
            return g
        if g and re.fullmatch(r"s_waitcnt lgkmcnt\(\d+\)", g[-1]) and not any("waitcnt" in x for x in g[:-1]):
            n = int(g[-1][18:-1]) - sum(is_ds(x) for x in g[:-1])
            if n >= 0:
                g = [f"s_waitcnt lgkmcnt({n})"] + g[:-1]
        ch = True
        while ch:
            ch = False
            for i in range(len(g) - 1):
                a, b = g[i], g[i + 1]
                if a.startswith("v_") and b.startswith(("ds_", "s_add", "s_mov", "s_lshl", "s_mul", "s_sub", "s_min", "s_and")):
                    ia, ib = hazard.I(a), hazard.I(b)
                    if not (ia.w & (ib.r | ib.w)) and not (ib.w & ia.r):
                        g[i], g[i + 1] = b, a
                        ch = True
        return g
    seen = False
    for x in lst:
        if x.startswith("v_mfma"):
            out += flush(seen)
            out.append(x)
            seen = True
        else:
            gap.append(x)
    out += gap
    return out


def kv_piece(dst, srdn, i):
    return [f"s_add_u32 m0, s{dst}, {i * BLK}",
            f"buffer_load_dwordx4 v{vD + i}, {srd(srdn)}, s{sKVS} offen{FLAGS[OPT['kvflag']]} lds"]


def item_piece(n, i):
    o = f" offset:{i * 1024}" if i else ""
    return [f"s_add_u32 m0, s{sWOF}, {(n % NS) * HS + i * (BLK - 1024)}",
            (f"s_add_u32 s{sT0}, s{sG0}, {(n // 2) * 16384}" if OPT["rot"] else f"s_mov_b32 s{sT0}, {(n // 2) * 16384}"),
            f"buffer_load_dwordx4 v{vV4}, {srd(SRD_V if n % 2 else SRD_K)}, s{sT0} offen{o}{FLAGS[OPT['kvflag']]} lds"]


def adv(r, tmp=None):
    tmp = sT2 if tmp is None else tmp
    return [f"s_add_u32 s{r}, s{r}, {2 * HS}", f"s_sub_u32 s{tmp}, s{r}, {NS * HS}", f"s_min_u32 s{r}, s{r}, s{tmp}"]


def kread(dst, base, kb, kk):
    return f"ds_read_b128 {dst}, v{base + (kk >> 1)} offset:{kb * 256 + (kk & 1) * 64}"


def build_loop():
    W = OPT["W"]
    NF = 32
    mf = []
    qk_end, pv_first, phase2, step_start = {}, {}, {}, {}
    for j in range(2):
        jn = 1 - j
        step_start[j] = len(mf)
        tiles = range(5) if jn == 0 else range(4)
        for kb in range(2):
            for t in tiles:
                for kk in range(4):
                    f = 16 * j + kb * 4 + kk
                    S = Sreg(t, jn) + 4 * kb
                    C = vr(NEG + 4 * t, 4) if kk == 0 else vr(S, 4)
                    mf.append(dict(t=f"{MF} {vr(S, 4)}, {ar(RING + 4 * (f % 16), 4)}, {vr(QV + 16 * t + 4 * kk, 4)}, {C}", f=f))
                    qk_end[(jn, t, kb)] = len(mf) - 1
        tiles = list(range(5) if j == 0 else range(4))
        phase2[j] = len(mf)
        for dt in range(8):
            f = 16 * j + 8 + dt
            for t in tiles:
                O = ar(OA + 32 * t + 4 * dt, 4)
                mf.append(dict(t=f"{MF} {O}, {ar(RING + 4 * (f % 16), 4)}, {vr(Sreg(t, j), 4)}, {O}", f=f))
                pv_first.setdefault((j, t), len(mf) - 1)
            x = dt - 2
            if 0 <= x < len(tiles):
                Lr = ar(LA + 4 * x, 4)
                mf.append(dict(t=f"{MF} {Lr}, {ar(ONES, 4)}, {vr(Sreg(x, j), 4)}, {Lr}", f=f))
    N = len(mf)
    assert N == 153
    first_use, last_use = {}, {}
    for i, m in enumerate(mf):
        first_use.setdefault(m["f"], i)
        last_use[m["f"]] = i

    def wsz(f):
        return 4 if f % 16 < 8 else W
    cap = [2] * N
    scal = [None] * N
    for f in range(NF):
        if f % wsz(f) == 0:
            scal[(first_use[f] - 1) % N] = ("W", [(f + k) % NF for k in range(wsz(f))])
    scal[N - 2], scal[N - 1] = scal[N - 1], ("B",)
    cap[N - 1] = 0
    gX = step_start[1] - 1
    assert scal[gX - 1] is None and scal[gX - 2] is None
    scal[gX - 1], scal[gX] = scal[gX], ("T", "s_cbranch_scc1 L1_side | L1_back:")
    gS = gX - 2
    gB = OPT["gB"]
    nvm = 8 + (1 if OPT["wopf"] == 2 else 0)
    assert scal[gB - 1] is None and scal[gB] is None
    scal[gB - 1] = ("T", f"s_waitcnt vmcnt({(DD - 2) * nvm})")
    scal[gB] = ("T", "s_barrier")
    scal[gS] = ("T", f"s_sub_u32 s{sCNT}, s{sCNT}, 1")
    cap[gB] = OPT["bcap"]
    ok = [g for g in range(N) if cap[g] == 2]
    eg = []
    for k in range(72):
        want = (k * N) / 72.0
        g = min((x for x in ok if x not in eg), key=lambda x: abs(x - want))
        eg.append(g)
    eg.sort()
    order = [(j, t, kb, r) for j in (0, 1) for kb in range(2) for t in (range(5) if j == 0 else range(4)) for r in range(4)]
    best = None
    for off in range(-72, 72):
        place = {key: eg[(k + off) % 72] + N * ((k + off) // 72) for k, key in enumerate(order)}
        good = True
        for (j, t, kb, r), g in place.items():
            av = qk_end[(j, t, kb)] + 6 - (N if j == 0 else 0)
            if g < av or g > pv_first[(j, t)] - 6:
                good = False
        if good:
            best = (best or []) + [off]
    off = best[min(OPT["SO"], len(best) - 1)]
    place = {key: eg[(k + off) % 72] + N * ((k + off) // 72) for k, key in enumerate(order)}
    for g in eg:
        cap[g] = 0

    def frag_reads(f):
        j, r = divmod(f, 16)
        dst = RING + 4 * (f % 16)
        if r < 8:
            kb, kk = divmod(r, 4)
            return [kread(ar(dst, 4), vK + 2 * (1 - j), kb, kk)]
        dt = r - 8
        return [f"ds_read_b64_tr_b16 {ar(dst + 2 * e, 2)}, v{vV + j} offset:{e * 256 + dt * 32}" for e in range(2)]

    items = []

    def add(name, lo, hi, text, kind=None, chain=None, after=()):
        items.append(dict(n=name, lo=lo, hi=hi, t=text, k=kind, c=chain, a=list(after)))

    for (j, t, kb, r), g in sorted(place.items(), key=lambda z: z[1]):
        if r % 2 == 1:
            S = Sreg(t, j)
            add(f"c{j}{t}{kb}{r}", g + 1, min(g + 14, pv_first[(j, t)] - 3),
                f"v_cvt_pk_bf16_f32 v{S + 2 * kb + r // 2}, v{S + 4 * kb + r - 1}, v{S + 4 * kb + r}", ("cvt", j, t), "cvt")
    LG, LM = OPT["LG"], OPT["LM"]
    for f in range(NF):
        fu = first_use[f - f % wsz(f)]
        lo = max(fu - LG, last_use[(f + 16) % NF] - (N if f < 16 else 0))
        if 16 <= f < 24:
            lo = max(lo, gB + 1)
        if 8 <= f < 16:
            lo = max(lo, 0)
        for e, x in enumerate(frag_reads(f)):
            add(f"r{f}_{e}", lo, fu - LM, x, ("rd", f), "rd")
    add("k1a", 0, 100, f"v_add_u32 v{vK + 2}, s{sDV}, v{vK}", "k1", None, ["r5_0"])
    add("k1b", 0, 100, f"v_add_u32 v{vK + 3}, s{sDV}, v{vK + 1}", "k1", None, ["r7_0"])
    add("v0", 0, 120, f"v_add_u32 v{vV}, s{sVN}, v{vVB}", "v0", None, ["r15_1"])
    add("v1", 0, N + 40, f"v_add_u32 v{vV + 1}, s{sDV}, v{vV}", "v1", None, ["r31_1", "v0"])
    st = OPT["dmastep"]
    g = gB + 1
    prevd = None
    for nm, dst, srdn in (("V", sVD, SRD_V), ("K", sKD, SRD_K)):
        for i in range(4):
            pc = kv_piece(dst, srdn, i)
            add(f"m{nm}{i}", g, g + 10, pc[0], "m0", "dma", [prevd] if prevd else [])
            prevd = f"d{nm}{i}"
            add(f"d{nm}{i}", g + 1, g + 12, pc[1], "dma", "dma")
            g += st
    add("svd", 0, 140, f"s_add_u32 s{sVD}, s{sKN}, s{sWOF}", None, "ak", ["dV3"])
    for i, x in enumerate(adv(sKN)):
        add(f"ak{i}", 0, 142 + i, x, None, "ak")
    add("k0a", 0, 148, f"v_add_u32 v{vK}, s{sKN}, v{vKB}", None, None, ["ak2", "r21_0", "k1a"])
    add("k0b", 0, 148, f"v_add_u32 v{vK + 1}, s{sKN}, v{vKB + 1}", None, None, ["ak2", "r23_0", "k1b"])
    for i, x in enumerate(adv(sVN, sT1)):
        add(f"av{i}", 0, 144 + i, x, None, "av", ["v0"])
    for i, x in enumerate(adv(sKD, sT0)):
        add(f"ad{i}", 0, 148 + i, x, None, "ad", ["dK3"])
    add("kvs", gX + 1, 151, f"s_add_u32 s{sKVS}, s{sKVS}, s{sINC}", None, None, ["dK3"])
    if OPT["wopf"] == 2:
        add("wp", gB + 6, 140, f"buffer_load_dword v{vDUM}, v7, {srd(SRD_P)}, s{sWP} offen", None, "wp")
        add("wpa", 0, 150, f"s_add_u32 s{sWP}, s{sWP}, 160", None, "wp", ["wp"])
    NP = 5
    pend = []
    for p in range(NP):
        for i, x in enumerate(items):
            pend.append(dict(x, p=p, i=i, lo=x["lo"] + p * N, hi=x["hi"] + p * N))
    chains = {}
    for x in pend:
        chains.setdefault(x["c"] or ("solo", x["n"]), []).append(x)
    at = {}
    out = {}
    for g in range(-N, (NP + 1) * N):
        free = cap[g % N]
        sfree = scal[g % N] is None
        while free or sfree:
            cands = []
            for c, q in chains.items():
                if not q:
                    continue
                x = q[0]
                if x["lo"] > g:
                    continue
                if any((a_, x["p"]) not in at for a_ in x["a"]):
                    continue
                if x["k"] == "dma" and at[("m" + x["n"][1:], x["p"])] == g:
                    continue
                if x["t"].startswith("s_") and (gS <= g % N <= gX or not sfree):
                    continue
                if not x["t"].startswith("s_") and not free:
                    continue
                if any(at[(a_, x["p"])] == g for a_ in x["a"]):
                    continue
                if x["t"].startswith("buffer") and (g % N == gB - 1 or free < 2):
                    continue
                if x["k"] == "m0" and gS - 3 <= g % N <= gX:
                    continue
                cands.append(x)
            if not cands:
                break
            x = min(cands, key=lambda x: (0 if x["t"].startswith("buffer") else 1, x["hi"], x["i"]))
            chains[x["c"] or ("solo", x["n"])].pop(0)
            at[(x["n"], x["p"])] = g
            out.setdefault(g, []).append(x)
            if x["t"].startswith("s_"):
                sfree = False
            else:
                free -= (2 if (x["t"].startswith("buffer") and OPT["vm2"] and free == 2) else 1)
    for x in items:
        assert at[(x["n"], 2)] - 2 * N == at[(x["n"], 3)] - 3 * N, ("not periodic", x)
        assert at[(x["n"], 2)] - 2 * N <= x["hi"], ("late", x, at[(x["n"], 2)] - 2 * N)
    rel = {x["n"]: at[(x["n"], 2)] - 2 * N for x in items}
    assert rel["dK3"] < gX
    assert rel["k1a"] < rel["r0_0"] + N and rel["k1b"] < rel["r2_0"] + N
    assert rel["k0a"] < rel["r16_0"] + N and rel["k0b"] < rel["r18_0"] + N
    assert rel["v0"] < rel["r8_0"] + N and rel["v1"] < rel["r24_0"] + N and rel["v1"] < rel["v0"] + N
    assert last_use[7] < gB + 16 and first_use[4] <= gB
    assert rel["v1"] < N, "v1 must stay inside the period (prologue sets it)"
    gaps = [[] for _ in range(N)]
    cls = lambda t: 0 if t.startswith("s_") else 1 if t.startswith(("ds_", "buffer")) else 2
    for g in range(N):
        for x in sorted(out.get(2 * N + g, []), key=lambda x: cls(x["t"])):
            gaps[g].append((x["t"], "n" if x["p"] == 3 else "", x["k"]))
            assert x["p"] in (2, 3), x
    for (j, t, kb, r), g in place.items():
        S = Sreg(t, j) + 4 * kb + r
        gaps[g % N].append((f"v_exp_f32 v{S}, v{S}", "n" if g < 0 else "", ("sm", j)))
    seq, pro, tail = [], [], []
    for i, m in enumerate(mf):
        seq.append(("m", m["t"], [m["f"]]))
        if scal[i] and scal[i][0] == "W":
            seq.append(("m", None, scal[i][1]))
        elif scal[i] and scal[i][0] == "T":
            seq.append(("x", scal[i][1], None))
        for x in gaps[i]:
            isrd = isinstance(x[2], tuple) and x[2][0] == "rd"
            seq.append(("x", x[0], x[2][1] if isrd else None))
            if x[1] == "n":
                assert isinstance(x[2], tuple), x
                pro.append(x[0])
            if i >= gX and x[1] != "n" and isinstance(x[2], tuple):
                if (x[2][0] in ("sm", "cvt") and x[2][1] == 1) or (isrd and x[2][1] >= 24):
                    tail.append(x[0])
    body = add_waits(seq, True)
    body = [y for x in body for y in x.split(" | ")]
    if OPT["show"]:
        print("gaps:", "".join("E" if any(y[0].startswith("v_exp") for y in g_) else str(len(g_)) for g_ in gaps), file=sys.stderr)
        print("instr", len(body), "waits", sum("lgkmcnt" in x for x in body), "offs", best, "dma", [rel[f"d{n}{i}"] for n in "VK" for i in range(4)],
              "minlead", min(first_use[f - f % wsz(f)] - rel[f"r{f}_{1 if f % 16 >= 8 else 0}"] for f in range(NF)),
              "pro", len(pro), "tail", len(tail), file=sys.stderr)

    def keep(x):
        if OPT["nodma"] and (x.startswith("buffer_load") or x.startswith("s_add_u32 m0") or "vmcnt" in x):
            return False
        if OPT["nobar"] and x.startswith("s_barrier"):
            return False
        return True
    return [x for x in body if keep(x)], pro, tail


def cursor(r):
    return [f"s_add_u32 s{r}, s{r}, 128", f"s_sub_u32 s{sT2}, s{r}, 1152", f"s_min_u32 s{r}, s{r}, s{sT2}"]


def x_pieces(c):
    st = STG[c] * STSZ
    p = []
    for i in range(8):
        pre = [f"s_add_u32 s{sXSc}, s{sXS}, s{sCX}"] + cursor(sCX) if i == 0 else []
        p.append(pre + [f"s_add_u32 m0, s{sXD}, {st + i * 1024}",
                        (f"s_add_u32 s{sT0}, s{sXSc}, {i * 9216}" if i else "s_nop 0"),
                        f"buffer_load_dwordx4 v{vXD + (i & 1)}, {srd(SRD_X)}, s{sT0 if i else sXSc} offen{FLAGS[OPT['qpflag']]} lds"])
    return p


def wg_pieces(c):
    st = STG[c] * STSZ
    p = []
    for r in range(4):
        pre = [f"s_lshl_b32 s{sWSc}, s{sCW}, 12", f"s_add_u32 s{sWSc}, s{sWSc}, s{sWS}",
               f"s_add_u32 s{sXEc}, s{sXES}, s{sCW}"] + cursor(sCW) if r == 0 else []
        p.append(pre + [f"s_add_u32 m0, s{sWD}, {st + WOFF + r * XB}",
                        (f"s_add_u32 s{sT0}, s{sWSc}, {r * 8192}" if r else "s_nop 0"),
                        f"buffer_load_dwordx4 v{vWD}, {srd(SRD_W)}, s{sT0 if r else sWSc} offen{FLAGS[OPT['qpflag']]} lds"])
    p.append([f"s_add_u32 m0, s{sXED}, {st}", "s_nop 0",
              f"buffer_load_dwordx4 v{vXDE}, {srd(SRD_X)}, s{sXEc} offen{FLAGS[OPT['qpflag']]} lds"])
    return p


STG = [[0, 2, 1, 0, 2, 1, 2, 1, 2], [0, 1, 2, 0, 1, 2, 0, 1, 2]][OPT['stg']]


def build_qproj(extras, nup, tail_items, fill):
    LQ = OPT["LQ"]
    mf = []
    first_use, last_use = {}, {}
    for s in range(18):
        for sl in range(8):
            f = ("w", 8 * s + sl)
            tiles = range(5) if sl < 4 else range(4)
            for t in tiles:
                a = ACC + 32 * t + 4 * sl
                C = "0" if s == 0 else vr(a, 4)
                txt = f"{MF} {vr(a, 4)}, {ar(WRING + 4 * sl, 4)}, {ar(XF[s % 2] + 4 * t, 4)}, {C}"
                mf.append((txt, [f, ("x", s, t)]))
                for q in (f, ("x", s, t)):
                    first_use.setdefault(q, len(mf) - 1)
                    last_use[q] = len(mf) - 1
    N = len(mf)
    gaps = [[] for _ in range(N + 1)]

    def st_of(c):
        return (6, 0) if STG[c] == 2 else (0, STG[c] * STSZ)

    def wread(n):
        s, sl = divmod(n, 8)
        c, ks = divmod(s, 2)
        rb, st = st_of(c)
        kk, u = divmod(sl, 2)
        base = vQA + rb + (4 if kk < 2 else 5)
        return [(f"ds_read_b64_tr_b16 {ar(WRING + 4 * sl + 2 * e, 2)}, v{base} offset:{st + (kk & 1) * 64 + 8 * u + e * 256 + ks * 512}",
                 ("w", n)) for e in range(2)]

    def xread(s, t):
        c, ks = divmod(s, 2)
        rb, st = st_of(c)
        if t < 4:
            return (f"ds_read_b128 {ar(XF[s % 2] + 4 * t, 4)}, v{vQA + rb + ks} offset:{st + t * 2048}", ("x", s, t))
        return (f"ds_read_b128 {ar(XF[s % 2] + 16, 4)}, v{vQA + rb + 2 + ks} offset:{st}", ("x", s, t))

    bar = {0: -1, 9: N}
    for c in range(1, 9):
        bar[c] = last_use[("w", 16 * c - LQ + 1)]
    items = []
    for n in range(144):
        c = n // 16
        e = last_use[("w", n - 8)] if n >= 8 else -1
        tg = first_use[("w", n - LQ)] if n >= LQ else -1
        tg = max(tg, e, bar[c])
        for x in wread(n):
            items.append((tg, x))
    rd = sorted(items, key=lambda z: z[0])
    xi = []
    for s in range(18):
        c, ks = divmod(s, 2)
        for t in range(5):
            e = last_use[("x", s - 2, t)] if s >= 2 else -1
            tg = max(e, bar[c])
            if s == 1:
                tg = 0
            xi.append((tg, xread(s, t)))
    allrd = sorted([(tg, 0, i, x) for i, (tg, x) in enumerate(xi)] + [(tg, 1, i, x) for i, (tg, x) in enumerate(rd)],
                   key=lambda z: (z[0], z[1], z[2]))
    used = [0] * (N + 2)
    xdone = {}
    g = -1
    for tg, _, _, x in allrd:
        g = max(g, tg)
        if g < 0 and used[0] >= 9:
            g = 0
        while g >= 0 and used[g + 1] >= 2:
            g += 1
        gaps[g + 1].append(("x", x[0], x[1]))
        used[g + 1] += 1
        if x[1][0] == "x":
            xdone[x[1][1]] = g
        cc = x[1][1] // 16 if x[1][0] == "w" else x[1][1] // 2
        assert g < bar[cc + 1] - 2, (x, g, bar[cc + 1])
    last_rd = g
    sused = [0] * (N + 2)
    groups = []
    for c in range(nup, 9):
        prev = [p for p in range(c) if STG[p] == STG[c]]
        ew = bar[prev[-1] + 1] if prev else -1
        ex = xdone[2 * prev[-1] + 1] + 10 if prev else -1
        if c == 6:
            ex += OPT["x6d"]
        groups.append((ew, 0, c, wg_pieces(c), ("W", c), None))
        groups.append((ex, 2, c, x_pieces(c), ("X", c), prev[-1] if prev else None))
    for c, ps in extras.items():
        groups.append((bar[c] + (45 if (OPT["eord"] and c < 8) else 0), 1, c, ps, ("E", c), None))
    groups.sort(key=lambda z: (z[0], z[2] if z[0] < 0 else 0, z[1]))
    for kind in "WX":
        cs = [z[4][1] for z in groups if z[4][0] == kind]
        assert cs == sorted(cs), cs
    issued = []
    for c in range(nup):
        issued += [(("W", c), -1)] * 5 + [(("X", c), -1)] * 8
        if c == 0 and (OPT["pf"] or OPT["tlb"] == 1):
            issued += [(("P", 0), -1)] * 2
    g = 0
    for tg, _, _, ps, tag, prev in groups:
        for i, p in enumerate(ps):
            late = g - tg
            g = max(g, tg)
            g0 = g
            if i == 0 and prev is not None:
                while used[g + 1] >= 1:
                    g += 1
                gaps[g + 1].append(("xw", ("x", 2 * prev + 1)))
                used[g + 1] += 2
            for ins in p[:-1]:
                if ins == "s_nop 0":
                    continue
                if ins.startswith("s_"):
                    while sused[g + 1] + max(0, used[g + 1] - 1) >= 2 or (sused[g + 1] and used[g + 1] >= 2):
                        g += 1
                    gaps[g + 1].insert(sused[g + 1], ("x", ins, None))
                    sused[g + 1] += 1
                else:
                    while used[g + 1] >= 2:
                        g += 1
                    gaps[g + 1].append(("x", ins, None))
                    used[g + 1] += 1
            g += 1
            while used[g + 1] >= 1:
                g += 1
            assert g < N - 30, (tag, g)
            gaps[g + 1].append(("x", p[-1], None))
            used[g + 1] = 2
            issued.append((tag, g))
            g = max(g + 1, g0 + (OPT["qstep"] if late < 30 else 2))
    for c, lst in fill.items():
        g = bar[c]
        for ins in lst:
            k = ins.count(" | ") + 1
            while used[g + 1] + k > 2 or (k > 1 and used[g + 1]):
                g += 1
            for y in ins.split(" | "):
                gaps[g + 1].append(("x", y, None))
            used[g + 1] += k
            assert g < min(bar[c + 1], N - 26), (c, g)
    vm_at = {}
    for c in range(1, 9):
        before = [t for t, gg in issued if gg < bar[c]]
        for t, gg in issued:
            if t in (("W", c), ("X", c)):
                assert gg < bar[c] - 30, (t, gg, bar[c])
        lastneed = max(i for i, t in enumerate(before) if t in (("W", c), ("X", c)))
        vm_at[c] = len(before) - 1 - lastneed
    if OPT["show"]:
        print("bar", bar, "vm", vm_at, "issue", [(t[0] + str(t[1]), g) for t, g in issued if g >= 0], "lastrd", last_rd - (N - 36), file=sys.stderr)
    seq = []
    tf = list(tail_items)
    for i in range(N + 1):
        if i > 0:
            seq.append(("m", mf[i - 1][0], mf[i - 1][1]))
        for c in range(1, 9):
            if bar[c] == i - 1:
                seq.append(("x", f"s_waitcnt vmcnt({vm_at[c]}) lgkmcnt(0)", None))
                seq.append(("x", "s_barrier", None))
                if OPT["diag"]:
                    seq.append(("x", f"v_writelane_b32 v250, s90, {40 + c}", None))
                    seq.append(("x", "s_memtime s[90:91]", None))
        for x in gaps[i]:
            if x[0] == "xw":
                seq.append(("m", "s_nop 0", [("x", x[1][1], t) for t in range(5)]))
            else:
                seq.append(x)
        while tf and tf[0][0] <= i - 1 - (N - 36):
            seq.append(("x", tf.pop(0)[1], None))
    assert not tf
    return add_waits(seq, False), [t for t, _ in issued]


DW = 9
PRE = OPT['pre']
SRD_OUT, SRD_D = SRD_X, SRD_W
sMT, sNT, sBS, sLD, sU, sPA, sCA = sXD, sXS, sWS, sXED, sXES, sCX, sCW
sAI = 32
sSIDE, sRDY, sPF = 38, 39, 40
vBD, vPF, vZ, vPL = 2, 3, 4, 5
vBR, WF, AC = 144, 112, 160


def wslot(s):
    return (1 + s if s < PRE else (s - PRE) % DW) * HS


def wload(s):
    return [([f"s_add_u32 s{sU}, s{sBS}, {s * 36864}"] if i == 0 else []) +
            [f"s_add_u32 m0, s{sWOF}, {wslot(s) + i * BLK}", "s_nop 0",
             f"buffer_load_dwordx4 v{vD + i}, {srd(SRD_P)}, s{sU} offen lds"] for i in range(4)]


def oreg(s, i):
    n = (s % OPT["DO"]) * 6 + i
    return 4 * n if n < 16 else 128 + 4 * (n - 16) if n < 24 else 64 + 4 * (n - 24)


def oload(s):
    off = f" offset:{(s % 4) * 1024}" if s % 4 else ""
    o = []
    for i in range(6):
        pre = [f"s_add_u32 s{sAI + i}, s{sAI + i}, 4096"] if (s % 4 == 0 and s and not OPT['p3same'] & 2) else []
        o.append(pre + [f"buffer_load_dwordx4 {ar(oreg(s, i), 4)}, v11, {srd(SRD_O)}, s{sAI + i} offen{off}{FLAGS[OPT['oflag']]}"])
    return o


def p3_setup():
    Z = Asm()
    Z(f"s_lshr_b32 s{sU}, s2, 3")
    Z(f"s_mul_i32 s{sPF}, s{sU}, 6912")
    Z(f"s_mul_i32 s{sNT}, s{sU}, 43")
    Z(f"s_lshr_b32 s{sNT}, s{sNT}, 7")
    Z(f"s_mul_i32 s{sMT}, s{sNT}, 3")
    Z(f"s_sub_u32 s{sMT}, s{sU}, s{sMT}")
    if OPT["xmap"] == 1:
        Z(f"s_and_b32 s{sCA}, s2, 1")
        Z(f"s_xor_b32 s{sCA}, s{sCA}, 1")
        Z(f"s_lshl_b32 s{sCA}, s{sCA}, 2")
        Z(f"s_bfe_u32 s{sU}, s2, 0x20001")
        Z(f"s_add_u32 s{sCA}, s{sCA}, s{sU}")
    else:
        Z(f"s_and_b32 s{sCA}, s2, 7")
    Z(f"s_mul_i32 s{sU}, s{sCA}, 3")
    Z(f"s_add_u32 s{sMT}, s{sMT}, s{sU}")
    Z(f"s_lshl_b32 s{sCA}, s{sCA}, 2")
    Z(f"s_add_u32 s{sCA}, s{sCA}, s{sW}")
    Z(f"s_lshl_b32 s{sCA}, s{sCA}, 3")
    Z(f"s_lshl_b32 s{sPA}, s{sB}, 2")
    Z(f"s_lshr_b32 s{sU}, s{sH}, 3")
    Z(f"s_add_u32 s{sPA}, s{sPA}, s{sU}")
    Z(f"s_lshl_b32 s{sPA}, s{sPA}, 3")
    Z(f"v_lshrrev_b32 v{vPF}, 3, v0")
    Z(f"v_mul_u32_u24 v{vBD}, 1152, v{vPF}")
    Z(f"v_lshlrev_b32 v{vPF}, 1, v12")
    Z(f"v_and_b32 v{vZ}, 7, v0")
    Z(f"v_xor_b32 v{vPF}, v{vPF}, v{vZ}")
    Z(f"v_lshl_add_u32 v{vBD}, v{vPF}, 4, v{vBD}")
    Z(f"v_min_u32 v{vPF}, 53, v0")
    Z(f"v_lshlrev_b32 v{vPF}, 7, v{vPF}")
    Z(f"v_mov_b32 v{vZ}, 0")
    Z(f"s_lshl_b32 s{sLD}, s{sW}, 12")
    Z(f"s_mul_i32 s{sBS}, s{sW}, {1024 * 1152}")
    Z(f"s_add_u32 s{sPF}, s{sPF}, s{sBS}")
    Z(f"s_lshl_b32 s{sU}, s{sNT}, 7")
    Z(f"s_add_u32 s{sBS}, s{sBS}, s{sU}")
    Z(f"s_cmp_ge_u32 s2, 216 | s_cselect_b32 s{sBS}, 0x40000000, s{sBS}")
    Z(f"s_mov_b32 s{SRD_OUT}, s{sOUTP}")
    Z(f"s_mov_b32 s{SRD_OUT + 1}, s{sOUTP + 1}")
    Z(f"s_mov_b32 s{SRD_OUT + 2}, {2304 * 1152}")
    Z(f"s_mov_b32 s{SRD_D}, s{sOUTP + 2}")
    Z(f"s_mov_b32 s{SRD_D + 1}, s{sOUTP + 3}")
    Z(f"s_mov_b32 s{SRD_D + 2}, 256")
    if OPT["diag"]:
        Z(f"s_mov_b32 s{sINC}, 16384")
    return [x.strip() for x in Z.l]


def o_bases(oob):
    o = [f"s_mul_i32 s{sAI}, s{sMT}, {6 * QP}", f"s_mul_i32 s{sU}, s{sW}, {GP}", f"s_add_u32 s{sAI}, s{sAI}, s{sU}"]
    if oob:
        o += [f"s_cmp_ge_u32 s{sRDY}, 8", f"s_cselect_b32 s{sAI}, s{sAI}, 0x40000000"]
    o += [f"s_add_u32 s{sAI + i}, s{sAI}, {i * QP}" for i in range(1, 6)]
    return o


def side_block(A):
    A.label("L1_side")
    if PRE == 4:
        A(f"s_cmp_eq_u32 s{sSIDE}, 2")
        A("s_cbranch_scc1 L1_tail")
        A(f"s_cmp_eq_u32 s{sSIDE}, 0")
        A("s_cbranch_scc1 L1_side1")
        A(f"s_mov_b32 s{sSIDE}, 2")
        A(f"s_mov_b32 s{sCNT}, 0")
        A(f"s_mov_b32 s{sKVS}, 0x40000000")
        A("s_branch L1_back")
        A.label("L1_side1")
    else:
        A(f"s_cmp_lg_u32 s{sSIDE}, 0")
        A("s_cbranch_scc1 L1_tail")
    A(f"global_load_dword v{vDUM}, v{vCW}, s[{sPC}:{sPC + 1}]")
    A(f"s_mov_b32 s{sSIDE}, 1")
    A(f"s_mov_b32 s{sCNT}, {1 if PRE == 4 else 2}")
    A(f"s_mov_b32 s{sINC}, {2 * 36864}")
    A(f"s_sub_u32 s{sKVS}, s{sBS}, {2 * 36864}")
    A(f"s_mov_b32 s{SRD_K}, s{SRD_P}")
    A(f"s_mov_b32 s{SRD_K + 1}, s{SRD_P + 1}")
    A(f"s_mov_b32 s{SRD_K + 2}, {4096 * 1152}")
    A(f"s_add_u32 s{SRD_V}, s{SRD_P}, 36864")
    A(f"s_addc_u32 s{SRD_V + 1}, s{SRD_P + 1}, 0")
    A(f"s_mov_b32 s{SRD_V + 2}, {4096 * 1152 - 36864}")
    for i in range(4):
        A(f"v_add_u32 v{vD + i}, {i * 9216}, v{vBD}")
    A("s_branch L1_back")


def p3(A, rest):
    DO = OPT["DO"]
    u0, u1 = 253, 254
    vBR = 224
    assert PRE == 4

    def wreg(s):
        return QV + 16 * s if s < PRE else WF + 16 * (s % 2)

    def wreads(s):
        o = wslot(s)
        return [f"ds_read_b64_tr_b16 {vr(wreg(s) + 4 * n + 2 * e, 2)}, v{vBR + 4 * (o // (3 * HS)) + n} offset:{o % (3 * HS) + e * 2 * BLK}"
                for n in range(4) for e in range(2)]

    A(f"v_bfe_u32 v{u0}, v0, 2, 3")
    A(f"v_lshlrev_b32 v{vBR}, 7, v{u0}")
    A(f"v_bfe_u32 v{u0}, v0, 3, 2")
    A(f"v_xor_b32 v{u0}, s{sW}, v{u0}")
    A(f"v_lshl_add_u32 v{vBR}, v{u0}, 5, v{vBR}")
    A(f"v_lshl_add_u32 v{vBR}, v15, 3, v{vBR}")
    A(f"v_lshrrev_b32 v{u0}, 5, v0")
    A(f"v_mul_u32_u24 v{u0}, {BLK}, v{u0}")
    A(f"v_add_u32 v{u0}, s{sWOF}, v{u0}")
    for n_ in range(1, 4):
        A(f"v_xor_b32 v{vBR + n_}, {32 * n_}, v{vBR}")
    for n_ in range(4):
        A(f"v_add_u32 v{vBR + n_}, v{u0}, v{vBR + n_}")
    for k in range(1, 3):
        for n_ in range(4):
            A(f"v_add_u32 v{vBR + 4 * k + n_}, {3 * HS * k}, v{vBR + n_}")
    A("s_waitcnt vmcnt(10)")
    pre = [x for s in range(PRE) for x in wreads(s)]
    cut = len(rest) * OPT["ppos"] // 4
    rest = rest[:cut] + [f"buffer_load_dword v{vPL}, v{vZ}, {srd(SRD_D)}, s{sCA} offen sc1"] + rest[cut:]
    for i in range(8):
        A.ext(pre[4 * i:4 * i + 4])
        A.ext(rest[(i * len(rest)) // 8:((i + 1) * len(rest)) // 8])
    A.ext(o_bases(False))
    stamp(A)
    A(f"v_mov_b32 v{u0}, 1")
    A(f"s_mov_b32 s{sCNT}, {1 << 22}")
    A("s_waitcnt vmcnt(0) lgkmcnt(0)")
    A("s_barrier")
    if OPT["diag"]:
        A("s_memrealtime s[78:79]")
    A(f"v_readfirstlane_b32 s{sRDY}, v{vPL}")

    def publish(lbl):
        A(f"s_cmp_lg_u32 s{sW}, 0")
        A(f"s_cbranch_scc1 {lbl}")
        A("s_mov_b64 exec, 1")
        A(f"buffer_atomic_add v{u0}, v{vZ}, {srd(SRD_D)}, s{sPA} offen sc1")
        A("s_mov_b64 exec, -1")
        A.label(lbl)

    A("s_cmp_ge_u32 s2, 216")
    A(f"s_cselect_b32 s{sRDY}, 0, s{sRDY}")
    A(f"s_cmp_ge_u32 s{sRDY}, {8 if OPT['fast'] else 999}")
    A("s_cbranch_scc1 L3_fast")
    publish("L3_na1")
    A("s_cmp_ge_u32 s2, 216")
    A("s_cbranch_scc1 L3_done")
    vmq, nfast = [], []
    NW0 = PRE + OPT["wpre"]
    for s in range(PRE, NW0):
        for p in wload(s):
            A.ext(p)
    A.label("L3_poll")
    A(f"buffer_load_dword v{u1}, v{vZ}, {srd(SRD_D)}, s{sCA} offen sc1")
    A("s_waitcnt vmcnt(0)")
    A(f"v_readfirstlane_b32 s{sU}, v{u1}")
    A(f"s_sub_u32 s{sCNT}, s{sCNT}, 1")
    A("s_cbranch_scc1 L3_rdy")
    A(f"s_cmp_ge_u32 s{sU}, 8")
    A("s_cbranch_scc1 L3_rdy")
    A(f"s_sleep {OPT['slp']}")
    A("s_branch L3_poll")
    A.label("L3_rdy")
    for s in range(DO):
        for p in oload(s):
            A.ext(p)
            vmq.append(("o", s))
    A("s_branch L3_go")
    A.label("L3_fast")
    seq = [("o", s) for s in range(DO)] + [("w", s) for s in range(PRE, NW0)]
    for n_, (k_, s) in enumerate(seq):
        for p in (oload(s) if k_ == "o" else wload(s)):
            A.ext(p)
            nfast.append((k_, s))
        if n_ == 1:
            publish("L3_na2")
    A.label("L3_go")
    if OPT["diag"]:
        A("s_memrealtime s[80:81]")
    OWN = 16

    def accr(n_, i):
        return vr(OWN + 4 * i, 4) if n_ == 0 else ar(AC + 4 * (6 * (n_ - 1) + i), 4)
    vW_, vR_ = 40, 43
    fin = [f"v_lshl_add_u32 v{vW_}, v0, 4, s{sWOF}", f"v_add_u32 v{vW_ + 1}, {2 * HS}, v{vW_}", f"v_add_u32 v{vW_ + 2}, {4 * HS}, v{vW_}"]
    for n_ in range(1, 4):
        fin += [f"s_xor_b32 s{sT0}, s{sW}, {n_}", f"s_mul_i32 s{sT0}, s{sT0}, {4 * BLK}", f"s_add_u32 s{sT0}, s{sT0}, {(n_ - 1) * 2 * HS}",
                f"v_lshl_add_u32 v{vR_ + n_ - 1}, v0, 4, s{sT0}"]
    fin += [f"v_bfe_u32 v10, v0, 4, 1", f"v_lshl_add_u32 v9, v10, 4, v13", f"v_mul_u32_u24 v9, 1152, v9",
            f"v_lshrrev_b32 v10, 5, v0", f"v_lshl_add_u32 v9, v10, 4, v9",
            f"s_mul_i32 s{sT1}, s{sMT}, {96 * 1152}", f"s_lshl_b32 s{sT0}, s{sNT}, 7", f"s_add_u32 s{sT1}, s{sT1}, s{sT0}",
            f"s_lshl_b32 s{sT0}, s{sW}, 5", f"s_add_u32 s{sT1}, s{sT1}, s{sT0}"]
    nw = NW0
    for s in range(32):
        cnt = []
        for q in (vmq, nfast):
            need = [i for i, t in enumerate(q) if t in (("o", s), ("w", s + 1))]
            cnt.append(len(q) - 1 - max(need) if need else 63)
        A(f"s_waitcnt vmcnt({min(min(cnt), 63)}) lgkmcnt(0)")
        rdq = wreads(s + 1) if PRE <= s + 1 < 32 else []
        ld = []
        if nw < 32 and nw - DW <= s:
            ld += [(p, ("w", nw)) for p in wload(nw)]
            nw += 1
        if s >= 1 and s - 1 + DO < 32:
            ld += [(p, ("o", s - 1 + DO)) for p in oload(s - 1 + DO)]
        extra = list(fin) if s == 30 else []
        wq = []
        k = 0
        for n_ in ((1, 2, 3, 0) if s == 31 else range(4)):
            for i in range(6):
                acc = accr(n_, i)
                A(f"{MF} {acc}, {vr(wreg(s) + 4 * n_, 4)}, {ar(oreg(s, i), 4)}, {'0' if s == 0 else acc}")
                k += 1
                if rdq and k % 2 == 1:
                    A(rdq.pop(0))
                if ld and k % 2 == 0:
                    p, tag = ld.pop(0)
                    A.ext(p)
                    vmq.append(tag)
                    nfast.append(tag)
                if extra and k % 2 == 0:
                    A.ext(extra[:3])
                    extra = extra[3:]
                if s == 31:
                    if n_:
                        wq.append(f"ds_write_b128 v{vW_ + n_ - 1}, {acc} offset:{(i // 3) * HS + (i % 3) * 1024}")
                    if k > 8:
                        A(wq.pop(0))
        assert not ld and not rdq and not extra
        A.ext(wq)
    assert nw == 32
    if OPT["diag"]:
        A("s_memrealtime s[82:83]")
    A("s_waitcnt lgkmcnt(0)")
    A("s_barrier")
    R = 48
    for x in range(3):
        for i in (2 * x, 2 * x + 1):
            for n_ in range(1, 4):
                A(f"ds_read_b128 {vr(R + 12 * i + 4 * (n_ - 1), 4)}, v{vR_ + n_ - 1} offset:{(i // 3) * HS + (i % 3) * 1024}")
    for x in range(3):
        A(f"s_waitcnt lgkmcnt({6 * (2 - x)})")
        for i in (2 * x, 2 * x + 1):
            for e in range(4):
                A(f"v_add_f32 v{OWN + 4 * i + e}, v{OWN + 4 * i + e}, v{R + 12 * i + e}")
                A(f"v_add_f32 v{R + 12 * i + 4 + e}, v{R + 12 * i + 4 + e}, v{R + 12 * i + 8 + e}")
            for e in range(4):
                A(f"v_add_f32 v{OWN + 4 * i + e}, v{OWN + 4 * i + e}, v{R + 12 * i + 4 + e}")
        d = 124 + 4 * x
        for e in range(4):
            A(f"v_cvt_pk_bf16_f32 v{d + e}, v{OWN + 8 * x + 2 * e}, v{OWN + 8 * x + 2 * e + 1}")
        A("s_nop 1")
        A(f"v_permlane16_swap_b32 v{d}, v{d + 2}")
        A(f"v_permlane16_swap_b32 v{d + 1}, v{d + 3}")
        A(f"buffer_store_dwordx4 {vr(d, 4)}, v9, {srd(SRD_OUT)}, s{sT1} offen{FLAGS[OPT['outflag']]}")
        A(f"s_add_u32 s{sT1}, s{sT1}, {32 * 1152}")
    A.label("L3_done")


def k1(A):
    A.raw(".p2align 8")
    A.raw(".type attn_kernel,@function")
    A.label("attn_kernel")
    A("s_cmp_ge_u32 s2, 256")
    A("s_cbranch_scc1 L1_end")
    A("s_load_dwordx8 s[32:39], s[0:1], 0")
    A("s_load_dwordx2 s[40:41], s[0:1], 56")
    A("s_load_dwordx2 s[30:31], s[0:1], 32")
    if OPT["tlb"] == 1:
        A("s_load_dwordx4 s[20:23], s[0:1], 40")
    A(f"s_getpc_b64 s[{sPC}:{sPC + 1}]")
    A.label("L1_pc")
    stamp(A)
    if OPT["diag"]:
        A("s_memrealtime s[92:93]")
    A("s_lshr_b32 s3, s2, 3")
    if OPT["cpf"]:
        A(f"s_lshl_b32 s{sT0}, s3, 11")
        A(f"v_lshl_add_u32 v1, v0, 7, s{sT0}")
        A("v_min_u32 v1, L_code_end-L1_pc-4, v1")
        A("v_cmp_gt_u32 vcc, 16, v0")
        A("s_and_saveexec_b64 s[46:47], vcc")
        A("s_cbranch_execz L1_nocpf")
        A(f"global_load_dword v{vDUM}, v1, s[{sPC}:{sPC + 1}]")
        A.label("L1_nocpf")
        A("s_mov_b64 exec, s[46:47]")
    A("v_lshrrev_b32 v1, 6, v0")
    A("v_and_b32 v0, 63, v0")
    A(f"v_readfirstlane_b32 s{sW}, v1")
    if OPT["xmap"] == 0:
        A(f"s_and_b32 s{sB}, s2, 7")
        A(f"s_mov_b32 s{sH}, s3")
    else:
        A(f"s_and_b32 s{sB}, s2, 1")
        A(f"s_lshl_b32 s{sB}, s{sB}, 2")
        A(f"s_and_b32 s{sT0}, s3, 3")
        A(f"s_add_u32 s{sB}, s{sB}, s{sT0}")
        A(f"s_and_b32 s{sH}, s2, 6")
        A(f"s_lshl_b32 s{sH}, s{sH}, 2")
        A(f"s_lshr_b32 s{sT0}, s3, 2")
        A(f"s_add_u32 s{sH}, s{sH}, s{sT0}")
    A(f"s_and_b32 s{sP}, s{sW}, 1")
    nph = OPT["nph"]
    if nph == 1:
        A(f"s_mov_b32 s{sCW}, 0")
    elif nph == 2:
        A(f"s_add_u32 s{sCW}, s{sB}, s{sH}")
        A(f"s_and_b32 s{sCW}, s{sCW}, 1")
        A(f"s_mul_i32 s{sCW}, s{sCW}, {4 * 128}")
    elif nph == 4:
        A(f"s_add_u32 s{sCW}, s{sB}, s{sH}")
        A(f"s_and_b32 s{sCW}, s{sCW}, 3")
        A(f"s_mul_i32 s{sCW}, s{sCW}, {2 * 128}")
    elif nph == 3:
        A(f"s_add_u32 s{sCW}, s{sB}, s{sH}")
        A(f"s_mul_i32 s{sT0}, s{sCW}, 43")
        A(f"s_lshr_b32 s{sT0}, s{sT0}, 7")
        A(f"s_mul_i32 s{sT0}, s{sT0}, 3")
        A(f"s_sub_u32 s{sCW}, s{sCW}, s{sT0}")
        A(f"s_mul_i32 s{sCW}, s{sCW}, {3 * 128}")
    A(f"s_mov_b32 s{sCX}, s{sCW}")
    t0, t1, t2, g4, i16, r4, cq = 9, 10, 11, 12, 13, 14, 15
    A(f"v_lshrrev_b32 v{g4}, 4, v0")
    A(f"v_and_b32 v{i16}, 15, v0")
    A(f"v_lshrrev_b32 v{t0}, 5, v0")
    A(f"v_lshlrev_b32 v{vWD}, 18, v{t0}")
    A(f"v_and_b32 v{t0}, 1, v{g4}")
    A(f"v_lshl_add_u32 v{vWD}, v{t0}, 15, v{vWD}")
    A(f"v_lshl_add_u32 v{vWD}, v{i16}, 4, v{vWD}")
    A(f"v_lshrrev_b32 v{t0}, 3, v0")
    A(f"v_mul_u32_u24 v{vXD}, 1152, v{t0}")
    A(f"v_and_b32 v{t0}, 7, v0")
    A(f"v_xor_b32 v{t0}, v{t0}, v{g4}")
    A(f"v_lshl_add_u32 v{vXD}, v{t0}, 4, v{vXD}")
    A(f"v_xor_b32 v{vXD + 1}, 64, v{vXD}")
    A(f"s_lshl_b32 s{sT0}, s{sP}, 6")
    A(f"v_xor_b32 v{vXDE}, s{sT0}, v{vXD}")
    A(f"s_lshl_b32 s{sXD}, s{sW}, 13")
    A(f"s_add_u32 s{sXD}, s{sXD}, {XOFF}")
    A(f"s_mul_i32 s{sXS}, s{sW}, {8 * 9216}")
    A(f"s_lshl_b32 s{sXED}, s{sW}, 10")
    A(f"s_add_u32 s{sXED}, s{sXED}, {XEOFF}")
    A(f"s_mul_i32 s{sXES}, s{sW}, 9216")
    A(f"s_add_u32 s{sXES}, s{sXES}, {32 * 9216}")
    A(f"s_lshr_b32 s{sT0}, s{sW}, 1")
    A(f"s_mul_i32 s{sWD}, s{sT0}, {WG1}")
    A(f"s_mul_i32 s{sT0}, s{sP}, {WG0}")
    A(f"s_add_u32 s{sWD}, s{sWD}, s{sT0}")
    A(f"s_lshl_b32 s{sWS}, s{sW}, 16")
    A(f"s_mul_i32 s{sT1}, s{sB}, 331776")
    A(f"s_lshl_b32 s{sT0}, s{sH}, 8")
    A(f"s_mov_b32 s{SRD_X + 2}, 331776")
    A(f"s_mov_b32 s{SRD_X + 3}, 0x20000")
    A(f"s_sub_u32 s{SRD_W + 2}, {576 * 8192}, s{sT0}")
    A(f"s_mov_b32 s{SRD_W + 3}, 0x20000")
    if OPT["fine"]:
        stamp(A)
    A("s_waitcnt lgkmcnt(0)")
    if OPT["fine"]:
        stamp(A)
    A(f"s_add_u32 s{SRD_W}, s38, s{sT0}")
    A(f"s_addc_u32 s{SRD_W + 1}, s39, 0")
    A(f"s_add_u32 s{SRD_X}, s32, s{sT1}")
    A(f"s_addc_u32 s{SRD_X + 1}, s33, 0")
    S = Asm()
    E = A if OPT["tlb"] == 3 else S
    E(f"s_lshl_b32 s{sT1}, s{sB}, 5")
    E(f"s_add_u32 s{sT1}, s{sT1}, s{sH}")
    E(f"s_lshl_b32 s{sT1}, s{sT1}, 19")
    if OPT["tlb"] == 3:
        for r_, p_ in ((SRD_K, 34), (SRD_V, 36)):
            A(f"s_add_u32 s{r_}, s{p_}, s{sT1}")
            A(f"s_addc_u32 s{r_ + 1}, s{p_ + 1}, 0")
            A(f"s_load_dword s{sRDY}, s[{r_}:{r_ + 1}], 0")
    S(f"s_add_u32 s{SRD_K}, s34, s{sT1} | s_addc_u32 s{SRD_K + 1}, s35, 0")
    S(f"s_mov_b32 s{SRD_K + 2}, 524288")
    S(f"s_mov_b32 s{SRD_K + 3}, 0x20000")
    S(f"s_add_u32 s{SRD_V}, s36, s{sT1} | s_addc_u32 s{SRD_V + 1}, s37, 0")
    if OPT["tlb"] == 2:
        S(f"s_load_dword s{sRDY}, s[{SRD_K}:{SRD_K + 1}], 0")
        S(f"s_load_dword s{sRDY}, s[{SRD_V}:{SRD_V + 1}], 0")
    S(f"s_mov_b32 s{SRD_V + 2}, 524288")
    S(f"s_mov_b32 s{SRD_V + 3}, 0x20000")
    S(f"s_add_u32 s{SRD_O}, s40, {OPT['wsoff'] << 20} | s_addc_u32 s{SRD_O + 1}, s41, 0")
    S(f"s_mov_b32 s{SRD_O + 2}, {(DIAG_OFF + (2 << 20)) if OPT['diag'] else WS_O_BYTES}")
    S(f"s_mov_b32 s{SRD_O + 3}, 0x20000")
    S(f"s_mov_b32 s{SRD_P}, s30")
    S(f"s_mov_b32 s{SRD_P + 1}, s31")
    S(f"s_mov_b32 s{SRD_P + 2}, {4096 * 1152}")
    S(f"s_mov_b32 s{SRD_P + 3}, 0x20000")
    S(f"v_bfe_u32 v{r4}, v0, 2, 2")
    S(f"v_and_b32 v{cq}, 3, v0")
    XA, XE, WL, WH = vQA, vQA + 2, vQA + 4, vQA + 5
    S(f"v_lshlrev_b32 v{XE}, 7, v{i16}")
    S(f"v_lshrrev_b32 v{t0}, 1, v{i16}")
    S(f"v_xor_b32 v{t0}, v{t0}, v{g4}")
    S(f"v_lshl_add_u32 v{XE}, v{t0}, 4, v{XE}")
    S(f"v_add_u32 v{XA}, s{sXD}, v{XE}")
    S(f"s_lshr_b32 s{sT1}, s{sW}, 1")
    S(f"s_lshl_b32 s{sT1}, s{sT1}, 11")
    S(f"s_add_u32 s{sT1}, s{sT1}, {XEOFF}")
    S(f"v_add_u32 v{XE}, s{sT1}, v{XE}")
    S(f"v_xor_b32 v{XA + 1}, 64, v{XA}")
    S(f"v_xor_b32 v{XE + 1}, 64, v{XE}")
    S(f"v_lshrrev_b32 v{t0}, 1, v{g4}")
    S(f"v_mul_u32_u24 v{WL}, {WG1}, v{t0}")
    S(f"v_and_b32 v{t0}, 1, v{g4}")
    S(f"v_mul_u32_u24 v{t0}, {WG0}, v{t0}")
    S(f"v_add_u32 v{WL}, v{WL}, v{t0}")
    S(f"v_mul_u32_u24 v{t0}, {XB}, v{r4}")
    S(f"v_add_u32 v{WL}, v{WL}, v{t0}")
    S(f"v_lshl_add_u32 v{WL}, v{cq}, 4, v{WL}")
    S(f"s_lshl_b32 s{sT1}, s{sP}, 7")
    S(f"s_xor_b32 s{sOO}, s{sT1}, 128")
    S(f"v_add_u32 v{WH}, s{sOO}, v{WL}")
    S(f"v_add_u32 v{WL}, s{sT1}, v{WL}")
    for i in range(6):
        S(f"v_add_u32 v{vQA + 6 + i}, {2 * STSZ}, v{vQA + i}")
    S(f"s_lshl_b32 s{sT1}, s{sW}, 12")
    S(f"v_lshl_add_u32 v{vV4}, v0, 4, s{sT1}")
    S(f"s_mul_i32 s{sWOF}, s{sW}, {4 * BLK}")

    def dma_regs(Z):
        for i in range(4):
            Z(f"v_add_u32 v{vD + i}, {i * 1024}, v{vV4}")
    dma_regs(S)
    S(f"v_mul_u32_u24 v{t0}, {BLK}, v{i16}")
    S(f"v_lshl_add_u32 v{t0}, v{g4}, 4, v{t0}")
    S(f"v_lshl_add_u32 v{t1}, v{g4}, 2, v{r4}")
    S(f"v_mul_u32_u24 v{t1}, {BLK}, v{t1}")
    S(f"v_lshl_add_u32 v{t1}, v{cq}, 3, v{t1}")
    for j in range(2):
        S(f"s_xor_b32 s{sT1}, s{sP}, {j}")
        S(f"s_lshl_b32 s{sT1}, s{sT1}, 9")
        S(f"v_add_u32 v{vVB + j}, s{sT1}, v{t1}")
        S(f"s_lshl_b32 s{sOO}, s{sP}, 7")
        S(f"s_add_u32 s{sT1}, s{sT1}, s{sOO}")
        S(f"v_add_u32 v{vKB + 2 * j}, s{sT1}, v{t0}")
        S(f"s_xor_b32 s{sT1}, s{sT1}, 128")
        S(f"v_add_u32 v{vKB + 2 * j + 1}, s{sT1}, v{t0}")
    if OPT["rot"]:
        S(f"s_mul_i32 s{sG0}, s2, {OPT['rot']}")
        S(f"s_lshr_b32 s{sT1}, s2, 4")
        S(f"s_add_u32 s{sG0}, s{sG0}, s{sT1}")
        S(f"s_and_b32 s{sG0}, s{sG0}, 15")
        S(f"s_mul_i32 s{sG0}, s{sG0}, {16384 * 7 // 4 // 16384 * 16384}")
    S(f"s_lshl_b32 s{sWP}, s2, 2")
    S(f"s_add_u32 s{sWP}, s{sWP}, s{sW}")
    S(f"s_mul_i32 s{sWP}, s{sWP}, 4608")
    S(f"v_min_u32 v7, 1, v0")
    S(f"v_lshlrev_b32 v7, 7, v7")
    S(f"s_lshl_b32 s{sDV}, s{sP}, 10")
    S(f"s_sub_u32 s{sDV}, 512, s{sDV}")
    S(f"v_min_u32 v{vCW}, 1, v0")
    S(f"s_lshr_b32 s{sT1}, s2, 3")
    S(f"s_lshl_b32 s{sT1}, s{sT1}, 2")
    S(f"s_add_u32 s{sT1}, s{sT1}, s{sW}")
    S(f"s_lshl_b32 s{sT1}, s{sT1}, 8")
    S(f"v_lshl_add_u32 v{vCW}, v{vCW}, 7, s{sT1}")
    S(f"v_min_u32 v{vCW}, L1_redo-L1_tail, v{vCW}")
    S(f"v_add_u32 v{vCW}, L1_tail-L1_pc, v{vCW}")
    S(f"v_mov_b32 v{t0}, 0x3f803f80")
    S(f"v_cmp_eq_u32 vcc, 0, v{cq}")
    S(f"s_mov_b32 s{sSC}, {QSCALE:#x}")
    S(f"s_mov_b32 s{sREDO}, 0")
    S(f"v_cndmask_b32 v{t0}, 0, v{t0}, vcc")
    for i in range(4):
        S(f"v_accvgpr_write_b32 a{ONES + i}, v{t0}")
    S(f"s_add_u32 s{sT1}, s{sXD}, {2 * STSZ + 6144}")
    S(f"v_lshl_add_u32 v{t0}, v0, 4, s{sT1}")
    S(f"s_xor_b32 s{sT1}, s{sW}, 1")
    S(f"s_lshl_b32 s{sT1}, s{sT1}, 13")
    S(f"s_add_u32 s{sT1}, s{sT1}, {XOFF + 2 * STSZ + 6144}")
    S(f"v_lshl_add_u32 v{t1}, v0, 4, s{sT1}")

    def loop_scalars(Z):
        if OPT["rot"]:
            Z(f"s_add_u32 s{sKVS}, s{sG0}, {DD * 16384}")
        else:
            Z(f"s_mov_b32 s{sKVS}, {DD * 16384}")
        Z(f"s_add_u32 s{sKD}, s{sWOF}, {(NS - 1) * HS}")
        Z(f"s_mov_b32 s{sVD}, s{sWOF}")
        Z(f"s_mov_b32 s{sKN}, {2 * HS}")
        Z(f"s_mov_b32 s{sVN}, {3 * HS}")
        Z(f"s_mov_b32 s{sCNT}, 28")
        Z(f"s_mov_b32 s{sSIDE}, 0")
        if Z is not S or not OPT["diag"]:
            Z(f"s_mov_b32 s{sINC}, 16384")
        if OPT["diag"]:
            Z("s_mov_b32 s41, 31")

    def loop_addr():
        return [f"v_add_u32 v{vK}, {2 * HS}, v{vKB}", f"v_add_u32 v{vK + 1}, {2 * HS}, v{vKB + 1}",
                f"v_mov_b32 v{vK + 2}, v{vKB + 2}", f"v_mov_b32 v{vK + 3}, v{vKB + 3}",
                f"v_add_u32 v{vV}, {HS}, v{vVB}", f"v_add_u32 v{vV + 1}, {HS}, v{vVB + 1}"]

    loop_scalars(S)
    for i in range(180):
        S(f"v_accvgpr_write_b32 a{i}, 0")
    setup = [x.strip() for x in S.l]
    for i_, p in enumerate(wg_pieces(0) + x_pieces(0)):
        A.ext(p)
        if OPT["fine"] and i_ in (0, 8):
            stamp(A)
    if OPT["fine"]:
        stamp(A)
        A("s_waitcnt vmcnt(12)")
        stamp(A)
        A("s_waitcnt vmcnt(0)")
        stamp(A)
        OPT["diag"] = 2
    npf = 0

    def tlb_touch():
        A(f"v_lshlrev_b32 v{t0}, 18, v0")
        A(f"s_cmp_eq_u32 s{sW}, 1")
        A("s_cbranch_scc1 L1_t1")
        A(f"s_cmp_eq_u32 s{sW}, 2")
        A("s_cbranch_scc1 L1_t2")
        A(f"s_cmp_eq_u32 s{sW}, 3")
        A("s_cbranch_scc1 L1_t3")
        A(f"s_lshl_b32 s{sT1}, s{sB}, 5")
        A(f"s_add_u32 s{sT1}, s{sT1}, s{sH}")
        A(f"s_lshl_b32 s{sT1}, s{sT1}, 19")
        A(f"v_min_u32 v{t0}, {1 << 18}, v{t0}")
        A(f"v_add_u32 v{t0}, s{sT1}, v{t0}")
        A(f"global_load_dword v{vDUM}, v{t0}, s[34:35] nt")
        A(f"global_load_dword v{vDUM}, v{t0}, s[36:37] nt")
        A("s_branch L1_td")
        A.label("L1_t1")
        A(f"v_min_u32 v{t0}, {17 << 18}, v{t0}")
        A(f"global_load_dword v{vDUM}, v{t0}, s[38:39]")
        A(f"global_load_dword v{vDUM}, v{t0}, s[30:31]")
        A("s_branch L1_td")
        A.label("L1_t2")
        A(f"v_lshlrev_b32 v{t1}, 20, v0")
        A(f"v_min_u32 v{t1}, {17 << 20}, v{t1}")
        A(f"v_add_u32 v{t1}, {OPT['wsoff'] << 20}, v{t1}")
        A(f"global_load_dword v{vDUM}, v{t1}, s[40:41] sc1 nt")
        A(f"v_min_u32 v{t0}, {10 << 18}, v{t0}")
        A(f"global_load_dword v{vDUM}, v{t0}, s[20:21] nt")
        A("s_branch L1_td")
        A.label("L1_t3")
        A(f"v_mov_b32 v{t1}, 0")
        A(f"global_load_dword v{vDUM}, v{t1}, s[22:23] sc1")
        A(f"v_min_u32 v{t0}, {10 << 18}, v{t0}")
        A(f"global_load_dword v{vDUM}, v{t0}, s[32:33]")
        A.label("L1_td")

    if OPT["tlb"] == 1:
        tlb_touch()
        npf = 2
    if OPT["pf"]:
        na = OPT["pfa"]
        A(f"v_min_u32 v{t0}, {9 * na - 1}, v0")
        A(f"v_mul_u32_u24 v{t1}, 57, v{t0}")
        A(f"v_lshrrev_b32 v{t1}, 9, v{t1}")
        A(f"v_mul_u32_u24 v{t2}, 9, v{t1}")
        A(f"v_sub_u32 v{t0}, v{t0}, v{t2}")
        A(f"v_mul_u32_u24 v248, 1152, v{t0}")
        A(f"s_and_b32 s{sT1}, s{sH}, 7")
        A(f"s_lshl_b32 s{sT1}, s{sT1}, 2")
        A(f"s_add_u32 s{sT1}, s{sT1}, s{sW}")
        A(f"s_mul_i32 s{sT1}, s{sT1}, {9 * 1152}")
        A(f"v_add_u32 v248, s{sT1}, v248")
        A(f"v_lshl_add_u32 v246, v{t1}, 7, v248")
        A(f"buffer_load_dword v{vDUM}, v246, {srd(SRD_X)}, 0 offen offset:128")
        A(f"v_bfe_u32 v{t0}, v0, 1, 2")
        A(f"v_lshlrev_b32 v249, 13, v{t0}")
        A(f"v_and_b32 v{t0}, 1, v0")
        A(f"v_lshl_add_u32 v249, v{t0}, 7, v249")
        A(f"s_and_b32 s{sT1}, s{sB}, 3")
        A(f"s_lshl_b32 s{sT1}, s{sT1}, 2")
        A(f"s_add_u32 s{sT1}, s{sT1}, s{sW}")
        A(f"s_lshl_b32 s{sT1}, s{sT1}, 15")
        A(f"v_add_u32 v249, s{sT1}, v249")
        A(f"v_lshrrev_b32 v{t0}, 3, v0")
        A(f"v_min_u32 v{t0}, {na - 1}, v{t0}")
        A(f"v_lshl_add_u32 v247, v{t0}, 19, v249")
        A(f"s_mov_b32 s{sT1}, {1 << 19}")
        A(f"buffer_load_dword v{vDUM}, v247, {srd(SRD_W)}, s{sT1} offen")
        npf = 2
    first = []
    for c in range(1, OPT["up"]):
        first += wg_pieces(c) + x_pieces(c)
    per = len(setup) // (len(first) + 1) + 1
    stamp(A)
    for p in [[]] + first:
        A.ext(p)
        for _ in range(per):
            if setup:
                for y in setup.pop(0).split(" | "):
                    A(y)
    assert not setup
    stamp(A)
    A(f"s_waitcnt vmcnt({len(first) + npf})")
    A("s_barrier")
    stamp(A)
    P = lambda n: [item_piece(n, i) for i in range(4)]
    kw = [f"global_load_dword v{vDUM}, v{vCW}, s[{sPC}:{sPC + 1}]"] if OPT["cpf"] else []
    kw = [f"buffer_load_dword v{vDUM}, v7, {srd(SRD_P)}, s{sWP} offen"] if OPT["wopf"] == 2 else []
    if OPT["stg"] == 0:
        extras = {4: P(0), 5: P(1), 6: P(2)}
        al = P(0) + P(1) + P(2)
        if OPT["kvs"] == 1:
            extras = {4: al[0:3], 5: al[3:6], 6: al[6:8], 7: al[8:12]}
        if OPT["kvs"] >= 4:
            extras = {4: al[:OPT["kvs"]]}
            if OPT["kvs"] < 12:
                extras[7] = al[OPT["kvs"]:]
    else:
        extras = {7: P(0) + P(1) + P(2)}
    if DD == 4:
        extras[8] = P(3) + P(4) + P(5)
        late = P(6) + P(7)
        late[0] = kw + late[0]
        late[7] = late[7] + kw
    elif DD == 3:
        extras[8] = P(3)
        late = P(4) + P(5)
        late[7] = late[7] + kw
    else:
        extras[8] = P(3)
        late = [[]] * 8
    if OPT["pf"]:
        for c in range(OPT["pfa"] + 1, 9):
            at = max(0, c - OPT["pf"])
            extras[at] = extras.get(at, []) + [
                [f"buffer_load_dword v{vDUM}, v248, {srd(SRD_X)}, 0 offen offset:{c * 128}"],
                [f"s_mov_b32 s{sT0}, {c << 19}", f"buffer_load_dword v{vDUM}, v249, {srd(SRD_W)}, s{sT0} offen"]]
    if OPT["wopf"] == 1:
        extras[7] = extras.get(7, []) + [[f"v_lshlrev_b32 v253, 7, v0", f"v_min_u32 v253, {35 * 128}, v253",
                      f"buffer_load_dword v{vDUM}, v253, {srd(SRD_P)}, s{sWP} offen"]]

    def conv(t, kk):
        src = ACC + 32 * t + 8 * kk
        dst = QV + 16 * t + 4 * kk
        o = []
        for i in range(4):
            o += [f"v_mul_f32 v{src + 2 * i}, s{sSC}, v{src + 2 * i}", f"v_mul_f32 v{src + 2 * i + 1}, s{sSC}, v{src + 2 * i + 1}"]
        for i in range(4):
            o.append(f"v_cvt_pk_bf16_f32 v{dst + i}, v{src + 2 * i}, v{src + 2 * i + 1}")
        return o

    KF = [184, 224]
    k0reads = [kread(ar(KF[kb] + 4 * kk, 4), vKB, kb, kk) for kb in range(2) for kk in range(4)]
    ti = []

    def spread(lst, g0, g1):
        for i, x in enumerate(lst):
            ti.append((g0 + (i * (g1 - g0)) // len(lst), x))

    spread(conv(4, 0) + conv(0, 0) + conv(1, 0) + conv(2, 0), 13, 22)
    spread(conv(4, 1) + [f"ds_write_b128 v{t0}, {vr(QV + 64, 4)}", f"ds_write_b128 v{t0}, {vr(QV + 68, 4)} offset:1024"]
           + conv(3, 0) + conv(0, 1), 22, 29)
    ti.append((29, "BAR"))
    spread([f"ds_read_b128 {vr(QV + 72, 4)}, v{t1}", f"ds_read_b128 {vr(QV + 76, 4)}, v{t1} offset:1024"] + k0reads[:4]
           + conv(1, 1) + k0reads[4:] + conv(2, 1) + conv(3, 1), 29, 36)
    nb = [i for i, x in enumerate(ti) if x[1] == "BAR"][0]
    ti[nb:nb + 1] = [(29, "VMW"), (29, "s_barrier")]
    qp, issued = build_qproj(extras, OPT["up"], ti, {6: [f"s_load_dwordx4 s[{sOUTP}:{sOUTP + 3}], s[0:1], 40"], 8: p3_setup()})
    vms = [x for x in qp if x.startswith(("buffer_load", "global_load"))]
    lastv0 = max(i for i, x in enumerate(vms) if x == P(1)[3][-1] and i == min(k for k, y in enumerate(vms) if y == x))
    ny = len(vms) - 1 - lastv0
    qp = [(f"s_waitcnt vmcnt({ny}) lgkmcnt(0)" if x == "VMW" else x) for x in qp]
    A.ext(tidy(qp) if OPT['tidy'] else qp)
    stamp(A)
    body, pro, tail = build_loop()

    def qk0(kb, kk, useneg):
        o = []
        for t in range(5):
            Sx = Sreg(t, 0) + 4 * kb
            C = (vr(NEG + 4 * t, 4) if useneg else "0") if kk == 0 else vr(Sx, 4)
            o.append(f"{MF} {vr(Sx, 4)}, {ar(KF[kb] + 4 * kk, 4)}, {vr(QV + 16 * t + 4 * kk, 4)}, {C}")
        return o

    def mix(mf, fill):
        n = len(mf)
        o = []
        for i, m in enumerate(mf):
            o.append(m)
            o += fill[(i * len(fill)) // n:((i + 1) * len(fill)) // n]
        A.ext(tidy(o) if OPT['tidy'] else o)

    flat = lambda ps: [x for p in ps for x in p]
    pro_rd = [x for x in pro if is_ds(x)]
    pro_sm = [x for x in pro if not is_ds(x)]
    A.ext(conv(0, 2) + flat(late[0:2]) + conv(0, 3))
    A("s_waitcnt lgkmcnt(0)")
    mix(qk0(0, 0, False) + qk0(0, 1, False), conv(1, 2) + conv(2, 2) + conv(3, 2) + flat(late[2:4]))
    mix(qk0(0, 2, False), conv(1, 3) + conv(2, 3) + conv(3, 3))
    A("s_nop 0")
    A.ext(qk0(0, 3, False))
    A.ext(loop_addr())
    A.ext(pro_rd)
    A.ext(flat(late[4:6]))
    for t in range(5):
        Sx = Sreg(t, 0)
        A(f"v_max3_f32 v{vM + t}, v{Sx}, v{Sx + 1}, v{Sx + 2}")
    for t in range(5):
        A(f"v_max_f32 v{vM + t}, v{vM + t}, v{Sreg(t, 0) + 3}")

    def xlane5(Z, op, base, tmp):
        for sw in ("v_permlane32_swap_b32", "v_permlane16_swap_b32"):
            for t in range(5):
                Z(f"v_mov_b32 v{tmp + t}, v{base + t}")
            for t in range(5):
                Z(f"{sw} v{base + t}, v{tmp + t}")
            for t in range(5):
                Z(f"{op} v{base + t}, v{base + t}, v{tmp + t}")

    xlane5(A, "v_max_f32", vM, vM + 8)
    for t in range(5):
        for i in range(4):
            A(f"v_sub_f32 v{NEG + 4 * t + i}, 0, v{vM + t}")
    subs = [f"v_sub_f32 v{Sreg(t, 0) + i}, v{Sreg(t, 0) + i}, v{vM + t}" for t in range(5) for i in range(4)]
    kb0regs = {Sreg(t, 0) + i for t in range(5) for i in range(4)}

    def srcs(x):
        return [int(z.strip()[1:]) for z in x.split(None, 1)[1].split(",")[1:]]
    sm0 = [x for x in pro_sm if all(r in kb0regs for r in srcs(x))]
    sm1 = [x for x in pro_sm if x not in sm0]

    def safe(lst):
        o, prev = [], ""
        for x in lst:
            if prev.startswith("v_exp") and x.startswith("v_cvt"):
                o.append("s_nop 0")
            o.append(x)
            prev = x
        return o
    A.ext(flat(late[6:8]))
    mix(flat([qk0(1, kk, True) for kk in range(4)]), subs + safe(sm0))
    A("s_nop 3")
    A.label("L1_presm")
    A.ext(safe(sm1))
    A("s_waitcnt lgkmcnt(0)")
    stamp(A)
    A.raw(".p2align 6")
    A.label("L1_loop")
    if OPT["diag"]:
        A(f"s_mov_b32 m0, s41")
        A("s_sub_u32 s41, s41, 1")
        A("v_writelane_b32 v250, s90, m0")
        A("v_writelane_b32 v251, s96, m0")
        A("s_memtime s[90:91]")
        A("s_memrealtime s[96:97]")
    A.ext(body)
    A("s_branch L1_loop")
    errs = hazard.check(body + body, "loop")
    side_block(A)
    A.label("L1_tail")
    T0 = len(A.l)
    stamp(A)
    tail_rd = [x for x in tail if is_ds(x)]
    tail_sm = [x for x in tail if not is_ds(x)]
    A.ext(tail_rd)
    A.ext(safe(tail_sm))
    A(f"s_add_u32 s{sT0}, s{sWOF}, {TS * HS}")
    A(f"v_lshl_add_u32 v{t0}, v0, 4, s{sT0}")
    A("s_waitcnt lgkmcnt(0)")
    ones = [f"{MF} {ar(LA + 4 * t, 4)}, {ar(ONES, 4)}, {vr(Sreg(t, 1), 4)}, {ar(LA + 4 * t, 4)}" for t in range(4)]

    def pv(t):
        return [f"{MF} {ar(OA + 32 * t + 4 * dt, 4)}, {ar(RING + 32 + 4 * dt, 4)}, {vr(Sreg(t, 1), 4)}, {ar(OA + 32 * t + 4 * dt, 4)}"
                for dt in range(8)]
    wr = [f"ds_write_b128 v{t0}, {ar(OA + 128 + 4 * i, 4)} offset:{(i // 4) * HS + (i % 4) * 1024}" for i in range(8)]
    misc = [f"v_lshlrev_b32 v{t2}, 4, v0",
            f"s_mul_i32 s{sOO}, s{sB}, 18", f"s_lshl_b32 s{sT0}, s{sW}, 2", f"s_add_u32 s{sT0}, s{sT0}, s{sOO}",
            f"s_mul_i32 s{sT0}, s{sT0}, {QP}", f"s_lshr_b32 s{sKN}, s{sH}, 3", f"s_mul_i32 s{sKN}, s{sKN}, {OPT['gpad']}",
            f"s_lshl_b32 s{sVN}, s{sH}, 12", f"s_add_u32 s{sKN}, s{sKN}, s{sVN}", f"s_add_u32 s{sT0}, s{sT0}, s{sKN}",
            f"s_lshl_b32 s{sT1}, s{sW}, 10", f"s_add_u32 s{sT1}, s{sT1}, {STATS}", f"v_lshl_add_u32 v{t1}, v0, 4, s{sT1}"]
    mix(ones + pv(0), wr + misc)
    Lr = 114
    st = [f"v_accvgpr_read_b32 v{Lr + t}, a{LA + 4 * t}" for t in range(5)]
    st += [f"v_add_f32 v128, v{Lr}, v{Lr + 1}", f"v_add_f32 v129, v{Lr + 2}, v{Lr + 3}", f"v_add_f32 v128, v128, v{Lr + 4}",
           f"v_add_f32 v128, v128, v129", f"v_mov_b32 v129, {f32bits(2.0 ** OPT['thr']):#x}", f"v_cmp_nlt_f32 vcc, v128, v129",
           f"v_mov_b32 v132, v{Lr + 4}", f"v_mov_b32 v133, v{NEG + 16}", f"v_mov_b32 v135, 0", f"v_cndmask_b32 v134, 0, 1, vcc",
           f"ds_write_b128 v{t1}, {vr(132, 4)}"]
    st += [f"v_rcp_f32 v{120 + 2 * t}, v{Lr + t}" for t in range(4)]
    mix(pv(1), st)
    ofl = FLAGS[OPT["ostflag"]]

    def norm_store(t, tmp, pk):
        o = []
        if t:
            o.append(f"s_add_u32 s{sT0}, s{sT0}, {QP}")
        for s in range(4):
            b = tmp + 8 * s
            for e in range(8):
                o.append(f"v_accvgpr_read_b32 v{b + e}, a{OA + 32 * t + 8 * s + e}")
            if pk:
                for e in range(4):
                    o.append(f"v_pk_mul_f32 {vr(b + 2 * e, 2)}, {vr(b + 2 * e, 2)}, {vr(120 + 2 * t, 2)} op_sel_hi:[1,0]")
            else:
                for e in range(8):
                    o.append(f"v_mul_f32 v{b + e}, v{120 + 2 * t}, v{b + e}")
            for e in range(4):
                o.append(f"v_cvt_pk_bf16_f32 v{b + e}, v{b + 2 * e}, v{b + 2 * e + 1}")
            of = f" offset:{s * 1024}" if s else ""
            o.append(f"buffer_store_dwordx4 {vr(b, 4)}, v{t2}, {srd(SRD_O)}, s{sT0} offen{of}{ofl}"
                     + (f" | buffer_store_dwordx4 {vr(b, 4)}, v{t2}, {srd(SRD_O)}, s{sT0} offen{of}" if OPT["dst"] else ""))
        return o

    n0 = norm_store(0, 16, False)
    mix(pv(2) + pv(3), n0[:42])
    A.ext(norm_store(0, 16, True)[34:])
    A("s_waitcnt lgkmcnt(0)")
    A("s_barrier")
    A(f"s_and_b32 s{sT1}, s{sW}, 2")
    A(f"s_mul_i32 s{sT1}, s{sT1}, {4 * BLK}")
    A(f"s_mul_i32 s{sT2}, s{sP}, {HS}")
    A(f"s_add_u32 s{sT1}, s{sT1}, s{sT2}")
    A(f"s_add_u32 s{sT1}, s{sT1}, {TS * HS}")
    A(f"v_lshl_add_u32 v{t0}, v0, 4, s{sT1}")
    A(f"s_and_b32 s{sT1}, s{sW}, 2")
    A(f"s_lshl_b32 s{sT1}, s{sT1}, 10")
    A(f"v_lshl_add_u32 v{t1}, v0, 4, s{sT1}")
    A(f"v_xor_b32 v1, 2048, v{t1}")
    A(f"v_add_u32 v{t1}, {STATS}, v{t1}")
    A(f"v_add_u32 v1, {STATS}, v1")
    A(f"ds_read_b128 {vr(88, 4)}, v{t1}")
    A(f"ds_read_b128 {vr(92, 4)}, v{t1} offset:1024")
    A(f"ds_read_b128 {vr(96, 4)}, v1")
    A(f"ds_read_b128 {vr(100, 4)}, v1 offset:1024")
    for w in range(2):
        for q in range(4):
            A(f"ds_read_b128 {vr(128 + 16 * w + 4 * q, 4)}, v{t0} offset:{w * 4 * BLK + q * 1024}")
    A.ext(norm_store(1, 48, True))
    A("s_waitcnt lgkmcnt(0)")
    A("v_or3_b32 v104, v90, v94, v98")
    A("v_or_b32 v104, v104, v102")
    A("v_cmp_ne_u32 vcc, 0, v104")
    A("v_min_f32 v105, v89, v93")
    A("v_sub_f32 v89, v105, v89")
    A("v_sub_f32 v93, v105, v93")
    A("v_exp_f32 v89, v89")
    A("v_exp_f32 v93, v93")
    A(f"s_cmp_lg_u64 vcc, 0")
    A(f"s_cselect_b32 s{sT1}, 1, 0")
    A(f"s_cmp_gt_u32 s{sT1}, s{sREDO}")
    A("s_cbranch_scc1 L1_redo")
    A("v_mul_f32 v105, v88, v89")
    A("v_fmac_f32 v105, v92, v93")
    A("v_rcp_f32 v105, v105")
    A(f"s_lshr_b32 s{sT1}, s{sW}, 1")
    A(f"s_add_u32 s{sT1}, s{sT1}, s{sOO}")
    A(f"s_add_u32 s{sT1}, s{sT1}, 16")
    A(f"s_mul_i32 s{sT1}, s{sT1}, {QP}")
    A(f"s_add_u32 s{sT1}, s{sT1}, s{sKN}")
    A(f"s_lshl_b32 s{sT2}, s{sP}, 11")
    A(f"s_add_u32 s{sT1}, s{sT1}, s{sT2}")
    A("v_mul_f32 v89, v105, v89")
    A("v_mul_f32 v93, v105, v93")
    for e in range(16):
        A(f"v_mul_f32 v{128 + e}, v89, v{128 + e}")
    for e in range(16):
        A(f"v_fmac_f32 v{128 + e}, v93, v{144 + e}")
    for e in range(8):
        A(f"v_cvt_pk_bf16_f32 v{144 + e}, v{128 + 2 * e}, v{128 + 2 * e + 1}")
    for q in range(2):
        of = " offset:1024" if q else ""
        A(f"buffer_store_dwordx4 {vr(144 + 4 * q, 4)}, v{t2}, {srd(SRD_O)}, s{sT1} offen{of}{ofl}")
        if OPT["dst"]:
            A(f"buffer_store_dwordx4 {vr(144 + 4 * q, 4)}, v{t2}, {srd(SRD_O)}, s{sT1} offen{of}")
    rest = norm_store(2, 16, True) + norm_store(3, 48, True)
    if OPT["fuse"]:
        p3(A, rest)
    else:
        A.ext(rest)
    gx = [i for i, x in enumerate(body) if "L1_side" in x][0]
    errs += hazard.check(body[:gx + 1] + A.l[T0:T0 + 60], "exit")
    if OPT["diag"]:
        if not OPT["fuse"]:
            stamp(A)
        A("s_waitcnt vmcnt(0)")
        stamp(A)
        A("s_memrealtime s[94:95]")
        A("s_waitcnt lgkmcnt(0)")
        A("v_writelane_b32 v250, s92, 62")
        A("v_writelane_b32 v250, s94, 63")
        for i in range(stamp_n[0]):
            A(f"v_writelane_b32 v250, s{sST + 2 * i}, {50 + i}")
        A("v_writelane_b32 v250, s90, 32")
        A("v_writelane_b32 v251, s96, 32")
        A(f"s_lshl_b32 s{sT0}, s2, 2")
        A(f"s_add_u32 s{sT0}, s{sT0}, s{sW}")
        A(f"s_lshl_b32 s{sT0}, s{sT0}, 8")
        A(f"s_add_u32 s{sT0}, s{sT0}, {DIAG_OFF}")
        A(f"v_lshlrev_b32 v{t0}, 2, v0")
        A(f"buffer_store_dword v250, v{t0}, {srd(SRD_O)}, s{sT0} offen")
        A(f"s_add_u32 s{sT0}, s{sT0}, {1 << 19}")
        A(f"buffer_store_dword v251, v{t0}, {srd(SRD_O)}, s{sT0} offen")
        if OPT["fuse"]:
            for i in range(3):
                A(f"v_writelane_b32 v251, s{78 + 2 * i}, {i}")
            A("v_writelane_b32 v251, s94, 3")
            A(f"s_add_u32 s{sT0}, s{sT0}, {1 << 19}")
            A(f"buffer_store_dword v251, v{t0}, {srd(SRD_O)}, s{sT0} offen")
            if OPT["dbg"]:
                for ln, src in ((4, 30), (5, 22), (6, 14), (7, 32)):
                    A(f"v_readlane_b32 s{sT1}, v251, {src}")
                    A("s_nop 3")
                    A(f"v_writelane_b32 v251, s{sT1}, {ln}")
                A("v_subrev_u32 v251, s92, v251")
                A(f"v_lshlrev_b32 v{t0}, 3, v0")
                A("s_cmp_ge_u32 s2, 216")
                A("s_cbranch_scc1 L1_end")
                A("s_mov_b64 exec, 0xff")
                A(f"buffer_atomic_umax v251, v{t0}, {srd(SRD_W)}, 0 offen offset:4")
    A.label("L1_end")
    A("s_endpgm")
    A.label("L1_redo")
    A(f"s_mov_b32 s{sREDO}, 1")
    A("s_waitcnt vmcnt(0) lgkmcnt(0)")
    A("s_barrier")
    A("s_load_dwordx4 s[32:35], s[0:1], 8")
    A(f"s_lshl_b32 s{sT1}, s{sB}, 5")
    A(f"s_add_u32 s{sT1}, s{sT1}, s{sH}")
    A(f"s_lshl_b32 s{sT1}, s{sT1}, 19")
    A("s_waitcnt lgkmcnt(0)")
    A(f"s_add_u32 s{SRD_K}, s32, s{sT1}")
    A(f"s_addc_u32 s{SRD_K + 1}, s33, 0")
    A(f"s_mov_b32 s{SRD_K + 2}, 524288")
    A(f"s_add_u32 s{SRD_V}, s34, s{sT1}")
    A(f"s_addc_u32 s{SRD_V + 1}, s35, 0")
    A(f"s_mov_b32 s{SRD_V + 2}, 524288")
    dma_regs(A)
    for n in range(2 * DD):
        for p in P(n):
            A.ext(p)
    for t in range(5):
        A(f"v_mov_b32 v{vM + t}, 0xff800000")
    A(f"v_lshlrev_b32 v{t0}, 8, v{i16}")
    A(f"v_lshl_add_u32 v{t0}, v{g4}, 4, v{t0}")
    A(f"s_lshl_b32 s{sT1}, s{sP}, 7")
    A(f"v_add_u32 v{t0}, s{sT1}, v{t0}")
    A(f"v_xor_b32 v{t1}, 128, v{t0}")
    A(f"s_mov_b32 s{sT1}, 0")
    A.label("L1_mx")
    for kk in range(4):
        o = f" offset:64" if kk & 1 else ""
        A(f"buffer_load_dwordx4 {vr(136 + 4 * kk, 4)}, v{t0 + (kk >> 1)}, {srd(SRD_K)}, s{sT1} offen{o}")
    A("s_waitcnt vmcnt(0)")
    for kk in range(4):
        for t in range(5):
            C = "0" if kk == 0 else vr(16 + 4 * t, 4)
            A(f"{MF} {vr(16 + 4 * t, 4)}, {vr(136 + 4 * kk, 4)}, {vr(QV + 16 * t + 4 * kk, 4)}, {C}")
    A("s_nop 7")
    for t in range(5):
        A(f"v_max3_f32 v{vM + t}, v{vM + t}, v{16 + 4 * t}, v{17 + 4 * t}")
        A(f"v_max3_f32 v{vM + t}, v{vM + t}, v{18 + 4 * t}, v{19 + 4 * t}")
    A(f"s_add_u32 s{sT1}, s{sT1}, 4096")
    A(f"s_cmp_lt_u32 s{sT1}, {4096 if OPT['twice'] else 524288}")
    A("s_cbranch_scc1 L1_mx")
    xlane5(A, "v_max_f32", vM, vM + 8)
    for t in range(5):
        for i in range(4):
            A(f"v_sub_f32 v{NEG + 4 * t + i}, 0, v{vM + t}")
    for i in range(180):
        A(f"v_accvgpr_write_b32 a{i}, 0")
    A.ext(loop_addr())
    loop_scalars(A)
    A("s_barrier")
    A.ext(k0reads)
    A("s_waitcnt lgkmcnt(0)")
    for kb in range(2):
        for kk in range(4):
            A.ext(qk0(kb, kk, True))
    A.ext(pro_rd)
    A("s_nop 7")
    A.ext(safe(sm0))
    A("s_branch L1_presm")
    return errs


def k2(A):
    DEP = 4
    SRD_A, SRD_WO, SRD_OUT = 4, 8, 12
    sW, sMT, sNT, sT0, sT1, sAS, sBS, sLD, sCNT = 16, 17, 18, 19, 20, 21, 22, 23, 24
    vA, vBD, vBR, t0, t1 = 2, 8, 9, 13, 14
    ACC2, ORING, WF = 16, 112, 208
    A.raw(".p2align 8")
    A.raw(".globl oproj_kernel")
    A.raw(".type oproj_kernel,@function")
    A.label("oproj_kernel")
    A(f"s_cmp_ge_u32 s2, {OPT['k2grid']}")
    A("s_cbranch_scc1 L2_end")
    A("s_load_dwordx4 s[32:35], s[0:1], 32")
    A("s_load_dwordx2 s[36:37], s[0:1], 56")
    if OPT["diag"]:
        A("s_memrealtime s[60:61]")
    A("v_lshrrev_b32 v1, 6, v0")
    A("v_and_b32 v0, 63, v0")
    A(f"v_readfirstlane_b32 s{sW}, v1")
    A("s_and_b32 s25, s2, 7")
    A("s_lshr_b32 s26, s2, 3")
    A(f"s_mul_i32 s{sNT}, s26, 43")
    A(f"s_lshr_b32 s{sNT}, s{sNT}, 7")
    A(f"s_mul_i32 s{sT0}, s{sNT}, 3")
    A(f"s_sub_u32 s{sT0}, s26, s{sT0}")
    A(f"s_mul_i32 s{sMT}, s25, 3")
    A(f"s_add_u32 s{sMT}, s{sMT}, s{sT0}")
    A(f"v_lshlrev_b32 v{vA}, 4, v0")
    for i in range(1, 6):
        A(f"v_add_u32 v{vA + i}, {i * 131072}, v{vA}")
    A(f"v_lshrrev_b32 v{t0}, 3, v0")
    A(f"v_mul_u32_u24 v{vBD}, 1152, v{t0}")
    A(f"v_lshrrev_b32 v{t0}, 4, v0")
    A(f"v_lshlrev_b32 v{t0}, 1, v{t0}")
    A(f"v_and_b32 v{t1}, 7, v0")
    A(f"v_xor_b32 v{t0}, v{t0}, v{t1}")
    A(f"v_lshl_add_u32 v{vBD}, v{t0}, 4, v{vBD}")
    A(f"v_lshrrev_b32 v{t0}, 2, v0")
    A(f"v_lshlrev_b32 v{vBR}, 7, v{t0}")
    A(f"v_bfe_u32 v{t0}, v0, 3, 2")
    A(f"v_lshl_add_u32 v{vBR}, v{t0}, 5, v{vBR}")
    A(f"v_and_b32 v{t0}, 3, v0")
    A(f"v_lshl_add_u32 v{vBR}, v{t0}, 3, v{vBR}")
    A(f"s_mul_i32 s{sLD}, s{sW}, {DEP * 4096}")
    A(f"v_add_u32 v{vBR}, s{sLD}, v{vBR}")
    for n in range(1, 4):
        A(f"v_xor_b32 v{vBR + n}, {32 * n}, v{vBR}")
    A("s_waitcnt lgkmcnt(0)")
    A(f"s_mov_b32 s{SRD_A}, s36")
    A(f"s_mov_b32 s{SRD_A + 1}, s37")
    A(f"s_mov_b32 s{SRD_A + 2}, {(DIAG_OFF + (2 << 20)) if OPT['diag'] else WS_O_BYTES}")
    A(f"s_mov_b32 s{SRD_A + 3}, 0x20000")
    A(f"s_mov_b32 s{SRD_WO}, s32")
    A(f"s_mov_b32 s{SRD_WO + 1}, s33")
    A(f"s_mov_b32 s{SRD_WO + 2}, {4096 * 1152}")
    A(f"s_mov_b32 s{SRD_WO + 3}, 0x20000")
    A(f"s_mov_b32 s{SRD_OUT}, s34")
    A(f"s_mov_b32 s{SRD_OUT + 1}, s35")
    A(f"s_mov_b32 s{SRD_OUT + 2}, {2304 * 1152}")
    A(f"s_mov_b32 s{SRD_OUT + 3}, 0x20000")
    A(f"s_mul_i32 s{sAS}, s{sMT}, 786432")
    A(f"s_lshl_b32 s{sT0}, s{sW}, 15")
    A(f"s_add_u32 s{sAS}, s{sAS}, s{sT0}")
    A(f"s_mul_i32 s{sBS}, s{sW}, {1024 * 1152}")
    A(f"s_lshl_b32 s{sT0}, s{sNT}, 7")
    A(f"s_add_u32 s{sBS}, s{sBS}, s{sT0}")
    WN = OPT["k2rot"]
    sA0, sB0, sPH, sI = 27, 28, 29, 30

    def blk_addr():
        return [f"s_add_u32 s{sT1}, s{sI}, s{sPH}", f"s_and_b32 s{sT1}, s{sT1}, {WN - 1}",
                f"s_and_b32 s31, s{sI}, {(~(WN - 1)) & 0xff}", f"s_or_b32 s{sT1}, s{sT1}, s31",
                f"s_mul_i32 s{sBS}, s{sT1}, {DEP * 32 * 1152}", f"s_add_u32 s{sBS}, s{sBS}, s{sB0}",
                f"s_lshl_b32 s{sAS}, s{sT1}, 12", f"s_add_u32 s{sAS}, s{sAS}, s{sA0}", f"s_add_u32 s{sI}, s{sI}, 1"]
    A(f"s_mov_b32 s{sA0}, s{sAS}")
    A(f"s_mov_b32 s{sB0}, s{sBS}")
    A(f"s_mul_i32 s{sPH}, s{sMT}, {OPT['k2mul']}")
    A(f"s_add_u32 s{sPH}, s{sPH}, s{sNT}")
    A(f"s_mov_b32 s{sI}, 0")
    A.ext(blk_addr())

    def loads(d):
        o = []
        for i in range(4):
            o.append([f"s_add_u32 m0, s{sLD}, {d * 4096 + i * 1024}",
                      f"s_add_u32 s{sT0}, s{sBS}, {(32 * d + 8 * i) * 1152}",
                      f"buffer_load_dwordx4 v{vBD}, {srd(SRD_WO)}, s{sT0} offen lds"])
        off = f" offset:{d * 1024}" if d else ""
        for i in range(6):
            o.append([f"buffer_load_dwordx4 {vr(ORING + 24 * d + 4 * i, 4)}, v{vA + i}, {srd(SRD_A)}, s{sAS} offen{off}"])
        return o

    def wreads(d):
        b = WF + 16 * (d % 2)
        return [f"ds_read_b64_tr_b16 {vr(b + 4 * n + 2 * e, 2)}, v{vBR + n} offset:{d * 4096 + e * 2048}"
                for n in range(4) for e in range(2)]

    zi = 0
    for d in range(DEP - 1):
        for g in loads(d):
            A.ext(g)
            for _ in range(4):
                if zi < 96:
                    A(f"v_mov_b32 v{ACC2 + zi}, 0")
                    zi += 1
    assert zi == 96
    A(f"s_mov_b32 s{sCNT}, {32 // DEP}")
    A(f"s_waitcnt vmcnt({10 * (DEP - 2) + 6})")
    if OPT["diag"]:
        A("s_memrealtime s[62:63]")
    A.ext(wreads(0))
    A.label("L2_loop")
    body = []
    Bd = body.append
    for d in range(DEP):
        Bd(f"s_waitcnt vmcnt({10 * (DEP - 3) + 6})")
        body += wreads((d + 1) % DEP)
        Bd("s_waitcnt lgkmcnt(8)")
        b = WF + 16 * (d % 2)
        ld = loads((d - 1) % DEP)
        k = 0
        for n in range(4):
            for i in range(6):
                acc = vr(ACC2 + 4 * (6 * n + i), 4)
                Bd(f"{MF} {acc}, {vr(b + 4 * n, 4)}, {vr(ORING + 24 * d + 4 * i, 4)}, {acc}")
                k += 1
                if ld and k % 2 == 0:
                    body += ld.pop(0)
        if d == 0:
            body += blk_addr()
            Bd(f"s_cmp_eq_u32 s{sCNT}, 1")
            Bd(f"s_cselect_b32 s{sAS}, 0x40000000, s{sAS}")
            Bd(f"s_cselect_b32 s{sBS}, 0x40000000, s{sBS}")
    Bd(f"s_sub_u32 s{sCNT}, s{sCNT}, 1")
    Bd(f"s_cmp_lg_u32 s{sCNT}, 0")
    A.ext(body)
    A("s_cbranch_scc1 L2_loop")
    errs = hazard.check(body + body, "k2loop")
    if OPT["diag"]:
        A("s_memrealtime s[64:65]")
    A("s_waitcnt vmcnt(0) lgkmcnt(0)")
    A("s_barrier")
    A(f"s_mul_i32 s{sT0}, s{sW}, 24576")
    A(f"v_lshl_add_u32 v{t0}, v0, 4, s{sT0}")
    A("s_nop 7")
    for q in range(24):
        A(f"ds_write_b128 v{t0}, {vr(ACC2 + 4 * q, 4)} offset:{q * 1024}")
    A(f"v_and_b32 v{t0}, 15, v0")
    A(f"v_lshlrev_b32 v{t0}, 4, v{t0}")
    A(f"v_bfe_u32 v{t1}, v0, 4, 1")
    A(f"v_lshl_add_u32 v{t0}, v{t1}, 9, v{t0}")
    A(f"v_lshrrev_b32 v{t1}, 5, v0")
    A(f"v_lshl_add_u32 v{t0}, v{t1}, 10, v{t0}")
    A(f"s_mul_i32 s{sT0}, s{sW}, {6 * 1024}")
    A(f"v_add_u32 v{t0}, s{sT0}, v{t0}")
    A(f"v_add_u32 v{t1}, 49152, v{t0}")
    A("s_waitcnt lgkmcnt(0)")
    A("s_barrier")
    for w in range(4):
        for x in range(3):
            for q in range(2):
                A(f"ds_read_b128 {vr(ORING + 24 * w + 8 * x + 4 * q, 4)}, v{t0 if w < 2 else t1} offset:{(w % 2) * 24576 + x * 2048 + q * 256}")
        if w % 2 == 1:
            A("s_waitcnt lgkmcnt(0)")
    for w in range(1, 4):
        for e in range(24):
            A(f"v_add_f32 v{ORING + e}, v{ORING + e}, v{ORING + 24 * w + e}")
    for e in range(12):
        A(f"v_cvt_pk_bf16_f32 v{ACC2 + e}, v{ORING + 2 * e}, v{ORING + 2 * e + 1}")
    A(f"v_and_b32 v{t0}, 15, v0")
    A(f"v_lshrrev_b32 v{t1}, 5, v0")
    A(f"v_lshl_add_u32 v{t0}, v{t1}, 4, v{t0}")
    A(f"v_mul_u32_u24 v{t0}, 1152, v{t0}")
    A(f"v_bfe_u32 v{t1}, v0, 4, 1")
    A(f"v_lshl_add_u32 v{t0}, v{t1}, 4, v{t0}")
    A(f"s_mul_i32 s{sAS}, s{sMT}, {96 * 1152}")
    A(f"s_lshl_b32 s{sT0}, s{sNT}, 7")
    A(f"s_add_u32 s{sAS}, s{sAS}, s{sT0}")
    A(f"s_lshl_b32 s{sT0}, s{sW}, 5")
    A(f"s_add_u32 s{sAS}, s{sAS}, s{sT0}")
    for x in range(3):
        A(f"buffer_store_dwordx4 {vr(ACC2 + 4 * x, 4)}, v{t0}, {srd(SRD_OUT)}, s{sAS} offen")
        A(f"s_add_u32 s{sAS}, s{sAS}, {32 * 1152}")
    if OPT["diag"]:
        A("s_waitcnt vmcnt(0)")
        A("s_memrealtime s[66:67]")
        A("s_waitcnt lgkmcnt(0)")
        for i in range(4):
            A(f"v_writelane_b32 v250, s{60 + 2 * i}, {i}")
        A(f"s_lshl_b32 s{sT0}, s2, 2")
        A(f"s_add_u32 s{sT0}, s{sT0}, s{sW}")
        A(f"s_lshl_b32 s{sT0}, s{sT0}, 8")
        A(f"s_add_u32 s{sT0}, s{sT0}, {DIAG_OFF + (1 << 20)}")
        A(f"v_lshlrev_b32 v{t0}, 2, v0")
        A(f"buffer_store_dword v250, v{t0}, {srd(SRD_A)}, s{sT0} offen")
    A.label("L2_end")
    A("s_endpgm")
    return errs


def desc(name, vg, acc, sg=102):
    return f""".p2align 6
.amdhsa_kernel {name}
  .amdhsa_next_free_vgpr {vg}
  .amdhsa_next_free_sgpr {sg}
  .amdhsa_accum_offset {acc}
  .amdhsa_group_segment_fixed_size 0
  .amdhsa_kernarg_size 64
  .amdhsa_user_sgpr_count 2
  .amdhsa_user_sgpr_kernarg_segment_ptr 1
  .amdhsa_system_sgpr_workgroup_id_x 1
.end_amdhsa_kernel
"""


def main():
    A = Asm()
    e = k1(A)
    if not OPT["fuse"]:
        e += k2(A)
    A.label("L_code_end")
    e += hazard.check(A.l, "linear")
    for x in e:
        print(x, file=sys.stderr)
    hdr = f"""; Fused MHA block (q-proj + attention) and output projection, gfx950. Generated by a script.
; kernarg: x, k_cache, v_cache, wq, wo, out, debug, ws
; @launch kernel=attn_kernel grid=(256,1,1) block=(256,1,1) lds={LDS1}
{";" if OPT["fuse"] else "; @launch kernel=oproj_kernel grid=(216,1,1) block=(256,1,1) lds=98304"}
.amdgcn_target "amdgcn-amd-amdhsa--gfx950"
.text
.globl attn_kernel
"""
    txt = hdr + "\n".join(A.l) + "\n.section .rodata,\"a\"\n" + desc("attn_kernel", 512, 256) + ("" if OPT["fuse"] else desc("oproj_kernel", 256, 256))
    open(sys.argv[1], "w").write(txt)
    if e and not (OPT["nodma"] or OPT["nomf"]):
        sys.exit(1)


main()
```

```python
import math
import struct
import sys

import hazard

OPT = dict(diag=0, L=6, W=2, xmap=1, nodma=0, nobar=0, kvflag=1, ostflag=2, wopf=2, wsh=8,
           k2grid=216, LQ=6, dmastep=6, thr=40, show=0, qstep=5, up=2, qpflag=0, dbg=0, cpf=1, nph=3, k2rot=1, D=3, pf=0, stg=0, pfa=4, kvs=1, rot=0, k2mul=1, fuse=1, dst=0, DO=4, oflag=2, early=5, l2pf=0, fast=1, wsoff=0, twice=0, nomf=0, pad=0, tlb=2, eord=1, fine=0, wflag=0, p3same=0, chain=1, LG=30, LM=12, SO=4, gB=21, vm2=1, bcap=0, tidy=1, x6d=0, outflag=0, pre=4, slp=4, ppos=4, wpre=9, qpad=4352, gpad=1152, dspin=0, helper=0, hA=6, ho=4)
for a in sys.argv[2:]:
    k, v = a.split("=")
    OPT[k] = int(v)
FLAGS = ['', ' nt', ' sc1', ' sc0 sc1', ' sc1 nt', ' sc0 sc1 nt', ' sc0']

BLK = 1056
HS = 16 * BLK
DD = OPT['D']
NS = 2 * DD + 1
TS = 7
STATS = 9 * HS
assert DD == 3
XB = 1088
WOFF, XEOFF, XOFF = 0, 17408, 21504
WG0 = 4 * XB + OPT["wsh"]
WG1 = 8720
STSZ = 54272
LDS1 = 163840
GP = 32768 + OPT['gpad']
QP = 4 * GP + OPT['qpad']
WS_O_BYTES = 144 * QP
DIAG_OFF = 64 << 20


def f32bits(x):
    return struct.unpack("<I", struct.pack("<f", x))[0]


QSCALE = f32bits(128 ** -0.5 * math.log2(math.e))


class Asm:
    def __init__(self):
        self.l = []

    def __call__(self, s):
        if " | buffer_store" in s:
            for x in s.split(" | "):
                self.l.append("    " + x)
        else:
            self.l.append("    " + s)

    def label(self, s):
        self.l.append(s + ":")

    def raw(self, s):
        self.l.append(s)

    def ext(self, lst):
        for s in lst:
            self(s)


def vr(a, n):
    return f"v[{a}:{a + n - 1}]"


def ar(a, n):
    return f"a[{a}:{a + n - 1}]"


def srd(n):
    return f"s[{n}:{n + 3}]"


MF = "v_mfma_f32_16x16x32_bf16"

SRD_X, SRD_W, SRD_K, SRD_V, SRD_O, SRD_P = 4, 8, 12, 16, 20, 84
sW, sP, sB, sH = 24, 25, 27, 28
sXD, sXS, sWD, sWS, sT0, sT1 = 42, 43, 44, 45, 46, 47
sXED, sXES = 48, 55
sCNT = 49
sKD, sVD, sKVS, sKN, sVN = 50, 51, 52, 53, 54
sSC = 56
sT2 = 57
sOUTP = 32
sWP = 30
sG0 = 31
sDV = 3
sOO = 58
sREDO = 59
sST = 60
sWOF = 88
sCX, sCW = 89, 100
sPC = 98
sXSc, sWSc, sXEc = 29, 26, 101

vXD, vXDE, vWD, vCW, vV4 = 2, 4, 5, 6, 8
vQA = 160
ACC = 16
SB = [16, 48]
SE = 80
NEG = 88
QV = 160
vKB, vVB = 240, 244
vK, vV = 108, 112
vM = 120
vDUM = 252
OA, LA, ONES, RING = 0, 160, 180, 192
XF = [184, 204]
WRING = 224


def Sreg(t, par):
    return SE if t == 4 else SB[par] + 8 * t


stamp_n = [0]


def stamp_txt():
    if OPT["diag"] == 1:
        n = stamp_n[0]
        stamp_n[0] += 1
        assert n < 12
        return [f"s_memtime s[{sST + 2 * n}:{sST + 2 * n + 1}]"]
    return []


def stamp(A):
    A.ext(stamp_txt())


def is_ds(x):
    return x.startswith("ds_")


def add_waits(seq, cyclic, W=1, nfr=None):
    rep = 2 if cyclic else 1
    out = []
    issued = 0
    done = 0
    last = {}
    for it in range(rep):
        out = []
        for e in seq:
            if e[0] == "x":
                if is_ds(e[1]):
                    issued += 1
                    if e[2] is not None:
                        last[e[2]] = issued
                if "lgkmcnt(0)" in e[1] or e[1] == "VMW":
                    done = issued
                out.append(e[1])
            else:
                need = 0
                for f in e[2]:
                    if f in last:
                        need = max(need, last[f])
                if need > done:
                    tgt = need
                    for f in e[3] if len(e) > 3 else []:
                        if f in last and last[f] > need - 40:
                            tgt = max(tgt, last[f])
                    n = issued - tgt
                    assert n <= 15, n
                    out.append(f"s_waitcnt lgkmcnt({n})")
                    done = tgt
                if e[1] is not None:
                    out.append(e[1])
    return out


vD = 246
sINC = 60 if not OPT["diag"] else 26
sKP = 64 if not OPT["diag"] else 34


def tidy(lst):
    import re
    out, gap = [], []

    def flush(seen_mfma):
        g = list(gap)
        gap.clear()
        if not seen_mfma or any(x.startswith(("s_barrier", "s_cbranch", "s_branch")) or x.endswith(":") for x in g):
            return g
        if g and re.fullmatch(r"s_waitcnt lgkmcnt\(\d+\)", g[-1]) and not any("waitcnt" in x for x in g[:-1]):
            n = int(g[-1][18:-1]) - sum(is_ds(x) for x in g[:-1])
            if n >= 0:
                g = [f"s_waitcnt lgkmcnt({n})"] + g[:-1]
        ch = True
        while ch:
            ch = False
            for i in range(len(g) - 1):
                a, b = g[i], g[i + 1]
                if a.startswith("v_") and b.startswith(("ds_", "s_add", "s_mov", "s_lshl", "s_mul", "s_sub", "s_min", "s_and")):
                    ia, ib = hazard.I(a), hazard.I(b)
                    if not (ia.w & (ib.r | ib.w)) and not (ib.w & ia.r):
                        g[i], g[i + 1] = b, a
                        ch = True
        return g
    seen = False
    for x in lst:
        if x.startswith("v_mfma"):
            out += flush(seen)
            out.append(x)
            seen = True
        else:
            gap.append(x)
    out += gap
    return out


def kv_piece(dst, srdn, i):
    return [f"s_add_u32 m0, s{dst}, {i * BLK}",
            f"buffer_load_dwordx4 v{vD + i}, {srd(srdn)}, s{sKVS} offen{FLAGS[OPT['kvflag']]} lds"]


def item_piece(n, i):
    o = f" offset:{i * 1024}" if i else ""
    return [f"s_add_u32 m0, s{sWOF}, {(n % NS) * HS + i * (BLK - 1024)}",
            (f"s_add_u32 s{sT0}, s{sG0}, {(n // 2) * 16384}" if OPT["rot"] else f"s_mov_b32 s{sT0}, {(n // 2) * 16384}"),
            f"buffer_load_dwordx4 v{vV4}, {srd(SRD_V if n % 2 else SRD_K)}, s{sT0} offen{o}{FLAGS[OPT['kvflag']]} lds"]


def adv(r, tmp=None):
    tmp = sT2 if tmp is None else tmp
    return [f"s_add_u32 s{r}, s{r}, {2 * HS}", f"s_sub_u32 s{tmp}, s{r}, {NS * HS}", f"s_min_u32 s{r}, s{r}, s{tmp}"]


def kread(dst, base, kb, kk):
    return f"ds_read_b128 {dst}, v{base + (kk >> 1)} offset:{kb * 256 + (kk & 1) * 64}"


def build_loop():
    W = OPT["W"]
    NF = 32
    mf = []
    qk_end, pv_first, phase2, step_start = {}, {}, {}, {}
    for j in range(2):
        jn = 1 - j
        step_start[j] = len(mf)
        tiles = range(5) if jn == 0 else range(4)
        for kb in range(2):
            for t in tiles:
                for kk in range(4):
                    f = 16 * j + kb * 4 + kk
                    S = Sreg(t, jn) + 4 * kb
                    C = vr(NEG + 4 * t, 4) if kk == 0 else vr(S, 4)
                    mf.append(dict(t=f"{MF} {vr(S, 4)}, {ar(RING + 4 * (f % 16), 4)}, {vr(QV + 16 * t + 4 * kk, 4)}, {C}", f=f))
                    qk_end[(jn, t, kb)] = len(mf) - 1
        tiles = list(range(5) if j == 0 else range(4))
        phase2[j] = len(mf)
        for dt in range(8):
            f = 16 * j + 8 + dt
            for t in tiles:
                O = ar(OA + 32 * t + 4 * dt, 4)
                mf.append(dict(t=f"{MF} {O}, {ar(RING + 4 * (f % 16), 4)}, {vr(Sreg(t, j), 4)}, {O}", f=f))
                pv_first.setdefault((j, t), len(mf) - 1)
            x = dt - 2
            if 0 <= x < len(tiles):
                Lr = ar(LA + 4 * x, 4)
                mf.append(dict(t=f"{MF} {Lr}, {ar(ONES, 4)}, {vr(Sreg(x, j), 4)}, {Lr}", f=f))
    N = len(mf)
    assert N == 153
    first_use, last_use = {}, {}
    for i, m in enumerate(mf):
        first_use.setdefault(m["f"], i)
        last_use[m["f"]] = i

    def wsz(f):
        return 4 if f % 16 < 8 else W
    cap = [2] * N
    scal = [None] * N
    for f in range(NF):
        if f % wsz(f) == 0:
            scal[(first_use[f] - 1) % N] = ("W", [(f + k) % NF for k in range(wsz(f))])
    scal[N - 2], scal[N - 1] = scal[N - 1], ("B",)
    cap[N - 1] = 0
    gX = step_start[1] - 1
    assert scal[gX - 1] is None and scal[gX - 2] is None
    scal[gX - 1], scal[gX] = scal[gX], ("T", "s_cbranch_scc1 L1_side | L1_back:")
    gS = gX - 2
    gB = OPT["gB"]
    nvm = 8 + (1 if OPT["wopf"] == 2 else 0)
    assert scal[gB - 1] is None and scal[gB] is None
    scal[gB - 1] = ("T", f"s_waitcnt vmcnt({(DD - 2) * nvm})")
    scal[gB] = ("T", "s_barrier")
    scal[gS] = ("T", f"s_sub_u32 s{sCNT}, s{sCNT}, 1")
    cap[gB] = OPT["bcap"]
    ok = [g for g in range(N) if cap[g] == 2]
    eg = []
    for k in range(72):
        want = (k * N) / 72.0
        g = min((x for x in ok if x not in eg), key=lambda x: abs(x - want))
        eg.append(g)
    eg.sort()
    order = [(j, t, kb, r) for j in (0, 1) for kb in range(2) for t in (range(5) if j == 0 else range(4)) for r in range(4)]
    best = None
    for off in range(-72, 72):
        place = {key: eg[(k + off) % 72] + N * ((k + off) // 72) for k, key in enumerate(order)}
        good = True
        for (j, t, kb, r), g in place.items():
            av = qk_end[(j, t, kb)] + 6 - (N if j == 0 else 0)
            if g < av or g > pv_first[(j, t)] - 6:
                good = False
        if good:
            best = (best or []) + [off]
    off = best[min(OPT["SO"], len(best) - 1)]
    place = {key: eg[(k + off) % 72] + N * ((k + off) // 72) for k, key in enumerate(order)}
    for g in eg:
        cap[g] = 0

    def frag_reads(f):
        j, r = divmod(f, 16)
        dst = RING + 4 * (f % 16)
        if r < 8:
            kb, kk = divmod(r, 4)
            return [kread(ar(dst, 4), vK + 2 * (1 - j), kb, kk)]
        dt = r - 8
        return [f"ds_read_b64_tr_b16 {ar(dst + 2 * e, 2)}, v{vV + j} offset:{e * 256 + dt * 32}" for e in range(2)]

    items = []

    def add(name, lo, hi, text, kind=None, chain=None, after=()):
        items.append(dict(n=name, lo=lo, hi=hi, t=text, k=kind, c=chain, a=list(after)))

    for (j, t, kb, r), g in sorted(place.items(), key=lambda z: z[1]):
        if r % 2 == 1:
            S = Sreg(t, j)
            add(f"c{j}{t}{kb}{r}", g + 1, min(g + 14, pv_first[(j, t)] - 3),
                f"v_cvt_pk_bf16_f32 v{S + 2 * kb + r // 2}, v{S + 4 * kb + r - 1}, v{S + 4 * kb + r}", ("cvt", j, t), "cvt")
    LG, LM = OPT["LG"], OPT["LM"]
    for f in range(NF):
        fu = first_use[f - f % wsz(f)]
        lo = max(fu - LG, last_use[(f + 16) % NF] - (N if f < 16 else 0))
        if 16 <= f < 24:
            lo = max(lo, gB + 1)
        if 8 <= f < 16:
            lo = max(lo, 0)
        for e, x in enumerate(frag_reads(f)):
            add(f"r{f}_{e}", lo, fu - LM, x, ("rd", f), "rd")
    add("k1a", 0, 100, f"v_add_u32 v{vK + 2}, s{sDV}, v{vK}", "k1", None, ["r5_0"])
    add("k1b", 0, 100, f"v_add_u32 v{vK + 3}, s{sDV}, v{vK + 1}", "k1", None, ["r7_0"])
    add("v0", 0, 120, f"v_add_u32 v{vV}, s{sVN}, v{vVB}", "v0", None, ["r15_1"])
    add("v1", 0, N + 40, f"v_add_u32 v{vV + 1}, s{sDV}, v{vV}", "v1", None, ["r31_1", "v0"])
    st = OPT["dmastep"]
    g = gB + 1
    prevd = None
    for nm, dst, srdn in (("V", sVD, SRD_V), ("K", sKD, SRD_K)):
        for i in range(4):
            pc = kv_piece(dst, srdn, i)
            add(f"m{nm}{i}", g, g + 10, pc[0], "m0", "dma", [prevd] if prevd else [])
            prevd = f"d{nm}{i}"
            add(f"d{nm}{i}", g + 1, g + 12, pc[1], "dma", "dma")
            g += st
    add("svd", 0, 140, f"s_add_u32 s{sVD}, s{sKN}, s{sWOF}", None, "ak", ["dV3"])
    for i, x in enumerate(adv(sKN)):
        add(f"ak{i}", 0, 142 + i, x, None, "ak")
    add("k0a", 0, 148, f"v_add_u32 v{vK}, s{sKN}, v{vKB}", None, None, ["ak2", "r21_0", "k1a"])
    add("k0b", 0, 148, f"v_add_u32 v{vK + 1}, s{sKN}, v{vKB + 1}", None, None, ["ak2", "r23_0", "k1b"])
    for i, x in enumerate(adv(sVN, sT1)):
        add(f"av{i}", 0, 144 + i, x, None, "av", ["v0"])
    for i, x in enumerate(adv(sKD, sT0)):
        add(f"ad{i}", 0, 148 + i, x, None, "ad", ["dK3"])
    add("kvs", gX + 1, 151, f"s_add_u32 s{sKVS}, s{sKVS}, s{sINC}", None, None, ["dK3"])
    if OPT["wopf"] == 2:
        add("wp", gB + 6, 140, f"buffer_load_dword v{vDUM}, v7, {srd(SRD_P)}, s{sWP} offen", None, "wp")
        add("wpa", 0, 150, f"s_add_u32 s{sWP}, s{sWP}, 160", None, "wp", ["wp"])
    NP = 5
    pend = []
    for p in range(NP):
        for i, x in enumerate(items):
            pend.append(dict(x, p=p, i=i, lo=x["lo"] + p * N, hi=x["hi"] + p * N))
    chains = {}
    for x in pend:
        chains.setdefault(x["c"] or ("solo", x["n"]), []).append(x)
    at = {}
    out = {}
    for g in range(-N, (NP + 1) * N):
        free = cap[g % N]
        sfree = scal[g % N] is None
        while free or sfree:
            cands = []
            for c, q in chains.items():
                if not q:
                    continue
                x = q[0]
                if x["lo"] > g:
                    continue
                if any((a_, x["p"]) not in at for a_ in x["a"]):
                    continue
                if x["k"] == "dma" and at[("m" + x["n"][1:], x["p"])] == g:
                    continue
                if x["t"].startswith("s_") and (gS <= g % N <= gX or not sfree):
                    continue
                if not x["t"].startswith("s_") and not free:
                    continue
                if any(at[(a_, x["p"])] == g for a_ in x["a"]):
                    continue
                if x["t"].startswith("buffer") and (g % N == gB - 1 or free < 2):
                    continue
                if x["k"] == "m0" and gS - 3 <= g % N <= gX:
                    continue
                cands.append(x)
            if not cands:
                break
            x = min(cands, key=lambda x: (0 if x["t"].startswith("buffer") else 1, x["hi"], x["i"]))
            chains[x["c"] or ("solo", x["n"])].pop(0)
            at[(x["n"], x["p"])] = g
            out.setdefault(g, []).append(x)
            if x["t"].startswith("s_"):
                sfree = False
            else:
                free -= (2 if (x["t"].startswith("buffer") and OPT["vm2"] and free == 2) else 1)
    for x in items:
        assert at[(x["n"], 2)] - 2 * N == at[(x["n"], 3)] - 3 * N, ("not periodic", x)
        assert at[(x["n"], 2)] - 2 * N <= x["hi"], ("late", x, at[(x["n"], 2)] - 2 * N)
    rel = {x["n"]: at[(x["n"], 2)] - 2 * N for x in items}
    assert rel["dK3"] < gX
    assert rel["k1a"] < rel["r0_0"] + N and rel["k1b"] < rel["r2_0"] + N
    assert rel["k0a"] < rel["r16_0"] + N and rel["k0b"] < rel["r18_0"] + N
    assert rel["v0"] < rel["r8_0"] + N and rel["v1"] < rel["r24_0"] + N and rel["v1"] < rel["v0"] + N
    assert last_use[7] < gB + 16 and first_use[4] <= gB
    assert rel["v1"] < N, "v1 must stay inside the period (prologue sets it)"
    gaps = [[] for _ in range(N)]
    cls = lambda t: 0 if t.startswith("s_") else 1 if t.startswith(("ds_", "buffer")) else 2
    for g in range(N):
        for x in sorted(out.get(2 * N + g, []), key=lambda x: cls(x["t"])):
            gaps[g].append((x["t"], "n" if x["p"] == 3 else "", x["k"]))
            assert x["p"] in (2, 3), x
    for (j, t, kb, r), g in place.items():
        S = Sreg(t, j) + 4 * kb + r
        gaps[g % N].append((f"v_exp_f32 v{S}, v{S}", "n" if g < 0 else "", ("sm", j)))
    seq, pro, tail = [], [], []
    for i, m in enumerate(mf):
        seq.append(("m", m["t"], [m["f"]]))
        if scal[i] and scal[i][0] == "W":
            seq.append(("m", None, scal[i][1]))
        elif scal[i] and scal[i][0] == "T":
            seq.append(("x", scal[i][1], None))
        for x in gaps[i]:
            isrd = isinstance(x[2], tuple) and x[2][0] == "rd"
            seq.append(("x", x[0], x[2][1] if isrd else None))
            if x[1] == "n":
                assert isinstance(x[2], tuple), x
                pro.append(x[0])
            if i >= gX and x[1] != "n" and isinstance(x[2], tuple):
                if (x[2][0] in ("sm", "cvt") and x[2][1] == 1) or (isrd and x[2][1] >= 24):
                    tail.append(x[0])
    body = add_waits(seq, True)
    body = [y for x in body for y in x.split(" | ")]
    if OPT["show"]:
        print("gaps:", "".join("E" if any(y[0].startswith("v_exp") for y in g_) else str(len(g_)) for g_ in gaps), file=sys.stderr)
        print("instr", len(body), "waits", sum("lgkmcnt" in x for x in body), "offs", best, "dma", [rel[f"d{n}{i}"] for n in "VK" for i in range(4)],
              "minlead", min(first_use[f - f % wsz(f)] - rel[f"r{f}_{1 if f % 16 >= 8 else 0}"] for f in range(NF)),
              "pro", len(pro), "tail", len(tail), file=sys.stderr)

    def keep(x):
        if OPT["nodma"] and (x.startswith("buffer_load") or x.startswith("s_add_u32 m0") or "vmcnt" in x):
            return False
        if OPT["nobar"] and x.startswith("s_barrier"):
            return False
        return True
    return [x for x in body if keep(x)], pro, tail


def cursor(r):
    return [f"s_add_u32 s{r}, s{r}, 128", f"s_sub_u32 s{sT2}, s{r}, 1152", f"s_min_u32 s{r}, s{r}, s{sT2}"]


def x_pieces(c):
    st = STG[c] * STSZ
    p = []
    for i in range(8):
        pre = [f"s_add_u32 s{sXSc}, s{sXS}, s{sCX}"] + cursor(sCX) if i == 0 else []
        p.append(pre + [f"s_add_u32 m0, s{sXD}, {st + i * 1024}",
                        (f"s_add_u32 s{sT0}, s{sXSc}, {i * 9216}" if i else "s_nop 0"),
                        f"buffer_load_dwordx4 v{vXD + (i & 1)}, {srd(SRD_X)}, s{sT0 if i else sXSc} offen{FLAGS[OPT['qpflag']]} lds"])
    return p


def wg_pieces(c):
    st = STG[c] * STSZ
    p = []
    for r in range(4):
        pre = [f"s_lshl_b32 s{sWSc}, s{sCW}, 12", f"s_add_u32 s{sWSc}, s{sWSc}, s{sWS}",
               f"s_add_u32 s{sXEc}, s{sXES}, s{sCW}"] + cursor(sCW) if r == 0 else []
        p.append(pre + [f"s_add_u32 m0, s{sWD}, {st + WOFF + r * XB}",
                        (f"s_add_u32 s{sT0}, s{sWSc}, {r * 8192}" if r else "s_nop 0"),
                        f"buffer_load_dwordx4 v{vWD}, {srd(SRD_W)}, s{sT0 if r else sWSc} offen{FLAGS[OPT['qpflag']]} lds"])
    p.append([f"s_add_u32 m0, s{sXED}, {st}", "s_nop 0",
              f"buffer_load_dwordx4 v{vXDE}, {srd(SRD_X)}, s{sXEc} offen{FLAGS[OPT['qpflag']]} lds"])
    return p


STG = [[0, 2, 1, 0, 2, 1, 2, 1, 2], [0, 1, 2, 0, 1, 2, 0, 1, 2]][OPT['stg']]


def build_qproj(extras, nup, tail_items, fill):
    LQ = OPT["LQ"]
    mf = []
    first_use, last_use = {}, {}
    for s in range(18):
        for sl in range(8):
            f = ("w", 8 * s + sl)
            tiles = range(5) if sl < 4 else range(4)
            for t in tiles:
                a = ACC + 32 * t + 4 * sl
                C = "0" if s == 0 else vr(a, 4)
                txt = f"{MF} {vr(a, 4)}, {ar(WRING + 4 * sl, 4)}, {ar(XF[s % 2] + 4 * t, 4)}, {C}"
                mf.append((txt, [f, ("x", s, t)]))
                for q in (f, ("x", s, t)):
                    first_use.setdefault(q, len(mf) - 1)
                    last_use[q] = len(mf) - 1
    N = len(mf)
    gaps = [[] for _ in range(N + 1)]

    def st_of(c):
        return (6, 0) if STG[c] == 2 else (0, STG[c] * STSZ)

    def wread(n):
        s, sl = divmod(n, 8)
        c, ks = divmod(s, 2)
        rb, st = st_of(c)
        kk, u = divmod(sl, 2)
        base = vQA + rb + (4 if kk < 2 else 5)
        return [(f"ds_read_b64_tr_b16 {ar(WRING + 4 * sl + 2 * e, 2)}, v{base} offset:{st + (kk & 1) * 64 + 8 * u + e * 256 + ks * 512}",
                 ("w", n)) for e in range(2)]

    def xread(s, t):
        c, ks = divmod(s, 2)
        rb, st = st_of(c)
        if t < 4:
            return (f"ds_read_b128 {ar(XF[s % 2] + 4 * t, 4)}, v{vQA + rb + ks} offset:{st + t * 2048}", ("x", s, t))
        return (f"ds_read_b128 {ar(XF[s % 2] + 16, 4)}, v{vQA + rb + 2 + ks} offset:{st}", ("x", s, t))

    bar = {0: -1, 9: N}
    for c in range(1, 9):
        bar[c] = last_use[("w", 16 * c - LQ + 1)]
    items = []
    for n in range(144):
        c = n // 16
        e = last_use[("w", n - 8)] if n >= 8 else -1
        tg = first_use[("w", n - LQ)] if n >= LQ else -1
        tg = max(tg, e, bar[c])
        for x in wread(n):
            items.append((tg, x))
    rd = sorted(items, key=lambda z: z[0])
    xi = []
    for s in range(18):
        c, ks = divmod(s, 2)
        for t in range(5):
            e = last_use[("x", s - 2, t)] if s >= 2 else -1
            tg = max(e, bar[c])
            if s == 1:
                tg = 0
            xi.append((tg, xread(s, t)))
    allrd = sorted([(tg, 0, i, x) for i, (tg, x) in enumerate(xi)] + [(tg, 1, i, x) for i, (tg, x) in enumerate(rd)],
                   key=lambda z: (z[0], z[1], z[2]))
    used = [0] * (N + 2)
    xdone = {}
    g = -1
    for tg, _, _, x in allrd:
        g = max(g, tg)
        if g < 0 and used[0] >= 9:
            g = 0
        while g >= 0 and used[g + 1] >= 2:
            g += 1
        gaps[g + 1].append(("x", x[0], x[1]))
        used[g + 1] += 1
        if x[1][0] == "x":
            xdone[x[1][1]] = g
        cc = x[1][1] // 16 if x[1][0] == "w" else x[1][1] // 2
        assert g < bar[cc + 1] - 2, (x, g, bar[cc + 1])
    last_rd = g
    sused = [0] * (N + 2)
    groups = []
    for c in range(nup, 9):
        prev = [p for p in range(c) if STG[p] == STG[c]]
        ew = bar[prev[-1] + 1] if prev else -1
        ex = xdone[2 * prev[-1] + 1] + 10 if prev else -1
        if c == 6:
            ex += OPT["x6d"]
        groups.append((ew, 0, c, wg_pieces(c), ("W", c), None))
        groups.append((ex, 2, c, x_pieces(c), ("X", c), prev[-1] if prev else None))
    for c, ps in extras.items():
        groups.append((bar[c] + (45 if (OPT["eord"] and c < 8) else 0), 1, c, ps, ("E", c), None))
    groups.sort(key=lambda z: (z[0], z[2] if z[0] < 0 else 0, z[1]))
    for kind in "WX":
        cs = [z[4][1] for z in groups if z[4][0] == kind]
        assert cs == sorted(cs), cs
    issued = []
    for c in range(nup):
        issued += [(("W", c), -1)] * 5 + [(("X", c), -1)] * 8
        if c == 0 and (OPT["pf"] or OPT["tlb"] == 1):
            issued += [(("P", 0), -1)] * 2
    g = 0
    for tg, _, _, ps, tag, prev in groups:
        for i, p in enumerate(ps):
            late = g - tg
            g = max(g, tg)
            g0 = g
            if i == 0 and prev is not None:
                while used[g + 1] >= 1:
                    g += 1
                gaps[g + 1].append(("xw", ("x", 2 * prev + 1)))
                used[g + 1] += 2
            for ins in p[:-1]:
                if ins == "s_nop 0":
                    continue
                if ins.startswith("s_"):
                    while sused[g + 1] + max(0, used[g + 1] - 1) >= 2 or (sused[g + 1] and used[g + 1] >= 2):
                        g += 1
                    gaps[g + 1].insert(sused[g + 1], ("x", ins, None))
                    sused[g + 1] += 1
                else:
                    while used[g + 1] >= 2:
                        g += 1
                    gaps[g + 1].append(("x", ins, None))
                    used[g + 1] += 1
            g += 1
            while used[g + 1] >= 1:
                g += 1
            assert g < N - 30, (tag, g)
            gaps[g + 1].append(("x", p[-1], None))
            used[g + 1] = 2
            issued.append((tag, g))
            g = max(g + 1, g0 + (OPT["qstep"] if late < 30 else 2))
    for c, lst in fill.items():
        g = bar[c]
        for ins in lst:
            k = ins.count(" | ") + 1
            while used[g + 1] + k > 2 or (k > 1 and used[g + 1]):
                g += 1
            for y in ins.split(" | "):
                gaps[g + 1].append(("x", y, None))
            used[g + 1] += k
            assert g < min(bar[c + 1], N - 26), (c, g)
    vm_at = {}
    for c in range(1, 9):
        before = [t for t, gg in issued if gg < bar[c]]
        for t, gg in issued:
            if t in (("W", c), ("X", c)):
                assert gg < bar[c] - 30, (t, gg, bar[c])
        lastneed = max(i for i, t in enumerate(before) if t in (("W", c), ("X", c)))
        vm_at[c] = len(before) - 1 - lastneed
    if OPT["show"]:
        print("bar", bar, "vm", vm_at, "issue", [(t[0] + str(t[1]), g) for t, g in issued if g >= 0], "lastrd", last_rd - (N - 36), file=sys.stderr)
    seq = []
    tf = list(tail_items)
    for i in range(N + 1):
        if i > 0:
            seq.append(("m", mf[i - 1][0], mf[i - 1][1]))
        for c in range(1, 9):
            if bar[c] == i - 1:
                seq.append(("x", f"s_waitcnt vmcnt({vm_at[c]}) lgkmcnt(0)", None))
                seq.append(("x", "s_barrier", None))
                if OPT["diag"]:
                    seq.append(("x", f"v_writelane_b32 v250, s90, {40 + c}", None))
                    seq.append(("x", "s_memtime s[90:91]", None))
        for x in gaps[i]:
            if x[0] == "xw":
                seq.append(("m", "s_nop 0", [("x", x[1][1], t) for t in range(5)]))
            else:
                seq.append(x)
        while tf and tf[0][0] <= i - 1 - (N - 36):
            seq.append(("x", tf.pop(0)[1], None))
    assert not tf
    return add_waits(seq, False), [t for t, _ in issued]


DW = 9
PRE = OPT['pre']
SRD_OUT, SRD_D = SRD_X, SRD_W
sMT, sNT, sBS, sLD, sU, sPA, sCA = sXD, sXS, sWS, sXED, sXES, sCX, sCW
sAI = 32
sSIDE, sRDY, sPF = 38, 39, 40
vBD, vPF, vZ, vPL = 2, 3, 4, 5
vBR, WF, AC = 144, 112, 160


def wslot(s):
    return (1 + s if s < PRE else (s - PRE) % DW) * HS


def wload(s):
    return [([f"s_add_u32 s{sU}, s{sBS}, {s * 36864}"] if i == 0 else []) +
            [f"s_add_u32 m0, s{sWOF}, {wslot(s) + i * BLK}", "s_nop 0",
             f"buffer_load_dwordx4 v{vD + i}, {srd(SRD_P)}, s{sU} offen lds"] for i in range(4)]


def oreg(s, i):
    n = (s % OPT["DO"]) * 6 + i
    return 4 * n if n < 16 else 128 + 4 * (n - 16) if n < 24 else 64 + 4 * (n - 24)


def oload(s):
    off = f" offset:{(s % 4) * 1024}" if s % 4 else ""
    o = []
    for i in range(6):
        pre = [f"s_add_u32 s{sAI + i}, s{sAI + i}, 4096"] if (s % 4 == 0 and s and not OPT['p3same'] & 2) else []
        o.append(pre + [f"buffer_load_dwordx4 {ar(oreg(s, i), 4)}, v11, {srd(SRD_O)}, s{sAI + i} offen{off}{FLAGS[OPT['oflag']]}"])
    return o


def p3_setup():
    Z = Asm()
    Z(f"s_lshr_b32 s{sU}, s2, 3")
    Z(f"s_mul_i32 s{sPF}, s{sU}, 6912")
    Z(f"s_mul_i32 s{sNT}, s{sU}, 43")
    Z(f"s_lshr_b32 s{sNT}, s{sNT}, 7")
    Z(f"s_mul_i32 s{sMT}, s{sNT}, 3")
    Z(f"s_sub_u32 s{sMT}, s{sU}, s{sMT}")
    if OPT["xmap"] == 1:
        Z(f"s_and_b32 s{sCA}, s2, 1")
        Z(f"s_xor_b32 s{sCA}, s{sCA}, 1")
        Z(f"s_lshl_b32 s{sCA}, s{sCA}, 2")
        Z(f"s_bfe_u32 s{sU}, s2, 0x20001")
        Z(f"s_add_u32 s{sCA}, s{sCA}, s{sU}")
    else:
        Z(f"s_and_b32 s{sCA}, s2, 7")
    Z(f"s_mul_i32 s{sU}, s{sCA}, 3")
    Z(f"s_add_u32 s{sMT}, s{sMT}, s{sU}")
    Z(f"s_lshl_b32 s{sCA}, s{sCA}, 2")
    Z(f"s_add_u32 s{sCA}, s{sCA}, s{sW}")
    Z(f"s_lshl_b32 s{sCA}, s{sCA}, 3")
    Z(f"s_lshl_b32 s{sPA}, s{sB}, 2")
    Z(f"s_lshr_b32 s{sU}, s{sH}, 3")
    Z(f"s_add_u32 s{sPA}, s{sPA}, s{sU}")
    Z(f"s_lshl_b32 s{sPA}, s{sPA}, 3")
    Z(f"v_lshrrev_b32 v{vPF}, 3, v0")
    Z(f"v_mul_u32_u24 v{vBD}, 1152, v{vPF}")
    Z(f"v_lshlrev_b32 v{vPF}, 1, v12")
    Z(f"v_and_b32 v{vZ}, 7, v0")
    Z(f"v_xor_b32 v{vPF}, v{vPF}, v{vZ}")
    Z(f"v_lshl_add_u32 v{vBD}, v{vPF}, 4, v{vBD}")
    Z(f"v_min_u32 v{vPF}, 53, v0")
    Z(f"v_lshlrev_b32 v{vPF}, 7, v{vPF}")
    Z(f"v_mov_b32 v{vZ}, 0")
    Z(f"s_lshl_b32 s{sLD}, s{sW}, 12")
    Z(f"s_mul_i32 s{sBS}, s{sW}, {1024 * 1152}")
    Z(f"s_add_u32 s{sPF}, s{sPF}, s{sBS}")
    Z(f"s_lshl_b32 s{sU}, s{sNT}, 7")
    Z(f"s_add_u32 s{sBS}, s{sBS}, s{sU}")
    Z(f"s_cmp_ge_u32 s2, 216 | s_cselect_b32 s{sBS}, 0x40000000, s{sBS}")
    Z(f"s_mov_b32 s{SRD_OUT}, s{sOUTP}")
    Z(f"s_mov_b32 s{SRD_OUT + 1}, s{sOUTP + 1}")
    Z(f"s_mov_b32 s{SRD_OUT + 2}, {2304 * 1152}")
    Z(f"s_mov_b32 s{SRD_D}, s{sOUTP + 2}")
    Z(f"s_mov_b32 s{SRD_D + 1}, s{sOUTP + 3}")
    Z(f"s_mov_b32 s{SRD_D + 2}, 256")
    if OPT["diag"]:
        Z(f"s_mov_b32 s{sINC}, 16384")
    return [x.strip() for x in Z.l]


def o_bases(oob):
    o = [f"s_mul_i32 s{sAI}, s{sMT}, {6 * QP}", f"s_mul_i32 s{sU}, s{sW}, {GP}", f"s_add_u32 s{sAI}, s{sAI}, s{sU}"]
    if oob:
        o += [f"s_cmp_ge_u32 s{sRDY}, 8", f"s_cselect_b32 s{sAI}, s{sAI}, 0x40000000"]
    o += [f"s_add_u32 s{sAI + i}, s{sAI}, {i * QP}" for i in range(1, 6)]
    return o


def side_block(A):
    A.label("L1_side")
    if PRE == 4:
        A(f"s_cmp_eq_u32 s{sSIDE}, 2")
        A("s_cbranch_scc1 L1_tail")
        A(f"s_cmp_eq_u32 s{sSIDE}, 0")
        A("s_cbranch_scc1 L1_side1")
        A(f"s_mov_b32 s{sSIDE}, 2")
        A(f"s_mov_b32 s{sCNT}, 0")
        A(f"s_mov_b32 s{sKVS}, 0x40000000")
        A("s_branch L1_back")
        A.label("L1_side1")
    else:
        A(f"s_cmp_lg_u32 s{sSIDE}, 0")
        A("s_cbranch_scc1 L1_tail")
    A(f"global_load_dword v{vDUM}, v{vCW}, s[{sPC}:{sPC + 1}]")
    A(f"s_mov_b32 s{sSIDE}, 1")
    A(f"s_mov_b32 s{sCNT}, {1 if PRE == 4 else 2}")
    A(f"s_mov_b32 s{sINC}, {2 * 36864}")
    A(f"s_sub_u32 s{sKVS}, s{sBS}, {2 * 36864}")
    A(f"s_mov_b32 s{SRD_K}, s{SRD_P}")
    A(f"s_mov_b32 s{SRD_K + 1}, s{SRD_P + 1}")
    A(f"s_mov_b32 s{SRD_K + 2}, {4096 * 1152}")
    A(f"s_add_u32 s{SRD_V}, s{SRD_P}, 36864")
    A(f"s_addc_u32 s{SRD_V + 1}, s{SRD_P + 1}, 0")
    A(f"s_mov_b32 s{SRD_V + 2}, {4096 * 1152 - 36864}")
    for i in range(4):
        A(f"v_add_u32 v{vD + i}, {i * 9216}, v{vBD}")
    A("s_branch L1_back")


def p3(A, rest):
    DO = OPT["DO"]
    u0, u1 = 253, 254
    vBR = 224
    assert PRE == 4

    def wreg(s):
        return QV + 16 * s if s < PRE else WF + 16 * (s % 2)

    def wreads(s):
        o = wslot(s)
        return [f"ds_read_b64_tr_b16 {vr(wreg(s) + 4 * n + 2 * e, 2)}, v{vBR + 4 * (o // (3 * HS)) + n} offset:{o % (3 * HS) + e * 2 * BLK}"
                for n in range(4) for e in range(2)]

    A(f"v_bfe_u32 v{u0}, v0, 2, 3")
    A(f"v_lshlrev_b32 v{vBR}, 7, v{u0}")
    A(f"v_bfe_u32 v{u0}, v0, 3, 2")
    A(f"v_xor_b32 v{u0}, s{sW}, v{u0}")
    A(f"v_lshl_add_u32 v{vBR}, v{u0}, 5, v{vBR}")
    A(f"v_lshl_add_u32 v{vBR}, v15, 3, v{vBR}")
    A(f"v_lshrrev_b32 v{u0}, 5, v0")
    A(f"v_mul_u32_u24 v{u0}, {BLK}, v{u0}")
    A(f"v_add_u32 v{u0}, s{sWOF}, v{u0}")
    for n_ in range(1, 4):
        A(f"v_xor_b32 v{vBR + n_}, {32 * n_}, v{vBR}")
    for n_ in range(4):
        A(f"v_add_u32 v{vBR + n_}, v{u0}, v{vBR + n_}")
    for k in range(1, 3):
        for n_ in range(4):
            A(f"v_add_u32 v{vBR + 4 * k + n_}, {3 * HS * k}, v{vBR + n_}")
    A("s_waitcnt vmcnt(10)")
    pre = [x for s in range(PRE) for x in wreads(s)]
    cut = len(rest) * OPT["ppos"] // 4
    rest = rest[:cut] + [f"buffer_load_dword v{vPL}, v{vZ}, {srd(SRD_D)}, s{sCA} offen sc1"] + rest[cut:]
    for i in range(8):
        A.ext(pre[4 * i:4 * i + 4])
        A.ext(rest[(i * len(rest)) // 8:((i + 1) * len(rest)) // 8])
    A.ext(o_bases(False))
    stamp(A)
    A(f"v_mov_b32 v{u0}, 1")
    A(f"s_mov_b32 s{sCNT}, {1 << 22}")
    A("s_waitcnt vmcnt(0) lgkmcnt(0)")
    A("s_barrier")
    if OPT["diag"]:
        A("s_memrealtime s[78:79]")
    A(f"v_readfirstlane_b32 s{sRDY}, v{vPL}")

    def publish(lbl):
        A(f"s_cmp_lg_u32 s{sW}, 0")
        A(f"s_cbranch_scc1 {lbl}")
        A("s_mov_b64 exec, 1")
        A(f"buffer_atomic_add v{u0}, v{vZ}, {srd(SRD_D)}, s{sPA} offen sc1")
        A("s_mov_b64 exec, -1")
        A.label(lbl)

    A("s_cmp_ge_u32 s2, 216")
    A(f"s_cselect_b32 s{sRDY}, 0, s{sRDY}")
    A(f"s_cmp_ge_u32 s{sRDY}, {8 if OPT['fast'] else 999}")
    A("s_cbranch_scc1 L3_fast")
    publish("L3_na1")
    A("s_cmp_ge_u32 s2, 216")
    A("s_cbranch_scc1 L3_help" if OPT["helper"] else "s_cbranch_scc1 L3_done")
    vmq, nfast = [], []
    NW0 = PRE + OPT["wpre"]
    for s in range(PRE, NW0):
        for p in wload(s):
            A.ext(p)
    A.label("L3_poll")
    A(f"buffer_load_dword v{u1}, v{vZ}, {srd(SRD_D)}, s{sCA} offen sc1")
    A("s_waitcnt vmcnt(0)")
    A(f"v_readfirstlane_b32 s{sU}, v{u1}")
    A(f"s_sub_u32 s{sCNT}, s{sCNT}, 1")
    A("s_cbranch_scc1 L3_rdy")
    A(f"s_cmp_ge_u32 s{sU}, 8")
    A("s_cbranch_scc1 L3_rdy")
    A(f"s_sleep {OPT['slp']}")
    A("s_branch L3_poll")
    A.label("L3_rdy")
    for s in range(DO):
        for p in oload(s):
            A.ext(p)
            vmq.append(("o", s))
    A("s_branch L3_go")
    A.label("L3_fast")
    seq = [("o", s) for s in range(DO)] + [("w", s) for s in range(PRE, NW0)]
    for n_, (k_, s) in enumerate(seq):
        for p in (oload(s) if k_ == "o" else wload(s)):
            A.ext(p)
            nfast.append((k_, s))
        if n_ == 1:
            publish("L3_na2")
    A.label("L3_go")
    if OPT["diag"]:
        A("s_memrealtime s[80:81]")
    OWN = 16

    def accr(n_, i):
        return vr(OWN + 4 * i, 4) if n_ == 0 else ar(AC + 4 * (6 * (n_ - 1) + i), 4)
    vW_, vR_ = 40, 43
    fin = [f"v_lshl_add_u32 v{vW_}, v0, 4, s{sWOF}", f"v_add_u32 v{vW_ + 1}, {2 * HS}, v{vW_}", f"v_add_u32 v{vW_ + 2}, {4 * HS}, v{vW_}"]
    for n_ in range(1, 4):
        fin += [f"s_xor_b32 s{sT0}, s{sW}, {n_}", f"s_mul_i32 s{sT0}, s{sT0}, {4 * BLK}", f"s_add_u32 s{sT0}, s{sT0}, {(n_ - 1) * 2 * HS}",
                f"v_lshl_add_u32 v{vR_ + n_ - 1}, v0, 4, s{sT0}"]
    fin += [f"v_bfe_u32 v10, v0, 4, 1", f"v_lshl_add_u32 v9, v10, 4, v13", f"v_mul_u32_u24 v9, 1152, v9",
            f"v_lshrrev_b32 v10, 5, v0", f"v_lshl_add_u32 v9, v10, 4, v9",
            f"s_mul_i32 s{sT1}, s{sMT}, {96 * 1152}", f"s_lshl_b32 s{sT0}, s{sNT}, 7", f"s_add_u32 s{sT1}, s{sT1}, s{sT0}",
            f"s_lshl_b32 s{sT0}, s{sW}, 5", f"s_add_u32 s{sT1}, s{sT1}, s{sT0}"]
    nw = NW0
    for s in range(32):
        cnt = []
        for q in (vmq, nfast):
            need = [i for i, t in enumerate(q) if t in (("o", s), ("w", s + 1))]
            cnt.append(len(q) - 1 - max(need) if need else 63)
        A(f"s_waitcnt vmcnt({min(min(cnt), 63)}) lgkmcnt(0)")
        rdq = wreads(s + 1) if PRE <= s + 1 < 32 else []
        ld = []
        if nw < 32 and nw - DW <= s:
            ld += [(p, ("w", nw)) for p in wload(nw)]
            nw += 1
        if s >= 1 and s - 1 + DO < 32:
            ld += [(p, ("o", s - 1 + DO)) for p in oload(s - 1 + DO)]
        extra = list(fin) if s == 30 else []
        wq = []
        k = 0
        for n_ in ((1, 2, 3, 0) if s == 31 else range(4)):
            for i in range(6):
                acc = accr(n_, i)
                A(f"{MF} {acc}, {vr(wreg(s) + 4 * n_, 4)}, {ar(oreg(s, i), 4)}, {'0' if s == 0 else acc}")
                k += 1
                if rdq and k % 2 == 1:
                    A(rdq.pop(0))
                if ld and k % 2 == 0:
                    p, tag = ld.pop(0)
                    A.ext(p)
                    vmq.append(tag)
                    nfast.append(tag)
                if extra and k % 2 == 0:
                    A.ext(extra[:3])
                    extra = extra[3:]
                if s == 31:
                    if n_:
                        wq.append(f"ds_write_b128 v{vW_ + n_ - 1}, {acc} offset:{(i // 3) * HS + (i % 3) * 1024}")
                    if k > 8:
                        A(wq.pop(0))
        assert not ld and not rdq and not extra
        A.ext(wq)
    assert nw == 32
    if OPT["diag"]:
        A("s_memrealtime s[82:83]")
    A("s_waitcnt lgkmcnt(0)")
    A("s_barrier")
    R = 48
    for x in range(3):
        for i in (2 * x, 2 * x + 1):
            for n_ in range(1, 4):
                A(f"ds_read_b128 {vr(R + 12 * i + 4 * (n_ - 1), 4)}, v{vR_ + n_ - 1} offset:{(i // 3) * HS + (i % 3) * 1024}")
    for x in range(3):
        A(f"s_waitcnt lgkmcnt({6 * (2 - x)})")
        for i in (2 * x, 2 * x + 1):
            for e in range(4):
                A(f"v_add_f32 v{OWN + 4 * i + e}, v{OWN + 4 * i + e}, v{R + 12 * i + e}")
                A(f"v_add_f32 v{R + 12 * i + 4 + e}, v{R + 12 * i + 4 + e}, v{R + 12 * i + 8 + e}")
            for e in range(4):
                A(f"v_add_f32 v{OWN + 4 * i + e}, v{OWN + 4 * i + e}, v{R + 12 * i + 4 + e}")
        d = 124 + 4 * x
        for e in range(4):
            A(f"v_cvt_pk_bf16_f32 v{d + e}, v{OWN + 8 * x + 2 * e}, v{OWN + 8 * x + 2 * e + 1}")
        A("s_nop 1")
        A(f"v_permlane16_swap_b32 v{d}, v{d + 2}")
        A(f"v_permlane16_swap_b32 v{d + 1}, v{d + 3}")
        A(f"buffer_store_dwordx4 {vr(d, 4)}, v9, {srd(SRD_OUT)}, s{sT1} offen{FLAGS[OPT['outflag']]}")
        A(f"s_add_u32 s{sT1}, s{sT1}, {32 * 1152}")
    if OPT["helper"]:
        A("s_branch L3_done")
        A.label("L3_help")
        sJ, sOB, sWB = sAI, sAI + 1, sAI + 2
        A(f"s_lshr_b32 s{sJ}, s2, 3")
        A(f"s_sub_u32 s{sJ}, s{sJ}, 27")
        A(f"s_mul_i32 s{sT0}, s{sJ}, 58")
        A(f"v_add_u32 v16, s{sT0}, v0")
        A(f"v_min_u32 v16, 287, v16")
        A(f"v_lshlrev_b32 v16, 7, v16")
        A(f"s_mul_i32 s{sWB}, s{sW}, {1024 * 1152}")
        A(f"s_mul_i32 s{sT0}, s{sJ}, 29")
        A(f"v_and_b32 v17, 31, v0")
        A(f"v_add_u32 v17, s{sT0}, v17")
        A(f"v_min_u32 v17, 143, v17")
        A(f"v_lshrrev_b32 v18, 3, v17")
        A(f"s_mov_b32 s{sT0}, {QP}")
        A(f"v_mul_lo_u32 v18, s{sT0}, v18")
        A(f"v_and_b32 v17, 7, v17")
        A(f"v_lshl_add_u32 v17, v17, 7, v18")
        A(f"v_lshrrev_b32 v18, 5, v0")
        A(f"v_lshl_add_u32 v17, v18, 10, v17")
        A(f"s_lshr_b32 s{sOB}, s{sCA}, 5")
        A(f"s_mul_i32 s{sOB}, s{sOB}, {18 * QP}")
        A(f"s_mul_i32 s{sT0}, s{sW}, {GP}")
        A(f"s_add_u32 s{sOB}, s{sOB}, s{sT0}")

        def hw(s_):
            A(f"s_add_u32 s{sT0}, s{sWB}, {s_ * 36864}")
            A(f"buffer_load_dword v{vDUM}, v16, {srd(SRD_P)}, s{sT0} offen")

        def ho(s_):
            A(f"s_add_u32 s{sT0}, s{sOB}, {s_ * 1024}")
            A(f"buffer_load_dword v{vDUM}, v17, {srd(SRD_O)}, s{sT0} offen sc1")
        for s_ in range(NW0, NW0 + OPT["hA"]):
            hw(s_)
        A.label("L3_hpoll")
        A(f"buffer_load_dword v{u1}, v{vZ}, {srd(SRD_D)}, s{sCA} offen sc1")
        A("s_waitcnt vmcnt(0)")
        A(f"v_readfirstlane_b32 s{sU}, v{u1}")
        A(f"s_sub_u32 s{sCNT}, s{sCNT}, 1")
        A("s_cbranch_scc1 L3_done")
        A(f"s_cmp_ge_u32 s{sU}, 8")
        A("s_cbranch_scc1 L3_hgo")
        A(f"s_sleep {OPT['slp']}")
        A("s_branch L3_hpoll")
        A.label("L3_hgo")
        ev = [(s_ - 3, "o", s_) for s_ in range(OPT["ho"], 32, 2)] + [(s_ - DW, "w", s_) for s_ in range(NW0 + OPT["hA"], 32)]
        for _, k_, s_ in sorted(ev):
            (ho if k_ == "o" else hw)(s_)
    A.label("L3_done")


def k1(A):
    A.raw(".p2align 8")
    A.raw(".type attn_kernel,@function")
    A.label("attn_kernel")
    A("s_cmp_ge_u32 s2, 256")
    A("s_cbranch_scc1 L1_end")
    A("s_load_dwordx8 s[32:39], s[0:1], 0")
    A("s_load_dwordx2 s[40:41], s[0:1], 56")
    A("s_load_dwordx2 s[30:31], s[0:1], 32")
    if OPT["tlb"] == 1:
        A("s_load_dwordx4 s[20:23], s[0:1], 40")
    A(f"s_getpc_b64 s[{sPC}:{sPC + 1}]")
    A.label("L1_pc")
    stamp(A)
    if OPT["diag"]:
        A("s_memrealtime s[92:93]")
    if OPT["dspin"]:
        A("s_memrealtime s[62:63]")
    A("s_lshr_b32 s3, s2, 3")
    if OPT["cpf"]:
        A(f"s_lshl_b32 s{sT0}, s3, 11")
        A(f"v_lshl_add_u32 v1, v0, 7, s{sT0}")
        A("v_min_u32 v1, L_code_end-L1_pc-4, v1")
        A("v_cmp_gt_u32 vcc, 16, v0")
        A("s_and_saveexec_b64 s[46:47], vcc")
        A("s_cbranch_execz L1_nocpf")
        A(f"global_load_dword v{vDUM}, v1, s[{sPC}:{sPC + 1}]")
        A.label("L1_nocpf")
        A("s_mov_b64 exec, s[46:47]")
    A("v_lshrrev_b32 v1, 6, v0")
    A("v_and_b32 v0, 63, v0")
    A(f"v_readfirstlane_b32 s{sW}, v1")
    if OPT["xmap"] == 0:
        A(f"s_and_b32 s{sB}, s2, 7")
        A(f"s_mov_b32 s{sH}, s3")
    else:
        A(f"s_and_b32 s{sB}, s2, 1")
        A(f"s_lshl_b32 s{sB}, s{sB}, 2")
        A(f"s_and_b32 s{sT0}, s3, 3")
        A(f"s_add_u32 s{sB}, s{sB}, s{sT0}")
        A(f"s_and_b32 s{sH}, s2, 6")
        A(f"s_lshl_b32 s{sH}, s{sH}, 2")
        A(f"s_lshr_b32 s{sT0}, s3, 2")
        A(f"s_add_u32 s{sH}, s{sH}, s{sT0}")
    A(f"s_and_b32 s{sP}, s{sW}, 1")
    nph = OPT["nph"]
    if nph == 1:
        A(f"s_mov_b32 s{sCW}, 0")
    elif nph == 2:
        A(f"s_add_u32 s{sCW}, s{sB}, s{sH}")
        A(f"s_and_b32 s{sCW}, s{sCW}, 1")
        A(f"s_mul_i32 s{sCW}, s{sCW}, {4 * 128}")
    elif nph == 4:
        A(f"s_add_u32 s{sCW}, s{sB}, s{sH}")
        A(f"s_and_b32 s{sCW}, s{sCW}, 3")
        A(f"s_mul_i32 s{sCW}, s{sCW}, {2 * 128}")
    elif nph == 3:
        A(f"s_add_u32 s{sCW}, s{sB}, s{sH}")
        A(f"s_mul_i32 s{sT0}, s{sCW}, 43")
        A(f"s_lshr_b32 s{sT0}, s{sT0}, 7")
        A(f"s_mul_i32 s{sT0}, s{sT0}, 3")
        A(f"s_sub_u32 s{sCW}, s{sCW}, s{sT0}")
        A(f"s_mul_i32 s{sCW}, s{sCW}, {3 * 128}")
    A(f"s_mov_b32 s{sCX}, s{sCW}")
    t0, t1, t2, g4, i16, r4, cq = 9, 10, 11, 12, 13, 14, 15
    A(f"v_lshrrev_b32 v{g4}, 4, v0")
    A(f"v_and_b32 v{i16}, 15, v0")
    A(f"v_lshrrev_b32 v{t0}, 5, v0")
    A(f"v_lshlrev_b32 v{vWD}, 18, v{t0}")
    A(f"v_and_b32 v{t0}, 1, v{g4}")
    A(f"v_lshl_add_u32 v{vWD}, v{t0}, 15, v{vWD}")
    A(f"v_lshl_add_u32 v{vWD}, v{i16}, 4, v{vWD}")
    A(f"v_lshrrev_b32 v{t0}, 3, v0")
    A(f"v_mul_u32_u24 v{vXD}, 1152, v{t0}")
    A(f"v_and_b32 v{t0}, 7, v0")
    A(f"v_xor_b32 v{t0}, v{t0}, v{g4}")
    A(f"v_lshl_add_u32 v{vXD}, v{t0}, 4, v{vXD}")
    A(f"v_xor_b32 v{vXD + 1}, 64, v{vXD}")
    A(f"s_lshl_b32 s{sT0}, s{sP}, 6")
    A(f"v_xor_b32 v{vXDE}, s{sT0}, v{vXD}")
    A(f"s_lshl_b32 s{sXD}, s{sW}, 13")
    A(f"s_add_u32 s{sXD}, s{sXD}, {XOFF}")
    A(f"s_mul_i32 s{sXS}, s{sW}, {8 * 9216}")
    A(f"s_lshl_b32 s{sXED}, s{sW}, 10")
    A(f"s_add_u32 s{sXED}, s{sXED}, {XEOFF}")
    A(f"s_mul_i32 s{sXES}, s{sW}, 9216")
    A(f"s_add_u32 s{sXES}, s{sXES}, {32 * 9216}")
    A(f"s_lshr_b32 s{sT0}, s{sW}, 1")
    A(f"s_mul_i32 s{sWD}, s{sT0}, {WG1}")
    A(f"s_mul_i32 s{sT0}, s{sP}, {WG0}")
    A(f"s_add_u32 s{sWD}, s{sWD}, s{sT0}")
    A(f"s_lshl_b32 s{sWS}, s{sW}, 16")
    A(f"s_mul_i32 s{sT1}, s{sB}, 331776")
    A(f"s_lshl_b32 s{sT0}, s{sH}, 8")
    A(f"s_mov_b32 s{SRD_X + 2}, 331776")
    A(f"s_mov_b32 s{SRD_X + 3}, 0x20000")
    A(f"s_sub_u32 s{SRD_W + 2}, {576 * 8192}, s{sT0}")
    A(f"s_mov_b32 s{SRD_W + 3}, 0x20000")
    if OPT["fine"]:
        stamp(A)
    A("s_waitcnt lgkmcnt(0)")
    if OPT["fine"]:
        stamp(A)
    A(f"s_add_u32 s{SRD_W}, s38, s{sT0}")
    A(f"s_addc_u32 s{SRD_W + 1}, s39, 0")
    A(f"s_add_u32 s{SRD_X}, s32, s{sT1}")
    A(f"s_addc_u32 s{SRD_X + 1}, s33, 0")
    S = Asm()
    E = A if OPT["tlb"] == 3 else S
    E(f"s_lshl_b32 s{sT1}, s{sB}, 5")
    E(f"s_add_u32 s{sT1}, s{sT1}, s{sH}")
    E(f"s_lshl_b32 s{sT1}, s{sT1}, 19")
    if OPT["tlb"] == 3:
        for r_, p_ in ((SRD_K, 34), (SRD_V, 36)):
            A(f"s_add_u32 s{r_}, s{p_}, s{sT1}")
            A(f"s_addc_u32 s{r_ + 1}, s{p_ + 1}, 0")
            A(f"s_load_dword s{sRDY}, s[{r_}:{r_ + 1}], 0")
    S(f"s_add_u32 s{SRD_K}, s34, s{sT1} | s_addc_u32 s{SRD_K + 1}, s35, 0")
    S(f"s_mov_b32 s{SRD_K + 2}, 524288")
    S(f"s_mov_b32 s{SRD_K + 3}, 0x20000")
    S(f"s_add_u32 s{SRD_V}, s36, s{sT1} | s_addc_u32 s{SRD_V + 1}, s37, 0")
    if OPT["tlb"] == 2:
        S(f"s_load_dword s{sRDY}, s[{SRD_K}:{SRD_K + 1}], 0")
        S(f"s_load_dword s{sRDY}, s[{SRD_V}:{SRD_V + 1}], 0")
    S(f"s_mov_b32 s{SRD_V + 2}, 524288")
    S(f"s_mov_b32 s{SRD_V + 3}, 0x20000")
    S(f"s_add_u32 s{SRD_O}, s40, {OPT['wsoff'] << 20} | s_addc_u32 s{SRD_O + 1}, s41, 0")
    S(f"s_mov_b32 s{SRD_O + 2}, {(DIAG_OFF + (2 << 20)) if OPT['diag'] else WS_O_BYTES}")
    S(f"s_mov_b32 s{SRD_O + 3}, 0x20000")
    S(f"s_mov_b32 s{SRD_P}, s30")
    S(f"s_mov_b32 s{SRD_P + 1}, s31")
    S(f"s_mov_b32 s{SRD_P + 2}, {4096 * 1152}")
    S(f"s_mov_b32 s{SRD_P + 3}, 0x20000")
    S(f"v_bfe_u32 v{r4}, v0, 2, 2")
    S(f"v_and_b32 v{cq}, 3, v0")
    XA, XE, WL, WH = vQA, vQA + 2, vQA + 4, vQA + 5
    S(f"v_lshlrev_b32 v{XE}, 7, v{i16}")
    S(f"v_lshrrev_b32 v{t0}, 1, v{i16}")
    S(f"v_xor_b32 v{t0}, v{t0}, v{g4}")
    S(f"v_lshl_add_u32 v{XE}, v{t0}, 4, v{XE}")
    S(f"v_add_u32 v{XA}, s{sXD}, v{XE}")
    S(f"s_lshr_b32 s{sT1}, s{sW}, 1")
    S(f"s_lshl_b32 s{sT1}, s{sT1}, 11")
    S(f"s_add_u32 s{sT1}, s{sT1}, {XEOFF}")
    S(f"v_add_u32 v{XE}, s{sT1}, v{XE}")
    S(f"v_xor_b32 v{XA + 1}, 64, v{XA}")
    S(f"v_xor_b32 v{XE + 1}, 64, v{XE}")
    S(f"v_lshrrev_b32 v{t0}, 1, v{g4}")
    S(f"v_mul_u32_u24 v{WL}, {WG1}, v{t0}")
    S(f"v_and_b32 v{t0}, 1, v{g4}")
    S(f"v_mul_u32_u24 v{t0}, {WG0}, v{t0}")
    S(f"v_add_u32 v{WL}, v{WL}, v{t0}")
    S(f"v_mul_u32_u24 v{t0}, {XB}, v{r4}")
    S(f"v_add_u32 v{WL}, v{WL}, v{t0}")
    S(f"v_lshl_add_u32 v{WL}, v{cq}, 4, v{WL}")
    S(f"s_lshl_b32 s{sT1}, s{sP}, 7")
    S(f"s_xor_b32 s{sOO}, s{sT1}, 128")
    S(f"v_add_u32 v{WH}, s{sOO}, v{WL}")
    S(f"v_add_u32 v{WL}, s{sT1}, v{WL}")
    for i in range(6):
        S(f"v_add_u32 v{vQA + 6 + i}, {2 * STSZ}, v{vQA + i}")
    S(f"s_lshl_b32 s{sT1}, s{sW}, 12")
    S(f"v_lshl_add_u32 v{vV4}, v0, 4, s{sT1}")
    S(f"s_mul_i32 s{sWOF}, s{sW}, {4 * BLK}")

    def dma_regs(Z):
        for i in range(4):
            Z(f"v_add_u32 v{vD + i}, {i * 1024}, v{vV4}")
    dma_regs(S)
    S(f"v_mul_u32_u24 v{t0}, {BLK}, v{i16}")
    S(f"v_lshl_add_u32 v{t0}, v{g4}, 4, v{t0}")
    S(f"v_lshl_add_u32 v{t1}, v{g4}, 2, v{r4}")
    S(f"v_mul_u32_u24 v{t1}, {BLK}, v{t1}")
    S(f"v_lshl_add_u32 v{t1}, v{cq}, 3, v{t1}")
    for j in range(2):
        S(f"s_xor_b32 s{sT1}, s{sP}, {j}")
        S(f"s_lshl_b32 s{sT1}, s{sT1}, 9")
        S(f"v_add_u32 v{vVB + j}, s{sT1}, v{t1}")
        S(f"s_lshl_b32 s{sOO}, s{sP}, 7")
        S(f"s_add_u32 s{sT1}, s{sT1}, s{sOO}")
        S(f"v_add_u32 v{vKB + 2 * j}, s{sT1}, v{t0}")
        S(f"s_xor_b32 s{sT1}, s{sT1}, 128")
        S(f"v_add_u32 v{vKB + 2 * j + 1}, s{sT1}, v{t0}")
    if OPT["rot"]:
        S(f"s_mul_i32 s{sG0}, s2, {OPT['rot']}")
        S(f"s_lshr_b32 s{sT1}, s2, 4")
        S(f"s_add_u32 s{sG0}, s{sG0}, s{sT1}")
        S(f"s_and_b32 s{sG0}, s{sG0}, 15")
        S(f"s_mul_i32 s{sG0}, s{sG0}, {16384 * 7 // 4 // 16384 * 16384}")
    S(f"s_lshl_b32 s{sWP}, s2, 2")
    S(f"s_add_u32 s{sWP}, s{sWP}, s{sW}")
    S(f"s_mul_i32 s{sWP}, s{sWP}, 4608")
    S(f"v_min_u32 v7, 1, v0")
    S(f"v_lshlrev_b32 v7, 7, v7")
    S(f"s_lshl_b32 s{sDV}, s{sP}, 10")
    S(f"s_sub_u32 s{sDV}, 512, s{sDV}")
    S(f"v_min_u32 v{vCW}, 1, v0")
    S(f"s_lshr_b32 s{sT1}, s2, 3")
    S(f"s_lshl_b32 s{sT1}, s{sT1}, 2")
    S(f"s_add_u32 s{sT1}, s{sT1}, s{sW}")
    S(f"s_lshl_b32 s{sT1}, s{sT1}, 8")
    S(f"v_lshl_add_u32 v{vCW}, v{vCW}, 7, s{sT1}")
    S(f"v_min_u32 v{vCW}, L1_redo-L1_tail, v{vCW}")
    S(f"v_add_u32 v{vCW}, L1_tail-L1_pc, v{vCW}")
    S(f"v_mov_b32 v{t0}, 0x3f803f80")
    S(f"v_cmp_eq_u32 vcc, 0, v{cq}")
    S(f"s_mov_b32 s{sSC}, {QSCALE:#x}")
    S(f"s_mov_b32 s{sREDO}, 0")
    S(f"v_cndmask_b32 v{t0}, 0, v{t0}, vcc")
    for i in range(4):
        S(f"v_accvgpr_write_b32 a{ONES + i}, v{t0}")
    S(f"s_add_u32 s{sT1}, s{sXD}, {2 * STSZ + 6144}")
    S(f"v_lshl_add_u32 v{t0}, v0, 4, s{sT1}")
    S(f"s_xor_b32 s{sT1}, s{sW}, 1")
    S(f"s_lshl_b32 s{sT1}, s{sT1}, 13")
    S(f"s_add_u32 s{sT1}, s{sT1}, {XOFF + 2 * STSZ + 6144}")
    S(f"v_lshl_add_u32 v{t1}, v0, 4, s{sT1}")

    def loop_scalars(Z):
        if OPT["rot"]:
            Z(f"s_add_u32 s{sKVS}, s{sG0}, {DD * 16384}")
        else:
            Z(f"s_mov_b32 s{sKVS}, {DD * 16384}")
        Z(f"s_add_u32 s{sKD}, s{sWOF}, {(NS - 1) * HS}")
        Z(f"s_mov_b32 s{sVD}, s{sWOF}")
        Z(f"s_mov_b32 s{sKN}, {2 * HS}")
        Z(f"s_mov_b32 s{sVN}, {3 * HS}")
        Z(f"s_mov_b32 s{sCNT}, 28")
        Z(f"s_mov_b32 s{sSIDE}, 0")
        if Z is not S or not OPT["diag"]:
            Z(f"s_mov_b32 s{sINC}, 16384")
        if OPT["diag"]:
            Z("s_mov_b32 s41, 31")

    def loop_addr():
        return [f"v_add_u32 v{vK}, {2 * HS}, v{vKB}", f"v_add_u32 v{vK + 1}, {2 * HS}, v{vKB + 1}",
                f"v_mov_b32 v{vK + 2}, v{vKB + 2}", f"v_mov_b32 v{vK + 3}, v{vKB + 3}",
                f"v_add_u32 v{vV}, {HS}, v{vVB}", f"v_add_u32 v{vV + 1}, {HS}, v{vVB + 1}"]

    loop_scalars(S)
    for i in range(180):
        S(f"v_accvgpr_write_b32 a{i}, 0")
    setup = [x.strip() for x in S.l]
    for i_, p in enumerate(wg_pieces(0) + x_pieces(0)):
        A.ext(p)
        if OPT["fine"] and i_ in (0, 8):
            stamp(A)
    if OPT["fine"]:
        stamp(A)
        A("s_waitcnt vmcnt(12)")
        stamp(A)
        A("s_waitcnt vmcnt(0)")
        stamp(A)
        OPT["diag"] = 2
    npf = 0

    def tlb_touch():
        A(f"v_lshlrev_b32 v{t0}, 18, v0")
        A(f"s_cmp_eq_u32 s{sW}, 1")
        A("s_cbranch_scc1 L1_t1")
        A(f"s_cmp_eq_u32 s{sW}, 2")
        A("s_cbranch_scc1 L1_t2")
        A(f"s_cmp_eq_u32 s{sW}, 3")
        A("s_cbranch_scc1 L1_t3")
        A(f"s_lshl_b32 s{sT1}, s{sB}, 5")
        A(f"s_add_u32 s{sT1}, s{sT1}, s{sH}")
        A(f"s_lshl_b32 s{sT1}, s{sT1}, 19")
        A(f"v_min_u32 v{t0}, {1 << 18}, v{t0}")
        A(f"v_add_u32 v{t0}, s{sT1}, v{t0}")
        A(f"global_load_dword v{vDUM}, v{t0}, s[34:35] nt")
        A(f"global_load_dword v{vDUM}, v{t0}, s[36:37] nt")
        A("s_branch L1_td")
        A.label("L1_t1")
        A(f"v_min_u32 v{t0}, {17 << 18}, v{t0}")
        A(f"global_load_dword v{vDUM}, v{t0}, s[38:39]")
        A(f"global_load_dword v{vDUM}, v{t0}, s[30:31]")
        A("s_branch L1_td")
        A.label("L1_t2")
        A(f"v_lshlrev_b32 v{t1}, 20, v0")
        A(f"v_min_u32 v{t1}, {17 << 20}, v{t1}")
        A(f"v_add_u32 v{t1}, {OPT['wsoff'] << 20}, v{t1}")
        A(f"global_load_dword v{vDUM}, v{t1}, s[40:41] sc1 nt")
        A(f"v_min_u32 v{t0}, {10 << 18}, v{t0}")
        A(f"global_load_dword v{vDUM}, v{t0}, s[20:21] nt")
        A("s_branch L1_td")
        A.label("L1_t3")
        A(f"v_mov_b32 v{t1}, 0")
        A(f"global_load_dword v{vDUM}, v{t1}, s[22:23] sc1")
        A(f"v_min_u32 v{t0}, {10 << 18}, v{t0}")
        A(f"global_load_dword v{vDUM}, v{t0}, s[32:33]")
        A.label("L1_td")

    if OPT["tlb"] == 1:
        tlb_touch()
        npf = 2
    if OPT["pf"]:
        na = OPT["pfa"]
        A(f"v_min_u32 v{t0}, {9 * na - 1}, v0")
        A(f"v_mul_u32_u24 v{t1}, 57, v{t0}")
        A(f"v_lshrrev_b32 v{t1}, 9, v{t1}")
        A(f"v_mul_u32_u24 v{t2}, 9, v{t1}")
        A(f"v_sub_u32 v{t0}, v{t0}, v{t2}")
        A(f"v_mul_u32_u24 v248, 1152, v{t0}")
        A(f"s_and_b32 s{sT1}, s{sH}, 7")
        A(f"s_lshl_b32 s{sT1}, s{sT1}, 2")
        A(f"s_add_u32 s{sT1}, s{sT1}, s{sW}")
        A(f"s_mul_i32 s{sT1}, s{sT1}, {9 * 1152}")
        A(f"v_add_u32 v248, s{sT1}, v248")
        A(f"v_lshl_add_u32 v246, v{t1}, 7, v248")
        A(f"buffer_load_dword v{vDUM}, v246, {srd(SRD_X)}, 0 offen offset:128")
        A(f"v_bfe_u32 v{t0}, v0, 1, 2")
        A(f"v_lshlrev_b32 v249, 13, v{t0}")
        A(f"v_and_b32 v{t0}, 1, v0")
        A(f"v_lshl_add_u32 v249, v{t0}, 7, v249")
        A(f"s_and_b32 s{sT1}, s{sB}, 3")
        A(f"s_lshl_b32 s{sT1}, s{sT1}, 2")
        A(f"s_add_u32 s{sT1}, s{sT1}, s{sW}")
        A(f"s_lshl_b32 s{sT1}, s{sT1}, 15")
        A(f"v_add_u32 v249, s{sT1}, v249")
        A(f"v_lshrrev_b32 v{t0}, 3, v0")
        A(f"v_min_u32 v{t0}, {na - 1}, v{t0}")
        A(f"v_lshl_add_u32 v247, v{t0}, 19, v249")
        A(f"s_mov_b32 s{sT1}, {1 << 19}")
        A(f"buffer_load_dword v{vDUM}, v247, {srd(SRD_W)}, s{sT1} offen")
        npf = 2
    first = []
    for c in range(1, OPT["up"]):
        first += wg_pieces(c) + x_pieces(c)
    per = len(setup) // (len(first) + 1) + 1
    stamp(A)
    for p in [[]] + first:
        A.ext(p)
        for _ in range(per):
            if setup:
                for y in setup.pop(0).split(" | "):
                    A(y)
    assert not setup
    stamp(A)
    A(f"s_waitcnt vmcnt({len(first) + npf})")
    A("s_barrier")
    stamp(A)
    P = lambda n: [item_piece(n, i) for i in range(4)]
    kw = [f"global_load_dword v{vDUM}, v{vCW}, s[{sPC}:{sPC + 1}]"] if OPT["cpf"] else []
    kw = [f"buffer_load_dword v{vDUM}, v7, {srd(SRD_P)}, s{sWP} offen"] if OPT["wopf"] == 2 else []
    if OPT["stg"] == 0:
        extras = {4: P(0), 5: P(1), 6: P(2)}
        al = P(0) + P(1) + P(2)
        if OPT["kvs"] == 1:
            extras = {4: al[0:3], 5: al[3:6], 6: al[6:8], 7: al[8:12]}
        if OPT["kvs"] >= 4:
            extras = {4: al[:OPT["kvs"]]}
            if OPT["kvs"] < 12:
                extras[7] = al[OPT["kvs"]:]
    else:
        extras = {7: P(0) + P(1) + P(2)}
    if DD == 4:
        extras[8] = P(3) + P(4) + P(5)
        late = P(6) + P(7)
        late[0] = kw + late[0]
        late[7] = late[7] + kw
    elif DD == 3:
        extras[8] = P(3)
        late = P(4) + P(5)
        late[7] = late[7] + kw
    else:
        extras[8] = P(3)
        late = [[]] * 8
    if OPT["pf"]:
        for c in range(OPT["pfa"] + 1, 9):
            at = max(0, c - OPT["pf"])
            extras[at] = extras.get(at, []) + [
                [f"buffer_load_dword v{vDUM}, v248, {srd(SRD_X)}, 0 offen offset:{c * 128}"],
                [f"s_mov_b32 s{sT0}, {c << 19}", f"buffer_load_dword v{vDUM}, v249, {srd(SRD_W)}, s{sT0} offen"]]
    if OPT["wopf"] == 1:
        extras[7] = extras.get(7, []) + [[f"v_lshlrev_b32 v253, 7, v0", f"v_min_u32 v253, {35 * 128}, v253",
                      f"buffer_load_dword v{vDUM}, v253, {srd(SRD_P)}, s{sWP} offen"]]

    def conv(t, kk):
        src = ACC + 32 * t + 8 * kk
        dst = QV + 16 * t + 4 * kk
        o = []
        for i in range(4):
            o += [f"v_mul_f32 v{src + 2 * i}, s{sSC}, v{src + 2 * i}", f"v_mul_f32 v{src + 2 * i + 1}, s{sSC}, v{src + 2 * i + 1}"]
        for i in range(4):
            o.append(f"v_cvt_pk_bf16_f32 v{dst + i}, v{src + 2 * i}, v{src + 2 * i + 1}")
        return o

    KF = [184, 224]
    k0reads = [kread(ar(KF[kb] + 4 * kk, 4), vKB, kb, kk) for kb in range(2) for kk in range(4)]
    ti = []

    def spread(lst, g0, g1):
        for i, x in enumerate(lst):
            ti.append((g0 + (i * (g1 - g0)) // len(lst), x))

    spread(conv(4, 0) + conv(0, 0) + conv(1, 0) + conv(2, 0), 13, 22)
    spread(conv(4, 1) + [f"ds_write_b128 v{t0}, {vr(QV + 64, 4)}", f"ds_write_b128 v{t0}, {vr(QV + 68, 4)} offset:1024"]
           + conv(3, 0) + conv(0, 1), 22, 29)
    ti.append((29, "BAR"))
    spread([f"ds_read_b128 {vr(QV + 72, 4)}, v{t1}", f"ds_read_b128 {vr(QV + 76, 4)}, v{t1} offset:1024"] + k0reads[:4]
           + conv(1, 1) + k0reads[4:] + conv(2, 1) + conv(3, 1), 29, 36)
    nb = [i for i, x in enumerate(ti) if x[1] == "BAR"][0]
    ti[nb:nb + 1] = [(29, "VMW"), (29, "s_barrier")]
    qp, issued = build_qproj(extras, OPT["up"], ti, {6: [f"s_load_dwordx4 s[{sOUTP}:{sOUTP + 3}], s[0:1], 40"], 8: p3_setup()})
    vms = [x for x in qp if x.startswith(("buffer_load", "global_load"))]
    lastv0 = max(i for i, x in enumerate(vms) if x == P(1)[3][-1] and i == min(k for k, y in enumerate(vms) if y == x))
    ny = len(vms) - 1 - lastv0
    qp = [(f"s_waitcnt vmcnt({ny}) lgkmcnt(0)" if x == "VMW" else x) for x in qp]
    A.ext(tidy(qp) if OPT['tidy'] else qp)
    stamp(A)
    body, pro, tail = build_loop()

    def qk0(kb, kk, useneg):
        o = []
        for t in range(5):
            Sx = Sreg(t, 0) + 4 * kb
            C = (vr(NEG + 4 * t, 4) if useneg else "0") if kk == 0 else vr(Sx, 4)
            o.append(f"{MF} {vr(Sx, 4)}, {ar(KF[kb] + 4 * kk, 4)}, {vr(QV + 16 * t + 4 * kk, 4)}, {C}")
        return o

    def mix(mf, fill):
        n = len(mf)
        o = []
        for i, m in enumerate(mf):
            o.append(m)
            o += fill[(i * len(fill)) // n:((i + 1) * len(fill)) // n]
        A.ext(tidy(o) if OPT['tidy'] else o)

    flat = lambda ps: [x for p in ps for x in p]
    pro_rd = [x for x in pro if is_ds(x)]
    pro_sm = [x for x in pro if not is_ds(x)]
    A.ext(conv(0, 2) + flat(late[0:2]) + conv(0, 3))
    A("s_waitcnt lgkmcnt(0)")
    mix(qk0(0, 0, False) + qk0(0, 1, False), conv(1, 2) + conv(2, 2) + conv(3, 2) + flat(late[2:4]))
    mix(qk0(0, 2, False), conv(1, 3) + conv(2, 3) + conv(3, 3))
    A("s_nop 0")
    A.ext(qk0(0, 3, False))
    A.ext(loop_addr())
    A.ext(pro_rd)
    A.ext(flat(late[4:6]))
    for t in range(5):
        Sx = Sreg(t, 0)
        A(f"v_max3_f32 v{vM + t}, v{Sx}, v{Sx + 1}, v{Sx + 2}")
    for t in range(5):
        A(f"v_max_f32 v{vM + t}, v{vM + t}, v{Sreg(t, 0) + 3}")

    def xlane5(Z, op, base, tmp):
        for sw in ("v_permlane32_swap_b32", "v_permlane16_swap_b32"):
            for t in range(5):
                Z(f"v_mov_b32 v{tmp + t}, v{base + t}")
            for t in range(5):
                Z(f"{sw} v{base + t}, v{tmp + t}")
            for t in range(5):
                Z(f"{op} v{base + t}, v{base + t}, v{tmp + t}")

    xlane5(A, "v_max_f32", vM, vM + 8)
    for t in range(5):
        for i in range(4):
            A(f"v_sub_f32 v{NEG + 4 * t + i}, 0, v{vM + t}")
    subs = [f"v_sub_f32 v{Sreg(t, 0) + i}, v{Sreg(t, 0) + i}, v{vM + t}" for t in range(5) for i in range(4)]
    kb0regs = {Sreg(t, 0) + i for t in range(5) for i in range(4)}

    def srcs(x):
        return [int(z.strip()[1:]) for z in x.split(None, 1)[1].split(",")[1:]]
    sm0 = [x for x in pro_sm if all(r in kb0regs for r in srcs(x))]
    sm1 = [x for x in pro_sm if x not in sm0]

    def safe(lst):
        o, prev = [], ""
        for x in lst:
            if prev.startswith("v_exp") and x.startswith("v_cvt"):
                o.append("s_nop 0")
            o.append(x)
            prev = x
        return o
    A.ext(flat(late[6:8]))
    mix(flat([qk0(1, kk, True) for kk in range(4)]), subs + safe(sm0))
    A("s_nop 3")
    A.label("L1_presm")
    A.ext(safe(sm1))
    A("s_waitcnt lgkmcnt(0)")
    stamp(A)
    if OPT["dspin"]:
        A("s_memrealtime s[64:65]")
    A.raw(".p2align 6")
    A.label("L1_loop")
    if OPT["diag"]:
        A(f"s_mov_b32 m0, s41")
        A("s_sub_u32 s41, s41, 1")
        A("v_writelane_b32 v250, s90, m0")
        A("v_writelane_b32 v251, s96, m0")
        A("s_memtime s[90:91]")
        A("s_memrealtime s[96:97]")
    A.ext(body)
    A("s_branch L1_loop")
    errs = hazard.check(body + body, "loop")
    side_block(A)
    A.label("L1_tail")
    T0 = len(A.l)
    if OPT["dspin"]:
        A("s_memrealtime s[66:67]")
    stamp(A)
    tail_rd = [x for x in tail if is_ds(x)]
    tail_sm = [x for x in tail if not is_ds(x)]
    A.ext(tail_rd)
    A.ext(safe(tail_sm))
    A(f"s_add_u32 s{sT0}, s{sWOF}, {TS * HS}")
    A(f"v_lshl_add_u32 v{t0}, v0, 4, s{sT0}")
    A("s_waitcnt lgkmcnt(0)")
    ones = [f"{MF} {ar(LA + 4 * t, 4)}, {ar(ONES, 4)}, {vr(Sreg(t, 1), 4)}, {ar(LA + 4 * t, 4)}" for t in range(4)]

    def pv(t):
        return [f"{MF} {ar(OA + 32 * t + 4 * dt, 4)}, {ar(RING + 32 + 4 * dt, 4)}, {vr(Sreg(t, 1), 4)}, {ar(OA + 32 * t + 4 * dt, 4)}"
                for dt in range(8)]
    wr = [f"ds_write_b128 v{t0}, {ar(OA + 128 + 4 * i, 4)} offset:{(i // 4) * HS + (i % 4) * 1024}" for i in range(8)]
    misc = [f"v_lshlrev_b32 v{t2}, 4, v0",
            f"s_mul_i32 s{sOO}, s{sB}, 18", f"s_lshl_b32 s{sT0}, s{sW}, 2", f"s_add_u32 s{sT0}, s{sT0}, s{sOO}",
            f"s_mul_i32 s{sT0}, s{sT0}, {QP}", f"s_lshr_b32 s{sKN}, s{sH}, 3", f"s_mul_i32 s{sKN}, s{sKN}, {OPT['gpad']}",
            f"s_lshl_b32 s{sVN}, s{sH}, 12", f"s_add_u32 s{sKN}, s{sKN}, s{sVN}", f"s_add_u32 s{sT0}, s{sT0}, s{sKN}",
            f"s_lshl_b32 s{sT1}, s{sW}, 10", f"s_add_u32 s{sT1}, s{sT1}, {STATS}", f"v_lshl_add_u32 v{t1}, v0, 4, s{sT1}"]
    mix(ones + pv(0), wr + misc)
    Lr = 114
    st = [f"v_accvgpr_read_b32 v{Lr + t}, a{LA + 4 * t}" for t in range(5)]
    st += [f"v_add_f32 v128, v{Lr}, v{Lr + 1}", f"v_add_f32 v129, v{Lr + 2}, v{Lr + 3}", f"v_add_f32 v128, v128, v{Lr + 4}",
           f"v_add_f32 v128, v128, v129", f"v_mov_b32 v129, {f32bits(2.0 ** OPT['thr']):#x}", f"v_cmp_nlt_f32 vcc, v128, v129",
           f"v_mov_b32 v132, v{Lr + 4}", f"v_mov_b32 v133, v{NEG + 16}", f"v_mov_b32 v135, 0", f"v_cndmask_b32 v134, 0, 1, vcc",
           f"ds_write_b128 v{t1}, {vr(132, 4)}"]
    st += [f"v_rcp_f32 v{120 + 2 * t}, v{Lr + t}" for t in range(4)]
    mix(pv(1), st)
    ofl = FLAGS[OPT["ostflag"]]

    def norm_store(t, tmp, pk):
        o = []
        if t:
            o.append(f"s_add_u32 s{sT0}, s{sT0}, {QP}")
        for s in range(4):
            b = tmp + 8 * s
            for e in range(8):
                o.append(f"v_accvgpr_read_b32 v{b + e}, a{OA + 32 * t + 8 * s + e}")
            if pk:
                for e in range(4):
                    o.append(f"v_pk_mul_f32 {vr(b + 2 * e, 2)}, {vr(b + 2 * e, 2)}, {vr(120 + 2 * t, 2)} op_sel_hi:[1,0]")
            else:
                for e in range(8):
                    o.append(f"v_mul_f32 v{b + e}, v{120 + 2 * t}, v{b + e}")
            for e in range(4):
                o.append(f"v_cvt_pk_bf16_f32 v{b + e}, v{b + 2 * e}, v{b + 2 * e + 1}")
            of = f" offset:{s * 1024}" if s else ""
            o.append(f"buffer_store_dwordx4 {vr(b, 4)}, v{t2}, {srd(SRD_O)}, s{sT0} offen{of}{ofl}"
                     + (f" | buffer_store_dwordx4 {vr(b, 4)}, v{t2}, {srd(SRD_O)}, s{sT0} offen{of}" if OPT["dst"] else ""))
        return o

    n0 = norm_store(0, 16, False)
    mix(pv(2) + pv(3), n0[:42])
    A.ext(norm_store(0, 16, True)[34:])
    A("s_waitcnt lgkmcnt(0)")
    A("s_barrier")
    A(f"s_and_b32 s{sT1}, s{sW}, 2")
    A(f"s_mul_i32 s{sT1}, s{sT1}, {4 * BLK}")
    A(f"s_mul_i32 s{sT2}, s{sP}, {HS}")
    A(f"s_add_u32 s{sT1}, s{sT1}, s{sT2}")
    A(f"s_add_u32 s{sT1}, s{sT1}, {TS * HS}")
    A(f"v_lshl_add_u32 v{t0}, v0, 4, s{sT1}")
    A(f"s_and_b32 s{sT1}, s{sW}, 2")
    A(f"s_lshl_b32 s{sT1}, s{sT1}, 10")
    A(f"v_lshl_add_u32 v{t1}, v0, 4, s{sT1}")
    A(f"v_xor_b32 v1, 2048, v{t1}")
    A(f"v_add_u32 v{t1}, {STATS}, v{t1}")
    A(f"v_add_u32 v1, {STATS}, v1")
    A(f"ds_read_b128 {vr(88, 4)}, v{t1}")
    A(f"ds_read_b128 {vr(92, 4)}, v{t1} offset:1024")
    A(f"ds_read_b128 {vr(96, 4)}, v1")
    A(f"ds_read_b128 {vr(100, 4)}, v1 offset:1024")
    for w in range(2):
        for q in range(4):
            A(f"ds_read_b128 {vr(128 + 16 * w + 4 * q, 4)}, v{t0} offset:{w * 4 * BLK + q * 1024}")
    A.ext(norm_store(1, 48, True))
    A("s_waitcnt lgkmcnt(0)")
    A("v_or3_b32 v104, v90, v94, v98")
    A("v_or_b32 v104, v104, v102")
    A("v_cmp_ne_u32 vcc, 0, v104")
    A("v_min_f32 v105, v89, v93")
    A("v_sub_f32 v89, v105, v89")
    A("v_sub_f32 v93, v105, v93")
    A("v_exp_f32 v89, v89")
    A("v_exp_f32 v93, v93")
    A(f"s_cmp_lg_u64 vcc, 0")
    A(f"s_cselect_b32 s{sT1}, 1, 0")
    A(f"s_cmp_gt_u32 s{sT1}, s{sREDO}")
    A("s_cbranch_scc1 L1_redo")
    A("v_mul_f32 v105, v88, v89")
    A("v_fmac_f32 v105, v92, v93")
    A("v_rcp_f32 v105, v105")
    A(f"s_lshr_b32 s{sT1}, s{sW}, 1")
    A(f"s_add_u32 s{sT1}, s{sT1}, s{sOO}")
    A(f"s_add_u32 s{sT1}, s{sT1}, 16")
    A(f"s_mul_i32 s{sT1}, s{sT1}, {QP}")
    A(f"s_add_u32 s{sT1}, s{sT1}, s{sKN}")
    A(f"s_lshl_b32 s{sT2}, s{sP}, 11")
    A(f"s_add_u32 s{sT1}, s{sT1}, s{sT2}")
    A("v_mul_f32 v89, v105, v89")
    A("v_mul_f32 v93, v105, v93")
    for e in range(16):
        A(f"v_mul_f32 v{128 + e}, v89, v{128 + e}")
    for e in range(16):
        A(f"v_fmac_f32 v{128 + e}, v93, v{144 + e}")
    for e in range(8):
        A(f"v_cvt_pk_bf16_f32 v{144 + e}, v{128 + 2 * e}, v{128 + 2 * e + 1}")
    for q in range(2):
        of = " offset:1024" if q else ""
        A(f"buffer_store_dwordx4 {vr(144 + 4 * q, 4)}, v{t2}, {srd(SRD_O)}, s{sT1} offen{of}{ofl}")
        if OPT["dst"]:
            A(f"buffer_store_dwordx4 {vr(144 + 4 * q, 4)}, v{t2}, {srd(SRD_O)}, s{sT1} offen{of}")
    rest = norm_store(2, 16, True) + norm_store(3, 48, True)
    if OPT["fuse"]:
        p3(A, rest)
    else:
        A.ext(rest)
    gx = [i for i, x in enumerate(body) if "L1_side" in x][0]
    errs += hazard.check(body[:gx + 1] + A.l[T0:T0 + 60], "exit")
    if OPT["diag"]:
        if not OPT["fuse"]:
            stamp(A)
        A("s_waitcnt vmcnt(0)")
        stamp(A)
        A("s_memrealtime s[94:95]")
        A("s_waitcnt lgkmcnt(0)")
        A("v_writelane_b32 v250, s92, 62")
        A("v_writelane_b32 v250, s94, 63")
        for i in range(stamp_n[0]):
            A(f"v_writelane_b32 v250, s{sST + 2 * i}, {50 + i}")
        A("v_writelane_b32 v250, s90, 32")
        A("v_writelane_b32 v251, s96, 32")
        A(f"s_lshl_b32 s{sT0}, s2, 2")
        A(f"s_add_u32 s{sT0}, s{sT0}, s{sW}")
        A(f"s_lshl_b32 s{sT0}, s{sT0}, 8")
        A(f"s_add_u32 s{sT0}, s{sT0}, {DIAG_OFF}")
        A(f"v_lshlrev_b32 v{t0}, 2, v0")
        A(f"buffer_store_dword v250, v{t0}, {srd(SRD_O)}, s{sT0} offen")
        A(f"s_add_u32 s{sT0}, s{sT0}, {1 << 19}")
        A(f"buffer_store_dword v251, v{t0}, {srd(SRD_O)}, s{sT0} offen")
        if OPT["fuse"]:
            for i in range(3):
                A(f"v_writelane_b32 v251, s{78 + 2 * i}, {i}")
            A("v_writelane_b32 v251, s94, 3")
            A(f"s_add_u32 s{sT0}, s{sT0}, {1 << 19}")
            A(f"buffer_store_dword v251, v{t0}, {srd(SRD_O)}, s{sT0} offen")
            if OPT["dbg"]:
                for ln, src in ((4, 30), (5, 22), (6, 14), (7, 32)):
                    A(f"v_readlane_b32 s{sT1}, v251, {src}")
                    A("s_nop 3")
                    A(f"v_writelane_b32 v251, s{sT1}, {ln}")
                A("v_subrev_u32 v251, s92, v251")
                A(f"v_lshlrev_b32 v{t0}, 3, v0")
                A("s_cmp_ge_u32 s2, 216")
                A("s_cbranch_scc1 L1_end")
                A("s_mov_b64 exec, 0xff")
                A(f"buffer_atomic_umax v251, v{t0}, {srd(SRD_W)}, 0 offen offset:4")
    if OPT["dspin"]:
        A("s_waitcnt vmcnt(0)")
        A("s_memrealtime s[68:69]")
        A("s_waitcnt lgkmcnt(0)")
        a_, b_ = {1: (62, 62), 2: (64, 62), 3: (66, 64), 4: (68, 66)}[OPT["dspin"]]
        A(f"s_sub_u32 s70, s{a_}, s{b_}")
        A("s_add_u32 s70, s70, 20000")
        A.label("L1_ds")
        A("s_memrealtime s[72:73]")
        A("s_waitcnt lgkmcnt(0)")
        A("s_sub_u32 s71, s72, s62")
        A("s_cmp_lt_u32 s71, s70")
        A("s_cbranch_scc1 L1_ds")
    A.label("L1_end")
    A("s_endpgm")
    A.label("L1_redo")
    A(f"s_mov_b32 s{sREDO}, 1")
    A("s_waitcnt vmcnt(0) lgkmcnt(0)")
    A("s_barrier")
    A("s_load_dwordx4 s[32:35], s[0:1], 8")
    A(f"s_lshl_b32 s{sT1}, s{sB}, 5")
    A(f"s_add_u32 s{sT1}, s{sT1}, s{sH}")
    A(f"s_lshl_b32 s{sT1}, s{sT1}, 19")
    A("s_waitcnt lgkmcnt(0)")
    A(f"s_add_u32 s{SRD_K}, s32, s{sT1}")
    A(f"s_addc_u32 s{SRD_K + 1}, s33, 0")
    A(f"s_mov_b32 s{SRD_K + 2}, 524288")
    A(f"s_add_u32 s{SRD_V}, s34, s{sT1}")
    A(f"s_addc_u32 s{SRD_V + 1}, s35, 0")
    A(f"s_mov_b32 s{SRD_V + 2}, 524288")
    dma_regs(A)
    for n in range(2 * DD):
        for p in P(n):
            A.ext(p)
    for t in range(5):
        A(f"v_mov_b32 v{vM + t}, 0xff800000")
    A(f"v_lshlrev_b32 v{t0}, 8, v{i16}")
    A(f"v_lshl_add_u32 v{t0}, v{g4}, 4, v{t0}")
    A(f"s_lshl_b32 s{sT1}, s{sP}, 7")
    A(f"v_add_u32 v{t0}, s{sT1}, v{t0}")
    A(f"v_xor_b32 v{t1}, 128, v{t0}")
    A(f"s_mov_b32 s{sT1}, 0")
    A.label("L1_mx")
    for kk in range(4):
        o = f" offset:64" if kk & 1 else ""
        A(f"buffer_load_dwordx4 {vr(136 + 4 * kk, 4)}, v{t0 + (kk >> 1)}, {srd(SRD_K)}, s{sT1} offen{o}")
    A("s_waitcnt vmcnt(0)")
    for kk in range(4):
        for t in range(5):
            C = "0" if kk == 0 else vr(16 + 4 * t, 4)
            A(f"{MF} {vr(16 + 4 * t, 4)}, {vr(136 + 4 * kk, 4)}, {vr(QV + 16 * t + 4 * kk, 4)}, {C}")
    A("s_nop 7")
    for t in range(5):
        A(f"v_max3_f32 v{vM + t}, v{vM + t}, v{16 + 4 * t}, v{17 + 4 * t}")
        A(f"v_max3_f32 v{vM + t}, v{vM + t}, v{18 + 4 * t}, v{19 + 4 * t}")
    A(f"s_add_u32 s{sT1}, s{sT1}, 4096")
    A(f"s_cmp_lt_u32 s{sT1}, {4096 if OPT['twice'] else 524288}")
    A("s_cbranch_scc1 L1_mx")
    xlane5(A, "v_max_f32", vM, vM + 8)
    for t in range(5):
        for i in range(4):
            A(f"v_sub_f32 v{NEG + 4 * t + i}, 0, v{vM + t}")
    for i in range(180):
        A(f"v_accvgpr_write_b32 a{i}, 0")
    A.ext(loop_addr())
    loop_scalars(A)
    A("s_barrier")
    A.ext(k0reads)
    A("s_waitcnt lgkmcnt(0)")
    for kb in range(2):
        for kk in range(4):
            A.ext(qk0(kb, kk, True))
    A.ext(pro_rd)
    A("s_nop 7")
    A.ext(safe(sm0))
    A("s_branch L1_presm")
    return errs


def k2(A):
    DEP = 4
    SRD_A, SRD_WO, SRD_OUT = 4, 8, 12
    sW, sMT, sNT, sT0, sT1, sAS, sBS, sLD, sCNT = 16, 17, 18, 19, 20, 21, 22, 23, 24
    vA, vBD, vBR, t0, t1 = 2, 8, 9, 13, 14
    ACC2, ORING, WF = 16, 112, 208
    A.raw(".p2align 8")
    A.raw(".globl oproj_kernel")
    A.raw(".type oproj_kernel,@function")
    A.label("oproj_kernel")
    A(f"s_cmp_ge_u32 s2, {OPT['k2grid']}")
    A("s_cbranch_scc1 L2_end")
    A("s_load_dwordx4 s[32:35], s[0:1], 32")
    A("s_load_dwordx2 s[36:37], s[0:1], 56")
    if OPT["diag"]:
        A("s_memrealtime s[60:61]")
    A("v_lshrrev_b32 v1, 6, v0")
    A("v_and_b32 v0, 63, v0")
    A(f"v_readfirstlane_b32 s{sW}, v1")
    A("s_and_b32 s25, s2, 7")
    A("s_lshr_b32 s26, s2, 3")
    A(f"s_mul_i32 s{sNT}, s26, 43")
    A(f"s_lshr_b32 s{sNT}, s{sNT}, 7")
    A(f"s_mul_i32 s{sT0}, s{sNT}, 3")
    A(f"s_sub_u32 s{sT0}, s26, s{sT0}")
    A(f"s_mul_i32 s{sMT}, s25, 3")
    A(f"s_add_u32 s{sMT}, s{sMT}, s{sT0}")
    A(f"v_lshlrev_b32 v{vA}, 4, v0")
    for i in range(1, 6):
        A(f"v_add_u32 v{vA + i}, {i * 131072}, v{vA}")
    A(f"v_lshrrev_b32 v{t0}, 3, v0")
    A(f"v_mul_u32_u24 v{vBD}, 1152, v{t0}")
    A(f"v_lshrrev_b32 v{t0}, 4, v0")
    A(f"v_lshlrev_b32 v{t0}, 1, v{t0}")
    A(f"v_and_b32 v{t1}, 7, v0")
    A(f"v_xor_b32 v{t0}, v{t0}, v{t1}")
    A(f"v_lshl_add_u32 v{vBD}, v{t0}, 4, v{vBD}")
    A(f"v_lshrrev_b32 v{t0}, 2, v0")
    A(f"v_lshlrev_b32 v{vBR}, 7, v{t0}")
    A(f"v_bfe_u32 v{t0}, v0, 3, 2")
    A(f"v_lshl_add_u32 v{vBR}, v{t0}, 5, v{vBR}")
    A(f"v_and_b32 v{t0}, 3, v0")
    A(f"v_lshl_add_u32 v{vBR}, v{t0}, 3, v{vBR}")
    A(f"s_mul_i32 s{sLD}, s{sW}, {DEP * 4096}")
    A(f"v_add_u32 v{vBR}, s{sLD}, v{vBR}")
    for n in range(1, 4):
        A(f"v_xor_b32 v{vBR + n}, {32 * n}, v{vBR}")
    A("s_waitcnt lgkmcnt(0)")
    A(f"s_mov_b32 s{SRD_A}, s36")
    A(f"s_mov_b32 s{SRD_A + 1}, s37")
    A(f"s_mov_b32 s{SRD_A + 2}, {(DIAG_OFF + (2 << 20)) if OPT['diag'] else WS_O_BYTES}")
    A(f"s_mov_b32 s{SRD_A + 3}, 0x20000")
    A(f"s_mov_b32 s{SRD_WO}, s32")
    A(f"s_mov_b32 s{SRD_WO + 1}, s33")
    A(f"s_mov_b32 s{SRD_WO + 2}, {4096 * 1152}")
    A(f"s_mov_b32 s{SRD_WO + 3}, 0x20000")
    A(f"s_mov_b32 s{SRD_OUT}, s34")
    A(f"s_mov_b32 s{SRD_OUT + 1}, s35")
    A(f"s_mov_b32 s{SRD_OUT + 2}, {2304 * 1152}")
    A(f"s_mov_b32 s{SRD_OUT + 3}, 0x20000")
    A(f"s_mul_i32 s{sAS}, s{sMT}, 786432")
    A(f"s_lshl_b32 s{sT0}, s{sW}, 15")
    A(f"s_add_u32 s{sAS}, s{sAS}, s{sT0}")
    A(f"s_mul_i32 s{sBS}, s{sW}, {1024 * 1152}")
    A(f"s_lshl_b32 s{sT0}, s{sNT}, 7")
    A(f"s_add_u32 s{sBS}, s{sBS}, s{sT0}")
    WN = OPT["k2rot"]
    sA0, sB0, sPH, sI = 27, 28, 29, 30

    def blk_addr():
        return [f"s_add_u32 s{sT1}, s{sI}, s{sPH}", f"s_and_b32 s{sT1}, s{sT1}, {WN - 1}",
                f"s_and_b32 s31, s{sI}, {(~(WN - 1)) & 0xff}", f"s_or_b32 s{sT1}, s{sT1}, s31",
                f"s_mul_i32 s{sBS}, s{sT1}, {DEP * 32 * 1152}", f"s_add_u32 s{sBS}, s{sBS}, s{sB0}",
                f"s_lshl_b32 s{sAS}, s{sT1}, 12", f"s_add_u32 s{sAS}, s{sAS}, s{sA0}", f"s_add_u32 s{sI}, s{sI}, 1"]
    A(f"s_mov_b32 s{sA0}, s{sAS}")
    A(f"s_mov_b32 s{sB0}, s{sBS}")
    A(f"s_mul_i32 s{sPH}, s{sMT}, {OPT['k2mul']}")
    A(f"s_add_u32 s{sPH}, s{sPH}, s{sNT}")
    A(f"s_mov_b32 s{sI}, 0")
    A.ext(blk_addr())

    def loads(d):
        o = []
        for i in range(4):
            o.append([f"s_add_u32 m0, s{sLD}, {d * 4096 + i * 1024}",
                      f"s_add_u32 s{sT0}, s{sBS}, {(32 * d + 8 * i) * 1152}",
                      f"buffer_load_dwordx4 v{vBD}, {srd(SRD_WO)}, s{sT0} offen lds"])
        off = f" offset:{d * 1024}" if d else ""
        for i in range(6):
            o.append([f"buffer_load_dwordx4 {vr(ORING + 24 * d + 4 * i, 4)}, v{vA + i}, {srd(SRD_A)}, s{sAS} offen{off}"])
        return o

    def wreads(d):
        b = WF + 16 * (d % 2)
        return [f"ds_read_b64_tr_b16 {vr(b + 4 * n + 2 * e, 2)}, v{vBR + n} offset:{d * 4096 + e * 2048}"
                for n in range(4) for e in range(2)]

    zi = 0
    for d in range(DEP - 1):
        for g in loads(d):
            A.ext(g)
            for _ in range(4):
                if zi < 96:
                    A(f"v_mov_b32 v{ACC2 + zi}, 0")
                    zi += 1
    assert zi == 96
    A(f"s_mov_b32 s{sCNT}, {32 // DEP}")
    A(f"s_waitcnt vmcnt({10 * (DEP - 2) + 6})")
    if OPT["diag"]:
        A("s_memrealtime s[62:63]")
    A.ext(wreads(0))
    A.label("L2_loop")
    body = []
    Bd = body.append
    for d in range(DEP):
        Bd(f"s_waitcnt vmcnt({10 * (DEP - 3) + 6})")
        body += wreads((d + 1) % DEP)
        Bd("s_waitcnt lgkmcnt(8)")
        b = WF + 16 * (d % 2)
        ld = loads((d - 1) % DEP)
        k = 0
        for n in range(4):
            for i in range(6):
                acc = vr(ACC2 + 4 * (6 * n + i), 4)
                Bd(f"{MF} {acc}, {vr(b + 4 * n, 4)}, {vr(ORING + 24 * d + 4 * i, 4)}, {acc}")
                k += 1
                if ld and k % 2 == 0:
                    body += ld.pop(0)
        if d == 0:
            body += blk_addr()
            Bd(f"s_cmp_eq_u32 s{sCNT}, 1")
            Bd(f"s_cselect_b32 s{sAS}, 0x40000000, s{sAS}")
            Bd(f"s_cselect_b32 s{sBS}, 0x40000000, s{sBS}")
    Bd(f"s_sub_u32 s{sCNT}, s{sCNT}, 1")
    Bd(f"s_cmp_lg_u32 s{sCNT}, 0")
    A.ext(body)
    A("s_cbranch_scc1 L2_loop")
    errs = hazard.check(body + body, "k2loop")
    if OPT["diag"]:
        A("s_memrealtime s[64:65]")
    A("s_waitcnt vmcnt(0) lgkmcnt(0)")
    A("s_barrier")
    A(f"s_mul_i32 s{sT0}, s{sW}, 24576")
    A(f"v_lshl_add_u32 v{t0}, v0, 4, s{sT0}")
    A("s_nop 7")
    for q in range(24):
        A(f"ds_write_b128 v{t0}, {vr(ACC2 + 4 * q, 4)} offset:{q * 1024}")
    A(f"v_and_b32 v{t0}, 15, v0")
    A(f"v_lshlrev_b32 v{t0}, 4, v{t0}")
    A(f"v_bfe_u32 v{t1}, v0, 4, 1")
    A(f"v_lshl_add_u32 v{t0}, v{t1}, 9, v{t0}")
    A(f"v_lshrrev_b32 v{t1}, 5, v0")
    A(f"v_lshl_add_u32 v{t0}, v{t1}, 10, v{t0}")
    A(f"s_mul_i32 s{sT0}, s{sW}, {6 * 1024}")
    A(f"v_add_u32 v{t0}, s{sT0}, v{t0}")
    A(f"v_add_u32 v{t1}, 49152, v{t0}")
    A("s_waitcnt lgkmcnt(0)")
    A("s_barrier")
    for w in range(4):
        for x in range(3):
            for q in range(2):
                A(f"ds_read_b128 {vr(ORING + 24 * w + 8 * x + 4 * q, 4)}, v{t0 if w < 2 else t1} offset:{(w % 2) * 24576 + x * 2048 + q * 256}")
        if w % 2 == 1:
            A("s_waitcnt lgkmcnt(0)")
    for w in range(1, 4):
        for e in range(24):
            A(f"v_add_f32 v{ORING + e}, v{ORING + e}, v{ORING + 24 * w + e}")
    for e in range(12):
        A(f"v_cvt_pk_bf16_f32 v{ACC2 + e}, v{ORING + 2 * e}, v{ORING + 2 * e + 1}")
    A(f"v_and_b32 v{t0}, 15, v0")
    A(f"v_lshrrev_b32 v{t1}, 5, v0")
    A(f"v_lshl_add_u32 v{t0}, v{t1}, 4, v{t0}")
    A(f"v_mul_u32_u24 v{t0}, 1152, v{t0}")
    A(f"v_bfe_u32 v{t1}, v0, 4, 1")
    A(f"v_lshl_add_u32 v{t0}, v{t1}, 4, v{t0}")
    A(f"s_mul_i32 s{sAS}, s{sMT}, {96 * 1152}")
    A(f"s_lshl_b32 s{sT0}, s{sNT}, 7")
    A(f"s_add_u32 s{sAS}, s{sAS}, s{sT0}")
    A(f"s_lshl_b32 s{sT0}, s{sW}, 5")
    A(f"s_add_u32 s{sAS}, s{sAS}, s{sT0}")
    for x in range(3):
        A(f"buffer_store_dwordx4 {vr(ACC2 + 4 * x, 4)}, v{t0}, {srd(SRD_OUT)}, s{sAS} offen")
        A(f"s_add_u32 s{sAS}, s{sAS}, {32 * 1152}")
    if OPT["diag"]:
        A("s_waitcnt vmcnt(0)")
        A("s_memrealtime s[66:67]")
        A("s_waitcnt lgkmcnt(0)")
        for i in range(4):
            A(f"v_writelane_b32 v250, s{60 + 2 * i}, {i}")
        A(f"s_lshl_b32 s{sT0}, s2, 2")
        A(f"s_add_u32 s{sT0}, s{sT0}, s{sW}")
        A(f"s_lshl_b32 s{sT0}, s{sT0}, 8")
        A(f"s_add_u32 s{sT0}, s{sT0}, {DIAG_OFF + (1 << 20)}")
        A(f"v_lshlrev_b32 v{t0}, 2, v0")
        A(f"buffer_store_dword v250, v{t0}, {srd(SRD_A)}, s{sT0} offen")
    A.label("L2_end")
    A("s_endpgm")
    return errs


def desc(name, vg, acc, sg=102):
    return f""".p2align 6
.amdhsa_kernel {name}
  .amdhsa_next_free_vgpr {vg}
  .amdhsa_next_free_sgpr {sg}
  .amdhsa_accum_offset {acc}
  .amdhsa_group_segment_fixed_size 0
  .amdhsa_kernarg_size 64
  .amdhsa_user_sgpr_count 2
  .amdhsa_user_sgpr_kernarg_segment_ptr 1
  .amdhsa_system_sgpr_workgroup_id_x 1
.end_amdhsa_kernel
"""


def main():
    A = Asm()
    e = k1(A)
    if not OPT["fuse"]:
        e += k2(A)
    A.label("L_code_end")
    e += hazard.check(A.l, "linear")
    for x in e:
        print(x, file=sys.stderr)
    hdr = f"""; Fused MHA block (q-proj + attention) and output projection, gfx950. Generated by a script.
; kernarg: x, k_cache, v_cache, wq, wo, out, debug, ws
; @launch kernel=attn_kernel grid=(256,1,1) block=(256,1,1) lds={LDS1}
{";" if OPT["fuse"] else "; @launch kernel=oproj_kernel grid=(216,1,1) block=(256,1,1) lds=98304"}
.amdgcn_target "amdgcn-amd-amdhsa--gfx950"
.text
.globl attn_kernel
"""
    txt = hdr + "\n".join(A.l) + "\n.section .rodata,\"a\"\n" + desc("attn_kernel", 512, 256) + ("" if OPT["fuse"] else desc("oproj_kernel", 256, 256))
    open(sys.argv[1], "w").write(txt)
    if e and not (OPT["nodma"] or OPT["nomf"]):
        sys.exit(1)


main()
```

```python
import math
import struct
import sys

import hazard

OPT = dict(diag=0, L=6, W=2, xmap=1, nodma=0, nobar=0, kvflag=1, ostflag=2, wopf=2, wsh=8,
           k2grid=216, LQ=6, dmastep=6, thr=40, show=0, qstep=5, up=2, qpflag=0, dbg=0, cpf=1, nph=4, k2rot=1, D=3, pf=0, stg=0, pfa=4, kvs=1, rot=0, k2mul=1, fuse=1, dst=0, DO=4, oflag=2, early=5, l2pf=0, fast=1, wsoff=0, twice=0, nomf=0, pad=0, tlb=0, eord=1, fine=0, wflag=0, p3same=0, chain=1, LG=30, LM=12, SO=4, gB=21, vm2=1, bcap=0, tidy=1, x6d=0, outflag=0, pre=4, slp=4, ppos=4, wpre=9, qpad=4352, gpad=1152, dspin=0, helper=0, hA=6, ho=4)
for a in sys.argv[2:]:
    k, v = a.split("=")
    OPT[k] = int(v)
FLAGS = ['', ' nt', ' sc1', ' sc0 sc1', ' sc1 nt', ' sc0 sc1 nt', ' sc0']

BLK = 1056
HS = 16 * BLK
DD = OPT['D']
NS = 2 * DD + 1
TS = 7
STATS = 9 * HS
assert DD == 3
XB = 1088
WOFF, XEOFF, XOFF = 0, 17408, 21504
WG0 = 4 * XB + OPT["wsh"]
WG1 = 8720
STSZ = 54272
LDS1 = 163840
GP = 32768 + OPT['gpad']
QP = 4 * GP + OPT['qpad']
WS_O_BYTES = 144 * QP
DIAG_OFF = 64 << 20


def f32bits(x):
    return struct.unpack("<I", struct.pack("<f", x))[0]


QSCALE = f32bits(128 ** -0.5 * math.log2(math.e))


class Asm:
    def __init__(self):
        self.l = []

    def __call__(self, s):
        if " | buffer_store" in s:
            for x in s.split(" | "):
                self.l.append("    " + x)
        else:
            self.l.append("    " + s)

    def label(self, s):
        self.l.append(s + ":")

    def raw(self, s):
        self.l.append(s)

    def ext(self, lst):
        for s in lst:
            self(s)


def vr(a, n):
    return f"v[{a}:{a + n - 1}]"


def ar(a, n):
    return f"a[{a}:{a + n - 1}]"


def srd(n):
    return f"s[{n}:{n + 3}]"


MF = "v_mfma_f32_16x16x32_bf16"

SRD_X, SRD_W, SRD_K, SRD_V, SRD_O, SRD_P = 4, 8, 12, 16, 20, 84
sW, sP, sB, sH = 24, 25, 27, 28
sXD, sXS, sWD, sWS, sT0, sT1 = 42, 43, 44, 45, 46, 47
sXED, sXES = 48, 55
sCNT = 49
sKD, sVD, sKVS, sKN, sVN = 50, 51, 52, 53, 54
sSC = 56
sT2 = 57
sOUTP = 32
sWP = 30
sG0 = 31
sDV = 3
sOO = 58
sREDO = 59
sST = 60
sWOF = 88
sCX, sCW = 89, 100
sPC = 98
sXSc, sWSc, sXEc = 29, 26, 101

vXD, vXDE, vWD, vCW, vV4 = 2, 4, 5, 6, 8
vQA = 160
ACC = 16
SB = [16, 48]
SE = 80
NEG = 88
QV = 160
vKB, vVB = 240, 244
vK, vV = 108, 112
vM = 120
vDUM = 252
OA, LA, ONES, RING = 0, 160, 180, 192
XF = [184, 204]
WRING = 224


def Sreg(t, par):
    return SE if t == 4 else SB[par] + 8 * t


stamp_n = [0]


def stamp_txt():
    if OPT["diag"] == 1:
        n = stamp_n[0]
        stamp_n[0] += 1
        assert n < 12
        return [f"s_memtime s[{sST + 2 * n}:{sST + 2 * n + 1}]"]
    return []


def stamp(A):
    A.ext(stamp_txt())


def is_ds(x):
    return x.startswith("ds_")


def add_waits(seq, cyclic, W=1, nfr=None):
    rep = 2 if cyclic else 1
    out = []
    issued = 0
    done = 0
    last = {}
    for it in range(rep):
        out = []
        for e in seq:
            if e[0] == "x":
                if is_ds(e[1]):
                    issued += 1
                    if e[2] is not None:
                        last[e[2]] = issued
                if "lgkmcnt(0)" in e[1] or e[1] == "VMW":
                    done = issued
                out.append(e[1])
            else:
                need = 0
                for f in e[2]:
                    if f in last:
                        need = max(need, last[f])
                if need > done:
                    tgt = need
                    for f in e[3] if len(e) > 3 else []:
                        if f in last and last[f] > need - 40:
                            tgt = max(tgt, last[f])
                    n = issued - tgt
                    assert n <= 15, n
                    out.append(f"s_waitcnt lgkmcnt({n})")
                    done = tgt
                if e[1] is not None:
                    out.append(e[1])
    return out


vD = 246
sINC = 60 if not OPT["diag"] else 26
sKP = 64 if not OPT["diag"] else 34


def tidy(lst):
    import re
    out, gap = [], []

    def flush(seen_mfma):
        g = list(gap)
        gap.clear()
        if not seen_mfma or any(x.startswith(("s_barrier", "s_cbranch", "s_branch")) or x.endswith(":") for x in g):
            return g
        if g and re.fullmatch(r"s_waitcnt lgkmcnt\(\d+\)", g[-1]) and not any("waitcnt" in x for x in g[:-1]):
            n = int(g[-1][18:-1]) - sum(is_ds(x) for x in g[:-1])
            if n >= 0:
                g = [f"s_waitcnt lgkmcnt({n})"] + g[:-1]
        ch = True
        while ch:
            ch = False
            for i in range(len(g) - 1):
                a, b = g[i], g[i + 1]
                if a.startswith("v_") and b.startswith(("ds_", "s_add", "s_mov", "s_lshl", "s_mul", "s_sub", "s_min", "s_and")):
                    ia, ib = hazard.I(a), hazard.I(b)
                    if not (ia.w & (ib.r | ib.w)) and not (ib.w & ia.r):
                        g[i], g[i + 1] = b, a
                        ch = True
        return g
    seen = False
    for x in lst:
        if x.startswith("v_mfma"):
            out += flush(seen)
            out.append(x)
            seen = True
        else:
            gap.append(x)
    out += gap
    return out


def kv_piece(dst, srdn, i):
    return [f"s_add_u32 m0, s{dst}, {i * BLK}",
            f"buffer_load_dwordx4 v{vD + i}, {srd(srdn)}, s{sKVS} offen{FLAGS[OPT['kvflag']]} lds"]


def item_piece(n, i):
    o = f" offset:{i * 1024}" if i else ""
    return [f"s_add_u32 m0, s{sWOF}, {(n % NS) * HS + i * (BLK - 1024)}",
            (f"s_add_u32 s{sT0}, s{sG0}, {(n // 2) * 16384}" if OPT["rot"] else f"s_mov_b32 s{sT0}, {(n // 2) * 16384}"),
            f"buffer_load_dwordx4 v{vV4}, {srd(SRD_V if n % 2 else SRD_K)}, s{sT0} offen{o}{FLAGS[OPT['kvflag']]} lds"]


def adv(r, tmp=None):
    tmp = sT2 if tmp is None else tmp
    return [f"s_add_u32 s{r}, s{r}, {2 * HS}", f"s_sub_u32 s{tmp}, s{r}, {NS * HS}", f"s_min_u32 s{r}, s{r}, s{tmp}"]


def kread(dst, base, kb, kk):
    return f"ds_read_b128 {dst}, v{base + (kk >> 1)} offset:{kb * 256 + (kk & 1) * 64}"


def build_loop():
    W = OPT["W"]
    NF = 32
    mf = []
    qk_end, pv_first, phase2, step_start = {}, {}, {}, {}
    for j in range(2):
        jn = 1 - j
        step_start[j] = len(mf)
        tiles = range(5) if jn == 0 else range(4)
        for kb in range(2):
            for t in tiles:
                for kk in range(4):
                    f = 16 * j + kb * 4 + kk
                    S = Sreg(t, jn) + 4 * kb
                    C = vr(NEG + 4 * t, 4) if kk == 0 else vr(S, 4)
                    mf.append(dict(t=f"{MF} {vr(S, 4)}, {ar(RING + 4 * (f % 16), 4)}, {vr(QV + 16 * t + 4 * kk, 4)}, {C}", f=f))
                    qk_end[(jn, t, kb)] = len(mf) - 1
        tiles = list(range(5) if j == 0 else range(4))
        phase2[j] = len(mf)
        for dt in range(8):
            f = 16 * j + 8 + dt
            for t in tiles:
                O = ar(OA + 32 * t + 4 * dt, 4)
                mf.append(dict(t=f"{MF} {O}, {ar(RING + 4 * (f % 16), 4)}, {vr(Sreg(t, j), 4)}, {O}", f=f))
                pv_first.setdefault((j, t), len(mf) - 1)
            x = dt - 2
            if 0 <= x < len(tiles):
                Lr = ar(LA + 4 * x, 4)
                mf.append(dict(t=f"{MF} {Lr}, {ar(ONES, 4)}, {vr(Sreg(x, j), 4)}, {Lr}", f=f))
    N = len(mf)
    assert N == 153
    first_use, last_use = {}, {}
    for i, m in enumerate(mf):
        first_use.setdefault(m["f"], i)
        last_use[m["f"]] = i

    def wsz(f):
        return 4 if f % 16 < 8 else W
    cap = [2] * N
    scal = [None] * N
    for f in range(NF):
        if f % wsz(f) == 0:
            scal[(first_use[f] - 1) % N] = ("W", [(f + k) % NF for k in range(wsz(f))])
    scal[N - 2], scal[N - 1] = scal[N - 1], ("B",)
    cap[N - 1] = 0
    gX = step_start[1] - 1
    assert scal[gX - 1] is None and scal[gX - 2] is None
    scal[gX - 1], scal[gX] = scal[gX], ("T", "s_cbranch_scc1 L1_side | L1_back:")
    gS = gX - 2
    gB = OPT["gB"]
    nvm = 8 + (1 if OPT["wopf"] == 2 else 0)
    assert scal[gB - 1] is None and scal[gB] is None
    scal[gB - 1] = ("T", f"s_waitcnt vmcnt({(DD - 2) * nvm})")
    scal[gB] = ("T", "s_barrier")
    scal[gS] = ("T", f"s_sub_u32 s{sCNT}, s{sCNT}, 1")
    cap[gB] = OPT["bcap"]
    ok = [g for g in range(N) if cap[g] == 2]
    eg = []
    for k in range(72):
        want = (k * N) / 72.0
        g = min((x for x in ok if x not in eg), key=lambda x: abs(x - want))
        eg.append(g)
    eg.sort()
    order = [(j, t, kb, r) for j in (0, 1) for kb in range(2) for t in (range(5) if j == 0 else range(4)) for r in range(4)]
    best = None
    for off in range(-72, 72):
        place = {key: eg[(k + off) % 72] + N * ((k + off) // 72) for k, key in enumerate(order)}
        good = True
        for (j, t, kb, r), g in place.items():
            av = qk_end[(j, t, kb)] + 6 - (N if j == 0 else 0)
            if g < av or g > pv_first[(j, t)] - 6:
                good = False
        if good:
            best = (best or []) + [off]
    off = best[min(OPT["SO"], len(best) - 1)]
    place = {key: eg[(k + off) % 72] + N * ((k + off) // 72) for k, key in enumerate(order)}
    for g in eg:
        cap[g] = 0

    def frag_reads(f):
        j, r = divmod(f, 16)
        dst = RING + 4 * (f % 16)
        if r < 8:
            kb, kk = divmod(r, 4)
            return [kread(ar(dst, 4), vK + 2 * (1 - j), kb, kk)]
        dt = r - 8
        return [f"ds_read_b64_tr_b16 {ar(dst + 2 * e, 2)}, v{vV + j} offset:{e * 256 + dt * 32}" for e in range(2)]

    items = []

    def add(name, lo, hi, text, kind=None, chain=None, after=()):
        items.append(dict(n=name, lo=lo, hi=hi, t=text, k=kind, c=chain, a=list(after)))

    for (j, t, kb, r), g in sorted(place.items(), key=lambda z: z[1]):
        if r % 2 == 1:
            S = Sreg(t, j)
            add(f"c{j}{t}{kb}{r}", g + 1, min(g + 14, pv_first[(j, t)] - 3),
                f"v_cvt_pk_bf16_f32 v{S + 2 * kb + r // 2}, v{S + 4 * kb + r - 1}, v{S + 4 * kb + r}", ("cvt", j, t), "cvt")
    LG, LM = OPT["LG"], OPT["LM"]
    for f in range(NF):
        fu = first_use[f - f % wsz(f)]
        lo = max(fu - LG, last_use[(f + 16) % NF] - (N if f < 16 else 0))
        if 16 <= f < 24:
            lo = max(lo, gB + 1)
        if 8 <= f < 16:
            lo = max(lo, 0)
        for e, x in enumerate(frag_reads(f)):
            add(f"r{f}_{e}", lo, fu - LM, x, ("rd", f), "rd")
    add("k1a", 0, 100, f"v_add_u32 v{vK + 2}, s{sDV}, v{vK}", "k1", None, ["r5_0"])
    add("k1b", 0, 100, f"v_add_u32 v{vK + 3}, s{sDV}, v{vK + 1}", "k1", None, ["r7_0"])
    add("v0", 0, 120, f"v_add_u32 v{vV}, s{sVN}, v{vVB}", "v0", None, ["r15_1"])
    add("v1", 0, N + 40, f"v_add_u32 v{vV + 1}, s{sDV}, v{vV}", "v1", None, ["r31_1", "v0"])
    st = OPT["dmastep"]
    g = gB + 1
    prevd = None
    for nm, dst, srdn in (("V", sVD, SRD_V), ("K", sKD, SRD_K)):
        for i in range(4):
            pc = kv_piece(dst, srdn, i)
            add(f"m{nm}{i}", g, g + 10, pc[0], "m0", "dma", [prevd] if prevd else [])
            prevd = f"d{nm}{i}"
            add(f"d{nm}{i}", g + 1, g + 12, pc[1], "dma", "dma")
            g += st
    add("svd", 0, 140, f"s_add_u32 s{sVD}, s{sKN}, s{sWOF}", None, "ak", ["dV3"])
    for i, x in enumerate(adv(sKN)):
        add(f"ak{i}", 0, 142 + i, x, None, "ak")
    add("k0a", 0, 148, f"v_add_u32 v{vK}, s{sKN}, v{vKB}", None, None, ["ak2", "r21_0", "k1a"])
    add("k0b", 0, 148, f"v_add_u32 v{vK + 1}, s{sKN}, v{vKB + 1}", None, None, ["ak2", "r23_0", "k1b"])
    for i, x in enumerate(adv(sVN, sT1)):
        add(f"av{i}", 0, 144 + i, x, None, "av", ["v0"])
    for i, x in enumerate(adv(sKD, sT0)):
        add(f"ad{i}", 0, 148 + i, x, None, "ad", ["dK3"])
    add("kvs", gX + 1, 151, f"s_add_u32 s{sKVS}, s{sKVS}, s{sINC}", None, None, ["dK3"])
    if OPT["wopf"] == 2:
        add("wp", gB + 6, 140, f"buffer_load_dword v{vDUM}, v7, {srd(SRD_P)}, s{sWP} offen", None, "wp")
        add("wpa", 0, 150, f"s_add_u32 s{sWP}, s{sWP}, 160", None, "wp", ["wp"])
    NP = 5
    pend = []
    for p in range(NP):
        for i, x in enumerate(items):
            pend.append(dict(x, p=p, i=i, lo=x["lo"] + p * N, hi=x["hi"] + p * N))
    chains = {}
    for x in pend:
        chains.setdefault(x["c"] or ("solo", x["n"]), []).append(x)
    at = {}
    out = {}
    for g in range(-N, (NP + 1) * N):
        free = cap[g % N]
        sfree = scal[g % N] is None
        while free or sfree:
            cands = []
            for c, q in chains.items():
                if not q:
                    continue
                x = q[0]
                if x["lo"] > g:
                    continue
                if any((a_, x["p"]) not in at for a_ in x["a"]):
                    continue
                if x["k"] == "dma" and at[("m" + x["n"][1:], x["p"])] == g:
                    continue
                if x["t"].startswith("s_") and (gS <= g % N <= gX or not sfree):
                    continue
                if not x["t"].startswith("s_") and not free:
                    continue
                if any(at[(a_, x["p"])] == g for a_ in x["a"]):
                    continue
                if x["t"].startswith("buffer") and (g % N == gB - 1 or free < 2):
                    continue
                if x["k"] == "m0" and gS - 3 <= g % N <= gX:
                    continue
                cands.append(x)
            if not cands:
                break
            x = min(cands, key=lambda x: (0 if x["t"].startswith("buffer") else 1, x["hi"], x["i"]))
            chains[x["c"] or ("solo", x["n"])].pop(0)
            at[(x["n"], x["p"])] = g
            out.setdefault(g, []).append(x)
            if x["t"].startswith("s_"):
                sfree = False
            else:
                free -= (2 if (x["t"].startswith("buffer") and OPT["vm2"] and free == 2) else 1)
    for x in items:
        assert at[(x["n"], 2)] - 2 * N == at[(x["n"], 3)] - 3 * N, ("not periodic", x)
        assert at[(x["n"], 2)] - 2 * N <= x["hi"], ("late", x, at[(x["n"], 2)] - 2 * N)
    rel = {x["n"]: at[(x["n"], 2)] - 2 * N for x in items}
    assert rel["dK3"] < gX
    assert rel["k1a"] < rel["r0_0"] + N and rel["k1b"] < rel["r2_0"] + N
    assert rel["k0a"] < rel["r16_0"] + N and rel["k0b"] < rel["r18_0"] + N
    assert rel["v0"] < rel["r8_0"] + N and rel["v1"] < rel["r24_0"] + N and rel["v1"] < rel["v0"] + N
    assert last_use[7] < gB + 16 and first_use[4] <= gB
    assert rel["v1"] < N, "v1 must stay inside the period (prologue sets it)"
    gaps = [[] for _ in range(N)]
    cls = lambda t: 0 if t.startswith("s_") else 1 if t.startswith(("ds_", "buffer")) else 2
    for g in range(N):
        for x in sorted(out.get(2 * N + g, []), key=lambda x: cls(x["t"])):
            gaps[g].append((x["t"], "n" if x["p"] == 3 else "", x["k"]))
            assert x["p"] in (2, 3), x
    for (j, t, kb, r), g in place.items():
        S = Sreg(t, j) + 4 * kb + r
        gaps[g % N].append((f"v_exp_f32 v{S}, v{S}", "n" if g < 0 else "", ("sm", j)))
    seq, pro, tail = [], [], []
    for i, m in enumerate(mf):
        seq.append(("m", m["t"], [m["f"]]))
        if scal[i] and scal[i][0] == "W":
            seq.append(("m", None, scal[i][1]))
        elif scal[i] and scal[i][0] == "T":
            seq.append(("x", scal[i][1], None))
        for x in gaps[i]:
            isrd = isinstance(x[2], tuple) and x[2][0] == "rd"
            seq.append(("x", x[0], x[2][1] if isrd else None))
            if x[1] == "n":
                assert isinstance(x[2], tuple), x
                pro.append(x[0])
            if i >= gX and x[1] != "n" and isinstance(x[2], tuple):
                if (x[2][0] in ("sm", "cvt") and x[2][1] == 1) or (isrd and x[2][1] >= 24):
                    tail.append(x[0])
    body = add_waits(seq, True)
    body = [y for x in body for y in x.split(" | ")]
    if OPT["show"]:
        print("gaps:", "".join("E" if any(y[0].startswith("v_exp") for y in g_) else str(len(g_)) for g_ in gaps), file=sys.stderr)
        print("instr", len(body), "waits", sum("lgkmcnt" in x for x in body), "offs", best, "dma", [rel[f"d{n}{i}"] for n in "VK" for i in range(4)],
              "minlead", min(first_use[f - f % wsz(f)] - rel[f"r{f}_{1 if f % 16 >= 8 else 0}"] for f in range(NF)),
              "pro", len(pro), "tail", len(tail), file=sys.stderr)

    def keep(x):
        if OPT["nodma"] and (x.startswith("buffer_load") or x.startswith("s_add_u32 m0") or "vmcnt" in x):
            return False
        if OPT["nobar"] and x.startswith("s_barrier"):
            return False
        return True
    return [x for x in body if keep(x)], pro, tail


def cursor(r):
    return [f"s_add_u32 s{r}, s{r}, 128", f"s_sub_u32 s{sT2}, s{r}, 1152", f"s_min_u32 s{r}, s{r}, s{sT2}"]


def x_pieces(c):
    st = STG[c] * STSZ
    p = []
    for i in range(8):
        pre = [f"s_add_u32 s{sXSc}, s{sXS}, s{sCX}"] + cursor(sCX) if i == 0 else []
        p.append(pre + [f"s_add_u32 m0, s{sXD}, {st + i * 1024}",
                        (f"s_add_u32 s{sT0}, s{sXSc}, {i * 9216}" if i else "s_nop 0"),
                        f"buffer_load_dwordx4 v{vXD + (i & 1)}, {srd(SRD_X)}, s{sT0 if i else sXSc} offen{FLAGS[OPT['qpflag']]} lds"])
    return p


def wg_pieces(c):
    st = STG[c] * STSZ
    p = []
    for r in range(4):
        pre = [f"s_lshl_b32 s{sWSc}, s{sCW}, 12", f"s_add_u32 s{sWSc}, s{sWSc}, s{sWS}",
               f"s_add_u32 s{sXEc}, s{sXES}, s{sCW}"] + cursor(sCW) if r == 0 else []
        p.append(pre + [f"s_add_u32 m0, s{sWD}, {st + WOFF + r * XB}",
                        (f"s_add_u32 s{sT0}, s{sWSc}, {r * 8192}" if r else "s_nop 0"),
                        f"buffer_load_dwordx4 v{vWD}, {srd(SRD_W)}, s{sT0 if r else sWSc} offen{FLAGS[OPT['qpflag']]} lds"])
    p.append([f"s_add_u32 m0, s{sXED}, {st}", "s_nop 0",
              f"buffer_load_dwordx4 v{vXDE}, {srd(SRD_X)}, s{sXEc} offen{FLAGS[OPT['qpflag']]} lds"])
    return p


STG = [[0, 2, 1, 0, 2, 1, 2, 1, 2], [0, 1, 2, 0, 1, 2, 0, 1, 2]][OPT['stg']]


def build_qproj(extras, nup, tail_items, fill):
    LQ = OPT["LQ"]
    mf = []
    first_use, last_use = {}, {}
    for s in range(18):
        for sl in range(8):
            f = ("w", 8 * s + sl)
            tiles = range(5) if sl < 4 else range(4)
            for t in tiles:
                a = ACC + 32 * t + 4 * sl
                C = "0" if s == 0 else vr(a, 4)
                txt = f"{MF} {vr(a, 4)}, {ar(WRING + 4 * sl, 4)}, {ar(XF[s % 2] + 4 * t, 4)}, {C}"
                mf.append((txt, [f, ("x", s, t)]))
                for q in (f, ("x", s, t)):
                    first_use.setdefault(q, len(mf) - 1)
                    last_use[q] = len(mf) - 1
    N = len(mf)
    gaps = [[] for _ in range(N + 1)]

    def st_of(c):
        return (6, 0) if STG[c] == 2 else (0, STG[c] * STSZ)

    def wread(n):
        s, sl = divmod(n, 8)
        c, ks = divmod(s, 2)
        rb, st = st_of(c)
        kk, u = divmod(sl, 2)
        base = vQA + rb + (4 if kk < 2 else 5)
        return [(f"ds_read_b64_tr_b16 {ar(WRING + 4 * sl + 2 * e, 2)}, v{base} offset:{st + (kk & 1) * 64 + 8 * u + e * 256 + ks * 512}",
                 ("w", n)) for e in range(2)]

    def xread(s, t):
        c, ks = divmod(s, 2)
        rb, st = st_of(c)
        if t < 4:
            return (f"ds_read_b128 {ar(XF[s % 2] + 4 * t, 4)}, v{vQA + rb + ks} offset:{st + t * 2048}", ("x", s, t))
        return (f"ds_read_b128 {ar(XF[s % 2] + 16, 4)}, v{vQA + rb + 2 + ks} offset:{st}", ("x", s, t))

    bar = {0: -1, 9: N}
    for c in range(1, 9):
        bar[c] = last_use[("w", 16 * c - LQ + 1)]
    items = []
    for n in range(144):
        c = n // 16
        e = last_use[("w", n - 8)] if n >= 8 else -1
        tg = first_use[("w", n - LQ)] if n >= LQ else -1
        tg = max(tg, e, bar[c])
        for x in wread(n):
            items.append((tg, x))
    rd = sorted(items, key=lambda z: z[0])
    xi = []
    for s in range(18):
        c, ks = divmod(s, 2)
        for t in range(5):
            e = last_use[("x", s - 2, t)] if s >= 2 else -1
            tg = max(e, bar[c])
            if s == 1:
                tg = 0
            xi.append((tg, xread(s, t)))
    allrd = sorted([(tg, 0, i, x) for i, (tg, x) in enumerate(xi)] + [(tg, 1, i, x) for i, (tg, x) in enumerate(rd)],
                   key=lambda z: (z[0], z[1], z[2]))
    used = [0] * (N + 2)
    xdone = {}
    g = -1
    for tg, _, _, x in allrd:
        g = max(g, tg)
        if g < 0 and used[0] >= 9:
            g = 0
        while g >= 0 and used[g + 1] >= 2:
            g += 1
        gaps[g + 1].append(("x", x[0], x[1]))
        used[g + 1] += 1
        if x[1][0] == "x":
            xdone[x[1][1]] = g
        cc = x[1][1] // 16 if x[1][0] == "w" else x[1][1] // 2
        assert g < bar[cc + 1] - 2, (x, g, bar[cc + 1])
    last_rd = g
    sused = [0] * (N + 2)
    groups = []
    for c in range(nup, 9):
        prev = [p for p in range(c) if STG[p] == STG[c]]
        ew = bar[prev[-1] + 1] if prev else -1
        ex = xdone[2 * prev[-1] + 1] + 10 if prev else -1
        if c == 6:
            ex += OPT["x6d"]
        groups.append((ew, 0, c, wg_pieces(c), ("W", c), None))
        groups.append((ex, 2, c, x_pieces(c), ("X", c), prev[-1] if prev else None))
    for c, ps in extras.items():
        groups.append((bar[c] + (45 if (OPT["eord"] and c < 8) else 0), 1, c, ps, ("E", c), None))
    groups.sort(key=lambda z: (z[0], z[2] if z[0] < 0 else 0, z[1]))
    for kind in "WX":
        cs = [z[4][1] for z in groups if z[4][0] == kind]
        assert cs == sorted(cs), cs
    issued = []
    for c in range(nup):
        issued += [(("W", c), -1)] * 5 + [(("X", c), -1)] * 8
        if c == 0 and (OPT["pf"] or OPT["tlb"] == 1):
            issued += [(("P", 0), -1)] * 2
    g = 0
    for tg, _, _, ps, tag, prev in groups:
        for i, p in enumerate(ps):
            late = g - tg
            g = max(g, tg)
            g0 = g
            if i == 0 and prev is not None:
                while used[g + 1] >= 1:
                    g += 1
                gaps[g + 1].append(("xw", ("x", 2 * prev + 1)))
                used[g + 1] += 2
            for ins in p[:-1]:
                if ins == "s_nop 0":
                    continue
                if ins.startswith("s_"):
                    while sused[g + 1] + max(0, used[g + 1] - 1) >= 2 or (sused[g + 1] and used[g + 1] >= 2):
                        g += 1
                    gaps[g + 1].insert(sused[g + 1], ("x", ins, None))
                    sused[g + 1] += 1
                else:
                    while used[g + 1] >= 2:
                        g += 1
                    gaps[g + 1].append(("x", ins, None))
                    used[g + 1] += 1
            g += 1
            while used[g + 1] >= 1:
                g += 1
            assert g < N - 30, (tag, g)
            gaps[g + 1].append(("x", p[-1], None))
            used[g + 1] = 2
            issued.append((tag, g))
            g = max(g + 1, g0 + (OPT["qstep"] if late < 30 else 2))
    for c, lst in fill.items():
        g = bar[c]
        for ins in lst:
            k = ins.count(" | ") + 1
            while used[g + 1] + k > 2 or (k > 1 and used[g + 1]):
                g += 1
            for y in ins.split(" | "):
                gaps[g + 1].append(("x", y, None))
            used[g + 1] += k
            assert g < min(bar[c + 1], N - 26), (c, g)
    vm_at = {}
    for c in range(1, 9):
        before = [t for t, gg in issued if gg < bar[c]]
        for t, gg in issued:
            if t in (("W", c), ("X", c)):
                assert gg < bar[c] - 30, (t, gg, bar[c])
        lastneed = max(i for i, t in enumerate(before) if t in (("W", c), ("X", c)))
        vm_at[c] = len(before) - 1 - lastneed
    if OPT["show"]:
        print("bar", bar, "vm", vm_at, "issue", [(t[0] + str(t[1]), g) for t, g in issued if g >= 0], "lastrd", last_rd - (N - 36), file=sys.stderr)
    seq = []
    tf = list(tail_items)
    for i in range(N + 1):
        if i > 0:
            seq.append(("m", mf[i - 1][0], mf[i - 1][1]))
        for c in range(1, 9):
            if bar[c] == i - 1:
                seq.append(("x", f"s_waitcnt vmcnt({vm_at[c]}) lgkmcnt(0)", None))
                seq.append(("x", "s_barrier", None))
                if OPT["diag"]:
                    seq.append(("x", f"v_writelane_b32 v250, s90, {40 + c}", None))
                    seq.append(("x", "s_memtime s[90:91]", None))
        for x in gaps[i]:
            if x[0] == "xw":
                seq.append(("m", "s_nop 0", [("x", x[1][1], t) for t in range(5)]))
            else:
                seq.append(x)
        while tf and tf[0][0] <= i - 1 - (N - 36):
            seq.append(("x", tf.pop(0)[1], None))
    assert not tf
    return add_waits(seq, False), [t for t, _ in issued]


DW = 9
PRE = OPT['pre']
SRD_OUT, SRD_D = SRD_X, SRD_W
sMT, sNT, sBS, sLD, sU, sPA, sCA = sXD, sXS, sWS, sXED, sXES, sCX, sCW
sAI = 32
sSIDE, sRDY, sPF = 38, 39, 40
vBD, vPF, vZ, vPL = 2, 3, 4, 5
vBR, WF, AC = 144, 112, 160


def wslot(s):
    return (1 + s if s < PRE else (s - PRE) % DW) * HS


def wload(s):
    return [([f"s_add_u32 s{sU}, s{sBS}, {s * 36864}"] if i == 0 else []) +
            [f"s_add_u32 m0, s{sWOF}, {wslot(s) + i * BLK}", "s_nop 0",
             f"buffer_load_dwordx4 v{vD + i}, {srd(SRD_P)}, s{sU} offen lds"] for i in range(4)]


def oreg(s, i):
    n = (s % OPT["DO"]) * 6 + i
    return 4 * n if n < 16 else 128 + 4 * (n - 16) if n < 24 else 64 + 4 * (n - 24)


def oload(s):
    off = f" offset:{(s % 4) * 1024}" if s % 4 else ""
    o = []
    for i in range(6):
        pre = [f"s_add_u32 s{sAI + i}, s{sAI + i}, 4096"] if (s % 4 == 0 and s and not OPT['p3same'] & 2) else []
        o.append(pre + [f"buffer_load_dwordx4 {ar(oreg(s, i), 4)}, v11, {srd(SRD_O)}, s{sAI + i} offen{off}{FLAGS[OPT['oflag']]}"])
    return o


def p3_setup():
    Z = Asm()
    Z(f"s_lshr_b32 s{sU}, s2, 3")
    Z(f"s_mul_i32 s{sPF}, s{sU}, 6912")
    Z(f"s_mul_i32 s{sNT}, s{sU}, 43")
    Z(f"s_lshr_b32 s{sNT}, s{sNT}, 7")
    Z(f"s_mul_i32 s{sMT}, s{sNT}, 3")
    Z(f"s_sub_u32 s{sMT}, s{sU}, s{sMT}")
    if OPT["xmap"] == 1:
        Z(f"s_and_b32 s{sCA}, s2, 1")
        Z(f"s_xor_b32 s{sCA}, s{sCA}, 1")
        Z(f"s_lshl_b32 s{sCA}, s{sCA}, 2")
        Z(f"s_bfe_u32 s{sU}, s2, 0x20001")
        Z(f"s_add_u32 s{sCA}, s{sCA}, s{sU}")
    else:
        Z(f"s_and_b32 s{sCA}, s2, 7")
    Z(f"s_mul_i32 s{sU}, s{sCA}, 3")
    Z(f"s_add_u32 s{sMT}, s{sMT}, s{sU}")
    Z(f"s_lshl_b32 s{sCA}, s{sCA}, 2")
    Z(f"s_add_u32 s{sCA}, s{sCA}, s{sW}")
    Z(f"s_lshl_b32 s{sCA}, s{sCA}, 3")
    Z(f"s_lshl_b32 s{sPA}, s{sB}, 2")
    Z(f"s_lshr_b32 s{sU}, s{sH}, 3")
    Z(f"s_add_u32 s{sPA}, s{sPA}, s{sU}")
    Z(f"s_lshl_b32 s{sPA}, s{sPA}, 3")
    Z(f"v_lshrrev_b32 v{vPF}, 3, v0")
    Z(f"v_mul_u32_u24 v{vBD}, 1152, v{vPF}")
    Z(f"v_lshlrev_b32 v{vPF}, 1, v12")
    Z(f"v_and_b32 v{vZ}, 7, v0")
    Z(f"v_xor_b32 v{vPF}, v{vPF}, v{vZ}")
    Z(f"v_lshl_add_u32 v{vBD}, v{vPF}, 4, v{vBD}")
    Z(f"v_min_u32 v{vPF}, 53, v0")
    Z(f"v_lshlrev_b32 v{vPF}, 7, v{vPF}")
    Z(f"v_mov_b32 v{vZ}, 0")
    Z(f"s_lshl_b32 s{sLD}, s{sW}, 12")
    Z(f"s_mul_i32 s{sBS}, s{sW}, {1024 * 1152}")
    Z(f"s_add_u32 s{sPF}, s{sPF}, s{sBS}")
    Z(f"s_lshl_b32 s{sU}, s{sNT}, 7")
    Z(f"s_add_u32 s{sBS}, s{sBS}, s{sU}")
    Z(f"s_cmp_ge_u32 s2, 216 | s_cselect_b32 s{sBS}, 0x40000000, s{sBS}")
    Z(f"s_mov_b32 s{SRD_OUT}, s{sOUTP}")
    Z(f"s_mov_b32 s{SRD_OUT + 1}, s{sOUTP + 1}")
    Z(f"s_mov_b32 s{SRD_OUT + 2}, {2304 * 1152}")
    Z(f"s_mov_b32 s{SRD_D}, s{sOUTP + 2}")
    Z(f"s_mov_b32 s{SRD_D + 1}, s{sOUTP + 3}")
    Z(f"s_mov_b32 s{SRD_D + 2}, 256")
    if OPT["diag"]:
        Z(f"s_mov_b32 s{sINC}, 16384")
    return [x.strip() for x in Z.l]


def o_bases(oob):
    o = [f"s_mul_i32 s{sAI}, s{sMT}, {6 * QP}", f"s_mul_i32 s{sU}, s{sW}, {GP}", f"s_add_u32 s{sAI}, s{sAI}, s{sU}"]
    if oob:
        o += [f"s_cmp_ge_u32 s{sRDY}, 8", f"s_cselect_b32 s{sAI}, s{sAI}, 0x40000000"]
    o += [f"s_add_u32 s{sAI + i}, s{sAI}, {i * QP}" for i in range(1, 6)]
    return o


def side_block(A):
    A.label("L1_side")
    if PRE == 4:
        A(f"s_cmp_eq_u32 s{sSIDE}, 2")
        A("s_cbranch_scc1 L1_tail")
        A(f"s_cmp_eq_u32 s{sSIDE}, 0")
        A("s_cbranch_scc1 L1_side1")
        A(f"s_mov_b32 s{sSIDE}, 2")
        A(f"s_mov_b32 s{sCNT}, 0")
        A(f"s_mov_b32 s{sKVS}, 0x40000000")
        A("s_branch L1_back")
        A.label("L1_side1")
    else:
        A(f"s_cmp_lg_u32 s{sSIDE}, 0")
        A("s_cbranch_scc1 L1_tail")
    A(f"global_load_dword v{vDUM}, v{vCW}, s[{sPC}:{sPC + 1}]")
    A(f"s_mov_b32 s{sSIDE}, 1")
    A(f"s_mov_b32 s{sCNT}, {1 if PRE == 4 else 2}")
    A(f"s_mov_b32 s{sINC}, {2 * 36864}")
    A(f"s_sub_u32 s{sKVS}, s{sBS}, {2 * 36864}")
    A(f"s_mov_b32 s{SRD_K}, s{SRD_P}")
    A(f"s_mov_b32 s{SRD_K + 1}, s{SRD_P + 1}")
    A(f"s_mov_b32 s{SRD_K + 2}, {4096 * 1152}")
    A(f"s_add_u32 s{SRD_V}, s{SRD_P}, 36864")
    A(f"s_addc_u32 s{SRD_V + 1}, s{SRD_P + 1}, 0")
    A(f"s_mov_b32 s{SRD_V + 2}, {4096 * 1152 - 36864}")
    for i in range(4):
        A(f"v_add_u32 v{vD + i}, {i * 9216}, v{vBD}")
    A("s_branch L1_back")


def p3(A, rest):
    DO = OPT["DO"]
    u0, u1 = 253, 254
    vBR = 224
    assert PRE == 4

    def wreg(s):
        return QV + 16 * s if s < PRE else WF + 16 * (s % 2)

    def wreads(s):
        o = wslot(s)
        return [f"ds_read_b64_tr_b16 {vr(wreg(s) + 4 * n + 2 * e, 2)}, v{vBR + 4 * (o // (3 * HS)) + n} offset:{o % (3 * HS) + e * 2 * BLK}"
                for n in range(4) for e in range(2)]

    A(f"v_bfe_u32 v{u0}, v0, 2, 3")
    A(f"v_lshlrev_b32 v{vBR}, 7, v{u0}")
    A(f"v_bfe_u32 v{u0}, v0, 3, 2")
    A(f"v_xor_b32 v{u0}, s{sW}, v{u0}")
    A(f"v_lshl_add_u32 v{vBR}, v{u0}, 5, v{vBR}")
    A(f"v_lshl_add_u32 v{vBR}, v15, 3, v{vBR}")
    A(f"v_lshrrev_b32 v{u0}, 5, v0")
    A(f"v_mul_u32_u24 v{u0}, {BLK}, v{u0}")
    A(f"v_add_u32 v{u0}, s{sWOF}, v{u0}")
    for n_ in range(1, 4):
        A(f"v_xor_b32 v{vBR + n_}, {32 * n_}, v{vBR}")
    for n_ in range(4):
        A(f"v_add_u32 v{vBR + n_}, v{u0}, v{vBR + n_}")
    for k in range(1, 3):
        for n_ in range(4):
            A(f"v_add_u32 v{vBR + 4 * k + n_}, {3 * HS * k}, v{vBR + n_}")
    A("s_waitcnt vmcnt(10)")
    pre = [x for s in range(PRE) for x in wreads(s)]
    cut = len(rest) * OPT["ppos"] // 4
    rest = rest[:cut] + [f"buffer_load_dword v{vPL}, v{vZ}, {srd(SRD_D)}, s{sCA} offen sc1"] + rest[cut:]
    for i in range(8):
        A.ext(pre[4 * i:4 * i + 4])
        A.ext(rest[(i * len(rest)) // 8:((i + 1) * len(rest)) // 8])
    A.ext(o_bases(False))
    stamp(A)
    A(f"v_mov_b32 v{u0}, 1")
    A(f"s_mov_b32 s{sCNT}, {1 << 22}")
    A("s_waitcnt vmcnt(0) lgkmcnt(0)")
    A("s_barrier")
    if OPT["diag"]:
        A("s_memrealtime s[78:79]")
    A(f"v_readfirstlane_b32 s{sRDY}, v{vPL}")

    def publish(lbl):
        A(f"s_cmp_lg_u32 s{sW}, 0")
        A(f"s_cbranch_scc1 {lbl}")
        A("s_mov_b64 exec, 1")
        A(f"buffer_atomic_add v{u0}, v{vZ}, {srd(SRD_D)}, s{sPA} offen sc1")
        A("s_mov_b64 exec, -1")
        A.label(lbl)

    A("s_cmp_ge_u32 s2, 216")
    A(f"s_cselect_b32 s{sRDY}, 0, s{sRDY}")
    A(f"s_cmp_ge_u32 s{sRDY}, {8 if OPT['fast'] else 999}")
    A("s_cbranch_scc1 L3_fast")
    publish("L3_na1")
    A("s_cmp_ge_u32 s2, 216")
    A("s_cbranch_scc1 L3_help" if OPT["helper"] else "s_cbranch_scc1 L3_done")
    vmq, nfast = [], []
    NW0 = PRE + OPT["wpre"]
    for s in range(PRE, NW0):
        for p in wload(s):
            A.ext(p)
    A.label("L3_poll")
    A(f"buffer_load_dword v{u1}, v{vZ}, {srd(SRD_D)}, s{sCA} offen sc1")
    A("s_waitcnt vmcnt(0)")
    A(f"v_readfirstlane_b32 s{sU}, v{u1}")
    A(f"s_sub_u32 s{sCNT}, s{sCNT}, 1")
    A("s_cbranch_scc1 L3_rdy")
    A(f"s_cmp_ge_u32 s{sU}, 8")
    A("s_cbranch_scc1 L3_rdy")
    A(f"s_sleep {OPT['slp']}")
    A("s_branch L3_poll")
    A.label("L3_rdy")
    for s in range(DO):
        for p in oload(s):
            A.ext(p)
            vmq.append(("o", s))
    A("s_branch L3_go")
    A.label("L3_fast")
    seq = [("o", s) for s in range(DO)] + [("w", s) for s in range(PRE, NW0)]
    for n_, (k_, s) in enumerate(seq):
        for p in (oload(s) if k_ == "o" else wload(s)):
            A.ext(p)
            nfast.append((k_, s))
        if n_ == 1:
            publish("L3_na2")
    A.label("L3_go")
    if OPT["diag"]:
        A("s_memrealtime s[80:81]")
    OWN = 16

    def accr(n_, i):
        return vr(OWN + 4 * i, 4) if n_ == 0 else ar(AC + 4 * (6 * (n_ - 1) + i), 4)
    vW_, vR_ = 40, 43
    fin = [f"v_lshl_add_u32 v{vW_}, v0, 4, s{sWOF}", f"v_add_u32 v{vW_ + 1}, {2 * HS}, v{vW_}", f"v_add_u32 v{vW_ + 2}, {4 * HS}, v{vW_}"]
    for n_ in range(1, 4):
        fin += [f"s_xor_b32 s{sT0}, s{sW}, {n_}", f"s_mul_i32 s{sT0}, s{sT0}, {4 * BLK}", f"s_add_u32 s{sT0}, s{sT0}, {(n_ - 1) * 2 * HS}",
                f"v_lshl_add_u32 v{vR_ + n_ - 1}, v0, 4, s{sT0}"]
    fin += [f"v_bfe_u32 v10, v0, 4, 1", f"v_lshl_add_u32 v9, v10, 4, v13", f"v_mul_u32_u24 v9, 1152, v9",
            f"v_lshrrev_b32 v10, 5, v0", f"v_lshl_add_u32 v9, v10, 4, v9",
            f"s_mul_i32 s{sT1}, s{sMT}, {96 * 1152}", f"s_lshl_b32 s{sT0}, s{sNT}, 7", f"s_add_u32 s{sT1}, s{sT1}, s{sT0}",
            f"s_lshl_b32 s{sT0}, s{sW}, 5", f"s_add_u32 s{sT1}, s{sT1}, s{sT0}"]
    nw = NW0
    for s in range(32):
        cnt = []
        for q in (vmq, nfast):
            need = [i for i, t in enumerate(q) if t in (("o", s), ("w", s + 1))]
            cnt.append(len(q) - 1 - max(need) if need else 63)
        A(f"s_waitcnt vmcnt({min(min(cnt), 63)}) lgkmcnt(0)")
        rdq = wreads(s + 1) if PRE <= s + 1 < 32 else []
        ld = []
        if nw < 32 and nw - DW <= s:
            ld += [(p, ("w", nw)) for p in wload(nw)]
            nw += 1
        if s >= 1 and s - 1 + DO < 32:
            ld += [(p, ("o", s - 1 + DO)) for p in oload(s - 1 + DO)]
        extra = list(fin) if s == 30 else []
        wq = []
        k = 0
        for n_ in ((1, 2, 3, 0) if s == 31 else range(4)):
            for i in range(6):
                acc = accr(n_, i)
                A(f"{MF} {acc}, {vr(wreg(s) + 4 * n_, 4)}, {ar(oreg(s, i), 4)}, {'0' if s == 0 else acc}")
                k += 1
                if rdq and k % 2 == 1:
                    A(rdq.pop(0))
                if ld and k % 2 == 0:
                    p, tag = ld.pop(0)
                    A.ext(p)
                    vmq.append(tag)
                    nfast.append(tag)
                if extra and k % 2 == 0:
                    A.ext(extra[:3])
                    extra = extra[3:]
                if s == 31:
                    if n_:
                        wq.append(f"ds_write_b128 v{vW_ + n_ - 1}, {acc} offset:{(i // 3) * HS + (i % 3) * 1024}")
                    if k > 8:
                        A(wq.pop(0))
        assert not ld and not rdq and not extra
        A.ext(wq)
    assert nw == 32
    if OPT["diag"]:
        A("s_memrealtime s[82:83]")
    A("s_waitcnt lgkmcnt(0)")
    A("s_barrier")
    R = 48
    for x in range(3):
        for i in (2 * x, 2 * x + 1):
            for n_ in range(1, 4):
                A(f"ds_read_b128 {vr(R + 12 * i + 4 * (n_ - 1), 4)}, v{vR_ + n_ - 1} offset:{(i // 3) * HS + (i % 3) * 1024}")
    for x in range(3):
        A(f"s_waitcnt lgkmcnt({6 * (2 - x)})")
        for i in (2 * x, 2 * x + 1):
            for e in range(4):
                A(f"v_add_f32 v{OWN + 4 * i + e}, v{OWN + 4 * i + e}, v{R + 12 * i + e}")
                A(f"v_add_f32 v{R + 12 * i + 4 + e}, v{R + 12 * i + 4 + e}, v{R + 12 * i + 8 + e}")
            for e in range(4):
                A(f"v_add_f32 v{OWN + 4 * i + e}, v{OWN + 4 * i + e}, v{R + 12 * i + 4 + e}")
        d = 124 + 4 * x
        for e in range(4):
            A(f"v_cvt_pk_bf16_f32 v{d + e}, v{OWN + 8 * x + 2 * e}, v{OWN + 8 * x + 2 * e + 1}")
        A("s_nop 1")
        A(f"v_permlane16_swap_b32 v{d}, v{d + 2}")
        A(f"v_permlane16_swap_b32 v{d + 1}, v{d + 3}")
        A(f"buffer_store_dwordx4 {vr(d, 4)}, v9, {srd(SRD_OUT)}, s{sT1} offen{FLAGS[OPT['outflag']]}")
        A(f"s_add_u32 s{sT1}, s{sT1}, {32 * 1152}")
    if OPT["helper"]:
        A("s_branch L3_done")
        A.label("L3_help")
        sJ, sOB, sWB = sAI, sAI + 1, sAI + 2
        A(f"s_lshr_b32 s{sJ}, s2, 3")
        A(f"s_sub_u32 s{sJ}, s{sJ}, 27")
        A(f"s_mul_i32 s{sT0}, s{sJ}, 58")
        A(f"v_add_u32 v16, s{sT0}, v0")
        A(f"v_min_u32 v16, 287, v16")
        A(f"v_lshlrev_b32 v16, 7, v16")
        A(f"s_mul_i32 s{sWB}, s{sW}, {1024 * 1152}")
        A(f"s_mul_i32 s{sT0}, s{sJ}, 29")
        A(f"v_and_b32 v17, 31, v0")
        A(f"v_add_u32 v17, s{sT0}, v17")
        A(f"v_min_u32 v17, 143, v17")
        A(f"v_lshrrev_b32 v18, 3, v17")
        A(f"s_mov_b32 s{sT0}, {QP}")
        A(f"v_mul_lo_u32 v18, s{sT0}, v18")
        A(f"v_and_b32 v17, 7, v17")
        A(f"v_lshl_add_u32 v17, v17, 7, v18")
        A(f"v_lshrrev_b32 v18, 5, v0")
        A(f"v_lshl_add_u32 v17, v18, 10, v17")
        A(f"s_lshr_b32 s{sOB}, s{sCA}, 5")
        A(f"s_mul_i32 s{sOB}, s{sOB}, {18 * QP}")
        A(f"s_mul_i32 s{sT0}, s{sW}, {GP}")
        A(f"s_add_u32 s{sOB}, s{sOB}, s{sT0}")

        def hw(s_):
            A(f"s_add_u32 s{sT0}, s{sWB}, {s_ * 36864}")
            A(f"buffer_load_dword v{vDUM}, v16, {srd(SRD_P)}, s{sT0} offen")

        def ho(s_):
            A(f"s_add_u32 s{sT0}, s{sOB}, {s_ * 1024}")
            A(f"buffer_load_dword v{vDUM}, v17, {srd(SRD_O)}, s{sT0} offen sc1")
        for s_ in range(NW0, NW0 + OPT["hA"]):
            hw(s_)
        A.label("L3_hpoll")
        A(f"buffer_load_dword v{u1}, v{vZ}, {srd(SRD_D)}, s{sCA} offen sc1")
        A("s_waitcnt vmcnt(0)")
        A(f"v_readfirstlane_b32 s{sU}, v{u1}")
        A(f"s_sub_u32 s{sCNT}, s{sCNT}, 1")
        A("s_cbranch_scc1 L3_done")
        A(f"s_cmp_ge_u32 s{sU}, 8")
        A("s_cbranch_scc1 L3_hgo")
        A(f"s_sleep {OPT['slp']}")
        A("s_branch L3_hpoll")
        A.label("L3_hgo")
        ev = [(s_ - 3, "o", s_) for s_ in range(OPT["ho"], 32, 2)] + [(s_ - DW, "w", s_) for s_ in range(NW0 + OPT["hA"], 32)]
        for _, k_, s_ in sorted(ev):
            (ho if k_ == "o" else hw)(s_)
    A.label("L3_done")


def k1(A):
    A.raw(".p2align 8")
    A.raw(".type attn_kernel,@function")
    A.label("attn_kernel")
    A("s_cmp_ge_u32 s2, 256")
    A("s_cbranch_scc1 L1_end")
    A("s_load_dwordx8 s[32:39], s[0:1], 0")
    A("s_load_dwordx2 s[40:41], s[0:1], 56")
    A("s_load_dwordx2 s[30:31], s[0:1], 32")
    if OPT["tlb"] == 1:
        A("s_load_dwordx4 s[20:23], s[0:1], 40")
    A(f"s_getpc_b64 s[{sPC}:{sPC + 1}]")
    A.label("L1_pc")
    stamp(A)
    if OPT["diag"]:
        A("s_memrealtime s[92:93]")
    if OPT["dspin"]:
        A("s_memrealtime s[62:63]")
    A("s_lshr_b32 s3, s2, 3")
    if OPT["cpf"]:
        A(f"s_lshl_b32 s{sT0}, s3, 11")
        A(f"v_lshl_add_u32 v1, v0, 7, s{sT0}")
        A("v_min_u32 v1, L_code_end-L1_pc-4, v1")
        A("v_cmp_gt_u32 vcc, 16, v0")
        A("s_and_saveexec_b64 s[46:47], vcc")
        A("s_cbranch_execz L1_nocpf")
        A(f"global_load_dword v{vDUM}, v1, s[{sPC}:{sPC + 1}]")
        A.label("L1_nocpf")
        A("s_mov_b64 exec, s[46:47]")
    A("v_lshrrev_b32 v1, 6, v0")
    A("v_and_b32 v0, 63, v0")
    A(f"v_readfirstlane_b32 s{sW}, v1")
    if OPT["xmap"] == 0:
        A(f"s_and_b32 s{sB}, s2, 7")
        A(f"s_mov_b32 s{sH}, s3")
    else:
        A(f"s_and_b32 s{sB}, s2, 1")
        A(f"s_lshl_b32 s{sB}, s{sB}, 2")
        A(f"s_and_b32 s{sT0}, s3, 3")
        A(f"s_add_u32 s{sB}, s{sB}, s{sT0}")
        A(f"s_and_b32 s{sH}, s2, 6")
        A(f"s_lshl_b32 s{sH}, s{sH}, 2")
        A(f"s_lshr_b32 s{sT0}, s3, 2")
        A(f"s_add_u32 s{sH}, s{sH}, s{sT0}")
    A(f"s_and_b32 s{sP}, s{sW}, 1")
    nph = OPT["nph"]
    if nph == 1:
        A(f"s_mov_b32 s{sCW}, 0")
    elif nph == 2:
        A(f"s_add_u32 s{sCW}, s{sB}, s{sH}")
        A(f"s_and_b32 s{sCW}, s{sCW}, 1")
        A(f"s_mul_i32 s{sCW}, s{sCW}, {4 * 128}")
    elif nph == 4:
        A(f"s_add_u32 s{sCW}, s{sB}, s{sH}")
        A(f"s_and_b32 s{sCW}, s{sCW}, 3")
        A(f"s_mul_i32 s{sCW}, s{sCW}, {2 * 128}")
    elif nph == 8:
        A(f"s_lshl_b32 s{sCW}, s{sB}, 1")
        A(f"s_add_u32 s{sCW}, s{sCW}, s{sH}")
        A(f"s_and_b32 s{sCW}, s{sCW}, 7")
        A(f"s_lshl_b32 s{sCW}, s{sCW}, 7")
    elif nph == 5:
        A(f"s_add_u32 s{sCW}, s{sB}, s{sH}")
        A(f"s_and_b32 s{sCW}, s{sCW}, 3")
        A(f"s_mul_i32 s{sCW}, s{sCW}, 9")
        A(f"s_add_u32 s{sCW}, s{sCW}, 2")
        A(f"s_lshr_b32 s{sCW}, s{sCW}, 2")
        A(f"s_lshl_b32 s{sCW}, s{sCW}, 7")
    elif nph == 3:
        A(f"s_add_u32 s{sCW}, s{sB}, s{sH}")
        A(f"s_mul_i32 s{sT0}, s{sCW}, 43")
        A(f"s_lshr_b32 s{sT0}, s{sT0}, 7")
        A(f"s_mul_i32 s{sT0}, s{sT0}, 3")
        A(f"s_sub_u32 s{sCW}, s{sCW}, s{sT0}")
        A(f"s_mul_i32 s{sCW}, s{sCW}, {3 * 128}")
    A(f"s_mov_b32 s{sCX}, s{sCW}")
    t0, t1, t2, g4, i16, r4, cq = 9, 10, 11, 12, 13, 14, 15
    A(f"v_lshrrev_b32 v{g4}, 4, v0")
    A(f"v_and_b32 v{i16}, 15, v0")
    A(f"v_lshrrev_b32 v{t0}, 5, v0")
    A(f"v_lshlrev_b32 v{vWD}, 18, v{t0}")
    A(f"v_and_b32 v{t0}, 1, v{g4}")
    A(f"v_lshl_add_u32 v{vWD}, v{t0}, 15, v{vWD}")
    A(f"v_lshl_add_u32 v{vWD}, v{i16}, 4, v{vWD}")
    A(f"v_lshrrev_b32 v{t0}, 3, v0")
    A(f"v_mul_u32_u24 v{vXD}, 1152, v{t0}")
    A(f"v_and_b32 v{t0}, 7, v0")
    A(f"v_xor_b32 v{t0}, v{t0}, v{g4}")
    A(f"v_lshl_add_u32 v{vXD}, v{t0}, 4, v{vXD}")
    A(f"v_xor_b32 v{vXD + 1}, 64, v{vXD}")
    A(f"s_lshl_b32 s{sT0}, s{sP}, 6")
    A(f"v_xor_b32 v{vXDE}, s{sT0}, v{vXD}")
    A(f"s_lshl_b32 s{sXD}, s{sW}, 13")
    A(f"s_add_u32 s{sXD}, s{sXD}, {XOFF}")
    A(f"s_mul_i32 s{sXS}, s{sW}, {8 * 9216}")
    A(f"s_lshl_b32 s{sXED}, s{sW}, 10")
    A(f"s_add_u32 s{sXED}, s{sXED}, {XEOFF}")
    A(f"s_mul_i32 s{sXES}, s{sW}, 9216")
    A(f"s_add_u32 s{sXES}, s{sXES}, {32 * 9216}")
    A(f"s_lshr_b32 s{sT0}, s{sW}, 1")
    A(f"s_mul_i32 s{sWD}, s{sT0}, {WG1}")
    A(f"s_mul_i32 s{sT0}, s{sP}, {WG0}")
    A(f"s_add_u32 s{sWD}, s{sWD}, s{sT0}")
    A(f"s_lshl_b32 s{sWS}, s{sW}, 16")
    A(f"s_mul_i32 s{sT1}, s{sB}, 331776")
    A(f"s_lshl_b32 s{sT0}, s{sH}, 8")
    A(f"s_mov_b32 s{SRD_X + 2}, 331776")
    A(f"s_mov_b32 s{SRD_X + 3}, 0x20000")
    A(f"s_sub_u32 s{SRD_W + 2}, {576 * 8192}, s{sT0}")
    A(f"s_mov_b32 s{SRD_W + 3}, 0x20000")
    if OPT["fine"]:
        stamp(A)
    A("s_waitcnt lgkmcnt(0)")
    if OPT["fine"]:
        stamp(A)
    A(f"s_add_u32 s{SRD_W}, s38, s{sT0}")
    A(f"s_addc_u32 s{SRD_W + 1}, s39, 0")
    A(f"s_add_u32 s{SRD_X}, s32, s{sT1}")
    A(f"s_addc_u32 s{SRD_X + 1}, s33, 0")
    S = Asm()
    E = A if OPT["tlb"] == 3 else S
    E(f"s_lshl_b32 s{sT1}, s{sB}, 5")
    E(f"s_add_u32 s{sT1}, s{sT1}, s{sH}")
    E(f"s_lshl_b32 s{sT1}, s{sT1}, 19")
    if OPT["tlb"] == 3:
        for r_, p_ in ((SRD_K, 34), (SRD_V, 36)):
            A(f"s_add_u32 s{r_}, s{p_}, s{sT1}")
            A(f"s_addc_u32 s{r_ + 1}, s{p_ + 1}, 0")
            A(f"s_load_dword s{sRDY}, s[{r_}:{r_ + 1}], 0")
    S(f"s_add_u32 s{SRD_K}, s34, s{sT1} | s_addc_u32 s{SRD_K + 1}, s35, 0")
    S(f"s_mov_b32 s{SRD_K + 2}, 524288")
    S(f"s_mov_b32 s{SRD_K + 3}, 0x20000")
    S(f"s_add_u32 s{SRD_V}, s36, s{sT1} | s_addc_u32 s{SRD_V + 1}, s37, 0")
    if OPT["tlb"] == 2:
        S(f"s_load_dword s{sRDY}, s[{SRD_K}:{SRD_K + 1}], 0")
        S(f"s_load_dword s{sRDY}, s[{SRD_V}:{SRD_V + 1}], 0")
    S(f"s_mov_b32 s{SRD_V + 2}, 524288")
    S(f"s_mov_b32 s{SRD_V + 3}, 0x20000")
    S(f"s_add_u32 s{SRD_O}, s40, {OPT['wsoff'] << 20} | s_addc_u32 s{SRD_O + 1}, s41, 0")
    S(f"s_mov_b32 s{SRD_O + 2}, {(DIAG_OFF + (2 << 20)) if OPT['diag'] else WS_O_BYTES}")
    S(f"s_mov_b32 s{SRD_O + 3}, 0x20000")
    S(f"s_mov_b32 s{SRD_P}, s30")
    S(f"s_mov_b32 s{SRD_P + 1}, s31")
    S(f"s_mov_b32 s{SRD_P + 2}, {4096 * 1152}")
    S(f"s_mov_b32 s{SRD_P + 3}, 0x20000")
    S(f"v_bfe_u32 v{r4}, v0, 2, 2")
    S(f"v_and_b32 v{cq}, 3, v0")
    XA, XE, WL, WH = vQA, vQA + 2, vQA + 4, vQA + 5
    S(f"v_lshlrev_b32 v{XE}, 7, v{i16}")
    S(f"v_lshrrev_b32 v{t0}, 1, v{i16}")
    S(f"v_xor_b32 v{t0}, v{t0}, v{g4}")
    S(f"v_lshl_add_u32 v{XE}, v{t0}, 4, v{XE}")
    S(f"v_add_u32 v{XA}, s{sXD}, v{XE}")
    S(f"s_lshr_b32 s{sT1}, s{sW}, 1")
    S(f"s_lshl_b32 s{sT1}, s{sT1}, 11")
    S(f"s_add_u32 s{sT1}, s{sT1}, {XEOFF}")
    S(f"v_add_u32 v{XE}, s{sT1}, v{XE}")
    S(f"v_xor_b32 v{XA + 1}, 64, v{XA}")
    S(f"v_xor_b32 v{XE + 1}, 64, v{XE}")
    S(f"v_lshrrev_b32 v{t0}, 1, v{g4}")
    S(f"v_mul_u32_u24 v{WL}, {WG1}, v{t0}")
    S(f"v_and_b32 v{t0}, 1, v{g4}")
    S(f"v_mul_u32_u24 v{t0}, {WG0}, v{t0}")
    S(f"v_add_u32 v{WL}, v{WL}, v{t0}")
    S(f"v_mul_u32_u24 v{t0}, {XB}, v{r4}")
    S(f"v_add_u32 v{WL}, v{WL}, v{t0}")
    S(f"v_lshl_add_u32 v{WL}, v{cq}, 4, v{WL}")
    S(f"s_lshl_b32 s{sT1}, s{sP}, 7")
    S(f"s_xor_b32 s{sOO}, s{sT1}, 128")
    S(f"v_add_u32 v{WH}, s{sOO}, v{WL}")
    S(f"v_add_u32 v{WL}, s{sT1}, v{WL}")
    for i in range(6):
        S(f"v_add_u32 v{vQA + 6 + i}, {2 * STSZ}, v{vQA + i}")
    S(f"s_lshl_b32 s{sT1}, s{sW}, 12")
    S(f"v_lshl_add_u32 v{vV4}, v0, 4, s{sT1}")
    S(f"s_mul_i32 s{sWOF}, s{sW}, {4 * BLK}")

    def dma_regs(Z):
        for i in range(4):
            Z(f"v_add_u32 v{vD + i}, {i * 1024}, v{vV4}")
    dma_regs(S)
    S(f"v_mul_u32_u24 v{t0}, {BLK}, v{i16}")
    S(f"v_lshl_add_u32 v{t0}, v{g4}, 4, v{t0}")
    S(f"v_lshl_add_u32 v{t1}, v{g4}, 2, v{r4}")
    S(f"v_mul_u32_u24 v{t1}, {BLK}, v{t1}")
    S(f"v_lshl_add_u32 v{t1}, v{cq}, 3, v{t1}")
    for j in range(2):
        S(f"s_xor_b32 s{sT1}, s{sP}, {j}")
        S(f"s_lshl_b32 s{sT1}, s{sT1}, 9")
        S(f"v_add_u32 v{vVB + j}, s{sT1}, v{t1}")
        S(f"s_lshl_b32 s{sOO}, s{sP}, 7")
        S(f"s_add_u32 s{sT1}, s{sT1}, s{sOO}")
        S(f"v_add_u32 v{vKB + 2 * j}, s{sT1}, v{t0}")
        S(f"s_xor_b32 s{sT1}, s{sT1}, 128")
        S(f"v_add_u32 v{vKB + 2 * j + 1}, s{sT1}, v{t0}")
    if OPT["rot"]:
        S(f"s_mul_i32 s{sG0}, s2, {OPT['rot']}")
        S(f"s_lshr_b32 s{sT1}, s2, 4")
        S(f"s_add_u32 s{sG0}, s{sG0}, s{sT1}")
        S(f"s_and_b32 s{sG0}, s{sG0}, 15")
        S(f"s_mul_i32 s{sG0}, s{sG0}, {16384 * 7 // 4 // 16384 * 16384}")
    S(f"s_lshl_b32 s{sWP}, s2, 2")
    S(f"s_add_u32 s{sWP}, s{sWP}, s{sW}")
    S(f"s_mul_i32 s{sWP}, s{sWP}, 4608")
    S(f"v_min_u32 v7, 1, v0")
    S(f"v_lshlrev_b32 v7, 7, v7")
    S(f"s_lshl_b32 s{sDV}, s{sP}, 10")
    S(f"s_sub_u32 s{sDV}, 512, s{sDV}")
    S(f"v_min_u32 v{vCW}, 1, v0")
    S(f"s_lshr_b32 s{sT1}, s2, 3")
    S(f"s_lshl_b32 s{sT1}, s{sT1}, 2")
    S(f"s_add_u32 s{sT1}, s{sT1}, s{sW}")
    S(f"s_lshl_b32 s{sT1}, s{sT1}, 8")
    S(f"v_lshl_add_u32 v{vCW}, v{vCW}, 7, s{sT1}")
    S(f"v_min_u32 v{vCW}, L1_redo-L1_tail, v{vCW}")
    S(f"v_add_u32 v{vCW}, L1_tail-L1_pc, v{vCW}")
    S(f"v_mov_b32 v{t0}, 0x3f803f80")
    S(f"v_cmp_eq_u32 vcc, 0, v{cq}")
    S(f"s_mov_b32 s{sSC}, {QSCALE:#x}")
    S(f"s_mov_b32 s{sREDO}, 0")
    S(f"v_cndmask_b32 v{t0}, 0, v{t0}, vcc")
    for i in range(4):
        S(f"v_accvgpr_write_b32 a{ONES + i}, v{t0}")
    S(f"s_add_u32 s{sT1}, s{sXD}, {2 * STSZ + 6144}")
    S(f"v_lshl_add_u32 v{t0}, v0, 4, s{sT1}")
    S(f"s_xor_b32 s{sT1}, s{sW}, 1")
    S(f"s_lshl_b32 s{sT1}, s{sT1}, 13")
    S(f"s_add_u32 s{sT1}, s{sT1}, {XOFF + 2 * STSZ + 6144}")
    S(f"v_lshl_add_u32 v{t1}, v0, 4, s{sT1}")

    def loop_scalars(Z):
        if OPT["rot"]:
            Z(f"s_add_u32 s{sKVS}, s{sG0}, {DD * 16384}")
        else:
            Z(f"s_mov_b32 s{sKVS}, {DD * 16384}")
        Z(f"s_add_u32 s{sKD}, s{sWOF}, {(NS - 1) * HS}")
        Z(f"s_mov_b32 s{sVD}, s{sWOF}")
        Z(f"s_mov_b32 s{sKN}, {2 * HS}")
        Z(f"s_mov_b32 s{sVN}, {3 * HS}")
        Z(f"s_mov_b32 s{sCNT}, 28")
        Z(f"s_mov_b32 s{sSIDE}, 0")
        if Z is not S or not OPT["diag"]:
            Z(f"s_mov_b32 s{sINC}, 16384")
        if OPT["diag"]:
            Z("s_mov_b32 s41, 31")

    def loop_addr():
        return [f"v_add_u32 v{vK}, {2 * HS}, v{vKB}", f"v_add_u32 v{vK + 1}, {2 * HS}, v{vKB + 1}",
                f"v_mov_b32 v{vK + 2}, v{vKB + 2}", f"v_mov_b32 v{vK + 3}, v{vKB + 3}",
                f"v_add_u32 v{vV}, {HS}, v{vVB}", f"v_add_u32 v{vV + 1}, {HS}, v{vVB + 1}"]

    loop_scalars(S)
    for i in range(180):
        S(f"v_accvgpr_write_b32 a{i}, 0")
    setup = [x.strip() for x in S.l]
    for i_, p in enumerate(wg_pieces(0) + x_pieces(0)):
        A.ext(p)
        if OPT["fine"] and i_ in (0, 8):
            stamp(A)
    if OPT["fine"]:
        stamp(A)
        A("s_waitcnt vmcnt(12)")
        stamp(A)
        A("s_waitcnt vmcnt(0)")
        stamp(A)
        OPT["diag"] = 2
    npf = 0

    def tlb_touch():
        A(f"v_lshlrev_b32 v{t0}, 18, v0")
        A(f"s_cmp_eq_u32 s{sW}, 1")
        A("s_cbranch_scc1 L1_t1")
        A(f"s_cmp_eq_u32 s{sW}, 2")
        A("s_cbranch_scc1 L1_t2")
        A(f"s_cmp_eq_u32 s{sW}, 3")
        A("s_cbranch_scc1 L1_t3")
        A(f"s_lshl_b32 s{sT1}, s{sB}, 5")
        A(f"s_add_u32 s{sT1}, s{sT1}, s{sH}")
        A(f"s_lshl_b32 s{sT1}, s{sT1}, 19")
        A(f"v_min_u32 v{t0}, {1 << 18}, v{t0}")
        A(f"v_add_u32 v{t0}, s{sT1}, v{t0}")
        A(f"global_load_dword v{vDUM}, v{t0}, s[34:35] nt")
        A(f"global_load_dword v{vDUM}, v{t0}, s[36:37] nt")
        A("s_branch L1_td")
        A.label("L1_t1")
        A(f"v_min_u32 v{t0}, {17 << 18}, v{t0}")
        A(f"global_load_dword v{vDUM}, v{t0}, s[38:39]")
        A(f"global_load_dword v{vDUM}, v{t0}, s[30:31]")
        A("s_branch L1_td")
        A.label("L1_t2")
        A(f"v_lshlrev_b32 v{t1}, 20, v0")
        A(f"v_min_u32 v{t1}, {17 << 20}, v{t1}")
        A(f"v_add_u32 v{t1}, {OPT['wsoff'] << 20}, v{t1}")
        A(f"global_load_dword v{vDUM}, v{t1}, s[40:41] sc1 nt")
        A(f"v_min_u32 v{t0}, {10 << 18}, v{t0}")
        A(f"global_load_dword v{vDUM}, v{t0}, s[20:21] nt")
        A("s_branch L1_td")
        A.label("L1_t3")
        A(f"v_mov_b32 v{t1}, 0")
        A(f"global_load_dword v{vDUM}, v{t1}, s[22:23] sc1")
        A(f"v_min_u32 v{t0}, {10 << 18}, v{t0}")
        A(f"global_load_dword v{vDUM}, v{t0}, s[32:33]")
        A.label("L1_td")

    if OPT["tlb"] == 1:
        tlb_touch()
        npf = 2
    if OPT["pf"]:
        na = OPT["pfa"]
        A(f"v_min_u32 v{t0}, {9 * na - 1}, v0")
        A(f"v_mul_u32_u24 v{t1}, 57, v{t0}")
        A(f"v_lshrrev_b32 v{t1}, 9, v{t1}")
        A(f"v_mul_u32_u24 v{t2}, 9, v{t1}")
        A(f"v_sub_u32 v{t0}, v{t0}, v{t2}")
        A(f"v_mul_u32_u24 v248, 1152, v{t0}")
        A(f"s_and_b32 s{sT1}, s{sH}, 7")
        A(f"s_lshl_b32 s{sT1}, s{sT1}, 2")
        A(f"s_add_u32 s{sT1}, s{sT1}, s{sW}")
        A(f"s_mul_i32 s{sT1}, s{sT1}, {9 * 1152}")
        A(f"v_add_u32 v248, s{sT1}, v248")
        A(f"v_lshl_add_u32 v246, v{t1}, 7, v248")
        A(f"buffer_load_dword v{vDUM}, v246, {srd(SRD_X)}, 0 offen offset:128")
        A(f"v_bfe_u32 v{t0}, v0, 1, 2")
        A(f"v_lshlrev_b32 v249, 13, v{t0}")
        A(f"v_and_b32 v{t0}, 1, v0")
        A(f"v_lshl_add_u32 v249, v{t0}, 7, v249")
        A(f"s_and_b32 s{sT1}, s{sB}, 3")
        A(f"s_lshl_b32 s{sT1}, s{sT1}, 2")
        A(f"s_add_u32 s{sT1}, s{sT1}, s{sW}")
        A(f"s_lshl_b32 s{sT1}, s{sT1}, 15")
        A(f"v_add_u32 v249, s{sT1}, v249")
        A(f"v_lshrrev_b32 v{t0}, 3, v0")
        A(f"v_min_u32 v{t0}, {na - 1}, v{t0}")
        A(f"v_lshl_add_u32 v247, v{t0}, 19, v249")
        A(f"s_mov_b32 s{sT1}, {1 << 19}")
        A(f"buffer_load_dword v{vDUM}, v247, {srd(SRD_W)}, s{sT1} offen")
        npf = 2
    first = []
    for c in range(1, OPT["up"]):
        first += wg_pieces(c) + x_pieces(c)
    per = len(setup) // (len(first) + 1) + 1
    stamp(A)
    for p in [[]] + first:
        A.ext(p)
        for _ in range(per):
            if setup:
                for y in setup.pop(0).split(" | "):
                    A(y)
    assert not setup
    stamp(A)
    A(f"s_waitcnt vmcnt({len(first) + npf})")
    A("s_barrier")
    stamp(A)
    P = lambda n: [item_piece(n, i) for i in range(4)]
    kw = [f"global_load_dword v{vDUM}, v{vCW}, s[{sPC}:{sPC + 1}]"] if OPT["cpf"] else []
    kw = [f"buffer_load_dword v{vDUM}, v7, {srd(SRD_P)}, s{sWP} offen"] if OPT["wopf"] == 2 else []
    if OPT["stg"] == 0:
        extras = {4: P(0), 5: P(1), 6: P(2)}
        al = P(0) + P(1) + P(2)
        if OPT["kvs"] == 1:
            extras = {4: al[0:3], 5: al[3:6], 6: al[6:8], 7: al[8:12]}
        if OPT["kvs"] >= 4:
            extras = {4: al[:OPT["kvs"]]}
            if OPT["kvs"] < 12:
                extras[7] = al[OPT["kvs"]:]
    else:
        extras = {7: P(0) + P(1) + P(2)}
    if DD == 4:
        extras[8] = P(3) + P(4) + P(5)
        late = P(6) + P(7)
        late[0] = kw + late[0]
        late[7] = late[7] + kw
    elif DD == 3:
        extras[8] = P(3)
        late = P(4) + P(5)
        late[7] = late[7] + kw
    else:
        extras[8] = P(3)
        late = [[]] * 8
    if OPT["pf"]:
        for c in range(OPT["pfa"] + 1, 9):
            at = max(0, c - OPT["pf"])
            extras[at] = extras.get(at, []) + [
                [f"buffer_load_dword v{vDUM}, v248, {srd(SRD_X)}, 0 offen offset:{c * 128}"],
                [f"s_mov_b32 s{sT0}, {c << 19}", f"buffer_load_dword v{vDUM}, v249, {srd(SRD_W)}, s{sT0} offen"]]
    if OPT["wopf"] == 1:
        extras[7] = extras.get(7, []) + [[f"v_lshlrev_b32 v253, 7, v0", f"v_min_u32 v253, {35 * 128}, v253",
                      f"buffer_load_dword v{vDUM}, v253, {srd(SRD_P)}, s{sWP} offen"]]

    def conv(t, kk):
        src = ACC + 32 * t + 8 * kk
        dst = QV + 16 * t + 4 * kk
        o = []
        for i in range(4):
            o += [f"v_mul_f32 v{src + 2 * i}, s{sSC}, v{src + 2 * i}", f"v_mul_f32 v{src + 2 * i + 1}, s{sSC}, v{src + 2 * i + 1}"]
        for i in range(4):
            o.append(f"v_cvt_pk_bf16_f32 v{dst + i}, v{src + 2 * i}, v{src + 2 * i + 1}")
        return o

    KF = [184, 224]
    k0reads = [kread(ar(KF[kb] + 4 * kk, 4), vKB, kb, kk) for kb in range(2) for kk in range(4)]
    ti = []

    def spread(lst, g0, g1):
        for i, x in enumerate(lst):
            ti.append((g0 + (i * (g1 - g0)) // len(lst), x))

    spread(conv(4, 0) + conv(0, 0) + conv(1, 0) + conv(2, 0), 13, 22)
    spread(conv(4, 1) + [f"ds_write_b128 v{t0}, {vr(QV + 64, 4)}", f"ds_write_b128 v{t0}, {vr(QV + 68, 4)} offset:1024"]
           + conv(3, 0) + conv(0, 1), 22, 29)
    ti.append((29, "BAR"))
    spread([f"ds_read_b128 {vr(QV + 72, 4)}, v{t1}", f"ds_read_b128 {vr(QV + 76, 4)}, v{t1} offset:1024"] + k0reads[:4]
           + conv(1, 1) + k0reads[4:] + conv(2, 1) + conv(3, 1), 29, 36)
    nb = [i for i, x in enumerate(ti) if x[1] == "BAR"][0]
    ti[nb:nb + 1] = [(29, "VMW"), (29, "s_barrier")]
    qp, issued = build_qproj(extras, OPT["up"], ti, {6: [f"s_load_dwordx4 s[{sOUTP}:{sOUTP + 3}], s[0:1], 40"], 8: p3_setup()})
    vms = [x for x in qp if x.startswith(("buffer_load", "global_load"))]
    lastv0 = max(i for i, x in enumerate(vms) if x == P(1)[3][-1] and i == min(k for k, y in enumerate(vms) if y == x))
    ny = len(vms) - 1 - lastv0
    qp = [(f"s_waitcnt vmcnt({ny}) lgkmcnt(0)" if x == "VMW" else x) for x in qp]
    A.ext(tidy(qp) if OPT['tidy'] else qp)
    stamp(A)
    body, pro, tail = build_loop()

    def qk0(kb, kk, useneg):
        o = []
        for t in range(5):
            Sx = Sreg(t, 0) + 4 * kb
            C = (vr(NEG + 4 * t, 4) if useneg else "0") if kk == 0 else vr(Sx, 4)
            o.append(f"{MF} {vr(Sx, 4)}, {ar(KF[kb] + 4 * kk, 4)}, {vr(QV + 16 * t + 4 * kk, 4)}, {C}")
        return o

    def mix(mf, fill):
        n = len(mf)
        o = []
        for i, m in enumerate(mf):
            o.append(m)
            o += fill[(i * len(fill)) // n:((i + 1) * len(fill)) // n]
        A.ext(tidy(o) if OPT['tidy'] else o)

    flat = lambda ps: [x for p in ps for x in p]
    pro_rd = [x for x in pro if is_ds(x)]
    pro_sm = [x for x in pro if not is_ds(x)]
    A.ext(conv(0, 2) + flat(late[0:2]) + conv(0, 3))
    A("s_waitcnt lgkmcnt(0)")
    mix(qk0(0, 0, False) + qk0(0, 1, False), conv(1, 2) + conv(2, 2) + conv(3, 2) + flat(late[2:4]))
    mix(qk0(0, 2, False), conv(1, 3) + conv(2, 3) + conv(3, 3))
    A("s_nop 0")
    A.ext(qk0(0, 3, False))
    A.ext(loop_addr())
    A.ext(pro_rd)
    A.ext(flat(late[4:6]))
    for t in range(5):
        Sx = Sreg(t, 0)
        A(f"v_max3_f32 v{vM + t}, v{Sx}, v{Sx + 1}, v{Sx + 2}")
    for t in range(5):
        A(f"v_max_f32 v{vM + t}, v{vM + t}, v{Sreg(t, 0) + 3}")

    def xlane5(Z, op, base, tmp):
        for sw in ("v_permlane32_swap_b32", "v_permlane16_swap_b32"):
            for t in range(5):
                Z(f"v_mov_b32 v{tmp + t}, v{base + t}")
            for t in range(5):
                Z(f"{sw} v{base + t}, v{tmp + t}")
            for t in range(5):
                Z(f"{op} v{base + t}, v{base + t}, v{tmp + t}")

    xlane5(A, "v_max_f32", vM, vM + 8)
    for t in range(5):
        for i in range(4):
            A(f"v_sub_f32 v{NEG + 4 * t + i}, 0, v{vM + t}")
    subs = [f"v_sub_f32 v{Sreg(t, 0) + i}, v{Sreg(t, 0) + i}, v{vM + t}" for t in range(5) for i in range(4)]
    kb0regs = {Sreg(t, 0) + i for t in range(5) for i in range(4)}

    def srcs(x):
        return [int(z.strip()[1:]) for z in x.split(None, 1)[1].split(",")[1:]]
    sm0 = [x for x in pro_sm if all(r in kb0regs for r in srcs(x))]
    sm1 = [x for x in pro_sm if x not in sm0]

    def safe(lst):
        o, prev = [], ""
        for x in lst:
            if prev.startswith("v_exp") and x.startswith("v_cvt"):
                o.append("s_nop 0")
            o.append(x)
            prev = x
        return o
    A.ext(flat(late[6:8]))
    mix(flat([qk0(1, kk, True) for kk in range(4)]), subs + safe(sm0))
    A("s_nop 3")
    A.label("L1_presm")
    A.ext(safe(sm1))
    A("s_waitcnt lgkmcnt(0)")
    stamp(A)
    if OPT["dspin"]:
        A("s_memrealtime s[64:65]")
    A.raw(".p2align 6")
    A.label("L1_loop")
    if OPT["diag"]:
        A(f"s_mov_b32 m0, s41")
        A("s_sub_u32 s41, s41, 1")
        A("v_writelane_b32 v250, s90, m0")
        A("v_writelane_b32 v251, s96, m0")
        A("s_memtime s[90:91]")
        A("s_memrealtime s[96:97]")
    A.ext(body)
    A("s_branch L1_loop")
    errs = hazard.check(body + body, "loop")
    side_block(A)
    A.label("L1_tail")
    T0 = len(A.l)
    if OPT["dspin"]:
        A("s_memrealtime s[66:67]")
    stamp(A)
    tail_rd = [x for x in tail if is_ds(x)]
    tail_sm = [x for x in tail if not is_ds(x)]
    A.ext(tail_rd)
    A.ext(safe(tail_sm))
    A(f"s_add_u32 s{sT0}, s{sWOF}, {TS * HS}")
    A(f"v_lshl_add_u32 v{t0}, v0, 4, s{sT0}")
    A("s_waitcnt lgkmcnt(0)")
    ones = [f"{MF} {ar(LA + 4 * t, 4)}, {ar(ONES, 4)}, {vr(Sreg(t, 1), 4)}, {ar(LA + 4 * t, 4)}" for t in range(4)]

    def pv(t):
        return [f"{MF} {ar(OA + 32 * t + 4 * dt, 4)}, {ar(RING + 32 + 4 * dt, 4)}, {vr(Sreg(t, 1), 4)}, {ar(OA + 32 * t + 4 * dt, 4)}"
                for dt in range(8)]
    wr = [f"ds_write_b128 v{t0}, {ar(OA + 128 + 4 * i, 4)} offset:{(i // 4) * HS + (i % 4) * 1024}" for i in range(8)]
    misc = [f"v_lshlrev_b32 v{t2}, 4, v0",
            f"s_mul_i32 s{sOO}, s{sB}, 18", f"s_lshl_b32 s{sT0}, s{sW}, 2", f"s_add_u32 s{sT0}, s{sT0}, s{sOO}",
            f"s_mul_i32 s{sT0}, s{sT0}, {QP}", f"s_lshr_b32 s{sKN}, s{sH}, 3", f"s_mul_i32 s{sKN}, s{sKN}, {OPT['gpad']}",
            f"s_lshl_b32 s{sVN}, s{sH}, 12", f"s_add_u32 s{sKN}, s{sKN}, s{sVN}", f"s_add_u32 s{sT0}, s{sT0}, s{sKN}",
            f"s_lshl_b32 s{sT1}, s{sW}, 10", f"s_add_u32 s{sT1}, s{sT1}, {STATS}", f"v_lshl_add_u32 v{t1}, v0, 4, s{sT1}"]
    mix(ones + pv(0), wr + misc)
    Lr = 114
    st = [f"v_accvgpr_read_b32 v{Lr + t}, a{LA + 4 * t}" for t in range(5)]
    st += [f"v_add_f32 v128, v{Lr}, v{Lr + 1}", f"v_add_f32 v129, v{Lr + 2}, v{Lr + 3}", f"v_add_f32 v128, v128, v{Lr + 4}",
           f"v_add_f32 v128, v128, v129", f"v_mov_b32 v129, {f32bits(2.0 ** OPT['thr']):#x}", f"v_cmp_nlt_f32 vcc, v128, v129",
           f"v_mov_b32 v132, v{Lr + 4}", f"v_mov_b32 v133, v{NEG + 16}", f"v_mov_b32 v135, 0", f"v_cndmask_b32 v134, 0, 1, vcc",
           f"ds_write_b128 v{t1}, {vr(132, 4)}"]
    st += [f"v_rcp_f32 v{120 + 2 * t}, v{Lr + t}" for t in range(4)]
    mix(pv(1), st)
    ofl = FLAGS[OPT["ostflag"]]

    def norm_store(t, tmp, pk):
        o = []
        if t:
            o.append(f"s_add_u32 s{sT0}, s{sT0}, {QP}")
        for s in range(4):
            b = tmp + 8 * s
            for e in range(8):
                o.append(f"v_accvgpr_read_b32 v{b + e}, a{OA + 32 * t + 8 * s + e}")
            if pk:
                for e in range(4):
                    o.append(f"v_pk_mul_f32 {vr(b + 2 * e, 2)}, {vr(b + 2 * e, 2)}, {vr(120 + 2 * t, 2)} op_sel_hi:[1,0]")
            else:
                for e in range(8):
                    o.append(f"v_mul_f32 v{b + e}, v{120 + 2 * t}, v{b + e}")
            for e in range(4):
                o.append(f"v_cvt_pk_bf16_f32 v{b + e}, v{b + 2 * e}, v{b + 2 * e + 1}")
            of = f" offset:{s * 1024}" if s else ""
            o.append(f"buffer_store_dwordx4 {vr(b, 4)}, v{t2}, {srd(SRD_O)}, s{sT0} offen{of}{ofl}"
                     + (f" | buffer_store_dwordx4 {vr(b, 4)}, v{t2}, {srd(SRD_O)}, s{sT0} offen{of}" if OPT["dst"] else ""))
        return o

    n0 = norm_store(0, 16, False)
    mix(pv(2) + pv(3), n0[:42])
    A.ext(norm_store(0, 16, True)[34:])
    A("s_waitcnt lgkmcnt(0)")
    A("s_barrier")
    A(f"s_and_b32 s{sT1}, s{sW}, 2")
    A(f"s_mul_i32 s{sT1}, s{sT1}, {4 * BLK}")
    A(f"s_mul_i32 s{sT2}, s{sP}, {HS}")
    A(f"s_add_u32 s{sT1}, s{sT1}, s{sT2}")
    A(f"s_add_u32 s{sT1}, s{sT1}, {TS * HS}")
    A(f"v_lshl_add_u32 v{t0}, v0, 4, s{sT1}")
    A(f"s_and_b32 s{sT1}, s{sW}, 2")
    A(f"s_lshl_b32 s{sT1}, s{sT1}, 10")
    A(f"v_lshl_add_u32 v{t1}, v0, 4, s{sT1}")
    A(f"v_xor_b32 v1, 2048, v{t1}")
    A(f"v_add_u32 v{t1}, {STATS}, v{t1}")
    A(f"v_add_u32 v1, {STATS}, v1")
    A(f"ds_read_b128 {vr(88, 4)}, v{t1}")
    A(f"ds_read_b128 {vr(92, 4)}, v{t1} offset:1024")
    A(f"ds_read_b128 {vr(96, 4)}, v1")
    A(f"ds_read_b128 {vr(100, 4)}, v1 offset:1024")
    for w in range(2):
        for q in range(4):
            A(f"ds_read_b128 {vr(128 + 16 * w + 4 * q, 4)}, v{t0} offset:{w * 4 * BLK + q * 1024}")
    A.ext(norm_store(1, 48, True))
    A("s_waitcnt lgkmcnt(0)")
    A("v_or3_b32 v104, v90, v94, v98")
    A("v_or_b32 v104, v104, v102")
    A("v_cmp_ne_u32 vcc, 0, v104")
    A("v_min_f32 v105, v89, v93")
    A("v_sub_f32 v89, v105, v89")
    A("v_sub_f32 v93, v105, v93")
    A("v_exp_f32 v89, v89")
    A("v_exp_f32 v93, v93")
    A(f"s_cmp_lg_u64 vcc, 0")
    A(f"s_cselect_b32 s{sT1}, 1, 0")
    A(f"s_cmp_gt_u32 s{sT1}, s{sREDO}")
    A("s_cbranch_scc1 L1_redo")
    A("v_mul_f32 v105, v88, v89")
    A("v_fmac_f32 v105, v92, v93")
    A("v_rcp_f32 v105, v105")
    A(f"s_lshr_b32 s{sT1}, s{sW}, 1")
    A(f"s_add_u32 s{sT1}, s{sT1}, s{sOO}")
    A(f"s_add_u32 s{sT1}, s{sT1}, 16")
    A(f"s_mul_i32 s{sT1}, s{sT1}, {QP}")
    A(f"s_add_u32 s{sT1}, s{sT1}, s{sKN}")
    A(f"s_lshl_b32 s{sT2}, s{sP}, 11")
    A(f"s_add_u32 s{sT1}, s{sT1}, s{sT2}")
    A("v_mul_f32 v89, v105, v89")
    A("v_mul_f32 v93, v105, v93")
    for e in range(16):
        A(f"v_mul_f32 v{128 + e}, v89, v{128 + e}")
    for e in range(16):
        A(f"v_fmac_f32 v{128 + e}, v93, v{144 + e}")
    for e in range(8):
        A(f"v_cvt_pk_bf16_f32 v{144 + e}, v{128 + 2 * e}, v{128 + 2 * e + 1}")
    for q in range(2):
        of = " offset:1024" if q else ""
        A(f"buffer_store_dwordx4 {vr(144 + 4 * q, 4)}, v{t2}, {srd(SRD_O)}, s{sT1} offen{of}{ofl}")
        if OPT["dst"]:
            A(f"buffer_store_dwordx4 {vr(144 + 4 * q, 4)}, v{t2}, {srd(SRD_O)}, s{sT1} offen{of}")
    rest = norm_store(2, 16, True) + norm_store(3, 48, True)
    if OPT["fuse"]:
        p3(A, rest)
    else:
        A.ext(rest)
    gx = [i for i, x in enumerate(body) if "L1_side" in x][0]
    errs += hazard.check(body[:gx + 1] + A.l[T0:T0 + 60], "exit")
    if OPT["diag"]:
        if not OPT["fuse"]:
            stamp(A)
        A("s_waitcnt vmcnt(0)")
        stamp(A)
        A("s_memrealtime s[94:95]")
        A("s_waitcnt lgkmcnt(0)")
        A("v_writelane_b32 v250, s92, 62")
        A("v_writelane_b32 v250, s94, 63")
        for i in range(stamp_n[0]):
            A(f"v_writelane_b32 v250, s{sST + 2 * i}, {50 + i}")
        A("v_writelane_b32 v250, s90, 32")
        A("v_writelane_b32 v251, s96, 32")
        A(f"s_lshl_b32 s{sT0}, s2, 2")
        A(f"s_add_u32 s{sT0}, s{sT0}, s{sW}")
        A(f"s_lshl_b32 s{sT0}, s{sT0}, 8")
        A(f"s_add_u32 s{sT0}, s{sT0}, {DIAG_OFF}")
        A(f"v_lshlrev_b32 v{t0}, 2, v0")
        A(f"buffer_store_dword v250, v{t0}, {srd(SRD_O)}, s{sT0} offen")
        A(f"s_add_u32 s{sT0}, s{sT0}, {1 << 19}")
        A(f"buffer_store_dword v251, v{t0}, {srd(SRD_O)}, s{sT0} offen")
        if OPT["fuse"]:
            for i in range(3):
                A(f"v_writelane_b32 v251, s{78 + 2 * i}, {i}")
            A("v_writelane_b32 v251, s94, 3")
            A(f"s_add_u32 s{sT0}, s{sT0}, {1 << 19}")
            A(f"buffer_store_dword v251, v{t0}, {srd(SRD_O)}, s{sT0} offen")
            if OPT["dbg"]:
                for ln, src in ((4, 30), (5, 22), (6, 14), (7, 32)):
                    A(f"v_readlane_b32 s{sT1}, v251, {src}")
                    A("s_nop 3")
                    A(f"v_writelane_b32 v251, s{sT1}, {ln}")
                A("v_subrev_u32 v251, s92, v251")
                A(f"v_lshlrev_b32 v{t0}, 3, v0")
                A("s_cmp_ge_u32 s2, 216")
                A("s_cbranch_scc1 L1_end")
                A("s_mov_b64 exec, 0xff")
                A(f"buffer_atomic_umax v251, v{t0}, {srd(SRD_W)}, 0 offen offset:4")
    if OPT["dspin"]:
        A("s_waitcnt vmcnt(0)")
        A("s_memrealtime s[68:69]")
        A("s_waitcnt lgkmcnt(0)")
        a_, b_ = {1: (62, 62), 2: (64, 62), 3: (66, 64), 4: (68, 66)}[OPT["dspin"]]
        A(f"s_sub_u32 s70, s{a_}, s{b_}")
        A("s_add_u32 s70, s70, 20000")
        A.label("L1_ds")
        A("s_memrealtime s[72:73]")
        A("s_waitcnt lgkmcnt(0)")
        A("s_sub_u32 s71, s72, s62")
        A("s_cmp_lt_u32 s71, s70")
        A("s_cbranch_scc1 L1_ds")
    A.label("L1_end")
    A("s_endpgm")
    A.label("L1_redo")
    A(f"s_mov_b32 s{sREDO}, 1")
    A("s_waitcnt vmcnt(0) lgkmcnt(0)")
    A("s_barrier")
    A("s_load_dwordx4 s[32:35], s[0:1], 8")
    A(f"s_lshl_b32 s{sT1}, s{sB}, 5")
    A(f"s_add_u32 s{sT1}, s{sT1}, s{sH}")
    A(f"s_lshl_b32 s{sT1}, s{sT1}, 19")
    A("s_waitcnt lgkmcnt(0)")
    A(f"s_add_u32 s{SRD_K}, s32, s{sT1}")
    A(f"s_addc_u32 s{SRD_K + 1}, s33, 0")
    A(f"s_mov_b32 s{SRD_K + 2}, 524288")
    A(f"s_add_u32 s{SRD_V}, s34, s{sT1}")
    A(f"s_addc_u32 s{SRD_V + 1}, s35, 0")
    A(f"s_mov_b32 s{SRD_V + 2}, 524288")
    dma_regs(A)
    for n in range(2 * DD):
        for p in P(n):
            A.ext(p)
    for t in range(5):
        A(f"v_mov_b32 v{vM + t}, 0xff800000")
    A(f"v_lshlrev_b32 v{t0}, 8, v{i16}")
    A(f"v_lshl_add_u32 v{t0}, v{g4}, 4, v{t0}")
    A(f"s_lshl_b32 s{sT1}, s{sP}, 7")
    A(f"v_add_u32 v{t0}, s{sT1}, v{t0}")
    A(f"v_xor_b32 v{t1}, 128, v{t0}")
    A(f"s_mov_b32 s{sT1}, 0")
    A.label("L1_mx")
    for kk in range(4):
        o = f" offset:64" if kk & 1 else ""
        A(f"buffer_load_dwordx4 {vr(136 + 4 * kk, 4)}, v{t0 + (kk >> 1)}, {srd(SRD_K)}, s{sT1} offen{o}")
    A("s_waitcnt vmcnt(0)")
    for kk in range(4):
        for t in range(5):
            C = "0" if kk == 0 else vr(16 + 4 * t, 4)
            A(f"{MF} {vr(16 + 4 * t, 4)}, {vr(136 + 4 * kk, 4)}, {vr(QV + 16 * t + 4 * kk, 4)}, {C}")
    A("s_nop 7")
    for t in range(5):
        A(f"v_max3_f32 v{vM + t}, v{vM + t}, v{16 + 4 * t}, v{17 + 4 * t}")
        A(f"v_max3_f32 v{vM + t}, v{vM + t}, v{18 + 4 * t}, v{19 + 4 * t}")
    A(f"s_add_u32 s{sT1}, s{sT1}, 4096")
    A(f"s_cmp_lt_u32 s{sT1}, {4096 if OPT['twice'] else 524288}")
    A("s_cbranch_scc1 L1_mx")
    xlane5(A, "v_max_f32", vM, vM + 8)
    for t in range(5):
        for i in range(4):
            A(f"v_sub_f32 v{NEG + 4 * t + i}, 0, v{vM + t}")
    for i in range(180):
        A(f"v_accvgpr_write_b32 a{i}, 0")
    A.ext(loop_addr())
    loop_scalars(A)
    A("s_barrier")
    A.ext(k0reads)
    A("s_waitcnt lgkmcnt(0)")
    for kb in range(2):
        for kk in range(4):
            A.ext(qk0(kb, kk, True))
    A.ext(pro_rd)
    A("s_nop 7")
    A.ext(safe(sm0))
    A("s_branch L1_presm")
    return errs


def k2(A):
    DEP = 4
    SRD_A, SRD_WO, SRD_OUT = 4, 8, 12
    sW, sMT, sNT, sT0, sT1, sAS, sBS, sLD, sCNT = 16, 17, 18, 19, 20, 21, 22, 23, 24
    vA, vBD, vBR, t0, t1 = 2, 8, 9, 13, 14
    ACC2, ORING, WF = 16, 112, 208
    A.raw(".p2align 8")
    A.raw(".globl oproj_kernel")
    A.raw(".type oproj_kernel,@function")
    A.label("oproj_kernel")
    A(f"s_cmp_ge_u32 s2, {OPT['k2grid']}")
    A("s_cbranch_scc1 L2_end")
    A("s_load_dwordx4 s[32:35], s[0:1], 32")
    A("s_load_dwordx2 s[36:37], s[0:1], 56")
    if OPT["diag"]:
        A("s_memrealtime s[60:61]")
    A("v_lshrrev_b32 v1, 6, v0")
    A("v_and_b32 v0, 63, v0")
    A(f"v_readfirstlane_b32 s{sW}, v1")
    A("s_and_b32 s25, s2, 7")
    A("s_lshr_b32 s26, s2, 3")
    A(f"s_mul_i32 s{sNT}, s26, 43")
    A(f"s_lshr_b32 s{sNT}, s{sNT}, 7")
    A(f"s_mul_i32 s{sT0}, s{sNT}, 3")
    A(f"s_sub_u32 s{sT0}, s26, s{sT0}")
    A(f"s_mul_i32 s{sMT}, s25, 3")
    A(f"s_add_u32 s{sMT}, s{sMT}, s{sT0}")
    A(f"v_lshlrev_b32 v{vA}, 4, v0")
    for i in range(1, 6):
        A(f"v_add_u32 v{vA + i}, {i * 131072}, v{vA}")
    A(f"v_lshrrev_b32 v{t0}, 3, v0")
    A(f"v_mul_u32_u24 v{vBD}, 1152, v{t0}")
    A(f"v_lshrrev_b32 v{t0}, 4, v0")
    A(f"v_lshlrev_b32 v{t0}, 1, v{t0}")
    A(f"v_and_b32 v{t1}, 7, v0")
    A(f"v_xor_b32 v{t0}, v{t0}, v{t1}")
    A(f"v_lshl_add_u32 v{vBD}, v{t0}, 4, v{vBD}")
    A(f"v_lshrrev_b32 v{t0}, 2, v0")
    A(f"v_lshlrev_b32 v{vBR}, 7, v{t0}")
    A(f"v_bfe_u32 v{t0}, v0, 3, 2")
    A(f"v_lshl_add_u32 v{vBR}, v{t0}, 5, v{vBR}")
    A(f"v_and_b32 v{t0}, 3, v0")
    A(f"v_lshl_add_u32 v{vBR}, v{t0}, 3, v{vBR}")
    A(f"s_mul_i32 s{sLD}, s{sW}, {DEP * 4096}")
    A(f"v_add_u32 v{vBR}, s{sLD}, v{vBR}")
    for n in range(1, 4):
        A(f"v_xor_b32 v{vBR + n}, {32 * n}, v{vBR}")
    A("s_waitcnt lgkmcnt(0)")
    A(f"s_mov_b32 s{SRD_A}, s36")
    A(f"s_mov_b32 s{SRD_A + 1}, s37")
    A(f"s_mov_b32 s{SRD_A + 2}, {(DIAG_OFF + (2 << 20)) if OPT['diag'] else WS_O_BYTES}")
    A(f"s_mov_b32 s{SRD_A + 3}, 0x20000")
    A(f"s_mov_b32 s{SRD_WO}, s32")
    A(f"s_mov_b32 s{SRD_WO + 1}, s33")
    A(f"s_mov_b32 s{SRD_WO + 2}, {4096 * 1152}")
    A(f"s_mov_b32 s{SRD_WO + 3}, 0x20000")
    A(f"s_mov_b32 s{SRD_OUT}, s34")
    A(f"s_mov_b32 s{SRD_OUT + 1}, s35")
    A(f"s_mov_b32 s{SRD_OUT + 2}, {2304 * 1152}")
    A(f"s_mov_b32 s{SRD_OUT + 3}, 0x20000")
    A(f"s_mul_i32 s{sAS}, s{sMT}, 786432")
    A(f"s_lshl_b32 s{sT0}, s{sW}, 15")
    A(f"s_add_u32 s{sAS}, s{sAS}, s{sT0}")
    A(f"s_mul_i32 s{sBS}, s{sW}, {1024 * 1152}")
    A(f"s_lshl_b32 s{sT0}, s{sNT}, 7")
    A(f"s_add_u32 s{sBS}, s{sBS}, s{sT0}")
    WN = OPT["k2rot"]
    sA0, sB0, sPH, sI = 27, 28, 29, 30

    def blk_addr():
        return [f"s_add_u32 s{sT1}, s{sI}, s{sPH}", f"s_and_b32 s{sT1}, s{sT1}, {WN - 1}",
                f"s_and_b32 s31, s{sI}, {(~(WN - 1)) & 0xff}", f"s_or_b32 s{sT1}, s{sT1}, s31",
                f"s_mul_i32 s{sBS}, s{sT1}, {DEP * 32 * 1152}", f"s_add_u32 s{sBS}, s{sBS}, s{sB0}",
                f"s_lshl_b32 s{sAS}, s{sT1}, 12", f"s_add_u32 s{sAS}, s{sAS}, s{sA0}", f"s_add_u32 s{sI}, s{sI}, 1"]
    A(f"s_mov_b32 s{sA0}, s{sAS}")
    A(f"s_mov_b32 s{sB0}, s{sBS}")
    A(f"s_mul_i32 s{sPH}, s{sMT}, {OPT['k2mul']}")
    A(f"s_add_u32 s{sPH}, s{sPH}, s{sNT}")
    A(f"s_mov_b32 s{sI}, 0")
    A.ext(blk_addr())

    def loads(d):
        o = []
        for i in range(4):
            o.append([f"s_add_u32 m0, s{sLD}, {d * 4096 + i * 1024}",
                      f"s_add_u32 s{sT0}, s{sBS}, {(32 * d + 8 * i) * 1152}",
                      f"buffer_load_dwordx4 v{vBD}, {srd(SRD_WO)}, s{sT0} offen lds"])
        off = f" offset:{d * 1024}" if d else ""
        for i in range(6):
            o.append([f"buffer_load_dwordx4 {vr(ORING + 24 * d + 4 * i, 4)}, v{vA + i}, {srd(SRD_A)}, s{sAS} offen{off}"])
        return o

    def wreads(d):
        b = WF + 16 * (d % 2)
        return [f"ds_read_b64_tr_b16 {vr(b + 4 * n + 2 * e, 2)}, v{vBR + n} offset:{d * 4096 + e * 2048}"
                for n in range(4) for e in range(2)]

    zi = 0
    for d in range(DEP - 1):
        for g in loads(d):
            A.ext(g)
            for _ in range(4):
                if zi < 96:
                    A(f"v_mov_b32 v{ACC2 + zi}, 0")
                    zi += 1
    assert zi == 96
    A(f"s_mov_b32 s{sCNT}, {32 // DEP}")
    A(f"s_waitcnt vmcnt({10 * (DEP - 2) + 6})")
    if OPT["diag"]:
        A("s_memrealtime s[62:63]")
    A.ext(wreads(0))
    A.label("L2_loop")
    body = []
    Bd = body.append
    for d in range(DEP):
        Bd(f"s_waitcnt vmcnt({10 * (DEP - 3) + 6})")
        body += wreads((d + 1) % DEP)
        Bd("s_waitcnt lgkmcnt(8)")
        b = WF + 16 * (d % 2)
        ld = loads((d - 1) % DEP)
        k = 0
        for n in range(4):
            for i in range(6):
                acc = vr(ACC2 + 4 * (6 * n + i), 4)
                Bd(f"{MF} {acc}, {vr(b + 4 * n, 4)}, {vr(ORING + 24 * d + 4 * i, 4)}, {acc}")
                k += 1
                if ld and k % 2 == 0:
                    body += ld.pop(0)
        if d == 0:
            body += blk_addr()
            Bd(f"s_cmp_eq_u32 s{sCNT}, 1")
            Bd(f"s_cselect_b32 s{sAS}, 0x40000000, s{sAS}")
            Bd(f"s_cselect_b32 s{sBS}, 0x40000000, s{sBS}")
    Bd(f"s_sub_u32 s{sCNT}, s{sCNT}, 1")
    Bd(f"s_cmp_lg_u32 s{sCNT}, 0")
    A.ext(body)
    A("s_cbranch_scc1 L2_loop")
    errs = hazard.check(body + body, "k2loop")
    if OPT["diag"]:
        A("s_memrealtime s[64:65]")
    A("s_waitcnt vmcnt(0) lgkmcnt(0)")
    A("s_barrier")
    A(f"s_mul_i32 s{sT0}, s{sW}, 24576")
    A(f"v_lshl_add_u32 v{t0}, v0, 4, s{sT0}")
    A("s_nop 7")
    for q in range(24):
        A(f"ds_write_b128 v{t0}, {vr(ACC2 + 4 * q, 4)} offset:{q * 1024}")
    A(f"v_and_b32 v{t0}, 15, v0")
    A(f"v_lshlrev_b32 v{t0}, 4, v{t0}")
    A(f"v_bfe_u32 v{t1}, v0, 4, 1")
    A(f"v_lshl_add_u32 v{t0}, v{t1}, 9, v{t0}")
    A(f"v_lshrrev_b32 v{t1}, 5, v0")
    A(f"v_lshl_add_u32 v{t0}, v{t1}, 10, v{t0}")
    A(f"s_mul_i32 s{sT0}, s{sW}, {6 * 1024}")
    A(f"v_add_u32 v{t0}, s{sT0}, v{t0}")
    A(f"v_add_u32 v{t1}, 49152, v{t0}")
    A("s_waitcnt lgkmcnt(0)")
    A("s_barrier")
    for w in range(4):
        for x in range(3):
            for q in range(2):
                A(f"ds_read_b128 {vr(ORING + 24 * w + 8 * x + 4 * q, 4)}, v{t0 if w < 2 else t1} offset:{(w % 2) * 24576 + x * 2048 + q * 256}")
        if w % 2 == 1:
            A("s_waitcnt lgkmcnt(0)")
    for w in range(1, 4):
        for e in range(24):
            A(f"v_add_f32 v{ORING + e}, v{ORING + e}, v{ORING + 24 * w + e}")
    for e in range(12):
        A(f"v_cvt_pk_bf16_f32 v{ACC2 + e}, v{ORING + 2 * e}, v{ORING + 2 * e + 1}")
    A(f"v_and_b32 v{t0}, 15, v0")
    A(f"v_lshrrev_b32 v{t1}, 5, v0")
    A(f"v_lshl_add_u32 v{t0}, v{t1}, 4, v{t0}")
    A(f"v_mul_u32_u24 v{t0}, 1152, v{t0}")
    A(f"v_bfe_u32 v{t1}, v0, 4, 1")
    A(f"v_lshl_add_u32 v{t0}, v{t1}, 4, v{t0}")
    A(f"s_mul_i32 s{sAS}, s{sMT}, {96 * 1152}")
    A(f"s_lshl_b32 s{sT0}, s{sNT}, 7")
    A(f"s_add_u32 s{sAS}, s{sAS}, s{sT0}")
    A(f"s_lshl_b32 s{sT0}, s{sW}, 5")
    A(f"s_add_u32 s{sAS}, s{sAS}, s{sT0}")
    for x in range(3):
        A(f"buffer_store_dwordx4 {vr(ACC2 + 4 * x, 4)}, v{t0}, {srd(SRD_OUT)}, s{sAS} offen")
        A(f"s_add_u32 s{sAS}, s{sAS}, {32 * 1152}")
    if OPT["diag"]:
        A("s_waitcnt vmcnt(0)")
        A("s_memrealtime s[66:67]")
        A("s_waitcnt lgkmcnt(0)")
        for i in range(4):
            A(f"v_writelane_b32 v250, s{60 + 2 * i}, {i}")
        A(f"s_lshl_b32 s{sT0}, s2, 2")
        A(f"s_add_u32 s{sT0}, s{sT0}, s{sW}")
        A(f"s_lshl_b32 s{sT0}, s{sT0}, 8")
        A(f"s_add_u32 s{sT0}, s{sT0}, {DIAG_OFF + (1 << 20)}")
        A(f"v_lshlrev_b32 v{t0}, 2, v0")
        A(f"buffer_store_dword v250, v{t0}, {srd(SRD_A)}, s{sT0} offen")
    A.label("L2_end")
    A("s_endpgm")
    return errs


def desc(name, vg, acc, sg=102):
    return f""".p2align 6
.amdhsa_kernel {name}
  .amdhsa_next_free_vgpr {vg}
  .amdhsa_next_free_sgpr {sg}
  .amdhsa_accum_offset {acc}
  .amdhsa_group_segment_fixed_size 0
  .amdhsa_kernarg_size 64
  .amdhsa_user_sgpr_count 2
  .amdhsa_user_sgpr_kernarg_segment_ptr 1
  .amdhsa_system_sgpr_workgroup_id_x 1
.end_amdhsa_kernel
"""


def main():
    A = Asm()
    e = k1(A)
    if not OPT["fuse"]:
        e += k2(A)
    A.label("L_code_end")
    e += hazard.check(A.l, "linear")
    for x in e:
        print(x, file=sys.stderr)
    hdr = f"""; Fused MHA block (q-proj + attention) and output projection, gfx950. Generated by a script.
; kernarg: x, k_cache, v_cache, wq, wo, out, debug, ws
; @launch kernel=attn_kernel grid=(256,1,1) block=(256,1,1) lds={LDS1}
{";" if OPT["fuse"] else "; @launch kernel=oproj_kernel grid=(216,1,1) block=(256,1,1) lds=98304"}
.amdgcn_target "amdgcn-amd-amdhsa--gfx950"
.text
.globl attn_kernel
"""
    txt = hdr + "\n".join(A.l) + "\n.section .rodata,\"a\"\n" + desc("attn_kernel", 512, 256) + ("" if OPT["fuse"] else desc("oproj_kernel", 256, 256))
    open(sys.argv[1], "w").write(txt)
    if e and not (OPT["nodma"] or OPT["nomf"]):
        sys.exit(1)


main()
```

```python
import math
import struct
import sys

import hazard

OPT = dict(diag=0, L=6, W=2, xmap=1, nodma=0, nobar=0, kvflag=1, ostflag=2, wopf=2, wsh=8,
           k2grid=216, LQ=6, dmastep=6, thr=40, show=0, qstep=5, up=2, qpflag=0, dbg=0, cpf=1, nph=5, k2rot=1, D=3, pf=0, stg=0, pfa=4, kvs=0, rot=0, k2mul=1, fuse=1, dst=0, DO=4, oflag=2, early=5, l2pf=0, fast=1, wsoff=0, twice=0, nomf=0, pad=0, tlb=0, eord=0, fine=0, wflag=0, p3same=0, chain=1, LG=30, LM=12, SO=4, gB=21, vm2=1, bcap=0, tidy=1, x6d=0, outflag=0, pre=4, slp=4, ppos=4, wpre=9, qpad=4352, gpad=1152, dspin=0, helper=0, hA=6, ho=4, post=0, tail2=1)
for a in sys.argv[2:]:
    k, v = a.split("=")
    OPT[k] = int(v)
FLAGS = ['', ' nt', ' sc1', ' sc0 sc1', ' sc1 nt', ' sc0 sc1 nt', ' sc0']

BLK = 1056
HS = 16 * BLK
DD = OPT['D']
NS = 2 * DD + 1
TS = 7
STATS = 9 * HS
assert DD == 3
XB = 1088
WOFF, XEOFF, XOFF = 0, 17408, 21504
WG0 = 4 * XB + OPT["wsh"]
WG1 = 8720
STSZ = 54272
LDS1 = 163840
GP = 32768 + OPT['gpad']
QP = 4 * GP + OPT['qpad']
WS_O_BYTES = 144 * QP
DIAG_OFF = 64 << 20


def f32bits(x):
    return struct.unpack("<I", struct.pack("<f", x))[0]


QSCALE = f32bits(128 ** -0.5 * math.log2(math.e))


class Asm:
    def __init__(self):
        self.l = []

    def __call__(self, s):
        if " | buffer_store" in s:
            for x in s.split(" | "):
                self.l.append("    " + x)
        else:
            self.l.append("    " + s)

    def label(self, s):
        self.l.append(s + ":")

    def raw(self, s):
        self.l.append(s)

    def ext(self, lst):
        for s in lst:
            self(s)


def vr(a, n):
    return f"v[{a}:{a + n - 1}]"


def ar(a, n):
    return f"a[{a}:{a + n - 1}]"


def srd(n):
    return f"s[{n}:{n + 3}]"


MF = "v_mfma_f32_16x16x32_bf16"

SRD_X, SRD_W, SRD_K, SRD_V, SRD_O, SRD_P = 4, 8, 12, 16, 20, 84
sW, sP, sB, sH = 24, 25, 27, 28
sXD, sXS, sWD, sWS, sT0, sT1 = 42, 43, 44, 45, 46, 47
sXED, sXES = 48, 55
sCNT = 49
sKD, sVD, sKVS, sKN, sVN = 50, 51, 52, 53, 54
sSC = 56
sT2 = 57
sOUTP = 32
sWP = 30
sG0 = 31
sDV = 3
sOO = 58
sREDO = 59
sST = 60
sWOF = 88
sCX, sCW = 89, 100
sPC = 98
sXSc, sWSc, sXEc = 29, 26, 101

vXD, vXDE, vWD, vCW, vV4 = 2, 4, 5, 6, 8
vQA = 160
ACC = 16
SB = [16, 48]
SE = 80
NEG = 88
QV = 160
vKB, vVB = 240, 244
vK, vV = 108, 112
vM = 120
vDUM = 252
OA, LA, ONES, RING = 0, 160, 180, 192
XF = [184, 204]
WRING = 224


def Sreg(t, par):
    return SE if t == 4 else SB[par] + 8 * t


stamp_n = [0]


def stamp_txt():
    if OPT["diag"] == 1:
        n = stamp_n[0]
        stamp_n[0] += 1
        assert n < 12
        return [f"s_memtime s[{sST + 2 * n}:{sST + 2 * n + 1}]"]
    return []


def stamp(A):
    A.ext(stamp_txt())


def is_ds(x):
    return x.startswith("ds_")


def add_waits(seq, cyclic, W=1, nfr=None):
    rep = 2 if cyclic else 1
    out = []
    issued = 0
    done = 0
    last = {}
    for it in range(rep):
        out = []
        for e in seq:
            if e[0] == "x":
                if is_ds(e[1]):
                    issued += 1
                    if e[2] is not None:
                        last[e[2]] = issued
                if "lgkmcnt(0)" in e[1] or e[1] == "VMW":
                    done = issued
                out.append(e[1])
            else:
                need = 0
                for f in e[2]:
                    if f in last:
                        need = max(need, last[f])
                if need > done:
                    tgt = need
                    for f in e[3] if len(e) > 3 else []:
                        if f in last and last[f] > need - 40:
                            tgt = max(tgt, last[f])
                    n = issued - tgt
                    assert n <= 15, n
                    out.append(f"s_waitcnt lgkmcnt({n})")
                    done = tgt
                if e[1] is not None:
                    out.append(e[1])
    return out


vD = 246
sINC = 60 if not OPT["diag"] else 26
sKP = 64 if not OPT["diag"] else 34


def tidy(lst):
    import re
    out, gap = [], []

    def flush(seen_mfma):
        g = list(gap)
        gap.clear()
        if not seen_mfma or any(x.startswith(("s_barrier", "s_cbranch", "s_branch")) or x.endswith(":") for x in g):
            return g
        if g and re.fullmatch(r"s_waitcnt lgkmcnt\(\d+\)", g[-1]) and not any("waitcnt" in x for x in g[:-1]):
            n = int(g[-1][18:-1]) - sum(is_ds(x) for x in g[:-1])
            if n >= 0:
                g = [f"s_waitcnt lgkmcnt({n})"] + g[:-1]
        ch = True
        while ch:
            ch = False
            for i in range(len(g) - 1):
                a, b = g[i], g[i + 1]
                if a.startswith("v_") and b.startswith(("ds_", "s_add", "s_mov", "s_lshl", "s_mul", "s_sub", "s_min", "s_and")):
                    ia, ib = hazard.I(a), hazard.I(b)
                    if not (ia.w & (ib.r | ib.w)) and not (ib.w & ia.r):
                        g[i], g[i + 1] = b, a
                        ch = True
        return g
    seen = False
    for x in lst:
        if x.startswith("v_mfma"):
            out += flush(seen)
            out.append(x)
            seen = True
        else:
            gap.append(x)
    out += gap
    return out


def kv_piece(dst, srdn, i):
    return [f"s_add_u32 m0, s{dst}, {i * BLK}",
            f"buffer_load_dwordx4 v{vD + i}, {srd(srdn)}, s{sKVS} offen{FLAGS[OPT['kvflag']]} lds"]


def item_piece(n, i):
    o = f" offset:{i * 1024}" if i else ""
    return [f"s_add_u32 m0, s{sWOF}, {(n % NS) * HS + i * (BLK - 1024)}",
            (f"s_add_u32 s{sT0}, s{sG0}, {(n // 2) * 16384}" if OPT["rot"] else f"s_mov_b32 s{sT0}, {(n // 2) * 16384}"),
            f"buffer_load_dwordx4 v{vV4}, {srd(SRD_V if n % 2 else SRD_K)}, s{sT0} offen{o}{FLAGS[OPT['kvflag']]} lds"]


def adv(r, tmp=None):
    tmp = sT2 if tmp is None else tmp
    return [f"s_add_u32 s{r}, s{r}, {2 * HS}", f"s_sub_u32 s{tmp}, s{r}, {NS * HS}", f"s_min_u32 s{r}, s{r}, s{tmp}"]


def kread(dst, base, kb, kk):
    return f"ds_read_b128 {dst}, v{base + (kk >> 1)} offset:{kb * 256 + (kk & 1) * 64}"


def build_loop():
    W = OPT["W"]
    NF = 32
    mf = []
    qk_end, pv_first, phase2, step_start = {}, {}, {}, {}
    for j in range(2):
        jn = 1 - j
        step_start[j] = len(mf)
        tiles = range(5) if jn == 0 else range(4)
        for kb in range(2):
            for t in tiles:
                for kk in range(4):
                    f = 16 * j + kb * 4 + kk
                    S = Sreg(t, jn) + 4 * kb
                    C = vr(NEG + 4 * t, 4) if kk == 0 else vr(S, 4)
                    mf.append(dict(t=f"{MF} {vr(S, 4)}, {ar(RING + 4 * (f % 16), 4)}, {vr(QV + 16 * t + 4 * kk, 4)}, {C}", f=f))
                    qk_end[(jn, t, kb)] = len(mf) - 1
        tiles = list(range(5) if j == 0 else range(4))
        phase2[j] = len(mf)
        for dt in range(8):
            f = 16 * j + 8 + dt
            for t in tiles:
                O = ar(OA + 32 * t + 4 * dt, 4)
                mf.append(dict(t=f"{MF} {O}, {ar(RING + 4 * (f % 16), 4)}, {vr(Sreg(t, j), 4)}, {O}", f=f))
                pv_first.setdefault((j, t), len(mf) - 1)
            x = dt - 2
            if 0 <= x < len(tiles):
                Lr = ar(LA + 4 * x, 4)
                mf.append(dict(t=f"{MF} {Lr}, {ar(ONES, 4)}, {vr(Sreg(x, j), 4)}, {Lr}", f=f))
    N = len(mf)
    assert N == 153
    first_use, last_use = {}, {}
    for i, m in enumerate(mf):
        first_use.setdefault(m["f"], i)
        last_use[m["f"]] = i

    def wsz(f):
        return 4 if f % 16 < 8 else W
    cap = [2] * N
    scal = [None] * N
    for f in range(NF):
        if f % wsz(f) == 0:
            scal[(first_use[f] - 1) % N] = ("W", [(f + k) % NF for k in range(wsz(f))])
    scal[N - 2], scal[N - 1] = scal[N - 1], ("B",)
    cap[N - 1] = 0
    gX = step_start[1] - 1
    assert scal[gX - 1] is None and scal[gX - 2] is None
    scal[gX - 1], scal[gX] = scal[gX], ("T", "s_cbranch_scc1 L1_side | L1_back:")
    gS = gX - 2
    gB = OPT["gB"]
    nvm = 8 + (1 if OPT["wopf"] == 2 else 0)
    assert scal[gB - 1] is None and scal[gB] is None
    scal[gB - 1] = ("T", f"s_waitcnt vmcnt({(DD - 2) * nvm})")
    scal[gB] = ("T", "s_barrier")
    scal[gS] = ("T", f"s_sub_u32 s{sCNT}, s{sCNT}, 1")
    cap[gB] = OPT["bcap"]
    ok = [g for g in range(N) if cap[g] == 2]
    eg = []
    for k in range(72):
        want = (k * N) / 72.0
        g = min((x for x in ok if x not in eg), key=lambda x: abs(x - want))
        eg.append(g)
    eg.sort()
    order = [(j, t, kb, r) for j in (0, 1) for kb in range(2) for t in (range(5) if j == 0 else range(4)) for r in range(4)]
    best = None
    for off in range(-72, 72):
        place = {key: eg[(k + off) % 72] + N * ((k + off) // 72) for k, key in enumerate(order)}
        good = True
        for (j, t, kb, r), g in place.items():
            av = qk_end[(j, t, kb)] + 6 - (N if j == 0 else 0)
            if g < av or g > pv_first[(j, t)] - 6:
                good = False
        if good:
            best = (best or []) + [off]
    off = best[min(OPT["SO"], len(best) - 1)]
    place = {key: eg[(k + off) % 72] + N * ((k + off) // 72) for k, key in enumerate(order)}
    for g in eg:
        cap[g] = 0

    def frag_reads(f):
        j, r = divmod(f, 16)
        dst = RING + 4 * (f % 16)
        if r < 8:
            kb, kk = divmod(r, 4)
            return [kread(ar(dst, 4), vK + 2 * (1 - j), kb, kk)]
        dt = r - 8
        return [f"ds_read_b64_tr_b16 {ar(dst + 2 * e, 2)}, v{vV + j} offset:{e * 256 + dt * 32}" for e in range(2)]

    items = []

    def add(name, lo, hi, text, kind=None, chain=None, after=()):
        items.append(dict(n=name, lo=lo, hi=hi, t=text, k=kind, c=chain, a=list(after)))

    for (j, t, kb, r), g in sorted(place.items(), key=lambda z: z[1]):
        if r % 2 == 1:
            S = Sreg(t, j)
            add(f"c{j}{t}{kb}{r}", g + 1, min(g + 14, pv_first[(j, t)] - 3),
                f"v_cvt_pk_bf16_f32 v{S + 2 * kb + r // 2}, v{S + 4 * kb + r - 1}, v{S + 4 * kb + r}", ("cvt", j, t), "cvt")
    LG, LM = OPT["LG"], OPT["LM"]
    for f in range(NF):
        fu = first_use[f - f % wsz(f)]
        lo = max(fu - LG, last_use[(f + 16) % NF] - (N if f < 16 else 0))
        if 16 <= f < 24:
            lo = max(lo, gB + 1)
        if 8 <= f < 16:
            lo = max(lo, 0)
        for e, x in enumerate(frag_reads(f)):
            add(f"r{f}_{e}", lo, fu - LM, x, ("rd", f), "rd")
    add("k1a", 0, 100, f"v_add_u32 v{vK + 2}, s{sDV}, v{vK}", "k1", None, ["r5_0"])
    add("k1b", 0, 100, f"v_add_u32 v{vK + 3}, s{sDV}, v{vK + 1}", "k1", None, ["r7_0"])
    add("v0", 0, 120, f"v_add_u32 v{vV}, s{sVN}, v{vVB}", "v0", None, ["r15_1"])
    add("v1", 0, N + 40, f"v_add_u32 v{vV + 1}, s{sDV}, v{vV}", "v1", None, ["r31_1", "v0"])
    st = OPT["dmastep"]
    g = gB + 1
    prevd = None
    for nm, dst, srdn in (("V", sVD, SRD_V), ("K", sKD, SRD_K)):
        for i in range(4):
            pc = kv_piece(dst, srdn, i)
            add(f"m{nm}{i}", g, g + 10, pc[0], "m0", "dma", [prevd] if prevd else [])
            prevd = f"d{nm}{i}"
            add(f"d{nm}{i}", g + 1, g + 12, pc[1], "dma", "dma")
            g += st
    add("svd", 0, 140, f"s_add_u32 s{sVD}, s{sKN}, s{sWOF}", None, "ak", ["dV3"])
    for i, x in enumerate(adv(sKN)):
        add(f"ak{i}", 0, 142 + i, x, None, "ak")
    add("k0a", 0, 148, f"v_add_u32 v{vK}, s{sKN}, v{vKB}", None, None, ["ak2", "r21_0", "k1a"])
    add("k0b", 0, 148, f"v_add_u32 v{vK + 1}, s{sKN}, v{vKB + 1}", None, None, ["ak2", "r23_0", "k1b"])
    for i, x in enumerate(adv(sVN, sT1)):
        add(f"av{i}", 0, 144 + i, x, None, "av", ["v0"])
    for i, x in enumerate(adv(sKD, sT0)):
        add(f"ad{i}", 0, 148 + i, x, None, "ad", ["dK3"])
    add("kvs", gX + 1, 151, f"s_add_u32 s{sKVS}, s{sKVS}, s{sINC}", None, None, ["dK3"])
    if OPT["wopf"] == 2:
        add("wp", gB + 6, 140, f"buffer_load_dword v{vDUM}, v7, {srd(SRD_P)}, s{sWP} offen", None, "wp")
        add("wpa", 0, 150, f"s_add_u32 s{sWP}, s{sWP}, 160", None, "wp", ["wp"])
    NP = 5
    pend = []
    for p in range(NP):
        for i, x in enumerate(items):
            pend.append(dict(x, p=p, i=i, lo=x["lo"] + p * N, hi=x["hi"] + p * N))
    chains = {}
    for x in pend:
        chains.setdefault(x["c"] or ("solo", x["n"]), []).append(x)
    at = {}
    out = {}
    for g in range(-N, (NP + 1) * N):
        free = cap[g % N]
        sfree = scal[g % N] is None
        while free or sfree:
            cands = []
            for c, q in chains.items():
                if not q:
                    continue
                x = q[0]
                if x["lo"] > g:
                    continue
                if any((a_, x["p"]) not in at for a_ in x["a"]):
                    continue
                if x["k"] == "dma" and at[("m" + x["n"][1:], x["p"])] == g:
                    continue
                if x["t"].startswith("s_") and (gS <= g % N <= gX or not sfree):
                    continue
                if not x["t"].startswith("s_") and not free:
                    continue
                if any(at[(a_, x["p"])] == g for a_ in x["a"]):
                    continue
                if x["t"].startswith("buffer") and (g % N == gB - 1 or free < 2):
                    continue
                if x["k"] == "m0" and gS - 3 <= g % N <= gX:
                    continue
                cands.append(x)
            if not cands:
                break
            x = min(cands, key=lambda x: (0 if x["t"].startswith("buffer") else 1, x["hi"], x["i"]))
            chains[x["c"] or ("solo", x["n"])].pop(0)
            at[(x["n"], x["p"])] = g
            out.setdefault(g, []).append(x)
            if x["t"].startswith("s_"):
                sfree = False
            else:
                free -= (2 if (x["t"].startswith("buffer") and OPT["vm2"] and free == 2) else 1)
    for x in items:
        assert at[(x["n"], 2)] - 2 * N == at[(x["n"], 3)] - 3 * N, ("not periodic", x)
        assert at[(x["n"], 2)] - 2 * N <= x["hi"], ("late", x, at[(x["n"], 2)] - 2 * N)
    rel = {x["n"]: at[(x["n"], 2)] - 2 * N for x in items}
    assert rel["dK3"] < gX
    assert rel["k1a"] < rel["r0_0"] + N and rel["k1b"] < rel["r2_0"] + N
    assert rel["k0a"] < rel["r16_0"] + N and rel["k0b"] < rel["r18_0"] + N
    assert rel["v0"] < rel["r8_0"] + N and rel["v1"] < rel["r24_0"] + N and rel["v1"] < rel["v0"] + N
    assert last_use[7] < gB + 16 and first_use[4] <= gB
    assert rel["v1"] < N, "v1 must stay inside the period (prologue sets it)"
    gaps = [[] for _ in range(N)]
    cls = lambda t: 0 if t.startswith("s_") else 1 if t.startswith(("ds_", "buffer")) else 2
    for g in range(N):
        for x in sorted(out.get(2 * N + g, []), key=lambda x: cls(x["t"])):
            gaps[g].append((x["t"], "n" if x["p"] == 3 else "", x["k"]))
            assert x["p"] in (2, 3), x
    for (j, t, kb, r), g in place.items():
        S = Sreg(t, j) + 4 * kb + r
        gaps[g % N].append((f"v_exp_f32 v{S}, v{S}", "n" if g < 0 else "", ("sm", j)))
    seq, pro, tail = [], [], []
    for i, m in enumerate(mf):
        seq.append(("m", m["t"], [m["f"]]))
        if scal[i] and scal[i][0] == "W":
            seq.append(("m", None, scal[i][1]))
        elif scal[i] and scal[i][0] == "T":
            seq.append(("x", scal[i][1], None))
        for x in gaps[i]:
            isrd = isinstance(x[2], tuple) and x[2][0] == "rd"
            seq.append(("x", x[0], x[2][1] if isrd else None))
            if x[1] == "n":
                assert isinstance(x[2], tuple), x
                pro.append(x[0])
            if i >= gX and x[1] != "n" and isinstance(x[2], tuple):
                if (x[2][0] in ("sm", "cvt") and x[2][1] == 1) or (isrd and x[2][1] >= 24):
                    tail.append(x[0])
    body = add_waits(seq, True)
    body = [y for x in body for y in x.split(" | ")]
    if OPT["show"]:
        print("gaps:", "".join("E" if any(y[0].startswith("v_exp") for y in g_) else str(len(g_)) for g_ in gaps), file=sys.stderr)
        print("instr", len(body), "waits", sum("lgkmcnt" in x for x in body), "offs", best, "dma", [rel[f"d{n}{i}"] for n in "VK" for i in range(4)],
              "minlead", min(first_use[f - f % wsz(f)] - rel[f"r{f}_{1 if f % 16 >= 8 else 0}"] for f in range(NF)),
              "pro", len(pro), "tail", len(tail), file=sys.stderr)

    def keep(x):
        if OPT["nodma"] and (x.startswith("buffer_load") or x.startswith("s_add_u32 m0") or "vmcnt" in x):
            return False
        if OPT["nobar"] and x.startswith("s_barrier"):
            return False
        return True
    return [x for x in body if keep(x)], pro, tail


def cursor(r):
    return [f"s_add_u32 s{r}, s{r}, 128", f"s_sub_u32 s{sT2}, s{r}, 1152", f"s_min_u32 s{r}, s{r}, s{sT2}"]


def x_pieces(c):
    st = STG[c] * STSZ
    p = []
    for i in range(8):
        pre = [f"s_add_u32 s{sXSc}, s{sXS}, s{sCX}"] + cursor(sCX) if i == 0 else []
        p.append(pre + [f"s_add_u32 m0, s{sXD}, {st + i * 1024}",
                        (f"s_add_u32 s{sT0}, s{sXSc}, {i * 9216}" if i else "s_nop 0"),
                        f"buffer_load_dwordx4 v{vXD + (i & 1)}, {srd(SRD_X)}, s{sT0 if i else sXSc} offen{FLAGS[OPT['qpflag']]} lds"])
    return p


def wg_pieces(c):
    st = STG[c] * STSZ
    p = []
    for r in range(4):
        pre = [f"s_lshl_b32 s{sWSc}, s{sCW}, 12", f"s_add_u32 s{sWSc}, s{sWSc}, s{sWS}",
               f"s_add_u32 s{sXEc}, s{sXES}, s{sCW}"] + cursor(sCW) if r == 0 else []
        p.append(pre + [f"s_add_u32 m0, s{sWD}, {st + WOFF + r * XB}",
                        (f"s_add_u32 s{sT0}, s{sWSc}, {r * 8192}" if r else "s_nop 0"),
                        f"buffer_load_dwordx4 v{vWD}, {srd(SRD_W)}, s{sT0 if r else sWSc} offen{FLAGS[OPT['qpflag']]} lds"])
    p.append([f"s_add_u32 m0, s{sXED}, {st}", "s_nop 0",
              f"buffer_load_dwordx4 v{vXDE}, {srd(SRD_X)}, s{sXEc} offen{FLAGS[OPT['qpflag']]} lds"])
    return p


STG = [[0, 2, 1, 0, 2, 1, 2, 1, 2], [0, 1, 2, 0, 1, 2, 0, 1, 2]][OPT['stg']]


def build_qproj(extras, nup, tail_items, fill):
    LQ = OPT["LQ"]
    mf = []
    first_use, last_use = {}, {}
    for s in range(18):
        for sl in range(8):
            f = ("w", 8 * s + sl)
            tiles = range(5) if sl < 4 else range(4)
            for t in tiles:
                a = ACC + 32 * t + 4 * sl
                C = "0" if s == 0 else vr(a, 4)
                txt = f"{MF} {vr(a, 4)}, {ar(WRING + 4 * sl, 4)}, {ar(XF[s % 2] + 4 * t, 4)}, {C}"
                mf.append((txt, [f, ("x", s, t)]))
                for q in (f, ("x", s, t)):
                    first_use.setdefault(q, len(mf) - 1)
                    last_use[q] = len(mf) - 1
    N = len(mf)
    gaps = [[] for _ in range(N + 1)]

    def st_of(c):
        return (6, 0) if STG[c] == 2 else (0, STG[c] * STSZ)

    def wread(n):
        s, sl = divmod(n, 8)
        c, ks = divmod(s, 2)
        rb, st = st_of(c)
        kk, u = divmod(sl, 2)
        base = vQA + rb + (4 if kk < 2 else 5)
        return [(f"ds_read_b64_tr_b16 {ar(WRING + 4 * sl + 2 * e, 2)}, v{base} offset:{st + (kk & 1) * 64 + 8 * u + e * 256 + ks * 512}",
                 ("w", n)) for e in range(2)]

    def xread(s, t):
        c, ks = divmod(s, 2)
        rb, st = st_of(c)
        if t < 4:
            return (f"ds_read_b128 {ar(XF[s % 2] + 4 * t, 4)}, v{vQA + rb + ks} offset:{st + t * 2048}", ("x", s, t))
        return (f"ds_read_b128 {ar(XF[s % 2] + 16, 4)}, v{vQA + rb + 2 + ks} offset:{st}", ("x", s, t))

    bar = {0: -1, 9: N}
    for c in range(1, 9):
        bar[c] = last_use[("w", 16 * c - LQ + 1)]
    items = []
    for n in range(144):
        c = n // 16
        e = last_use[("w", n - 8)] if n >= 8 else -1
        tg = first_use[("w", n - LQ)] if n >= LQ else -1
        tg = max(tg, e, bar[c])
        for x in wread(n):
            items.append((tg, x))
    rd = sorted(items, key=lambda z: z[0])
    xi = []
    for s in range(18):
        c, ks = divmod(s, 2)
        for t in range(5):
            e = last_use[("x", s - 2, t)] if s >= 2 else -1
            tg = max(e, bar[c])
            if s == 1:
                tg = 0
            xi.append((tg, xread(s, t)))
    allrd = sorted([(tg, 0, i, x) for i, (tg, x) in enumerate(xi)] + [(tg, 1, i, x) for i, (tg, x) in enumerate(rd)],
                   key=lambda z: (z[0], z[1], z[2]))
    used = [0] * (N + 2)
    xdone = {}
    g = -1
    for tg, _, _, x in allrd:
        g = max(g, tg)
        if g < 0 and used[0] >= 9:
            g = 0
        while g >= 0 and used[g + 1] >= 2:
            g += 1
        gaps[g + 1].append(("x", x[0], x[1]))
        used[g + 1] += 1
        if x[1][0] == "x":
            xdone[x[1][1]] = g
        cc = x[1][1] // 16 if x[1][0] == "w" else x[1][1] // 2
        assert g < bar[cc + 1] - 2, (x, g, bar[cc + 1])
    last_rd = g
    sused = [0] * (N + 2)
    groups = []
    for c in range(nup, 9):
        prev = [p for p in range(c) if STG[p] == STG[c]]
        ew = bar[prev[-1] + 1] if prev else -1
        ex = xdone[2 * prev[-1] + 1] + 10 if prev else -1
        if c == 6:
            ex += OPT["x6d"]
        groups.append((ew, 0, c, wg_pieces(c), ("W", c), None))
        groups.append((ex, 2, c, x_pieces(c), ("X", c), prev[-1] if prev else None))
    for c, ps in extras.items():
        groups.append((bar[c] + (45 if (OPT["eord"] and c < 8) else 0), 1, c, ps, ("E", c), None))
    groups.sort(key=lambda z: (z[0], z[2] if z[0] < 0 else 0, z[1]))
    for kind in "WX":
        cs = [z[4][1] for z in groups if z[4][0] == kind]
        assert cs == sorted(cs), cs
    issued = []
    for c in range(nup):
        issued += [(("W", c), -1)] * 5 + [(("X", c), -1)] * 8
        if c == 0 and (OPT["pf"] or OPT["tlb"] == 1):
            issued += [(("P", 0), -1)] * 2
    g = 0
    for tg, _, _, ps, tag, prev in groups:
        for i, p in enumerate(ps):
            late = g - tg
            g = max(g, tg)
            g0 = g
            if i == 0 and prev is not None:
                while used[g + 1] >= 1:
                    g += 1
                gaps[g + 1].append(("xw", ("x", 2 * prev + 1)))
                used[g + 1] += 2
            for ins in p[:-1]:
                if ins == "s_nop 0":
                    continue
                if ins.startswith("s_"):
                    while sused[g + 1] + max(0, used[g + 1] - 1) >= 2 or (sused[g + 1] and used[g + 1] >= 2):
                        g += 1
                    gaps[g + 1].insert(sused[g + 1], ("x", ins, None))
                    sused[g + 1] += 1
                else:
                    while used[g + 1] >= 2:
                        g += 1
                    gaps[g + 1].append(("x", ins, None))
                    used[g + 1] += 1
            g += 1
            while used[g + 1] >= 1:
                g += 1
            assert g < N - 30, (tag, g)
            gaps[g + 1].append(("x", p[-1], None))
            used[g + 1] = 2
            issued.append((tag, g))
            g = max(g + 1, g0 + (OPT["qstep"] if late < 30 else 2))
    for c, lst in fill.items():
        g = bar[c]
        for ins in lst:
            k = ins.count(" | ") + 1
            while used[g + 1] + k > 2 or (k > 1 and used[g + 1]):
                g += 1
            for y in ins.split(" | "):
                gaps[g + 1].append(("x", y, None))
            used[g + 1] += k
            assert g < min(bar[c + 1], N - 26), (c, g)
    vm_at = {}
    for c in range(1, 9):
        before = [t for t, gg in issued if gg < bar[c]]
        for t, gg in issued:
            if t in (("W", c), ("X", c)):
                assert gg < bar[c] - 30, (t, gg, bar[c])
        lastneed = max(i for i, t in enumerate(before) if t in (("W", c), ("X", c)))
        vm_at[c] = len(before) - 1 - lastneed
    if OPT["show"]:
        print("bar", bar, "vm", vm_at, "issue", [(t[0] + str(t[1]), g) for t, g in issued if g >= 0], "lastrd", last_rd - (N - 36), file=sys.stderr)
    seq = []
    tf = list(tail_items)
    for i in range(N + 1):
        if i > 0:
            seq.append(("m", mf[i - 1][0], mf[i - 1][1]))
        for c in range(1, 9):
            if bar[c] == i - 1:
                seq.append(("x", f"s_waitcnt vmcnt({vm_at[c]}) lgkmcnt(0)", None))
                seq.append(("x", "s_barrier", None))
                if OPT["diag"]:
                    seq.append(("x", f"v_writelane_b32 v250, s90, {40 + c}", None))
                    seq.append(("x", "s_memtime s[90:91]", None))
        for x in gaps[i]:
            if x[0] == "xw":
                seq.append(("m", "s_nop 0", [("x", x[1][1], t) for t in range(5)]))
            else:
                seq.append(x)
        while tf and tf[0][0] <= i - 1 - (N - 36):
            seq.append(("x", tf.pop(0)[1], None))
    assert not tf
    return add_waits(seq, False), [t for t, _ in issued]


DW = 9
PRE = OPT['pre']
SRD_OUT, SRD_D = SRD_X, SRD_W
sMT, sNT, sBS, sLD, sU, sPA, sCA = sXD, sXS, sWS, sXED, sXES, sCX, sCW
sAI = 32
sSIDE, sRDY, sPF = 38, 39, 40
vBD, vPF, vZ, vPL = 2, 3, 4, 5
vBR, WF, AC = 144, 112, 160


def wslot(s):
    return (1 + s if s < PRE else [1, 2, 3, 4, 5, 6, 0, 7, 8][(s - PRE) % DW]) * HS


def wload(s):
    return [([f"s_add_u32 s{sU}, s{sBS}, {s * 36864}"] if i == 0 else []) +
            [f"s_add_u32 m0, s{sWOF}, {wslot(s) + i * BLK}", "s_nop 0",
             f"buffer_load_dwordx4 v{vD + i}, {srd(SRD_P)}, s{sU} offen lds"] for i in range(4)]


def oreg(s, i):
    n = (s % OPT["DO"]) * 6 + i
    return 4 * n if n < 16 else 128 + 4 * (n - 16) if n < 24 else 64 + 4 * (n - 24)


def oload(s):
    off = f" offset:{(s % 4) * 1024}" if s % 4 else ""
    o = []
    for i in range(6):
        pre = [f"s_add_u32 s{sAI + i}, s{sAI + i}, 4096"] if (s % 4 == 0 and s and not OPT['p3same'] & 2) else []
        o.append(pre + [f"buffer_load_dwordx4 {ar(oreg(s, i), 4)}, v11, {srd(SRD_O)}, s{sAI + i} offen{off}{FLAGS[OPT['oflag']]}"])
    return o


def p3_setup():
    Z = Asm()
    Z(f"s_lshr_b32 s{sU}, s2, 3")
    Z(f"s_mul_i32 s{sPF}, s{sU}, 6912")
    Z(f"s_mul_i32 s{sNT}, s{sU}, 43")
    Z(f"s_lshr_b32 s{sNT}, s{sNT}, 7")
    Z(f"s_mul_i32 s{sMT}, s{sNT}, 3")
    Z(f"s_sub_u32 s{sMT}, s{sU}, s{sMT}")
    if OPT["xmap"] == 1:
        Z(f"s_and_b32 s{sCA}, s2, 1")
        Z(f"s_xor_b32 s{sCA}, s{sCA}, 1")
        Z(f"s_lshl_b32 s{sCA}, s{sCA}, 2")
        Z(f"s_bfe_u32 s{sU}, s2, 0x20001")
        Z(f"s_add_u32 s{sCA}, s{sCA}, s{sU}")
    else:
        Z(f"s_and_b32 s{sCA}, s2, 7")
    Z(f"s_mul_i32 s{sU}, s{sCA}, 3")
    Z(f"s_add_u32 s{sMT}, s{sMT}, s{sU}")
    Z(f"s_lshl_b32 s{sCA}, s{sCA}, 2")
    Z(f"s_add_u32 s{sCA}, s{sCA}, s{sW}")
    Z(f"s_lshl_b32 s{sCA}, s{sCA}, 3")
    Z(f"s_lshl_b32 s{sPA}, s{sB}, 2")
    Z(f"s_lshr_b32 s{sU}, s{sH}, 3")
    Z(f"s_add_u32 s{sPA}, s{sPA}, s{sU}")
    Z(f"s_lshl_b32 s{sPA}, s{sPA}, 3")
    Z(f"v_lshrrev_b32 v{vPF}, 3, v0")
    Z(f"v_mul_u32_u24 v{vBD}, 1152, v{vPF}")
    Z(f"v_lshlrev_b32 v{vPF}, 1, v12")
    Z(f"v_and_b32 v{vZ}, 7, v0")
    Z(f"v_xor_b32 v{vPF}, v{vPF}, v{vZ}")
    Z(f"v_lshl_add_u32 v{vBD}, v{vPF}, 4, v{vBD}")
    Z(f"v_min_u32 v{vPF}, 53, v0")
    Z(f"v_lshlrev_b32 v{vPF}, 7, v{vPF}")
    Z(f"v_mov_b32 v{vZ}, 0")
    Z(f"s_lshl_b32 s{sLD}, s{sW}, 12")
    Z(f"s_mul_i32 s{sBS}, s{sW}, {1024 * 1152}")
    Z(f"s_add_u32 s{sPF}, s{sPF}, s{sBS}")
    Z(f"s_lshl_b32 s{sU}, s{sNT}, 7")
    Z(f"s_add_u32 s{sBS}, s{sBS}, s{sU}")
    Z(f"s_cmp_ge_u32 s2, 216 | s_cselect_b32 s{sBS}, 0x40000000, s{sBS}")
    Z(f"s_mov_b32 s{SRD_OUT}, s{sOUTP}")
    Z(f"s_mov_b32 s{SRD_OUT + 1}, s{sOUTP + 1}")
    Z(f"s_mov_b32 s{SRD_OUT + 2}, {2304 * 1152}")
    Z(f"s_mov_b32 s{SRD_D}, s{sOUTP + 2}")
    Z(f"s_mov_b32 s{SRD_D + 1}, s{sOUTP + 3}")
    Z(f"s_mov_b32 s{SRD_D + 2}, 256")
    if OPT["diag"]:
        Z(f"s_mov_b32 s{sINC}, 16384")
    return [x.strip() for x in Z.l]


def o_bases(oob):
    o = [f"s_mul_i32 s{sAI}, s{sMT}, {6 * QP}", f"s_mul_i32 s{sU}, s{sW}, {GP}", f"s_add_u32 s{sAI}, s{sAI}, s{sU}"]
    if oob:
        o += [f"s_cmp_ge_u32 s{sRDY}, 8", f"s_cselect_b32 s{sAI}, s{sAI}, 0x40000000"]
    o += [f"s_add_u32 s{sAI + i}, s{sAI}, {i * QP}" for i in range(1, 6)]
    return o


def side_block(A):
    A.label("L1_side")
    if PRE == 4:
        A(f"s_cmp_eq_u32 s{sSIDE}, 2")
        A("s_cbranch_scc1 L1_tail")
        A(f"s_cmp_eq_u32 s{sSIDE}, 0")
        A("s_cbranch_scc1 L1_side1")
        A(f"s_mov_b32 s{sSIDE}, 2")
        A(f"s_mov_b32 s{sCNT}, 0")
        A(f"s_mov_b32 s{sKVS}, 0x40000000")
        A("s_branch L1_back")
        A.label("L1_side1")
    else:
        A(f"s_cmp_lg_u32 s{sSIDE}, 0")
        A("s_cbranch_scc1 L1_tail")
    A(f"global_load_dword v{vDUM}, v{vCW}, s[{sPC}:{sPC + 1}]")
    A(f"s_mov_b32 s{sSIDE}, 1")
    A(f"s_mov_b32 s{sCNT}, {1 if PRE == 4 else 2}")
    A(f"s_mov_b32 s{sINC}, {2 * 36864}")
    A(f"s_sub_u32 s{sKVS}, s{sBS}, {2 * 36864}")
    A(f"s_mov_b32 s{SRD_K}, s{SRD_P}")
    A(f"s_mov_b32 s{SRD_K + 1}, s{SRD_P + 1}")
    A(f"s_mov_b32 s{SRD_K + 2}, {4096 * 1152}")
    A(f"s_add_u32 s{SRD_V}, s{SRD_P}, 36864")
    A(f"s_addc_u32 s{SRD_V + 1}, s{SRD_P + 1}, 0")
    A(f"s_mov_b32 s{SRD_V + 2}, {4096 * 1152 - 36864}")
    for i in range(4):
        A(f"v_add_u32 v{vD + i}, {i * 9216}, v{vBD}")
    A("s_branch L1_back")


def p3(A, rest):
    DO = OPT["DO"]
    u0, u1 = 253, 254
    vBR = 224
    assert PRE == 4

    def wreg(s):
        return QV + 16 * s if s < PRE else WF + 16 * (s % 2)

    def wreads(s):
        o = wslot(s)
        return [f"ds_read_b64_tr_b16 {vr(wreg(s) + 4 * n + 2 * e, 2)}, v{vBR + 4 * (o // (3 * HS)) + n} offset:{o % (3 * HS) + e * 2 * BLK}"
                for n in range(4) for e in range(2)]

    A(f"v_bfe_u32 v{u0}, v0, 2, 3")
    A(f"v_lshlrev_b32 v{vBR}, 7, v{u0}")
    A(f"v_bfe_u32 v{u0}, v0, 3, 2")
    A(f"v_xor_b32 v{u0}, s{sW}, v{u0}")
    A(f"v_lshl_add_u32 v{vBR}, v{u0}, 5, v{vBR}")
    A(f"v_lshl_add_u32 v{vBR}, v15, 3, v{vBR}")
    A(f"v_lshrrev_b32 v{u0}, 5, v0")
    A(f"v_mul_u32_u24 v{u0}, {BLK}, v{u0}")
    A(f"v_add_u32 v{u0}, s{sWOF}, v{u0}")
    for n_ in range(1, 4):
        A(f"v_xor_b32 v{vBR + n_}, {32 * n_}, v{vBR}")
    for n_ in range(4):
        A(f"v_add_u32 v{vBR + n_}, v{u0}, v{vBR + n_}")
    for k in range(1, 3):
        for n_ in range(4):
            A(f"v_add_u32 v{vBR + 4 * k + n_}, {3 * HS * k}, v{vBR + n_}")
    A("s_waitcnt vmcnt(10)")
    pre = [x for s in range(PRE) for x in wreads(s)]
    cut = len(rest) * OPT["ppos"] // 4
    rest = rest[:cut] + [f"buffer_load_dword v{vPL}, v{vZ}, {srd(SRD_D)}, s{sCA} offen sc1"] + rest[cut:]
    for i in range(8):
        A.ext(pre[4 * i:4 * i + 4])
        A.ext(rest[(i * len(rest)) // 8:((i + 1) * len(rest)) // 8])
    A.ext(o_bases(False))
    stamp(A)
    PW = PRE + OPT["post"]
    assert OPT["post"] <= 6
    if OPT["post"]:
        A("s_waitcnt lgkmcnt(0)")
    for s in range(PRE, PW):
        for p in wload(s):
            A.ext(p)
    A(f"v_mov_b32 v{u0}, 1")
    A(f"s_mov_b32 s{sCNT}, {1 << 22}")
    A("s_waitcnt vmcnt(0) lgkmcnt(0)")
    A("s_barrier")
    if OPT["diag"]:
        A("s_memrealtime s[78:79]")
    A(f"v_readfirstlane_b32 s{sRDY}, v{vPL}")

    def publish(lbl):
        A(f"s_cmp_lg_u32 s{sW}, 0")
        A(f"s_cbranch_scc1 {lbl}")
        A("s_mov_b64 exec, 1")
        A(f"buffer_atomic_add v{u0}, v{vZ}, {srd(SRD_D)}, s{sPA} offen sc1")
        A("s_mov_b64 exec, -1")
        A.label(lbl)

    A("s_cmp_ge_u32 s2, 216")
    A(f"s_cselect_b32 s{sRDY}, 0, s{sRDY}")
    A(f"s_cmp_ge_u32 s{sRDY}, {8 if OPT['fast'] else 999}")
    A("s_cbranch_scc1 L3_fast")
    publish("L3_na1")
    A("s_cmp_ge_u32 s2, 216")
    A("s_cbranch_scc1 L3_help" if OPT["helper"] else "s_cbranch_scc1 L3_done")
    vmq, nfast = [], []
    NW0 = PRE + OPT["wpre"]
    for s in range(PW, NW0):
        for p in wload(s):
            A.ext(p)
    A.label("L3_poll")
    A(f"buffer_load_dword v{u1}, v{vZ}, {srd(SRD_D)}, s{sCA} offen sc1")
    A("s_waitcnt vmcnt(0)")
    A(f"v_readfirstlane_b32 s{sU}, v{u1}")
    A(f"s_sub_u32 s{sCNT}, s{sCNT}, 1")
    A("s_cbranch_scc1 L3_rdy")
    A(f"s_cmp_ge_u32 s{sU}, 8")
    A("s_cbranch_scc1 L3_rdy")
    A(f"s_sleep {OPT['slp']}")
    A("s_branch L3_poll")
    A.label("L3_rdy")
    for s in range(DO):
        for p in oload(s):
            A.ext(p)
            vmq.append(("o", s))
    A("s_branch L3_go")
    A.label("L3_fast")
    seq = [("o", s) for s in range(DO)] + [("w", s) for s in range(PW, NW0)]
    for n_, (k_, s) in enumerate(seq):
        for p in (oload(s) if k_ == "o" else wload(s)):
            A.ext(p)
            nfast.append((k_, s))
        if n_ == 1:
            publish("L3_na2")
    A.label("L3_go")
    if OPT["diag"]:
        A("s_memrealtime s[80:81]")
    OWN = 16

    def accr(n_, i):
        return vr(OWN + 4 * i, 4) if n_ == 0 else ar(AC + 4 * (6 * (n_ - 1) + i), 4)
    vW_, vR_ = 40, 43
    fin = [f"v_lshl_add_u32 v{vW_}, v0, 4, s{sWOF}", f"v_add_u32 v{vW_ + 1}, {2 * HS}, v{vW_}", f"v_add_u32 v{vW_ + 2}, {4 * HS}, v{vW_}"]
    for n_ in range(1, 4):
        fin += [f"s_xor_b32 s{sT0}, s{sW}, {n_}", f"s_mul_i32 s{sT0}, s{sT0}, {4 * BLK}", f"s_add_u32 s{sT0}, s{sT0}, {(n_ - 1) * 2 * HS}",
                f"v_lshl_add_u32 v{vR_ + n_ - 1}, v0, 4, s{sT0}"]
    fin += [f"v_bfe_u32 v10, v0, 4, 1", f"v_lshl_add_u32 v9, v10, 4, v13", f"v_mul_u32_u24 v9, 1152, v9",
            f"v_lshrrev_b32 v10, 5, v0", f"v_lshl_add_u32 v9, v10, 4, v9",
            f"s_mul_i32 s{sT1}, s{sMT}, {96 * 1152}", f"s_lshl_b32 s{sT0}, s{sNT}, 7", f"s_add_u32 s{sT1}, s{sT1}, s{sT0}",
            f"s_lshl_b32 s{sT0}, s{sW}, 5", f"s_add_u32 s{sT1}, s{sT1}, s{sT0}"]
    nw = NW0
    for s in range(32):
        cnt = []
        for q in (vmq, nfast):
            need = [i for i, t in enumerate(q) if t in (("o", s), ("w", s + 1))]
            cnt.append(len(q) - 1 - max(need) if need else 63)
        A(f"s_waitcnt vmcnt({min(min(cnt), 63)}) lgkmcnt(0)")
        rdq = wreads(s + 1) if PRE <= s + 1 < 32 else []
        ld = []
        if nw < 32 and nw - DW <= s:
            ld += [(p, ("w", nw)) for p in wload(nw)]
            nw += 1
        if s >= 1 and s - 1 + DO < 32:
            ld += [(p, ("o", s - 1 + DO)) for p in oload(s - 1 + DO)]
        extra = list(fin) if s == 30 else []
        wq = []
        k = 0
        for n_ in ((1, 2, 3, 0) if s == 31 else range(4)):
            for i in range(6):
                acc = accr(n_, i)
                A(f"{MF} {acc}, {vr(wreg(s) + 4 * n_, 4)}, {ar(oreg(s, i), 4)}, {'0' if s == 0 else acc}")
                k += 1
                if rdq and k % 2 == 1:
                    A(rdq.pop(0))
                if ld and k % 2 == 0:
                    p, tag = ld.pop(0)
                    A.ext(p)
                    vmq.append(tag)
                    nfast.append(tag)
                if extra and k % 2 == 0:
                    A.ext(extra[:3])
                    extra = extra[3:]
                if s == 31:
                    if n_:
                        wq.append(f"ds_write_b128 v{vW_ + n_ - 1}, {acc} offset:{(i // 3) * HS + (i % 3) * 1024}")
                    if k > 8:
                        A(wq.pop(0))
        assert not ld and not rdq and not extra
        A.ext(wq)
    assert nw == 32
    if OPT["diag"]:
        A("s_memrealtime s[82:83]")
    A("s_waitcnt lgkmcnt(0)")
    A("s_barrier")
    R = 48
    for x in range(3):
        for i in (2 * x, 2 * x + 1):
            for n_ in range(1, 4):
                A(f"ds_read_b128 {vr(R + 12 * i + 4 * (n_ - 1), 4)}, v{vR_ + n_ - 1} offset:{(i // 3) * HS + (i % 3) * 1024}")
    for x in range(3):
        A(f"s_waitcnt lgkmcnt({6 * (2 - x)})")
        for i in (2 * x, 2 * x + 1):
            for e in range(4):
                A(f"v_add_f32 v{OWN + 4 * i + e}, v{OWN + 4 * i + e}, v{R + 12 * i + e}")
                A(f"v_add_f32 v{R + 12 * i + 4 + e}, v{R + 12 * i + 4 + e}, v{R + 12 * i + 8 + e}")
            for e in range(4):
                A(f"v_add_f32 v{OWN + 4 * i + e}, v{OWN + 4 * i + e}, v{R + 12 * i + 4 + e}")
        d = 124 + 4 * x
        for e in range(4):
            A(f"v_cvt_pk_bf16_f32 v{d + e}, v{OWN + 8 * x + 2 * e}, v{OWN + 8 * x + 2 * e + 1}")
        A("s_nop 1")
        A(f"v_permlane16_swap_b32 v{d}, v{d + 2}")
        A(f"v_permlane16_swap_b32 v{d + 1}, v{d + 3}")
        A(f"buffer_store_dwordx4 {vr(d, 4)}, v9, {srd(SRD_OUT)}, s{sT1} offen{FLAGS[OPT['outflag']]}")
        A(f"s_add_u32 s{sT1}, s{sT1}, {32 * 1152}")
    if OPT["helper"]:
        A("s_branch L3_done")
        A.label("L3_help")
        sJ, sOB, sWB = sAI, sAI + 1, sAI + 2
        A(f"s_lshr_b32 s{sJ}, s2, 3")
        A(f"s_sub_u32 s{sJ}, s{sJ}, 27")
        A(f"s_mul_i32 s{sT0}, s{sJ}, 58")
        A(f"v_add_u32 v16, s{sT0}, v0")
        A(f"v_min_u32 v16, 287, v16")
        A(f"v_lshlrev_b32 v16, 7, v16")
        A(f"s_mul_i32 s{sWB}, s{sW}, {1024 * 1152}")
        A(f"s_mul_i32 s{sT0}, s{sJ}, 29")
        A(f"v_and_b32 v17, 31, v0")
        A(f"v_add_u32 v17, s{sT0}, v17")
        A(f"v_min_u32 v17, 143, v17")
        A(f"v_lshrrev_b32 v18, 3, v17")
        A(f"s_mov_b32 s{sT0}, {QP}")
        A(f"v_mul_lo_u32 v18, s{sT0}, v18")
        A(f"v_and_b32 v17, 7, v17")
        A(f"v_lshl_add_u32 v17, v17, 7, v18")
        A(f"v_lshrrev_b32 v18, 5, v0")
        A(f"v_lshl_add_u32 v17, v18, 10, v17")
        A(f"s_lshr_b32 s{sOB}, s{sCA}, 5")
        A(f"s_mul_i32 s{sOB}, s{sOB}, {18 * QP}")
        A(f"s_mul_i32 s{sT0}, s{sW}, {GP}")
        A(f"s_add_u32 s{sOB}, s{sOB}, s{sT0}")

        def hw(s_):
            A(f"s_add_u32 s{sT0}, s{sWB}, {s_ * 36864}")
            A(f"buffer_load_dword v{vDUM}, v16, {srd(SRD_P)}, s{sT0} offen")

        def ho(s_):
            A(f"s_add_u32 s{sT0}, s{sOB}, {s_ * 1024}")
            A(f"buffer_load_dword v{vDUM}, v17, {srd(SRD_O)}, s{sT0} offen sc1")
        for s_ in range(NW0, NW0 + OPT["hA"]):
            hw(s_)
        A.label("L3_hpoll")
        A(f"buffer_load_dword v{u1}, v{vZ}, {srd(SRD_D)}, s{sCA} offen sc1")
        A("s_waitcnt vmcnt(0)")
        A(f"v_readfirstlane_b32 s{sU}, v{u1}")
        A(f"s_sub_u32 s{sCNT}, s{sCNT}, 1")
        A("s_cbranch_scc1 L3_done")
        A(f"s_cmp_ge_u32 s{sU}, 8")
        A("s_cbranch_scc1 L3_hgo")
        A(f"s_sleep {OPT['slp']}")
        A("s_branch L3_hpoll")
        A.label("L3_hgo")
        ev = [(s_ - 3, "o", s_) for s_ in range(OPT["ho"], 32, 2)] + [(s_ - DW, "w", s_) for s_ in range(NW0 + OPT["hA"], 32)]
        for _, k_, s_ in sorted(ev):
            (ho if k_ == "o" else hw)(s_)
    A.label("L3_done")


def k1(A):
    A.raw(".p2align 8")
    A.raw(".type attn_kernel,@function")
    A.label("attn_kernel")
    A("s_cmp_ge_u32 s2, 256")
    A("s_cbranch_scc1 L1_end")
    A("s_load_dwordx8 s[32:39], s[0:1], 0")
    A("s_load_dwordx2 s[40:41], s[0:1], 56")
    A("s_load_dwordx2 s[30:31], s[0:1], 32")
    if OPT["tlb"] == 1:
        A("s_load_dwordx4 s[20:23], s[0:1], 40")
    A(f"s_getpc_b64 s[{sPC}:{sPC + 1}]")
    A.label("L1_pc")
    stamp(A)
    if OPT["diag"]:
        A("s_memrealtime s[92:93]")
    if OPT["dspin"]:
        A("s_memrealtime s[62:63]")
    A("s_lshr_b32 s3, s2, 3")
    if OPT["cpf"]:
        A(f"s_lshl_b32 s{sT0}, s3, 11")
        A(f"v_lshl_add_u32 v1, v0, 7, s{sT0}")
        A("v_min_u32 v1, L_code_end-L1_pc-4, v1")
        A("v_cmp_gt_u32 vcc, 16, v0")
        A("s_and_saveexec_b64 s[46:47], vcc")
        A("s_cbranch_execz L1_nocpf")
        A(f"global_load_dword v{vDUM}, v1, s[{sPC}:{sPC + 1}]")
        A.label("L1_nocpf")
        A("s_mov_b64 exec, s[46:47]")
    A("v_lshrrev_b32 v1, 6, v0")
    A("v_and_b32 v0, 63, v0")
    A(f"v_readfirstlane_b32 s{sW}, v1")
    if OPT["xmap"] == 0:
        A(f"s_and_b32 s{sB}, s2, 7")
        A(f"s_mov_b32 s{sH}, s3")
    else:
        A(f"s_and_b32 s{sB}, s2, 1")
        A(f"s_lshl_b32 s{sB}, s{sB}, 2")
        A(f"s_and_b32 s{sT0}, s3, 3")
        A(f"s_add_u32 s{sB}, s{sB}, s{sT0}")
        A(f"s_and_b32 s{sH}, s2, 6")
        A(f"s_lshl_b32 s{sH}, s{sH}, 2")
        A(f"s_lshr_b32 s{sT0}, s3, 2")
        A(f"s_add_u32 s{sH}, s{sH}, s{sT0}")
    A(f"s_and_b32 s{sP}, s{sW}, 1")
    nph = OPT["nph"]
    if nph == 1:
        A(f"s_mov_b32 s{sCW}, 0")
    elif nph == 2:
        A(f"s_add_u32 s{sCW}, s{sB}, s{sH}")
        A(f"s_and_b32 s{sCW}, s{sCW}, 1")
        A(f"s_mul_i32 s{sCW}, s{sCW}, {4 * 128}")
    elif nph == 4:
        A(f"s_add_u32 s{sCW}, s{sB}, s{sH}")
        A(f"s_and_b32 s{sCW}, s{sCW}, 3")
        A(f"s_mul_i32 s{sCW}, s{sCW}, {2 * 128}")
    elif nph == 8:
        A(f"s_lshl_b32 s{sCW}, s{sB}, 1")
        A(f"s_add_u32 s{sCW}, s{sCW}, s{sH}")
        A(f"s_and_b32 s{sCW}, s{sCW}, 7")
        A(f"s_lshl_b32 s{sCW}, s{sCW}, 7")
    elif nph == 5:
        A(f"s_add_u32 s{sCW}, s{sB}, s{sH}")
        A(f"s_and_b32 s{sCW}, s{sCW}, 3")
        A(f"s_mul_i32 s{sCW}, s{sCW}, 9")
        A(f"s_add_u32 s{sCW}, s{sCW}, 2")
        A(f"s_lshr_b32 s{sCW}, s{sCW}, 2")
        A(f"s_lshl_b32 s{sCW}, s{sCW}, 7")
    elif nph == 3:
        A(f"s_add_u32 s{sCW}, s{sB}, s{sH}")
        A(f"s_mul_i32 s{sT0}, s{sCW}, 43")
        A(f"s_lshr_b32 s{sT0}, s{sT0}, 7")
        A(f"s_mul_i32 s{sT0}, s{sT0}, 3")
        A(f"s_sub_u32 s{sCW}, s{sCW}, s{sT0}")
        A(f"s_mul_i32 s{sCW}, s{sCW}, {3 * 128}")
    A(f"s_mov_b32 s{sCX}, s{sCW}")
    t0, t1, t2, g4, i16, r4, cq = 9, 10, 11, 12, 13, 14, 15
    A(f"v_lshrrev_b32 v{g4}, 4, v0")
    A(f"v_and_b32 v{i16}, 15, v0")
    A(f"v_lshrrev_b32 v{t0}, 5, v0")
    A(f"v_lshlrev_b32 v{vWD}, 18, v{t0}")
    A(f"v_and_b32 v{t0}, 1, v{g4}")
    A(f"v_lshl_add_u32 v{vWD}, v{t0}, 15, v{vWD}")
    A(f"v_lshl_add_u32 v{vWD}, v{i16}, 4, v{vWD}")
    A(f"v_lshrrev_b32 v{t0}, 3, v0")
    A(f"v_mul_u32_u24 v{vXD}, 1152, v{t0}")
    A(f"v_and_b32 v{t0}, 7, v0")
    A(f"v_xor_b32 v{t0}, v{t0}, v{g4}")
    A(f"v_lshl_add_u32 v{vXD}, v{t0}, 4, v{vXD}")
    A(f"v_xor_b32 v{vXD + 1}, 64, v{vXD}")
    A(f"s_lshl_b32 s{sT0}, s{sP}, 6")
    A(f"v_xor_b32 v{vXDE}, s{sT0}, v{vXD}")
    A(f"s_lshl_b32 s{sXD}, s{sW}, 13")
    A(f"s_add_u32 s{sXD}, s{sXD}, {XOFF}")
    A(f"s_mul_i32 s{sXS}, s{sW}, {8 * 9216}")
    A(f"s_lshl_b32 s{sXED}, s{sW}, 10")
    A(f"s_add_u32 s{sXED}, s{sXED}, {XEOFF}")
    A(f"s_mul_i32 s{sXES}, s{sW}, 9216")
    A(f"s_add_u32 s{sXES}, s{sXES}, {32 * 9216}")
    A(f"s_lshr_b32 s{sT0}, s{sW}, 1")
    A(f"s_mul_i32 s{sWD}, s{sT0}, {WG1}")
    A(f"s_mul_i32 s{sT0}, s{sP}, {WG0}")
    A(f"s_add_u32 s{sWD}, s{sWD}, s{sT0}")
    A(f"s_lshl_b32 s{sWS}, s{sW}, 16")
    A(f"s_mul_i32 s{sT1}, s{sB}, 331776")
    A(f"s_lshl_b32 s{sT0}, s{sH}, 8")
    A(f"s_mov_b32 s{SRD_X + 2}, 331776")
    A(f"s_mov_b32 s{SRD_X + 3}, 0x20000")
    A(f"s_sub_u32 s{SRD_W + 2}, {576 * 8192}, s{sT0}")
    A(f"s_mov_b32 s{SRD_W + 3}, 0x20000")
    if OPT["fine"]:
        stamp(A)
    A("s_waitcnt lgkmcnt(0)")
    if OPT["fine"]:
        stamp(A)
    A(f"s_add_u32 s{SRD_W}, s38, s{sT0}")
    A(f"s_addc_u32 s{SRD_W + 1}, s39, 0")
    A(f"s_add_u32 s{SRD_X}, s32, s{sT1}")
    A(f"s_addc_u32 s{SRD_X + 1}, s33, 0")
    S = Asm()
    E = A if OPT["tlb"] == 3 else S
    E(f"s_lshl_b32 s{sT1}, s{sB}, 5")
    E(f"s_add_u32 s{sT1}, s{sT1}, s{sH}")
    E(f"s_lshl_b32 s{sT1}, s{sT1}, 19")
    if OPT["tlb"] == 3:
        for r_, p_ in ((SRD_K, 34), (SRD_V, 36)):
            A(f"s_add_u32 s{r_}, s{p_}, s{sT1}")
            A(f"s_addc_u32 s{r_ + 1}, s{p_ + 1}, 0")
            A(f"s_load_dword s{sRDY}, s[{r_}:{r_ + 1}], 0")
    S(f"s_add_u32 s{SRD_K}, s34, s{sT1} | s_addc_u32 s{SRD_K + 1}, s35, 0")
    S(f"s_mov_b32 s{SRD_K + 2}, 524288")
    S(f"s_mov_b32 s{SRD_K + 3}, 0x20000")
    S(f"s_add_u32 s{SRD_V}, s36, s{sT1} | s_addc_u32 s{SRD_V + 1}, s37, 0")
    if OPT["tlb"] == 2:
        S(f"s_load_dword s{sRDY}, s[{SRD_K}:{SRD_K + 1}], 0")
        S(f"s_load_dword s{sRDY}, s[{SRD_V}:{SRD_V + 1}], 0")
    S(f"s_mov_b32 s{SRD_V + 2}, 524288")
    S(f"s_mov_b32 s{SRD_V + 3}, 0x20000")
    S(f"s_add_u32 s{SRD_O}, s40, {OPT['wsoff'] << 20} | s_addc_u32 s{SRD_O + 1}, s41, 0")
    S(f"s_mov_b32 s{SRD_O + 2}, {(DIAG_OFF + (2 << 20)) if OPT['diag'] else WS_O_BYTES}")
    S(f"s_mov_b32 s{SRD_O + 3}, 0x20000")
    S(f"s_mov_b32 s{SRD_P}, s30")
    S(f"s_mov_b32 s{SRD_P + 1}, s31")
    S(f"s_mov_b32 s{SRD_P + 2}, {4096 * 1152}")
    S(f"s_mov_b32 s{SRD_P + 3}, 0x20000")
    S(f"v_bfe_u32 v{r4}, v0, 2, 2")
    S(f"v_and_b32 v{cq}, 3, v0")
    XA, XE, WL, WH = vQA, vQA + 2, vQA + 4, vQA + 5
    S(f"v_lshlrev_b32 v{XE}, 7, v{i16}")
    S(f"v_lshrrev_b32 v{t0}, 1, v{i16}")
    S(f"v_xor_b32 v{t0}, v{t0}, v{g4}")
    S(f"v_lshl_add_u32 v{XE}, v{t0}, 4, v{XE}")
    S(f"v_add_u32 v{XA}, s{sXD}, v{XE}")
    S(f"s_lshr_b32 s{sT1}, s{sW}, 1")
    S(f"s_lshl_b32 s{sT1}, s{sT1}, 11")
    S(f"s_add_u32 s{sT1}, s{sT1}, {XEOFF}")
    S(f"v_add_u32 v{XE}, s{sT1}, v{XE}")
    S(f"v_xor_b32 v{XA + 1}, 64, v{XA}")
    S(f"v_xor_b32 v{XE + 1}, 64, v{XE}")
    S(f"v_lshrrev_b32 v{t0}, 1, v{g4}")
    S(f"v_mul_u32_u24 v{WL}, {WG1}, v{t0}")
    S(f"v_and_b32 v{t0}, 1, v{g4}")
    S(f"v_mul_u32_u24 v{t0}, {WG0}, v{t0}")
    S(f"v_add_u32 v{WL}, v{WL}, v{t0}")
    S(f"v_mul_u32_u24 v{t0}, {XB}, v{r4}")
    S(f"v_add_u32 v{WL}, v{WL}, v{t0}")
    S(f"v_lshl_add_u32 v{WL}, v{cq}, 4, v{WL}")
    S(f"s_lshl_b32 s{sT1}, s{sP}, 7")
    S(f"s_xor_b32 s{sOO}, s{sT1}, 128")
    S(f"v_add_u32 v{WH}, s{sOO}, v{WL}")
    S(f"v_add_u32 v{WL}, s{sT1}, v{WL}")
    for i in range(6):
        S(f"v_add_u32 v{vQA + 6 + i}, {2 * STSZ}, v{vQA + i}")
    S(f"s_lshl_b32 s{sT1}, s{sW}, 12")
    S(f"v_lshl_add_u32 v{vV4}, v0, 4, s{sT1}")
    S(f"s_mul_i32 s{sWOF}, s{sW}, {4 * BLK}")

    def dma_regs(Z):
        for i in range(4):
            Z(f"v_add_u32 v{vD + i}, {i * 1024}, v{vV4}")
    dma_regs(S)
    S(f"v_mul_u32_u24 v{t0}, {BLK}, v{i16}")
    S(f"v_lshl_add_u32 v{t0}, v{g4}, 4, v{t0}")
    S(f"v_lshl_add_u32 v{t1}, v{g4}, 2, v{r4}")
    S(f"v_mul_u32_u24 v{t1}, {BLK}, v{t1}")
    S(f"v_lshl_add_u32 v{t1}, v{cq}, 3, v{t1}")
    for j in range(2):
        S(f"s_xor_b32 s{sT1}, s{sP}, {j}")
        S(f"s_lshl_b32 s{sT1}, s{sT1}, 9")
        S(f"v_add_u32 v{vVB + j}, s{sT1}, v{t1}")
        S(f"s_lshl_b32 s{sOO}, s{sP}, 7")
        S(f"s_add_u32 s{sT1}, s{sT1}, s{sOO}")
        S(f"v_add_u32 v{vKB + 2 * j}, s{sT1}, v{t0}")
        S(f"s_xor_b32 s{sT1}, s{sT1}, 128")
        S(f"v_add_u32 v{vKB + 2 * j + 1}, s{sT1}, v{t0}")
    if OPT["rot"]:
        S(f"s_mul_i32 s{sG0}, s2, {OPT['rot']}")
        S(f"s_lshr_b32 s{sT1}, s2, 4")
        S(f"s_add_u32 s{sG0}, s{sG0}, s{sT1}")
        S(f"s_and_b32 s{sG0}, s{sG0}, 15")
        S(f"s_mul_i32 s{sG0}, s{sG0}, {16384 * 7 // 4 // 16384 * 16384}")
    S(f"s_lshl_b32 s{sWP}, s2, 2")
    S(f"s_add_u32 s{sWP}, s{sWP}, s{sW}")
    S(f"s_mul_i32 s{sWP}, s{sWP}, 4608")
    S(f"v_min_u32 v7, 1, v0")
    S(f"v_lshlrev_b32 v7, 7, v7")
    S(f"s_lshl_b32 s{sDV}, s{sP}, 10")
    S(f"s_sub_u32 s{sDV}, 512, s{sDV}")
    S(f"v_min_u32 v{vCW}, 1, v0")
    S(f"s_lshr_b32 s{sT1}, s2, 3")
    S(f"s_lshl_b32 s{sT1}, s{sT1}, 2")
    S(f"s_add_u32 s{sT1}, s{sT1}, s{sW}")
    S(f"s_lshl_b32 s{sT1}, s{sT1}, 8")
    S(f"v_lshl_add_u32 v{vCW}, v{vCW}, 7, s{sT1}")
    S(f"v_min_u32 v{vCW}, L1_redo-L1_tail, v{vCW}")
    S(f"v_add_u32 v{vCW}, L1_tail-L1_pc, v{vCW}")
    S(f"v_mov_b32 v{t0}, 0x3f803f80")
    S(f"v_cmp_eq_u32 vcc, 0, v{cq}")
    S(f"s_mov_b32 s{sSC}, {QSCALE:#x}")
    S(f"s_mov_b32 s{sREDO}, 0")
    S(f"v_cndmask_b32 v{t0}, 0, v{t0}, vcc")
    for i in range(4):
        S(f"v_accvgpr_write_b32 a{ONES + i}, v{t0}")
    S(f"s_add_u32 s{sT1}, s{sXD}, {2 * STSZ + 6144}")
    S(f"v_lshl_add_u32 v{t0}, v0, 4, s{sT1}")
    S(f"s_xor_b32 s{sT1}, s{sW}, 1")
    S(f"s_lshl_b32 s{sT1}, s{sT1}, 13")
    S(f"s_add_u32 s{sT1}, s{sT1}, {XOFF + 2 * STSZ + 6144}")
    S(f"v_lshl_add_u32 v{t1}, v0, 4, s{sT1}")

    def loop_scalars(Z):
        if OPT["rot"]:
            Z(f"s_add_u32 s{sKVS}, s{sG0}, {DD * 16384}")
        else:
            Z(f"s_mov_b32 s{sKVS}, {DD * 16384}")
        Z(f"s_add_u32 s{sKD}, s{sWOF}, {(NS - 1) * HS}")
        Z(f"s_mov_b32 s{sVD}, s{sWOF}")
        Z(f"s_mov_b32 s{sKN}, {2 * HS}")
        Z(f"s_mov_b32 s{sVN}, {3 * HS}")
        Z(f"s_mov_b32 s{sCNT}, 28")
        Z(f"s_mov_b32 s{sSIDE}, 0")
        if Z is not S or not OPT["diag"]:
            Z(f"s_mov_b32 s{sINC}, 16384")
        if OPT["diag"]:
            Z("s_mov_b32 s41, 31")

    def loop_addr():
        return [f"v_add_u32 v{vK}, {2 * HS}, v{vKB}", f"v_add_u32 v{vK + 1}, {2 * HS}, v{vKB + 1}",
                f"v_mov_b32 v{vK + 2}, v{vKB + 2}", f"v_mov_b32 v{vK + 3}, v{vKB + 3}",
                f"v_add_u32 v{vV}, {HS}, v{vVB}", f"v_add_u32 v{vV + 1}, {HS}, v{vVB + 1}"]

    loop_scalars(S)
    for i in range(180):
        S(f"v_accvgpr_write_b32 a{i}, 0")
    setup = [x.strip() for x in S.l]
    for i_, p in enumerate(wg_pieces(0) + x_pieces(0)):
        A.ext(p)
        if OPT["fine"] and i_ in (0, 8):
            stamp(A)
    if OPT["fine"]:
        stamp(A)
        A("s_waitcnt vmcnt(12)")
        stamp(A)
        A("s_waitcnt vmcnt(0)")
        stamp(A)
        OPT["diag"] = 2
    npf = 0

    def tlb_touch():
        A(f"v_lshlrev_b32 v{t0}, 18, v0")
        A(f"s_cmp_eq_u32 s{sW}, 1")
        A("s_cbranch_scc1 L1_t1")
        A(f"s_cmp_eq_u32 s{sW}, 2")
        A("s_cbranch_scc1 L1_t2")
        A(f"s_cmp_eq_u32 s{sW}, 3")
        A("s_cbranch_scc1 L1_t3")
        A(f"s_lshl_b32 s{sT1}, s{sB}, 5")
        A(f"s_add_u32 s{sT1}, s{sT1}, s{sH}")
        A(f"s_lshl_b32 s{sT1}, s{sT1}, 19")
        A(f"v_min_u32 v{t0}, {1 << 18}, v{t0}")
        A(f"v_add_u32 v{t0}, s{sT1}, v{t0}")
        A(f"global_load_dword v{vDUM}, v{t0}, s[34:35] nt")
        A(f"global_load_dword v{vDUM}, v{t0}, s[36:37] nt")
        A("s_branch L1_td")
        A.label("L1_t1")
        A(f"v_min_u32 v{t0}, {17 << 18}, v{t0}")
        A(f"global_load_dword v{vDUM}, v{t0}, s[38:39]")
        A(f"global_load_dword v{vDUM}, v{t0}, s[30:31]")
        A("s_branch L1_td")
        A.label("L1_t2")
        A(f"v_lshlrev_b32 v{t1}, 20, v0")
        A(f"v_min_u32 v{t1}, {17 << 20}, v{t1}")
        A(f"v_add_u32 v{t1}, {OPT['wsoff'] << 20}, v{t1}")
        A(f"global_load_dword v{vDUM}, v{t1}, s[40:41] sc1 nt")
        A(f"v_min_u32 v{t0}, {10 << 18}, v{t0}")
        A(f"global_load_dword v{vDUM}, v{t0}, s[20:21] nt")
        A("s_branch L1_td")
        A.label("L1_t3")
        A(f"v_mov_b32 v{t1}, 0")
        A(f"global_load_dword v{vDUM}, v{t1}, s[22:23] sc1")
        A(f"v_min_u32 v{t0}, {10 << 18}, v{t0}")
        A(f"global_load_dword v{vDUM}, v{t0}, s[32:33]")
        A.label("L1_td")

    if OPT["tlb"] == 1:
        tlb_touch()
        npf = 2
    if OPT["pf"]:
        na = OPT["pfa"]
        A(f"v_min_u32 v{t0}, {9 * na - 1}, v0")
        A(f"v_mul_u32_u24 v{t1}, 57, v{t0}")
        A(f"v_lshrrev_b32 v{t1}, 9, v{t1}")
        A(f"v_mul_u32_u24 v{t2}, 9, v{t1}")
        A(f"v_sub_u32 v{t0}, v{t0}, v{t2}")
        A(f"v_mul_u32_u24 v248, 1152, v{t0}")
        A(f"s_and_b32 s{sT1}, s{sH}, 7")
        A(f"s_lshl_b32 s{sT1}, s{sT1}, 2")
        A(f"s_add_u32 s{sT1}, s{sT1}, s{sW}")
        A(f"s_mul_i32 s{sT1}, s{sT1}, {9 * 1152}")
        A(f"v_add_u32 v248, s{sT1}, v248")
        A(f"v_lshl_add_u32 v246, v{t1}, 7, v248")
        A(f"buffer_load_dword v{vDUM}, v246, {srd(SRD_X)}, 0 offen offset:128")
        A(f"v_bfe_u32 v{t0}, v0, 1, 2")
        A(f"v_lshlrev_b32 v249, 13, v{t0}")
        A(f"v_and_b32 v{t0}, 1, v0")
        A(f"v_lshl_add_u32 v249, v{t0}, 7, v249")
        A(f"s_and_b32 s{sT1}, s{sB}, 3")
        A(f"s_lshl_b32 s{sT1}, s{sT1}, 2")
        A(f"s_add_u32 s{sT1}, s{sT1}, s{sW}")
        A(f"s_lshl_b32 s{sT1}, s{sT1}, 15")
        A(f"v_add_u32 v249, s{sT1}, v249")
        A(f"v_lshrrev_b32 v{t0}, 3, v0")
        A(f"v_min_u32 v{t0}, {na - 1}, v{t0}")
        A(f"v_lshl_add_u32 v247, v{t0}, 19, v249")
        A(f"s_mov_b32 s{sT1}, {1 << 19}")
        A(f"buffer_load_dword v{vDUM}, v247, {srd(SRD_W)}, s{sT1} offen")
        npf = 2
    first = []
    for c in range(1, OPT["up"]):
        first += wg_pieces(c) + x_pieces(c)
    per = len(setup) // (len(first) + 1) + 1
    stamp(A)
    for p in [[]] + first:
        A.ext(p)
        for _ in range(per):
            if setup:
                for y in setup.pop(0).split(" | "):
                    A(y)
    assert not setup
    stamp(A)
    A(f"s_waitcnt vmcnt({len(first) + npf})")
    A("s_barrier")
    stamp(A)
    P = lambda n: [item_piece(n, i) for i in range(4)]
    kw = [f"global_load_dword v{vDUM}, v{vCW}, s[{sPC}:{sPC + 1}]"] if OPT["cpf"] else []
    kw = [f"buffer_load_dword v{vDUM}, v7, {srd(SRD_P)}, s{sWP} offen"] if OPT["wopf"] == 2 else []
    if OPT["stg"] == 0:
        extras = {4: P(0), 5: P(1), 6: P(2)}
        al = P(0) + P(1) + P(2)
        if OPT["kvs"] == 1:
            extras = {4: al[0:3], 5: al[3:6], 6: al[6:8], 7: al[8:12]}
        if OPT["kvs"] >= 4:
            extras = {4: al[:OPT["kvs"]]}
            if OPT["kvs"] < 12:
                extras[7] = al[OPT["kvs"]:]
    else:
        extras = {7: P(0) + P(1) + P(2)}
    if DD == 4:
        extras[8] = P(3) + P(4) + P(5)
        late = P(6) + P(7)
        late[0] = kw + late[0]
        late[7] = late[7] + kw
    elif DD == 3:
        extras[8] = P(3)
        late = P(4) + P(5)
        late[7] = late[7] + kw
    else:
        extras[8] = P(3)
        late = [[]] * 8
    if OPT["pf"]:
        for c in range(OPT["pfa"] + 1, 9):
            at = max(0, c - OPT["pf"])
            extras[at] = extras.get(at, []) + [
                [f"buffer_load_dword v{vDUM}, v248, {srd(SRD_X)}, 0 offen offset:{c * 128}"],
                [f"s_mov_b32 s{sT0}, {c << 19}", f"buffer_load_dword v{vDUM}, v249, {srd(SRD_W)}, s{sT0} offen"]]
    if OPT["wopf"] == 1:
        extras[7] = extras.get(7, []) + [[f"v_lshlrev_b32 v253, 7, v0", f"v_min_u32 v253, {35 * 128}, v253",
                      f"buffer_load_dword v{vDUM}, v253, {srd(SRD_P)}, s{sWP} offen"]]

    def conv(t, kk):
        src = ACC + 32 * t + 8 * kk
        dst = QV + 16 * t + 4 * kk
        o = []
        for i in range(4):
            o += [f"v_mul_f32 v{src + 2 * i}, s{sSC}, v{src + 2 * i}", f"v_mul_f32 v{src + 2 * i + 1}, s{sSC}, v{src + 2 * i + 1}"]
        for i in range(4):
            o.append(f"v_cvt_pk_bf16_f32 v{dst + i}, v{src + 2 * i}, v{src + 2 * i + 1}")
        return o

    KF = [184, 224]
    k0reads = [kread(ar(KF[kb] + 4 * kk, 4), vKB, kb, kk) for kb in range(2) for kk in range(4)]
    ti = []

    def spread(lst, g0, g1):
        for i, x in enumerate(lst):
            ti.append((g0 + (i * (g1 - g0)) // len(lst), x))

    spread(conv(4, 0) + conv(0, 0) + conv(1, 0) + conv(2, 0), 13, 22)
    spread(conv(4, 1) + [f"ds_write_b128 v{t0}, {vr(QV + 64, 4)}", f"ds_write_b128 v{t0}, {vr(QV + 68, 4)} offset:1024"]
           + conv(3, 0) + conv(0, 1), 22, 29)
    ti.append((29, "BAR"))
    spread([f"ds_read_b128 {vr(QV + 72, 4)}, v{t1}", f"ds_read_b128 {vr(QV + 76, 4)}, v{t1} offset:1024"] + k0reads[:4]
           + conv(1, 1) + k0reads[4:] + conv(2, 1) + conv(3, 1), 29, 36)
    nb = [i for i, x in enumerate(ti) if x[1] == "BAR"][0]
    ti[nb:nb + 1] = [(29, "VMW"), (29, "s_barrier")]
    qp, issued = build_qproj(extras, OPT["up"], ti, {6: [f"s_load_dwordx4 s[{sOUTP}:{sOUTP + 3}], s[0:1], 40"], 8: p3_setup()})
    vms = [x for x in qp if x.startswith(("buffer_load", "global_load"))]
    lastv0 = max(i for i, x in enumerate(vms) if x == P(1)[3][-1] and i == min(k for k, y in enumerate(vms) if y == x))
    ny = len(vms) - 1 - lastv0
    qp = [(f"s_waitcnt vmcnt({ny}) lgkmcnt(0)" if x == "VMW" else x) for x in qp]
    A.ext(tidy(qp) if OPT['tidy'] else qp)
    stamp(A)
    body, pro, tail = build_loop()

    def qk0(kb, kk, useneg):
        o = []
        for t in range(5):
            Sx = Sreg(t, 0) + 4 * kb
            C = (vr(NEG + 4 * t, 4) if useneg else "0") if kk == 0 else vr(Sx, 4)
            o.append(f"{MF} {vr(Sx, 4)}, {ar(KF[kb] + 4 * kk, 4)}, {vr(QV + 16 * t + 4 * kk, 4)}, {C}")
        return o

    def mix(mf, fill):
        n = len(mf)
        o = []
        for i, m in enumerate(mf):
            o.append(m)
            o += fill[(i * len(fill)) // n:((i + 1) * len(fill)) // n]
        A.ext(tidy(o) if OPT['tidy'] else o)

    flat = lambda ps: [x for p in ps for x in p]
    pro_rd = [x for x in pro if is_ds(x)]
    pro_sm = [x for x in pro if not is_ds(x)]
    A.ext(conv(0, 2) + flat(late[0:2]) + conv(0, 3))
    A("s_waitcnt lgkmcnt(0)")
    mix(qk0(0, 0, False) + qk0(0, 1, False), conv(1, 2) + conv(2, 2) + conv(3, 2) + flat(late[2:4]))
    mix(qk0(0, 2, False), conv(1, 3) + conv(2, 3) + conv(3, 3))
    A("s_nop 0")
    A.ext(qk0(0, 3, False))
    A.ext(loop_addr())
    A.ext(pro_rd)
    A.ext(flat(late[4:6]))
    for t in range(5):
        Sx = Sreg(t, 0)
        A(f"v_max3_f32 v{vM + t}, v{Sx}, v{Sx + 1}, v{Sx + 2}")
    for t in range(5):
        A(f"v_max_f32 v{vM + t}, v{vM + t}, v{Sreg(t, 0) + 3}")

    def xlane5(Z, op, base, tmp):
        for sw in ("v_permlane32_swap_b32", "v_permlane16_swap_b32"):
            for t in range(5):
                Z(f"v_mov_b32 v{tmp + t}, v{base + t}")
            for t in range(5):
                Z(f"{sw} v{base + t}, v{tmp + t}")
            for t in range(5):
                Z(f"{op} v{base + t}, v{base + t}, v{tmp + t}")

    xlane5(A, "v_max_f32", vM, vM + 8)
    for t in range(5):
        for i in range(4):
            A(f"v_sub_f32 v{NEG + 4 * t + i}, 0, v{vM + t}")
    subs = [f"v_sub_f32 v{Sreg(t, 0) + i}, v{Sreg(t, 0) + i}, v{vM + t}" for t in range(5) for i in range(4)]
    kb0regs = {Sreg(t, 0) + i for t in range(5) for i in range(4)}

    def srcs(x):
        return [int(z.strip()[1:]) for z in x.split(None, 1)[1].split(",")[1:]]
    sm0 = [x for x in pro_sm if all(r in kb0regs for r in srcs(x))]
    sm1 = [x for x in pro_sm if x not in sm0]

    def safe(lst):
        o, prev = [], ""
        for x in lst:
            if prev.startswith("v_exp") and x.startswith("v_cvt"):
                o.append("s_nop 0")
            o.append(x)
            prev = x
        return o
    A.ext(flat(late[6:8]))
    mix(flat([qk0(1, kk, True) for kk in range(4)]), subs + safe(sm0))
    A("s_nop 3")
    A.label("L1_presm")
    A.ext(safe(sm1))
    A("s_waitcnt lgkmcnt(0)")
    stamp(A)
    if OPT["dspin"]:
        A("s_memrealtime s[64:65]")
    A.raw(".p2align 6")
    A.label("L1_loop")
    if OPT["diag"]:
        A(f"s_mov_b32 m0, s41")
        A("s_sub_u32 s41, s41, 1")
        A("v_writelane_b32 v250, s90, m0")
        A("v_writelane_b32 v251, s96, m0")
        A("s_memtime s[90:91]")
        A("s_memrealtime s[96:97]")
    A.ext(body)
    A("s_branch L1_loop")
    errs = hazard.check(body + body, "loop")
    side_block(A)
    A.label("L1_tail")
    T0 = len(A.l)
    if OPT["dspin"]:
        A("s_memrealtime s[66:67]")
    stamp(A)
    tail_rd = [x for x in tail if is_ds(x)]
    tail_sm = [x for x in tail if not is_ds(x)]
    if OPT['tail2']:
        ofl = FLAGS[OPT["ostflag"]]
        ones = [f"{MF} {ar(LA + 4 * t, 4)}, {ar(ONES, 4)}, {vr(Sreg(t, 1), 4)}, {ar(LA + 4 * t, 4)}" for t in range(4)]

        def pv(t):
            return [f"{MF} {ar(OA + 32 * t + 4 * dt, 4)}, {ar(RING + 32 + 4 * dt, 4)}, {vr(Sreg(t, 1), 4)}, {ar(OA + 32 * t + 4 * dt, 4)}"
                    for dt in range(8)]

        def norm_store(t, tmp, pk):
            o = []
            if t:
                o.append(f"s_add_u32 s{sT0}, s{sT0}, {QP}")
            for s in range(4):
                b = tmp + 8 * s
                for e in range(8):
                    o.append(f"v_accvgpr_read_b32 v{b + e}, a{OA + 32 * t + 8 * s + e}")
                if pk:
                    for e in range(4):
                        o.append(f"v_pk_mul_f32 {vr(b + 2 * e, 2)}, {vr(b + 2 * e, 2)}, {vr(120 + 2 * t, 2)} op_sel_hi:[1,0]")
                else:
                    for e in range(8):
                        o.append(f"v_mul_f32 v{b + e}, v{120 + 2 * t}, v{b + e}")
                for e in range(4):
                    o.append(f"v_cvt_pk_bf16_f32 v{b + e}, v{b + 2 * e}, v{b + 2 * e + 1}")
                of = f" offset:{s * 1024}" if s else ""
                o.append(f"buffer_store_dwordx4 {vr(b, 4)}, v{t2}, {srd(SRD_O)}, s{sT0} offen{of}{ofl}")
            return o

        t0regs = set(range(Sreg(0, 1), Sreg(0, 1) + 8))
        assert not any(r in t0regs for x in tail_sm for r in srcs(x)), "tile 0 softmax must be complete at the exit"
        Lr = 114
        wr = [f"ds_write_b128 v{t0}, {ar(OA + 128 + 4 * i, 4)} offset:{(i // 4) * HS + (i % 4) * 1024}" for i in range(8)]
        misc = [f"s_mul_i32 s{sOO}, s{sB}, 18", f"s_lshl_b32 s{sT0}, s{sW}, 2", f"s_add_u32 s{sT0}, s{sT0}, s{sOO}",
                f"s_mul_i32 s{sT0}, s{sT0}, {QP}", f"s_lshr_b32 s{sKN}, s{sH}, 3", f"s_mul_i32 s{sKN}, s{sKN}, {OPT['gpad']}",
                f"s_lshl_b32 s{sVN}, s{sH}, 12", f"s_add_u32 s{sKN}, s{sKN}, s{sVN}", f"s_add_u32 s{sT0}, s{sT0}, s{sKN}",
                f"v_lshlrev_b32 v{t2}, 4, v0"]
        A.ext(tail_rd[:8])
        A(ones[0])
        A.ext(tail_rd[8:])
        A.ext(misc)
        A(f"v_accvgpr_read_b32 v{Lr}, a{LA}")
        A(f"s_add_u32 s{sT1}, s{sWOF}, {TS * HS}")
        A(f"v_rcp_f32 v120, v{Lr}")
        A(f"v_lshl_add_u32 v{t0}, v0, 4, s{sT1}")
        A("s_waitcnt lgkmcnt(8)")
        sm = safe(tail_sm)
        mix(pv(0)[:4], sm[:8])
        A("s_waitcnt lgkmcnt(0)")
        n0 = norm_store(0, 16, False)
        mix(pv(0)[4:], sm[8:])
        mix(ones[1:] + pv(1)[:5], n0[:21])
        mix(pv(1)[5:] + pv(2)[:5], n0[21:42])
        st = [f"v_accvgpr_read_b32 v{Lr + t}, a{LA + 4 * t}" for t in range(1, 5)]
        st += [f"s_lshl_b32 s{sT1}, s{sW}, 10", f"s_add_u32 s{sT1}, s{sT1}, {STATS}", f"v_lshl_add_u32 v{t1}, v0, 4, s{sT1}",
               f"v_add_f32 v128, v{Lr}, v{Lr + 1}", f"v_add_f32 v129, v{Lr + 2}, v{Lr + 3}", f"v_add_f32 v128, v128, v{Lr + 4}",
               f"v_add_f32 v128, v128, v129", f"v_mov_b32 v129, {f32bits(2.0 ** OPT['thr']):#x}", f"v_cmp_nlt_f32 vcc, v128, v129",
               f"v_mov_b32 v132, v{Lr + 4}", f"v_mov_b32 v133, v{NEG + 16}", f"v_mov_b32 v135, 0", f"v_cndmask_b32 v134, 0, 1, vcc",
               f"ds_write_b128 v{t1}, {vr(132, 4)}"]
        st += [f"v_rcp_f32 v{120 + 2 * t}, v{Lr + t}" for t in range(1, 4)]
        mix(pv(2)[5:] + pv(3), n0[42:63] + wr[:4])
        A.ext(wr[4:] + norm_store(0, 16, True)[51:] + st)
    else:
        A.ext(tail_rd)
        A.ext(safe(tail_sm))
        A(f"s_add_u32 s{sT0}, s{sWOF}, {TS * HS}")
        A(f"v_lshl_add_u32 v{t0}, v0, 4, s{sT0}")
        A("s_waitcnt lgkmcnt(0)")
        ones = [f"{MF} {ar(LA + 4 * t, 4)}, {ar(ONES, 4)}, {vr(Sreg(t, 1), 4)}, {ar(LA + 4 * t, 4)}" for t in range(4)]

        def pv(t):
            return [f"{MF} {ar(OA + 32 * t + 4 * dt, 4)}, {ar(RING + 32 + 4 * dt, 4)}, {vr(Sreg(t, 1), 4)}, {ar(OA + 32 * t + 4 * dt, 4)}"
                    for dt in range(8)]
        wr = [f"ds_write_b128 v{t0}, {ar(OA + 128 + 4 * i, 4)} offset:{(i // 4) * HS + (i % 4) * 1024}" for i in range(8)]
        misc = [f"v_lshlrev_b32 v{t2}, 4, v0",
                f"s_mul_i32 s{sOO}, s{sB}, 18", f"s_lshl_b32 s{sT0}, s{sW}, 2", f"s_add_u32 s{sT0}, s{sT0}, s{sOO}",
                f"s_mul_i32 s{sT0}, s{sT0}, {QP}", f"s_lshr_b32 s{sKN}, s{sH}, 3", f"s_mul_i32 s{sKN}, s{sKN}, {OPT['gpad']}",
                f"s_lshl_b32 s{sVN}, s{sH}, 12", f"s_add_u32 s{sKN}, s{sKN}, s{sVN}", f"s_add_u32 s{sT0}, s{sT0}, s{sKN}",
                f"s_lshl_b32 s{sT1}, s{sW}, 10", f"s_add_u32 s{sT1}, s{sT1}, {STATS}", f"v_lshl_add_u32 v{t1}, v0, 4, s{sT1}"]
        mix(ones + pv(0), wr + misc)
        Lr = 114
        st = [f"v_accvgpr_read_b32 v{Lr + t}, a{LA + 4 * t}" for t in range(5)]
        st += [f"v_add_f32 v128, v{Lr}, v{Lr + 1}", f"v_add_f32 v129, v{Lr + 2}, v{Lr + 3}", f"v_add_f32 v128, v128, v{Lr + 4}",
               f"v_add_f32 v128, v128, v129", f"v_mov_b32 v129, {f32bits(2.0 ** OPT['thr']):#x}", f"v_cmp_nlt_f32 vcc, v128, v129",
               f"v_mov_b32 v132, v{Lr + 4}", f"v_mov_b32 v133, v{NEG + 16}", f"v_mov_b32 v135, 0", f"v_cndmask_b32 v134, 0, 1, vcc",
               f"ds_write_b128 v{t1}, {vr(132, 4)}"]
        st += [f"v_rcp_f32 v{120 + 2 * t}, v{Lr + t}" for t in range(4)]
        mix(pv(1), st)
        ofl = FLAGS[OPT["ostflag"]]

        def norm_store(t, tmp, pk):
            o = []
            if t:
                o.append(f"s_add_u32 s{sT0}, s{sT0}, {QP}")
            for s in range(4):
                b = tmp + 8 * s
                for e in range(8):
                    o.append(f"v_accvgpr_read_b32 v{b + e}, a{OA + 32 * t + 8 * s + e}")
                if pk:
                    for e in range(4):
                        o.append(f"v_pk_mul_f32 {vr(b + 2 * e, 2)}, {vr(b + 2 * e, 2)}, {vr(120 + 2 * t, 2)} op_sel_hi:[1,0]")
                else:
                    for e in range(8):
                        o.append(f"v_mul_f32 v{b + e}, v{120 + 2 * t}, v{b + e}")
                for e in range(4):
                    o.append(f"v_cvt_pk_bf16_f32 v{b + e}, v{b + 2 * e}, v{b + 2 * e + 1}")
                of = f" offset:{s * 1024}" if s else ""
                o.append(f"buffer_store_dwordx4 {vr(b, 4)}, v{t2}, {srd(SRD_O)}, s{sT0} offen{of}{ofl}"
                         + (f" | buffer_store_dwordx4 {vr(b, 4)}, v{t2}, {srd(SRD_O)}, s{sT0} offen{of}" if OPT["dst"] else ""))
            return o

        n0 = norm_store(0, 16, False)
        mix(pv(2) + pv(3), n0[:42])
        A.ext(norm_store(0, 16, True)[34:])
    A("s_waitcnt lgkmcnt(0)")
    A("s_barrier")
    A(f"s_and_b32 s{sT1}, s{sW}, 2")
    A(f"s_mul_i32 s{sT1}, s{sT1}, {4 * BLK}")
    A(f"s_mul_i32 s{sT2}, s{sP}, {HS}")
    A(f"s_add_u32 s{sT1}, s{sT1}, s{sT2}")
    A(f"s_add_u32 s{sT1}, s{sT1}, {TS * HS}")
    A(f"v_lshl_add_u32 v{t0}, v0, 4, s{sT1}")
    A(f"s_and_b32 s{sT1}, s{sW}, 2")
    A(f"s_lshl_b32 s{sT1}, s{sT1}, 10")
    A(f"v_lshl_add_u32 v{t1}, v0, 4, s{sT1}")
    A(f"v_xor_b32 v1, 2048, v{t1}")
    A(f"v_add_u32 v{t1}, {STATS}, v{t1}")
    A(f"v_add_u32 v1, {STATS}, v1")
    A(f"ds_read_b128 {vr(88, 4)}, v{t1}")
    A(f"ds_read_b128 {vr(92, 4)}, v{t1} offset:1024")
    A(f"ds_read_b128 {vr(96, 4)}, v1")
    A(f"ds_read_b128 {vr(100, 4)}, v1 offset:1024")
    for w in range(2):
        for q in range(4):
            A(f"ds_read_b128 {vr(128 + 16 * w + 4 * q, 4)}, v{t0} offset:{w * 4 * BLK + q * 1024}")
    A.ext(norm_store(1, 48, True))
    A("s_waitcnt lgkmcnt(0)")
    A("v_or3_b32 v104, v90, v94, v98")
    A("v_or_b32 v104, v104, v102")
    A("v_cmp_ne_u32 vcc, 0, v104")
    A("v_min_f32 v105, v89, v93")
    A("v_sub_f32 v89, v105, v89")
    A("v_sub_f32 v93, v105, v93")
    A("v_exp_f32 v89, v89")
    A("v_exp_f32 v93, v93")
    A(f"s_cmp_lg_u64 vcc, 0")
    A(f"s_cselect_b32 s{sT1}, 1, 0")
    A(f"s_cmp_gt_u32 s{sT1}, s{sREDO}")
    A("s_cbranch_scc1 L1_redo")
    A("v_mul_f32 v105, v88, v89")
    A("v_fmac_f32 v105, v92, v93")
    A("v_rcp_f32 v105, v105")
    A(f"s_lshr_b32 s{sT1}, s{sW}, 1")
    A(f"s_add_u32 s{sT1}, s{sT1}, s{sOO}")
    A(f"s_add_u32 s{sT1}, s{sT1}, 16")
    A(f"s_mul_i32 s{sT1}, s{sT1}, {QP}")
    A(f"s_add_u32 s{sT1}, s{sT1}, s{sKN}")
    A(f"s_lshl_b32 s{sT2}, s{sP}, 11")
    A(f"s_add_u32 s{sT1}, s{sT1}, s{sT2}")
    A("v_mul_f32 v89, v105, v89")
    A("v_mul_f32 v93, v105, v93")
    for e in range(16):
        A(f"v_mul_f32 v{128 + e}, v89, v{128 + e}")
    for e in range(16):
        A(f"v_fmac_f32 v{128 + e}, v93, v{144 + e}")
    for e in range(8):
        A(f"v_cvt_pk_bf16_f32 v{144 + e}, v{128 + 2 * e}, v{128 + 2 * e + 1}")
    for q in range(2):
        of = " offset:1024" if q else ""
        A(f"buffer_store_dwordx4 {vr(144 + 4 * q, 4)}, v{t2}, {srd(SRD_O)}, s{sT1} offen{of}{ofl}")
        if OPT["dst"]:
            A(f"buffer_store_dwordx4 {vr(144 + 4 * q, 4)}, v{t2}, {srd(SRD_O)}, s{sT1} offen{of}")
    rest = norm_store(2, 16, True) + norm_store(3, 48, True)
    if OPT["fuse"]:
        p3(A, rest)
    else:
        A.ext(rest)
    gx = [i for i, x in enumerate(body) if "L1_side" in x][0]
    errs += hazard.check(body[:gx + 1] + A.l[T0:T0 + 60], "exit")
    if OPT["diag"]:
        if not OPT["fuse"]:
            stamp(A)
        A("s_waitcnt vmcnt(0)")
        stamp(A)
        A("s_memrealtime s[94:95]")
        A("s_waitcnt lgkmcnt(0)")
        A("v_writelane_b32 v250, s92, 62")
        A("v_writelane_b32 v250, s94, 63")
        for i in range(stamp_n[0]):
            A(f"v_writelane_b32 v250, s{sST + 2 * i}, {50 + i}")
        A("v_writelane_b32 v250, s90, 32")
        A("v_writelane_b32 v251, s96, 32")
        A(f"s_lshl_b32 s{sT0}, s2, 2")
        A(f"s_add_u32 s{sT0}, s{sT0}, s{sW}")
        A(f"s_lshl_b32 s{sT0}, s{sT0}, 8")
        A(f"s_add_u32 s{sT0}, s{sT0}, {DIAG_OFF}")
        A(f"v_lshlrev_b32 v{t0}, 2, v0")
        A(f"buffer_store_dword v250, v{t0}, {srd(SRD_O)}, s{sT0} offen")
        A(f"s_add_u32 s{sT0}, s{sT0}, {1 << 19}")
        A(f"buffer_store_dword v251, v{t0}, {srd(SRD_O)}, s{sT0} offen")
        if OPT["fuse"]:
            for i in range(3):
                A(f"v_writelane_b32 v251, s{78 + 2 * i}, {i}")
            A("v_writelane_b32 v251, s94, 3")
            A(f"s_add_u32 s{sT0}, s{sT0}, {1 << 19}")
            A(f"buffer_store_dword v251, v{t0}, {srd(SRD_O)}, s{sT0} offen")
            if OPT["dbg"]:
                for ln, src in ((4, 30), (5, 22), (6, 14), (7, 32)):
                    A(f"v_readlane_b32 s{sT1}, v251, {src}")
                    A("s_nop 3")
                    A(f"v_writelane_b32 v251, s{sT1}, {ln}")
                A("v_subrev_u32 v251, s92, v251")
                A(f"v_lshlrev_b32 v{t0}, 3, v0")
                A("s_cmp_ge_u32 s2, 216")
                A("s_cbranch_scc1 L1_end")
                A("s_mov_b64 exec, 0xff")
                A(f"buffer_atomic_umax v251, v{t0}, {srd(SRD_W)}, 0 offen offset:4")
    if OPT["dspin"]:
        A("s_waitcnt vmcnt(0)")
        A("s_memrealtime s[68:69]")
        A("s_waitcnt lgkmcnt(0)")
        a_, b_ = {1: (62, 62), 2: (64, 62), 3: (66, 64), 4: (68, 66)}[OPT["dspin"]]
        A(f"s_sub_u32 s70, s{a_}, s{b_}")
        A("s_add_u32 s70, s70, 20000")
        A.label("L1_ds")
        A("s_memrealtime s[72:73]")
        A("s_waitcnt lgkmcnt(0)")
        A("s_sub_u32 s71, s72, s62")
        A("s_cmp_lt_u32 s71, s70")
        A("s_cbranch_scc1 L1_ds")
    A.label("L1_end")
    A("s_endpgm")
    A.label("L1_redo")
    A(f"s_mov_b32 s{sREDO}, 1")
    A("s_waitcnt vmcnt(0) lgkmcnt(0)")
    A("s_barrier")
    A("s_load_dwordx4 s[32:35], s[0:1], 8")
    A(f"s_lshl_b32 s{sT1}, s{sB}, 5")
    A(f"s_add_u32 s{sT1}, s{sT1}, s{sH}")
    A(f"s_lshl_b32 s{sT1}, s{sT1}, 19")
    A("s_waitcnt lgkmcnt(0)")
    A(f"s_add_u32 s{SRD_K}, s32, s{sT1}")
    A(f"s_addc_u32 s{SRD_K + 1}, s33, 0")
    A(f"s_mov_b32 s{SRD_K + 2}, 524288")
    A(f"s_add_u32 s{SRD_V}, s34, s{sT1}")
    A(f"s_addc_u32 s{SRD_V + 1}, s35, 0")
    A(f"s_mov_b32 s{SRD_V + 2}, 524288")
    dma_regs(A)
    for n in range(2 * DD):
        for p in P(n):
            A.ext(p)
    for t in range(5):
        A(f"v_mov_b32 v{vM + t}, 0xff800000")
    A(f"v_lshlrev_b32 v{t0}, 8, v{i16}")
    A(f"v_lshl_add_u32 v{t0}, v{g4}, 4, v{t0}")
    A(f"s_lshl_b32 s{sT1}, s{sP}, 7")
    A(f"v_add_u32 v{t0}, s{sT1}, v{t0}")
    A(f"v_xor_b32 v{t1}, 128, v{t0}")
    A(f"s_mov_b32 s{sT1}, 0")
    A.label("L1_mx")
    for kk in range(4):
        o = f" offset:64" if kk & 1 else ""
        A(f"buffer_load_dwordx4 {vr(136 + 4 * kk, 4)}, v{t0 + (kk >> 1)}, {srd(SRD_K)}, s{sT1} offen{o}")
    A("s_waitcnt vmcnt(0)")
    for kk in range(4):
        for t in range(5):
            C = "0" if kk == 0 else vr(16 + 4 * t, 4)
            A(f"{MF} {vr(16 + 4 * t, 4)}, {vr(136 + 4 * kk, 4)}, {vr(QV + 16 * t + 4 * kk, 4)}, {C}")
    A("s_nop 7")
    for t in range(5):
        A(f"v_max3_f32 v{vM + t}, v{vM + t}, v{16 + 4 * t}, v{17 + 4 * t}")
        A(f"v_max3_f32 v{vM + t}, v{vM + t}, v{18 + 4 * t}, v{19 + 4 * t}")
    A(f"s_add_u32 s{sT1}, s{sT1}, 4096")
    A(f"s_cmp_lt_u32 s{sT1}, {4096 if OPT['twice'] else 524288}")
    A("s_cbranch_scc1 L1_mx")
    xlane5(A, "v_max_f32", vM, vM + 8)
    for t in range(5):
        for i in range(4):
            A(f"v_sub_f32 v{NEG + 4 * t + i}, 0, v{vM + t}")
    for i in range(180):
        A(f"v_accvgpr_write_b32 a{i}, 0")
    A.ext(loop_addr())
    loop_scalars(A)
    A("s_barrier")
    A.ext(k0reads)
    A("s_waitcnt lgkmcnt(0)")
    for kb in range(2):
        for kk in range(4):
            A.ext(qk0(kb, kk, True))
    A.ext(pro_rd)
    A("s_nop 7")
    A.ext(safe(sm0))
    A("s_branch L1_presm")
    return errs


def k2(A):
    DEP = 4
    SRD_A, SRD_WO, SRD_OUT = 4, 8, 12
    sW, sMT, sNT, sT0, sT1, sAS, sBS, sLD, sCNT = 16, 17, 18, 19, 20, 21, 22, 23, 24
    vA, vBD, vBR, t0, t1 = 2, 8, 9, 13, 14
    ACC2, ORING, WF = 16, 112, 208
    A.raw(".p2align 8")
    A.raw(".globl oproj_kernel")
    A.raw(".type oproj_kernel,@function")
    A.label("oproj_kernel")
    A(f"s_cmp_ge_u32 s2, {OPT['k2grid']}")
    A("s_cbranch_scc1 L2_end")
    A("s_load_dwordx4 s[32:35], s[0:1], 32")
    A("s_load_dwordx2 s[36:37], s[0:1], 56")
    if OPT["diag"]:
        A("s_memrealtime s[60:61]")
    A("v_lshrrev_b32 v1, 6, v0")
    A("v_and_b32 v0, 63, v0")
    A(f"v_readfirstlane_b32 s{sW}, v1")
    A("s_and_b32 s25, s2, 7")
    A("s_lshr_b32 s26, s2, 3")
    A(f"s_mul_i32 s{sNT}, s26, 43")
    A(f"s_lshr_b32 s{sNT}, s{sNT}, 7")
    A(f"s_mul_i32 s{sT0}, s{sNT}, 3")
    A(f"s_sub_u32 s{sT0}, s26, s{sT0}")
    A(f"s_mul_i32 s{sMT}, s25, 3")
    A(f"s_add_u32 s{sMT}, s{sMT}, s{sT0}")
    A(f"v_lshlrev_b32 v{vA}, 4, v0")
    for i in range(1, 6):
        A(f"v_add_u32 v{vA + i}, {i * 131072}, v{vA}")
    A(f"v_lshrrev_b32 v{t0}, 3, v0")
    A(f"v_mul_u32_u24 v{vBD}, 1152, v{t0}")
    A(f"v_lshrrev_b32 v{t0}, 4, v0")
    A(f"v_lshlrev_b32 v{t0}, 1, v{t0}")
    A(f"v_and_b32 v{t1}, 7, v0")
    A(f"v_xor_b32 v{t0}, v{t0}, v{t1}")
    A(f"v_lshl_add_u32 v{vBD}, v{t0}, 4, v{vBD}")
    A(f"v_lshrrev_b32 v{t0}, 2, v0")
    A(f"v_lshlrev_b32 v{vBR}, 7, v{t0}")
    A(f"v_bfe_u32 v{t0}, v0, 3, 2")
    A(f"v_lshl_add_u32 v{vBR}, v{t0}, 5, v{vBR}")
    A(f"v_and_b32 v{t0}, 3, v0")
    A(f"v_lshl_add_u32 v{vBR}, v{t0}, 3, v{vBR}")
    A(f"s_mul_i32 s{sLD}, s{sW}, {DEP * 4096}")
    A(f"v_add_u32 v{vBR}, s{sLD}, v{vBR}")
    for n in range(1, 4):
        A(f"v_xor_b32 v{vBR + n}, {32 * n}, v{vBR}")
    A("s_waitcnt lgkmcnt(0)")
    A(f"s_mov_b32 s{SRD_A}, s36")
    A(f"s_mov_b32 s{SRD_A + 1}, s37")
    A(f"s_mov_b32 s{SRD_A + 2}, {(DIAG_OFF + (2 << 20)) if OPT['diag'] else WS_O_BYTES}")
    A(f"s_mov_b32 s{SRD_A + 3}, 0x20000")
    A(f"s_mov_b32 s{SRD_WO}, s32")
    A(f"s_mov_b32 s{SRD_WO + 1}, s33")
    A(f"s_mov_b32 s{SRD_WO + 2}, {4096 * 1152}")
    A(f"s_mov_b32 s{SRD_WO + 3}, 0x20000")
    A(f"s_mov_b32 s{SRD_OUT}, s34")
    A(f"s_mov_b32 s{SRD_OUT + 1}, s35")
    A(f"s_mov_b32 s{SRD_OUT + 2}, {2304 * 1152}")
    A(f"s_mov_b32 s{SRD_OUT + 3}, 0x20000")
    A(f"s_mul_i32 s{sAS}, s{sMT}, 786432")
    A(f"s_lshl_b32 s{sT0}, s{sW}, 15")
    A(f"s_add_u32 s{sAS}, s{sAS}, s{sT0}")
    A(f"s_mul_i32 s{sBS}, s{sW}, {1024 * 1152}")
    A(f"s_lshl_b32 s{sT0}, s{sNT}, 7")
    A(f"s_add_u32 s{sBS}, s{sBS}, s{sT0}")
    WN = OPT["k2rot"]
    sA0, sB0, sPH, sI = 27, 28, 29, 30

    def blk_addr():
        return [f"s_add_u32 s{sT1}, s{sI}, s{sPH}", f"s_and_b32 s{sT1}, s{sT1}, {WN - 1}",
                f"s_and_b32 s31, s{sI}, {(~(WN - 1)) & 0xff}", f"s_or_b32 s{sT1}, s{sT1}, s31",
                f"s_mul_i32 s{sBS}, s{sT1}, {DEP * 32 * 1152}", f"s_add_u32 s{sBS}, s{sBS}, s{sB0}",
                f"s_lshl_b32 s{sAS}, s{sT1}, 12", f"s_add_u32 s{sAS}, s{sAS}, s{sA0}", f"s_add_u32 s{sI}, s{sI}, 1"]
    A(f"s_mov_b32 s{sA0}, s{sAS}")
    A(f"s_mov_b32 s{sB0}, s{sBS}")
    A(f"s_mul_i32 s{sPH}, s{sMT}, {OPT['k2mul']}")
    A(f"s_add_u32 s{sPH}, s{sPH}, s{sNT}")
    A(f"s_mov_b32 s{sI}, 0")
    A.ext(blk_addr())

    def loads(d):
        o = []
        for i in range(4):
            o.append([f"s_add_u32 m0, s{sLD}, {d * 4096 + i * 1024}",
                      f"s_add_u32 s{sT0}, s{sBS}, {(32 * d + 8 * i) * 1152}",
                      f"buffer_load_dwordx4 v{vBD}, {srd(SRD_WO)}, s{sT0} offen lds"])
        off = f" offset:{d * 1024}" if d else ""
        for i in range(6):
            o.append([f"buffer_load_dwordx4 {vr(ORING + 24 * d + 4 * i, 4)}, v{vA + i}, {srd(SRD_A)}, s{sAS} offen{off}"])
        return o

    def wreads(d):
        b = WF + 16 * (d % 2)
        return [f"ds_read_b64_tr_b16 {vr(b + 4 * n + 2 * e, 2)}, v{vBR + n} offset:{d * 4096 + e * 2048}"
                for n in range(4) for e in range(2)]

    zi = 0
    for d in range(DEP - 1):
        for g in loads(d):
            A.ext(g)
            for _ in range(4):
                if zi < 96:
                    A(f"v_mov_b32 v{ACC2 + zi}, 0")
                    zi += 1
    assert zi == 96
    A(f"s_mov_b32 s{sCNT}, {32 // DEP}")
    A(f"s_waitcnt vmcnt({10 * (DEP - 2) + 6})")
    if OPT["diag"]:
        A("s_memrealtime s[62:63]")
    A.ext(wreads(0))
    A.label("L2_loop")
    body = []
    Bd = body.append
    for d in range(DEP):
        Bd(f"s_waitcnt vmcnt({10 * (DEP - 3) + 6})")
        body += wreads((d + 1) % DEP)
        Bd("s_waitcnt lgkmcnt(8)")
        b = WF + 16 * (d % 2)
        ld = loads((d - 1) % DEP)
        k = 0
        for n in range(4):
            for i in range(6):
                acc = vr(ACC2 + 4 * (6 * n + i), 4)
                Bd(f"{MF} {acc}, {vr(b + 4 * n, 4)}, {vr(ORING + 24 * d + 4 * i, 4)}, {acc}")
                k += 1
                if ld and k % 2 == 0:
                    body += ld.pop(0)
        if d == 0:
            body += blk_addr()
            Bd(f"s_cmp_eq_u32 s{sCNT}, 1")
            Bd(f"s_cselect_b32 s{sAS}, 0x40000000, s{sAS}")
            Bd(f"s_cselect_b32 s{sBS}, 0x40000000, s{sBS}")
    Bd(f"s_sub_u32 s{sCNT}, s{sCNT}, 1")
    Bd(f"s_cmp_lg_u32 s{sCNT}, 0")
    A.ext(body)
    A("s_cbranch_scc1 L2_loop")
    errs = hazard.check(body + body, "k2loop")
    if OPT["diag"]:
        A("s_memrealtime s[64:65]")
    A("s_waitcnt vmcnt(0) lgkmcnt(0)")
    A("s_barrier")
    A(f"s_mul_i32 s{sT0}, s{sW}, 24576")
    A(f"v_lshl_add_u32 v{t0}, v0, 4, s{sT0}")
    A("s_nop 7")
    for q in range(24):
        A(f"ds_write_b128 v{t0}, {vr(ACC2 + 4 * q, 4)} offset:{q * 1024}")
    A(f"v_and_b32 v{t0}, 15, v0")
    A(f"v_lshlrev_b32 v{t0}, 4, v{t0}")
    A(f"v_bfe_u32 v{t1}, v0, 4, 1")
    A(f"v_lshl_add_u32 v{t0}, v{t1}, 9, v{t0}")
    A(f"v_lshrrev_b32 v{t1}, 5, v0")
    A(f"v_lshl_add_u32 v{t0}, v{t1}, 10, v{t0}")
    A(f"s_mul_i32 s{sT0}, s{sW}, {6 * 1024}")
    A(f"v_add_u32 v{t0}, s{sT0}, v{t0}")
    A(f"v_add_u32 v{t1}, 49152, v{t0}")
    A("s_waitcnt lgkmcnt(0)")
    A("s_barrier")
    for w in range(4):
        for x in range(3):
            for q in range(2):
                A(f"ds_read_b128 {vr(ORING + 24 * w + 8 * x + 4 * q, 4)}, v{t0 if w < 2 else t1} offset:{(w % 2) * 24576 + x * 2048 + q * 256}")
        if w % 2 == 1:
            A("s_waitcnt lgkmcnt(0)")
    for w in range(1, 4):
        for e in range(24):
            A(f"v_add_f32 v{ORING + e}, v{ORING + e}, v{ORING + 24 * w + e}")
    for e in range(12):
        A(f"v_cvt_pk_bf16_f32 v{ACC2 + e}, v{ORING + 2 * e}, v{ORING + 2 * e + 1}")
    A(f"v_and_b32 v{t0}, 15, v0")
    A(f"v_lshrrev_b32 v{t1}, 5, v0")
    A(f"v_lshl_add_u32 v{t0}, v{t1}, 4, v{t0}")
    A(f"v_mul_u32_u24 v{t0}, 1152, v{t0}")
    A(f"v_bfe_u32 v{t1}, v0, 4, 1")
    A(f"v_lshl_add_u32 v{t0}, v{t1}, 4, v{t0}")
    A(f"s_mul_i32 s{sAS}, s{sMT}, {96 * 1152}")
    A(f"s_lshl_b32 s{sT0}, s{sNT}, 7")
    A(f"s_add_u32 s{sAS}, s{sAS}, s{sT0}")
    A(f"s_lshl_b32 s{sT0}, s{sW}, 5")
    A(f"s_add_u32 s{sAS}, s{sAS}, s{sT0}")
    for x in range(3):
        A(f"buffer_store_dwordx4 {vr(ACC2 + 4 * x, 4)}, v{t0}, {srd(SRD_OUT)}, s{sAS} offen")
        A(f"s_add_u32 s{sAS}, s{sAS}, {32 * 1152}")
    if OPT["diag"]:
        A("s_waitcnt vmcnt(0)")
        A("s_memrealtime s[66:67]")
        A("s_waitcnt lgkmcnt(0)")
        for i in range(4):
            A(f"v_writelane_b32 v250, s{60 + 2 * i}, {i}")
        A(f"s_lshl_b32 s{sT0}, s2, 2")
        A(f"s_add_u32 s{sT0}, s{sT0}, s{sW}")
        A(f"s_lshl_b32 s{sT0}, s{sT0}, 8")
        A(f"s_add_u32 s{sT0}, s{sT0}, {DIAG_OFF + (1 << 20)}")
        A(f"v_lshlrev_b32 v{t0}, 2, v0")
        A(f"buffer_store_dword v250, v{t0}, {srd(SRD_A)}, s{sT0} offen")
    A.label("L2_end")
    A("s_endpgm")
    return errs


def desc(name, vg, acc, sg=102):
    return f""".p2align 6
.amdhsa_kernel {name}
  .amdhsa_next_free_vgpr {vg}
  .amdhsa_next_free_sgpr {sg}
  .amdhsa_accum_offset {acc}
  .amdhsa_group_segment_fixed_size 0
  .amdhsa_kernarg_size 64
  .amdhsa_user_sgpr_count 2
  .amdhsa_user_sgpr_kernarg_segment_ptr 1
  .amdhsa_system_sgpr_workgroup_id_x 1
.end_amdhsa_kernel
"""


def main():
    A = Asm()
    e = k1(A)
    if not OPT["fuse"]:
        e += k2(A)
    A.label("L_code_end")
    e += hazard.check(A.l, "linear")
    for x in e:
        print(x, file=sys.stderr)
    hdr = f"""; Fused MHA block (q-proj + attention) and output projection, gfx950. Generated by a script.
; kernarg: x, k_cache, v_cache, wq, wo, out, debug, ws
; @launch kernel=attn_kernel grid=(256,1,1) block=(256,1,1) lds={LDS1}
{";" if OPT["fuse"] else "; @launch kernel=oproj_kernel grid=(216,1,1) block=(256,1,1) lds=98304"}
.amdgcn_target "amdgcn-amd-amdhsa--gfx950"
.text
.globl attn_kernel
"""
    txt = hdr + "\n".join(A.l) + "\n.section .rodata,\"a\"\n" + desc("attn_kernel", 512, 256) + ("" if OPT["fuse"] else desc("oproj_kernel", 256, 256))
    open(sys.argv[1], "w").write(txt)
    if e and not (OPT["nodma"] or OPT["nomf"]):
        sys.exit(1)


main()
```

```python
import math
import struct
import sys

import hazard

OPT = dict(diag=0, L=6, W=2, xmap=1, nodma=0, nobar=0, kvflag=1, ostflag=2, wopf=2, wsh=8,
           k2grid=216, LQ=6, dmastep=16, gY=138, thr=40, show=0, qstep=5, up=2, qpflag=0, dbg=0, cpf=1, nph=5, k2rot=1, D=3, pf=0, stg=0, pfa=4, kvs=0, rot=0, k2mul=1, fuse=1, dst=0, DO=4, oflag=2, early=5, l2pf=0, fast=1, wsoff=0, twice=0, nomf=0, pad=0, tlb=0, eord=0, fine=0, wflag=0, p3same=0, chain=1, LG=30, LM=12, SO=4, gB=3, e1a=9, e1b=70, LMB=10, dma0=6, wa=8, vm2=1, bcap=0, tidy=1, x6d=0, outflag=0, pre=4, slp=4, ppos=4, wpre=9, qpad=4352, gpad=1152, dspin=0, helper=0, hA=6, ho=4, post=0, tail2=1)
for a in sys.argv[2:]:
    k, v = a.split("=")
    OPT[k] = int(v)
FLAGS = ['', ' nt', ' sc1', ' sc0 sc1', ' sc1 nt', ' sc0 sc1 nt', ' sc0']

BLK = 1056
HS = 16 * BLK
DD = OPT['D']
NS = 2 * DD + 1
TS = 7
STATS = 9 * HS
assert DD == 3
XB = 1088
WOFF, XEOFF, XOFF = 0, 17408, 21504
WG0 = 4 * XB + OPT["wsh"]
WG1 = 8720
STSZ = 54272
LDS1 = 163840
GP = 32768 + OPT['gpad']
QP = 4 * GP + OPT['qpad']
WS_O_BYTES = 144 * QP
DIAG_OFF = 64 << 20


def f32bits(x):
    return struct.unpack("<I", struct.pack("<f", x))[0]


QSCALE = f32bits(128 ** -0.5 * math.log2(math.e))


class Asm:
    def __init__(self):
        self.l = []

    def __call__(self, s):
        if " | buffer_store" in s:
            for x in s.split(" | "):
                self.l.append("    " + x)
        else:
            self.l.append("    " + s)

    def label(self, s):
        self.l.append(s + ":")

    def raw(self, s):
        self.l.append(s)

    def ext(self, lst):
        for s in lst:
            self(s)


def vr(a, n):
    return f"v[{a}:{a + n - 1}]"


def ar(a, n):
    return f"a[{a}:{a + n - 1}]"


def srd(n):
    return f"s[{n}:{n + 3}]"


MF = "v_mfma_f32_16x16x32_bf16"

SRD_X, SRD_W, SRD_K, SRD_V, SRD_O, SRD_P = 4, 8, 12, 16, 20, 84
sW, sP, sB, sH = 24, 25, 27, 28
sXD, sXS, sWD, sWS, sT0, sT1 = 42, 43, 44, 45, 46, 47
sXED, sXES = 48, 55
sCNT = 49
sKD, sVD, sKVS, sKN, sVN = 50, 51, 52, 53, 54
sSC = 56
sT2 = 57
sOUTP = 32
sWP = 30
sG0 = 31
sDV = 3
sOO = 58
sREDO = 59
sST = 60
sWOF = 88
sCX, sCW = 89, 100
sPC = 98
sXSc, sWSc, sXEc = 29, 26, 101

vXD, vXDE, vWD, vCW, vV4 = 2, 4, 5, 6, 8
vQA = 160
ACC = 16
B0 = [16, 56]
B1 = 96
NEG = 128
QV = 160
vKB, vVB = 240, 244
vK, vV = 148, 152
vM = 96
vDUM = 252
OA, LA, ONES, RING = 0, 160, 180, 192
XF = [184, 204]
WRING = 224


def Sreg(t, par):
    assert par == 0
    return B0[0] + 8 * t


stamp_n = [0]


def stamp_txt():
    if OPT["diag"] == 1:
        n = stamp_n[0]
        stamp_n[0] += 1
        assert n < 12
        return [f"s_memtime s[{sST + 2 * n}:{sST + 2 * n + 1}]"]
    return []


def stamp(A):
    A.ext(stamp_txt())


def is_ds(x):
    return x.startswith("ds_")


def add_waits(seq, cyclic, W=1, nfr=None):
    rep = 2 if cyclic else 1
    out = []
    issued = 0
    done = 0
    last = {}
    for it in range(rep):
        out = []
        for e in seq:
            if e[0] == "x":
                if is_ds(e[1]):
                    issued += 1
                    if e[2] is not None:
                        last[e[2]] = issued
                if "lgkmcnt(0)" in e[1] or e[1] == "VMW":
                    done = issued
                out.append(e[1])
            else:
                need = 0
                for f in e[2]:
                    if f in last:
                        need = max(need, last[f])
                if need > done:
                    tgt = need
                    for f in e[3] if len(e) > 3 else []:
                        if f in last and last[f] > need - 40:
                            tgt = max(tgt, last[f])
                    n = issued - tgt
                    assert n <= 15, n
                    out.append(f"s_waitcnt lgkmcnt({n})")
                    done = tgt
                if e[1] is not None:
                    out.append(e[1])
    return out


vD = 246
sINC = 60 if not OPT["diag"] else 26
sKP = 64 if not OPT["diag"] else 34


def tidy(lst):
    import re
    out, gap = [], []

    def flush(seen_mfma):
        g = list(gap)
        gap.clear()
        if not seen_mfma or any(x.startswith(("s_barrier", "s_cbranch", "s_branch")) or x.endswith(":") for x in g):
            return g
        if g and re.fullmatch(r"s_waitcnt lgkmcnt\(\d+\)", g[-1]) and not any("waitcnt" in x for x in g[:-1]):
            n = int(g[-1][18:-1]) - sum(is_ds(x) for x in g[:-1])
            if n >= 0:
                g = [f"s_waitcnt lgkmcnt({n})"] + g[:-1]
        ch = True
        while ch:
            ch = False
            for i in range(len(g) - 1):
                a, b = g[i], g[i + 1]
                if a.startswith("v_") and b.startswith(("ds_", "s_add", "s_mov", "s_lshl", "s_mul", "s_sub", "s_min", "s_and")):
                    ia, ib = hazard.I(a), hazard.I(b)
                    if not (ia.w & (ib.r | ib.w)) and not (ib.w & ia.r):
                        g[i], g[i + 1] = b, a
                        ch = True
        return g
    seen = False
    for x in lst:
        if x.startswith("v_mfma"):
            out += flush(seen)
            out.append(x)
            seen = True
        else:
            gap.append(x)
    out += gap
    return out


def kv_piece(dst, srdn, i):
    return [f"s_add_u32 m0, s{dst}, {i * BLK}",
            f"buffer_load_dwordx4 v{vD + i}, {srd(srdn)}, s{sKVS} offen{FLAGS[OPT['kvflag']]} lds"]


def item_piece(n, i):
    o = f" offset:{i * 1024}" if i else ""
    return [f"s_add_u32 m0, s{sWOF}, {(n % NS) * HS + i * (BLK - 1024)}",
            (f"s_add_u32 s{sT0}, s{sG0}, {(n // 2) * 16384}" if OPT["rot"] else f"s_mov_b32 s{sT0}, {(n // 2) * 16384}"),
            f"buffer_load_dwordx4 v{vV4}, {srd(SRD_V if n % 2 else SRD_K)}, s{sT0} offen{o}{FLAGS[OPT['kvflag']]} lds"]


def adv(r, tmp=None):
    tmp = sT2 if tmp is None else tmp
    return [f"s_add_u32 s{r}, s{r}, {2 * HS}", f"s_sub_u32 s{tmp}, s{r}, {NS * HS}", f"s_min_u32 s{r}, s{r}, s{tmp}"]


def kread(dst, base, kb, kk):
    return f"ds_read_b128 {dst}, v{base + (kk >> 1)} offset:{kb * 256 + (kk & 1) * 64}"


VC, VN = 1000, 2000


def realize(x, par):
    import re

    def f(m):
        n = int(m.group(0))
        if n >= VN:
            return str(B0[1 - par] + n - VN)
        return str(B0[par] + n - VC)
    return re.sub(r"(?<![\w:x])[12]0\d\d(?=[\]:,\s]|$)|(?<=v)[12]0\d\d|(?<=[\[:])[12]0\d\d(?=[\]:])", f, x) if x.startswith("v_") else x


def build_loop():
    NF = 32
    mf = []
    qk_end, pv_first = {}, {}

    def S(j, t, nxt=False):
        return (B1 + 8 * t) if j == 1 else ((VN if nxt else VC) + 8 * t)
    for ph, jn in ((0, 1), (1, 0)):
        tiles = range(5) if jn == 0 else range(4)
        for kb in range(2):
            for t in tiles:
                for kk in range(4):
                    f = 8 * ph + kb * 4 + kk
                    Sx = S(jn, t, True) + 4 * kb
                    C = vr(NEG + 4 * t, 4) if kk == 0 else vr(Sx, 4)
                    mf.append(dict(t=f"{MF} {vr(Sx, 4)}, {ar(RING + 4 * (f % 16), 4)}, {vr(QV + 16 * t + 4 * kk, 4)}, {C}", f=f))
                    qk_end[(jn, t, kb)] = len(mf) - 1
        if ph == 0:
            gX = len(mf) - 1
    for dt in range(8):
        for t in range(5):
            for j in range(2 if t < 4 else 1):
                f = 16 + 2 * dt + j
                O = ar(OA + 32 * t + 4 * dt, 4)
                mf.append(dict(t=f"{MF} {O}, {ar(RING + 4 * (f % 16), 4)}, {vr(S(j, t), 4)}, {O}", f=f))
                pv_first.setdefault((j, t), len(mf) - 1)
        x = dt - 2
        if 0 <= x < 5:
            for j in range(2 if x < 4 else 1):
                Lr = ar(LA + 4 * x, 4)
                mf.append(dict(t=f"{MF} {Lr}, {ar(ONES, 4)}, {vr(S(j, x), 4)}, {Lr}", f=16 + 2 * dt))
    N = len(mf)
    assert N == 153
    first_use, last_use = {}, {}
    for i, m in enumerate(mf):
        first_use.setdefault(m["f"], i)
        last_use[m["f"]] = i

    def wsz(f):
        return (OPT['wa'] if f < 8 else 4) if f < 16 else 2
    cap = [2] * N
    scal = [None] * N
    for f in range(NF):
        if f % wsz(f) == 0:
            scal[(first_use[f] - 1) % N] = ("W", [(f + k) % NF for k in range(wsz(f))])
    scal[N - 2], scal[N - 1] = scal[N - 1], ("B",)
    cap[N - 1] = 0
    assert scal[gX - 1] is None and scal[gX - 2] is None
    scal[gX - 1], scal[gX] = scal[gX], ("P", 1, "s_cbranch_scc1 L1_tail")
    scal[gX - 2] = ("P", 1, f"s_cmp_eq_u32 s{sSIDE}, 2")
    gB = OPT["gB"]
    nvm = 8 + (1 if OPT["wopf"] == 2 else 0)
    assert scal[gB - 1] is None and scal[gB] is None
    scal[gB - 1] = ("T", f"s_waitcnt vmcnt({(DD - 2) * nvm})")
    scal[gB] = ("T", "s_barrier")
    cap[gB] = OPT["bcap"]
    gY = OPT["gY"]
    assert scal[gY] is None and scal[gY - 1] is None
    scal[gY - 1] = ("P", 0, f"s_sub_u32 s{sCNT}, s{sCNT}, 1")
    scal[gY] = ("P", 0, "s_cbranch_scc1 L1_side | L1_back:")
    e1a, e1b = OPT["e1a"], OPT["e1b"]
    ok = [g for g in range(-N, 2 * N) if cap[g % N] == 2]
    place, taken = {}, set()
    for j, lo, hi in ((1, e1a, e1b), (0, e1b + 2 - N, e1a - 2)):
        keys = [(j, t, kb, r) for kb in range(2) for t in (range(5) if j == 0 else range(4)) for r in range(4)]
        gs = []
        for k in range(len(keys)):
            want = lo + k * (hi - lo) / (len(keys) - 1.0)
            g = min((x for x in ok if x % N not in taken and lo <= x <= hi), key=lambda x: abs(x - want))
            taken.add(g % N)
            gs.append(g)
        for key, g in zip(keys, sorted(gs)):
            place[key] = g
    for (j, t, kb, r), g in place.items():
        assert g >= qk_end[(j, t, kb)] + 6 - (N if j == 0 else 0), (j, t, kb, r, g)
        assert g <= pv_first[(j, t)] - 5, (j, t, kb, r, g)
        cap[g % N] = 0

    def frag_reads(f):
        dst = RING + 4 * (f % 16)
        if f < 16:
            kb, kk = divmod(f % 8, 4)
            return [kread(ar(dst, 4), vK + (2 if f < 8 else 0), kb, kk)]
        dt, j = divmod(f - 16, 2)
        return [f"ds_read_b64_tr_b16 {ar(dst + 2 * e, 2)}, v{vV + j} offset:{e * 256 + dt * 32}" for e in range(2)]

    items = []

    def add(name, lo, hi, text, kind=None, chain=None, after=()):
        items.append(dict(n=name, lo=lo, hi=hi, t=text, k=kind, c=chain, a=list(after)))

    for (j, t, kb, r), g in sorted(place.items(), key=lambda z: z[1]):
        if r % 2 == 1:
            Sx = S(j, t)
            add(f"c{j}{t}{kb}{r}", g + 1, min(g + 14, pv_first[(j, t)] - 3),
                f"v_cvt_pk_bf16_f32 v{Sx + 2 * kb + r // 2}, v{Sx + 4 * kb + r - 1}, v{Sx + 4 * kb + r}", ("cvt", j, t), "cvt")
    LG, LM = OPT["LG"], OPT["LM"]
    add("v0", 0, 30, f"v_add_u32 v{vV}, s{sVN}, v{vVB}", None, None)
    add("v1", 0, 31, f"v_add_u32 v{vV + 1}, s{sVN}, v{vVB + 1}", None, None)
    for f in range(NF):
        fu = first_use[f - f % wsz(f)]
        lo = max(fu - LG, last_use[(f + 16) % NF] - (N if f < 16 else 0))
        if 8 <= f < 16:
            lo = max(lo, gB + 1)
        if f >= 16:
            lo = max(lo, gX + 1)
        for e, x in enumerate(frag_reads(f)):
            add(f"r{f}_{e}", lo, fu - (OPT["LMB"] if 8 <= f < 12 else LM), x, ("rd", f), "rd", ["v0", "v1"] if f >= 16 else [])
    add("k1a", 0, 100, f"v_add_u32 v{vK + 2}, s{sDV}, v{vK}", None, None, ["r5_0"])
    add("k1b", 0, 100, f"v_add_u32 v{vK + 3}, s{sDV}, v{vK + 1}", None, None, ["r7_0"])
    st = OPT["dmastep"]
    g = gB + OPT["dma0"]
    prevd = None
    for nm, dst, srdn in (("V", sVD, SRD_V), ("K", sKD, SRD_K)):
        for i in range(4):
            pc = kv_piece(dst, srdn, i)
            add(f"m{nm}{i}", g, g + 10, pc[0], "m0", "dma", [prevd] if prevd else [])
            prevd = f"d{nm}{i}"
            add(f"d{nm}{i}", g + 1, g + 14, pc[1], "dma", "dma")
            g += st
    add("svd", 0, 140, f"s_add_u32 s{sVD}, s{sKN}, s{sWOF}", None, "ak", ["dV3"])
    for i, x in enumerate(adv(sKN)):
        add(f"ak{i}", 0, 142 + i, x, None, "ak")
    add("k0a", 0, 148, f"v_add_u32 v{vK}, s{sKN}, v{vKB}", None, None, ["ak2", "r13_0", "k1a"])
    add("k0b", 0, 148, f"v_add_u32 v{vK + 1}, s{sKN}, v{vKB + 1}", None, None, ["ak2", "r15_0", "k1b"])
    for i, x in enumerate(adv(sVN, sT1)):
        add(f"av{i}", 0, 144 + i, x, None, "av", ["v0", "v1"])
    for i, x in enumerate(adv(sKD, sT0)):
        add(f"ad{i}", 0, 148 + i, x, None, "ad", ["dK3"])
    add("kvs", gY + 1, 151, f"s_add_u32 s{sKVS}, s{sKVS}, s{sINC}", None, None, ["dK3"])
    if OPT["wopf"] == 2:
        add("wp", 75, 140, f"buffer_load_dword v{vDUM}, v7, {srd(SRD_P)}, s{sWP} offen", None, "wp")
        add("wpa", 0, 150, f"s_add_u32 s{sWP}, s{sWP}, 160", None, "wp", ["wp"])
    NP = 5
    pend = []
    for p in range(NP):
        for i, x in enumerate(items):
            pend.append(dict(x, p=p, i=i, lo=x["lo"] + p * N, hi=x["hi"] + p * N))
    chains = {}
    for x in pend:
        chains.setdefault(x["c"] or ("solo", x["n"]), []).append(x)
    at, out = {}, {}
    for g in range(-N, (NP + 1) * N):
        free = cap[g % N]
        sfree = scal[g % N] is None
        while free or sfree:
            cands = []
            for c, q in chains.items():
                if not q:
                    continue
                x = q[0]
                if x["lo"] > g or any((a_, x["p"]) not in at for a_ in x["a"]):
                    continue
                if x["k"] == "dma" and at[("m" + x["n"][1:], x["p"])] == g:
                    continue
                if x["t"].startswith("s_") and not sfree:
                    continue
                if not x["t"].startswith("s_") and not free:
                    continue
                if any(at[(a_, x["p"])] == g for a_ in x["a"]):
                    continue
                if x["t"].startswith("buffer") and (g % N == gB - 1 or free < 2):
                    continue
                cands.append(x)
            if not cands:
                break
            x = min(cands, key=lambda x: (x["hi"], x["i"]))
            chains[x["c"] or ("solo", x["n"])].pop(0)
            at[(x["n"], x["p"])] = g
            out.setdefault(g, []).append(x)
            if x["t"].startswith("s_"):
                sfree = False
            else:
                free -= 2 if x["t"].startswith("buffer") else 1
    for x in items:
        assert at[(x["n"], 2)] - 2 * N == at[(x["n"], 3)] - 3 * N, ("not periodic", x)
        assert at[(x["n"], 2)] - 2 * N <= x["hi"], ("late", x, at[(x["n"], 2)] - 2 * N)
    rel = {x["n"]: at[(x["n"], 2)] - 2 * N for x in items}
    assert rel["dK3"] < gY - 1 and rel["r31_1"] < N
    assert rel["k1a"] < rel["r0_0"] + N and rel["k1b"] < rel["r2_0"] + N
    assert first_use[8 - wsz(0)] <= gB - 1
    assert rel["v0"] < gX and rel["v1"] < gX
    gaps = [[] for _ in range(N)]
    cls = lambda t: 0 if t.startswith("s_") else 1 if t.startswith(("ds_", "buffer")) else 2
    nx = lambda t: __import__("re").sub(r"v10(\d\d)", r"v20\1", t)
    for g in range(N):
        for x in sorted(out.get(2 * N + g, []), key=lambda x: cls(x["t"])):
            n = x["p"] == 3
            gaps[g].append((nx(x["t"]) if n else x["t"], "n" if n else "", x["k"]))
            assert x["p"] in (2, 3), x
    for (j, t, kb, r), g in place.items():
        Sx = S(j, t, g < 0) + 4 * kb + r
        gaps[g % N].append((f"v_exp_f32 v{Sx}, v{Sx}", "n" if g < 0 else "", ("sm", j, t)))
    seq, pro, tail = [], [], []
    for par in range(2):
        for i, m in enumerate(mf):
            if i == 0 and par == 1 and OPT["diag"]:
                for y in diag_top():
                    seq.append(("x", y, None))
            seq.append(("m", realize(m["t"], par), [m["f"]]))
            sc_ = scal[i]
            if sc_ and sc_[0] == "W":
                seq.append(("m", None, sc_[1]))
            elif sc_ and sc_[0] == "T":
                seq.append(("x", sc_[1], None))
            elif sc_ and sc_[0] == "P" and sc_[1] == par:
                seq.append(("x", sc_[2], None))
            for x in gaps[i]:
                isrd = isinstance(x[2], tuple) and x[2][0] == "rd"
                seq.append(("x", realize(x[0], par), x[2][1] if isrd else None))
                if par == 1 and x[1] == "n":
                    assert isinstance(x[2], tuple), x
                    pro.append(realize(x[0], 1))
                if par == 1 and i >= gX and x[1] != "n" and isinstance(x[2], tuple):
                    if x[2][0] in ("sm", "cvt"):
                        tail.append((x[2][2], realize(x[0], 1)))
    body = add_waits(seq, True)
    body = [y for x in body for y in x.split(" | ")]
    if OPT["show"]:
        print("gaps:", "".join("E" if any(y[0].startswith("v_exp") for y in g_) else str(len(g_)) for g_ in gaps), file=sys.stderr)
        print("instr", len(body), "dma", [rel[f"d{n}{i}"] for n in "VK" for i in range(4)],
              "leads", [first_use[f - f % wsz(f)] - rel[f"r{f}_{1 if f >= 16 else 0}"] for f in range(NF)],
              "pro", len(pro), "tail", len(tail), file=sys.stderr)
    vreads = [x for f in range(16, 32) for x in frag_reads(f)]
    return body, pro, tail, vreads


def diag_top():
    return ["s_mov_b32 m0, s41", "s_sub_u32 s41, s41, 1", "v_writelane_b32 v250, s90, m0", "v_writelane_b32 v251, s96, m0",
            "s_memtime s[90:91]", "s_memrealtime s[96:97]"]


def cursor(r):
    return [f"s_add_u32 s{r}, s{r}, 128", f"s_sub_u32 s{sT2}, s{r}, 1152", f"s_min_u32 s{r}, s{r}, s{sT2}"]


def x_pieces(c):
    st = STG[c] * STSZ
    p = []
    for i in range(8):
        pre = [f"s_add_u32 s{sXSc}, s{sXS}, s{sCX}"] + cursor(sCX) if i == 0 else []
        p.append(pre + [f"s_add_u32 m0, s{sXD}, {st + i * 1024}",
                        (f"s_add_u32 s{sT0}, s{sXSc}, {i * 9216}" if i else "s_nop 0"),
                        f"buffer_load_dwordx4 v{vXD + (i & 1)}, {srd(SRD_X)}, s{sT0 if i else sXSc} offen{FLAGS[OPT['qpflag']]} lds"])
    return p


def wg_pieces(c):
    st = STG[c] * STSZ
    p = []
    for r in range(4):
        pre = [f"s_lshl_b32 s{sWSc}, s{sCW}, 12", f"s_add_u32 s{sWSc}, s{sWSc}, s{sWS}",
               f"s_add_u32 s{sXEc}, s{sXES}, s{sCW}"] + cursor(sCW) if r == 0 else []
        p.append(pre + [f"s_add_u32 m0, s{sWD}, {st + WOFF + r * XB}",
                        (f"s_add_u32 s{sT0}, s{sWSc}, {r * 8192}" if r else "s_nop 0"),
                        f"buffer_load_dwordx4 v{vWD}, {srd(SRD_W)}, s{sT0 if r else sWSc} offen{FLAGS[OPT['qpflag']]} lds"])
    p.append([f"s_add_u32 m0, s{sXED}, {st}", "s_nop 0",
              f"buffer_load_dwordx4 v{vXDE}, {srd(SRD_X)}, s{sXEc} offen{FLAGS[OPT['qpflag']]} lds"])
    return p


STG = [[0, 2, 1, 0, 2, 1, 2, 1, 2], [0, 1, 2, 0, 1, 2, 0, 1, 2]][OPT['stg']]


def build_qproj(extras, nup, tail_items, fill):
    LQ = OPT["LQ"]
    mf = []
    first_use, last_use = {}, {}
    for s in range(18):
        for sl in range(8):
            f = ("w", 8 * s + sl)
            tiles = range(5) if sl < 4 else range(4)
            for t in tiles:
                a = ACC + 32 * t + 4 * sl
                C = "0" if s == 0 else vr(a, 4)
                txt = f"{MF} {vr(a, 4)}, {ar(WRING + 4 * sl, 4)}, {ar(XF[s % 2] + 4 * t, 4)}, {C}"
                mf.append((txt, [f, ("x", s, t)]))
                for q in (f, ("x", s, t)):
                    first_use.setdefault(q, len(mf) - 1)
                    last_use[q] = len(mf) - 1
    N = len(mf)
    gaps = [[] for _ in range(N + 1)]

    def st_of(c):
        return (6, 0) if STG[c] == 2 else (0, STG[c] * STSZ)

    def wread(n):
        s, sl = divmod(n, 8)
        c, ks = divmod(s, 2)
        rb, st = st_of(c)
        kk, u = divmod(sl, 2)
        base = vQA + rb + (4 if kk < 2 else 5)
        return [(f"ds_read_b64_tr_b16 {ar(WRING + 4 * sl + 2 * e, 2)}, v{base} offset:{st + (kk & 1) * 64 + 8 * u + e * 256 + ks * 512}",
                 ("w", n)) for e in range(2)]

    def xread(s, t):
        c, ks = divmod(s, 2)
        rb, st = st_of(c)
        if t < 4:
            return (f"ds_read_b128 {ar(XF[s % 2] + 4 * t, 4)}, v{vQA + rb + ks} offset:{st + t * 2048}", ("x", s, t))
        return (f"ds_read_b128 {ar(XF[s % 2] + 16, 4)}, v{vQA + rb + 2 + ks} offset:{st}", ("x", s, t))

    bar = {0: -1, 9: N}
    for c in range(1, 9):
        bar[c] = last_use[("w", 16 * c - LQ + 1)]
    items = []
    for n in range(144):
        c = n // 16
        e = last_use[("w", n - 8)] if n >= 8 else -1
        tg = first_use[("w", n - LQ)] if n >= LQ else -1
        tg = max(tg, e, bar[c])
        for x in wread(n):
            items.append((tg, x))
    rd = sorted(items, key=lambda z: z[0])
    xi = []
    for s in range(18):
        c, ks = divmod(s, 2)
        for t in range(5):
            e = last_use[("x", s - 2, t)] if s >= 2 else -1
            tg = max(e, bar[c])
            if s == 1:
                tg = 0
            xi.append((tg, xread(s, t)))
    allrd = sorted([(tg, 0, i, x) for i, (tg, x) in enumerate(xi)] + [(tg, 1, i, x) for i, (tg, x) in enumerate(rd)],
                   key=lambda z: (z[0], z[1], z[2]))
    used = [0] * (N + 2)
    xdone = {}
    g = -1
    for tg, _, _, x in allrd:
        g = max(g, tg)
        if g < 0 and used[0] >= 9:
            g = 0
        while g >= 0 and used[g + 1] >= 2:
            g += 1
        gaps[g + 1].append(("x", x[0], x[1]))
        used[g + 1] += 1
        if x[1][0] == "x":
            xdone[x[1][1]] = g
        cc = x[1][1] // 16 if x[1][0] == "w" else x[1][1] // 2
        assert g < bar[cc + 1] - 2, (x, g, bar[cc + 1])
    last_rd = g
    sused = [0] * (N + 2)
    groups = []
    for c in range(nup, 9):
        prev = [p for p in range(c) if STG[p] == STG[c]]
        ew = bar[prev[-1] + 1] if prev else -1
        ex = xdone[2 * prev[-1] + 1] + 10 if prev else -1
        if c == 6:
            ex += OPT["x6d"]
        groups.append((ew, 0, c, wg_pieces(c), ("W", c), None))
        groups.append((ex, 2, c, x_pieces(c), ("X", c), prev[-1] if prev else None))
    for c, ps in extras.items():
        groups.append((bar[c] + (45 if (OPT["eord"] and c < 8) else 0), 1, c, ps, ("E", c), None))
    groups.sort(key=lambda z: (z[0], z[2] if z[0] < 0 else 0, z[1]))
    for kind in "WX":
        cs = [z[4][1] for z in groups if z[4][0] == kind]
        assert cs == sorted(cs), cs
    issued = []
    for c in range(nup):
        issued += [(("W", c), -1)] * 5 + [(("X", c), -1)] * 8
        if c == 0 and (OPT["pf"] or OPT["tlb"] == 1):
            issued += [(("P", 0), -1)] * 2
    g = 0
    for tg, _, _, ps, tag, prev in groups:
        for i, p in enumerate(ps):
            late = g - tg
            g = max(g, tg)
            g0 = g
            if i == 0 and prev is not None:
                while used[g + 1] >= 1:
                    g += 1
                gaps[g + 1].append(("xw", ("x", 2 * prev + 1)))
                used[g + 1] += 2
            for ins in p[:-1]:
                if ins == "s_nop 0":
                    continue
                if ins.startswith("s_"):
                    while sused[g + 1] + max(0, used[g + 1] - 1) >= 2 or (sused[g + 1] and used[g + 1] >= 2):
                        g += 1
                    gaps[g + 1].insert(sused[g + 1], ("x", ins, None))
                    sused[g + 1] += 1
                else:
                    while used[g + 1] >= 2:
                        g += 1
                    gaps[g + 1].append(("x", ins, None))
                    used[g + 1] += 1
            g += 1
            while used[g + 1] >= 1:
                g += 1
            assert g < N - 30, (tag, g)
            gaps[g + 1].append(("x", p[-1], None))
            used[g + 1] = 2
            issued.append((tag, g))
            g = max(g + 1, g0 + (OPT["qstep"] if late < 30 else 2))
    for c, lst in fill.items():
        g = bar[c]
        for ins in lst:
            k = ins.count(" | ") + 1
            while used[g + 1] + k > 2 or (k > 1 and used[g + 1]):
                g += 1
            for y in ins.split(" | "):
                gaps[g + 1].append(("x", y, None))
            used[g + 1] += k
            assert g < min(bar[c + 1], N - 26), (c, g)
    vm_at = {}
    for c in range(1, 9):
        before = [t for t, gg in issued if gg < bar[c]]
        for t, gg in issued:
            if t in (("W", c), ("X", c)):
                assert gg < bar[c] - 30, (t, gg, bar[c])
        lastneed = max(i for i, t in enumerate(before) if t in (("W", c), ("X", c)))
        vm_at[c] = len(before) - 1 - lastneed
    if OPT["show"]:
        print("bar", bar, "vm", vm_at, "issue", [(t[0] + str(t[1]), g) for t, g in issued if g >= 0], "lastrd", last_rd - (N - 36), file=sys.stderr)
    seq = []
    tf = list(tail_items)
    for i in range(N + 1):
        if i > 0:
            seq.append(("m", mf[i - 1][0], mf[i - 1][1]))
        for c in range(1, 9):
            if bar[c] == i - 1:
                seq.append(("x", f"s_waitcnt vmcnt({vm_at[c]}) lgkmcnt(0)", None))
                seq.append(("x", "s_barrier", None))
                if OPT["diag"]:
                    seq.append(("x", f"v_writelane_b32 v250, s90, {40 + c}", None))
                    seq.append(("x", "s_memtime s[90:91]", None))
        for x in gaps[i]:
            if x[0] == "xw":
                seq.append(("m", "s_nop 0", [("x", x[1][1], t) for t in range(5)]))
            else:
                seq.append(x)
        while tf and tf[0][0] <= i - 1 - (N - 36):
            seq.append(("x", tf.pop(0)[1], None))
    assert not tf
    return add_waits(seq, False), [t for t, _ in issued]


DW = 9
PRE = OPT['pre']
SRD_OUT, SRD_D = SRD_X, SRD_W
sMT, sNT, sBS, sLD, sU, sPA, sCA = sXD, sXS, sWS, sXED, sXES, sCX, sCW
sAI = 32
sSIDE, sRDY, sPF = 38, 39, 40
vBD, vPF, vZ, vPL = 2, 3, 4, 5
vBR, WF, AC = 144, 112, 160


def wslot(s):
    return (1 + s if s < PRE else [1, 2, 3, 4, 5, 6, 0, 7, 8][(s - PRE) % DW]) * HS


def wload(s):
    return [([f"s_add_u32 s{sU}, s{sBS}, {s * 36864}"] if i == 0 else []) +
            [f"s_add_u32 m0, s{sWOF}, {wslot(s) + i * BLK}", "s_nop 0",
             f"buffer_load_dwordx4 v{vD + i}, {srd(SRD_P)}, s{sU} offen lds"] for i in range(4)]


def oreg(s, i):
    n = (s % OPT["DO"]) * 6 + i
    return 4 * n if n < 16 else 128 + 4 * (n - 16) if n < 24 else 64 + 4 * (n - 24)


def oload(s):
    off = f" offset:{(s % 4) * 1024}" if s % 4 else ""
    o = []
    for i in range(6):
        pre = [f"s_add_u32 s{sAI + i}, s{sAI + i}, 4096"] if (s % 4 == 0 and s and not OPT['p3same'] & 2) else []
        o.append(pre + [f"buffer_load_dwordx4 {ar(oreg(s, i), 4)}, v11, {srd(SRD_O)}, s{sAI + i} offen{off}{FLAGS[OPT['oflag']]}"])
    return o


def p3_setup():
    Z = Asm()
    Z(f"s_lshr_b32 s{sU}, s2, 3")
    Z(f"s_mul_i32 s{sPF}, s{sU}, 6912")
    Z(f"s_mul_i32 s{sNT}, s{sU}, 43")
    Z(f"s_lshr_b32 s{sNT}, s{sNT}, 7")
    Z(f"s_mul_i32 s{sMT}, s{sNT}, 3")
    Z(f"s_sub_u32 s{sMT}, s{sU}, s{sMT}")
    if OPT["xmap"] == 1:
        Z(f"s_and_b32 s{sCA}, s2, 1")
        Z(f"s_xor_b32 s{sCA}, s{sCA}, 1")
        Z(f"s_lshl_b32 s{sCA}, s{sCA}, 2")
        Z(f"s_bfe_u32 s{sU}, s2, 0x20001")
        Z(f"s_add_u32 s{sCA}, s{sCA}, s{sU}")
    else:
        Z(f"s_and_b32 s{sCA}, s2, 7")
    Z(f"s_mul_i32 s{sU}, s{sCA}, 3")
    Z(f"s_add_u32 s{sMT}, s{sMT}, s{sU}")
    Z(f"s_lshl_b32 s{sCA}, s{sCA}, 2")
    Z(f"s_add_u32 s{sCA}, s{sCA}, s{sW}")
    Z(f"s_lshl_b32 s{sCA}, s{sCA}, 3")
    Z(f"s_lshl_b32 s{sPA}, s{sB}, 2")
    Z(f"s_lshr_b32 s{sU}, s{sH}, 3")
    Z(f"s_add_u32 s{sPA}, s{sPA}, s{sU}")
    Z(f"s_lshl_b32 s{sPA}, s{sPA}, 3")
    Z(f"v_lshrrev_b32 v{vPF}, 3, v0")
    Z(f"v_mul_u32_u24 v{vBD}, 1152, v{vPF}")
    Z(f"v_lshlrev_b32 v{vPF}, 1, v12")
    Z(f"v_and_b32 v{vZ}, 7, v0")
    Z(f"v_xor_b32 v{vPF}, v{vPF}, v{vZ}")
    Z(f"v_lshl_add_u32 v{vBD}, v{vPF}, 4, v{vBD}")
    Z(f"v_min_u32 v{vPF}, 53, v0")
    Z(f"v_lshlrev_b32 v{vPF}, 7, v{vPF}")
    Z(f"v_mov_b32 v{vZ}, 0")
    Z(f"s_lshl_b32 s{sLD}, s{sW}, 12")
    Z(f"s_mul_i32 s{sBS}, s{sW}, {1024 * 1152}")
    Z(f"s_add_u32 s{sPF}, s{sPF}, s{sBS}")
    Z(f"s_lshl_b32 s{sU}, s{sNT}, 7")
    Z(f"s_add_u32 s{sBS}, s{sBS}, s{sU}")
    Z(f"s_cmp_ge_u32 s2, 216 | s_cselect_b32 s{sBS}, 0x40000000, s{sBS}")
    Z(f"s_mov_b32 s{SRD_OUT}, s{sOUTP}")
    Z(f"s_mov_b32 s{SRD_OUT + 1}, s{sOUTP + 1}")
    Z(f"s_mov_b32 s{SRD_OUT + 2}, {2304 * 1152}")
    Z(f"s_mov_b32 s{SRD_D}, s{sOUTP + 2}")
    Z(f"s_mov_b32 s{SRD_D + 1}, s{sOUTP + 3}")
    Z(f"s_mov_b32 s{SRD_D + 2}, 256")
    if OPT["diag"]:
        Z(f"s_mov_b32 s{sINC}, 16384")
    return [x.strip() for x in Z.l]


def o_bases(oob):
    o = [f"s_mul_i32 s{sAI}, s{sMT}, {6 * QP}", f"s_mul_i32 s{sU}, s{sW}, {GP}", f"s_add_u32 s{sAI}, s{sAI}, s{sU}"]
    if oob:
        o += [f"s_cmp_ge_u32 s{sRDY}, 8", f"s_cselect_b32 s{sAI}, s{sAI}, 0x40000000"]
    o += [f"s_add_u32 s{sAI + i}, s{sAI}, {i * QP}" for i in range(1, 6)]
    return o


def side_block(A):
    A.label("L1_side")
    A(f"s_cmp_eq_u32 s{sSIDE}, 0")
    A("s_cbranch_scc1 L1_side1")
    A(f"s_mov_b32 s{sSIDE}, 2")
    A(f"s_mov_b32 s{sKVS}, 0x40000000")
    A("s_branch L1_back")
    A.label("L1_side1")
    A(f"global_load_dword v{vDUM}, v{vCW}, s[{sPC}:{sPC + 1}]")
    A(f"s_mov_b32 s{sSIDE}, 1")
    A(f"s_mov_b32 s{sCNT}, 0")
    A(f"s_mov_b32 s{sINC}, {2 * 36864}")
    A(f"s_sub_u32 s{sKVS}, s{sBS}, {2 * 36864}")
    A(f"s_mov_b32 s{SRD_K}, s{SRD_P}")
    A(f"s_mov_b32 s{SRD_K + 1}, s{SRD_P + 1}")
    A(f"s_mov_b32 s{SRD_K + 2}, {4096 * 1152}")
    A(f"s_add_u32 s{SRD_V}, s{SRD_P}, 36864")
    A(f"s_addc_u32 s{SRD_V + 1}, s{SRD_P + 1}, 0")
    A(f"s_mov_b32 s{SRD_V + 2}, {4096 * 1152 - 36864}")
    for i in range(4):
        A(f"v_add_u32 v{vD + i}, {i * 9216}, v{vBD}")
    A("s_branch L1_back")


def p3(A, rest):
    DO = OPT["DO"]
    u0, u1 = 253, 254
    vBR = 224
    assert PRE == 4

    def wreg(s):
        return QV + 16 * s if s < PRE else WF + 16 * (s % 2)

    def wreads(s):
        o = wslot(s)
        return [f"ds_read_b64_tr_b16 {vr(wreg(s) + 4 * n + 2 * e, 2)}, v{vBR + 4 * (o // (3 * HS)) + n} offset:{o % (3 * HS) + e * 2 * BLK}"
                for n in range(4) for e in range(2)]

    A(f"v_bfe_u32 v{u0}, v0, 2, 3")
    A(f"v_lshlrev_b32 v{vBR}, 7, v{u0}")
    A(f"v_bfe_u32 v{u0}, v0, 3, 2")
    A(f"v_xor_b32 v{u0}, s{sW}, v{u0}")
    A(f"v_lshl_add_u32 v{vBR}, v{u0}, 5, v{vBR}")
    A(f"v_lshl_add_u32 v{vBR}, v15, 3, v{vBR}")
    A(f"v_lshrrev_b32 v{u0}, 5, v0")
    A(f"v_mul_u32_u24 v{u0}, {BLK}, v{u0}")
    A(f"v_add_u32 v{u0}, s{sWOF}, v{u0}")
    for n_ in range(1, 4):
        A(f"v_xor_b32 v{vBR + n_}, {32 * n_}, v{vBR}")
    for n_ in range(4):
        A(f"v_add_u32 v{vBR + n_}, v{u0}, v{vBR + n_}")
    for k in range(1, 3):
        for n_ in range(4):
            A(f"v_add_u32 v{vBR + 4 * k + n_}, {3 * HS * k}, v{vBR + n_}")
    A("s_waitcnt vmcnt(10)")
    pre = [x for s in range(PRE) for x in wreads(s)]
    cut = len(rest) * OPT["ppos"] // 4
    rest = rest[:cut] + [f"buffer_load_dword v{vPL}, v{vZ}, {srd(SRD_D)}, s{sCA} offen sc1"] + rest[cut:]
    for i in range(8):
        A.ext(pre[4 * i:4 * i + 4])
        A.ext(rest[(i * len(rest)) // 8:((i + 1) * len(rest)) // 8])
    A.ext(o_bases(False))
    stamp(A)
    PW = PRE + OPT["post"]
    assert OPT["post"] <= 6
    if OPT["post"]:
        A("s_waitcnt lgkmcnt(0)")
    for s in range(PRE, PW):
        for p in wload(s):
            A.ext(p)
    A(f"v_mov_b32 v{u0}, 1")
    A(f"s_mov_b32 s{sCNT}, {1 << 22}")
    A("s_waitcnt vmcnt(0) lgkmcnt(0)")
    A("s_barrier")
    if OPT["diag"]:
        A("s_memrealtime s[78:79]")
    A(f"v_readfirstlane_b32 s{sRDY}, v{vPL}")

    def publish(lbl):
        A(f"s_cmp_lg_u32 s{sW}, 0")
        A(f"s_cbranch_scc1 {lbl}")
        A("s_mov_b64 exec, 1")
        A(f"buffer_atomic_add v{u0}, v{vZ}, {srd(SRD_D)}, s{sPA} offen sc1")
        A("s_mov_b64 exec, -1")
        A.label(lbl)

    A("s_cmp_ge_u32 s2, 216")
    A(f"s_cselect_b32 s{sRDY}, 0, s{sRDY}")
    A(f"s_cmp_ge_u32 s{sRDY}, {8 if OPT['fast'] else 999}")
    A("s_cbranch_scc1 L3_fast")
    publish("L3_na1")
    A("s_cmp_ge_u32 s2, 216")
    A("s_cbranch_scc1 L3_help" if OPT["helper"] else "s_cbranch_scc1 L3_done")
    vmq, nfast = [], []
    NW0 = PRE + OPT["wpre"]
    for s in range(PW, NW0):
        for p in wload(s):
            A.ext(p)
    A.label("L3_poll")
    A(f"buffer_load_dword v{u1}, v{vZ}, {srd(SRD_D)}, s{sCA} offen sc1")
    A("s_waitcnt vmcnt(0)")
    A(f"v_readfirstlane_b32 s{sU}, v{u1}")
    A(f"s_sub_u32 s{sCNT}, s{sCNT}, 1")
    A("s_cbranch_scc1 L3_rdy")
    A(f"s_cmp_ge_u32 s{sU}, 8")
    A("s_cbranch_scc1 L3_rdy")
    A(f"s_sleep {OPT['slp']}")
    A("s_branch L3_poll")
    A.label("L3_rdy")
    for s in range(DO):
        for p in oload(s):
            A.ext(p)
            vmq.append(("o", s))
    A("s_branch L3_go")
    A.label("L3_fast")
    seq = [("o", s) for s in range(DO)] + [("w", s) for s in range(PW, NW0)]
    for n_, (k_, s) in enumerate(seq):
        for p in (oload(s) if k_ == "o" else wload(s)):
            A.ext(p)
            nfast.append((k_, s))
        if n_ == 1:
            publish("L3_na2")
    A.label("L3_go")
    if OPT["diag"]:
        A("s_memrealtime s[80:81]")
    OWN = 16

    def accr(n_, i):
        return vr(OWN + 4 * i, 4) if n_ == 0 else ar(AC + 4 * (6 * (n_ - 1) + i), 4)
    vW_, vR_ = 40, 43
    fin = [f"v_lshl_add_u32 v{vW_}, v0, 4, s{sWOF}", f"v_add_u32 v{vW_ + 1}, {2 * HS}, v{vW_}", f"v_add_u32 v{vW_ + 2}, {4 * HS}, v{vW_}"]
    for n_ in range(1, 4):
        fin += [f"s_xor_b32 s{sT0}, s{sW}, {n_}", f"s_mul_i32 s{sT0}, s{sT0}, {4 * BLK}", f"s_add_u32 s{sT0}, s{sT0}, {(n_ - 1) * 2 * HS}",
                f"v_lshl_add_u32 v{vR_ + n_ - 1}, v0, 4, s{sT0}"]
    fin += [f"v_bfe_u32 v10, v0, 4, 1", f"v_lshl_add_u32 v9, v10, 4, v13", f"v_mul_u32_u24 v9, 1152, v9",
            f"v_lshrrev_b32 v10, 5, v0", f"v_lshl_add_u32 v9, v10, 4, v9",
            f"s_mul_i32 s{sT1}, s{sMT}, {96 * 1152}", f"s_lshl_b32 s{sT0}, s{sNT}, 7", f"s_add_u32 s{sT1}, s{sT1}, s{sT0}",
            f"s_lshl_b32 s{sT0}, s{sW}, 5", f"s_add_u32 s{sT1}, s{sT1}, s{sT0}"]
    nw = NW0
    for s in range(32):
        cnt = []
        for q in (vmq, nfast):
            need = [i for i, t in enumerate(q) if t in (("o", s), ("w", s + 1))]
            cnt.append(len(q) - 1 - max(need) if need else 63)
        A(f"s_waitcnt vmcnt({min(min(cnt), 63)}) lgkmcnt(0)")
        rdq = wreads(s + 1) if PRE <= s + 1 < 32 else []
        ld = []
        if nw < 32 and nw - DW <= s:
            ld += [(p, ("w", nw)) for p in wload(nw)]
            nw += 1
        if s >= 1 and s - 1 + DO < 32:
            ld += [(p, ("o", s - 1 + DO)) for p in oload(s - 1 + DO)]
        extra = list(fin) if s == 30 else []
        wq = []
        k = 0
        for n_ in ((1, 2, 3, 0) if s == 31 else range(4)):
            for i in range(6):
                acc = accr(n_, i)
                A(f"{MF} {acc}, {vr(wreg(s) + 4 * n_, 4)}, {ar(oreg(s, i), 4)}, {'0' if s == 0 else acc}")
                k += 1
                if rdq and k % 2 == 1:
                    A(rdq.pop(0))
                if ld and k % 2 == 0:
                    p, tag = ld.pop(0)
                    A.ext(p)
                    vmq.append(tag)
                    nfast.append(tag)
                if extra and k % 2 == 0:
                    A.ext(extra[:3])
                    extra = extra[3:]
                if s == 31:
                    if n_:
                        wq.append(f"ds_write_b128 v{vW_ + n_ - 1}, {acc} offset:{(i // 3) * HS + (i % 3) * 1024}")
                    if k > 8:
                        A(wq.pop(0))
        assert not ld and not rdq and not extra
        A.ext(wq)
    assert nw == 32
    if OPT["diag"]:
        A("s_memrealtime s[82:83]")
    A("s_waitcnt lgkmcnt(0)")
    A("s_barrier")
    R = 48
    for x in range(3):
        for i in (2 * x, 2 * x + 1):
            for n_ in range(1, 4):
                A(f"ds_read_b128 {vr(R + 12 * i + 4 * (n_ - 1), 4)}, v{vR_ + n_ - 1} offset:{(i // 3) * HS + (i % 3) * 1024}")
    for x in range(3):
        A(f"s_waitcnt lgkmcnt({6 * (2 - x)})")
        for i in (2 * x, 2 * x + 1):
            for e in range(4):
                A(f"v_add_f32 v{OWN + 4 * i + e}, v{OWN + 4 * i + e}, v{R + 12 * i + e}")
                A(f"v_add_f32 v{R + 12 * i + 4 + e}, v{R + 12 * i + 4 + e}, v{R + 12 * i + 8 + e}")
            for e in range(4):
                A(f"v_add_f32 v{OWN + 4 * i + e}, v{OWN + 4 * i + e}, v{R + 12 * i + 4 + e}")
        d = 124 + 4 * x
        for e in range(4):
            A(f"v_cvt_pk_bf16_f32 v{d + e}, v{OWN + 8 * x + 2 * e}, v{OWN + 8 * x + 2 * e + 1}")
        A("s_nop 1")
        A(f"v_permlane16_swap_b32 v{d}, v{d + 2}")
        A(f"v_permlane16_swap_b32 v{d + 1}, v{d + 3}")
        A(f"buffer_store_dwordx4 {vr(d, 4)}, v9, {srd(SRD_OUT)}, s{sT1} offen{FLAGS[OPT['outflag']]}")
        A(f"s_add_u32 s{sT1}, s{sT1}, {32 * 1152}")
    if OPT["helper"]:
        A("s_branch L3_done")
        A.label("L3_help")
        sJ, sOB, sWB = sAI, sAI + 1, sAI + 2
        A(f"s_lshr_b32 s{sJ}, s2, 3")
        A(f"s_sub_u32 s{sJ}, s{sJ}, 27")
        A(f"s_mul_i32 s{sT0}, s{sJ}, 58")
        A(f"v_add_u32 v16, s{sT0}, v0")
        A(f"v_min_u32 v16, 287, v16")
        A(f"v_lshlrev_b32 v16, 7, v16")
        A(f"s_mul_i32 s{sWB}, s{sW}, {1024 * 1152}")
        A(f"s_mul_i32 s{sT0}, s{sJ}, 29")
        A(f"v_and_b32 v17, 31, v0")
        A(f"v_add_u32 v17, s{sT0}, v17")
        A(f"v_min_u32 v17, 143, v17")
        A(f"v_lshrrev_b32 v18, 3, v17")
        A(f"s_mov_b32 s{sT0}, {QP}")
        A(f"v_mul_lo_u32 v18, s{sT0}, v18")
        A(f"v_and_b32 v17, 7, v17")
        A(f"v_lshl_add_u32 v17, v17, 7, v18")
        A(f"v_lshrrev_b32 v18, 5, v0")
        A(f"v_lshl_add_u32 v17, v18, 10, v17")
        A(f"s_lshr_b32 s{sOB}, s{sCA}, 5")
        A(f"s_mul_i32 s{sOB}, s{sOB}, {18 * QP}")
        A(f"s_mul_i32 s{sT0}, s{sW}, {GP}")
        A(f"s_add_u32 s{sOB}, s{sOB}, s{sT0}")

        def hw(s_):
            A(f"s_add_u32 s{sT0}, s{sWB}, {s_ * 36864}")
            A(f"buffer_load_dword v{vDUM}, v16, {srd(SRD_P)}, s{sT0} offen")

        def ho(s_):
            A(f"s_add_u32 s{sT0}, s{sOB}, {s_ * 1024}")
            A(f"buffer_load_dword v{vDUM}, v17, {srd(SRD_O)}, s{sT0} offen sc1")
        for s_ in range(NW0, NW0 + OPT["hA"]):
            hw(s_)
        A.label("L3_hpoll")
        A(f"buffer_load_dword v{u1}, v{vZ}, {srd(SRD_D)}, s{sCA} offen sc1")
        A("s_waitcnt vmcnt(0)")
        A(f"v_readfirstlane_b32 s{sU}, v{u1}")
        A(f"s_sub_u32 s{sCNT}, s{sCNT}, 1")
        A("s_cbranch_scc1 L3_done")
        A(f"s_cmp_ge_u32 s{sU}, 8")
        A("s_cbranch_scc1 L3_hgo")
        A(f"s_sleep {OPT['slp']}")
        A("s_branch L3_hpoll")
        A.label("L3_hgo")
        ev = [(s_ - 3, "o", s_) for s_ in range(OPT["ho"], 32, 2)] + [(s_ - DW, "w", s_) for s_ in range(NW0 + OPT["hA"], 32)]
        for _, k_, s_ in sorted(ev):
            (ho if k_ == "o" else hw)(s_)
    A.label("L3_done")


def k1(A):
    A.raw(".p2align 8")
    A.raw(".type attn_kernel,@function")
    A.label("attn_kernel")
    A("s_cmp_ge_u32 s2, 256")
    A("s_cbranch_scc1 L1_end")
    A("s_load_dwordx8 s[32:39], s[0:1], 0")
    A("s_load_dwordx2 s[40:41], s[0:1], 56")
    A("s_load_dwordx2 s[30:31], s[0:1], 32")
    if OPT["tlb"] == 1:
        A("s_load_dwordx4 s[20:23], s[0:1], 40")
    A(f"s_getpc_b64 s[{sPC}:{sPC + 1}]")
    A.label("L1_pc")
    stamp(A)
    if OPT["diag"]:
        A("s_memrealtime s[92:93]")
    if OPT["dspin"]:
        A("s_memrealtime s[62:63]")
    A("s_lshr_b32 s3, s2, 3")
    if OPT["cpf"]:
        A(f"s_lshl_b32 s{sT0}, s3, 11")
        A(f"v_lshl_add_u32 v1, v0, 7, s{sT0}")
        A("v_min_u32 v1, L_code_end-L1_pc-4, v1")
        A("v_cmp_gt_u32 vcc, 16, v0")
        A("s_and_saveexec_b64 s[46:47], vcc")
        A("s_cbranch_execz L1_nocpf")
        A(f"global_load_dword v{vDUM}, v1, s[{sPC}:{sPC + 1}]")
        A.label("L1_nocpf")
        A("s_mov_b64 exec, s[46:47]")
    A("v_lshrrev_b32 v1, 6, v0")
    A("v_and_b32 v0, 63, v0")
    A(f"v_readfirstlane_b32 s{sW}, v1")
    if OPT["xmap"] == 0:
        A(f"s_and_b32 s{sB}, s2, 7")
        A(f"s_mov_b32 s{sH}, s3")
    else:
        A(f"s_and_b32 s{sB}, s2, 1")
        A(f"s_lshl_b32 s{sB}, s{sB}, 2")
        A(f"s_and_b32 s{sT0}, s3, 3")
        A(f"s_add_u32 s{sB}, s{sB}, s{sT0}")
        A(f"s_and_b32 s{sH}, s2, 6")
        A(f"s_lshl_b32 s{sH}, s{sH}, 2")
        A(f"s_lshr_b32 s{sT0}, s3, 2")
        A(f"s_add_u32 s{sH}, s{sH}, s{sT0}")
    A(f"s_and_b32 s{sP}, s{sW}, 1")
    nph = OPT["nph"]
    if nph == 1:
        A(f"s_mov_b32 s{sCW}, 0")
    elif nph == 2:
        A(f"s_add_u32 s{sCW}, s{sB}, s{sH}")
        A(f"s_and_b32 s{sCW}, s{sCW}, 1")
        A(f"s_mul_i32 s{sCW}, s{sCW}, {4 * 128}")
    elif nph == 4:
        A(f"s_add_u32 s{sCW}, s{sB}, s{sH}")
        A(f"s_and_b32 s{sCW}, s{sCW}, 3")
        A(f"s_mul_i32 s{sCW}, s{sCW}, {2 * 128}")
    elif nph == 8:
        A(f"s_lshl_b32 s{sCW}, s{sB}, 1")
        A(f"s_add_u32 s{sCW}, s{sCW}, s{sH}")
        A(f"s_and_b32 s{sCW}, s{sCW}, 7")
        A(f"s_lshl_b32 s{sCW}, s{sCW}, 7")
    elif nph == 5:
        A(f"s_add_u32 s{sCW}, s{sB}, s{sH}")
        A(f"s_and_b32 s{sCW}, s{sCW}, 3")
        A(f"s_mul_i32 s{sCW}, s{sCW}, 9")
        A(f"s_add_u32 s{sCW}, s{sCW}, 2")
        A(f"s_lshr_b32 s{sCW}, s{sCW}, 2")
        A(f"s_lshl_b32 s{sCW}, s{sCW}, 7")
    elif nph == 3:
        A(f"s_add_u32 s{sCW}, s{sB}, s{sH}")
        A(f"s_mul_i32 s{sT0}, s{sCW}, 43")
        A(f"s_lshr_b32 s{sT0}, s{sT0}, 7")
        A(f"s_mul_i32 s{sT0}, s{sT0}, 3")
        A(f"s_sub_u32 s{sCW}, s{sCW}, s{sT0}")
        A(f"s_mul_i32 s{sCW}, s{sCW}, {3 * 128}")
    A(f"s_mov_b32 s{sCX}, s{sCW}")
    t0, t1, t2, g4, i16, r4, cq = 9, 10, 11, 12, 13, 14, 15
    A(f"v_lshrrev_b32 v{g4}, 4, v0")
    A(f"v_and_b32 v{i16}, 15, v0")
    A(f"v_lshrrev_b32 v{t0}, 5, v0")
    A(f"v_lshlrev_b32 v{vWD}, 18, v{t0}")
    A(f"v_and_b32 v{t0}, 1, v{g4}")
    A(f"v_lshl_add_u32 v{vWD}, v{t0}, 15, v{vWD}")
    A(f"v_lshl_add_u32 v{vWD}, v{i16}, 4, v{vWD}")
    A(f"v_lshrrev_b32 v{t0}, 3, v0")
    A(f"v_mul_u32_u24 v{vXD}, 1152, v{t0}")
    A(f"v_and_b32 v{t0}, 7, v0")
    A(f"v_xor_b32 v{t0}, v{t0}, v{g4}")
    A(f"v_lshl_add_u32 v{vXD}, v{t0}, 4, v{vXD}")
    A(f"v_xor_b32 v{vXD + 1}, 64, v{vXD}")
    A(f"s_lshl_b32 s{sT0}, s{sP}, 6")
    A(f"v_xor_b32 v{vXDE}, s{sT0}, v{vXD}")
    A(f"s_lshl_b32 s{sXD}, s{sW}, 13")
    A(f"s_add_u32 s{sXD}, s{sXD}, {XOFF}")
    A(f"s_mul_i32 s{sXS}, s{sW}, {8 * 9216}")
    A(f"s_lshl_b32 s{sXED}, s{sW}, 10")
    A(f"s_add_u32 s{sXED}, s{sXED}, {XEOFF}")
    A(f"s_mul_i32 s{sXES}, s{sW}, 9216")
    A(f"s_add_u32 s{sXES}, s{sXES}, {32 * 9216}")
    A(f"s_lshr_b32 s{sT0}, s{sW}, 1")
    A(f"s_mul_i32 s{sWD}, s{sT0}, {WG1}")
    A(f"s_mul_i32 s{sT0}, s{sP}, {WG0}")
    A(f"s_add_u32 s{sWD}, s{sWD}, s{sT0}")
    A(f"s_lshl_b32 s{sWS}, s{sW}, 16")
    A(f"s_mul_i32 s{sT1}, s{sB}, 331776")
    A(f"s_lshl_b32 s{sT0}, s{sH}, 8")
    A(f"s_mov_b32 s{SRD_X + 2}, 331776")
    A(f"s_mov_b32 s{SRD_X + 3}, 0x20000")
    A(f"s_sub_u32 s{SRD_W + 2}, {576 * 8192}, s{sT0}")
    A(f"s_mov_b32 s{SRD_W + 3}, 0x20000")
    if OPT["fine"]:
        stamp(A)
    A("s_waitcnt lgkmcnt(0)")
    if OPT["fine"]:
        stamp(A)
    A(f"s_add_u32 s{SRD_W}, s38, s{sT0}")
    A(f"s_addc_u32 s{SRD_W + 1}, s39, 0")
    A(f"s_add_u32 s{SRD_X}, s32, s{sT1}")
    A(f"s_addc_u32 s{SRD_X + 1}, s33, 0")
    S = Asm()
    E = A if OPT["tlb"] == 3 else S
    E(f"s_lshl_b32 s{sT1}, s{sB}, 5")
    E(f"s_add_u32 s{sT1}, s{sT1}, s{sH}")
    E(f"s_lshl_b32 s{sT1}, s{sT1}, 19")
    if OPT["tlb"] == 3:
        for r_, p_ in ((SRD_K, 34), (SRD_V, 36)):
            A(f"s_add_u32 s{r_}, s{p_}, s{sT1}")
            A(f"s_addc_u32 s{r_ + 1}, s{p_ + 1}, 0")
            A(f"s_load_dword s{sRDY}, s[{r_}:{r_ + 1}], 0")
    S(f"s_add_u32 s{SRD_K}, s34, s{sT1} | s_addc_u32 s{SRD_K + 1}, s35, 0")
    S(f"s_mov_b32 s{SRD_K + 2}, 524288")
    S(f"s_mov_b32 s{SRD_K + 3}, 0x20000")
    S(f"s_add_u32 s{SRD_V}, s36, s{sT1} | s_addc_u32 s{SRD_V + 1}, s37, 0")
    if OPT["tlb"] == 2:
        S(f"s_load_dword s{sRDY}, s[{SRD_K}:{SRD_K + 1}], 0")
        S(f"s_load_dword s{sRDY}, s[{SRD_V}:{SRD_V + 1}], 0")
    S(f"s_mov_b32 s{SRD_V + 2}, 524288")
    S(f"s_mov_b32 s{SRD_V + 3}, 0x20000")
    S(f"s_add_u32 s{SRD_O}, s40, {OPT['wsoff'] << 20} | s_addc_u32 s{SRD_O + 1}, s41, 0")
    S(f"s_mov_b32 s{SRD_O + 2}, {(DIAG_OFF + (2 << 20)) if OPT['diag'] else WS_O_BYTES}")
    S(f"s_mov_b32 s{SRD_O + 3}, 0x20000")
    S(f"s_mov_b32 s{SRD_P}, s30")
    S(f"s_mov_b32 s{SRD_P + 1}, s31")
    S(f"s_mov_b32 s{SRD_P + 2}, {4096 * 1152}")
    S(f"s_mov_b32 s{SRD_P + 3}, 0x20000")
    S(f"v_bfe_u32 v{r4}, v0, 2, 2")
    S(f"v_and_b32 v{cq}, 3, v0")
    XA, XE, WL, WH = vQA, vQA + 2, vQA + 4, vQA + 5
    S(f"v_lshlrev_b32 v{XE}, 7, v{i16}")
    S(f"v_lshrrev_b32 v{t0}, 1, v{i16}")
    S(f"v_xor_b32 v{t0}, v{t0}, v{g4}")
    S(f"v_lshl_add_u32 v{XE}, v{t0}, 4, v{XE}")
    S(f"v_add_u32 v{XA}, s{sXD}, v{XE}")
    S(f"s_lshr_b32 s{sT1}, s{sW}, 1")
    S(f"s_lshl_b32 s{sT1}, s{sT1}, 11")
    S(f"s_add_u32 s{sT1}, s{sT1}, {XEOFF}")
    S(f"v_add_u32 v{XE}, s{sT1}, v{XE}")
    S(f"v_xor_b32 v{XA + 1}, 64, v{XA}")
    S(f"v_xor_b32 v{XE + 1}, 64, v{XE}")
    S(f"v_lshrrev_b32 v{t0}, 1, v{g4}")
    S(f"v_mul_u32_u24 v{WL}, {WG1}, v{t0}")
    S(f"v_and_b32 v{t0}, 1, v{g4}")
    S(f"v_mul_u32_u24 v{t0}, {WG0}, v{t0}")
    S(f"v_add_u32 v{WL}, v{WL}, v{t0}")
    S(f"v_mul_u32_u24 v{t0}, {XB}, v{r4}")
    S(f"v_add_u32 v{WL}, v{WL}, v{t0}")
    S(f"v_lshl_add_u32 v{WL}, v{cq}, 4, v{WL}")
    S(f"s_lshl_b32 s{sT1}, s{sP}, 7")
    S(f"s_xor_b32 s{sOO}, s{sT1}, 128")
    S(f"v_add_u32 v{WH}, s{sOO}, v{WL}")
    S(f"v_add_u32 v{WL}, s{sT1}, v{WL}")
    for i in range(6):
        S(f"v_add_u32 v{vQA + 6 + i}, {2 * STSZ}, v{vQA + i}")
    S(f"s_lshl_b32 s{sT1}, s{sW}, 12")
    S(f"v_lshl_add_u32 v{vV4}, v0, 4, s{sT1}")
    S(f"s_mul_i32 s{sWOF}, s{sW}, {4 * BLK}")

    def dma_regs(Z):
        for i in range(4):
            Z(f"v_add_u32 v{vD + i}, {i * 1024}, v{vV4}")
    dma_regs(S)
    S(f"v_mul_u32_u24 v{t0}, {BLK}, v{i16}")
    S(f"v_lshl_add_u32 v{t0}, v{g4}, 4, v{t0}")
    S(f"v_lshl_add_u32 v{t1}, v{g4}, 2, v{r4}")
    S(f"v_mul_u32_u24 v{t1}, {BLK}, v{t1}")
    S(f"v_lshl_add_u32 v{t1}, v{cq}, 3, v{t1}")
    for j in range(2):
        S(f"s_xor_b32 s{sT1}, s{sP}, {j}")
        S(f"s_lshl_b32 s{sT1}, s{sT1}, 9")
        S(f"v_add_u32 v{vVB + j}, s{sT1}, v{t1}")
        S(f"s_lshl_b32 s{sOO}, s{sP}, 7")
        S(f"s_add_u32 s{sT1}, s{sT1}, s{sOO}")
        S(f"v_add_u32 v{vKB + 2 * j}, s{sT1}, v{t0}")
        S(f"s_xor_b32 s{sT1}, s{sT1}, 128")
        S(f"v_add_u32 v{vKB + 2 * j + 1}, s{sT1}, v{t0}")
    if OPT["rot"]:
        S(f"s_mul_i32 s{sG0}, s2, {OPT['rot']}")
        S(f"s_lshr_b32 s{sT1}, s2, 4")
        S(f"s_add_u32 s{sG0}, s{sG0}, s{sT1}")
        S(f"s_and_b32 s{sG0}, s{sG0}, 15")
        S(f"s_mul_i32 s{sG0}, s{sG0}, {16384 * 7 // 4 // 16384 * 16384}")
    S(f"s_lshl_b32 s{sWP}, s2, 2")
    S(f"s_add_u32 s{sWP}, s{sWP}, s{sW}")
    S(f"s_mul_i32 s{sWP}, s{sWP}, 4608")
    S(f"v_min_u32 v7, 1, v0")
    S(f"v_lshlrev_b32 v7, 7, v7")
    S(f"s_lshl_b32 s{sDV}, s{sP}, 10")
    S(f"s_sub_u32 s{sDV}, 512, s{sDV}")
    S(f"v_min_u32 v{vCW}, 1, v0")
    S(f"s_lshr_b32 s{sT1}, s2, 3")
    S(f"s_lshl_b32 s{sT1}, s{sT1}, 2")
    S(f"s_add_u32 s{sT1}, s{sT1}, s{sW}")
    S(f"s_lshl_b32 s{sT1}, s{sT1}, 8")
    S(f"v_lshl_add_u32 v{vCW}, v{vCW}, 7, s{sT1}")
    S(f"v_min_u32 v{vCW}, L1_redo-L1_tail, v{vCW}")
    S(f"v_add_u32 v{vCW}, L1_tail-L1_pc, v{vCW}")
    S(f"v_mov_b32 v{t0}, 0x3f803f80")
    S(f"v_cmp_eq_u32 vcc, 0, v{cq}")
    S(f"s_mov_b32 s{sSC}, {QSCALE:#x}")
    S(f"s_mov_b32 s{sREDO}, 0")
    S(f"v_cndmask_b32 v{t0}, 0, v{t0}, vcc")
    for i in range(4):
        S(f"v_accvgpr_write_b32 a{ONES + i}, v{t0}")
    S(f"s_add_u32 s{sT1}, s{sXD}, {2 * STSZ + 6144}")
    S(f"v_lshl_add_u32 v{t0}, v0, 4, s{sT1}")
    S(f"s_xor_b32 s{sT1}, s{sW}, 1")
    S(f"s_lshl_b32 s{sT1}, s{sT1}, 13")
    S(f"s_add_u32 s{sT1}, s{sT1}, {XOFF + 2 * STSZ + 6144}")
    S(f"v_lshl_add_u32 v{t1}, v0, 4, s{sT1}")

    def loop_scalars(Z):
        if OPT["rot"]:
            Z(f"s_add_u32 s{sKVS}, s{sG0}, {DD * 16384}")
        else:
            Z(f"s_mov_b32 s{sKVS}, {DD * 16384}")
        Z(f"s_add_u32 s{sKD}, s{sWOF}, {(NS - 1) * HS}")
        Z(f"s_mov_b32 s{sVD}, s{sWOF}")
        Z(f"s_mov_b32 s{sKN}, {2 * HS}")
        Z(f"s_mov_b32 s{sVN}, {HS}")
        Z(f"s_mov_b32 s{sCNT}, 14")
        Z(f"s_mov_b32 s{sSIDE}, 0")
        if Z is not S or not OPT["diag"]:
            Z(f"s_mov_b32 s{sINC}, 16384")
        if OPT["diag"]:
            Z("s_mov_b32 s41, 31")

    def loop_addr():
        return [f"v_add_u32 v{vK}, {2 * HS}, v{vKB}", f"v_add_u32 v{vK + 1}, {2 * HS}, v{vKB + 1}",
                f"v_mov_b32 v{vK + 2}, v{vKB + 2}", f"v_mov_b32 v{vK + 3}, v{vKB + 3}"]

    loop_scalars(S)
    for i in range(180):
        S(f"v_accvgpr_write_b32 a{i}, 0")
    setup = [x.strip() for x in S.l]
    for i_, p in enumerate(wg_pieces(0) + x_pieces(0)):
        A.ext(p)
        if OPT["fine"] and i_ in (0, 8):
            stamp(A)
    if OPT["fine"]:
        stamp(A)
        A("s_waitcnt vmcnt(12)")
        stamp(A)
        A("s_waitcnt vmcnt(0)")
        stamp(A)
        OPT["diag"] = 2
    npf = 0

    def tlb_touch():
        A(f"v_lshlrev_b32 v{t0}, 18, v0")
        A(f"s_cmp_eq_u32 s{sW}, 1")
        A("s_cbranch_scc1 L1_t1")
        A(f"s_cmp_eq_u32 s{sW}, 2")
        A("s_cbranch_scc1 L1_t2")
        A(f"s_cmp_eq_u32 s{sW}, 3")
        A("s_cbranch_scc1 L1_t3")
        A(f"s_lshl_b32 s{sT1}, s{sB}, 5")
        A(f"s_add_u32 s{sT1}, s{sT1}, s{sH}")
        A(f"s_lshl_b32 s{sT1}, s{sT1}, 19")
        A(f"v_min_u32 v{t0}, {1 << 18}, v{t0}")
        A(f"v_add_u32 v{t0}, s{sT1}, v{t0}")
        A(f"global_load_dword v{vDUM}, v{t0}, s[34:35] nt")
        A(f"global_load_dword v{vDUM}, v{t0}, s[36:37] nt")
        A("s_branch L1_td")
        A.label("L1_t1")
        A(f"v_min_u32 v{t0}, {17 << 18}, v{t0}")
        A(f"global_load_dword v{vDUM}, v{t0}, s[38:39]")
        A(f"global_load_dword v{vDUM}, v{t0}, s[30:31]")
        A("s_branch L1_td")
        A.label("L1_t2")
        A(f"v_lshlrev_b32 v{t1}, 20, v0")
        A(f"v_min_u32 v{t1}, {17 << 20}, v{t1}")
        A(f"v_add_u32 v{t1}, {OPT['wsoff'] << 20}, v{t1}")
        A(f"global_load_dword v{vDUM}, v{t1}, s[40:41] sc1 nt")
        A(f"v_min_u32 v{t0}, {10 << 18}, v{t0}")
        A(f"global_load_dword v{vDUM}, v{t0}, s[20:21] nt")
        A("s_branch L1_td")
        A.label("L1_t3")
        A(f"v_mov_b32 v{t1}, 0")
        A(f"global_load_dword v{vDUM}, v{t1}, s[22:23] sc1")
        A(f"v_min_u32 v{t0}, {10 << 18}, v{t0}")
        A(f"global_load_dword v{vDUM}, v{t0}, s[32:33]")
        A.label("L1_td")

    if OPT["tlb"] == 1:
        tlb_touch()
        npf = 2
    if OPT["pf"]:
        na = OPT["pfa"]
        A(f"v_min_u32 v{t0}, {9 * na - 1}, v0")
        A(f"v_mul_u32_u24 v{t1}, 57, v{t0}")
        A(f"v_lshrrev_b32 v{t1}, 9, v{t1}")
        A(f"v_mul_u32_u24 v{t2}, 9, v{t1}")
        A(f"v_sub_u32 v{t0}, v{t0}, v{t2}")
        A(f"v_mul_u32_u24 v248, 1152, v{t0}")
        A(f"s_and_b32 s{sT1}, s{sH}, 7")
        A(f"s_lshl_b32 s{sT1}, s{sT1}, 2")
        A(f"s_add_u32 s{sT1}, s{sT1}, s{sW}")
        A(f"s_mul_i32 s{sT1}, s{sT1}, {9 * 1152}")
        A(f"v_add_u32 v248, s{sT1}, v248")
        A(f"v_lshl_add_u32 v246, v{t1}, 7, v248")
        A(f"buffer_load_dword v{vDUM}, v246, {srd(SRD_X)}, 0 offen offset:128")
        A(f"v_bfe_u32 v{t0}, v0, 1, 2")
        A(f"v_lshlrev_b32 v249, 13, v{t0}")
        A(f"v_and_b32 v{t0}, 1, v0")
        A(f"v_lshl_add_u32 v249, v{t0}, 7, v249")
        A(f"s_and_b32 s{sT1}, s{sB}, 3")
        A(f"s_lshl_b32 s{sT1}, s{sT1}, 2")
        A(f"s_add_u32 s{sT1}, s{sT1}, s{sW}")
        A(f"s_lshl_b32 s{sT1}, s{sT1}, 15")
        A(f"v_add_u32 v249, s{sT1}, v249")
        A(f"v_lshrrev_b32 v{t0}, 3, v0")
        A(f"v_min_u32 v{t0}, {na - 1}, v{t0}")
        A(f"v_lshl_add_u32 v247, v{t0}, 19, v249")
        A(f"s_mov_b32 s{sT1}, {1 << 19}")
        A(f"buffer_load_dword v{vDUM}, v247, {srd(SRD_W)}, s{sT1} offen")
        npf = 2
    first = []
    for c in range(1, OPT["up"]):
        first += wg_pieces(c) + x_pieces(c)
    per = len(setup) // (len(first) + 1) + 1
    stamp(A)
    for p in [[]] + first:
        A.ext(p)
        for _ in range(per):
            if setup:
                for y in setup.pop(0).split(" | "):
                    A(y)
    assert not setup
    stamp(A)
    A(f"s_waitcnt vmcnt({len(first) + npf})")
    A("s_barrier")
    stamp(A)
    P = lambda n: [item_piece(n, i) for i in range(4)]
    kw = [f"global_load_dword v{vDUM}, v{vCW}, s[{sPC}:{sPC + 1}]"] if OPT["cpf"] else []
    kw = [f"buffer_load_dword v{vDUM}, v7, {srd(SRD_P)}, s{sWP} offen"] if OPT["wopf"] == 2 else []
    if OPT["stg"] == 0:
        extras = {4: P(0), 5: P(1), 6: P(2)}
        al = P(0) + P(1) + P(2)
        if OPT["kvs"] == 1:
            extras = {4: al[0:3], 5: al[3:6], 6: al[6:8], 7: al[8:12]}
        if OPT["kvs"] >= 4:
            extras = {4: al[:OPT["kvs"]]}
            if OPT["kvs"] < 12:
                extras[7] = al[OPT["kvs"]:]
    else:
        extras = {7: P(0) + P(1) + P(2)}
    if DD == 4:
        extras[8] = P(3) + P(4) + P(5)
        late = P(6) + P(7)
        late[0] = kw + late[0]
        late[7] = late[7] + kw
    elif DD == 3:
        extras[8] = P(3)
        late = P(4) + P(5)
        late[7] = late[7] + kw
    else:
        extras[8] = P(3)
        late = [[]] * 8
    if OPT["pf"]:
        for c in range(OPT["pfa"] + 1, 9):
            at = max(0, c - OPT["pf"])
            extras[at] = extras.get(at, []) + [
                [f"buffer_load_dword v{vDUM}, v248, {srd(SRD_X)}, 0 offen offset:{c * 128}"],
                [f"s_mov_b32 s{sT0}, {c << 19}", f"buffer_load_dword v{vDUM}, v249, {srd(SRD_W)}, s{sT0} offen"]]
    if OPT["wopf"] == 1:
        extras[7] = extras.get(7, []) + [[f"v_lshlrev_b32 v253, 7, v0", f"v_min_u32 v253, {35 * 128}, v253",
                      f"buffer_load_dword v{vDUM}, v253, {srd(SRD_P)}, s{sWP} offen"]]

    def conv(t, kk):
        src = ACC + 32 * t + 8 * kk
        dst = QV + 16 * t + 4 * kk
        o = []
        for i in range(4):
            o += [f"v_mul_f32 v{src + 2 * i}, s{sSC}, v{src + 2 * i}", f"v_mul_f32 v{src + 2 * i + 1}, s{sSC}, v{src + 2 * i + 1}"]
        for i in range(4):
            o.append(f"v_cvt_pk_bf16_f32 v{dst + i}, v{src + 2 * i}, v{src + 2 * i + 1}")
        return o

    KF = [184, 224]
    k0reads = [kread(ar(KF[kb] + 4 * kk, 4), vKB, kb, kk) for kb in range(2) for kk in range(4)]
    ti = []

    def spread(lst, g0, g1):
        for i, x in enumerate(lst):
            ti.append((g0 + (i * (g1 - g0)) // len(lst), x))

    spread(conv(4, 0) + conv(0, 0) + conv(1, 0) + conv(2, 0), 13, 22)
    spread(conv(4, 1) + [f"ds_write_b128 v{t0}, {vr(QV + 64, 4)}", f"ds_write_b128 v{t0}, {vr(QV + 68, 4)} offset:1024"]
           + conv(3, 0) + conv(0, 1), 22, 29)
    ti.append((29, "BAR"))
    spread([f"ds_read_b128 {vr(QV + 72, 4)}, v{t1}", f"ds_read_b128 {vr(QV + 76, 4)}, v{t1} offset:1024"] + k0reads[:4]
           + conv(1, 1) + k0reads[4:] + conv(2, 1) + conv(3, 1), 29, 36)
    nb = [i for i, x in enumerate(ti) if x[1] == "BAR"][0]
    ti[nb:nb + 1] = [(29, "VMW"), (29, "s_barrier")]
    qp, issued = build_qproj(extras, OPT["up"], ti, {6: [f"s_load_dwordx4 s[{sOUTP}:{sOUTP + 3}], s[0:1], 40"], 8: p3_setup()})
    vms = [x for x in qp if x.startswith(("buffer_load", "global_load"))]
    lastv0 = max(i for i, x in enumerate(vms) if x == P(1)[3][-1] and i == min(k for k, y in enumerate(vms) if y == x))
    ny = len(vms) - 1 - lastv0
    qp = [(f"s_waitcnt vmcnt({ny}) lgkmcnt(0)" if x == "VMW" else x) for x in qp]
    A.ext(tidy(qp) if OPT['tidy'] else qp)
    stamp(A)
    body, pro, tail, vreads = build_loop()

    def qk0(kb, kk, useneg):
        o = []
        for t in range(5):
            Sx = Sreg(t, 0) + 4 * kb
            C = (vr(NEG + 4 * t, 4) if useneg else "0") if kk == 0 else vr(Sx, 4)
            o.append(f"{MF} {vr(Sx, 4)}, {ar(KF[kb] + 4 * kk, 4)}, {vr(QV + 16 * t + 4 * kk, 4)}, {C}")
        return o

    def mix(mf, fill):
        n = len(mf)
        o = []
        for i, m in enumerate(mf):
            o.append(m)
            o += fill[(i * len(fill)) // n:((i + 1) * len(fill)) // n]
        A.ext(tidy(o) if OPT['tidy'] else o)

    flat = lambda ps: [x for p in ps for x in p]
    pro_rd = [x for x in pro if is_ds(x)]
    pro_sm = [x for x in pro if not is_ds(x)]
    A.ext(conv(0, 2) + flat(late[0:2]) + conv(0, 3))
    A("s_waitcnt lgkmcnt(0)")
    mix(qk0(0, 0, False) + qk0(0, 1, False), conv(1, 2) + conv(2, 2) + conv(3, 2) + flat(late[2:4]))
    mix(qk0(0, 2, False), conv(1, 3) + conv(2, 3) + conv(3, 3))
    A("s_nop 0")
    A.ext(qk0(0, 3, False))
    A.ext(loop_addr())
    A.ext(pro_rd)
    A.ext(flat(late[4:6]))
    for t in range(5):
        Sx = Sreg(t, 0)
        A(f"v_max3_f32 v{vM + t}, v{Sx}, v{Sx + 1}, v{Sx + 2}")
    for t in range(5):
        A(f"v_max_f32 v{vM + t}, v{vM + t}, v{Sreg(t, 0) + 3}")

    def xlane5(Z, op, base, tmp):
        for sw in ("v_permlane32_swap_b32", "v_permlane16_swap_b32"):
            for t in range(5):
                Z(f"v_mov_b32 v{tmp + t}, v{base + t}")
            for t in range(5):
                Z(f"{sw} v{base + t}, v{tmp + t}")
            for t in range(5):
                Z(f"{op} v{base + t}, v{base + t}, v{tmp + t}")

    xlane5(A, "v_max_f32", vM, vM + 8)
    for t in range(5):
        for i in range(4):
            A(f"v_sub_f32 v{NEG + 4 * t + i}, 0, v{vM + t}")
    subs = [f"v_sub_f32 v{Sreg(t, 0) + i}, v{Sreg(t, 0) + i}, v{vM + t}" for t in range(5) for i in range(4)]
    kb0regs = {Sreg(t, 0) + i for t in range(5) for i in range(4)}

    def srcs(x):
        return [int(z.strip()[1:]) for z in x.split(None, 1)[1].split(",")[1:]]
    sm0 = [x for x in pro_sm if all(r in kb0regs for r in srcs(x))]
    sm1 = [x for x in pro_sm if x not in sm0]

    def safe(lst):
        lst = list(lst)
        for i in range(1, len(lst) - 1):
            if lst[i].startswith("v_cvt") and lst[i - 1].startswith("v_exp") and lst[i + 1].startswith("v_exp"):
                ia, ib = hazard.I(lst[i]), hazard.I(lst[i + 1])
                if hazard.I(lst[i - 1]).w & ia.r and not (ia.w & (ib.r | ib.w)) and not (ib.w & ia.r):
                    lst[i], lst[i + 1] = lst[i + 1], lst[i]
        o, prev = [], ""
        for x in lst:
            if prev.startswith("v_exp") and x.startswith("v_cvt") and hazard.I(prev).w & hazard.I(x).r:
                o.append("s_nop 0")
            o.append(x)
            prev = x
        return o
    A.ext(flat(late[6:8]))
    mix(flat([qk0(1, kk, True) for kk in range(4)]), subs + safe(sm0))
    A("s_nop 3")
    A.label("L1_presm")
    A.ext(safe(sm1))
    A("s_waitcnt lgkmcnt(0)")
    stamp(A)
    if OPT["dspin"]:
        A("s_memrealtime s[64:65]")
    A.raw(".p2align 6")
    A.label("L1_loop")
    if OPT["diag"]:
        A.ext(diag_top())
    A.ext(body)
    A("s_branch L1_loop")
    errs = hazard.check(body + body, "loop")
    side_block(A)
    A.label("L1_tail")
    T0 = len(A.l)
    if OPT["dspin"]:
        A("s_memrealtime s[66:67]")
    stamp(A)
    ofl = FLAGS[OPT["ostflag"]]
    P0, RC, Lr = B0[1], 148, 48

    def Pt(j, t):
        return vr((P0 if j == 0 else B1) + 8 * t, 4)

    def ones(t):
        return [f"{MF} {ar(LA + 4 * t, 4)}, {ar(ONES, 4)}, {Pt(j, t)}, {ar(LA + 4 * t, 4)}" for j in range(2 if t < 4 else 1)]

    def pv(t):
        return [f"{MF} {ar(OA + 32 * t + 4 * dt, 4)}, {ar(RING + 8 * dt + 4 * j, 4)}, {Pt(j, t)}, {ar(OA + 32 * t + 4 * dt, 4)}"
                for dt in range(8) for j in range(2 if t < 4 else 1)]

    def norm_store(t, tmp, pk):
        o = []
        if t:
            o.append(f"s_add_u32 s{sT0}, s{sT0}, {QP}")
        for s in range(4):
            b = tmp + 8 * s
            for e in range(8):
                o.append(f"v_accvgpr_read_b32 v{b + e}, a{OA + 32 * t + 8 * s + e}")
            if pk:
                for e in range(4):
                    o.append(f"v_pk_mul_f32 {vr(b + 2 * e, 2)}, {vr(b + 2 * e, 2)}, {vr(RC + 2 * t, 2)} op_sel_hi:[1,0]")
            else:
                for e in range(8):
                    o.append(f"v_mul_f32 v{b + e}, v{RC + 2 * t}, v{b + e}")
            for e in range(4):
                o.append(f"v_cvt_pk_bf16_f32 v{b + e}, v{b + 2 * e}, v{b + 2 * e + 1}")
            of = f" offset:{s * 1024}" if s else ""
            o.append(f"buffer_store_dwordx4 {vr(b, 4)}, v{t2}, {srd(SRD_O)}, s{sT0} offen{of}{ofl}")
        return o

    smt = {t: safe([x for tt, x in tail if tt == t]) for t in range(5)}
    assert not smt[4]
    wr = [f"ds_write_b128 v{t0}, {ar(OA + 128 + 4 * i, 4)} offset:{(i // 4) * HS + (i % 4) * 1024}" for i in range(8)]
    misc = [f"s_mul_i32 s{sOO}, s{sB}, 18", f"s_lshl_b32 s{sT0}, s{sW}, 2", f"s_add_u32 s{sT0}, s{sT0}, s{sOO}",
            f"s_mul_i32 s{sT0}, s{sT0}, {QP}", f"s_lshr_b32 s{sKN}, s{sH}, 3", f"s_mul_i32 s{sKN}, s{sKN}, {OPT['gpad']}",
            f"s_lshl_b32 s{sVN}, s{sH}, 12", f"s_add_u32 s{sKN}, s{sKN}, s{sVN}", f"s_add_u32 s{sT0}, s{sT0}, s{sKN}",
            f"v_lshlrev_b32 v{t2}, 4, v0", f"s_add_u32 s{sT1}, s{sWOF}, {TS * HS}", f"v_lshl_add_u32 v{t0}, v0, 4, s{sT1}"]
    lrd = lambda t: [f"v_accvgpr_read_b32 v{Lr + t}, a{LA + 4 * t}", "s_nop 0", f"v_rcp_f32 v{RC + 2 * t}, v{Lr + t}"]
    A.ext(vreads[:12])
    A.ext(smt[0])
    A.ext(misc[:2])
    mix(ones(0), misc[2:8])
    A("s_waitcnt lgkmcnt(4)")
    mix(pv(0)[:4], vreads[12:20])
    A("s_waitcnt lgkmcnt(4)")
    mix(pv(0)[4:8], vreads[20:28])
    A.ext(vreads[28:] + misc[8:] + lrd(0))
    A("s_waitcnt lgkmcnt(8)")
    n0 = norm_store(0, 16, False)
    mix(pv(0)[8:12], n0[:12])
    A("s_waitcnt lgkmcnt(0)")
    mix(pv(0)[12:], n0[12:21])
    mix(ones(4) + pv(4), smt[1] + n0[21:42])
    mix(ones(1) + pv(1), smt[2] + n0[42:63] + smt[3] + wr[:4])
    n1 = norm_store(1, 16, False)
    mix(ones(2) + ones(3) + pv(2), n0[63:] + wr[4:] + lrd(1) + n1[:22])
    st = [f"v_accvgpr_read_b32 v{Lr + t}, a{LA + 4 * t}" for t in range(2, 5)]
    st += [f"s_lshl_b32 s{sT1}, s{sW}, 10", f"s_add_u32 s{sT1}, s{sT1}, {STATS}", f"v_lshl_add_u32 v{t1}, v0, 4, s{sT1}",
           f"v_add_f32 v53, v{Lr}, v{Lr + 1}", f"v_add_f32 v54, v{Lr + 2}, v{Lr + 3}", f"v_add_f32 v53, v53, v{Lr + 4}",
           f"v_add_f32 v53, v53, v54", f"v_mov_b32 v54, {f32bits(2.0 ** OPT['thr']):#x}", f"v_cmp_nlt_f32 vcc, v53, v54",
           f"v_mov_b32 v156, v{Lr + 4}", f"v_mov_b32 v157, v{NEG + 16}", f"v_mov_b32 v159, 0", f"v_cndmask_b32 v158, 0, 1, vcc",
           f"ds_write_b128 v{t1}, {vr(156, 4)}"]
    st += [f"v_rcp_f32 v{RC + 2 * t}, v{Lr + t}" for t in range(2, 4)]
    mix(pv(3), st + n1[22:43])
    A("s_waitcnt lgkmcnt(0)")
    A("s_barrier")
    A(f"s_and_b32 s{sT1}, s{sW}, 2")
    A(f"s_mul_i32 s{sT1}, s{sT1}, {4 * BLK}")
    A(f"s_mul_i32 s{sT2}, s{sP}, {HS}")
    A(f"s_add_u32 s{sT1}, s{sT1}, s{sT2}")
    A(f"s_add_u32 s{sT1}, s{sT1}, {TS * HS}")
    A(f"v_lshl_add_u32 v{t0}, v0, 4, s{sT1}")
    A(f"s_and_b32 s{sT1}, s{sW}, 2")
    A(f"s_lshl_b32 s{sT1}, s{sT1}, 10")
    A(f"v_lshl_add_u32 v{t1}, v0, 4, s{sT1}")
    A(f"v_xor_b32 v1, 2048, v{t1}")
    A(f"v_add_u32 v{t1}, {STATS}, v{t1}")
    A(f"v_add_u32 v1, {STATS}, v1")
    A(f"ds_read_b128 {vr(128, 4)}, v{t1}")
    A(f"ds_read_b128 {vr(132, 4)}, v{t1} offset:1024")
    A(f"ds_read_b128 {vr(136, 4)}, v1")
    A(f"ds_read_b128 {vr(140, 4)}, v1 offset:1024")
    for w in range(2):
        for q in range(4):
            A(f"ds_read_b128 {vr(96 + 16 * w + 4 * q, 4)}, v{t0} offset:{w * 4 * BLK + q * 1024}")
    A.ext(norm_store(1, 16, True)[35:])
    A("s_waitcnt lgkmcnt(0)")
    A("v_or3_b32 v144, v130, v134, v138")
    A("v_or_b32 v144, v144, v142")
    A("v_cmp_ne_u32 vcc, 0, v144")
    A("v_min_f32 v145, v129, v133")
    A("v_sub_f32 v129, v145, v129")
    A("v_sub_f32 v133, v145, v133")
    A("v_exp_f32 v129, v129")
    A("v_exp_f32 v133, v133")
    A(f"s_cmp_lg_u64 vcc, 0")
    A(f"s_cselect_b32 s{sT1}, 1, 0")
    A(f"s_cmp_gt_u32 s{sT1}, s{sREDO}")
    A("s_cbranch_scc1 L1_redo")
    A("v_mul_f32 v145, v128, v129")
    A("v_fmac_f32 v145, v132, v133")
    A("v_rcp_f32 v145, v145")
    A(f"s_lshr_b32 s{sT1}, s{sW}, 1")
    A(f"s_add_u32 s{sT1}, s{sT1}, s{sOO}")
    A(f"s_add_u32 s{sT1}, s{sT1}, 16")
    A(f"s_mul_i32 s{sT1}, s{sT1}, {QP}")
    A(f"s_add_u32 s{sT1}, s{sT1}, s{sKN}")
    A(f"s_lshl_b32 s{sT2}, s{sP}, 11")
    A(f"s_add_u32 s{sT1}, s{sT1}, s{sT2}")
    A("v_mul_f32 v129, v145, v129")
    A("v_mul_f32 v133, v145, v133")
    for e in range(16):
        A(f"v_mul_f32 v{96 + e}, v129, v{96 + e}")
    for e in range(16):
        A(f"v_fmac_f32 v{96 + e}, v133, v{112 + e}")
    for e in range(8):
        A(f"v_cvt_pk_bf16_f32 v{80 + e}, v{96 + 2 * e}, v{96 + 2 * e + 1}")
    for q in range(2):
        of = " offset:1024" if q else ""
        A(f"buffer_store_dwordx4 {vr(80 + 4 * q, 4)}, v{t2}, {srd(SRD_O)}, s{sT1} offen{of}{ofl}")
    rest = norm_store(2, 48, True) + norm_store(3, 16, True)
    if OPT["fuse"]:
        p3(A, rest)
    else:
        A.ext(rest)
    gx = [i for i, x in enumerate(body) if "L1_tail" in x][0]
    errs += hazard.check(body[:gx + 1] + A.l[T0:T0 + 60], "exit")
    if OPT["diag"]:
        if not OPT["fuse"]:
            stamp(A)
        A("s_waitcnt vmcnt(0)")
        stamp(A)
        A("s_memrealtime s[94:95]")
        A("s_waitcnt lgkmcnt(0)")
        A("v_writelane_b32 v250, s92, 62")
        A("v_writelane_b32 v250, s94, 63")
        for i in range(stamp_n[0]):
            A(f"v_writelane_b32 v250, s{sST + 2 * i}, {50 + i}")
        A("v_writelane_b32 v250, s90, 32")
        A("v_writelane_b32 v251, s96, 32")
        A(f"s_lshl_b32 s{sT0}, s2, 2")
        A(f"s_add_u32 s{sT0}, s{sT0}, s{sW}")
        A(f"s_lshl_b32 s{sT0}, s{sT0}, 8")
        A(f"s_add_u32 s{sT0}, s{sT0}, {DIAG_OFF}")
        A(f"v_lshlrev_b32 v{t0}, 2, v0")
        A(f"buffer_store_dword v250, v{t0}, {srd(SRD_O)}, s{sT0} offen")
        A(f"s_add_u32 s{sT0}, s{sT0}, {1 << 19}")
        A(f"buffer_store_dword v251, v{t0}, {srd(SRD_O)}, s{sT0} offen")
        if OPT["fuse"]:
            for i in range(3):
                A(f"v_writelane_b32 v251, s{78 + 2 * i}, {i}")
            A("v_writelane_b32 v251, s94, 3")
            A(f"s_add_u32 s{sT0}, s{sT0}, {1 << 19}")
            A(f"buffer_store_dword v251, v{t0}, {srd(SRD_O)}, s{sT0} offen")
            if OPT["dbg"]:
                for ln, src in ((4, 30), (5, 22), (6, 14), (7, 32)):
                    A(f"v_readlane_b32 s{sT1}, v251, {src}")
                    A("s_nop 3")
                    A(f"v_writelane_b32 v251, s{sT1}, {ln}")
                A("v_subrev_u32 v251, s92, v251")
                A(f"v_lshlrev_b32 v{t0}, 3, v0")
                A("s_cmp_ge_u32 s2, 216")
                A("s_cbranch_scc1 L1_end")
                A("s_mov_b64 exec, 0xff")
                A(f"buffer_atomic_umax v251, v{t0}, {srd(SRD_W)}, 0 offen offset:4")
    if OPT["dspin"]:
        A("s_waitcnt vmcnt(0)")
        A("s_memrealtime s[68:69]")
        A("s_waitcnt lgkmcnt(0)")
        a_, b_ = {1: (62, 62), 2: (64, 62), 3: (66, 64), 4: (68, 66)}[OPT["dspin"]]
        A(f"s_sub_u32 s70, s{a_}, s{b_}")
        A("s_add_u32 s70, s70, 20000")
        A.label("L1_ds")
        A("s_memrealtime s[72:73]")
        A("s_waitcnt lgkmcnt(0)")
        A("s_sub_u32 s71, s72, s62")
        A("s_cmp_lt_u32 s71, s70")
        A("s_cbranch_scc1 L1_ds")
    A.label("L1_end")
    A("s_endpgm")
    A.label("L1_redo")
    A(f"s_mov_b32 s{sREDO}, 1")
    A("s_waitcnt vmcnt(0) lgkmcnt(0)")
    A("s_barrier")
    A("s_load_dwordx4 s[32:35], s[0:1], 8")
    A(f"s_lshl_b32 s{sT1}, s{sB}, 5")
    A(f"s_add_u32 s{sT1}, s{sT1}, s{sH}")
    A(f"s_lshl_b32 s{sT1}, s{sT1}, 19")
    A("s_waitcnt lgkmcnt(0)")
    A(f"s_add_u32 s{SRD_K}, s32, s{sT1}")
    A(f"s_addc_u32 s{SRD_K + 1}, s33, 0")
    A(f"s_mov_b32 s{SRD_K + 2}, 524288")
    A(f"s_add_u32 s{SRD_V}, s34, s{sT1}")
    A(f"s_addc_u32 s{SRD_V + 1}, s35, 0")
    A(f"s_mov_b32 s{SRD_V + 2}, 524288")
    dma_regs(A)
    for n in range(2 * DD):
        for p in P(n):
            A.ext(p)
    for t in range(5):
        A(f"v_mov_b32 v{vM + t}, 0xff800000")
    A(f"v_lshlrev_b32 v{t0}, 8, v{i16}")
    A(f"v_lshl_add_u32 v{t0}, v{g4}, 4, v{t0}")
    A(f"s_lshl_b32 s{sT1}, s{sP}, 7")
    A(f"v_add_u32 v{t0}, s{sT1}, v{t0}")
    A(f"v_xor_b32 v{t1}, 128, v{t0}")
    A(f"s_mov_b32 s{sT1}, 0")
    A.label("L1_mx")
    for kk in range(4):
        o = f" offset:64" if kk & 1 else ""
        A(f"buffer_load_dwordx4 {vr(112 + 4 * kk, 4)}, v{t0 + (kk >> 1)}, {srd(SRD_K)}, s{sT1} offen{o}")
    A("s_waitcnt vmcnt(0)")
    for kk in range(4):
        for t in range(5):
            C = "0" if kk == 0 else vr(16 + 4 * t, 4)
            A(f"{MF} {vr(16 + 4 * t, 4)}, {vr(112 + 4 * kk, 4)}, {vr(QV + 16 * t + 4 * kk, 4)}, {C}")
    A("s_nop 7")
    for t in range(5):
        A(f"v_max3_f32 v{vM + t}, v{vM + t}, v{16 + 4 * t}, v{17 + 4 * t}")
        A(f"v_max3_f32 v{vM + t}, v{vM + t}, v{18 + 4 * t}, v{19 + 4 * t}")
    A(f"s_add_u32 s{sT1}, s{sT1}, 4096")
    A(f"s_cmp_lt_u32 s{sT1}, {4096 if OPT['twice'] else 524288}")
    A("s_cbranch_scc1 L1_mx")
    xlane5(A, "v_max_f32", vM, vM + 8)
    for t in range(5):
        for i in range(4):
            A(f"v_sub_f32 v{NEG + 4 * t + i}, 0, v{vM + t}")
    for i in range(180):
        A(f"v_accvgpr_write_b32 a{i}, 0")
    A.ext(loop_addr())
    loop_scalars(A)
    A("s_barrier")
    A.ext(k0reads)
    A("s_waitcnt lgkmcnt(0)")
    for kb in range(2):
        for kk in range(4):
            A.ext(qk0(kb, kk, True))
    A.ext(pro_rd)
    A("s_nop 7")
    A.ext(safe(sm0))
    A("s_branch L1_presm")
    return errs


def k2(A):
    DEP = 4
    SRD_A, SRD_WO, SRD_OUT = 4, 8, 12
    sW, sMT, sNT, sT0, sT1, sAS, sBS, sLD, sCNT = 16, 17, 18, 19, 20, 21, 22, 23, 24
    vA, vBD, vBR, t0, t1 = 2, 8, 9, 13, 14
    ACC2, ORING, WF = 16, 112, 208
    A.raw(".p2align 8")
    A.raw(".globl oproj_kernel")
    A.raw(".type oproj_kernel,@function")
    A.label("oproj_kernel")
    A(f"s_cmp_ge_u32 s2, {OPT['k2grid']}")
    A("s_cbranch_scc1 L2_end")
    A("s_load_dwordx4 s[32:35], s[0:1], 32")
    A("s_load_dwordx2 s[36:37], s[0:1], 56")
    if OPT["diag"]:
        A("s_memrealtime s[60:61]")
    A("v_lshrrev_b32 v1, 6, v0")
    A("v_and_b32 v0, 63, v0")
    A(f"v_readfirstlane_b32 s{sW}, v1")
    A("s_and_b32 s25, s2, 7")
    A("s_lshr_b32 s26, s2, 3")
    A(f"s_mul_i32 s{sNT}, s26, 43")
    A(f"s_lshr_b32 s{sNT}, s{sNT}, 7")
    A(f"s_mul_i32 s{sT0}, s{sNT}, 3")
    A(f"s_sub_u32 s{sT0}, s26, s{sT0}")
    A(f"s_mul_i32 s{sMT}, s25, 3")
    A(f"s_add_u32 s{sMT}, s{sMT}, s{sT0}")
    A(f"v_lshlrev_b32 v{vA}, 4, v0")
    for i in range(1, 6):
        A(f"v_add_u32 v{vA + i}, {i * 131072}, v{vA}")
    A(f"v_lshrrev_b32 v{t0}, 3, v0")
    A(f"v_mul_u32_u24 v{vBD}, 1152, v{t0}")
    A(f"v_lshrrev_b32 v{t0}, 4, v0")
    A(f"v_lshlrev_b32 v{t0}, 1, v{t0}")
    A(f"v_and_b32 v{t1}, 7, v0")
    A(f"v_xor_b32 v{t0}, v{t0}, v{t1}")
    A(f"v_lshl_add_u32 v{vBD}, v{t0}, 4, v{vBD}")
    A(f"v_lshrrev_b32 v{t0}, 2, v0")
    A(f"v_lshlrev_b32 v{vBR}, 7, v{t0}")
    A(f"v_bfe_u32 v{t0}, v0, 3, 2")
    A(f"v_lshl_add_u32 v{vBR}, v{t0}, 5, v{vBR}")
    A(f"v_and_b32 v{t0}, 3, v0")
    A(f"v_lshl_add_u32 v{vBR}, v{t0}, 3, v{vBR}")
    A(f"s_mul_i32 s{sLD}, s{sW}, {DEP * 4096}")
    A(f"v_add_u32 v{vBR}, s{sLD}, v{vBR}")
    for n in range(1, 4):
        A(f"v_xor_b32 v{vBR + n}, {32 * n}, v{vBR}")
    A("s_waitcnt lgkmcnt(0)")
    A(f"s_mov_b32 s{SRD_A}, s36")
    A(f"s_mov_b32 s{SRD_A + 1}, s37")
    A(f"s_mov_b32 s{SRD_A + 2}, {(DIAG_OFF + (2 << 20)) if OPT['diag'] else WS_O_BYTES}")
    A(f"s_mov_b32 s{SRD_A + 3}, 0x20000")
    A(f"s_mov_b32 s{SRD_WO}, s32")
    A(f"s_mov_b32 s{SRD_WO + 1}, s33")
    A(f"s_mov_b32 s{SRD_WO + 2}, {4096 * 1152}")
    A(f"s_mov_b32 s{SRD_WO + 3}, 0x20000")
    A(f"s_mov_b32 s{SRD_OUT}, s34")
    A(f"s_mov_b32 s{SRD_OUT + 1}, s35")
    A(f"s_mov_b32 s{SRD_OUT + 2}, {2304 * 1152}")
    A(f"s_mov_b32 s{SRD_OUT + 3}, 0x20000")
    A(f"s_mul_i32 s{sAS}, s{sMT}, 786432")
    A(f"s_lshl_b32 s{sT0}, s{sW}, 15")
    A(f"s_add_u32 s{sAS}, s{sAS}, s{sT0}")
    A(f"s_mul_i32 s{sBS}, s{sW}, {1024 * 1152}")
    A(f"s_lshl_b32 s{sT0}, s{sNT}, 7")
    A(f"s_add_u32 s{sBS}, s{sBS}, s{sT0}")
    WN = OPT["k2rot"]
    sA0, sB0, sPH, sI = 27, 28, 29, 30

    def blk_addr():
        return [f"s_add_u32 s{sT1}, s{sI}, s{sPH}", f"s_and_b32 s{sT1}, s{sT1}, {WN - 1}",
                f"s_and_b32 s31, s{sI}, {(~(WN - 1)) & 0xff}", f"s_or_b32 s{sT1}, s{sT1}, s31",
                f"s_mul_i32 s{sBS}, s{sT1}, {DEP * 32 * 1152}", f"s_add_u32 s{sBS}, s{sBS}, s{sB0}",
                f"s_lshl_b32 s{sAS}, s{sT1}, 12", f"s_add_u32 s{sAS}, s{sAS}, s{sA0}", f"s_add_u32 s{sI}, s{sI}, 1"]
    A(f"s_mov_b32 s{sA0}, s{sAS}")
    A(f"s_mov_b32 s{sB0}, s{sBS}")
    A(f"s_mul_i32 s{sPH}, s{sMT}, {OPT['k2mul']}")
    A(f"s_add_u32 s{sPH}, s{sPH}, s{sNT}")
    A(f"s_mov_b32 s{sI}, 0")
    A.ext(blk_addr())

    def loads(d):
        o = []
        for i in range(4):
            o.append([f"s_add_u32 m0, s{sLD}, {d * 4096 + i * 1024}",
                      f"s_add_u32 s{sT0}, s{sBS}, {(32 * d + 8 * i) * 1152}",
                      f"buffer_load_dwordx4 v{vBD}, {srd(SRD_WO)}, s{sT0} offen lds"])
        off = f" offset:{d * 1024}" if d else ""
        for i in range(6):
            o.append([f"buffer_load_dwordx4 {vr(ORING + 24 * d + 4 * i, 4)}, v{vA + i}, {srd(SRD_A)}, s{sAS} offen{off}"])
        return o

    def wreads(d):
        b = WF + 16 * (d % 2)
        return [f"ds_read_b64_tr_b16 {vr(b + 4 * n + 2 * e, 2)}, v{vBR + n} offset:{d * 4096 + e * 2048}"
                for n in range(4) for e in range(2)]

    zi = 0
    for d in range(DEP - 1):
        for g in loads(d):
            A.ext(g)
            for _ in range(4):
                if zi < 96:
                    A(f"v_mov_b32 v{ACC2 + zi}, 0")
                    zi += 1
    assert zi == 96
    A(f"s_mov_b32 s{sCNT}, {32 // DEP}")
    A(f"s_waitcnt vmcnt({10 * (DEP - 2) + 6})")
    if OPT["diag"]:
        A("s_memrealtime s[62:63]")
    A.ext(wreads(0))
    A.label("L2_loop")
    body = []
    Bd = body.append
    for d in range(DEP):
        Bd(f"s_waitcnt vmcnt({10 * (DEP - 3) + 6})")
        body += wreads((d + 1) % DEP)
        Bd("s_waitcnt lgkmcnt(8)")
        b = WF + 16 * (d % 2)
        ld = loads((d - 1) % DEP)
        k = 0
        for n in range(4):
            for i in range(6):
                acc = vr(ACC2 + 4 * (6 * n + i), 4)
                Bd(f"{MF} {acc}, {vr(b + 4 * n, 4)}, {vr(ORING + 24 * d + 4 * i, 4)}, {acc}")
                k += 1
                if ld and k % 2 == 0:
                    body += ld.pop(0)
        if d == 0:
            body += blk_addr()
            Bd(f"s_cmp_eq_u32 s{sCNT}, 1")
            Bd(f"s_cselect_b32 s{sAS}, 0x40000000, s{sAS}")
            Bd(f"s_cselect_b32 s{sBS}, 0x40000000, s{sBS}")
    Bd(f"s_sub_u32 s{sCNT}, s{sCNT}, 1")
    Bd(f"s_cmp_lg_u32 s{sCNT}, 0")
    A.ext(body)
    A("s_cbranch_scc1 L2_loop")
    errs = hazard.check(body + body, "k2loop")
    if OPT["diag"]:
        A("s_memrealtime s[64:65]")
    A("s_waitcnt vmcnt(0) lgkmcnt(0)")
    A("s_barrier")
    A(f"s_mul_i32 s{sT0}, s{sW}, 24576")
    A(f"v_lshl_add_u32 v{t0}, v0, 4, s{sT0}")
    A("s_nop 7")
    for q in range(24):
        A(f"ds_write_b128 v{t0}, {vr(ACC2 + 4 * q, 4)} offset:{q * 1024}")
    A(f"v_and_b32 v{t0}, 15, v0")
    A(f"v_lshlrev_b32 v{t0}, 4, v{t0}")
    A(f"v_bfe_u32 v{t1}, v0, 4, 1")
    A(f"v_lshl_add_u32 v{t0}, v{t1}, 9, v{t0}")
    A(f"v_lshrrev_b32 v{t1}, 5, v0")
    A(f"v_lshl_add_u32 v{t0}, v{t1}, 10, v{t0}")
    A(f"s_mul_i32 s{sT0}, s{sW}, {6 * 1024}")
    A(f"v_add_u32 v{t0}, s{sT0}, v{t0}")
    A(f"v_add_u32 v{t1}, 49152, v{t0}")
    A("s_waitcnt lgkmcnt(0)")
    A("s_barrier")
    for w in range(4):
        for x in range(3):
            for q in range(2):
                A(f"ds_read_b128 {vr(ORING + 24 * w + 8 * x + 4 * q, 4)}, v{t0 if w < 2 else t1} offset:{(w % 2) * 24576 + x * 2048 + q * 256}")
        if w % 2 == 1:
            A("s_waitcnt lgkmcnt(0)")
    for w in range(1, 4):
        for e in range(24):
            A(f"v_add_f32 v{ORING + e}, v{ORING + e}, v{ORING + 24 * w + e}")
    for e in range(12):
        A(f"v_cvt_pk_bf16_f32 v{ACC2 + e}, v{ORING + 2 * e}, v{ORING + 2 * e + 1}")
    A(f"v_and_b32 v{t0}, 15, v0")
    A(f"v_lshrrev_b32 v{t1}, 5, v0")
    A(f"v_lshl_add_u32 v{t0}, v{t1}, 4, v{t0}")
    A(f"v_mul_u32_u24 v{t0}, 1152, v{t0}")
    A(f"v_bfe_u32 v{t1}, v0, 4, 1")
    A(f"v_lshl_add_u32 v{t0}, v{t1}, 4, v{t0}")
    A(f"s_mul_i32 s{sAS}, s{sMT}, {96 * 1152}")
    A(f"s_lshl_b32 s{sT0}, s{sNT}, 7")
    A(f"s_add_u32 s{sAS}, s{sAS}, s{sT0}")
    A(f"s_lshl_b32 s{sT0}, s{sW}, 5")
    A(f"s_add_u32 s{sAS}, s{sAS}, s{sT0}")
    for x in range(3):
        A(f"buffer_store_dwordx4 {vr(ACC2 + 4 * x, 4)}, v{t0}, {srd(SRD_OUT)}, s{sAS} offen")
        A(f"s_add_u32 s{sAS}, s{sAS}, {32 * 1152}")
    if OPT["diag"]:
        A("s_waitcnt vmcnt(0)")
        A("s_memrealtime s[66:67]")
        A("s_waitcnt lgkmcnt(0)")
        for i in range(4):
            A(f"v_writelane_b32 v250, s{60 + 2 * i}, {i}")
        A(f"s_lshl_b32 s{sT0}, s2, 2")
        A(f"s_add_u32 s{sT0}, s{sT0}, s{sW}")
        A(f"s_lshl_b32 s{sT0}, s{sT0}, 8")
        A(f"s_add_u32 s{sT0}, s{sT0}, {DIAG_OFF + (1 << 20)}")
        A(f"v_lshlrev_b32 v{t0}, 2, v0")
        A(f"buffer_store_dword v250, v{t0}, {srd(SRD_A)}, s{sT0} offen")
    A.label("L2_end")
    A("s_endpgm")
    return errs


def desc(name, vg, acc, sg=102):
    return f""".p2align 6
.amdhsa_kernel {name}
  .amdhsa_next_free_vgpr {vg}
  .amdhsa_next_free_sgpr {sg}
  .amdhsa_accum_offset {acc}
  .amdhsa_group_segment_fixed_size 0
  .amdhsa_kernarg_size 64
  .amdhsa_user_sgpr_count 2
  .amdhsa_user_sgpr_kernarg_segment_ptr 1
  .amdhsa_system_sgpr_workgroup_id_x 1
.end_amdhsa_kernel
"""


def main():
    A = Asm()
    e = k1(A)
    if not OPT["fuse"]:
        e += k2(A)
    A.label("L_code_end")
    e += hazard.check(A.l, "linear")
    for x in e:
        print(x, file=sys.stderr)
    hdr = f"""; Fused MHA block (q-proj + attention) and output projection, gfx950. Generated by a script.
; kernarg: x, k_cache, v_cache, wq, wo, out, debug, ws
; @launch kernel=attn_kernel grid=(256,1,1) block=(256,1,1) lds={LDS1}
{";" if OPT["fuse"] else "; @launch kernel=oproj_kernel grid=(216,1,1) block=(256,1,1) lds=98304"}
.amdgcn_target "amdgcn-amd-amdhsa--gfx950"
.text
.globl attn_kernel
"""
    txt = hdr + "\n".join(A.l) + "\n.section .rodata,\"a\"\n" + desc("attn_kernel", 512, 256) + ("" if OPT["fuse"] else desc("oproj_kernel", 256, 256))
    open(sys.argv[1], "w").write(txt)
    if e and not (OPT["nodma"] or OPT["nomf"]):
        sys.exit(1)


main()
```

```python
import math
import struct
import sys

import hazard

OPT = dict(diag=0, L=6, W=2, xmap=1, nodma=0, nobar=0, kvflag=1, ostflag=2, wopf=2, wsh=8,
           k2grid=216, LQ=7, dmastep=16, gY=138, thr=40, show=0, qstep=5, up=2, qpflag=0, dbg=0, cpf=1, nph=5, k2rot=1, D=3, pf=0, stg=0, pfa=4, kvs=0, rot=0, k2mul=1, fuse=1, dst=0, DO=4, oflag=2, early=5, l2pf=0, fast=1, wsoff=0, twice=0, nomf=0, pad=0, tlb=0, eord=0, fine=0, wflag=0, p3same=0, chain=1, LG=30, LM=12, SO=4, gB=3, e1a=9, e1b=70, LMB=10, dma0=6, wa=8, b2=1, vm2=1, bcap=0, tidy=1, x6d=0, outflag=0, pre=4, slp=4, ppos=4, wpre=9, qpad=4352, gpad=1152, dspin=0, helper=0, hA=6, ho=4, post=0, tail2=1)
for a in sys.argv[2:]:
    k, v = a.split("=")
    OPT[k] = int(v)
FLAGS = ['', ' nt', ' sc1', ' sc0 sc1', ' sc1 nt', ' sc0 sc1 nt', ' sc0']

BLK = 1056
HS = 16 * BLK
DD = OPT['D']
NS = 2 * DD + 1
TS = 7
STATS = 9 * HS
assert DD == 3
XB = 1088
WOFF, XEOFF, XOFF = 0, 17408, 21504
WG0 = 4 * XB + OPT["wsh"]
WG1 = 8720
STSZ = 54272
LDS1 = 163840
GP = 32768 + OPT['gpad']
QP = 4 * GP + OPT['qpad']
WS_O_BYTES = 144 * QP
DIAG_OFF = 64 << 20


def f32bits(x):
    return struct.unpack("<I", struct.pack("<f", x))[0]


QSCALE = f32bits(128 ** -0.5 * math.log2(math.e))


class Asm:
    def __init__(self):
        self.l = []

    def __call__(self, s):
        if " | buffer_store" in s:
            for x in s.split(" | "):
                self.l.append("    " + x)
        else:
            self.l.append("    " + s)

    def label(self, s):
        self.l.append(s + ":")

    def raw(self, s):
        self.l.append(s)

    def ext(self, lst):
        for s in lst:
            self(s)


def vr(a, n):
    return f"v[{a}:{a + n - 1}]"


def ar(a, n):
    return f"a[{a}:{a + n - 1}]"


def srd(n):
    return f"s[{n}:{n + 3}]"


MF = "v_mfma_f32_16x16x32_bf16"

SRD_X, SRD_W, SRD_K, SRD_V, SRD_O, SRD_P = 4, 8, 12, 16, 20, 84
sW, sP, sB, sH = 24, 25, 27, 28
sXD, sXS, sWD, sWS, sT0, sT1 = 42, 43, 44, 45, 46, 47
sXED, sXES = 48, 55
sCNT = 49
sKD, sVD, sKVS, sKN, sVN = 50, 51, 52, 53, 54
sSC = 56
sT2 = 57
sOUTP = 32
sWP = 30
sG0 = 31
sDV = 3
sOO = 58
sREDO = 59
sST = 60
sWOF = 88
sCX, sCW = 89, 100
sPC = 98
sXSc, sWSc, sXEc = 29, 26, 101

vXD, vXDE, vWD, vCW, vV4 = 2, 4, 5, 6, 8
vQA = 160
ACC = 16
B0 = [16, 56]
B1 = 96
NEG = 128
QV = 160
vKB, vVB = 240, 244
vK, vV = 148, 152
vM = 96
vDUM = 252
OA, LA, ONES, RING = 0, 160, 180, 192
XF = [184, 204]
WRING = 224


def Sreg(t, par):
    assert par == 0
    return B0[0] + 8 * t


stamp_n = [0]


def stamp_txt():
    if OPT["diag"] == 1:
        n = stamp_n[0]
        stamp_n[0] += 1
        assert n < 12
        return [f"s_memtime s[{sST + 2 * n}:{sST + 2 * n + 1}]"]
    return []


def stamp(A):
    A.ext(stamp_txt())


def is_ds(x):
    return x.startswith("ds_")


def add_waits(seq, cyclic, W=1, nfr=None):
    rep = 2 if cyclic else 1
    out = []
    issued = 0
    done = 0
    last = {}
    for it in range(rep):
        out = []
        for e in seq:
            if e[0] == "x":
                if is_ds(e[1]):
                    issued += 1
                    if e[2] is not None:
                        last[e[2]] = issued
                if "lgkmcnt(0)" in e[1] or e[1] == "VMW":
                    done = issued
                out.append(e[1])
            else:
                need = 0
                for f in e[2]:
                    if f in last:
                        need = max(need, last[f])
                if need > done:
                    tgt = need
                    for f in e[3] if len(e) > 3 else []:
                        if f in last and last[f] > need - 40:
                            tgt = max(tgt, last[f])
                    n = issued - tgt
                    if n > 15:
                        n = 15
                        tgt = issued - 15
                    out.append(f"s_waitcnt lgkmcnt({n})")
                    done = tgt
                if e[1] is not None:
                    out.append(e[1])
    return out


vD = 246
sINC = 60 if not OPT["diag"] else 26
sKP = 64 if not OPT["diag"] else 34


def tidy(lst):
    import re
    out, gap = [], []

    def flush(seen_mfma):
        g = list(gap)
        gap.clear()
        if not seen_mfma or any(x.startswith(("s_barrier", "s_cbranch", "s_branch")) or x.endswith(":") for x in g):
            return g
        if g and re.fullmatch(r"s_waitcnt lgkmcnt\(\d+\)", g[-1]) and not any("waitcnt" in x for x in g[:-1]):
            n = int(g[-1][18:-1]) - sum(is_ds(x) for x in g[:-1])
            if n >= 0:
                g = [f"s_waitcnt lgkmcnt({n})"] + g[:-1]
        ch = True
        while ch:
            ch = False
            for i in range(len(g) - 1):
                a, b = g[i], g[i + 1]
                if a.startswith("v_") and b.startswith(("ds_", "s_add", "s_mov", "s_lshl", "s_mul", "s_sub", "s_min", "s_and")):
                    ia, ib = hazard.I(a), hazard.I(b)
                    if not (ia.w & (ib.r | ib.w)) and not (ib.w & ia.r):
                        g[i], g[i + 1] = b, a
                        ch = True
        return g
    seen = False
    for x in lst:
        if x.startswith("v_mfma"):
            out += flush(seen)
            out.append(x)
            seen = True
        else:
            gap.append(x)
    out += gap
    return out


def kv_piece(dst, srdn, i):
    return [f"s_add_u32 m0, s{dst}, {i * BLK}",
            f"buffer_load_dwordx4 v{vD + i}, {srd(srdn)}, s{sKVS} offen{FLAGS[OPT['kvflag']]} lds"]


def item_piece(n, i):
    o = f" offset:{i * 1024}" if i else ""
    return [f"s_add_u32 m0, s{sWOF}, {(n % NS) * HS + i * (BLK - 1024)}",
            (f"s_add_u32 s{sT0}, s{sG0}, {(n // 2) * 16384}" if OPT["rot"] else f"s_mov_b32 s{sT0}, {(n // 2) * 16384}"),
            f"buffer_load_dwordx4 v{vV4}, {srd(SRD_V if n % 2 else SRD_K)}, s{sT0} offen{o}{FLAGS[OPT['kvflag']]} lds"]


def adv(r, tmp=None):
    tmp = sT2 if tmp is None else tmp
    return [f"s_add_u32 s{r}, s{r}, {2 * HS}", f"s_sub_u32 s{tmp}, s{r}, {NS * HS}", f"s_min_u32 s{r}, s{r}, s{tmp}"]


def kread(dst, base, kb, kk):
    return f"ds_read_b128 {dst}, v{base + (kk >> 1)} offset:{kb * 256 + (kk & 1) * 64}"


VC, VN = 1000, 2000


def realize(x, par):
    import re

    def f(m):
        n = int(m.group(0))
        if n >= VN:
            return str(B0[1 - par] + n - VN)
        return str(B0[par] + n - VC)
    return re.sub(r"(?<![\w:x])[12]0\d\d(?=[\]:,\s]|$)|(?<=v)[12]0\d\d|(?<=[\[:])[12]0\d\d(?=[\]:])", f, x) if x.startswith("v_") else x


def build_loop():
    NF = 32
    mf = []
    qk_end, pv_first = {}, {}

    def S(j, t, nxt=False):
        return (B1 + 8 * t) if j == 1 else ((VN if nxt else VC) + 8 * t)
    for ph, jn in ((0, 1), (1, 0)):
        tiles = range(5) if jn == 0 else range(4)
        for kb in range(2):
            for t in tiles:
                for kk in range(4):
                    f = 8 * ph + kb * 4 + kk
                    Sx = S(jn, t, True) + 4 * kb
                    C = vr(NEG + 4 * t, 4) if kk == 0 else vr(Sx, 4)
                    mf.append(dict(t=f"{MF} {vr(Sx, 4)}, {ar(RING + 4 * (f % 16), 4)}, {vr(QV + 16 * t + 4 * kk, 4)}, {C}", f=f))
                    qk_end[(jn, t, kb)] = len(mf) - 1
        if ph == 0:
            gX = len(mf) - 1
    for dt in range(8):
        for t in range(5):
            for j in range(2 if t < 4 else 1):
                f = 16 + 2 * dt + j
                O = ar(OA + 32 * t + 4 * dt, 4)
                mf.append(dict(t=f"{MF} {O}, {ar(RING + 4 * (f % 16), 4)}, {vr(S(j, t), 4)}, {O}", f=f))
                pv_first.setdefault((j, t), len(mf) - 1)
        x = dt - 2
        if 0 <= x < 5:
            for j in range(2 if x < 4 else 1):
                Lr = ar(LA + 4 * x, 4)
                mf.append(dict(t=f"{MF} {Lr}, {ar(ONES, 4)}, {vr(S(j, x), 4)}, {Lr}", f=16 + 2 * dt))
    N = len(mf)
    assert N == 153
    first_use, last_use = {}, {}
    for i, m in enumerate(mf):
        first_use.setdefault(m["f"], i)
        last_use[m["f"]] = i

    def wsz(f):
        return (OPT['wa'] if f < 8 else 4) if f < 16 else 2
    cap = [2] * N
    scal = [None] * N
    for f in range(NF):
        if f % wsz(f) == 0:
            scal[(first_use[f] - 1) % N] = ("W", [(f + k) % NF for k in range(wsz(f))])
    scal[N - 2], scal[N - 1] = scal[N - 1], ("B",)
    cap[N - 1] = 0
    assert scal[gX - 1] is None and scal[gX - 2] is None
    scal[gX - 1], scal[gX] = scal[gX], ("P", 1, "s_cbranch_scc1 L1_tail")
    scal[gX - 2] = ("P", 1, f"s_cmp_eq_u32 s{sSIDE}, 2")
    gB = OPT["gB"]
    nvm = 8 + (1 if OPT["wopf"] == 2 else 0)
    assert scal[gB - 1] is None and scal[gB] is None
    scal[gB - 1] = ("T", f"s_waitcnt vmcnt({(DD - 2) * nvm})")
    scal[gB] = ("T", "s_barrier")
    cap[gB] = OPT["bcap"]
    gY = OPT["gY"]
    assert scal[gY] is None and scal[gY - 1] is None
    scal[gY - 1] = ("P", 0, f"s_sub_u32 s{sCNT}, s{sCNT}, 1")
    scal[gY] = ("P", 0, "s_cbranch_scc1 L1_side | L1_back:")
    e1a, e1b = OPT["e1a"], OPT["e1b"]
    ok = [g for g in range(-N, 2 * N) if cap[g % N] == 2]
    place, taken = {}, set()
    for j, lo, hi in ((1, e1a, e1b), (0, e1b + 2 - N, e1a - 2)):
        keys = [(j, t, kb, r) for kb in range(2) for t in (range(5) if j == 0 else range(4)) for r in range(4)]
        gs = []
        for k in range(len(keys)):
            want = lo + k * (hi - lo) / (len(keys) - 1.0)
            g = min((x for x in ok if x % N not in taken and lo <= x <= hi), key=lambda x: abs(x - want))
            taken.add(g % N)
            gs.append(g)
        for key, g in zip(keys, sorted(gs)):
            place[key] = g
    for (j, t, kb, r), g in place.items():
        assert g >= qk_end[(j, t, kb)] + 6 - (N if j == 0 else 0), (j, t, kb, r, g)
        assert g <= pv_first[(j, t)] - 5, (j, t, kb, r, g)
        cap[g % N] = 0

    def frag_reads(f):
        dst = RING + 4 * (f % 16)
        if f < 16:
            kb, kk = divmod(f % 8, 4)
            return [kread(ar(dst, 4), vK + (2 if f < 8 else 0), kb, kk)]
        dt, j = divmod(f - 16, 2)
        return [f"ds_read_b64_tr_b16 {ar(dst + 2 * e, 2)}, v{vV + j} offset:{e * 256 + dt * 32}" for e in range(2)]

    items = []

    def add(name, lo, hi, text, kind=None, chain=None, after=()):
        items.append(dict(n=name, lo=lo, hi=hi, t=text, k=kind, c=chain, a=list(after)))

    for (j, t, kb, r), g in sorted(place.items(), key=lambda z: z[1]):
        if r % 2 == 1:
            Sx = S(j, t)
            add(f"c{j}{t}{kb}{r}", g + 1, min(g + 14, pv_first[(j, t)] - 3),
                f"v_cvt_pk_bf16_f32 v{Sx + 2 * kb + r // 2}, v{Sx + 4 * kb + r - 1}, v{Sx + 4 * kb + r}", ("cvt", j, t), "cvt")
    LG, LM = OPT["LG"], OPT["LM"]
    add("v0", 0, 30, f"v_add_u32 v{vV}, s{sVN}, v{vVB}", None, None)
    add("v1", 0, 31, f"v_add_u32 v{vV + 1}, s{sVN}, v{vVB + 1}", None, None)
    for f in range(NF):
        fu = first_use[f - f % wsz(f)]
        lo = max(fu - LG, last_use[(f + 16) % NF] - (N if f < 16 else 0))
        if 8 <= f < 16:
            lo = max(lo, gB + 1)
        if f >= 16:
            lo = max(lo, gX + 1)
        for e, x in enumerate(frag_reads(f)):
            add(f"r{f}_{e}", lo, fu - (OPT["LMB"] if 8 <= f < 12 else LM), x, ("rd", f), "rd", ["v0", "v1"] if f >= 16 else [])
    add("k1a", 0, 100, f"v_add_u32 v{vK + 2}, s{sDV}, v{vK}", None, None, ["r5_0"])
    add("k1b", 0, 100, f"v_add_u32 v{vK + 3}, s{sDV}, v{vK + 1}", None, None, ["r7_0"])
    st = OPT["dmastep"]
    g = gB + OPT["dma0"]
    prevd = None
    for nm, dst, srdn in (("V", sVD, SRD_V), ("K", sKD, SRD_K)):
        for i in range(4):
            pc = kv_piece(dst, srdn, i)
            add(f"m{nm}{i}", g, g + 10, pc[0], "m0", "dma", [prevd] if prevd else [])
            prevd = f"d{nm}{i}"
            add(f"d{nm}{i}", g + 1, g + 14, pc[1], "dma", "dma")
            g += st
    add("svd", 0, 140, f"s_add_u32 s{sVD}, s{sKN}, s{sWOF}", None, "ak", ["dV3"])
    for i, x in enumerate(adv(sKN)):
        add(f"ak{i}", 0, 142 + i, x, None, "ak")
    add("k0a", 0, 148, f"v_add_u32 v{vK}, s{sKN}, v{vKB}", None, None, ["ak2", "r13_0", "k1a"])
    add("k0b", 0, 148, f"v_add_u32 v{vK + 1}, s{sKN}, v{vKB + 1}", None, None, ["ak2", "r15_0", "k1b"])
    for i, x in enumerate(adv(sVN, sT1)):
        add(f"av{i}", 0, 144 + i, x, None, "av", ["v0", "v1"])
    for i, x in enumerate(adv(sKD, sT0)):
        add(f"ad{i}", 0, 148 + i, x, None, "ad", ["dK3"])
    add("kvs", gY + 1, 151, f"s_add_u32 s{sKVS}, s{sKVS}, s{sINC}", None, None, ["dK3"])
    if OPT["wopf"] == 2:
        add("wp", 75, 140, f"buffer_load_dword v{vDUM}, v7, {srd(SRD_P)}, s{sWP} offen", None, "wp")
        add("wpa", 0, 150, f"s_add_u32 s{sWP}, s{sWP}, 160", None, "wp", ["wp"])
    NP = 5
    pend = []
    for p in range(NP):
        for i, x in enumerate(items):
            pend.append(dict(x, p=p, i=i, lo=x["lo"] + p * N, hi=x["hi"] + p * N))
    chains = {}
    for x in pend:
        chains.setdefault(x["c"] or ("solo", x["n"]), []).append(x)
    at, out = {}, {}
    for g in range(-N, (NP + 1) * N):
        free = cap[g % N]
        sfree = scal[g % N] is None
        while free or sfree:
            cands = []
            for c, q in chains.items():
                if not q:
                    continue
                x = q[0]
                if x["lo"] > g or any((a_, x["p"]) not in at for a_ in x["a"]):
                    continue
                if x["k"] == "dma" and at[("m" + x["n"][1:], x["p"])] == g:
                    continue
                if x["t"].startswith("s_") and not sfree:
                    continue
                if not x["t"].startswith("s_") and not free:
                    continue
                if any(at[(a_, x["p"])] == g for a_ in x["a"]):
                    continue
                if x["t"].startswith("buffer") and (g % N == gB - 1 or free < 2):
                    continue
                cands.append(x)
            if not cands:
                break
            x = min(cands, key=lambda x: (x["hi"], x["i"]))
            chains[x["c"] or ("solo", x["n"])].pop(0)
            at[(x["n"], x["p"])] = g
            out.setdefault(g, []).append(x)
            if x["t"].startswith("s_"):
                sfree = False
            else:
                free -= 2 if x["t"].startswith("buffer") else 1
    for x in items:
        assert at[(x["n"], 2)] - 2 * N == at[(x["n"], 3)] - 3 * N, ("not periodic", x)
        assert at[(x["n"], 2)] - 2 * N <= x["hi"], ("late", x, at[(x["n"], 2)] - 2 * N)
    rel = {x["n"]: at[(x["n"], 2)] - 2 * N for x in items}
    assert rel["dK3"] < gY - 1 and rel["r31_1"] < N
    assert rel["k1a"] < rel["r0_0"] + N and rel["k1b"] < rel["r2_0"] + N
    assert first_use[8 - wsz(0)] <= gB - 1
    assert rel["v0"] < gX and rel["v1"] < gX
    gaps = [[] for _ in range(N)]
    cls = lambda t: 0 if t.startswith("s_") else 1 if t.startswith(("ds_", "buffer")) else 2
    nx = lambda t: __import__("re").sub(r"v10(\d\d)", r"v20\1", t)
    for g in range(N):
        for x in sorted(out.get(2 * N + g, []), key=lambda x: cls(x["t"])):
            n = x["p"] == 3
            gaps[g].append((nx(x["t"]) if n else x["t"], "n" if n else "", x["k"]))
            assert x["p"] in (2, 3), x
    for (j, t, kb, r), g in place.items():
        Sx = S(j, t, g < 0) + 4 * kb + r
        gaps[g % N].append((f"v_exp_f32 v{Sx}, v{Sx}", "n" if g < 0 else "", ("sm", j, t)))
    seq, pro, tail = [], [], []
    for par in range(2):
        for i, m in enumerate(mf):
            if i == 0 and par == 1 and OPT["diag"]:
                for y in diag_top():
                    seq.append(("x", y, None))
            seq.append(("m", realize(m["t"], par), [m["f"]]))
            sc_ = scal[i]
            if sc_ and sc_[0] == "W":
                seq.append(("m", None, sc_[1]))
            elif sc_ and sc_[0] == "T":
                seq.append(("x", sc_[1], None))
            elif sc_ and sc_[0] == "P" and sc_[1] == par:
                seq.append(("x", sc_[2], None))
            for x in gaps[i]:
                isrd = isinstance(x[2], tuple) and x[2][0] == "rd"
                seq.append(("x", realize(x[0], par), x[2][1] if isrd else None))
                if par == 1 and x[1] == "n":
                    assert isinstance(x[2], tuple), x
                    pro.append(realize(x[0], 1))
                if par == 1 and i >= gX and x[1] != "n" and isinstance(x[2], tuple):
                    if x[2][0] in ("sm", "cvt"):
                        tail.append((x[2][2], realize(x[0], 1)))
    body = add_waits(seq, True)
    body = [y for x in body for y in x.split(" | ")]
    if OPT["show"]:
        print("gaps:", "".join("E" if any(y[0].startswith("v_exp") for y in g_) else str(len(g_)) for g_ in gaps), file=sys.stderr)
        print("instr", len(body), "dma", [rel[f"d{n}{i}"] for n in "VK" for i in range(4)],
              "leads", [first_use[f - f % wsz(f)] - rel[f"r{f}_{1 if f >= 16 else 0}"] for f in range(NF)],
              "pro", len(pro), "tail", len(tail), file=sys.stderr)
    vreads = [x for f in range(16, 32) for x in frag_reads(f)]
    return body, pro, tail, vreads


def diag_top():
    return ["s_mov_b32 m0, s41", "s_sub_u32 s41, s41, 1", "v_writelane_b32 v250, s90, m0", "v_writelane_b32 v251, s96, m0",
            "s_memtime s[90:91]", "s_memrealtime s[96:97]"]


def cursor(r):
    return [f"s_add_u32 s{r}, s{r}, 128", f"s_sub_u32 s{sT2}, s{r}, 1152", f"s_min_u32 s{r}, s{r}, s{sT2}"]


def x_pieces(c):
    st = STG[c] * STSZ
    p = []
    for i in range(8):
        pre = [f"s_add_u32 s{sXSc}, s{sXS}, s{sCX}"] + cursor(sCX) if i == 0 else []
        p.append(pre + [f"s_add_u32 m0, s{sXD}, {st + i * 1024}",
                        (f"s_add_u32 s{sT0}, s{sXSc}, {i * 9216}" if i else "s_nop 0"),
                        f"buffer_load_dwordx4 v{vXD + (i & 1)}, {srd(SRD_X)}, s{sT0 if i else sXSc} offen{FLAGS[OPT['qpflag']]} lds"])
    return p


def wg_pieces(c):
    st = STG[c] * STSZ
    p = []
    for r in range(4):
        pre = [f"s_lshl_b32 s{sWSc}, s{sCW}, 12", f"s_add_u32 s{sWSc}, s{sWSc}, s{sWS}",
               f"s_add_u32 s{sXEc}, s{sXES}, s{sCW}"] + cursor(sCW) if r == 0 else []
        p.append(pre + [f"s_add_u32 m0, s{sWD}, {st + WOFF + r * XB}",
                        (f"s_add_u32 s{sT0}, s{sWSc}, {r * 8192}" if r else "s_nop 0"),
                        f"buffer_load_dwordx4 v{vWD}, {srd(SRD_W)}, s{sT0 if r else sWSc} offen{FLAGS[OPT['qpflag']]} lds"])
    p.append([f"s_add_u32 m0, s{sXED}, {st}", "s_nop 0",
              f"buffer_load_dwordx4 v{vXDE}, {srd(SRD_X)}, s{sXEc} offen{FLAGS[OPT['qpflag']]} lds"])
    return p


STG = [[0, 2, 1, 0, 2, 1, 2, 1, 2], [0, 1, 2, 0, 1, 2, 0, 1, 2]][OPT['stg']]


def build_qproj(extras, nup, tail_items, fill):
    LQ = OPT["LQ"]
    mf = []
    first_use, last_use = {}, {}
    for s in range(18):
        for sl in range(8):
            f = ("w", 8 * s + sl)
            tiles = range(5) if sl < 4 else range(4)
            for t in tiles:
                a = ACC + 32 * t + 4 * sl
                C = "0" if s == 0 else vr(a, 4)
                txt = f"{MF} {vr(a, 4)}, {ar(WRING + 4 * sl, 4)}, {ar(XF[s % 2] + 4 * t, 4)}, {C}"
                mf.append((txt, [f, ("x", s, t)]))
                for q in (f, ("x", s, t)):
                    first_use.setdefault(q, len(mf) - 1)
                    last_use[q] = len(mf) - 1
    N = len(mf)
    gaps = [[] for _ in range(N + 1)]

    def st_of(c):
        return (6, 0) if STG[c] == 2 else (0, STG[c] * STSZ)

    def wread(n):
        s, sl = divmod(n, 8)
        c, ks = divmod(s, 2)
        rb, st = st_of(c)
        kk, u = divmod(sl, 2)
        base = vQA + rb + (4 if kk < 2 else 5)
        return [(f"ds_read_b64_tr_b16 {ar(WRING + 4 * sl + 2 * e, 2)}, v{base} offset:{st + (kk & 1) * 64 + 8 * u + e * 256 + ks * 512}",
                 ("w", n)) for e in range(2)]

    def xread(s, t):
        c, ks = divmod(s, 2)
        rb, st = st_of(c)
        if t < 4:
            return (f"ds_read_b128 {ar(XF[s % 2] + 4 * t, 4)}, v{vQA + rb + ks} offset:{st + t * 2048}", ("x", s, t))
        return (f"ds_read_b128 {ar(XF[s % 2] + 16, 4)}, v{vQA + rb + 2 + ks} offset:{st}", ("x", s, t))

    bar = {0: -1, 9: N}
    for c in range(1, 9):
        bar[c] = last_use[("w", 16 * c - LQ + 1)]
    items = []
    for n in range(144):
        c = n // 16
        e = last_use[("w", n - 8)] if n >= 8 else -1
        tg = first_use[("w", n - LQ)] if n >= LQ else -1
        tg = max(tg, e, bar[c])
        for x in wread(n):
            items.append((tg, x))
    rd = sorted(items, key=lambda z: z[0])
    xi = []
    for s in range(18):
        c, ks = divmod(s, 2)
        for t in range(5):
            e = last_use[("x", s - 2, t)] if s >= 2 else -1
            tg = max(e, bar[c])
            if s == 1:
                tg = 0
            if OPT["b2"] and ks == 1 and t == 4 and s > 1:
                tg = max(tg, last_use[("x", s - 2, 3)])
            xi.append((tg, xread(s, t)))
    allrd = sorted([(tg, 0, i, x) for i, (tg, x) in enumerate(xi)] + [(tg, 1, i, x) for i, (tg, x) in enumerate(rd)],
                   key=lambda z: (z[0], z[1], z[2]))
    used = [0] * (N + 2)
    xdone = {}
    g = -1
    for tg, _, _, x in allrd:
        g = max(g, tg)
        if g < 0 and used[0] >= 9:
            g = 0
        wgt = 2 if (OPT["b2"] and "b128" in x[0] and g >= 0) else 1
        while g >= 0 and used[g + 1] + wgt > 2:
            g += 1
        gaps[g + 1].append(("x", x[0], x[1]))
        used[g + 1] += wgt
        if x[1][0] == "x":
            xdone[x[1][1]] = g
        cc = x[1][1] // 16 if x[1][0] == "w" else x[1][1] // 2
        assert g < bar[cc + 1] - 2, (x, g, bar[cc + 1])
    last_rd = g
    sused = [0] * (N + 2)
    groups = []
    for c in range(nup, 9):
        prev = [p for p in range(c) if STG[p] == STG[c]]
        ew = bar[prev[-1] + 1] if prev else -1
        ex = xdone[2 * prev[-1] + 1] + 10 if prev else -1
        if c == 6:
            ex += OPT["x6d"]
        groups.append((ew, 0, c, wg_pieces(c), ("W", c), None))
        groups.append((ex, 2, c, x_pieces(c), ("X", c), prev[-1] if prev else None))
    for c, ps in extras.items():
        groups.append((bar[c] + (45 if (OPT["eord"] and c < 8) else 0), 1, c, ps, ("E", c), None))
    groups.sort(key=lambda z: (z[0], z[2] if z[0] < 0 else 0, z[1]))
    for kind in "WX":
        cs = [z[4][1] for z in groups if z[4][0] == kind]
        assert cs == sorted(cs), cs
    issued = []
    for c in range(nup):
        issued += [(("W", c), -1)] * 5 + [(("X", c), -1)] * 8
        if c == 0 and (OPT["pf"] or OPT["tlb"] == 1):
            issued += [(("P", 0), -1)] * 2
    g = 0
    for tg, _, _, ps, tag, prev in groups:
        for i, p in enumerate(ps):
            late = g - tg
            g = max(g, tg)
            g0 = g
            if i == 0 and prev is not None:
                while used[g + 1] >= 1:
                    g += 1
                gaps[g + 1].append(("xw", ("x", 2 * prev + 1)))
                used[g + 1] += 2
            for ins in p[:-1]:
                if ins == "s_nop 0":
                    continue
                if ins.startswith("s_"):
                    while sused[g + 1] + max(0, used[g + 1] - 1) >= 2 or (sused[g + 1] and used[g + 1] >= 2):
                        g += 1
                    gaps[g + 1].insert(sused[g + 1], ("x", ins, None))
                    sused[g + 1] += 1
                else:
                    while used[g + 1] >= 2:
                        g += 1
                    gaps[g + 1].append(("x", ins, None))
                    used[g + 1] += 1
            g += 1
            while used[g + 1] >= 1:
                g += 1
            assert g < N - 30, (tag, g)
            gaps[g + 1].append(("x", p[-1], None))
            used[g + 1] = 2
            issued.append((tag, g))
            g = max(g + 1, g0 + (OPT["qstep"] if late < 30 else 2))
    for c, lst in fill.items():
        g = bar[c]
        for ins in lst:
            k = ins.count(" | ") + 1
            while used[g + 1] + k > 2 or (k > 1 and used[g + 1]):
                g += 1
            for y in ins.split(" | "):
                gaps[g + 1].append(("x", y, None))
            used[g + 1] += k
            assert g < min(bar[c + 1], N - 26), (c, g)
    vm_at = {}
    for c in range(1, 9):
        before = [t for t, gg in issued if gg < bar[c]]
        for t, gg in issued:
            if t in (("W", c), ("X", c)):
                assert gg < bar[c] - 30, (t, gg, bar[c])
        lastneed = max(i for i, t in enumerate(before) if t in (("W", c), ("X", c)))
        vm_at[c] = len(before) - 1 - lastneed
    if OPT["show"]:
        print("bar", bar, "vm", vm_at, "issue", [(t[0] + str(t[1]), g) for t, g in issued if g >= 0], "lastrd", last_rd - (N - 36), file=sys.stderr)
    seq = []
    tf = list(tail_items)
    for i in range(N + 1):
        if i > 0:
            seq.append(("m", mf[i - 1][0], mf[i - 1][1]))
        for c in range(1, 9):
            if bar[c] == i - 1:
                seq.append(("x", f"s_waitcnt vmcnt({vm_at[c]}) lgkmcnt(0)", None))
                seq.append(("x", "s_barrier", None))
                if OPT["diag"]:
                    seq.append(("x", f"v_writelane_b32 v250, s90, {40 + c}", None))
                    seq.append(("x", "s_memtime s[90:91]", None))
        for x in gaps[i]:
            if x[0] == "xw":
                seq.append(("m", "s_nop 0", [("x", x[1][1], t) for t in range(5)]))
            else:
                seq.append(x)
        while tf and tf[0][0] <= i - 1 - (N - 36):
            seq.append(("x", tf.pop(0)[1], None))
    assert not tf
    return add_waits(seq, False), [t for t, _ in issued]


DW = 9
PRE = OPT['pre']
SRD_OUT, SRD_D = SRD_X, SRD_W
sMT, sNT, sBS, sLD, sU, sPA, sCA = sXD, sXS, sWS, sXED, sXES, sCX, sCW
sAI = 32
sSIDE, sRDY, sPF = 38, 39, 40
vBD, vPF, vZ, vPL = 2, 3, 4, 5
vBR, WF, AC = 144, 112, 160


def wslot(s):
    return (1 + s if s < PRE else [1, 2, 3, 4, 5, 6, 0, 7, 8][(s - PRE) % DW]) * HS


def wload(s):
    return [([f"s_add_u32 s{sU}, s{sBS}, {s * 36864}"] if i == 0 else []) +
            [f"s_add_u32 m0, s{sWOF}, {wslot(s) + i * BLK}", "s_nop 0",
             f"buffer_load_dwordx4 v{vD + i}, {srd(SRD_P)}, s{sU} offen lds"] for i in range(4)]


def oreg(s, i):
    n = (s % OPT["DO"]) * 6 + i
    return 4 * n if n < 16 else 128 + 4 * (n - 16) if n < 24 else 64 + 4 * (n - 24)


def oload(s):
    off = f" offset:{(s % 4) * 1024}" if s % 4 else ""
    o = []
    for i in range(6):
        pre = [f"s_add_u32 s{sAI + i}, s{sAI + i}, 4096"] if (s % 4 == 0 and s and not OPT['p3same'] & 2) else []
        o.append(pre + [f"buffer_load_dwordx4 {ar(oreg(s, i), 4)}, v11, {srd(SRD_O)}, s{sAI + i} offen{off}{FLAGS[OPT['oflag']]}"])
    return o


def p3_setup():
    Z = Asm()
    Z(f"s_lshr_b32 s{sU}, s2, 3")
    Z(f"s_mul_i32 s{sPF}, s{sU}, 6912")
    Z(f"s_mul_i32 s{sNT}, s{sU}, 43")
    Z(f"s_lshr_b32 s{sNT}, s{sNT}, 7")
    Z(f"s_mul_i32 s{sMT}, s{sNT}, 3")
    Z(f"s_sub_u32 s{sMT}, s{sU}, s{sMT}")
    if OPT["xmap"] == 1:
        Z(f"s_and_b32 s{sCA}, s2, 1")
        Z(f"s_xor_b32 s{sCA}, s{sCA}, 1")
        Z(f"s_lshl_b32 s{sCA}, s{sCA}, 2")
        Z(f"s_bfe_u32 s{sU}, s2, 0x20001")
        Z(f"s_add_u32 s{sCA}, s{sCA}, s{sU}")
    else:
        Z(f"s_and_b32 s{sCA}, s2, 7")
    Z(f"s_mul_i32 s{sU}, s{sCA}, 3")
    Z(f"s_add_u32 s{sMT}, s{sMT}, s{sU}")
    Z(f"s_lshl_b32 s{sCA}, s{sCA}, 2")
    Z(f"s_add_u32 s{sCA}, s{sCA}, s{sW}")
    Z(f"s_lshl_b32 s{sCA}, s{sCA}, 3")
    Z(f"s_lshl_b32 s{sPA}, s{sB}, 2")
    Z(f"s_lshr_b32 s{sU}, s{sH}, 3")
    Z(f"s_add_u32 s{sPA}, s{sPA}, s{sU}")
    Z(f"s_lshl_b32 s{sPA}, s{sPA}, 3")
    Z(f"v_lshrrev_b32 v{vPF}, 3, v0")
    Z(f"v_mul_u32_u24 v{vBD}, 1152, v{vPF}")
    Z(f"v_lshlrev_b32 v{vPF}, 1, v12")
    Z(f"v_and_b32 v{vZ}, 7, v0")
    Z(f"v_xor_b32 v{vPF}, v{vPF}, v{vZ}")
    Z(f"v_lshl_add_u32 v{vBD}, v{vPF}, 4, v{vBD}")
    Z(f"v_min_u32 v{vPF}, 53, v0")
    Z(f"v_lshlrev_b32 v{vPF}, 7, v{vPF}")
    Z(f"v_mov_b32 v{vZ}, 0")
    Z(f"s_lshl_b32 s{sLD}, s{sW}, 12")
    Z(f"s_mul_i32 s{sBS}, s{sW}, {1024 * 1152}")
    Z(f"s_add_u32 s{sPF}, s{sPF}, s{sBS}")
    Z(f"s_lshl_b32 s{sU}, s{sNT}, 7")
    Z(f"s_add_u32 s{sBS}, s{sBS}, s{sU}")
    Z(f"s_cmp_ge_u32 s2, 216 | s_cselect_b32 s{sBS}, 0x40000000, s{sBS}")
    Z(f"s_mov_b32 s{SRD_OUT}, s{sOUTP}")
    Z(f"s_mov_b32 s{SRD_OUT + 1}, s{sOUTP + 1}")
    Z(f"s_mov_b32 s{SRD_OUT + 2}, {2304 * 1152}")
    Z(f"s_mov_b32 s{SRD_D}, s{sOUTP + 2}")
    Z(f"s_mov_b32 s{SRD_D + 1}, s{sOUTP + 3}")
    Z(f"s_mov_b32 s{SRD_D + 2}, 256")
    if OPT["diag"]:
        Z(f"s_mov_b32 s{sINC}, 16384")
    return [x.strip() for x in Z.l]


def o_bases(oob):
    o = [f"s_mul_i32 s{sAI}, s{sMT}, {6 * QP}", f"s_mul_i32 s{sU}, s{sW}, {GP}", f"s_add_u32 s{sAI}, s{sAI}, s{sU}"]
    if oob:
        o += [f"s_cmp_ge_u32 s{sRDY}, 8", f"s_cselect_b32 s{sAI}, s{sAI}, 0x40000000"]
    o += [f"s_add_u32 s{sAI + i}, s{sAI}, {i * QP}" for i in range(1, 6)]
    return o


def side_block(A):
    A.label("L1_side")
    A(f"s_cmp_eq_u32 s{sSIDE}, 0")
    A("s_cbranch_scc1 L1_side1")
    A(f"s_mov_b32 s{sSIDE}, 2")
    A(f"s_mov_b32 s{sKVS}, 0x40000000")
    A("s_branch L1_back")
    A.label("L1_side1")
    A(f"global_load_dword v{vDUM}, v{vCW}, s[{sPC}:{sPC + 1}]")
    A(f"s_mov_b32 s{sSIDE}, 1")
    A(f"s_mov_b32 s{sCNT}, 0")
    A(f"s_mov_b32 s{sINC}, {2 * 36864}")
    A(f"s_sub_u32 s{sKVS}, s{sBS}, {2 * 36864}")
    A(f"s_mov_b32 s{SRD_K}, s{SRD_P}")
    A(f"s_mov_b32 s{SRD_K + 1}, s{SRD_P + 1}")
    A(f"s_mov_b32 s{SRD_K + 2}, {4096 * 1152}")
    A(f"s_add_u32 s{SRD_V}, s{SRD_P}, 36864")
    A(f"s_addc_u32 s{SRD_V + 1}, s{SRD_P + 1}, 0")
    A(f"s_mov_b32 s{SRD_V + 2}, {4096 * 1152 - 36864}")
    for i in range(4):
        A(f"v_add_u32 v{vD + i}, {i * 9216}, v{vBD}")
    A("s_branch L1_back")


def p3(A, rest):
    DO = OPT["DO"]
    u0, u1 = 253, 254
    vBR = 224
    assert PRE == 4

    def wreg(s):
        return QV + 16 * s if s < PRE else WF + 16 * (s % 2)

    def wreads(s):
        o = wslot(s)
        return [f"ds_read_b64_tr_b16 {vr(wreg(s) + 4 * n + 2 * e, 2)}, v{vBR + 4 * (o // (3 * HS)) + n} offset:{o % (3 * HS) + e * 2 * BLK}"
                for n in range(4) for e in range(2)]

    A(f"v_bfe_u32 v{u0}, v0, 2, 3")
    A(f"v_lshlrev_b32 v{vBR}, 7, v{u0}")
    A(f"v_bfe_u32 v{u0}, v0, 3, 2")
    A(f"v_xor_b32 v{u0}, s{sW}, v{u0}")
    A(f"v_lshl_add_u32 v{vBR}, v{u0}, 5, v{vBR}")
    A(f"v_lshl_add_u32 v{vBR}, v15, 3, v{vBR}")
    A(f"v_lshrrev_b32 v{u0}, 5, v0")
    A(f"v_mul_u32_u24 v{u0}, {BLK}, v{u0}")
    A(f"v_add_u32 v{u0}, s{sWOF}, v{u0}")
    for n_ in range(1, 4):
        A(f"v_xor_b32 v{vBR + n_}, {32 * n_}, v{vBR}")
    for n_ in range(4):
        A(f"v_add_u32 v{vBR + n_}, v{u0}, v{vBR + n_}")
    for k in range(1, 3):
        for n_ in range(4):
            A(f"v_add_u32 v{vBR + 4 * k + n_}, {3 * HS * k}, v{vBR + n_}")
    A("s_waitcnt vmcnt(10)")
    pre = [x for s in range(PRE) for x in wreads(s)]
    cut = len(rest) * OPT["ppos"] // 4
    rest = rest[:cut] + [f"buffer_load_dword v{vPL}, v{vZ}, {srd(SRD_D)}, s{sCA} offen sc1"] + rest[cut:]
    for i in range(8):
        A.ext(pre[4 * i:4 * i + 4])
        A.ext(rest[(i * len(rest)) // 8:((i + 1) * len(rest)) // 8])
    A.ext(o_bases(False))
    stamp(A)
    PW = PRE + OPT["post"]
    assert OPT["post"] <= 6
    if OPT["post"]:
        A("s_waitcnt lgkmcnt(0)")
    for s in range(PRE, PW):
        for p in wload(s):
            A.ext(p)
    A(f"v_mov_b32 v{u0}, 1")
    A(f"s_mov_b32 s{sCNT}, {1 << 22}")
    A("s_waitcnt vmcnt(0) lgkmcnt(0)")
    A("s_barrier")
    if OPT["diag"]:
        A("s_memrealtime s[78:79]")
    A(f"v_readfirstlane_b32 s{sRDY}, v{vPL}")

    def publish(lbl):
        A(f"s_cmp_lg_u32 s{sW}, 0")
        A(f"s_cbranch_scc1 {lbl}")
        A("s_mov_b64 exec, 1")
        A(f"buffer_atomic_add v{u0}, v{vZ}, {srd(SRD_D)}, s{sPA} offen sc1")
        A("s_mov_b64 exec, -1")
        A.label(lbl)

    A("s_cmp_ge_u32 s2, 216")
    A(f"s_cselect_b32 s{sRDY}, 0, s{sRDY}")
    A(f"s_cmp_ge_u32 s{sRDY}, {8 if OPT['fast'] else 999}")
    A("s_cbranch_scc1 L3_fast")
    publish("L3_na1")
    A("s_cmp_ge_u32 s2, 216")
    A("s_cbranch_scc1 L3_help" if OPT["helper"] else "s_cbranch_scc1 L3_done")
    vmq, nfast = [], []
    NW0 = PRE + OPT["wpre"]
    for s in range(PW, NW0):
        for p in wload(s):
            A.ext(p)
    A.label("L3_poll")
    A(f"buffer_load_dword v{u1}, v{vZ}, {srd(SRD_D)}, s{sCA} offen sc1")
    A("s_waitcnt vmcnt(0)")
    A(f"v_readfirstlane_b32 s{sU}, v{u1}")
    A(f"s_sub_u32 s{sCNT}, s{sCNT}, 1")
    A("s_cbranch_scc1 L3_rdy")
    A(f"s_cmp_ge_u32 s{sU}, 8")
    A("s_cbranch_scc1 L3_rdy")
    A(f"s_sleep {OPT['slp']}")
    A("s_branch L3_poll")
    A.label("L3_rdy")
    for s in range(DO):
        for p in oload(s):
            A.ext(p)
            vmq.append(("o", s))
    A("s_branch L3_go")
    A.label("L3_fast")
    seq = [("o", s) for s in range(DO)] + [("w", s) for s in range(PW, NW0)]
    for n_, (k_, s) in enumerate(seq):
        for p in (oload(s) if k_ == "o" else wload(s)):
            A.ext(p)
            nfast.append((k_, s))
        if n_ == 1:
            publish("L3_na2")
    A.label("L3_go")
    if OPT["diag"]:
        A("s_memrealtime s[80:81]")
    OWN = 16

    def accr(n_, i):
        return vr(OWN + 4 * i, 4) if n_ == 0 else ar(AC + 4 * (6 * (n_ - 1) + i), 4)
    vW_, vR_ = 40, 43
    fin = [f"v_lshl_add_u32 v{vW_}, v0, 4, s{sWOF}", f"v_add_u32 v{vW_ + 1}, {2 * HS}, v{vW_}", f"v_add_u32 v{vW_ + 2}, {4 * HS}, v{vW_}"]
    for n_ in range(1, 4):
        fin += [f"s_xor_b32 s{sT0}, s{sW}, {n_}", f"s_mul_i32 s{sT0}, s{sT0}, {4 * BLK}", f"s_add_u32 s{sT0}, s{sT0}, {(n_ - 1) * 2 * HS}",
                f"v_lshl_add_u32 v{vR_ + n_ - 1}, v0, 4, s{sT0}"]
    fin += [f"v_bfe_u32 v10, v0, 4, 1", f"v_lshl_add_u32 v9, v10, 4, v13", f"v_mul_u32_u24 v9, 1152, v9",
            f"v_lshrrev_b32 v10, 5, v0", f"v_lshl_add_u32 v9, v10, 4, v9",
            f"s_mul_i32 s{sT1}, s{sMT}, {96 * 1152}", f"s_lshl_b32 s{sT0}, s{sNT}, 7", f"s_add_u32 s{sT1}, s{sT1}, s{sT0}",
            f"s_lshl_b32 s{sT0}, s{sW}, 5", f"s_add_u32 s{sT1}, s{sT1}, s{sT0}"]
    nw = NW0
    for s in range(32):
        cnt = []
        for q in (vmq, nfast):
            need = [i for i, t in enumerate(q) if t in (("o", s), ("w", s + 1))]
            cnt.append(len(q) - 1 - max(need) if need else 63)
        A(f"s_waitcnt vmcnt({min(min(cnt), 63)}) lgkmcnt(0)")
        rdq = wreads(s + 1) if PRE <= s + 1 < 32 else []
        ld = []
        if nw < 32 and nw - DW <= s:
            ld += [(p, ("w", nw)) for p in wload(nw)]
            nw += 1
        if s >= 1 and s - 1 + DO < 32:
            ld += [(p, ("o", s - 1 + DO)) for p in oload(s - 1 + DO)]
        extra = list(fin) if s == 30 else []
        wq = []
        k = 0
        for n_ in ((1, 2, 3, 0) if s == 31 else range(4)):
            for i in range(6):
                acc = accr(n_, i)
                A(f"{MF} {acc}, {vr(wreg(s) + 4 * n_, 4)}, {ar(oreg(s, i), 4)}, {'0' if s == 0 else acc}")
                k += 1
                if rdq and k % 2 == 1:
                    A(rdq.pop(0))
                if ld and k % 2 == 0:
                    p, tag = ld.pop(0)
                    A.ext(p)
                    vmq.append(tag)
                    nfast.append(tag)
                if extra and k % 2 == 0:
                    A.ext(extra[:3])
                    extra = extra[3:]
                if s == 31:
                    if n_:
                        wq.append(f"ds_write_b128 v{vW_ + n_ - 1}, {acc} offset:{(i // 3) * HS + (i % 3) * 1024}")
                    if k > 8:
                        A(wq.pop(0))
        assert not ld and not rdq and not extra
        A.ext(wq)
    assert nw == 32
    if OPT["diag"]:
        A("s_memrealtime s[82:83]")
    A("s_waitcnt lgkmcnt(0)")
    A("s_barrier")
    R = 48
    for x in range(3):
        for i in (2 * x, 2 * x + 1):
            for n_ in range(1, 4):
                A(f"ds_read_b128 {vr(R + 12 * i + 4 * (n_ - 1), 4)}, v{vR_ + n_ - 1} offset:{(i // 3) * HS + (i % 3) * 1024}")
    for x in range(3):
        A(f"s_waitcnt lgkmcnt({6 * (2 - x)})")
        for i in (2 * x, 2 * x + 1):
            for e in range(4):
                A(f"v_add_f32 v{OWN + 4 * i + e}, v{OWN + 4 * i + e}, v{R + 12 * i + e}")
                A(f"v_add_f32 v{R + 12 * i + 4 + e}, v{R + 12 * i + 4 + e}, v{R + 12 * i + 8 + e}")
            for e in range(4):
                A(f"v_add_f32 v{OWN + 4 * i + e}, v{OWN + 4 * i + e}, v{R + 12 * i + 4 + e}")
        d = 124 + 4 * x
        for e in range(4):
            A(f"v_cvt_pk_bf16_f32 v{d + e}, v{OWN + 8 * x + 2 * e}, v{OWN + 8 * x + 2 * e + 1}")
        A("s_nop 1")
        A(f"v_permlane16_swap_b32 v{d}, v{d + 2}")
        A(f"v_permlane16_swap_b32 v{d + 1}, v{d + 3}")
        A(f"buffer_store_dwordx4 {vr(d, 4)}, v9, {srd(SRD_OUT)}, s{sT1} offen{FLAGS[OPT['outflag']]}")
        A(f"s_add_u32 s{sT1}, s{sT1}, {32 * 1152}")
    if OPT["helper"]:
        A("s_branch L3_done")
        A.label("L3_help")
        sJ, sOB, sWB = sAI, sAI + 1, sAI + 2
        A(f"s_lshr_b32 s{sJ}, s2, 3")
        A(f"s_sub_u32 s{sJ}, s{sJ}, 27")
        A(f"s_mul_i32 s{sT0}, s{sJ}, 58")
        A(f"v_add_u32 v16, s{sT0}, v0")
        A(f"v_min_u32 v16, 287, v16")
        A(f"v_lshlrev_b32 v16, 7, v16")
        A(f"s_mul_i32 s{sWB}, s{sW}, {1024 * 1152}")
        A(f"s_mul_i32 s{sT0}, s{sJ}, 29")
        A(f"v_and_b32 v17, 31, v0")
        A(f"v_add_u32 v17, s{sT0}, v17")
        A(f"v_min_u32 v17, 143, v17")
        A(f"v_lshrrev_b32 v18, 3, v17")
        A(f"s_mov_b32 s{sT0}, {QP}")
        A(f"v_mul_lo_u32 v18, s{sT0}, v18")
        A(f"v_and_b32 v17, 7, v17")
        A(f"v_lshl_add_u32 v17, v17, 7, v18")
        A(f"v_lshrrev_b32 v18, 5, v0")
        A(f"v_lshl_add_u32 v17, v18, 10, v17")
        A(f"s_lshr_b32 s{sOB}, s{sCA}, 5")
        A(f"s_mul_i32 s{sOB}, s{sOB}, {18 * QP}")
        A(f"s_mul_i32 s{sT0}, s{sW}, {GP}")
        A(f"s_add_u32 s{sOB}, s{sOB}, s{sT0}")

        def hw(s_):
            A(f"s_add_u32 s{sT0}, s{sWB}, {s_ * 36864}")
            A(f"buffer_load_dword v{vDUM}, v16, {srd(SRD_P)}, s{sT0} offen")

        def ho(s_):
            A(f"s_add_u32 s{sT0}, s{sOB}, {s_ * 1024}")
            A(f"buffer_load_dword v{vDUM}, v17, {srd(SRD_O)}, s{sT0} offen sc1")
        for s_ in range(NW0, NW0 + OPT["hA"]):
            hw(s_)
        A.label("L3_hpoll")
        A(f"buffer_load_dword v{u1}, v{vZ}, {srd(SRD_D)}, s{sCA} offen sc1")
        A("s_waitcnt vmcnt(0)")
        A(f"v_readfirstlane_b32 s{sU}, v{u1}")
        A(f"s_sub_u32 s{sCNT}, s{sCNT}, 1")
        A("s_cbranch_scc1 L3_done")
        A(f"s_cmp_ge_u32 s{sU}, 8")
        A("s_cbranch_scc1 L3_hgo")
        A(f"s_sleep {OPT['slp']}")
        A("s_branch L3_hpoll")
        A.label("L3_hgo")
        ev = [(s_ - 3, "o", s_) for s_ in range(OPT["ho"], 32, 2)] + [(s_ - DW, "w", s_) for s_ in range(NW0 + OPT["hA"], 32)]
        for _, k_, s_ in sorted(ev):
            (ho if k_ == "o" else hw)(s_)
    A.label("L3_done")


def k1(A):
    A.raw(".p2align 8")
    A.raw(".type attn_kernel,@function")
    A.label("attn_kernel")
    A("s_cmp_ge_u32 s2, 256")
    A("s_cbranch_scc1 L1_end")
    A("s_load_dwordx8 s[32:39], s[0:1], 0")
    A("s_load_dwordx2 s[40:41], s[0:1], 56")
    A("s_load_dwordx2 s[30:31], s[0:1], 32")
    if OPT["tlb"] == 1:
        A("s_load_dwordx4 s[20:23], s[0:1], 40")
    A(f"s_getpc_b64 s[{sPC}:{sPC + 1}]")
    A.label("L1_pc")
    stamp(A)
    if OPT["diag"]:
        A("s_memrealtime s[92:93]")
    if OPT["dspin"]:
        A("s_memrealtime s[62:63]")
    A("s_lshr_b32 s3, s2, 3")
    if OPT["cpf"]:
        A(f"s_lshl_b32 s{sT0}, s3, 11")
        A(f"v_lshl_add_u32 v1, v0, 7, s{sT0}")
        A("v_min_u32 v1, L_code_end-L1_pc-4, v1")
        A("v_cmp_gt_u32 vcc, 16, v0")
        A("s_and_saveexec_b64 s[46:47], vcc")
        A("s_cbranch_execz L1_nocpf")
        A(f"global_load_dword v{vDUM}, v1, s[{sPC}:{sPC + 1}]")
        A.label("L1_nocpf")
        A("s_mov_b64 exec, s[46:47]")
    A("v_lshrrev_b32 v1, 6, v0")
    A("v_and_b32 v0, 63, v0")
    A(f"v_readfirstlane_b32 s{sW}, v1")
    if OPT["xmap"] == 0:
        A(f"s_and_b32 s{sB}, s2, 7")
        A(f"s_mov_b32 s{sH}, s3")
    else:
        A(f"s_and_b32 s{sB}, s2, 1")
        A(f"s_lshl_b32 s{sB}, s{sB}, 2")
        A(f"s_and_b32 s{sT0}, s3, 3")
        A(f"s_add_u32 s{sB}, s{sB}, s{sT0}")
        A(f"s_and_b32 s{sH}, s2, 6")
        A(f"s_lshl_b32 s{sH}, s{sH}, 2")
        A(f"s_lshr_b32 s{sT0}, s3, 2")
        A(f"s_add_u32 s{sH}, s{sH}, s{sT0}")
    A(f"s_and_b32 s{sP}, s{sW}, 1")
    nph = OPT["nph"]
    if nph == 1:
        A(f"s_mov_b32 s{sCW}, 0")
    elif nph == 2:
        A(f"s_add_u32 s{sCW}, s{sB}, s{sH}")
        A(f"s_and_b32 s{sCW}, s{sCW}, 1")
        A(f"s_mul_i32 s{sCW}, s{sCW}, {4 * 128}")
    elif nph == 4:
        A(f"s_add_u32 s{sCW}, s{sB}, s{sH}")
        A(f"s_and_b32 s{sCW}, s{sCW}, 3")
        A(f"s_mul_i32 s{sCW}, s{sCW}, {2 * 128}")
    elif nph == 8:
        A(f"s_lshl_b32 s{sCW}, s{sB}, 1")
        A(f"s_add_u32 s{sCW}, s{sCW}, s{sH}")
        A(f"s_and_b32 s{sCW}, s{sCW}, 7")
        A(f"s_lshl_b32 s{sCW}, s{sCW}, 7")
    elif nph == 5:
        A(f"s_add_u32 s{sCW}, s{sB}, s{sH}")
        A(f"s_and_b32 s{sCW}, s{sCW}, 3")
        A(f"s_mul_i32 s{sCW}, s{sCW}, 9")
        A(f"s_add_u32 s{sCW}, s{sCW}, 2")
        A(f"s_lshr_b32 s{sCW}, s{sCW}, 2")
        A(f"s_lshl_b32 s{sCW}, s{sCW}, 7")
    elif nph == 3:
        A(f"s_add_u32 s{sCW}, s{sB}, s{sH}")
        A(f"s_mul_i32 s{sT0}, s{sCW}, 43")
        A(f"s_lshr_b32 s{sT0}, s{sT0}, 7")
        A(f"s_mul_i32 s{sT0}, s{sT0}, 3")
        A(f"s_sub_u32 s{sCW}, s{sCW}, s{sT0}")
        A(f"s_mul_i32 s{sCW}, s{sCW}, {3 * 128}")
    A(f"s_mov_b32 s{sCX}, s{sCW}")
    t0, t1, t2, g4, i16, r4, cq = 9, 10, 11, 12, 13, 14, 15
    A(f"v_lshrrev_b32 v{g4}, 4, v0")
    A(f"v_and_b32 v{i16}, 15, v0")
    A(f"v_lshrrev_b32 v{t0}, 5, v0")
    A(f"v_lshlrev_b32 v{vWD}, 18, v{t0}")
    A(f"v_and_b32 v{t0}, 1, v{g4}")
    A(f"v_lshl_add_u32 v{vWD}, v{t0}, 15, v{vWD}")
    A(f"v_lshl_add_u32 v{vWD}, v{i16}, 4, v{vWD}")
    A(f"v_lshrrev_b32 v{t0}, 3, v0")
    A(f"v_mul_u32_u24 v{vXD}, 1152, v{t0}")
    A(f"v_and_b32 v{t0}, 7, v0")
    A(f"v_xor_b32 v{t0}, v{t0}, v{g4}")
    A(f"v_lshl_add_u32 v{vXD}, v{t0}, 4, v{vXD}")
    A(f"v_xor_b32 v{vXD + 1}, 64, v{vXD}")
    A(f"s_lshl_b32 s{sT0}, s{sP}, 6")
    A(f"v_xor_b32 v{vXDE}, s{sT0}, v{vXD}")
    A(f"s_lshl_b32 s{sXD}, s{sW}, 13")
    A(f"s_add_u32 s{sXD}, s{sXD}, {XOFF}")
    A(f"s_mul_i32 s{sXS}, s{sW}, {8 * 9216}")
    A(f"s_lshl_b32 s{sXED}, s{sW}, 10")
    A(f"s_add_u32 s{sXED}, s{sXED}, {XEOFF}")
    A(f"s_mul_i32 s{sXES}, s{sW}, 9216")
    A(f"s_add_u32 s{sXES}, s{sXES}, {32 * 9216}")
    A(f"s_lshr_b32 s{sT0}, s{sW}, 1")
    A(f"s_mul_i32 s{sWD}, s{sT0}, {WG1}")
    A(f"s_mul_i32 s{sT0}, s{sP}, {WG0}")
    A(f"s_add_u32 s{sWD}, s{sWD}, s{sT0}")
    A(f"s_lshl_b32 s{sWS}, s{sW}, 16")
    A(f"s_mul_i32 s{sT1}, s{sB}, 331776")
    A(f"s_lshl_b32 s{sT0}, s{sH}, 8")
    A(f"s_mov_b32 s{SRD_X + 2}, 331776")
    A(f"s_mov_b32 s{SRD_X + 3}, 0x20000")
    A(f"s_sub_u32 s{SRD_W + 2}, {576 * 8192}, s{sT0}")
    A(f"s_mov_b32 s{SRD_W + 3}, 0x20000")
    if OPT["fine"]:
        stamp(A)
    A("s_waitcnt lgkmcnt(0)")
    if OPT["fine"]:
        stamp(A)
    A(f"s_add_u32 s{SRD_W}, s38, s{sT0}")
    A(f"s_addc_u32 s{SRD_W + 1}, s39, 0")
    A(f"s_add_u32 s{SRD_X}, s32, s{sT1}")
    A(f"s_addc_u32 s{SRD_X + 1}, s33, 0")
    S = Asm()
    E = A if OPT["tlb"] == 3 else S
    E(f"s_lshl_b32 s{sT1}, s{sB}, 5")
    E(f"s_add_u32 s{sT1}, s{sT1}, s{sH}")
    E(f"s_lshl_b32 s{sT1}, s{sT1}, 19")
    if OPT["tlb"] == 3:
        for r_, p_ in ((SRD_K, 34), (SRD_V, 36)):
            A(f"s_add_u32 s{r_}, s{p_}, s{sT1}")
            A(f"s_addc_u32 s{r_ + 1}, s{p_ + 1}, 0")
            A(f"s_load_dword s{sRDY}, s[{r_}:{r_ + 1}], 0")
    S(f"s_add_u32 s{SRD_K}, s34, s{sT1} | s_addc_u32 s{SRD_K + 1}, s35, 0")
    S(f"s_mov_b32 s{SRD_K + 2}, 524288")
    S(f"s_mov_b32 s{SRD_K + 3}, 0x20000")
    S(f"s_add_u32 s{SRD_V}, s36, s{sT1} | s_addc_u32 s{SRD_V + 1}, s37, 0")
    if OPT["tlb"] == 2:
        S(f"s_load_dword s{sRDY}, s[{SRD_K}:{SRD_K + 1}], 0")
        S(f"s_load_dword s{sRDY}, s[{SRD_V}:{SRD_V + 1}], 0")
    S(f"s_mov_b32 s{SRD_V + 2}, 524288")
    S(f"s_mov_b32 s{SRD_V + 3}, 0x20000")
    S(f"s_add_u32 s{SRD_O}, s40, {OPT['wsoff'] << 20} | s_addc_u32 s{SRD_O + 1}, s41, 0")
    S(f"s_mov_b32 s{SRD_O + 2}, {(DIAG_OFF + (2 << 20)) if OPT['diag'] else WS_O_BYTES}")
    S(f"s_mov_b32 s{SRD_O + 3}, 0x20000")
    S(f"s_mov_b32 s{SRD_P}, s30")
    S(f"s_mov_b32 s{SRD_P + 1}, s31")
    S(f"s_mov_b32 s{SRD_P + 2}, {4096 * 1152}")
    S(f"s_mov_b32 s{SRD_P + 3}, 0x20000")
    S(f"v_bfe_u32 v{r4}, v0, 2, 2")
    S(f"v_and_b32 v{cq}, 3, v0")
    XA, XE, WL, WH = vQA, vQA + 2, vQA + 4, vQA + 5
    S(f"v_lshlrev_b32 v{XE}, 7, v{i16}")
    S(f"v_lshrrev_b32 v{t0}, 1, v{i16}")
    S(f"v_xor_b32 v{t0}, v{t0}, v{g4}")
    S(f"v_lshl_add_u32 v{XE}, v{t0}, 4, v{XE}")
    S(f"v_add_u32 v{XA}, s{sXD}, v{XE}")
    S(f"s_lshr_b32 s{sT1}, s{sW}, 1")
    S(f"s_lshl_b32 s{sT1}, s{sT1}, 11")
    S(f"s_add_u32 s{sT1}, s{sT1}, {XEOFF}")
    S(f"v_add_u32 v{XE}, s{sT1}, v{XE}")
    S(f"v_xor_b32 v{XA + 1}, 64, v{XA}")
    S(f"v_xor_b32 v{XE + 1}, 64, v{XE}")
    S(f"v_lshrrev_b32 v{t0}, 1, v{g4}")
    S(f"v_mul_u32_u24 v{WL}, {WG1}, v{t0}")
    S(f"v_and_b32 v{t0}, 1, v{g4}")
    S(f"v_mul_u32_u24 v{t0}, {WG0}, v{t0}")
    S(f"v_add_u32 v{WL}, v{WL}, v{t0}")
    S(f"v_mul_u32_u24 v{t0}, {XB}, v{r4}")
    S(f"v_add_u32 v{WL}, v{WL}, v{t0}")
    S(f"v_lshl_add_u32 v{WL}, v{cq}, 4, v{WL}")
    S(f"s_lshl_b32 s{sT1}, s{sP}, 7")
    S(f"s_xor_b32 s{sOO}, s{sT1}, 128")
    S(f"v_add_u32 v{WH}, s{sOO}, v{WL}")
    S(f"v_add_u32 v{WL}, s{sT1}, v{WL}")
    for i in range(6):
        S(f"v_add_u32 v{vQA + 6 + i}, {2 * STSZ}, v{vQA + i}")
    S(f"s_lshl_b32 s{sT1}, s{sW}, 12")
    S(f"v_lshl_add_u32 v{vV4}, v0, 4, s{sT1}")
    S(f"s_mul_i32 s{sWOF}, s{sW}, {4 * BLK}")

    def dma_regs(Z):
        for i in range(4):
            Z(f"v_add_u32 v{vD + i}, {i * 1024}, v{vV4}")
    dma_regs(S)
    S(f"v_mul_u32_u24 v{t0}, {BLK}, v{i16}")
    S(f"v_lshl_add_u32 v{t0}, v{g4}, 4, v{t0}")
    S(f"v_lshl_add_u32 v{t1}, v{g4}, 2, v{r4}")
    S(f"v_mul_u32_u24 v{t1}, {BLK}, v{t1}")
    S(f"v_lshl_add_u32 v{t1}, v{cq}, 3, v{t1}")
    for j in range(2):
        S(f"s_xor_b32 s{sT1}, s{sP}, {j}")
        S(f"s_lshl_b32 s{sT1}, s{sT1}, 9")
        S(f"v_add_u32 v{vVB + j}, s{sT1}, v{t1}")
        S(f"s_lshl_b32 s{sOO}, s{sP}, 7")
        S(f"s_add_u32 s{sT1}, s{sT1}, s{sOO}")
        S(f"v_add_u32 v{vKB + 2 * j}, s{sT1}, v{t0}")
        S(f"s_xor_b32 s{sT1}, s{sT1}, 128")
        S(f"v_add_u32 v{vKB + 2 * j + 1}, s{sT1}, v{t0}")
    if OPT["rot"]:
        S(f"s_mul_i32 s{sG0}, s2, {OPT['rot']}")
        S(f"s_lshr_b32 s{sT1}, s2, 4")
        S(f"s_add_u32 s{sG0}, s{sG0}, s{sT1}")
        S(f"s_and_b32 s{sG0}, s{sG0}, 15")
        S(f"s_mul_i32 s{sG0}, s{sG0}, {16384 * 7 // 4 // 16384 * 16384}")
    S(f"s_lshl_b32 s{sWP}, s2, 2")
    S(f"s_add_u32 s{sWP}, s{sWP}, s{sW}")
    S(f"s_mul_i32 s{sWP}, s{sWP}, 4608")
    S(f"v_min_u32 v7, 1, v0")
    S(f"v_lshlrev_b32 v7, 7, v7")
    S(f"s_lshl_b32 s{sDV}, s{sP}, 10")
    S(f"s_sub_u32 s{sDV}, 512, s{sDV}")
    S(f"v_min_u32 v{vCW}, 1, v0")
    S(f"s_lshr_b32 s{sT1}, s2, 3")
    S(f"s_lshl_b32 s{sT1}, s{sT1}, 2")
    S(f"s_add_u32 s{sT1}, s{sT1}, s{sW}")
    S(f"s_lshl_b32 s{sT1}, s{sT1}, 8")
    S(f"v_lshl_add_u32 v{vCW}, v{vCW}, 7, s{sT1}")
    S(f"v_min_u32 v{vCW}, L1_redo-L1_tail, v{vCW}")
    S(f"v_add_u32 v{vCW}, L1_tail-L1_pc, v{vCW}")
    S(f"v_mov_b32 v{t0}, 0x3f803f80")
    S(f"v_cmp_eq_u32 vcc, 0, v{cq}")
    S(f"s_mov_b32 s{sSC}, {QSCALE:#x}")
    S(f"s_mov_b32 s{sREDO}, 0")
    S(f"v_cndmask_b32 v{t0}, 0, v{t0}, vcc")
    for i in range(4):
        S(f"v_accvgpr_write_b32 a{ONES + i}, v{t0}")
    S(f"s_add_u32 s{sT1}, s{sXD}, {2 * STSZ + 6144}")
    S(f"v_lshl_add_u32 v{t0}, v0, 4, s{sT1}")
    S(f"s_xor_b32 s{sT1}, s{sW}, 1")
    S(f"s_lshl_b32 s{sT1}, s{sT1}, 13")
    S(f"s_add_u32 s{sT1}, s{sT1}, {XOFF + 2 * STSZ + 6144}")
    S(f"v_lshl_add_u32 v{t1}, v0, 4, s{sT1}")

    def loop_scalars(Z):
        if OPT["rot"]:
            Z(f"s_add_u32 s{sKVS}, s{sG0}, {DD * 16384}")
        else:
            Z(f"s_mov_b32 s{sKVS}, {DD * 16384}")
        Z(f"s_add_u32 s{sKD}, s{sWOF}, {(NS - 1) * HS}")
        Z(f"s_mov_b32 s{sVD}, s{sWOF}")
        Z(f"s_mov_b32 s{sKN}, {2 * HS}")
        Z(f"s_mov_b32 s{sVN}, {HS}")
        Z(f"s_mov_b32 s{sCNT}, 14")
        Z(f"s_mov_b32 s{sSIDE}, 0")
        if Z is not S or not OPT["diag"]:
            Z(f"s_mov_b32 s{sINC}, 16384")
        if OPT["diag"]:
            Z("s_mov_b32 s41, 31")

    def loop_addr():
        return [f"v_add_u32 v{vK}, {2 * HS}, v{vKB}", f"v_add_u32 v{vK + 1}, {2 * HS}, v{vKB + 1}",
                f"v_mov_b32 v{vK + 2}, v{vKB + 2}", f"v_mov_b32 v{vK + 3}, v{vKB + 3}"]

    loop_scalars(S)
    for i in range(180):
        S(f"v_accvgpr_write_b32 a{i}, 0")
    setup = [x.strip() for x in S.l]
    for i_, p in enumerate(wg_pieces(0) + x_pieces(0)):
        A.ext(p)
        if OPT["fine"] and i_ in (0, 8):
            stamp(A)
    if OPT["fine"]:
        stamp(A)
        A("s_waitcnt vmcnt(12)")
        stamp(A)
        A("s_waitcnt vmcnt(0)")
        stamp(A)
        OPT["diag"] = 2
    npf = 0

    def tlb_touch():
        A(f"v_lshlrev_b32 v{t0}, 18, v0")
        A(f"s_cmp_eq_u32 s{sW}, 1")
        A("s_cbranch_scc1 L1_t1")
        A(f"s_cmp_eq_u32 s{sW}, 2")
        A("s_cbranch_scc1 L1_t2")
        A(f"s_cmp_eq_u32 s{sW}, 3")
        A("s_cbranch_scc1 L1_t3")
        A(f"s_lshl_b32 s{sT1}, s{sB}, 5")
        A(f"s_add_u32 s{sT1}, s{sT1}, s{sH}")
        A(f"s_lshl_b32 s{sT1}, s{sT1}, 19")
        A(f"v_min_u32 v{t0}, {1 << 18}, v{t0}")
        A(f"v_add_u32 v{t0}, s{sT1}, v{t0}")
        A(f"global_load_dword v{vDUM}, v{t0}, s[34:35] nt")
        A(f"global_load_dword v{vDUM}, v{t0}, s[36:37] nt")
        A("s_branch L1_td")
        A.label("L1_t1")
        A(f"v_min_u32 v{t0}, {17 << 18}, v{t0}")
        A(f"global_load_dword v{vDUM}, v{t0}, s[38:39]")
        A(f"global_load_dword v{vDUM}, v{t0}, s[30:31]")
        A("s_branch L1_td")
        A.label("L1_t2")
        A(f"v_lshlrev_b32 v{t1}, 20, v0")
        A(f"v_min_u32 v{t1}, {17 << 20}, v{t1}")
        A(f"v_add_u32 v{t1}, {OPT['wsoff'] << 20}, v{t1}")
        A(f"global_load_dword v{vDUM}, v{t1}, s[40:41] sc1 nt")
        A(f"v_min_u32 v{t0}, {10 << 18}, v{t0}")
        A(f"global_load_dword v{vDUM}, v{t0}, s[20:21] nt")
        A("s_branch L1_td")
        A.label("L1_t3")
        A(f"v_mov_b32 v{t1}, 0")
        A(f"global_load_dword v{vDUM}, v{t1}, s[22:23] sc1")
        A(f"v_min_u32 v{t0}, {10 << 18}, v{t0}")
        A(f"global_load_dword v{vDUM}, v{t0}, s[32:33]")
        A.label("L1_td")

    if OPT["tlb"] == 1:
        tlb_touch()
        npf = 2
    if OPT["pf"]:
        na = OPT["pfa"]
        A(f"v_min_u32 v{t0}, {9 * na - 1}, v0")
        A(f"v_mul_u32_u24 v{t1}, 57, v{t0}")
        A(f"v_lshrrev_b32 v{t1}, 9, v{t1}")
        A(f"v_mul_u32_u24 v{t2}, 9, v{t1}")
        A(f"v_sub_u32 v{t0}, v{t0}, v{t2}")
        A(f"v_mul_u32_u24 v248, 1152, v{t0}")
        A(f"s_and_b32 s{sT1}, s{sH}, 7")
        A(f"s_lshl_b32 s{sT1}, s{sT1}, 2")
        A(f"s_add_u32 s{sT1}, s{sT1}, s{sW}")
        A(f"s_mul_i32 s{sT1}, s{sT1}, {9 * 1152}")
        A(f"v_add_u32 v248, s{sT1}, v248")
        A(f"v_lshl_add_u32 v246, v{t1}, 7, v248")
        A(f"buffer_load_dword v{vDUM}, v246, {srd(SRD_X)}, 0 offen offset:128")
        A(f"v_bfe_u32 v{t0}, v0, 1, 2")
        A(f"v_lshlrev_b32 v249, 13, v{t0}")
        A(f"v_and_b32 v{t0}, 1, v0")
        A(f"v_lshl_add_u32 v249, v{t0}, 7, v249")
        A(f"s_and_b32 s{sT1}, s{sB}, 3")
        A(f"s_lshl_b32 s{sT1}, s{sT1}, 2")
        A(f"s_add_u32 s{sT1}, s{sT1}, s{sW}")
        A(f"s_lshl_b32 s{sT1}, s{sT1}, 15")
        A(f"v_add_u32 v249, s{sT1}, v249")
        A(f"v_lshrrev_b32 v{t0}, 3, v0")
        A(f"v_min_u32 v{t0}, {na - 1}, v{t0}")
        A(f"v_lshl_add_u32 v247, v{t0}, 19, v249")
        A(f"s_mov_b32 s{sT1}, {1 << 19}")
        A(f"buffer_load_dword v{vDUM}, v247, {srd(SRD_W)}, s{sT1} offen")
        npf = 2
    first = []
    for c in range(1, OPT["up"]):
        first += wg_pieces(c) + x_pieces(c)
    per = len(setup) // (len(first) + 1) + 1
    stamp(A)
    for p in [[]] + first:
        A.ext(p)
        for _ in range(per):
            if setup:
                for y in setup.pop(0).split(" | "):
                    A(y)
    assert not setup
    stamp(A)
    A(f"s_waitcnt vmcnt({len(first) + npf})")
    A("s_barrier")
    stamp(A)
    P = lambda n: [item_piece(n, i) for i in range(4)]
    kw = [f"global_load_dword v{vDUM}, v{vCW}, s[{sPC}:{sPC + 1}]"] if OPT["cpf"] else []
    kw = [f"buffer_load_dword v{vDUM}, v7, {srd(SRD_P)}, s{sWP} offen"] if OPT["wopf"] == 2 else []
    if OPT["stg"] == 0:
        extras = {4: P(0), 5: P(1), 6: P(2)}
        al = P(0) + P(1) + P(2)
        if OPT["kvs"] == 1:
            extras = {4: al[0:3], 5: al[3:6], 6: al[6:8], 7: al[8:12]}
        if OPT["kvs"] >= 4:
            extras = {4: al[:OPT["kvs"]]}
            if OPT["kvs"] < 12:
                extras[7] = al[OPT["kvs"]:]
    else:
        extras = {7: P(0) + P(1) + P(2)}
    if DD == 4:
        extras[8] = P(3) + P(4) + P(5)
        late = P(6) + P(7)
        late[0] = kw + late[0]
        late[7] = late[7] + kw
    elif DD == 3:
        extras[8] = P(3)
        late = P(4) + P(5)
        late[7] = late[7] + kw
    else:
        extras[8] = P(3)
        late = [[]] * 8
    if OPT["pf"]:
        for c in range(OPT["pfa"] + 1, 9):
            at = max(0, c - OPT["pf"])
            extras[at] = extras.get(at, []) + [
                [f"buffer_load_dword v{vDUM}, v248, {srd(SRD_X)}, 0 offen offset:{c * 128}"],
                [f"s_mov_b32 s{sT0}, {c << 19}", f"buffer_load_dword v{vDUM}, v249, {srd(SRD_W)}, s{sT0} offen"]]
    if OPT["wopf"] == 1:
        extras[7] = extras.get(7, []) + [[f"v_lshlrev_b32 v253, 7, v0", f"v_min_u32 v253, {35 * 128}, v253",
                      f"buffer_load_dword v{vDUM}, v253, {srd(SRD_P)}, s{sWP} offen"]]

    def conv(t, kk):
        src = ACC + 32 * t + 8 * kk
        dst = QV + 16 * t + 4 * kk
        o = []
        for i in range(4):
            o += [f"v_mul_f32 v{src + 2 * i}, s{sSC}, v{src + 2 * i}", f"v_mul_f32 v{src + 2 * i + 1}, s{sSC}, v{src + 2 * i + 1}"]
        for i in range(4):
            o.append(f"v_cvt_pk_bf16_f32 v{dst + i}, v{src + 2 * i}, v{src + 2 * i + 1}")
        return o

    KF = [184, 224]
    k0reads = [kread(ar(KF[kb] + 4 * kk, 4), vKB, kb, kk) for kb in range(2) for kk in range(4)]
    ti = []

    def spread(lst, g0, g1):
        for i, x in enumerate(lst):
            ti.append((g0 + (i * (g1 - g0)) // len(lst), x))

    spread(conv(4, 0) + conv(0, 0) + conv(1, 0) + conv(2, 0), 13, 22)
    spread(conv(4, 1) + [f"ds_write_b128 v{t0}, {vr(QV + 64, 4)}", f"ds_write_b128 v{t0}, {vr(QV + 68, 4)} offset:1024"]
           + conv(3, 0) + conv(0, 1), 22, 29)
    ti.append((29, "BAR"))
    spread([f"ds_read_b128 {vr(QV + 72, 4)}, v{t1}", f"ds_read_b128 {vr(QV + 76, 4)}, v{t1} offset:1024"] + k0reads[:4]
           + conv(1, 1) + k0reads[4:] + conv(2, 1) + conv(3, 1), 29, 36)
    nb = [i for i, x in enumerate(ti) if x[1] == "BAR"][0]
    ti[nb:nb + 1] = [(29, "VMW"), (29, "s_barrier")]
    qp, issued = build_qproj(extras, OPT["up"], ti, {6: [f"s_load_dwordx4 s[{sOUTP}:{sOUTP + 3}], s[0:1], 40"], 8: p3_setup()})
    vms = [x for x in qp if x.startswith(("buffer_load", "global_load"))]
    lastv0 = max(i for i, x in enumerate(vms) if x == P(1)[3][-1] and i == min(k for k, y in enumerate(vms) if y == x))
    ny = len(vms) - 1 - lastv0
    qp = [(f"s_waitcnt vmcnt({ny}) lgkmcnt(0)" if x == "VMW" else x) for x in qp]
    A.ext(tidy(qp) if OPT['tidy'] else qp)
    stamp(A)
    body, pro, tail, vreads = build_loop()

    def qk0(kb, kk, useneg):
        o = []
        for t in range(5):
            Sx = Sreg(t, 0) + 4 * kb
            C = (vr(NEG + 4 * t, 4) if useneg else "0") if kk == 0 else vr(Sx, 4)
            o.append(f"{MF} {vr(Sx, 4)}, {ar(KF[kb] + 4 * kk, 4)}, {vr(QV + 16 * t + 4 * kk, 4)}, {C}")
        return o

    def mix(mf, fill):
        n = len(mf)
        o = []
        for i, m in enumerate(mf):
            o.append(m)
            o += fill[(i * len(fill)) // n:((i + 1) * len(fill)) // n]
        A.ext(tidy(o) if OPT['tidy'] else o)

    flat = lambda ps: [x for p in ps for x in p]
    pro_rd = [x for x in pro if is_ds(x)]
    pro_sm = [x for x in pro if not is_ds(x)]
    A.ext(conv(0, 2) + flat(late[0:2]) + conv(0, 3))
    A("s_waitcnt lgkmcnt(0)")
    mix(qk0(0, 0, False) + qk0(0, 1, False), conv(1, 2) + conv(2, 2) + conv(3, 2) + flat(late[2:4]))
    mix(qk0(0, 2, False), conv(1, 3) + conv(2, 3) + conv(3, 3))
    A("s_nop 0")
    A.ext(qk0(0, 3, False))
    A.ext(loop_addr())
    A.ext(pro_rd)
    A.ext(flat(late[4:6]))
    for t in range(5):
        Sx = Sreg(t, 0)
        A(f"v_max3_f32 v{vM + t}, v{Sx}, v{Sx + 1}, v{Sx + 2}")
    for t in range(5):
        A(f"v_max_f32 v{vM + t}, v{vM + t}, v{Sreg(t, 0) + 3}")

    def xlane5(Z, op, base, tmp):
        for sw in ("v_permlane32_swap_b32", "v_permlane16_swap_b32"):
            for t in range(5):
                Z(f"v_mov_b32 v{tmp + t}, v{base + t}")
            for t in range(5):
                Z(f"{sw} v{base + t}, v{tmp + t}")
            for t in range(5):
                Z(f"{op} v{base + t}, v{base + t}, v{tmp + t}")

    xlane5(A, "v_max_f32", vM, vM + 8)
    for t in range(5):
        for i in range(4):
            A(f"v_sub_f32 v{NEG + 4 * t + i}, 0, v{vM + t}")
    subs = [f"v_sub_f32 v{Sreg(t, 0) + i}, v{Sreg(t, 0) + i}, v{vM + t}" for t in range(5) for i in range(4)]
    kb0regs = {Sreg(t, 0) + i for t in range(5) for i in range(4)}

    def srcs(x):
        return [int(z.strip()[1:]) for z in x.split(None, 1)[1].split(",")[1:]]
    sm0 = [x for x in pro_sm if all(r in kb0regs for r in srcs(x))]
    sm1 = [x for x in pro_sm if x not in sm0]

    def safe(lst):
        lst = list(lst)
        for i in range(1, len(lst) - 1):
            if lst[i].startswith("v_cvt") and lst[i - 1].startswith("v_exp") and lst[i + 1].startswith("v_exp"):
                ia, ib = hazard.I(lst[i]), hazard.I(lst[i + 1])
                if hazard.I(lst[i - 1]).w & ia.r and not (ia.w & (ib.r | ib.w)) and not (ib.w & ia.r):
                    lst[i], lst[i + 1] = lst[i + 1], lst[i]
        o, prev = [], ""
        for x in lst:
            if prev.startswith("v_exp") and x.startswith("v_cvt") and hazard.I(prev).w & hazard.I(x).r:
                o.append("s_nop 0")
            o.append(x)
            prev = x
        return o
    A.ext(flat(late[6:8]))
    mix(flat([qk0(1, kk, True) for kk in range(4)]), subs + safe(sm0))
    A("s_nop 3")
    A.label("L1_presm")
    A.ext(safe(sm1))
    A("s_waitcnt lgkmcnt(0)")
    stamp(A)
    if OPT["dspin"]:
        A("s_memrealtime s[64:65]")
    A.raw(".p2align 6")
    A.label("L1_loop")
    if OPT["diag"]:
        A.ext(diag_top())
    A.ext(body)
    A("s_branch L1_loop")
    errs = hazard.check(body + body, "loop")
    side_block(A)
    A.label("L1_tail")
    T0 = len(A.l)
    if OPT["dspin"]:
        A("s_memrealtime s[66:67]")
    stamp(A)
    ofl = FLAGS[OPT["ostflag"]]
    P0, RC, Lr = B0[1], 148, 48

    def Pt(j, t):
        return vr((P0 if j == 0 else B1) + 8 * t, 4)

    def ones(t):
        return [f"{MF} {ar(LA + 4 * t, 4)}, {ar(ONES, 4)}, {Pt(j, t)}, {ar(LA + 4 * t, 4)}" for j in range(2 if t < 4 else 1)]

    def pv(t):
        return [f"{MF} {ar(OA + 32 * t + 4 * dt, 4)}, {ar(RING + 8 * dt + 4 * j, 4)}, {Pt(j, t)}, {ar(OA + 32 * t + 4 * dt, 4)}"
                for dt in range(8) for j in range(2 if t < 4 else 1)]

    def norm_store(t, tmp, pk):
        o = []
        if t:
            o.append(f"s_add_u32 s{sT0}, s{sT0}, {QP}")
        for s in range(4):
            b = tmp + 8 * s
            for e in range(8):
                o.append(f"v_accvgpr_read_b32 v{b + e}, a{OA + 32 * t + 8 * s + e}")
            if pk:
                for e in range(4):
                    o.append(f"v_pk_mul_f32 {vr(b + 2 * e, 2)}, {vr(b + 2 * e, 2)}, {vr(RC + 2 * t, 2)} op_sel_hi:[1,0]")
            else:
                for e in range(8):
                    o.append(f"v_mul_f32 v{b + e}, v{RC + 2 * t}, v{b + e}")
            for e in range(4):
                o.append(f"v_cvt_pk_bf16_f32 v{b + e}, v{b + 2 * e}, v{b + 2 * e + 1}")
            of = f" offset:{s * 1024}" if s else ""
            o.append(f"buffer_store_dwordx4 {vr(b, 4)}, v{t2}, {srd(SRD_O)}, s{sT0} offen{of}{ofl}")
        return o

    smt = {t: safe([x for tt, x in tail if tt == t]) for t in range(5)}
    assert not smt[4]
    wr = [f"ds_write_b128 v{t0}, {ar(OA + 128 + 4 * i, 4)} offset:{(i // 4) * HS + (i % 4) * 1024}" for i in range(8)]
    misc = [f"s_mul_i32 s{sOO}, s{sB}, 18", f"s_lshl_b32 s{sT0}, s{sW}, 2", f"s_add_u32 s{sT0}, s{sT0}, s{sOO}",
            f"s_mul_i32 s{sT0}, s{sT0}, {QP}", f"s_lshr_b32 s{sKN}, s{sH}, 3", f"s_mul_i32 s{sKN}, s{sKN}, {OPT['gpad']}",
            f"s_lshl_b32 s{sVN}, s{sH}, 12", f"s_add_u32 s{sKN}, s{sKN}, s{sVN}", f"s_add_u32 s{sT0}, s{sT0}, s{sKN}",
            f"v_lshlrev_b32 v{t2}, 4, v0", f"s_add_u32 s{sT1}, s{sWOF}, {TS * HS}", f"v_lshl_add_u32 v{t0}, v0, 4, s{sT1}"]
    lrd = lambda t: [f"v_accvgpr_read_b32 v{Lr + t}, a{LA + 4 * t}", "s_nop 0", f"v_rcp_f32 v{RC + 2 * t}, v{Lr + t}"]
    A.ext(vreads[:12])
    A.ext(smt[0])
    A.ext(misc[:2])
    mix(ones(0), misc[2:8])
    A("s_waitcnt lgkmcnt(4)")
    mix(pv(0)[:4], vreads[12:20])
    A("s_waitcnt lgkmcnt(4)")
    mix(pv(0)[4:8], vreads[20:28])
    A.ext(vreads[28:] + misc[8:] + lrd(0))
    A("s_waitcnt lgkmcnt(8)")
    n0 = norm_store(0, 16, False)
    mix(pv(0)[8:12], n0[:12])
    A("s_waitcnt lgkmcnt(0)")
    mix(pv(0)[12:], n0[12:21])
    mix(ones(4) + pv(4), smt[1] + n0[21:42])
    mix(ones(1) + pv(1), smt[2] + n0[42:63] + smt[3] + wr[:4])
    n1 = norm_store(1, 16, False)
    mix(ones(2) + ones(3) + pv(2), n0[63:] + wr[4:] + lrd(1) + n1[:22])
    st = [f"v_accvgpr_read_b32 v{Lr + t}, a{LA + 4 * t}" for t in range(2, 5)]
    st += [f"s_lshl_b32 s{sT1}, s{sW}, 10", f"s_add_u32 s{sT1}, s{sT1}, {STATS}", f"v_lshl_add_u32 v{t1}, v0, 4, s{sT1}",
           f"v_add_f32 v53, v{Lr}, v{Lr + 1}", f"v_add_f32 v54, v{Lr + 2}, v{Lr + 3}", f"v_add_f32 v53, v53, v{Lr + 4}",
           f"v_add_f32 v53, v53, v54", f"v_mov_b32 v54, {f32bits(2.0 ** OPT['thr']):#x}", f"v_cmp_nlt_f32 vcc, v53, v54",
           f"v_mov_b32 v156, v{Lr + 4}", f"v_mov_b32 v157, v{NEG + 16}", f"v_mov_b32 v159, 0", f"v_cndmask_b32 v158, 0, 1, vcc",
           f"ds_write_b128 v{t1}, {vr(156, 4)}"]
    st += [f"v_rcp_f32 v{RC + 2 * t}, v{Lr + t}" for t in range(2, 4)]
    mix(pv(3), st + n1[22:43])
    A("s_waitcnt lgkmcnt(0)")
    A("s_barrier")
    A(f"s_and_b32 s{sT1}, s{sW}, 2")
    A(f"s_mul_i32 s{sT1}, s{sT1}, {4 * BLK}")
    A(f"s_mul_i32 s{sT2}, s{sP}, {HS}")
    A(f"s_add_u32 s{sT1}, s{sT1}, s{sT2}")
    A(f"s_add_u32 s{sT1}, s{sT1}, {TS * HS}")
    A(f"v_lshl_add_u32 v{t0}, v0, 4, s{sT1}")
    A(f"s_and_b32 s{sT1}, s{sW}, 2")
    A(f"s_lshl_b32 s{sT1}, s{sT1}, 10")
    A(f"v_lshl_add_u32 v{t1}, v0, 4, s{sT1}")
    A(f"v_xor_b32 v1, 2048, v{t1}")
    A(f"v_add_u32 v{t1}, {STATS}, v{t1}")
    A(f"v_add_u32 v1, {STATS}, v1")
    A(f"ds_read_b128 {vr(128, 4)}, v{t1}")
    A(f"ds_read_b128 {vr(132, 4)}, v{t1} offset:1024")
    A(f"ds_read_b128 {vr(136, 4)}, v1")
    A(f"ds_read_b128 {vr(140, 4)}, v1 offset:1024")
    for w in range(2):
        for q in range(4):
            A(f"ds_read_b128 {vr(96 + 16 * w + 4 * q, 4)}, v{t0} offset:{w * 4 * BLK + q * 1024}")
    A.ext(norm_store(1, 16, True)[35:])
    A("s_waitcnt lgkmcnt(0)")
    A("v_or3_b32 v144, v130, v134, v138")
    A("v_or_b32 v144, v144, v142")
    A("v_cmp_ne_u32 vcc, 0, v144")
    A("v_min_f32 v145, v129, v133")
    A("v_sub_f32 v129, v145, v129")
    A("v_sub_f32 v133, v145, v133")
    A("v_exp_f32 v129, v129")
    A("v_exp_f32 v133, v133")
    A(f"s_cmp_lg_u64 vcc, 0")
    A(f"s_cselect_b32 s{sT1}, 1, 0")
    A(f"s_cmp_gt_u32 s{sT1}, s{sREDO}")
    A("s_cbranch_scc1 L1_redo")
    A("v_mul_f32 v145, v128, v129")
    A("v_fmac_f32 v145, v132, v133")
    A("v_rcp_f32 v145, v145")
    A(f"s_lshr_b32 s{sT1}, s{sW}, 1")
    A(f"s_add_u32 s{sT1}, s{sT1}, s{sOO}")
    A(f"s_add_u32 s{sT1}, s{sT1}, 16")
    A(f"s_mul_i32 s{sT1}, s{sT1}, {QP}")
    A(f"s_add_u32 s{sT1}, s{sT1}, s{sKN}")
    A(f"s_lshl_b32 s{sT2}, s{sP}, 11")
    A(f"s_add_u32 s{sT1}, s{sT1}, s{sT2}")
    A("v_mul_f32 v129, v145, v129")
    A("v_mul_f32 v133, v145, v133")
    for e in range(16):
        A(f"v_mul_f32 v{96 + e}, v129, v{96 + e}")
    for e in range(16):
        A(f"v_fmac_f32 v{96 + e}, v133, v{112 + e}")
    for e in range(8):
        A(f"v_cvt_pk_bf16_f32 v{80 + e}, v{96 + 2 * e}, v{96 + 2 * e + 1}")
    for q in range(2):
        of = " offset:1024" if q else ""
        A(f"buffer_store_dwordx4 {vr(80 + 4 * q, 4)}, v{t2}, {srd(SRD_O)}, s{sT1} offen{of}{ofl}")
    rest = norm_store(2, 48, True) + norm_store(3, 16, True)
    if OPT["fuse"]:
        p3(A, rest)
    else:
        A.ext(rest)
    gx = [i for i, x in enumerate(body) if "L1_tail" in x][0]
    errs += hazard.check(body[:gx + 1] + A.l[T0:T0 + 60], "exit")
    if OPT["diag"]:
        if not OPT["fuse"]:
            stamp(A)
        A("s_waitcnt vmcnt(0)")
        stamp(A)
        A("s_memrealtime s[94:95]")
        A("s_waitcnt lgkmcnt(0)")
        A("v_writelane_b32 v250, s92, 62")
        A("v_writelane_b32 v250, s94, 63")
        for i in range(stamp_n[0]):
            A(f"v_writelane_b32 v250, s{sST + 2 * i}, {50 + i}")
        A("v_writelane_b32 v250, s90, 32")
        A("v_writelane_b32 v251, s96, 32")
        A(f"s_lshl_b32 s{sT0}, s2, 2")
        A(f"s_add_u32 s{sT0}, s{sT0}, s{sW}")
        A(f"s_lshl_b32 s{sT0}, s{sT0}, 8")
        A(f"s_add_u32 s{sT0}, s{sT0}, {DIAG_OFF}")
        A(f"v_lshlrev_b32 v{t0}, 2, v0")
        A(f"buffer_store_dword v250, v{t0}, {srd(SRD_O)}, s{sT0} offen")
        A(f"s_add_u32 s{sT0}, s{sT0}, {1 << 19}")
        A(f"buffer_store_dword v251, v{t0}, {srd(SRD_O)}, s{sT0} offen")
        if OPT["fuse"]:
            for i in range(3):
                A(f"v_writelane_b32 v251, s{78 + 2 * i}, {i}")
            A("v_writelane_b32 v251, s94, 3")
            A(f"s_add_u32 s{sT0}, s{sT0}, {1 << 19}")
            A(f"buffer_store_dword v251, v{t0}, {srd(SRD_O)}, s{sT0} offen")
            if OPT["dbg"]:
                for ln, src in ((4, 30), (5, 22), (6, 14), (7, 32)):
                    A(f"v_readlane_b32 s{sT1}, v251, {src}")
                    A("s_nop 3")
                    A(f"v_writelane_b32 v251, s{sT1}, {ln}")
                A("v_subrev_u32 v251, s92, v251")
                A(f"v_lshlrev_b32 v{t0}, 3, v0")
                A("s_cmp_ge_u32 s2, 216")
                A("s_cbranch_scc1 L1_end")
                A("s_mov_b64 exec, 0xff")
                A(f"buffer_atomic_umax v251, v{t0}, {srd(SRD_W)}, 0 offen offset:4")
    if OPT["dspin"]:
        A("s_waitcnt vmcnt(0)")
        A("s_memrealtime s[68:69]")
        A("s_waitcnt lgkmcnt(0)")
        a_, b_ = {1: (62, 62), 2: (64, 62), 3: (66, 64), 4: (68, 66)}[OPT["dspin"]]
        A(f"s_sub_u32 s70, s{a_}, s{b_}")
        A("s_add_u32 s70, s70, 20000")
        A.label("L1_ds")
        A("s_memrealtime s[72:73]")
        A("s_waitcnt lgkmcnt(0)")
        A("s_sub_u32 s71, s72, s62")
        A("s_cmp_lt_u32 s71, s70")
        A("s_cbranch_scc1 L1_ds")
    A.label("L1_end")
    A("s_endpgm")
    A.label("L1_redo")
    A(f"s_mov_b32 s{sREDO}, 1")
    A("s_waitcnt vmcnt(0) lgkmcnt(0)")
    A("s_barrier")
    A("s_load_dwordx4 s[32:35], s[0:1], 8")
    A(f"s_lshl_b32 s{sT1}, s{sB}, 5")
    A(f"s_add_u32 s{sT1}, s{sT1}, s{sH}")
    A(f"s_lshl_b32 s{sT1}, s{sT1}, 19")
    A("s_waitcnt lgkmcnt(0)")
    A(f"s_add_u32 s{SRD_K}, s32, s{sT1}")
    A(f"s_addc_u32 s{SRD_K + 1}, s33, 0")
    A(f"s_mov_b32 s{SRD_K + 2}, 524288")
    A(f"s_add_u32 s{SRD_V}, s34, s{sT1}")
    A(f"s_addc_u32 s{SRD_V + 1}, s35, 0")
    A(f"s_mov_b32 s{SRD_V + 2}, 524288")
    dma_regs(A)
    for n in range(2 * DD):
        for p in P(n):
            A.ext(p)
    for t in range(5):
        A(f"v_mov_b32 v{vM + t}, 0xff800000")
    A(f"v_lshlrev_b32 v{t0}, 8, v{i16}")
    A(f"v_lshl_add_u32 v{t0}, v{g4}, 4, v{t0}")
    A(f"s_lshl_b32 s{sT1}, s{sP}, 7")
    A(f"v_add_u32 v{t0}, s{sT1}, v{t0}")
    A(f"v_xor_b32 v{t1}, 128, v{t0}")
    A(f"s_mov_b32 s{sT1}, 0")
    A.label("L1_mx")
    for kk in range(4):
        o = f" offset:64" if kk & 1 else ""
        A(f"buffer_load_dwordx4 {vr(112 + 4 * kk, 4)}, v{t0 + (kk >> 1)}, {srd(SRD_K)}, s{sT1} offen{o}")
    A("s_waitcnt vmcnt(0)")
    for kk in range(4):
        for t in range(5):
            C = "0" if kk == 0 else vr(16 + 4 * t, 4)
            A(f"{MF} {vr(16 + 4 * t, 4)}, {vr(112 + 4 * kk, 4)}, {vr(QV + 16 * t + 4 * kk, 4)}, {C}")
    A("s_nop 7")
    for t in range(5):
        A(f"v_max3_f32 v{vM + t}, v{vM + t}, v{16 + 4 * t}, v{17 + 4 * t}")
        A(f"v_max3_f32 v{vM + t}, v{vM + t}, v{18 + 4 * t}, v{19 + 4 * t}")
    A(f"s_add_u32 s{sT1}, s{sT1}, 4096")
    A(f"s_cmp_lt_u32 s{sT1}, {4096 if OPT['twice'] else 524288}")
    A("s_cbranch_scc1 L1_mx")
    xlane5(A, "v_max_f32", vM, vM + 8)
    for t in range(5):
        for i in range(4):
            A(f"v_sub_f32 v{NEG + 4 * t + i}, 0, v{vM + t}")
    for i in range(180):
        A(f"v_accvgpr_write_b32 a{i}, 0")
    A.ext(loop_addr())
    loop_scalars(A)
    A("s_barrier")
    A.ext(k0reads)
    A("s_waitcnt lgkmcnt(0)")
    for kb in range(2):
        for kk in range(4):
            A.ext(qk0(kb, kk, True))
    A.ext(pro_rd)
    A("s_nop 7")
    A.ext(safe(sm0))
    A("s_branch L1_presm")
    return errs


def k2(A):
    DEP = 4
    SRD_A, SRD_WO, SRD_OUT = 4, 8, 12
    sW, sMT, sNT, sT0, sT1, sAS, sBS, sLD, sCNT = 16, 17, 18, 19, 20, 21, 22, 23, 24
    vA, vBD, vBR, t0, t1 = 2, 8, 9, 13, 14
    ACC2, ORING, WF = 16, 112, 208
    A.raw(".p2align 8")
    A.raw(".globl oproj_kernel")
    A.raw(".type oproj_kernel,@function")
    A.label("oproj_kernel")
    A(f"s_cmp_ge_u32 s2, {OPT['k2grid']}")
    A("s_cbranch_scc1 L2_end")
    A("s_load_dwordx4 s[32:35], s[0:1], 32")
    A("s_load_dwordx2 s[36:37], s[0:1], 56")
    if OPT["diag"]:
        A("s_memrealtime s[60:61]")
    A("v_lshrrev_b32 v1, 6, v0")
    A("v_and_b32 v0, 63, v0")
    A(f"v_readfirstlane_b32 s{sW}, v1")
    A("s_and_b32 s25, s2, 7")
    A("s_lshr_b32 s26, s2, 3")
    A(f"s_mul_i32 s{sNT}, s26, 43")
    A(f"s_lshr_b32 s{sNT}, s{sNT}, 7")
    A(f"s_mul_i32 s{sT0}, s{sNT}, 3")
    A(f"s_sub_u32 s{sT0}, s26, s{sT0}")
    A(f"s_mul_i32 s{sMT}, s25, 3")
    A(f"s_add_u32 s{sMT}, s{sMT}, s{sT0}")
    A(f"v_lshlrev_b32 v{vA}, 4, v0")
    for i in range(1, 6):
        A(f"v_add_u32 v{vA + i}, {i * 131072}, v{vA}")
    A(f"v_lshrrev_b32 v{t0}, 3, v0")
    A(f"v_mul_u32_u24 v{vBD}, 1152, v{t0}")
    A(f"v_lshrrev_b32 v{t0}, 4, v0")
    A(f"v_lshlrev_b32 v{t0}, 1, v{t0}")
    A(f"v_and_b32 v{t1}, 7, v0")
    A(f"v_xor_b32 v{t0}, v{t0}, v{t1}")
    A(f"v_lshl_add_u32 v{vBD}, v{t0}, 4, v{vBD}")
    A(f"v_lshrrev_b32 v{t0}, 2, v0")
    A(f"v_lshlrev_b32 v{vBR}, 7, v{t0}")
    A(f"v_bfe_u32 v{t0}, v0, 3, 2")
    A(f"v_lshl_add_u32 v{vBR}, v{t0}, 5, v{vBR}")
    A(f"v_and_b32 v{t0}, 3, v0")
    A(f"v_lshl_add_u32 v{vBR}, v{t0}, 3, v{vBR}")
    A(f"s_mul_i32 s{sLD}, s{sW}, {DEP * 4096}")
    A(f"v_add_u32 v{vBR}, s{sLD}, v{vBR}")
    for n in range(1, 4):
        A(f"v_xor_b32 v{vBR + n}, {32 * n}, v{vBR}")
    A("s_waitcnt lgkmcnt(0)")
    A(f"s_mov_b32 s{SRD_A}, s36")
    A(f"s_mov_b32 s{SRD_A + 1}, s37")
    A(f"s_mov_b32 s{SRD_A + 2}, {(DIAG_OFF + (2 << 20)) if OPT['diag'] else WS_O_BYTES}")
    A(f"s_mov_b32 s{SRD_A + 3}, 0x20000")
    A(f"s_mov_b32 s{SRD_WO}, s32")
    A(f"s_mov_b32 s{SRD_WO + 1}, s33")
    A(f"s_mov_b32 s{SRD_WO + 2}, {4096 * 1152}")
    A(f"s_mov_b32 s{SRD_WO + 3}, 0x20000")
    A(f"s_mov_b32 s{SRD_OUT}, s34")
    A(f"s_mov_b32 s{SRD_OUT + 1}, s35")
    A(f"s_mov_b32 s{SRD_OUT + 2}, {2304 * 1152}")
    A(f"s_mov_b32 s{SRD_OUT + 3}, 0x20000")
    A(f"s_mul_i32 s{sAS}, s{sMT}, 786432")
    A(f"s_lshl_b32 s{sT0}, s{sW}, 15")
    A(f"s_add_u32 s{sAS}, s{sAS}, s{sT0}")
    A(f"s_mul_i32 s{sBS}, s{sW}, {1024 * 1152}")
    A(f"s_lshl_b32 s{sT0}, s{sNT}, 7")
    A(f"s_add_u32 s{sBS}, s{sBS}, s{sT0}")
    WN = OPT["k2rot"]
    sA0, sB0, sPH, sI = 27, 28, 29, 30

    def blk_addr():
        return [f"s_add_u32 s{sT1}, s{sI}, s{sPH}", f"s_and_b32 s{sT1}, s{sT1}, {WN - 1}",
                f"s_and_b32 s31, s{sI}, {(~(WN - 1)) & 0xff}", f"s_or_b32 s{sT1}, s{sT1}, s31",
                f"s_mul_i32 s{sBS}, s{sT1}, {DEP * 32 * 1152}", f"s_add_u32 s{sBS}, s{sBS}, s{sB0}",
                f"s_lshl_b32 s{sAS}, s{sT1}, 12", f"s_add_u32 s{sAS}, s{sAS}, s{sA0}", f"s_add_u32 s{sI}, s{sI}, 1"]
    A(f"s_mov_b32 s{sA0}, s{sAS}")
    A(f"s_mov_b32 s{sB0}, s{sBS}")
    A(f"s_mul_i32 s{sPH}, s{sMT}, {OPT['k2mul']}")
    A(f"s_add_u32 s{sPH}, s{sPH}, s{sNT}")
    A(f"s_mov_b32 s{sI}, 0")
    A.ext(blk_addr())

    def loads(d):
        o = []
        for i in range(4):
            o.append([f"s_add_u32 m0, s{sLD}, {d * 4096 + i * 1024}",
                      f"s_add_u32 s{sT0}, s{sBS}, {(32 * d + 8 * i) * 1152}",
                      f"buffer_load_dwordx4 v{vBD}, {srd(SRD_WO)}, s{sT0} offen lds"])
        off = f" offset:{d * 1024}" if d else ""
        for i in range(6):
            o.append([f"buffer_load_dwordx4 {vr(ORING + 24 * d + 4 * i, 4)}, v{vA + i}, {srd(SRD_A)}, s{sAS} offen{off}"])
        return o

    def wreads(d):
        b = WF + 16 * (d % 2)
        return [f"ds_read_b64_tr_b16 {vr(b + 4 * n + 2 * e, 2)}, v{vBR + n} offset:{d * 4096 + e * 2048}"
                for n in range(4) for e in range(2)]

    zi = 0
    for d in range(DEP - 1):
        for g in loads(d):
            A.ext(g)
            for _ in range(4):
                if zi < 96:
                    A(f"v_mov_b32 v{ACC2 + zi}, 0")
                    zi += 1
    assert zi == 96
    A(f"s_mov_b32 s{sCNT}, {32 // DEP}")
    A(f"s_waitcnt vmcnt({10 * (DEP - 2) + 6})")
    if OPT["diag"]:
        A("s_memrealtime s[62:63]")
    A.ext(wreads(0))
    A.label("L2_loop")
    body = []
    Bd = body.append
    for d in range(DEP):
        Bd(f"s_waitcnt vmcnt({10 * (DEP - 3) + 6})")
        body += wreads((d + 1) % DEP)
        Bd("s_waitcnt lgkmcnt(8)")
        b = WF + 16 * (d % 2)
        ld = loads((d - 1) % DEP)
        k = 0
        for n in range(4):
            for i in range(6):
                acc = vr(ACC2 + 4 * (6 * n + i), 4)
                Bd(f"{MF} {acc}, {vr(b + 4 * n, 4)}, {vr(ORING + 24 * d + 4 * i, 4)}, {acc}")
                k += 1
                if ld and k % 2 == 0:
                    body += ld.pop(0)
        if d == 0:
            body += blk_addr()
            Bd(f"s_cmp_eq_u32 s{sCNT}, 1")
            Bd(f"s_cselect_b32 s{sAS}, 0x40000000, s{sAS}")
            Bd(f"s_cselect_b32 s{sBS}, 0x40000000, s{sBS}")
    Bd(f"s_sub_u32 s{sCNT}, s{sCNT}, 1")
    Bd(f"s_cmp_lg_u32 s{sCNT}, 0")
    A.ext(body)
    A("s_cbranch_scc1 L2_loop")
    errs = hazard.check(body + body, "k2loop")
    if OPT["diag"]:
        A("s_memrealtime s[64:65]")
    A("s_waitcnt vmcnt(0) lgkmcnt(0)")
    A("s_barrier")
    A(f"s_mul_i32 s{sT0}, s{sW}, 24576")
    A(f"v_lshl_add_u32 v{t0}, v0, 4, s{sT0}")
    A("s_nop 7")
    for q in range(24):
        A(f"ds_write_b128 v{t0}, {vr(ACC2 + 4 * q, 4)} offset:{q * 1024}")
    A(f"v_and_b32 v{t0}, 15, v0")
    A(f"v_lshlrev_b32 v{t0}, 4, v{t0}")
    A(f"v_bfe_u32 v{t1}, v0, 4, 1")
    A(f"v_lshl_add_u32 v{t0}, v{t1}, 9, v{t0}")
    A(f"v_lshrrev_b32 v{t1}, 5, v0")
    A(f"v_lshl_add_u32 v{t0}, v{t1}, 10, v{t0}")
    A(f"s_mul_i32 s{sT0}, s{sW}, {6 * 1024}")
    A(f"v_add_u32 v{t0}, s{sT0}, v{t0}")
    A(f"v_add_u32 v{t1}, 49152, v{t0}")
    A("s_waitcnt lgkmcnt(0)")
    A("s_barrier")
    for w in range(4):
        for x in range(3):
            for q in range(2):
                A(f"ds_read_b128 {vr(ORING + 24 * w + 8 * x + 4 * q, 4)}, v{t0 if w < 2 else t1} offset:{(w % 2) * 24576 + x * 2048 + q * 256}")
        if w % 2 == 1:
            A("s_waitcnt lgkmcnt(0)")
    for w in range(1, 4):
        for e in range(24):
            A(f"v_add_f32 v{ORING + e}, v{ORING + e}, v{ORING + 24 * w + e}")
    for e in range(12):
        A(f"v_cvt_pk_bf16_f32 v{ACC2 + e}, v{ORING + 2 * e}, v{ORING + 2 * e + 1}")
    A(f"v_and_b32 v{t0}, 15, v0")
    A(f"v_lshrrev_b32 v{t1}, 5, v0")
    A(f"v_lshl_add_u32 v{t0}, v{t1}, 4, v{t0}")
    A(f"v_mul_u32_u24 v{t0}, 1152, v{t0}")
    A(f"v_bfe_u32 v{t1}, v0, 4, 1")
    A(f"v_lshl_add_u32 v{t0}, v{t1}, 4, v{t0}")
    A(f"s_mul_i32 s{sAS}, s{sMT}, {96 * 1152}")
    A(f"s_lshl_b32 s{sT0}, s{sNT}, 7")
    A(f"s_add_u32 s{sAS}, s{sAS}, s{sT0}")
    A(f"s_lshl_b32 s{sT0}, s{sW}, 5")
    A(f"s_add_u32 s{sAS}, s{sAS}, s{sT0}")
    for x in range(3):
        A(f"buffer_store_dwordx4 {vr(ACC2 + 4 * x, 4)}, v{t0}, {srd(SRD_OUT)}, s{sAS} offen")
        A(f"s_add_u32 s{sAS}, s{sAS}, {32 * 1152}")
    if OPT["diag"]:
        A("s_waitcnt vmcnt(0)")
        A("s_memrealtime s[66:67]")
        A("s_waitcnt lgkmcnt(0)")
        for i in range(4):
            A(f"v_writelane_b32 v250, s{60 + 2 * i}, {i}")
        A(f"s_lshl_b32 s{sT0}, s2, 2")
        A(f"s_add_u32 s{sT0}, s{sT0}, s{sW}")
        A(f"s_lshl_b32 s{sT0}, s{sT0}, 8")
        A(f"s_add_u32 s{sT0}, s{sT0}, {DIAG_OFF + (1 << 20)}")
        A(f"v_lshlrev_b32 v{t0}, 2, v0")
        A(f"buffer_store_dword v250, v{t0}, {srd(SRD_A)}, s{sT0} offen")
    A.label("L2_end")
    A("s_endpgm")
    return errs


def desc(name, vg, acc, sg=102):
    return f""".p2align 6
.amdhsa_kernel {name}
  .amdhsa_next_free_vgpr {vg}
  .amdhsa_next_free_sgpr {sg}
  .amdhsa_accum_offset {acc}
  .amdhsa_group_segment_fixed_size 0
  .amdhsa_kernarg_size 64
  .amdhsa_user_sgpr_count 2
  .amdhsa_user_sgpr_kernarg_segment_ptr 1
  .amdhsa_system_sgpr_workgroup_id_x 1
.end_amdhsa_kernel
"""


def main():
    A = Asm()
    e = k1(A)
    if not OPT["fuse"]:
        e += k2(A)
    A.label("L_code_end")
    e += hazard.check(A.l, "linear")
    for x in e:
        print(x, file=sys.stderr)
    hdr = f"""; Fused MHA block (q-proj + attention) and output projection, gfx950. Generated by a script.
; kernarg: x, k_cache, v_cache, wq, wo, out, debug, ws
; @launch kernel=attn_kernel grid=(256,1,1) block=(256,1,1) lds={LDS1}
{";" if OPT["fuse"] else "; @launch kernel=oproj_kernel grid=(216,1,1) block=(256,1,1) lds=98304"}
.amdgcn_target "amdgcn-amd-amdhsa--gfx950"
.text
.globl attn_kernel
"""
    txt = hdr + "\n".join(A.l) + "\n.section .rodata,\"a\"\n" + desc("attn_kernel", 512, 256) + ("" if OPT["fuse"] else desc("oproj_kernel", 256, 256))
    open(sys.argv[1], "w").write(txt)
    if e and not (OPT["nodma"] or OPT["nomf"]):
        sys.exit(1)


main()
```

```python
import math
import struct
import sys

import hazard

OPT = dict(diag=0, L=6, W=2, xmap=1, nodma=0, nobar=0, kvflag=1, ostflag=2, wopf=2, wsh=8,
           k2grid=216, LQ=7, dmastep=16, gY=138, thr=32, show=0, qstep=5, up=2, qpflag=0, dbg=0, cpf=1, nph=5, k2rot=1, D=3, pf=0, stg=0, pfa=4, kvs=0, rot=0, k2mul=1, fuse=1, dst=0, DO=4, oflag=2, early=5, l2pf=0, fast=1, wsoff=0, twice=0, nomf=0, pad=0, tlb=0, eord=0, fine=0, wflag=0, p3same=0, chain=1, LG=30, LM=12, SO=4, gB=3, e1a=9, e1b=70, LMB=10, dma0=6, wa=8, b2=1, vm2=1, bcap=0, tidy=1, x6d=0, outflag=0, pre=4, slp=4, ppos=4, wpre=9, qpad=4352, gpad=1152, dspin=0, helper=0, hA=6, ho=4, post=0, tail2=1)
for a in sys.argv[2:]:
    k, v = a.split("=")
    OPT[k] = int(v)
FLAGS = ['', ' nt', ' sc1', ' sc0 sc1', ' sc1 nt', ' sc0 sc1 nt', ' sc0']

BLK = 1056
HS = 16 * BLK
DD = OPT['D']
NS = 2 * DD + 1
TS = 7
STATS = 9 * HS
assert DD == 3
XB = 1088
WOFF, XEOFF, XOFF = 0, 17408, 21504
WG0 = 4 * XB + OPT["wsh"]
WG1 = 8720
STSZ = 54272
LDS1 = 163840
GP = 32768 + OPT['gpad']
QP = 4 * GP + OPT['qpad']
WS_O_BYTES = 144 * QP
DIAG_OFF = 64 << 20


def f32bits(x):
    return struct.unpack("<I", struct.pack("<f", x))[0]


QSCALE = f32bits(128 ** -0.5 * math.log2(math.e))


class Asm:
    def __init__(self):
        self.l = []

    def __call__(self, s):
        if " | buffer_store" in s:
            for x in s.split(" | "):
                self.l.append("    " + x)
        else:
            self.l.append("    " + s)

    def label(self, s):
        self.l.append(s + ":")

    def raw(self, s):
        self.l.append(s)

    def ext(self, lst):
        for s in lst:
            self(s)


def vr(a, n):
    return f"v[{a}:{a + n - 1}]"


def ar(a, n):
    return f"a[{a}:{a + n - 1}]"


def srd(n):
    return f"s[{n}:{n + 3}]"


MF = "v_mfma_f32_16x16x32_bf16"

SRD_X, SRD_W, SRD_K, SRD_V, SRD_O, SRD_P = 4, 8, 12, 16, 20, 84
sW, sP, sB, sH = 24, 25, 27, 28
sXD, sXS, sWD, sWS, sT0, sT1 = 42, 43, 44, 45, 46, 47
sXED, sXES = 48, 55
sCNT = 49
sKD, sVD, sKVS, sKN, sVN = 50, 51, 52, 53, 54
sSC = 56
sT2 = 57
sOUTP = 32
sWP = 30
sG0 = 31
sDV = 3
sOO = 58
sREDO = 59
sST = 60
sWOF = 88
sCX, sCW = 89, 100
sPC = 98
sXSc, sWSc, sXEc = 29, 26, 101

vXD, vXDE, vWD, vCW, vV4 = 2, 4, 5, 6, 8
vQA = 160
ACC = 16
B0 = [16, 56]
B1 = 96
NEG = 128
QV = 160
vKB, vVB = 240, 244
vK, vV = 148, 152
vM = 96
vDUM = 252
OA, LA, ONES, RING = 0, 160, 180, 192
XF = [184, 204]
WRING = 224


def Sreg(t, par):
    assert par == 0
    return B0[0] + 8 * t


stamp_n = [0]


def stamp_txt():
    if OPT["diag"] == 1:
        n = stamp_n[0]
        stamp_n[0] += 1
        assert n < 12
        return [f"s_memtime s[{sST + 2 * n}:{sST + 2 * n + 1}]"]
    return []


def stamp(A):
    A.ext(stamp_txt())


def is_ds(x):
    return x.startswith("ds_")


def add_waits(seq, cyclic, W=1, nfr=None):
    rep = 2 if cyclic else 1
    out = []
    issued = 0
    done = 0
    last = {}
    for it in range(rep):
        out = []
        for e in seq:
            if e[0] == "x":
                if is_ds(e[1]):
                    issued += 1
                    if e[2] is not None:
                        last[e[2]] = issued
                if "lgkmcnt(0)" in e[1] or e[1] == "VMW":
                    done = issued
                out.append(e[1])
            else:
                need = 0
                for f in e[2]:
                    if f in last:
                        need = max(need, last[f])
                if need > done:
                    tgt = need
                    for f in e[3] if len(e) > 3 else []:
                        if f in last and last[f] > need - 40:
                            tgt = max(tgt, last[f])
                    n = issued - tgt
                    if n > 15:
                        n = 15
                        tgt = issued - 15
                    out.append(f"s_waitcnt lgkmcnt({n})")
                    done = tgt
                if e[1] is not None:
                    out.append(e[1])
    return out


vD = 246
sINC = 60 if not OPT["diag"] else 26
sKP = 64 if not OPT["diag"] else 34


def tidy(lst):
    import re
    out, gap = [], []

    def flush(seen_mfma):
        g = list(gap)
        gap.clear()
        if not seen_mfma or any(x.startswith(("s_barrier", "s_cbranch", "s_branch")) or x.endswith(":") for x in g):
            return g
        if g and re.fullmatch(r"s_waitcnt lgkmcnt\(\d+\)", g[-1]) and not any("waitcnt" in x for x in g[:-1]):
            n = int(g[-1][18:-1]) - sum(is_ds(x) for x in g[:-1])
            if n >= 0:
                g = [f"s_waitcnt lgkmcnt({n})"] + g[:-1]
        ch = True
        while ch:
            ch = False
            for i in range(len(g) - 1):
                a, b = g[i], g[i + 1]
                if a.startswith("v_") and b.startswith(("ds_", "s_add", "s_mov", "s_lshl", "s_mul", "s_sub", "s_min", "s_and")):
                    ia, ib = hazard.I(a), hazard.I(b)
                    if not (ia.w & (ib.r | ib.w)) and not (ib.w & ia.r):
                        g[i], g[i + 1] = b, a
                        ch = True
        return g
    seen = False
    for x in lst:
        if x.startswith("v_mfma"):
            out += flush(seen)
            out.append(x)
            seen = True
        else:
            gap.append(x)
    out += gap
    return out


def kv_piece(dst, srdn, i):
    return [f"s_add_u32 m0, s{dst}, {i * BLK}",
            f"buffer_load_dwordx4 v{vD + i}, {srd(srdn)}, s{sKVS} offen{FLAGS[OPT['kvflag']]} lds"]


def item_piece(n, i):
    o = f" offset:{i * 1024}" if i else ""
    return [f"s_add_u32 m0, s{sWOF}, {(n % NS) * HS + i * (BLK - 1024)}",
            (f"s_add_u32 s{sT0}, s{sG0}, {(n // 2) * 16384}" if OPT["rot"] else f"s_mov_b32 s{sT0}, {(n // 2) * 16384}"),
            f"buffer_load_dwordx4 v{vV4}, {srd(SRD_V if n % 2 else SRD_K)}, s{sT0} offen{o}{FLAGS[OPT['kvflag']]} lds"]


def adv(r, tmp=None):
    tmp = sT2 if tmp is None else tmp
    return [f"s_add_u32 s{r}, s{r}, {2 * HS}", f"s_sub_u32 s{tmp}, s{r}, {NS * HS}", f"s_min_u32 s{r}, s{r}, s{tmp}"]


def kread(dst, base, kb, kk):
    return f"ds_read_b128 {dst}, v{base + (kk >> 1)} offset:{kb * 256 + (kk & 1) * 64}"


VC, VN = 1000, 2000


def realize(x, par):
    import re

    def f(m):
        n = int(m.group(0))
        if n >= VN:
            return str(B0[1 - par] + n - VN)
        return str(B0[par] + n - VC)
    return re.sub(r"(?<![\w:x])[12]0\d\d(?=[\]:,\s]|$)|(?<=v)[12]0\d\d|(?<=[\[:])[12]0\d\d(?=[\]:])", f, x) if x.startswith("v_") else x


def build_loop():
    NF = 32
    mf = []
    qk_end, pv_first = {}, {}

    def S(j, t, nxt=False):
        return (B1 + 8 * t) if j == 1 else ((VN if nxt else VC) + 8 * t)
    for ph, jn in ((0, 1), (1, 0)):
        tiles = range(5) if jn == 0 else range(4)
        for kb in range(2):
            for t in tiles:
                for kk in range(4):
                    f = 8 * ph + kb * 4 + kk
                    Sx = S(jn, t, True) + 4 * kb
                    C = vr(NEG + 4 * t, 4) if kk == 0 else vr(Sx, 4)
                    mf.append(dict(t=f"{MF} {vr(Sx, 4)}, {ar(RING + 4 * (f % 16), 4)}, {vr(QV + 16 * t + 4 * kk, 4)}, {C}", f=f))
                    qk_end[(jn, t, kb)] = len(mf) - 1
        if ph == 0:
            gX = len(mf) - 1
    for dt in range(8):
        for t in range(5):
            for j in range(2 if t < 4 else 1):
                f = 16 + 2 * dt + j
                O = ar(OA + 32 * t + 4 * dt, 4)
                mf.append(dict(t=f"{MF} {O}, {ar(RING + 4 * (f % 16), 4)}, {vr(S(j, t), 4)}, {O}", f=f))
                pv_first.setdefault((j, t), len(mf) - 1)
        x = dt - 2
        if 0 <= x < 5:
            for j in range(2 if x < 4 else 1):
                Lr = ar(LA + 4 * x, 4)
                mf.append(dict(t=f"{MF} {Lr}, {ar(ONES, 4)}, {vr(S(j, x), 4)}, {Lr}", f=16 + 2 * dt))
    N = len(mf)
    assert N == 153
    first_use, last_use = {}, {}
    for i, m in enumerate(mf):
        first_use.setdefault(m["f"], i)
        last_use[m["f"]] = i

    def wsz(f):
        return (OPT['wa'] if f < 8 else 4) if f < 16 else 2
    cap = [2] * N
    scal = [None] * N
    for f in range(NF):
        if f % wsz(f) == 0:
            scal[(first_use[f] - 1) % N] = ("W", [(f + k) % NF for k in range(wsz(f))])
    scal[N - 2], scal[N - 1] = scal[N - 1], ("B",)
    cap[N - 1] = 0
    assert scal[gX - 1] is None and scal[gX - 2] is None
    scal[gX - 1], scal[gX] = scal[gX], ("P", 1, "s_cbranch_scc1 L1_tail")
    scal[gX - 2] = ("P", 1, f"s_cmp_eq_u32 s{sSIDE}, 2")
    gB = OPT["gB"]
    nvm = 8 + (1 if OPT["wopf"] == 2 else 0)
    assert scal[gB - 1] is None and scal[gB] is None
    scal[gB - 1] = ("T", f"s_waitcnt vmcnt({(DD - 2) * nvm})")
    scal[gB] = ("T", "s_barrier")
    cap[gB] = OPT["bcap"]
    gY = OPT["gY"]
    assert scal[gY] is None and scal[gY - 1] is None
    scal[gY - 1] = ("P", 0, f"s_sub_u32 s{sCNT}, s{sCNT}, 1")
    scal[gY] = ("P", 0, "s_cbranch_scc1 L1_side | L1_back:")
    e1a, e1b = OPT["e1a"], OPT["e1b"]
    ok = [g for g in range(-N, 2 * N) if cap[g % N] == 2]
    place, taken = {}, set()
    for j, lo, hi in ((1, e1a, e1b), (0, e1b + 2 - N, e1a - 2)):
        keys = [(j, t, kb, r) for kb in range(2) for t in (range(5) if j == 0 else range(4)) for r in range(4)]
        gs = []
        for k in range(len(keys)):
            want = lo + k * (hi - lo) / (len(keys) - 1.0)
            g = min((x for x in ok if x % N not in taken and lo <= x <= hi), key=lambda x: abs(x - want))
            taken.add(g % N)
            gs.append(g)
        for key, g in zip(keys, sorted(gs)):
            place[key] = g
    for (j, t, kb, r), g in place.items():
        assert g >= qk_end[(j, t, kb)] + 6 - (N if j == 0 else 0), (j, t, kb, r, g)
        assert g <= pv_first[(j, t)] - 5, (j, t, kb, r, g)
        cap[g % N] = 0

    def frag_reads(f):
        dst = RING + 4 * (f % 16)
        if f < 16:
            kb, kk = divmod(f % 8, 4)
            return [kread(ar(dst, 4), vK + (2 if f < 8 else 0), kb, kk)]
        dt, j = divmod(f - 16, 2)
        return [f"ds_read_b64_tr_b16 {ar(dst + 2 * e, 2)}, v{vV + j} offset:{e * 256 + dt * 32}" for e in range(2)]

    items = []

    def add(name, lo, hi, text, kind=None, chain=None, after=()):
        items.append(dict(n=name, lo=lo, hi=hi, t=text, k=kind, c=chain, a=list(after)))

    for (j, t, kb, r), g in sorted(place.items(), key=lambda z: z[1]):
        if r % 2 == 1:
            Sx = S(j, t)
            add(f"c{j}{t}{kb}{r}", g + 1, min(g + 14, pv_first[(j, t)] - 3),
                f"v_cvt_pk_bf16_f32 v{Sx + 2 * kb + r // 2}, v{Sx + 4 * kb + r - 1}, v{Sx + 4 * kb + r}", ("cvt", j, t), "cvt")
    LG, LM = OPT["LG"], OPT["LM"]
    add("v0", 0, 30, f"v_add_u32 v{vV}, s{sVN}, v{vVB}", None, None)
    add("v1", 0, 31, f"v_add_u32 v{vV + 1}, s{sVN}, v{vVB + 1}", None, None)
    for f in range(NF):
        fu = first_use[f - f % wsz(f)]
        lo = max(fu - LG, last_use[(f + 16) % NF] - (N if f < 16 else 0))
        if 8 <= f < 16:
            lo = max(lo, gB + 1)
        if f >= 16:
            lo = max(lo, gX + 1)
        for e, x in enumerate(frag_reads(f)):
            add(f"r{f}_{e}", lo, fu - (OPT["LMB"] if 8 <= f < 12 else LM), x, ("rd", f), "rd", ["v0", "v1"] if f >= 16 else [])
    add("k1a", 0, 100, f"v_add_u32 v{vK + 2}, s{sDV}, v{vK}", None, None, ["r5_0"])
    add("k1b", 0, 100, f"v_add_u32 v{vK + 3}, s{sDV}, v{vK + 1}", None, None, ["r7_0"])
    st = OPT["dmastep"]
    g = gB + OPT["dma0"]
    prevd = None
    for nm, dst, srdn in (("V", sVD, SRD_V), ("K", sKD, SRD_K)):
        for i in range(4):
            pc = kv_piece(dst, srdn, i)
            add(f"m{nm}{i}", g, g + 10, pc[0], "m0", "dma", [prevd] if prevd else [])
            prevd = f"d{nm}{i}"
            add(f"d{nm}{i}", g + 1, g + 14, pc[1], "dma", "dma")
            g += st
    add("svd", 0, 140, f"s_add_u32 s{sVD}, s{sKN}, s{sWOF}", None, "ak", ["dV3"])
    for i, x in enumerate(adv(sKN)):
        add(f"ak{i}", 0, 142 + i, x, None, "ak")
    add("k0a", 0, 148, f"v_add_u32 v{vK}, s{sKN}, v{vKB}", None, None, ["ak2", "r13_0", "k1a"])
    add("k0b", 0, 148, f"v_add_u32 v{vK + 1}, s{sKN}, v{vKB + 1}", None, None, ["ak2", "r15_0", "k1b"])
    for i, x in enumerate(adv(sVN, sT1)):
        add(f"av{i}", 0, 144 + i, x, None, "av", ["v0", "v1"])
    for i, x in enumerate(adv(sKD, sT0)):
        add(f"ad{i}", 0, 148 + i, x, None, "ad", ["dK3"])
    add("kvs", gY + 1, 151, f"s_add_u32 s{sKVS}, s{sKVS}, s{sINC}", None, None, ["dK3"])
    if OPT["wopf"] == 2:
        add("wp", 75, 140, f"buffer_load_dword v{vDUM}, v7, {srd(SRD_P)}, s{sWP} offen", None, "wp")
        add("wpa", 0, 150, f"s_add_u32 s{sWP}, s{sWP}, 160", None, "wp", ["wp"])
    NP = 5
    pend = []
    for p in range(NP):
        for i, x in enumerate(items):
            pend.append(dict(x, p=p, i=i, lo=x["lo"] + p * N, hi=x["hi"] + p * N))
    chains = {}
    for x in pend:
        chains.setdefault(x["c"] or ("solo", x["n"]), []).append(x)
    at, out = {}, {}
    for g in range(-N, (NP + 1) * N):
        free = cap[g % N]
        sfree = scal[g % N] is None
        while free or sfree:
            cands = []
            for c, q in chains.items():
                if not q:
                    continue
                x = q[0]
                if x["lo"] > g or any((a_, x["p"]) not in at for a_ in x["a"]):
                    continue
                if x["k"] == "dma" and at[("m" + x["n"][1:], x["p"])] == g:
                    continue
                if x["t"].startswith("s_") and not sfree:
                    continue
                if not x["t"].startswith("s_") and not free:
                    continue
                if any(at[(a_, x["p"])] == g for a_ in x["a"]):
                    continue
                if x["t"].startswith("buffer") and (g % N == gB - 1 or free < 2):
                    continue
                cands.append(x)
            if not cands:
                break
            x = min(cands, key=lambda x: (x["hi"], x["i"]))
            chains[x["c"] or ("solo", x["n"])].pop(0)
            at[(x["n"], x["p"])] = g
            out.setdefault(g, []).append(x)
            if x["t"].startswith("s_"):
                sfree = False
            else:
                free -= 2 if x["t"].startswith("buffer") else 1
    for x in items:
        assert at[(x["n"], 2)] - 2 * N == at[(x["n"], 3)] - 3 * N, ("not periodic", x)
        assert at[(x["n"], 2)] - 2 * N <= x["hi"], ("late", x, at[(x["n"], 2)] - 2 * N)
    rel = {x["n"]: at[(x["n"], 2)] - 2 * N for x in items}
    assert rel["dK3"] < gY - 1 and rel["r31_1"] < N
    assert rel["k1a"] < rel["r0_0"] + N and rel["k1b"] < rel["r2_0"] + N
    assert first_use[8 - wsz(0)] <= gB - 1
    assert rel["v0"] < gX and rel["v1"] < gX
    gaps = [[] for _ in range(N)]
    cls = lambda t: 0 if t.startswith("s_") else 1 if t.startswith(("ds_", "buffer")) else 2
    nx = lambda t: __import__("re").sub(r"v10(\d\d)", r"v20\1", t)
    for g in range(N):
        for x in sorted(out.get(2 * N + g, []), key=lambda x: cls(x["t"])):
            n = x["p"] == 3
            gaps[g].append((nx(x["t"]) if n else x["t"], "n" if n else "", x["k"]))
            assert x["p"] in (2, 3), x
    for (j, t, kb, r), g in place.items():
        Sx = S(j, t, g < 0) + 4 * kb + r
        gaps[g % N].append((f"v_exp_f32 v{Sx}, v{Sx}", "n" if g < 0 else "", ("sm", j, t)))
    seq, pro, tail = [], [], []
    for par in range(2):
        for i, m in enumerate(mf):
            if i == 0 and par == 1 and OPT["diag"]:
                for y in diag_top():
                    seq.append(("x", y, None))
            seq.append(("m", realize(m["t"], par), [m["f"]]))
            sc_ = scal[i]
            if sc_ and sc_[0] == "W":
                seq.append(("m", None, sc_[1]))
            elif sc_ and sc_[0] == "T":
                seq.append(("x", sc_[1], None))
            elif sc_ and sc_[0] == "P" and sc_[1] == par:
                seq.append(("x", sc_[2], None))
            for x in gaps[i]:
                isrd = isinstance(x[2], tuple) and x[2][0] == "rd"
                seq.append(("x", realize(x[0], par), x[2][1] if isrd else None))
                if par == 1 and x[1] == "n":
                    assert isinstance(x[2], tuple), x
                    pro.append(realize(x[0], 1))
                if par == 1 and i >= gX and x[1] != "n" and isinstance(x[2], tuple):
                    if x[2][0] in ("sm", "cvt"):
                        tail.append((x[2][2], realize(x[0], 1)))
    body = add_waits(seq, True)
    body = [y for x in body for y in x.split(" | ")]
    if OPT["show"]:
        print("gaps:", "".join("E" if any(y[0].startswith("v_exp") for y in g_) else str(len(g_)) for g_ in gaps), file=sys.stderr)
        print("instr", len(body), "dma", [rel[f"d{n}{i}"] for n in "VK" for i in range(4)],
              "leads", [first_use[f - f % wsz(f)] - rel[f"r{f}_{1 if f >= 16 else 0}"] for f in range(NF)],
              "pro", len(pro), "tail", len(tail), file=sys.stderr)
    vreads = [x for f in range(16, 32) for x in frag_reads(f)]
    return body, pro, tail, vreads


def diag_top():
    return ["s_mov_b32 m0, s41", "s_sub_u32 s41, s41, 1", "v_writelane_b32 v250, s90, m0", "v_writelane_b32 v251, s96, m0",
            "s_memtime s[90:91]", "s_memrealtime s[96:97]"]


def cursor(r):
    return [f"s_add_u32 s{r}, s{r}, 128", f"s_sub_u32 s{sT2}, s{r}, 1152", f"s_min_u32 s{r}, s{r}, s{sT2}"]


def x_pieces(c):
    st = STG[c] * STSZ
    p = []
    for i in range(8):
        pre = [f"s_add_u32 s{sXSc}, s{sXS}, s{sCX}"] + cursor(sCX) if i == 0 else []
        p.append(pre + [f"s_add_u32 m0, s{sXD}, {st + i * 1024}",
                        (f"s_add_u32 s{sT0}, s{sXSc}, {i * 9216}" if i else "s_nop 0"),
                        f"buffer_load_dwordx4 v{vXD + (i & 1)}, {srd(SRD_X)}, s{sT0 if i else sXSc} offen{FLAGS[OPT['qpflag']]} lds"])
    return p


def wg_pieces(c):
    st = STG[c] * STSZ
    p = []
    for r in range(4):
        pre = [f"s_lshl_b32 s{sWSc}, s{sCW}, 12", f"s_add_u32 s{sWSc}, s{sWSc}, s{sWS}",
               f"s_add_u32 s{sXEc}, s{sXES}, s{sCW}"] + cursor(sCW) if r == 0 else []
        p.append(pre + [f"s_add_u32 m0, s{sWD}, {st + WOFF + r * XB}",
                        (f"s_add_u32 s{sT0}, s{sWSc}, {r * 8192}" if r else "s_nop 0"),
                        f"buffer_load_dwordx4 v{vWD}, {srd(SRD_W)}, s{sT0 if r else sWSc} offen{FLAGS[OPT['qpflag']]} lds"])
    p.append([f"s_add_u32 m0, s{sXED}, {st}", "s_nop 0",
              f"buffer_load_dwordx4 v{vXDE}, {srd(SRD_X)}, s{sXEc} offen{FLAGS[OPT['qpflag']]} lds"])
    return p


STG = [[0, 2, 1, 0, 2, 1, 2, 1, 2], [0, 1, 2, 0, 1, 2, 0, 1, 2]][OPT['stg']]


def build_qproj(extras, nup, tail_items, fill):
    LQ = OPT["LQ"]
    mf = []
    first_use, last_use = {}, {}
    for s in range(18):
        for sl in range(8):
            f = ("w", 8 * s + sl)
            tiles = range(5) if sl < 4 else range(4)
            for t in tiles:
                a = ACC + 32 * t + 4 * sl
                C = "0" if s == 0 else vr(a, 4)
                txt = f"{MF} {vr(a, 4)}, {ar(WRING + 4 * sl, 4)}, {ar(XF[s % 2] + 4 * t, 4)}, {C}"
                mf.append((txt, [f, ("x", s, t)]))
                for q in (f, ("x", s, t)):
                    first_use.setdefault(q, len(mf) - 1)
                    last_use[q] = len(mf) - 1
    N = len(mf)
    gaps = [[] for _ in range(N + 1)]

    def st_of(c):
        return (6, 0) if STG[c] == 2 else (0, STG[c] * STSZ)

    def wread(n):
        s, sl = divmod(n, 8)
        c, ks = divmod(s, 2)
        rb, st = st_of(c)
        kk, u = divmod(sl, 2)
        base = vQA + rb + (4 if kk < 2 else 5)
        return [(f"ds_read_b64_tr_b16 {ar(WRING + 4 * sl + 2 * e, 2)}, v{base} offset:{st + (kk & 1) * 64 + 8 * u + e * 256 + ks * 512}",
                 ("w", n)) for e in range(2)]

    def xread(s, t):
        c, ks = divmod(s, 2)
        rb, st = st_of(c)
        if t < 4:
            return (f"ds_read_b128 {ar(XF[s % 2] + 4 * t, 4)}, v{vQA + rb + ks} offset:{st + t * 2048}", ("x", s, t))
        return (f"ds_read_b128 {ar(XF[s % 2] + 16, 4)}, v{vQA + rb + 2 + ks} offset:{st}", ("x", s, t))

    bar = {0: -1, 9: N}
    for c in range(1, 9):
        bar[c] = last_use[("w", 16 * c - LQ + 1)]
    items = []
    for n in range(144):
        c = n // 16
        e = last_use[("w", n - 8)] if n >= 8 else -1
        tg = first_use[("w", n - LQ)] if n >= LQ else -1
        tg = max(tg, e, bar[c])
        for x in wread(n):
            items.append((tg, x))
    rd = sorted(items, key=lambda z: z[0])
    xi = []
    for s in range(18):
        c, ks = divmod(s, 2)
        for t in range(5):
            e = last_use[("x", s - 2, t)] if s >= 2 else -1
            tg = max(e, bar[c])
            if s == 1:
                tg = 0
            if OPT["b2"] and ks == 1 and t == 4 and s > 1:
                tg = max(tg, last_use[("x", s - 2, 3)])
            xi.append((tg, xread(s, t)))
    allrd = sorted([(tg, 0, i, x) for i, (tg, x) in enumerate(xi)] + [(tg, 1, i, x) for i, (tg, x) in enumerate(rd)],
                   key=lambda z: (z[0], z[1], z[2]))
    used = [0] * (N + 2)
    xdone = {}
    g = -1
    for tg, _, _, x in allrd:
        g = max(g, tg)
        if g < 0 and used[0] >= 9:
            g = 0
        wgt = 2 if (OPT["b2"] and "b128" in x[0] and g >= 0) else 1
        while g >= 0 and used[g + 1] + wgt > 2:
            g += 1
        gaps[g + 1].append(("x", x[0], x[1]))
        used[g + 1] += wgt
        if x[1][0] == "x":
            xdone[x[1][1]] = g
        cc = x[1][1] // 16 if x[1][0] == "w" else x[1][1] // 2
        assert g < bar[cc + 1] - 2, (x, g, bar[cc + 1])
    last_rd = g
    sused = [0] * (N + 2)
    groups = []
    for c in range(nup, 9):
        prev = [p for p in range(c) if STG[p] == STG[c]]
        ew = bar[prev[-1] + 1] if prev else -1
        ex = xdone[2 * prev[-1] + 1] + 10 if prev else -1
        if c == 6:
            ex += OPT["x6d"]
        groups.append((ew, 0, c, wg_pieces(c), ("W", c), None))
        groups.append((ex, 2, c, x_pieces(c), ("X", c), prev[-1] if prev else None))
    for c, ps in extras.items():
        groups.append((bar[c] + (45 if (OPT["eord"] and c < 8) else 0), 1, c, ps, ("E", c), None))
    groups.sort(key=lambda z: (z[0], z[2] if z[0] < 0 else 0, z[1]))
    for kind in "WX":
        cs = [z[4][1] for z in groups if z[4][0] == kind]
        assert cs == sorted(cs), cs
    issued = []
    for c in range(nup):
        issued += [(("W", c), -1)] * 5 + [(("X", c), -1)] * 8
        if c == 0 and (OPT["pf"] or OPT["tlb"] == 1):
            issued += [(("P", 0), -1)] * 2
    g = 0
    for tg, _, _, ps, tag, prev in groups:
        for i, p in enumerate(ps):
            late = g - tg
            g = max(g, tg)
            g0 = g
            if i == 0 and prev is not None:
                while used[g + 1] >= 1:
                    g += 1
                gaps[g + 1].append(("xw", ("x", 2 * prev + 1)))
                used[g + 1] += 2
            for ins in p[:-1]:
                if ins == "s_nop 0":
                    continue
                if ins.startswith("s_"):
                    while sused[g + 1] + max(0, used[g + 1] - 1) >= 2 or (sused[g + 1] and used[g + 1] >= 2):
                        g += 1
                    gaps[g + 1].insert(sused[g + 1], ("x", ins, None))
                    sused[g + 1] += 1
                else:
                    while used[g + 1] >= 2:
                        g += 1
                    gaps[g + 1].append(("x", ins, None))
                    used[g + 1] += 1
            g += 1
            while used[g + 1] >= 1:
                g += 1
            assert g < N - 30, (tag, g)
            gaps[g + 1].append(("x", p[-1], None))
            used[g + 1] = 2
            issued.append((tag, g))
            g = max(g + 1, g0 + (OPT["qstep"] if late < 30 else 2))
    for c, lst in fill.items():
        g = bar[c]
        for ins in lst:
            k = ins.count(" | ") + 1
            while used[g + 1] + k > 2 or (k > 1 and used[g + 1]):
                g += 1
            for y in ins.split(" | "):
                gaps[g + 1].append(("x", y, None))
            used[g + 1] += k
            assert g < min(bar[c + 1], N - 26), (c, g)
    vm_at = {}
    for c in range(1, 9):
        before = [t for t, gg in issued if gg < bar[c]]
        for t, gg in issued:
            if t in (("W", c), ("X", c)):
                assert gg < bar[c] - 30, (t, gg, bar[c])
        lastneed = max(i for i, t in enumerate(before) if t in (("W", c), ("X", c)))
        vm_at[c] = len(before) - 1 - lastneed
    if OPT["show"]:
        print("bar", bar, "vm", vm_at, "issue", [(t[0] + str(t[1]), g) for t, g in issued if g >= 0], "lastrd", last_rd - (N - 36), file=sys.stderr)
    seq = []
    tf = list(tail_items)
    for i in range(N + 1):
        if i > 0:
            seq.append(("m", mf[i - 1][0], mf[i - 1][1]))
        for c in range(1, 9):
            if bar[c] == i - 1:
                seq.append(("x", f"s_waitcnt vmcnt({vm_at[c]}) lgkmcnt(0)", None))
                seq.append(("x", "s_barrier", None))
                if OPT["diag"]:
                    seq.append(("x", f"v_writelane_b32 v250, s90, {40 + c}", None))
                    seq.append(("x", "s_memtime s[90:91]", None))
        for x in gaps[i]:
            if x[0] == "xw":
                seq.append(("m", "s_nop 0", [("x", x[1][1], t) for t in range(5)]))
            else:
                seq.append(x)
        while tf and tf[0][0] <= i - 1 - (N - 36):
            seq.append(("x", tf.pop(0)[1], None))
    assert not tf
    return add_waits(seq, False), [t for t, _ in issued]


DW = 9
PRE = OPT['pre']
SRD_OUT, SRD_D = SRD_X, SRD_W
sMT, sNT, sBS, sLD, sU, sPA, sCA = sXD, sXS, sWS, sXED, sXES, sCX, sCW
sAI = 32
sSIDE, sRDY, sPF = 38, 39, 40
vBD, vPF, vZ, vPL = 2, 3, 4, 5
vBR, WF, AC = 144, 112, 160


def wslot(s):
    return (1 + s if s < PRE else [1, 2, 3, 4, 5, 6, 0, 7, 8][(s - PRE) % DW]) * HS


def wload(s):
    return [([f"s_add_u32 s{sU}, s{sBS}, {s * 36864}"] if i == 0 else []) +
            [f"s_add_u32 m0, s{sWOF}, {wslot(s) + i * BLK}", "s_nop 0",
             f"buffer_load_dwordx4 v{vD + i}, {srd(SRD_P)}, s{sU} offen lds"] for i in range(4)]


def oreg(s, i):
    n = (s % OPT["DO"]) * 6 + i
    return 4 * n if n < 16 else 128 + 4 * (n - 16) if n < 24 else 64 + 4 * (n - 24)


def oload(s):
    off = f" offset:{(s % 4) * 1024}" if s % 4 else ""
    o = []
    for i in range(6):
        pre = [f"s_add_u32 s{sAI + i}, s{sAI + i}, 4096"] if (s % 4 == 0 and s and not OPT['p3same'] & 2) else []
        o.append(pre + [f"buffer_load_dwordx4 {ar(oreg(s, i), 4)}, v11, {srd(SRD_O)}, s{sAI + i} offen{off}{FLAGS[OPT['oflag']]}"])
    return o


def p3_setup():
    Z = Asm()
    Z(f"s_lshr_b32 s{sU}, s2, 3")
    Z(f"s_mul_i32 s{sPF}, s{sU}, 6912")
    Z(f"s_mul_i32 s{sNT}, s{sU}, 43")
    Z(f"s_lshr_b32 s{sNT}, s{sNT}, 7")
    Z(f"s_mul_i32 s{sMT}, s{sNT}, 3")
    Z(f"s_sub_u32 s{sMT}, s{sU}, s{sMT}")
    if OPT["xmap"] == 1:
        Z(f"s_and_b32 s{sCA}, s2, 1")
        Z(f"s_xor_b32 s{sCA}, s{sCA}, 1")
        Z(f"s_lshl_b32 s{sCA}, s{sCA}, 2")
        Z(f"s_bfe_u32 s{sU}, s2, 0x20001")
        Z(f"s_add_u32 s{sCA}, s{sCA}, s{sU}")
    else:
        Z(f"s_and_b32 s{sCA}, s2, 7")
    Z(f"s_mul_i32 s{sU}, s{sCA}, 3")
    Z(f"s_add_u32 s{sMT}, s{sMT}, s{sU}")
    Z(f"s_lshl_b32 s{sCA}, s{sCA}, 2")
    Z(f"s_add_u32 s{sCA}, s{sCA}, s{sW}")
    Z(f"s_lshl_b32 s{sCA}, s{sCA}, 3")
    Z(f"s_lshl_b32 s{sPA}, s{sB}, 2")
    Z(f"s_lshr_b32 s{sU}, s{sH}, 3")
    Z(f"s_add_u32 s{sPA}, s{sPA}, s{sU}")
    Z(f"s_lshl_b32 s{sPA}, s{sPA}, 3")
    Z(f"v_lshrrev_b32 v{vPF}, 3, v0")
    Z(f"v_mul_u32_u24 v{vBD}, 1152, v{vPF}")
    Z(f"v_lshlrev_b32 v{vPF}, 1, v12")
    Z(f"v_and_b32 v{vZ}, 7, v0")
    Z(f"v_xor_b32 v{vPF}, v{vPF}, v{vZ}")
    Z(f"v_lshl_add_u32 v{vBD}, v{vPF}, 4, v{vBD}")
    Z(f"v_min_u32 v{vPF}, 53, v0")
    Z(f"v_lshlrev_b32 v{vPF}, 7, v{vPF}")
    Z(f"v_mov_b32 v{vZ}, 0")
    Z(f"s_lshl_b32 s{sLD}, s{sW}, 12")
    Z(f"s_mul_i32 s{sBS}, s{sW}, {1024 * 1152}")
    Z(f"s_add_u32 s{sPF}, s{sPF}, s{sBS}")
    Z(f"s_lshl_b32 s{sU}, s{sNT}, 7")
    Z(f"s_add_u32 s{sBS}, s{sBS}, s{sU}")
    Z(f"s_cmp_ge_u32 s2, 216 | s_cselect_b32 s{sBS}, 0x40000000, s{sBS}")
    Z(f"s_mov_b32 s{SRD_OUT}, s{sOUTP}")
    Z(f"s_mov_b32 s{SRD_OUT + 1}, s{sOUTP + 1}")
    Z(f"s_mov_b32 s{SRD_OUT + 2}, {2304 * 1152}")
    Z(f"s_mov_b32 s{SRD_D}, s{sOUTP + 2}")
    Z(f"s_mov_b32 s{SRD_D + 1}, s{sOUTP + 3}")
    Z(f"s_mov_b32 s{SRD_D + 2}, 256")
    if OPT["diag"]:
        Z(f"s_mov_b32 s{sINC}, 16384")
    return [x.strip() for x in Z.l]


def o_bases(oob):
    o = [f"s_mul_i32 s{sAI}, s{sMT}, {6 * QP}", f"s_mul_i32 s{sU}, s{sW}, {GP}", f"s_add_u32 s{sAI}, s{sAI}, s{sU}"]
    if oob:
        o += [f"s_cmp_ge_u32 s{sRDY}, 8", f"s_cselect_b32 s{sAI}, s{sAI}, 0x40000000"]
    o += [f"s_add_u32 s{sAI + i}, s{sAI}, {i * QP}" for i in range(1, 6)]
    return o


def side_block(A):
    A.label("L1_side")
    A(f"s_cmp_eq_u32 s{sSIDE}, 0")
    A("s_cbranch_scc1 L1_side1")
    A(f"s_mov_b32 s{sSIDE}, 2")
    A(f"s_mov_b32 s{sKVS}, 0x40000000")
    A("s_branch L1_back")
    A.label("L1_side1")
    A(f"global_load_dword v{vDUM}, v{vCW}, s[{sPC}:{sPC + 1}]")
    A(f"s_mov_b32 s{sSIDE}, 1")
    A(f"s_mov_b32 s{sCNT}, 0")
    A(f"s_mov_b32 s{sINC}, {2 * 36864}")
    A(f"s_sub_u32 s{sKVS}, s{sBS}, {2 * 36864}")
    A(f"s_mov_b32 s{SRD_K}, s{SRD_P}")
    A(f"s_mov_b32 s{SRD_K + 1}, s{SRD_P + 1}")
    A(f"s_mov_b32 s{SRD_K + 2}, {4096 * 1152}")
    A(f"s_add_u32 s{SRD_V}, s{SRD_P}, 36864")
    A(f"s_addc_u32 s{SRD_V + 1}, s{SRD_P + 1}, 0")
    A(f"s_mov_b32 s{SRD_V + 2}, {4096 * 1152 - 36864}")
    for i in range(4):
        A(f"v_add_u32 v{vD + i}, {i * 9216}, v{vBD}")
    A("s_branch L1_back")


def p3(A, rest):
    DO = OPT["DO"]
    u0, u1 = 253, 254
    vBR = 224
    assert PRE == 4

    def wreg(s):
        return QV + 16 * s if s < PRE else WF + 16 * (s % 2)

    def wreads(s):
        o = wslot(s)
        return [f"ds_read_b64_tr_b16 {vr(wreg(s) + 4 * n + 2 * e, 2)}, v{vBR + 4 * (o // (3 * HS)) + n} offset:{o % (3 * HS) + e * 2 * BLK}"
                for n in range(4) for e in range(2)]

    A(f"v_bfe_u32 v{u0}, v0, 2, 3")
    A(f"v_lshlrev_b32 v{vBR}, 7, v{u0}")
    A(f"v_bfe_u32 v{u0}, v0, 3, 2")
    A(f"v_xor_b32 v{u0}, s{sW}, v{u0}")
    A(f"v_lshl_add_u32 v{vBR}, v{u0}, 5, v{vBR}")
    A(f"v_lshl_add_u32 v{vBR}, v15, 3, v{vBR}")
    A(f"v_lshrrev_b32 v{u0}, 5, v0")
    A(f"v_mul_u32_u24 v{u0}, {BLK}, v{u0}")
    A(f"v_add_u32 v{u0}, s{sWOF}, v{u0}")
    for n_ in range(1, 4):
        A(f"v_xor_b32 v{vBR + n_}, {32 * n_}, v{vBR}")
    for n_ in range(4):
        A(f"v_add_u32 v{vBR + n_}, v{u0}, v{vBR + n_}")
    for k in range(1, 3):
        for n_ in range(4):
            A(f"v_add_u32 v{vBR + 4 * k + n_}, {3 * HS * k}, v{vBR + n_}")
    A("s_waitcnt vmcnt(10)")
    pre = [x for s in range(PRE) for x in wreads(s)]
    cut = len(rest) * OPT["ppos"] // 4
    rest = rest[:cut] + [f"buffer_load_dword v{vPL}, v{vZ}, {srd(SRD_D)}, s{sCA} offen sc1"] + rest[cut:]
    for i in range(8):
        A.ext(pre[4 * i:4 * i + 4])
        A.ext(rest[(i * len(rest)) // 8:((i + 1) * len(rest)) // 8])
    A.ext(o_bases(False))
    stamp(A)
    PW = PRE + OPT["post"]
    assert OPT["post"] <= 6
    if OPT["post"]:
        A("s_waitcnt lgkmcnt(0)")
    for s in range(PRE, PW):
        for p in wload(s):
            A.ext(p)
    A(f"v_mov_b32 v{u0}, 1")
    A(f"s_mov_b32 s{sCNT}, {1 << 22}")
    A("s_waitcnt vmcnt(0) lgkmcnt(0)")
    A("s_barrier")
    if OPT["diag"]:
        A("s_memrealtime s[78:79]")
    A(f"v_readfirstlane_b32 s{sRDY}, v{vPL}")

    def publish(lbl):
        A(f"s_cmp_lg_u32 s{sW}, 0")
        A(f"s_cbranch_scc1 {lbl}")
        A("s_mov_b64 exec, 1")
        A(f"buffer_atomic_add v{u0}, v{vZ}, {srd(SRD_D)}, s{sPA} offen sc1")
        A("s_mov_b64 exec, -1")
        A.label(lbl)

    A("s_cmp_ge_u32 s2, 216")
    A(f"s_cselect_b32 s{sRDY}, 0, s{sRDY}")
    A(f"s_cmp_ge_u32 s{sRDY}, {8 if OPT['fast'] else 999}")
    A("s_cbranch_scc1 L3_fast")
    publish("L3_na1")
    A("s_cmp_ge_u32 s2, 216")
    A("s_cbranch_scc1 L3_help" if OPT["helper"] else "s_cbranch_scc1 L3_done")
    vmq, nfast = [], []
    NW0 = PRE + OPT["wpre"]
    for s in range(PW, NW0):
        for p in wload(s):
            A.ext(p)
    A.label("L3_poll")
    A(f"buffer_load_dword v{u1}, v{vZ}, {srd(SRD_D)}, s{sCA} offen sc1")
    A("s_waitcnt vmcnt(0)")
    A(f"v_readfirstlane_b32 s{sU}, v{u1}")
    A(f"s_sub_u32 s{sCNT}, s{sCNT}, 1")
    A("s_cbranch_scc1 L3_rdy")
    A(f"s_cmp_ge_u32 s{sU}, 8")
    A("s_cbranch_scc1 L3_rdy")
    A(f"s_sleep {OPT['slp']}")
    A("s_branch L3_poll")
    A.label("L3_rdy")
    for s in range(DO):
        for p in oload(s):
            A.ext(p)
            vmq.append(("o", s))
    A("s_branch L3_go")
    A.label("L3_fast")
    seq = [("o", s) for s in range(DO)] + [("w", s) for s in range(PW, NW0)]
    for n_, (k_, s) in enumerate(seq):
        for p in (oload(s) if k_ == "o" else wload(s)):
            A.ext(p)
            nfast.append((k_, s))
        if n_ == 1:
            publish("L3_na2")
    A.label("L3_go")
    if OPT["diag"]:
        A("s_memrealtime s[80:81]")
    OWN = 16

    def accr(n_, i):
        return vr(OWN + 4 * i, 4) if n_ == 0 else ar(AC + 4 * (6 * (n_ - 1) + i), 4)
    vW_, vR_ = 40, 43
    fin = [f"v_lshl_add_u32 v{vW_}, v0, 4, s{sWOF}", f"v_add_u32 v{vW_ + 1}, {2 * HS}, v{vW_}", f"v_add_u32 v{vW_ + 2}, {4 * HS}, v{vW_}"]
    for n_ in range(1, 4):
        fin += [f"s_xor_b32 s{sT0}, s{sW}, {n_}", f"s_mul_i32 s{sT0}, s{sT0}, {4 * BLK}", f"s_add_u32 s{sT0}, s{sT0}, {(n_ - 1) * 2 * HS}",
                f"v_lshl_add_u32 v{vR_ + n_ - 1}, v0, 4, s{sT0}"]
    fin += [f"v_bfe_u32 v10, v0, 4, 1", f"v_lshl_add_u32 v9, v10, 4, v13", f"v_mul_u32_u24 v9, 1152, v9",
            f"v_lshrrev_b32 v10, 5, v0", f"v_lshl_add_u32 v9, v10, 4, v9",
            f"s_mul_i32 s{sT1}, s{sMT}, {96 * 1152}", f"s_lshl_b32 s{sT0}, s{sNT}, 7", f"s_add_u32 s{sT1}, s{sT1}, s{sT0}",
            f"s_lshl_b32 s{sT0}, s{sW}, 5", f"s_add_u32 s{sT1}, s{sT1}, s{sT0}"]
    nw = NW0
    for s in range(32):
        cnt = []
        for q in (vmq, nfast):
            need = [i for i, t in enumerate(q) if t in (("o", s), ("w", s + 1))]
            cnt.append(len(q) - 1 - max(need) if need else 63)
        A(f"s_waitcnt vmcnt({min(min(cnt), 63)}) lgkmcnt(0)")
        rdq = wreads(s + 1) if PRE <= s + 1 < 32 else []
        ld = []
        if nw < 32 and nw - DW <= s:
            ld += [(p, ("w", nw)) for p in wload(nw)]
            nw += 1
        if s >= 1 and s - 1 + DO < 32:
            ld += [(p, ("o", s - 1 + DO)) for p in oload(s - 1 + DO)]
        extra = list(fin) if s == 30 else []
        wq = []
        k = 0
        for n_ in ((1, 2, 3, 0) if s == 31 else range(4)):
            for i in range(6):
                acc = accr(n_, i)
                A(f"{MF} {acc}, {vr(wreg(s) + 4 * n_, 4)}, {ar(oreg(s, i), 4)}, {'0' if s == 0 else acc}")
                k += 1
                if rdq and k % 2 == 1:
                    A(rdq.pop(0))
                if ld and k % 2 == 0:
                    p, tag = ld.pop(0)
                    A.ext(p)
                    vmq.append(tag)
                    nfast.append(tag)
                if extra and k % 2 == 0:
                    A.ext(extra[:3])
                    extra = extra[3:]
                if s == 31:
                    if n_:
                        wq.append(f"ds_write_b128 v{vW_ + n_ - 1}, {acc} offset:{(i // 3) * HS + (i % 3) * 1024}")
                    if k > 8:
                        A(wq.pop(0))
        assert not ld and not rdq and not extra
        A.ext(wq)
    assert nw == 32
    if OPT["diag"]:
        A("s_memrealtime s[82:83]")
    A("s_waitcnt lgkmcnt(0)")
    A("s_barrier")
    R = 48
    for x in range(3):
        for i in (2 * x, 2 * x + 1):
            for n_ in range(1, 4):
                A(f"ds_read_b128 {vr(R + 12 * i + 4 * (n_ - 1), 4)}, v{vR_ + n_ - 1} offset:{(i // 3) * HS + (i % 3) * 1024}")
    for x in range(3):
        A(f"s_waitcnt lgkmcnt({6 * (2 - x)})")
        for i in (2 * x, 2 * x + 1):
            for e in range(4):
                A(f"v_add_f32 v{OWN + 4 * i + e}, v{OWN + 4 * i + e}, v{R + 12 * i + e}")
                A(f"v_add_f32 v{R + 12 * i + 4 + e}, v{R + 12 * i + 4 + e}, v{R + 12 * i + 8 + e}")
            for e in range(4):
                A(f"v_add_f32 v{OWN + 4 * i + e}, v{OWN + 4 * i + e}, v{R + 12 * i + 4 + e}")
        d = 124 + 4 * x
        for e in range(4):
            A(f"v_cvt_pk_bf16_f32 v{d + e}, v{OWN + 8 * x + 2 * e}, v{OWN + 8 * x + 2 * e + 1}")
        A("s_nop 1")
        A(f"v_permlane16_swap_b32 v{d}, v{d + 2}")
        A(f"v_permlane16_swap_b32 v{d + 1}, v{d + 3}")
        A(f"buffer_store_dwordx4 {vr(d, 4)}, v9, {srd(SRD_OUT)}, s{sT1} offen{FLAGS[OPT['outflag']]}")
        A(f"s_add_u32 s{sT1}, s{sT1}, {32 * 1152}")
    if OPT["helper"]:
        A("s_branch L3_done")
        A.label("L3_help")
        sJ, sOB, sWB = sAI, sAI + 1, sAI + 2
        A(f"s_lshr_b32 s{sJ}, s2, 3")
        A(f"s_sub_u32 s{sJ}, s{sJ}, 27")
        A(f"s_mul_i32 s{sT0}, s{sJ}, 58")
        A(f"v_add_u32 v16, s{sT0}, v0")
        A(f"v_min_u32 v16, 287, v16")
        A(f"v_lshlrev_b32 v16, 7, v16")
        A(f"s_mul_i32 s{sWB}, s{sW}, {1024 * 1152}")
        A(f"s_mul_i32 s{sT0}, s{sJ}, 29")
        A(f"v_and_b32 v17, 31, v0")
        A(f"v_add_u32 v17, s{sT0}, v17")
        A(f"v_min_u32 v17, 143, v17")
        A(f"v_lshrrev_b32 v18, 3, v17")
        A(f"s_mov_b32 s{sT0}, {QP}")
        A(f"v_mul_lo_u32 v18, s{sT0}, v18")
        A(f"v_and_b32 v17, 7, v17")
        A(f"v_lshl_add_u32 v17, v17, 7, v18")
        A(f"v_lshrrev_b32 v18, 5, v0")
        A(f"v_lshl_add_u32 v17, v18, 10, v17")
        A(f"s_lshr_b32 s{sOB}, s{sCA}, 5")
        A(f"s_mul_i32 s{sOB}, s{sOB}, {18 * QP}")
        A(f"s_mul_i32 s{sT0}, s{sW}, {GP}")
        A(f"s_add_u32 s{sOB}, s{sOB}, s{sT0}")

        def hw(s_):
            A(f"s_add_u32 s{sT0}, s{sWB}, {s_ * 36864}")
            A(f"buffer_load_dword v{vDUM}, v16, {srd(SRD_P)}, s{sT0} offen")

        def ho(s_):
            A(f"s_add_u32 s{sT0}, s{sOB}, {s_ * 1024}")
            A(f"buffer_load_dword v{vDUM}, v17, {srd(SRD_O)}, s{sT0} offen sc1")
        for s_ in range(NW0, NW0 + OPT["hA"]):
            hw(s_)
        A.label("L3_hpoll")
        A(f"buffer_load_dword v{u1}, v{vZ}, {srd(SRD_D)}, s{sCA} offen sc1")
        A("s_waitcnt vmcnt(0)")
        A(f"v_readfirstlane_b32 s{sU}, v{u1}")
        A(f"s_sub_u32 s{sCNT}, s{sCNT}, 1")
        A("s_cbranch_scc1 L3_done")
        A(f"s_cmp_ge_u32 s{sU}, 8")
        A("s_cbranch_scc1 L3_hgo")
        A(f"s_sleep {OPT['slp']}")
        A("s_branch L3_hpoll")
        A.label("L3_hgo")
        ev = [(s_ - 3, "o", s_) for s_ in range(OPT["ho"], 32, 2)] + [(s_ - DW, "w", s_) for s_ in range(NW0 + OPT["hA"], 32)]
        for _, k_, s_ in sorted(ev):
            (ho if k_ == "o" else hw)(s_)
    A.label("L3_done")


def k1(A):
    A.raw(".p2align 8")
    A.raw(".type attn_kernel,@function")
    A.label("attn_kernel")
    A("s_cmp_ge_u32 s2, 256")
    A("s_cbranch_scc1 L1_end")
    A("s_load_dwordx8 s[32:39], s[0:1], 0")
    A("s_load_dwordx2 s[40:41], s[0:1], 56")
    A("s_load_dwordx2 s[30:31], s[0:1], 32")
    if OPT["tlb"] == 1:
        A("s_load_dwordx4 s[20:23], s[0:1], 40")
    A(f"s_getpc_b64 s[{sPC}:{sPC + 1}]")
    A.label("L1_pc")
    stamp(A)
    if OPT["diag"]:
        A("s_memrealtime s[92:93]")
    if OPT["dspin"]:
        A("s_memrealtime s[62:63]")
    A("s_lshr_b32 s3, s2, 3")
    if OPT["cpf"]:
        A(f"s_lshl_b32 s{sT0}, s3, 11")
        A(f"v_lshl_add_u32 v1, v0, 7, s{sT0}")
        A("v_min_u32 v1, L_code_end-L1_pc-4, v1")
        A("v_cmp_gt_u32 vcc, 16, v0")
        A("s_and_saveexec_b64 s[46:47], vcc")
        A("s_cbranch_execz L1_nocpf")
        A(f"global_load_dword v{vDUM}, v1, s[{sPC}:{sPC + 1}]")
        A.label("L1_nocpf")
        A("s_mov_b64 exec, s[46:47]")
    A("v_lshrrev_b32 v1, 6, v0")
    A("v_and_b32 v0, 63, v0")
    A(f"v_readfirstlane_b32 s{sW}, v1")
    if OPT["xmap"] == 0:
        A(f"s_and_b32 s{sB}, s2, 7")
        A(f"s_mov_b32 s{sH}, s3")
    else:
        A(f"s_and_b32 s{sB}, s2, 1")
        A(f"s_lshl_b32 s{sB}, s{sB}, 2")
        A(f"s_and_b32 s{sT0}, s3, 3")
        A(f"s_add_u32 s{sB}, s{sB}, s{sT0}")
        A(f"s_and_b32 s{sH}, s2, 6")
        A(f"s_lshl_b32 s{sH}, s{sH}, 2")
        A(f"s_lshr_b32 s{sT0}, s3, 2")
        A(f"s_add_u32 s{sH}, s{sH}, s{sT0}")
    A(f"s_and_b32 s{sP}, s{sW}, 1")
    nph = OPT["nph"]
    if nph == 1:
        A(f"s_mov_b32 s{sCW}, 0")
    elif nph == 2:
        A(f"s_add_u32 s{sCW}, s{sB}, s{sH}")
        A(f"s_and_b32 s{sCW}, s{sCW}, 1")
        A(f"s_mul_i32 s{sCW}, s{sCW}, {4 * 128}")
    elif nph == 4:
        A(f"s_add_u32 s{sCW}, s{sB}, s{sH}")
        A(f"s_and_b32 s{sCW}, s{sCW}, 3")
        A(f"s_mul_i32 s{sCW}, s{sCW}, {2 * 128}")
    elif nph == 8:
        A(f"s_lshl_b32 s{sCW}, s{sB}, 1")
        A(f"s_add_u32 s{sCW}, s{sCW}, s{sH}")
        A(f"s_and_b32 s{sCW}, s{sCW}, 7")
        A(f"s_lshl_b32 s{sCW}, s{sCW}, 7")
    elif nph == 5:
        A(f"s_add_u32 s{sCW}, s{sB}, s{sH}")
        A(f"s_and_b32 s{sCW}, s{sCW}, 3")
        A(f"s_mul_i32 s{sCW}, s{sCW}, 9")
        A(f"s_add_u32 s{sCW}, s{sCW}, 2")
        A(f"s_lshr_b32 s{sCW}, s{sCW}, 2")
        A(f"s_lshl_b32 s{sCW}, s{sCW}, 7")
    elif nph == 3:
        A(f"s_add_u32 s{sCW}, s{sB}, s{sH}")
        A(f"s_mul_i32 s{sT0}, s{sCW}, 43")
        A(f"s_lshr_b32 s{sT0}, s{sT0}, 7")
        A(f"s_mul_i32 s{sT0}, s{sT0}, 3")
        A(f"s_sub_u32 s{sCW}, s{sCW}, s{sT0}")
        A(f"s_mul_i32 s{sCW}, s{sCW}, {3 * 128}")
    A(f"s_mov_b32 s{sCX}, s{sCW}")
    t0, t1, t2, g4, i16, r4, cq = 9, 10, 11, 12, 13, 14, 15
    A(f"v_lshrrev_b32 v{g4}, 4, v0")
    A(f"v_and_b32 v{i16}, 15, v0")
    A(f"v_lshrrev_b32 v{t0}, 5, v0")
    A(f"v_lshlrev_b32 v{vWD}, 18, v{t0}")
    A(f"v_and_b32 v{t0}, 1, v{g4}")
    A(f"v_lshl_add_u32 v{vWD}, v{t0}, 15, v{vWD}")
    A(f"v_lshl_add_u32 v{vWD}, v{i16}, 4, v{vWD}")
    A(f"v_lshrrev_b32 v{t0}, 3, v0")
    A(f"v_mul_u32_u24 v{vXD}, 1152, v{t0}")
    A(f"v_and_b32 v{t0}, 7, v0")
    A(f"v_xor_b32 v{t0}, v{t0}, v{g4}")
    A(f"v_lshl_add_u32 v{vXD}, v{t0}, 4, v{vXD}")
    A(f"v_xor_b32 v{vXD + 1}, 64, v{vXD}")
    A(f"s_lshl_b32 s{sT0}, s{sP}, 6")
    A(f"v_xor_b32 v{vXDE}, s{sT0}, v{vXD}")
    A(f"s_lshl_b32 s{sXD}, s{sW}, 13")
    A(f"s_add_u32 s{sXD}, s{sXD}, {XOFF}")
    A(f"s_mul_i32 s{sXS}, s{sW}, {8 * 9216}")
    A(f"s_lshl_b32 s{sXED}, s{sW}, 10")
    A(f"s_add_u32 s{sXED}, s{sXED}, {XEOFF}")
    A(f"s_mul_i32 s{sXES}, s{sW}, 9216")
    A(f"s_add_u32 s{sXES}, s{sXES}, {32 * 9216}")
    A(f"s_lshr_b32 s{sT0}, s{sW}, 1")
    A(f"s_mul_i32 s{sWD}, s{sT0}, {WG1}")
    A(f"s_mul_i32 s{sT0}, s{sP}, {WG0}")
    A(f"s_add_u32 s{sWD}, s{sWD}, s{sT0}")
    A(f"s_lshl_b32 s{sWS}, s{sW}, 16")
    A(f"s_mul_i32 s{sT1}, s{sB}, 331776")
    A(f"s_lshl_b32 s{sT0}, s{sH}, 8")
    A(f"s_mov_b32 s{SRD_X + 2}, 331776")
    A(f"s_mov_b32 s{SRD_X + 3}, 0x20000")
    A(f"s_sub_u32 s{SRD_W + 2}, {576 * 8192}, s{sT0}")
    A(f"s_mov_b32 s{SRD_W + 3}, 0x20000")
    if OPT["fine"]:
        stamp(A)
    A("s_waitcnt lgkmcnt(0)")
    if OPT["fine"]:
        stamp(A)
    A(f"s_add_u32 s{SRD_W}, s38, s{sT0}")
    A(f"s_addc_u32 s{SRD_W + 1}, s39, 0")
    A(f"s_add_u32 s{SRD_X}, s32, s{sT1}")
    A(f"s_addc_u32 s{SRD_X + 1}, s33, 0")
    S = Asm()
    E = A if OPT["tlb"] == 3 else S
    E(f"s_lshl_b32 s{sT1}, s{sB}, 5")
    E(f"s_add_u32 s{sT1}, s{sT1}, s{sH}")
    E(f"s_lshl_b32 s{sT1}, s{sT1}, 19")
    if OPT["tlb"] == 3:
        for r_, p_ in ((SRD_K, 34), (SRD_V, 36)):
            A(f"s_add_u32 s{r_}, s{p_}, s{sT1}")
            A(f"s_addc_u32 s{r_ + 1}, s{p_ + 1}, 0")
            A(f"s_load_dword s{sRDY}, s[{r_}:{r_ + 1}], 0")
    S(f"s_add_u32 s{SRD_K}, s34, s{sT1} | s_addc_u32 s{SRD_K + 1}, s35, 0")
    S(f"s_mov_b32 s{SRD_K + 2}, 524288")
    S(f"s_mov_b32 s{SRD_K + 3}, 0x20000")
    S(f"s_add_u32 s{SRD_V}, s36, s{sT1} | s_addc_u32 s{SRD_V + 1}, s37, 0")
    if OPT["tlb"] == 2:
        S(f"s_load_dword s{sRDY}, s[{SRD_K}:{SRD_K + 1}], 0")
        S(f"s_load_dword s{sRDY}, s[{SRD_V}:{SRD_V + 1}], 0")
    S(f"s_mov_b32 s{SRD_V + 2}, 524288")
    S(f"s_mov_b32 s{SRD_V + 3}, 0x20000")
    S(f"s_add_u32 s{SRD_O}, s40, {OPT['wsoff'] << 20} | s_addc_u32 s{SRD_O + 1}, s41, 0")
    S(f"s_mov_b32 s{SRD_O + 2}, {(DIAG_OFF + (2 << 20)) if OPT['diag'] else WS_O_BYTES}")
    S(f"s_mov_b32 s{SRD_O + 3}, 0x20000")
    S(f"s_mov_b32 s{SRD_P}, s30")
    S(f"s_mov_b32 s{SRD_P + 1}, s31")
    S(f"s_mov_b32 s{SRD_P + 2}, {4096 * 1152}")
    S(f"s_mov_b32 s{SRD_P + 3}, 0x20000")
    S(f"v_bfe_u32 v{r4}, v0, 2, 2")
    S(f"v_and_b32 v{cq}, 3, v0")
    XA, XE, WL, WH = vQA, vQA + 2, vQA + 4, vQA + 5
    S(f"v_lshlrev_b32 v{XE}, 7, v{i16}")
    S(f"v_lshrrev_b32 v{t0}, 1, v{i16}")
    S(f"v_xor_b32 v{t0}, v{t0}, v{g4}")
    S(f"v_lshl_add_u32 v{XE}, v{t0}, 4, v{XE}")
    S(f"v_add_u32 v{XA}, s{sXD}, v{XE}")
    S(f"s_lshr_b32 s{sT1}, s{sW}, 1")
    S(f"s_lshl_b32 s{sT1}, s{sT1}, 11")
    S(f"s_add_u32 s{sT1}, s{sT1}, {XEOFF}")
    S(f"v_add_u32 v{XE}, s{sT1}, v{XE}")
    S(f"v_xor_b32 v{XA + 1}, 64, v{XA}")
    S(f"v_xor_b32 v{XE + 1}, 64, v{XE}")
    S(f"v_lshrrev_b32 v{t0}, 1, v{g4}")
    S(f"v_mul_u32_u24 v{WL}, {WG1}, v{t0}")
    S(f"v_and_b32 v{t0}, 1, v{g4}")
    S(f"v_mul_u32_u24 v{t0}, {WG0}, v{t0}")
    S(f"v_add_u32 v{WL}, v{WL}, v{t0}")
    S(f"v_mul_u32_u24 v{t0}, {XB}, v{r4}")
    S(f"v_add_u32 v{WL}, v{WL}, v{t0}")
    S(f"v_lshl_add_u32 v{WL}, v{cq}, 4, v{WL}")
    S(f"s_lshl_b32 s{sT1}, s{sP}, 7")
    S(f"s_xor_b32 s{sOO}, s{sT1}, 128")
    S(f"v_add_u32 v{WH}, s{sOO}, v{WL}")
    S(f"v_add_u32 v{WL}, s{sT1}, v{WL}")
    for i in range(6):
        S(f"v_add_u32 v{vQA + 6 + i}, {2 * STSZ}, v{vQA + i}")
    S(f"s_lshl_b32 s{sT1}, s{sW}, 12")
    S(f"v_lshl_add_u32 v{vV4}, v0, 4, s{sT1}")
    S(f"s_mul_i32 s{sWOF}, s{sW}, {4 * BLK}")

    def dma_regs(Z):
        for i in range(4):
            Z(f"v_add_u32 v{vD + i}, {i * 1024}, v{vV4}")
    dma_regs(S)
    S(f"v_mul_u32_u24 v{t0}, {BLK}, v{i16}")
    S(f"v_lshl_add_u32 v{t0}, v{g4}, 4, v{t0}")
    S(f"v_lshl_add_u32 v{t1}, v{g4}, 2, v{r4}")
    S(f"v_mul_u32_u24 v{t1}, {BLK}, v{t1}")
    S(f"v_lshl_add_u32 v{t1}, v{cq}, 3, v{t1}")
    for j in range(2):
        S(f"s_xor_b32 s{sT1}, s{sP}, {j}")
        S(f"s_lshl_b32 s{sT1}, s{sT1}, 9")
        S(f"v_add_u32 v{vVB + j}, s{sT1}, v{t1}")
        S(f"s_lshl_b32 s{sOO}, s{sP}, 7")
        S(f"s_add_u32 s{sT1}, s{sT1}, s{sOO}")
        S(f"v_add_u32 v{vKB + 2 * j}, s{sT1}, v{t0}")
        S(f"s_xor_b32 s{sT1}, s{sT1}, 128")
        S(f"v_add_u32 v{vKB + 2 * j + 1}, s{sT1}, v{t0}")
    if OPT["rot"]:
        S(f"s_mul_i32 s{sG0}, s2, {OPT['rot']}")
        S(f"s_lshr_b32 s{sT1}, s2, 4")
        S(f"s_add_u32 s{sG0}, s{sG0}, s{sT1}")
        S(f"s_and_b32 s{sG0}, s{sG0}, 15")
        S(f"s_mul_i32 s{sG0}, s{sG0}, {16384 * 7 // 4 // 16384 * 16384}")
    S(f"s_lshl_b32 s{sWP}, s2, 2")
    S(f"s_add_u32 s{sWP}, s{sWP}, s{sW}")
    S(f"s_mul_i32 s{sWP}, s{sWP}, 4608")
    S(f"v_min_u32 v7, 1, v0")
    S(f"v_lshlrev_b32 v7, 7, v7")
    S(f"s_lshl_b32 s{sDV}, s{sP}, 10")
    S(f"s_sub_u32 s{sDV}, 512, s{sDV}")
    S(f"v_min_u32 v{vCW}, 1, v0")
    S(f"s_lshr_b32 s{sT1}, s2, 3")
    S(f"s_lshl_b32 s{sT1}, s{sT1}, 2")
    S(f"s_add_u32 s{sT1}, s{sT1}, s{sW}")
    S(f"s_lshl_b32 s{sT1}, s{sT1}, 8")
    S(f"v_lshl_add_u32 v{vCW}, v{vCW}, 7, s{sT1}")
    S(f"v_min_u32 v{vCW}, L1_redo-L1_tail, v{vCW}")
    S(f"v_add_u32 v{vCW}, L1_tail-L1_pc, v{vCW}")
    S(f"v_mov_b32 v{t0}, 0x3f803f80")
    S(f"v_cmp_eq_u32 vcc, 0, v{cq}")
    S(f"s_mov_b32 s{sSC}, {QSCALE:#x}")
    S(f"s_mov_b32 s{sREDO}, 0")
    S(f"v_cndmask_b32 v{t0}, 0, v{t0}, vcc")
    for i in range(4):
        S(f"v_accvgpr_write_b32 a{ONES + i}, v{t0}")
    S(f"s_add_u32 s{sT1}, s{sXD}, {2 * STSZ + 6144}")
    S(f"v_lshl_add_u32 v{t0}, v0, 4, s{sT1}")
    S(f"s_xor_b32 s{sT1}, s{sW}, 1")
    S(f"s_lshl_b32 s{sT1}, s{sT1}, 13")
    S(f"s_add_u32 s{sT1}, s{sT1}, {XOFF + 2 * STSZ + 6144}")
    S(f"v_lshl_add_u32 v{t1}, v0, 4, s{sT1}")

    def loop_scalars(Z):
        if OPT["rot"]:
            Z(f"s_add_u32 s{sKVS}, s{sG0}, {DD * 16384}")
        else:
            Z(f"s_mov_b32 s{sKVS}, {DD * 16384}")
        Z(f"s_add_u32 s{sKD}, s{sWOF}, {(NS - 1) * HS}")
        Z(f"s_mov_b32 s{sVD}, s{sWOF}")
        Z(f"s_mov_b32 s{sKN}, {2 * HS}")
        Z(f"s_mov_b32 s{sVN}, {HS}")
        Z(f"s_mov_b32 s{sCNT}, 14")
        Z(f"s_mov_b32 s{sSIDE}, 0")
        if Z is not S or not OPT["diag"]:
            Z(f"s_mov_b32 s{sINC}, 16384")
        if OPT["diag"]:
            Z("s_mov_b32 s41, 31")

    def loop_addr():
        return [f"v_add_u32 v{vK}, {2 * HS}, v{vKB}", f"v_add_u32 v{vK + 1}, {2 * HS}, v{vKB + 1}",
                f"v_mov_b32 v{vK + 2}, v{vKB + 2}", f"v_mov_b32 v{vK + 3}, v{vKB + 3}"]

    loop_scalars(S)
    for i in range(180):
        S(f"v_accvgpr_write_b32 a{i}, 0")
    setup = [x.strip() for x in S.l]
    for i_, p in enumerate(wg_pieces(0) + x_pieces(0)):
        A.ext(p)
        if OPT["fine"] and i_ in (0, 8):
            stamp(A)
    if OPT["fine"]:
        stamp(A)
        A("s_waitcnt vmcnt(12)")
        stamp(A)
        A("s_waitcnt vmcnt(0)")
        stamp(A)
        OPT["diag"] = 2
    npf = 0

    def tlb_touch():
        A(f"v_lshlrev_b32 v{t0}, 18, v0")
        A(f"s_cmp_eq_u32 s{sW}, 1")
        A("s_cbranch_scc1 L1_t1")
        A(f"s_cmp_eq_u32 s{sW}, 2")
        A("s_cbranch_scc1 L1_t2")
        A(f"s_cmp_eq_u32 s{sW}, 3")
        A("s_cbranch_scc1 L1_t3")
        A(f"s_lshl_b32 s{sT1}, s{sB}, 5")
        A(f"s_add_u32 s{sT1}, s{sT1}, s{sH}")
        A(f"s_lshl_b32 s{sT1}, s{sT1}, 19")
        A(f"v_min_u32 v{t0}, {1 << 18}, v{t0}")
        A(f"v_add_u32 v{t0}, s{sT1}, v{t0}")
        A(f"global_load_dword v{vDUM}, v{t0}, s[34:35] nt")
        A(f"global_load_dword v{vDUM}, v{t0}, s[36:37] nt")
        A("s_branch L1_td")
        A.label("L1_t1")
        A(f"v_min_u32 v{t0}, {17 << 18}, v{t0}")
        A(f"global_load_dword v{vDUM}, v{t0}, s[38:39]")
        A(f"global_load_dword v{vDUM}, v{t0}, s[30:31]")
        A("s_branch L1_td")
        A.label("L1_t2")
        A(f"v_lshlrev_b32 v{t1}, 20, v0")
        A(f"v_min_u32 v{t1}, {17 << 20}, v{t1}")
        A(f"v_add_u32 v{t1}, {OPT['wsoff'] << 20}, v{t1}")
        A(f"global_load_dword v{vDUM}, v{t1}, s[40:41] sc1 nt")
        A(f"v_min_u32 v{t0}, {10 << 18}, v{t0}")
        A(f"global_load_dword v{vDUM}, v{t0}, s[20:21] nt")
        A("s_branch L1_td")
        A.label("L1_t3")
        A(f"v_mov_b32 v{t1}, 0")
        A(f"global_load_dword v{vDUM}, v{t1}, s[22:23] sc1")
        A(f"v_min_u32 v{t0}, {10 << 18}, v{t0}")
        A(f"global_load_dword v{vDUM}, v{t0}, s[32:33]")
        A.label("L1_td")

    if OPT["tlb"] == 1:
        tlb_touch()
        npf = 2
    if OPT["pf"]:
        na = OPT["pfa"]
        A(f"v_min_u32 v{t0}, {9 * na - 1}, v0")
        A(f"v_mul_u32_u24 v{t1}, 57, v{t0}")
        A(f"v_lshrrev_b32 v{t1}, 9, v{t1}")
        A(f"v_mul_u32_u24 v{t2}, 9, v{t1}")
        A(f"v_sub_u32 v{t0}, v{t0}, v{t2}")
        A(f"v_mul_u32_u24 v248, 1152, v{t0}")
        A(f"s_and_b32 s{sT1}, s{sH}, 7")
        A(f"s_lshl_b32 s{sT1}, s{sT1}, 2")
        A(f"s_add_u32 s{sT1}, s{sT1}, s{sW}")
        A(f"s_mul_i32 s{sT1}, s{sT1}, {9 * 1152}")
        A(f"v_add_u32 v248, s{sT1}, v248")
        A(f"v_lshl_add_u32 v246, v{t1}, 7, v248")
        A(f"buffer_load_dword v{vDUM}, v246, {srd(SRD_X)}, 0 offen offset:128")
        A(f"v_bfe_u32 v{t0}, v0, 1, 2")
        A(f"v_lshlrev_b32 v249, 13, v{t0}")
        A(f"v_and_b32 v{t0}, 1, v0")
        A(f"v_lshl_add_u32 v249, v{t0}, 7, v249")
        A(f"s_and_b32 s{sT1}, s{sB}, 3")
        A(f"s_lshl_b32 s{sT1}, s{sT1}, 2")
        A(f"s_add_u32 s{sT1}, s{sT1}, s{sW}")
        A(f"s_lshl_b32 s{sT1}, s{sT1}, 15")
        A(f"v_add_u32 v249, s{sT1}, v249")
        A(f"v_lshrrev_b32 v{t0}, 3, v0")
        A(f"v_min_u32 v{t0}, {na - 1}, v{t0}")
        A(f"v_lshl_add_u32 v247, v{t0}, 19, v249")
        A(f"s_mov_b32 s{sT1}, {1 << 19}")
        A(f"buffer_load_dword v{vDUM}, v247, {srd(SRD_W)}, s{sT1} offen")
        npf = 2
    first = []
    for c in range(1, OPT["up"]):
        first += wg_pieces(c) + x_pieces(c)
    per = len(setup) // (len(first) + 1) + 1
    stamp(A)
    for p in [[]] + first:
        A.ext(p)
        for _ in range(per):
            if setup:
                for y in setup.pop(0).split(" | "):
                    A(y)
    assert not setup
    stamp(A)
    A(f"s_waitcnt vmcnt({len(first) + npf})")
    A("s_barrier")
    stamp(A)
    P = lambda n: [item_piece(n, i) for i in range(4)]
    kw = [f"global_load_dword v{vDUM}, v{vCW}, s[{sPC}:{sPC + 1}]"] if OPT["cpf"] else []
    kw = [f"buffer_load_dword v{vDUM}, v7, {srd(SRD_P)}, s{sWP} offen"] if OPT["wopf"] == 2 else []
    if OPT["stg"] == 0:
        extras = {4: P(0), 5: P(1), 6: P(2)}
        al = P(0) + P(1) + P(2)
        if OPT["kvs"] == 1:
            extras = {4: al[0:3], 5: al[3:6], 6: al[6:8], 7: al[8:12]}
        if OPT["kvs"] >= 4:
            extras = {4: al[:OPT["kvs"]]}
            if OPT["kvs"] < 12:
                extras[7] = al[OPT["kvs"]:]
    else:
        extras = {7: P(0) + P(1) + P(2)}
    if DD == 4:
        extras[8] = P(3) + P(4) + P(5)
        late = P(6) + P(7)
        late[0] = kw + late[0]
        late[7] = late[7] + kw
    elif DD == 3:
        extras[8] = P(3)
        late = P(4) + P(5)
        late[7] = late[7] + kw
    else:
        extras[8] = P(3)
        late = [[]] * 8
    if OPT["pf"]:
        for c in range(OPT["pfa"] + 1, 9):
            at = max(0, c - OPT["pf"])
            extras[at] = extras.get(at, []) + [
                [f"buffer_load_dword v{vDUM}, v248, {srd(SRD_X)}, 0 offen offset:{c * 128}"],
                [f"s_mov_b32 s{sT0}, {c << 19}", f"buffer_load_dword v{vDUM}, v249, {srd(SRD_W)}, s{sT0} offen"]]
    if OPT["wopf"] == 1:
        extras[7] = extras.get(7, []) + [[f"v_lshlrev_b32 v253, 7, v0", f"v_min_u32 v253, {35 * 128}, v253",
                      f"buffer_load_dword v{vDUM}, v253, {srd(SRD_P)}, s{sWP} offen"]]

    def conv(t, kk):
        src = ACC + 32 * t + 8 * kk
        dst = QV + 16 * t + 4 * kk
        o = []
        for i in range(4):
            o += [f"v_mul_f32 v{src + 2 * i}, s{sSC}, v{src + 2 * i}", f"v_mul_f32 v{src + 2 * i + 1}, s{sSC}, v{src + 2 * i + 1}"]
        for i in range(4):
            o.append(f"v_cvt_pk_bf16_f32 v{dst + i}, v{src + 2 * i}, v{src + 2 * i + 1}")
        return o

    KF = [184, 224]
    k0reads = [kread(ar(KF[kb] + 4 * kk, 4), vKB, kb, kk) for kb in range(2) for kk in range(4)]
    ti = []

    def spread(lst, g0, g1):
        for i, x in enumerate(lst):
            ti.append((g0 + (i * (g1 - g0)) // len(lst), x))

    spread(conv(4, 0) + conv(0, 0) + conv(1, 0) + conv(2, 0), 13, 22)
    spread(conv(4, 1) + [f"ds_write_b128 v{t0}, {vr(QV + 64, 4)}", f"ds_write_b128 v{t0}, {vr(QV + 68, 4)} offset:1024"]
           + conv(3, 0) + conv(0, 1), 22, 29)
    ti.append((29, "BAR"))
    spread([f"ds_read_b128 {vr(QV + 72, 4)}, v{t1}", f"ds_read_b128 {vr(QV + 76, 4)}, v{t1} offset:1024"] + k0reads[:4]
           + conv(1, 1) + k0reads[4:] + conv(2, 1) + conv(3, 1), 29, 36)
    nb = [i for i, x in enumerate(ti) if x[1] == "BAR"][0]
    ti[nb:nb + 1] = [(29, "VMW"), (29, "s_barrier")]
    qp, issued = build_qproj(extras, OPT["up"], ti, {6: [f"s_load_dwordx4 s[{sOUTP}:{sOUTP + 3}], s[0:1], 40"], 8: p3_setup()})
    vms = [x for x in qp if x.startswith(("buffer_load", "global_load"))]
    lastv0 = max(i for i, x in enumerate(vms) if x == P(1)[3][-1] and i == min(k for k, y in enumerate(vms) if y == x))
    ny = len(vms) - 1 - lastv0
    qp = [(f"s_waitcnt vmcnt({ny}) lgkmcnt(0)" if x == "VMW" else x) for x in qp]
    A.ext(tidy(qp) if OPT['tidy'] else qp)
    stamp(A)
    body, pro, tail, vreads = build_loop()

    def qk0(kb, kk, useneg):
        o = []
        for t in range(5):
            Sx = Sreg(t, 0) + 4 * kb
            C = (vr(NEG + 4 * t, 4) if useneg else "0") if kk == 0 else vr(Sx, 4)
            o.append(f"{MF} {vr(Sx, 4)}, {ar(KF[kb] + 4 * kk, 4)}, {vr(QV + 16 * t + 4 * kk, 4)}, {C}")
        return o

    def mix(mf, fill):
        n = len(mf)
        o = []
        for i, m in enumerate(mf):
            o.append(m)
            o += fill[(i * len(fill)) // n:((i + 1) * len(fill)) // n]
        A.ext(tidy(o) if OPT['tidy'] else o)

    flat = lambda ps: [x for p in ps for x in p]
    pro_rd = [x for x in pro if is_ds(x)]
    pro_sm = [x for x in pro if not is_ds(x)]
    A.ext(conv(0, 2) + flat(late[0:2]) + conv(0, 3))
    A("s_waitcnt lgkmcnt(0)")
    mix(qk0(0, 0, False) + qk0(0, 1, False), conv(1, 2) + conv(2, 2) + conv(3, 2) + flat(late[2:4]))
    mix(qk0(0, 2, False), conv(1, 3) + conv(2, 3) + conv(3, 3))
    A("s_nop 0")
    A.ext(qk0(0, 3, False))
    A.ext(loop_addr())
    A.ext(pro_rd)
    A.ext(flat(late[4:6]))
    for t in range(5):
        Sx = Sreg(t, 0)
        A(f"v_max3_f32 v{vM + t}, v{Sx}, v{Sx + 1}, v{Sx + 2}")
    for t in range(5):
        A(f"v_max_f32 v{vM + t}, v{vM + t}, v{Sreg(t, 0) + 3}")

    def xlane5(Z, op, base, tmp):
        for sw in ("v_permlane32_swap_b32", "v_permlane16_swap_b32"):
            for t in range(5):
                Z(f"v_mov_b32 v{tmp + t}, v{base + t}")
            for t in range(5):
                Z(f"{sw} v{base + t}, v{tmp + t}")
            for t in range(5):
                Z(f"{op} v{base + t}, v{base + t}, v{tmp + t}")

    xlane5(A, "v_max_f32", vM, vM + 8)
    for t in range(5):
        for i in range(4):
            A(f"v_sub_f32 v{NEG + 4 * t + i}, 0, v{vM + t}")
    subs = [f"v_sub_f32 v{Sreg(t, 0) + i}, v{Sreg(t, 0) + i}, v{vM + t}" for t in range(5) for i in range(4)]
    kb0regs = {Sreg(t, 0) + i for t in range(5) for i in range(4)}

    def srcs(x):
        return [int(z.strip()[1:]) for z in x.split(None, 1)[1].split(",")[1:]]
    sm0 = [x for x in pro_sm if all(r in kb0regs for r in srcs(x))]
    sm1 = [x for x in pro_sm if x not in sm0]

    def safe(lst):
        lst = list(lst)
        for i in range(1, len(lst) - 1):
            if lst[i].startswith("v_cvt") and lst[i - 1].startswith("v_exp") and lst[i + 1].startswith("v_exp"):
                ia, ib = hazard.I(lst[i]), hazard.I(lst[i + 1])
                if hazard.I(lst[i - 1]).w & ia.r and not (ia.w & (ib.r | ib.w)) and not (ib.w & ia.r):
                    lst[i], lst[i + 1] = lst[i + 1], lst[i]
        o, prev = [], ""
        for x in lst:
            if prev.startswith("v_exp") and x.startswith("v_cvt") and hazard.I(prev).w & hazard.I(x).r:
                o.append("s_nop 0")
            o.append(x)
            prev = x
        return o
    A.ext(flat(late[6:8]))
    mix(flat([qk0(1, kk, True) for kk in range(4)]), subs + safe(sm0))
    A("s_nop 3")
    A.label("L1_presm")
    A.ext(safe(sm1))
    A("s_waitcnt lgkmcnt(0)")
    stamp(A)
    if OPT["dspin"]:
        A("s_memrealtime s[64:65]")
    A.raw(".p2align 6")
    A.label("L1_loop")
    if OPT["diag"]:
        A.ext(diag_top())
    A.ext(body)
    A("s_branch L1_loop")
    errs = hazard.check(body + body, "loop")
    side_block(A)
    A.label("L1_tail")
    T0 = len(A.l)
    if OPT["dspin"]:
        A("s_memrealtime s[66:67]")
    stamp(A)
    ofl = FLAGS[OPT["ostflag"]]
    P0, RC, Lr = B0[1], 148, 48

    def Pt(j, t):
        return vr((P0 if j == 0 else B1) + 8 * t, 4)

    def ones(t):
        return [f"{MF} {ar(LA + 4 * t, 4)}, {ar(ONES, 4)}, {Pt(j, t)}, {ar(LA + 4 * t, 4)}" for j in range(2 if t < 4 else 1)]

    def pv(t):
        return [f"{MF} {ar(OA + 32 * t + 4 * dt, 4)}, {ar(RING + 8 * dt + 4 * j, 4)}, {Pt(j, t)}, {ar(OA + 32 * t + 4 * dt, 4)}"
                for dt in range(8) for j in range(2 if t < 4 else 1)]

    def norm_store(t, tmp, pk):
        o = []
        if t:
            o.append(f"s_add_u32 s{sT0}, s{sT0}, {QP}")
        for s in range(4):
            b = tmp + 8 * s
            for e in range(8):
                o.append(f"v_accvgpr_read_b32 v{b + e}, a{OA + 32 * t + 8 * s + e}")
            if pk:
                for e in range(4):
                    o.append(f"v_pk_mul_f32 {vr(b + 2 * e, 2)}, {vr(b + 2 * e, 2)}, {vr(RC + 2 * t, 2)} op_sel_hi:[1,0]")
            else:
                for e in range(8):
                    o.append(f"v_mul_f32 v{b + e}, v{RC + 2 * t}, v{b + e}")
            for e in range(4):
                o.append(f"v_cvt_pk_bf16_f32 v{b + e}, v{b + 2 * e}, v{b + 2 * e + 1}")
            of = f" offset:{s * 1024}" if s else ""
            o.append(f"buffer_store_dwordx4 {vr(b, 4)}, v{t2}, {srd(SRD_O)}, s{sT0} offen{of}{ofl}")
        return o

    smt = {t: safe([x for tt, x in tail if tt == t]) for t in range(5)}
    assert not smt[4]
    wr = [f"ds_write_b128 v{t0}, {ar(OA + 128 + 4 * i, 4)} offset:{(i // 4) * HS + (i % 4) * 1024}" for i in range(8)]
    misc = [f"s_mul_i32 s{sOO}, s{sB}, 18", f"s_lshl_b32 s{sT0}, s{sW}, 2", f"s_add_u32 s{sT0}, s{sT0}, s{sOO}",
            f"s_mul_i32 s{sT0}, s{sT0}, {QP}", f"s_lshr_b32 s{sKN}, s{sH}, 3", f"s_mul_i32 s{sKN}, s{sKN}, {OPT['gpad']}",
            f"s_lshl_b32 s{sVN}, s{sH}, 12", f"s_add_u32 s{sKN}, s{sKN}, s{sVN}", f"s_add_u32 s{sT0}, s{sT0}, s{sKN}",
            f"v_lshlrev_b32 v{t2}, 4, v0", f"s_add_u32 s{sT1}, s{sWOF}, {TS * HS}", f"v_lshl_add_u32 v{t0}, v0, 4, s{sT1}"]
    lrd = lambda t: [f"v_accvgpr_read_b32 v{Lr + t}, a{LA + 4 * t}", "s_nop 0", f"v_rcp_f32 v{RC + 2 * t}, v{Lr + t}"]
    A.ext(vreads[:12])
    A.ext(smt[0])
    A.ext(misc[:2])
    mix(ones(0), misc[2:8])
    A("s_waitcnt lgkmcnt(4)")
    mix(pv(0)[:4], vreads[12:20])
    A("s_waitcnt lgkmcnt(4)")
    mix(pv(0)[4:8], vreads[20:28])
    A.ext(vreads[28:] + misc[8:] + lrd(0))
    A("s_waitcnt lgkmcnt(8)")
    n0 = norm_store(0, 16, False)
    mix(pv(0)[8:12], n0[:12])
    A("s_waitcnt lgkmcnt(0)")
    mix(pv(0)[12:], n0[12:21])
    mix(ones(4) + pv(4), smt[1] + n0[21:42])
    mix(ones(1) + pv(1), smt[2] + n0[42:63] + smt[3] + wr[:4])
    n1 = norm_store(1, 16, False)
    mix(ones(2) + ones(3) + pv(2), n0[63:] + wr[4:] + lrd(1) + n1[:22])
    st = [f"v_accvgpr_read_b32 v{Lr + t}, a{LA + 4 * t}" for t in range(2, 5)]
    st += [f"s_lshl_b32 s{sT1}, s{sW}, 10", f"s_add_u32 s{sT1}, s{sT1}, {STATS}", f"v_lshl_add_u32 v{t1}, v0, 4, s{sT1}",
           f"v_add_f32 v53, v{Lr}, v{Lr + 1}", f"v_add_f32 v54, v{Lr + 2}, v{Lr + 3}", f"v_add_f32 v53, v53, v{Lr + 4}",
           f"v_add_f32 v53, v53, v54", f"v_mov_b32 v54, {f32bits(2.0 ** OPT['thr']):#x}", f"v_cmp_nlt_f32 vcc, v53, v54",
           f"v_mov_b32 v156, v{Lr + 4}", f"v_mov_b32 v157, v{NEG + 16}", f"v_mov_b32 v159, 0", f"v_cndmask_b32 v158, 0, 1, vcc",
           f"ds_write_b128 v{t1}, {vr(156, 4)}"]
    st += [f"v_rcp_f32 v{RC + 2 * t}, v{Lr + t}" for t in range(2, 4)]
    mix(pv(3), st + n1[22:43])
    A("s_waitcnt lgkmcnt(0)")
    A("s_barrier")
    A(f"s_and_b32 s{sT1}, s{sW}, 2")
    A(f"s_mul_i32 s{sT1}, s{sT1}, {4 * BLK}")
    A(f"s_mul_i32 s{sT2}, s{sP}, {HS}")
    A(f"s_add_u32 s{sT1}, s{sT1}, s{sT2}")
    A(f"s_add_u32 s{sT1}, s{sT1}, {TS * HS}")
    A(f"v_lshl_add_u32 v{t0}, v0, 4, s{sT1}")
    A(f"s_and_b32 s{sT1}, s{sW}, 2")
    A(f"s_lshl_b32 s{sT1}, s{sT1}, 10")
    A(f"v_lshl_add_u32 v{t1}, v0, 4, s{sT1}")
    A(f"v_xor_b32 v1, 2048, v{t1}")
    A(f"v_add_u32 v{t1}, {STATS}, v{t1}")
    A(f"v_add_u32 v1, {STATS}, v1")
    A(f"ds_read_b128 {vr(128, 4)}, v{t1}")
    A(f"ds_read_b128 {vr(132, 4)}, v{t1} offset:1024")
    A(f"ds_read_b128 {vr(136, 4)}, v1")
    A(f"ds_read_b128 {vr(140, 4)}, v1 offset:1024")
    for w in range(2):
        for q in range(4):
            A(f"ds_read_b128 {vr(96 + 16 * w + 4 * q, 4)}, v{t0} offset:{w * 4 * BLK + q * 1024}")
    A.ext(norm_store(1, 16, True)[35:])
    A("s_waitcnt lgkmcnt(0)")
    A("v_or3_b32 v144, v130, v134, v138")
    A("v_or_b32 v144, v144, v142")
    A("v_cmp_ne_u32 vcc, 0, v144")
    A("v_min_f32 v145, v129, v133")
    A("v_sub_f32 v129, v145, v129")
    A("v_sub_f32 v133, v145, v133")
    A("v_exp_f32 v129, v129")
    A("v_exp_f32 v133, v133")
    A(f"s_cmp_lg_u64 vcc, 0")
    A(f"s_cselect_b32 s{sT1}, 1, 0")
    A(f"s_cmp_gt_u32 s{sT1}, s{sREDO}")
    A("s_cbranch_scc1 L1_redo")
    A("v_mul_f32 v145, v128, v129")
    A("v_fmac_f32 v145, v132, v133")
    A("v_rcp_f32 v145, v145")
    A(f"s_lshr_b32 s{sT1}, s{sW}, 1")
    A(f"s_add_u32 s{sT1}, s{sT1}, s{sOO}")
    A(f"s_add_u32 s{sT1}, s{sT1}, 16")
    A(f"s_mul_i32 s{sT1}, s{sT1}, {QP}")
    A(f"s_add_u32 s{sT1}, s{sT1}, s{sKN}")
    A(f"s_lshl_b32 s{sT2}, s{sP}, 11")
    A(f"s_add_u32 s{sT1}, s{sT1}, s{sT2}")
    A("v_mul_f32 v129, v145, v129")
    A("v_mul_f32 v133, v145, v133")
    for e in range(16):
        A(f"v_mul_f32 v{96 + e}, v129, v{96 + e}")
    for e in range(16):
        A(f"v_fmac_f32 v{96 + e}, v133, v{112 + e}")
    for e in range(8):
        A(f"v_cvt_pk_bf16_f32 v{80 + e}, v{96 + 2 * e}, v{96 + 2 * e + 1}")
    for q in range(2):
        of = " offset:1024" if q else ""
        A(f"buffer_store_dwordx4 {vr(80 + 4 * q, 4)}, v{t2}, {srd(SRD_O)}, s{sT1} offen{of}{ofl}")
    rest = norm_store(2, 48, True) + norm_store(3, 16, True)
    if OPT["fuse"]:
        p3(A, rest)
    else:
        A.ext(rest)
    gx = [i for i, x in enumerate(body) if "L1_tail" in x][0]
    errs += hazard.check(body[:gx + 1] + A.l[T0:T0 + 60], "exit")
    if OPT["diag"]:
        if not OPT["fuse"]:
            stamp(A)
        A("s_waitcnt vmcnt(0)")
        stamp(A)
        A("s_memrealtime s[94:95]")
        A("s_waitcnt lgkmcnt(0)")
        A("v_writelane_b32 v250, s92, 62")
        A("v_writelane_b32 v250, s94, 63")
        for i in range(stamp_n[0]):
            A(f"v_writelane_b32 v250, s{sST + 2 * i}, {50 + i}")
        A("v_writelane_b32 v250, s90, 32")
        A("v_writelane_b32 v251, s96, 32")
        A(f"s_lshl_b32 s{sT0}, s2, 2")
        A(f"s_add_u32 s{sT0}, s{sT0}, s{sW}")
        A(f"s_lshl_b32 s{sT0}, s{sT0}, 8")
        A(f"s_add_u32 s{sT0}, s{sT0}, {DIAG_OFF}")
        A(f"v_lshlrev_b32 v{t0}, 2, v0")
        A(f"buffer_store_dword v250, v{t0}, {srd(SRD_O)}, s{sT0} offen")
        A(f"s_add_u32 s{sT0}, s{sT0}, {1 << 19}")
        A(f"buffer_store_dword v251, v{t0}, {srd(SRD_O)}, s{sT0} offen")
        if OPT["fuse"]:
            for i in range(3):
                A(f"v_writelane_b32 v251, s{78 + 2 * i}, {i}")
            A("v_writelane_b32 v251, s94, 3")
            A(f"s_add_u32 s{sT0}, s{sT0}, {1 << 19}")
            A(f"buffer_store_dword v251, v{t0}, {srd(SRD_O)}, s{sT0} offen")
            if OPT["dbg"]:
                for ln, src in ((4, 30), (5, 22), (6, 14), (7, 32)):
                    A(f"v_readlane_b32 s{sT1}, v251, {src}")
                    A("s_nop 3")
                    A(f"v_writelane_b32 v251, s{sT1}, {ln}")
                A("v_subrev_u32 v251, s92, v251")
                A(f"v_lshlrev_b32 v{t0}, 3, v0")
                A("s_cmp_ge_u32 s2, 216")
                A("s_cbranch_scc1 L1_end")
                A("s_mov_b64 exec, 0xff")
                A(f"buffer_atomic_umax v251, v{t0}, {srd(SRD_W)}, 0 offen offset:4")
    if OPT["dspin"]:
        A("s_waitcnt vmcnt(0)")
        A("s_memrealtime s[68:69]")
        A("s_waitcnt lgkmcnt(0)")
        a_, b_ = {1: (62, 62), 2: (64, 62), 3: (66, 64), 4: (68, 66)}[OPT["dspin"]]
        A(f"s_sub_u32 s70, s{a_}, s{b_}")
        A("s_add_u32 s70, s70, 20000")
        A.label("L1_ds")
        A("s_memrealtime s[72:73]")
        A("s_waitcnt lgkmcnt(0)")
        A("s_sub_u32 s71, s72, s62")
        A("s_cmp_lt_u32 s71, s70")
        A("s_cbranch_scc1 L1_ds")
    A.label("L1_end")
    A("s_endpgm")
    A.label("L1_redo")
    A(f"s_mov_b32 s{sREDO}, 1")
    A("s_waitcnt vmcnt(0) lgkmcnt(0)")
    A("s_barrier")
    A("s_load_dwordx4 s[32:35], s[0:1], 8")
    A(f"s_lshl_b32 s{sT1}, s{sB}, 5")
    A(f"s_add_u32 s{sT1}, s{sT1}, s{sH}")
    A(f"s_lshl_b32 s{sT1}, s{sT1}, 19")
    A("s_waitcnt lgkmcnt(0)")
    A(f"s_add_u32 s{SRD_K}, s32, s{sT1}")
    A(f"s_addc_u32 s{SRD_K + 1}, s33, 0")
    A(f"s_mov_b32 s{SRD_K + 2}, 524288")
    A(f"s_add_u32 s{SRD_V}, s34, s{sT1}")
    A(f"s_addc_u32 s{SRD_V + 1}, s35, 0")
    A(f"s_mov_b32 s{SRD_V + 2}, 524288")
    dma_regs(A)
    for n in range(2 * DD):
        for p in P(n):
            A.ext(p)
    for t in range(5):
        A(f"v_mov_b32 v{vM + t}, 0xff800000")
    A(f"v_lshlrev_b32 v{t0}, 8, v{i16}")
    A(f"v_lshl_add_u32 v{t0}, v{g4}, 4, v{t0}")
    A(f"s_lshl_b32 s{sT1}, s{sP}, 7")
    A(f"v_add_u32 v{t0}, s{sT1}, v{t0}")
    A(f"v_xor_b32 v{t1}, 128, v{t0}")
    A(f"s_mov_b32 s{sT1}, 0")
    A.label("L1_mx")
    for kk in range(4):
        o = f" offset:64" if kk & 1 else ""
        A(f"buffer_load_dwordx4 {vr(112 + 4 * kk, 4)}, v{t0 + (kk >> 1)}, {srd(SRD_K)}, s{sT1} offen{o}")
    A("s_waitcnt vmcnt(0)")
    for kk in range(4):
        for t in range(5):
            C = "0" if kk == 0 else vr(16 + 4 * t, 4)
            A(f"{MF} {vr(16 + 4 * t, 4)}, {vr(112 + 4 * kk, 4)}, {vr(QV + 16 * t + 4 * kk, 4)}, {C}")
    A("s_nop 7")
    for t in range(5):
        A(f"v_max3_f32 v{vM + t}, v{vM + t}, v{16 + 4 * t}, v{17 + 4 * t}")
        A(f"v_max3_f32 v{vM + t}, v{vM + t}, v{18 + 4 * t}, v{19 + 4 * t}")
    A(f"s_add_u32 s{sT1}, s{sT1}, 4096")
    A(f"s_cmp_lt_u32 s{sT1}, {4096 if OPT['twice'] else 524288}")
    A("s_cbranch_scc1 L1_mx")
    xlane5(A, "v_max_f32", vM, vM + 8)
    for t in range(5):
        for i in range(4):
            A(f"v_sub_f32 v{NEG + 4 * t + i}, 0, v{vM + t}")
    for i in range(180):
        A(f"v_accvgpr_write_b32 a{i}, 0")
    A.ext(loop_addr())
    loop_scalars(A)
    A("s_barrier")
    A.ext(k0reads)
    A("s_waitcnt lgkmcnt(0)")
    for kb in range(2):
        for kk in range(4):
            A.ext(qk0(kb, kk, True))
    A.ext(pro_rd)
    A("s_nop 7")
    A.ext(safe(sm0))
    A("s_branch L1_presm")
    return errs


def k2(A):
    DEP = 4
    SRD_A, SRD_WO, SRD_OUT = 4, 8, 12
    sW, sMT, sNT, sT0, sT1, sAS, sBS, sLD, sCNT = 16, 17, 18, 19, 20, 21, 22, 23, 24
    vA, vBD, vBR, t0, t1 = 2, 8, 9, 13, 14
    ACC2, ORING, WF = 16, 112, 208
    A.raw(".p2align 8")
    A.raw(".globl oproj_kernel")
    A.raw(".type oproj_kernel,@function")
    A.label("oproj_kernel")
    A(f"s_cmp_ge_u32 s2, {OPT['k2grid']}")
    A("s_cbranch_scc1 L2_end")
    A("s_load_dwordx4 s[32:35], s[0:1], 32")
    A("s_load_dwordx2 s[36:37], s[0:1], 56")
    if OPT["diag"]:
        A("s_memrealtime s[60:61]")
    A("v_lshrrev_b32 v1, 6, v0")
    A("v_and_b32 v0, 63, v0")
    A(f"v_readfirstlane_b32 s{sW}, v1")
    A("s_and_b32 s25, s2, 7")
    A("s_lshr_b32 s26, s2, 3")
    A(f"s_mul_i32 s{sNT}, s26, 43")
    A(f"s_lshr_b32 s{sNT}, s{sNT}, 7")
    A(f"s_mul_i32 s{sT0}, s{sNT}, 3")
    A(f"s_sub_u32 s{sT0}, s26, s{sT0}")
    A(f"s_mul_i32 s{sMT}, s25, 3")
    A(f"s_add_u32 s{sMT}, s{sMT}, s{sT0}")
    A(f"v_lshlrev_b32 v{vA}, 4, v0")
    for i in range(1, 6):
        A(f"v_add_u32 v{vA + i}, {i * 131072}, v{vA}")
    A(f"v_lshrrev_b32 v{t0}, 3, v0")
    A(f"v_mul_u32_u24 v{vBD}, 1152, v{t0}")
    A(f"v_lshrrev_b32 v{t0}, 4, v0")
    A(f"v_lshlrev_b32 v{t0}, 1, v{t0}")
    A(f"v_and_b32 v{t1}, 7, v0")
    A(f"v_xor_b32 v{t0}, v{t0}, v{t1}")
    A(f"v_lshl_add_u32 v{vBD}, v{t0}, 4, v{vBD}")
    A(f"v_lshrrev_b32 v{t0}, 2, v0")
    A(f"v_lshlrev_b32 v{vBR}, 7, v{t0}")
    A(f"v_bfe_u32 v{t0}, v0, 3, 2")
    A(f"v_lshl_add_u32 v{vBR}, v{t0}, 5, v{vBR}")
    A(f"v_and_b32 v{t0}, 3, v0")
    A(f"v_lshl_add_u32 v{vBR}, v{t0}, 3, v{vBR}")
    A(f"s_mul_i32 s{sLD}, s{sW}, {DEP * 4096}")
    A(f"v_add_u32 v{vBR}, s{sLD}, v{vBR}")
    for n in range(1, 4):
        A(f"v_xor_b32 v{vBR + n}, {32 * n}, v{vBR}")
    A("s_waitcnt lgkmcnt(0)")
    A(f"s_mov_b32 s{SRD_A}, s36")
    A(f"s_mov_b32 s{SRD_A + 1}, s37")
    A(f"s_mov_b32 s{SRD_A + 2}, {(DIAG_OFF + (2 << 20)) if OPT['diag'] else WS_O_BYTES}")
    A(f"s_mov_b32 s{SRD_A + 3}, 0x20000")
    A(f"s_mov_b32 s{SRD_WO}, s32")
    A(f"s_mov_b32 s{SRD_WO + 1}, s33")
    A(f"s_mov_b32 s{SRD_WO + 2}, {4096 * 1152}")
    A(f"s_mov_b32 s{SRD_WO + 3}, 0x20000")
    A(f"s_mov_b32 s{SRD_OUT}, s34")
    A(f"s_mov_b32 s{SRD_OUT + 1}, s35")
    A(f"s_mov_b32 s{SRD_OUT + 2}, {2304 * 1152}")
    A(f"s_mov_b32 s{SRD_OUT + 3}, 0x20000")
    A(f"s_mul_i32 s{sAS}, s{sMT}, 786432")
    A(f"s_lshl_b32 s{sT0}, s{sW}, 15")
    A(f"s_add_u32 s{sAS}, s{sAS}, s{sT0}")
    A(f"s_mul_i32 s{sBS}, s{sW}, {1024 * 1152}")
    A(f"s_lshl_b32 s{sT0}, s{sNT}, 7")
    A(f"s_add_u32 s{sBS}, s{sBS}, s{sT0}")
    WN = OPT["k2rot"]
    sA0, sB0, sPH, sI = 27, 28, 29, 30

    def blk_addr():
        return [f"s_add_u32 s{sT1}, s{sI}, s{sPH}", f"s_and_b32 s{sT1}, s{sT1}, {WN - 1}",
                f"s_and_b32 s31, s{sI}, {(~(WN - 1)) & 0xff}", f"s_or_b32 s{sT1}, s{sT1}, s31",
                f"s_mul_i32 s{sBS}, s{sT1}, {DEP * 32 * 1152}", f"s_add_u32 s{sBS}, s{sBS}, s{sB0}",
                f"s_lshl_b32 s{sAS}, s{sT1}, 12", f"s_add_u32 s{sAS}, s{sAS}, s{sA0}", f"s_add_u32 s{sI}, s{sI}, 1"]
    A(f"s_mov_b32 s{sA0}, s{sAS}")
    A(f"s_mov_b32 s{sB0}, s{sBS}")
    A(f"s_mul_i32 s{sPH}, s{sMT}, {OPT['k2mul']}")
    A(f"s_add_u32 s{sPH}, s{sPH}, s{sNT}")
    A(f"s_mov_b32 s{sI}, 0")
    A.ext(blk_addr())

    def loads(d):
        o = []
        for i in range(4):
            o.append([f"s_add_u32 m0, s{sLD}, {d * 4096 + i * 1024}",
                      f"s_add_u32 s{sT0}, s{sBS}, {(32 * d + 8 * i) * 1152}",
                      f"buffer_load_dwordx4 v{vBD}, {srd(SRD_WO)}, s{sT0} offen lds"])
        off = f" offset:{d * 1024}" if d else ""
        for i in range(6):
            o.append([f"buffer_load_dwordx4 {vr(ORING + 24 * d + 4 * i, 4)}, v{vA + i}, {srd(SRD_A)}, s{sAS} offen{off}"])
        return o

    def wreads(d):
        b = WF + 16 * (d % 2)
        return [f"ds_read_b64_tr_b16 {vr(b + 4 * n + 2 * e, 2)}, v{vBR + n} offset:{d * 4096 + e * 2048}"
                for n in range(4) for e in range(2)]

    zi = 0
    for d in range(DEP - 1):
        for g in loads(d):
            A.ext(g)
            for _ in range(4):
                if zi < 96:
                    A(f"v_mov_b32 v{ACC2 + zi}, 0")
                    zi += 1
    assert zi == 96
    A(f"s_mov_b32 s{sCNT}, {32 // DEP}")
    A(f"s_waitcnt vmcnt({10 * (DEP - 2) + 6})")
    if OPT["diag"]:
        A("s_memrealtime s[62:63]")
    A.ext(wreads(0))
    A.label("L2_loop")
    body = []
    Bd = body.append
    for d in range(DEP):
        Bd(f"s_waitcnt vmcnt({10 * (DEP - 3) + 6})")
        body += wreads((d + 1) % DEP)
        Bd("s_waitcnt lgkmcnt(8)")
        b = WF + 16 * (d % 2)
        ld = loads((d - 1) % DEP)
        k = 0
        for n in range(4):
            for i in range(6):
                acc = vr(ACC2 + 4 * (6 * n + i), 4)
                Bd(f"{MF} {acc}, {vr(b + 4 * n, 4)}, {vr(ORING + 24 * d + 4 * i, 4)}, {acc}")
                k += 1
                if ld and k % 2 == 0:
                    body += ld.pop(0)
        if d == 0:
            body += blk_addr()
            Bd(f"s_cmp_eq_u32 s{sCNT}, 1")
            Bd(f"s_cselect_b32 s{sAS}, 0x40000000, s{sAS}")
            Bd(f"s_cselect_b32 s{sBS}, 0x40000000, s{sBS}")
    Bd(f"s_sub_u32 s{sCNT}, s{sCNT}, 1")
    Bd(f"s_cmp_lg_u32 s{sCNT}, 0")
    A.ext(body)
    A("s_cbranch_scc1 L2_loop")
    errs = hazard.check(body + body, "k2loop")
    if OPT["diag"]:
        A("s_memrealtime s[64:65]")
    A("s_waitcnt vmcnt(0) lgkmcnt(0)")
    A("s_barrier")
    A(f"s_mul_i32 s{sT0}, s{sW}, 24576")
    A(f"v_lshl_add_u32 v{t0}, v0, 4, s{sT0}")
    A("s_nop 7")
    for q in range(24):
        A(f"ds_write_b128 v{t0}, {vr(ACC2 + 4 * q, 4)} offset:{q * 1024}")
    A(f"v_and_b32 v{t0}, 15, v0")
    A(f"v_lshlrev_b32 v{t0}, 4, v{t0}")
    A(f"v_bfe_u32 v{t1}, v0, 4, 1")
    A(f"v_lshl_add_u32 v{t0}, v{t1}, 9, v{t0}")
    A(f"v_lshrrev_b32 v{t1}, 5, v0")
    A(f"v_lshl_add_u32 v{t0}, v{t1}, 10, v{t0}")
    A(f"s_mul_i32 s{sT0}, s{sW}, {6 * 1024}")
    A(f"v_add_u32 v{t0}, s{sT0}, v{t0}")
    A(f"v_add_u32 v{t1}, 49152, v{t0}")
    A("s_waitcnt lgkmcnt(0)")
    A("s_barrier")
    for w in range(4):
        for x in range(3):
            for q in range(2):
                A(f"ds_read_b128 {vr(ORING + 24 * w + 8 * x + 4 * q, 4)}, v{t0 if w < 2 else t1} offset:{(w % 2) * 24576 + x * 2048 + q * 256}")
        if w % 2 == 1:
            A("s_waitcnt lgkmcnt(0)")
    for w in range(1, 4):
        for e in range(24):
            A(f"v_add_f32 v{ORING + e}, v{ORING + e}, v{ORING + 24 * w + e}")
    for e in range(12):
        A(f"v_cvt_pk_bf16_f32 v{ACC2 + e}, v{ORING + 2 * e}, v{ORING + 2 * e + 1}")
    A(f"v_and_b32 v{t0}, 15, v0")
    A(f"v_lshrrev_b32 v{t1}, 5, v0")
    A(f"v_lshl_add_u32 v{t0}, v{t1}, 4, v{t0}")
    A(f"v_mul_u32_u24 v{t0}, 1152, v{t0}")
    A(f"v_bfe_u32 v{t1}, v0, 4, 1")
    A(f"v_lshl_add_u32 v{t0}, v{t1}, 4, v{t0}")
    A(f"s_mul_i32 s{sAS}, s{sMT}, {96 * 1152}")
    A(f"s_lshl_b32 s{sT0}, s{sNT}, 7")
    A(f"s_add_u32 s{sAS}, s{sAS}, s{sT0}")
    A(f"s_lshl_b32 s{sT0}, s{sW}, 5")
    A(f"s_add_u32 s{sAS}, s{sAS}, s{sT0}")
    for x in range(3):
        A(f"buffer_store_dwordx4 {vr(ACC2 + 4 * x, 4)}, v{t0}, {srd(SRD_OUT)}, s{sAS} offen")
        A(f"s_add_u32 s{sAS}, s{sAS}, {32 * 1152}")
    if OPT["diag"]:
        A("s_waitcnt vmcnt(0)")
        A("s_memrealtime s[66:67]")
        A("s_waitcnt lgkmcnt(0)")
        for i in range(4):
            A(f"v_writelane_b32 v250, s{60 + 2 * i}, {i}")
        A(f"s_lshl_b32 s{sT0}, s2, 2")
        A(f"s_add_u32 s{sT0}, s{sT0}, s{sW}")
        A(f"s_lshl_b32 s{sT0}, s{sT0}, 8")
        A(f"s_add_u32 s{sT0}, s{sT0}, {DIAG_OFF + (1 << 20)}")
        A(f"v_lshlrev_b32 v{t0}, 2, v0")
        A(f"buffer_store_dword v250, v{t0}, {srd(SRD_A)}, s{sT0} offen")
    A.label("L2_end")
    A("s_endpgm")
    return errs


def desc(name, vg, acc, sg=102):
    return f""".p2align 6
.amdhsa_kernel {name}
  .amdhsa_next_free_vgpr {vg}
  .amdhsa_next_free_sgpr {sg}
  .amdhsa_accum_offset {acc}
  .amdhsa_group_segment_fixed_size 0
  .amdhsa_kernarg_size 64
  .amdhsa_user_sgpr_count 2
  .amdhsa_user_sgpr_kernarg_segment_ptr 1
  .amdhsa_system_sgpr_workgroup_id_x 1
.end_amdhsa_kernel
"""


def main():
    A = Asm()
    e = k1(A)
    if not OPT["fuse"]:
        e += k2(A)
    A.label("L_code_end")
    e += hazard.check(A.l, "linear")
    for x in e:
        print(x, file=sys.stderr)
    hdr = f"""; MHA block (q projection + cached attention + output projection) for gfx950, one launch.
; kernarg: x, k_cache, v_cache, wq, wo, out, debug, ws   (bf16 in / out)
;
;  1. q^T = wq^T x^T through LDS-DMA staged chunks, scaled by log2(e)/sqrt(128) in fp32, rounded once to bf16
;     m = row max over the first 16 keys.  m <= true max, so nothing can underflow early; after the sweep the row
;  3. o (bf16, MFMA fragment order) goes to ws with write-through stores; per (batch, 8 heads) counters in d_debug
; @launch kernel=attn_kernel grid=(256,1,1) block=(256,1,1) lds={LDS1}
.amdgcn_target "amdgcn-amd-amdhsa--gfx950"
.text
.globl attn_kernel
"""
    txt = hdr + "\n".join(A.l) + "\n.section .rodata,\"a\"\n" + desc("attn_kernel", 512, 256) + ("" if OPT["fuse"] else desc("oproj_kernel", 256, 256))
    open(sys.argv[1], "w").write(txt)
    if e and not (OPT["nodma"] or OPT["nomf"]):
        sys.exit(1)


main()
```

```python
import math
import struct
import sys

import hazard

OPT = dict(diag=0, L=6, W=2, xmap=1, nodma=0, nobar=0, kvflag=1, ostflag=2, wopf=2, wsh=8,
           k2grid=216, LQ=7, dmastep=16, gY=140, thr=32, show=0, qstep=5, up=2, qpflag=0, dbg=0, cpf=1, nph=5, k2rot=1, D=3, pf=0, stg=0, pfa=4, kvs=0, rot=0, k2mul=1, fuse=1, dst=0, DO=4, oflag=2, early=5, l2pf=0, fast=1, wsoff=0, twice=0, nomf=0, pad=0, tlb=0, eord=0, fine=0, wflag=0, p3same=0, chain=1, LG=30, LM=12, SO=4, gB=3, e1a=9, e1b=70, LMB=10, dma0=6, wa=8, b2=1, lp=0, lp0=4, wpg=75, noin=0, al8=0, vm2=1, bcap=0, tidy=1, x6d=0, outflag=0, pre=4, slp=4, ppos=4, wpre=9, qpad=4352, gpad=1152, dspin=0, helper=0, hA=6, ho=4, post=0, tail2=1)
for a in sys.argv[2:]:
    k, v = a.split("=")
    OPT[k] = int(v)
FLAGS = ['', ' nt', ' sc1', ' sc0 sc1', ' sc1 nt', ' sc0 sc1 nt', ' sc0']

BLK = 1056
HS = 16 * BLK
DD = OPT['D']
NS = 2 * DD + 1
TS = 7
STATS = 9 * HS
assert DD == 3
XB = 1088
WOFF, XEOFF, XOFF = 0, 17408, 21504
WG0 = 4 * XB + OPT["wsh"]
WG1 = 8720
STSZ = 54272
LDS1 = 163840
GP = 32768 + OPT['gpad']
QP = 4 * GP + OPT['qpad']
WS_O_BYTES = 144 * QP
DIAG_OFF = 64 << 20


def f32bits(x):
    return struct.unpack("<I", struct.pack("<f", x))[0]


QSCALE = f32bits(128 ** -0.5 * math.log2(math.e))


class Asm:
    def __init__(self):
        self.l = []

    def __call__(self, s):
        if " | buffer_store" in s:
            for x in s.split(" | "):
                self.l.append("    " + x)
        else:
            self.l.append("    " + s)

    def label(self, s):
        self.l.append(s + ":")

    def raw(self, s):
        self.l.append(s)

    def ext(self, lst):
        for s in lst:
            self(s)


def vr(a, n):
    return f"v[{a}:{a + n - 1}]"


def ar(a, n):
    return f"a[{a}:{a + n - 1}]"


def srd(n):
    return f"s[{n}:{n + 3}]"


MF = "v_mfma_f32_16x16x32_bf16"

SRD_X, SRD_W, SRD_K, SRD_V, SRD_O, SRD_P = 4, 8, 12, 16, 20, 84
sW, sP, sB, sH = 24, 25, 27, 28
sXD, sXS, sWD, sWS, sT0, sT1 = 42, 43, 44, 45, 46, 47
sXED, sXES = 48, 55
sCNT = 49
sKD, sVD, sKVS, sKN, sVN = 50, 51, 52, 53, 54
sSC = 56
sT2 = 57
sOUTP = 32
sWP = 30
sG0 = 31
sDV = 3
sOO = 58
sREDO = 59
sST = 60
sWOF = 88
sCX, sCW = 89, 100
sPC = 98
sXSc, sWSc, sXEc = 29, 26, 101

vXD, vXDE, vWD, vCW, vV4 = 2, 4, 5, 6, 8
vQA = 160
ACC = 16
B0 = [16, 56]
B1 = 96
NEG = 128
QV = 160
vKB, vVB = 240, 244
vK, vV = 148, 152
vM = 96
vDUM = 252
OA, LA, ONES, RING = 0, 160, 180, 192
XF = [184, 204]
WRING = 224


def Sreg(t, par):
    assert par == 0
    return B0[0] + 8 * t


stamp_n = [0]


def stamp_txt():
    if OPT["diag"] == 1:
        n = stamp_n[0]
        stamp_n[0] += 1
        assert n < 12
        return [f"s_memtime s[{sST + 2 * n}:{sST + 2 * n + 1}]"]
    return []


def stamp(A):
    A.ext(stamp_txt())


def is_ds(x):
    return x.startswith("ds_")


def add_waits(seq, cyclic, W=1, nfr=None):
    rep = 2 if cyclic else 1
    out = []
    issued = 0
    done = 0
    last = {}
    for it in range(rep):
        out = []
        for e in seq:
            if e[0] == "x":
                if is_ds(e[1]):
                    issued += 1
                    if e[2] is not None:
                        last[e[2]] = issued
                if "lgkmcnt(0)" in e[1] or e[1] == "VMW":
                    done = issued
                out.append(e[1])
            else:
                need = 0
                for f in e[2]:
                    if f in last:
                        need = max(need, last[f])
                if need > done:
                    tgt = need
                    for f in e[3] if len(e) > 3 else []:
                        if f in last and last[f] > need - 40:
                            tgt = max(tgt, last[f])
                    n = issued - tgt
                    if n > 15:
                        n = 15
                        tgt = issued - 15
                    out.append(f"s_waitcnt lgkmcnt({n})")
                    done = tgt
                if e[1] is not None:
                    out.append(e[1])
    return out


vD = 246
sINC = 60 if not OPT["diag"] else 26
sWI = 61 if not OPT["diag"] else 29
sKP = 64 if not OPT["diag"] else 34


def tidy(lst):
    import re
    out, gap = [], []

    def flush(seen_mfma):
        g = list(gap)
        gap.clear()
        if not seen_mfma or any(x.startswith(("s_barrier", "s_cbranch", "s_branch")) or x.endswith(":") for x in g):
            return g
        if g and re.fullmatch(r"s_waitcnt lgkmcnt\(\d+\)", g[-1]) and not any("waitcnt" in x for x in g[:-1]):
            n = int(g[-1][18:-1]) - sum(is_ds(x) for x in g[:-1])
            if n >= 0:
                g = [f"s_waitcnt lgkmcnt({n})"] + g[:-1]
        ch = True
        while ch:
            ch = False
            for i in range(len(g) - 1):
                a, b = g[i], g[i + 1]
                if a.startswith("v_") and b.startswith(("ds_", "s_add", "s_mov", "s_lshl", "s_mul", "s_sub", "s_min", "s_and")):
                    ia, ib = hazard.I(a), hazard.I(b)
                    if not (ia.w & (ib.r | ib.w)) and not (ib.w & ia.r):
                        g[i], g[i + 1] = b, a
                        ch = True
        return g
    seen = False
    for x in lst:
        if x.startswith("v_mfma"):
            out += flush(seen)
            out.append(x)
            seen = True
        else:
            gap.append(x)
    out += gap
    return out


def kv_piece(dst, srdn, i):
    return [f"s_add_u32 m0, s{dst}, {i * BLK}",
            f"buffer_load_dwordx4 v{vD + i}, {srd(srdn)}, s{sKVS} offen{FLAGS[OPT['kvflag']]} lds"]


def item_piece(n, i):
    o = f" offset:{i * 1024}" if i else ""
    return [f"s_add_u32 m0, s{sWOF}, {(n % NS) * HS + i * (BLK - 1024)}",
            (f"s_add_u32 s{sT0}, s{sG0}, {(n // 2) * 16384}" if OPT["rot"] else f"s_mov_b32 s{sT0}, {(n // 2) * 16384}"),
            f"buffer_load_dwordx4 v{vV4}, {srd(SRD_V if n % 2 else SRD_K)}, s{sT0} offen{o}{FLAGS[OPT['kvflag']]} lds"]


def adv(r, tmp=None):
    tmp = sT2 if tmp is None else tmp
    return [f"s_add_u32 s{r}, s{r}, {2 * HS}", f"s_sub_u32 s{tmp}, s{r}, {NS * HS}", f"s_min_u32 s{r}, s{r}, s{tmp}"]


def kread(dst, base, kb, kk):
    return f"ds_read_b128 {dst}, v{base + (kk >> 1)} offset:{kb * 256 + (kk & 1) * 64}"


VC, VN = 1000, 2000


def realize(x, par):
    import re

    def f(m):
        n = int(m.group(0))
        if n >= VN:
            return str(B0[1 - par] + n - VN)
        return str(B0[par] + n - VC)
    return re.sub(r"(?<![\w:x])[12]0\d\d(?=[\]:,\s]|$)|(?<=v)[12]0\d\d|(?<=[\[:])[12]0\d\d(?=[\]:])", f, x) if x.startswith("v_") else x


def build_loop():
    NF = 32
    mf = []
    qk_end, pv_first = {}, {}

    def S(j, t, nxt=False):
        return (B1 + 8 * t) if j == 1 else ((VN if nxt else VC) + 8 * t)
    for ph, jn in ((0, 1), (1, 0)):
        tiles = range(5) if jn == 0 else range(4)
        for kb in range(2):
            for t in tiles:
                for kk in range(4):
                    f = 8 * ph + kb * 4 + kk
                    Sx = S(jn, t, True) + 4 * kb
                    C = vr(NEG + 4 * t, 4) if kk == 0 else vr(Sx, 4)
                    mf.append(dict(t=f"{MF} {vr(Sx, 4)}, {ar(RING + 4 * (f % 16), 4)}, {vr(QV + 16 * t + 4 * kk, 4)}, {C}", f=f))
                    qk_end[(jn, t, kb)] = len(mf) - 1
        if ph == 0:
            gX = len(mf) - 1
    for dt in range(8):
        for t in range(5):
            for j in range(2 if t < 4 else 1):
                f = 16 + 2 * dt + j
                O = ar(OA + 32 * t + 4 * dt, 4)
                mf.append(dict(t=f"{MF} {O}, {ar(RING + 4 * (f % 16), 4)}, {vr(S(j, t), 4)}, {O}", f=f))
                pv_first.setdefault((j, t), len(mf) - 1)
        x = dt - 2
        if 0 <= x < 5:
            for j in range(2 if x < 4 else 1):
                Lr = ar(LA + 4 * x, 4)
                mf.append(dict(t=f"{MF} {Lr}, {ar(ONES, 4)}, {vr(S(j, x), 4)}, {Lr}", f=16 + 2 * dt))
    N = len(mf)
    assert N == 153
    first_use, last_use = {}, {}
    for i, m in enumerate(mf):
        first_use.setdefault(m["f"], i)
        last_use[m["f"]] = i

    def wsz(f):
        return (OPT['wa'] if f < 8 else 4) if f < 16 else 2
    cap = [2] * N
    scal = [None] * N
    for f in range(NF):
        if f % wsz(f) == 0:
            scal[(first_use[f] - 1) % N] = ("W", [(f + k) % NF for k in range(wsz(f))])
    scal[N - 2], scal[N - 1] = scal[N - 1], ("B",)
    cap[N - 1] = 0
    assert scal[gX - 1] is None and scal[gX - 2] is None
    scal[gX - 1], scal[gX] = scal[gX], ("P", 1, "s_cbranch_scc1 L1_tail")
    scal[gX - 2] = ("P", 1, f"s_cmp_eq_u32 s{sSIDE}, 2")
    gB = OPT["gB"]
    nvm = 8 + (1 if OPT["wopf"] == 2 else 0)
    assert scal[gB - 1] is None and scal[gB] is None
    scal[gB - 1] = ("T", f"s_waitcnt vmcnt({(DD - 2) * nvm})")
    scal[gB] = ("T", "s_barrier")
    cap[gB] = OPT["bcap"]
    gY = OPT["gY"]
    assert scal[gY] is None and scal[gY - 1] is None
    scal[gY - 1] = ("P", 0, f"s_sub_u32 s{sCNT}, s{sCNT}, 1")
    scal[gY] = ("P", 0, "s_cbranch_scc1 L1_side | L1_back:")
    e1a, e1b = OPT["e1a"], OPT["e1b"]
    ok = [g for g in range(-N, 2 * N) if cap[g % N] == 2]
    place, taken = {}, set()
    for j, lo, hi in ((1, e1a, e1b), (0, e1b + 2 - N, e1a - 2)):
        keys = [(j, t, kb, r) for kb in range(2) for t in (range(5) if j == 0 else range(4)) for r in range(4)]
        gs = []
        for k in range(len(keys)):
            want = lo + k * (hi - lo) / (len(keys) - 1.0)
            g = min((x for x in ok if x % N not in taken and lo <= x <= hi), key=lambda x: abs(x - want))
            taken.add(g % N)
            gs.append(g)
        for key, g in zip(keys, sorted(gs)):
            place[key] = g
    for (j, t, kb, r), g in place.items():
        assert g >= qk_end[(j, t, kb)] + 6 - (N if j == 0 else 0), (j, t, kb, r, g)
        assert g <= pv_first[(j, t)] - 5, (j, t, kb, r, g)
        cap[g % N] = 0

    def frag_reads(f):
        dst = RING + 4 * (f % 16)
        if f < 16:
            kb, kk = divmod(f % 8, 4)
            return [kread(ar(dst, 4), vK + (2 if f < 8 else 0), kb, kk)]
        dt, j = divmod(f - 16, 2)
        return [f"ds_read_b64_tr_b16 {ar(dst + 2 * e, 2)}, v{vV + j} offset:{e * 256 + dt * 32}" for e in range(2)]

    items = []

    def add(name, lo, hi, text, kind=None, chain=None, after=()):
        items.append(dict(n=name, lo=lo, hi=hi, t=text, k=kind, c=chain, a=list(after)))

    for (j, t, kb, r), g in sorted(place.items(), key=lambda z: z[1]):
        if r % 2 == 1:
            Sx = S(j, t)
            add(f"c{j}{t}{kb}{r}", g + 1, min(g + 14, pv_first[(j, t)] - 3),
                f"v_cvt_pk_bf16_f32 v{Sx + 2 * kb + r // 2}, v{Sx + 4 * kb + r - 1}, v{Sx + 4 * kb + r}", ("cvt", j, t), "cvt")
    LG, LM = OPT["LG"], OPT["LM"]
    add("v0", 0, 30, f"v_add_u32 v{vV}, s{sVN}, v{vVB}", None, None)
    add("v1", 0, 31, f"v_add_u32 v{vV + 1}, s{sVN}, v{vVB + 1}", None, None)
    for f in range(NF):
        fu = first_use[f - f % wsz(f)]
        lo = max(fu - LG, last_use[(f + 16) % NF] - (N if f < 16 else 0))
        if 8 <= f < 16:
            lo = max(lo, gB + 1)
        if f >= 16:
            lo = max(lo, gX + 1)
        for e, x in enumerate(frag_reads(f)):
            add(f"r{f}_{e}", lo, fu - (OPT["LMB"] if 8 <= f < 12 else LM), x, ("rd", f), "rd", ["v0", "v1"] if f >= 16 else [])
    add("k1a", 0, 100, f"v_add_u32 v{vK + 2}, s{sDV}, v{vK}", None, None, ["r5_0"])
    add("k1b", 0, 100, f"v_add_u32 v{vK + 3}, s{sDV}, v{vK + 1}", None, None, ["r7_0"])
    st = OPT["dmastep"]
    g = gB + OPT["dma0"]
    prevd = None
    for nm, dst, srdn in (("V", sVD, SRD_V), ("K", sKD, SRD_K)):
        for i in range(4):
            pc = kv_piece(dst, srdn, i)
            add(f"m{nm}{i}", g, g + 10, pc[0], "m0", "dma", [prevd] if prevd else [])
            prevd = f"d{nm}{i}"
            add(f"d{nm}{i}", g + 1, g + 14, pc[1], "dma", "dma")
            g += st
    add("svd", 0, 140, f"s_add_u32 s{sVD}, s{sKN}, s{sWOF}", None, "ak", ["dV3"])
    for i, x in enumerate(adv(sKN)):
        add(f"ak{i}", 0, 142 + i, x, None, "ak")
    add("k0a", 0, 148, f"v_add_u32 v{vK}, s{sKN}, v{vKB}", None, None, ["ak2", "r13_0", "k1a"])
    add("k0b", 0, 148, f"v_add_u32 v{vK + 1}, s{sKN}, v{vKB + 1}", None, None, ["ak2", "r15_0", "k1b"])
    for i, x in enumerate(adv(sVN, sT1)):
        add(f"av{i}", 0, 144 + i, x, None, "av", ["v0", "v1"])
    for i, x in enumerate(adv(sKD, sT0)):
        add(f"ad{i}", 0, 148 + i, x, None, "ad", ["dK3"])
    add("kvs", gY + 1, 151, f"s_add_u32 s{sKVS}, s{sKVS}, s{sINC}", None, None, ["dK3"])
    if OPT["wopf"] == 2:
        add("wp", OPT["wpg"], gY - 6, f"buffer_load_dword v{vDUM}, v7, {srd(SRD_P)}, s{sWP} offen", None, "wp")
        add("wpa", 0, gY - 2, f"s_add_u32 s{sWP}, s{sWP}, s{sWI}", None, "wp", ["wp"])
    NP = 5
    pend = []
    for p in range(NP):
        for i, x in enumerate(items):
            pend.append(dict(x, p=p, i=i, lo=x["lo"] + p * N, hi=x["hi"] + p * N))
    chains = {}
    for x in pend:
        chains.setdefault(x["c"] or ("solo", x["n"]), []).append(x)
    at, out = {}, {}
    for g in range(-N, (NP + 1) * N):
        free = cap[g % N]
        sfree = scal[g % N] is None
        while free or sfree:
            cands = []
            for c, q in chains.items():
                if not q:
                    continue
                x = q[0]
                if x["lo"] > g or any((a_, x["p"]) not in at for a_ in x["a"]):
                    continue
                if x["k"] == "dma" and at[("m" + x["n"][1:], x["p"])] == g:
                    continue
                if x["t"].startswith("s_") and not sfree:
                    continue
                if not x["t"].startswith("s_") and not free:
                    continue
                if any(at[(a_, x["p"])] == g for a_ in x["a"]):
                    continue
                if x["t"].startswith("buffer") and (g % N == gB - 1 or free < 2):
                    continue
                cands.append(x)
            if not cands:
                break
            x = min(cands, key=lambda x: (x["hi"], x["i"]))
            chains[x["c"] or ("solo", x["n"])].pop(0)
            at[(x["n"], x["p"])] = g
            out.setdefault(g, []).append(x)
            if x["t"].startswith("s_"):
                sfree = False
            else:
                free -= 2 if x["t"].startswith("buffer") else 1
    for x in items:
        assert at[(x["n"], 2)] - 2 * N == at[(x["n"], 3)] - 3 * N, ("not periodic", x)
        assert at[(x["n"], 2)] - 2 * N <= x["hi"], ("late", x, at[(x["n"], 2)] - 2 * N)
    rel = {x["n"]: at[(x["n"], 2)] - 2 * N for x in items}
    assert rel["dK3"] < gY - 1 and rel["r31_1"] < N
    assert rel["k1a"] < rel["r0_0"] + N and rel["k1b"] < rel["r2_0"] + N
    assert first_use[8 - wsz(0)] <= gB - 1
    assert rel["v0"] < gX and rel["v1"] < gX
    gaps = [[] for _ in range(N)]
    cls = lambda t: 0 if t.startswith("s_") else 1 if t.startswith(("ds_", "buffer")) else 2
    nx = lambda t: __import__("re").sub(r"v10(\d\d)", r"v20\1", t)
    for g in range(N):
        for x in sorted(out.get(2 * N + g, []), key=lambda x: cls(x["t"])):
            n = x["p"] == 3
            gaps[g].append((nx(x["t"]) if n else x["t"], "n" if n else "", x["k"]))
            assert x["p"] in (2, 3), x
    for (j, t, kb, r), g in place.items():
        Sx = S(j, t, g < 0) + 4 * kb + r
        gaps[g % N].append((f"v_exp_f32 v{Sx}, v{Sx}", "n" if g < 0 else "", ("sm", j, t)))
    seq, pro, tail = [], [], []
    for par in range(2):
        for i, m in enumerate(mf):
            if i == 0 and par == 1 and OPT["diag"]:
                for y in diag_top():
                    seq.append(("x", y, None))
            seq.append(("m", realize(m["t"], par), [m["f"]]))
            sc_ = scal[i]
            if sc_ and sc_[0] == "W":
                seq.append(("m", None, sc_[1]))
            elif sc_ and sc_[0] == "T":
                seq.append(("x", sc_[1], None))
            elif sc_ and sc_[0] == "P" and sc_[1] == par:
                seq.append(("x", sc_[2], None))
            for x in gaps[i]:
                isrd = isinstance(x[2], tuple) and x[2][0] == "rd"
                seq.append(("x", realize(x[0], par), x[2][1] if isrd else None))
                if par == 1 and x[1] == "n":
                    assert isinstance(x[2], tuple), x
                    pro.append(realize(x[0], 1))
                if par == 1 and i >= gX and x[1] != "n" and isinstance(x[2], tuple):
                    if x[2][0] in ("sm", "cvt"):
                        tail.append((x[2][2], realize(x[0], 1)))
    body = add_waits(seq, True)
    body = [y for x in body for y in x.split(" | ")]
    if OPT["show"]:
        print("gaps:", "".join("E" if any(y[0].startswith("v_exp") for y in g_) else str(len(g_)) for g_ in gaps), file=sys.stderr)
        print("instr", len(body), "dma", [rel[f"d{n}{i}"] for n in "VK" for i in range(4)],
              "leads", [first_use[f - f % wsz(f)] - rel[f"r{f}_{1 if f >= 16 else 0}"] for f in range(NF)],
              "pro", len(pro), "tail", len(tail), file=sys.stderr)
    if OPT["al8"]:
        body = align8(body)
    vreads = [x for f in range(16, 32) for x in frag_reads(f)]
    return body, pro, tail, vreads


def isize(x):
    import re
    if x.endswith(":"):
        return 0
    if x.startswith(("v_mfma", "ds_", "buffer_", "v_cvt_pk")) or "_e64" in x:
        return 8
    ops = x.split(None, 1)[1] if " " in x else ""
    lit = [o.strip() for o in ops.split(",") if re.fullmatch(r"\s*(0x[0-9a-f]+|\d+)\s*", o)]
    if not x.startswith(("s_waitcnt", "s_nop", "s_barrier", "s_cbranch", "s_branch")) and any(int(l, 0) > 64 for l in lit):
        return 8
    return 4


def align8(body):
    out = list(body)
    pos, lastv = 0, None
    i = 0
    while i < len(out):
        x = out[i]
        sz = isize(x)
        if sz == 8 and pos % 8 == 4 and lastv is not None:
            op, rest = out[lastv].split(None, 1)
            out[lastv] = op + "_e64 " + rest
            pos += 4
        if sz == 8:
            lastv = None
        elif sz == 4 and x.startswith(("v_exp", "v_add_u32")):
            lastv = i
        pos += sz
        i += 1
    return out


def diag_top():
    if OPT["noin"]:
        return []
    return ["s_mov_b32 m0, s41", "s_sub_u32 s41, s41, 1", "v_writelane_b32 v250, s90, m0", "v_writelane_b32 v251, s96, m0",
            "s_memtime s[90:91]", "s_memrealtime s[96:97]"]


def cursor(r):
    return [f"s_add_u32 s{r}, s{r}, 128", f"s_sub_u32 s{sT2}, s{r}, 1152", f"s_min_u32 s{r}, s{r}, s{sT2}"]


def x_pieces(c):
    st = STG[c] * STSZ
    p = []
    for i in range(8):
        pre = [f"s_add_u32 s{sXSc}, s{sXS}, s{sCX}"] + cursor(sCX) if i == 0 else []
        p.append(pre + [f"s_add_u32 m0, s{sXD}, {st + i * 1024}",
                        (f"s_add_u32 s{sT0}, s{sXSc}, {i * 9216}" if i else "s_nop 0"),
                        f"buffer_load_dwordx4 v{vXD + (i & 1)}, {srd(SRD_X)}, s{sT0 if i else sXSc} offen{FLAGS[OPT['qpflag']]} lds"])
    return p


def wg_pieces(c):
    st = STG[c] * STSZ
    p = []
    for r in range(4):
        pre = [f"s_lshl_b32 s{sWSc}, s{sCW}, 12", f"s_add_u32 s{sWSc}, s{sWSc}, s{sWS}",
               f"s_add_u32 s{sXEc}, s{sXES}, s{sCW}"] + cursor(sCW) if r == 0 else []
        p.append(pre + [f"s_add_u32 m0, s{sWD}, {st + WOFF + r * XB}",
                        (f"s_add_u32 s{sT0}, s{sWSc}, {r * 8192}" if r else "s_nop 0"),
                        f"buffer_load_dwordx4 v{vWD}, {srd(SRD_W)}, s{sT0 if r else sWSc} offen{FLAGS[OPT['qpflag']]} lds"])
    p.append([f"s_add_u32 m0, s{sXED}, {st}", "s_nop 0",
              f"buffer_load_dwordx4 v{vXDE}, {srd(SRD_X)}, s{sXEc} offen{FLAGS[OPT['qpflag']]} lds"])
    return p


STG = [[0, 2, 1, 0, 2, 1, 2, 1, 2], [0, 1, 2, 0, 1, 2, 0, 1, 2]][OPT['stg']]


def build_qproj(extras, nup, tail_items, fill):
    LQ = OPT["LQ"]
    mf = []
    first_use, last_use = {}, {}
    for s in range(18):
        for sl in range(8):
            f = ("w", 8 * s + sl)
            tiles = range(5) if sl < 4 else range(4)
            for t in tiles:
                a = ACC + 32 * t + 4 * sl
                C = "0" if s == 0 else vr(a, 4)
                txt = f"{MF} {vr(a, 4)}, {ar(WRING + 4 * sl, 4)}, {ar(XF[s % 2] + 4 * t, 4)}, {C}"
                mf.append((txt, [f, ("x", s, t)]))
                for q in (f, ("x", s, t)):
                    first_use.setdefault(q, len(mf) - 1)
                    last_use[q] = len(mf) - 1
    N = len(mf)
    gaps = [[] for _ in range(N + 1)]

    def st_of(c):
        return (6, 0) if STG[c] == 2 else (0, STG[c] * STSZ)

    def wread(n):
        s, sl = divmod(n, 8)
        c, ks = divmod(s, 2)
        rb, st = st_of(c)
        kk, u = divmod(sl, 2)
        base = vQA + rb + (4 if kk < 2 else 5)
        return [(f"ds_read_b64_tr_b16 {ar(WRING + 4 * sl + 2 * e, 2)}, v{base} offset:{st + (kk & 1) * 64 + 8 * u + e * 256 + ks * 512}",
                 ("w", n)) for e in range(2)]

    def xread(s, t):
        c, ks = divmod(s, 2)
        rb, st = st_of(c)
        if t < 4:
            return (f"ds_read_b128 {ar(XF[s % 2] + 4 * t, 4)}, v{vQA + rb + ks} offset:{st + t * 2048}", ("x", s, t))
        return (f"ds_read_b128 {ar(XF[s % 2] + 16, 4)}, v{vQA + rb + 2 + ks} offset:{st}", ("x", s, t))

    bar = {0: -1, 9: N}
    for c in range(1, 9):
        bar[c] = last_use[("w", 16 * c - LQ + 1)]
    items = []
    for n in range(144):
        c = n // 16
        e = last_use[("w", n - 8)] if n >= 8 else -1
        tg = first_use[("w", n - LQ)] if n >= LQ else -1
        tg = max(tg, e, bar[c])
        for x in wread(n):
            items.append((tg, x))
    rd = sorted(items, key=lambda z: z[0])
    xi = []
    for s in range(18):
        c, ks = divmod(s, 2)
        for t in range(5):
            e = last_use[("x", s - 2, t)] if s >= 2 else -1
            tg = max(e, bar[c])
            if s == 1:
                tg = 0
            if OPT["b2"] and ks == 1 and t == 4 and s > 1:
                tg = max(tg, last_use[("x", s - 2, 3)])
            xi.append((tg, xread(s, t)))
    allrd = sorted([(tg, 0, i, x) for i, (tg, x) in enumerate(xi)] + [(tg, 1, i, x) for i, (tg, x) in enumerate(rd)],
                   key=lambda z: (z[0], z[1], z[2]))
    used = [0] * (N + 2)
    xdone = {}
    g = -1
    for tg, _, _, x in allrd:
        g = max(g, tg)
        if g < 0 and used[0] >= 9:
            g = 0
        wgt = 2 if (OPT["b2"] and "b128" in x[0] and g >= 0) else 1
        while g >= 0 and used[g + 1] + wgt > 2:
            g += 1
        gaps[g + 1].append(("x", x[0], x[1]))
        used[g + 1] += wgt
        if x[1][0] == "x":
            xdone[x[1][1]] = g
        cc = x[1][1] // 16 if x[1][0] == "w" else x[1][1] // 2
        assert g < bar[cc + 1] - 2, (x, g, bar[cc + 1])
    last_rd = g
    sused = [0] * (N + 2)
    groups = []
    for c in range(nup, 9):
        prev = [p for p in range(c) if STG[p] == STG[c]]
        ew = bar[prev[-1] + 1] if prev else -1
        ex = xdone[2 * prev[-1] + 1] + 10 if prev else -1
        if c == 6:
            ex += OPT["x6d"]
        groups.append((ew, 0, c, wg_pieces(c), ("W", c), None))
        groups.append((ex, 2, c, x_pieces(c), ("X", c), prev[-1] if prev else None))
    for c, ps in extras.items():
        groups.append((bar[c] + (45 if (OPT["eord"] and c < 8) else 0), 1, c, ps, ("E", c), None))
    groups.sort(key=lambda z: (z[0], z[2] if z[0] < 0 else 0, z[1]))
    for kind in "WX":
        cs = [z[4][1] for z in groups if z[4][0] == kind]
        assert cs == sorted(cs), cs
    issued = []
    for c in range(nup):
        issued += [(("W", c), -1)] * 5 + [(("X", c), -1)] * 8
        if c == 0 and (OPT["pf"] or OPT["tlb"] == 1):
            issued += [(("P", 0), -1)] * 2
    g = 0
    for tg, _, _, ps, tag, prev in groups:
        for i, p in enumerate(ps):
            late = g - tg
            g = max(g, tg)
            g0 = g
            if i == 0 and prev is not None:
                while used[g + 1] >= 1:
                    g += 1
                gaps[g + 1].append(("xw", ("x", 2 * prev + 1)))
                used[g + 1] += 2
            for ins in p[:-1]:
                if ins == "s_nop 0":
                    continue
                if ins.startswith("s_"):
                    while sused[g + 1] + max(0, used[g + 1] - 1) >= 2 or (sused[g + 1] and used[g + 1] >= 2):
                        g += 1
                    gaps[g + 1].insert(sused[g + 1], ("x", ins, None))
                    sused[g + 1] += 1
                else:
                    while used[g + 1] >= 2:
                        g += 1
                    gaps[g + 1].append(("x", ins, None))
                    used[g + 1] += 1
            g += 1
            while used[g + 1] >= 1:
                g += 1
            assert g < N - 30, (tag, g)
            gaps[g + 1].append(("x", p[-1], None))
            used[g + 1] = 2
            issued.append((tag, g))
            g = max(g + 1, g0 + (OPT["qstep"] if late < 30 else 2))
    for c, lst in fill.items():
        g = bar[c]
        for ins in lst:
            k = ins.count(" | ") + 1
            while used[g + 1] + k > 2 or (k > 1 and used[g + 1]):
                g += 1
            for y in ins.split(" | "):
                gaps[g + 1].append(("x", y, None))
            used[g + 1] += k
            assert g < min(bar[c + 1], N - 26), (c, g)
    vm_at = {}
    for c in range(1, 9):
        before = [t for t, gg in issued if gg < bar[c]]
        for t, gg in issued:
            if t in (("W", c), ("X", c)):
                assert gg < bar[c] - 30, (t, gg, bar[c])
        lastneed = max(i for i, t in enumerate(before) if t in (("W", c), ("X", c)))
        vm_at[c] = len(before) - 1 - lastneed
    if OPT["show"]:
        print("bar", bar, "vm", vm_at, "issue", [(t[0] + str(t[1]), g) for t, g in issued if g >= 0], "lastrd", last_rd - (N - 36), file=sys.stderr)
    seq = []
    tf = list(tail_items)
    for i in range(N + 1):
        if i > 0:
            seq.append(("m", mf[i - 1][0], mf[i - 1][1]))
        for c in range(1, 9):
            if bar[c] == i - 1:
                seq.append(("x", f"s_waitcnt vmcnt({vm_at[c]}) lgkmcnt(0)", None))
                seq.append(("x", "s_barrier", None))
                if OPT["diag"]:
                    seq.append(("x", f"v_writelane_b32 v250, s90, {40 + c}", None))
                    seq.append(("x", "s_memtime s[90:91]", None))
        for x in gaps[i]:
            if x[0] == "xw":
                seq.append(("m", "s_nop 0", [("x", x[1][1], t) for t in range(5)]))
            else:
                seq.append(x)
        while tf and tf[0][0] <= i - 1 - (N - 36):
            seq.append(("x", tf.pop(0)[1], None))
    assert not tf
    return add_waits(seq, False), [t for t, _ in issued]


DW = 9
PRE = OPT['pre']
SRD_OUT, SRD_D = SRD_X, SRD_W
sMT, sNT, sBS, sLD, sU, sPA, sCA = sXD, sXS, sWS, sXED, sXES, sCX, sCW
sAI = 32
sSIDE, sRDY, sPF = 38, 39, 40
vBD, vPF, vZ, vPL = 2, 3, 4, 5
vBR, WF, AC = 144, 112, 160


def wslot(s):
    return (1 + s if s < PRE else [1, 2, 3, 4, 5, 6, 0, 7, 8][(s - PRE) % DW]) * HS


def wload(s):
    return [([f"s_add_u32 s{sU}, s{sBS}, {s * 36864}"] if i == 0 else []) +
            [f"s_add_u32 m0, s{sWOF}, {wslot(s) + i * BLK}", "s_nop 0",
             f"buffer_load_dwordx4 v{vD + i}, {srd(SRD_P)}, s{sU} offen lds"] for i in range(4)]


def oreg(s, i):
    n = (s % OPT["DO"]) * 6 + i
    return 4 * n if n < 16 else 128 + 4 * (n - 16) if n < 24 else 64 + 4 * (n - 24)


def oload(s):
    off = f" offset:{(s % 4) * 1024}" if s % 4 else ""
    o = []
    for i in range(6):
        pre = [f"s_add_u32 s{sAI + i}, s{sAI + i}, 4096"] if (s % 4 == 0 and s and not OPT['p3same'] & 2) else []
        o.append(pre + [f"buffer_load_dwordx4 {ar(oreg(s, i), 4)}, v11, {srd(SRD_O)}, s{sAI + i} offen{off}{FLAGS[OPT['oflag']]}"])
    return o


def p3_setup():
    Z = Asm()
    Z(f"s_lshr_b32 s{sU}, s2, 3")
    Z(f"s_mul_i32 s{sPF}, s{sU}, {max(OPT['lp'], 1) * 1152}")
    Z(f"s_mul_i32 s{sNT}, s{sU}, 43")
    Z(f"s_lshr_b32 s{sNT}, s{sNT}, 7")
    Z(f"s_mul_i32 s{sMT}, s{sNT}, 3")
    Z(f"s_sub_u32 s{sMT}, s{sU}, s{sMT}")
    if OPT["xmap"] == 1:
        Z(f"s_and_b32 s{sCA}, s2, 1")
        Z(f"s_xor_b32 s{sCA}, s{sCA}, 1")
        Z(f"s_lshl_b32 s{sCA}, s{sCA}, 2")
        Z(f"s_bfe_u32 s{sU}, s2, 0x20001")
        Z(f"s_add_u32 s{sCA}, s{sCA}, s{sU}")
    else:
        Z(f"s_and_b32 s{sCA}, s2, 7")
    Z(f"s_mul_i32 s{sU}, s{sCA}, 3")
    Z(f"s_add_u32 s{sMT}, s{sMT}, s{sU}")
    Z(f"s_lshl_b32 s{sCA}, s{sCA}, 2")
    Z(f"s_add_u32 s{sCA}, s{sCA}, s{sW}")
    Z(f"s_lshl_b32 s{sCA}, s{sCA}, 3")
    Z(f"s_lshl_b32 s{sPA}, s{sB}, 2")
    Z(f"s_lshr_b32 s{sU}, s{sH}, 3")
    Z(f"s_add_u32 s{sPA}, s{sPA}, s{sU}")
    Z(f"s_lshl_b32 s{sPA}, s{sPA}, 3")
    Z(f"v_lshrrev_b32 v{vPF}, 3, v0")
    Z(f"v_mul_u32_u24 v{vBD}, 1152, v{vPF}")
    Z(f"v_lshlrev_b32 v{vPF}, 1, v12")
    Z(f"v_and_b32 v{vZ}, 7, v0")
    Z(f"v_xor_b32 v{vPF}, v{vPF}, v{vZ}")
    Z(f"v_lshl_add_u32 v{vBD}, v{vPF}, 4, v{vBD}")
    Z(f"v_min_u32 v{vPF}, {max(OPT['lp'], 1) * 9 - 1}, v0")
    Z(f"v_lshlrev_b32 v{vPF}, 7, v{vPF}")
    Z(f"v_mov_b32 v{vZ}, 0")
    Z(f"s_lshl_b32 s{sLD}, s{sW}, 12")
    Z(f"s_mul_i32 s{sBS}, s{sW}, {1024 * 1152}")
    Z(f"s_add_u32 s{sPF}, s{sPF}, s{sBS}")
    Z(f"s_lshl_b32 s{sU}, s{sNT}, 7")
    Z(f"s_add_u32 s{sBS}, s{sBS}, s{sU}")
    Z(f"s_cmp_ge_u32 s2, 216 | s_cselect_b32 s{sBS}, 0x40000000, s{sBS}")
    Z(f"s_mov_b32 s{SRD_OUT}, s{sOUTP}")
    Z(f"s_mov_b32 s{SRD_OUT + 1}, s{sOUTP + 1}")
    Z(f"s_mov_b32 s{SRD_OUT + 2}, {2304 * 1152}")
    Z(f"s_mov_b32 s{SRD_D}, s{sOUTP + 2}")
    Z(f"s_mov_b32 s{SRD_D + 1}, s{sOUTP + 3}")
    Z(f"s_mov_b32 s{SRD_D + 2}, 256")
    if OPT["diag"]:
        Z(f"s_mov_b32 s{sINC}, 16384")
        Z(f"s_mov_b32 s{sWI}, 160")
    return [x.strip() for x in Z.l]


def o_bases(oob):
    o = [f"s_mul_i32 s{sAI}, s{sMT}, {6 * QP}", f"s_mul_i32 s{sU}, s{sW}, {GP}", f"s_add_u32 s{sAI}, s{sAI}, s{sU}"]
    if oob:
        o += [f"s_cmp_ge_u32 s{sRDY}, 8", f"s_cselect_b32 s{sAI}, s{sAI}, 0x40000000"]
    o += [f"s_add_u32 s{sAI + i}, s{sAI}, {i * QP}" for i in range(1, 6)]
    return o


def side_block(A):
    A.label("L1_side")
    A(f"s_cmp_eq_u32 s{sSIDE}, 0")
    A("s_cbranch_scc1 L1_side1")
    A(f"s_mov_b32 s{sSIDE}, 2")
    A(f"s_mov_b32 s{sKVS}, 0x40000000")
    A("s_branch L1_back")
    A.label("L1_side1")
    A(f"global_load_dword v{vDUM}, v{vCW}, s[{sPC}:{sPC + 1}]")
    A(f"s_mov_b32 s{sSIDE}, 1")
    A(f"s_mov_b32 s{sCNT}, 0")
    A(f"s_mov_b32 s{sINC}, {2 * 36864}")
    A(f"s_sub_u32 s{sKVS}, s{sBS}, {2 * 36864}")
    A(f"s_mov_b32 s{SRD_K}, s{SRD_P}")
    A(f"s_mov_b32 s{SRD_K + 1}, s{SRD_P + 1}")
    A(f"s_mov_b32 s{SRD_K + 2}, {4096 * 1152}")
    A(f"s_add_u32 s{SRD_V}, s{SRD_P}, 36864")
    A(f"s_addc_u32 s{SRD_V + 1}, s{SRD_P + 1}, 0")
    A(f"s_mov_b32 s{SRD_V + 2}, {4096 * 1152 - 36864}")
    for i in range(4):
        A(f"v_add_u32 v{vD + i}, {i * 9216}, v{vBD}")
    if OPT["lp"]:
        A(f"v_mov_b32 v7, v{vPF}")
        A(f"s_add_u32 s{sWP}, s{sPF}, {OPT['lp0'] * 36864}")
        A(f"s_mov_b32 s{sWI}, {OPT['lp'] * 36864}")
    A("s_branch L1_back")


def p3(A, rest):
    DO = OPT["DO"]
    u0, u1 = 253, 254
    vBR = 224
    assert PRE == 4

    def wreg(s):
        return QV + 16 * s if s < PRE else WF + 16 * (s % 2)

    def wreads(s):
        o = wslot(s)
        return [f"ds_read_b64_tr_b16 {vr(wreg(s) + 4 * n + 2 * e, 2)}, v{vBR + 4 * (o // (3 * HS)) + n} offset:{o % (3 * HS) + e * 2 * BLK}"
                for n in range(4) for e in range(2)]

    A(f"v_bfe_u32 v{u0}, v0, 2, 3")
    A(f"v_lshlrev_b32 v{vBR}, 7, v{u0}")
    A(f"v_bfe_u32 v{u0}, v0, 3, 2")
    A(f"v_xor_b32 v{u0}, s{sW}, v{u0}")
    A(f"v_lshl_add_u32 v{vBR}, v{u0}, 5, v{vBR}")
    A(f"v_lshl_add_u32 v{vBR}, v15, 3, v{vBR}")
    A(f"v_lshrrev_b32 v{u0}, 5, v0")
    A(f"v_mul_u32_u24 v{u0}, {BLK}, v{u0}")
    A(f"v_add_u32 v{u0}, s{sWOF}, v{u0}")
    for n_ in range(1, 4):
        A(f"v_xor_b32 v{vBR + n_}, {32 * n_}, v{vBR}")
    for n_ in range(4):
        A(f"v_add_u32 v{vBR + n_}, v{u0}, v{vBR + n_}")
    for k in range(1, 3):
        for n_ in range(4):
            A(f"v_add_u32 v{vBR + 4 * k + n_}, {3 * HS * k}, v{vBR + n_}")
    A("s_waitcnt vmcnt(10)")
    pre = [x for s in range(PRE) for x in wreads(s)]
    cut = len(rest) * OPT["ppos"] // 4
    rest = rest[:cut] + [f"buffer_load_dword v{vPL}, v{vZ}, {srd(SRD_D)}, s{sCA} offen sc1"] + rest[cut:]
    for i in range(8):
        A.ext(pre[4 * i:4 * i + 4])
        A.ext(rest[(i * len(rest)) // 8:((i + 1) * len(rest)) // 8])
    A.ext(o_bases(False))
    stamp(A)
    PW = PRE + OPT["post"]
    assert OPT["post"] <= 6
    if OPT["post"]:
        A("s_waitcnt lgkmcnt(0)")
    for s in range(PRE, PW):
        for p in wload(s):
            A.ext(p)
    A(f"v_mov_b32 v{u0}, 1")
    A(f"s_mov_b32 s{sCNT}, {1 << 22}")
    A("s_waitcnt vmcnt(0) lgkmcnt(0)")
    A("s_barrier")
    if OPT["diag"]:
        A("s_memrealtime s[78:79]")
    A(f"v_readfirstlane_b32 s{sRDY}, v{vPL}")

    def publish(lbl):
        A(f"s_cmp_lg_u32 s{sW}, 0")
        A(f"s_cbranch_scc1 {lbl}")
        A("s_mov_b64 exec, 1")
        A(f"buffer_atomic_add v{u0}, v{vZ}, {srd(SRD_D)}, s{sPA} offen sc1")
        A("s_mov_b64 exec, -1")
        A.label(lbl)

    A("s_cmp_ge_u32 s2, 216")
    A(f"s_cselect_b32 s{sRDY}, 0, s{sRDY}")
    A(f"s_cmp_ge_u32 s{sRDY}, {8 if OPT['fast'] else 999}")
    A("s_cbranch_scc1 L3_fast")
    publish("L3_na1")
    A("s_cmp_ge_u32 s2, 216")
    A("s_cbranch_scc1 L3_help" if OPT["helper"] else "s_cbranch_scc1 L3_done")
    vmq, nfast = [], []
    NW0 = PRE + OPT["wpre"]
    for s in range(PW, NW0):
        for p in wload(s):
            A.ext(p)
    A.label("L3_poll")
    A(f"buffer_load_dword v{u1}, v{vZ}, {srd(SRD_D)}, s{sCA} offen sc1")
    A("s_waitcnt vmcnt(0)")
    A(f"v_readfirstlane_b32 s{sU}, v{u1}")
    A(f"s_sub_u32 s{sCNT}, s{sCNT}, 1")
    A("s_cbranch_scc1 L3_rdy")
    A(f"s_cmp_ge_u32 s{sU}, 8")
    A("s_cbranch_scc1 L3_rdy")
    A(f"s_sleep {OPT['slp']}")
    A("s_branch L3_poll")
    A.label("L3_rdy")
    for s in range(DO):
        for p in oload(s):
            A.ext(p)
            vmq.append(("o", s))
    A("s_branch L3_go")
    A.label("L3_fast")
    seq = [("o", s) for s in range(DO)] + [("w", s) for s in range(PW, NW0)]
    for n_, (k_, s) in enumerate(seq):
        for p in (oload(s) if k_ == "o" else wload(s)):
            A.ext(p)
            nfast.append((k_, s))
        if n_ == 1:
            publish("L3_na2")
    A.label("L3_go")
    if OPT["diag"]:
        A("s_memrealtime s[80:81]")
    OWN = 16

    def accr(n_, i):
        return vr(OWN + 4 * i, 4) if n_ == 0 else ar(AC + 4 * (6 * (n_ - 1) + i), 4)
    vW_, vR_ = 40, 43
    fin = [f"v_lshl_add_u32 v{vW_}, v0, 4, s{sWOF}", f"v_add_u32 v{vW_ + 1}, {2 * HS}, v{vW_}", f"v_add_u32 v{vW_ + 2}, {4 * HS}, v{vW_}"]
    for n_ in range(1, 4):
        fin += [f"s_xor_b32 s{sT0}, s{sW}, {n_}", f"s_mul_i32 s{sT0}, s{sT0}, {4 * BLK}", f"s_add_u32 s{sT0}, s{sT0}, {(n_ - 1) * 2 * HS}",
                f"v_lshl_add_u32 v{vR_ + n_ - 1}, v0, 4, s{sT0}"]
    fin += [f"v_bfe_u32 v10, v0, 4, 1", f"v_lshl_add_u32 v9, v10, 4, v13", f"v_mul_u32_u24 v9, 1152, v9",
            f"v_lshrrev_b32 v10, 5, v0", f"v_lshl_add_u32 v9, v10, 4, v9",
            f"s_mul_i32 s{sT1}, s{sMT}, {96 * 1152}", f"s_lshl_b32 s{sT0}, s{sNT}, 7", f"s_add_u32 s{sT1}, s{sT1}, s{sT0}",
            f"s_lshl_b32 s{sT0}, s{sW}, 5", f"s_add_u32 s{sT1}, s{sT1}, s{sT0}"]
    nw = NW0
    for s in range(32):
        cnt = []
        for q in (vmq, nfast):
            need = [i for i, t in enumerate(q) if t in (("o", s), ("w", s + 1))]
            cnt.append(len(q) - 1 - max(need) if need else 63)
        A(f"s_waitcnt vmcnt({min(min(cnt), 63)}) lgkmcnt(0)")
        rdq = wreads(s + 1) if PRE <= s + 1 < 32 else []
        ld = []
        if nw < 32 and nw - DW <= s:
            ld += [(p, ("w", nw)) for p in wload(nw)]
            nw += 1
        if s >= 1 and s - 1 + DO < 32:
            ld += [(p, ("o", s - 1 + DO)) for p in oload(s - 1 + DO)]
        extra = list(fin) if s == 30 else []
        wq = []
        k = 0
        for n_ in ((1, 2, 3, 0) if s == 31 else range(4)):
            for i in range(6):
                acc = accr(n_, i)
                A(f"{MF} {acc}, {vr(wreg(s) + 4 * n_, 4)}, {ar(oreg(s, i), 4)}, {'0' if s == 0 else acc}")
                k += 1
                if rdq and k % 2 == 1:
                    A(rdq.pop(0))
                if ld and k % 2 == 0:
                    p, tag = ld.pop(0)
                    A.ext(p)
                    vmq.append(tag)
                    nfast.append(tag)
                if extra and k % 2 == 0:
                    A.ext(extra[:3])
                    extra = extra[3:]
                if s == 31:
                    if n_:
                        wq.append(f"ds_write_b128 v{vW_ + n_ - 1}, {acc} offset:{(i // 3) * HS + (i % 3) * 1024}")
                    if k > 8:
                        A(wq.pop(0))
        assert not ld and not rdq and not extra
        A.ext(wq)
    assert nw == 32
    if OPT["diag"]:
        A("s_memrealtime s[82:83]")
    A("s_waitcnt lgkmcnt(0)")
    A("s_barrier")
    R = 48
    for x in range(3):
        for i in (2 * x, 2 * x + 1):
            for n_ in range(1, 4):
                A(f"ds_read_b128 {vr(R + 12 * i + 4 * (n_ - 1), 4)}, v{vR_ + n_ - 1} offset:{(i // 3) * HS + (i % 3) * 1024}")
    for x in range(3):
        A(f"s_waitcnt lgkmcnt({6 * (2 - x)})")
        for i in (2 * x, 2 * x + 1):
            for e in range(4):
                A(f"v_add_f32 v{OWN + 4 * i + e}, v{OWN + 4 * i + e}, v{R + 12 * i + e}")
                A(f"v_add_f32 v{R + 12 * i + 4 + e}, v{R + 12 * i + 4 + e}, v{R + 12 * i + 8 + e}")
            for e in range(4):
                A(f"v_add_f32 v{OWN + 4 * i + e}, v{OWN + 4 * i + e}, v{R + 12 * i + 4 + e}")
        d = 124 + 4 * x
        for e in range(4):
            A(f"v_cvt_pk_bf16_f32 v{d + e}, v{OWN + 8 * x + 2 * e}, v{OWN + 8 * x + 2 * e + 1}")
        A("s_nop 1")
        A(f"v_permlane16_swap_b32 v{d}, v{d + 2}")
        A(f"v_permlane16_swap_b32 v{d + 1}, v{d + 3}")
        A(f"buffer_store_dwordx4 {vr(d, 4)}, v9, {srd(SRD_OUT)}, s{sT1} offen{FLAGS[OPT['outflag']]}")
        A(f"s_add_u32 s{sT1}, s{sT1}, {32 * 1152}")
    if OPT["helper"]:
        A("s_branch L3_done")
        A.label("L3_help")
        sJ, sOB, sWB = sAI, sAI + 1, sAI + 2
        A(f"s_lshr_b32 s{sJ}, s2, 3")
        A(f"s_sub_u32 s{sJ}, s{sJ}, 27")
        A(f"s_mul_i32 s{sT0}, s{sJ}, 58")
        A(f"v_add_u32 v16, s{sT0}, v0")
        A(f"v_min_u32 v16, 287, v16")
        A(f"v_lshlrev_b32 v16, 7, v16")
        A(f"s_mul_i32 s{sWB}, s{sW}, {1024 * 1152}")
        A(f"s_mul_i32 s{sT0}, s{sJ}, 29")
        A(f"v_and_b32 v17, 31, v0")
        A(f"v_add_u32 v17, s{sT0}, v17")
        A(f"v_min_u32 v17, 143, v17")
        A(f"v_lshrrev_b32 v18, 3, v17")
        A(f"s_mov_b32 s{sT0}, {QP}")
        A(f"v_mul_lo_u32 v18, s{sT0}, v18")
        A(f"v_and_b32 v17, 7, v17")
        A(f"v_lshl_add_u32 v17, v17, 7, v18")
        A(f"v_lshrrev_b32 v18, 5, v0")
        A(f"v_lshl_add_u32 v17, v18, 10, v17")
        A(f"s_lshr_b32 s{sOB}, s{sCA}, 5")
        A(f"s_mul_i32 s{sOB}, s{sOB}, {18 * QP}")
        A(f"s_mul_i32 s{sT0}, s{sW}, {GP}")
        A(f"s_add_u32 s{sOB}, s{sOB}, s{sT0}")

        def hw(s_):
            A(f"s_add_u32 s{sT0}, s{sWB}, {s_ * 36864}")
            A(f"buffer_load_dword v{vDUM}, v16, {srd(SRD_P)}, s{sT0} offen")

        def ho(s_):
            A(f"s_add_u32 s{sT0}, s{sOB}, {s_ * 1024}")
            A(f"buffer_load_dword v{vDUM}, v17, {srd(SRD_O)}, s{sT0} offen sc1")
        for s_ in range(NW0, NW0 + OPT["hA"]):
            hw(s_)
        A.label("L3_hpoll")
        A(f"buffer_load_dword v{u1}, v{vZ}, {srd(SRD_D)}, s{sCA} offen sc1")
        A("s_waitcnt vmcnt(0)")
        A(f"v_readfirstlane_b32 s{sU}, v{u1}")
        A(f"s_sub_u32 s{sCNT}, s{sCNT}, 1")
        A("s_cbranch_scc1 L3_done")
        A(f"s_cmp_ge_u32 s{sU}, 8")
        A("s_cbranch_scc1 L3_hgo")
        A(f"s_sleep {OPT['slp']}")
        A("s_branch L3_hpoll")
        A.label("L3_hgo")
        ev = [(s_ - 3, "o", s_) for s_ in range(OPT["ho"], 32, 2)] + [(s_ - DW, "w", s_) for s_ in range(NW0 + OPT["hA"], 32)]
        for _, k_, s_ in sorted(ev):
            (ho if k_ == "o" else hw)(s_)
    A.label("L3_done")


def k1(A):
    A.raw(".p2align 8")
    A.raw(".type attn_kernel,@function")
    A.label("attn_kernel")
    A("s_cmp_ge_u32 s2, 256")
    A("s_cbranch_scc1 L1_end")
    A("s_load_dwordx8 s[32:39], s[0:1], 0")
    A("s_load_dwordx2 s[40:41], s[0:1], 56")
    A("s_load_dwordx2 s[30:31], s[0:1], 32")
    if OPT["tlb"] == 1:
        A("s_load_dwordx4 s[20:23], s[0:1], 40")
    A(f"s_getpc_b64 s[{sPC}:{sPC + 1}]")
    A.label("L1_pc")
    stamp(A)
    if OPT["diag"]:
        A("s_memrealtime s[92:93]")
    if OPT["dspin"]:
        A("s_memrealtime s[62:63]")
    A("s_lshr_b32 s3, s2, 3")
    if OPT["cpf"]:
        A(f"s_lshl_b32 s{sT0}, s3, 11")
        A(f"v_lshl_add_u32 v1, v0, 7, s{sT0}")
        A("v_min_u32 v1, L_code_end-L1_pc-4, v1")
        A("v_cmp_gt_u32 vcc, 16, v0")
        A("s_and_saveexec_b64 s[46:47], vcc")
        A("s_cbranch_execz L1_nocpf")
        A(f"global_load_dword v{vDUM}, v1, s[{sPC}:{sPC + 1}]")
        A.label("L1_nocpf")
        A("s_mov_b64 exec, s[46:47]")
    A("v_lshrrev_b32 v1, 6, v0")
    A("v_and_b32 v0, 63, v0")
    A(f"v_readfirstlane_b32 s{sW}, v1")
    if OPT["xmap"] == 0:
        A(f"s_and_b32 s{sB}, s2, 7")
        A(f"s_mov_b32 s{sH}, s3")
    else:
        A(f"s_and_b32 s{sB}, s2, 1")
        A(f"s_lshl_b32 s{sB}, s{sB}, 2")
        A(f"s_and_b32 s{sT0}, s3, 3")
        A(f"s_add_u32 s{sB}, s{sB}, s{sT0}")
        A(f"s_and_b32 s{sH}, s2, 6")
        A(f"s_lshl_b32 s{sH}, s{sH}, 2")
        A(f"s_lshr_b32 s{sT0}, s3, 2")
        A(f"s_add_u32 s{sH}, s{sH}, s{sT0}")
    A(f"s_and_b32 s{sP}, s{sW}, 1")
    nph = OPT["nph"]
    if nph == 1:
        A(f"s_mov_b32 s{sCW}, 0")
    elif nph == 2:
        A(f"s_add_u32 s{sCW}, s{sB}, s{sH}")
        A(f"s_and_b32 s{sCW}, s{sCW}, 1")
        A(f"s_mul_i32 s{sCW}, s{sCW}, {4 * 128}")
    elif nph == 4:
        A(f"s_add_u32 s{sCW}, s{sB}, s{sH}")
        A(f"s_and_b32 s{sCW}, s{sCW}, 3")
        A(f"s_mul_i32 s{sCW}, s{sCW}, {2 * 128}")
    elif nph == 8:
        A(f"s_lshl_b32 s{sCW}, s{sB}, 1")
        A(f"s_add_u32 s{sCW}, s{sCW}, s{sH}")
        A(f"s_and_b32 s{sCW}, s{sCW}, 7")
        A(f"s_lshl_b32 s{sCW}, s{sCW}, 7")
    elif nph == 5:
        A(f"s_add_u32 s{sCW}, s{sB}, s{sH}")
        A(f"s_and_b32 s{sCW}, s{sCW}, 3")
        A(f"s_mul_i32 s{sCW}, s{sCW}, 9")
        A(f"s_add_u32 s{sCW}, s{sCW}, 2")
        A(f"s_lshr_b32 s{sCW}, s{sCW}, 2")
        A(f"s_lshl_b32 s{sCW}, s{sCW}, 7")
    elif nph == 3:
        A(f"s_add_u32 s{sCW}, s{sB}, s{sH}")
        A(f"s_mul_i32 s{sT0}, s{sCW}, 43")
        A(f"s_lshr_b32 s{sT0}, s{sT0}, 7")
        A(f"s_mul_i32 s{sT0}, s{sT0}, 3")
        A(f"s_sub_u32 s{sCW}, s{sCW}, s{sT0}")
        A(f"s_mul_i32 s{sCW}, s{sCW}, {3 * 128}")
    A(f"s_mov_b32 s{sCX}, s{sCW}")
    t0, t1, t2, g4, i16, r4, cq = 9, 10, 11, 12, 13, 14, 15
    A(f"v_lshrrev_b32 v{g4}, 4, v0")
    A(f"v_and_b32 v{i16}, 15, v0")
    A(f"v_lshrrev_b32 v{t0}, 5, v0")
    A(f"v_lshlrev_b32 v{vWD}, 18, v{t0}")
    A(f"v_and_b32 v{t0}, 1, v{g4}")
    A(f"v_lshl_add_u32 v{vWD}, v{t0}, 15, v{vWD}")
    A(f"v_lshl_add_u32 v{vWD}, v{i16}, 4, v{vWD}")
    A(f"v_lshrrev_b32 v{t0}, 3, v0")
    A(f"v_mul_u32_u24 v{vXD}, 1152, v{t0}")
    A(f"v_and_b32 v{t0}, 7, v0")
    A(f"v_xor_b32 v{t0}, v{t0}, v{g4}")
    A(f"v_lshl_add_u32 v{vXD}, v{t0}, 4, v{vXD}")
    A(f"v_xor_b32 v{vXD + 1}, 64, v{vXD}")
    A(f"s_lshl_b32 s{sT0}, s{sP}, 6")
    A(f"v_xor_b32 v{vXDE}, s{sT0}, v{vXD}")
    A(f"s_lshl_b32 s{sXD}, s{sW}, 13")
    A(f"s_add_u32 s{sXD}, s{sXD}, {XOFF}")
    A(f"s_mul_i32 s{sXS}, s{sW}, {8 * 9216}")
    A(f"s_lshl_b32 s{sXED}, s{sW}, 10")
    A(f"s_add_u32 s{sXED}, s{sXED}, {XEOFF}")
    A(f"s_mul_i32 s{sXES}, s{sW}, 9216")
    A(f"s_add_u32 s{sXES}, s{sXES}, {32 * 9216}")
    A(f"s_lshr_b32 s{sT0}, s{sW}, 1")
    A(f"s_mul_i32 s{sWD}, s{sT0}, {WG1}")
    A(f"s_mul_i32 s{sT0}, s{sP}, {WG0}")
    A(f"s_add_u32 s{sWD}, s{sWD}, s{sT0}")
    A(f"s_lshl_b32 s{sWS}, s{sW}, 16")
    A(f"s_mul_i32 s{sT1}, s{sB}, 331776")
    A(f"s_lshl_b32 s{sT0}, s{sH}, 8")
    A(f"s_mov_b32 s{SRD_X + 2}, 331776")
    A(f"s_mov_b32 s{SRD_X + 3}, 0x20000")
    A(f"s_sub_u32 s{SRD_W + 2}, {576 * 8192}, s{sT0}")
    A(f"s_mov_b32 s{SRD_W + 3}, 0x20000")
    if OPT["fine"]:
        stamp(A)
    A("s_waitcnt lgkmcnt(0)")
    if OPT["fine"]:
        stamp(A)
    A(f"s_add_u32 s{SRD_W}, s38, s{sT0}")
    A(f"s_addc_u32 s{SRD_W + 1}, s39, 0")
    A(f"s_add_u32 s{SRD_X}, s32, s{sT1}")
    A(f"s_addc_u32 s{SRD_X + 1}, s33, 0")
    S = Asm()
    E = A if OPT["tlb"] == 3 else S
    E(f"s_lshl_b32 s{sT1}, s{sB}, 5")
    E(f"s_add_u32 s{sT1}, s{sT1}, s{sH}")
    E(f"s_lshl_b32 s{sT1}, s{sT1}, 19")
    if OPT["tlb"] == 3:
        for r_, p_ in ((SRD_K, 34), (SRD_V, 36)):
            A(f"s_add_u32 s{r_}, s{p_}, s{sT1}")
            A(f"s_addc_u32 s{r_ + 1}, s{p_ + 1}, 0")
            A(f"s_load_dword s{sRDY}, s[{r_}:{r_ + 1}], 0")
    S(f"s_add_u32 s{SRD_K}, s34, s{sT1} | s_addc_u32 s{SRD_K + 1}, s35, 0")
    S(f"s_mov_b32 s{SRD_K + 2}, 524288")
    S(f"s_mov_b32 s{SRD_K + 3}, 0x20000")
    S(f"s_add_u32 s{SRD_V}, s36, s{sT1} | s_addc_u32 s{SRD_V + 1}, s37, 0")
    if OPT["tlb"] == 2:
        S(f"s_load_dword s{sRDY}, s[{SRD_K}:{SRD_K + 1}], 0")
        S(f"s_load_dword s{sRDY}, s[{SRD_V}:{SRD_V + 1}], 0")
    S(f"s_mov_b32 s{SRD_V + 2}, 524288")
    S(f"s_mov_b32 s{SRD_V + 3}, 0x20000")
    S(f"s_add_u32 s{SRD_O}, s40, {OPT['wsoff'] << 20} | s_addc_u32 s{SRD_O + 1}, s41, 0")
    S(f"s_mov_b32 s{SRD_O + 2}, {(DIAG_OFF + (2 << 20)) if OPT['diag'] else WS_O_BYTES}")
    S(f"s_mov_b32 s{SRD_O + 3}, 0x20000")
    S(f"s_mov_b32 s{SRD_P}, s30")
    S(f"s_mov_b32 s{SRD_P + 1}, s31")
    S(f"s_mov_b32 s{SRD_P + 2}, {4096 * 1152}")
    S(f"s_mov_b32 s{SRD_P + 3}, 0x20000")
    S(f"v_bfe_u32 v{r4}, v0, 2, 2")
    S(f"v_and_b32 v{cq}, 3, v0")
    XA, XE, WL, WH = vQA, vQA + 2, vQA + 4, vQA + 5
    S(f"v_lshlrev_b32 v{XE}, 7, v{i16}")
    S(f"v_lshrrev_b32 v{t0}, 1, v{i16}")
    S(f"v_xor_b32 v{t0}, v{t0}, v{g4}")
    S(f"v_lshl_add_u32 v{XE}, v{t0}, 4, v{XE}")
    S(f"v_add_u32 v{XA}, s{sXD}, v{XE}")
    S(f"s_lshr_b32 s{sT1}, s{sW}, 1")
    S(f"s_lshl_b32 s{sT1}, s{sT1}, 11")
    S(f"s_add_u32 s{sT1}, s{sT1}, {XEOFF}")
    S(f"v_add_u32 v{XE}, s{sT1}, v{XE}")
    S(f"v_xor_b32 v{XA + 1}, 64, v{XA}")
    S(f"v_xor_b32 v{XE + 1}, 64, v{XE}")
    S(f"v_lshrrev_b32 v{t0}, 1, v{g4}")
    S(f"v_mul_u32_u24 v{WL}, {WG1}, v{t0}")
    S(f"v_and_b32 v{t0}, 1, v{g4}")
    S(f"v_mul_u32_u24 v{t0}, {WG0}, v{t0}")
    S(f"v_add_u32 v{WL}, v{WL}, v{t0}")
    S(f"v_mul_u32_u24 v{t0}, {XB}, v{r4}")
    S(f"v_add_u32 v{WL}, v{WL}, v{t0}")
    S(f"v_lshl_add_u32 v{WL}, v{cq}, 4, v{WL}")
    S(f"s_lshl_b32 s{sT1}, s{sP}, 7")
    S(f"s_xor_b32 s{sOO}, s{sT1}, 128")
    S(f"v_add_u32 v{WH}, s{sOO}, v{WL}")
    S(f"v_add_u32 v{WL}, s{sT1}, v{WL}")
    for i in range(6):
        S(f"v_add_u32 v{vQA + 6 + i}, {2 * STSZ}, v{vQA + i}")
    S(f"s_lshl_b32 s{sT1}, s{sW}, 12")
    S(f"v_lshl_add_u32 v{vV4}, v0, 4, s{sT1}")
    S(f"s_mul_i32 s{sWOF}, s{sW}, {4 * BLK}")

    def dma_regs(Z):
        for i in range(4):
            Z(f"v_add_u32 v{vD + i}, {i * 1024}, v{vV4}")
    dma_regs(S)
    S(f"v_mul_u32_u24 v{t0}, {BLK}, v{i16}")
    S(f"v_lshl_add_u32 v{t0}, v{g4}, 4, v{t0}")
    S(f"v_lshl_add_u32 v{t1}, v{g4}, 2, v{r4}")
    S(f"v_mul_u32_u24 v{t1}, {BLK}, v{t1}")
    S(f"v_lshl_add_u32 v{t1}, v{cq}, 3, v{t1}")
    for j in range(2):
        S(f"s_xor_b32 s{sT1}, s{sP}, {j}")
        S(f"s_lshl_b32 s{sT1}, s{sT1}, 9")
        S(f"v_add_u32 v{vVB + j}, s{sT1}, v{t1}")
        S(f"s_lshl_b32 s{sOO}, s{sP}, 7")
        S(f"s_add_u32 s{sT1}, s{sT1}, s{sOO}")
        S(f"v_add_u32 v{vKB + 2 * j}, s{sT1}, v{t0}")
        S(f"s_xor_b32 s{sT1}, s{sT1}, 128")
        S(f"v_add_u32 v{vKB + 2 * j + 1}, s{sT1}, v{t0}")
    if OPT["rot"]:
        S(f"s_mul_i32 s{sG0}, s2, {OPT['rot']}")
        S(f"s_lshr_b32 s{sT1}, s2, 4")
        S(f"s_add_u32 s{sG0}, s{sG0}, s{sT1}")
        S(f"s_and_b32 s{sG0}, s{sG0}, 15")
        S(f"s_mul_i32 s{sG0}, s{sG0}, {16384 * 7 // 4 // 16384 * 16384}")
    S(f"s_lshl_b32 s{sWP}, s2, 2")
    S(f"s_add_u32 s{sWP}, s{sWP}, s{sW}")
    S(f"s_mul_i32 s{sWP}, s{sWP}, 4608")
    S(f"v_min_u32 v7, 1, v0")
    S(f"v_lshlrev_b32 v7, 7, v7")
    S(f"s_lshl_b32 s{sDV}, s{sP}, 10")
    S(f"s_sub_u32 s{sDV}, 512, s{sDV}")
    S(f"v_min_u32 v{vCW}, 1, v0")
    S(f"s_lshr_b32 s{sT1}, s2, 3")
    S(f"s_lshl_b32 s{sT1}, s{sT1}, 2")
    S(f"s_add_u32 s{sT1}, s{sT1}, s{sW}")
    S(f"s_lshl_b32 s{sT1}, s{sT1}, 8")
    S(f"v_lshl_add_u32 v{vCW}, v{vCW}, 7, s{sT1}")
    S(f"v_min_u32 v{vCW}, L1_redo-L1_tail, v{vCW}")
    S(f"v_add_u32 v{vCW}, L1_tail-L1_pc, v{vCW}")
    S(f"v_mov_b32 v{t0}, 0x3f803f80")
    S(f"v_cmp_eq_u32 vcc, 0, v{cq}")
    S(f"s_mov_b32 s{sSC}, {QSCALE:#x}")
    S(f"s_mov_b32 s{sREDO}, 0")
    S(f"v_cndmask_b32 v{t0}, 0, v{t0}, vcc")
    for i in range(4):
        S(f"v_accvgpr_write_b32 a{ONES + i}, v{t0}")
    S(f"s_add_u32 s{sT1}, s{sXD}, {2 * STSZ + 6144}")
    S(f"v_lshl_add_u32 v{t0}, v0, 4, s{sT1}")
    S(f"s_xor_b32 s{sT1}, s{sW}, 1")
    S(f"s_lshl_b32 s{sT1}, s{sT1}, 13")
    S(f"s_add_u32 s{sT1}, s{sT1}, {XOFF + 2 * STSZ + 6144}")
    S(f"v_lshl_add_u32 v{t1}, v0, 4, s{sT1}")

    def loop_scalars(Z):
        if OPT["rot"]:
            Z(f"s_add_u32 s{sKVS}, s{sG0}, {DD * 16384}")
        else:
            Z(f"s_mov_b32 s{sKVS}, {DD * 16384}")
        Z(f"s_add_u32 s{sKD}, s{sWOF}, {(NS - 1) * HS}")
        Z(f"s_mov_b32 s{sVD}, s{sWOF}")
        Z(f"s_mov_b32 s{sKN}, {2 * HS}")
        Z(f"s_mov_b32 s{sVN}, {HS}")
        Z(f"s_mov_b32 s{sCNT}, 14")
        Z(f"s_mov_b32 s{sSIDE}, 0")
        if Z is not S or not OPT["diag"]:
            Z(f"s_mov_b32 s{sINC}, 16384")
            Z(f"s_mov_b32 s{sWI}, 160")
        if OPT["diag"]:
            Z("s_mov_b32 s41, 31")

    def loop_addr():
        return [f"v_add_u32 v{vK}, {2 * HS}, v{vKB}", f"v_add_u32 v{vK + 1}, {2 * HS}, v{vKB + 1}",
                f"v_mov_b32 v{vK + 2}, v{vKB + 2}", f"v_mov_b32 v{vK + 3}, v{vKB + 3}"]

    loop_scalars(S)
    for i in range(180):
        S(f"v_accvgpr_write_b32 a{i}, 0")
    setup = [x.strip() for x in S.l]
    for i_, p in enumerate(wg_pieces(0) + x_pieces(0)):
        A.ext(p)
        if OPT["fine"] and i_ in (0, 8):
            stamp(A)
    if OPT["fine"]:
        stamp(A)
        A("s_waitcnt vmcnt(12)")
        stamp(A)
        A("s_waitcnt vmcnt(0)")
        stamp(A)
        OPT["diag"] = 2
    npf = 0

    def tlb_touch():
        A(f"v_lshlrev_b32 v{t0}, 18, v0")
        A(f"s_cmp_eq_u32 s{sW}, 1")
        A("s_cbranch_scc1 L1_t1")
        A(f"s_cmp_eq_u32 s{sW}, 2")
        A("s_cbranch_scc1 L1_t2")
        A(f"s_cmp_eq_u32 s{sW}, 3")
        A("s_cbranch_scc1 L1_t3")
        A(f"s_lshl_b32 s{sT1}, s{sB}, 5")
        A(f"s_add_u32 s{sT1}, s{sT1}, s{sH}")
        A(f"s_lshl_b32 s{sT1}, s{sT1}, 19")
        A(f"v_min_u32 v{t0}, {1 << 18}, v{t0}")
        A(f"v_add_u32 v{t0}, s{sT1}, v{t0}")
        A(f"global_load_dword v{vDUM}, v{t0}, s[34:35] nt")
        A(f"global_load_dword v{vDUM}, v{t0}, s[36:37] nt")
        A("s_branch L1_td")
        A.label("L1_t1")
        A(f"v_min_u32 v{t0}, {17 << 18}, v{t0}")
        A(f"global_load_dword v{vDUM}, v{t0}, s[38:39]")
        A(f"global_load_dword v{vDUM}, v{t0}, s[30:31]")
        A("s_branch L1_td")
        A.label("L1_t2")
        A(f"v_lshlrev_b32 v{t1}, 20, v0")
        A(f"v_min_u32 v{t1}, {17 << 20}, v{t1}")
        A(f"v_add_u32 v{t1}, {OPT['wsoff'] << 20}, v{t1}")
        A(f"global_load_dword v{vDUM}, v{t1}, s[40:41] sc1 nt")
        A(f"v_min_u32 v{t0}, {10 << 18}, v{t0}")
        A(f"global_load_dword v{vDUM}, v{t0}, s[20:21] nt")
        A("s_branch L1_td")
        A.label("L1_t3")
        A(f"v_mov_b32 v{t1}, 0")
        A(f"global_load_dword v{vDUM}, v{t1}, s[22:23] sc1")
        A(f"v_min_u32 v{t0}, {10 << 18}, v{t0}")
        A(f"global_load_dword v{vDUM}, v{t0}, s[32:33]")
        A.label("L1_td")

    if OPT["tlb"] == 1:
        tlb_touch()
        npf = 2
    if OPT["pf"]:
        na = OPT["pfa"]
        A(f"v_min_u32 v{t0}, {9 * na - 1}, v0")
        A(f"v_mul_u32_u24 v{t1}, 57, v{t0}")
        A(f"v_lshrrev_b32 v{t1}, 9, v{t1}")
        A(f"v_mul_u32_u24 v{t2}, 9, v{t1}")
        A(f"v_sub_u32 v{t0}, v{t0}, v{t2}")
        A(f"v_mul_u32_u24 v248, 1152, v{t0}")
        A(f"s_and_b32 s{sT1}, s{sH}, 7")
        A(f"s_lshl_b32 s{sT1}, s{sT1}, 2")
        A(f"s_add_u32 s{sT1}, s{sT1}, s{sW}")
        A(f"s_mul_i32 s{sT1}, s{sT1}, {9 * 1152}")
        A(f"v_add_u32 v248, s{sT1}, v248")
        A(f"v_lshl_add_u32 v246, v{t1}, 7, v248")
        A(f"buffer_load_dword v{vDUM}, v246, {srd(SRD_X)}, 0 offen offset:128")
        A(f"v_bfe_u32 v{t0}, v0, 1, 2")
        A(f"v_lshlrev_b32 v249, 13, v{t0}")
        A(f"v_and_b32 v{t0}, 1, v0")
        A(f"v_lshl_add_u32 v249, v{t0}, 7, v249")
        A(f"s_and_b32 s{sT1}, s{sB}, 3")
        A(f"s_lshl_b32 s{sT1}, s{sT1}, 2")
        A(f"s_add_u32 s{sT1}, s{sT1}, s{sW}")
        A(f"s_lshl_b32 s{sT1}, s{sT1}, 15")
        A(f"v_add_u32 v249, s{sT1}, v249")
        A(f"v_lshrrev_b32 v{t0}, 3, v0")
        A(f"v_min_u32 v{t0}, {na - 1}, v{t0}")
        A(f"v_lshl_add_u32 v247, v{t0}, 19, v249")
        A(f"s_mov_b32 s{sT1}, {1 << 19}")
        A(f"buffer_load_dword v{vDUM}, v247, {srd(SRD_W)}, s{sT1} offen")
        npf = 2
    first = []
    for c in range(1, OPT["up"]):
        first += wg_pieces(c) + x_pieces(c)
    per = len(setup) // (len(first) + 1) + 1
    stamp(A)
    for p in [[]] + first:
        A.ext(p)
        for _ in range(per):
            if setup:
                for y in setup.pop(0).split(" | "):
                    A(y)
    assert not setup
    stamp(A)
    A(f"s_waitcnt vmcnt({len(first) + npf})")
    A("s_barrier")
    stamp(A)
    P = lambda n: [item_piece(n, i) for i in range(4)]
    kw = [f"global_load_dword v{vDUM}, v{vCW}, s[{sPC}:{sPC + 1}]"] if OPT["cpf"] else []
    kw = [f"buffer_load_dword v{vDUM}, v7, {srd(SRD_P)}, s{sWP} offen"] if OPT["wopf"] == 2 else []
    if OPT["stg"] == 0:
        extras = {4: P(0), 5: P(1), 6: P(2)}
        al = P(0) + P(1) + P(2)
        if OPT["kvs"] == 1:
            extras = {4: al[0:3], 5: al[3:6], 6: al[6:8], 7: al[8:12]}
        if OPT["kvs"] >= 4:
            extras = {4: al[:OPT["kvs"]]}
            if OPT["kvs"] < 12:
                extras[7] = al[OPT["kvs"]:]
    else:
        extras = {7: P(0) + P(1) + P(2)}
    if DD == 4:
        extras[8] = P(3) + P(4) + P(5)
        late = P(6) + P(7)
        late[0] = kw + late[0]
        late[7] = late[7] + kw
    elif DD == 3:
        extras[8] = P(3)
        late = P(4) + P(5)
        late[7] = late[7] + kw
    else:
        extras[8] = P(3)
        late = [[]] * 8
    if OPT["pf"]:
        for c in range(OPT["pfa"] + 1, 9):
            at = max(0, c - OPT["pf"])
            extras[at] = extras.get(at, []) + [
                [f"buffer_load_dword v{vDUM}, v248, {srd(SRD_X)}, 0 offen offset:{c * 128}"],
                [f"s_mov_b32 s{sT0}, {c << 19}", f"buffer_load_dword v{vDUM}, v249, {srd(SRD_W)}, s{sT0} offen"]]
    if OPT["wopf"] == 1:
        extras[7] = extras.get(7, []) + [[f"v_lshlrev_b32 v253, 7, v0", f"v_min_u32 v253, {35 * 128}, v253",
                      f"buffer_load_dword v{vDUM}, v253, {srd(SRD_P)}, s{sWP} offen"]]

    def conv(t, kk):
        src = ACC + 32 * t + 8 * kk
        dst = QV + 16 * t + 4 * kk
        o = []
        for i in range(4):
            o += [f"v_mul_f32 v{src + 2 * i}, s{sSC}, v{src + 2 * i}", f"v_mul_f32 v{src + 2 * i + 1}, s{sSC}, v{src + 2 * i + 1}"]
        for i in range(4):
            o.append(f"v_cvt_pk_bf16_f32 v{dst + i}, v{src + 2 * i}, v{src + 2 * i + 1}")
        return o

    KF = [184, 224]
    k0reads = [kread(ar(KF[kb] + 4 * kk, 4), vKB, kb, kk) for kb in range(2) for kk in range(4)]
    ti = []

    def spread(lst, g0, g1):
        for i, x in enumerate(lst):
            ti.append((g0 + (i * (g1 - g0)) // len(lst), x))

    spread(conv(4, 0) + conv(0, 0) + conv(1, 0) + conv(2, 0), 13, 22)
    spread(conv(4, 1) + [f"ds_write_b128 v{t0}, {vr(QV + 64, 4)}", f"ds_write_b128 v{t0}, {vr(QV + 68, 4)} offset:1024"]
           + conv(3, 0) + conv(0, 1), 22, 29)
    ti.append((29, "BAR"))
    spread([f"ds_read_b128 {vr(QV + 72, 4)}, v{t1}", f"ds_read_b128 {vr(QV + 76, 4)}, v{t1} offset:1024"] + k0reads[:4]
           + conv(1, 1) + k0reads[4:] + conv(2, 1) + conv(3, 1), 29, 36)
    nb = [i for i, x in enumerate(ti) if x[1] == "BAR"][0]
    ti[nb:nb + 1] = [(29, "VMW"), (29, "s_barrier")]
    qp, issued = build_qproj(extras, OPT["up"], ti, {6: [f"s_load_dwordx4 s[{sOUTP}:{sOUTP + 3}], s[0:1], 40"], 8: p3_setup()})
    vms = [x for x in qp if x.startswith(("buffer_load", "global_load"))]
    lastv0 = max(i for i, x in enumerate(vms) if x == P(1)[3][-1] and i == min(k for k, y in enumerate(vms) if y == x))
    ny = len(vms) - 1 - lastv0
    qp = [(f"s_waitcnt vmcnt({ny}) lgkmcnt(0)" if x == "VMW" else x) for x in qp]
    A.ext(tidy(qp) if OPT['tidy'] else qp)
    stamp(A)
    body, pro, tail, vreads = build_loop()

    def qk0(kb, kk, useneg):
        o = []
        for t in range(5):
            Sx = Sreg(t, 0) + 4 * kb
            C = (vr(NEG + 4 * t, 4) if useneg else "0") if kk == 0 else vr(Sx, 4)
            o.append(f"{MF} {vr(Sx, 4)}, {ar(KF[kb] + 4 * kk, 4)}, {vr(QV + 16 * t + 4 * kk, 4)}, {C}")
        return o

    def mix(mf, fill):
        n = len(mf)
        o = []
        for i, m in enumerate(mf):
            o.append(m)
            o += fill[(i * len(fill)) // n:((i + 1) * len(fill)) // n]
        A.ext(tidy(o) if OPT['tidy'] else o)

    flat = lambda ps: [x for p in ps for x in p]
    pro_rd = [x for x in pro if is_ds(x)]
    pro_sm = [x for x in pro if not is_ds(x)]
    A.ext(conv(0, 2) + flat(late[0:2]) + conv(0, 3))
    A("s_waitcnt lgkmcnt(0)")
    mix(qk0(0, 0, False) + qk0(0, 1, False), conv(1, 2) + conv(2, 2) + conv(3, 2) + flat(late[2:4]))
    mix(qk0(0, 2, False), conv(1, 3) + conv(2, 3) + conv(3, 3))
    A("s_nop 0")
    A.ext(qk0(0, 3, False))
    A.ext(loop_addr())
    A.ext(pro_rd)
    A.ext(flat(late[4:6]))
    for t in range(5):
        Sx = Sreg(t, 0)
        A(f"v_max3_f32 v{vM + t}, v{Sx}, v{Sx + 1}, v{Sx + 2}")
    for t in range(5):
        A(f"v_max_f32 v{vM + t}, v{vM + t}, v{Sreg(t, 0) + 3}")

    def xlane5(Z, op, base, tmp):
        for sw in ("v_permlane32_swap_b32", "v_permlane16_swap_b32"):
            for t in range(5):
                Z(f"v_mov_b32 v{tmp + t}, v{base + t}")
            for t in range(5):
                Z(f"{sw} v{base + t}, v{tmp + t}")
            for t in range(5):
                Z(f"{op} v{base + t}, v{base + t}, v{tmp + t}")

    xlane5(A, "v_max_f32", vM, vM + 8)
    for t in range(5):
        for i in range(4):
            A(f"v_sub_f32 v{NEG + 4 * t + i}, 0, v{vM + t}")
    subs = [f"v_sub_f32 v{Sreg(t, 0) + i}, v{Sreg(t, 0) + i}, v{vM + t}" for t in range(5) for i in range(4)]
    kb0regs = {Sreg(t, 0) + i for t in range(5) for i in range(4)}

    def srcs(x):
        return [int(z.strip()[1:]) for z in x.split(None, 1)[1].split(",")[1:]]
    sm0 = [x for x in pro_sm if all(r in kb0regs for r in srcs(x))]
    sm1 = [x for x in pro_sm if x not in sm0]

    def safe(lst):
        lst = list(lst)
        for i in range(1, len(lst) - 1):
            if lst[i].startswith("v_cvt") and lst[i - 1].startswith("v_exp") and lst[i + 1].startswith("v_exp"):
                ia, ib = hazard.I(lst[i]), hazard.I(lst[i + 1])
                if hazard.I(lst[i - 1]).w & ia.r and not (ia.w & (ib.r | ib.w)) and not (ib.w & ia.r):
                    lst[i], lst[i + 1] = lst[i + 1], lst[i]
        o, prev = [], ""
        for x in lst:
            if prev.startswith("v_exp") and x.startswith("v_cvt") and hazard.I(prev).w & hazard.I(x).r:
                o.append("s_nop 0")
            o.append(x)
            prev = x
        return o
    A.ext(flat(late[6:8]))
    mix(flat([qk0(1, kk, True) for kk in range(4)]), subs + safe(sm0))
    A("s_nop 3")
    A.label("L1_presm")
    A.ext(safe(sm1))
    A("s_waitcnt lgkmcnt(0)")
    stamp(A)
    if OPT["dspin"]:
        A("s_memrealtime s[64:65]")
    A.raw(".p2align 6")
    A.label("L1_loop")
    if OPT["diag"]:
        A.ext(diag_top())
    A.ext(body)
    A("s_branch L1_loop")
    errs = hazard.check(body + body, "loop")
    side_block(A)
    A.label("L1_tail")
    T0 = len(A.l)
    if OPT["dspin"]:
        A("s_memrealtime s[66:67]")
    stamp(A)
    ofl = FLAGS[OPT["ostflag"]]
    P0, RC, Lr = B0[1], 148, 48

    def Pt(j, t):
        return vr((P0 if j == 0 else B1) + 8 * t, 4)

    def ones(t):
        return [f"{MF} {ar(LA + 4 * t, 4)}, {ar(ONES, 4)}, {Pt(j, t)}, {ar(LA + 4 * t, 4)}" for j in range(2 if t < 4 else 1)]

    def pv(t):
        return [f"{MF} {ar(OA + 32 * t + 4 * dt, 4)}, {ar(RING + 8 * dt + 4 * j, 4)}, {Pt(j, t)}, {ar(OA + 32 * t + 4 * dt, 4)}"
                for dt in range(8) for j in range(2 if t < 4 else 1)]

    def norm_store(t, tmp, pk):
        o = []
        if t:
            o.append(f"s_add_u32 s{sT0}, s{sT0}, {QP}")
        for s in range(4):
            b = tmp + 8 * s
            for e in range(8):
                o.append(f"v_accvgpr_read_b32 v{b + e}, a{OA + 32 * t + 8 * s + e}")
            if pk:
                for e in range(4):
                    o.append(f"v_pk_mul_f32 {vr(b + 2 * e, 2)}, {vr(b + 2 * e, 2)}, {vr(RC + 2 * t, 2)} op_sel_hi:[1,0]")
            else:
                for e in range(8):
                    o.append(f"v_mul_f32 v{b + e}, v{RC + 2 * t}, v{b + e}")
            for e in range(4):
                o.append(f"v_cvt_pk_bf16_f32 v{b + e}, v{b + 2 * e}, v{b + 2 * e + 1}")
            of = f" offset:{s * 1024}" if s else ""
            o.append(f"buffer_store_dwordx4 {vr(b, 4)}, v{t2}, {srd(SRD_O)}, s{sT0} offen{of}{ofl}")
        return o

    smt = {t: safe([x for tt, x in tail if tt == t]) for t in range(5)}
    assert not smt[4]
    wr = [f"ds_write_b128 v{t0}, {ar(OA + 128 + 4 * i, 4)} offset:{(i // 4) * HS + (i % 4) * 1024}" for i in range(8)]
    misc = [f"s_mul_i32 s{sOO}, s{sB}, 18", f"s_lshl_b32 s{sT0}, s{sW}, 2", f"s_add_u32 s{sT0}, s{sT0}, s{sOO}",
            f"s_mul_i32 s{sT0}, s{sT0}, {QP}", f"s_lshr_b32 s{sKN}, s{sH}, 3", f"s_mul_i32 s{sKN}, s{sKN}, {OPT['gpad']}",
            f"s_lshl_b32 s{sVN}, s{sH}, 12", f"s_add_u32 s{sKN}, s{sKN}, s{sVN}", f"s_add_u32 s{sT0}, s{sT0}, s{sKN}",
            f"v_lshlrev_b32 v{t2}, 4, v0", f"s_add_u32 s{sT1}, s{sWOF}, {TS * HS}", f"v_lshl_add_u32 v{t0}, v0, 4, s{sT1}"]
    lrd = lambda t: [f"v_accvgpr_read_b32 v{Lr + t}, a{LA + 4 * t}", "s_nop 0", f"v_rcp_f32 v{RC + 2 * t}, v{Lr + t}"]
    A.ext(vreads[:12])
    A.ext(smt[0])
    A.ext(misc[:2])
    mix(ones(0), misc[2:8])
    A("s_waitcnt lgkmcnt(4)")
    mix(pv(0)[:4], vreads[12:20])
    A("s_waitcnt lgkmcnt(4)")
    mix(pv(0)[4:8], vreads[20:28])
    A.ext(vreads[28:] + misc[8:] + lrd(0))
    A("s_waitcnt lgkmcnt(8)")
    n0 = norm_store(0, 16, False)
    mix(pv(0)[8:12], n0[:12])
    A("s_waitcnt lgkmcnt(0)")
    mix(pv(0)[12:], n0[12:21])
    mix(ones(4) + pv(4), smt[1] + n0[21:42])
    mix(ones(1) + pv(1), smt[2] + n0[42:63] + smt[3] + wr[:4])
    n1 = norm_store(1, 16, False)
    mix(ones(2) + ones(3) + pv(2), n0[63:] + wr[4:] + lrd(1) + n1[:22])
    st = [f"v_accvgpr_read_b32 v{Lr + t}, a{LA + 4 * t}" for t in range(2, 5)]
    st += [f"s_lshl_b32 s{sT1}, s{sW}, 10", f"s_add_u32 s{sT1}, s{sT1}, {STATS}", f"v_lshl_add_u32 v{t1}, v0, 4, s{sT1}",
           f"v_add_f32 v53, v{Lr}, v{Lr + 1}", f"v_add_f32 v54, v{Lr + 2}, v{Lr + 3}", f"v_add_f32 v53, v53, v{Lr + 4}",
           f"v_add_f32 v53, v53, v54", f"v_mov_b32 v54, {f32bits(2.0 ** OPT['thr']):#x}", f"v_cmp_nlt_f32 vcc, v53, v54",
           f"v_mov_b32 v156, v{Lr + 4}", f"v_mov_b32 v157, v{NEG + 16}", f"v_mov_b32 v159, 0", f"v_cndmask_b32 v158, 0, 1, vcc",
           f"ds_write_b128 v{t1}, {vr(156, 4)}"]
    st += [f"v_rcp_f32 v{RC + 2 * t}, v{Lr + t}" for t in range(2, 4)]
    mix(pv(3), st + n1[22:43])
    A("s_waitcnt lgkmcnt(0)")
    A("s_barrier")
    A(f"s_and_b32 s{sT1}, s{sW}, 2")
    A(f"s_mul_i32 s{sT1}, s{sT1}, {4 * BLK}")
    A(f"s_mul_i32 s{sT2}, s{sP}, {HS}")
    A(f"s_add_u32 s{sT1}, s{sT1}, s{sT2}")
    A(f"s_add_u32 s{sT1}, s{sT1}, {TS * HS}")
    A(f"v_lshl_add_u32 v{t0}, v0, 4, s{sT1}")
    A(f"s_and_b32 s{sT1}, s{sW}, 2")
    A(f"s_lshl_b32 s{sT1}, s{sT1}, 10")
    A(f"v_lshl_add_u32 v{t1}, v0, 4, s{sT1}")
    A(f"v_xor_b32 v1, 2048, v{t1}")
    A(f"v_add_u32 v{t1}, {STATS}, v{t1}")
    A(f"v_add_u32 v1, {STATS}, v1")
    A(f"ds_read_b128 {vr(128, 4)}, v{t1}")
    A(f"ds_read_b128 {vr(132, 4)}, v{t1} offset:1024")
    A(f"ds_read_b128 {vr(136, 4)}, v1")
    A(f"ds_read_b128 {vr(140, 4)}, v1 offset:1024")
    for w in range(2):
        for q in range(4):
            A(f"ds_read_b128 {vr(96 + 16 * w + 4 * q, 4)}, v{t0} offset:{w * 4 * BLK + q * 1024}")
    A.ext(norm_store(1, 16, True)[35:])
    A("s_waitcnt lgkmcnt(0)")
    A("v_or3_b32 v144, v130, v134, v138")
    A("v_or_b32 v144, v144, v142")
    A("v_cmp_ne_u32 vcc, 0, v144")
    A("v_min_f32 v145, v129, v133")
    A("v_sub_f32 v129, v145, v129")
    A("v_sub_f32 v133, v145, v133")
    A("v_exp_f32 v129, v129")
    A("v_exp_f32 v133, v133")
    A(f"s_cmp_lg_u64 vcc, 0")
    A(f"s_cselect_b32 s{sT1}, 1, 0")
    A(f"s_cmp_gt_u32 s{sT1}, s{sREDO}")
    A("s_cbranch_scc1 L1_redo")
    A("v_mul_f32 v145, v128, v129")
    A("v_fmac_f32 v145, v132, v133")
    A("v_rcp_f32 v145, v145")
    A(f"s_lshr_b32 s{sT1}, s{sW}, 1")
    A(f"s_add_u32 s{sT1}, s{sT1}, s{sOO}")
    A(f"s_add_u32 s{sT1}, s{sT1}, 16")
    A(f"s_mul_i32 s{sT1}, s{sT1}, {QP}")
    A(f"s_add_u32 s{sT1}, s{sT1}, s{sKN}")
    A(f"s_lshl_b32 s{sT2}, s{sP}, 11")
    A(f"s_add_u32 s{sT1}, s{sT1}, s{sT2}")
    A("v_mul_f32 v129, v145, v129")
    A("v_mul_f32 v133, v145, v133")
    for e in range(16):
        A(f"v_mul_f32 v{96 + e}, v129, v{96 + e}")
    for e in range(16):
        A(f"v_fmac_f32 v{96 + e}, v133, v{112 + e}")
    for e in range(8):
        A(f"v_cvt_pk_bf16_f32 v{80 + e}, v{96 + 2 * e}, v{96 + 2 * e + 1}")
    for q in range(2):
        of = " offset:1024" if q else ""
        A(f"buffer_store_dwordx4 {vr(80 + 4 * q, 4)}, v{t2}, {srd(SRD_O)}, s{sT1} offen{of}{ofl}")
    rest = norm_store(2, 48, True) + norm_store(3, 16, True)
    if OPT["fuse"]:
        p3(A, rest)
    else:
        A.ext(rest)
    gx = [i for i, x in enumerate(body) if "L1_tail" in x][0]
    errs += hazard.check(body[:gx + 1] + A.l[T0:T0 + 60], "exit")
    if OPT["diag"]:
        if not OPT["fuse"]:
            stamp(A)
        A("s_waitcnt vmcnt(0)")
        stamp(A)
        A("s_memrealtime s[94:95]")
        A("s_waitcnt lgkmcnt(0)")
        A("v_writelane_b32 v250, s92, 62")
        A("v_writelane_b32 v250, s94, 63")
        for i in range(stamp_n[0]):
            A(f"v_writelane_b32 v250, s{sST + 2 * i}, {50 + i}")
        A("v_writelane_b32 v250, s90, 32")
        A("v_writelane_b32 v251, s96, 32")
        A(f"s_lshl_b32 s{sT0}, s2, 2")
        A(f"s_add_u32 s{sT0}, s{sT0}, s{sW}")
        A(f"s_lshl_b32 s{sT0}, s{sT0}, 8")
        A(f"s_add_u32 s{sT0}, s{sT0}, {DIAG_OFF}")
        A(f"v_lshlrev_b32 v{t0}, 2, v0")
        A(f"buffer_store_dword v250, v{t0}, {srd(SRD_O)}, s{sT0} offen")
        A(f"s_add_u32 s{sT0}, s{sT0}, {1 << 19}")
        A(f"buffer_store_dword v251, v{t0}, {srd(SRD_O)}, s{sT0} offen")
        if OPT["fuse"]:
            for i in range(3):
                A(f"v_writelane_b32 v251, s{78 + 2 * i}, {i}")
            A("v_writelane_b32 v251, s94, 3")
            A(f"s_add_u32 s{sT0}, s{sT0}, {1 << 19}")
            A(f"buffer_store_dword v251, v{t0}, {srd(SRD_O)}, s{sT0} offen")
            if OPT["dbg"]:
                for ln, src in ((4, 30), (5, 22), (6, 14), (7, 32)):
                    A(f"v_readlane_b32 s{sT1}, v251, {src}")
                    A("s_nop 3")
                    A(f"v_writelane_b32 v251, s{sT1}, {ln}")
                A("v_subrev_u32 v251, s92, v251")
                A(f"v_lshlrev_b32 v{t0}, 3, v0")
                A("s_cmp_ge_u32 s2, 216")
                A("s_cbranch_scc1 L1_end")
                A("s_mov_b64 exec, 0xff")
                A(f"buffer_atomic_umax v251, v{t0}, {srd(SRD_W)}, 0 offen offset:4")
    if OPT["dspin"]:
        A("s_waitcnt vmcnt(0)")
        A("s_memrealtime s[68:69]")
        A("s_waitcnt lgkmcnt(0)")
        a_, b_ = {1: (62, 62), 2: (64, 62), 3: (66, 64), 4: (68, 66)}[OPT["dspin"]]
        A(f"s_sub_u32 s70, s{a_}, s{b_}")
        A("s_add_u32 s70, s70, 20000")
        A.label("L1_ds")
        A("s_memrealtime s[72:73]")
        A("s_waitcnt lgkmcnt(0)")
        A("s_sub_u32 s71, s72, s62")
        A("s_cmp_lt_u32 s71, s70")
        A("s_cbranch_scc1 L1_ds")
    A.label("L1_end")
    A("s_endpgm")
    A.label("L1_redo")
    A(f"s_mov_b32 s{sREDO}, 1")
    A("s_waitcnt vmcnt(0) lgkmcnt(0)")
    A("s_barrier")
    A("s_load_dwordx4 s[32:35], s[0:1], 8")
    A(f"s_lshl_b32 s{sT1}, s{sB}, 5")
    A(f"s_add_u32 s{sT1}, s{sT1}, s{sH}")
    A(f"s_lshl_b32 s{sT1}, s{sT1}, 19")
    A("s_waitcnt lgkmcnt(0)")
    A(f"s_add_u32 s{SRD_K}, s32, s{sT1}")
    A(f"s_addc_u32 s{SRD_K + 1}, s33, 0")
    A(f"s_mov_b32 s{SRD_K + 2}, 524288")
    A(f"s_add_u32 s{SRD_V}, s34, s{sT1}")
    A(f"s_addc_u32 s{SRD_V + 1}, s35, 0")
    A(f"s_mov_b32 s{SRD_V + 2}, 524288")
    dma_regs(A)
    A("v_mov_b32 v7, 0")
    for n in range(2 * DD):
        for p in P(n):
            A.ext(p)
    for t in range(5):
        A(f"v_mov_b32 v{vM + t}, 0xff800000")
    A(f"v_lshlrev_b32 v{t0}, 8, v{i16}")
    A(f"v_lshl_add_u32 v{t0}, v{g4}, 4, v{t0}")
    A(f"s_lshl_b32 s{sT1}, s{sP}, 7")
    A(f"v_add_u32 v{t0}, s{sT1}, v{t0}")
    A(f"v_xor_b32 v{t1}, 128, v{t0}")
    A(f"s_mov_b32 s{sT1}, 0")
    A.label("L1_mx")
    for kk in range(4):
        o = f" offset:64" if kk & 1 else ""
        A(f"buffer_load_dwordx4 {vr(112 + 4 * kk, 4)}, v{t0 + (kk >> 1)}, {srd(SRD_K)}, s{sT1} offen{o}")
    A("s_waitcnt vmcnt(0)")
    for kk in range(4):
        for t in range(5):
            C = "0" if kk == 0 else vr(16 + 4 * t, 4)
            A(f"{MF} {vr(16 + 4 * t, 4)}, {vr(112 + 4 * kk, 4)}, {vr(QV + 16 * t + 4 * kk, 4)}, {C}")
    A("s_nop 7")
    for t in range(5):
        A(f"v_max3_f32 v{vM + t}, v{vM + t}, v{16 + 4 * t}, v{17 + 4 * t}")
        A(f"v_max3_f32 v{vM + t}, v{vM + t}, v{18 + 4 * t}, v{19 + 4 * t}")
    A(f"s_add_u32 s{sT1}, s{sT1}, 4096")
    A(f"s_cmp_lt_u32 s{sT1}, {4096 if OPT['twice'] else 524288}")
    A("s_cbranch_scc1 L1_mx")
    xlane5(A, "v_max_f32", vM, vM + 8)
    for t in range(5):
        for i in range(4):
            A(f"v_sub_f32 v{NEG + 4 * t + i}, 0, v{vM + t}")
    for i in range(180):
        A(f"v_accvgpr_write_b32 a{i}, 0")
    A.ext(loop_addr())
    loop_scalars(A)
    A("s_barrier")
    A.ext(k0reads)
    A("s_waitcnt lgkmcnt(0)")
    for kb in range(2):
        for kk in range(4):
            A.ext(qk0(kb, kk, True))
    A.ext(pro_rd)
    A("s_nop 7")
    A.ext(safe(sm0))
    A("s_branch L1_presm")
    return errs


def k2(A):
    DEP = 4
    SRD_A, SRD_WO, SRD_OUT = 4, 8, 12
    sW, sMT, sNT, sT0, sT1, sAS, sBS, sLD, sCNT = 16, 17, 18, 19, 20, 21, 22, 23, 24
    vA, vBD, vBR, t0, t1 = 2, 8, 9, 13, 14
    ACC2, ORING, WF = 16, 112, 208
    A.raw(".p2align 8")
    A.raw(".globl oproj_kernel")
    A.raw(".type oproj_kernel,@function")
    A.label("oproj_kernel")
    A(f"s_cmp_ge_u32 s2, {OPT['k2grid']}")
    A("s_cbranch_scc1 L2_end")
    A("s_load_dwordx4 s[32:35], s[0:1], 32")
    A("s_load_dwordx2 s[36:37], s[0:1], 56")
    if OPT["diag"]:
        A("s_memrealtime s[60:61]")
    A("v_lshrrev_b32 v1, 6, v0")
    A("v_and_b32 v0, 63, v0")
    A(f"v_readfirstlane_b32 s{sW}, v1")
    A("s_and_b32 s25, s2, 7")
    A("s_lshr_b32 s26, s2, 3")
    A(f"s_mul_i32 s{sNT}, s26, 43")
    A(f"s_lshr_b32 s{sNT}, s{sNT}, 7")
    A(f"s_mul_i32 s{sT0}, s{sNT}, 3")
    A(f"s_sub_u32 s{sT0}, s26, s{sT0}")
    A(f"s_mul_i32 s{sMT}, s25, 3")
    A(f"s_add_u32 s{sMT}, s{sMT}, s{sT0}")
    A(f"v_lshlrev_b32 v{vA}, 4, v0")
    for i in range(1, 6):
        A(f"v_add_u32 v{vA + i}, {i * 131072}, v{vA}")
    A(f"v_lshrrev_b32 v{t0}, 3, v0")
    A(f"v_mul_u32_u24 v{vBD}, 1152, v{t0}")
    A(f"v_lshrrev_b32 v{t0}, 4, v0")
    A(f"v_lshlrev_b32 v{t0}, 1, v{t0}")
    A(f"v_and_b32 v{t1}, 7, v0")
    A(f"v_xor_b32 v{t0}, v{t0}, v{t1}")
    A(f"v_lshl_add_u32 v{vBD}, v{t0}, 4, v{vBD}")
    A(f"v_lshrrev_b32 v{t0}, 2, v0")
    A(f"v_lshlrev_b32 v{vBR}, 7, v{t0}")
    A(f"v_bfe_u32 v{t0}, v0, 3, 2")
    A(f"v_lshl_add_u32 v{vBR}, v{t0}, 5, v{vBR}")
    A(f"v_and_b32 v{t0}, 3, v0")
    A(f"v_lshl_add_u32 v{vBR}, v{t0}, 3, v{vBR}")
    A(f"s_mul_i32 s{sLD}, s{sW}, {DEP * 4096}")
    A(f"v_add_u32 v{vBR}, s{sLD}, v{vBR}")
    for n in range(1, 4):
        A(f"v_xor_b32 v{vBR + n}, {32 * n}, v{vBR}")
    A("s_waitcnt lgkmcnt(0)")
    A(f"s_mov_b32 s{SRD_A}, s36")
    A(f"s_mov_b32 s{SRD_A + 1}, s37")
    A(f"s_mov_b32 s{SRD_A + 2}, {(DIAG_OFF + (2 << 20)) if OPT['diag'] else WS_O_BYTES}")
    A(f"s_mov_b32 s{SRD_A + 3}, 0x20000")
    A(f"s_mov_b32 s{SRD_WO}, s32")
    A(f"s_mov_b32 s{SRD_WO + 1}, s33")
    A(f"s_mov_b32 s{SRD_WO + 2}, {4096 * 1152}")
    A(f"s_mov_b32 s{SRD_WO + 3}, 0x20000")
    A(f"s_mov_b32 s{SRD_OUT}, s34")
    A(f"s_mov_b32 s{SRD_OUT + 1}, s35")
    A(f"s_mov_b32 s{SRD_OUT + 2}, {2304 * 1152}")
    A(f"s_mov_b32 s{SRD_OUT + 3}, 0x20000")
    A(f"s_mul_i32 s{sAS}, s{sMT}, 786432")
    A(f"s_lshl_b32 s{sT0}, s{sW}, 15")
    A(f"s_add_u32 s{sAS}, s{sAS}, s{sT0}")
    A(f"s_mul_i32 s{sBS}, s{sW}, {1024 * 1152}")
    A(f"s_lshl_b32 s{sT0}, s{sNT}, 7")
    A(f"s_add_u32 s{sBS}, s{sBS}, s{sT0}")
    WN = OPT["k2rot"]
    sA0, sB0, sPH, sI = 27, 28, 29, 30

    def blk_addr():
        return [f"s_add_u32 s{sT1}, s{sI}, s{sPH}", f"s_and_b32 s{sT1}, s{sT1}, {WN - 1}",
                f"s_and_b32 s31, s{sI}, {(~(WN - 1)) & 0xff}", f"s_or_b32 s{sT1}, s{sT1}, s31",
                f"s_mul_i32 s{sBS}, s{sT1}, {DEP * 32 * 1152}", f"s_add_u32 s{sBS}, s{sBS}, s{sB0}",
                f"s_lshl_b32 s{sAS}, s{sT1}, 12", f"s_add_u32 s{sAS}, s{sAS}, s{sA0}", f"s_add_u32 s{sI}, s{sI}, 1"]
    A(f"s_mov_b32 s{sA0}, s{sAS}")
    A(f"s_mov_b32 s{sB0}, s{sBS}")
    A(f"s_mul_i32 s{sPH}, s{sMT}, {OPT['k2mul']}")
    A(f"s_add_u32 s{sPH}, s{sPH}, s{sNT}")
    A(f"s_mov_b32 s{sI}, 0")
    A.ext(blk_addr())

    def loads(d):
        o = []
        for i in range(4):
            o.append([f"s_add_u32 m0, s{sLD}, {d * 4096 + i * 1024}",
                      f"s_add_u32 s{sT0}, s{sBS}, {(32 * d + 8 * i) * 1152}",
                      f"buffer_load_dwordx4 v{vBD}, {srd(SRD_WO)}, s{sT0} offen lds"])
        off = f" offset:{d * 1024}" if d else ""
        for i in range(6):
            o.append([f"buffer_load_dwordx4 {vr(ORING + 24 * d + 4 * i, 4)}, v{vA + i}, {srd(SRD_A)}, s{sAS} offen{off}"])
        return o

    def wreads(d):
        b = WF + 16 * (d % 2)
        return [f"ds_read_b64_tr_b16 {vr(b + 4 * n + 2 * e, 2)}, v{vBR + n} offset:{d * 4096 + e * 2048}"
                for n in range(4) for e in range(2)]

    zi = 0
    for d in range(DEP - 1):
        for g in loads(d):
            A.ext(g)
            for _ in range(4):
                if zi < 96:
                    A(f"v_mov_b32 v{ACC2 + zi}, 0")
                    zi += 1
    assert zi == 96
    A(f"s_mov_b32 s{sCNT}, {32 // DEP}")
    A(f"s_waitcnt vmcnt({10 * (DEP - 2) + 6})")
    if OPT["diag"]:
        A("s_memrealtime s[62:63]")
    A.ext(wreads(0))
    A.label("L2_loop")
    body = []
    Bd = body.append
    for d in range(DEP):
        Bd(f"s_waitcnt vmcnt({10 * (DEP - 3) + 6})")
        body += wreads((d + 1) % DEP)
        Bd("s_waitcnt lgkmcnt(8)")
        b = WF + 16 * (d % 2)
        ld = loads((d - 1) % DEP)
        k = 0
        for n in range(4):
            for i in range(6):
                acc = vr(ACC2 + 4 * (6 * n + i), 4)
                Bd(f"{MF} {acc}, {vr(b + 4 * n, 4)}, {vr(ORING + 24 * d + 4 * i, 4)}, {acc}")
                k += 1
                if ld and k % 2 == 0:
                    body += ld.pop(0)
        if d == 0:
            body += blk_addr()
            Bd(f"s_cmp_eq_u32 s{sCNT}, 1")
            Bd(f"s_cselect_b32 s{sAS}, 0x40000000, s{sAS}")
            Bd(f"s_cselect_b32 s{sBS}, 0x40000000, s{sBS}")
    Bd(f"s_sub_u32 s{sCNT}, s{sCNT}, 1")
    Bd(f"s_cmp_lg_u32 s{sCNT}, 0")
    A.ext(body)
    A("s_cbranch_scc1 L2_loop")
    errs = hazard.check(body + body, "k2loop")
    if OPT["diag"]:
        A("s_memrealtime s[64:65]")
    A("s_waitcnt vmcnt(0) lgkmcnt(0)")
    A("s_barrier")
    A(f"s_mul_i32 s{sT0}, s{sW}, 24576")
    A(f"v_lshl_add_u32 v{t0}, v0, 4, s{sT0}")
    A("s_nop 7")
    for q in range(24):
        A(f"ds_write_b128 v{t0}, {vr(ACC2 + 4 * q, 4)} offset:{q * 1024}")
    A(f"v_and_b32 v{t0}, 15, v0")
    A(f"v_lshlrev_b32 v{t0}, 4, v{t0}")
    A(f"v_bfe_u32 v{t1}, v0, 4, 1")
    A(f"v_lshl_add_u32 v{t0}, v{t1}, 9, v{t0}")
    A(f"v_lshrrev_b32 v{t1}, 5, v0")
    A(f"v_lshl_add_u32 v{t0}, v{t1}, 10, v{t0}")
    A(f"s_mul_i32 s{sT0}, s{sW}, {6 * 1024}")
    A(f"v_add_u32 v{t0}, s{sT0}, v{t0}")
    A(f"v_add_u32 v{t1}, 49152, v{t0}")
    A("s_waitcnt lgkmcnt(0)")
    A("s_barrier")
    for w in range(4):
        for x in range(3):
            for q in range(2):
                A(f"ds_read_b128 {vr(ORING + 24 * w + 8 * x + 4 * q, 4)}, v{t0 if w < 2 else t1} offset:{(w % 2) * 24576 + x * 2048 + q * 256}")
        if w % 2 == 1:
            A("s_waitcnt lgkmcnt(0)")
    for w in range(1, 4):
        for e in range(24):
            A(f"v_add_f32 v{ORING + e}, v{ORING + e}, v{ORING + 24 * w + e}")
    for e in range(12):
        A(f"v_cvt_pk_bf16_f32 v{ACC2 + e}, v{ORING + 2 * e}, v{ORING + 2 * e + 1}")
    A(f"v_and_b32 v{t0}, 15, v0")
    A(f"v_lshrrev_b32 v{t1}, 5, v0")
    A(f"v_lshl_add_u32 v{t0}, v{t1}, 4, v{t0}")
    A(f"v_mul_u32_u24 v{t0}, 1152, v{t0}")
    A(f"v_bfe_u32 v{t1}, v0, 4, 1")
    A(f"v_lshl_add_u32 v{t0}, v{t1}, 4, v{t0}")
    A(f"s_mul_i32 s{sAS}, s{sMT}, {96 * 1152}")
    A(f"s_lshl_b32 s{sT0}, s{sNT}, 7")
    A(f"s_add_u32 s{sAS}, s{sAS}, s{sT0}")
    A(f"s_lshl_b32 s{sT0}, s{sW}, 5")
    A(f"s_add_u32 s{sAS}, s{sAS}, s{sT0}")
    for x in range(3):
        A(f"buffer_store_dwordx4 {vr(ACC2 + 4 * x, 4)}, v{t0}, {srd(SRD_OUT)}, s{sAS} offen")
        A(f"s_add_u32 s{sAS}, s{sAS}, {32 * 1152}")
    if OPT["diag"]:
        A("s_waitcnt vmcnt(0)")
        A("s_memrealtime s[66:67]")
        A("s_waitcnt lgkmcnt(0)")
        for i in range(4):
            A(f"v_writelane_b32 v250, s{60 + 2 * i}, {i}")
        A(f"s_lshl_b32 s{sT0}, s2, 2")
        A(f"s_add_u32 s{sT0}, s{sT0}, s{sW}")
        A(f"s_lshl_b32 s{sT0}, s{sT0}, 8")
        A(f"s_add_u32 s{sT0}, s{sT0}, {DIAG_OFF + (1 << 20)}")
        A(f"v_lshlrev_b32 v{t0}, 2, v0")
        A(f"buffer_store_dword v250, v{t0}, {srd(SRD_A)}, s{sT0} offen")
    A.label("L2_end")
    A("s_endpgm")
    return errs


def desc(name, vg, acc, sg=102):
    return f""".p2align 6
.amdhsa_kernel {name}
  .amdhsa_next_free_vgpr {vg}
  .amdhsa_next_free_sgpr {sg}
  .amdhsa_accum_offset {acc}
  .amdhsa_group_segment_fixed_size 0
  .amdhsa_kernarg_size 64
  .amdhsa_user_sgpr_count 2
  .amdhsa_user_sgpr_kernarg_segment_ptr 1
  .amdhsa_system_sgpr_workgroup_id_x 1
.end_amdhsa_kernel
"""


def main():
    A = Asm()
    e = k1(A)
    if not OPT["fuse"]:
        e += k2(A)
    A.label("L_code_end")
    e += hazard.check(A.l, "linear")
    for x in e:
        print(x, file=sys.stderr)
    hdr = f"""; MHA block (q projection + cached attention + output projection) for gfx950, one launch.
; kernarg: x, k_cache, v_cache, wq, wo, out, debug, ws   (bf16 in / out)
;
;  1. q^T = wq^T x^T through LDS-DMA staged chunks, scaled by log2(e)/sqrt(128) in fp32, rounded once to bf16
;     m = row max over the first 16 keys.  m <= true max, so nothing can underflow early; after the sweep the row
;  3. o (bf16, MFMA fragment order) goes to ws with write-through stores; per (batch, 8 heads) counters in d_debug
; @launch kernel=attn_kernel grid=(256,1,1) block=(256,1,1) lds={LDS1}
.amdgcn_target "amdgcn-amd-amdhsa--gfx950"
.text
.globl attn_kernel
"""
    txt = hdr + "\n".join(A.l) + "\n.section .rodata,\"a\"\n" + desc("attn_kernel", 512, 256) + ("" if OPT["fuse"] else desc("oproj_kernel", 256, 256))
    open(sys.argv[1], "w").write(txt)
    if e and not (OPT["nodma"] or OPT["nomf"]):
        sys.exit(1)


main()
```

```python
import re

REG = re.compile(r"\b([vas])(\d+)\b|\b([vas])\[(\d+):(\d+)\]")
TRANS = ("v_exp_f32", "v_log_f32", "v_rcp_f32", "v_rsq_f32", "v_sqrt_f32", "v_sin_f32", "v_cos_f32")


def regs_of(op):
    out = set()
    op = op.strip()
    for m in REG.finditer(op):
        if m.group(1):
            out.add((m.group(1), int(m.group(2))))
        else:
            for i in range(int(m.group(4)), int(m.group(5)) + 1):
                out.add((m.group(3), i))
    if re.search(r"\bvcc\b", op):
        out.add(("s", "vcc"))
    if re.search(r"\bm0\b", op):
        out.add(("s", "m0"))
    if re.search(r"\bexec\b", op):
        out.add(("s", "exec"))
    return out


def split_ops(rest):
    ops, depth, cur = [], 0, ""
    for ch in rest:
        if ch == "[":
            depth += 1
        if ch == "]":
            depth -= 1
        if ch == "," and depth == 0:
            ops.append(cur.strip())
            cur = ""
        else:
            cur += ch
    if cur.strip():
        ops.append(cur.strip())
    return ops


class I:
    def __init__(self, text):
        self.text = text
        t = text.split(";")[0].strip()
        parts = t.split(None, 1)
        self.op = parts[0]
        ops = split_ops(parts[1]) if len(parts) > 1 else []
        self.ops = ops
        self.w, self.r = set(), set()
        self.kind = "other"
        self.states = 1
        op = self.op
        if op == "s_nop":
            self.states = int(ops[0], 0) + 1
            self.kind = "salu"
        elif op.startswith("v_smfmac"):
            self.kind = "mfma"
            self.D, self.A, self.B = (regs_of(o) for o in ops[:3])
            self.B = self.B | regs_of(ops[3])
            self.C = set(self.D)
            self.w = self.D
            self.r = self.A | self.B | self.C
            self.passes = 4
        elif op.startswith("v_mfma"):
            self.kind = "mfma"
            self.D, self.A, self.B, self.C = (regs_of(o) for o in ops[:4])
            self.w = self.D
            self.r = self.A | self.B | self.C
            self.passes = 8 if "32x32x16" in op else 4
        elif op.startswith("v_"):
            self.kind = "valu"
            if op.startswith("v_cmp"):
                self.w = regs_of(ops[0])
                for o in ops[1:]:
                    self.r |= regs_of(o)
            elif op.startswith("v_permlane") and "swap" in op:
                self.w = regs_of(ops[0]) | regs_of(ops[1])
                self.r = set(self.w)
            else:
                self.w = regs_of(ops[0])
                k = 1
                if op.startswith(("v_add_co", "v_addc_co", "v_sub_co", "v_mad_u64")):
                    self.w |= regs_of(ops[1])
                    k = 2
                for o in ops[k:]:
                    self.r |= regs_of(o)
                if op.startswith(("v_fmac", "v_dot2c")):
                    self.r |= regs_of(ops[0])
            self.trans = op.startswith(TRANS)
        elif op.startswith("ds_read"):
            self.kind = "ds"
            self.w = regs_of(ops[0])
            self.r = regs_of(ops[1])
        elif op.startswith("ds_"):
            self.kind = "ds"
            if op.startswith(("ds_bpermute", "ds_swizzle", "ds_permute")):
                self.w = regs_of(ops[0])
                for o in ops[1:]:
                    self.r |= regs_of(o)
            else:
                for o in ops:
                    self.r |= regs_of(o)
        elif op.startswith(("buffer_", "global_")):
            self.kind = "vmem"
            self.lds = bool(re.search(r"\blds\b", t))
            if "load" in op and not self.lds:
                self.w = regs_of(ops[0])
                for o in ops[1:]:
                    self.r |= regs_of(o)
            else:
                for o in ops:
                    self.r |= regs_of(o)
                if self.lds:
                    self.r.add(("s", "m0"))
            self.widestore = ("store" in op) and (op.endswith("x4") or op.endswith("x3"))
            if self.widestore:
                self.sdata = regs_of(ops[0]) if op.startswith("buffer_") else regs_of(ops[1])
        elif op.startswith("s_"):
            self.kind = "salu"
            if op.startswith(("s_cmp", "s_waitcnt", "s_barrier", "s_branch", "s_cbranch", "s_endpgm",
                              "s_setprio", "s_sleep", "s_bitcmp")):
                for o in ops:
                    self.r |= regs_of(o)
            else:
                self.w = regs_of(ops[0]) if ops else set()
                for o in ops[1:]:
                    self.r |= regs_of(o)


def vec(s):
    return {x for x in s if x[0] in "va"}


def sc(s):
    return {x for x in s if x[0] == "s"}


def check(lines, name=""):
    ins = []
    for l in lines:
        t = l.split(";")[0].strip()
        if not t or t.endswith(":") or t.startswith("."):
            continue
        ins.append(I(t))
    errs = []
    n = len(ins)
    for i, p in enumerate(ins):
        dist = 0
        for j in range(i + 1, min(n, i + 24)):
            c = ins[j]
            need = 0
            why = ""
            if p.kind == "valu":
                if c.kind == "mfma" and vec(p.w) & c.r:
                    need, why = 2, "valu->mfma"
                if c.kind == "valu":
                    if p.trans and not c.trans and vec(p.w) & c.r:
                        need, why = max(need, 1), "trans->valu"
                    if c.op.startswith(("v_readfirstlane", "v_readlane")) and vec(p.w) & c.r:
                        need, why = max(need, 1), "valu->readlane"
                    if c.op.startswith("v_permlane") and vec(p.w) & c.r:
                        need, why = max(need, 2), "valu->permlane"
                    if ("dpp" in c.text or "row_" in c.text or "quad_perm" in c.text) and vec(p.w) & c.r:
                        need, why = max(need, 2), "valu->dpp"
                    if sc(p.w) & c.r:
                        need, why = max(need, 2), "valu sgpr->valu"
                if c.kind == "vmem" and sc(p.w) & c.r:
                    need, why = max(need, 5), "valu sgpr->vmem"
            if p.kind == "mfma":
                big = {8: 12, 4: 8}[p.passes]
                if c.kind == "mfma":
                    if p.D & (c.A | c.B):
                        need, why = big, "mfma D->A/B"
                    elif p.D & c.C and p.D != c.C:
                        need, why = big - 2, "mfma D->C overlap"
                    elif p.D & c.D and p.D != c.C:
                        need, why = big - 2, "mfma D->D waw"
                elif c.kind == "valu":
                    if p.D & (c.r | c.w):
                        need, why = big, "mfma D->valu"
                    elif p.C & c.w:
                        need, why = {8: 7, 4: 3}[p.passes], "mfma C war"
                elif c.kind in ("ds", "vmem"):
                    if p.D & (c.r | c.w):
                        need, why = big, "mfma D->mem"
            if p.kind == "salu" and ("s", "m0") in p.w and c.kind == "vmem" and c.lds:
                need, why = 1, "m0->ldsdma"
            if p.kind == "vmem" and p.widestore and (p.sdata & c.w):
                need, why = (2 if c.kind in ("valu", "mfma") else 1), "store war"
            if need > dist:
                errs.append(f"{name}: HAZARD {why}: need {need} have {dist}: [{p.text}] -> [{c.text}]")
            dist += c.states
            if c.op in ("s_branch", "s_endpgm", "s_setpc_b64"):
                break
    return errs
```

```python
import math
import struct
import sys

import hazard

OPT = dict(diag=0, L=6, W=2, xmap=1, nodma=0, nobar=0, kvflag=1, ostflag=2, wopf=2, wsh=8,
           k2grid=216, LQ=7, dmastep=16, gY=136, thr=32, show=0, qstep=5, up=2, qpflag=0, dbg=0, cpf=1, nph=5, k2rot=1, D=3, pf=0, stg=0, pfa=4, kvs=0, rot=0, k2mul=1, fuse=1, dst=0, DO=4, oflag=2, early=5, l2pf=0, fast=1, wsoff=0, twice=0, nomf=0, pad=0, tlb=0, eord=0, fine=0, wflag=0, p3same=0, chain=1, LG=30, LM=12, SO=4, gB=3, e1a=9, e1b=70, LMB=10, dma0=6, wa=8, b2=1, lp=0, lp0=4, wpg=75, noin=0, al8=0, onesm=4, vm2=1, bcap=0, tidy=1, x6d=0, outflag=0, pre=4, slp=4, ppos=4, wpre=9, qpad=4352, gpad=1152, dspin=0, helper=0, hA=6, ho=4, post=0, tail2=1)
for a in sys.argv[2:]:
    k, v = a.split("=")
    OPT[k] = int(v)
FLAGS = ['', ' nt', ' sc1', ' sc0 sc1', ' sc1 nt', ' sc0 sc1 nt', ' sc0']

BLK = 1056
HS = 16 * BLK
DD = OPT['D']
NS = 2 * DD + 1
TS = 7
STATS = 9 * HS
assert DD == 3
XB = 1088
WOFF, XEOFF, XOFF = 0, 17408, 21504
WG0 = 4 * XB + OPT["wsh"]
WG1 = 8720
STSZ = 54272
LDS1 = 163840
GP = 32768 + OPT['gpad']
QP = 4 * GP + OPT['qpad']
WS_O_BYTES = 144 * QP
DIAG_OFF = 64 << 20


def f32bits(x):
    return struct.unpack("<I", struct.pack("<f", x))[0]


QSCALE = f32bits(128 ** -0.5 * math.log2(math.e))


class Asm:
    def __init__(self):
        self.l = []

    def __call__(self, s):
        if " | buffer_store" in s:
            for x in s.split(" | "):
                self.l.append("    " + x)
        else:
            self.l.append("    " + s)

    def label(self, s):
        self.l.append(s + ":")

    def raw(self, s):
        self.l.append(s)

    def ext(self, lst):
        for s in lst:
            self(s)


def vr(a, n):
    return f"v[{a}:{a + n - 1}]"


def ar(a, n):
    return f"a[{a}:{a + n - 1}]"


def srd(n):
    return f"s[{n}:{n + 3}]"


MF = "v_mfma_f32_16x16x32_bf16"
SMF = "v_smfmac_f32_16x16x64_bf16"
vIDX = 255

SRD_X, SRD_W, SRD_K, SRD_V, SRD_O, SRD_P = 4, 8, 12, 16, 20, 84
sW, sP, sB, sH = 24, 25, 27, 28
sXD, sXS, sWD, sWS, sT0, sT1 = 42, 43, 44, 45, 46, 47
sXED, sXES = 48, 55
sCNT = 49
sKD, sVD, sKVS, sKN, sVN = 50, 51, 52, 53, 54
sSC = 56
sT2 = 57
sOUTP = 32
sWP = 30
sG0 = 31
sDV = 3
sOO = 58
sREDO = 59
sST = 60
sWOF = 88
sCX, sCW = 89, 100
sPC = 98
sXSc, sWSc, sXEc = 29, 26, 101

vXD, vXDE, vWD, vCW, vV4 = 2, 4, 5, 6, 8
vQA = 160
ACC = 16
B0 = [16, 56]
B1 = 96
NEG = 128
QV = 160
vKB, vVB = 240, 244
vK, vV = 148, 152
vM = 96
vDUM = 252
OA, LA, ONES, RING = 0, 160, 180, 192
XF = [184, 204]
WRING = 224


def Sreg(t, par):
    assert par == 0
    return B0[0] + 8 * t


stamp_n = [0]


def stamp_txt():
    if OPT["diag"] == 1:
        n = stamp_n[0]
        stamp_n[0] += 1
        assert n < 12
        return [f"s_memtime s[{sST + 2 * n}:{sST + 2 * n + 1}]"]
    return []


def stamp(A):
    A.ext(stamp_txt())


def is_ds(x):
    return x.startswith("ds_")


def add_waits(seq, cyclic, W=1, nfr=None):
    rep = 2 if cyclic else 1
    out = []
    issued = 0
    done = 0
    last = {}
    for it in range(rep):
        out = []
        for e in seq:
            if e[0] == "x":
                if is_ds(e[1]):
                    issued += 1
                    if e[2] is not None:
                        last[e[2]] = issued
                if "lgkmcnt(0)" in e[1] or e[1] == "VMW":
                    done = issued
                out.append(e[1])
            else:
                need = 0
                for f in e[2]:
                    if f in last:
                        need = max(need, last[f])
                if need > done:
                    tgt = need
                    for f in e[3] if len(e) > 3 else []:
                        if f in last and last[f] > need - 40:
                            tgt = max(tgt, last[f])
                    n = issued - tgt
                    if n > 15:
                        n = 15
                        tgt = issued - 15
                    out.append(f"s_waitcnt lgkmcnt({n})")
                    done = tgt
                if e[1] is not None:
                    out.append(e[1])
    return out


vD = 246
sINC = 60 if not OPT["diag"] else 26
sWI = 61 if not OPT["diag"] else 29
sKP = 64 if not OPT["diag"] else 34


def tidy(lst):
    import re
    out, gap = [], []

    def flush(seen_mfma):
        g = list(gap)
        gap.clear()
        if not seen_mfma or any(x.startswith(("s_barrier", "s_cbranch", "s_branch")) or x.endswith(":") for x in g):
            return g
        if g and re.fullmatch(r"s_waitcnt lgkmcnt\(\d+\)", g[-1]) and not any("waitcnt" in x for x in g[:-1]):
            n = int(g[-1][18:-1]) - sum(is_ds(x) for x in g[:-1])
            if n >= 0:
                g = [f"s_waitcnt lgkmcnt({n})"] + g[:-1]
        ch = True
        while ch:
            ch = False
            for i in range(len(g) - 1):
                a, b = g[i], g[i + 1]
                if a.startswith("v_") and b.startswith(("ds_", "s_add", "s_mov", "s_lshl", "s_mul", "s_sub", "s_min", "s_and")):
                    ia, ib = hazard.I(a), hazard.I(b)
                    if not (ia.w & (ib.r | ib.w)) and not (ib.w & ia.r):
                        g[i], g[i + 1] = b, a
                        ch = True
        return g
    seen = False
    for x in lst:
        if x.startswith(("v_mfma", "v_smfmac")):
            out += flush(seen)
            out.append(x)
            seen = True
        else:
            gap.append(x)
    out += gap
    return out


def kv_piece(dst, srdn, i):
    return [f"s_add_u32 m0, s{dst}, {i * BLK}",
            f"buffer_load_dwordx4 v{vD + i}, {srd(srdn)}, s{sKVS} offen{FLAGS[OPT['kvflag']]} lds"]


def item_piece(n, i):
    o = f" offset:{i * 1024}" if i else ""
    return [f"s_add_u32 m0, s{sWOF}, {(n % NS) * HS + i * (BLK - 1024)}",
            (f"s_add_u32 s{sT0}, s{sG0}, {(n // 2) * 16384}" if OPT["rot"] else f"s_mov_b32 s{sT0}, {(n // 2) * 16384}"),
            f"buffer_load_dwordx4 v{vV4}, {srd(SRD_V if n % 2 else SRD_K)}, s{sT0} offen{o}{FLAGS[OPT['kvflag']]} lds"]


def adv(r, tmp=None):
    tmp = sT2 if tmp is None else tmp
    return [f"s_add_u32 s{r}, s{r}, {2 * HS}", f"s_sub_u32 s{tmp}, s{r}, {NS * HS}", f"s_min_u32 s{r}, s{r}, s{tmp}"]


def kread(dst, base, kb, kk):
    return f"ds_read_b128 {dst}, v{base + (kk >> 1)} offset:{kb * 256 + (kk & 1) * 64}"


VC, VN = 1000, 2000


def realize(x, par):
    import re

    def f(m):
        n = int(m.group(0))
        if n >= VN:
            return str(B0[1 - par] + n - VN)
        return str(B0[par] + n - VC)
    return re.sub(r"(?<![\w:x])[12]0\d\d(?=[\]:,\s]|$)|(?<=v)[12]0\d\d|(?<=[\[:])[12]0\d\d(?=[\]:])", f, x) if x.startswith("v_") else x


def build_loop():
    NF = 32
    mf = []
    qk_end, pv_first = {}, {}

    def S(j, t, nxt=False):
        return (B1 + 8 * t) if j == 1 else ((VN if nxt else VC) + 8 * t)
    for ph, jn in ((0, 1), (1, 0)):
        tiles = range(5) if jn == 0 else range(4)
        for kb in range(2):
            for t in tiles:
                for kk in range(4):
                    f = 8 * ph + kb * 4 + kk
                    Sx = S(jn, t, True) + 4 * kb
                    C = vr(NEG + 4 * t, 4) if kk == 0 else vr(Sx, 4)
                    mf.append(dict(t=f"{MF} {vr(Sx, 4)}, {ar(RING + 4 * (f % 16), 4)}, {vr(QV + 16 * t + 4 * kk, 4)}, {C}", f=f))
                    qk_end[(jn, t, kb)] = len(mf) - 1
        if ph == 0:
            gX = len(mf) - 1
    for dt in range(8):
        for t in range(5):
            for j in range(2 if t < 4 else 1):
                f = 16 + 2 * dt + j
                O = ar(OA + 32 * t + 4 * dt, 4)
                mf.append(dict(t=f"{MF} {O}, {ar(RING + 4 * (f % 16), 4)}, {vr(VC + 8 * t + 4 * j, 4)}, {O}", f=f))
                pv_first.setdefault((j, t), len(mf) - 1)
        x = dt - 2
        if 0 <= x < 5:
            Lr = ar(LA + 4 * x, 4)
            if x < 4:
                mf.append(dict(t=f"{SMF} {Lr}, {ar(ONES, 4)}, {vr(VC + 8 * x, 8)}, v{vIDX}", f=16 + 2 * dt))
            else:
                mf.append(dict(t=f"{MF} {Lr}, {ar(ONES, 4)}, {vr(VC + 8 * x, 4)}, {Lr}", f=16 + 2 * dt))
    N = len(mf)
    assert N == 149
    first_use, last_use = {}, {}
    for i, m in enumerate(mf):
        first_use.setdefault(m["f"], i)
        last_use[m["f"]] = i

    def wsz(f):
        return (OPT['wa'] if f < 8 else 4) if f < 16 else 2
    cap = [2] * N
    scal = [None] * N
    for f in range(NF):
        if f % wsz(f) == 0:
            scal[(first_use[f] - 1) % N] = ("W", [(f + k) % NF for k in range(wsz(f))])
    scal[N - 2], scal[N - 1] = scal[N - 1], ("B",)
    cap[N - 1] = 0
    for i, m in enumerate(mf):
        if m["t"].startswith(SMF):
            cap[i] = 1
    assert scal[gX - 1] is None and scal[gX - 2] is None
    scal[gX - 1], scal[gX] = scal[gX], ("P", 1, "s_cbranch_scc1 L1_tail")
    scal[gX - 2] = ("P", 1, f"s_cmp_eq_u32 s{sSIDE}, 2")
    gB = OPT["gB"]
    nvm = 8 + (1 if OPT["wopf"] == 2 else 0)
    assert scal[gB - 1] is None and scal[gB] is None
    scal[gB - 1] = ("T", f"s_waitcnt vmcnt({(DD - 2) * nvm})")
    scal[gB] = ("T", "s_barrier")
    cap[gB] = OPT["bcap"]
    gY = OPT["gY"]
    assert scal[gY] is None and scal[gY - 1] is None
    scal[gY - 1] = ("P", 0, f"s_sub_u32 s{sCNT}, s{sCNT}, 1")
    scal[gY] = ("P", 0, "s_cbranch_scc1 L1_side | L1_back:")
    e1a, e1b = OPT["e1a"], OPT["e1b"]
    ok = [g for g in range(-N, 2 * N) if cap[g % N] == 2]
    place, taken = {}, set()
    for j, lo, hi in ((1, e1a, e1b), (0, e1b + 2 - N, e1a - 2)):
        keys = [(j, t, kb, r) for kb in range(2) for t in (range(5) if j == 0 else range(4)) for r in range(4)]
        gs = []
        for k in range(len(keys)):
            want = lo + k * (hi - lo) / (len(keys) - 1.0)
            g = min((x for x in ok if x % N not in taken and lo <= x <= hi), key=lambda x: abs(x - want))
            taken.add(g % N)
            gs.append(g)
        for key, g in zip(keys, sorted(gs)):
            place[key] = g
    for (j, t, kb, r), g in place.items():
        assert g >= qk_end[(j, t, kb)] + 6 - (N if j == 0 else 0), (j, t, kb, r, g)
        assert g <= pv_first[(j, t)] - 5, (j, t, kb, r, g)
        cap[g % N] = 0

    def frag_reads(f):
        dst = RING + 4 * (f % 16)
        if f < 16:
            kb, kk = divmod(f % 8, 4)
            return [kread(ar(dst, 4), vK + (2 if f < 8 else 0), kb, kk)]
        dt, j = divmod(f - 16, 2)
        return [f"ds_read_b64_tr_b16 {ar(dst + 2 * e, 2)}, v{vV + j} offset:{e * 256 + dt * 32}" for e in range(2)]

    items = []

    def add(name, lo, hi, text, kind=None, chain=None, after=()):
        items.append(dict(n=name, lo=lo, hi=hi, t=text, k=kind, c=chain, a=list(after)))

    for (j, t, kb, r), g in sorted(place.items(), key=lambda z: z[1]):
        if r % 2 == 1:
            Sx = S(j, t)
            add(f"c{j}{t}{kb}{r}", g + 1, min(g + 14, pv_first[(j, t)] - 3),
                f"v_cvt_pk_bf16_f32 v{VC + 8 * t + 4 * j + 2 * kb + r // 2}, v{Sx + 4 * kb + r - 1}, v{Sx + 4 * kb + r}", ("cvt", j, t), "cvt")
    LG, LM = OPT["LG"], OPT["LM"]
    add("v0", 0, 30, f"v_add_u32 v{vV}, s{sVN}, v{vVB}", None, None)
    add("v1", 0, 31, f"v_add_u32 v{vV + 1}, s{sVN}, v{vVB + 1}", None, None)
    for f in range(NF):
        fu = first_use[f - f % wsz(f)]
        lo = max(fu - LG, last_use[(f + 16) % NF] - (N if f < 16 else 0))
        if 8 <= f < 16:
            lo = max(lo, gB + 1)
        if f >= 16:
            lo = max(lo, gX + 1)
        for e, x in enumerate(frag_reads(f)):
            add(f"r{f}_{e}", lo, fu - (OPT["LMB"] if 8 <= f < 12 else LM), x, ("rd", f), "rd", ["v0", "v1"] if f >= 16 else [])
    add("k1a", 0, 100, f"v_add_u32 v{vK + 2}, s{sDV}, v{vK}", None, None, ["r5_0"])
    add("k1b", 0, 100, f"v_add_u32 v{vK + 3}, s{sDV}, v{vK + 1}", None, None, ["r7_0"])
    st = OPT["dmastep"]
    g = gB + OPT["dma0"]
    prevd = None
    for nm, dst, srdn in (("V", sVD, SRD_V), ("K", sKD, SRD_K)):
        for i in range(4):
            pc = kv_piece(dst, srdn, i)
            add(f"m{nm}{i}", g, g + 10, pc[0], "m0", "dma", [prevd] if prevd else [])
            prevd = f"d{nm}{i}"
            add(f"d{nm}{i}", g + 1, g + 14, pc[1], "dma", "dma")
            g += st
    add("svd", 0, N - 13, f"s_add_u32 s{sVD}, s{sKN}, s{sWOF}", None, "ak", ["dV3"])
    for i, x in enumerate(adv(sKN)):
        add(f"ak{i}", 0, N - 11 + i, x, None, "ak")
    add("k0a", 0, N - 5, f"v_add_u32 v{vK}, s{sKN}, v{vKB}", None, None, ["ak2", "r13_0", "k1a"])
    add("k0b", 0, N - 5, f"v_add_u32 v{vK + 1}, s{sKN}, v{vKB + 1}", None, None, ["ak2", "r15_0", "k1b"])
    for i, x in enumerate(adv(sVN, sT1)):
        add(f"av{i}", 0, N - 9 + i, x, None, "av", ["v0", "v1"])
    for i, x in enumerate(adv(sKD, sT0)):
        add(f"ad{i}", 0, N - 5 + i, x, None, "ad", ["dK3"])
    add("kvs", gY + 1, N - 2, f"s_add_u32 s{sKVS}, s{sKVS}, s{sINC}", None, None, ["dK3"])
    if OPT["wopf"] == 2:
        add("wp", OPT["wpg"], gY - 6, f"buffer_load_dword v{vDUM}, v7, {srd(SRD_P)}, s{sWP} offen", None, "wp")
        add("wpa", 0, gY - 2, f"s_add_u32 s{sWP}, s{sWP}, s{sWI}", None, "wp", ["wp"])
    NP = 5
    pend = []
    for p in range(NP):
        for i, x in enumerate(items):
            pend.append(dict(x, p=p, i=i, lo=x["lo"] + p * N, hi=x["hi"] + p * N))
    chains = {}
    for x in pend:
        chains.setdefault(x["c"] or ("solo", x["n"]), []).append(x)
    at, out = {}, {}
    for g in range(-N, (NP + 1) * N):
        free = cap[g % N]
        sfree = scal[g % N] is None
        while free or sfree:
            cands = []
            for c, q in chains.items():
                if not q:
                    continue
                x = q[0]
                if x["lo"] > g or any((a_, x["p"]) not in at for a_ in x["a"]):
                    continue
                if x["k"] == "dma" and at[("m" + x["n"][1:], x["p"])] == g:
                    continue
                if x["t"].startswith("s_") and not sfree:
                    continue
                if not x["t"].startswith("s_") and not free:
                    continue
                if any(at[(a_, x["p"])] == g for a_ in x["a"]):
                    continue
                if x["t"].startswith("buffer") and (g % N == gB - 1 or free < 2):
                    continue
                cands.append(x)
            if not cands:
                break
            x = min(cands, key=lambda x: (x["hi"], x["i"]))
            chains[x["c"] or ("solo", x["n"])].pop(0)
            at[(x["n"], x["p"])] = g
            out.setdefault(g, []).append(x)
            if x["t"].startswith("s_"):
                sfree = False
            else:
                free -= 2 if x["t"].startswith("buffer") else 1
    for x in items:
        assert at[(x["n"], 2)] - 2 * N == at[(x["n"], 3)] - 3 * N, ("not periodic", x)
        assert at[(x["n"], 2)] - 2 * N <= x["hi"], ("late", x, at[(x["n"], 2)] - 2 * N)
    rel = {x["n"]: at[(x["n"], 2)] - 2 * N for x in items}
    assert rel["dK3"] < gY - 1 and rel["r31_1"] < N
    assert rel["k1a"] < rel["r0_0"] + N and rel["k1b"] < rel["r2_0"] + N
    assert first_use[8 - wsz(0)] <= gB - 1
    assert rel["v0"] < gX and rel["v1"] < gX
    gaps = [[] for _ in range(N)]
    cls = lambda t: 0 if t.startswith("s_") else 1 if t.startswith(("ds_", "buffer")) else 2
    nx = lambda t: __import__("re").sub(r"v10(\d\d)", r"v20\1", t)
    for g in range(N):
        for x in sorted(out.get(2 * N + g, []), key=lambda x: cls(x["t"])):
            n = x["p"] == 3
            gaps[g].append((nx(x["t"]) if n else x["t"], "n" if n else "", x["k"]))
            assert x["p"] in (2, 3), x
    for (j, t, kb, r), g in place.items():
        Sx = S(j, t, g < 0) + 4 * kb + r
        gaps[g % N].append((f"v_exp_f32 v{Sx}, v{Sx}", "n" if g < 0 else "", ("sm", j, t)))
    seq, pro, tail = [], [], []
    for par in range(2):
        for i, m in enumerate(mf):
            if i == 0 and par == 1 and OPT["diag"]:
                for y in diag_top():
                    seq.append(("x", y, None))
            seq.append(("m", realize(m["t"], par), [m["f"]]))
            sc_ = scal[i]
            if sc_ and sc_[0] == "W":
                seq.append(("m", None, sc_[1]))
            elif sc_ and sc_[0] == "T":
                seq.append(("x", sc_[1], None))
            elif sc_ and sc_[0] == "P" and sc_[1] == par:
                seq.append(("x", sc_[2], None))
            for x in gaps[i]:
                isrd = isinstance(x[2], tuple) and x[2][0] == "rd"
                seq.append(("x", realize(x[0], par), x[2][1] if isrd else None))
                if par == 1 and x[1] == "n":
                    assert isinstance(x[2], tuple), x
                    pro.append(realize(x[0], 1))
                if par == 1 and i >= gX and x[1] != "n" and isinstance(x[2], tuple):
                    if x[2][0] in ("sm", "cvt"):
                        tail.append((x[2][2], realize(x[0], 1)))
    body = add_waits(seq, True)
    body = [y for x in body for y in x.split(" | ")]
    if OPT["show"]:
        print("gaps:", "".join("E" if any(y[0].startswith("v_exp") for y in g_) else str(len(g_)) for g_ in gaps), file=sys.stderr)
        print("instr", len(body), "dma", [rel[f"d{n}{i}"] for n in "VK" for i in range(4)],
              "leads", [first_use[f - f % wsz(f)] - rel[f"r{f}_{1 if f >= 16 else 0}"] for f in range(NF)],
              "pro", len(pro), "tail", len(tail), file=sys.stderr)
    if OPT["al8"]:
        body = align8(body)
    vreads = [x for f in range(16, 32) for x in frag_reads(f)]
    return body, pro, tail, vreads


def isize(x):
    import re
    if x.endswith(":"):
        return 0
    if x.startswith(("v_mfma", "ds_", "buffer_", "v_cvt_pk")) or "_e64" in x:
        return 8
    ops = x.split(None, 1)[1] if " " in x else ""
    lit = [o.strip() for o in ops.split(",") if re.fullmatch(r"\s*(0x[0-9a-f]+|\d+)\s*", o)]
    if not x.startswith(("s_waitcnt", "s_nop", "s_barrier", "s_cbranch", "s_branch")) and any(int(l, 0) > 64 for l in lit):
        return 8
    return 4


def align8(body):
    out = list(body)
    pos, lastv = 0, None
    i = 0
    while i < len(out):
        x = out[i]
        sz = isize(x)
        if sz == 8 and pos % 8 == 4 and lastv is not None:
            op, rest = out[lastv].split(None, 1)
            out[lastv] = op + "_e64 " + rest
            pos += 4
        if sz == 8:
            lastv = None
        elif sz == 4 and x.startswith(("v_exp", "v_add_u32")):
            lastv = i
        pos += sz
        i += 1
    return out


def diag_top():
    if OPT["noin"]:
        return []
    return ["s_mov_b32 m0, s41", "s_sub_u32 s41, s41, 1", "v_writelane_b32 v250, s90, m0", "v_writelane_b32 v251, s96, m0",
            "s_memtime s[90:91]", "s_memrealtime s[96:97]"]


def cursor(r):
    return [f"s_add_u32 s{r}, s{r}, 128", f"s_sub_u32 s{sT2}, s{r}, 1152", f"s_min_u32 s{r}, s{r}, s{sT2}"]


def x_pieces(c):
    st = STG[c] * STSZ
    p = []
    for i in range(8):
        pre = [f"s_add_u32 s{sXSc}, s{sXS}, s{sCX}"] + cursor(sCX) if i == 0 else []
        p.append(pre + [f"s_add_u32 m0, s{sXD}, {st + i * 1024}",
                        (f"s_add_u32 s{sT0}, s{sXSc}, {i * 9216}" if i else "s_nop 0"),
                        f"buffer_load_dwordx4 v{vXD + (i & 1)}, {srd(SRD_X)}, s{sT0 if i else sXSc} offen{FLAGS[OPT['qpflag']]} lds"])
    return p


def wg_pieces(c):
    st = STG[c] * STSZ
    p = []
    for r in range(4):
        pre = [f"s_lshl_b32 s{sWSc}, s{sCW}, 12", f"s_add_u32 s{sWSc}, s{sWSc}, s{sWS}",
               f"s_add_u32 s{sXEc}, s{sXES}, s{sCW}"] + cursor(sCW) if r == 0 else []
        p.append(pre + [f"s_add_u32 m0, s{sWD}, {st + WOFF + r * XB}",
                        (f"s_add_u32 s{sT0}, s{sWSc}, {r * 8192}" if r else "s_nop 0"),
                        f"buffer_load_dwordx4 v{vWD}, {srd(SRD_W)}, s{sT0 if r else sWSc} offen{FLAGS[OPT['qpflag']]} lds"])
    p.append([f"s_add_u32 m0, s{sXED}, {st}", "s_nop 0",
              f"buffer_load_dwordx4 v{vXDE}, {srd(SRD_X)}, s{sXEc} offen{FLAGS[OPT['qpflag']]} lds"])
    return p


STG = [[0, 2, 1, 0, 2, 1, 2, 1, 2], [0, 1, 2, 0, 1, 2, 0, 1, 2]][OPT['stg']]


def build_qproj(extras, nup, tail_items, fill):
    LQ = OPT["LQ"]
    mf = []
    first_use, last_use = {}, {}
    for s in range(18):
        for sl in range(8):
            f = ("w", 8 * s + sl)
            tiles = range(5) if sl < 4 else range(4)
            for t in tiles:
                a = ACC + 32 * t + 4 * sl
                C = "0" if s == 0 else vr(a, 4)
                txt = f"{MF} {vr(a, 4)}, {ar(WRING + 4 * sl, 4)}, {ar(XF[s % 2] + 4 * t, 4)}, {C}"
                mf.append((txt, [f, ("x", s, t)]))
                for q in (f, ("x", s, t)):
                    first_use.setdefault(q, len(mf) - 1)
                    last_use[q] = len(mf) - 1
    N = len(mf)
    gaps = [[] for _ in range(N + 1)]

    def st_of(c):
        return (6, 0) if STG[c] == 2 else (0, STG[c] * STSZ)

    def wread(n):
        s, sl = divmod(n, 8)
        c, ks = divmod(s, 2)
        rb, st = st_of(c)
        kk, u = divmod(sl, 2)
        base = vQA + rb + (4 if kk < 2 else 5)
        return [(f"ds_read_b64_tr_b16 {ar(WRING + 4 * sl + 2 * e, 2)}, v{base} offset:{st + (kk & 1) * 64 + 8 * u + e * 256 + ks * 512}",
                 ("w", n)) for e in range(2)]

    def xread(s, t):
        c, ks = divmod(s, 2)
        rb, st = st_of(c)
        if t < 4:
            return (f"ds_read_b128 {ar(XF[s % 2] + 4 * t, 4)}, v{vQA + rb + ks} offset:{st + t * 2048}", ("x", s, t))
        return (f"ds_read_b128 {ar(XF[s % 2] + 16, 4)}, v{vQA + rb + 2 + ks} offset:{st}", ("x", s, t))

    bar = {0: -1, 9: N}
    for c in range(1, 9):
        bar[c] = last_use[("w", 16 * c - LQ + 1)]
    items = []
    for n in range(144):
        c = n // 16
        e = last_use[("w", n - 8)] if n >= 8 else -1
        tg = first_use[("w", n - LQ)] if n >= LQ else -1
        tg = max(tg, e, bar[c])
        for x in wread(n):
            items.append((tg, x))
    rd = sorted(items, key=lambda z: z[0])
    xi = []
    for s in range(18):
        c, ks = divmod(s, 2)
        for t in range(5):
            e = last_use[("x", s - 2, t)] if s >= 2 else -1
            tg = max(e, bar[c])
            if s == 1:
                tg = 0
            if OPT["b2"] and ks == 1 and t == 4 and s > 1:
                tg = max(tg, last_use[("x", s - 2, 3)])
            xi.append((tg, xread(s, t)))
    allrd = sorted([(tg, 0, i, x) for i, (tg, x) in enumerate(xi)] + [(tg, 1, i, x) for i, (tg, x) in enumerate(rd)],
                   key=lambda z: (z[0], z[1], z[2]))
    used = [0] * (N + 2)
    xdone = {}
    g = -1
    for tg, _, _, x in allrd:
        g = max(g, tg)
        if g < 0 and used[0] >= 9:
            g = 0
        wgt = 2 if (OPT["b2"] and "b128" in x[0] and g >= 0) else 1
        while g >= 0 and used[g + 1] + wgt > 2:
            g += 1
        gaps[g + 1].append(("x", x[0], x[1]))
        used[g + 1] += wgt
        if x[1][0] == "x":
            xdone[x[1][1]] = g
        cc = x[1][1] // 16 if x[1][0] == "w" else x[1][1] // 2
        assert g < bar[cc + 1] - 2, (x, g, bar[cc + 1])
    last_rd = g
    sused = [0] * (N + 2)
    groups = []
    for c in range(nup, 9):
        prev = [p for p in range(c) if STG[p] == STG[c]]
        ew = bar[prev[-1] + 1] if prev else -1
        ex = xdone[2 * prev[-1] + 1] + 10 if prev else -1
        if c == 6:
            ex += OPT["x6d"]
        groups.append((ew, 0, c, wg_pieces(c), ("W", c), None))
        groups.append((ex, 2, c, x_pieces(c), ("X", c), prev[-1] if prev else None))
    for c, ps in extras.items():
        groups.append((bar[c] + (45 if (OPT["eord"] and c < 8) else 0), 1, c, ps, ("E", c), None))
    groups.sort(key=lambda z: (z[0], z[2] if z[0] < 0 else 0, z[1]))
    for kind in "WX":
        cs = [z[4][1] for z in groups if z[4][0] == kind]
        assert cs == sorted(cs), cs
    issued = []
    for c in range(nup):
        issued += [(("W", c), -1)] * 5 + [(("X", c), -1)] * 8
        if c == 0 and (OPT["pf"] or OPT["tlb"] == 1):
            issued += [(("P", 0), -1)] * 2
    g = 0
    for tg, _, _, ps, tag, prev in groups:
        for i, p in enumerate(ps):
            late = g - tg
            g = max(g, tg)
            g0 = g
            if i == 0 and prev is not None:
                while used[g + 1] >= 1:
                    g += 1
                gaps[g + 1].append(("xw", ("x", 2 * prev + 1)))
                used[g + 1] += 2
            for ins in p[:-1]:
                if ins == "s_nop 0":
                    continue
                if ins.startswith("s_"):
                    while sused[g + 1] + max(0, used[g + 1] - 1) >= 2 or (sused[g + 1] and used[g + 1] >= 2):
                        g += 1
                    gaps[g + 1].insert(sused[g + 1], ("x", ins, None))
                    sused[g + 1] += 1
                else:
                    while used[g + 1] >= 2:
                        g += 1
                    gaps[g + 1].append(("x", ins, None))
                    used[g + 1] += 1
            g += 1
            while used[g + 1] >= 1:
                g += 1
            assert g < N - 30, (tag, g)
            gaps[g + 1].append(("x", p[-1], None))
            used[g + 1] = 2
            issued.append((tag, g))
            g = max(g + 1, g0 + (OPT["qstep"] if late < 30 else 2))
    for c, lst in fill.items():
        g = bar[c]
        for ins in lst:
            k = ins.count(" | ") + 1
            while used[g + 1] + k > 2 or (k > 1 and used[g + 1]):
                g += 1
            for y in ins.split(" | "):
                gaps[g + 1].append(("x", y, None))
            used[g + 1] += k
            assert g < min(bar[c + 1], N - 26), (c, g)
    vm_at = {}
    for c in range(1, 9):
        before = [t for t, gg in issued if gg < bar[c]]
        for t, gg in issued:
            if t in (("W", c), ("X", c)):
                assert gg < bar[c] - 30, (t, gg, bar[c])
        lastneed = max(i for i, t in enumerate(before) if t in (("W", c), ("X", c)))
        vm_at[c] = len(before) - 1 - lastneed
    if OPT["show"]:
        print("bar", bar, "vm", vm_at, "issue", [(t[0] + str(t[1]), g) for t, g in issued if g >= 0], "lastrd", last_rd - (N - 36), file=sys.stderr)
    seq = []
    tf = list(tail_items)
    for i in range(N + 1):
        if i > 0:
            seq.append(("m", mf[i - 1][0], mf[i - 1][1]))
        for c in range(1, 9):
            if bar[c] == i - 1:
                seq.append(("x", f"s_waitcnt vmcnt({vm_at[c]}) lgkmcnt(0)", None))
                seq.append(("x", "s_barrier", None))
                if OPT["diag"]:
                    seq.append(("x", f"v_writelane_b32 v250, s90, {40 + c}", None))
                    seq.append(("x", "s_memtime s[90:91]", None))
        for x in gaps[i]:
            if x[0] == "xw":
                seq.append(("m", "s_nop 0", [("x", x[1][1], t) for t in range(5)]))
            else:
                seq.append(x)
        while tf and tf[0][0] <= i - 1 - (N - 36):
            seq.append(("x", tf.pop(0)[1], None))
    assert not tf
    return add_waits(seq, False), [t for t, _ in issued]


DW = 9
PRE = OPT['pre']
SRD_OUT, SRD_D = SRD_X, SRD_W
sMT, sNT, sBS, sLD, sU, sPA, sCA = sXD, sXS, sWS, sXED, sXES, sCX, sCW
sAI = 32
sSIDE, sRDY, sPF = 38, 39, 40
vBD, vPF, vZ, vPL = 2, 3, 4, 5
vBR, WF, AC = 144, 112, 160


def wslot(s):
    return (1 + s if s < PRE else [1, 2, 3, 4, 5, 6, 0, 7, 8][(s - PRE) % DW]) * HS


def wload(s):
    return [([f"s_add_u32 s{sU}, s{sBS}, {s * 36864}"] if i == 0 else []) +
            [f"s_add_u32 m0, s{sWOF}, {wslot(s) + i * BLK}", "s_nop 0",
             f"buffer_load_dwordx4 v{vD + i}, {srd(SRD_P)}, s{sU} offen lds"] for i in range(4)]


def oreg(s, i):
    n = (s % OPT["DO"]) * 6 + i
    return 4 * n if n < 16 else 128 + 4 * (n - 16) if n < 24 else 64 + 4 * (n - 24)


def oload(s):
    off = f" offset:{(s % 4) * 1024}" if s % 4 else ""
    o = []
    for i in range(6):
        pre = [f"s_add_u32 s{sAI + i}, s{sAI + i}, 4096"] if (s % 4 == 0 and s and not OPT['p3same'] & 2) else []
        o.append(pre + [f"buffer_load_dwordx4 {ar(oreg(s, i), 4)}, v11, {srd(SRD_O)}, s{sAI + i} offen{off}{FLAGS[OPT['oflag']]}"])
    return o


def p3_setup():
    Z = Asm()
    Z(f"s_lshr_b32 s{sU}, s2, 3")
    Z(f"s_mul_i32 s{sPF}, s{sU}, {max(OPT['lp'], 1) * 1152}")
    Z(f"s_mul_i32 s{sNT}, s{sU}, 43")
    Z(f"s_lshr_b32 s{sNT}, s{sNT}, 7")
    Z(f"s_mul_i32 s{sMT}, s{sNT}, 3")
    Z(f"s_sub_u32 s{sMT}, s{sU}, s{sMT}")
    if OPT["xmap"] == 1:
        Z(f"s_and_b32 s{sCA}, s2, 1")
        Z(f"s_xor_b32 s{sCA}, s{sCA}, 1")
        Z(f"s_lshl_b32 s{sCA}, s{sCA}, 2")
        Z(f"s_bfe_u32 s{sU}, s2, 0x20001")
        Z(f"s_add_u32 s{sCA}, s{sCA}, s{sU}")
    else:
        Z(f"s_and_b32 s{sCA}, s2, 7")
    Z(f"s_mul_i32 s{sU}, s{sCA}, 3")
    Z(f"s_add_u32 s{sMT}, s{sMT}, s{sU}")
    Z(f"s_lshl_b32 s{sCA}, s{sCA}, 2")
    Z(f"s_add_u32 s{sCA}, s{sCA}, s{sW}")
    Z(f"s_lshl_b32 s{sCA}, s{sCA}, 3")
    Z(f"s_lshl_b32 s{sPA}, s{sB}, 2")
    Z(f"s_lshr_b32 s{sU}, s{sH}, 3")
    Z(f"s_add_u32 s{sPA}, s{sPA}, s{sU}")
    Z(f"s_lshl_b32 s{sPA}, s{sPA}, 3")
    Z(f"v_lshrrev_b32 v{vPF}, 3, v0")
    Z(f"v_mul_u32_u24 v{vBD}, 1152, v{vPF}")
    Z(f"v_lshlrev_b32 v{vPF}, 1, v12")
    Z(f"v_and_b32 v{vZ}, 7, v0")
    Z(f"v_xor_b32 v{vPF}, v{vPF}, v{vZ}")
    Z(f"v_lshl_add_u32 v{vBD}, v{vPF}, 4, v{vBD}")
    Z(f"v_min_u32 v{vPF}, {max(OPT['lp'], 1) * 9 - 1}, v0")
    Z(f"v_lshlrev_b32 v{vPF}, 7, v{vPF}")
    Z(f"v_mov_b32 v{vZ}, 0")
    Z(f"s_lshl_b32 s{sLD}, s{sW}, 12")
    Z(f"s_mul_i32 s{sBS}, s{sW}, {1024 * 1152}")
    Z(f"s_add_u32 s{sPF}, s{sPF}, s{sBS}")
    Z(f"s_lshl_b32 s{sU}, s{sNT}, 7")
    Z(f"s_add_u32 s{sBS}, s{sBS}, s{sU}")
    Z(f"s_cmp_ge_u32 s2, 216 | s_cselect_b32 s{sBS}, 0x40000000, s{sBS}")
    Z(f"s_mov_b32 s{SRD_OUT}, s{sOUTP}")
    Z(f"s_mov_b32 s{SRD_OUT + 1}, s{sOUTP + 1}")
    Z(f"s_mov_b32 s{SRD_OUT + 2}, {2304 * 1152}")
    Z(f"s_mov_b32 s{SRD_D}, s{sOUTP + 2}")
    Z(f"s_mov_b32 s{SRD_D + 1}, s{sOUTP + 3}")
    Z(f"s_mov_b32 s{SRD_D + 2}, 256")
    if OPT["diag"]:
        Z(f"s_mov_b32 s{sINC}, 16384")
        Z(f"s_mov_b32 s{sWI}, 160")
    return [x.strip() for x in Z.l]


def o_bases(oob):
    o = [f"s_mul_i32 s{sAI}, s{sMT}, {6 * QP}", f"s_mul_i32 s{sU}, s{sW}, {GP}", f"s_add_u32 s{sAI}, s{sAI}, s{sU}"]
    if oob:
        o += [f"s_cmp_ge_u32 s{sRDY}, 8", f"s_cselect_b32 s{sAI}, s{sAI}, 0x40000000"]
    o += [f"s_add_u32 s{sAI + i}, s{sAI}, {i * QP}" for i in range(1, 6)]
    return o


def side_block(A):
    A.label("L1_side")
    A(f"s_cmp_eq_u32 s{sSIDE}, 0")
    A("s_cbranch_scc1 L1_side1")
    A(f"s_mov_b32 s{sSIDE}, 2")
    A(f"s_mov_b32 s{sKVS}, 0x40000000")
    A("s_branch L1_back")
    A.label("L1_side1")
    A(f"global_load_dword v{vDUM}, v{vCW}, s[{sPC}:{sPC + 1}]")
    A(f"s_mov_b32 s{sSIDE}, 1")
    A(f"s_mov_b32 s{sCNT}, 0")
    A(f"s_mov_b32 s{sINC}, {2 * 36864}")
    A(f"s_sub_u32 s{sKVS}, s{sBS}, {2 * 36864}")
    A(f"s_mov_b32 s{SRD_K}, s{SRD_P}")
    A(f"s_mov_b32 s{SRD_K + 1}, s{SRD_P + 1}")
    A(f"s_mov_b32 s{SRD_K + 2}, {4096 * 1152}")
    A(f"s_add_u32 s{SRD_V}, s{SRD_P}, 36864")
    A(f"s_addc_u32 s{SRD_V + 1}, s{SRD_P + 1}, 0")
    A(f"s_mov_b32 s{SRD_V + 2}, {4096 * 1152 - 36864}")
    for i in range(4):
        A(f"v_add_u32 v{vD + i}, {i * 9216}, v{vBD}")
    if OPT["lp"]:
        A(f"v_mov_b32 v7, v{vPF}")
        A(f"s_add_u32 s{sWP}, s{sPF}, {OPT['lp0'] * 36864}")
        A(f"s_mov_b32 s{sWI}, {OPT['lp'] * 36864}")
    A("s_branch L1_back")


def p3(A, rest):
    DO = OPT["DO"]
    u0, u1 = 253, 254
    vBR = 224
    assert PRE == 4

    def wreg(s):
        return QV + 16 * s if s < PRE else WF + 16 * (s % 2)

    def wreads(s):
        o = wslot(s)
        return [f"ds_read_b64_tr_b16 {vr(wreg(s) + 4 * n + 2 * e, 2)}, v{vBR + 4 * (o // (3 * HS)) + n} offset:{o % (3 * HS) + e * 2 * BLK}"
                for n in range(4) for e in range(2)]

    A(f"v_bfe_u32 v{u0}, v0, 2, 3")
    A(f"v_lshlrev_b32 v{vBR}, 7, v{u0}")
    A(f"v_bfe_u32 v{u0}, v0, 3, 2")
    A(f"v_xor_b32 v{u0}, s{sW}, v{u0}")
    A(f"v_lshl_add_u32 v{vBR}, v{u0}, 5, v{vBR}")
    A(f"v_lshl_add_u32 v{vBR}, v15, 3, v{vBR}")
    A(f"v_lshrrev_b32 v{u0}, 5, v0")
    A(f"v_mul_u32_u24 v{u0}, {BLK}, v{u0}")
    A(f"v_add_u32 v{u0}, s{sWOF}, v{u0}")
    for n_ in range(1, 4):
        A(f"v_xor_b32 v{vBR + n_}, {32 * n_}, v{vBR}")
    for n_ in range(4):
        A(f"v_add_u32 v{vBR + n_}, v{u0}, v{vBR + n_}")
    for k in range(1, 3):
        for n_ in range(4):
            A(f"v_add_u32 v{vBR + 4 * k + n_}, {3 * HS * k}, v{vBR + n_}")
    A("s_waitcnt vmcnt(10)")
    pre = [x for s in range(PRE) for x in wreads(s)]
    cut = len(rest) * OPT["ppos"] // 4
    rest = rest[:cut] + [f"buffer_load_dword v{vPL}, v{vZ}, {srd(SRD_D)}, s{sCA} offen sc1"] + rest[cut:]
    for i in range(8):
        A.ext(pre[4 * i:4 * i + 4])
        A.ext(rest[(i * len(rest)) // 8:((i + 1) * len(rest)) // 8])
    A.ext(o_bases(False))
    stamp(A)
    PW = PRE + OPT["post"]
    assert OPT["post"] <= 6
    if OPT["post"]:
        A("s_waitcnt lgkmcnt(0)")
    for s in range(PRE, PW):
        for p in wload(s):
            A.ext(p)
    A(f"v_mov_b32 v{u0}, 1")
    A(f"s_mov_b32 s{sCNT}, {1 << 22}")
    A("s_waitcnt vmcnt(0) lgkmcnt(0)")
    A("s_barrier")
    if OPT["diag"]:
        A("s_memrealtime s[78:79]")
    A(f"v_readfirstlane_b32 s{sRDY}, v{vPL}")

    def publish(lbl):
        A(f"s_cmp_lg_u32 s{sW}, 0")
        A(f"s_cbranch_scc1 {lbl}")
        A("s_mov_b64 exec, 1")
        A(f"buffer_atomic_add v{u0}, v{vZ}, {srd(SRD_D)}, s{sPA} offen sc1")
        A("s_mov_b64 exec, -1")
        A.label(lbl)

    A("s_cmp_ge_u32 s2, 216")
    A(f"s_cselect_b32 s{sRDY}, 0, s{sRDY}")
    A(f"s_cmp_ge_u32 s{sRDY}, {8 if OPT['fast'] else 999}")
    A("s_cbranch_scc1 L3_fast")
    publish("L3_na1")
    A("s_cmp_ge_u32 s2, 216")
    A("s_cbranch_scc1 L3_help" if OPT["helper"] else "s_cbranch_scc1 L3_done")
    vmq, nfast = [], []
    NW0 = PRE + OPT["wpre"]
    for s in range(PW, NW0):
        for p in wload(s):
            A.ext(p)
    A.label("L3_poll")
    A(f"buffer_load_dword v{u1}, v{vZ}, {srd(SRD_D)}, s{sCA} offen sc1")
    A("s_waitcnt vmcnt(0)")
    A(f"v_readfirstlane_b32 s{sU}, v{u1}")
    A(f"s_sub_u32 s{sCNT}, s{sCNT}, 1")
    A("s_cbranch_scc1 L3_rdy")
    A(f"s_cmp_ge_u32 s{sU}, 8")
    A("s_cbranch_scc1 L3_rdy")
    A(f"s_sleep {OPT['slp']}")
    A("s_branch L3_poll")
    A.label("L3_rdy")
    for s in range(DO):
        for p in oload(s):
            A.ext(p)
            vmq.append(("o", s))
    A("s_branch L3_go")
    A.label("L3_fast")
    seq = [("o", s) for s in range(DO)] + [("w", s) for s in range(PW, NW0)]
    for n_, (k_, s) in enumerate(seq):
        for p in (oload(s) if k_ == "o" else wload(s)):
            A.ext(p)
            nfast.append((k_, s))
        if n_ == 1:
            publish("L3_na2")
    A.label("L3_go")
    if OPT["diag"]:
        A("s_memrealtime s[80:81]")
    OWN = 16

    def accr(n_, i):
        return vr(OWN + 4 * i, 4) if n_ == 0 else ar(AC + 4 * (6 * (n_ - 1) + i), 4)
    vW_, vR_ = 40, 43
    fin = [f"v_lshl_add_u32 v{vW_}, v0, 4, s{sWOF}", f"v_add_u32 v{vW_ + 1}, {2 * HS}, v{vW_}", f"v_add_u32 v{vW_ + 2}, {4 * HS}, v{vW_}"]
    for n_ in range(1, 4):
        fin += [f"s_xor_b32 s{sT0}, s{sW}, {n_}", f"s_mul_i32 s{sT0}, s{sT0}, {4 * BLK}", f"s_add_u32 s{sT0}, s{sT0}, {(n_ - 1) * 2 * HS}",
                f"v_lshl_add_u32 v{vR_ + n_ - 1}, v0, 4, s{sT0}"]
    fin += [f"v_bfe_u32 v10, v0, 4, 1", f"v_lshl_add_u32 v9, v10, 4, v13", f"v_mul_u32_u24 v9, 1152, v9",
            f"v_lshrrev_b32 v10, 5, v0", f"v_lshl_add_u32 v9, v10, 4, v9",
            f"s_mul_i32 s{sT1}, s{sMT}, {96 * 1152}", f"s_lshl_b32 s{sT0}, s{sNT}, 7", f"s_add_u32 s{sT1}, s{sT1}, s{sT0}",
            f"s_lshl_b32 s{sT0}, s{sW}, 5", f"s_add_u32 s{sT1}, s{sT1}, s{sT0}"]
    nw = NW0
    for s in range(32):
        cnt = []
        for q in (vmq, nfast):
            need = [i for i, t in enumerate(q) if t in (("o", s), ("w", s + 1))]
            cnt.append(len(q) - 1 - max(need) if need else 63)
        A(f"s_waitcnt vmcnt({min(min(cnt), 63)}) lgkmcnt(0)")
        rdq = wreads(s + 1) if PRE <= s + 1 < 32 else []
        ld = []
        if nw < 32 and nw - DW <= s:
            ld += [(p, ("w", nw)) for p in wload(nw)]
            nw += 1
        if s >= 1 and s - 1 + DO < 32:
            ld += [(p, ("o", s - 1 + DO)) for p in oload(s - 1 + DO)]
        extra = list(fin) if s == 30 else []
        wq = []
        k = 0
        for n_ in ((1, 2, 3, 0) if s == 31 else range(4)):
            for i in range(6):
                acc = accr(n_, i)
                A(f"{MF} {acc}, {vr(wreg(s) + 4 * n_, 4)}, {ar(oreg(s, i), 4)}, {'0' if s == 0 else acc}")
                k += 1
                if rdq and k % 2 == 1:
                    A(rdq.pop(0))
                if ld and k % 2 == 0:
                    p, tag = ld.pop(0)
                    A.ext(p)
                    vmq.append(tag)
                    nfast.append(tag)
                if extra and k % 2 == 0:
                    A.ext(extra[:3])
                    extra = extra[3:]
                if s == 31:
                    if n_:
                        wq.append(f"ds_write_b128 v{vW_ + n_ - 1}, {acc} offset:{(i // 3) * HS + (i % 3) * 1024}")
                    if k > 8:
                        A(wq.pop(0))
        assert not ld and not rdq and not extra
        A.ext(wq)
    assert nw == 32
    if OPT["diag"]:
        A("s_memrealtime s[82:83]")
    A("s_waitcnt lgkmcnt(0)")
    A("s_barrier")
    R = 48
    for x in range(3):
        for i in (2 * x, 2 * x + 1):
            for n_ in range(1, 4):
                A(f"ds_read_b128 {vr(R + 12 * i + 4 * (n_ - 1), 4)}, v{vR_ + n_ - 1} offset:{(i // 3) * HS + (i % 3) * 1024}")
    for x in range(3):
        A(f"s_waitcnt lgkmcnt({6 * (2 - x)})")
        for i in (2 * x, 2 * x + 1):
            for e in range(4):
                A(f"v_add_f32 v{OWN + 4 * i + e}, v{OWN + 4 * i + e}, v{R + 12 * i + e}")
                A(f"v_add_f32 v{R + 12 * i + 4 + e}, v{R + 12 * i + 4 + e}, v{R + 12 * i + 8 + e}")
            for e in range(4):
                A(f"v_add_f32 v{OWN + 4 * i + e}, v{OWN + 4 * i + e}, v{R + 12 * i + 4 + e}")
        d = 124 + 4 * x
        for e in range(4):
            A(f"v_cvt_pk_bf16_f32 v{d + e}, v{OWN + 8 * x + 2 * e}, v{OWN + 8 * x + 2 * e + 1}")
        A("s_nop 1")
        A(f"v_permlane16_swap_b32 v{d}, v{d + 2}")
        A(f"v_permlane16_swap_b32 v{d + 1}, v{d + 3}")
        A(f"buffer_store_dwordx4 {vr(d, 4)}, v9, {srd(SRD_OUT)}, s{sT1} offen{FLAGS[OPT['outflag']]}")
        A(f"s_add_u32 s{sT1}, s{sT1}, {32 * 1152}")
    if OPT["helper"]:
        A("s_branch L3_done")
        A.label("L3_help")
        sJ, sOB, sWB = sAI, sAI + 1, sAI + 2
        A(f"s_lshr_b32 s{sJ}, s2, 3")
        A(f"s_sub_u32 s{sJ}, s{sJ}, 27")
        A(f"s_mul_i32 s{sT0}, s{sJ}, 58")
        A(f"v_add_u32 v16, s{sT0}, v0")
        A(f"v_min_u32 v16, 287, v16")
        A(f"v_lshlrev_b32 v16, 7, v16")
        A(f"s_mul_i32 s{sWB}, s{sW}, {1024 * 1152}")
        A(f"s_mul_i32 s{sT0}, s{sJ}, 29")
        A(f"v_and_b32 v17, 31, v0")
        A(f"v_add_u32 v17, s{sT0}, v17")
        A(f"v_min_u32 v17, 143, v17")
        A(f"v_lshrrev_b32 v18, 3, v17")
        A(f"s_mov_b32 s{sT0}, {QP}")
        A(f"v_mul_lo_u32 v18, s{sT0}, v18")
        A(f"v_and_b32 v17, 7, v17")
        A(f"v_lshl_add_u32 v17, v17, 7, v18")
        A(f"v_lshrrev_b32 v18, 5, v0")
        A(f"v_lshl_add_u32 v17, v18, 10, v17")
        A(f"s_lshr_b32 s{sOB}, s{sCA}, 5")
        A(f"s_mul_i32 s{sOB}, s{sOB}, {18 * QP}")
        A(f"s_mul_i32 s{sT0}, s{sW}, {GP}")
        A(f"s_add_u32 s{sOB}, s{sOB}, s{sT0}")

        def hw(s_):
            A(f"s_add_u32 s{sT0}, s{sWB}, {s_ * 36864}")
            A(f"buffer_load_dword v{vDUM}, v16, {srd(SRD_P)}, s{sT0} offen")

        def ho(s_):
            A(f"s_add_u32 s{sT0}, s{sOB}, {s_ * 1024}")
            A(f"buffer_load_dword v{vDUM}, v17, {srd(SRD_O)}, s{sT0} offen sc1")
        for s_ in range(NW0, NW0 + OPT["hA"]):
            hw(s_)
        A.label("L3_hpoll")
        A(f"buffer_load_dword v{u1}, v{vZ}, {srd(SRD_D)}, s{sCA} offen sc1")
        A("s_waitcnt vmcnt(0)")
        A(f"v_readfirstlane_b32 s{sU}, v{u1}")
        A(f"s_sub_u32 s{sCNT}, s{sCNT}, 1")
        A("s_cbranch_scc1 L3_done")
        A(f"s_cmp_ge_u32 s{sU}, 8")
        A("s_cbranch_scc1 L3_hgo")
        A(f"s_sleep {OPT['slp']}")
        A("s_branch L3_hpoll")
        A.label("L3_hgo")
        ev = [(s_ - 3, "o", s_) for s_ in range(OPT["ho"], 32, 2)] + [(s_ - DW, "w", s_) for s_ in range(NW0 + OPT["hA"], 32)]
        for _, k_, s_ in sorted(ev):
            (ho if k_ == "o" else hw)(s_)
    A.label("L3_done")


def k1(A):
    A.raw(".p2align 8")
    A.raw(".type attn_kernel,@function")
    A.label("attn_kernel")
    A("s_cmp_ge_u32 s2, 256")
    A("s_cbranch_scc1 L1_end")
    A("s_load_dwordx8 s[32:39], s[0:1], 0")
    A("s_load_dwordx2 s[40:41], s[0:1], 56")
    A("s_load_dwordx2 s[30:31], s[0:1], 32")
    if OPT["tlb"] == 1:
        A("s_load_dwordx4 s[20:23], s[0:1], 40")
    A(f"s_getpc_b64 s[{sPC}:{sPC + 1}]")
    A.label("L1_pc")
    stamp(A)
    if OPT["diag"]:
        A("s_memrealtime s[92:93]")
    if OPT["dspin"]:
        A("s_memrealtime s[62:63]")
    A("s_lshr_b32 s3, s2, 3")
    if OPT["cpf"]:
        A(f"s_lshl_b32 s{sT0}, s3, 11")
        A(f"v_lshl_add_u32 v1, v0, 7, s{sT0}")
        A("v_min_u32 v1, L_code_end-L1_pc-4, v1")
        A("v_cmp_gt_u32 vcc, 16, v0")
        A("s_and_saveexec_b64 s[46:47], vcc")
        A("s_cbranch_execz L1_nocpf")
        A(f"global_load_dword v{vDUM}, v1, s[{sPC}:{sPC + 1}]")
        A.label("L1_nocpf")
        A("s_mov_b64 exec, s[46:47]")
    A("v_lshrrev_b32 v1, 6, v0")
    A("v_and_b32 v0, 63, v0")
    A(f"v_readfirstlane_b32 s{sW}, v1")
    if OPT["xmap"] == 0:
        A(f"s_and_b32 s{sB}, s2, 7")
        A(f"s_mov_b32 s{sH}, s3")
    else:
        A(f"s_and_b32 s{sB}, s2, 1")
        A(f"s_lshl_b32 s{sB}, s{sB}, 2")
        A(f"s_and_b32 s{sT0}, s3, 3")
        A(f"s_add_u32 s{sB}, s{sB}, s{sT0}")
        A(f"s_and_b32 s{sH}, s2, 6")
        A(f"s_lshl_b32 s{sH}, s{sH}, 2")
        A(f"s_lshr_b32 s{sT0}, s3, 2")
        A(f"s_add_u32 s{sH}, s{sH}, s{sT0}")
    A(f"s_and_b32 s{sP}, s{sW}, 1")
    nph = OPT["nph"]
    if nph == 1:
        A(f"s_mov_b32 s{sCW}, 0")
    elif nph == 2:
        A(f"s_add_u32 s{sCW}, s{sB}, s{sH}")
        A(f"s_and_b32 s{sCW}, s{sCW}, 1")
        A(f"s_mul_i32 s{sCW}, s{sCW}, {4 * 128}")
    elif nph == 4:
        A(f"s_add_u32 s{sCW}, s{sB}, s{sH}")
        A(f"s_and_b32 s{sCW}, s{sCW}, 3")
        A(f"s_mul_i32 s{sCW}, s{sCW}, {2 * 128}")
    elif nph == 8:
        A(f"s_lshl_b32 s{sCW}, s{sB}, 1")
        A(f"s_add_u32 s{sCW}, s{sCW}, s{sH}")
        A(f"s_and_b32 s{sCW}, s{sCW}, 7")
        A(f"s_lshl_b32 s{sCW}, s{sCW}, 7")
    elif nph == 5:
        A(f"s_add_u32 s{sCW}, s{sB}, s{sH}")
        A(f"s_and_b32 s{sCW}, s{sCW}, 3")
        A(f"s_mul_i32 s{sCW}, s{sCW}, 9")
        A(f"s_add_u32 s{sCW}, s{sCW}, 2")
        A(f"s_lshr_b32 s{sCW}, s{sCW}, 2")
        A(f"s_lshl_b32 s{sCW}, s{sCW}, 7")
    elif nph == 3:
        A(f"s_add_u32 s{sCW}, s{sB}, s{sH}")
        A(f"s_mul_i32 s{sT0}, s{sCW}, 43")
        A(f"s_lshr_b32 s{sT0}, s{sT0}, 7")
        A(f"s_mul_i32 s{sT0}, s{sT0}, 3")
        A(f"s_sub_u32 s{sCW}, s{sCW}, s{sT0}")
        A(f"s_mul_i32 s{sCW}, s{sCW}, {3 * 128}")
    A(f"s_mov_b32 s{sCX}, s{sCW}")
    t0, t1, t2, g4, i16, r4, cq = 9, 10, 11, 12, 13, 14, 15
    A(f"v_lshrrev_b32 v{g4}, 4, v0")
    A(f"v_and_b32 v{i16}, 15, v0")
    A(f"v_lshrrev_b32 v{t0}, 5, v0")
    A(f"v_lshlrev_b32 v{vWD}, 18, v{t0}")
    A(f"v_and_b32 v{t0}, 1, v{g4}")
    A(f"v_lshl_add_u32 v{vWD}, v{t0}, 15, v{vWD}")
    A(f"v_lshl_add_u32 v{vWD}, v{i16}, 4, v{vWD}")
    A(f"v_lshrrev_b32 v{t0}, 3, v0")
    A(f"v_mul_u32_u24 v{vXD}, 1152, v{t0}")
    A(f"v_and_b32 v{t0}, 7, v0")
    A(f"v_xor_b32 v{t0}, v{t0}, v{g4}")
    A(f"v_lshl_add_u32 v{vXD}, v{t0}, 4, v{vXD}")
    A(f"v_xor_b32 v{vXD + 1}, 64, v{vXD}")
    A(f"s_lshl_b32 s{sT0}, s{sP}, 6")
    A(f"v_xor_b32 v{vXDE}, s{sT0}, v{vXD}")
    A(f"s_lshl_b32 s{sXD}, s{sW}, 13")
    A(f"s_add_u32 s{sXD}, s{sXD}, {XOFF}")
    A(f"s_mul_i32 s{sXS}, s{sW}, {8 * 9216}")
    A(f"s_lshl_b32 s{sXED}, s{sW}, 10")
    A(f"s_add_u32 s{sXED}, s{sXED}, {XEOFF}")
    A(f"s_mul_i32 s{sXES}, s{sW}, 9216")
    A(f"s_add_u32 s{sXES}, s{sXES}, {32 * 9216}")
    A(f"s_lshr_b32 s{sT0}, s{sW}, 1")
    A(f"s_mul_i32 s{sWD}, s{sT0}, {WG1}")
    A(f"s_mul_i32 s{sT0}, s{sP}, {WG0}")
    A(f"s_add_u32 s{sWD}, s{sWD}, s{sT0}")
    A(f"s_lshl_b32 s{sWS}, s{sW}, 16")
    A(f"s_mul_i32 s{sT1}, s{sB}, 331776")
    A(f"s_lshl_b32 s{sT0}, s{sH}, 8")
    A(f"s_mov_b32 s{SRD_X + 2}, 331776")
    A(f"s_mov_b32 s{SRD_X + 3}, 0x20000")
    A(f"s_sub_u32 s{SRD_W + 2}, {576 * 8192}, s{sT0}")
    A(f"s_mov_b32 s{SRD_W + 3}, 0x20000")
    if OPT["fine"]:
        stamp(A)
    A("s_waitcnt lgkmcnt(0)")
    if OPT["fine"]:
        stamp(A)
    A(f"s_add_u32 s{SRD_W}, s38, s{sT0}")
    A(f"s_addc_u32 s{SRD_W + 1}, s39, 0")
    A(f"s_add_u32 s{SRD_X}, s32, s{sT1}")
    A(f"s_addc_u32 s{SRD_X + 1}, s33, 0")
    S = Asm()
    E = A if OPT["tlb"] == 3 else S
    E(f"s_lshl_b32 s{sT1}, s{sB}, 5")
    E(f"s_add_u32 s{sT1}, s{sT1}, s{sH}")
    E(f"s_lshl_b32 s{sT1}, s{sT1}, 19")
    if OPT["tlb"] == 3:
        for r_, p_ in ((SRD_K, 34), (SRD_V, 36)):
            A(f"s_add_u32 s{r_}, s{p_}, s{sT1}")
            A(f"s_addc_u32 s{r_ + 1}, s{p_ + 1}, 0")
            A(f"s_load_dword s{sRDY}, s[{r_}:{r_ + 1}], 0")
    S(f"s_add_u32 s{SRD_K}, s34, s{sT1} | s_addc_u32 s{SRD_K + 1}, s35, 0")
    S(f"s_mov_b32 s{SRD_K + 2}, 524288")
    S(f"s_mov_b32 s{SRD_K + 3}, 0x20000")
    S(f"s_add_u32 s{SRD_V}, s36, s{sT1} | s_addc_u32 s{SRD_V + 1}, s37, 0")
    if OPT["tlb"] == 2:
        S(f"s_load_dword s{sRDY}, s[{SRD_K}:{SRD_K + 1}], 0")
        S(f"s_load_dword s{sRDY}, s[{SRD_V}:{SRD_V + 1}], 0")
    S(f"s_mov_b32 s{SRD_V + 2}, 524288")
    S(f"s_mov_b32 s{SRD_V + 3}, 0x20000")
    S(f"s_add_u32 s{SRD_O}, s40, {OPT['wsoff'] << 20} | s_addc_u32 s{SRD_O + 1}, s41, 0")
    S(f"s_mov_b32 s{SRD_O + 2}, {(DIAG_OFF + (2 << 20)) if OPT['diag'] else WS_O_BYTES}")
    S(f"s_mov_b32 s{SRD_O + 3}, 0x20000")
    S(f"s_mov_b32 s{SRD_P}, s30")
    S(f"s_mov_b32 s{SRD_P + 1}, s31")
    S(f"s_mov_b32 s{SRD_P + 2}, {4096 * 1152}")
    S(f"s_mov_b32 s{SRD_P + 3}, 0x20000")
    S(f"v_bfe_u32 v{r4}, v0, 2, 2")
    S(f"v_and_b32 v{cq}, 3, v0")
    XA, XE, WL, WH = vQA, vQA + 2, vQA + 4, vQA + 5
    S(f"v_lshlrev_b32 v{XE}, 7, v{i16}")
    S(f"v_lshrrev_b32 v{t0}, 1, v{i16}")
    S(f"v_xor_b32 v{t0}, v{t0}, v{g4}")
    S(f"v_lshl_add_u32 v{XE}, v{t0}, 4, v{XE}")
    S(f"v_add_u32 v{XA}, s{sXD}, v{XE}")
    S(f"s_lshr_b32 s{sT1}, s{sW}, 1")
    S(f"s_lshl_b32 s{sT1}, s{sT1}, 11")
    S(f"s_add_u32 s{sT1}, s{sT1}, {XEOFF}")
    S(f"v_add_u32 v{XE}, s{sT1}, v{XE}")
    S(f"v_xor_b32 v{XA + 1}, 64, v{XA}")
    S(f"v_xor_b32 v{XE + 1}, 64, v{XE}")
    S(f"v_lshrrev_b32 v{t0}, 1, v{g4}")
    S(f"v_mul_u32_u24 v{WL}, {WG1}, v{t0}")
    S(f"v_and_b32 v{t0}, 1, v{g4}")
    S(f"v_mul_u32_u24 v{t0}, {WG0}, v{t0}")
    S(f"v_add_u32 v{WL}, v{WL}, v{t0}")
    S(f"v_mul_u32_u24 v{t0}, {XB}, v{r4}")
    S(f"v_add_u32 v{WL}, v{WL}, v{t0}")
    S(f"v_lshl_add_u32 v{WL}, v{cq}, 4, v{WL}")
    S(f"s_lshl_b32 s{sT1}, s{sP}, 7")
    S(f"s_xor_b32 s{sOO}, s{sT1}, 128")
    S(f"v_add_u32 v{WH}, s{sOO}, v{WL}")
    S(f"v_add_u32 v{WL}, s{sT1}, v{WL}")
    for i in range(6):
        S(f"v_add_u32 v{vQA + 6 + i}, {2 * STSZ}, v{vQA + i}")
    S(f"s_lshl_b32 s{sT1}, s{sW}, 12")
    S(f"v_lshl_add_u32 v{vV4}, v0, 4, s{sT1}")
    S(f"s_mul_i32 s{sWOF}, s{sW}, {4 * BLK}")

    def dma_regs(Z):
        for i in range(4):
            Z(f"v_add_u32 v{vD + i}, {i * 1024}, v{vV4}")
    dma_regs(S)
    S(f"v_mul_u32_u24 v{t0}, {BLK}, v{i16}")
    S(f"v_lshl_add_u32 v{t0}, v{g4}, 4, v{t0}")
    S(f"v_lshl_add_u32 v{t1}, v{g4}, 2, v{r4}")
    S(f"v_mul_u32_u24 v{t1}, {BLK}, v{t1}")
    S(f"v_lshl_add_u32 v{t1}, v{cq}, 3, v{t1}")
    for j in range(2):
        S(f"s_xor_b32 s{sT1}, s{sP}, {j}")
        S(f"s_lshl_b32 s{sT1}, s{sT1}, 9")
        S(f"v_add_u32 v{vVB + j}, s{sT1}, v{t1}")
        S(f"s_lshl_b32 s{sOO}, s{sP}, 7")
        S(f"s_add_u32 s{sT1}, s{sT1}, s{sOO}")
        S(f"v_add_u32 v{vKB + 2 * j}, s{sT1}, v{t0}")
        S(f"s_xor_b32 s{sT1}, s{sT1}, 128")
        S(f"v_add_u32 v{vKB + 2 * j + 1}, s{sT1}, v{t0}")
    if OPT["rot"]:
        S(f"s_mul_i32 s{sG0}, s2, {OPT['rot']}")
        S(f"s_lshr_b32 s{sT1}, s2, 4")
        S(f"s_add_u32 s{sG0}, s{sG0}, s{sT1}")
        S(f"s_and_b32 s{sG0}, s{sG0}, 15")
        S(f"s_mul_i32 s{sG0}, s{sG0}, {16384 * 7 // 4 // 16384 * 16384}")
    S(f"s_lshl_b32 s{sWP}, s2, 2")
    S(f"s_add_u32 s{sWP}, s{sWP}, s{sW}")
    S(f"s_mul_i32 s{sWP}, s{sWP}, 4608")
    S(f"v_min_u32 v7, 1, v0")
    S(f"v_lshlrev_b32 v7, 7, v7")
    S(f"s_lshl_b32 s{sDV}, s{sP}, 10")
    S(f"s_sub_u32 s{sDV}, 512, s{sDV}")
    S(f"v_min_u32 v{vCW}, 1, v0")
    S(f"s_lshr_b32 s{sT1}, s2, 3")
    S(f"s_lshl_b32 s{sT1}, s{sT1}, 2")
    S(f"s_add_u32 s{sT1}, s{sT1}, s{sW}")
    S(f"s_lshl_b32 s{sT1}, s{sT1}, 8")
    S(f"v_lshl_add_u32 v{vCW}, v{vCW}, 7, s{sT1}")
    S(f"v_min_u32 v{vCW}, L1_redo-L1_tail, v{vCW}")
    S(f"v_add_u32 v{vCW}, L1_tail-L1_pc, v{vCW}")
    S(f"v_mov_b32 v{t0}, 0x3f803f80")
    S(f"v_cmp_gt_u32 vcc, 2, v{cq}")
    S(f"s_mov_b32 s{sSC}, {QSCALE:#x}")
    S(f"s_mov_b32 s{sREDO}, 0")
    S(f"v_cndmask_b32 v{t0}, 0, v{t0}, vcc")
    for i in range(4):
        S(f"v_accvgpr_write_b32 a{ONES + i}, v{t0}")
    S(f"v_cmp_eq_u32 vcc, 1, v{cq}")
    S(f"v_mov_b32 v{vIDX}, 0x44444444")
    S(f"v_mov_b32 v{t0}, 0xeeeeeeee")
    S(f"v_cndmask_b32 v{vIDX}, v{vIDX}, v{t0}, vcc")
    S(f"s_add_u32 s{sT1}, s{sXD}, {2 * STSZ + 6144}")
    S(f"v_lshl_add_u32 v{t0}, v0, 4, s{sT1}")
    S(f"s_xor_b32 s{sT1}, s{sW}, 1")
    S(f"s_lshl_b32 s{sT1}, s{sT1}, 13")
    S(f"s_add_u32 s{sT1}, s{sT1}, {XOFF + 2 * STSZ + 6144}")
    S(f"v_lshl_add_u32 v{t1}, v0, 4, s{sT1}")

    def loop_scalars(Z):
        if OPT["rot"]:
            Z(f"s_add_u32 s{sKVS}, s{sG0}, {DD * 16384}")
        else:
            Z(f"s_mov_b32 s{sKVS}, {DD * 16384}")
        Z(f"s_add_u32 s{sKD}, s{sWOF}, {(NS - 1) * HS}")
        Z(f"s_mov_b32 s{sVD}, s{sWOF}")
        Z(f"s_mov_b32 s{sKN}, {2 * HS}")
        Z(f"s_mov_b32 s{sVN}, {HS}")
        Z(f"s_mov_b32 s{sCNT}, 14")
        Z(f"s_mov_b32 s{sSIDE}, 0")
        if Z is not S or not OPT["diag"]:
            Z(f"s_mov_b32 s{sINC}, 16384")
            Z(f"s_mov_b32 s{sWI}, 160")
        if OPT["diag"]:
            Z("s_mov_b32 s41, 31")

    def loop_addr():
        return [f"v_add_u32 v{vK}, {2 * HS}, v{vKB}", f"v_add_u32 v{vK + 1}, {2 * HS}, v{vKB + 1}",
                f"v_mov_b32 v{vK + 2}, v{vKB + 2}", f"v_mov_b32 v{vK + 3}, v{vKB + 3}"]

    loop_scalars(S)
    for i in range(180):
        S(f"v_accvgpr_write_b32 a{i}, 0")
    setup = [x.strip() for x in S.l]
    for i_, p in enumerate(wg_pieces(0) + x_pieces(0)):
        A.ext(p)
        if OPT["fine"] and i_ in (0, 8):
            stamp(A)
    if OPT["fine"]:
        stamp(A)
        A("s_waitcnt vmcnt(12)")
        stamp(A)
        A("s_waitcnt vmcnt(0)")
        stamp(A)
        OPT["diag"] = 2
    npf = 0

    def tlb_touch():
        A(f"v_lshlrev_b32 v{t0}, 18, v0")
        A(f"s_cmp_eq_u32 s{sW}, 1")
        A("s_cbranch_scc1 L1_t1")
        A(f"s_cmp_eq_u32 s{sW}, 2")
        A("s_cbranch_scc1 L1_t2")
        A(f"s_cmp_eq_u32 s{sW}, 3")
        A("s_cbranch_scc1 L1_t3")
        A(f"s_lshl_b32 s{sT1}, s{sB}, 5")
        A(f"s_add_u32 s{sT1}, s{sT1}, s{sH}")
        A(f"s_lshl_b32 s{sT1}, s{sT1}, 19")
        A(f"v_min_u32 v{t0}, {1 << 18}, v{t0}")
        A(f"v_add_u32 v{t0}, s{sT1}, v{t0}")
        A(f"global_load_dword v{vDUM}, v{t0}, s[34:35] nt")
        A(f"global_load_dword v{vDUM}, v{t0}, s[36:37] nt")
        A("s_branch L1_td")
        A.label("L1_t1")
        A(f"v_min_u32 v{t0}, {17 << 18}, v{t0}")
        A(f"global_load_dword v{vDUM}, v{t0}, s[38:39]")
        A(f"global_load_dword v{vDUM}, v{t0}, s[30:31]")
        A("s_branch L1_td")
        A.label("L1_t2")
        A(f"v_lshlrev_b32 v{t1}, 20, v0")
        A(f"v_min_u32 v{t1}, {17 << 20}, v{t1}")
        A(f"v_add_u32 v{t1}, {OPT['wsoff'] << 20}, v{t1}")
        A(f"global_load_dword v{vDUM}, v{t1}, s[40:41] sc1 nt")
        A(f"v_min_u32 v{t0}, {10 << 18}, v{t0}")
        A(f"global_load_dword v{vDUM}, v{t0}, s[20:21] nt")
        A("s_branch L1_td")
        A.label("L1_t3")
        A(f"v_mov_b32 v{t1}, 0")
        A(f"global_load_dword v{vDUM}, v{t1}, s[22:23] sc1")
        A(f"v_min_u32 v{t0}, {10 << 18}, v{t0}")
        A(f"global_load_dword v{vDUM}, v{t0}, s[32:33]")
        A.label("L1_td")

    if OPT["tlb"] == 1:
        tlb_touch()
        npf = 2
    if OPT["pf"]:
        na = OPT["pfa"]
        A(f"v_min_u32 v{t0}, {9 * na - 1}, v0")
        A(f"v_mul_u32_u24 v{t1}, 57, v{t0}")
        A(f"v_lshrrev_b32 v{t1}, 9, v{t1}")
        A(f"v_mul_u32_u24 v{t2}, 9, v{t1}")
        A(f"v_sub_u32 v{t0}, v{t0}, v{t2}")
        A(f"v_mul_u32_u24 v248, 1152, v{t0}")
        A(f"s_and_b32 s{sT1}, s{sH}, 7")
        A(f"s_lshl_b32 s{sT1}, s{sT1}, 2")
        A(f"s_add_u32 s{sT1}, s{sT1}, s{sW}")
        A(f"s_mul_i32 s{sT1}, s{sT1}, {9 * 1152}")
        A(f"v_add_u32 v248, s{sT1}, v248")
        A(f"v_lshl_add_u32 v246, v{t1}, 7, v248")
        A(f"buffer_load_dword v{vDUM}, v246, {srd(SRD_X)}, 0 offen offset:128")
        A(f"v_bfe_u32 v{t0}, v0, 1, 2")
        A(f"v_lshlrev_b32 v249, 13, v{t0}")
        A(f"v_and_b32 v{t0}, 1, v0")
        A(f"v_lshl_add_u32 v249, v{t0}, 7, v249")
        A(f"s_and_b32 s{sT1}, s{sB}, 3")
        A(f"s_lshl_b32 s{sT1}, s{sT1}, 2")
        A(f"s_add_u32 s{sT1}, s{sT1}, s{sW}")
        A(f"s_lshl_b32 s{sT1}, s{sT1}, 15")
        A(f"v_add_u32 v249, s{sT1}, v249")
        A(f"v_lshrrev_b32 v{t0}, 3, v0")
        A(f"v_min_u32 v{t0}, {na - 1}, v{t0}")
        A(f"v_lshl_add_u32 v247, v{t0}, 19, v249")
        A(f"s_mov_b32 s{sT1}, {1 << 19}")
        A(f"buffer_load_dword v{vDUM}, v247, {srd(SRD_W)}, s{sT1} offen")
        npf = 2
    first = []
    for c in range(1, OPT["up"]):
        first += wg_pieces(c) + x_pieces(c)
    per = len(setup) // (len(first) + 1) + 1
    stamp(A)
    for p in [[]] + first:
        A.ext(p)
        for _ in range(per):
            if setup:
                for y in setup.pop(0).split(" | "):
                    A(y)
    assert not setup
    stamp(A)
    A(f"s_waitcnt vmcnt({len(first) + npf})")
    A("s_barrier")
    stamp(A)
    P = lambda n: [item_piece(n, i) for i in range(4)]
    kw = [f"global_load_dword v{vDUM}, v{vCW}, s[{sPC}:{sPC + 1}]"] if OPT["cpf"] else []
    kw = [f"buffer_load_dword v{vDUM}, v7, {srd(SRD_P)}, s{sWP} offen"] if OPT["wopf"] == 2 else []
    if OPT["stg"] == 0:
        extras = {4: P(0), 5: P(1), 6: P(2)}
        al = P(0) + P(1) + P(2)
        if OPT["kvs"] == 1:
            extras = {4: al[0:3], 5: al[3:6], 6: al[6:8], 7: al[8:12]}
        if OPT["kvs"] >= 4:
            extras = {4: al[:OPT["kvs"]]}
            if OPT["kvs"] < 12:
                extras[7] = al[OPT["kvs"]:]
    else:
        extras = {7: P(0) + P(1) + P(2)}
    if DD == 4:
        extras[8] = P(3) + P(4) + P(5)
        late = P(6) + P(7)
        late[0] = kw + late[0]
        late[7] = late[7] + kw
    elif DD == 3:
        extras[8] = P(3)
        late = P(4) + P(5)
        late[7] = late[7] + kw
    else:
        extras[8] = P(3)
        late = [[]] * 8
    if OPT["pf"]:
        for c in range(OPT["pfa"] + 1, 9):
            at = max(0, c - OPT["pf"])
            extras[at] = extras.get(at, []) + [
                [f"buffer_load_dword v{vDUM}, v248, {srd(SRD_X)}, 0 offen offset:{c * 128}"],
                [f"s_mov_b32 s{sT0}, {c << 19}", f"buffer_load_dword v{vDUM}, v249, {srd(SRD_W)}, s{sT0} offen"]]
    if OPT["wopf"] == 1:
        extras[7] = extras.get(7, []) + [[f"v_lshlrev_b32 v253, 7, v0", f"v_min_u32 v253, {35 * 128}, v253",
                      f"buffer_load_dword v{vDUM}, v253, {srd(SRD_P)}, s{sWP} offen"]]

    def conv(t, kk):
        src = ACC + 32 * t + 8 * kk
        dst = QV + 16 * t + 4 * kk
        o = []
        for i in range(4):
            o += [f"v_mul_f32 v{src + 2 * i}, s{sSC}, v{src + 2 * i}", f"v_mul_f32 v{src + 2 * i + 1}, s{sSC}, v{src + 2 * i + 1}"]
        for i in range(4):
            o.append(f"v_cvt_pk_bf16_f32 v{dst + i}, v{src + 2 * i}, v{src + 2 * i + 1}")
        return o

    KF = [184, 224]
    k0reads = [kread(ar(KF[kb] + 4 * kk, 4), vKB, kb, kk) for kb in range(2) for kk in range(4)]
    ti = []

    def spread(lst, g0, g1):
        for i, x in enumerate(lst):
            ti.append((g0 + (i * (g1 - g0)) // len(lst), x))

    spread(conv(4, 0) + conv(0, 0) + conv(1, 0) + conv(2, 0), 13, 22)
    spread(conv(4, 1) + [f"ds_write_b128 v{t0}, {vr(QV + 64, 4)}", f"ds_write_b128 v{t0}, {vr(QV + 68, 4)} offset:1024"]
           + conv(3, 0) + conv(0, 1), 22, 29)
    ti.append((29, "BAR"))
    spread([f"ds_read_b128 {vr(QV + 72, 4)}, v{t1}", f"ds_read_b128 {vr(QV + 76, 4)}, v{t1} offset:1024"] + k0reads[:4]
           + conv(1, 1) + k0reads[4:] + conv(2, 1) + conv(3, 1), 29, 36)
    nb = [i for i, x in enumerate(ti) if x[1] == "BAR"][0]
    ti[nb:nb + 1] = [(29, "VMW"), (29, "s_barrier")]
    qp, issued = build_qproj(extras, OPT["up"], ti, {6: [f"s_load_dwordx4 s[{sOUTP}:{sOUTP + 3}], s[0:1], 40"], 8: p3_setup()})
    vms = [x for x in qp if x.startswith(("buffer_load", "global_load"))]
    lastv0 = max(i for i, x in enumerate(vms) if x == P(1)[3][-1] and i == min(k for k, y in enumerate(vms) if y == x))
    ny = len(vms) - 1 - lastv0
    qp = [(f"s_waitcnt vmcnt({ny}) lgkmcnt(0)" if x == "VMW" else x) for x in qp]
    A.ext(tidy(qp) if OPT['tidy'] else qp)
    stamp(A)
    body, pro, tail, vreads = build_loop()

    def qk0(kb, kk, useneg):
        o = []
        for t in range(5):
            Sx = Sreg(t, 0) + 4 * kb
            C = (vr(NEG + 4 * t, 4) if useneg else "0") if kk == 0 else vr(Sx, 4)
            o.append(f"{MF} {vr(Sx, 4)}, {ar(KF[kb] + 4 * kk, 4)}, {vr(QV + 16 * t + 4 * kk, 4)}, {C}")
        return o

    def mix(mf, fill):
        n = len(mf)
        o = []
        for i, m in enumerate(mf):
            o.append(m)
            o += fill[(i * len(fill)) // n:((i + 1) * len(fill)) // n]
        A.ext(tidy(o) if OPT['tidy'] else o)

    flat = lambda ps: [x for p in ps for x in p]
    pro_rd = [x for x in pro if is_ds(x)]
    pro_sm = [x for x in pro if not is_ds(x)]
    A.ext(conv(0, 2) + flat(late[0:2]) + conv(0, 3))
    A("s_waitcnt lgkmcnt(0)")
    mix(qk0(0, 0, False) + qk0(0, 1, False), conv(1, 2) + conv(2, 2) + conv(3, 2) + flat(late[2:4]))
    mix(qk0(0, 2, False), conv(1, 3) + conv(2, 3) + conv(3, 3))
    A("s_nop 0")
    A.ext(qk0(0, 3, False))
    A.ext(loop_addr())
    A.ext(pro_rd)
    A.ext(flat(late[4:6]))
    for t in range(5):
        Sx = Sreg(t, 0)
        A(f"v_max3_f32 v{vM + t}, v{Sx}, v{Sx + 1}, v{Sx + 2}")
    for t in range(5):
        A(f"v_max_f32 v{vM + t}, v{vM + t}, v{Sreg(t, 0) + 3}")

    def xlane5(Z, op, base, tmp):
        for sw in ("v_permlane32_swap_b32", "v_permlane16_swap_b32"):
            for t in range(5):
                Z(f"v_mov_b32 v{tmp + t}, v{base + t}")
            for t in range(5):
                Z(f"{sw} v{base + t}, v{tmp + t}")
            for t in range(5):
                Z(f"{op} v{base + t}, v{base + t}, v{tmp + t}")

    xlane5(A, "v_max_f32", vM, vM + 8)
    for t in range(5):
        for i in range(4):
            A(f"v_sub_f32 v{NEG + 4 * t + i}, 0, v{vM + t}")
    subs = [f"v_sub_f32 v{Sreg(t, 0) + i}, v{Sreg(t, 0) + i}, v{vM + t}" for t in range(5) for i in range(4)]
    kb0regs = {Sreg(t, 0) + i for t in range(5) for i in range(4)}

    def srcs(x):
        return [int(z.strip()[1:]) for z in x.split(None, 1)[1].split(",")[1:]]
    sm0 = [x for x in pro_sm if all(r in kb0regs for r in srcs(x))]
    sm1 = [x for x in pro_sm if x not in sm0]

    def safe(lst):
        lst = list(lst)
        for i in range(1, len(lst) - 1):
            if lst[i].startswith("v_cvt") and lst[i - 1].startswith("v_exp") and lst[i + 1].startswith("v_exp"):
                ia, ib = hazard.I(lst[i]), hazard.I(lst[i + 1])
                if hazard.I(lst[i - 1]).w & ia.r and not (ia.w & (ib.r | ib.w)) and not (ib.w & ia.r):
                    lst[i], lst[i + 1] = lst[i + 1], lst[i]
        o, prev = [], ""
        for x in lst:
            if prev.startswith("v_exp") and x.startswith("v_cvt") and hazard.I(prev).w & hazard.I(x).r:
                o.append("s_nop 0")
            o.append(x)
            prev = x
        return o
    A.ext(flat(late[6:8]))
    mix(flat([qk0(1, kk, True) for kk in range(4)]), subs + safe(sm0))
    A("s_nop 3")
    A.label("L1_presm")
    A.ext(safe(sm1))
    A("s_waitcnt lgkmcnt(0)")
    stamp(A)
    if OPT["dspin"]:
        A("s_memrealtime s[64:65]")
    A.raw(".p2align 6")
    A.label("L1_loop")
    if OPT["diag"]:
        A.ext(diag_top())
    A.ext(body)
    A("s_branch L1_loop")
    errs = hazard.check(body + body, "loop")
    side_block(A)
    A.label("L1_tail")
    T0 = len(A.l)
    if OPT["dspin"]:
        A("s_memrealtime s[66:67]")
    stamp(A)
    ofl = FLAGS[OPT["ostflag"]]
    P0, RC, Lr = B0[1], 148, 48

    def Pt(j, t):
        return vr(P0 + 8 * t + 4 * j, 4)

    def ones(t):
        if t < 4:
            return [f"{SMF} {ar(LA + 4 * t, 4)}, {ar(ONES, 4)}, {vr(P0 + 8 * t, 8)}, v{vIDX}"]
        return [f"{MF} {ar(LA + 4 * t, 4)}, {ar(ONES, 4)}, {Pt(0, t)}, {ar(LA + 4 * t, 4)}"]

    def pv(t):
        return [f"{MF} {ar(OA + 32 * t + 4 * dt, 4)}, {ar(RING + 8 * dt + 4 * j, 4)}, {Pt(j, t)}, {ar(OA + 32 * t + 4 * dt, 4)}"
                for dt in range(8) for j in range(2 if t < 4 else 1)]

    def norm_store(t, tmp, pk):
        o = []
        if t:
            o.append(f"s_add_u32 s{sT0}, s{sT0}, {QP}")
        for s in range(4):
            b = tmp + 8 * s
            for e in range(8):
                o.append(f"v_accvgpr_read_b32 v{b + e}, a{OA + 32 * t + 8 * s + e}")
            if pk:
                for e in range(4):
                    o.append(f"v_pk_mul_f32 {vr(b + 2 * e, 2)}, {vr(b + 2 * e, 2)}, {vr(RC + 2 * t, 2)} op_sel_hi:[1,0]")
            else:
                for e in range(8):
                    o.append(f"v_mul_f32 v{b + e}, v{RC + 2 * t}, v{b + e}")
            for e in range(4):
                o.append(f"v_cvt_pk_bf16_f32 v{b + e}, v{b + 2 * e}, v{b + 2 * e + 1}")
            of = f" offset:{s * 1024}" if s else ""
            o.append(f"buffer_store_dwordx4 {vr(b, 4)}, v{t2}, {srd(SRD_O)}, s{sT0} offen{of}{ofl}")
        return o

    smt = {t: safe([x for tt, x in tail if tt == t]) for t in range(5)}
    assert not smt[4]
    wr = [f"ds_write_b128 v{t0}, {ar(OA + 128 + 4 * i, 4)} offset:{(i // 4) * HS + (i % 4) * 1024}" for i in range(8)]
    misc = [f"s_mul_i32 s{sOO}, s{sB}, 18", f"s_lshl_b32 s{sT0}, s{sW}, 2", f"s_add_u32 s{sT0}, s{sT0}, s{sOO}",
            f"s_mul_i32 s{sT0}, s{sT0}, {QP}", f"s_lshr_b32 s{sKN}, s{sH}, 3", f"s_mul_i32 s{sKN}, s{sKN}, {OPT['gpad']}",
            f"s_lshl_b32 s{sVN}, s{sH}, 12", f"s_add_u32 s{sKN}, s{sKN}, s{sVN}", f"s_add_u32 s{sT0}, s{sT0}, s{sKN}",
            f"v_lshlrev_b32 v{t2}, 4, v0", f"s_add_u32 s{sT1}, s{sWOF}, {TS * HS}", f"v_lshl_add_u32 v{t0}, v0, 4, s{sT1}"]
    lget = lambda t: [f"v_accvgpr_read_b32 v{Lr + t}, a{LA + 4 * t}"] + (
        [f"v_accvgpr_read_b32 v55, a{LA + 4 * t + 1}", f"v_add_f32 v{Lr + t}, v{Lr + t}, v55"] if t < 4 else [])
    lrd = lambda t: lget(t) + [f"v_rcp_f32 v{RC + 2 * t}, v{Lr + t}"]
    A.ext(vreads[:12])
    A.ext(smt[0])
    A.ext(misc[:2])
    mix(ones(0), misc[2:8])
    A("s_waitcnt lgkmcnt(4)")
    mix(pv(0)[:4], vreads[12:20])
    A("s_waitcnt lgkmcnt(4)")
    mix(pv(0)[4:8], vreads[20:28])
    A.ext(vreads[28:] + misc[8:] + lrd(0))
    A("s_waitcnt lgkmcnt(8)")
    n0 = norm_store(0, 16, False)
    mix(pv(0)[8:12], n0[:12])
    A("s_waitcnt lgkmcnt(0)")
    mix(pv(0)[12:], n0[12:21])
    mix(ones(4) + pv(4), smt[1] + n0[21:42])
    mix(ones(1) + pv(1), smt[2] + n0[42:63] + smt[3] + wr[:4])
    n1 = norm_store(1, 16, False)
    mix(ones(2) + ones(3) + pv(2), n0[63:] + wr[4:] + lrd(1) + n1[:22])
    st = lget(2) + lget(3) + lget(4)
    st += [f"s_lshl_b32 s{sT1}, s{sW}, 10", f"s_add_u32 s{sT1}, s{sT1}, {STATS}", f"v_lshl_add_u32 v{t1}, v0, 4, s{sT1}",
           f"v_add_f32 v53, v{Lr}, v{Lr + 1}", f"v_add_f32 v54, v{Lr + 2}, v{Lr + 3}", f"v_add_f32 v53, v53, v{Lr + 4}",
           f"v_add_f32 v53, v53, v54", f"v_mov_b32 v54, {f32bits(2.0 ** OPT['thr']):#x}", f"v_cmp_nlt_f32 vcc, v53, v54",
           f"v_mov_b32 v156, v{Lr + 4}", f"v_mov_b32 v157, v{NEG + 16}", f"v_mov_b32 v159, 0", f"v_cndmask_b32 v158, 0, 1, vcc",
           f"ds_write_b128 v{t1}, {vr(156, 4)}"]
    st += [f"v_rcp_f32 v{RC + 2 * t}, v{Lr + t}" for t in range(2, 4)]
    mix(pv(3), st + n1[22:43])
    A("s_waitcnt lgkmcnt(0)")
    A("s_barrier")
    A(f"s_and_b32 s{sT1}, s{sW}, 2")
    A(f"s_mul_i32 s{sT1}, s{sT1}, {4 * BLK}")
    A(f"s_mul_i32 s{sT2}, s{sP}, {HS}")
    A(f"s_add_u32 s{sT1}, s{sT1}, s{sT2}")
    A(f"s_add_u32 s{sT1}, s{sT1}, {TS * HS}")
    A(f"v_lshl_add_u32 v{t0}, v0, 4, s{sT1}")
    A(f"s_and_b32 s{sT1}, s{sW}, 2")
    A(f"s_lshl_b32 s{sT1}, s{sT1}, 10")
    A(f"v_lshl_add_u32 v{t1}, v0, 4, s{sT1}")
    A(f"v_xor_b32 v1, 2048, v{t1}")
    A(f"v_add_u32 v{t1}, {STATS}, v{t1}")
    A(f"v_add_u32 v1, {STATS}, v1")
    A(f"ds_read_b128 {vr(128, 4)}, v{t1}")
    A(f"ds_read_b128 {vr(132, 4)}, v{t1} offset:1024")
    A(f"ds_read_b128 {vr(136, 4)}, v1")
    A(f"ds_read_b128 {vr(140, 4)}, v1 offset:1024")
    for w in range(2):
        for q in range(4):
            A(f"ds_read_b128 {vr(96 + 16 * w + 4 * q, 4)}, v{t0} offset:{w * 4 * BLK + q * 1024}")
    A.ext(norm_store(1, 16, True)[35:])
    A("s_waitcnt lgkmcnt(0)")
    A("v_or3_b32 v144, v130, v134, v138")
    A("v_or_b32 v144, v144, v142")
    A("v_cmp_ne_u32 vcc, 0, v144")
    A("v_min_f32 v145, v129, v133")
    A("v_sub_f32 v129, v145, v129")
    A("v_sub_f32 v133, v145, v133")
    A("v_exp_f32 v129, v129")
    A("v_exp_f32 v133, v133")
    A(f"s_cmp_lg_u64 vcc, 0")
    A(f"s_cselect_b32 s{sT1}, 1, 0")
    A(f"s_cmp_gt_u32 s{sT1}, s{sREDO}")
    A("s_cbranch_scc1 L1_redo")
    A("v_mul_f32 v145, v128, v129")
    A("v_fmac_f32 v145, v132, v133")
    A("v_rcp_f32 v145, v145")
    A(f"s_lshr_b32 s{sT1}, s{sW}, 1")
    A(f"s_add_u32 s{sT1}, s{sT1}, s{sOO}")
    A(f"s_add_u32 s{sT1}, s{sT1}, 16")
    A(f"s_mul_i32 s{sT1}, s{sT1}, {QP}")
    A(f"s_add_u32 s{sT1}, s{sT1}, s{sKN}")
    A(f"s_lshl_b32 s{sT2}, s{sP}, 11")
    A(f"s_add_u32 s{sT1}, s{sT1}, s{sT2}")
    A("v_mul_f32 v129, v145, v129")
    A("v_mul_f32 v133, v145, v133")
    for e in range(16):
        A(f"v_mul_f32 v{96 + e}, v129, v{96 + e}")
    for e in range(16):
        A(f"v_fmac_f32 v{96 + e}, v133, v{112 + e}")
    for e in range(8):
        A(f"v_cvt_pk_bf16_f32 v{80 + e}, v{96 + 2 * e}, v{96 + 2 * e + 1}")
    for q in range(2):
        of = " offset:1024" if q else ""
        A(f"buffer_store_dwordx4 {vr(80 + 4 * q, 4)}, v{t2}, {srd(SRD_O)}, s{sT1} offen{of}{ofl}")
    rest = norm_store(2, 48, True) + norm_store(3, 16, True)
    if OPT["fuse"]:
        p3(A, rest)
    else:
        A.ext(rest)
    gx = [i for i, x in enumerate(body) if "L1_tail" in x][0]
    errs += hazard.check(body[:gx + 1] + A.l[T0:T0 + 60], "exit")
    if OPT["diag"]:
        if not OPT["fuse"]:
            stamp(A)
        A("s_waitcnt vmcnt(0)")
        stamp(A)
        A("s_memrealtime s[94:95]")
        A("s_waitcnt lgkmcnt(0)")
        A("v_writelane_b32 v250, s92, 62")
        A("v_writelane_b32 v250, s94, 63")
        for i in range(stamp_n[0]):
            A(f"v_writelane_b32 v250, s{sST + 2 * i}, {50 + i}")
        A("v_writelane_b32 v250, s90, 32")
        A("v_writelane_b32 v251, s96, 32")
        A(f"s_lshl_b32 s{sT0}, s2, 2")
        A(f"s_add_u32 s{sT0}, s{sT0}, s{sW}")
        A(f"s_lshl_b32 s{sT0}, s{sT0}, 8")
        A(f"s_add_u32 s{sT0}, s{sT0}, {DIAG_OFF}")
        A(f"v_lshlrev_b32 v{t0}, 2, v0")
        A(f"buffer_store_dword v250, v{t0}, {srd(SRD_O)}, s{sT0} offen")
        A(f"s_add_u32 s{sT0}, s{sT0}, {1 << 19}")
        A(f"buffer_store_dword v251, v{t0}, {srd(SRD_O)}, s{sT0} offen")
        if OPT["fuse"]:
            for i in range(3):
                A(f"v_writelane_b32 v251, s{78 + 2 * i}, {i}")
            A("v_writelane_b32 v251, s94, 3")
            A(f"s_add_u32 s{sT0}, s{sT0}, {1 << 19}")
            A(f"buffer_store_dword v251, v{t0}, {srd(SRD_O)}, s{sT0} offen")
            if OPT["dbg"]:
                for ln, src in ((4, 30), (5, 22), (6, 14), (7, 32)):
                    A(f"v_readlane_b32 s{sT1}, v251, {src}")
                    A("s_nop 3")
                    A(f"v_writelane_b32 v251, s{sT1}, {ln}")
                A("v_subrev_u32 v251, s92, v251")
                A(f"v_lshlrev_b32 v{t0}, 3, v0")
                A("s_cmp_ge_u32 s2, 216")
                A("s_cbranch_scc1 L1_end")
                A("s_mov_b64 exec, 0xff")
                A(f"buffer_atomic_umax v251, v{t0}, {srd(SRD_W)}, 0 offen offset:4")
    if OPT["dspin"]:
        A("s_waitcnt vmcnt(0)")
        A("s_memrealtime s[68:69]")
        A("s_waitcnt lgkmcnt(0)")
        a_, b_ = {1: (62, 62), 2: (64, 62), 3: (66, 64), 4: (68, 66)}[OPT["dspin"]]
        A(f"s_sub_u32 s70, s{a_}, s{b_}")
        A("s_add_u32 s70, s70, 20000")
        A.label("L1_ds")
        A("s_memrealtime s[72:73]")
        A("s_waitcnt lgkmcnt(0)")
        A("s_sub_u32 s71, s72, s62")
        A("s_cmp_lt_u32 s71, s70")
        A("s_cbranch_scc1 L1_ds")
    A.label("L1_end")
    A("s_endpgm")
    A.label("L1_redo")
    A(f"s_mov_b32 s{sREDO}, 1")
    A("s_waitcnt vmcnt(0) lgkmcnt(0)")
    A("s_barrier")
    A("s_load_dwordx4 s[32:35], s[0:1], 8")
    A(f"s_lshl_b32 s{sT1}, s{sB}, 5")
    A(f"s_add_u32 s{sT1}, s{sT1}, s{sH}")
    A(f"s_lshl_b32 s{sT1}, s{sT1}, 19")
    A("s_waitcnt lgkmcnt(0)")
    A(f"s_add_u32 s{SRD_K}, s32, s{sT1}")
    A(f"s_addc_u32 s{SRD_K + 1}, s33, 0")
    A(f"s_mov_b32 s{SRD_K + 2}, 524288")
    A(f"s_add_u32 s{SRD_V}, s34, s{sT1}")
    A(f"s_addc_u32 s{SRD_V + 1}, s35, 0")
    A(f"s_mov_b32 s{SRD_V + 2}, 524288")
    dma_regs(A)
    A("v_mov_b32 v7, 0")
    for n in range(2 * DD):
        for p in P(n):
            A.ext(p)
    for t in range(5):
        A(f"v_mov_b32 v{vM + t}, 0xff800000")
    A(f"v_lshlrev_b32 v{t0}, 8, v{i16}")
    A(f"v_lshl_add_u32 v{t0}, v{g4}, 4, v{t0}")
    A(f"s_lshl_b32 s{sT1}, s{sP}, 7")
    A(f"v_add_u32 v{t0}, s{sT1}, v{t0}")
    A(f"v_xor_b32 v{t1}, 128, v{t0}")
    A(f"s_mov_b32 s{sT1}, 0")
    A.label("L1_mx")
    for kk in range(4):
        o = f" offset:64" if kk & 1 else ""
        A(f"buffer_load_dwordx4 {vr(112 + 4 * kk, 4)}, v{t0 + (kk >> 1)}, {srd(SRD_K)}, s{sT1} offen{o}")
    A("s_waitcnt vmcnt(0)")
    for kk in range(4):
        for t in range(5):
            C = "0" if kk == 0 else vr(16 + 4 * t, 4)
            A(f"{MF} {vr(16 + 4 * t, 4)}, {vr(112 + 4 * kk, 4)}, {vr(QV + 16 * t + 4 * kk, 4)}, {C}")
    A("s_nop 7")
    for t in range(5):
        A(f"v_max3_f32 v{vM + t}, v{vM + t}, v{16 + 4 * t}, v{17 + 4 * t}")
        A(f"v_max3_f32 v{vM + t}, v{vM + t}, v{18 + 4 * t}, v{19 + 4 * t}")
    A(f"s_add_u32 s{sT1}, s{sT1}, 4096")
    A(f"s_cmp_lt_u32 s{sT1}, {4096 if OPT['twice'] else 524288}")
    A("s_cbranch_scc1 L1_mx")
    xlane5(A, "v_max_f32", vM, vM + 8)
    for t in range(5):
        for i in range(4):
            A(f"v_sub_f32 v{NEG + 4 * t + i}, 0, v{vM + t}")
    for i in range(180):
        A(f"v_accvgpr_write_b32 a{i}, 0")
    A.ext(loop_addr())
    loop_scalars(A)
    A("s_barrier")
    A.ext(k0reads)
    A("s_waitcnt lgkmcnt(0)")
    for kb in range(2):
        for kk in range(4):
            A.ext(qk0(kb, kk, True))
    A.ext(pro_rd)
    A("s_nop 7")
    A.ext(safe(sm0))
    A("s_branch L1_presm")
    return errs


def k2(A):
    DEP = 4
    SRD_A, SRD_WO, SRD_OUT = 4, 8, 12
    sW, sMT, sNT, sT0, sT1, sAS, sBS, sLD, sCNT = 16, 17, 18, 19, 20, 21, 22, 23, 24
    vA, vBD, vBR, t0, t1 = 2, 8, 9, 13, 14
    ACC2, ORING, WF = 16, 112, 208
    A.raw(".p2align 8")
    A.raw(".globl oproj_kernel")
    A.raw(".type oproj_kernel,@function")
    A.label("oproj_kernel")
    A(f"s_cmp_ge_u32 s2, {OPT['k2grid']}")
    A("s_cbranch_scc1 L2_end")
    A("s_load_dwordx4 s[32:35], s[0:1], 32")
    A("s_load_dwordx2 s[36:37], s[0:1], 56")
    if OPT["diag"]:
        A("s_memrealtime s[60:61]")
    A("v_lshrrev_b32 v1, 6, v0")
    A("v_and_b32 v0, 63, v0")
    A(f"v_readfirstlane_b32 s{sW}, v1")
    A("s_and_b32 s25, s2, 7")
    A("s_lshr_b32 s26, s2, 3")
    A(f"s_mul_i32 s{sNT}, s26, 43")
    A(f"s_lshr_b32 s{sNT}, s{sNT}, 7")
    A(f"s_mul_i32 s{sT0}, s{sNT}, 3")
    A(f"s_sub_u32 s{sT0}, s26, s{sT0}")
    A(f"s_mul_i32 s{sMT}, s25, 3")
    A(f"s_add_u32 s{sMT}, s{sMT}, s{sT0}")
    A(f"v_lshlrev_b32 v{vA}, 4, v0")
    for i in range(1, 6):
        A(f"v_add_u32 v{vA + i}, {i * 131072}, v{vA}")
    A(f"v_lshrrev_b32 v{t0}, 3, v0")
    A(f"v_mul_u32_u24 v{vBD}, 1152, v{t0}")
    A(f"v_lshrrev_b32 v{t0}, 4, v0")
    A(f"v_lshlrev_b32 v{t0}, 1, v{t0}")
    A(f"v_and_b32 v{t1}, 7, v0")
    A(f"v_xor_b32 v{t0}, v{t0}, v{t1}")
    A(f"v_lshl_add_u32 v{vBD}, v{t0}, 4, v{vBD}")
    A(f"v_lshrrev_b32 v{t0}, 2, v0")
    A(f"v_lshlrev_b32 v{vBR}, 7, v{t0}")
    A(f"v_bfe_u32 v{t0}, v0, 3, 2")
    A(f"v_lshl_add_u32 v{vBR}, v{t0}, 5, v{vBR}")
    A(f"v_and_b32 v{t0}, 3, v0")
    A(f"v_lshl_add_u32 v{vBR}, v{t0}, 3, v{vBR}")
    A(f"s_mul_i32 s{sLD}, s{sW}, {DEP * 4096}")
    A(f"v_add_u32 v{vBR}, s{sLD}, v{vBR}")
    for n in range(1, 4):
        A(f"v_xor_b32 v{vBR + n}, {32 * n}, v{vBR}")
    A("s_waitcnt lgkmcnt(0)")
    A(f"s_mov_b32 s{SRD_A}, s36")
    A(f"s_mov_b32 s{SRD_A + 1}, s37")
    A(f"s_mov_b32 s{SRD_A + 2}, {(DIAG_OFF + (2 << 20)) if OPT['diag'] else WS_O_BYTES}")
    A(f"s_mov_b32 s{SRD_A + 3}, 0x20000")
    A(f"s_mov_b32 s{SRD_WO}, s32")
    A(f"s_mov_b32 s{SRD_WO + 1}, s33")
    A(f"s_mov_b32 s{SRD_WO + 2}, {4096 * 1152}")
    A(f"s_mov_b32 s{SRD_WO + 3}, 0x20000")
    A(f"s_mov_b32 s{SRD_OUT}, s34")
    A(f"s_mov_b32 s{SRD_OUT + 1}, s35")
    A(f"s_mov_b32 s{SRD_OUT + 2}, {2304 * 1152}")
    A(f"s_mov_b32 s{SRD_OUT + 3}, 0x20000")
    A(f"s_mul_i32 s{sAS}, s{sMT}, 786432")
    A(f"s_lshl_b32 s{sT0}, s{sW}, 15")
    A(f"s_add_u32 s{sAS}, s{sAS}, s{sT0}")
    A(f"s_mul_i32 s{sBS}, s{sW}, {1024 * 1152}")
    A(f"s_lshl_b32 s{sT0}, s{sNT}, 7")
    A(f"s_add_u32 s{sBS}, s{sBS}, s{sT0}")
    WN = OPT["k2rot"]
    sA0, sB0, sPH, sI = 27, 28, 29, 30

    def blk_addr():
        return [f"s_add_u32 s{sT1}, s{sI}, s{sPH}", f"s_and_b32 s{sT1}, s{sT1}, {WN - 1}",
                f"s_and_b32 s31, s{sI}, {(~(WN - 1)) & 0xff}", f"s_or_b32 s{sT1}, s{sT1}, s31",
                f"s_mul_i32 s{sBS}, s{sT1}, {DEP * 32 * 1152}", f"s_add_u32 s{sBS}, s{sBS}, s{sB0}",
                f"s_lshl_b32 s{sAS}, s{sT1}, 12", f"s_add_u32 s{sAS}, s{sAS}, s{sA0}", f"s_add_u32 s{sI}, s{sI}, 1"]
    A(f"s_mov_b32 s{sA0}, s{sAS}")
    A(f"s_mov_b32 s{sB0}, s{sBS}")
    A(f"s_mul_i32 s{sPH}, s{sMT}, {OPT['k2mul']}")
    A(f"s_add_u32 s{sPH}, s{sPH}, s{sNT}")
    A(f"s_mov_b32 s{sI}, 0")
    A.ext(blk_addr())

    def loads(d):
        o = []
        for i in range(4):
            o.append([f"s_add_u32 m0, s{sLD}, {d * 4096 + i * 1024}",
                      f"s_add_u32 s{sT0}, s{sBS}, {(32 * d + 8 * i) * 1152}",
                      f"buffer_load_dwordx4 v{vBD}, {srd(SRD_WO)}, s{sT0} offen lds"])
        off = f" offset:{d * 1024}" if d else ""
        for i in range(6):
            o.append([f"buffer_load_dwordx4 {vr(ORING + 24 * d + 4 * i, 4)}, v{vA + i}, {srd(SRD_A)}, s{sAS} offen{off}"])
        return o

    def wreads(d):
        b = WF + 16 * (d % 2)
        return [f"ds_read_b64_tr_b16 {vr(b + 4 * n + 2 * e, 2)}, v{vBR + n} offset:{d * 4096 + e * 2048}"
                for n in range(4) for e in range(2)]

    zi = 0
    for d in range(DEP - 1):
        for g in loads(d):
            A.ext(g)
            for _ in range(4):
                if zi < 96:
                    A(f"v_mov_b32 v{ACC2 + zi}, 0")
                    zi += 1
    assert zi == 96
    A(f"s_mov_b32 s{sCNT}, {32 // DEP}")
    A(f"s_waitcnt vmcnt({10 * (DEP - 2) + 6})")
    if OPT["diag"]:
        A("s_memrealtime s[62:63]")
    A.ext(wreads(0))
    A.label("L2_loop")
    body = []
    Bd = body.append
    for d in range(DEP):
        Bd(f"s_waitcnt vmcnt({10 * (DEP - 3) + 6})")
        body += wreads((d + 1) % DEP)
        Bd("s_waitcnt lgkmcnt(8)")
        b = WF + 16 * (d % 2)
        ld = loads((d - 1) % DEP)
        k = 0
        for n in range(4):
            for i in range(6):
                acc = vr(ACC2 + 4 * (6 * n + i), 4)
                Bd(f"{MF} {acc}, {vr(b + 4 * n, 4)}, {vr(ORING + 24 * d + 4 * i, 4)}, {acc}")
                k += 1
                if ld and k % 2 == 0:
                    body += ld.pop(0)
        if d == 0:
            body += blk_addr()
            Bd(f"s_cmp_eq_u32 s{sCNT}, 1")
            Bd(f"s_cselect_b32 s{sAS}, 0x40000000, s{sAS}")
            Bd(f"s_cselect_b32 s{sBS}, 0x40000000, s{sBS}")
    Bd(f"s_sub_u32 s{sCNT}, s{sCNT}, 1")
    Bd(f"s_cmp_lg_u32 s{sCNT}, 0")
    A.ext(body)
    A("s_cbranch_scc1 L2_loop")
    errs = hazard.check(body + body, "k2loop")
    if OPT["diag"]:
        A("s_memrealtime s[64:65]")
    A("s_waitcnt vmcnt(0) lgkmcnt(0)")
    A("s_barrier")
    A(f"s_mul_i32 s{sT0}, s{sW}, 24576")
    A(f"v_lshl_add_u32 v{t0}, v0, 4, s{sT0}")
    A("s_nop 7")
    for q in range(24):
        A(f"ds_write_b128 v{t0}, {vr(ACC2 + 4 * q, 4)} offset:{q * 1024}")
    A(f"v_and_b32 v{t0}, 15, v0")
    A(f"v_lshlrev_b32 v{t0}, 4, v{t0}")
    A(f"v_bfe_u32 v{t1}, v0, 4, 1")
    A(f"v_lshl_add_u32 v{t0}, v{t1}, 9, v{t0}")
    A(f"v_lshrrev_b32 v{t1}, 5, v0")
    A(f"v_lshl_add_u32 v{t0}, v{t1}, 10, v{t0}")
    A(f"s_mul_i32 s{sT0}, s{sW}, {6 * 1024}")
    A(f"v_add_u32 v{t0}, s{sT0}, v{t0}")
    A(f"v_add_u32 v{t1}, 49152, v{t0}")
    A("s_waitcnt lgkmcnt(0)")
    A("s_barrier")
    for w in range(4):
        for x in range(3):
            for q in range(2):
                A(f"ds_read_b128 {vr(ORING + 24 * w + 8 * x + 4 * q, 4)}, v{t0 if w < 2 else t1} offset:{(w % 2) * 24576 + x * 2048 + q * 256}")
        if w % 2 == 1:
            A("s_waitcnt lgkmcnt(0)")
    for w in range(1, 4):
        for e in range(24):
            A(f"v_add_f32 v{ORING + e}, v{ORING + e}, v{ORING + 24 * w + e}")
    for e in range(12):
        A(f"v_cvt_pk_bf16_f32 v{ACC2 + e}, v{ORING + 2 * e}, v{ORING + 2 * e + 1}")
    A(f"v_and_b32 v{t0}, 15, v0")
    A(f"v_lshrrev_b32 v{t1}, 5, v0")
    A(f"v_lshl_add_u32 v{t0}, v{t1}, 4, v{t0}")
    A(f"v_mul_u32_u24 v{t0}, 1152, v{t0}")
    A(f"v_bfe_u32 v{t1}, v0, 4, 1")
    A(f"v_lshl_add_u32 v{t0}, v{t1}, 4, v{t0}")
    A(f"s_mul_i32 s{sAS}, s{sMT}, {96 * 1152}")
    A(f"s_lshl_b32 s{sT0}, s{sNT}, 7")
    A(f"s_add_u32 s{sAS}, s{sAS}, s{sT0}")
    A(f"s_lshl_b32 s{sT0}, s{sW}, 5")
    A(f"s_add_u32 s{sAS}, s{sAS}, s{sT0}")
    for x in range(3):
        A(f"buffer_store_dwordx4 {vr(ACC2 + 4 * x, 4)}, v{t0}, {srd(SRD_OUT)}, s{sAS} offen")
        A(f"s_add_u32 s{sAS}, s{sAS}, {32 * 1152}")
    if OPT["diag"]:
        A("s_waitcnt vmcnt(0)")
        A("s_memrealtime s[66:67]")
        A("s_waitcnt lgkmcnt(0)")
        for i in range(4):
            A(f"v_writelane_b32 v250, s{60 + 2 * i}, {i}")
        A(f"s_lshl_b32 s{sT0}, s2, 2")
        A(f"s_add_u32 s{sT0}, s{sT0}, s{sW}")
        A(f"s_lshl_b32 s{sT0}, s{sT0}, 8")
        A(f"s_add_u32 s{sT0}, s{sT0}, {DIAG_OFF + (1 << 20)}")
        A(f"v_lshlrev_b32 v{t0}, 2, v0")
        A(f"buffer_store_dword v250, v{t0}, {srd(SRD_A)}, s{sT0} offen")
    A.label("L2_end")
    A("s_endpgm")
    return errs


def desc(name, vg, acc, sg=102):
    return f""".p2align 6
.amdhsa_kernel {name}
  .amdhsa_next_free_vgpr {vg}
  .amdhsa_next_free_sgpr {sg}
  .amdhsa_accum_offset {acc}
  .amdhsa_group_segment_fixed_size 0
  .amdhsa_kernarg_size 64
  .amdhsa_user_sgpr_count 2
  .amdhsa_user_sgpr_kernarg_segment_ptr 1
  .amdhsa_system_sgpr_workgroup_id_x 1
.end_amdhsa_kernel
"""


def main():
    A = Asm()
    e = k1(A)
    if not OPT["fuse"]:
        e += k2(A)
    A.label("L_code_end")
    e += hazard.check(A.l, "linear")
    for x in e:
        print(x, file=sys.stderr)
    hdr = f"""; MHA block (q projection + cached attention + output projection) for gfx950, one launch.
; kernarg: x, k_cache, v_cache, wq, wo, out, debug, ws   (bf16 in / out)
;
;  1. q^T = wq^T x^T through LDS-DMA staged chunks, scaled by log2(e)/sqrt(128) in fp32, rounded once to bf16
;     m = row max over the first 16 keys.  m <= true max, so nothing can underflow early; after the sweep the row
;  3. o (bf16, MFMA fragment order) goes to ws with write-through stores; per (batch, 8 heads) counters in d_debug
; @launch kernel=attn_kernel grid=(256,1,1) block=(256,1,1) lds={LDS1}
.amdgcn_target "amdgcn-amd-amdhsa--gfx950"
.text
.globl attn_kernel
"""
    txt = hdr + "\n".join(A.l) + "\n.section .rodata,\"a\"\n" + desc("attn_kernel", 512, 256) + ("" if OPT["fuse"] else desc("oproj_kernel", 256, 256))
    open(sys.argv[1], "w").write(txt)
    if e and not (OPT["nodma"] or OPT["nomf"]):
        sys.exit(1)


main()
```
